```python
import torch

def _softmax(x, axis=-1):
    return torch.softmax(x, dim=axis)
def _gelu(x):
    return torch.nn.functional.gelu(x, approximate="tanh")
def _silu(x):
    return torch.nn.functional.silu(x)
def _sigmoid(x):
    return torch.sigmoid(x)
def _layernorm(x, axis=-1, eps=1e-5):
    m = x.mean(dim=axis, keepdim=True)
    v = x.var(dim=axis, keepdim=True, unbiased=False)
    return (x - m) / torch.sqrt(v + eps)
def _scatter_add(tgt, idx, src, axis=0):
    return tgt.clone().index_add_(axis, idx, src)
def _segment_sum(src, seg, n):
    out = torch.zeros((n,) + src.shape[1:], dtype=src.dtype)
    return out.index_add_(0, seg, src)
def _pad(x, pw):
    flat = tuple(v for pair in reversed(pw) for v in pair)
    return torch.nn.functional.pad(x, flat)

kernel_name = 'sequential_preLN__ssm_conv_s4d__geglu_ffn__prompt'

def setup_inputs():

    _w = (lambda a: (lambda t: t.to(torch.bfloat16) if t.is_floating_point() else t)(torch.as_tensor(a)))
    def _A_setup():
        Bsz, L, D, N = 1, 2048, 448, 256
        return {
            "u": _w((lambda *s: torch.randn(*s, dtype=torch.bfloat16) * 0.05)(Bsz, L, D)),
            "log_A_real": _w((lambda *s: torch.randn(*s, dtype=torch.bfloat16) * 6.4)(D, N) * 0.5),
            "A_imag": _w((lambda *s: torch.randn(*s, dtype=torch.bfloat16) * 0.05)(D, N) * 3.14),
            "C_real": _w((lambda *s: torch.randn(*s, dtype=torch.bfloat16) * 0.05)(D, N) / N ** 0.5),
            "C_imag": _w((lambda *s: torch.randn(*s, dtype=torch.bfloat16) * 0.05)(D, N) / N ** 0.5),
            "log_dt": _w((lambda *s: torch.randn(*s, dtype=torch.bfloat16) * 0.05)(D) * 0.5 - 4.0),
            "D_skip": _w((lambda *s: torch.randn(*s, dtype=torch.bfloat16) * 0.05)(D)),
        }
    _A_in = _A_setup()

    def _B_setup():
        B, S, D, F = 1, 2048, 448, 1792
        return {
            "x": _w((lambda *s: torch.randn(*s, dtype=torch.bfloat16) * 0.05)(B, S, D)),
            "w_gate": _w((lambda *s: torch.randn(*s, dtype=torch.bfloat16) * 0.05)(D, F)),
            "w_up": _w((lambda *s: torch.randn(*s, dtype=torch.bfloat16) * 0.05)(D, F)),
            "w_down": _w((lambda *s: torch.randn(*s, dtype=torch.bfloat16) * 0.05)(F, D)),
        }
    _B_in = _B_setup()

    return {
        "A_u": _A_in["u"],
        "A_log_A_real": _A_in["log_A_real"],
        "A_A_imag": _A_in["A_imag"],
        "A_C_real": _A_in["C_real"],
        "A_C_imag": _A_in["C_imag"],
        "A_log_dt": _A_in["log_dt"],
        "A_D_skip": _A_in["D_skip"],
        "B_x": _B_in["x"],
        "B_w_gate": _B_in["w_gate"],
        "B_w_up": _B_in["w_up"],
        "B_w_down": _B_in["w_down"],
    }

def reference(A_u, A_log_A_real, A_A_imag, A_C_real, A_C_imag, A_log_dt, A_D_skip, B_x, B_w_gate, B_w_up, B_w_down):
    def _A_ref(u, log_A_real, A_imag, C_real, C_imag, log_dt, D_skip):
        L = u.shape[1]
        dt = torch.exp(log_dt)
        A = -torch.exp(log_A_real) + 1j * A_imag
        C = (C_real + 1j * C_imag) * dt[:, None]
        pos = (lambda x, dt: x.to(dt))(torch.arange(L), log_dt.dtype)
        P = torch.exp((A * dt[:, None])[:, :, None] * pos[None, None, :])
        K = 2.0 * torch.einsum("dn,dnl->dl", C, P).real
        L2 = 2 * L
        u_t = (lambda x, *d: x.permute(*d))(u, 0, 2, 1)
        Kf = (lambda x, *a, **k: torch.fft.rfft(x.float(), *a, **k))(K, L2)
        Uf = (lambda x, *a, **k: torch.fft.rfft(x.float(), *a, **k))(u_t, L2)
        y = (lambda x, *a, **k: torch.fft.irfft(x, *a, **k).to(torch.bfloat16))(Uf * Kf[None, :, :], L2)[:, :, :L]
        y = (lambda x, *d: x.permute(*d))(y, 0, 2, 1)
        return y + u * D_skip[None, None, :]

    def _B_ref(x, w_gate, w_up, w_down):
        return (_gelu(x @ w_gate) * (x @ w_up)) @ w_down

    x = A_u
    h = x + _A_ref(_layernorm(x, axis=-1), A_log_A_real, A_A_imag, A_C_real, A_C_imag, A_log_dt, A_D_skip)
    h2 = h + _B_ref(_layernorm(h, axis=-1), B_w_gate, B_w_up, B_w_down)
    return h2
```

```python
import re

REG_RE = re.compile(r"^(-|abs\()?([vas])(\d+|\[(\d+):(\d+)\])\)?$")
TRANS = ("v_exp_f32", "v_log_f32", "v_rcp_f32", "v_rsq_f32", "v_sqrt_f32", "v_sin_f32", "v_cos_f32")


def regs_of(tok):
    tok = tok.strip()
    if tok in ("vcc",):
        return {"vcc"}
    if tok in ("exec",):
        return {"exec"}
    if tok == "m0":
        return {"m0"}
    m = REG_RE.match(tok)
    if not m:
        return set()
    k = m.group(2)
    if m.group(4) is not None:
        return {f"{k}{i}" for i in range(int(m.group(4)), int(m.group(5)) + 1)}
    return {f"{k}{m.group(3)}"}


def split_ops(s):
    out, depth, cur = [], 0, ""
    for ch in s:
        if ch in "[(":
            depth += 1
        if ch in "])":
            depth -= 1
        if ch == "," and depth == 0:
            out.append(cur.strip())
            cur = ""
        else:
            cur += ch
    if cur.strip():
        out.append(cur.strip())
    return out


class Ins:
    __slots__ = ("text", "mn", "ops", "mods", "rd", "wr", "cls", "passes", "tok", "cond", "srcC", "srcAB", "extra")

    def __init__(self, text, tok=None, cond=False):
        self.text = text
        self.tok = tok
        self.cond = cond
        self.extra = None
        t = text.split(";")[0].strip()
        self.rd, self.wr = set(), set()
        self.passes = 0
        self.srcC = set()
        self.srcAB = set()
        if t.endswith(":") or t.startswith(".") or not t:
            self.mn, self.ops, self.mods, self.cls = t, [], "", "label" if t.endswith(":") else "dir"
            return
        parts = t.split(None, 1)
        mn = parts[0]
        rest = parts[1] if len(parts) > 1 else ""
        ops = split_ops(rest)
        mods = ""
        if ops:
            last = ops[-1].split(None, 1)
            if len(last) > 1 and not mn.startswith("s_waitcnt"):
                ops[-1] = last[0]
                mods = last[1]
        self.mn, self.ops, self.mods = mn, ops, mods
        base = re.sub(r"_(e32|e64|dpp|sdwa)$", "", mn)
        R = [regs_of(o) for o in ops]
        allr = lambda idx: set().union(*[R[i] for i in idx]) if idx else set()
        n = len(ops)
        if mn.startswith("v_mfma"):
            self.cls = "mfma"
            self.passes = 8 if "32x32x16" in mn else (4 if "16x16x32" in mn else 2)
            self.wr = R[0]
            self.srcAB = R[1] | R[2]
            self.srcC = R[3]
            self.rd = self.srcAB | self.srcC
        elif mn.startswith("v_"):
            self.cls = "valu"
            if base in TRANS:
                self.cls = "trans"
            if base.startswith("v_dot2"):
                self.cls = "dot"
            if base in ("v_swap_b32",) or base.startswith("v_permlane"):
                self.wr = R[0] | R[1]
                self.rd = R[0] | R[1]
                if base.startswith("v_permlane"):
                    self.extra = "permlane"
            elif base in ("v_add_co_u32", "v_sub_co_u32", "v_addc_co_u32", "v_subb_co_u32"):
                self.wr = R[0] | R[1]
                self.rd = allr(range(2, n))
            else:
                self.wr = R[0]
                self.rd = allr(range(1, n))
                if base in ("v_fmac_f32", "v_dot2c_f32_bf16", "v_writelane_b32") or "_dpp" in mn or "row_" in mods or "quad_perm" in mods:
                    self.rd |= R[0]
                if "_dpp" in mn or "row_" in mods or "quad_perm" in mods:
                    self.extra = "dpp"
                if base in ("v_readfirstlane_b32", "v_readlane_b32"):
                    self.extra = "readlane"
                if base.startswith("v_dot2"):
                    self.srcC = R[0] if base.startswith("v_dot2c") else R[3]
                    self.srcAB = R[1] | R[2]
        elif mn.startswith("ds_"):
            self.cls = "ds"
            if mn.startswith("ds_read") or mn.startswith("ds_bpermute") or mn.startswith("ds_swizzle"):
                self.wr = R[0]
                self.rd = allr(range(1, n))
                if "d16" in mn:
                    self.rd |= R[0]
            else:
                self.rd = allr(range(n))
        elif mn.startswith("buffer_") or mn.startswith("global_"):
            self.cls = "vmem"
            islds = " lds" in (" " + mods)
            if "_load" in mn and not islds:
                self.wr = R[0]
                self.rd = allr(range(1, n))
            else:
                self.rd = allr(range(n))
                if islds:
                    self.rd |= {"m0"}
                    self.extra = "dma"
                elif "x4" in mn or "x3" in mn:
                    self.extra = "widestore"
        elif mn.startswith("s_load") or mn.startswith("s_mem"):
            self.cls = "smem"
            self.wr = R[0]
            self.rd = allr(range(1, n))
        elif mn.startswith("s_"):
            self.cls = "salu"
            if mn in ("s_waitcnt", "s_barrier", "s_nop", "s_endpgm", "s_sleep", "s_setprio") or mn.startswith("s_cbranch") or mn == "s_branch":
                self.cls = "ctl"
            elif mn.startswith("s_cmp"):
                self.rd = allr(range(n))
            else:
                self.wr = R[0]
                self.rd = allr(range(1, n))
                if "saveexec" in mn:
                    self.wr |= {"exec"}
        else:
            raise ValueError("unknown instruction: " + text)

    def states(self):
        if self.cls in ("label", "dir"):
            return 0
        if self.mn == "s_nop":
            return int(self.ops[0]) + 1
        return 1


def need_states(p, c):
    n = 0
    pv = p.cls in ("valu", "trans", "dot")
    cv = c.cls in ("valu", "trans", "dot")
    if pv:
        vw = {r for r in p.wr if r[0] in "va" and r != "vcc"}
        sw = {r for r in p.wr if r[0] == "s" or r == "vcc"}
        if c.cls == "mfma" and vw & c.rd:
            n = max(n, 2)
        if c.extra == "dpp" and vw & c.rd:
            n = max(n, 2)
        if c.extra == "permlane" and vw & c.rd:
            n = max(n, 2)
        if c.extra == "readlane" and vw & c.rd:
            n = max(n, 1)
        if sw & c.rd:
            if cv:
                n = max(n, 4 if c.extra == "readlane" else 2)
            if c.cls == "vmem":
                n = max(n, 5)
        if p.cls == "trans" and vw & c.rd and c.cls != "trans":
            n = max(n, 1)
        if p.cls == "dot":
            if c.cls == "dot" and c.mn == p.mn:
                if vw & c.srcAB:
                    n = max(n, 3)
            elif vw & (c.rd | c.wr):
                n = max(n, 3)
    if p.cls == "mfma":
        P = p.passes
        long = {2: 5, 4: 8, 8: 12}[P]
        if c.cls == "mfma":
            if p.wr & c.srcAB:
                n = max(n, long)
            if p.wr & c.srcC:
                if p.wr == c.srcC and c.passes == P:
                    n = max(n, 2 if P == 2 else 0)
                else:
                    n = max(n, P + 2)
            elif p.wr & c.wr:
                n = max(n, P + 2)
        elif p.wr & (c.rd | c.wr):
            n = max(n, long)
        if cv and p.srcC & c.wr:
            n = max(n, {2: 1, 4: 3, 8: 7}[P])
    if p.extra == "widestore":
        data = regs_of(p.ops[0]) if p.mn.startswith("buffer_") else regs_of(p.ops[1])
        if data & c.wr:
            n = max(n, 2)
    if p.cls == "salu" and "m0" in p.wr and c.extra == "dma":
        n = max(n, 1)
    return n


class Prog:
    def __init__(self):
        self.ins = []
        self._cond = False

    def __call__(self, text, tok=None):
        for line in text.split("\n"):
            line = line.strip()
            if not line or line.startswith(";"):
                continue
            self.ins.append(Ins(line, tok=tok, cond=self._cond))

    def add(self, lst):
        for i in lst:
            self.ins.append(i)

    def cond(self, on):
        self._cond = on

    def wait(self, tok):
        i = Ins("s_waitcnt auto", cond=self._cond)
        i.extra = ("wait", tok)
        self.ins.append(i)

    def lds_fence(self):
        self("s_waitcnt lgkmcnt(0)")


def sub():
    return Prog()


def interleave(main, fill, start=0, every=None, weights=None):
    idx = [k for k, i in enumerate(main) if i.cls == "mfma"]
    idx = idx[start:]
    if not idx:
        return main + fill
    n = len(idx)
    cost = lambda i: 2 if i.cls == "trans" else (0 if (i.extra and isinstance(i.extra, tuple)) else 1)
    total = sum(cost(i) for i in fill)
    out = []
    fi = 0
    done = 0
    seen = 0
    for k, i in enumerate(main):
        out.append(i)
        if k in idx:
            seen += 1
            target = total * seen / n if every is None else min(total, every * seen)
            while fi < len(fill) and done + cost(fill[fi]) <= target + 1e-9:
                out.append(fill[fi])
                done += cost(fill[fi])
                fi += 1
    out += fill[fi:]
    return out


def finalize(ins, verbose=False):
    out = []
    vm = []
    lg = []
    smem_out = []

    def emit_wait(vmn=None, lgn=None, cond=False):
        parts = []
        if vmn is not None:
            parts.append(f"vmcnt({min(vmn, 62)})")
        if lgn is not None:
            parts.append(f"lgkmcnt({min(lgn, 14)})")
        w = Ins("s_waitcnt " + " ".join(parts), cond=cond)
        out.append(w)

    def younger(lst, k, cond):
        return sum(1 for j in lst[k + 1:] if (not j.cond) or cond)

    for i in ins:
        if isinstance(i.extra, tuple) and i.extra[0] == "wait":
            tok = i.extra[1]
            kv = max([k for k, j in enumerate(vm) if j.tok == tok], default=None)
            kl = max([k for k, j in enumerate(lg) if j.tok == tok], default=None)
            if kv is not None or kl is not None:
                emit_wait(None if kv is None else younger(vm, kv, i.cond), None if kl is None else younger(lg, kl, i.cond), i.cond)
                if not i.cond:
                    if kv is not None:
                        vm = vm[kv + 1:]
                    if kl is not None:
                        lg = lg[kl + 1:]
                else:
                    if kv is not None:
                        vm = [j for k, j in enumerate(vm) if not (k <= kv and j.cond)]
                    if kl is not None:
                        lg = [j for k, j in enumerate(lg) if not (k <= kl and j.cond)]
            continue
        if i.mn == "s_waitcnt":
            t = i.text
            m = re.search(r"vmcnt\((\d+)\)", t)
            if m:
                n = int(m.group(1))
                assert n == 0, "manual counted vmcnt not supported"
                vm = [] if not i.cond else [j for j in vm if not j.cond]
            m = re.search(r"lgkmcnt\((\d+)\)", t)
            if m:
                assert int(m.group(1)) == 0
                if not i.cond:
                    lg = []
                    smem_out = []
                else:
                    lg = [j for j in lg if not j.cond]
            out.append(i)
            continue
        touched = i.rd | i.wr
        for j in smem_out:
            assert not (j.wr & touched), f"use of SMEM result without lgkmcnt(0): {i.text}"
        kv = max([k for k, j in enumerate(vm) if j.wr & touched], default=None)
        kl = max([k for k, j in enumerate(lg) if j.wr & touched], default=None)
        if kl is not None and i.cls == "ds" and "d16" in i.mn and not (lg[kl].wr & (i.rd - i.wr)):
            kl = None
        if kl is not None and not any(j.cond for j in lg):
            kl = max(kl, len(lg) - 1 - 14)
        if kv is not None or kl is not None:
            if kl is not None and smem_out:
                emit_wait(None if kv is None else younger(vm, kv, i.cond), 0, i.cond)
                if not i.cond:
                    lg = []
                    smem_out = []
            else:
                emit_wait(None if kv is None else younger(vm, kv, i.cond), None if kl is None else younger(lg, kl, i.cond), i.cond)
            if not i.cond:
                if kv is not None:
                    vm = vm[kv + 1:]
                if kl is not None and lg:
                    lg = lg[kl + 1:]
            else:
                if kv is not None:
                    vm = [j for k, j in enumerate(vm) if not (k <= kv and j.cond)]
                if kl is not None:
                    lg = [j for k, j in enumerate(lg) if not (k <= kl and j.cond)]
        out.append(i)
        if i.cls == "vmem":
            vm.append(i)
            assert len(vm) <= 63, "too many outstanding vmem ops at " + i.text
        elif i.cls == "ds":
            lg.append(i)
        elif i.cls == "smem":
            smem_out.append(i)

    res = []
    nn = 0
    for i in out:
        if i.cls not in ("label", "dir", "ctl"):
            dist = 0
            need = 0
            for p in reversed(res):
                if dist >= 20:
                    break
                r = need_states(p, i)
                if r > dist:
                    need = max(need, r - dist)
                if not (p.cond and not i.cond):
                    dist += p.states()
            while need > 0:
                k = min(need, 16)
                res.append(Ins(f"s_nop {k-1}", cond=i.cond))
                nn += 1
                need -= k
        res.append(i)
    if verbose:
        print(f"instructions: {len(res)}, nops inserted: {nn}")
    return res


def text_of(res):
    return "\n".join((i.text if i.cls in ("label", "dir") else "    " + i.text) for i in res)
```

```python
import sys, math, struct
from asmgen import *

NAME = "sequential_preLN__ssm_conv_s4d__geglu_ffn__prompt"
KN = NAME + "_kernel"
STOP = None
STAMPS = False
for a in sys.argv[1:]:
    if a.startswith("stop="):
        STOP = a[5:]
    if a == "stamps":
        STAMPS = True
OUTF = [a[4:] for a in sys.argv[1:] if a.startswith("out=")]
OUTF = OUTF[0] if OUTF else "k1.s"


def f32(x):
    return "0x%08x" % struct.unpack("<I", struct.pack("<f", x))[0]


FS = 64
WS_EPOCH = 0
WS_F1 = 0x1000
WS_F2 = 0x8000
WS_F3 = 0x28000
WS_UX = 0x80000
WS_P = WS_UX + 256 * 14336
WS_H = WS_P + 224 * 8192
WS_END = WS_H + 16 * 4 * 56 * 2048
WS_DBG = 0x1000000
WS_SIZE = 0x2000000

CS = 4160
L_KC = 0
L_U = 33280
U_ROW = 4608
L_XP = 42496
L_EX = 50688
L_TAB = 0
TAB_W = 14464
TAB_ROW = 272
L_RING = 81920
RING_W = 20480
L_G = L_RING
L_ACT = 0
ACT_T = 28672
L_ST = 159744
L_WD = 0
WD_W = 28672
L_R = 114688
R_SZ = 17408
LDS_SIZE = 163840

S_W = 2
S_V = 4
S_T0, S_T1, S_T2, S_T3 = 5, 6, 7, 3
SRD_X, SRD_WS, SRD_WG, SRD_WU, SRD_WD, SRD_OUT = 8, 12, 16, 20, 24, 28
S_NONCE = 32
S_CNT = 33
S_EX = 34
P_BASE = 36
S_LDT, S_DSK = 64, 65
S_TB, S_FB, S_FH, S_DB = 66, 67, 68, 69
S_A, S_B = 70, 72
S_C, S_D = 74, 76
S_RING = 78
S_WOFF = 79
S_K0, S_K1 = 80, 81
S_STAMP = 84


def srd(n):
    return f"s[{n}:{n+3}]"


def v(n, w=1):
    return f"v{n}" if w == 1 else f"v[{n}:{n+w-1}]"


def acc(n, w=1):
    return f"a{n}" if w == 1 else f"a[{n}:{n+w-1}]"


P = Prog()
nstamp = [0]


def stamp(p=P):
    if STAMPS:
        k = nstamp[0]
        assert k < 16
        p(f"s_memrealtime s[{S_STAMP}:{S_STAMP+1}]")
        p("s_waitcnt lgkmcnt(0)")
        p(f"v_writelane_b32 v255, s{S_STAMP}, {k}")
        nstamp[0] += 1


lblc = [0]


def label(prefix):
    lblc[0] += 1
    return f"L_{prefix}_{lblc[0]}"


def poll(p, vaddr, vtmp):
    lp, done = label("poll"), label("pdone")
    p(f"s_mov_b32 s{S_CNT}, 0")
    p(f"{lp}:")
    p(f"buffer_load_dword {v(vtmp)}, {v(vaddr)}, {srd(SRD_WS)}, 0 offen sc1")
    p("s_waitcnt vmcnt(0)")
    p(f"v_cmp_ne_u32 vcc, s{S_NONCE}, {v(vtmp)}")
    p(f"s_cmp_eq_u64 vcc, 0")
    p(f"s_cbranch_scc1 {done}")
    p("s_sleep 4")
    p(f"s_add_u32 s{S_CNT}, s{S_CNT}, 1")
    p(f"s_cmp_lt_u32 s{S_CNT}, 0x40000")
    p(f"s_cbranch_scc1 {lp}")
    p(f"{done}:")


def setflag(p, soff):
    p(f"buffer_store_dword {v(V_NONCE)}, {v(V_FLG)}, {srd(SRD_WS)}, s{soff} offen sc1")


def cmul(p, z, x, y):
    p(f"v_pk_mul_f32 {v(z,2)}, {v(x,2)}, {v(y,2)} op_sel:[0,0] op_sel_hi:[0,1]")
    p(f"v_pk_fma_f32 {v(z,2)}, {v(x,2)}, {v(y,2)}, {v(z,2)} op_sel:[1,1,0] op_sel_hi:[1,0,1] neg_lo:[1,0,0]")


def round_bf16(p, dst, src):
    p(f"v_cvt_pk_bf16_f32 {v(dst)}, {v(src)}, {v(src)}")
    p(f"v_and_b32 {v(dst)}, 0xffff0000, {v(dst)}")


def finish():
    P("L_fin:")
    if STAMPS:
        P(f"s_lshl_b32 s{S_T0}, s{S_W}, 2")
        P(f"s_add_u32 s{S_T0}, s{S_T0}, s{S_V}")
        P(f"s_lshl_b32 s{S_T0}, s{S_T0}, 6")
        P(f"s_add_u32 s{S_T0}, s{S_T0}, {WS_DBG + 0x800000}")
        P(f"v_lshlrev_b32 v2, 2, v1")
        P("s_mov_b64 exec, 0xffff")
        P(f"buffer_store_dword v255, v2, {srd(SRD_WS)}, s{S_T0} offen")
    P("L_end:")
    P("s_endpgm")


V_TID, V_LANE, V_NONCE = 0, 1, 2
V_L16 = 3
V_T = 4
V_FLG = 254
S_F3 = 82

P(f"s_cmp_ge_u32 s{S_W}, 256")
P("s_cbranch_scc1 L_end")
P(f"s_load_dwordx16 s[36:51], s[0:1], 0")
P(f"s_load_dwordx8 s[52:59], s[0:1], 64")
P(f"s_load_dwordx4 s[60:63], s[0:1], 96")
if STAMPS:
    P("v_mov_b32 v255, 0")
P(f"v_and_b32 {v(V_LANE)}, 63, v0")
P(f"v_lshrrev_b32 v4, 6, v0")
P(f"v_lshlrev_b32 {v(V_L16)}, 4, {v(V_LANE)}")
P(f"v_readfirstlane_b32 s{S_V}, v4")
P(f"s_lshl_b32 s{S_T0}, s{S_W}, 2")
P(f"s_add_u32 s{S_T0}, s{S_T0}, s{S_V}")
P(f"s_mul_i32 s{S_T0}, s{S_T0}, 1792")
P(f"v_add_u32 v4, s{S_T0}, {v(V_L16)}")
P(f"v_mov_b32 v5, 0x7ff00000")
P(f"v_cmp_gt_u32 vcc, 56, {v(V_LANE)}")
P(f"v_cndmask_b32 v4, v5, v4, vcc")
P(f"v_cmp_lt_u32 vcc, 0, {v(V_LANE)}")
P(f"v_cndmask_b32 {v(V_FLG)}, 0, v5, vcc")
P(f"s_min_u32 s{S_T1}, s{S_W}, 223")
P(f"s_lshl_b32 s{S_T2}, s{S_T1}, 10")
P(f"v_lshlrev_b32 v5, 2, v0")
P(f"v_add_u32 v5, s{S_T2}, v5")
P(f"v_mov_b32 v6, 0")
P(f"s_lshl_b32 s{S_T1}, s{S_T1}, 2")
for r, sz in ((SRD_X, 1835008), (SRD_WS, WS_SIZE), (SRD_WG, 1605632), (SRD_WU, 1605632), (SRD_WD, 1605632), (SRD_OUT, 1835008)):
    P(f"s_mov_b32 s{r+2}, {sz}")
    P(f"s_mov_b32 s{r+3}, 0x00020000")
P("s_waitcnt lgkmcnt(0)")
stamp()
P(f"s_mov_b32 s{SRD_X}, s36")
P(f"s_mov_b32 s{SRD_X+1}, s37")
XR = 8
P(f"buffer_load_dwordx4 {v(XR,4)}, v4, {srd(SRD_X)}, 0 offen")
P(f"buffer_load_dwordx4 {v(XR+4,4)}, v4, {srd(SRD_X)}, 0 offen offset:896")
P(f"s_mov_b32 s{SRD_WS}, s62")
P(f"s_mov_b32 s{SRD_WS+1}, s63")
P(f"buffer_load_dword {v(V_NONCE)}, v6, {srd(SRD_WS)}, 0 offen sc1")
PR = 16
for i in range(4):
    P(f"global_load_dword {v(PR+i)}, v5, s[{38+2*i}:{39+2*i}]")
P(f"s_load_dword s{S_LDT}, s[46:47], s{S_T1}")
P(f"s_load_dword s{S_DSK}, s[48:49], s{S_T1}")
for r, src in ((SRD_WG, 52), (SRD_WU, 54), (SRD_WD, 56), (SRD_OUT, 58)):
    P(f"s_mov_b32 s{r}, s{src}")
    P(f"s_mov_b32 s{r+1}, s{src+1}")
P(f"s_lshr_b32 s{S_T0}, s{S_W}, 3")
P(f"s_mul_i32 s{S_T1}, s{S_T0}, 37")
P(f"s_lshr_b32 s{S_T1}, s{S_T1}, 8")
P(f"s_mul_i32 s{S_T2}, s{S_T1}, 7")
P(f"s_sub_u32 s{S_DB}, s{S_T0}, s{S_T2}")
P(f"s_and_b32 s{S_FH}, s{S_W}, 1")
P(f"s_and_b32 s{S_T2}, s{S_W}, 6")
P(f"s_lshl_b32 s{S_T2}, s{S_T2}, 1")
P(f"s_add_u32 s{S_TB}, s{S_T2}, s{S_T1}")
P(f"s_mul_i32 s{S_FB}, s{S_FH}, 7")
P(f"s_add_u32 s{S_FB}, s{S_FB}, s{S_DB}")
P(f"s_mul_i32 s{S_RING}, s{S_V}, {RING_W}")
P(f"s_add_u32 s{S_RING}, s{S_RING}, {L_RING}")

GA = 20
P(f"v_lshlrev_b32 v4, 3, v0")
P(f"v_sub_u32 v4, 2047, v4")
for e in range(11):
    d = GA + e
    P(f"v_subrev_u32 v5, {e}, v4")
    P(f"v_cvt_f32_i32 v6, v5")
    P(f"v_cvt_pk_bf16_f32 v6, v6, v6")
    P(f"v_and_b32 v6, 0xffff0000, v6")
    P(f"v_cvt_i32_f32 v6, v6")
    P(f"v_lshrrev_b32 v7, 8, v6")
    P(f"v_and_b32 {v(d)}, 7, v6")
    P(f"v_lshrrev_b32 v32, 1, {v(d)}")
    P(f"v_add_u32 v32, 8, v32")
    P(f"v_cmp_eq_u32 vcc, 1, v7")
    P(f"v_cndmask_b32 v33, {v(d)}, v32, vcc")
    P(f"v_lshrrev_b32 v32, 2, {v(d)}")
    P(f"v_lshl_add_u32 v32, v7, 1, v32")
    P(f"v_add_u32 v32, 8, v32")
    P(f"v_cmp_le_u32 vcc, 2, v7")
    P(f"v_cndmask_b32 v33, v33, v32, vcc")
    P(f"v_add_u32 v32, 12, v7")
    P(f"v_cmp_le_u32 vcc, 4, v7")
    P(f"v_cndmask_b32 v33, v33, v32, vcc")
    P(f"v_bfe_u32 v32, v6, 3, 5")
    P(f"v_lshlrev_b32 v32, 2, v32")
    P(f"v_lshl_add_u32 {v(d)}, v33, 7, v32")
    if e >= 8:
        P(f"v_mov_b32 v32, {23*128}")
        P(f"v_cmp_gt_i32 vcc, 0, v5")
        P(f"v_cndmask_b32 {v(d)}, {v(d)}, v32, vcc")
    P(f"v_add_u32 {v(d)}, {L_EX}, {v(d)}")

XF = 32
DF = 48
SA = 64
P(f"s_mov_b32 s{S_EX}, -1")
P(f"s_mov_b32 s{S_EX+1}, 0x00ffffff")
for r in range(2):
    for i in range(4):
        P(f"v_lshlrev_b32 {v(XF+8*r+2*i)}, 16, {v(XR+4*r+i)}")
        P(f"v_and_b32 {v(XF+8*r+2*i+1)}, 0xffff0000, {v(XR+4*r+i)}")
stamp()
for r in range(2):
    b = XF + 8 * r
    P(f"v_pk_add_f32 {v(DF+8*r,2)}, {v(b,2)}, {v(b+2,2)}")
    P(f"v_pk_add_f32 {v(DF+8*r+2,2)}, {v(b+4,2)}, {v(b+6,2)}")
for r in range(2):
    P(f"v_pk_add_f32 {v(DF+8*r,2)}, {v(DF+8*r,2)}, {v(DF+8*r+2,2)}")
for r in range(2):
    P(f"v_add_f32 {v(SA+r)}, {v(DF+8*r)}, {v(DF+8*r+1)}")


def wave_sum(p, regs):
    for mod in ("row_shr:1", "row_shr:2", "row_shr:4", "row_shr:8"):
        for r in regs:
            p(f"v_add_f32_dpp {v(r)}, {v(r)}, {v(r)} {mod} row_mask:0xf bank_mask:0xf bound_ctrl:0")
    for r in regs:
        p(f"v_add_f32_dpp {v(r)}, {v(r)}, {v(r)} row_bcast:15 row_mask:0xa bank_mask:0xf")
    for r in regs:
        p(f"v_add_f32_dpp {v(r)}, {v(r)}, {v(r)} row_bcast:31 row_mask:0xc bank_mask:0xf")


wave_sum(P, [SA, SA + 1])
P(f"s_mov_b32 s{S_K0}, {f32(1.0/448)}")
for r in range(2):
    P(f"v_mul_f32 {v(SA+r)}, s{S_K0}, {v(SA+r)}")
P(f"v_cvt_pk_bf16_f32 {v(SA+2)}, {v(SA)}, {v(SA+1)}")
P(f"v_readlane_b32 s{S_A}, {v(SA)}, 63")
P(f"v_readlane_b32 s{S_B}, {v(SA+1)}, 63")
P(f"v_readlane_b32 s{S_T0}, {v(SA+2)}, 63")
P(f"v_mov_b32 {v(SA)}, 0")
P(f"v_mov_b32 {v(SA+1)}, 0")
P(f"s_lshl_b32 s{S_C}, s{S_T0}, 16")
P(f"s_and_b32 s{S_D}, s{S_T0}, 0xffff0000")
P(f"s_mov_b64 exec, s[{S_EX}:{S_EX+1}]")
for r, sm in ((0, S_A), (1, S_B)):
    for i in range(4):
        P(f"v_pk_add_f32 {v(DF+8*r+2*i,2)}, {v(XF+8*r+2*i,2)}, s[{sm}:{sm+1}] op_sel_hi:[1,0] neg_lo:[0,1] neg_hi:[0,1]")
for r in range(2):
    b = DF + 8 * r
    P(f"v_pk_mul_f32 {v(b,2)}, {v(b,2)}, {v(b,2)}")
    P(f"v_pk_mul_f32 {v(b+2,2)}, {v(b+2,2)}, {v(b+2,2)}")
for r in range(2):
    b = DF + 8 * r
    P(f"v_pk_fma_f32 {v(b,2)}, {v(b+4,2)}, {v(b+4,2)}, {v(b,2)}")
    P(f"v_pk_fma_f32 {v(b+2,2)}, {v(b+6,2)}, {v(b+6,2)}, {v(b+2,2)}")
for r in range(2):
    b = DF + 8 * r
    P(f"v_pk_add_f32 {v(b,2)}, {v(b,2)}, {v(b+2,2)}")
for r in range(2):
    P(f"v_add_f32 {v(SA+r)}, {v(DF+8*r)}, {v(DF+8*r+1)}")
P("s_mov_b64 exec, -1")
q1 = sub()
wave_sum(q1, [SA, SA + 1])
q2 = sub()
for r, sm in ((0, S_C), (1, S_D)):
    for i in range(4):
        q2(f"v_pk_add_f32 {v(DF+8*r+2*i,2)}, {v(XF+8*r+2*i,2)}, s[{sm}:{sm+1}] op_sel_hi:[1,0] neg_lo:[0,1] neg_hi:[0,1]")
for r in range(2):
    for i in range(4):
        q2(f"v_cvt_pk_bf16_f32 {v(XF+8*r+2*i)}, {v(DF+8*r+2*i)}, {v(DF+8*r+2*i+1)}")
for r in range(2):
    for i in range(4):
        q2(f"v_and_b32 {v(XF+8*r+2*i+1)}, 0xffff0000, {v(XF+8*r+2*i)}")
        q2(f"v_lshlrev_b32 {v(XF+8*r+2*i)}, 16, {v(XF+8*r+2*i)}")
k = 0
for j in range(0, len(q1.ins), 2):
    P.add(q1.ins[j:j + 2])
    P.add(q2.ins[k:k + 2])
    k += 2
P(f"v_mul_f32 {v(SA)}, s{S_K0}, {v(SA)}")
P(f"v_mul_f32 {v(SA+1)}, s{S_K0}, {v(SA+1)}")
rest = q2.ins[k:]
q3 = sub()
q3(f"v_cvt_pk_bf16_f32 {v(SA+2)}, {v(SA)}, {v(SA+1)}")
q3(f"v_lshlrev_b32 {v(SA)}, 16, {v(SA+2)}")
q3(f"v_and_b32 {v(SA+1)}, 0xffff0000, {v(SA+2)}")
q3(f"v_add_f32 {v(SA)}, {f32(1e-5)}, {v(SA)}")
q3(f"v_add_f32 {v(SA+1)}, {f32(1e-5)}, {v(SA+1)}")
q3(f"v_cvt_pk_bf16_f32 {v(SA+2)}, {v(SA)}, {v(SA+1)}")
q3(f"v_lshlrev_b32 {v(SA)}, 16, {v(SA+2)}")
q3(f"v_and_b32 {v(SA+1)}, 0xffff0000, {v(SA+2)}")
q3(f"v_sqrt_f32 {v(SA)}, {v(SA)}")
q3(f"v_sqrt_f32 {v(SA+1)}, {v(SA+1)}")
q3(f"v_cvt_pk_bf16_f32 {v(SA+2)}, {v(SA)}, {v(SA+1)}")
q3(f"v_lshlrev_b32 {v(SA)}, 16, {v(SA+2)}")
q3(f"v_and_b32 {v(SA+1)}, 0xffff0000, {v(SA+2)}")
q3(f"v_rcp_f32 {v(SA)}, {v(SA)}")
q3(f"v_rcp_f32 {v(SA+1)}, {v(SA+1)}")
k = 0
for i in q3.ins:
    P.add([i])
    P.add(rest[k:k + 1])
    k += 1
P.add(rest[k:])
P(f"v_readlane_b32 s{S_A}, {v(SA)}, 63")
P(f"v_readlane_b32 s{S_B}, {v(SA+1)}, 63")
P(f"v_mul_u32_u24 v4, 272, {v(V_LANE)}")
P(f"s_lshl_b32 s{S_T0}, s{S_V}, 2")
P(f"s_add_u32 s{S_T1}, s{S_T0}, {L_G}")
P(f"s_add_u32 s{S_T2}, s{S_T1}, s{S_T0}")
P(f"v_add_u32 v5, s{S_T2}, v4")
P(f"v_add_u32 v4, s{S_T1}, v4")
for r, sm in ((0, S_A), (1, S_B)):
    for i in range(4):
        P(f"v_pk_mul_f32 {v(XF+8*r+2*i,2)}, {v(XF+8*r+2*i,2)}, s[{sm}:{sm+1}] op_sel_hi:[1,0]")
P(f"s_mov_b64 exec, s[{S_EX}:{S_EX+1}]")
for i in range(4):
    P(f"ds_write2_b32 v5, {v(XR+i)}, {v(XR+4+i)} offset0:{16*i+8} offset1:{16*i+9}")
for j in range(8):
    P(f"v_cvt_pk_bf16_f32 {v(DF+j)}, {v(XF+j)}, {v(XF+8+j)}")
for i in range(4):
    P(f"ds_write2_b32 v4, {v(DF+2*i)}, {v(DF+2*i+1)} offset0:{16*i} offset1:{16*i+4}")
P("s_mov_b64 exec, -1")
P(f"v_readfirstlane_b32 s{S_NONCE}, {v(V_NONCE)}")
P(f"s_mul_i32 s{S_NONCE}, s{S_NONCE}, 1664525")
P(f"s_add_u32 s{S_NONCE}, s{S_NONCE}, 1013904223")
P(f"v_mov_b32 {v(V_NONCE)}, s{S_NONCE}")
P("s_waitcnt lgkmcnt(0)")
P("s_barrier")
stamp()
skip = label("nopub")
P(f"s_cmp_lg_u32 s{S_V}, 0")
P(f"s_cbranch_scc1 {skip}")
P.cond(True)
P(f"v_lshrrev_b32 v4, 4, {v(V_LANE)}")
P(f"v_lshlrev_b32 v4, 4, v4")
P(f"v_add_u32 v4, v4, {v(V_L16)}")
P(f"v_add_u32 v4, {L_G}, v4")
UB = 68
for j in range(14):
    P(f"ds_read_b128 {v(UB+4*j,4)}, v4 offset:{1088*j}")
P(f"s_mul_i32 s{S_T0}, s{S_W}, 14336")
P(f"s_add_u32 s{S_T0}, s{S_T0}, {WS_UX}")
for j in range(14):
    if j and j % 4 == 0:
        P(f"s_add_u32 s{S_T0}, s{S_T0}, 4096")
    P(f"buffer_store_dwordx4 {v(UB+4*j,4)}, {v(V_L16)}, {srd(SRD_WS)}, s{S_T0} offen offset:{1024*(j%4)} sc1", tok="ux")
P(f"s_mul_i32 s{S_T0}, s{S_W}, {FS}")
P(f"s_add_u32 s{S_T0}, s{S_T0}, {WS_F1}")
P.wait("ux")
setflag(P, S_T0)
P.cond(False)
P(f"{skip}:")
P(f"s_cmp_ge_u32 s{S_W}, 224")
P("s_cbranch_scc1 L_fin")
stamp()

V_WOFF = 31
V_TRA = 124
P(f"v_lshrrev_b32 v4, 2, {v(V_LANE)}")
P(f"v_mul_u32_u24 v4, 3584, v4")
P(f"v_and_b32 v5, 3, {v(V_LANE)}")
P(f"v_lshl_add_u32 v4, v5, 4, v4")
P(f"s_lshl_b32 s{S_T0}, s{S_FB}, 8")
P(f"s_lshl_b32 s{S_T1}, s{S_V}, 6")
P(f"s_add_u32 s{S_T0}, s{S_T0}, s{S_T1}")
P(f"v_add_u32 {v(V_WOFF)}, s{S_T0}, v4")
P(f"v_lshrrev_b32 v4, 5, {v(V_LANE)}")
P(f"v_lshlrev_b32 v4, 9, v4")
P(f"v_bfe_u32 v6, {v(V_LANE)}, 2, 2")
P(f"v_lshl_add_u32 v4, v6, 6, v4")
P(f"v_bfe_u32 v6, {v(V_LANE)}, 4, 1")
P(f"v_lshl_add_u32 v4, v6, 5, v4")
P(f"v_lshl_add_u32 v4, v5, 3, v4")
P(f"v_add_u32 {v(V_TRA)}, s{S_RING}, v4")

A_WG, A_WU = 0, 112
A_CG, A_CU = 224, 228


def dma_batch(ks0, nks, tok):
    q = sub()
    for i in range(nks):
        ks = ks0 + i
        for m, sr in ((0, SRD_WG), (1, SRD_WU)):
            q(f"s_add_u32 m0, s{S_RING}, {(2*i+m)*1024}")
            q(f"s_mov_b32 s{S_WOFF}, {ks*16*3584}")
            q(f"buffer_load_dwordx4 {v(V_WOFF)}, {srd(sr)}, s{S_WOFF} offen lds", tok=tok)
    return q.ins


def tr_batch(ks0, nks):
    q = sub()
    for i in range(nks):
        ks = ks0 + i
        for m, ab in ((0, A_WG), (1, A_WU)):
            for h in range(2):
                q(f"ds_read_b64_tr_b16 {acc(ab+4*ks+2*h,2)}, {v(V_TRA)} offset:{(2*i+m)*1024+256*h}")
    return q.ins


P.add(dma_batch(0, 10, "w1"))

LOG2E = 1.4426950408889634
P(f"s_lshr_b32 s{S_T0}, s{S_V}, 1")
P(f"s_lshl_b32 s{S_T0}, s{S_T0}, 4")
P(f"s_lshr_b32 s{S_T1}, s{S_LDT}, s{S_T0}")
P(f"s_lshl_b32 s{S_T1}, s{S_T1}, 16")
P(f"v_mov_b32 v4, {f32(LOG2E)}")
P(f"v_mul_f32 v4, s{S_T1}, v4")
P(f"v_exp_f32 v4, v4")
V_DT = 125
round_bf16(P, V_DT, 4)
V_TW = 126
V_TA, V_TB_ = 127, 128
P(f"s_mul_i32 s{S_T0}, s{S_V}, {TAB_W}")
P(f"v_lshlrev_b32 v4, 2, {v(V_LANE)}")
P(f"v_add_u32 {v(V_TW)}, s{S_T0}, v4")
P(f"v_and_b32 v4, 31, {v(V_LANE)}")
P(f"v_lshrrev_b32 v5, 5, {v(V_LANE)}")
P(f"v_lshlrev_b32 v5, 4, v5")
P(f"v_add_u32 v5, s{S_T0}, v5")
P(f"v_mul_u32_u24 v6, {TAB_ROW}, v4")
P(f"v_add_u32 {v(V_TB_)}, v5, v6")
P(f"v_min_u32 v4, 20, v4")
P(f"v_add_u32 v4, 32, v4")
P(f"v_mul_u32_u24 v6, {TAB_ROW}, v4")
P(f"v_add_u32 {v(V_TA)}, v5, v6")
KD = 132
Z = 32


def kgen_round(rd):
    q = sub()
    AR = 4
    CC = 6
    unp = (lambda d, s: q(f"v_lshlrev_b32 {v(d)}, 16, {v(s)}")) if rd == 0 else (lambda d, s: q(f"v_and_b32 {v(d)}, 0xffff0000, {v(s)}"))
    unp(4, PR)
    unp(5, PR + 1)
    unp(6, PR + 2)
    unp(7, PR + 3)
    q(f"v_mul_f32 v4, {f32(LOG2E)}, v4")
    q(f"v_exp_f32 v4, v4")
    q(f"v_mul_f32 v5, v5, {v(V_DT)}")
    q(f"v_cvt_pk_bf16_f32 v4, v4, v4")
    q(f"v_mul_f32 v5, {f32(1.0/(2*math.pi))}, v5")
    q(f"v_and_b32 v4, 0xffff0000, v4")
    q(f"v_mul_f32 v6, v6, {v(V_DT)}")
    q(f"v_mul_f32 v4, v4, {v(V_DT)}")
    q(f"v_mul_f32 v7, v7, {v(V_DT)}")
    q(f"v_mul_f32 v4, {f32(-LOG2E)}, v4")
    q(f"v_add_f32 v6, v6, v6")
    q(f"v_add_f32 v7, v7, v7")
    names = {}
    nxt = [Z]

    def new(n):
        names[n] = nxt[0]
        nxt[0] += 2
        assert nxt[0] <= 124
        return names[n]

    tmp = 148

    def base(n, pos, t):
        z = new(n)
        if pos == 1:
            q(f"v_exp_f32 {v(t)}, v4")
            q(f"v_fract_f32 {v(t+1)}, v5")
        else:
            q(f"v_mul_f32 {v(t)}, {f32(float(pos))}, v4")
            q(f"v_mul_f32 {v(t+1)}, {f32(float(pos))}, v5")
            q(f"v_exp_f32 {v(t)}, {v(t)}")
            q(f"v_fract_f32 {v(t+1)}, {v(t+1)}")
        q(f"v_cos_f32 {v(z)}, {v(t+1)}")
        q(f"v_sin_f32 {v(z+1)}, {v(t+1)}")
        return lambda: q(f"v_pk_mul_f32 {v(z,2)}, {v(z,2)}, {v(t,2)} op_sel_hi:[1,0]")

    f1 = base("E1", 1, tmp)
    f2 = base("E8", 8, tmp + 2)
    f3 = base("E64", 64, tmp + 4)
    f4 = base("E256", 256, tmp + 6)
    f1(); f2(); f3(); f4()
    pk = [tmp + 8]

    def outB(row, z):
        t = pk[0]
        pk[0] = tmp + 8 + (pk[0] - tmp - 8 + 1) % 8
        q(f"v_cvt_pk_bf16_f32 {v(t)}, {v(z)}, {v(z+1)}")
        q(f"ds_write_b32 {v(V_TW)}, {v(t)} offset:{row*TAB_ROW}")

    def outA(row, z):
        t = pk[0]
        pk[0] = tmp + 8 + (pk[0] - tmp - 8 + 1) % 8
        q(f"v_cvt_pk_bf16_f32 {v(t)}, {v(z)}, -{v(z+1)}")
        q(f"ds_write_b32 {v(V_TW)}, {v(t)} offset:{(32+row)*TAB_ROW}")

    def mul(n, a, b):
        z = new(n)
        cmul(q, z, names[a], names[b])
        return z

    scratch = [None]

    def mul_tmp(a, b):
        t = 164 + 2 * (0 if scratch[0] is None else (scratch[0] + 1) % 4)
        scratch[0] = (t - 164) // 2
        cmul(q, t, names[a], names[b])
        return t

    names["G0"] = CC
    q(f"v_mov_b32 {v(tmp+8)}, 0x3f80")
    q(f"ds_write_b32 {v(V_TW)}, {v(tmp+8)}")
    pk[0] = tmp + 9
    outA(0, CC)
    mul("E2", "E1", "E1"); mul("E16", "E8", "E8"); mul("E128", "E64", "E64"); mul("G1", "G0", "E256"); mul("E512", "E256", "E256")
    outB(1, names["E8"]); outB(8, names["E64"])
    mul("a1", "G0", "E1"); mul("E4", "E2", "E2"); mul("E24", "E16", "E8"); mul("E32", "E16", "E16"); mul("E192", "E128", "E64")
    outB(2, names["E16"]); outB(16, names["E128"]); outA(8, names["G1"])
    mul("G2", "G0", "E512"); mul("G3", "G1", "E512"); mul("E1024", "E512", "E512"); mul("a2", "G0", "E2"); mul("a3", "a1", "E2")
    outA(1, names["a1"]); outB(3, names["E24"]); outB(4, names["E32"]); outB(24, names["E192"])
    mul("E40", "E32", "E8"); mul("E48", "E24", "E24"); mul("E56", "E32", "E24"); mul("b2", "G1", "E2"); mul("G4", "G0", "E1024")
    outA(12, names["G2"]); outA(14, names["G3"]); outA(2, names["a2"]); outA(3, names["a3"])
    outB(5, names["E40"]); outB(6, names["E48"]); outB(7, names["E56"]); outA(9, names["b2"]); outA(16, names["G4"])
    leaves = [("A", 4, "G0", "E4"), ("A", 5, "a1", "E4"), ("A", 6, "a2", "E4"), ("A", 7, "a3", "E4"),
              ("A", 10, "G1", "E4"), ("A", 11, "b2", "E4"), ("A", 13, "G2", "E4"), ("A", 15, "G3", "E4"),
              ("A", 17, "G1", "E1024"), ("A", 18, "G2", "E1024"), ("A", 19, "G3", "E1024"), ("A", 20, "G4", "E1024")]
    for b2, nb in ((1, "E64"), (2, "E128"), (3, "E192")):
        for b1 in range(1, 8):
            leaves.append(("B", 8 * b2 + b1, f"E{8*b1}", nb))
    pend = []
    for kind, row, a, b in leaves:
        t = mul_tmp(a, b)
        pend.append((kind, row, t))
        if len(pend) > 2:
            kd, rw, tt = pend.pop(0)
            (outA if kd == "A" else outB)(rw, tt)
    for kd, rw, tt in pend:
        (outA if kd == "A" else outB)(rw, tt)
    q("s_waitcnt lgkmcnt(0)")
    FR = 32
    for s in range(8):
        q(f"ds_read_b128 {v(FR+8*s,4)}, {v(V_TA)} offset:{32*s}")
        q(f"ds_read_b128 {v(FR+8*s+4,4)}, {v(V_TB_)} offset:{32*s}")
    for s in range(8):
        c = "0" if (rd == 0 and s == 0) else v(KD, 16)
        q(f"v_mfma_f32_32x32x16_bf16 {v(KD,16)}, {v(FR+8*s,4)}, {v(FR+8*s+4,4)}, {c}")
    return q.ins


P.add(kgen_round(0))
P.add(kgen_round(1))
stamp()
P("s_barrier")
P(f"v_and_b32 v4, 31, {v(V_LANE)}")
P(f"v_lshlrev_b32 v4, 2, v4")
P(f"v_lshrrev_b32 v5, 5, {v(V_LANE)}")
P(f"v_lshl_add_u32 v4, v5, 9, v4")
P(f"s_mul_i32 s{S_T0}, s{S_V}, 3072")
P(f"s_add_u32 s{S_T0}, s{S_T0}, {L_EX}")
P(f"v_add_u32 v4, s{S_T0}, v4")
P(f"v_cmp_gt_u32 vcc, 32, {v(V_LANE)}")
P(f"v_cndmask_b32 {v(KD+11)}, 0, {v(KD+11)}, vcc")
for j in range(12):
    P(f"ds_write_b32 v4, {v(KD+j)} offset:{(8*(j>>2)+(j&3))*128}")
P(f"v_mov_b32 v32, 0")
P(f"v_mov_b32 v33, 0")
P(f"v_mov_b32 v34, 0")
P(f"v_mov_b32 v35, 0")
P(f"v_lshrrev_b32 v5, 5, {v(V_LANE)}")
P(f"v_mul_u32_u24 v5, {U_ROW-512}, v5")
P(f"v_add_u32 v5, v5, {v(V_L16)}")
P(f"ds_write_b128 v5, v[32:35] offset:{L_U}")
P(f"v_bfe_u32 v5, {v(V_LANE)}, 1, 3")
P(f"v_mul_u32_u24 v5, {CS}, v5")
P(f"v_and_b32 v6, 1, {v(V_LANE)}")
P(f"v_lshl_add_u32 v5, v6, 4, v5")
P(f"ds_write_b128 v5, v[32:35] offset:{L_KC+4096}")
P("s_waitcnt lgkmcnt(0)")
P("s_barrier")
P(f"v_lshlrev_b32 v4, 4, v0")
for ch in range(2):
    for e in range(11):
        P(f"ds_read2st64_b32 {v(32+24*ch+2*e,2)}, {v(GA+e)} offset0:{24*ch} offset1:{24*ch+12}")
for ch in range(2):
    b = 32 + 24 * ch
    for e in range(11):
        P(f"v_add_f32 {v(b+2*e)}, {v(b+2*e)}, {v(b+2*e+1)}")
    for s in range(4):
        o = 80 + 16 * ch + 4 * s
        for i in range(4):
            P(f"v_cvt_pk_bf16_f32 {v(o+i)}, {v(b+2*(s+2*i))}, {v(b+2*(s+2*i+1))}")
        P(f"ds_write_b128 v4, {v(o,4)} offset:{L_KC+(4*ch+s)*CS}")
if STOP == "kgen":
    P(f"s_lshl_b32 s{S_T0}, s{S_W}, 13")
    P(f"s_add_u32 s{S_T0}, s{S_T0}, {WS_DBG}")
    P(f"buffer_store_dwordx4 v[80:83], v4, {srd(SRD_WS)}, s{S_T0} offen")
    P(f"s_add_u32 s{S_T0}, s{S_T0}, 4096")
    P(f"buffer_store_dwordx4 v[96:99], v4, {srd(SRD_WS)}, s{S_T0} offen")
stamp()
P.wait("w1")
P.add(tr_batch(0, 10))

P(f"v_mul_u32_u24 v4, {FS}, v0")
P(f"v_add_u32 v4, {WS_F1}, v4")
poll(P, 4, 5)
stamp()
P(f"v_lshrrev_b32 v5, 2, {v(V_LANE)}")
P(f"s_lshl_b32 s{S_T0}, s{S_V}, 6")
P(f"v_add_u32 v5, s{S_T0}, v5")
P(f"v_and_b32 v6, 3, {v(V_LANE)}")
P(f"v_mul_u32_u24 v4, 14336, v5")
P(f"v_lshl_add_u32 v4, v6, 4, v4")
P(f"s_lshl_b32 s{S_T0}, s{S_W}, 6")
P(f"s_add_u32 s{S_T0}, s{S_T0}, {WS_UX}")
for j in range(4):
    P(f"buffer_load_dwordx4 {v(32+4*j,4)}, v4, {srd(SRD_WS)}, s{S_T0} offen sc1")
    if j < 3:
        P(f"s_add_u32 s{S_T0}, s{S_T0}, {16*14336}")
P(f"v_mul_u32_u24 v7, {U_ROW}, v6")
P(f"v_lshl_add_u32 v7, v5, 4, v7")
P(f"v_add_u32 v7, {L_U+512}, v7")
P(f"v_lshlrev_b32 v48, 5, v5")
P(f"v_lshl_add_u32 v48, v6, 4, v48")
P(f"v_add_u32 v48, {L_XP-32}, v48")
P(f"v_cmp_gt_u32 vcc, 2, v6")
P(f"v_cndmask_b32 v7, v48, v7, vcc")
P(f"v_mov_b32 v48, 512")
P(f"v_mov_b32 v49, 256")
P(f"v_cndmask_b32 v48, v48, v49, vcc")
P("s_waitcnt lgkmcnt(0)")
P.add(dma_batch(10, 10, "w2"))
for j in range(4):
    P(f"ds_write_b128 v7, {v(32+4*j,4)}")
    if j < 3:
        P(f"v_add_u32 v7, v7, v48")
V_KA, V_UA = 126, 127
P(f"v_and_b32 v4, 15, {v(V_LANE)}")
P(f"v_lshrrev_b32 v5, 4, {v(V_LANE)}")
P(f"v_lshl_add_u32 v6, v5, 3, v4")
P(f"v_sub_u32 v6, 39, v6")
P(f"v_and_b32 v48, 3, v6")
P(f"v_sub_u32 v6, v6, v48")
P(f"v_mul_u32_u24 v48, {CS}, v48")
P(f"v_lshl_add_u32 v6, v6, 1, v48")
P(f"s_lshr_b32 s{S_T0}, s{S_V}, 1")
P(f"s_and_b32 s{S_T1}, s{S_V}, 1")
P(f"s_mul_i32 s{S_T2}, s{S_T0}, {4*CS}")
P(f"s_xor_b32 s{S_T3}, s{S_T1}, 1")
P(f"s_lshl_b32 s{S_T3}, s{S_T3}, 8")
P(f"s_add_u32 s{S_T2}, s{S_T2}, s{S_T3}")
P(f"v_add_u32 {v(V_KA)}, s{S_T2}, v6")
P(f"v_lshlrev_b32 v6, 5, v4")
P(f"v_lshlrev_b32 v48, 4, v5")
P(f"v_sub_u32 v6, v6, v48")
P(f"s_mul_i32 s{S_T2}, s{S_T0}, {U_ROW}")
P(f"s_add_u32 s{S_T2}, s{S_T2}, s{S_T3}")
P(f"s_add_u32 s{S_T2}, s{S_T2}, {L_U + 512 + 16 - 256 - 192}")
P(f"v_add_u32 {v(V_UA)}, s{S_T2}, v6")
V_EU, V_EXP, V_EXW, V_EXR, V_PST = 128, 129, 130, 131, 125
P(f"v_lshlrev_b32 v6, 5, v4")
P(f"v_lshl_add_u32 v6, v5, 3, v6")
P(f"s_lshl_b32 s{S_T2}, s{S_V}, 9")
P(f"s_add_u32 s{S_T3}, s{S_T2}, {L_U+512}")
P(f"v_add_u32 {v(V_EU)}, s{S_T3}, v6")
P(f"v_lshlrev_b32 v6, 1, v6")
P(f"s_lshl_b32 s{S_T2}, s{S_V}, 10")
P(f"s_add_u32 s{S_T3}, s{S_T2}, {L_XP}")
P(f"v_add_u32 {v(V_EXP)}, s{S_T3}, v6")
P(f"s_add_u32 s{S_T3}, s{S_T2}, {L_EX}")
P(f"v_add_u32 {v(V_EXR)}, s{S_T3}, {v(V_L16)}")
P(f"s_lshl_b32 s{S_T3}, s{S_V}, 12")
P(f"s_add_u32 s{S_T3}, s{S_T3}, {L_EX}")
P(f"v_add_u32 {v(V_EXW)}, s{S_T3}, {v(V_L16)}")
P(f"s_lshl_b32 s{S_T3}, s{S_W}, 13")
P(f"s_add_u32 s{S_T3}, s{S_T3}, s{S_T2}")
P(f"s_add_u32 s{S_T3}, s{S_T3}, {WS_P}")
P(f"v_add_u32 {v(V_PST)}, s{S_T3}, {v(V_L16)}")
P(f"s_lshl_b32 s{S_C}, s{S_DSK}, 16")
P(f"s_and_b32 s{S_D}, s{S_DSK}, 0xffff0000")
P("s_waitcnt lgkmcnt(0)")
P("s_barrier")
stamp()
skip = label("noep")
P(f"s_or_b32 s{S_T0}, s{S_W}, s{S_V}")
P(f"s_cmp_lg_u32 s{S_T0}, 0")
P(f"s_cbranch_scc1 {skip}")
P.cond(True)
setflag(P, S_T0)
P.cond(False)
P(f"{skip}:")

CA = 132
FA = 32


def conv_gen(gen):
    q = sub()
    na = 4 if gen == 0 else 8
    sets = [32, 148]

    def loads(rr):
        z = sub()
        b = sets[rr & 1]
        for a in range(na):
            off = 64 * (59 - rr - 8 * a)
            z(f"ds_read_b64 {v(b+4*a,2)}, {v(V_KA)} offset:{off}")
            z(f"ds_read_b64 {v(b+4*a+2,2)}, {v(V_KA)} offset:{off+8}")
            z(f"ds_read_b128 {v(b+32+4*a,4)}, {v(V_UA)} offset:{64*(8*a+3-rr)}")
        return z.ins

    q.add(loads(0))
    first = set()
    for rr in range(4):
        b = sets[rr & 1]
        m = sub()
        pairs = [(a, e) for a in range(na) for e in range(na) if 4 * gen <= a + e < 4 * gen + 4]
        pairs.sort(key=lambda ae: (max(ae), ae))
        for a, e in pairs:
            c = a + e - 4 * gen
            cc = v(CA + 4 * c, 4) if c in first else "0"
            first.add(c)
            m(f"v_mfma_f32_16x16x32_bf16 {v(CA+4*c,4)}, {v(b+4*a,4)}, {v(b+32+4*e,4)}, {cc}")
        q.add(interleave(m.ins, loads(rr + 1) if rr < 3 else [], every=2))
    for c in range(4):
        q(f"ds_write_b128 {v(V_EXW)}, {v(CA+4*c,4)} offset:{1024*c}")
    UU, XX, YY = 32, 36, 40
    q(f"ds_read_b64 {v(UU,2)}, {v(V_EU)} offset:{2048*gen}")
    q(f"ds_read_b64 {v(UU+2,2)}, {v(V_EU)} offset:{2048*gen+U_ROW}")
    q(f"ds_read_b128 {v(XX,4)}, {v(V_EXP)} offset:{4096*gen}")
    q("s_waitcnt lgkmcnt(0)")
    q("s_barrier")
    for w in range(4):
        q(f"ds_read_b128 {v(YY+4*w,4)}, {v(V_EXR)} offset:{4096*w}")
    T = 56
    for ch in range(2):
        for i in range(2):
            q(f"v_lshlrev_b32 {v(T+4*ch+2*i)}, 16, {v(UU+2*ch+i)}")
            q(f"v_and_b32 {v(T+4*ch+2*i+1)}, 0xffff0000, {v(UU+2*ch+i)}")
    for ch, sm in ((0, S_C), (1, S_D)):
        for i in range(2):
            q(f"v_pk_mul_f32 {v(T+4*ch+2*i,2)}, {v(T+4*ch+2*i,2)}, s[{sm}:{sm+1}] op_sel_hi:[1,0]")
    W = 64
    for j in range(4):
        q(f"v_cvt_pk_bf16_f32 {v(W+j)}, {v(T+j)}, {v(T+4+j)}")
    for j in range(4):
        q(f"v_lshlrev_b32 {v(T+2*j)}, 16, {v(W+j)}")
        q(f"v_and_b32 {v(T+2*j+1)}, 0xffff0000, {v(W+j)}")
    XU = 68
    for j in range(4):
        q(f"v_lshlrev_b32 {v(XU+2*j)}, 16, {v(XX+j)}")
        q(f"v_and_b32 {v(XU+2*j+1)}, 0xffff0000, {v(XX+j)}")
    for ch in range(2):
        for i in range(2):
            q(f"v_pk_add_f32 {v(YY+8*ch+2*i,2)}, {v(YY+8*ch+2*i,2)}, {v(YY+8*ch+4+2*i,2)}")
    for j in range(4):
        q(f"v_cvt_pk_bf16_f32 {v(W+j)}, {v(YY+j)}, {v(YY+8+j)}")
    Y2 = 76
    for j in range(4):
        q(f"v_lshlrev_b32 {v(Y2+2*j)}, 16, {v(W+j)}")
        q(f"v_and_b32 {v(Y2+2*j+1)}, 0xffff0000, {v(W+j)}")
    for j in range(4):
        q(f"v_pk_add_f32 {v(Y2+2*j,2)}, {v(Y2+2*j,2)}, {v(T+2*j,2)}")
    for j in range(4):
        q(f"v_cvt_pk_bf16_f32 {v(W+j)}, {v(Y2+2*j)}, {v(Y2+2*j+1)}")
    for j in range(4):
        q(f"v_lshlrev_b32 {v(Y2+2*j)}, 16, {v(W+j)}")
        q(f"v_and_b32 {v(Y2+2*j+1)}, 0xffff0000, {v(W+j)}")
    for j in range(4):
        q(f"v_pk_add_f32 {v(Y2+2*j,2)}, {v(Y2+2*j,2)}, {v(XU+2*j,2)}")
    HO = 212 + 4 * gen
    for j in range(4):
        q(f"v_cvt_pk_bf16_f32 {v(HO+j)}, {v(Y2+2*j)}, {v(Y2+2*j+1)}")
    q(f"s_mov_b32 s{S_T0}, {4096*gen}")
    q(f"buffer_store_dwordx4 {v(HO,4)}, {v(V_PST)}, {srd(SRD_WS)}, s{S_T0} offen sc1", tok=f"h{gen}")
    return q.ins


def flag2(p, gen):
    p(f"s_lshl_b32 s{S_T0}, s{S_V}, 8")
    p(f"s_add_u32 s{S_T0}, s{S_T0}, s{S_W}")
    p(f"s_mul_i32 s{S_T0}, s{S_T0}, {FS}")
    p(f"s_add_u32 s{S_T0}, s{S_T0}, {WS_F2 + gen*1024*FS}")
    p.wait(f"h{gen}")
    setflag(p, S_T0)


P.add(conv_gen(0))
flag2(P, 0)
stamp()
P("s_barrier")
P.add(conv_gen(1))
flag2(P, 1)
stamp()
if STOP == "conv":
    P("s_branch L_fin")
P.wait("w2")
P.add(tr_batch(10, 10))
P("s_waitcnt lgkmcnt(0)")
P.add(dma_batch(20, 8, "w3"))
P.wait("w3")
P.add(tr_batch(20, 8))
P("v_mov_b32 v32, 0x3f803f80")
P("v_mov_b32 v33, 0x3f803f80")
P("v_mov_b32 v34, 0x3f803f80")
P("v_mov_b32 v35, 0x3f803f80")
for ks in range(28):
    for m, ab in ((0, A_WG), (1, A_WU)):
        d = 40 + 16 * m
        c = "0" if ks == 0 else v(d, 16)
        P(f"v_mfma_f32_32x32x16_bf16 {v(d,16)}, v[32:35], {acc(ab+4*ks,4)}, {c}")
P(f"v_cmp_gt_u32 vcc, 32, {v(V_LANE)}")
for m, ac in ((0, A_CG), (1, A_CU)):
    d = 40 + 16 * m
    round_bf16(P, 36, d)
    P(f"v_sub_f32 v37, {v(d)}, v36")
    P(f"v_cvt_pk_bf16_f32 v36, v36, v37")
    P(f"v_cndmask_b32 v36, 0, v36, vcc")
    P(f"v_accvgpr_write_b32 {acc(ac)}, v36")
    for i in range(1, 4):
        P(f"v_accvgpr_write_b32 {acc(ac+i)}, 0")
P("s_barrier")
stamp()

V_F2, V_PL, V_AW, V_STW, V_STR, V_HST = 8, 9, 10, 11, 12, 13
V_F3 = 14
P(f"v_min_u32 v4, 55, {v(V_LANE)}")
P(f"s_lshr_b32 s{S_T0}, s{S_TB}, 2")
P(f"s_lshl_b32 s{S_T0}, s{S_T0}, 8")
P(f"s_mul_i32 s{S_T1}, s{S_V}, 56")
P(f"s_add_u32 s{S_T0}, s{S_T0}, s{S_T1}")
P(f"v_add_u32 v4, s{S_T0}, v4")
P(f"v_mul_u32_u24 v4, {FS}, v4")
P(f"v_add_u32 {v(V_F2)}, {WS_F2}, v4")
P(f"v_lshrrev_b32 v5, 4, {v(V_LANE)}")
P(f"v_and_b32 v6, 15, {v(V_LANE)}")
P(f"v_lshlrev_b32 v4, 15, v5")
P(f"v_lshl_add_u32 v4, v6, 4, v4")
P(f"s_lshl_b32 s{S_T1}, s{S_T1}, 13")
P(f"s_lshl_b32 s{S_T0}, s{S_TB}, 8")
P(f"s_add_u32 s{S_T0}, s{S_T0}, s{S_T1}")
P(f"s_add_u32 s{S_T0}, s{S_T0}, {WS_P}")
P(f"v_add_u32 {v(V_PL)}, s{S_T0}, v4")
P(f"v_lshlrev_b32 v4, 9, v5")
P(f"v_lshl_add_u32 v4, v6, 4, v4")
P(f"s_mul_i32 s{S_T0}, s{S_V}, {14*512}")
P(f"v_add_u32 {v(V_AW)}, s{S_T0}, v4")
P(f"v_lshlrev_b32 v4, 3, {v(V_LANE)}")
P(f"s_lshl_b32 s{S_T0}, s{S_V}, 9")
P(f"s_add_u32 s{S_T0}, s{S_T0}, {L_ST}")
P(f"v_add_u32 {v(V_STW)}, s{S_T0}, v4")
P(f"v_and_b32 v4, 0xff, v4")
P(f"v_add_u32 {v(V_STR)}, {L_ST}, v4")
P(f"s_mul_i32 s{S_T0}, s{S_TB}, 224")
P(f"s_lshl_b32 s{S_T1}, s{S_FB}, 2")
P(f"s_add_u32 s{S_T1}, s{S_T1}, s{S_V}")
P(f"s_add_u32 s{S_T0}, s{S_T0}, s{S_T1}")
P(f"s_lshl_b32 s{S_T0}, s{S_T0}, 11")
P(f"s_add_u32 s{S_T0}, s{S_T0}, {WS_H}")
P(f"v_add_u32 {v(V_HST)}, s{S_T0}, {v(V_L16)}")
P(f"s_lshl_b32 s{S_T0}, s{S_TB}, 8")
P(f"s_add_u32 s{S_T0}, s{S_T0}, s{S_T1}")
P(f"s_mul_i32 s{S_T0}, s{S_T0}, {FS}")
P(f"s_add_u32 s{S_F3}, s{S_T0}, {WS_F3}")

SG = 148
SS = 16


def stage(gen):
    q = sub()
    if gen == 1:
        q(f"v_add_u32 {v(V_F2)}, {1024*FS}, {v(V_F2)}")
    poll(q, V_F2, 4)
    for rd in range(4):
        if rd == 3:
            q("s_mov_b64 exec, 0xffffffff")
        for e in range(4):
            q(f"s_mov_b32 s{S_T0}, {(16*rd+e)*8192 + 4096*gen}")
            q(f"buffer_load_dwordx4 {v(SG+16*rd+4*e,4)}, {v(V_PL)}, {srd(SRD_WS)}, s{S_T0} offen sc1")
    q("s_mov_b64 exec, -1")
    for j in range(8):
        q(f"v_mov_b32 {v(SS+j)}, 0")
    q(f"v_mov_b32 v5, 0x3f803f80")
    for rd in range(4):
        b = SG + 16 * rd
        if rd == 3:
            q("s_mov_b64 exec, 0xffffffff")
        for e in range(4):
            for j in range(e + 1, 4):
                q(f"v_swap_b32 {v(b+4*e+j)}, {v(b+4*j+e)}")
        for j in range(4):
            q(f"ds_write_b128 {v(V_AW)}, {v(b+4*j,4)} offset:{(j>>1)*ACT_T + (j&1)*256 + rd*2048}")
        for e in range(4):
            for j in range(4):
                q(f"v_dot2c_f32_bf16 {v(SS+j)}, {v(b+4*j+e)}, v5")
            for j in range(4):
                q(f"v_dot2c_f32_bf16 {v(SS+4+j)}, {v(b+4*j+e)}, {v(b+4*j+e)}")
    q("s_mov_b64 exec, -1")
    for o in (0, 4):
        q(f"v_permlane32_swap_b32 {v(SS+o)}, {v(SS+o+2)}")
        q(f"v_permlane32_swap_b32 {v(SS+o+1)}, {v(SS+o+3)}")
    for o in (0, 4):
        q(f"v_add_f32 {v(SS+o)}, {v(SS+o)}, {v(SS+o+2)}")
        q(f"v_add_f32 {v(SS+o+1)}, {v(SS+o+1)}, {v(SS+o+3)}")
    for o in (0, 4):
        q(f"v_permlane16_swap_b32 {v(SS+o)}, {v(SS+o+1)}")
    q(f"v_add_f32 {v(SS)}, {v(SS)}, {v(SS+1)}")
    q(f"v_add_f32 {v(SS+1)}, {v(SS+4)}, {v(SS+5)}")
    q(f"ds_write_b64 {v(V_STW)}, {v(SS,2)} offset:{2048*gen}")
    if gen == 0:
        q(f"v_add_u32 {v(V_AW)}, {2*ACT_T}, {v(V_AW)}")
    q("s_waitcnt lgkmcnt(0)")
    q("s_barrier")
    return q.ins


GACC = [32, 64]
BF = 96
MB = 128
KC_ = [24, 28]
V_AR = 15
GC0 = -2.0 * math.sqrt(2.0 / math.pi) * LOG2E
GC1 = GC0 * 0.044715


def stats_final(J):
    q = sub()
    kc = KC_[J & 1]
    t = 132
    for w in range(4):
        q(f"ds_read_b64 {v(t+2*w,2)}, {v(V_STR)} offset:{2048*(J>>1) + 512*w + 256*(J&1)}")
    q(f"v_pk_add_f32 {v(t,2)}, {v(t,2)}, {v(t+2,2)}")
    q(f"v_pk_add_f32 {v(t+4,2)}, {v(t+4,2)}, {v(t+6,2)}")
    q(f"v_pk_add_f32 {v(t,2)}, {v(t,2)}, {v(t+4,2)}")
    q(f"v_mul_f32 {v(t)}, {f32(1.0/448)}, {v(t)}")
    q(f"v_mul_f32 {v(t+1)}, {f32(1.0/448)}, {v(t+1)}")
    q(f"v_fma_f32 {v(t+1)}, -{v(t)}, {v(t)}, {v(t+1)}")
    q(f"v_max_f32 {v(t+1)}, 0, {v(t+1)}")
    q(f"v_cvt_pk_bf16_f32 {v(MB)}, -{v(t)}, -{v(t)}")
    round_bf16(q, t + 1, t + 1)
    q(f"v_add_f32 {v(t+1)}, {f32(1e-5)}, {v(t+1)}")
    round_bf16(q, t + 1, t + 1)
    q(f"v_sqrt_f32 {v(t+1)}, {v(t+1)}")
    round_bf16(q, t + 1, t + 1)
    q(f"v_rcp_f32 {v(t)}, {v(t+1)}")
    q(f"v_mul_f32 {v(kc+2)}, {v(t+1)}, {v(t+1)}")
    q(f"v_mul_f32 {v(kc)}, {f32(GC0)}, {v(t)}")
    q(f"v_mul_f32 {v(kc+1)}, {v(t)}, {v(t)}")
    q(f"v_mul_f32 {v(kc+1)}, {v(kc+1)}, {v(kc)}")
    q(f"v_mul_f32 {v(kc+1)}, {f32(0.044715)}, {v(kc+1)}")
    return q.ins


def g1_tile(J):
    q = sub()
    g = GACC[J & 1]
    off0 = (J & 1) * ACT_T
    NB = 8
    for ks in range(NB - 1):
        q(f"ds_read_b128 {v(BF+4*ks,4)}, {v(V_AR)} offset:{off0+1024*ks}")
    for ks in range(28):
        k2 = ks + NB - 1
        if k2 < 28:
            q(f"ds_read_b128 {v(BF+4*(k2%NB),4)}, {v(V_AR)} offset:{off0+1024*k2}")
        for m, ab in ((0, A_WG), (1, A_WU)):
            d = g + 16 * m
            c = "0" if ks == 0 else v(d, 16)
            q(f"v_mfma_f32_32x32x16_bf16 {v(d,16)}, {acc(ab+4*ks,4)}, {v(BF+4*(ks%NB),4)}, {c}")
    return q.ins


def g1_mean(J):
    q = sub()
    g = GACC[J & 1]
    q(f"v_mfma_f32_32x32x16_bf16 {v(g,16)}, {acc(A_CG,4)}, {v(MB,4)}, {v(g,16)}")
    q(f"v_mfma_f32_32x32x16_bf16 {v(g+16,16)}, {acc(A_CU,4)}, {v(MB,4)}, {v(g+16,16)}")
    return q.ins


def g1_epi(J):
    q = sub()
    g = GACC[J & 1]
    kc = KC_[J & 1]
    T = 140
    HP = 212
    for j0 in range(0, 16, 4):
        js = range(j0, j0 + 4)
        for j in js:
            q(f"v_mul_f32 {v(T+j-j0)}, {v(g+j)}, {v(g+j)}")
        for j in js:
            q(f"v_fma_f32 {v(T+j-j0)}, {v(T+j-j0)}, {v(kc+1)}, {v(kc)}")
        for j in js:
            q(f"v_mul_f32 {v(T+j-j0)}, {v(T+j-j0)}, {v(g+j)}")
        for j in js:
            q(f"v_exp_f32 {v(T+j-j0)}, {v(T+j-j0)}")
        for j in js:
            q(f"v_mul_f32 {v(T+4+j-j0)}, {v(g+j)}, {v(g+16+j)}")
        for j in js:
            q(f"v_fma_f32 {v(T+j-j0)}, {v(T+j-j0)}, {v(kc+2)}, {v(kc+2)}")
        for j in js:
            q(f"v_rcp_f32 {v(T+j-j0)}, {v(T+j-j0)}")
        for j in js:
            q(f"v_mul_f32 {v(T+4+j-j0)}, {v(T+4+j-j0)}, {v(T+j-j0)}")
        q(f"v_cvt_pk_bf16_f32 {v(HP+j0//2)}, {v(T+4)}, {v(T+5)}")
        q(f"v_cvt_pk_bf16_f32 {v(HP+j0//2+1)}, {v(T+6)}, {v(T+7)}")
        if j0 in (4, 12):
            q2 = j0 // 8
            q(f"s_mov_b32 s{S_T0}, {J*56*2048}")
            q(f"buffer_store_dwordx4 {v(HP+4*q2,4)}, {v(V_HST)}, {srd(SRD_WS)}, s{S_T0} offen offset:{1024*q2} sc1", tok=f"H{J}")
    return q.ins


def flag3(J):
    q = sub()
    q.wait(f"H{J}")
    setflag(q, S_F3)
    q(f"s_add_u32 s{S_F3}, s{S_F3}, {64*FS}")
    return q.ins


P(f"v_mov_b32 {v(V_AR)}, {v(V_L16)}")
for i in range(1, 4):
    P(f"v_mov_b32 {v(MB+i)}, 0")
P.add(stage(0))
stamp()
P.add(interleave(g1_tile(0), stats_final(0), start=4, every=3))
P.add(g1_mean(0))
P.add(interleave(g1_tile(1), stats_final(1) + g1_epi(0), start=6))
P.add(g1_mean(1))
P.add(flag3(0))
stamp()
P.add(stage(1))
P(f"v_add_u32 {v(V_AR)}, {2*ACT_T}, {v(V_AR)}")
P.add(g1_epi(1))
P.add(interleave(g1_tile(2), stats_final(2) + flag3(1), start=4, every=2))
P.add(g1_mean(2))
P.add(interleave(g1_tile(3), stats_final(3) + g1_epi(2), start=6))
P.add(g1_mean(3))
P.add(flag3(2))
P.add(g1_epi(3))
P.add(flag3(3))
stamp()
if STOP == "g1":
    P("s_branch L_fin")

RES = 16
P(f"v_lshrrev_b32 v4, 4, v0")
P(f"v_and_b32 v5, 15, v0")
P(f"v_lshrrev_b32 v6, 1, v5")
P(f"v_lshlrev_b32 v6, 9, v6")
P(f"v_lshl_add_u32 v6, v4, 4, v6")
P(f"v_and_b32 v7, 1, v5")
P(f"v_lshl_add_u32 v6, v7, 3, v6")
P(f"s_lshl_b32 s{S_T0}, s{S_DB}, 12")
P(f"s_lshl_b32 s{S_T1}, s{S_FH}, 8")
P(f"s_add_u32 s{S_T0}, s{S_T0}, s{S_T1}")
P(f"v_add_u32 v6, s{S_T0}, v6")
P(f"v_add_u32 v7, {2*ACT_T}, v6")
for J in range(4):
    P(f"ds_read_b64 {v(RES+2*J,2)}, {v(6+(J>>1))} offset:{(J&1)*ACT_T}")
V_OST, V_RR, V_RW, V_HL, V_P3, V_DW = 8, 9, 10, 11, 12, 13
V_TD = 24
P(f"v_mul_u32_u24 v6, {16*896}, v4")
P(f"v_lshl_add_u32 v6, v5, 3, v6")
P(f"s_lshr_b32 s{S_T0}, s{S_TB}, 2")
P(f"s_lshl_b32 s{S_T0}, s{S_T0}, 8")
P(f"s_and_b32 s{S_T1}, s{S_TB}, 3")
P(f"s_lshl_b32 s{S_T1}, s{S_T1}, 2")
P(f"s_add_u32 s{S_T0}, s{S_T0}, s{S_T1}")
P(f"s_add_u32 s{S_T0}, s{S_T0}, s{S_FH}")
P(f"s_mul_i32 s{S_T0}, s{S_T0}, 896")
P(f"s_lshl_b32 s{S_T1}, s{S_DB}, 7")
P(f"s_add_u32 s{S_T0}, s{S_T0}, s{S_T1}")
P(f"v_add_u32 {v(V_OST)}, s{S_T0}, v6")
P(f"v_mul_u32_u24 v6, 272, v5")
P(f"v_lshl_add_u32 v6, v4, 4, v6")
P(f"v_add_u32 {v(V_RR)}, {L_R}, v6")
P(f"v_lshrrev_b32 v4, 4, {v(V_LANE)}")
P(f"v_and_b32 v5, 15, {v(V_LANE)}")
P(f"v_mul_u32_u24 v6, 272, v4")
P(f"v_lshl_add_u32 v6, v5, 4, v6")
P(f"s_mul_i32 s{S_T0}, s{S_V}, 4352")
P(f"s_add_u32 s{S_T0}, s{S_T0}, {L_R}")
P(f"v_add_u32 {v(V_RW)}, s{S_T0}, v6")
P(f"v_lshlrev_b32 v6, 9, v4")
P(f"v_lshl_add_u32 v6, v5, 4, v6")
P(f"s_mul_i32 s{S_T0}, s{S_TB}, 224")
P(f"s_mul_i32 s{S_T1}, s{S_V}, 14")
P(f"s_add_u32 s{S_T0}, s{S_T0}, s{S_T1}")
P(f"s_lshl_b32 s{S_T0}, s{S_T0}, 11")
P(f"s_lshl_b32 s{S_T2}, s{S_FH}, 8")
P(f"s_add_u32 s{S_T0}, s{S_T0}, s{S_T2}")
P(f"s_add_u32 s{S_T0}, s{S_T0}, {WS_H}")
P(f"v_add_u32 {v(V_HL)}, s{S_T0}, v6")
P(f"v_min_u32 v6, 13, {v(V_LANE)}")
P(f"s_lshl_b32 s{S_T0}, s{S_TB}, 8")
P(f"s_add_u32 s{S_T0}, s{S_T0}, s{S_T1}")
P(f"v_add_u32 v6, s{S_T0}, v6")
P(f"v_mul_u32_u24 v6, {FS}, v6")
P(f"v_add_u32 {v(V_P3)}, {WS_F3}, v6")
P(f"v_lshrrev_b32 v6, 3, {v(V_LANE)}")
P(f"v_and_b32 v7, 6, v6")
P(f"v_and_b32 v28, 7, {v(V_LANE)}")
P(f"v_xor_b32 v7, v7, v28")
P(f"v_mul_u32_u24 v6, 896, v6")
P(f"v_lshl_add_u32 v6, v7, 4, v6")
P(f"s_mul_i32 s{S_T0}, s{S_V}, {448*896}")
P(f"s_lshl_b32 s{S_T1}, s{S_DB}, 7")
P(f"s_add_u32 s{S_T0}, s{S_T0}, s{S_T1}")
P(f"v_add_u32 {v(V_DW)}, s{S_T0}, v6")
P(f"v_lshrrev_b32 v6, 1, v4")
P(f"v_lshlrev_b32 v6, 4, v6")
P(f"v_and_b32 v7, 1, v4")
P(f"v_lshl_add_u32 v6, v7, 2, v6")
P(f"v_bfe_u32 v7, {v(V_LANE)}, 2, 2")
P(f"v_add_u32 v6, v6, v7")
P(f"v_bfe_u32 v7, v6, 1, 2")
P(f"v_lshlrev_b32 v6, 7, v6")
P(f"v_and_b32 v28, 3, {v(V_LANE)}")
P(f"v_lshl_add_u32 v6, v28, 3, v6")
P(f"s_mul_i32 s{S_RING}, s{S_V}, {WD_W}")
P(f"v_add_u32 v6, s{S_RING}, v6")
for rt in range(4):
    P(f"v_xor_b32 v28, {rt}, v7")
    P(f"v_lshl_add_u32 {v(V_TD+rt)}, v28, 5, v6")
P("s_waitcnt lgkmcnt(0)")
P("s_barrier")


def wd_dma(b):
    q = sub()
    for i in range(28):
        q(f"s_add_u32 m0, s{S_RING}, {i*1024}")
        q(f"s_mov_b32 s{S_WOFF}, {(b*28+i)*8*896}")
        q(f"buffer_load_dwordx4 {v(V_DW)}, {srd(SRD_WD)}, s{S_WOFF} offen lds", tok=f"wd{b}")
    return q.ins


def wd_tr(b):
    q = sub()
    for i in range(7):
        ft = 7 * b + i
        for rt in range(4):
            for h in range(2):
                q(f"ds_read_b64_tr_b16 {acc(16*ft+4*rt+2*h,2)}, {v(V_TD+rt)} offset:{4096*i+1024*h}")
    return q.ins


P.add(wd_dma(0))
P.wait("wd0")
P.add(wd_tr(0))
P("s_waitcnt lgkmcnt(0)")
P.add(wd_dma(1))
P.wait("wd1")
P.add(wd_tr(1))
stamp()
HB = 32
OA = 96
for J in range(4):
    poll(P, V_P3, 4)
    if J < 3:
        P(f"v_add_u32 {v(V_P3)}, {64*FS}, {v(V_P3)}")
    for ft in range(14):
        P(f"s_mov_b32 s{S_T0}, {(J*56+ft)*2048}")
        P(f"buffer_load_dwordx4 {v(HB+4*ft,4)}, {v(V_HL)}, {srd(SRD_WS)}, s{S_T0} offen sc1")
    for ft in range(14):
        for rt in range(4):
            c = "0" if ft == 0 else v(OA + 4 * rt, 4)
            P(f"v_mfma_f32_16x16x32_bf16 {v(OA+4*rt,4)}, {acc(16*ft+4*rt,4)}, {v(HB+4*ft,4)}, {c}")
    for rt in range(4):
        P(f"ds_write_b128 {v(V_RW)}, {v(OA+4*rt,4)} offset:{(J&1)*R_SZ + rt*1088}")
    P("s_waitcnt lgkmcnt(0)")
    P("s_barrier")
    T = 112
    for w in range(4):
        P(f"ds_read_b128 {v(T+4*w,4)}, {v(V_RR)} offset:{(J&1)*R_SZ + w*4352}")
    for i in range(2):
        P(f"v_lshlrev_b32 {v(128+2*i)}, 16, {v(RES+2*J+i)}")
        P(f"v_and_b32 {v(129+2*i)}, 0xffff0000, {v(RES+2*J+i)}")
    for i in range(2):
        P(f"v_pk_add_f32 {v(T+2*i,2)}, {v(T+2*i,2)}, {v(T+4+2*i,2)}")
        P(f"v_pk_add_f32 {v(T+8+2*i,2)}, {v(T+8+2*i,2)}, {v(T+12+2*i,2)}")
    for i in range(2):
        P(f"v_pk_add_f32 {v(T+2*i,2)}, {v(T+2*i,2)}, {v(T+8+2*i,2)}")
    for i in range(2):
        P(f"v_pk_add_f32 {v(T+2*i,2)}, {v(T+2*i,2)}, {v(128+2*i,2)}")
    for i in range(2):
        P(f"v_cvt_pk_bf16_f32 {v(132+i)}, {v(T+2*i)}, {v(T+2*i+1)}")
    P(f"s_mov_b32 s{S_T0}, {(1024*(J>>1) + 2*(J&1))*896}")
    P(f"buffer_store_dwordx2 v[132:133], {v(V_OST)}, {srd(SRD_OUT)}, s{S_T0} offen")
stamp()
finish()

res = finalize(P.ins, verbose=True)
hdr = f"""; Fused pre-LN S4D conv + GEGLU FFN, one persistent launch (generated by my own script)
; @launch kernel={KN} grid=(256,1,1) block=(256,1,1) lds={LDS_SIZE}
.amdgcn_target "amdgcn-amd-amdhsa--gfx950"
.text
.globl {KN}
.p2align 8
.type {KN},@function
{KN}:
"""
ftr = f"""
.section .rodata,"a"
.p2align 6
.amdhsa_kernel {KN}
  .amdhsa_next_free_vgpr 512
  .amdhsa_next_free_sgpr 102
  .amdhsa_accum_offset 256
  .amdhsa_group_segment_fixed_size 0
  .amdhsa_kernarg_size 112
  .amdhsa_user_sgpr_count 2
  .amdhsa_user_sgpr_kernarg_segment_ptr 1
  .amdhsa_system_sgpr_workgroup_id_x 1
.end_amdhsa_kernel
"""
open(OUTF, "w").write(hdr + text_of(res) + ftr)
```

```python
import re

REG_RE = re.compile(r"^(-|abs\()?([vas])(\d+|\[(\d+):(\d+)\])\)?$")
TRANS = ("v_exp_f32", "v_log_f32", "v_rcp_f32", "v_rsq_f32", "v_sqrt_f32", "v_sin_f32", "v_cos_f32")


def regs_of(tok):
    tok = tok.strip()
    if tok in ("vcc",):
        return {"vcc"}
    if tok in ("exec",):
        return {"exec"}
    if tok == "m0":
        return {"m0"}
    m = REG_RE.match(tok)
    if not m:
        return set()
    k = m.group(2)
    if m.group(4) is not None:
        return {f"{k}{i}" for i in range(int(m.group(4)), int(m.group(5)) + 1)}
    return {f"{k}{m.group(3)}"}


def split_ops(s):
    out, depth, cur = [], 0, ""
    for ch in s:
        if ch in "[(":
            depth += 1
        if ch in "])":
            depth -= 1
        if ch == "," and depth == 0:
            out.append(cur.strip())
            cur = ""
        else:
            cur += ch
    if cur.strip():
        out.append(cur.strip())
    return out


class Ins:
    __slots__ = ("text", "mn", "ops", "mods", "rd", "wr", "cls", "passes", "tok", "cond", "srcC", "srcAB", "extra")

    def __init__(self, text, tok=None, cond=False):
        self.text = text
        self.tok = tok
        self.cond = cond
        self.extra = None
        t = text.split(";")[0].strip()
        self.rd, self.wr = set(), set()
        self.passes = 0
        self.srcC = set()
        self.srcAB = set()
        if t.endswith(":") or t.startswith(".") or not t:
            self.mn, self.ops, self.mods, self.cls = t, [], "", "label" if t.endswith(":") else "dir"
            return
        parts = t.split(None, 1)
        mn = parts[0]
        rest = parts[1] if len(parts) > 1 else ""
        ops = split_ops(rest)
        mods = ""
        if ops:
            last = ops[-1].split(None, 1)
            if len(last) > 1 and not mn.startswith("s_waitcnt"):
                ops[-1] = last[0]
                mods = last[1]
        self.mn, self.ops, self.mods = mn, ops, mods
        base = re.sub(r"_(e32|e64|dpp|sdwa)$", "", mn)
        R = [regs_of(o) for o in ops]
        allr = lambda idx: set().union(*[R[i] for i in idx]) if idx else set()
        n = len(ops)
        if mn.startswith("v_mfma"):
            self.cls = "mfma"
            self.passes = 8 if "32x32x16" in mn else (4 if "16x16x32" in mn else 2)
            self.wr = R[0]
            self.srcAB = R[1] | R[2]
            self.srcC = R[3]
            self.rd = self.srcAB | self.srcC
        elif mn.startswith("v_"):
            self.cls = "valu"
            if base in TRANS:
                self.cls = "trans"
            if base.startswith("v_dot2"):
                self.cls = "dot"
            if base in ("v_swap_b32",) or base.startswith("v_permlane"):
                self.wr = R[0] | R[1]
                self.rd = R[0] | R[1]
                if base.startswith("v_permlane"):
                    self.extra = "permlane"
            elif base in ("v_add_co_u32", "v_sub_co_u32", "v_addc_co_u32", "v_subb_co_u32"):
                self.wr = R[0] | R[1]
                self.rd = allr(range(2, n))
            else:
                self.wr = R[0]
                self.rd = allr(range(1, n))
                if base in ("v_fmac_f32", "v_dot2c_f32_bf16", "v_writelane_b32") or "_dpp" in mn or "row_" in mods or "quad_perm" in mods:
                    self.rd |= R[0]
                if "_dpp" in mn or "row_" in mods or "quad_perm" in mods:
                    self.extra = "dpp"
                if base in ("v_readfirstlane_b32", "v_readlane_b32"):
                    self.extra = "readlane"
                if base.startswith("v_dot2"):
                    self.srcC = R[0] if base.startswith("v_dot2c") else R[3]
                    self.srcAB = R[1] | R[2]
        elif mn.startswith("ds_"):
            self.cls = "ds"
            if mn.startswith("ds_read") or mn.startswith("ds_bpermute") or mn.startswith("ds_swizzle"):
                self.wr = R[0]
                self.rd = allr(range(1, n))
                if "d16" in mn:
                    self.rd |= R[0]
            else:
                self.rd = allr(range(n))
            if "addtid" in mn:
                self.rd |= {"m0"}
                self.extra = "dma"
        elif mn.startswith("buffer_") or mn.startswith("global_"):
            self.cls = "vmem"
            islds = " lds" in (" " + mods)
            if "_load" in mn and not islds:
                self.wr = R[0]
                self.rd = allr(range(1, n))
            elif "_atomic" in mn and "sc0" in mods:
                self.wr = R[0]
                self.rd = allr(range(n))
            else:
                self.rd = allr(range(n))
                if islds:
                    self.rd |= {"m0"}
                    self.extra = "dma"
                elif "x4" in mn or "x3" in mn:
                    self.extra = "widestore"
        elif mn.startswith("s_load") or mn.startswith("s_mem"):
            self.cls = "smem"
            self.wr = R[0]
            self.rd = allr(range(1, n))
        elif mn.startswith("s_"):
            self.cls = "salu"
            if mn in ("s_waitcnt", "s_barrier", "s_nop", "s_endpgm", "s_sleep", "s_setprio") or mn.startswith("s_cbranch") or mn == "s_branch":
                self.cls = "ctl"
            elif mn.startswith("s_cmp") or mn.startswith("s_bitcmp"):
                self.rd = allr(range(n))
            else:
                self.wr = R[0]
                self.rd = allr(range(1, n))
                if "saveexec" in mn:
                    self.wr |= {"exec"}
        else:
            raise ValueError("unknown instruction: " + text)

    def states(self):
        if self.cls in ("label", "dir"):
            return 0
        if self.mn == "s_nop":
            return int(self.ops[0]) + 1
        return 1


def need_states(p, c):
    n = 0
    pv = p.cls in ("valu", "trans", "dot")
    cv = c.cls in ("valu", "trans", "dot")
    if pv:
        vw = {r for r in p.wr if r[0] in "va" and r != "vcc"}
        sw = {r for r in p.wr if r[0] == "s" or r == "vcc"}
        if c.cls == "mfma" and vw & c.rd:
            n = max(n, 2)
        if c.extra == "dpp" and vw & c.rd:
            n = max(n, 2)
        if c.extra == "permlane" and vw & c.rd:
            n = max(n, 2)
        if c.extra == "readlane" and vw & c.rd:
            n = max(n, 1)
        if sw & c.rd:
            if cv:
                n = max(n, 4 if c.extra == "readlane" else 2)
            if c.cls == "vmem":
                n = max(n, 5)
        if p.cls == "trans" and vw & c.rd and c.cls != "trans":
            n = max(n, 1)
        if p.cls == "dot":
            if c.cls == "dot" and c.mn == p.mn:
                if vw & c.srcAB:
                    n = max(n, 3)
            elif vw & (c.rd | c.wr):
                n = max(n, 3)
    if p.cls == "mfma":
        P = p.passes
        long = {2: 5, 4: 8, 8: 12}[P]
        if c.cls == "mfma":
            if p.wr & c.srcAB:
                n = max(n, long)
            if p.wr & c.srcC:
                if p.wr == c.srcC and c.passes == P:
                    n = max(n, 2 if P == 2 else 0)
                else:
                    n = max(n, P + 2)
            elif p.wr & c.wr:
                n = max(n, P + 2)
        elif p.wr & (c.rd | c.wr):
            n = max(n, long)
        if cv and p.srcC & c.wr:
            n = max(n, {2: 1, 4: 3, 8: 7}[P])
    if p.extra == "widestore":
        data = regs_of(p.ops[0]) if p.mn.startswith("buffer_") else regs_of(p.ops[1])
        if data & c.wr:
            n = max(n, 2)
    if p.cls == "salu" and "m0" in p.wr and c.extra == "dma":
        n = max(n, 1)
    return n


class Prog:
    def __init__(self):
        self.ins = []
        self._cond = False

    def __call__(self, text, tok=None):
        for line in text.split("\n"):
            line = line.strip()
            if not line or (line.startswith(";") and not line.startswith("; @")):
                continue
            self.ins.append(Ins(line, tok=tok, cond=self._cond))

    def raw(self, text):
        i = Ins(".raw")
        i.text = "    " + text
        self.ins.append(i)

    def add(self, lst):
        for i in lst:
            self.ins.append(i)

    def cond(self, on):
        self._cond = on

    def wait(self, tok):
        i = Ins("s_waitcnt auto", cond=self._cond)
        i.extra = ("wait", tok)
        self.ins.append(i)

    def lds_fence(self):
        self("s_waitcnt lgkmcnt(0)")


def sub():
    return Prog()


def interleave(main, fill, start=0, every=None, weights=None):
    idx = [k for k, i in enumerate(main) if i.cls == "mfma"]
    idx = idx[start:]
    if not idx:
        return main + fill
    n = len(idx)
    cost = lambda i: 2 if i.cls == "trans" else (0 if (i.extra and isinstance(i.extra, tuple)) else 1)
    total = sum(cost(i) for i in fill)
    out = []
    fi = 0
    done = 0
    seen = 0
    for k, i in enumerate(main):
        out.append(i)
        if k in idx:
            seen += 1
            target = total * seen / n if every is None else min(total, every * seen)
            while fi < len(fill) and done + cost(fill[fi]) <= target + 1e-9:
                out.append(fill[fi])
                done += cost(fill[fi])
                fi += 1
    out += fill[fi:]
    return out


def finalize(ins, verbose=False):
    out = []
    vm = []
    lg = []
    smem_out = []

    def emit_wait(vmn=None, lgn=None, cond=False):
        parts = []
        if vmn is not None:
            parts.append(f"vmcnt({min(vmn, 62)})")
        if lgn is not None:
            parts.append(f"lgkmcnt({min(lgn, 14)})")
        w = Ins("s_waitcnt " + " ".join(parts), cond=cond)
        out.append(w)

    def younger(lst, k, cond):
        return sum(1 for j in lst[k + 1:] if (not j.cond) or cond)

    for i in ins:
        if isinstance(i.extra, tuple) and i.extra[0] == "wait":
            tok = i.extra[1]
            kv = max([k for k, j in enumerate(vm) if j.tok == tok], default=None)
            kl = max([k for k, j in enumerate(lg) if j.tok == tok], default=None)
            if kv is not None or kl is not None:
                emit_wait(None if kv is None else younger(vm, kv, i.cond), None if kl is None else younger(lg, kl, i.cond), i.cond)
                if not i.cond:
                    if kv is not None:
                        vm = vm[kv + 1:]
                    if kl is not None:
                        lg = lg[kl + 1:]
                else:
                    if kv is not None:
                        vm = [j for k, j in enumerate(vm) if not (k <= kv and j.cond)]
                    if kl is not None:
                        lg = [j for k, j in enumerate(lg) if not (k <= kl and j.cond)]
            continue
        if i.mn == "s_waitcnt":
            t = i.text
            m = re.search(r"vmcnt\((\d+)\)", t)
            if m:
                n = int(m.group(1))
                assert n == 0, "manual counted vmcnt not supported"
                vm = [] if not i.cond else [j for j in vm if not j.cond]
            m = re.search(r"lgkmcnt\((\d+)\)", t)
            if m:
                assert int(m.group(1)) == 0
                if not i.cond:
                    lg = []
                    smem_out = []
                else:
                    lg = [j for j in lg if not j.cond]
            out.append(i)
            continue
        touched = i.rd | i.wr
        for j in smem_out:
            assert not (j.wr & touched), f"use of SMEM result without lgkmcnt(0): {i.text}"
        kv = max([k for k, j in enumerate(vm) if j.wr & touched], default=None)
        kl = max([k for k, j in enumerate(lg) if j.wr & touched], default=None)
        if kl is not None and i.cls == "ds" and "d16" in i.mn and not (lg[kl].wr & (i.rd - i.wr)):
            kl = None
        if kl is not None and not any(j.cond for j in lg):
            kl = max(kl, len(lg) - 1 - 14)
        if kv is not None or kl is not None:
            if kl is not None and smem_out:
                emit_wait(None if kv is None else younger(vm, kv, i.cond), 0, i.cond)
                if not i.cond:
                    lg = []
                    smem_out = []
            else:
                emit_wait(None if kv is None else younger(vm, kv, i.cond), None if kl is None else younger(lg, kl, i.cond), i.cond)
            if not i.cond:
                if kv is not None:
                    vm = vm[kv + 1:]
                if kl is not None and lg:
                    lg = lg[kl + 1:]
            else:
                if kv is not None:
                    vm = [j for k, j in enumerate(vm) if not (k <= kv and j.cond)]
                if kl is not None:
                    lg = [j for k, j in enumerate(lg) if not (k <= kl and j.cond)]
        out.append(i)
        if i.cls == "vmem":
            vm.append(i)
            assert len(vm) <= 63, "too many outstanding vmem ops at " + i.text
        elif i.cls == "ds":
            lg.append(i)
        elif i.cls == "smem":
            smem_out.append(i)

    res = []
    nn = 0
    for i in out:
        if i.cls not in ("label", "dir", "ctl"):
            dist = 0
            need = 0
            for p in reversed(res):
                if dist >= 20:
                    break
                r = need_states(p, i)
                if r > dist:
                    need = max(need, r - dist)
                if not (p.cond and not i.cond):
                    dist += p.states()
            while need > 0:
                k = min(need, 16)
                res.append(Ins(f"s_nop {k-1}", cond=i.cond))
                nn += 1
                need -= k
        res.append(i)
    if verbose:
        print(f"instructions: {len(res)}, nops inserted: {nn}")
    return res


def text_of(res):
    return "\n".join((i.text if i.cls in ("label", "dir") else "    " + i.text) for i in res)


def cost(i):
    if isinstance(i.extra, tuple):
        return 1
    if i.cls == "trans" or i.mn.startswith("v_swap"):
        return 2
    if i.cls in ("label", "dir"):
        return 0
    if i.cls == "vmem":
        return 5 if "store_dwordx4" in i.mn else 3
    return 1


class Gaps:
    def __init__(self, mfmas, cap):
        self.m = mfmas
        self.n = len(mfmas)
        self.cap = cap
        self.pin = [[] for _ in mfmas]
        self.fil = [[] for _ in mfmas]
        self.tail = []

    def used(self, k):
        return sum(cost(i) for i in self.pin[k]) + sum(cost(i) for i in self.fil[k])

    def at(self, k, ins):
        self.pin[min(k, self.n - 1)] += list(ins)

    def fill(self, ins, start=0, end=None, cap=None):
        cap = self.cap if cap is None else cap
        end = self.n if end is None else end
        k = start
        for i in ins:
            while k < end and self.used(k) + cost(i) > cap:
                k += 1
            if k >= end:
                if end >= self.n:
                    self.tail.append(i)
                else:
                    self.fil[end - 1].append(i)
            else:
                self.fil[k].append(i)
        return k

    def out(self):
        o = []
        for k in range(self.n):
            o.append(self.m[k])
            o += self.pin[k]
            o += self.fil[k]
        return o + self.tail


def sprinkle(main, inserts):
    d = {}
    for k, l in inserts:
        d.setdefault(min(k, len(main)), []).extend(l)
    o = []
    for k, i in enumerate(main):
        o += d.get(k, [])
        o.append(i)
    o += d.get(len(main), [])
    return o


def report_waits(res, vm_min=1100, lg_min=120):
    t = 0
    nm = 0
    vm, lg = [], []
    mark = "start"
    for i in res:
        if i.cls == "dir" and i.text.startswith("; @"):
            print(f"--- t={t} {i.text}")
            continue
        if i.cls in ("label", "dir"):
            continue
        if i.cls == "mfma":
            t = max(t, nm)
            nm = t + 4 * i.passes
            t += 8
            continue
        if i.mn == "s_waitcnt":
            m = re.search(r"vmcnt\((\d+)\)", i.text)
            if m:
                n = int(m.group(1))
                if len(vm) > n:
                    tt, j = vm[len(vm) - n - 1]
                    if t - tt < vm_min:
                        print(f"   t={t} vm wait age {t-tt}: {j.text[:70]}")
                    vm = vm[len(vm) - n:] if n else []
            m = re.search(r"lgkmcnt\((\d+)\)", i.text)
            if m:
                n = int(m.group(1))
                if len(lg) > n:
                    tt, j = lg[len(lg) - n - 1]
                    if t - tt < lg_min:
                        print(f"   t={t} lgkm wait age {t-tt}: {j.text[:70]}")
                    lg = lg[len(lg) - n:] if n else []
            t += 4
            continue
        if i.cls == "vmem":
            vm.append((t, i))
            t += 12
        elif i.cls == "ds":
            lg.append((t, i))
            t += 8
        elif i.mn == "s_nop":
            t += 4 * i.states()
        else:
            t += 4 * cost(i)
    print(f"--- t={t} end")
```

```python
import sys, math, struct
from asmgen import *

NAME = "sequential_preLN__ssm_conv_s4d__geglu_ffn__prompt"
KN = NAME + "_kernel"
OPT = {}
for a in sys.argv[1:]:
    k, _, val = a.partition("=")
    OPT[k] = val if val else True
STAMPS = "stamps" in OPT
OUTF = OPT.get("out", "k5.s")


def f32(x):
    return "0x%08x" % struct.unpack("<I", struct.pack("<f", x))[0]


FS = 4
FREP = 0x9000
WS_EPOCH = 0
WS_F1 = 0x8000
WS_F2 = WS_F1 + 0x1000
WS_F3 = WS_F1 + 0x3000
WS_S2 = 0x54000
S2REP = 0x5000
WS_UX = 0x80000
WS_P = WS_UX + 256 * 14336
PROW = 4352
PGEN = 224 * PROW
WS_H = WS_P + 2 * PGEN
WS_END = WS_H + 16 * 4 * 56 * 2048
WS_DBG = 0x1000000
WS_SIZE = 0x2000000
LAYOUT = 5

CS = 4160
TAB_W = 14592
TAB_ROW = 272
L_KC = 58368
L_UX = 75008
L_EX = 0
L_RING = 98304
L_ACT = [0, 65536]
L_F = 131072
L_R = 65536
R_SZ = 17408
LDS_SIZE = 163840

S_W = 2
S_V = 4
S_T0, S_T1, S_T2, S_T3 = 5, 6, 7, 3
SRD_X, SRD_WS, SRD_WG, SRD_WU, SRD_WD, SRD_OUT = 8, 12, 16, 20, 24, 28
S_NONCE = 32
S_CNT = 33
S_EX = 34
S_LDT, S_DSK = 64, 65
S_TB, S_FB, S_FH, S_DB = 66, 67, 68, 69
S_A, S_B, S_C, S_D = 70, 72, 74, 76
S_RING = 78
S_WOFF = 79
S_K0 = 80
S_TAB = 81
S_F3 = 82
S_F1, S_F2 = 83, 84
S_M255 = 86
S_FW, S_R2 = 88, 89
S_ACTW = 90
S_UXO = 91
S_Z = 95
S_UXM = 92
S_REP = 94
S_DONE = 85
S_PERM = 93
S_STAMP = 96


def srd(n):
    return f"s[{n}:{n+3}]"


def v(n, w=1):
    return f"v{n}" if w == 1 else f"v[{n}:{n+w-1}]"


def acc(n, w=1):
    return f"a{n}" if w == 1 else f"a[{n}:{n+w-1}]"


P = Prog()
TAIL = Prog()
nstamp = [0]
stamp_names = []


def stamp(name, p=None):
    p = P if p is None else p
    p(f"; @ {name}")
    if STAMPS:
        k = nstamp[0]
        assert k < 32
        p(f"s_memrealtime s[{S_STAMP}:{S_STAMP+1}]")
        p(f"s_memtime s[{S_STAMP+2}:{S_STAMP+3}]")
        p("s_waitcnt lgkmcnt(0)")
        p(f"v_writelane_b32 v255, s{S_STAMP}, {k}")
        p(f"v_writelane_b32 v255, s{S_STAMP+2}, {32+k}")
        nstamp[0] += 1
        stamp_names.append(name)


lblc = [0]


def label(prefix):
    lblc[0] += 1
    return f"L_{prefix}_{lblc[0]}"


def poll_issue(vaddr, vtmp):
    q = sub()
    q(f"v_mov_b32 {v(vtmp)}, 0")
    q(f"buffer_atomic_add {v(vtmp)}, {v(vaddr)}, {srd(SRD_WS)}, 0 offen sc0")
    return q.ins


def spin(t, name, done, reissue, vtag, sleep=2):
    t(f"{name}:")
    t(f"s_mov_b32 s{S_CNT}, 0")
    t(f"{name}_l:")
    t("s_mov_b64 exec, vcc")
    t(f"s_sleep {sleep}")
    t.add(reissue)
    t("s_waitcnt vmcnt(0)")
    t(f"v_cmp_ne_u32 vcc, s{S_NONCE}, {v(vtag)}")
    t("s_mov_b64 exec, -1")
    t(f"s_cbranch_vccz {done}")
    t(f"s_add_u32 s{S_CNT}, s{S_CNT}, 1")
    t(f"s_cmp_lt_u32 s{S_CNT}, 0x40000")
    t(f"s_cbranch_scc1 {name}_l")
    t(f"s_branch {done}")


def poll_check(vaddr, vtmp):
    q = sub()
    slow, done = label("slow"), label("pdone")
    q(f"v_cmp_ne_u32 vcc, s{S_NONCE}, {v(vtmp)}")
    if vaddr == V_F1:
        q(f"s_cbranch_vccnz {slow}")
    else:
        mask = f"s[{S_EX}:{S_EX+1}]" if vaddr == V_F2 else "0x3fff"
        q(f"s_and_b64 vcc, vcc, {mask}")
        q(f"s_cbranch_scc1 {slow}")
    q(f"{done}:")
    spin(TAIL, slow, done, poll_issue(vaddr, vtmp), vtmp)
    return q.ins


def setflag(p, soff):
    p(f"buffer_atomic_swap {v(V_NONCE)}, {v(V_FLG)}, {srd(SRD_WS)}, s{soff} offen")


def waitq(tok):
    q = sub()
    q.wait(tok)
    return q.ins


def cmul(p, z, x, y):
    p(f"v_pk_mul_f32 {v(z,2)}, {v(x,2)}, {v(y,2)} op_sel:[0,0] op_sel_hi:[0,1]")
    p(f"v_pk_fma_f32 {v(z,2)}, {v(x,2)}, {v(y,2)}, {v(z,2)} op_sel:[1,1,0] op_sel_hi:[1,0,1] neg_lo:[1,0,0]")


def round_bf16(p, dst, src):
    p(f"v_cvt_pk_bf16_f32 {v(dst)}, {v(src)}, {v(src)}")
    p(f"v_and_b32 {v(dst)}, 0xffff0000, {v(dst)}")


V_LANE, V_NONCE, V_L16 = 1, 2, 3
V_FLG = 8
V_W = 9
V_TRA = 13
V_TA, V_TB, V_TW = 14, 15, 16
GA = 17
V_F1, V_UXL = 26, 27
V_KA = 28
V_UA = 32
V_EU, V_EXP, V_EXW, V_EXR, V_PST = 36, 37, 38, 39, 40
V_GW, V_GX, V_GR, V_S3 = 36, 37, 38, 39
V_EU1 = 41
V_DT = 42
V_F2 = 43
PR = 44
V_PF = 254

LOG2E = 1.4426950408889634

P(f"s_cmp_ge_u32 s{S_W}, 256")
P("s_cbranch_scc1 L_end")
P(f"s_load_dwordx16 s[36:51], s[0:1], 0")
P(f"s_load_dwordx8 s[52:59], s[0:1], 64")
P(f"s_load_dwordx4 s[60:63], s[0:1], 96")
if "nocpf" not in OPT:
    P(f"s_getpc_b64 s[{S_B}:{S_B+1}]")
    P("L_pc:")
    P(f"s_bfe_u32 s{S_T2}, s{S_W}, 0x30003")
    P(f"s_mul_i32 s{S_T2}, s{S_T2}, ((L_codeend-L_pc)/1024)*128")
    P(f"v_cmp_gt_u32 vcc, (L_codeend-L_pc)/1024, v0")
    P(f"s_add_u32 s{S_B}, s{S_B}, s{S_T2}")
    P(f"s_addc_u32 s{S_B+1}, s{S_B+1}, 0")
    P(f"v_lshlrev_b32 v6, 7, v0")
    P(f"s_and_saveexec_b64 s[{S_A}:{S_A+1}], vcc")
    P("s_cbranch_execz L_nocpf")
    P.cond(True)
    P(f"v_mov_b32 v7, s{S_B+1}")
    P(f"v_add_co_u32 v6, vcc, s{S_B}, v6")
    P(f"v_addc_co_u32 v7, vcc, 0, v7, vcc")
    P(f"global_load_dword v253, v[6:7], off")
    P.cond(False)
    P("L_nocpf:")
    P("s_mov_b64 exec, -1")
if STAMPS:
    P("v_mov_b32 v255, 0")
P(f"v_and_b32 {v(V_LANE)}, 63, v0")
P(f"v_lshrrev_b32 v4, 6, v0")
P(f"v_lshlrev_b32 {v(V_L16)}, 4, {v(V_LANE)}")
P(f"v_readfirstlane_b32 s{S_V}, v4")
P(f"v_mov_b32 v5, 0x7ff00000")
P(f"v_cmp_gt_u32 vcc, 56, {v(V_LANE)}")
P(f"s_lshl_b32 s{S_T0}, s{S_W}, 2")
P(f"s_add_u32 s{S_T0}, s{S_T0}, s{S_V}")
P(f"v_cndmask_b32 v4, v5, {v(V_L16)}, vcc")
P(f"s_mul_i32 s{S_T0}, s{S_T0}, 1792")
P(f"s_min_u32 s{S_T1}, s{S_W}, 223")
P(f"s_lshl_b32 s{S_T2}, s{S_T1}, 10")
P(f"v_lshl_add_u32 v6, v0, 2, s{S_T2}")
P(f"v_mov_b32 v7, 0")
P(f"s_lshl_b32 s{S_T1}, s{S_T1}, 2")
P(f"s_mov_b32 s{SRD_X+2}, 1835008")
P(f"s_mov_b32 s{SRD_X+3}, 0x00020000")
P(f"s_mov_b32 s{SRD_WS+2}, {WS_SIZE}")
P(f"s_mov_b32 s{SRD_WS+3}, 0x00020000")
P("s_waitcnt lgkmcnt(0)")
stamp("start")
P(f"s_mov_b64 s[{SRD_X}:{SRD_X+1}], s[36:37]")
XR = 48
P(f"buffer_load_dwordx4 {v(XR,4)}, v4, {srd(SRD_X)}, s{S_T0} offen")
P(f"buffer_load_dwordx4 {v(XR+4,4)}, v4, {srd(SRD_X)}, s{S_T0} offen offset:896")
P(f"s_mov_b64 s[{SRD_WS}:{SRD_WS+1}], s[62:63]")
for i in range(4):
    P(f"global_load_dword {v(PR+i)}, v6, s[{38+2*i}:{39+2*i}]")
P(f"buffer_load_dword {v(V_NONCE)}, v7, {srd(SRD_WS)}, 0 offen sc1")
P(f"s_load_dword s{S_LDT}, s[46:47], s{S_T1}")
P(f"s_load_dword s{S_DSK}, s[48:49], s{S_T1}")
if "nopf" not in OPT:
    P(f"s_cmp_eq_u32 s{S_V}, 2")
    P(f"s_cselect_b64 s[{S_A}:{S_A+1}], s[54:55], s[52:53]")
    P(f"s_mul_i32 s{S_T0}, s{S_W}, {49*128}")
    P(f"v_min_u32 v4, 48, {v(V_LANE)}")
    P(f"v_lshl_add_u32 v4, v4, 7, s{S_T0}")
    P(f"s_cmp_lt_u32 s{S_V}, 2")
    P(f"s_cselect_b64 s[{S_A}:{S_A+1}], s[38:39], s[{S_A}:{S_A+1}]")
    P(f"s_cselect_b64 vcc, -1, 0")
    P(f"v_cndmask_b32 v4, v4, v6, vcc")
    P(f"global_load_dword {v(V_PF)}, v4, s[{S_A}:{S_A+1}]")
for r, src, sz in ((SRD_WG, 52, 1605632), (SRD_WU, 54, 1605632), (SRD_WD, 56, 1605632), (SRD_OUT, 58, 1835008)):
    P(f"s_mov_b64 s[{r}:{r+1}], s[{src}:{src+1}]")
    P(f"s_mov_b32 s{r+2}, {sz}")
    P(f"s_mov_b32 s{r+3}, 0x00020000")
P(f"v_cmp_lt_u32 vcc, 7, {v(V_LANE)}")
P(f"v_mul_u32_u24 v4, {FREP}, {v(V_LANE)}")
P(f"s_lshr_b32 s{S_T0}, s{S_W}, 3")
P(f"s_mul_i32 s{S_T1}, s{S_T0}, 37")
P(f"v_cndmask_b32 {v(V_FLG)}, v4, v5, vcc")
P(f"s_lshr_b32 s{S_T1}, s{S_T1}, 8")
P(f"s_mul_i32 s{S_T2}, s{S_T1}, 7")
P(f"s_sub_u32 s{S_DB}, s{S_T0}, s{S_T2}")
P(f"s_and_b32 s{S_FH}, s{S_W}, 1")
P(f"s_and_b32 s{S_T2}, s{S_W}, 6")
P(f"s_lshl_b32 s{S_T2}, s{S_T2}, 1")
P(f"s_add_u32 s{S_TB}, s{S_T2}, s{S_T1}")
P(f"s_mul_i32 s{S_FB}, s{S_FH}, 7")
P(f"s_add_u32 s{S_FB}, s{S_FB}, s{S_DB}")
P(f"s_lshl_b32 s{S_RING}, s{S_V}, 13")
P(f"s_add_u32 s{S_RING}, s{S_RING}, {L_RING}")
P(f"s_mul_i32 s{S_TAB}, s{S_V}, {TAB_W}")
P(f"v_cmp_lt_u32 vcc, 27, {v(V_LANE)}")
P(f"v_mov_b32 v4, {TAB_W-28*272}")
P(f"v_mul_u32_u24 v6, 272, {v(V_LANE)}")
P(f"v_cndmask_b32 v4, 0, v4, vcc")
P(f"s_lshl_b32 s{S_T0}, s{S_V}, 2")
P(f"v_add3_u32 {v(V_GW)}, v4, v6, s{S_T0}")
P(f"v_add_u32 {v(V_GX)}, s{S_T0}, {v(V_GW)}")
P(f"s_lshl_b32 s{S_UXM}, s{S_V}, 12")
P(f"s_add_u32 s{S_UXM}, s{S_UXM}, {L_UX+2048}")
P(f"v_and_b32 v4, 48, {v(V_LANE)}")
P(f"v_add3_u32 {v(V_GR)}, v4, {v(V_L16)}, s{S_TAB}")
P(f"v_and_b32 v4, 31, {v(V_LANE)}")
P(f"v_lshrrev_b32 v6, 5, {v(V_LANE)}")
P(f"v_lshl_add_u32 v6, v6, 4, s{S_TAB}")
P(f"v_and_b32 v7, 28, {v(V_LANE)}")
P(f"v_lshl_add_u32 v7, v4, 5, v7")
P(f"v_add_u32 {v(V_TW)}, v6, v7")
P(f"v_mul_u32_u24 v7, {TAB_ROW}, v4")
P(f"v_add_u32 {v(V_TB)}, v6, v7")
P(f"v_min_u32 v4, 20, v4")
P(f"v_mul_u32_u24 v7, {TAB_ROW}, v4")
P(f"v_add_u32 {v(V_TA)}, v6, v7")
P(f"s_mul_i32 s{S_UXO}, s{S_W}, 14336")
P(f"s_mul_i32 s{S_T0}, s{S_V}, 7168")
P(f"s_add_u32 s{S_UXO}, s{S_UXO}, s{S_T0}")
P(f"s_add_u32 s{S_UXO}, s{S_UXO}, {WS_UX}")
P(f"s_lshl_b32 s{S_T0}, s{S_V}, 8")
P(f"s_add_u32 s{S_T0}, s{S_T0}, s{S_W}")
P(f"s_mul_i32 s{S_T0}, s{S_T0}, {FS}")
P(f"s_add_u32 s{S_F1}, s{S_T0}, {WS_F1}")
P(f"s_add_u32 s{S_F2}, s{S_T0}, {WS_F2}")
P(f"v_lshrrev_b32 v4, 2, {v(V_LANE)}")
P(f"v_mul_u32_u24 v4, 3584, v4")
P(f"v_and_b32 v6, 3, {v(V_LANE)}")
P(f"v_lshl_add_u32 v4, v6, 4, v4")
P(f"s_lshl_b32 s{S_T0}, s{S_FB}, 8")
P(f"s_lshl_b32 s{S_T1}, s{S_V}, 6")
P(f"s_add_u32 s{S_T0}, s{S_T0}, s{S_T1}")
P(f"v_add_u32 {v(V_W)}, s{S_T0}, v4")
for k in range(1, 4):
    P(f"v_add_u32 {v(V_W+k)}, {k*(57344-1024)}, {v(V_W)}")
P(f"v_and_b32 v4, 32, {v(V_LANE)}")
P(f"v_lshlrev_b32 v4, 4, v4")
P(f"v_and_b32 v7, 12, {v(V_LANE)}")
P(f"v_lshl_add_u32 v4, v7, 4, v4")
P(f"v_and_b32 v7, 16, {v(V_LANE)}")
P(f"v_lshl_add_u32 v4, v7, 1, v4")
P(f"v_lshl_add_u32 v4, v6, 3, v4")
P(f"v_add_u32 {v(V_TRA)}, s{S_RING}, v4")
P(f"s_mov_b32 s{S_K0}, {L_KC+4096-L_UX}")
P(f"s_movk_i32 s{S_T2}, 128")
P(f"s_cmp_ge_u32 s{S_W}, 112")
P(f"s_cselect_b32 s{S_T0}, 0x400, 0")
P(f"s_and_b32 s{S_REP}, s{S_W}, 7")
P(f"s_mul_i32 s{S_REP}, s{S_REP}, {FREP}")
P(f"s_add_u32 s{S_REP}, s{S_REP}, {WS_F1}")
P(f"s_add_u32 s{S_T0}, s{S_T0}, s{S_REP}")
P(f"v_lshl_add_u32 {v(V_F1)}, v0, 2, s{S_T0}")
P(f"v_lshrrev_b32 v4, 2, {v(V_LANE)}")
P(f"v_add_u32 v4, s{S_T1}, v4")
P(f"v_mul_u32_u24 v7, 14336, v4")
P(f"v_lshrrev_b32 v4, 4, {v(V_LANE)}")
P(f"v_xor_b32 v6, v6, v4")
P(f"v_lshl_add_u32 v7, v6, 4, v7")
P(f"s_lshl_b32 s{S_T0}, s{S_W}, 6")
P(f"s_add_u32 s{S_T0}, s{S_T0}, {WS_UX}")
P(f"v_add_u32 {v(V_UXL)}, s{S_T0}, v7")
P(f"v_bfe_u32 v6, {v(V_LANE)}, 1, 2")
P(f"v_mul_u32_u24 v6, {CS}, v6")
P(f"v_and_b32 v7, 16, {v(V_L16)}")
P(f"v_add3_u32 v6, v6, v7, s{S_K0}")
P(f"v_lshlrev_b32 v7, 4, v0")
P(f"v_cmp_gt_u32 vcc, s{S_T2}, v0")
P(f"v_mov_b32 v56, 0")
P(f"v_mov_b32 v57, 0")
P(f"v_cndmask_b32 v6, v6, v7, vcc")
P(f"v_mov_b32 v58, 0")
P(f"v_mov_b32 v59, 0")
P(f"v_add_u32 v6, {L_UX}, v6")
P(f"ds_write_b128 v6, v[56:59]")
P(f"v_lshlrev_b32 v4, 3, v0")
P(f"v_sub_u32 v4, 2047, v4")
P(f"v_cvt_f32_i32 v4, v4")
P(f"v_mov_b32 v60, 1028")
P(f"v_cmp_eq_u32 vcc, 0, v0")
for e in range(0, 10, 2):
    P(f"v_add_f32 v6, {f32(-float(e))}, v4")
    if e < 8:
        P(f"v_add_f32 v7, {f32(-float(e+1))}, v4")
    P(f"v_cvt_pk_bf16_f32 v6, v6, v7")
    for h in range(2):
        if e + h > 8:
            continue
        d = GA + e + h
        if h == 0:
            P(f"v_lshlrev_b32 v7, 16, v6")
        else:
            P(f"v_and_b32 v7, 0xffff0000, v6")
        P(f"v_cvt_u32_f32 v7, v7")
        if e + h < 4:
            P(f"v_cndmask_b32 v7, v7, v60, vcc")
        P(f"v_lshrrev_b32 {v(d)}, 5, v7")
        P(f"v_add_lshl_u32 {v(d)}, {v(d)}, v7, 2")
P(f"v_mov_b32 v4, 255")
P(f"v_cmp_eq_u32 s[{S_M255}:{S_M255+1}], v4, v0")

XF = 56
DF = 72
SA = 88
if "fine" in OPT: stamp("setup done")
P(f"s_mov_b32 s{S_EX}, -1")
P(f"s_mov_b32 s{S_EX+1}, 0x00ffffff")
P(f"s_mov_b32 s{S_K0}, {f32(1.0/448)}")
for r in range(2):
    for i in range(4):
        P(f"v_lshlrev_b32 {v(XF+8*r+2*i)}, 16, {v(XR+4*r+i)}")
        P(f"v_and_b32 {v(XF+8*r+2*i+1)}, 0xffff0000, {v(XR+4*r+i)}")
stamp("x arrived")
P(f"s_mov_b64 exec, s[{S_EX}:{S_EX+1}]")
for i in range(4):
    P(f"ds_write2_b32 {v(V_GX)}, {v(XR+i)}, {v(XR+4+i)} offset0:{16*i+8} offset1:{16*i+9}")
P("s_mov_b64 exec, -1")
for r in range(2):
    b = XF + 8 * r
    P(f"v_pk_add_f32 {v(DF+8*r,2)}, {v(b,2)}, {v(b+2,2)}")
    P(f"v_pk_add_f32 {v(DF+8*r+2,2)}, {v(b+4,2)}, {v(b+6,2)}")
for r in range(2):
    P(f"v_pk_add_f32 {v(DF+8*r,2)}, {v(DF+8*r,2)}, {v(DF+8*r+2,2)}")
for r in range(2):
    P(f"v_add_f32 {v(SA+r)}, {v(DF+8*r)}, {v(DF+8*r+1)}")


def wave_sum(p, regs):
    for mod in ("row_shr:1", "row_shr:2", "row_shr:4", "row_shr:8"):
        for r in regs:
            p(f"v_add_f32_dpp {v(r)}, {v(r)}, {v(r)} {mod} row_mask:0xf bank_mask:0xf bound_ctrl:0")
    for r in regs:
        p(f"v_add_f32_dpp {v(r)}, {v(r)}, {v(r)} row_bcast:15 row_mask:0xa bank_mask:0xf")
    for r in regs:
        p(f"v_add_f32_dpp {v(r)}, {v(r)}, {v(r)} row_bcast:31 row_mask:0xc bank_mask:0xf")


wave_sum(P, [SA, SA + 1])
for r in range(2):
    P(f"v_mul_f32 {v(SA+r)}, s{S_K0}, {v(SA+r)}")
P(f"v_cvt_pk_bf16_f32 {v(SA+2)}, {v(SA)}, {v(SA+1)}")
P(f"v_readlane_b32 s{S_A}, {v(SA)}, 63")
P(f"v_readlane_b32 s{S_B}, {v(SA+1)}, 63")
P(f"v_readlane_b32 s{S_T0}, {v(SA+2)}, 63")
P(f"v_mov_b32 {v(SA)}, 0")
P(f"v_mov_b32 {v(SA+1)}, 0")
P(f"s_mov_b64 exec, s[{S_EX}:{S_EX+1}]")
for r, sm in ((0, S_A), (1, S_B)):
    for i in range(4):
        P(f"v_pk_add_f32 {v(DF+8*r+2*i,2)}, {v(XF+8*r+2*i,2)}, s[{sm}:{sm+1}] op_sel_hi:[1,0] neg_lo:[0,1] neg_hi:[0,1]")
for r in range(2):
    b = DF + 8 * r
    P(f"v_pk_mul_f32 {v(b,2)}, {v(b,2)}, {v(b,2)}")
    for i in range(1, 4):
        P(f"v_pk_fma_f32 {v(b,2)}, {v(b+2*i,2)}, {v(b+2*i,2)}, {v(b,2)}")
for r in range(2):
    P(f"v_add_f32 {v(SA+r)}, {v(DF+8*r)}, {v(DF+8*r+1)}")
P("s_mov_b64 exec, -1")
P(f"s_lshl_b32 s{S_C}, s{S_T0}, 16")
P(f"s_and_b32 s{S_D}, s{S_T0}, 0xffff0000")
q1 = sub()
wave_sum(q1, [SA, SA + 1])
q2 = sub()
for r, sm in ((0, S_C), (1, S_D)):
    for i in range(4):
        q2(f"v_pk_add_f32 {v(DF+8*r+2*i,2)}, {v(XF+8*r+2*i,2)}, s[{sm}:{sm+1}] op_sel_hi:[1,0] neg_lo:[0,1] neg_hi:[0,1]")
for r in range(2):
    for i in range(4):
        q2(f"v_cvt_pk_bf16_f32 {v(XF+8*r+2*i)}, {v(DF+8*r+2*i)}, {v(DF+8*r+2*i+1)}")
for r in range(2):
    for i in range(4):
        q2(f"v_and_b32 {v(XF+8*r+2*i+1)}, 0xffff0000, {v(XF+8*r+2*i)}")
        q2(f"v_lshlrev_b32 {v(XF+8*r+2*i)}, 16, {v(XF+8*r+2*i)}")
k = 0
for j in range(0, len(q1.ins), 2):
    P.add(q1.ins[j:j + 2])
    P.add(q2.ins[k:k + 1])
    k += 1
P(f"v_mul_f32 {v(SA)}, s{S_K0}, {v(SA)}")
P(f"v_mul_f32 {v(SA+1)}, s{S_K0}, {v(SA+1)}")
for step in range(3):
    P(f"v_cvt_pk_bf16_f32 {v(SA+2)}, {v(SA)}, {v(SA+1)}")
    P(f"v_lshlrev_b32 {v(SA)}, 16, {v(SA+2)}")
    P(f"v_and_b32 {v(SA+1)}, 0xffff0000, {v(SA+2)}")
    for r in range(2):
        if step == 0:
            P(f"v_add_f32 {v(SA+r)}, {f32(1e-5)}, {v(SA+r)}")
        elif step == 1:
            P(f"v_sqrt_f32 {v(SA+r)}, {v(SA+r)}")
        else:
            P(f"v_rcp_f32 {v(SA+r)}, {v(SA+r)}")
    if step:
        P.add(q2.ins[k:k + 1])
        k += 1
P(f"v_readlane_b32 s{S_A}, {v(SA)}, 63")
P(f"v_readlane_b32 s{S_B}, {v(SA+1)}, 63")
P.add(q2.ins[k:])
for r, sm in ((0, S_A), (1, S_B)):
    for i in range(4):
        P(f"v_pk_mul_f32 {v(XF+8*r+2*i,2)}, {v(XF+8*r+2*i,2)}, s[{sm}:{sm+1}] op_sel_hi:[1,0]")
for j in range(8):
    P(f"v_cvt_pk_bf16_f32 {v(DF+j)}, {v(XF+j)}, {v(XF+8+j)}")
P(f"s_mov_b64 exec, s[{S_EX}:{S_EX+1}]")
for i in range(4):
    P(f"ds_write2_b32 {v(V_GW)}, {v(DF+2*i)}, {v(DF+2*i+1)} offset0:{16*i} offset1:{16*i+4}")
P("s_mov_b64 exec, -1")
if "fine" in OPT: stamp("ln1 math")
P(f"v_readfirstlane_b32 s{S_NONCE}, {v(V_NONCE)}")
P(f"s_mul_i32 s{S_NONCE}, s{S_NONCE}, 1664525")
P(f"s_add_u32 s{S_NONCE}, s{S_NONCE}, 1013904223")
P(f"v_mov_b32 {v(V_NONCE)}, s{S_NONCE}")
P("s_waitcnt lgkmcnt(0)")
P("s_barrier")
if "fine" in OPT: stamp("ln1 barrier")
UB = 112
P(f"s_cmp_ge_u32 s{S_V}, 2")
P("s_cbranch_scc1 L_nopub")
P.cond(True)
for j in range(7):
    P(f"ds_read_b128 {v(UB+4*j,4)}, {v(V_GR)} offset:{1088*j}")
P(f"s_add_u32 s{S_T0}, s{S_UXO}, 4096")
for j in range(7):
    P(f"buffer_store_dwordx4 {v(UB+4*j,4)}, {v(V_L16)}, {srd(SRD_WS)}, s{S_UXO if j < 4 else S_T0} offen offset:{1024*(j%4)} sc1", tok="ux")
P(f"s_cmp_lt_u32 s{S_W}, 224")
P("s_cbranch_scc1 L_nopub")
P.raw("s_waitcnt vmcnt(0)")
P.raw(f"buffer_atomic_swap {v(V_NONCE)}, {v(V_FLG)}, {srd(SRD_WS)}, s{S_F1} offen")
P.cond(False)
P("L_nopub:")
P(f"s_cmp_ge_u32 s{S_W}, 224")
P("s_cbranch_scc1 L_spare")
P(f"s_lshl_b32 s{S_T0}, s{S_V}, 3")
P(f"s_and_b32 s{S_T0}, s{S_T0}, 16")
P(f"s_lshr_b32 s{S_T1}, s{S_LDT}, s{S_T0}")
P(f"s_lshl_b32 s{S_T1}, s{S_T1}, 16")
P(f"v_mov_b32 v4, {f32(LOG2E)}")
P(f"v_mul_f32 v4, s{S_T1}, v4")
P(f"v_exp_f32 v4, v4")
P(f"s_mov_b32 m0, s{S_TAB}")
round_bf16(P, V_DT, 4)
stamp("ln1 done")


def wfrag(m, ks):
    return 8 * ks + 4 * m


def slotoff(slot):
    return (slot % 8) * 1024 + (slot // 8) * 32768


def w_dma(kq, m, slot, tok):
    q = sub()
    q(f"s_add_u32 m0, s{S_RING}, {slotoff(slot)}")
    if m == 0:
        q(f"s_mov_b32 s{S_WOFF}, {kq*4*57344}")
    for k in range(4):
        o = f" offset:{1024*k}" if k else ""
        q(f"buffer_load_dwordx4 {v(V_W+k)}, {srd(SRD_WU if m else SRD_WG)}, s{S_WOFF} offen{o} lds", tok=tok)
    return q.ins


def w_tr(kq, m, slot, tok=None):
    q = sub()
    for k in range(4):
        for h in range(2):
            q(f"ds_read_b64_tr_b16 {acc(wfrag(m,4*kq+k)+2*h,2)}, {v(V_TRA)} offset:{slotoff(slot+k)+256*h}", tok=tok)
    return q.ins


def batch_dma(b, tok):
    return [w_dma(2 * b + i // 2, i % 2, 4 * i, f"{tok}_{i}") for i in range(4)]


def batch_tr(b):
    o = []
    for i in range(4):
        o += w_tr(2 * b + i // 2, i % 2, 4 * i, tok=f"t{b}_{i}")
    return o


def singles(groups):
    out, cur = [], []
    for grp in groups:
        for i in grp:
            cur.append(i)
            if i.cls == "vmem":
                out.append(cur)
                cur = []
    if cur:
        out[-1] += cur
    return out


def pin_vm(g, start, groups, stride):
    k = start
    for u in singles(groups):
        g.at(int(k), u)
        k += stride
    return int(k)


def w_dma1(b, n, tok):
    i, k = n // 4, n % 4
    q = sub()
    q(f"s_add_u32 m0, s{S_RING}, {slotoff(4*i)}")
    if n % 8 == 0:
        q(f"s_mov_b32 s{S_WOFF}, {(2*b+i//2)*4*57344}")
    o = f" offset:{1024*k}" if k else ""
    q(f"buffer_load_dwordx4 {v(V_W+k)}, {srd(SRD_WU if i % 2 else SRD_WG)}, s{S_WOFF} offen{o} lds", tok=f"{tok}_{i}")
    q(f"s_mov_b32 m0, s{S_TAB}")
    return q.ins


KD = 176
FR = 192
FR = 112


def kgen_head(rd):
    q = sub()
    A0 = 48 + 0
    CC = 50
    unp = (lambda d, s: q(f"v_lshlrev_b32 {v(d)}, 16, {v(s)}")) if rd == 0 else (lambda d, s: q(f"v_and_b32 {v(d)}, 0xffff0000, {v(s)}"))
    for i in range(4):
        unp(48 + i, PR + i)
    q(f"v_mul_f32 v48, {f32(LOG2E)}, v48")
    q(f"v_exp_f32 v48, v48")
    q(f"v_mul_f32 v49, v49, {v(V_DT)}")
    q(f"v_cvt_pk_bf16_f32 v48, v48, v48")
    q(f"v_mul_f32 v49, 0.15915494, v49")
    q(f"v_and_b32 v48, 0xffff0000, v48")
    q(f"v_mul_f32 v50, v50, {v(V_DT)}")
    q(f"v_mul_f32 v48, v48, {v(V_DT)}")
    q(f"v_mul_f32 v51, v51, {v(V_DT)}")
    q(f"v_mul_f32 v48, {f32(-LOG2E)}, v48")
    q(f"v_add_f32 v50, v50, v50")
    q(f"v_add_f32 v51, v51, v51")
    for (z, pos) in ((52, 1), (54, 16), (56, 256)):
        if pos == 1:
            q(f"v_exp_f32 v4, v48")
            q(f"v_fract_f32 v5, v49")
        else:
            q(f"v_mul_f32 v4, {f32(float(pos))}, v48")
            q(f"v_mul_f32 v5, {f32(float(pos))}, v49")
            q(f"v_exp_f32 v4, v4")
            q(f"v_fract_f32 v5, v5")
        q(f"v_cos_f32 {v(z)}, v5")
        q(f"v_sin_f32 {v(z+1)}, v5")
        q(f"v_mul_f32 {v(z)}, {v(z)}, v4")
        q(f"v_mul_f32 {v(z+1)}, {v(z+1)}, v4")
    return q.ins


def kgen_body(rd):
    names = {"G0": 50, "E1": 52, "E16": 54, "E256": 56}
    nxt = [58]
    chunks = []
    cur = sub()
    wr = sub()
    pk = [0]
    PK = 192

    def new(n):
        names[n] = nxt[0]
        nxt[0] += 2
        assert nxt[0] <= 104
        return names[n]

    def out(kind, row, z):
        t = PK + pk[0] % 16
        pk[0] += 1
        if kind == "B":
            cur(f"v_cvt_pk_bf16_f32 {v(t)}, {v(z)}, {v(z+1)}")
            wr(f"ds_write_addtid_b32 {v(t)} offset:{row*TAB_ROW}")
        else:
            cur(f"v_cvt_pk_bf16_f32 {v(t)}, {v(z)}, -{v(z+1)}")
            wr(f"ds_write_addtid_b32 {v(t)} offset:{(32+row)*TAB_ROW}")
        if len(wr.ins) >= GROUP:
            flush()

    def flush():
        nonlocal cur, wr
        chunks.append(cur.ins + wr.ins)
        cur = sub()
        wr = sub()

    sc = [0]

    def mul(n, a, b, kind=None, row=None):
        if n is None:
            z = 104 + 2 * (sc[0] % 4)
            sc[0] += 1
        else:
            z = new(n)
        cmul(cur, z, names[a], names[b])
        if kind:
            out(kind, row, z)

    GROUP = int(OPT.get("kgroup", 6))
    t = PK + pk[0]
    pk[0] += 1
    cur(f"v_mov_b32 {v(t)}, 0x3f80")
    wr(f"ds_write_addtid_b32 {v(t)}")
    out("A", 0, names["G0"])
    out("B", 2, names["E16"])
    mul("E2", "E1", "E1")
    mul("E32", "E16", "E16", "B", 4)
    mul("G1", "G0", "E256", "A", 8)
    mul("E512", "E256", "E256")
    mul("a1", "G0", "E1", "A", 1)
    mul("E4", "E2", "E2")
    mul("E64", "E32", "E32", "B", 8)
    mul("E48", "E32", "E16", "B", 6)
    mul("G2", "G0", "E512", "A", 10)
    mul("G3", "G1", "E512", "A", 11)
    mul("E1024", "E512", "E512")
    mul("E8", "E4", "E4", "B", 1)
    mul("a2", "G0", "E2", "A", 2)
    mul("a3", "a1", "E2", "A", 3)
    mul("b2", "G1", "E2", "A", 9)
    mul("E128", "E64", "E64", "B", 16)
    mul("G4", "G0", "E1024", "A", 16)
    mul("E24", "E16", "E8", "B", 3)
    mul("E40", "E32", "E8", "B", 5)
    mul("E56", "E48", "E8", "B", 7)
    mul("E192", "E128", "E64", "B", 24)
    for row, a in ((4, "G0"), (5, "a1"), (6, "a2"), (7, "a3"), (12, "G1"), (13, "b2"), (14, "G2"), (15, "G3")):
        mul(None, a, "E4", "A", row)
    for row, a in ((17, "G1"), (18, "G2"), (19, "G3"), (20, "G4")):
        mul(None, a, "E1024", "A", row)
    for b2, nb in ((1, "E64"), (2, "E128"), (3, "E192")):
        for b1 in range(1, 8):
            mul(None, f"E{8*b1}", nb, "B", 8 * b2 + b1)
    if wr.ins or cur.ins:
        flush()
    return chunks


def kgen_reads():
    q = sub()
    for s in range(8):
        q(f"ds_read_b128 {v(FR+8*s,4)}, {v(V_TA)} offset:{32*TAB_ROW+32*s}")
        q(f"ds_read_b128 {v(FR+8*s+4,4)}, {v(V_TB)} offset:{32*s}")
    return q.ins


def kgen_mfma(rd):
    q = sub()
    for s in range(8):
        c = "0" if (rd == 0 and s == 0) else v(KD, 16)
        q(f"v_mfma_f32_32x32x16_bf16 {v(KD,16)}, {v(FR+8*s,4)}, {v(FR+8*s+4,4)}, {c}")
    return q.ins


P.add(kgen_head(0))
ch = kgen_body(0)
fl = sub()
fl(f"s_cmp_ge_u32 s{S_V}, 2")
fl("s_cbranch_scc1 L_nofl")
fl.cond(True)
fl("s_waitcnt vmcnt(0)")
setflag(fl, S_F1)
fl.cond(False)
fl("L_nofl:")
nd = 0
FLAGAT = int(OPT.get("flagat", 3))
for i, c in enumerate(ch):
    P.add(c)
    if i == FLAGAT:
        if "fine" in OPT: stamp("pre flag1")
        P.add(fl.ins)
        if "fine" in OPT: stamp("post flag1")
    elif i > FLAGAT:
        P.add(w_dma1(0, nd, "w1"))
        nd += 1
P.add(kgen_reads())
g = Gaps(kgen_mfma(0), 7)
for k in (0, 2, 4, 6):
    g.at(k, w_dma1(0, nd, "w1"))
    nd += 1
g.fill(kgen_head(1))
P.add(g.out())
stamp("kgen r0")
ch = kgen_body(1)
POLLAT = int(OPT.get("pollat", 3))
for i, c in enumerate(ch):
    P.add(c)
    if i == POLLAT:
        P.add(poll_issue(V_F1, 6))
    elif nd < 16:
        P.add(w_dma1(0, nd, "w1"))
        nd += 1
assert nd == 16
P.add(kgen_reads())
if "fine" in OPT: stamp("pre poll1")
P.add(poll_check(V_F1, 6))
if "fine" in OPT: stamp("post poll1")
g = Gaps(kgen_mfma(1), 6)
P(f"s_mov_b32 m0, s{S_UXM}")
for j in range(4):
    q = sub()
    q(f"s_mov_b32 s{S_T0}, {j*(16*14336-1024)}")
    o = f" offset:{1024*j}" if j else ""
    q(f"buffer_load_dwordx4 {v(V_UXL)}, {srd(SRD_WS)}, s{S_T0} offen{o} sc1 lds", tok="uxl")
    if j == 0:
        P.add(q.ins)
    else:
        g.at(2 * j - 2, q.ins)
tr1 = batch_tr(0)
P.wait("w1_2")
for k in range(8):
    g.at(k, tr1[3 * k:3 * k + 3])
P.add(g.out())
stamp("kgen r1")
P(f"v_and_b32 v4, 15, {v(V_LANE)}")
P(f"v_lshrrev_b32 v5, 4, {v(V_LANE)}")
P(f"v_lshl_add_u32 v6, v5, 3, v4")
P(f"v_sub_u32 v6, 39, v6")
P(f"v_and_b32 v7, 1, v6")
P(f"v_mul_u32_u24 v7, {CS-2}, v7")
P(f"v_lshl_add_u32 v6, v6, 1, v7")
P(f"s_lshr_b32 s{S_T0}, s{S_V}, 1")
P(f"s_andn2_b32 s{S_T3}, 1, s{S_V}")
P(f"s_mul_i32 s{S_T2}, s{S_T0}, {2*CS}")
P(f"s_lshl_b32 s{S_T1}, s{S_T3}, 8")
P(f"s_add_u32 s{S_T2}, s{S_T2}, s{S_T1}")
P(f"s_add_u32 s{S_T2}, s{S_T2}, {L_KC}")
P(f"v_add_u32 {v(V_KA+3)}, s{S_T2}, v6")
toff = {0: (0, 0), 1: (0, 1), 2: (0, 2), 3: (0, 3), 4: (1, 0), 5: (1, 2), 6: (2, 0), 7: (3, 0), 8: (4, 0), 9: (5, 0), 10: (6, 0), 11: (7, 0)}
P(f"ds_write2_b32 {v(V_TW)}, {v(KD)}, {v(KD+1)} offset0:0 offset1:1")
P(f"ds_write2_b32 {v(V_TW)}, {v(KD+2)}, {v(KD+3)} offset0:2 offset1:3")
for j in range(4, 12):
    qq, r = toff[j]
    P(f"ds_write_b32 {v(V_TW)}, {v(KD+j)} offset:{4*(r + 264*qq)}")
for k in range(3):
    P(f"v_add_u32 {v(V_KA+k)}, {64*(48-16*k)}, {v(V_KA+3)}")
P(f"v_lshlrev_b32 v6, 1, v4")
P(f"v_sub_u32 v6, v6, v5")
P(f"s_lshl_b32 s{S_T1}, s{S_T3}, 4")
P(f"s_add_u32 s{S_T1}, s{S_T1}, 17")
P(f"v_add_u32 v6, s{S_T1}, v6")
P(f"s_mov_b32 s{S_T2}, {L_UX}")
P("s_waitcnt lgkmcnt(0)")
P("s_barrier")
if "fine" in OPT: stamp("T barrier")
EG = 208
for c2 in range(2):
    for e in range(9):
        P(f"ds_read2st64_b32 {v(EG+18*c2+2*e,2)}, {v(GA+e)} offset0:{114*c2} offset1:{114*c2+57}")
b2 = batch_dma(1, "w2")
b2[3] = waitq("t0_3") + b2[3]
b2 = singles(b2)
P.add(b2.pop(0))
for rr in range(4):
    P(f"v_bfe_u32 v7, v6, 2, 2")
    P(f"v_xor_b32 v7, s{S_T0}, v7")
    P(f"v_lshl_add_u32 v7, v6, 2, v7")
    P(f"v_lshl_add_u32 {v(V_UA+rr)}, v7, 4, s{S_T2}")
    if rr < 3:
        P(f"v_subrev_u32 v6, 4, v6")
P.add(b2.pop(0))
P(f"v_lshlrev_b32 v6, 4, v0")
KO = 192
VB = 48


def bfrag(rr, e):
    return VB + 32 * rr + 4 * e


def b_loads(lo, hi):
    z = sub()
    for rr in range(4):
        for a in range(lo, hi):
            z(f"ds_read_b128 {v(bfrag(rr,a),4)}, {v(V_UA+rr)} offset:{2048*a}")
    return z.ins


for c2 in range(2):
    b = EG + 18 * c2
    for e in range(9):
        P(f"v_add_f32 {v(b+2*e)}, {v(b+2*e)}, {v(b+2*e+1)}")
    P(f"v_cndmask_b32 {v(b+16)}, {v(b+16)}, 0, s[{S_M255}:{S_M255+1}]")
    for s_ in range(2):
        o = KO + 8 * c2 + 4 * s_
        for i in range(4):
            P(f"v_cvt_pk_bf16_f32 {v(o+i)}, {v(b+2*(s_+2*i))}, {v(b+2*(s_+2*i+1))}")
    if c2 == 1:
        P(f"v_add_u32 v7, {2*CS}, v6")
    for s_ in range(2):
        P(f"ds_write_b128 {v(6+c2)}, {v(KO+8*c2+4*s_,4)} offset:{L_KC+s_*CS}", tok="kc")
    if c2 == 0:
        P.add(waitq("w1_3") + tr1[24:])
    P.add(b2.pop(0))
if "dumpk" in OPT:
    P(f"s_lshl_b32 s{S_T0}, s{S_W}, 13")
    P(f"s_add_u32 s{S_T0}, s{S_T0}, {WS_DBG}")
    P(f"buffer_store_dwordx4 {v(KO,4)}, v6, {srd(SRD_WS)}, s{S_T0} offen")
    P(f"s_add_u32 s{S_T0}, s{S_T0}, 4096")
    P(f"buffer_store_dwordx4 {v(KO+8,4)}, v6, {srd(SRD_WS)}, s{S_T0} offen")
stamp("expanded")
P.wait("uxl")
P.wait("kc")
P("s_barrier")
stamp("conv start")
ea = sub()
ea(f"v_lshrrev_b32 v6, 1, v5")
ea(f"v_lshl_add_u32 v6, v4, 1, v6")
ea(f"s_lshl_b32 s{S_T2}, s{S_V}, 11")
ea(f"s_add_u32 s{S_T2}, s{S_T2}, {L_UX+2048}")
ea(f"v_lshl_add_u32 v6, v6, 6, s{S_T2}")
ea(f"v_bfe_u32 v4, v4, 1, 2")
ea(f"v_and_b32 v5, 1, v5")
ea(f"v_lshl_add_u32 v7, v4, 4, v6")
ea(f"v_lshl_add_u32 {v(V_EU)}, v5, 3, v7")
ea(f"v_xor_b32 {v(V_EU1)}, 16, {v(V_EU)}")
ea(f"v_or_b32 v5, 2, v5")
ea(f"v_xor_b32 v4, v4, v5")
ea(f"v_lshl_add_u32 {v(V_EXP)}, v4, 4, v6")
eb = sub()
eb(f"s_mul_i32 s{S_ACTW}, s{S_V}, 14336")
eb(f"v_add_u32 {v(V_EXR)}, s{S_ACTW}, {v(V_L16)}")
eb(f"s_lshl_b32 s{S_T2}, s{S_V}, 10")
eb(f"v_add_u32 {v(V_EXW)}, s{S_T2}, {v(V_L16)}")
eb(f"s_mul_i32 s{S_T3}, s{S_W}, {PROW}")
eb(f"s_add_u32 s{S_T3}, s{S_T3}, {WS_P}")
eb(f"v_add_u32 {v(V_PST)}, s{S_T3}, {v(V_EXW)}")
eb(f"s_lshl_b32 s{S_C}, s{S_DSK}, 16")
eb(f"s_and_b32 s{S_D}, s{S_DSK}, 0xffff0000")

CA = [176, 192]
ET = 208


def afrag(rr, a):
    return 128 + 32 * rr + 4 * a


def a_loads(rr, lo, hi):
    z = sub()
    for a in range(lo, hi):
        k = a // 2
        off = 16 * (11 - rr - 8 * (a - 2 * k))
        z(f"ds_read2_b32 {acc(afrag(rr,a),2)}, {v(V_KA+k)} offset0:{off} offset1:{off+1}")
        z(f"ds_read2_b32 {acc(afrag(rr,a)+2,2)}, {v(V_KA+k)} offset0:{off+2} offset1:{off+3}")
    return z.ins


def conv_mfmas(gen):
    m = sub()
    first = set()
    na = 4 if gen == 0 else 8
    order = []
    for rr in range(4):
        pairs = [(a, e) for a in range(na) for e in range(na) if 4 * gen <= a + e < 4 * gen + 4]
        pairs.sort(key=lambda ae: (max(ae), ae))
        order += [(rr, a, e) for a, e in pairs]
    if gen == 1:
        order.sort(key=lambda t: (0 if max(t[1], t[2]) < 4 else 1))
    for rr, a, e in order:
        c = a + e - 4 * gen
        d = CA[gen] + 4 * c
        cc = v(d, 4) if c in first else "0"
        first.add(c)
        m(f"v_mfma_f32_16x16x32_bf16 {v(d,4)}, {acc(afrag(rr,a),4)}, {v(bfrag(rr,e),4)}, {cc}")
    return m.ins


UU, XX, YY, TT, WW, HO = ET, ET + 4, ET + 8, ET + 24, ET + 32, ET + 36


def conv_pre(gen):
    q = sub()
    q(f"ds_read_b64 {v(UU,2)}, {v(V_EU)} offset:{8192*gen}")
    q(f"ds_read_b64 {v(UU+2,2)}, {v(V_EU1)} offset:{8192*gen}")
    q(f"ds_read_b128 {v(XX,4)}, {v(V_EXP)} offset:{8192*gen}")
    r = sub()
    for c2 in range(2):
        for i in range(2):
            r(f"v_lshlrev_b32 {v(TT+4*c2+2*i)}, 16, {v(UU+2*c2+i)}")
            r(f"v_and_b32 {v(TT+4*c2+2*i+1)}, 0xffff0000, {v(UU+2*c2+i)}")
    for c2, sm in ((0, S_C), (1, S_D)):
        for i in range(4):
            r(f"v_mul_f32 {v(TT+4*c2+i)}, s{sm}, {v(TT+4*c2+i)}")
    for j in range(4):
        r(f"v_cvt_pk_bf16_f32 {v(WW+j)}, {v(TT+j)}, {v(TT+4+j)}")
    for j in range(4):
        r(f"v_lshlrev_b32 {v(TT+2*j)}, 16, {v(WW+j)}")
        r(f"v_and_b32 {v(TT+2*j+1)}, 0xffff0000, {v(WW+j)}")
    return q.ins, r.ins


def conv_xchg(gen):
    w_, b_, r_ = sub(), sub(), sub()
    for c in range(4):
        w_(f"ds_write_b128 {v(V_EXW)}, {v(CA[gen]+4*c,4)} offset:{10240*gen+14336*c}", tok=f"xw{gen}")
    b_.wait(f"xw{gen}")
    b_("s_barrier")
    for w in range(4):
        r_(f"ds_read_b128 {v(YY+4*w,4)}, {v(V_EXR)} offset:{10240*gen+1024*w}", tok=f"xr{gen}")
    return w_.ins, b_.ins, r_.ins


def conv_post(gen):
    q = sub()
    for c2 in range(2):
        for i in range(2):
            q(f"v_pk_add_f32 {v(YY+8*c2+2*i,2)}, {v(YY+8*c2+2*i,2)}, {v(YY+8*c2+4+2*i,2)}")
    for j in range(4):
        q(f"v_cvt_pk_bf16_f32 {v(WW+j)}, {v(YY+j)}, {v(YY+8+j)}")
    for j in range(4):
        q(f"v_lshlrev_b32 {v(YY+2*j)}, 16, {v(WW+j)}")
        q(f"v_and_b32 {v(YY+2*j+1)}, 0xffff0000, {v(WW+j)}")
    for j in range(4):
        q(f"v_pk_add_f32 {v(YY+2*j,2)}, {v(YY+2*j,2)}, {v(TT+2*j,2)}")
    for j in range(4):
        q(f"v_cvt_pk_bf16_f32 {v(WW+j)}, {v(YY+2*j)}, {v(YY+2*j+1)}")
    for j in range(4):
        q(f"v_lshlrev_b32 {v(YY+8+2*j)}, 16, {v(XX+j)}")
        q(f"v_and_b32 {v(YY+8+2*j+1)}, 0xffff0000, {v(XX+j)}")
    for j in range(4):
        q(f"v_lshlrev_b32 {v(YY+2*j)}, 16, {v(WW+j)}")
        q(f"v_and_b32 {v(YY+2*j+1)}, 0xffff0000, {v(WW+j)}")
    for j in range(4):
        q(f"v_pk_add_f32 {v(YY+2*j,2)}, {v(YY+2*j,2)}, {v(YY+8+2*j,2)}")
    h = HO + 4 * gen
    for j in range(4):
        q(f"v_cvt_pk_bf16_f32 {v(h+j)}, {v(YY+2*j)}, {v(YY+2*j+1)}")
    q(f"s_mov_b32 s{S_T0}, {PGEN*gen}")
    q(f"buffer_store_dwordx4 {v(h,4)}, {v(V_PST)}, {srd(SRD_WS)}, s{S_T0} offen sc1", tok=f"h{gen}")
    return q.ins


ad = sub()
ad(f"v_mov_b32 v4, 0x1ffc0000")
ad(f"v_cndmask_b32 v4, v4, {v(V_LANE)}, s[{S_EX}:{S_EX+1}]")
ad(f"s_lshr_b32 s{S_T0}, s{S_TB}, 2")
ad(f"s_lshl_b32 s{S_T0}, s{S_T0}, 8")
ad(f"s_mul_i32 s{S_T1}, s{S_V}, 56")
ad(f"s_add_u32 s{S_T0}, s{S_T0}, s{S_T1}")
ad(f"s_addk_i32 s{S_T0}, {WS_F2//4}")
ad(f"v_add_u32 v4, s{S_T0}, v4")
ad(f"s_bfe_u32 s{S_REP}, s{S_W}, 0x30003")
ad(f"s_mul_i32 s{S_REP}, s{S_REP}, {FREP}")
ad(f"v_lshl_add_u32 {v(V_F2)}, v4, 2, s{S_REP}")
V_A = 17
ad(f"v_lshrrev_b32 v5, 4, {v(V_LANE)}")
ad(f"v_and_b32 v6, 15, {v(V_LANE)}")
ad(f"v_mul_u32_u24 v4, {PROW}, v5")
ad(f"v_lshl_add_u32 v4, v6, 4, v4")
ad(f"s_mul_i32 s{S_T1}, s{S_T1}, {PROW}")
ad(f"s_lshl_b32 s{S_T0}, s{S_TB}, 8")
ad(f"s_add_u32 s{S_T0}, s{S_T0}, s{S_T1}")
ad(f"s_add_u32 s{S_T0}, s{S_T0}, {WS_P}")
ad(f"v_add_u32 {v(V_A)}, s{S_T0}, v4")
for k in range(1, 4):
    ad(f"v_add_u32 {v(V_A+k)}, {k*(4*PROW-1024)}, {v(V_A)}")
ad1 = ad

def act_dma(gen):
    o = []
    for kk in range(4):
        q = sub()
        q(f"s_add_u32 m0, s{S_ACTW}, {L_ACT[gen] + kk*4096}")
        q(f"s_mov_b32 s{S_WOFF}, {kk*16*PROW + PGEN*gen}")
        for k in range(4 if kk < 3 else 2):
            of = f" offset:{1024*k}" if k else ""
            q(f"buffer_load_dwordx4 {v(V_A+k)}, {srd(SRD_WS)}, s{S_WOFF} offen{of} sc1 lds", tok=f"act{gen}")
        o.append(q.ins)
    return o


V_BR, V_S2, V_HST = 21, 22, 24
V_D = 28
V_TD = 32
V_RES = 27
V_OST, V_RR, V_RW, V_HL, V_P3 = 40, 41, 42, 44, 45
SEL = 176
CSA = [180, 184]
ad = sub()
ad(f"v_add_u32 {v(V_F2)}, {1024*FS}, {v(V_F2)}")
ad(f"v_and_b32 v4, 31, {v(V_LANE)}")
ad(f"v_lshrrev_b32 v5, 5, {v(V_LANE)}")
ad(f"v_lshlrev_b32 v5, 10, v5")
ad(f"v_lshl_add_u32 {v(V_BR)}, v4, 2, v5")
ad(f"s_lshl_b32 s{S_T0}, s{S_TB}, 10")
ad(f"s_mul_i32 s{S_T1}, s{S_DB}, {S2REP}")
ad(f"s_add_u32 s{S_T0}, s{S_T0}, s{S_T1}")
ad(f"s_add_u32 s{S_T0}, s{S_T0}, {WS_S2}")
ad(f"v_lshl_add_u32 {v(V_S2)}, v4, 3, s{S_T0}")
ad(f"s_mov_b32 s{S_PERM}, 0x03020302")
ad(f"v_lshrrev_b32 v5, 4, {v(V_LANE)}")
ad(f"v_and_b32 v6, 15, {v(V_LANE)}")
ad(f"v_and_b32 v4, 1, v5")
ad(f"v_mul_u32_u24 v4, 57344, v4")
ad(f"v_lshl_add_u32 v4, v6, 4, v4")
ad(f"v_lshrrev_b32 v7, 1, v5")
ad(f"v_lshl_add_u32 v4, v7, 8, v4")
ad(f"s_mul_i32 s{S_T0}, s{S_TB}, {8*57344}")
ad(f"s_lshl_b32 s{S_T1}, s{S_FB}, 2")
ad(f"s_add_u32 s{S_T1}, s{S_T1}, s{S_V}")
ad(f"s_lshl_b32 s{S_T2}, s{S_T1}, 10")
ad(f"s_add_u32 s{S_T0}, s{S_T0}, {WS_H}")
ad(f"s_add_u32 s{S_T2}, s{S_T2}, s{S_T0}")
ad(f"v_add_u32 {v(V_HST)}, s{S_T2}, v4")
ad(f"s_mul_i32 s{S_T2}, s{S_FH}, 57344")
ad(f"s_add_u32 s{S_T0}, s{S_T0}, s{S_T2}")
ad(f"s_add_u32 s{S_T0}, s{S_T0}, s{S_ACTW}")
ad(f"v_add_u32 {v(V_HL)}, s{S_T0}, {v(V_L16)}")
ad(f"s_lshl_b32 s{S_T0}, s{S_TB}, 8")
ad(f"s_add_u32 s{S_T1}, s{S_T0}, s{S_T1}")
ad(f"s_mul_i32 s{S_T1}, s{S_T1}, {FS}")
ad(f"s_add_u32 s{S_F3}, s{S_T1}, {WS_F3}")
ad(f"s_mul_i32 s{S_T1}, s{S_V}, 14")
ad(f"s_add_u32 s{S_T0}, s{S_T0}, s{S_T1}")
ad(f"s_mov_b64 s[{S_A}:{S_A+1}], 0x3fff")
ad(f"v_mov_b32 v4, 0x1ffc0000")
ad(f"v_cndmask_b32 v4, v4, {v(V_LANE)}, s[{S_A}:{S_A+1}]")
ad(f"s_mul_i32 s{S_T1}, s{S_DB}, {FREP}")
ad(f"s_add_u32 s{S_T1}, s{S_T1}, {WS_F3}")
ad(f"v_add_u32 v4, s{S_T0}, v4")
ad(f"v_lshl_add_u32 {v(V_P3)}, v4, 2, s{S_T1}")
ad(f"s_add_u32 s{S_FW}, s{S_RING}, 32768")
ad(f"s_lshl_b32 s{S_R2}, s{S_V}, 14")
ad(f"s_add_u32 s{S_Z}, s{S_ACTW}, {L_ACT[1]}")
ad2 = ad
se = sub()
se(f"v_bfe_u32 v4, {v(V_LANE)}, 2, 2")
se(f"v_bfe_u32 v5, {v(V_LANE)}, 4, 1")
se(f"v_mov_b32 v6, 0x3f803f80")
se(f"v_cmp_eq_u32 vcc, v4, v5")
for i in range(4):
    se(f"v_cndmask_b32 {v(SEL+i)}, 0, v6, vcc")


def cs_mfma(ks0, ks1):
    q = sub()
    for ks in range(ks0, ks1):
        for m in range(2):
            c = "0" if ks == 0 else v(CSA[m], 4)
            q(f"v_mfma_f32_16x16x32_bf16 {v(CSA[m],4)}, {v(SEL,4)}, {acc(wfrag(m,ks),4)}, {c}")
    return q.ins


def pin_spread(g, start, ins, per=2):
    for i, x in enumerate(ins):
        g.at(int(start + i // per), [x])
    return int(start + (len(ins) + per - 1) // per)


mA, mB = conv_mfmas(0), conv_mfmas(1)
NOV = 22
bl = b_loads(0, 4)


def ab(rr):
    al = a_loads(rr, 0, 4)
    o = []
    for a in range(4):
        o += [bl[4 * rr + a]] + al[2 * a:2 * a + 2]
    return o


P.add(ab(0))
P.add(ea.ins)
P.add(eb.ins)
g = Gaps(mA + mB[:NOV], 2)
pr, pv = conv_pre(0)
l1 = ab(1) + ab(2) + pr + ab(3)
for i, x in enumerate(l1):
    g.at(i * 28 // len(l1), [x])
pin_vm(g, 1, b2, 3.2)
nb = b_loads(4, 8)
newl = []
for rr in range(4):
    newl += nb[4 * rr:4 * rr + 4] + a_loads(rr, 4, 8)
pin_spread(g, 30, newl[:12], per=1)
g.fill(pv, start=26, end=50)
xw, xb, xr = conv_xchg(0)
for i in range(4):
    g.at(42 + 2 * i, [xw[i]])
g.at(52, xb)
g.at(53, xr)
pin_spread(g, 54, newl[12:20], per=1)
P.add(g.out())
P.add(conv_post(0))
stamp("genA stored")
g = Gaps(mB[NOV:] + cs_mfma(0, 11), 2)
NB_ = len(mB) - NOV
pin_spread(g, 0, newl[20:], per=1)
fl = sub()
fl.wait("h0")
setflag(fl, S_F2)
fl(f"s_add_u32 s{S_F2}, s{S_F2}, {1024*FS}")
g.at(int(OPT.get("fa", 34)), fl.ins)
tr2 = batch_tr(1)
for i in range(4):
    pin_spread(g, 10 + 9 * i, waitq(f"w2_{i}") + tr2[8 * i:8 * i + 8], per=1)
b3 = batch_dma(2, "w3")
for i in range(4):
    b3[i] = waitq(f"t1_{i}") + b3[i]
pin_vm(g, 24, b3, 3.3)
pr, pv = conv_pre(1)
pin_spread(g, 48, pr, per=1)
e = g.fill(ad1.ins + se.ins, start=0, end=76)
g.fill(pv, start=max(e, 56), end=NB_ + 2)
g.at(int(OPT.get("pa", 78)), poll_issue(V_F2, 7))
xw, xb, xr = conv_xchg(1)
for i in range(4):
    g.at(NB_ + 2 + 2 * i, [xw[i]])
g.at(NB_ + 12, xb)
g.at(NB_ + 13, xr)
P.add(g.out())
P.add(conv_post(1))
stamp("genB stored")
P.add(poll_check(V_F2, 7))
stamp("pollA ok")
a0 = singles(act_dma(0))
P.add(a0.pop(0))
P.add(a0.pop(0))
g = Gaps(cs_mfma(11, 24), 4)
tr3 = batch_tr(2)
t3 = []
for i in range(4):
    t3 += waitq(f"w3_{i}") + tr3[8 * i:8 * i + 8]
pin_spread(g, 0, t3, per=4)
e = pin_vm(g, 0, a0, 1.5)
fl = sub()
fl.wait("h1")
setflag(fl, S_F2)
g.at(14, fl.ins)
g.fill(ad2.ins, start=9)
P.add(g.out())
for u in singles([waitq("t2_3") + w_dma(6, 0, 8, "w4"), w_dma(6, 1, 12, "w4")]):
    P.add(u)
stamp("gap work done")

GACC = [64, 96]
BF = 128
NBF = 8
MB = 160
KC_ = [14, 9]
STT = 60
EPT = 164
HP = 172
WDV = 188
RESR = [46, 48, 50, 52]
V_TZ = 96
A_CS = [224, 228]
GC0 = -2.0 * math.sqrt(2.0 / math.pi) * LOG2E


def st_issue(J, atomic=None):
    q = sub()
    t = STT + 2 * (J & 1)
    atomic = False if atomic is None else atomic
    if atomic:
        q(f"v_mov_b64 {v(t,2)}, 0")
        q(f"buffer_atomic_add_x2 {v(t,2)}, {v(V_S2)}, {srd(SRD_WS)}, 0 offen offset:{256*J} sc0")
    else:
        q(f"buffer_load_dwordx2 {v(t,2)}, {v(V_S2)}, {srd(SRD_WS)}, 0 offen offset:{256*J} sc1")
    return q.ins


def st_check(J):
    q = sub()
    t = STT + 2 * (J & 1)
    slow, done = label("sslow"), label("sdone")
    q(f"v_cmp_ne_u32 vcc, s{S_NONCE}, {v(t+1)}")
    q(f"s_cbranch_vccnz {slow}")
    q(f"{done}:")
    spin(TAIL, slow, done, st_issue(J, True), t + 1, sleep=1)
    return q.ins


def st_final(J):
    q = sub()
    kc = KC_[J & 1]
    t = STT + 2 * (J & 1)
    q(f"v_perm_b32 {v(MB)}, {v(t)}, {v(t)}, s{S_PERM}")
    q(f"v_lshlrev_b32 {v(t+1)}, 16, {v(t)}")
    q(f"v_rcp_f32 {v(t)}, {v(t+1)}")
    q(f"v_mul_f32 {v(kc+2)}, {v(t+1)}, {v(t+1)}")
    q(f"v_mul_f32 {v(kc)}, {f32(GC0)}, {v(t)}")
    q(f"v_mul_f32 {v(kc+1)}, {v(t)}, {v(t)}")
    q(f"v_mul_f32 {v(kc+1)}, {v(kc+1)}, {v(kc)}")
    q(f"v_mul_f32 {v(kc+1)}, {f32(0.044715)}, {v(kc+1)}")
    return q.ins


SP = Prog()
SP("L_spare:")
SP("s_waitcnt vmcnt(0)")
SP("s_barrier")
SP(f"s_and_b32 s{S_T0}, s{S_W}, 6")
SP(f"s_lshl_b32 s{S_T0}, s{S_T0}, 1")
SP(f"s_bfe_u32 s{S_T1}, s{S_W}, 0x20003")
SP(f"s_add_u32 s{S_TB}, s{S_T0}, s{S_T1}")
SP(f"v_min_u32 v4, 55, {v(V_LANE)}")
SP(f"s_lshr_b32 s{S_T0}, s{S_TB}, 2")
SP(f"s_lshl_b32 s{S_T2}, s{S_FH}, 2")
SP(f"s_add_u32 s{S_T0}, s{S_T0}, s{S_T2}")
SP(f"s_lshl_b32 s{S_T0}, s{S_T0}, 8")
SP(f"s_mul_i32 s{S_T1}, s{S_V}, 56")
SP(f"s_add_u32 s{S_T0}, s{S_T0}, s{S_T1}")
SP(f"s_addk_i32 s{S_T0}, {WS_F2//4}")
SP(f"v_add_u32 v4, s{S_T0}, v4")
SP(f"s_bfe_u32 s{S_REP}, s{S_W}, 0x30003")
SP(f"s_mul_i32 s{S_REP}, s{S_REP}, {FREP}")
SP(f"v_lshl_add_u32 v10, v4, 2, s{S_REP}")
SP(f"v_lshrrev_b32 v5, 4, {v(V_LANE)}")
SP(f"v_and_b32 v6, 15, {v(V_LANE)}")
SP(f"v_mul_u32_u24 v4, {PROW}, v5")
SP(f"v_lshl_add_u32 v4, v6, 4, v4")
SP(f"s_mul_i32 s{S_T1}, s{S_T1}, {PROW}")
SP(f"s_lshl_b32 s{S_T0}, s{S_TB}, 8")
SP(f"s_add_u32 s{S_T0}, s{S_T0}, s{S_T1}")
SP(f"s_mul_i32 s{S_T1}, s{S_FH}, {PGEN}")
SP(f"s_add_u32 s{S_T0}, s{S_T0}, s{S_T1}")
SP(f"s_add_u32 s{S_T0}, s{S_T0}, {WS_P}")
SP(f"v_add_u32 v11, s{S_T0}, v4")
SP(f"v_lshl_add_u32 v4, v6, 2, v5")
SP(f"s_lshl_b32 s{S_T0}, s{S_V}, 9")
SP(f"v_lshl_add_u32 v12, v4, 3, s{S_T0}")
SP(f"v_lshlrev_b32 v13, 3, {v(V_LANE)}")
SP(f"v_mov_b32 v14, 0x3f803f80")
SP(f"s_sub_u32 s{S_T1}, s{S_W}, 224")
SP(f"s_lshl_b32 s{S_T1}, s{S_T1}, 2")
SP(f"s_add_u32 s{S_T1}, s{S_T1}, s{S_V}")
SP(f"s_mul_i32 s{S_T1}, s{S_T1}, {98*128}")
SP(f"v_min_u32 v4, 48, {v(V_LANE)}")
SP(f"v_lshlrev_b32 v4, 7, v4")
for k in range(2):
    SP(f"buffer_load_dword {v(64+k)}, v4, {srd(SRD_WD)}, s{S_T1} offen")
    SP(f"s_add_u32 s{S_T1}, s{S_T1}, {49*128}")
NL2 = int(OPT.get("l2", 0))
if NL2:
    SP("s_waitcnt vmcnt(0)")
    SP("s_sleep 8")
    SP(f"s_bfe_u32 s{S_T1}, s{S_W}, 0x20003")
    SP(f"s_lshl_b32 s{S_T1}, s{S_T1}, 2")
    SP(f"s_add_u32 s{S_T1}, s{S_T1}, s{S_V}")
    SP(f"s_mul_i32 s{S_T1}, s{S_T1}, {784*128}")
    SP(f"v_min_u32 v4, 55, {v(V_LANE)}")
    SP(f"v_lshlrev_b32 v4, 7, v4")
    for k in range(NL2):
        SP(f"buffer_load_dword {v(66+k)}, v4, {srd(SRD_WD)}, s{S_T1} offen")
        SP(f"s_add_u32 s{S_T1}, s{S_T1}, {56*128}")
SP("s_mov_b64 vcc, 1")
spin(SP, "L_sp_a", "L_sp_b", poll_issue(10, 7), 7, sleep=int(OPT.get('spsleep', 4)))
SP("L_sp_b:")
SP(f"s_mov_b64 vcc, s[{S_EX}:{S_EX+1}]")
spin(SP, "L_sp_c", "L_sp_d", poll_issue(10, 7), 7, sleep=1)
SP("L_sp_d:")
for k in range(14):
    SP(f"s_mov_b32 s{S_T0}, {k*4*PROW}")
    SP(f"buffer_load_dwordx4 {v(64+4*k,4)}, v11, {srd(SRD_WS)}, s{S_T0} offen sc1")
SS = 16
for j in range(8):
    SP(f"v_mov_b32 {v(SS+j)}, 0")
for k in range(14):
    for j in range(4):
        SP(f"v_dot2c_f32_bf16 {v(SS+j)}, {v(64+4*k+j)}, v14")
    for j in range(4):
        SP(f"v_dot2c_f32_bf16 {v(SS+4+j)}, {v(64+4*k+j)}, {v(64+4*k+j)}")
for o in (0, 4):
    SP(f"v_permlane32_swap_b32 {v(SS+o)}, {v(SS+o+2)}")
    SP(f"v_permlane32_swap_b32 {v(SS+o+1)}, {v(SS+o+3)}")
for o in (0, 4):
    SP(f"v_add_f32 {v(SS+o)}, {v(SS+o)}, {v(SS+o+2)}")
    SP(f"v_add_f32 {v(SS+o+1)}, {v(SS+o+1)}, {v(SS+o+3)}")
for o in (0, 4):
    SP(f"v_permlane16_swap_b32 {v(SS+o)}, {v(SS+o+1)}")
SP(f"v_add_f32 {v(SS)}, {v(SS)}, {v(SS+1)}")
SP(f"v_add_f32 {v(SS+1)}, {v(SS+4)}, {v(SS+5)}")
SP(f"ds_write_b64 v12, {v(SS,2)}")
SP("s_waitcnt lgkmcnt(0)")
SP("s_barrier")
SP(f"s_cmp_lg_u32 s{S_V}, 0")
SP("s_cbranch_scc1 L_fin")
t = 24
for w in range(4):
    SP(f"ds_read_b64 {v(t+2*w,2)}, v13 offset:{512*w}")
SP(f"s_lshl_b32 s{S_T0}, s{S_TB}, 1")
SP(f"s_add_u32 s{S_T0}, s{S_T0}, s{S_FH}")
SP(f"s_lshl_b32 s{S_T0}, s{S_T0}, 9")
SP(f"s_add_u32 s{S_T0}, s{S_T0}, {WS_S2}")
SP(f"v_pk_add_f32 {v(t,2)}, {v(t,2)}, {v(t+2,2)}")
SP(f"v_pk_add_f32 {v(t+4,2)}, {v(t+4,2)}, {v(t+6,2)}")
SP(f"v_pk_add_f32 {v(t,2)}, {v(t,2)}, {v(t+4,2)}")
SP(f"v_mul_f32 {v(t)}, s{S_K0}, {v(t)}")
SP(f"v_mul_f32 {v(t+1)}, s{S_K0}, {v(t+1)}")
SP(f"v_fma_f32 {v(t+1)}, -{v(t)}, {v(t)}, {v(t+1)}")
SP(f"v_max_f32 {v(t+1)}, 0, {v(t+1)}")
round_bf16(SP, t + 1, t + 1)
SP(f"v_add_f32 {v(t+1)}, {f32(1e-5)}, {v(t+1)}")
round_bf16(SP, t + 1, t + 1)
SP(f"v_sqrt_f32 {v(t+1)}, {v(t+1)}")
SP(f"v_cvt_pk_bf16_f32 {v(t)}, {v(t+1)}, -{v(t)}")
SP(f"v_mov_b32 {v(t+1)}, s{S_NONCE}")
for r_ in range(7):
    SP(f"buffer_store_dwordx2 {v(t,2)}, v13, {srd(SRD_WS)}, s{S_T0} offen sc1")
    SP(f"s_add_u32 s{S_T0}, s{S_T0}, {S2REP}")
SP("s_branch L_fin")


def b_read(J, ks):
    q = sub()
    b = BF + 4 * (ks % NBF)
    q(f"ds_read2st64_b32 {v(b,2)}, {v(V_BR)} offset0:{8*ks} offset1:{8*ks+1}")
    q(f"ds_read2st64_b32 {v(b+2,2)}, {v(V_BR)} offset0:{8*ks+2} offset1:{8*ks+3}", tok=f"b{J}_{ks}")
    return q.ins


def g1_gaps(J, extra_after=None):
    m = sub()
    g0 = GACC[J & 1]
    for ks in range(28):
        for mm in range(2):
            d = g0 + 16 * mm
            c = "0" if ks == 0 else v(d, 16)
            m(f"v_mfma_f32_32x32x16_bf16 {v(d,16)}, {acc(wfrag(mm,ks),4)}, {v(BF+4*(ks%NBF),4)}, {c}")
    for mm in range(2):
        d = g0 + 16 * mm
        m(f"v_mfma_f32_32x32x16_bf16 {v(d,16)}, {acc(A_CS[mm],4)}, {v(MB,4)}, {v(d,16)}")
    g = Gaps(m.ins, 6)
    for ks in range(28):
        k2 = ks + NBF - 1
        if k2 < 28:
            r = b_read(J, k2)
            g.at(2 * ks, [r[0]])
            g.at(2 * ks + 1, [r[1]])
        if ks % 3 == 2 and ks + 1 < 28:
            w = sub()
            w.wait(f"b{J}_{min(ks+3,27)}")
            g.at(2 * ks + 1, w.ins)
    return g


def next_tile_reads(g, J, delta, first=42):
    q = sub()
    q(f"v_add_u32 {v(V_BR)}, {delta}, {v(V_BR)}")
    g.at(first, q.ins)
    for ks in range(NBF - 1):
        old = max(k for k in range(28) if k % NBF == ks)
        r = b_read(J, ks)
        at = max(2 * old + 1, first + 1)
        g.at(at, r[:1])
        g.at(min(at + 1, 57), r[1:])


def g1_epi(J):
    q = sub()
    g = GACC[J & 1]
    kc = KC_[J & 1]
    T = EPT
    for j0 in range(0, 16, 4):
        js = range(j0, j0 + 4)
        for j in js:
            q(f"v_mul_f32 {v(T+j-j0)}, {v(g+j)}, {v(g+j)}")
        for j in js:
            q(f"v_fma_f32 {v(T+j-j0)}, {v(T+j-j0)}, {v(kc+1)}, {v(kc)}")
        for j in js:
            q(f"v_mul_f32 {v(T+j-j0)}, {v(T+j-j0)}, {v(g+j)}")
        for j in js:
            q(f"v_exp_f32 {v(T+j-j0)}, {v(T+j-j0)}")
            q(f"v_mul_f32 {v(T+4+j-j0)}, {v(g+j)}, {v(g+16+j)}")
        for j in js:
            q(f"v_fma_f32 {v(T+j-j0)}, {v(T+j-j0)}, {v(kc+2)}, {v(kc+2)}")
        for j in js:
            q(f"v_rcp_f32 {v(T+j-j0)}, {v(T+j-j0)}")
        for j in js:
            q(f"v_mul_f32 {v(T+4+j-j0)}, {v(T+4+j-j0)}, {v(T+j-j0)}")
        q(f"v_cvt_pk_bf16_f32 {v(HP+(j0//2)%4)}, {v(T+4)}, {v(T+5)}")
        q(f"v_cvt_pk_bf16_f32 {v(HP+(j0//2)%4+1)}, {v(T+6)}, {v(T+7)}")
        if j0 in (4, 12):
            q2 = j0 // 8
            q(f"buffer_store_dwordx4 {v(HP,4)}, {v(V_HST)}, {srd(SRD_WS)}, 0 offen offset:{512*q2} sc1", tok=f"H{J}")
    q(f"v_add_u32 {v(V_HST)}, {2*57344}, {v(V_HST)}")
    return q.ins


def flag3(J):
    q = sub()
    q.wait(f"H{J}")
    setflag(q, S_F3)
    q(f"s_add_u32 s{S_F3}, s{S_F3}, {64*FS}")
    return q.ins


def wd_dma(ft, sbase, slot):
    q = sub()
    q(f"s_add_u32 m0, s{sbase}, {slot*4096}")
    q(f"s_mov_b32 s{S_WOFF}, {ft*32*896}")
    for k in range(4):
        of = f" offset:{1024*k}" if k else ""
        q(f"buffer_load_dwordx4 {v(V_D+k)}, {srd(SRD_WD)}, s{S_WOFF} offen{of} lds", tok=f"wd{ft}")
    return q.ins


WDREG = {}
for i in range(4):
    WDREG[i] = ("v", WDV + 16 * i)
for i in range(4):
    WDREG[4 + i] = ("a", 16 * i)
for i in range(6):
    WDREG[8 + i] = ("a", 128 + 16 * i)


def wdr(ft, rt, h=None):
    k, b = WDREG[ft]
    f = v if k == "v" else acc
    return f(b + 4 * rt, 4) if h is None else f(b + 4 * rt + 2 * h, 2)


def wd_tr(ft, region, slot):
    q = sub()
    q.wait(f"wd{ft}")
    for rt in range(4):
        for h in range(2):
            q(f"ds_read_b64_tr_b16 {wdr(ft,rt,h)}, {v((V_TD+4*region if region < 2 else V_TZ)+rt)} offset:{4096*slot+1024*h}", tok=f"wt{ft}")
    return q.ins


def res_read(J):
    q = sub()
    q(f"ds_read2st64_b32 {v(RESR[J],2)}, {v(V_RES)} offset0:0 offset1:1", tok=f"res{J}")
    q(f"v_add_u32 {v(V_RES)}, {128 if J % 2 == 0 else L_ACT[1]-128}, {v(V_RES)}")
    return q.ins


adw = sub()
adw(f"v_lshrrev_b32 v6, 3, {v(V_LANE)}")
adw(f"v_and_b32 v7, 6, v6")
adw(f"v_and_b32 v5, 7, {v(V_LANE)}")
adw(f"v_xor_b32 v7, v7, v5")
adw(f"v_mul_u32_u24 v6, 896, v6")
adw(f"v_lshl_add_u32 v6, v7, 4, v6")
adw(f"s_mul_i32 s{S_T0}, s{S_V}, {448*896}")
adw(f"s_lshl_b32 s{S_T1}, s{S_DB}, 7")
adw(f"s_add_u32 s{S_T0}, s{S_T0}, s{S_T1}")
adw(f"v_add_u32 {v(V_D)}, s{S_T0}, v6")
for k in range(1, 4):
    adw(f"v_add_u32 {v(V_D+k)}, {k*(7168-1024)}, {v(V_D)}")
ad = sub()
ad(f"v_lshrrev_b32 v4, 4, v0")
ad(f"v_and_b32 v5, 15, v0")
ad(f"v_lshlrev_b32 v6, 9, v5")
ad(f"v_lshl_add_u32 v6, v4, 2, v6")
ad(f"s_lshl_b32 s{S_T0}, s{S_DB}, 13")
ad(f"s_lshl_b32 s{S_T1}, s{S_FH}, 6")
ad(f"s_add_u32 s{S_T0}, s{S_T0}, s{S_T1}")
ad(f"v_add_u32 {v(V_RES)}, s{S_T0}, v6")
ad(f"v_lshrrev_b32 v6, 2, v4")
ad(f"v_and_b32 v7, 3, v4")
ad(f"v_lshl_add_u32 v6, v6, 4, v7")
ad(f"v_mul_u32_u24 v6, 896, v6")
ad(f"v_lshl_add_u32 v6, v5, 3, v6")
ad(f"s_lshr_b32 s{S_T0}, s{S_TB}, 2")
ad(f"s_lshl_b32 s{S_T0}, s{S_T0}, 8")
ad(f"s_add_u32 s{S_T0}, s{S_T0}, s{S_T1}")
ad(f"s_and_b32 s{S_T1}, s{S_TB}, 3")
ad(f"s_lshl_b32 s{S_T1}, s{S_T1}, 2")
ad(f"s_add_u32 s{S_T0}, s{S_T0}, s{S_T1}")
ad(f"s_mul_i32 s{S_T0}, s{S_T0}, 896")
ad(f"s_lshl_b32 s{S_T1}, s{S_DB}, 7")
ad(f"s_add_u32 s{S_T0}, s{S_T0}, s{S_T1}")
ad(f"v_add_u32 {v(V_OST)}, s{S_T0}, v6")
ad(f"v_mul_u32_u24 v6, 272, v5")
ad(f"v_lshl_add_u32 v6, v4, 4, v6")
ad(f"v_add_u32 {v(V_RR)}, {L_R}, v6")
ad(f"v_lshrrev_b32 v4, 4, {v(V_LANE)}")
ad(f"v_mul_u32_u24 v6, 272, v4")
ad(f"v_lshl_add_u32 v6, v5, 4, v6")
ad(f"s_mul_i32 s{S_T0}, s{S_V}, 4352")
ad(f"s_add_u32 s{S_T0}, s{S_T0}, {L_R}")
ad(f"v_add_u32 {v(V_RW)}, s{S_T0}, v6")
ad(f"v_lshrrev_b32 v6, 1, v4")
ad(f"v_lshlrev_b32 v6, 4, v6")
ad(f"v_and_b32 v7, 1, v4")
ad(f"v_lshl_add_u32 v6, v7, 2, v6")
ad(f"v_bfe_u32 v7, {v(V_LANE)}, 2, 2")
ad(f"v_add_u32 v6, v6, v7")
ad(f"v_bfe_u32 v7, v6, 1, 2")
ad(f"v_lshlrev_b32 v6, 7, v6")
ad(f"v_and_b32 v5, 3, {v(V_LANE)}")
ad(f"v_lshl_add_u32 v6, v5, 3, v6")
for rt in range(4):
    ad(f"v_xor_b32 v5, {rt}, v7")
    ad(f"v_lshl_add_u32 v5, v5, 5, v6")
    ad(f"v_add_u32 {v(V_TD+rt)}, s{S_FW}, v5")
    ad(f"v_add_u32 {v(V_TD+4+rt)}, s{S_R2}, v5")
    ad(f"v_add_u32 {v(V_TZ+rt)}, s{S_Z}, v5")

P.add(adw.ins)
for i in range(1, 4):
    P(f"v_mov_b32 {v(MB+i)}, 0")
    P(f"v_accvgpr_write_b32 {acc(A_CS[0]+i)}, 0")
    P(f"v_accvgpr_write_b32 {acc(A_CS[1]+i)}, 0")
P.wait("act0")
P("s_waitcnt lgkmcnt(0)")
P("s_barrier")
stamp("gemm1 start")
for ks in range(NBF - 1):
    P.add(b_read(0, ks))

HBUF = [("a", 64), ("v", 64), ("v", 120), ("a", 64)]


def hreg(J, ft):
    k, b = HBUF[J]
    return (v if k == "v" else acc)(b + 4 * ft, 4)


def h_loads(J):
    o = []
    for kk in range(4):
        q = sub()
        q(f"s_mov_b32 s{S_WOFF}, {J*2*57344 + kk*4096}")
        for k in range(4 if kk < 3 else 2):
            of = f" offset:{1024*k}" if k else ""
            q(f"buffer_load_dwordx4 {hreg(J,4*kk+k)}, {v(V_HL)}, {srd(SRD_WS)}, s{S_WOFF} offen{of} sc1")
        o.append(q.ins)
    return o


def p3_next():
    q = sub()
    q(f"v_add_u32 {v(V_P3)}, {64*FS}, {v(V_P3)}")
    return q.ins


g = g1_gaps(0)
pin_vm(g, 0, [wd_dma(0, S_Z, 0), wd_dma(1, S_Z, 1), wd_dma(2, S_Z, 2)], 2)
t4 = w_tr(6, 0, 8, "t4") + w_tr(6, 1, 12, "t4")
pin_spread(g, 17, waitq("w4") + t4, per=3)
e = g.fill(ad.ins, start=0)
assert e < 40, e
g.at(26, waitq("t4") + cs_mfma(24, 28))
pin_vm(g, 27, [wd_dma(3, S_FW, 0), wd_dma(5, S_FW, 1)], 2)
cf = sub()
for m in range(2):
    round_bf16(cf, 54, CSA[m])
    cf(f"v_sub_f32 v55, {v(CSA[m])}, v54")
    cf(f"v_cvt_pk_bf16_f32 v54, v54, v55")
    cf(f"v_accvgpr_write_b32 {acc(A_CS[m])}, v54")
g.fill(cf.ins, start=30, end=50)
g.at(24, poll_issue(V_F2, 23))
g.at(int(OPT.get("st0", 25)), st_issue(0))
pin_spread(g, 42, wd_tr(0, 2, 0) + wd_tr(1, 2, 1) + wd_tr(2, 2, 2), per=3)
g.at(52, st_check(0))
g.fill(st_final(0), start=53, end=55)
g.at(52, poll_check(V_F2, 23))
next_tile_reads(g, 1, 128)
P.add(g.out())
stamp("tile0")
g = g1_gaps(1)
a1 = act_dma(1)
a1[0] = waitq("wt2") + a1[0]
e = pin_vm(g, 0, [st_issue(1)] + a1, 1.6)
pin_spread(g, 26, wd_tr(3, 0, 0), per=2)
pin_vm(g, 34, [waitq("wt3") + wd_dma(4, S_FW, 0)], 2)
g.at(43, res_read(0))
g.at(45, res_read(1))
g.at(32, st_check(1))
g.fill(st_final(1), start=33, end=54)
bq = sub()
bq.wait("act1")
bq.wait("res1")
bq("s_barrier")
g.at(50, bq.ins)
next_tile_reads(g, 2, L_ACT[1] - 128, first=50)
e = g.fill(g1_epi(0), start=3)
print("tile 1: epilogue ends at gap", e, "tail", len(g.tail))
P.add(g.out())
stamp("tile1")
g = g1_gaps(2)
pin_vm(g, 0, [st_issue(2), wd_dma(6, S_R2, 0), wd_dma(7, S_R2, 1), wd_dma(8, S_R2, 2), wd_dma(9, S_R2, 3)], 2.5)
g.at(24, flag3(0))
g.at(32, st_check(2))
g.fill(st_final(2), start=33, end=54)
g.at(46, st_issue(3))
next_tile_reads(g, 3, 128)
e = g.fill(g1_epi(1), start=3)
print("tile 2: epilogue ends at gap", e, "tail", len(g.tail))
P.add(g.out())
stamp("tile2")
g = g1_gaps(3)
g.at(1, poll_issue(V_P3, 7))
pin_spread(g, 4, wd_tr(4, 0, 0), per=2)
pin_spread(g, 9, wd_tr(5, 0, 1), per=2)
pin_spread(g, 14, wd_tr(6, 1, 0), per=2)
pin_spread(g, 19, wd_tr(7, 1, 1), per=2)
e = pin_vm(g, 11, [waitq("wt4") + wd_dma(10, S_FW, 0), waitq("wt5") + wd_dma(11, S_FW, 1), waitq("wt7") + wd_dma(12, S_R2, 0), wd_dma(13, S_R2, 1)], 2)
g.at(24, flag3(1))
g.at(26, st_check(3))
g.fill(st_final(3), start=27, end=54)
g.at(30, poll_check(V_P3, 7) + p3_next())
h0 = singles(h_loads(0))
pin_vm(g, e, h0[:8], 2)
g.at(44, res_read(2))
g.at(46, res_read(3))
e = g.fill(g1_epi(2), start=3)
print("tile 3: epilogue ends at gap", e, "tail", len(g.tail))
P.add(g.out())
stamp("tile3")
P.add(wd_tr(8, 1, 2))
ep = g1_epi(3)
late = [poll_issue(V_P3, 7)] + h0[8:]
P.add(sprinkle(ep, [(14 * i, u) for i, u in enumerate(late)] + [(120, flag3(2))]))
stamp("epi3")

OA = [8, 48]
OA = [224, 240]
RT = 176


def g2_mfma(J):
    m = sub()
    for ft in range(14):
        for rt in range(4):
            d = acc(OA[J & 1] + 4 * rt, 4)
            c = "0" if ft == 0 else d
            m(f"v_mfma_f32_16x16x32_bf16 {d}, {wdr(ft,rt)}, {hreg(J,ft)}, {c}")
    return m.ins


RTMP = [176, 180, 184, 12]


def red_write(J):
    q = sub()
    for rt in range(4):
        q(f"ds_write_b128 {v(V_RW)}, {acc(OA[J&1]+4*rt,4)} offset:{(J&1)*R_SZ + rt*1088}")
    return q.ins


def red_bar():
    q = sub()
    q("s_waitcnt lgkmcnt(0)")
    q("s_barrier")
    return q.ins


def red_read(J):
    q = sub()
    for w in range(4):
        q(f"ds_read_b128 {v(RTMP[w],4)}, {v(V_RR)} offset:{(J&1)*R_SZ + w*4352}")
    return q.ins


def red_fin(J):
    q = sub()
    a, b, c, d = RTMP
    for i in range(2):
        q(f"v_lshlrev_b32 {v(16+2*i)}, 16, {v(RESR[J]+i)}")
        q(f"v_and_b32 {v(17+2*i)}, 0xffff0000, {v(RESR[J]+i)}")
    for i in range(4):
        q(f"v_add_f32 {v(a+i)}, {v(a+i)}, {v(b+i)}")
    for i in range(4):
        q(f"v_add_f32 {v(c+i)}, {v(c+i)}, {v(d+i)}")
    for i in range(4):
        q(f"v_add_f32 {v(a+i)}, {v(a+i)}, {v(16+i)}")
    for i in range(4):
        q(f"v_add_f32 {v(a+i)}, {v(a+i)}, {v(c+i)}")
    for i in range(2):
        q(f"v_cvt_pk_bf16_f32 {v(20+i)}, {v(a+2*i)}, {v(a+2*i+1)}")
    q(f"s_mov_b32 s{S_T0}, {(1024*(J>>1) + 128*(J&1))*896}")
    q(f"buffer_store_dwordx2 v[20:21], {v(V_OST)}, {srd(SRD_OUT)}, s{S_T0} offen")
    return q.ins


for J in range(4):
    g = Gaps(g2_mfma(J), 2)
    if J > 0:
        pin_spread(g, 4, red_write(J - 1), per=1)
        g.at(16, red_bar())
        pin_spread(g, 17, red_read(J - 1), per=1)
        g.fill(red_fin(J - 1), start=28)
    if J == 0:
        g.at(0, poll_check(V_P3, 7) + p3_next())
        pin_vm(g, 1, h_loads(1), 3.5)
        tl = wd_tr(9, 1, 3) + wd_tr(10, 0, 0) + wd_tr(11, 0, 1) + wd_tr(12, 1, 0) + wd_tr(13, 1, 1)
        pin_spread(g, 0, tl, per=1)
        g.at(30, flag3(3))
        g.at(32, poll_issue(V_P3, 7))
        bq = sub()
        bq.wait("res3")
        bq("s_barrier")
        g.at(54, bq.ins)
    if J == 1:
        g.at(0, poll_check(V_P3, 7) + p3_next())
        pin_vm(g, 1, h_loads(2), 3.5)
        g.at(54, poll_issue(V_P3, 7))
    if J == 2:
        g.at(26, poll_check(V_P3, 7))
        pin_vm(g, 27, h_loads(3), 2)
    P.add(g.out())
    stamp(f"g2 tile{J}")
P.add(red_write(3))
P.add(red_bar())
P.add(red_read(3))
P.add(red_fin(3))
stamp("end")
P(f"s_or_b32 s{S_T2}, s{S_W}, s{S_V}")
P(f"s_cbranch_scc1 L_fin")
P("s_mov_b64 exec, 1")
P(f"buffer_store_dword {v(V_NONCE)}, {v(V_FLG)}, {srd(SRD_WS)}, 0 offen sc1")
P("s_mov_b64 exec, -1")

P("L_fin:")
if STAMPS:
    P(f"s_lshl_b32 s{S_T0}, s{S_W}, 2")
    P(f"s_add_u32 s{S_T0}, s{S_T0}, s{S_V}")
    P(f"s_lshl_b32 s{S_T0}, s{S_T0}, 8")
    P(f"s_add_u32 s{S_T0}, s{S_T0}, {WS_DBG + 0x800000}")
    P(f"v_lshlrev_b32 v4, 2, v1")
    P(f"buffer_store_dword v255, v4, {srd(SRD_WS)}, s{S_T0} offen")
P("L_end:")
P("s_endpgm")

res = finalize(P.ins, verbose=True) + finalize(TAIL.ins) + finalize(SP.ins)
if "report" in OPT:
    report_waits(finalize(P.ins))
launch = f"; @launch kernel={KN} grid" if "list" in OPT or STAMPS else "; @launch grid"
hdr = f"""; Fused pre-LN S4D conv + GEGLU FFN, one persistent launch (generated by my own script)
{launch}=(256,1,1) block=(256,1,1) lds={LDS_SIZE}
.amdgcn_target "amdgcn-amd-amdhsa--gfx950"
.text
.globl {KN}
.p2align 8
.type {KN},@function
{KN}:
"""
ftr = f"""
.p2align 8
.fill 64, 4, 0xbf800000
L_codeend:
.section .rodata,"a"
.p2align 6
.amdhsa_kernel {KN}
  .amdhsa_next_free_vgpr 512
  .amdhsa_next_free_sgpr 102
  .amdhsa_accum_offset 256
  .amdhsa_group_segment_fixed_size 0
  .amdhsa_kernarg_size 112
  .amdhsa_user_sgpr_count 2
  .amdhsa_user_sgpr_kernarg_segment_ptr 1
  .amdhsa_system_sgpr_workgroup_id_x 1
.end_amdhsa_kernel
"""
open(OUTF, "w").write(hdr + text_of(res) + ftr)
src = open(__file__).read()
a = src.index("# ---------------- workspace layout")
b = src.index("# ---------------- LDS layout")
open("layout.py", "w").write(src[a:b] + "\nSTAMP_NAMES = " + repr(stamp_names) + "\n")
```

```python
import sys, math, struct
from asmgen import *

NAME = "sequential_preLN__ssm_conv_s4d__geglu_ffn__prompt"
KN = NAME + "_kernel"
OPT = {}
for a in sys.argv[1:]:
    k, _, val = a.partition("=")
    OPT[k] = val if val else True
STAMPS = "stamps" in OPT
OUTF = OPT.get("out", "k10.s")
if "wdearly" not in OPT:
    OPT["wdlate"] = True


def f32(x):
    return "0x%08x" % struct.unpack("<I", struct.pack("<f", x))[0]


FS = 4
FREP = 0x9000
WS_EPOCH = 0
WS_F1 = 0x8000
WS_S2 = 0x54000
S2REP = 0x5000
WS_C = 0x80000
WS_UX = 0xD0000
WS_P = WS_UX + 256 * 14336
PROW = 4352
PGEN = 224 * PROW
WS_H = WS_P + 2 * PGEN
WS_WF = WS_H + 16 * 4 * 56 * 2048
WS_END = WS_WF + 392 * 4096
WS_DBG = 0x1000000
WS_SIZE = 0x2000000
LAYOUT = 5

CS = 4160
TAB_W = 14592
TAB_ROW = 272
L_KC = 58368
L_UX = 75008
L_EX = 0
L_RING = 98304
L_ACT = [0, 65536]
L_F = 131072
L_R = 65536
R_SZ = 17408
LDS_SIZE = 163840

S_W = 2
S_V = 4
S_T0, S_T1, S_T2, S_T3 = 5, 6, 7, 3
SRD_X, SRD_WS, SRD_WG, SRD_WU, SRD_WD, SRD_OUT = 8, 12, 16, 20, 24, 28
S_NONCE = 32
S_CNT = 33
S_EX = 34
S_LDT, S_DSK = 64, 65
S_TB, S_FB, S_FH, S_DB = 66, 67, 68, 69
S_A, S_B, S_C, S_D = 70, 72, 74, 76
S_RING = 78
S_WOFF = 79
S_K0 = 80
S_TAB = 81
S_F3 = 82
S_F1, S_F2 = 83, 84
S_M255 = 86
S_FW, S_R2 = 88, 89
S_ACTW = 90
S_UXO = 91
S_Z = 95
S_PFB = 88
S_HR = 36
S_E28, S_E14, S_CI = 46, 47, 85
S_UXM = 92
S_REP = 94
S_PERM = 93
S_STAMP = 96


def srd(n):
    return f"s[{n}:{n+3}]"


def v(n, w=1):
    return f"v{n}" if w == 1 else f"v[{n}:{n+w-1}]"


def acc(n, w=1):
    return f"a{n}" if w == 1 else f"a[{n}:{n+w-1}]"


P = Prog()
TAIL = Prog()
nstamp = [0]
stamp_names = []
spin_names = []


def stamp(name, p=None):
    p = P if p is None else p
    p(f"; @ {name}")
    if STAMPS and ("lite" not in OPT or name in ("start", "conv start", "genA stored", "gemm1 start", "tile3", "end")):
        k = nstamp[0]
        assert k < 32
        p(f"s_memrealtime s[{S_STAMP}:{S_STAMP+1}]")
        p(f"s_memtime s[{S_STAMP+2}:{S_STAMP+3}]")
        p("s_waitcnt lgkmcnt(0)")
        p(f"v_writelane_b32 v255, s{S_STAMP}, {k}")
        p(f"v_writelane_b32 v255, s{S_STAMP+2}, {32+k}")
        nstamp[0] += 1
        stamp_names.append(name)


def stq(name):
    q = sub()
    if "dbg" in OPT:
        stamp(name, q)
    return q.ins


lblc = [0]


def label(prefix):
    lblc[0] += 1
    return f"L_{prefix}_{lblc[0]}"


def poll_issue(vaddr, vtmp):
    q = sub()
    q(f"v_mov_b32 {v(vtmp)}, 0")
    q(f"buffer_atomic_add {v(vtmp)}, {v(vaddr)}, {srd(SRD_WS)}, 0 offen sc0")
    return q.ins


def spin(t, name, done, reissue, vtag, sleep=2, exp=None):
    t(f"{name}:")
    t(f"s_mov_b32 s{S_CNT}, 0")
    t(f"{name}_l:")
    t("s_mov_b64 exec, vcc")
    t(f"s_sleep {sleep}")
    t.add(reissue)
    t("s_waitcnt vmcnt(0)")
    t(f"v_cmp_ne_u32 vcc, {exp or f's{S_NONCE}'}, {v(vtag)}")
    t("s_mov_b64 exec, -1")
    if STAMPS and "lite" in OPT:
        spin_names.append(name)
        t(f"s_add_u32 s{S_STAMP}, s{S_CNT}, 1")
        t(f"v_writelane_b32 v255, s{S_STAMP}, {10+len(spin_names)-1}")
    t(f"s_cbranch_vccz {done}")
    t(f"s_add_u32 s{S_CNT}, s{S_CNT}, 1")
    t(f"s_cmp_lt_u32 s{S_CNT}, 0x40000")
    t(f"s_cbranch_scc1 {name}_l")
    t(f"s_branch {done}")


def poll_check(vaddr, vtmp, mask=None):
    q = sub()
    slow, done = label("slow"), label("pdone")
    exp = f"s{S_NONCE}" if vaddr == V_F1 else (f"s{S_E28}" if vaddr in (V_F2, 20) else f"s{S_E14}")
    q(f"v_cmp_ne_u32 vcc, {exp}, {v(vtmp)}")
    if vaddr == V_F1:
        q(f"s_cbranch_vccnz {slow}")
    else:
        mask = mask or ("3" if vaddr == V_F2 else "1")
        q(f"s_and_b64 vcc, vcc, {mask}")
        q(f"s_cbranch_scc1 {slow}")
    q(f"{done}:")
    spin(TAIL, slow, done, poll_issue(vaddr, vtmp), vtmp, exp=exp, sleep=1)
    return q.ins


def poll_check2(vaddr, v1, v2, mask, exp):
    q = sub()
    slow, done = label("slow"), label("pdone")
    q(f"v_cmp_ne_u32 vcc, {exp}, {v(v1)}")
    q(f"s_and_b64 vcc, vcc, {mask}")
    q(f"s_cbranch_scc0 {done}")
    q.cond(True)
    q(f"v_cmp_ne_u32 vcc, {exp}, {v(v2)}")
    q(f"s_and_b64 vcc, vcc, {mask}")
    q(f"s_cbranch_scc1 {slow}")
    q.cond(False)
    q(f"{done}:")
    spin(TAIL, slow, done, poll_issue(vaddr, v1), v1, exp=exp, sleep=1)
    return q.ins


def setflag(p, soff):
    p(f"buffer_atomic_swap {v(V_NONCE)}, {v(V_FLG)}, {srd(SRD_WS)}, s{soff} offen")


def addcnt(p, soff):
    p(f"buffer_atomic_add {v(V_NONCE)}, {v(V_FLG)}, {srd(SRD_WS)}, s{soff} offen")


def flg_lanes(p, n, sh=8, t1=4):
    p(f"v_lshrrev_b32 {v(t1)}, {n.bit_length()-1}, {v(V_LANE)}")
    p(f"v_min_u32 {v(t1)}, 1, {v(t1)}")
    p(f"v_lshlrev_b32 {v(t1)}, 30, {v(t1)}")
    p(f"v_lshl_add_u32 {v(V_FLG)}, {v(V_LANE)}, {sh}, {v(t1)}")


def waitq(tok):
    q = sub()
    q.wait(tok)
    return q.ins


def cmul(p, z, x, y):
    p(f"v_pk_mul_f32 {v(z,2)}, {v(x,2)}, {v(y,2)} op_sel:[0,0] op_sel_hi:[0,1]")
    p(f"v_pk_fma_f32 {v(z,2)}, {v(x,2)}, {v(y,2)}, {v(z,2)} op_sel:[1,1,0] op_sel_hi:[1,0,1] neg_lo:[1,0,0]")


def round_bf16(p, dst, src):
    p(f"v_cvt_pk_bf16_f32 {v(dst)}, {v(src)}, {v(src)}")
    p(f"v_and_b32 {v(dst)}, 0xffff0000, {v(dst)}")


V_LANE, V_NONCE, V_L16 = 1, 2, 3
V_FLG = 8
V_W = 9
V_TRA = 13
V_TA, V_TB, V_TW = 14, 15, 16
GA = 17
V_F1, V_UXL = 26, 27
V_KA = 28
V_UA = 32
V_EU, V_EXP, V_EXW, V_EXR, V_PST = 36, 37, 38, 39, 40
V_GW, V_GX, V_GR, V_S3 = 36, 37, 38, 39
V_EU1 = 41
V_DT = 42
V_F2 = 43
PR = 44
V_PF = 254

LOG2E = 1.4426950408889634

P(f"s_cmp_ge_u32 s{S_W}, 256")
P("s_cbranch_scc1 L_end")
P(f"s_load_dwordx16 s[36:51], s[0:1], 0")
P(f"s_load_dwordx8 s[52:59], s[0:1], 64")
P(f"s_load_dwordx4 s[60:63], s[0:1], 96")
if "nocpf" not in OPT:
    P(f"s_getpc_b64 s[{S_B}:{S_B+1}]")
    P("L_pc:")
    P(f"s_bfe_u32 s{S_T2}, s{S_W}, 0x30003")
    P(f"s_mul_i32 s{S_T2}, s{S_T2}, ((L_codeend-L_pc)/1024)*128")
    P(f"v_cmp_gt_u32 vcc, (L_codeend-L_pc)/1024, v0")
    P(f"s_add_u32 s{S_B}, s{S_B}, s{S_T2}")
    P(f"s_addc_u32 s{S_B+1}, s{S_B+1}, 0")
    P(f"v_lshlrev_b32 v6, 7, v0")
    P(f"s_and_saveexec_b64 s[{S_A}:{S_A+1}], vcc")
    P("s_cbranch_execz L_nocpf")
    P.cond(True)
    P(f"v_mov_b32 v7, s{S_B+1}")
    P(f"v_add_co_u32 v6, vcc, s{S_B}, v6")
    P(f"v_addc_co_u32 v7, vcc, 0, v7, vcc")
    P(f"global_load_dword v251, v[6:7], off")
    P.cond(False)
    P("L_nocpf:")
    P("s_mov_b64 exec, -1")
if STAMPS:
    P("v_mov_b32 v255, 0")
P(f"v_and_b32 {v(V_LANE)}, 63, v0")
P(f"v_lshrrev_b32 v4, 6, v0")
P(f"v_lshlrev_b32 {v(V_L16)}, 4, {v(V_LANE)}")
P(f"v_readfirstlane_b32 s{S_V}, v4")
P(f"v_mov_b32 v5, 0x7ff00000")
P(f"v_cmp_gt_u32 vcc, 56, {v(V_LANE)}")
P(f"s_lshl_b32 s{S_T0}, s{S_W}, 2")
P(f"s_add_u32 s{S_T0}, s{S_T0}, s{S_V}")
P(f"v_cndmask_b32 v4, v5, {v(V_L16)}, vcc")
P(f"s_mul_i32 s{S_T0}, s{S_T0}, 1792")
P(f"s_min_u32 s{S_T1}, s{S_W}, 223")
P(f"s_lshl_b32 s{S_T2}, s{S_T1}, 10")
P(f"v_lshl_add_u32 v6, v0, 2, s{S_T2}")
P(f"v_mov_b32 v7, 0")
P(f"s_lshl_b32 s{S_T1}, s{S_T1}, 2")
P(f"v_mov_b32 v56, s{S_T1}")
P(f"s_mov_b32 s{SRD_X+2}, 1835008")
P(f"s_mov_b32 s{SRD_X+3}, 0x00020000")
P(f"s_mov_b32 s{SRD_WS+2}, {WS_SIZE}")
P(f"s_mov_b32 s{SRD_WS+3}, 0x00020000")
P("s_waitcnt lgkmcnt(0)")
stamp("start")
P(f"s_mov_b64 s[{SRD_X}:{SRD_X+1}], s[36:37]")
XR = 48
P(f"buffer_load_dwordx4 {v(XR,4)}, v4, {srd(SRD_X)}, s{S_T0} offen")
P(f"buffer_load_dwordx4 {v(XR+4,4)}, v4, {srd(SRD_X)}, s{S_T0} offen offset:896")
for r, src, sz in ((SRD_WG, 52, 1605632), (SRD_WU, 54, 1605632), (SRD_WD, 56, 1605632), (SRD_OUT, 58, 1835008)):
    P(f"s_mov_b64 s[{r}:{r+1}], s[{src}:{src+1}]")
    P(f"s_mov_b32 s{r+2}, {sz}")
    P(f"s_mov_b32 s{r+3}, 0x00020000")
P(f"v_cmp_lt_u32 vcc, 7, {v(V_LANE)}")
P(f"v_mul_u32_u24 v4, {FREP}, {v(V_LANE)}")
P(f"s_lshr_b32 s{S_T0}, s{S_W}, 3")
P(f"s_mul_i32 s{S_T1}, s{S_T0}, 37")
P(f"v_cndmask_b32 {v(V_FLG)}, v4, v5, vcc")
P(f"s_lshr_b32 s{S_T1}, s{S_T1}, 8")
P(f"s_mul_i32 s{S_T2}, s{S_T1}, 7")
P(f"s_sub_u32 s{S_DB}, s{S_T0}, s{S_T2}")
P(f"s_and_b32 s{S_FH}, s{S_W}, 1")
P(f"s_and_b32 s{S_T2}, s{S_W}, 6")
P(f"s_lshl_b32 s{S_T2}, s{S_T2}, 1")
P(f"s_add_u32 s{S_TB}, s{S_T2}, s{S_T1}")
P(f"s_mul_i32 s{S_FB}, s{S_FH}, 7")
P(f"s_add_u32 s{S_FB}, s{S_FB}, s{S_DB}")
P(f"s_lshl_b32 s{S_RING}, s{S_V}, 13")
P(f"s_add_u32 s{S_RING}, s{S_RING}, {L_RING}")
P(f"s_mul_i32 s{S_TAB}, s{S_V}, {TAB_W}")
for _ in range(int(OPT.get("xd", 0))):
    P("s_nop 7")
P(f"s_mov_b64 s[{SRD_WS}:{SRD_WS+1}], s[62:63]")
for i in range(4):
    P(f"global_load_dword {v(PR+i)}, v6, s[{38+2*i}:{39+2*i}]")
P(f"global_load_dword {v(V_DT)}, v56, s[46:47]")
P(f"global_load_dword {v(V_EU1)}, v56, s[48:49]")
P(f"buffer_load_dword {v(V_NONCE)}, v7, {srd(SRD_WS)}, 0 offen sc1")
P(f"s_bitcmp1_b32 s{S_V}, 0")
P(f"s_cselect_b64 s[{S_PFB}:{S_PFB+1}], s[54:55], s[52:53]")
P(f"s_lshr_b32 s{S_T0}, s{S_V}, 1")
P(f"s_lshl1_add_u32 s{S_T2}, s{S_W}, s{S_T0}")
P(f"s_mul_i32 s{S_T0}, s{S_T2}, {7*128}")
P(f"v_min_u32 v4, 6, {v(V_LANE)}")
P(f"v_lshl_add_u32 v4, v4, 7, s{S_T0}")
P(f"global_load_dword {v(V_PF)}, v4, s[{S_PFB}:{S_PFB+1}]")
P(f"s_mul_i32 s{S_T0}, s{S_W}, 49")
P(f"s_mul_i32 s{S_T2}, s{S_V}, 12")
P(f"s_add_u32 s{S_T0}, s{S_T0}, s{S_T2}")
P(f"v_min_u32 v4, 12, {v(V_LANE)}")
P(f"v_add_lshl_u32 v252, v4, s{S_T0}, 7")
if "wdlate" not in OPT:
    P(f"global_load_dword v253, v252, s[56:57]")
P(f"v_cmp_gt_u32 vcc, 32, {v(V_LANE)}")
P(f"v_mul_u32_u24 v4, 37, {v(V_LANE)}")
P(f"v_lshrrev_b32 v4, 9, v4")
P(f"v_cndmask_b32 {v(V_S3)}, v5, {v(V_L16)}, vcc")
P(f"v_mul_u32_u24 v4, {TAB_W-14*272}, v4")
P(f"v_mul_u32_u24 v6, 272, {v(V_LANE)}")
P(f"s_lshl_b32 s{S_T0}, s{S_V}, 2")
P(f"v_add3_u32 {v(V_GW)}, v4, v6, s{S_T0}")
P(f"v_add_u32 {v(V_GX)}, s{S_T0}, {v(V_GW)}")
P(f"s_lshl_b32 s{S_UXM}, s{S_V}, 12")
P(f"s_add_u32 s{S_UXM}, s{S_UXM}, {L_UX+2048}")
P(f"v_and_b32 v4, 48, {v(V_LANE)}")
P(f"v_add3_u32 {v(V_GR)}, v4, {v(V_L16)}, s{S_TAB}")
P(f"v_and_b32 v4, 31, {v(V_LANE)}")
P(f"v_lshrrev_b32 v6, 5, {v(V_LANE)}")
P(f"v_lshl_add_u32 v6, v6, 4, s{S_TAB}")
P(f"v_and_b32 v7, 28, {v(V_LANE)}")
P(f"v_lshl_add_u32 v7, v4, 5, v7")
P(f"v_add_u32 {v(V_TW)}, v6, v7")
P(f"v_mul_u32_u24 v7, {TAB_ROW}, v4")
P(f"v_add_u32 {v(V_TB)}, v6, v7")
P(f"v_min_u32 v4, 20, v4")
P(f"v_mul_u32_u24 v7, {TAB_ROW}, v4")
P(f"v_add_u32 {v(V_TA)}, v6, v7")
P(f"s_lshl2_add_u32 s{S_CI}, s{S_W}, s{S_V}")
P(f"s_lshl_b32 s{S_CI}, s{S_CI}, 8")
P(f"s_add_u32 s{S_CI}, s{S_CI}, {WS_C}")
P(f"v_lshlrev_b32 v250, 25, {v(V_LANE)}")
P(f"s_mul_i32 s{S_UXO}, s{S_W}, 14336")
P(f"s_mul_i32 s{S_T0}, s{S_V}, 3584")
P(f"s_add_u32 s{S_UXO}, s{S_UXO}, s{S_T0}")
P(f"s_add_u32 s{S_UXO}, s{S_UXO}, {WS_UX}")
P(f"s_lshl_b32 s{S_T0}, s{S_V}, 8")
P(f"s_add_u32 s{S_T0}, s{S_T0}, s{S_W}")
P(f"s_mul_i32 s{S_T0}, s{S_T0}, {FS}")
P(f"s_add_u32 s{S_F1}, s{S_T0}, {WS_F1}")
P(f"v_lshrrev_b32 v4, 2, {v(V_LANE)}")
P(f"v_mul_u32_u24 v4, 3584, v4")
P(f"v_and_b32 v6, 3, {v(V_LANE)}")
P(f"v_lshl_add_u32 v4, v6, 4, v4")
P(f"s_lshl_b32 s{S_T0}, s{S_FB}, 8")
P(f"s_lshl_b32 s{S_T1}, s{S_V}, 6")
P(f"s_add_u32 s{S_T0}, s{S_T0}, s{S_T1}")
P(f"v_add_u32 {v(V_W)}, s{S_T0}, v4")
for k in range(1, 4):
    P(f"v_add_u32 {v(V_W+k)}, {k*(57344-1024)}, {v(V_W)}")
P(f"v_and_b32 v4, 32, {v(V_LANE)}")
P(f"v_lshlrev_b32 v4, 4, v4")
P(f"v_and_b32 v7, 12, {v(V_LANE)}")
P(f"v_lshl_add_u32 v4, v7, 4, v4")
P(f"v_and_b32 v7, 16, {v(V_LANE)}")
P(f"v_lshl_add_u32 v4, v7, 1, v4")
P(f"v_lshl_add_u32 v4, v6, 3, v4")
P(f"v_add_u32 {v(V_TRA)}, s{S_RING}, v4")
P(f"s_mov_b32 s{S_K0}, {L_KC+4096-L_UX}")
P(f"s_movk_i32 s{S_T2}, 128")
P(f"s_mul_i32 s{S_T0}, s{S_W}, 293")
P(f"s_bfe_u32 s{S_T0}, s{S_T0}, 0x2000e")
P(f"s_lshl_b32 s{S_T0}, s{S_T0}, 10")
P(f"s_lshr_b32 s{S_F2}, s{S_T0}, 2")
P(f"s_and_b32 s{S_REP}, s{S_W}, 7")
P(f"s_mul_i32 s{S_REP}, s{S_REP}, {FREP}")
P(f"s_add_u32 s{S_REP}, s{S_REP}, {WS_F1}")
P(f"s_add_u32 s{S_T0}, s{S_T0}, s{S_REP}")
P(f"v_lshl_add_u32 {v(V_F1)}, v0, 2, s{S_T0}")
P(f"v_lshrrev_b32 v4, 2, {v(V_LANE)}")
P(f"v_add_u32 v4, s{S_T1}, v4")
P(f"v_mul_u32_u24 v7, 14336, v4")
P(f"v_lshrrev_b32 v4, 4, {v(V_LANE)}")
P(f"v_xor_b32 v6, v6, v4")
P(f"v_lshl_add_u32 v7, v6, 4, v7")
P(f"s_lshl_b32 s{S_T0}, s{S_W}, 6")
P(f"s_add_u32 s{S_T0}, s{S_T0}, {WS_UX}")
P(f"v_add_u32 {v(V_UXL)}, s{S_T0}, v7")
P(f"v_bfe_u32 v6, {v(V_LANE)}, 1, 2")
P(f"v_mul_u32_u24 v6, {CS}, v6")
P(f"v_and_b32 v7, 16, {v(V_L16)}")
P(f"v_add3_u32 v6, v6, v7, s{S_K0}")
P(f"v_lshlrev_b32 v7, 4, v0")
P(f"v_cmp_gt_u32 vcc, s{S_T2}, v0")
P(f"v_mov_b32 v56, 0")
P(f"v_mov_b32 v57, 0")
P(f"v_cndmask_b32 v6, v6, v7, vcc")
P(f"v_mov_b32 v58, 0")
P(f"v_mov_b32 v59, 0")
P(f"v_add_u32 v6, {L_UX}, v6")
P(f"ds_write_b128 v6, v[56:59]")
P(f"v_lshlrev_b32 v4, 3, v0")
P(f"v_sub_u32 v4, 2047, v4")
P(f"v_cvt_f32_i32 v4, v4")
P(f"v_mov_b32 v60, 1028")
P(f"v_cmp_eq_u32 vcc, 0, v0")
for e in range(0, 10, 2):
    P(f"v_add_f32 v6, {f32(-float(e))}, v4")
    if e < 8:
        P(f"v_add_f32 v7, {f32(-float(e+1))}, v4")
    P(f"v_cvt_pk_bf16_f32 v6, v6, v7")
    for h in range(2):
        if e + h > 8:
            continue
        d = GA + e + h
        if h == 0:
            P(f"v_lshlrev_b32 v7, 16, v6")
        else:
            P(f"v_and_b32 v7, 0xffff0000, v6")
        P(f"v_cvt_u32_f32 v7, v7")
        if e + h < 4:
            P(f"v_cndmask_b32 v7, v7, v60, vcc")
        P(f"v_lshrrev_b32 {v(d)}, 5, v7")
        P(f"v_add_lshl_u32 {v(d)}, {v(d)}, v7, 2")
P(f"v_mov_b32 v4, 255")
P(f"v_cmp_eq_u32 s[{S_M255}:{S_M255+1}], v4, v0")

XF = 56
DF = 72
SA = 88
if "fine" in OPT: stamp("setup done")
P(f"s_mov_b32 s{S_EX}, -1")
P(f"s_mov_b32 s{S_EX+1}, 0x00ffffff")
P(f"s_mov_b32 s{S_K0}, {f32(1.0/448)}")
for r in range(2):
    for i in range(4):
        P(f"v_lshlrev_b32 {v(XF+8*r+2*i)}, 16, {v(XR+4*r+i)}")
        P(f"v_and_b32 {v(XF+8*r+2*i+1)}, 0xffff0000, {v(XR+4*r+i)}")
stamp("x arrived")
if "wdlate" in OPT:
    P(f"global_load_dword v253, v252, s[56:57]")
P(f"s_mov_b64 exec, s[{S_EX}:{S_EX+1}]")
for i in range(4):
    P(f"ds_write2_b32 {v(V_GX)}, {v(XR+i)}, {v(XR+4+i)} offset0:{16*i+8} offset1:{16*i+9}")
P("s_mov_b64 exec, -1")
for r in range(2):
    b = XF + 8 * r
    P(f"v_pk_add_f32 {v(DF+8*r,2)}, {v(b,2)}, {v(b+2,2)}")
    P(f"v_pk_add_f32 {v(DF+8*r+2,2)}, {v(b+4,2)}, {v(b+6,2)}")
for r in range(2):
    P(f"v_pk_add_f32 {v(DF+8*r,2)}, {v(DF+8*r,2)}, {v(DF+8*r+2,2)}")
for r in range(2):
    P(f"v_add_f32 {v(SA+r)}, {v(DF+8*r)}, {v(DF+8*r+1)}")


def wave_sum(p, regs):
    for mod in ("row_shr:1", "row_shr:2", "row_shr:4", "row_shr:8"):
        for r in regs:
            p(f"v_add_f32_dpp {v(r)}, {v(r)}, {v(r)} {mod} row_mask:0xf bank_mask:0xf bound_ctrl:0")
    for r in regs:
        p(f"v_add_f32_dpp {v(r)}, {v(r)}, {v(r)} row_bcast:15 row_mask:0xa bank_mask:0xf")
    for r in regs:
        p(f"v_add_f32_dpp {v(r)}, {v(r)}, {v(r)} row_bcast:31 row_mask:0xc bank_mask:0xf")


wave_sum(P, [SA, SA + 1])
for r in range(2):
    P(f"v_mul_f32 {v(SA+r)}, s{S_K0}, {v(SA+r)}")
P(f"v_cvt_pk_bf16_f32 {v(SA+2)}, {v(SA)}, {v(SA+1)}")
P(f"v_readlane_b32 s{S_A}, {v(SA)}, 63")
P(f"v_readlane_b32 s{S_B}, {v(SA+1)}, 63")
P(f"v_readlane_b32 s{S_T0}, {v(SA+2)}, 63")
P(f"v_mov_b32 {v(SA)}, 0")
P(f"v_mov_b32 {v(SA+1)}, 0")
P(f"s_mov_b64 exec, s[{S_EX}:{S_EX+1}]")
for r, sm in ((0, S_A), (1, S_B)):
    for i in range(4):
        P(f"v_pk_add_f32 {v(DF+8*r+2*i,2)}, {v(XF+8*r+2*i,2)}, s[{sm}:{sm+1}] op_sel_hi:[1,0] neg_lo:[0,1] neg_hi:[0,1]")
for r in range(2):
    b = DF + 8 * r
    P(f"v_pk_mul_f32 {v(b,2)}, {v(b,2)}, {v(b,2)}")
    for i in range(1, 4):
        P(f"v_pk_fma_f32 {v(b,2)}, {v(b+2*i,2)}, {v(b+2*i,2)}, {v(b,2)}")
for r in range(2):
    P(f"v_add_f32 {v(SA+r)}, {v(DF+8*r)}, {v(DF+8*r+1)}")
P("s_mov_b64 exec, -1")
P(f"s_lshl_b32 s{S_C}, s{S_T0}, 16")
P(f"s_and_b32 s{S_D}, s{S_T0}, 0xffff0000")
q1 = sub()
wave_sum(q1, [SA, SA + 1])
q2 = sub()
for r, sm in ((0, S_C), (1, S_D)):
    for i in range(4):
        q2(f"v_pk_add_f32 {v(DF+8*r+2*i,2)}, {v(XF+8*r+2*i,2)}, s[{sm}:{sm+1}] op_sel_hi:[1,0] neg_lo:[0,1] neg_hi:[0,1]")
for r in range(2):
    for i in range(4):
        q2(f"v_cvt_pk_bf16_f32 {v(XF+8*r+2*i)}, {v(DF+8*r+2*i)}, {v(DF+8*r+2*i+1)}")
for r in range(2):
    for i in range(4):
        q2(f"v_and_b32 {v(XF+8*r+2*i+1)}, 0xffff0000, {v(XF+8*r+2*i)}")
        q2(f"v_lshlrev_b32 {v(XF+8*r+2*i)}, 16, {v(XF+8*r+2*i)}")
k = 0
for j in range(0, len(q1.ins), 2):
    P.add(q1.ins[j:j + 2])
    P.add(q2.ins[k:k + 1])
    k += 1
P(f"v_mul_f32 {v(SA)}, s{S_K0}, {v(SA)}")
P(f"v_mul_f32 {v(SA+1)}, s{S_K0}, {v(SA+1)}")
for step in range(3):
    P(f"v_cvt_pk_bf16_f32 {v(SA+2)}, {v(SA)}, {v(SA+1)}")
    P(f"v_lshlrev_b32 {v(SA)}, 16, {v(SA+2)}")
    P(f"v_and_b32 {v(SA+1)}, 0xffff0000, {v(SA+2)}")
    for r in range(2):
        if step == 0:
            P(f"v_add_f32 {v(SA+r)}, {f32(1e-5)}, {v(SA+r)}")
        elif step == 1:
            P(f"v_sqrt_f32 {v(SA+r)}, {v(SA+r)}")
        else:
            P(f"v_rcp_f32 {v(SA+r)}, {v(SA+r)}")
    if step:
        P.add(q2.ins[k:k + 1])
        k += 1
P(f"v_readlane_b32 s{S_A}, {v(SA)}, 63")
P(f"v_readlane_b32 s{S_B}, {v(SA+1)}, 63")
P.add(q2.ins[k:])
for r, sm in ((0, S_A), (1, S_B)):
    for i in range(4):
        P(f"v_pk_mul_f32 {v(XF+8*r+2*i,2)}, {v(XF+8*r+2*i,2)}, s[{sm}:{sm+1}] op_sel_hi:[1,0]")
for j in range(8):
    P(f"v_cvt_pk_bf16_f32 {v(DF+j)}, {v(XF+j)}, {v(XF+8+j)}")
P(f"s_mov_b64 exec, s[{S_EX}:{S_EX+1}]")
for i in range(4):
    P(f"ds_write2_b32 {v(V_GW)}, {v(DF+2*i)}, {v(DF+2*i+1)} offset0:{16*i} offset1:{16*i+4}")
P("s_mov_b64 exec, -1")
if "fine" in OPT: stamp("ln1 math")
P("s_waitcnt lgkmcnt(0)")
P("s_barrier")
if "fine" in OPT: stamp("ln1 barrier")
UB = 112
for j in range(4):
    P(f"ds_read_b128 {v(UB+4*j,4)}, {v(V_GR)} offset:{1088*j}")
P(f"s_lshl_b32 s{S_T0}, s{S_V}, 3")
P(f"s_and_b32 s{S_T0}, s{S_T0}, 16")
P(f"s_mov_b32 m0, s{S_TAB}")
P("s_waitcnt lgkmcnt(0)")
for j in range(4):
    P(f"buffer_store_dwordx4 {v(UB+4*j,4)}, {v(V_L16 if j < 3 else V_S3)}, {srd(SRD_WS)}, s{S_UXO} offen offset:{1024*j} sc1", tok="ux")
P(f"s_cmp_lt_u32 s{S_W}, 224")
P("s_cbranch_scc1 L_main")


def nonce_init():
    q = sub()
    q(f"v_readfirstlane_b32 s{S_NONCE}, {v(V_NONCE)}")
    q(f"s_mul_i32 s{S_NONCE}, s{S_NONCE}, 1664525")
    q(f"s_add_u32 s{S_NONCE}, s{S_NONCE}, 1013904223")
    q(f"v_mov_b32 {v(V_NONCE)}, s{S_NONCE}")
    q(f"buffer_store_dword {v(V_NONCE)}, v250, {srd(SRD_WS)}, s{S_CI} offen sc1", tok="ux")
    q(f"s_add_u32 s{S_E28}, s{S_NONCE}, 28")
    q(f"s_add_u32 s{S_E14}, s{S_NONCE}, 14")
    return q.ins


P.raw("s_waitcnt vmcnt(6)")
for x in nonce_init():
    P.raw(x.text)
P.raw("s_waitcnt vmcnt(0)")
P.raw(f"buffer_atomic_swap {v(V_NONCE)}, {v(V_FLG)}, {srd(SRD_WS)}, s{S_F1} offen")
P.raw("s_branch L_spare")
P("L_main:")
stamp("ln1 done")


def wfrag(m, ks):
    return 8 * ks + 4 * m


def slotoff(slot):
    return (slot % 8) * 1024 + (slot // 8) * 32768


def w_dma(kq, m, slot, tok):
    q = sub()
    q(f"s_add_u32 m0, s{S_RING}, {slotoff(slot)}")
    if m == 0:
        q(f"s_mov_b32 s{S_WOFF}, {kq*4*57344}")
    for k in range(4):
        o = f" offset:{1024*k}" if k else ""
        q(f"buffer_load_dwordx4 {v(V_W+k)}, {srd(SRD_WU if m else SRD_WG)}, s{S_WOFF} offen{o} lds", tok=tok)
    return q.ins


def w_tr(kq, m, slot, tok=None):
    q = sub()
    for k in range(4):
        for h in range(2):
            q(f"ds_read_b64_tr_b16 {acc(wfrag(m,4*kq+k)+2*h,2)}, {v(V_TRA)} offset:{slotoff(slot+k)+256*h}", tok=tok)
    return q.ins


def batch_dma(b, tok):
    return [w_dma(2 * b + i // 2, i % 2, 4 * i, f"{tok}_{i}") for i in range(4)]


def batch_tr(b):
    o = []
    for i in range(4):
        o += w_tr(2 * b + i // 2, i % 2, 4 * i, tok=f"t{b}_{i}")
    return o


def singles(groups):
    out, cur = [], []
    for grp in groups:
        for i in grp:
            cur.append(i)
            if i.cls == "vmem":
                out.append(cur)
                cur = []
    if cur:
        out[-1] += cur
    return out


def pin_vm(g, start, groups, stride):
    k = start
    for u in singles(groups):
        g.at(int(k), u)
        k += stride
    return int(k)


def w_dma1(b, n, tok):
    i, k = n // 4, n % 4
    q = sub()
    q(f"s_add_u32 m0, s{S_RING}, {slotoff(4*i)}")
    if n % 8 == 0:
        q(f"s_mov_b32 s{S_WOFF}, {(2*b+i//2)*4*57344}")
    o = f" offset:{1024*k}" if k else ""
    q(f"buffer_load_dwordx4 {v(V_W+k)}, {srd(SRD_WU if i % 2 else SRD_WG)}, s{S_WOFF} offen{o} lds", tok=f"{tok}_{i}")
    q(f"s_mov_b32 m0, s{S_TAB}")
    return q.ins


KD = 176
FR = 192
FR = 112


def kgen_head(rd):
    q = sub()
    A0 = 48 + 0
    CC = 50
    unp = (lambda d, s: q(f"v_lshlrev_b32 {v(d)}, 16, {v(s)}")) if rd == 0 else (lambda d, s: q(f"v_and_b32 {v(d)}, 0xffff0000, {v(s)}"))
    for i in range(4):
        unp(48 + i, PR + i)
    q(f"v_mul_f32 v48, {f32(LOG2E)}, v48")
    q(f"v_exp_f32 v48, v48")
    q(f"v_mul_f32 v49, v49, {v(V_DT)}")
    q(f"v_cvt_pk_bf16_f32 v48, v48, v48")
    q(f"v_mul_f32 v49, 0.15915494, v49")
    q(f"v_and_b32 v48, 0xffff0000, v48")
    q(f"v_mul_f32 v50, v50, {v(V_DT)}")
    q(f"v_mul_f32 v48, v48, {v(V_DT)}")
    q(f"v_mul_f32 v51, v51, {v(V_DT)}")
    q(f"v_mul_f32 v48, {f32(-LOG2E)}, v48")
    q(f"v_add_f32 v50, v50, v50")
    q(f"v_add_f32 v51, v51, v51")
    for (z, pos) in ((52, 1), (54, 16), (56, 256)):
        if pos == 1:
            q(f"v_exp_f32 v4, v48")
            q(f"v_fract_f32 v5, v49")
        else:
            q(f"v_mul_f32 v4, {f32(float(pos))}, v48")
            q(f"v_mul_f32 v5, {f32(float(pos))}, v49")
            q(f"v_exp_f32 v4, v4")
            q(f"v_fract_f32 v5, v5")
        q(f"v_cos_f32 {v(z)}, v5")
        q(f"v_sin_f32 {v(z+1)}, v5")
        q(f"v_mul_f32 {v(z)}, {v(z)}, v4")
        q(f"v_mul_f32 {v(z+1)}, {v(z+1)}, v4")
    return q.ins


def kgen_body(rd):
    names = {"G0": 50, "E1": 52, "E16": 54, "E256": 56}
    nxt = [58]
    chunks = []
    cur = sub()
    wr = sub()
    pk = [0]
    PK = 192

    def new(n):
        names[n] = nxt[0]
        nxt[0] += 2
        assert nxt[0] <= 104
        return names[n]

    def out(kind, row, z):
        t = PK + pk[0] % 16
        pk[0] += 1
        if kind == "B":
            cur(f"v_cvt_pk_bf16_f32 {v(t)}, {v(z)}, {v(z+1)}")
            wr(f"ds_write_addtid_b32 {v(t)} offset:{row*TAB_ROW}")
        else:
            cur(f"v_cvt_pk_bf16_f32 {v(t)}, {v(z)}, -{v(z+1)}")
            wr(f"ds_write_addtid_b32 {v(t)} offset:{(32+row)*TAB_ROW}")
        if len(wr.ins) >= GROUP:
            flush()

    def flush():
        nonlocal cur, wr
        chunks.append(cur.ins + wr.ins)
        cur = sub()
        wr = sub()

    sc = [0]

    def mul(n, a, b, kind=None, row=None):
        if n is None:
            z = 104 + 2 * (sc[0] % 4)
            sc[0] += 1
        else:
            z = new(n)
        cmul(cur, z, names[a], names[b])
        if kind:
            out(kind, row, z)

    GROUP = int(OPT.get("kgroup", 6))
    t = PK + pk[0]
    pk[0] += 1
    cur(f"v_mov_b32 {v(t)}, 0x3f80")
    wr(f"ds_write_addtid_b32 {v(t)}")
    out("A", 0, names["G0"])
    out("B", 2, names["E16"])
    mul("E2", "E1", "E1")
    mul("E32", "E16", "E16", "B", 4)
    mul("G1", "G0", "E256", "A", 8)
    mul("E512", "E256", "E256")
    mul("a1", "G0", "E1", "A", 1)
    mul("E4", "E2", "E2")
    mul("E64", "E32", "E32", "B", 8)
    mul("E48", "E32", "E16", "B", 6)
    mul("G2", "G0", "E512", "A", 10)
    mul("G3", "G1", "E512", "A", 11)
    mul("E1024", "E512", "E512")
    mul("E8", "E4", "E4", "B", 1)
    mul("a2", "G0", "E2", "A", 2)
    mul("a3", "a1", "E2", "A", 3)
    mul("b2", "G1", "E2", "A", 9)
    mul("E128", "E64", "E64", "B", 16)
    mul("G4", "G0", "E1024", "A", 16)
    mul("E24", "E16", "E8", "B", 3)
    mul("E40", "E32", "E8", "B", 5)
    mul("E56", "E48", "E8", "B", 7)
    mul("E192", "E128", "E64", "B", 24)
    for row, a in ((4, "G0"), (5, "a1"), (6, "a2"), (7, "a3"), (12, "G1"), (13, "b2"), (14, "G2"), (15, "G3")):
        mul(None, a, "E4", "A", row)
    for row, a in ((17, "G1"), (18, "G2"), (19, "G3"), (20, "G4")):
        mul(None, a, "E1024", "A", row)
    for b2, nb in ((1, "E64"), (2, "E128"), (3, "E192")):
        for b1 in range(1, 8):
            mul(None, f"E{8*b1}", nb, "B", 8 * b2 + b1)
    if wr.ins or cur.ins:
        flush()
    return chunks


def kgen_reads():
    q = sub()
    for s in range(8):
        q(f"ds_read_b128 {v(FR+8*s,4)}, {v(V_TA)} offset:{32*TAB_ROW+32*s}")
        q(f"ds_read_b128 {v(FR+8*s+4,4)}, {v(V_TB)} offset:{32*s}")
    return q.ins


def kgen_mfma(rd):
    q = sub()
    for s in range(8):
        c = "0" if (rd == 0 and s == 0) else v(KD, 16)
        q(f"v_mfma_f32_32x32x16_bf16 {v(KD,16)}, {v(FR+8*s,4)}, {v(FR+8*s+4,4)}, {c}")
    return q.ins


P(f"v_lshrrev_b32 v4, s{S_T0}, {v(V_DT)}")
P(f"v_lshlrev_b32 v4, 16, v4")
P(f"v_mul_f32 v4, {f32(LOG2E)}, v4")
P(f"v_exp_f32 v4, v4")
P(f"v_readfirstlane_b32 s{S_DSK}, {v(V_EU1)}")
round_bf16(P, V_DT, 4)
P.add(kgen_head(0))
P.add(nonce_init())
ch = kgen_body(0)
fl = sub()
fl.wait("ux")
setflag(fl, S_F1)
nd = 0
FLAGAT = int(OPT.get("flagat", 6))
DMA0 = int(OPT.get("dma0", 3))
for i, c in enumerate(ch):
    P.add(c)
    if i == FLAGAT:
        if "fine" in OPT: stamp("pre flag1")
        P.add(fl.ins)
        if "fine" in OPT: stamp("post flag1")
    elif i >= DMA0:
        P.add(w_dma1(0, nd, "w1"))
        nd += 1
P.add(kgen_reads())
g = Gaps(kgen_mfma(0), 7)
for k in (0, 2, 4, 6):
    g.at(k, w_dma1(0, nd, "w1"))
    nd += 1
g.fill(kgen_head(1))
P.add(g.out())
stamp("kgen r0")
ch = kgen_body(1)
POLLAT = int(OPT.get("pollat", 3))
for i, c in enumerate(ch):
    P.add(c)
    if i == POLLAT:
        P.add(poll_issue(V_F1, 6))
    elif nd < 16:
        P.add(w_dma1(0, nd, "w1"))
        nd += 1
assert nd == 16
P.add(kgen_reads())
if "fine" in OPT: stamp("pre poll1")
P.add(poll_check(V_F1, 6))
if "fine" in OPT: stamp("post poll1")
g = Gaps(kgen_mfma(1), 6)
P(f"s_mov_b32 m0, s{S_UXM}")
for j in range(4):
    q = sub()
    q(f"s_mov_b32 s{S_T0}, {j*(16*14336-1024)}")
    o = f" offset:{1024*j}" if j else ""
    q(f"buffer_load_dwordx4 {v(V_UXL)}, {srd(SRD_WS)}, s{S_T0} offen{o} sc1 lds", tok="uxl")
    if j == 0:
        P.add(q.ins)
    else:
        g.at(2 * j - 2, q.ins)
tr1 = batch_tr(0)
P.wait("w1_2")
for k in range(8):
    g.at(k, tr1[3 * k:3 * k + 3])
P.add(g.out())
stamp("kgen r1")
P(f"v_and_b32 v4, 15, {v(V_LANE)}")
P(f"v_lshrrev_b32 v5, 4, {v(V_LANE)}")
P(f"v_lshl_add_u32 v6, v5, 3, v4")
P(f"v_sub_u32 v6, 39, v6")
P(f"v_and_b32 v7, 1, v6")
P(f"v_mul_u32_u24 v7, {CS-2}, v7")
P(f"v_lshl_add_u32 v6, v6, 1, v7")
P(f"s_lshr_b32 s{S_T0}, s{S_V}, 1")
P(f"s_andn2_b32 s{S_T3}, 1, s{S_V}")
P(f"s_mul_i32 s{S_T2}, s{S_T0}, {2*CS}")
P(f"s_lshl_b32 s{S_T1}, s{S_T3}, 8")
P(f"s_add_u32 s{S_T2}, s{S_T2}, s{S_T1}")
P(f"s_add_u32 s{S_T2}, s{S_T2}, {L_KC}")
P(f"v_add_u32 {v(V_KA+3)}, s{S_T2}, v6")
toff = {0: (0, 0), 1: (0, 1), 2: (0, 2), 3: (0, 3), 4: (1, 0), 5: (1, 2), 6: (2, 0), 7: (3, 0), 8: (4, 0), 9: (5, 0), 10: (6, 0), 11: (7, 0)}
P(f"ds_write2_b32 {v(V_TW)}, {v(KD)}, {v(KD+1)} offset0:0 offset1:1")
P(f"ds_write2_b32 {v(V_TW)}, {v(KD+2)}, {v(KD+3)} offset0:2 offset1:3")
for j in range(4, 12):
    qq, r = toff[j]
    P(f"ds_write_b32 {v(V_TW)}, {v(KD+j)} offset:{4*(r + 264*qq)}")
for k in range(3):
    P(f"v_add_u32 {v(V_KA+k)}, {64*(48-16*k)}, {v(V_KA+3)}")
P(f"v_lshlrev_b32 v6, 1, v4")
P(f"v_sub_u32 v6, v6, v5")
P(f"s_lshl_b32 s{S_T1}, s{S_T3}, 4")
P(f"s_add_u32 s{S_T1}, s{S_T1}, 17")
P(f"v_add_u32 v6, s{S_T1}, v6")
P(f"s_mov_b32 s{S_T2}, {L_UX}")
P("s_waitcnt lgkmcnt(0)")
P("s_barrier")
if "fine" in OPT: stamp("T barrier")
EG = 208
for c2 in range(2):
    for e in range(9):
        P(f"ds_read2st64_b32 {v(EG+18*c2+2*e,2)}, {v(GA+e)} offset0:{114*c2} offset1:{114*c2+57}")
b2 = batch_dma(1, "w2")
b2[3] = waitq("t0_3") + b2[3]
b2 = singles(b2)
P.add(b2.pop(0))
for rr in range(4):
    P(f"v_bfe_u32 v7, v6, 2, 2")
    P(f"v_xor_b32 v7, s{S_T0}, v7")
    P(f"v_lshl_add_u32 v7, v6, 2, v7")
    P(f"v_lshl_add_u32 {v(V_UA+rr)}, v7, 4, s{S_T2}")
    if rr < 3:
        P(f"v_subrev_u32 v6, 4, v6")
P.add(b2.pop(0))
P(f"v_lshlrev_b32 v6, 4, v0")
KO = 192
VB = 48


def bfrag(rr, e):
    return VB + 32 * rr + 4 * e


def b_loads(lo, hi):
    z = sub()
    for rr in range(4):
        for a in range(lo, hi):
            z(f"ds_read_b128 {v(bfrag(rr,a),4)}, {v(V_UA+rr)} offset:{2048*a}")
    return z.ins


for c2 in range(2):
    b = EG + 18 * c2
    for e in range(9):
        P(f"v_add_f32 {v(b+2*e)}, {v(b+2*e)}, {v(b+2*e+1)}")
    P(f"v_cndmask_b32 {v(b+16)}, {v(b+16)}, 0, s[{S_M255}:{S_M255+1}]")
    for s_ in range(2):
        o = KO + 8 * c2 + 4 * s_
        for i in range(4):
            P(f"v_cvt_pk_bf16_f32 {v(o+i)}, {v(b+2*(s_+2*i))}, {v(b+2*(s_+2*i+1))}")
    if c2 == 1:
        P(f"v_add_u32 v7, {2*CS}, v6")
    for s_ in range(2):
        P(f"ds_write_b128 {v(6+c2)}, {v(KO+8*c2+4*s_,4)} offset:{L_KC+s_*CS}", tok="kc")
    if c2 == 0:
        P.add(waitq("w1_3") + tr1[24:])
    P.add(b2.pop(0))
if "dumpk" in OPT:
    P(f"s_lshl_b32 s{S_T0}, s{S_W}, 13")
    P(f"s_add_u32 s{S_T0}, s{S_T0}, {WS_DBG}")
    P(f"buffer_store_dwordx4 {v(KO,4)}, v6, {srd(SRD_WS)}, s{S_T0} offen")
    P(f"s_add_u32 s{S_T0}, s{S_T0}, 4096")
    P(f"buffer_store_dwordx4 {v(KO+8,4)}, v6, {srd(SRD_WS)}, s{S_T0} offen")
stamp("expanded")
P.wait("uxl")
P.wait("kc")
P("s_barrier")
stamp("conv start")
ea = sub()
ea(f"v_lshrrev_b32 v6, 1, v5")
ea(f"v_lshl_add_u32 v6, v4, 1, v6")
ea(f"s_lshl_b32 s{S_T2}, s{S_V}, 11")
ea(f"s_add_u32 s{S_T2}, s{S_T2}, {L_UX+2048}")
ea(f"v_lshl_add_u32 v6, v6, 6, s{S_T2}")
ea(f"v_bfe_u32 v4, v4, 1, 2")
ea(f"v_and_b32 v5, 1, v5")
ea(f"v_lshl_add_u32 v7, v4, 4, v6")
ea(f"v_lshl_add_u32 {v(V_EU)}, v5, 3, v7")
ea(f"v_xor_b32 {v(V_EU1)}, 16, {v(V_EU)}")
ea(f"v_or_b32 v5, 2, v5")
ea(f"v_xor_b32 v4, v4, v5")
ea(f"v_lshl_add_u32 {v(V_EXP)}, v4, 4, v6")
eb = sub()
eb(f"s_mul_i32 s{S_ACTW}, s{S_V}, 14336")
eb(f"v_add_u32 {v(V_EXR)}, s{S_ACTW}, {v(V_L16)}")
eb(f"s_lshl_b32 s{S_T2}, s{S_V}, 10")
eb(f"v_add_u32 {v(V_EXW)}, s{S_T2}, {v(V_L16)}")
eb(f"s_mul_i32 s{S_T3}, s{S_W}, {PROW}")
eb(f"s_add_u32 s{S_T3}, s{S_T3}, {WS_P}")
eb(f"v_add_u32 {v(V_PST)}, s{S_T3}, {v(V_EXW)}")
eb(f"s_lshl_b32 s{S_C}, s{S_DSK}, 16")
eb(f"s_and_b32 s{S_D}, s{S_DSK}, 0xffff0000")

CA = [176, 192]
ET = 208


def afrag(rr, a):
    return 128 + 32 * rr + 4 * a


def a_loads(rr, lo, hi):
    z = sub()
    for a in range(lo, hi):
        k = a // 2
        off = 16 * (11 - rr - 8 * (a - 2 * k))
        z(f"ds_read2_b32 {acc(afrag(rr,a),2)}, {v(V_KA+k)} offset0:{off} offset1:{off+1}")
        z(f"ds_read2_b32 {acc(afrag(rr,a)+2,2)}, {v(V_KA+k)} offset0:{off+2} offset1:{off+3}")
    return z.ins


def conv_mfmas(gen):
    m = sub()
    first = set()
    na = 4 if gen == 0 else 8
    order = []
    for rr in range(4):
        pairs = [(a, e) for a in range(na) for e in range(na) if 4 * gen <= a + e < 4 * gen + 4]
        pairs.sort(key=lambda ae: (max(ae), ae))
        order += [(rr, a, e) for a, e in pairs]
    if gen == 1:
        order.sort(key=lambda t: (0 if max(t[1], t[2]) < 4 else 1))
    for rr, a, e in order:
        c = a + e - 4 * gen
        d = CA[gen] + 4 * c
        cc = v(d, 4) if c in first else "0"
        first.add(c)
        m(f"v_mfma_f32_16x16x32_bf16 {v(d,4)}, {acc(afrag(rr,a),4)}, {v(bfrag(rr,e),4)}, {cc}")
    return m.ins


UU, XX, YY, TT, WW, HO = ET, ET + 4, ET + 8, ET + 24, ET + 32, ET + 36


def conv_pre(gen):
    q = sub()
    q(f"ds_read_b64 {v(UU,2)}, {v(V_EU)} offset:{8192*gen}")
    q(f"ds_read_b64 {v(UU+2,2)}, {v(V_EU1)} offset:{8192*gen}")
    q(f"ds_read_b128 {v(XX,4)}, {v(V_EXP)} offset:{8192*gen}")
    r = sub()
    for c2 in range(2):
        for i in range(2):
            r(f"v_lshlrev_b32 {v(TT+4*c2+2*i)}, 16, {v(UU+2*c2+i)}")
            r(f"v_and_b32 {v(TT+4*c2+2*i+1)}, 0xffff0000, {v(UU+2*c2+i)}")
    for c2, sm in ((0, S_C), (1, S_D)):
        for i in range(4):
            r(f"v_mul_f32 {v(TT+4*c2+i)}, s{sm}, {v(TT+4*c2+i)}")
    for j in range(4):
        r(f"v_cvt_pk_bf16_f32 {v(WW+j)}, {v(TT+j)}, {v(TT+4+j)}")
    for j in range(4):
        r(f"v_lshlrev_b32 {v(TT+2*j)}, 16, {v(WW+j)}")
        r(f"v_and_b32 {v(TT+2*j+1)}, 0xffff0000, {v(WW+j)}")
    return q.ins, r.ins


def conv_xchg(gen):
    w_, b_, r_ = sub(), sub(), sub()
    for c in range(4):
        w_(f"ds_write_b128 {v(V_EXW)}, {v(CA[gen]+4*c,4)} offset:{(4096 if gen else 14336)*c}", tok=f"xw{gen}")
    b_.wait(f"xw{gen}")
    b_("s_barrier")
    for w in range(4):
        r_(f"ds_read_b128 {v(YY+4*w,4)}, {v(V_EXR)} offset:{1024*w}", tok=f"xr{gen}")
    return w_.ins, b_.ins, r_.ins


def conv_post(gen):
    q = sub()
    for c2 in range(2):
        for i in range(2):
            q(f"v_pk_add_f32 {v(YY+8*c2+2*i,2)}, {v(YY+8*c2+2*i,2)}, {v(YY+8*c2+4+2*i,2)}")
    for j in range(4):
        q(f"v_cvt_pk_bf16_f32 {v(WW+j)}, {v(YY+j)}, {v(YY+8+j)}")
    for j in range(4):
        q(f"v_lshlrev_b32 {v(YY+2*j)}, 16, {v(WW+j)}")
        q(f"v_and_b32 {v(YY+2*j+1)}, 0xffff0000, {v(WW+j)}")
    for j in range(4):
        q(f"v_pk_add_f32 {v(YY+2*j,2)}, {v(YY+2*j,2)}, {v(TT+2*j,2)}")
    for j in range(4):
        q(f"v_cvt_pk_bf16_f32 {v(WW+j)}, {v(YY+2*j)}, {v(YY+2*j+1)}")
    for j in range(4):
        q(f"v_lshlrev_b32 {v(YY+8+2*j)}, 16, {v(XX+j)}")
        q(f"v_and_b32 {v(YY+8+2*j+1)}, 0xffff0000, {v(XX+j)}")
    for j in range(4):
        q(f"v_lshlrev_b32 {v(YY+2*j)}, 16, {v(WW+j)}")
        q(f"v_and_b32 {v(YY+2*j+1)}, 0xffff0000, {v(WW+j)}")
    for j in range(4):
        q(f"v_pk_add_f32 {v(YY+2*j,2)}, {v(YY+2*j,2)}, {v(YY+8+2*j,2)}")
    h = HO + 4 * gen
    for j in range(4):
        q(f"v_cvt_pk_bf16_f32 {v(h+j)}, {v(YY+2*j)}, {v(YY+2*j+1)}")
    q(f"s_mov_b32 s{S_T0}, {PGEN*gen}")
    q(f"buffer_store_dwordx4 {v(h,4)}, {v(V_PST)}, {srd(SRD_WS)}, s{S_T0} offen sc1", tok=f"h{gen}")
    return q.ins


V_WF = 19
V_F4 = 20
ad = sub()
ad(f"v_mov_b32 {v(V_NONCE)}, 1")
flg_lanes(ad, 4, 10)
ad(f"s_lshl_b32 s{S_T0}, s{S_V}, 13")
ad(f"s_add_u32 s{S_F2}, s{S_F2}, s{S_T0}")
ad(f"s_lshl_b32 s{S_T0}, s{S_FH}, 12")
ad(f"s_add_u32 s{S_F2}, s{S_F2}, s{S_T0}")
ad(f"s_add_u32 s{S_F2}, s{S_F2}, {WS_C}")
NFL = len(ad.ins)
ad(f"s_lshr_b32 s{S_T0}, s{S_TB}, 2")
ad(f"s_bfe_u32 s{S_REP}, s{S_W}, 0x20003")
ad(f"s_lshl3_add_u32 s{S_T0}, s{S_T0}, s{S_REP}")
ad(f"s_lshl2_add_u32 s{S_T0}, s{S_T0}, s{S_V}")
ad(f"s_lshl_b32 s{S_T0}, s{S_T0}, 8")
ad(f"s_add_u32 s{S_T0}, s{S_T0}, {WS_C}")
ad(f"v_mov_b32 {v(V_F2)}, 0x7ff00000")
ad(f"v_writelane_b32 {v(V_F2)}, s{S_T0}, 0")
ad(f"s_add_u32 s{S_T0}, s{S_T0}, 4096")
ad(f"v_writelane_b32 {v(V_F2)}, s{S_T0}, 1")
ad(f"s_lshl2_add_u32 s{S_T2}, s{S_DB}, s{S_V}")
ad(f"s_lshl2_add_u32 s{S_T3}, s{S_T2}, s{S_REP}")
ad(f"s_lshl_b32 s{S_T3}, s{S_T3}, 8")
ad(f"s_add_u32 s{S_T3}, s{S_T3}, {WS_C + 896*256}")
ad(f"v_mov_b32 {v(V_F4)}, 0x7ff00000")
ad(f"v_writelane_b32 {v(V_F4)}, s{S_T3}, 0")
ad(f"s_mul_i32 s{S_T1}, s{S_V}, 56")
ad(f"s_mul_i32 s{S_T2}, s{S_T2}, {14*4096}")
ad(f"s_add_u32 s{S_T2}, s{S_T2}, {WS_WF}")
ad(f"v_add_u32 {v(V_WF)}, s{S_T2}, {v(V_L16)}")
ad(f"s_lshl_b32 s{S_HR}, s{S_DB}, 11")
for i in range(1, 7):
    ad(f"s_add_u32 s{S_HR+i}, s{S_HR}, {2048*i}")
    ad(f"s_sub_u32 s{S_T3}, s{S_HR+i}, 14336")
    ad(f"s_min_u32 s{S_HR+i}, s{S_HR+i}, s{S_T3}")
V_A = 17
ad(f"v_lshrrev_b32 v5, 4, {v(V_LANE)}")
ad(f"v_and_b32 v6, 15, {v(V_LANE)}")
ad(f"v_mul_u32_u24 v4, {PROW}, v5")
ad(f"v_lshl_add_u32 v4, v6, 4, v4")
ad(f"s_mul_i32 s{S_T1}, s{S_T1}, {PROW}")
ad(f"s_lshl_b32 s{S_T0}, s{S_TB}, 8")
ad(f"s_add_u32 s{S_T0}, s{S_T0}, s{S_T1}")
ad(f"s_add_u32 s{S_T0}, s{S_T0}, {WS_P}")
ad(f"v_add_u32 {v(V_A)}, s{S_T0}, v4")
ad(f"v_add_u32 {v(V_A+1)}, {4*PROW-1024}, {v(V_A)}")
ad1 = ad

def act_dma(gen):
    o = []
    for i in range(7):
        q = sub()
        q(f"s_add_u32 m0, s{S_ACTW if gen == 0 else S_Z}, s{S_HR+i}")
        q(f"s_mul_i32 s{S_WOFF}, s{S_HR+i}, {8*PROW//2048}")
        for k in range(2):
            of = f" offset:{1024*k}" if k else ""
            q(f"buffer_load_dwordx4 {v(V_A+k)}, {srd(SRD_WS)}, s{S_WOFF} offen{of} sc1 lds", tok=f"act{gen}")
        o.append(q.ins)
    return o


V_BR, V_S2, V_HST = 21, 22, 24
V_LF, V_LR = 28, 29
V_RES = 27
V_OST, V_RR, V_RW, V_HL, V_P3 = 40, 41, 42, 44, 45
SEL = 176
CSA = [180, 184]
ad = sub()
ad(f"v_add_u32 {v(V_F2)}, 0x8000, {v(V_F2)}")
ad(f"v_and_b32 v4, 31, {v(V_LANE)}")
ad(f"v_lshrrev_b32 v5, 5, {v(V_LANE)}")
ad(f"v_lshlrev_b32 v5, 10, v5")
ad(f"v_lshl_add_u32 {v(V_BR)}, v4, 2, v5")
ad(f"s_lshl_b32 s{S_T0}, s{S_TB}, 10")
ad(f"s_mul_i32 s{S_T1}, s{S_DB}, {S2REP}")
ad(f"s_add_u32 s{S_T0}, s{S_T0}, s{S_T1}")
ad(f"s_add_u32 s{S_T0}, s{S_T0}, {WS_S2}")
ad(f"v_lshl_add_u32 {v(V_S2)}, v4, 3, s{S_T0}")
ad(f"s_mov_b32 s{S_PERM}, 0x03020302")
ad(f"v_lshrrev_b32 v5, 4, {v(V_LANE)}")
ad(f"v_and_b32 v6, 15, {v(V_LANE)}")
ad(f"v_and_b32 v4, 1, v5")
ad(f"v_mul_u32_u24 v4, 57344, v4")
ad(f"v_lshl_add_u32 v4, v6, 4, v4")
ad(f"v_lshrrev_b32 v7, 1, v5")
ad(f"v_lshl_add_u32 v4, v7, 8, v4")
ad(f"s_mul_i32 s{S_T0}, s{S_TB}, {8*57344}")
ad(f"s_lshl_b32 s{S_T1}, s{S_FB}, 2")
ad(f"s_add_u32 s{S_T1}, s{S_T1}, s{S_V}")
ad(f"s_lshl_b32 s{S_T2}, s{S_T1}, 10")
ad(f"s_add_u32 s{S_T0}, s{S_T0}, {WS_H}")
ad(f"s_add_u32 s{S_T2}, s{S_T2}, s{S_T0}")
ad(f"v_add_u32 {v(V_HST)}, s{S_T2}, v4")
ad(f"s_mul_i32 s{S_T2}, s{S_FH}, 57344")
ad(f"s_add_u32 s{S_T0}, s{S_T0}, s{S_T2}")
ad(f"s_add_u32 s{S_T0}, s{S_T0}, s{S_ACTW}")
ad(f"v_add_u32 {v(V_HL)}, s{S_T0}, {v(V_L16)}")
ad(f"s_lshl_b32 s{S_T0}, s{S_TB}, 13")
ad(f"s_add_u32 s{S_T0}, s{S_T0}, {WS_C + 65536}")
ad(f"s_mul_i32 s{S_T1}, s{S_T1}, 37")
ad(f"s_and_b32 s{S_T1}, s{S_T1}, 0x600")
ad(f"s_add_u32 s{S_F3}, s{S_T0}, s{S_T1}")
ad(f"s_lshl1_add_u32 s{S_T1}, s{S_V}, s{S_FH}")
ad(f"s_lshl_b32 s{S_T1}, s{S_T1}, 8")
ad(f"s_add_u32 s{S_T0}, s{S_T0}, s{S_T1}")
ad(f"v_mov_b32 {v(V_P3)}, 0x7ff00000")
ad(f"v_writelane_b32 {v(V_P3)}, s{S_T0}, 0")
ad(f"s_add_u32 s{S_FW}, s{S_RING}, 32768")
ad(f"s_lshl_b32 s{S_R2}, s{S_V}, 14")
ad(f"s_add_u32 s{S_Z}, s{S_ACTW}, {L_ACT[1]}")
ad(f"v_add_u32 {v(V_LF)}, s{S_FW}, {v(V_L16)}")
ad(f"v_add_u32 {v(V_LR)}, s{S_R2}, {v(V_L16)}")
ad2 = ad
se = sub()
se(f"v_bfe_u32 v4, {v(V_LANE)}, 2, 2")
se(f"v_bfe_u32 v5, {v(V_LANE)}, 4, 1")
se(f"v_mov_b32 v6, 0x3f803f80")
se(f"v_cmp_eq_u32 vcc, v4, v5")
for i in range(4):
    se(f"v_cndmask_b32 {v(SEL+i)}, 0, v6, vcc")


def cs_mfma(ks0, ks1):
    q = sub()
    for ks in range(ks0, ks1):
        for m in range(2):
            c = "0" if ks == 0 else v(CSA[m], 4)
            q(f"v_mfma_f32_16x16x32_bf16 {v(CSA[m],4)}, {v(SEL,4)}, {acc(wfrag(m,ks),4)}, {c}")
    return q.ins


def pin_spread(g, start, ins, per=2):
    for i, x in enumerate(ins):
        g.at(int(start + i // per), [x])
    return int(start + (len(ins) + per - 1) // per)


mA, mB = conv_mfmas(0), conv_mfmas(1)
NOV = 22
bl = b_loads(0, 4)


def ab(rr):
    al = a_loads(rr, 0, 4)
    o = []
    for a in range(4):
        o += [bl[4 * rr + a]] + al[2 * a:2 * a + 2]
    return o


P.add(ab(0))
P.add(ea.ins)
P.add(eb.ins)
g = Gaps(mA + mB[:NOV], 2)
pr, pv = conv_pre(0)
l1 = ab(1) + ab(2) + pr + ab(3)
for i, x in enumerate(l1):
    g.at(i * 28 // len(l1), [x])
pin_vm(g, 1, b2, 3.2)
nb = b_loads(4, 8)
newl = []
for rr in range(4):
    newl += nb[4 * rr:4 * rr + 4] + a_loads(rr, 4, 8)
pin_spread(g, 30, newl[:12], per=1)
g.fill(pv, start=26, end=50)
xw, xb, xr = conv_xchg(0)
for i in range(4):
    g.at(42 + 2 * i, [xw[i]])
g.at(52, xb)
g.at(53, xr)
pin_spread(g, 54, newl[12:20], per=1)
P.add(g.out())
P.add(conv_post(0))
stamp("genA stored")
g = Gaps(mB[NOV:] + cs_mfma(0, 11), 2)
NB_ = len(mB) - NOV
pin_spread(g, 0, newl[20:], per=1)
fl = sub()
fl.wait("h0")
addcnt(fl, S_F2)
fl(f"s_add_u32 s{S_F2}, s{S_F2}, 0x8000")
g.at(int(OPT.get("fa", 30)), fl.ins)
tr2 = batch_tr(1)
for i in range(4):
    pin_spread(g, 10 + 9 * i, waitq(f"w2_{i}") + tr2[8 * i:8 * i + 8], per=1)
b3 = batch_dma(2, "w3")
for i in range(4):
    b3[i] = waitq(f"t1_{i}") + b3[i]
pin_vm(g, 24, b3, 3.3)
pr, pv = conv_pre(1)
pin_spread(g, 48, pr, per=1)
newl[-1].tok = "lastfrag"
bq = sub()
bq.wait("lastfrag")
bq("s_barrier")
g.at(46, bq.ins)
x2 = sub()
x2(f"v_add_u32 {v(V_EXW)}, {L_KC}, {v(V_EXW)}")
x2(f"s_lshl_b32 s{S_T0}, s{S_V}, 12")
x2(f"s_add_u32 s{S_T0}, s{S_T0}, {L_KC}")
x2(f"v_add_u32 {v(V_EXR)}, s{S_T0}, {v(V_L16)}")
PA1, PA2, PAC = int(OPT.get("pa1", 54)), int(OPT.get("pa2", 68)), int(OPT.get("pac", 80))
e = g.fill(ad1.ins[:NFL], start=0, end=int(OPT.get("fa", 30)))
e = g.fill(ad1.ins[NFL:NFL + 10], start=e, end=PA1)
e = g.fill(ad1.ins[NFL + 10:] + se.ins + x2.ins, start=e, end=PAC - 1)
g.fill(pv, start=max(e, 56), end=NB_ + 12)
g.at(PA1, poll_issue(V_F2, 7))
g.at(PA2, poll_issue(V_F2, 23))
g.at(PAC, stq("pre pollA") + poll_check2(V_F2, 7, 23, "3", f"s{S_E28}") + stq("post pollA"))
a0 = singles(act_dma(0))
na = (103 - PAC) // 3 + 1
pin_vm(g, PAC, a0[:na], 3)
xw, xb, xr = conv_xchg(1)
for i in range(4):
    g.at(NB_ + 2 + 2 * i, [xw[i]])
g.at(NB_ + 12, xb)
g.at(NB_ + 13, xr)
P.add(g.out())
p1 = conv_post(1)
P.add(sprinkle(p1, [(4 + 14 * i, u) for i, u in enumerate(a0[na:na + 3])]))
stamp("genB stored")
g = Gaps(cs_mfma(11, 24), 4)
g.at(1, poll_issue(V_F4, 25))
tr3 = batch_tr(2)
t3 = []
for i in (2, 3, 0, 1):
    t3 += waitq(f"w3_{i}") + tr3[8 * i:8 * i + 8]
pin_spread(g, 0, t3, per=4)
e = pin_vm(g, 0, a0[na + 3:] + [waitq("t2_3") + w_dma(6, 0, 8, "w4"), w_dma(6, 1, 12, "w4")], 2)
fl = sub()
fl.wait("h1")
addcnt(fl, S_F2)
g.fill(ad2.ins, start=9)
P.add(g.out())
P.add(fl.ins)
stamp("gap work done")

GACC = [64, 96]
BF = 128
NBF = 8
MB = 160
KC_ = [14, 9]
STT = 60
EPT = 164
HP = 172
WDV = 188
RESR = [46, 48, 50, 52]
A_CS = [224, 228]
GC0 = -2.0 * math.sqrt(2.0 / math.pi) * LOG2E


def st_issue(J, atomic=None):
    q = sub()
    t = STT + 2 * (J & 1)
    atomic = False if atomic is None else atomic
    if atomic:
        q(f"v_mov_b64 {v(t,2)}, 0")
        q(f"buffer_atomic_add_x2 {v(t,2)}, {v(V_S2)}, {srd(SRD_WS)}, 0 offen offset:{256*J} sc0")
    else:
        q(f"buffer_load_dwordx2 {v(t,2)}, {v(V_S2)}, {srd(SRD_WS)}, 0 offen offset:{256*J} sc1")
    return q.ins


def st_check(J):
    q = sub()
    t = STT + 2 * (J & 1)
    slow, done = label("sslow"), label("sdone")
    q(f"v_cmp_ne_u32 vcc, s{S_NONCE}, {v(t+1)}")
    q(f"s_cbranch_vccnz {slow}")
    q(f"{done}:")
    spin(TAIL, slow, done, st_issue(J, True), t + 1, sleep=1)
    return q.ins


def st_final(J):
    q = sub()
    kc = KC_[J & 1]
    t = STT + 2 * (J & 1)
    q(f"v_perm_b32 {v(MB)}, {v(t)}, {v(t)}, s{S_PERM}")
    q(f"v_lshlrev_b32 {v(t+1)}, 16, {v(t)}")
    q(f"v_rcp_f32 {v(t)}, {v(t+1)}")
    q(f"v_mul_f32 {v(kc+2)}, {v(t+1)}, {v(t+1)}")
    q(f"v_mul_f32 {v(kc)}, {f32(GC0)}, {v(t)}")
    q(f"v_mul_f32 {v(kc+1)}, {v(t)}, {v(t)}")
    q(f"v_mul_f32 {v(kc+1)}, {v(kc+1)}, {v(kc)}")
    q(f"v_mul_f32 {v(kc+1)}, {f32(0.044715)}, {v(kc+1)}")
    return q.ins


SP = Prog()
spn = [1]


def sps():
    if STAMPS and "lite" in OPT:
        SP(f"s_memrealtime s[{S_STAMP}:{S_STAMP+1}]")
        SP("s_waitcnt lgkmcnt(0)")
        SP(f"v_writelane_b32 v255, s{S_STAMP}, {spn[0]}")
        spn[0] += 1


SP("L_spare:")
SP("s_waitcnt vmcnt(0)")
SP("s_barrier")
sps()
SP(f"s_and_b32 s{S_T0}, s{S_W}, 6")
SP(f"s_lshl_b32 s{S_T0}, s{S_T0}, 1")
SP(f"s_bfe_u32 s{S_T1}, s{S_W}, 0x20003")
SP(f"s_add_u32 s{S_TB}, s{S_T0}, s{S_T1}")
SP(f"s_lshr_b32 s{S_T0}, s{S_TB}, 2")
SP(f"s_lshl2_add_u32 s{S_T0}, s{S_FH}, s{S_T0}")
SP(f"s_lshl3_add_u32 s{S_T0}, s{S_T0}, s{S_T1}")
SP(f"s_lshl2_add_u32 s{S_T0}, s{S_T0}, s{S_V}")
SP(f"s_lshl_b32 s{S_T0}, s{S_T0}, 8")
SP(f"s_add_u32 s{S_T0}, s{S_T0}, {WS_C}")
SP(f"v_and_b32 v4, 1, {v(V_LANE)}")
SP(f"v_lshl_add_u32 v10, v4, 12, s{S_T0}")
SP(f"s_mul_i32 s{S_T1}, s{S_V}, 56")
SP(f"v_mov_b32 {v(V_NONCE)}, 7")
flg_lanes(SP, 4)
SP(f"v_lshrrev_b32 v5, 4, {v(V_LANE)}")
SP(f"v_and_b32 v6, 15, {v(V_LANE)}")
SP(f"v_mul_u32_u24 v4, {PROW}, v5")
SP(f"v_lshl_add_u32 v4, v6, 4, v4")
SP(f"s_mul_i32 s{S_T1}, s{S_T1}, {PROW}")
SP(f"s_lshl_b32 s{S_T0}, s{S_TB}, 8")
SP(f"s_add_u32 s{S_T0}, s{S_T0}, s{S_T1}")
SP(f"s_mul_i32 s{S_T1}, s{S_FH}, {PGEN}")
SP(f"s_add_u32 s{S_T0}, s{S_T0}, s{S_T1}")
SP(f"s_add_u32 s{S_T0}, s{S_T0}, {WS_P}")
SP(f"v_add_u32 v11, s{S_T0}, v4")
SP(f"v_lshl_add_u32 v4, v6, 2, v5")
SP(f"s_lshl_b32 s{S_T0}, s{S_V}, 9")
SP(f"v_lshl_add_u32 v12, v4, 3, s{S_T0}")
SP(f"v_lshlrev_b32 v13, 3, {v(V_LANE)}")
SP(f"v_mov_b32 v14, 0x3f803f80")
SP(f"s_sub_u32 s{S_T1}, s{S_W}, 224")
SP(f"s_lshr_b32 s{S_T0}, s{S_V}, 1")
SP(f"s_lshl1_add_u32 s{S_T1}, s{S_T1}, s{S_T0}")
SP(f"s_mul_i32 s{S_T1}, s{S_T1}, {35*128}")
SP(f"s_add_u32 s{S_T1}, s{S_T1}, {3584*128}")
SP(f"v_min_u32 v4, 34, {v(V_LANE)}")
SP(f"v_lshl_add_u32 v4, v4, 7, s{S_T1}")
for k in range(4):
    SP(f"global_load_dword {v(60+k)}, v4, s[{S_PFB}:{S_PFB+1}]")
    if k < 3:
        SP(f"v_add_u32 v4, {2240*128}, v4")
SP(f"s_sub_u32 s{S_T1}, s{S_W}, 224")
SP(f"s_cmp_ge_u32 s{S_T1}, 28")
SP("s_cbranch_scc1 L_sp_nowf")
SP(f"s_lshr_b32 s{S_DB}, s{S_T1}, 2")
SP(f"s_and_b32 s{S_T2}, s{S_T1}, 3")
SP(f"s_lshl_b32 s{S_F3}, s{S_T1}, 10")
SP(f"s_add_u32 s{S_F3}, s{S_F3}, {WS_C + 896*256}")
SP(f"s_mul_i32 s{S_T1}, s{S_T1}, {14*4096}")
SP(f"s_add_u32 s{S_T1}, s{S_T1}, {WS_WF}")
SP(f"v_add_u32 v20, s{S_T1}, {v(V_L16)}")
SP(f"v_lshrrev_b32 v6, 3, {v(V_LANE)}")
SP(f"v_and_b32 v7, 6, v6")
SP(f"v_and_b32 v5, 7, {v(V_LANE)}")
SP(f"v_xor_b32 v7, v7, v5")
SP(f"v_mul_u32_u24 v6, 896, v6")
SP(f"v_lshl_add_u32 v6, v7, 4, v6")
SP(f"s_mul_i32 s{S_T0}, s{S_T2}, {448*896}")
SP(f"s_lshl_b32 s{S_T1}, s{S_DB}, 7")
SP(f"s_add_u32 s{S_T0}, s{S_T0}, s{S_T1}")
SP(f"v_add_u32 v48, s{S_T0}, v6")
for k in range(1, 4):
    SP(f"v_add_u32 {v(48+k)}, {k*(7168-1024)}, v48")
SP(f"s_lshl_b32 s{S_R2}, s{S_V}, 14")
SP(f"s_add_u32 s{S_R2}, s{S_R2}, 4096")
for i in range(4):
    SP(f"s_lshl2_add_u32 s{S_HR+i}, s{S_V}, {i}")
    SP(f"s_min_u32 s{S_HR+i}, s{S_HR+i}, 13")
    SP(f"s_lshl1_add_u32 s{S_T0}, s{S_DB}, s{S_HR+i}")
    SP(f"s_sub_u32 s{S_T1}, s{S_T0}, 14")
    SP(f"s_cmp_ge_u32 s{S_T0}, 14")
    SP(f"s_cselect_b32 s{S_T0}, s{S_T1}, s{S_T0}")
    SP(f"s_mul_i32 s{S_WOFF}, s{S_T0}, {32*896}")
    SP(f"s_add_u32 m0, s{S_R2}, {4096*i}")
    SP(f"s_lshl_b32 s{S_HR+i}, s{S_HR+i}, 12")
    for k in range(4):
        of = f" offset:{1024*k}" if k else ""
        SP(f"buffer_load_dwordx4 {v(48+k)}, {srd(SRD_WD)}, s{S_WOFF} offen{of} lds", tok=f"sw{i}")
SP(f"v_lshrrev_b32 v4, 4, {v(V_LANE)}")
SP(f"v_lshrrev_b32 v6, 1, v4")
SP(f"v_lshlrev_b32 v6, 4, v6")
SP(f"v_and_b32 v7, 1, v4")
SP(f"v_lshl_add_u32 v6, v7, 2, v6")
SP(f"v_bfe_u32 v7, {v(V_LANE)}, 2, 2")
SP(f"v_add_u32 v6, v6, v7")
SP(f"v_bfe_u32 v7, v6, 1, 2")
SP(f"v_lshlrev_b32 v6, 7, v6")
SP(f"v_and_b32 v5, 3, {v(V_LANE)}")
SP(f"v_lshl_add_u32 v6, v5, 3, v6")
for rt in range(4):
    SP(f"v_xor_b32 v5, {rt}, v7")
    SP(f"v_lshl_add_u32 v5, v5, 5, v6")
    SP(f"v_add_u32 {v(52+rt)}, s{S_R2}, v5")
for i in range(4):
    SP.wait(f"sw{i}")
    if i in (0, 3): sps()
    for rt in range(4):
        for h in range(2):
            SP(f"ds_read_b64_tr_b16 {v(64+16*i+4*rt+2*h,2)}, {v(52+rt)} offset:{4096*i+1024*h}")
    for rt in range(4):
        SP(f"buffer_store_dwordx4 {v(64+16*i+4*rt,4)}, v20, {srd(SRD_WS)}, s{S_HR+i} offen offset:{1024*rt} sc1")
SP("s_waitcnt vmcnt(0)")
addcnt(SP, S_F3)
sps()
SP("L_sp_nowf:")
sps()
SP("s_mov_b64 vcc, 3")
spin(SP, "L_sp_c", "L_sp_d", poll_issue(10, 7), 7, sleep=int(OPT.get('spsleep', 2)), exp=f"s{S_E28}")
SP("L_sp_d:")
sps()
for k in range(14):
    SP(f"s_mov_b32 s{S_T0}, {k*4*PROW}")
    SP(f"buffer_load_dwordx4 {v(64+4*k,4)}, v11, {srd(SRD_WS)}, s{S_T0} offen sc1")
SS = 16
for j in range(8):
    SP(f"v_mov_b32 {v(SS+j)}, 0")
for k in range(14):
    for j in range(4):
        SP(f"v_dot2c_f32_bf16 {v(SS+j)}, {v(64+4*k+j)}, v14")
    for j in range(4):
        SP(f"v_dot2c_f32_bf16 {v(SS+4+j)}, {v(64+4*k+j)}, {v(64+4*k+j)}")
for o in (0, 4):
    SP(f"v_permlane32_swap_b32 {v(SS+o)}, {v(SS+o+2)}")
    SP(f"v_permlane32_swap_b32 {v(SS+o+1)}, {v(SS+o+3)}")
for o in (0, 4):
    SP(f"v_add_f32 {v(SS+o)}, {v(SS+o)}, {v(SS+o+2)}")
    SP(f"v_add_f32 {v(SS+o+1)}, {v(SS+o+1)}, {v(SS+o+3)}")
for o in (0, 4):
    SP(f"v_permlane16_swap_b32 {v(SS+o)}, {v(SS+o+1)}")
SP(f"v_add_f32 {v(SS)}, {v(SS)}, {v(SS+1)}")
SP(f"v_add_f32 {v(SS+1)}, {v(SS+4)}, {v(SS+5)}")
sps()
SP(f"ds_write_b64 v12, {v(SS,2)}")
SP("s_waitcnt lgkmcnt(0)")
SP("s_barrier")
SP(f"s_cmp_lg_u32 s{S_V}, 0")
SP("s_cbranch_scc1 L_fin")
t = 24
for w in range(4):
    SP(f"ds_read_b64 {v(t+2*w,2)}, v13 offset:{512*w}")
SP(f"s_lshl_b32 s{S_T0}, s{S_TB}, 1")
SP(f"s_add_u32 s{S_T0}, s{S_T0}, s{S_FH}")
SP(f"s_lshl_b32 s{S_T0}, s{S_T0}, 9")
SP(f"s_add_u32 s{S_T0}, s{S_T0}, {WS_S2}")
SP(f"v_pk_add_f32 {v(t,2)}, {v(t,2)}, {v(t+2,2)}")
SP(f"v_pk_add_f32 {v(t+4,2)}, {v(t+4,2)}, {v(t+6,2)}")
SP(f"v_pk_add_f32 {v(t,2)}, {v(t,2)}, {v(t+4,2)}")
SP(f"v_mul_f32 {v(t)}, s{S_K0}, {v(t)}")
SP(f"v_mul_f32 {v(t+1)}, s{S_K0}, {v(t+1)}")
SP(f"v_fma_f32 {v(t+1)}, -{v(t)}, {v(t)}, {v(t+1)}")
SP(f"v_max_f32 {v(t+1)}, 0, {v(t+1)}")
round_bf16(SP, t + 1, t + 1)
SP(f"v_add_f32 {v(t+1)}, {f32(1e-5)}, {v(t+1)}")
round_bf16(SP, t + 1, t + 1)
SP(f"v_sqrt_f32 {v(t+1)}, {v(t+1)}")
SP(f"v_cvt_pk_bf16_f32 {v(t)}, {v(t+1)}, -{v(t)}")
SP(f"v_mov_b32 {v(t+1)}, s{S_NONCE}")
for r_ in range(7):
    SP(f"buffer_store_dwordx2 {v(t,2)}, v13, {srd(SRD_WS)}, s{S_T0} offen sc1")
    SP(f"s_add_u32 s{S_T0}, s{S_T0}, {S2REP}")
sps()
SP(f"s_cmp_lg_u32 s{S_W}, 255")
SP("s_cbranch_scc1 L_fin")
SP(f"v_lshlrev_b32 v4, 25, {v(V_LANE)}")
SP(f"buffer_store_dword {v(t+1)}, v4, {srd(SRD_WS)}, 0 offen sc1")
SP("s_branch L_fin")


def b_read(J, ks):
    q = sub()
    b = BF + 4 * (ks % NBF)
    q(f"ds_read2st64_b32 {v(b,2)}, {v(V_BR)} offset0:{8*ks} offset1:{8*ks+1}")
    q(f"ds_read2st64_b32 {v(b+2,2)}, {v(V_BR)} offset0:{8*ks+2} offset1:{8*ks+3}", tok=f"b{J}_{ks}")
    return q.ins


def g1_gaps(J, extra_after=None):
    m = sub()
    g0 = GACC[J & 1]
    for ks in range(28):
        for mm in range(2):
            d = g0 + 16 * mm
            c = "0" if ks == 0 else v(d, 16)
            m(f"v_mfma_f32_32x32x16_bf16 {v(d,16)}, {acc(wfrag(mm,ks),4)}, {v(BF+4*(ks%NBF),4)}, {c}")
    for mm in range(2):
        d = g0 + 16 * mm
        m(f"v_mfma_f32_32x32x16_bf16 {v(d,16)}, {acc(A_CS[mm],4)}, {v(MB,4)}, {v(d,16)}")
    g = Gaps(m.ins, 6)
    for ks in range(28):
        k2 = ks + NBF - 1
        if k2 < 28:
            r = b_read(J, k2)
            g.at(2 * ks, [r[0]])
            g.at(2 * ks + 1, [r[1]])
        if ks % 3 == 2 and ks + 1 < 28:
            w = sub()
            w.wait(f"b{J}_{min(ks+3,27)}")
            g.at(2 * ks + 1, w.ins)
    return g


def next_tile_reads(g, J, delta, first=42):
    q = sub()
    q(f"v_add_u32 {v(V_BR)}, {delta}, {v(V_BR)}")
    g.at(first, q.ins)
    for ks in range(NBF - 1):
        old = max(k for k in range(28) if k % NBF == ks)
        r = b_read(J, ks)
        at = max(2 * old + 1, first + 1)
        g.at(at, r[:1])
        g.at(min(at + 1, 57), r[1:])


def g1_epi(J):
    q = sub()
    g = GACC[J & 1]
    kc = KC_[J & 1]
    T = EPT
    for j0 in range(0, 16, 4):
        js = range(j0, j0 + 4)
        for j in js:
            q(f"v_mul_f32 {v(T+j-j0)}, {v(g+j)}, {v(g+j)}")
        for j in js:
            q(f"v_fma_f32 {v(T+j-j0)}, {v(T+j-j0)}, {v(kc+1)}, {v(kc)}")
        for j in js:
            q(f"v_mul_f32 {v(T+j-j0)}, {v(T+j-j0)}, {v(g+j)}")
        for j in js:
            q(f"v_exp_f32 {v(T+j-j0)}, {v(T+j-j0)}")
            q(f"v_mul_f32 {v(T+4+j-j0)}, {v(g+j)}, {v(g+16+j)}")
        for j in js:
            q(f"v_fma_f32 {v(T+j-j0)}, {v(T+j-j0)}, {v(kc+2)}, {v(kc+2)}")
        for j in js:
            q(f"v_rcp_f32 {v(T+j-j0)}, {v(T+j-j0)}")
        for j in js:
            q(f"v_mul_f32 {v(T+4+j-j0)}, {v(T+4+j-j0)}, {v(T+j-j0)}")
        q(f"v_cvt_pk_bf16_f32 {v(HP+(j0//2)%4)}, {v(T+4)}, {v(T+5)}")
        q(f"v_cvt_pk_bf16_f32 {v(HP+(j0//2)%4+1)}, {v(T+6)}, {v(T+7)}")
        if j0 in (4, 12):
            q2 = j0 // 8
            q(f"buffer_store_dwordx4 {v(HP,4)}, {v(V_HST)}, {srd(SRD_WS)}, 0 offen offset:{512*q2} sc1", tok=f"H{J}")
    q(f"v_add_u32 {v(V_HST)}, {2*57344}, {v(V_HST)}")
    return q.ins


def flag3(J):
    q = sub()
    q.wait(f"H{J}")
    addcnt(q, S_F3)
    q(f"s_add_u32 s{S_F3}, s{S_F3}, 2048")
    return q.ins


WDREG = {}
for i in range(4):
    for rt in range(4):
        WDREG[i, rt] = v(WDV + 16 * i + 4 * rt, 4)
        WDREG[10, rt] = acc(240 + 4 * rt, 4)
        WDREG[11, rt] = v([176, 180, 184, 56][rt], 4)
        WDREG[12, rt] = acc(4 * rt, 4)
        WDREG[13, rt] = acc(16 + 4 * rt, 4)
for i in range(6):
    for rt in range(4):
        WDREG[4 + i, rt] = acc(128 + 16 * i + 4 * rt, 4)
KORD = [0, 1, 2, 3, 10, 11, 12, 13, 4, 5, 6, 7, 8, 9]


def wdr(ft, rt):
    return WDREG[ft, rt]


def wd_load(ft):
    q = sub()
    q(f"s_mov_b32 s{S_WOFF}, {ft*4096}")
    for k in range(4):
        of = f" offset:{1024*k}" if k else ""
        q(f"buffer_load_dwordx4 {wdr(ft,k)}, {v(V_WF)}, {srd(SRD_WS)}, s{S_WOFF} offen{of} sc1")
    return q.ins


def wd_dma(ft):
    q = sub()
    sbase, slot = (S_FW, ft - 4) if ft < 6 else (S_R2, ft - 6)
    q(f"s_add_u32 m0, s{sbase}, {slot*4096}")
    q(f"s_mov_b32 s{S_WOFF}, {ft*4096}")
    for k in range(4):
        of = f" offset:{1024*k}" if k else ""
        q(f"buffer_load_dwordx4 {v(V_WF)}, {srd(SRD_WS)}, s{S_WOFF} offen{of} sc1 lds", tok=f"wd{ft}")
    return q.ins


def wd_read(ft):
    q = sub()
    va, slot = (V_LF, ft - 4) if ft < 6 else (V_LR, ft - 6)
    for rt in range(4):
        q(f"ds_read_b128 {wdr(ft,rt)}, {v(va)} offset:{4096*slot+1024*rt}")
    return q.ins


def res_read(J):
    q = sub()
    q(f"ds_read2st64_b32 {v(RESR[J],2)}, {v(V_RES)} offset0:0 offset1:1", tok=f"res{J}")
    q(f"v_add_u32 {v(V_RES)}, {128 if J % 2 == 0 else L_ACT[1]-128}, {v(V_RES)}")
    return q.ins


ad = sub()
ad(f"v_lshrrev_b32 v4, 4, v0")
ad(f"v_and_b32 v5, 15, v0")
ad(f"v_lshlrev_b32 v6, 9, v5")
ad(f"v_lshl_add_u32 v6, v4, 2, v6")
ad(f"s_lshl_b32 s{S_T0}, s{S_DB}, 13")
ad(f"s_lshl_b32 s{S_T1}, s{S_FH}, 6")
ad(f"s_add_u32 s{S_T0}, s{S_T0}, s{S_T1}")
ad(f"v_add_u32 {v(V_RES)}, s{S_T0}, v6")
ad(f"v_lshrrev_b32 v6, 2, v4")
ad(f"v_and_b32 v7, 3, v4")
ad(f"v_lshl_add_u32 v6, v6, 4, v7")
ad(f"v_mul_u32_u24 v6, 896, v6")
ad(f"v_lshl_add_u32 v6, v5, 3, v6")
ad(f"s_lshr_b32 s{S_T0}, s{S_TB}, 2")
ad(f"s_lshl_b32 s{S_T0}, s{S_T0}, 8")
ad(f"s_add_u32 s{S_T0}, s{S_T0}, s{S_T1}")
ad(f"s_and_b32 s{S_T1}, s{S_TB}, 3")
ad(f"s_lshl_b32 s{S_T1}, s{S_T1}, 2")
ad(f"s_add_u32 s{S_T0}, s{S_T0}, s{S_T1}")
ad(f"s_mul_i32 s{S_T0}, s{S_T0}, 896")
ad(f"s_lshl_b32 s{S_T1}, s{S_DB}, 7")
ad(f"s_add_u32 s{S_T0}, s{S_T0}, s{S_T1}")
ad(f"v_add_u32 {v(V_OST)}, s{S_T0}, v6")
ad(f"v_mul_u32_u24 v6, 272, v5")
ad(f"v_lshl_add_u32 v6, v4, 4, v6")
ad(f"v_add_u32 {v(V_RR)}, {L_R}, v6")
ad(f"v_lshrrev_b32 v4, 4, {v(V_LANE)}")
ad(f"v_mul_u32_u24 v6, 272, v4")
ad(f"v_lshl_add_u32 v6, v5, 4, v6")
ad(f"s_mul_i32 s{S_T0}, s{S_V}, 4352")
ad(f"s_add_u32 s{S_T0}, s{S_T0}, {L_R}")
ad(f"v_add_u32 {v(V_RW)}, s{S_T0}, v6")
flg_lanes(ad, 2)
ad(f"v_add_u32 {v(V_A)}, {PGEN}, {v(V_A)}")
ad(f"v_add_u32 {v(V_A+1)}, {PGEN}, {v(V_A+1)}")

for i in range(1, 4):
    P(f"v_mov_b32 {v(MB+i)}, 0")
    P(f"v_accvgpr_write_b32 {acc(A_CS[0]+i)}, 0")
    P(f"v_accvgpr_write_b32 {acc(A_CS[1]+i)}, 0")
P.wait("act0")
P("s_waitcnt lgkmcnt(0)")
P("s_barrier")
stamp("gemm1 start")
for ks in range(NBF - 1):
    P.add(b_read(0, ks))

def hreg(J, ft):
    n = KORD.index(ft)
    if J in (0, 3):
        return acc(32 + 4 * n, 4)
    if J == 1:
        return v(64 + 4 * n if n < 8 else 128 + 4 * (n - 8), 4)
    return v(96 + 4 * n if n < 8 else 152 + 4 * (n - 8), 4)


def h_loads(J):
    o = []
    for s_ in KORD:
        q = sub()
        of = " offset:1024" if s_ % 2 else ""
        q(f"buffer_load_dwordx4 {hreg(J,s_)}, {v(V_HL)}, {srd(SRD_WS)}, s{S_HR+s_//2} offen{of} sc1")
        o.append(q.ins)
    if J < 3:
        q = sub()
        q(f"v_add_u32 {v(V_HL)}, {2*57344}, {v(V_HL)}")
        o[-1] += q.ins
    return o


def p3_next():
    q = sub()
    q(f"v_add_u32 {v(V_P3)}, 2048, {v(V_P3)}")
    return q.ins


g = g1_gaps(0)
g.at(0, poll_check(V_F4, 25))
pin_vm(g, 0, [wd_load(0), wd_load(1), wd_load(2), wd_load(3)], 2.3)
t4 = w_tr(6, 0, 8, "t4") + w_tr(6, 1, 12, "t4")
g.at(17, waitq("w4"))
pin_spread(g, 17, t4, per=2)
e = g.fill(ad.ins, start=0)
assert e < 24, e
g.at(28, waitq("t4") + cs_mfma(24, 28))
cf = sub()
for m in range(2):
    round_bf16(cf, 54, CSA[m])
    cf(f"v_sub_f32 v55, {v(CSA[m])}, v54")
    cf(f"v_cvt_pk_bf16_f32 v54, v54, v55")
    cf(f"v_accvgpr_write_b32 {acc(A_CS[m])}, v54")
g.fill(cf.ins, start=32, end=50)
g.at(int(OPT.get("pb1", 21)), poll_issue(V_F2, 23))
g.at(int(OPT.get("pb2", 37)), poll_issue(V_F2, 25))
g.at(int(OPT.get("st0", 36)), st_issue(0))
pin_vm(g, 38, [wd_dma(4), wd_dma(5)], 2.3)
g.at(53, stq("t0 pre st") + st_check(0) + stq("t0 post st"))
g.fill(st_final(0), start=53, end=55)
g.at(57, stq("t0 pre pB") + poll_check2(V_F2, 23, 25, "3", f"s{S_E28}") + stq("t0 post pB"))
next_tile_reads(g, 1, 128)
P.add(g.out())
stamp("tile0")
g = g1_gaps(1)
e = pin_vm(g, 0, act_dma(1)[:2] + [st_issue(1)] + act_dma(1)[2:], 2)
pin_vm(g, e + 1, [wd_load(10)], 3)
g.at(43, res_read(0))
g.at(45, res_read(1))
g.at(40, st_check(1))
g.fill(st_final(1), start=41, end=54)
bq = sub()
bq.wait("act1")
bq.wait("res1")
bq("s_barrier")
BB = int(OPT.get("bb", 52))
g.at(BB, stq("t1 pre bar") + bq.ins + stq("t1 post bar"))
next_tile_reads(g, 2, L_ACT[1] - 128, first=BB)
e = g.fill(g1_epi(0), start=3)
print("tile 1: epilogue ends at gap", e, "tail", len(g.tail))
P.add(g.out())
stamp("tile1")
g = g1_gaps(2)
pin_vm(g, 0, [wd_dma(6), wd_dma(7), st_issue(2), wd_dma(8), wd_dma(9), wd_load(11), st_issue(3)], 2.5)
g.at(24, flag3(0))
g.at(49, st_check(2))
g.fill(st_final(2), start=50, end=54)
g.at(56, poll_issue(V_P3, 7))
next_tile_reads(g, 3, 128)
e = g.fill(g1_epi(1), start=3)
print("tile 2: epilogue ends at gap", e, "tail", len(g.tail))
P.add(g.out())
stamp("tile2")
g = g1_gaps(3)
T3S = float(OPT.get("t3s", 2.4))
e = pin_vm(g, 4, [wd_load(12), wd_load(13)], T3S)
g.at(int(OPT.get("f1", 21)), flag3(1))
g.at(48, st_check(3))
g.fill(st_final(3), start=49, end=54)
g.at(e - 1, stq("t3 pre p0") + poll_check(V_P3, 7) + stq("t3 post p0") + p3_next())
pin_vm(g, e, h_loads(0), T3S)
g.at(int(OPT.get("p1", 47)), poll_issue(V_P3, 7))
g.at(52, res_read(2))
g.at(54, res_read(3))
e = g.fill(g1_epi(2), start=2)
print("tile 3: epilogue ends at gap", e, "tail", len(g.tail))
P.add(g.out())
stamp("tile3")
P.add(waitq("wd9") + wd_read(4) + wd_read(5))
ep = g1_epi(3)
h1 = h_loads(1)
NE = int(OPT.get("ne", 3))
P.add(sprinkle(ep, [(int(OPT.get("f2", 120)), flag3(2))] + [(68, poll_check(V_P3, 7) + p3_next())] + [(69 + 22 * i, h1[i]) for i in range(NE)]))
stamp("epi3")

OA = [8, 48]
OA = [224, 96]
RT = 176


def g2_mfma(J):
    m = sub()
    for ft in KORD:
        for rt in range(4):
            d = acc(OA[J & 1] + 4 * rt, 4)
            c = "0" if ft == 0 else d
            m(f"v_mfma_f32_16x16x32_bf16 {d}, {wdr(ft,rt)}, {hreg(J,ft)}, {c}")
    return m.ins


RTMP = [28, 32, 36, 12]


def red_write(J):
    q = sub()
    for rt in range(4):
        q(f"ds_write_b128 {v(V_RW)}, {acc(OA[J&1]+4*rt,4)} offset:{(J&1)*R_SZ + rt*1088}")
    return q.ins


def red_bar():
    q = sub()
    q("s_waitcnt lgkmcnt(0)")
    q("s_barrier")
    return q.ins


def red_read(J):
    q = sub()
    for w in range(4):
        q(f"ds_read_b128 {v(RTMP[w],4)}, {v(V_RR)} offset:{(J&1)*R_SZ + w*4352}")
    return q.ins


def red_fin(J):
    q = sub()
    a, b, c, d = RTMP
    for i in range(2):
        q(f"v_lshlrev_b32 {v(16+2*i)}, 16, {v(RESR[J]+i)}")
        q(f"v_and_b32 {v(17+2*i)}, 0xffff0000, {v(RESR[J]+i)}")
    for i in range(4):
        q(f"v_add_f32 {v(a+i)}, {v(a+i)}, {v(b+i)}")
    for i in range(4):
        q(f"v_add_f32 {v(c+i)}, {v(c+i)}, {v(d+i)}")
    for i in range(4):
        q(f"v_add_f32 {v(a+i)}, {v(a+i)}, {v(16+i)}")
    for i in range(4):
        q(f"v_add_f32 {v(a+i)}, {v(a+i)}, {v(c+i)}")
    for i in range(2):
        q(f"v_cvt_pk_bf16_f32 {v(20+i)}, {v(a+2*i)}, {v(a+2*i+1)}")
    q(f"s_mov_b32 s{S_T0}, {(1024*(J>>1) + 128*(J&1))*896}")
    q(f"buffer_store_dwordx2 v[20:21], {v(V_OST)}, {srd(SRD_OUT)}, s{S_T0} offen {OPT.get('ost', '').replace('_', ' ')}")
    return q.ins


for J in range(4):
    g = Gaps(g2_mfma(J), 2)
    if J > 0:
        pin_spread(g, 4, red_write(J - 1), per=1)
        g.at(16, red_bar())
        pin_spread(g, 17, red_read(J - 1), per=1)
        g.fill(red_fin(J - 1), start=28)
    if J == 0:
        pin_vm(g, 0, h1[NE:], float(OPT.get("hs1", 4)))
        for i, x in enumerate(wd_read(6) + wd_read(7) + wd_read(8) + wd_read(9)):
            g.at(1 + 2 * i, [x])
        g.at(int(OPT.get("p2a", 18)), poll_issue(V_P3, 7))
        g.at(int(OPT.get("p2b", 36)), poll_issue(V_P3, 23))
        g.at(int(OPT.get("f3", 42)), flag3(3))
        bq = sub()
        bq.wait("res3")
        bq("s_barrier")
        g.at(52, bq.ins)
        g.at(55, poll_check2(V_P3, 7, 23, "1", f"s{S_E14}") + p3_next())
    if J == 1:
        pin_vm(g, 0, h_loads(2), float(OPT.get("hs", 3.5)))
        g.at(int(OPT.get("p3a", 14)), poll_issue(V_P3, 7))
        g.at(int(OPT.get("p3b", 32)), poll_issue(V_P3, 23))
        g.at(55, poll_check2(V_P3, 7, 23, "1", f"s{S_E14}"))
    if J == 2:
        pin_vm(g, 0, h_loads(3), float(OPT.get("hs3", 2)))
    P.add(g.out())
    stamp(f"g2 tile{J}")
P.add(red_write(3))
P.add(red_bar())
P.add(red_read(3))
P.add(red_fin(3))
stamp("end")

P("L_fin:")
if STAMPS:
    P(f"s_lshl_b32 s{S_T0}, s{S_W}, 2")
    P(f"s_add_u32 s{S_T0}, s{S_T0}, s{S_V}")
    P(f"s_lshl_b32 s{S_T0}, s{S_T0}, 8")
    P(f"s_add_u32 s{S_T0}, s{S_T0}, {WS_DBG + 0x800000}")
    P(f"v_lshlrev_b32 v4, 2, v1")
    P(f"buffer_store_dword v255, v4, {srd(SRD_WS)}, s{S_T0} offen")
P("L_end:")
P("s_endpgm")

res = finalize(P.ins, verbose=True) + finalize(TAIL.ins) + finalize(SP.ins)
if "report" in OPT:
    report_waits(finalize(P.ins))
launch = f"; @launch kernel={KN} grid" if "list" in OPT or STAMPS else "; @launch grid"
hdr = f"""; Fused pre-LN S4D conv + GEGLU FFN, one persistent launch (generated by my own script)
{launch}=(256,1,1) block=(256,1,1) lds={LDS_SIZE}
.amdgcn_target "amdgcn-amd-amdhsa--gfx950"
.text
.globl {KN}
.p2align 8
.type {KN},@function
{KN}:
"""
ftr = f"""
.p2align 8
.fill 64, 4, 0xbf800000
L_codeend:
.section .rodata,"a"
.p2align 6
.amdhsa_kernel {KN}
  .amdhsa_next_free_vgpr 512
  .amdhsa_next_free_sgpr 102
  .amdhsa_accum_offset 256
  .amdhsa_group_segment_fixed_size 0
  .amdhsa_kernarg_size 112
  .amdhsa_user_sgpr_count 2
  .amdhsa_user_sgpr_kernarg_segment_ptr 1
  .amdhsa_system_sgpr_workgroup_id_x 1
.end_amdhsa_kernel
"""
open(OUTF, "w").write(hdr + text_of(res) + ftr)
src = open(__file__).read()
a = src.index("# ---------------- workspace layout")
b = src.index("# ---------------- LDS layout")
open("layout.py", "w").write(src[a:b] + "\nSTAMP_NAMES = " + repr(stamp_names) + "\nSPIN_NAMES = " + repr(spin_names) + "\n")
```

```python
import sys, math, struct
from asmgen import *

NAME = "sequential_preLN__ssm_conv_s4d__geglu_ffn__prompt"
KN = NAME + "_kernel"
OPT = {}
for a in sys.argv[1:]:
    k, _, val = a.partition("=")
    OPT[k] = val if val else True
STAMPS = "stamps" in OPT
OUTF = OPT.get("out", "k10.s")
if "wdearly" not in OPT:
    OPT["wdlate"] = True


def f32(x):
    return "0x%08x" % struct.unpack("<I", struct.pack("<f", x))[0]


FS = 4
FREP = 0x9000
WS_EPOCH = 0
WS_F1 = 0x8000
WS_S2 = 0x54000
S2REP = 0x5000
WS_C = 0x80000
WS_UX = 0xD0000
WS_P = WS_UX + 256 * 14336
PROW = 4352
PGEN = 224 * PROW
WS_H = WS_P + 2 * PGEN
WS_WF = WS_H + 16 * 4 * 56 * 2048
WS_END = WS_WF + 392 * 4096
WS_DBG = 0x1000000
WS_SIZE = 0x2000000
LAYOUT = 5

CS = 4160
TAB_W = 14592
TAB_ROW = 272
L_KC = 58368
L_UX = 75008
L_EX = 0
L_RING = 98304
L_ACT = [0, 65536]
L_F = 131072
L_R = 65536
R_SZ = 17408
LDS_SIZE = 163840

S_W = 2
S_V = 4
S_T0, S_T1, S_T2, S_T3 = 5, 6, 7, 3
SRD_X, SRD_WS, SRD_WG, SRD_WU, SRD_WD, SRD_OUT = 8, 12, 16, 20, 24, 28
S_NONCE = 32
S_CNT = 33
S_EX = 34
S_LDT, S_DSK = 64, 65
S_TB, S_FB, S_FH, S_DB = 66, 67, 68, 69
S_A, S_B, S_C, S_D = 70, 72, 74, 76
S_RING = 78
S_WOFF = 79
S_K0 = 80
S_TAB = 81
S_F3 = 82
S_F1, S_F2 = 83, 84
S_M255 = 86
S_FW, S_R2 = 88, 89
S_ACTW = 90
S_UXO = 91
S_Z = 95
S_PFB = 88
S_HR = 36
S_E28, S_E14, S_CI = 46, 47, 85
S_UXM = 92
S_REP = 94
S_PERM = 93
S_STAMP = 96


def srd(n):
    return f"s[{n}:{n+3}]"


def v(n, w=1):
    return f"v{n}" if w == 1 else f"v[{n}:{n+w-1}]"


def acc(n, w=1):
    return f"a{n}" if w == 1 else f"a[{n}:{n+w-1}]"


P = Prog()
TAIL = Prog()
nstamp = [0]
stamp_names = []
spin_names = []
LITE = ("start", "conv start", "genA stored", "gemm1 start", "tile3", "end")
if "dbgout" in OPT:
    LITE = ("start", "x arrived", "ln1 done", "kgen r1", "conv start", "genA stored", "gemm1 start", "tile1", "tile3", "end")


def stamp(name, p=None):
    p = P if p is None else p
    p(f"; @ {name}")
    if STAMPS and ("lite" not in OPT or name in LITE):
        k = nstamp[0]
        assert k < 32
        p(f"s_memrealtime s[{S_STAMP}:{S_STAMP+1}]")
        p(f"s_memtime s[{S_STAMP+2}:{S_STAMP+3}]")
        p("s_waitcnt lgkmcnt(0)")
        p(f"v_writelane_b32 v255, s{S_STAMP}, {k}")
        p(f"v_writelane_b32 v255, s{S_STAMP+2}, {32+k}")
        nstamp[0] += 1
        stamp_names.append(name)


def stq(name):
    q = sub()
    if "dbg" in OPT:
        stamp(name, q)
    return q.ins


lblc = [0]


def label(prefix):
    lblc[0] += 1
    return f"L_{prefix}_{lblc[0]}"


def poll_issue(vaddr, vtmp):
    q = sub()
    q(f"v_mov_b32 {v(vtmp)}, 0")
    q(f"buffer_atomic_add {v(vtmp)}, {v(vaddr)}, {srd(SRD_WS)}, 0 offen sc0")
    return q.ins


def spin(t, name, done, reissue, vtag, sleep=2, exp=None):
    t(f"{name}:")
    t(f"s_mov_b32 s{S_CNT}, 0")
    t(f"{name}_l:")
    t("s_mov_b64 exec, vcc")
    t(f"s_sleep {sleep}")
    t.add(reissue)
    t("s_waitcnt vmcnt(0)")
    t(f"v_cmp_ne_u32 vcc, {exp or f's{S_NONCE}'}, {v(vtag)}")
    t("s_mov_b64 exec, -1")
    if STAMPS and "lite" in OPT:
        spin_names.append(name)
        t(f"s_add_u32 s{S_STAMP}, s{S_CNT}, 1")
        t(f"v_writelane_b32 v255, s{S_STAMP}, {10+len(spin_names)-1}")
    t(f"s_cbranch_vccz {done}")
    t(f"s_add_u32 s{S_CNT}, s{S_CNT}, 1")
    t(f"s_cmp_lt_u32 s{S_CNT}, 0x40000")
    t(f"s_cbranch_scc1 {name}_l")
    t(f"s_branch {done}")


def poll_check(vaddr, vtmp, mask=None):
    q = sub()
    slow, done = label("slow"), label("pdone")
    exp = f"s{S_NONCE}" if vaddr == V_F1 else (f"s{S_E28}" if vaddr in (V_F2, 20) else f"s{S_E14}")
    q(f"v_cmp_ne_u32 vcc, {exp}, {v(vtmp)}")
    if vaddr == V_F1:
        q(f"s_cbranch_vccnz {slow}")
    else:
        mask = mask or ("3" if vaddr == V_F2 else "1")
        q(f"s_and_b64 vcc, vcc, {mask}")
        q(f"s_cbranch_scc1 {slow}")
    q(f"{done}:")
    spin(TAIL, slow, done, poll_issue(vaddr, vtmp), vtmp, exp=exp, sleep=1)
    return q.ins


def poll_check2(vaddr, v1, v2, mask, exp):
    q = sub()
    slow, done = label("slow"), label("pdone")
    q(f"v_cmp_ne_u32 vcc, {exp}, {v(v1)}")
    q(f"s_and_b64 vcc, vcc, {mask}")
    q(f"s_cbranch_scc0 {done}")
    q.cond(True)
    q(f"v_cmp_ne_u32 vcc, {exp}, {v(v2)}")
    q(f"s_and_b64 vcc, vcc, {mask}")
    q(f"s_cbranch_scc1 {slow}")
    q.cond(False)
    q(f"{done}:")
    spin(TAIL, slow, done, poll_issue(vaddr, v1), v1, exp=exp, sleep=1)
    return q.ins


def setflag(p, soff):
    p(f"buffer_atomic_swap {v(V_NONCE)}, {v(V_FLG)}, {srd(SRD_WS)}, s{soff} offen")


def addcnt(p, soff):
    p(f"buffer_atomic_add {v(V_NONCE)}, {v(V_FLG)}, {srd(SRD_WS)}, s{soff} offen")


def flg_lanes(p, n, sh=8, t1=4):
    p(f"v_lshrrev_b32 {v(t1)}, {n.bit_length()-1}, {v(V_LANE)}")
    p(f"v_min_u32 {v(t1)}, 1, {v(t1)}")
    p(f"v_lshlrev_b32 {v(t1)}, 30, {v(t1)}")
    p(f"v_lshl_add_u32 {v(V_FLG)}, {v(V_LANE)}, {sh}, {v(t1)}")


def waitq(tok):
    q = sub()
    q.wait(tok)
    return q.ins


def cmul(p, z, x, y):
    p(f"v_pk_mul_f32 {v(z,2)}, {v(x,2)}, {v(y,2)} op_sel:[0,0] op_sel_hi:[0,1]")
    p(f"v_pk_fma_f32 {v(z,2)}, {v(x,2)}, {v(y,2)}, {v(z,2)} op_sel:[1,1,0] op_sel_hi:[1,0,1] neg_lo:[1,0,0]")


def round_bf16(p, dst, src):
    p(f"v_cvt_pk_bf16_f32 {v(dst)}, {v(src)}, {v(src)}")
    p(f"v_and_b32 {v(dst)}, 0xffff0000, {v(dst)}")


V_LANE, V_NONCE, V_L16 = 1, 2, 3
V_FLG = 8
V_W = 9
V_TRA = 13
V_TA, V_TB, V_TW = 14, 15, 16
GA = 17
V_F1, V_UXL = 26, 27
V_KA = 28
V_UA = 32
V_EU, V_EXP, V_EXW, V_EXR, V_PST = 36, 37, 38, 39, 40
V_GW, V_GX, V_GR, V_S3 = 36, 37, 38, 39
V_EU1 = 41
V_DT = 42
V_F2 = 43
PR = 44
V_PF = 254

LOG2E = 1.4426950408889634

P(f"s_cmp_ge_u32 s{S_W}, 256")
P("s_cbranch_scc1 L_end")
P(f"s_load_dwordx16 s[36:51], s[0:1], 0")
P(f"s_load_dwordx8 s[52:59], s[0:1], 64")
P(f"s_load_dwordx4 s[60:63], s[0:1], 96")
if "nocpf" not in OPT:
    P(f"s_getpc_b64 s[{S_B}:{S_B+1}]")
    P("L_pc:")
    P(f"s_bfe_u32 s{S_T2}, s{S_W}, 0x30003")
    P(f"s_mul_i32 s{S_T2}, s{S_T2}, ((L_codeend-L_pc)/1024)*128")
    P(f"v_cmp_gt_u32 vcc, (L_codeend-L_pc)/1024, v0")
    P(f"s_add_u32 s{S_B}, s{S_B}, s{S_T2}")
    P(f"s_addc_u32 s{S_B+1}, s{S_B+1}, 0")
    P(f"v_lshlrev_b32 v6, 7, v0")
    P(f"s_and_saveexec_b64 s[{S_A}:{S_A+1}], vcc")
    P("s_cbranch_execz L_nocpf")
    P.cond(True)
    P(f"v_mov_b32 v7, s{S_B+1}")
    P(f"v_add_co_u32 v6, vcc, s{S_B}, v6")
    P(f"v_addc_co_u32 v7, vcc, 0, v7, vcc")
    P(f"global_load_dword v251, v[6:7], off")
    P.cond(False)
    P("L_nocpf:")
    P("s_mov_b64 exec, -1")
if STAMPS:
    P("v_mov_b32 v255, 0")
P(f"v_and_b32 {v(V_LANE)}, 63, v0")
P(f"v_lshrrev_b32 v4, 6, v0")
P(f"v_lshlrev_b32 {v(V_L16)}, 4, {v(V_LANE)}")
P(f"v_readfirstlane_b32 s{S_V}, v4")
P(f"v_mov_b32 v5, 0x7ff00000")
P(f"v_cmp_gt_u32 vcc, 56, {v(V_LANE)}")
P(f"s_lshl_b32 s{S_T0}, s{S_W}, 2")
P(f"s_add_u32 s{S_T0}, s{S_T0}, s{S_V}")
P(f"v_cndmask_b32 v4, v5, {v(V_L16)}, vcc")
P(f"s_mul_i32 s{S_T0}, s{S_T0}, 1792")
P(f"s_min_u32 s{S_T1}, s{S_W}, 223")
P(f"s_lshl_b32 s{S_T2}, s{S_T1}, 10")
P(f"v_lshl_add_u32 v6, v0, 2, s{S_T2}")
P(f"v_mov_b32 v7, 0")
P(f"s_lshl_b32 s{S_T1}, s{S_T1}, 2")
P(f"v_mov_b32 v56, s{S_T1}")
P(f"s_mov_b32 s{SRD_X+2}, 1835008")
P(f"s_mov_b32 s{SRD_X+3}, 0x00020000")
P(f"s_mov_b32 s{SRD_WS+2}, {WS_SIZE}")
P(f"s_mov_b32 s{SRD_WS+3}, 0x00020000")
P("s_waitcnt lgkmcnt(0)")
stamp("start")
P(f"s_mov_b64 s[{SRD_X}:{SRD_X+1}], s[36:37]")
XR = 48
P(f"buffer_load_dwordx4 {v(XR,4)}, v4, {srd(SRD_X)}, s{S_T0} offen")
P(f"buffer_load_dwordx4 {v(XR+4,4)}, v4, {srd(SRD_X)}, s{S_T0} offen offset:896")
for r, src, sz in ((SRD_WG, 52, 1605632), (SRD_WU, 54, 1605632), (SRD_WD, 56, 1605632), (SRD_OUT, 58, 1835008)):
    P(f"s_mov_b64 s[{r}:{r+1}], s[{src}:{src+1}]")
    P(f"s_mov_b32 s{r+2}, {sz}")
    P(f"s_mov_b32 s{r+3}, 0x00020000")
P(f"v_cmp_lt_u32 vcc, 7, {v(V_LANE)}")
P(f"v_mul_u32_u24 v4, {FREP}, {v(V_LANE)}")
P(f"s_lshr_b32 s{S_T0}, s{S_W}, 3")
P(f"s_mul_i32 s{S_T1}, s{S_T0}, 37")
P(f"v_cndmask_b32 {v(V_FLG)}, v4, v5, vcc")
P(f"s_lshr_b32 s{S_T1}, s{S_T1}, 8")
P(f"s_mul_i32 s{S_T2}, s{S_T1}, 7")
P(f"s_sub_u32 s{S_DB}, s{S_T0}, s{S_T2}")
P(f"s_and_b32 s{S_FH}, s{S_W}, 1")
P(f"s_and_b32 s{S_T2}, s{S_W}, 6")
P(f"s_lshl_b32 s{S_T2}, s{S_T2}, 1")
P(f"s_add_u32 s{S_TB}, s{S_T2}, s{S_T1}")
P(f"s_mul_i32 s{S_FB}, s{S_FH}, 7")
P(f"s_add_u32 s{S_FB}, s{S_FB}, s{S_DB}")
P(f"s_lshl_b32 s{S_RING}, s{S_V}, 13")
P(f"s_add_u32 s{S_RING}, s{S_RING}, {L_RING}")
P(f"s_mul_i32 s{S_TAB}, s{S_V}, {TAB_W}")
for _ in range(int(OPT.get("xd", 0))):
    P("s_nop 7")
P(f"s_mov_b64 s[{SRD_WS}:{SRD_WS+1}], s[62:63]")
for i in range(4):
    P(f"global_load_dword {v(PR+i)}, v6, s[{38+2*i}:{39+2*i}]")
P(f"global_load_dword {v(V_DT)}, v56, s[46:47]")
P(f"global_load_dword {v(V_EU1)}, v56, s[48:49]")
P(f"buffer_load_dword {v(V_NONCE)}, v7, {srd(SRD_WS)}, 0 offen sc1")
P(f"s_bitcmp1_b32 s{S_V}, 0")
P(f"s_cselect_b64 s[{S_PFB}:{S_PFB+1}], s[54:55], s[52:53]")
P(f"s_lshr_b32 s{S_T0}, s{S_V}, 1")
P(f"s_lshl1_add_u32 s{S_T2}, s{S_W}, s{S_T0}")
P(f"s_mul_i32 s{S_T0}, s{S_T2}, {7*128}")
P(f"v_min_u32 v4, 6, {v(V_LANE)}")
P(f"v_lshl_add_u32 v4, v4, 7, s{S_T0}")
P(f"global_load_dword {v(V_PF)}, v4, s[{S_PFB}:{S_PFB+1}]")
P(f"s_mul_i32 s{S_T0}, s{S_W}, 49")
P(f"s_mul_i32 s{S_T2}, s{S_V}, 12")
P(f"s_add_u32 s{S_T0}, s{S_T0}, s{S_T2}")
P(f"v_min_u32 v4, 12, {v(V_LANE)}")
P(f"v_add_lshl_u32 v252, v4, s{S_T0}, 7")
if "wdlate" not in OPT:
    P(f"global_load_dword v253, v252, s[56:57]")
P(f"v_cmp_gt_u32 vcc, 32, {v(V_LANE)}")
P(f"v_mul_u32_u24 v4, 37, {v(V_LANE)}")
P(f"v_lshrrev_b32 v4, 9, v4")
P(f"v_cndmask_b32 {v(V_S3)}, v5, {v(V_L16)}, vcc")
P(f"v_mul_u32_u24 v4, {TAB_W-14*272}, v4")
P(f"v_mul_u32_u24 v6, 272, {v(V_LANE)}")
P(f"s_lshl_b32 s{S_T0}, s{S_V}, 2")
P(f"v_add3_u32 {v(V_GW)}, v4, v6, s{S_T0}")
P(f"v_add_u32 {v(V_GX)}, s{S_T0}, {v(V_GW)}")
P(f"s_lshl_b32 s{S_UXM}, s{S_V}, 12")
P(f"s_add_u32 s{S_UXM}, s{S_UXM}, {L_UX+2048}")
P(f"v_and_b32 v4, 48, {v(V_LANE)}")
P(f"v_add3_u32 {v(V_GR)}, v4, {v(V_L16)}, s{S_TAB}")
P(f"v_and_b32 v4, 31, {v(V_LANE)}")
P(f"v_lshrrev_b32 v6, 5, {v(V_LANE)}")
P(f"v_lshl_add_u32 v6, v6, 4, s{S_TAB}")
P(f"v_and_b32 v7, 28, {v(V_LANE)}")
P(f"v_lshl_add_u32 v7, v4, 5, v7")
P(f"v_add_u32 {v(V_TW)}, v6, v7")
P(f"v_mul_u32_u24 v7, {TAB_ROW}, v4")
P(f"v_add_u32 {v(V_TB)}, v6, v7")
P(f"v_min_u32 v4, 20, v4")
P(f"v_mul_u32_u24 v7, {TAB_ROW}, v4")
P(f"v_add_u32 {v(V_TA)}, v6, v7")
P(f"s_lshl2_add_u32 s{S_CI}, s{S_W}, s{S_V}")
P(f"s_lshl_b32 s{S_CI}, s{S_CI}, 8")
P(f"s_add_u32 s{S_CI}, s{S_CI}, {WS_C}")
P(f"v_lshlrev_b32 v250, 25, {v(V_LANE)}")
P(f"s_mul_i32 s{S_UXO}, s{S_W}, 14336")
P(f"s_mul_i32 s{S_T0}, s{S_V}, 3584")
P(f"s_add_u32 s{S_UXO}, s{S_UXO}, s{S_T0}")
P(f"s_add_u32 s{S_UXO}, s{S_UXO}, {WS_UX}")
P(f"s_lshl_b32 s{S_T0}, s{S_V}, 8")
P(f"s_add_u32 s{S_T0}, s{S_T0}, s{S_W}")
P(f"s_mul_i32 s{S_T0}, s{S_T0}, {FS}")
P(f"s_add_u32 s{S_F1}, s{S_T0}, {WS_F1}")
P(f"v_lshrrev_b32 v4, 2, {v(V_LANE)}")
P(f"v_mul_u32_u24 v4, 3584, v4")
P(f"v_and_b32 v6, 3, {v(V_LANE)}")
P(f"v_lshl_add_u32 v4, v6, 4, v4")
P(f"s_lshl_b32 s{S_T0}, s{S_FB}, 8")
P(f"s_lshl_b32 s{S_T1}, s{S_V}, 6")
P(f"s_add_u32 s{S_T0}, s{S_T0}, s{S_T1}")
P(f"v_add_u32 {v(V_W)}, s{S_T0}, v4")
for k in range(1, 4):
    P(f"v_add_u32 {v(V_W+k)}, {k*(57344-1024)}, {v(V_W)}")
P(f"v_and_b32 v4, 32, {v(V_LANE)}")
P(f"v_lshlrev_b32 v4, 4, v4")
P(f"v_and_b32 v7, 12, {v(V_LANE)}")
P(f"v_lshl_add_u32 v4, v7, 4, v4")
P(f"v_and_b32 v7, 16, {v(V_LANE)}")
P(f"v_lshl_add_u32 v4, v7, 1, v4")
P(f"v_lshl_add_u32 v4, v6, 3, v4")
P(f"v_add_u32 {v(V_TRA)}, s{S_RING}, v4")
P(f"s_mov_b32 s{S_K0}, {L_KC+4096-L_UX}")
P(f"s_movk_i32 s{S_T2}, 128")
P(f"s_mul_i32 s{S_T0}, s{S_W}, 293")
P(f"s_bfe_u32 s{S_T0}, s{S_T0}, 0x2000e")
P(f"s_lshl_b32 s{S_T0}, s{S_T0}, 10")
P(f"s_lshr_b32 s{S_F2}, s{S_T0}, 2")
P(f"s_and_b32 s{S_REP}, s{S_W}, 7")
P(f"s_mul_i32 s{S_REP}, s{S_REP}, {FREP}")
P(f"s_add_u32 s{S_REP}, s{S_REP}, {WS_F1}")
P(f"s_add_u32 s{S_T0}, s{S_T0}, s{S_REP}")
P(f"v_lshl_add_u32 {v(V_F1)}, v0, 2, s{S_T0}")
P(f"v_lshrrev_b32 v4, 2, {v(V_LANE)}")
P(f"v_add_u32 v4, s{S_T1}, v4")
P(f"v_mul_u32_u24 v7, 14336, v4")
P(f"v_lshrrev_b32 v4, 4, {v(V_LANE)}")
P(f"v_xor_b32 v6, v6, v4")
P(f"v_lshl_add_u32 v7, v6, 4, v7")
P(f"s_lshl_b32 s{S_T0}, s{S_W}, 6")
P(f"s_add_u32 s{S_T0}, s{S_T0}, {WS_UX}")
P(f"v_add_u32 {v(V_UXL)}, s{S_T0}, v7")
P(f"v_bfe_u32 v6, {v(V_LANE)}, 1, 2")
P(f"v_mul_u32_u24 v6, {CS}, v6")
P(f"v_and_b32 v7, 16, {v(V_L16)}")
P(f"v_add3_u32 v6, v6, v7, s{S_K0}")
P(f"v_lshlrev_b32 v7, 4, v0")
P(f"v_cmp_gt_u32 vcc, s{S_T2}, v0")
P(f"v_mov_b32 v56, 0")
P(f"v_mov_b32 v57, 0")
P(f"v_cndmask_b32 v6, v6, v7, vcc")
P(f"v_mov_b32 v58, 0")
P(f"v_mov_b32 v59, 0")
P(f"v_add_u32 v6, {L_UX}, v6")
P(f"ds_write_b128 v6, v[56:59]")
P(f"v_lshlrev_b32 v4, 3, v0")
P(f"v_sub_u32 v4, 2047, v4")
P(f"v_cvt_f32_i32 v4, v4")
P(f"v_mov_b32 v60, 1028")
P(f"v_cmp_eq_u32 vcc, 0, v0")
for e in range(0, 10, 2):
    P(f"v_add_f32 v6, {f32(-float(e))}, v4")
    if e < 8:
        P(f"v_add_f32 v7, {f32(-float(e+1))}, v4")
    P(f"v_cvt_pk_bf16_f32 v6, v6, v7")
    for h in range(2):
        if e + h > 8:
            continue
        d = GA + e + h
        if h == 0:
            P(f"v_lshlrev_b32 v7, 16, v6")
        else:
            P(f"v_and_b32 v7, 0xffff0000, v6")
        P(f"v_cvt_u32_f32 v7, v7")
        if e + h < 4:
            P(f"v_cndmask_b32 v7, v7, v60, vcc")
        P(f"v_lshrrev_b32 {v(d)}, 5, v7")
        P(f"v_add_lshl_u32 {v(d)}, {v(d)}, v7, 2")
P(f"v_mov_b32 v4, 255")
P(f"v_cmp_eq_u32 s[{S_M255}:{S_M255+1}], v4, v0")

XF = 56
DF = 72
SA = 88
if "fine" in OPT: stamp("setup done")
P(f"s_mov_b32 s{S_EX}, -1")
P(f"s_mov_b32 s{S_EX+1}, 0x00ffffff")
P(f"s_mov_b32 s{S_K0}, {f32(1.0/448)}")
for r in range(2):
    for i in range(4):
        P(f"v_lshlrev_b32 {v(XF+8*r+2*i)}, 16, {v(XR+4*r+i)}")
        P(f"v_and_b32 {v(XF+8*r+2*i+1)}, 0xffff0000, {v(XR+4*r+i)}")
stamp("x arrived")
if "wdlate" in OPT:
    P(f"global_load_dword v253, v252, s[56:57]")
P(f"s_mov_b64 exec, s[{S_EX}:{S_EX+1}]")
for i in range(4):
    P(f"ds_write2_b32 {v(V_GX)}, {v(XR+i)}, {v(XR+4+i)} offset0:{16*i+8} offset1:{16*i+9}")
P("s_mov_b64 exec, -1")
for r in range(2):
    b = XF + 8 * r
    P(f"v_pk_add_f32 {v(DF+8*r,2)}, {v(b,2)}, {v(b+2,2)}")
    P(f"v_pk_add_f32 {v(DF+8*r+2,2)}, {v(b+4,2)}, {v(b+6,2)}")
for r in range(2):
    P(f"v_pk_add_f32 {v(DF+8*r,2)}, {v(DF+8*r,2)}, {v(DF+8*r+2,2)}")
for r in range(2):
    P(f"v_add_f32 {v(SA+r)}, {v(DF+8*r)}, {v(DF+8*r+1)}")


def wave_sum(p, regs):
    for mod in ("row_shr:1", "row_shr:2", "row_shr:4", "row_shr:8"):
        for r in regs:
            p(f"v_add_f32_dpp {v(r)}, {v(r)}, {v(r)} {mod} row_mask:0xf bank_mask:0xf bound_ctrl:0")
    for r in regs:
        p(f"v_add_f32_dpp {v(r)}, {v(r)}, {v(r)} row_bcast:15 row_mask:0xa bank_mask:0xf")
    for r in regs:
        p(f"v_add_f32_dpp {v(r)}, {v(r)}, {v(r)} row_bcast:31 row_mask:0xc bank_mask:0xf")


wave_sum(P, [SA, SA + 1])
for r in range(2):
    P(f"v_mul_f32 {v(SA+r)}, s{S_K0}, {v(SA+r)}")
P(f"v_cvt_pk_bf16_f32 {v(SA+2)}, {v(SA)}, {v(SA+1)}")
P(f"v_readlane_b32 s{S_A}, {v(SA)}, 63")
P(f"v_readlane_b32 s{S_B}, {v(SA+1)}, 63")
P(f"v_readlane_b32 s{S_T0}, {v(SA+2)}, 63")
P(f"v_mov_b32 {v(SA)}, 0")
P(f"v_mov_b32 {v(SA+1)}, 0")
P(f"s_mov_b64 exec, s[{S_EX}:{S_EX+1}]")
for r, sm in ((0, S_A), (1, S_B)):
    for i in range(4):
        P(f"v_pk_add_f32 {v(DF+8*r+2*i,2)}, {v(XF+8*r+2*i,2)}, s[{sm}:{sm+1}] op_sel_hi:[1,0] neg_lo:[0,1] neg_hi:[0,1]")
for r in range(2):
    b = DF + 8 * r
    P(f"v_pk_mul_f32 {v(b,2)}, {v(b,2)}, {v(b,2)}")
    for i in range(1, 4):
        P(f"v_pk_fma_f32 {v(b,2)}, {v(b+2*i,2)}, {v(b+2*i,2)}, {v(b,2)}")
for r in range(2):
    P(f"v_add_f32 {v(SA+r)}, {v(DF+8*r)}, {v(DF+8*r+1)}")
P("s_mov_b64 exec, -1")
P(f"s_lshl_b32 s{S_C}, s{S_T0}, 16")
P(f"s_and_b32 s{S_D}, s{S_T0}, 0xffff0000")
q1 = sub()
wave_sum(q1, [SA, SA + 1])
q2 = sub()
for r, sm in ((0, S_C), (1, S_D)):
    for i in range(4):
        q2(f"v_pk_add_f32 {v(DF+8*r+2*i,2)}, {v(XF+8*r+2*i,2)}, s[{sm}:{sm+1}] op_sel_hi:[1,0] neg_lo:[0,1] neg_hi:[0,1]")
for r in range(2):
    for i in range(4):
        q2(f"v_cvt_pk_bf16_f32 {v(XF+8*r+2*i)}, {v(DF+8*r+2*i)}, {v(DF+8*r+2*i+1)}")
for r in range(2):
    for i in range(4):
        q2(f"v_and_b32 {v(XF+8*r+2*i+1)}, 0xffff0000, {v(XF+8*r+2*i)}")
        q2(f"v_lshlrev_b32 {v(XF+8*r+2*i)}, 16, {v(XF+8*r+2*i)}")
k = 0
for j in range(0, len(q1.ins), 2):
    P.add(q1.ins[j:j + 2])
    P.add(q2.ins[k:k + 1])
    k += 1
P(f"v_mul_f32 {v(SA)}, s{S_K0}, {v(SA)}")
P(f"v_mul_f32 {v(SA+1)}, s{S_K0}, {v(SA+1)}")
for step in range(3):
    P(f"v_cvt_pk_bf16_f32 {v(SA+2)}, {v(SA)}, {v(SA+1)}")
    P(f"v_lshlrev_b32 {v(SA)}, 16, {v(SA+2)}")
    P(f"v_and_b32 {v(SA+1)}, 0xffff0000, {v(SA+2)}")
    for r in range(2):
        if step == 0:
            P(f"v_add_f32 {v(SA+r)}, {f32(1e-5)}, {v(SA+r)}")
        elif step == 1:
            P(f"v_sqrt_f32 {v(SA+r)}, {v(SA+r)}")
        else:
            P(f"v_rcp_f32 {v(SA+r)}, {v(SA+r)}")
    if step:
        P.add(q2.ins[k:k + 1])
        k += 1
P(f"v_readlane_b32 s{S_A}, {v(SA)}, 63")
P(f"v_readlane_b32 s{S_B}, {v(SA+1)}, 63")
P.add(q2.ins[k:])
for r, sm in ((0, S_A), (1, S_B)):
    for i in range(4):
        P(f"v_pk_mul_f32 {v(XF+8*r+2*i,2)}, {v(XF+8*r+2*i,2)}, s[{sm}:{sm+1}] op_sel_hi:[1,0]")
for j in range(8):
    P(f"v_cvt_pk_bf16_f32 {v(DF+j)}, {v(XF+j)}, {v(XF+8+j)}")
P(f"s_mov_b64 exec, s[{S_EX}:{S_EX+1}]")
for i in range(4):
    P(f"ds_write2_b32 {v(V_GW)}, {v(DF+2*i)}, {v(DF+2*i+1)} offset0:{16*i} offset1:{16*i+4}")
P("s_mov_b64 exec, -1")
if "fine" in OPT: stamp("ln1 math")
P("s_waitcnt lgkmcnt(0)")
P("s_barrier")
if "fine" in OPT: stamp("ln1 barrier")
UB = 112
for j in range(4):
    P(f"ds_read_b128 {v(UB+4*j,4)}, {v(V_GR)} offset:{1088*j}")
P(f"s_lshl_b32 s{S_T0}, s{S_V}, 3")
P(f"s_and_b32 s{S_T0}, s{S_T0}, 16")
P(f"s_mov_b32 m0, s{S_TAB}")
P("s_waitcnt lgkmcnt(0)")
for j in range(4):
    P(f"buffer_store_dwordx4 {v(UB+4*j,4)}, {v(V_L16 if j < 3 else V_S3)}, {srd(SRD_WS)}, s{S_UXO} offen offset:{1024*j} sc1", tok="ux")
P(f"s_cmp_lt_u32 s{S_W}, 224")
P("s_cbranch_scc1 L_main")


def nonce_init():
    q = sub()
    q(f"v_readfirstlane_b32 s{S_NONCE}, {v(V_NONCE)}")
    q(f"s_mul_i32 s{S_NONCE}, s{S_NONCE}, 1664525")
    q(f"s_add_u32 s{S_NONCE}, s{S_NONCE}, 1013904223")
    q(f"v_mov_b32 {v(V_NONCE)}, s{S_NONCE}")
    q(f"buffer_store_dword {v(V_NONCE)}, v250, {srd(SRD_WS)}, s{S_CI} offen sc1", tok="ux")
    q(f"s_add_u32 s{S_E28}, s{S_NONCE}, 28")
    q(f"s_add_u32 s{S_E14}, s{S_NONCE}, 14")
    return q.ins


P.raw("s_waitcnt vmcnt(6)")
for x in nonce_init():
    P.raw(x.text)
P.raw("s_waitcnt vmcnt(0)")
P.raw(f"buffer_atomic_swap {v(V_NONCE)}, {v(V_FLG)}, {srd(SRD_WS)}, s{S_F1} offen")
P.raw("s_branch L_spare")
P("L_main:")
stamp("ln1 done")


def wfrag(m, ks):
    return 8 * ks + 4 * m


def slotoff(slot):
    return (slot % 8) * 1024 + (slot // 8) * 32768


def w_dma(kq, m, slot, tok):
    q = sub()
    q(f"s_add_u32 m0, s{S_RING}, {slotoff(slot)}")
    if m == 0:
        q(f"s_mov_b32 s{S_WOFF}, {kq*4*57344}")
    for k in range(4):
        o = f" offset:{1024*k}" if k else ""
        q(f"buffer_load_dwordx4 {v(V_W+k)}, {srd(SRD_WU if m else SRD_WG)}, s{S_WOFF} offen{o} lds", tok=tok)
    return q.ins


def w_tr(kq, m, slot, tok=None):
    q = sub()
    for k in range(4):
        for h in range(2):
            q(f"ds_read_b64_tr_b16 {acc(wfrag(m,4*kq+k)+2*h,2)}, {v(V_TRA)} offset:{slotoff(slot+k)+256*h}", tok=tok)
    return q.ins


def batch_dma(b, tok):
    return [w_dma(2 * b + i // 2, i % 2, 4 * i, f"{tok}_{i}") for i in range(4)]


def batch_tr(b):
    o = []
    for i in range(4):
        o += w_tr(2 * b + i // 2, i % 2, 4 * i, tok=f"t{b}_{i}")
    return o


def singles(groups):
    out, cur = [], []
    for grp in groups:
        for i in grp:
            cur.append(i)
            if i.cls == "vmem":
                out.append(cur)
                cur = []
    if cur:
        out[-1] += cur
    return out


def pin_vm(g, start, groups, stride):
    k = start
    for u in singles(groups):
        g.at(int(k), u)
        k += stride
    return int(k)


def w_dma1(b, n, tok):
    i, k = n // 4, n % 4
    q = sub()
    q(f"s_add_u32 m0, s{S_RING}, {slotoff(4*i)}")
    if n % 8 == 0:
        q(f"s_mov_b32 s{S_WOFF}, {(2*b+i//2)*4*57344}")
    o = f" offset:{1024*k}" if k else ""
    q(f"buffer_load_dwordx4 {v(V_W+k)}, {srd(SRD_WU if i % 2 else SRD_WG)}, s{S_WOFF} offen{o} lds", tok=f"{tok}_{i}")
    q(f"s_mov_b32 m0, s{S_TAB}")
    return q.ins


KD = 176
FR = 192
FR = 112


def kgen_head(rd):
    q = sub()
    A0 = 48 + 0
    CC = 50
    unp = (lambda d, s: q(f"v_lshlrev_b32 {v(d)}, 16, {v(s)}")) if rd == 0 else (lambda d, s: q(f"v_and_b32 {v(d)}, 0xffff0000, {v(s)}"))
    for i in range(4):
        unp(48 + i, PR + i)
    q(f"v_mul_f32 v48, {f32(LOG2E)}, v48")
    q(f"v_exp_f32 v48, v48")
    q(f"v_mul_f32 v49, v49, {v(V_DT)}")
    q(f"v_cvt_pk_bf16_f32 v48, v48, v48")
    q(f"v_mul_f32 v49, 0.15915494, v49")
    q(f"v_and_b32 v48, 0xffff0000, v48")
    q(f"v_mul_f32 v50, v50, {v(V_DT)}")
    q(f"v_mul_f32 v48, v48, {v(V_DT)}")
    q(f"v_mul_f32 v51, v51, {v(V_DT)}")
    q(f"v_mul_f32 v48, {f32(-LOG2E)}, v48")
    q(f"v_add_f32 v50, v50, v50")
    q(f"v_add_f32 v51, v51, v51")
    for (z, pos) in ((52, 1), (54, 16), (56, 256)):
        if pos == 1:
            q(f"v_exp_f32 v4, v48")
            q(f"v_fract_f32 v5, v49")
        else:
            q(f"v_mul_f32 v4, {f32(float(pos))}, v48")
            q(f"v_mul_f32 v5, {f32(float(pos))}, v49")
            q(f"v_exp_f32 v4, v4")
            q(f"v_fract_f32 v5, v5")
        q(f"v_cos_f32 {v(z)}, v5")
        q(f"v_sin_f32 {v(z+1)}, v5")
        q(f"v_mul_f32 {v(z)}, {v(z)}, v4")
        q(f"v_mul_f32 {v(z+1)}, {v(z+1)}, v4")
    return q.ins


def kgen_body(rd):
    names = {"G0": 50, "E1": 52, "E16": 54, "E256": 56}
    nxt = [58]
    chunks = []
    cur = sub()
    wr = sub()
    pk = [0]
    PK = 192

    def new(n):
        names[n] = nxt[0]
        nxt[0] += 2
        assert nxt[0] <= 104
        return names[n]

    def out(kind, row, z):
        t = PK + pk[0] % 16
        pk[0] += 1
        if kind == "B":
            cur(f"v_cvt_pk_bf16_f32 {v(t)}, {v(z)}, {v(z+1)}")
            wr(f"ds_write_addtid_b32 {v(t)} offset:{row*TAB_ROW}")
        else:
            cur(f"v_cvt_pk_bf16_f32 {v(t)}, {v(z)}, -{v(z+1)}")
            wr(f"ds_write_addtid_b32 {v(t)} offset:{(32+row)*TAB_ROW}")
        if len(wr.ins) >= GROUP:
            flush()

    def flush():
        nonlocal cur, wr
        chunks.append(cur.ins + wr.ins)
        cur = sub()
        wr = sub()

    sc = [0]

    def mul(n, a, b, kind=None, row=None):
        if n is None:
            z = 104 + 2 * (sc[0] % 4)
            sc[0] += 1
        else:
            z = new(n)
        cmul(cur, z, names[a], names[b])
        if kind:
            out(kind, row, z)

    GROUP = int(OPT.get("kgroup", 6))
    t = PK + pk[0]
    pk[0] += 1
    cur(f"v_mov_b32 {v(t)}, 0x3f80")
    wr(f"ds_write_addtid_b32 {v(t)}")
    out("A", 0, names["G0"])
    out("B", 2, names["E16"])
    mul("E2", "E1", "E1")
    mul("E32", "E16", "E16", "B", 4)
    mul("G1", "G0", "E256", "A", 8)
    mul("E512", "E256", "E256")
    mul("a1", "G0", "E1", "A", 1)
    mul("E4", "E2", "E2")
    mul("E64", "E32", "E32", "B", 8)
    mul("E48", "E32", "E16", "B", 6)
    mul("G2", "G0", "E512", "A", 10)
    mul("G3", "G1", "E512", "A", 11)
    mul("E1024", "E512", "E512")
    mul("E8", "E4", "E4", "B", 1)
    mul("a2", "G0", "E2", "A", 2)
    mul("a3", "a1", "E2", "A", 3)
    mul("b2", "G1", "E2", "A", 9)
    mul("E128", "E64", "E64", "B", 16)
    mul("G4", "G0", "E1024", "A", 16)
    mul("E24", "E16", "E8", "B", 3)
    mul("E40", "E32", "E8", "B", 5)
    mul("E56", "E48", "E8", "B", 7)
    mul("E192", "E128", "E64", "B", 24)
    for row, a in ((4, "G0"), (5, "a1"), (6, "a2"), (7, "a3"), (12, "G1"), (13, "b2"), (14, "G2"), (15, "G3")):
        mul(None, a, "E4", "A", row)
    for row, a in ((17, "G1"), (18, "G2"), (19, "G3"), (20, "G4")):
        mul(None, a, "E1024", "A", row)
    for b2, nb in ((1, "E64"), (2, "E128"), (3, "E192")):
        for b1 in range(1, 8):
            mul(None, f"E{8*b1}", nb, "B", 8 * b2 + b1)
    if wr.ins or cur.ins:
        flush()
    return chunks


def kgen_reads():
    q = sub()
    for s in range(8):
        q(f"ds_read_b128 {v(FR+8*s,4)}, {v(V_TA)} offset:{32*TAB_ROW+32*s}")
        q(f"ds_read_b128 {v(FR+8*s+4,4)}, {v(V_TB)} offset:{32*s}")
    return q.ins


def kgen_mfma(rd):
    q = sub()
    for s in range(8):
        c = "0" if (rd == 0 and s == 0) else v(KD, 16)
        q(f"v_mfma_f32_32x32x16_bf16 {v(KD,16)}, {v(FR+8*s,4)}, {v(FR+8*s+4,4)}, {c}")
    return q.ins


P(f"v_lshrrev_b32 v4, s{S_T0}, {v(V_DT)}")
P(f"v_lshlrev_b32 v4, 16, v4")
P(f"v_mul_f32 v4, {f32(LOG2E)}, v4")
P(f"v_exp_f32 v4, v4")
P(f"v_readfirstlane_b32 s{S_DSK}, {v(V_EU1)}")
round_bf16(P, V_DT, 4)
P.add(kgen_head(0))
P.add(nonce_init())
ch = kgen_body(0)
fl = sub()
fl.wait("ux")
setflag(fl, S_F1)
nd = 0
FLAGAT = int(OPT.get("flagat", 6))
DMA0 = int(OPT.get("dma0", 3))
for i, c in enumerate(ch):
    P.add(c)
    if i == FLAGAT:
        if "fine" in OPT: stamp("pre flag1")
        P.add(fl.ins)
        if "fine" in OPT: stamp("post flag1")
    elif i >= DMA0:
        P.add(w_dma1(0, nd, "w1"))
        nd += 1
P.add(kgen_reads())
g = Gaps(kgen_mfma(0), 7)
for k in (0, 2, 4, 6):
    g.at(k, w_dma1(0, nd, "w1"))
    nd += 1
g.fill(kgen_head(1))
P.add(g.out())
stamp("kgen r0")
ch = kgen_body(1)
POLLAT = int(OPT.get("pollat", 3))
for i, c in enumerate(ch):
    P.add(c)
    if i == POLLAT:
        P.add(poll_issue(V_F1, 6))
    elif nd < 16:
        P.add(w_dma1(0, nd, "w1"))
        nd += 1
assert nd == 16
P.add(kgen_reads())
if "fine" in OPT: stamp("pre poll1")
P.add(poll_check(V_F1, 6))
if "fine" in OPT: stamp("post poll1")
g = Gaps(kgen_mfma(1), 6)
P(f"s_mov_b32 m0, s{S_UXM}")
for j in range(4):
    q = sub()
    q(f"s_mov_b32 s{S_T0}, {j*(16*14336-1024)}")
    o = f" offset:{1024*j}" if j else ""
    q(f"buffer_load_dwordx4 {v(V_UXL)}, {srd(SRD_WS)}, s{S_T0} offen{o} sc1 lds", tok="uxl")
    if j == 0:
        P.add(q.ins)
    else:
        g.at(2 * j - 2, q.ins)
tr1 = batch_tr(0)
P.wait("w1_2")
for k in range(8):
    g.at(k, tr1[3 * k:3 * k + 3])
P.add(g.out())
stamp("kgen r1")
P(f"v_and_b32 v4, 15, {v(V_LANE)}")
P(f"v_lshrrev_b32 v5, 4, {v(V_LANE)}")
P(f"v_lshl_add_u32 v6, v5, 3, v4")
P(f"v_sub_u32 v6, 39, v6")
P(f"v_and_b32 v7, 1, v6")
P(f"v_mul_u32_u24 v7, {CS-2}, v7")
P(f"v_lshl_add_u32 v6, v6, 1, v7")
P(f"s_lshr_b32 s{S_T0}, s{S_V}, 1")
P(f"s_andn2_b32 s{S_T3}, 1, s{S_V}")
P(f"s_mul_i32 s{S_T2}, s{S_T0}, {2*CS}")
P(f"s_lshl_b32 s{S_T1}, s{S_T3}, 8")
P(f"s_add_u32 s{S_T2}, s{S_T2}, s{S_T1}")
P(f"s_add_u32 s{S_T2}, s{S_T2}, {L_KC}")
P(f"v_add_u32 {v(V_KA+3)}, s{S_T2}, v6")
toff = {0: (0, 0), 1: (0, 1), 2: (0, 2), 3: (0, 3), 4: (1, 0), 5: (1, 2), 6: (2, 0), 7: (3, 0), 8: (4, 0), 9: (5, 0), 10: (6, 0), 11: (7, 0)}
P(f"ds_write2_b32 {v(V_TW)}, {v(KD)}, {v(KD+1)} offset0:0 offset1:1")
P(f"ds_write2_b32 {v(V_TW)}, {v(KD+2)}, {v(KD+3)} offset0:2 offset1:3")
for j in range(4, 12):
    qq, r = toff[j]
    P(f"ds_write_b32 {v(V_TW)}, {v(KD+j)} offset:{4*(r + 264*qq)}")
for k in range(3):
    P(f"v_add_u32 {v(V_KA+k)}, {64*(48-16*k)}, {v(V_KA+3)}")
P(f"v_lshlrev_b32 v6, 1, v4")
P(f"v_sub_u32 v6, v6, v5")
P(f"s_lshl_b32 s{S_T1}, s{S_T3}, 4")
P(f"s_add_u32 s{S_T1}, s{S_T1}, 17")
P(f"v_add_u32 v6, s{S_T1}, v6")
P(f"s_mov_b32 s{S_T2}, {L_UX}")
P("s_waitcnt lgkmcnt(0)")
P("s_barrier")
if "fine" in OPT: stamp("T barrier")
EG = 208
for c2 in range(2):
    for e in range(9):
        P(f"ds_read2st64_b32 {v(EG+18*c2+2*e,2)}, {v(GA+e)} offset0:{114*c2} offset1:{114*c2+57}")
b2 = batch_dma(1, "w2")
b2[3] = waitq("t0_3") + b2[3]
b2 = singles(b2)
P.add(b2.pop(0))
for rr in range(4):
    P(f"v_bfe_u32 v7, v6, 2, 2")
    P(f"v_xor_b32 v7, s{S_T0}, v7")
    P(f"v_lshl_add_u32 v7, v6, 2, v7")
    P(f"v_lshl_add_u32 {v(V_UA+rr)}, v7, 4, s{S_T2}")
    if rr < 3:
        P(f"v_subrev_u32 v6, 4, v6")
P.add(b2.pop(0))
P(f"v_lshlrev_b32 v6, 4, v0")
KO = 192
VB = 48


def bfrag(rr, e):
    return VB + 32 * rr + 4 * e


def b_loads(lo, hi):
    z = sub()
    for rr in range(4):
        for a in range(lo, hi):
            z(f"ds_read_b128 {v(bfrag(rr,a),4)}, {v(V_UA+rr)} offset:{2048*a}")
    return z.ins


for c2 in range(2):
    b = EG + 18 * c2
    for e in range(9):
        P(f"v_add_f32 {v(b+2*e)}, {v(b+2*e)}, {v(b+2*e+1)}")
    P(f"v_cndmask_b32 {v(b+16)}, {v(b+16)}, 0, s[{S_M255}:{S_M255+1}]")
    for s_ in range(2):
        o = KO + 8 * c2 + 4 * s_
        for i in range(4):
            P(f"v_cvt_pk_bf16_f32 {v(o+i)}, {v(b+2*(s_+2*i))}, {v(b+2*(s_+2*i+1))}")
    if c2 == 1:
        P(f"v_add_u32 v7, {2*CS}, v6")
    for s_ in range(2):
        P(f"ds_write_b128 {v(6+c2)}, {v(KO+8*c2+4*s_,4)} offset:{L_KC+s_*CS}", tok="kc")
    if c2 == 0:
        P.add(waitq("w1_3") + tr1[24:])
    P.add(b2.pop(0))
if "dumpk" in OPT:
    P(f"s_lshl_b32 s{S_T0}, s{S_W}, 13")
    P(f"s_add_u32 s{S_T0}, s{S_T0}, {WS_DBG}")
    P(f"buffer_store_dwordx4 {v(KO,4)}, v6, {srd(SRD_WS)}, s{S_T0} offen")
    P(f"s_add_u32 s{S_T0}, s{S_T0}, 4096")
    P(f"buffer_store_dwordx4 {v(KO+8,4)}, v6, {srd(SRD_WS)}, s{S_T0} offen")
stamp("expanded")
P.wait("uxl")
P.wait("kc")
P("s_barrier")
stamp("conv start")
ea = sub()
ea(f"v_lshrrev_b32 v6, 1, v5")
ea(f"v_lshl_add_u32 v6, v4, 1, v6")
ea(f"s_lshl_b32 s{S_T2}, s{S_V}, 11")
ea(f"s_add_u32 s{S_T2}, s{S_T2}, {L_UX+2048}")
ea(f"v_lshl_add_u32 v6, v6, 6, s{S_T2}")
ea(f"v_bfe_u32 v4, v4, 1, 2")
ea(f"v_and_b32 v5, 1, v5")
ea(f"v_lshl_add_u32 v7, v4, 4, v6")
ea(f"v_lshl_add_u32 {v(V_EU)}, v5, 3, v7")
ea(f"v_xor_b32 {v(V_EU1)}, 16, {v(V_EU)}")
ea(f"v_or_b32 v5, 2, v5")
ea(f"v_xor_b32 v4, v4, v5")
ea(f"v_lshl_add_u32 {v(V_EXP)}, v4, 4, v6")
eb = sub()
eb(f"s_mul_i32 s{S_ACTW}, s{S_V}, 14336")
eb(f"v_add_u32 {v(V_EXR)}, s{S_ACTW}, {v(V_L16)}")
eb(f"s_lshl_b32 s{S_T2}, s{S_V}, 10")
eb(f"v_add_u32 {v(V_EXW)}, s{S_T2}, {v(V_L16)}")
eb(f"s_mul_i32 s{S_T3}, s{S_W}, {PROW}")
eb(f"s_add_u32 s{S_T3}, s{S_T3}, {WS_P}")
eb(f"v_add_u32 {v(V_PST)}, s{S_T3}, {v(V_EXW)}")
eb(f"s_lshl_b32 s{S_C}, s{S_DSK}, 16")
eb(f"s_and_b32 s{S_D}, s{S_DSK}, 0xffff0000")

CA = [176, 192]
ET = 208


def afrag(rr, a):
    return 128 + 32 * rr + 4 * a


def a_loads(rr, lo, hi):
    z = sub()
    for a in range(lo, hi):
        k = a // 2
        off = 16 * (11 - rr - 8 * (a - 2 * k))
        z(f"ds_read2_b32 {acc(afrag(rr,a),2)}, {v(V_KA+k)} offset0:{off} offset1:{off+1}")
        z(f"ds_read2_b32 {acc(afrag(rr,a)+2,2)}, {v(V_KA+k)} offset0:{off+2} offset1:{off+3}")
    return z.ins


def conv_mfmas(gen):
    m = sub()
    first = set()
    na = 4 if gen == 0 else 8
    order = []
    for rr in range(4):
        pairs = [(a, e) for a in range(na) for e in range(na) if 4 * gen <= a + e < 4 * gen + 4]
        pairs.sort(key=lambda ae: (max(ae), ae))
        order += [(rr, a, e) for a, e in pairs]
    if gen == 1:
        order.sort(key=lambda t: (0 if max(t[1], t[2]) < 4 else 1))
    for rr, a, e in order:
        c = a + e - 4 * gen
        d = CA[gen] + 4 * c
        cc = v(d, 4) if c in first else "0"
        first.add(c)
        m(f"v_mfma_f32_16x16x32_bf16 {v(d,4)}, {acc(afrag(rr,a),4)}, {v(bfrag(rr,e),4)}, {cc}")
    return m.ins


UU, XX, YY, TT, WW, HO = ET, ET + 4, ET + 8, ET + 24, ET + 32, ET + 36


def conv_pre(gen):
    q = sub()
    q(f"ds_read_b64 {v(UU,2)}, {v(V_EU)} offset:{8192*gen}")
    q(f"ds_read_b64 {v(UU+2,2)}, {v(V_EU1)} offset:{8192*gen}")
    q(f"ds_read_b128 {v(XX,4)}, {v(V_EXP)} offset:{8192*gen}")
    r = sub()
    for c2 in range(2):
        for i in range(2):
            r(f"v_lshlrev_b32 {v(TT+4*c2+2*i)}, 16, {v(UU+2*c2+i)}")
            r(f"v_and_b32 {v(TT+4*c2+2*i+1)}, 0xffff0000, {v(UU+2*c2+i)}")
    for c2, sm in ((0, S_C), (1, S_D)):
        for i in range(4):
            r(f"v_mul_f32 {v(TT+4*c2+i)}, s{sm}, {v(TT+4*c2+i)}")
    for j in range(4):
        r(f"v_cvt_pk_bf16_f32 {v(WW+j)}, {v(TT+j)}, {v(TT+4+j)}")
    for j in range(4):
        r(f"v_lshlrev_b32 {v(TT+2*j)}, 16, {v(WW+j)}")
        r(f"v_and_b32 {v(TT+2*j+1)}, 0xffff0000, {v(WW+j)}")
    return q.ins, r.ins


def conv_xchg(gen):
    w_, b_, r_ = sub(), sub(), sub()
    for c in range(4):
        w_(f"ds_write_b128 {v(V_EXW)}, {v(CA[gen]+4*c,4)} offset:{(4096 if gen else 14336)*c}", tok=f"xw{gen}")
    b_.wait(f"xw{gen}")
    b_("s_barrier")
    for w in range(4):
        r_(f"ds_read_b128 {v(YY+4*w,4)}, {v(V_EXR)} offset:{1024*w}", tok=f"xr{gen}")
    return w_.ins, b_.ins, r_.ins


def conv_post(gen):
    q = sub()
    for c2 in range(2):
        for i in range(2):
            q(f"v_pk_add_f32 {v(YY+8*c2+2*i,2)}, {v(YY+8*c2+2*i,2)}, {v(YY+8*c2+4+2*i,2)}")
    for j in range(4):
        q(f"v_cvt_pk_bf16_f32 {v(WW+j)}, {v(YY+j)}, {v(YY+8+j)}")
    for j in range(4):
        q(f"v_lshlrev_b32 {v(YY+2*j)}, 16, {v(WW+j)}")
        q(f"v_and_b32 {v(YY+2*j+1)}, 0xffff0000, {v(WW+j)}")
    for j in range(4):
        q(f"v_pk_add_f32 {v(YY+2*j,2)}, {v(YY+2*j,2)}, {v(TT+2*j,2)}")
    for j in range(4):
        q(f"v_cvt_pk_bf16_f32 {v(WW+j)}, {v(YY+2*j)}, {v(YY+2*j+1)}")
    for j in range(4):
        q(f"v_lshlrev_b32 {v(YY+8+2*j)}, 16, {v(XX+j)}")
        q(f"v_and_b32 {v(YY+8+2*j+1)}, 0xffff0000, {v(XX+j)}")
    for j in range(4):
        q(f"v_lshlrev_b32 {v(YY+2*j)}, 16, {v(WW+j)}")
        q(f"v_and_b32 {v(YY+2*j+1)}, 0xffff0000, {v(WW+j)}")
    for j in range(4):
        q(f"v_pk_add_f32 {v(YY+2*j,2)}, {v(YY+2*j,2)}, {v(YY+8+2*j,2)}")
    h = HO + 4 * gen
    for j in range(4):
        q(f"v_cvt_pk_bf16_f32 {v(h+j)}, {v(YY+2*j)}, {v(YY+2*j+1)}")
    q(f"s_mov_b32 s{S_T0}, {PGEN*gen}")
    q(f"buffer_store_dwordx4 {v(h,4)}, {v(V_PST)}, {srd(SRD_WS)}, s{S_T0} offen sc1", tok=f"h{gen}")
    return q.ins


V_WF = 19
V_F4 = 20
ad = sub()
ad(f"v_mov_b32 {v(V_NONCE)}, 1")
flg_lanes(ad, 4, 10)
ad(f"s_lshl_b32 s{S_T0}, s{S_V}, 13")
ad(f"s_add_u32 s{S_F2}, s{S_F2}, s{S_T0}")
ad(f"s_lshl_b32 s{S_T0}, s{S_FH}, 12")
ad(f"s_add_u32 s{S_F2}, s{S_F2}, s{S_T0}")
ad(f"s_add_u32 s{S_F2}, s{S_F2}, {WS_C}")
NFL = len(ad.ins)
ad(f"s_lshr_b32 s{S_T0}, s{S_TB}, 2")
ad(f"s_bfe_u32 s{S_REP}, s{S_W}, 0x20003")
ad(f"s_lshl3_add_u32 s{S_T0}, s{S_T0}, s{S_REP}")
ad(f"s_lshl2_add_u32 s{S_T0}, s{S_T0}, s{S_V}")
ad(f"s_lshl_b32 s{S_T0}, s{S_T0}, 8")
ad(f"s_add_u32 s{S_T0}, s{S_T0}, {WS_C}")
ad(f"v_mov_b32 {v(V_F2)}, 0x7ff00000")
ad(f"v_writelane_b32 {v(V_F2)}, s{S_T0}, 0")
ad(f"s_add_u32 s{S_T0}, s{S_T0}, 4096")
ad(f"v_writelane_b32 {v(V_F2)}, s{S_T0}, 1")
ad(f"s_lshl2_add_u32 s{S_T2}, s{S_DB}, s{S_V}")
ad(f"s_lshl2_add_u32 s{S_T3}, s{S_T2}, s{S_REP}")
ad(f"s_lshl_b32 s{S_T3}, s{S_T3}, 8")
ad(f"s_add_u32 s{S_T3}, s{S_T3}, {WS_C + 896*256}")
ad(f"v_mov_b32 {v(V_F4)}, 0x7ff00000")
ad(f"v_writelane_b32 {v(V_F4)}, s{S_T3}, 0")
ad(f"s_mul_i32 s{S_T1}, s{S_V}, 56")
ad(f"s_mul_i32 s{S_T2}, s{S_T2}, {14*4096}")
ad(f"s_add_u32 s{S_T2}, s{S_T2}, {WS_WF}")
ad(f"v_add_u32 {v(V_WF)}, s{S_T2}, {v(V_L16)}")
ad(f"s_lshl_b32 s{S_HR}, s{S_DB}, 11")
for i in range(1, 7):
    ad(f"s_add_u32 s{S_HR+i}, s{S_HR}, {2048*i}")
    ad(f"s_sub_u32 s{S_T3}, s{S_HR+i}, 14336")
    ad(f"s_min_u32 s{S_HR+i}, s{S_HR+i}, s{S_T3}")
V_A = 17
ad(f"v_lshrrev_b32 v5, 4, {v(V_LANE)}")
ad(f"v_and_b32 v6, 15, {v(V_LANE)}")
ad(f"v_mul_u32_u24 v4, {PROW}, v5")
ad(f"v_lshl_add_u32 v4, v6, 4, v4")
ad(f"s_mul_i32 s{S_T1}, s{S_T1}, {PROW}")
ad(f"s_lshl_b32 s{S_T0}, s{S_TB}, 8")
ad(f"s_add_u32 s{S_T0}, s{S_T0}, s{S_T1}")
ad(f"s_add_u32 s{S_T0}, s{S_T0}, {WS_P}")
ad(f"v_add_u32 {v(V_A)}, s{S_T0}, v4")
ad(f"v_add_u32 {v(V_A+1)}, {4*PROW-1024}, {v(V_A)}")
ad1 = ad

def act_dma(gen):
    o = []
    for i in range(7):
        q = sub()
        q(f"s_add_u32 m0, s{S_ACTW if gen == 0 else S_Z}, s{S_HR+i}")
        q(f"s_mul_i32 s{S_WOFF}, s{S_HR+i}, {8*PROW//2048}")
        for k in range(2):
            of = f" offset:{1024*k}" if k else ""
            q(f"buffer_load_dwordx4 {v(V_A+k)}, {srd(SRD_WS)}, s{S_WOFF} offen{of} sc1 lds", tok=f"act{gen}")
        o.append(q.ins)
    return o


V_BR, V_S2, V_HST = 21, 22, 24
V_LF, V_LR = 28, 29
V_RES = 27
V_OST, V_RR, V_RW, V_HL, V_P3 = 40, 41, 42, 44, 45
SEL = 176
CSA = [180, 184]
ad = sub()
ad(f"v_add_u32 {v(V_F2)}, 0x8000, {v(V_F2)}")
ad(f"v_and_b32 v4, 31, {v(V_LANE)}")
ad(f"v_lshrrev_b32 v5, 5, {v(V_LANE)}")
ad(f"v_lshlrev_b32 v5, 10, v5")
ad(f"v_lshl_add_u32 {v(V_BR)}, v4, 2, v5")
ad(f"s_lshl_b32 s{S_T0}, s{S_TB}, 10")
ad(f"s_mul_i32 s{S_T1}, s{S_DB}, {S2REP}")
ad(f"s_add_u32 s{S_T0}, s{S_T0}, s{S_T1}")
ad(f"s_add_u32 s{S_T0}, s{S_T0}, {WS_S2}")
ad(f"v_lshl_add_u32 {v(V_S2)}, v4, 3, s{S_T0}")
ad(f"s_mov_b32 s{S_PERM}, 0x03020302")
ad(f"v_lshrrev_b32 v5, 4, {v(V_LANE)}")
ad(f"v_and_b32 v6, 15, {v(V_LANE)}")
ad(f"v_and_b32 v4, 1, v5")
ad(f"v_mul_u32_u24 v4, 57344, v4")
ad(f"v_lshl_add_u32 v4, v6, 4, v4")
ad(f"v_lshrrev_b32 v7, 1, v5")
ad(f"v_lshl_add_u32 v4, v7, 8, v4")
ad(f"s_mul_i32 s{S_T0}, s{S_TB}, {8*57344}")
ad(f"s_lshl_b32 s{S_T1}, s{S_FB}, 2")
ad(f"s_add_u32 s{S_T1}, s{S_T1}, s{S_V}")
ad(f"s_lshl_b32 s{S_T2}, s{S_T1}, 10")
ad(f"s_add_u32 s{S_T0}, s{S_T0}, {WS_H}")
ad(f"s_add_u32 s{S_T2}, s{S_T2}, s{S_T0}")
ad(f"v_add_u32 {v(V_HST)}, s{S_T2}, v4")
ad(f"s_mul_i32 s{S_T2}, s{S_FH}, 57344")
ad(f"s_add_u32 s{S_T0}, s{S_T0}, s{S_T2}")
ad(f"s_add_u32 s{S_T0}, s{S_T0}, s{S_ACTW}")
ad(f"v_add_u32 {v(V_HL)}, s{S_T0}, {v(V_L16)}")
ad(f"s_lshl_b32 s{S_T0}, s{S_TB}, 13")
ad(f"s_add_u32 s{S_T0}, s{S_T0}, {WS_C + 65536}")
ad(f"s_mul_i32 s{S_T1}, s{S_T1}, 37")
ad(f"s_and_b32 s{S_T1}, s{S_T1}, 0x600")
ad(f"s_add_u32 s{S_F3}, s{S_T0}, s{S_T1}")
ad(f"s_lshl1_add_u32 s{S_T1}, s{S_V}, s{S_FH}")
ad(f"s_lshl_b32 s{S_T1}, s{S_T1}, 8")
ad(f"s_add_u32 s{S_T0}, s{S_T0}, s{S_T1}")
ad(f"v_mov_b32 {v(V_P3)}, 0x7ff00000")
ad(f"v_writelane_b32 {v(V_P3)}, s{S_T0}, 0")
ad(f"s_add_u32 s{S_FW}, s{S_RING}, 32768")
ad(f"s_lshl_b32 s{S_R2}, s{S_V}, 14")
ad(f"s_add_u32 s{S_Z}, s{S_ACTW}, {L_ACT[1]}")
ad(f"v_add_u32 {v(V_LF)}, s{S_FW}, {v(V_L16)}")
ad(f"v_add_u32 {v(V_LR)}, s{S_R2}, {v(V_L16)}")
ad2 = ad
se = sub()
se(f"v_bfe_u32 v4, {v(V_LANE)}, 2, 2")
se(f"v_bfe_u32 v5, {v(V_LANE)}, 4, 1")
se(f"v_mov_b32 v6, 0x3f803f80")
se(f"v_cmp_eq_u32 vcc, v4, v5")
for i in range(4):
    se(f"v_cndmask_b32 {v(SEL+i)}, 0, v6, vcc")


def cs_mfma(ks0, ks1):
    q = sub()
    for ks in range(ks0, ks1):
        for m in range(2):
            c = "0" if ks == 0 else v(CSA[m], 4)
            q(f"v_mfma_f32_16x16x32_bf16 {v(CSA[m],4)}, {v(SEL,4)}, {acc(wfrag(m,ks),4)}, {c}")
    return q.ins


def pin_spread(g, start, ins, per=2):
    for i, x in enumerate(ins):
        g.at(int(start + i // per), [x])
    return int(start + (len(ins) + per - 1) // per)


mA, mB = conv_mfmas(0), conv_mfmas(1)
NOV = 22
bl = b_loads(0, 4)


def ab(rr):
    al = a_loads(rr, 0, 4)
    o = []
    for a in range(4):
        o += [bl[4 * rr + a]] + al[2 * a:2 * a + 2]
    return o


P.add(ab(0))
P.add(ea.ins)
P.add(eb.ins)
g = Gaps(mA + mB[:NOV], 2)
pr, pv = conv_pre(0)
l1 = ab(1) + ab(2) + pr + ab(3)
for i, x in enumerate(l1):
    g.at(i * 28 // len(l1), [x])
pin_vm(g, 1, b2, 3.2)
nb = b_loads(4, 8)
newl = []
for rr in range(4):
    newl += nb[4 * rr:4 * rr + 4] + a_loads(rr, 4, 8)
pin_spread(g, 30, newl[:12], per=1)
g.fill(pv, start=26, end=50)
xw, xb, xr = conv_xchg(0)
for i in range(4):
    g.at(42 + 2 * i, [xw[i]])
g.at(52, xb)
g.at(53, xr)
pin_spread(g, 54, newl[12:20], per=1)
P.add(g.out())
P.add(conv_post(0))
stamp("genA stored")
g = Gaps(mB[NOV:] + cs_mfma(0, 11), 2)
NB_ = len(mB) - NOV
pin_spread(g, 0, newl[20:], per=1)
fl = sub()
fl.wait("h0")
addcnt(fl, S_F2)
fl(f"s_add_u32 s{S_F2}, s{S_F2}, 0x8000")
g.at(int(OPT.get("fa", 30)), fl.ins)
tr2 = batch_tr(1)
for i in range(4):
    pin_spread(g, 10 + 9 * i, waitq(f"w2_{i}") + tr2[8 * i:8 * i + 8], per=1)
b3 = batch_dma(2, "w3")
for i in range(4):
    b3[i] = waitq(f"t1_{i}") + b3[i]
pin_vm(g, 24, b3, 3.3)
pr, pv = conv_pre(1)
pin_spread(g, 48, pr, per=1)
newl[-1].tok = "lastfrag"
bq = sub()
bq.wait("lastfrag")
bq("s_barrier")
g.at(46, bq.ins)
x2 = sub()
x2(f"v_add_u32 {v(V_EXW)}, {L_KC}, {v(V_EXW)}")
x2(f"s_lshl_b32 s{S_T0}, s{S_V}, 12")
x2(f"s_add_u32 s{S_T0}, s{S_T0}, {L_KC}")
x2(f"v_add_u32 {v(V_EXR)}, s{S_T0}, {v(V_L16)}")
PA1, PA2, PAC = int(OPT.get("pa1", 54)), int(OPT.get("pa2", 68)), int(OPT.get("pac", 80))
e = g.fill(ad1.ins[:NFL], start=0, end=int(OPT.get("fa", 30)))
e = g.fill(ad1.ins[NFL:NFL + 10], start=e, end=PA1)
e = g.fill(ad1.ins[NFL + 10:] + se.ins + x2.ins, start=e, end=PAC - 1)
g.fill(pv, start=max(e, 56), end=NB_ + 12)
g.at(PA1, poll_issue(V_F2, 7))
g.at(PA2, poll_issue(V_F2, 23))
g.at(PAC, stq("pre pollA") + poll_check2(V_F2, 7, 23, "3", f"s{S_E28}") + stq("post pollA"))
a0 = singles(act_dma(0))
na = (103 - PAC) // 3 + 1
pin_vm(g, PAC, a0[:na], 3)
xw, xb, xr = conv_xchg(1)
for i in range(4):
    g.at(NB_ + 2 + 2 * i, [xw[i]])
g.at(NB_ + 12, xb)
g.at(NB_ + 13, xr)
P.add(g.out())
p1 = conv_post(1)
P.add(sprinkle(p1, [(4 + 14 * i, u) for i, u in enumerate(a0[na:na + 3])]))
stamp("genB stored")
g = Gaps(cs_mfma(11, 24), 4)
g.at(1, poll_issue(V_F4, 25))
tr3 = batch_tr(2)
t3 = []
for i in (2, 3, 0, 1):
    t3 += waitq(f"w3_{i}") + tr3[8 * i:8 * i + 8]
pin_spread(g, 0, t3, per=4)
e = pin_vm(g, 0, a0[na + 3:] + [waitq("t2_3") + w_dma(6, 0, 8, "w4"), w_dma(6, 1, 12, "w4")], 2)
fl = sub()
fl.wait("h1")
addcnt(fl, S_F2)
g.fill(ad2.ins, start=9)
P.add(g.out())
P.add(fl.ins)
stamp("gap work done")

GACC = [64, 96]
BF = 128
NBF = 8
MB = 160
KC_ = [14, 9]
STT = 60
EPT = 164
HP = 172
WDV = 188
RESR = [46, 48, 50, 52]
A_CS = [224, 228]
GC0 = -2.0 * math.sqrt(2.0 / math.pi) * LOG2E


def st_issue(J, atomic=None):
    q = sub()
    t = STT + 2 * (J & 1)
    atomic = False if atomic is None else atomic
    if atomic:
        q(f"v_mov_b64 {v(t,2)}, 0")
        q(f"buffer_atomic_add_x2 {v(t,2)}, {v(V_S2)}, {srd(SRD_WS)}, 0 offen offset:{256*J} sc0")
    else:
        q(f"buffer_load_dwordx2 {v(t,2)}, {v(V_S2)}, {srd(SRD_WS)}, 0 offen offset:{256*J} sc1")
    return q.ins


def st_check(J):
    q = sub()
    t = STT + 2 * (J & 1)
    slow, done = label("sslow"), label("sdone")
    q(f"v_cmp_ne_u32 vcc, s{S_NONCE}, {v(t+1)}")
    q(f"s_cbranch_vccnz {slow}")
    q(f"{done}:")
    spin(TAIL, slow, done, st_issue(J, True), t + 1, sleep=1)
    return q.ins


def st_final(J):
    q = sub()
    kc = KC_[J & 1]
    t = STT + 2 * (J & 1)
    q(f"v_perm_b32 {v(MB)}, {v(t)}, {v(t)}, s{S_PERM}")
    q(f"v_lshlrev_b32 {v(t+1)}, 16, {v(t)}")
    q(f"v_rcp_f32 {v(t)}, {v(t+1)}")
    q(f"v_mul_f32 {v(kc+2)}, {v(t+1)}, {v(t+1)}")
    q(f"v_mul_f32 {v(kc)}, {f32(GC0)}, {v(t)}")
    q(f"v_mul_f32 {v(kc+1)}, {v(t)}, {v(t)}")
    q(f"v_mul_f32 {v(kc+1)}, {v(kc+1)}, {v(kc)}")
    q(f"v_mul_f32 {v(kc+1)}, {f32(0.044715)}, {v(kc+1)}")
    return q.ins


SP = Prog()
spn = [1]


def sps():
    if STAMPS and "lite" in OPT:
        SP(f"s_memrealtime s[{S_STAMP}:{S_STAMP+1}]")
        SP("s_waitcnt lgkmcnt(0)")
        SP(f"v_writelane_b32 v255, s{S_STAMP}, {spn[0]}")
        spn[0] += 1


SP("L_spare:")
SP("s_waitcnt vmcnt(0)")
SP("s_barrier")
sps()
SP(f"s_and_b32 s{S_T0}, s{S_W}, 6")
SP(f"s_lshl_b32 s{S_T0}, s{S_T0}, 1")
SP(f"s_bfe_u32 s{S_T1}, s{S_W}, 0x20003")
SP(f"s_add_u32 s{S_TB}, s{S_T0}, s{S_T1}")
SP(f"s_lshr_b32 s{S_T0}, s{S_TB}, 2")
SP(f"s_lshl2_add_u32 s{S_T0}, s{S_FH}, s{S_T0}")
SP(f"s_lshl3_add_u32 s{S_T0}, s{S_T0}, s{S_T1}")
SP(f"s_lshl2_add_u32 s{S_T0}, s{S_T0}, s{S_V}")
SP(f"s_lshl_b32 s{S_T0}, s{S_T0}, 8")
SP(f"s_add_u32 s{S_T0}, s{S_T0}, {WS_C}")
SP(f"v_and_b32 v4, 1, {v(V_LANE)}")
SP(f"v_lshl_add_u32 v10, v4, 12, s{S_T0}")
SP(f"s_mul_i32 s{S_T1}, s{S_V}, 56")
SP(f"v_mov_b32 {v(V_NONCE)}, 7")
flg_lanes(SP, 4)
SP(f"v_lshrrev_b32 v5, 4, {v(V_LANE)}")
SP(f"v_and_b32 v6, 15, {v(V_LANE)}")
SP(f"v_mul_u32_u24 v4, {PROW}, v5")
SP(f"v_lshl_add_u32 v4, v6, 4, v4")
SP(f"s_mul_i32 s{S_T1}, s{S_T1}, {PROW}")
SP(f"s_lshl_b32 s{S_T0}, s{S_TB}, 8")
SP(f"s_add_u32 s{S_T0}, s{S_T0}, s{S_T1}")
SP(f"s_mul_i32 s{S_T1}, s{S_FH}, {PGEN}")
SP(f"s_add_u32 s{S_T0}, s{S_T0}, s{S_T1}")
SP(f"s_add_u32 s{S_T0}, s{S_T0}, {WS_P}")
SP(f"v_add_u32 v11, s{S_T0}, v4")
SP(f"v_lshl_add_u32 v4, v6, 2, v5")
SP(f"s_lshl_b32 s{S_T0}, s{S_V}, 9")
SP(f"v_lshl_add_u32 v12, v4, 3, s{S_T0}")
SP(f"v_lshlrev_b32 v13, 3, {v(V_LANE)}")
SP(f"v_mov_b32 v14, 0x3f803f80")
SP(f"s_sub_u32 s{S_T1}, s{S_W}, 224")
SP(f"s_lshr_b32 s{S_T0}, s{S_V}, 1")
SP(f"s_lshl1_add_u32 s{S_T1}, s{S_T1}, s{S_T0}")
SP(f"s_mul_i32 s{S_T1}, s{S_T1}, {35*128}")
SP(f"s_add_u32 s{S_T1}, s{S_T1}, {3584*128}")
SP(f"v_min_u32 v4, 34, {v(V_LANE)}")
SP(f"v_lshl_add_u32 v4, v4, 7, s{S_T1}")
for k in range(4):
    SP(f"global_load_dword {v(60+k)}, v4, s[{S_PFB}:{S_PFB+1}]")
    if k < 3:
        SP(f"v_add_u32 v4, {2240*128}, v4")
SP(f"s_sub_u32 s{S_T1}, s{S_W}, 224")
SP(f"s_cmp_ge_u32 s{S_T1}, 28")
SP("s_cbranch_scc1 L_sp_nowf")
SP(f"s_lshr_b32 s{S_DB}, s{S_T1}, 2")
SP(f"s_and_b32 s{S_T2}, s{S_T1}, 3")
SP(f"s_lshl_b32 s{S_F3}, s{S_T1}, 10")
SP(f"s_add_u32 s{S_F3}, s{S_F3}, {WS_C + 896*256}")
SP(f"s_mul_i32 s{S_T1}, s{S_T1}, {14*4096}")
SP(f"s_add_u32 s{S_T1}, s{S_T1}, {WS_WF}")
SP(f"v_add_u32 v20, s{S_T1}, {v(V_L16)}")
SP(f"v_lshrrev_b32 v6, 3, {v(V_LANE)}")
SP(f"v_and_b32 v7, 6, v6")
SP(f"v_and_b32 v5, 7, {v(V_LANE)}")
SP(f"v_xor_b32 v7, v7, v5")
SP(f"v_mul_u32_u24 v6, 896, v6")
SP(f"v_lshl_add_u32 v6, v7, 4, v6")
SP(f"s_mul_i32 s{S_T0}, s{S_T2}, {448*896}")
SP(f"s_lshl_b32 s{S_T1}, s{S_DB}, 7")
SP(f"s_add_u32 s{S_T0}, s{S_T0}, s{S_T1}")
SP(f"v_add_u32 v48, s{S_T0}, v6")
for k in range(1, 4):
    SP(f"v_add_u32 {v(48+k)}, {k*(7168-1024)}, v48")
SP(f"s_lshl_b32 s{S_R2}, s{S_V}, 14")
SP(f"s_add_u32 s{S_R2}, s{S_R2}, 4096")
for i in range(4):
    SP(f"s_lshl2_add_u32 s{S_HR+i}, s{S_V}, {i}")
    SP(f"s_min_u32 s{S_HR+i}, s{S_HR+i}, 13")
    SP(f"s_lshl1_add_u32 s{S_T0}, s{S_DB}, s{S_HR+i}")
    SP(f"s_sub_u32 s{S_T1}, s{S_T0}, 14")
    SP(f"s_cmp_ge_u32 s{S_T0}, 14")
    SP(f"s_cselect_b32 s{S_T0}, s{S_T1}, s{S_T0}")
    SP(f"s_mul_i32 s{S_WOFF}, s{S_T0}, {32*896}")
    SP(f"s_add_u32 m0, s{S_R2}, {4096*i}")
    SP(f"s_lshl_b32 s{S_HR+i}, s{S_HR+i}, 12")
    for k in range(4):
        of = f" offset:{1024*k}" if k else ""
        SP(f"buffer_load_dwordx4 {v(48+k)}, {srd(SRD_WD)}, s{S_WOFF} offen{of} lds", tok=f"sw{i}")
SP(f"v_lshrrev_b32 v4, 4, {v(V_LANE)}")
SP(f"v_lshrrev_b32 v6, 1, v4")
SP(f"v_lshlrev_b32 v6, 4, v6")
SP(f"v_and_b32 v7, 1, v4")
SP(f"v_lshl_add_u32 v6, v7, 2, v6")
SP(f"v_bfe_u32 v7, {v(V_LANE)}, 2, 2")
SP(f"v_add_u32 v6, v6, v7")
SP(f"v_bfe_u32 v7, v6, 1, 2")
SP(f"v_lshlrev_b32 v6, 7, v6")
SP(f"v_and_b32 v5, 3, {v(V_LANE)}")
SP(f"v_lshl_add_u32 v6, v5, 3, v6")
for rt in range(4):
    SP(f"v_xor_b32 v5, {rt}, v7")
    SP(f"v_lshl_add_u32 v5, v5, 5, v6")
    SP(f"v_add_u32 {v(52+rt)}, s{S_R2}, v5")
for i in range(4):
    SP.wait(f"sw{i}")
    if i in (0, 3): sps()
    for rt in range(4):
        for h in range(2):
            SP(f"ds_read_b64_tr_b16 {v(64+16*i+4*rt+2*h,2)}, {v(52+rt)} offset:{4096*i+1024*h}")
    for rt in range(4):
        SP(f"buffer_store_dwordx4 {v(64+16*i+4*rt,4)}, v20, {srd(SRD_WS)}, s{S_HR+i} offen offset:{1024*rt} sc1")
SP("s_waitcnt vmcnt(0)")
addcnt(SP, S_F3)
sps()
SP("L_sp_nowf:")
sps()
SP("s_mov_b64 vcc, 3")
spin(SP, "L_sp_c", "L_sp_d", poll_issue(10, 7), 7, sleep=int(OPT.get('spsleep', 2)), exp=f"s{S_E28}")
SP("L_sp_d:")
sps()
for k in range(14):
    SP(f"s_mov_b32 s{S_T0}, {k*4*PROW}")
    SP(f"buffer_load_dwordx4 {v(64+4*k,4)}, v11, {srd(SRD_WS)}, s{S_T0} offen sc1")
SS = 16
for j in range(8):
    SP(f"v_mov_b32 {v(SS+j)}, 0")
for k in range(14):
    for j in range(4):
        SP(f"v_dot2c_f32_bf16 {v(SS+j)}, {v(64+4*k+j)}, v14")
    for j in range(4):
        SP(f"v_dot2c_f32_bf16 {v(SS+4+j)}, {v(64+4*k+j)}, {v(64+4*k+j)}")
for o in (0, 4):
    SP(f"v_permlane32_swap_b32 {v(SS+o)}, {v(SS+o+2)}")
    SP(f"v_permlane32_swap_b32 {v(SS+o+1)}, {v(SS+o+3)}")
for o in (0, 4):
    SP(f"v_add_f32 {v(SS+o)}, {v(SS+o)}, {v(SS+o+2)}")
    SP(f"v_add_f32 {v(SS+o+1)}, {v(SS+o+1)}, {v(SS+o+3)}")
for o in (0, 4):
    SP(f"v_permlane16_swap_b32 {v(SS+o)}, {v(SS+o+1)}")
SP(f"v_add_f32 {v(SS)}, {v(SS)}, {v(SS+1)}")
SP(f"v_add_f32 {v(SS+1)}, {v(SS+4)}, {v(SS+5)}")
sps()
SP(f"ds_write_b64 v12, {v(SS,2)}")
SP("s_waitcnt lgkmcnt(0)")
SP("s_barrier")
SP(f"s_cmp_lg_u32 s{S_V}, 0")
SP("s_cbranch_scc1 L_fin")
t = 24
for w in range(4):
    SP(f"ds_read_b64 {v(t+2*w,2)}, v13 offset:{512*w}")
SP(f"s_lshl_b32 s{S_T0}, s{S_TB}, 1")
SP(f"s_add_u32 s{S_T0}, s{S_T0}, s{S_FH}")
SP(f"s_lshl_b32 s{S_T0}, s{S_T0}, 9")
SP(f"s_add_u32 s{S_T0}, s{S_T0}, {WS_S2}")
SP(f"v_pk_add_f32 {v(t,2)}, {v(t,2)}, {v(t+2,2)}")
SP(f"v_pk_add_f32 {v(t+4,2)}, {v(t+4,2)}, {v(t+6,2)}")
SP(f"v_pk_add_f32 {v(t,2)}, {v(t,2)}, {v(t+4,2)}")
SP(f"v_mul_f32 {v(t)}, s{S_K0}, {v(t)}")
SP(f"v_mul_f32 {v(t+1)}, s{S_K0}, {v(t+1)}")
SP(f"v_fma_f32 {v(t+1)}, -{v(t)}, {v(t)}, {v(t+1)}")
SP(f"v_max_f32 {v(t+1)}, 0, {v(t+1)}")
round_bf16(SP, t + 1, t + 1)
SP(f"v_add_f32 {v(t+1)}, {f32(1e-5)}, {v(t+1)}")
round_bf16(SP, t + 1, t + 1)
SP(f"v_sqrt_f32 {v(t+1)}, {v(t+1)}")
SP(f"v_cvt_pk_bf16_f32 {v(t)}, {v(t+1)}, -{v(t)}")
SP(f"v_mov_b32 {v(t+1)}, s{S_NONCE}")
for r_ in range(7):
    SP(f"buffer_store_dwordx2 {v(t,2)}, v13, {srd(SRD_WS)}, s{S_T0} offen sc1")
    SP(f"s_add_u32 s{S_T0}, s{S_T0}, {S2REP}")
sps()
SP(f"s_cmp_lg_u32 s{S_W}, 255")
SP("s_cbranch_scc1 L_fin")
SP(f"v_lshlrev_b32 v4, 25, {v(V_LANE)}")
SP(f"buffer_store_dword {v(t+1)}, v4, {srd(SRD_WS)}, 0 offen sc1")
SP("s_branch L_fin")


def b_read(J, ks):
    q = sub()
    b = BF + 4 * (ks % NBF)
    q(f"ds_read2st64_b32 {v(b,2)}, {v(V_BR)} offset0:{8*ks} offset1:{8*ks+1}")
    q(f"ds_read2st64_b32 {v(b+2,2)}, {v(V_BR)} offset0:{8*ks+2} offset1:{8*ks+3}", tok=f"b{J}_{ks}")
    return q.ins


def g1_gaps(J, extra_after=None):
    m = sub()
    g0 = GACC[J & 1]
    for ks in range(28):
        for mm in range(2):
            d = g0 + 16 * mm
            c = "0" if ks == 0 else v(d, 16)
            m(f"v_mfma_f32_32x32x16_bf16 {v(d,16)}, {acc(wfrag(mm,ks),4)}, {v(BF+4*(ks%NBF),4)}, {c}")
    for mm in range(2):
        d = g0 + 16 * mm
        m(f"v_mfma_f32_32x32x16_bf16 {v(d,16)}, {acc(A_CS[mm],4)}, {v(MB,4)}, {v(d,16)}")
    g = Gaps(m.ins, 6)
    for ks in range(28):
        k2 = ks + NBF - 1
        if k2 < 28:
            r = b_read(J, k2)
            g.at(2 * ks, [r[0]])
            g.at(2 * ks + 1, [r[1]])
        if ks % 3 == 2 and ks + 1 < 28:
            w = sub()
            w.wait(f"b{J}_{min(ks+3,27)}")
            g.at(2 * ks + 1, w.ins)
    return g


def next_tile_reads(g, J, delta, first=42):
    q = sub()
    q(f"v_add_u32 {v(V_BR)}, {delta}, {v(V_BR)}")
    g.at(first, q.ins)
    for ks in range(NBF - 1):
        old = max(k for k in range(28) if k % NBF == ks)
        r = b_read(J, ks)
        at = max(2 * old + 1, first + 1)
        g.at(at, r[:1])
        g.at(min(at + 1, 57), r[1:])


def g1_epi(J):
    q = sub()
    g = GACC[J & 1]
    kc = KC_[J & 1]
    T = EPT
    for j0 in range(0, 16, 4):
        js = range(j0, j0 + 4)
        for j in js:
            q(f"v_mul_f32 {v(T+j-j0)}, {v(g+j)}, {v(g+j)}")
        for j in js:
            q(f"v_fma_f32 {v(T+j-j0)}, {v(T+j-j0)}, {v(kc+1)}, {v(kc)}")
        for j in js:
            q(f"v_mul_f32 {v(T+j-j0)}, {v(T+j-j0)}, {v(g+j)}")
        for j in js:
            q(f"v_exp_f32 {v(T+j-j0)}, {v(T+j-j0)}")
            q(f"v_mul_f32 {v(T+4+j-j0)}, {v(g+j)}, {v(g+16+j)}")
        for j in js:
            q(f"v_fma_f32 {v(T+j-j0)}, {v(T+j-j0)}, {v(kc+2)}, {v(kc+2)}")
        for j in js:
            q(f"v_rcp_f32 {v(T+j-j0)}, {v(T+j-j0)}")
        for j in js:
            q(f"v_mul_f32 {v(T+4+j-j0)}, {v(T+4+j-j0)}, {v(T+j-j0)}")
        q(f"v_cvt_pk_bf16_f32 {v(HP+(j0//2)%4)}, {v(T+4)}, {v(T+5)}")
        q(f"v_cvt_pk_bf16_f32 {v(HP+(j0//2)%4+1)}, {v(T+6)}, {v(T+7)}")
        if j0 in (4, 12):
            q2 = j0 // 8
            q(f"buffer_store_dwordx4 {v(HP,4)}, {v(V_HST)}, {srd(SRD_WS)}, 0 offen offset:{512*q2} sc1", tok=f"H{J}")
    q(f"v_add_u32 {v(V_HST)}, {2*57344}, {v(V_HST)}")
    return q.ins


def flag3(J):
    q = sub()
    q.wait(f"H{J}")
    addcnt(q, S_F3)
    q(f"s_add_u32 s{S_F3}, s{S_F3}, 2048")
    return q.ins


WDREG = {}
for i in range(4):
    for rt in range(4):
        WDREG[i, rt] = v(WDV + 16 * i + 4 * rt, 4)
        WDREG[10, rt] = acc(240 + 4 * rt, 4)
        WDREG[11, rt] = v([176, 180, 184, 56][rt], 4)
        WDREG[12, rt] = acc(4 * rt, 4)
        WDREG[13, rt] = acc(16 + 4 * rt, 4)
for i in range(6):
    for rt in range(4):
        WDREG[4 + i, rt] = acc(128 + 16 * i + 4 * rt, 4)
KORD = [0, 1, 2, 3, 10, 11, 12, 13, 4, 5, 6, 7, 8, 9]


def wdr(ft, rt):
    return WDREG[ft, rt]


def wd_load(ft):
    q = sub()
    q(f"s_mov_b32 s{S_WOFF}, {ft*4096}")
    for k in range(4):
        of = f" offset:{1024*k}" if k else ""
        q(f"buffer_load_dwordx4 {wdr(ft,k)}, {v(V_WF)}, {srd(SRD_WS)}, s{S_WOFF} offen{of} sc1")
    return q.ins


def wd_dma(ft):
    q = sub()
    sbase, slot = (S_FW, ft - 4) if ft < 6 else (S_R2, ft - 6)
    q(f"s_add_u32 m0, s{sbase}, {slot*4096}")
    q(f"s_mov_b32 s{S_WOFF}, {ft*4096}")
    for k in range(4):
        of = f" offset:{1024*k}" if k else ""
        q(f"buffer_load_dwordx4 {v(V_WF)}, {srd(SRD_WS)}, s{S_WOFF} offen{of} sc1 lds", tok=f"wd{ft}")
    return q.ins


def wd_read(ft):
    q = sub()
    va, slot = (V_LF, ft - 4) if ft < 6 else (V_LR, ft - 6)
    for rt in range(4):
        q(f"ds_read_b128 {wdr(ft,rt)}, {v(va)} offset:{4096*slot+1024*rt}")
    return q.ins


def res_read(J):
    q = sub()
    q(f"ds_read2st64_b32 {v(RESR[J],2)}, {v(V_RES)} offset0:0 offset1:1", tok=f"res{J}")
    q(f"v_add_u32 {v(V_RES)}, {128 if J % 2 == 0 else L_ACT[1]-128}, {v(V_RES)}")
    return q.ins


ad = sub()
ad(f"v_lshrrev_b32 v4, 4, v0")
ad(f"v_and_b32 v5, 15, v0")
ad(f"v_lshlrev_b32 v6, 9, v5")
ad(f"v_lshl_add_u32 v6, v4, 2, v6")
ad(f"s_lshl_b32 s{S_T0}, s{S_DB}, 13")
ad(f"s_lshl_b32 s{S_T1}, s{S_FH}, 6")
ad(f"s_add_u32 s{S_T0}, s{S_T0}, s{S_T1}")
ad(f"v_add_u32 {v(V_RES)}, s{S_T0}, v6")
ad(f"v_lshrrev_b32 v6, 2, v4")
ad(f"v_and_b32 v7, 3, v4")
ad(f"v_lshl_add_u32 v6, v6, 4, v7")
ad(f"v_mul_u32_u24 v6, 896, v6")
ad(f"v_lshl_add_u32 v6, v5, 3, v6")
ad(f"s_lshr_b32 s{S_T0}, s{S_TB}, 2")
ad(f"s_lshl_b32 s{S_T0}, s{S_T0}, 8")
ad(f"s_add_u32 s{S_T0}, s{S_T0}, s{S_T1}")
ad(f"s_and_b32 s{S_T1}, s{S_TB}, 3")
ad(f"s_lshl_b32 s{S_T1}, s{S_T1}, 2")
ad(f"s_add_u32 s{S_T0}, s{S_T0}, s{S_T1}")
ad(f"s_mul_i32 s{S_T0}, s{S_T0}, 896")
ad(f"s_lshl_b32 s{S_T1}, s{S_DB}, 7")
ad(f"s_add_u32 s{S_T0}, s{S_T0}, s{S_T1}")
ad(f"v_add_u32 {v(V_OST)}, s{S_T0}, v6")
ad(f"v_mul_u32_u24 v6, 272, v5")
ad(f"v_lshl_add_u32 v6, v4, 4, v6")
ad(f"v_add_u32 {v(V_RR)}, {L_R}, v6")
ad(f"v_lshrrev_b32 v4, 4, {v(V_LANE)}")
ad(f"v_mul_u32_u24 v6, 272, v4")
ad(f"v_lshl_add_u32 v6, v5, 4, v6")
ad(f"s_mul_i32 s{S_T0}, s{S_V}, 4352")
ad(f"s_add_u32 s{S_T0}, s{S_T0}, {L_R}")
ad(f"v_add_u32 {v(V_RW)}, s{S_T0}, v6")
flg_lanes(ad, 2)
ad(f"v_add_u32 {v(V_A)}, {PGEN}, {v(V_A)}")
ad(f"v_add_u32 {v(V_A+1)}, {PGEN}, {v(V_A+1)}")

for i in range(1, 4):
    P(f"v_mov_b32 {v(MB+i)}, 0")
    P(f"v_accvgpr_write_b32 {acc(A_CS[0]+i)}, 0")
    P(f"v_accvgpr_write_b32 {acc(A_CS[1]+i)}, 0")
P.wait("act0")
P("s_waitcnt lgkmcnt(0)")
P("s_barrier")
stamp("gemm1 start")
for ks in range(NBF - 1):
    P.add(b_read(0, ks))

def hreg(J, ft):
    n = KORD.index(ft)
    if J in (0, 3):
        return acc(32 + 4 * n, 4)
    if J == 1:
        return v(64 + 4 * n if n < 8 else 128 + 4 * (n - 8), 4)
    return v(96 + 4 * n if n < 8 else 152 + 4 * (n - 8), 4)


def h_loads(J):
    o = []
    for s_ in KORD:
        q = sub()
        of = " offset:1024" if s_ % 2 else ""
        q(f"buffer_load_dwordx4 {hreg(J,s_)}, {v(V_HL)}, {srd(SRD_WS)}, s{S_HR+s_//2} offen{of} sc1")
        o.append(q.ins)
    if J < 3:
        q = sub()
        q(f"v_add_u32 {v(V_HL)}, {2*57344}, {v(V_HL)}")
        o[-1] += q.ins
    return o


def p3_next():
    q = sub()
    q(f"v_add_u32 {v(V_P3)}, 2048, {v(V_P3)}")
    return q.ins


g = g1_gaps(0)
g.at(0, poll_check(V_F4, 25))
pin_vm(g, 0, [wd_load(0), wd_load(1), wd_load(2), wd_load(3)], 2.3)
t4 = w_tr(6, 0, 8, "t4") + w_tr(6, 1, 12, "t4")
g.at(17, waitq("w4"))
pin_spread(g, 17, t4, per=2)
e = g.fill(ad.ins, start=0)
assert e < 24, e
g.at(28, waitq("t4") + cs_mfma(24, 28))
cf = sub()
for m in range(2):
    round_bf16(cf, 54, CSA[m])
    cf(f"v_sub_f32 v55, {v(CSA[m])}, v54")
    cf(f"v_cvt_pk_bf16_f32 v54, v54, v55")
    cf(f"v_accvgpr_write_b32 {acc(A_CS[m])}, v54")
g.fill(cf.ins, start=32, end=50)
g.at(int(OPT.get("pb1", 21)), poll_issue(V_F2, 23))
g.at(int(OPT.get("pb2", 37)), poll_issue(V_F2, 25))
g.at(int(OPT.get("st0", 36)), st_issue(0))
pin_vm(g, 38, [wd_dma(4), wd_dma(5)], 2.3)
g.at(53, stq("t0 pre st") + st_check(0) + stq("t0 post st"))
g.fill(st_final(0), start=53, end=55)
g.at(57, stq("t0 pre pB") + poll_check2(V_F2, 23, 25, "3", f"s{S_E28}") + stq("t0 post pB"))
next_tile_reads(g, 1, 128)
P.add(g.out())
stamp("tile0")
g = g1_gaps(1)
e = pin_vm(g, 0, act_dma(1)[:2] + [st_issue(1)] + act_dma(1)[2:], 2)
pin_vm(g, e + 1, [wd_load(10)], 3)
g.at(43, res_read(0))
g.at(45, res_read(1))
g.at(40, st_check(1))
g.fill(st_final(1), start=41, end=54)
bq = sub()
bq.wait("act1")
bq.wait("res1")
bq("s_barrier")
BB = int(OPT.get("bb", 52))
g.at(BB, stq("t1 pre bar") + bq.ins + stq("t1 post bar"))
next_tile_reads(g, 2, L_ACT[1] - 128, first=BB)
e = g.fill(g1_epi(0), start=3)
print("tile 1: epilogue ends at gap", e, "tail", len(g.tail))
P.add(g.out())
stamp("tile1")
g = g1_gaps(2)
pin_vm(g, 0, [wd_dma(6), wd_dma(7), st_issue(2), wd_dma(8), wd_dma(9), wd_load(11), st_issue(3)], 2.5)
g.at(24, flag3(0))
g.at(49, st_check(2))
g.fill(st_final(2), start=50, end=54)
g.at(56, poll_issue(V_P3, 7))
next_tile_reads(g, 3, 128)
e = g.fill(g1_epi(1), start=3)
print("tile 2: epilogue ends at gap", e, "tail", len(g.tail))
P.add(g.out())
stamp("tile2")
g = g1_gaps(3)
T3S = float(OPT.get("t3s", 2.4))
e = pin_vm(g, 4, [wd_load(12), wd_load(13)], T3S)
g.at(int(OPT.get("f1", 21)), flag3(1))
g.at(48, st_check(3))
g.fill(st_final(3), start=49, end=54)
g.at(e - 1, stq("t3 pre p0") + poll_check(V_P3, 7) + stq("t3 post p0") + p3_next())
pin_vm(g, e, h_loads(0), T3S)
g.at(int(OPT.get("p1", 47)), poll_issue(V_P3, 7))
g.at(52, res_read(2))
g.at(54, res_read(3))
e = g.fill(g1_epi(2), start=2)
print("tile 3: epilogue ends at gap", e, "tail", len(g.tail))
P.add(g.out())
stamp("tile3")
P.add(waitq("wd9") + wd_read(4) + wd_read(5))
ep = g1_epi(3)
h1 = h_loads(1)
NE = int(OPT.get("ne", 3))
P.add(sprinkle(ep, [(int(OPT.get("f2", 120)), flag3(2))] + [(68, poll_check(V_P3, 7) + p3_next())] + [(69 + 22 * i, h1[i]) for i in range(NE)]))
stamp("epi3")

OA = [8, 48]
OA = [224, 96]
RT = 176


def g2_mfma(J):
    m = sub()
    for ft in KORD:
        for rt in range(4):
            d = acc(OA[J & 1] + 4 * rt, 4)
            c = "0" if ft == 0 else d
            m(f"v_mfma_f32_16x16x32_bf16 {d}, {wdr(ft,rt)}, {hreg(J,ft)}, {c}")
    return m.ins


RTMP = [28, 32, 36, 12]


def red_write(J):
    q = sub()
    for rt in range(4):
        q(f"ds_write_b128 {v(V_RW)}, {acc(OA[J&1]+4*rt,4)} offset:{(J&1)*R_SZ + rt*1088}")
    return q.ins


def red_bar():
    q = sub()
    q("s_waitcnt lgkmcnt(0)")
    q("s_barrier")
    return q.ins


def red_read(J):
    q = sub()
    for w in range(4):
        q(f"ds_read_b128 {v(RTMP[w],4)}, {v(V_RR)} offset:{(J&1)*R_SZ + w*4352}")
    return q.ins


def red_fin(J):
    q = sub()
    a, b, c, d = RTMP
    for i in range(2):
        q(f"v_lshlrev_b32 {v(16+2*i)}, 16, {v(RESR[J]+i)}")
        q(f"v_and_b32 {v(17+2*i)}, 0xffff0000, {v(RESR[J]+i)}")
    for i in range(4):
        q(f"v_add_f32 {v(a+i)}, {v(a+i)}, {v(b+i)}")
    for i in range(4):
        q(f"v_add_f32 {v(c+i)}, {v(c+i)}, {v(d+i)}")
    for i in range(4):
        q(f"v_add_f32 {v(a+i)}, {v(a+i)}, {v(16+i)}")
    for i in range(4):
        q(f"v_add_f32 {v(a+i)}, {v(a+i)}, {v(c+i)}")
    for i in range(2):
        q(f"v_cvt_pk_bf16_f32 {v(20+i)}, {v(a+2*i)}, {v(a+2*i+1)}")
    q(f"s_mov_b32 s{S_T0}, {(1024*(J>>1) + 128*(J&1))*896}")
    q(f"buffer_store_dwordx2 v[20:21], {v(V_OST)}, {srd(SRD_OUT)}, s{S_T0} offen {OPT.get('ost', '').replace('_', ' ')}")
    return q.ins


for J in range(4):
    g = Gaps(g2_mfma(J), 2)
    if J > 0:
        pin_spread(g, 4, red_write(J - 1), per=1)
        g.at(16, red_bar())
        pin_spread(g, 17, red_read(J - 1), per=1)
        g.fill(red_fin(J - 1), start=28)
    if J == 0:
        pin_vm(g, 0, h1[NE:], float(OPT.get("hs1", 4)))
        for i, x in enumerate(wd_read(6) + wd_read(7) + wd_read(8) + wd_read(9)):
            g.at(1 + 2 * i, [x])
        g.at(int(OPT.get("p2a", 18)), poll_issue(V_P3, 7))
        g.at(int(OPT.get("p2b", 36)), poll_issue(V_P3, 23))
        g.at(int(OPT.get("f3", 42)), flag3(3))
        bq = sub()
        bq.wait("res3")
        bq("s_barrier")
        g.at(52, bq.ins)
        g.at(55, poll_check2(V_P3, 7, 23, "1", f"s{S_E14}") + p3_next())
    if J == 1:
        pin_vm(g, 0, h_loads(2), float(OPT.get("hs", 3.5)))
        g.at(int(OPT.get("p3a", 14)), poll_issue(V_P3, 7))
        g.at(int(OPT.get("p3b", 32)), poll_issue(V_P3, 23))
        g.at(55, poll_check2(V_P3, 7, 23, "1", f"s{S_E14}"))
    if J == 2:
        pin_vm(g, 0, h_loads(3), float(OPT.get("hs3", 2)))
    P.add(g.out())
    stamp(f"g2 tile{J}")
P.add(red_write(3))
P.add(red_bar())
P.add(red_read(3))
P.add(red_fin(3))
stamp("end")

P("L_fin:")
if STAMPS:
    P(f"s_lshl_b32 s{S_T0}, s{S_W}, 2")
    P(f"s_add_u32 s{S_T0}, s{S_T0}, s{S_V}")
    P(f"s_lshl_b32 s{S_T0}, s{S_T0}, 8")
    P(f"s_add_u32 s{S_T0}, s{S_T0}, {WS_DBG + 0x800000}")
    P(f"v_lshlrev_b32 v4, 2, v1")
    P(f"buffer_store_dword v255, v4, {srd(SRD_WS)}, s{S_T0} offen")
if "dbgout" in OPT:
    P(f"s_cmp_ge_u32 s{S_W}, 224")
    P("s_cbranch_scc1 L_end")
    P(f"v_readlane_b32 s{S_T0}, v255, 0")
    P(f"s_not_b32 s{S_T0}, s{S_T0}")
    P(f"v_writelane_b32 v255, s{S_T0}, 15")
    P("s_mov_b64 exec, 0xffff")
    P(f"v_lshlrev_b32 v4, 2, v1")
    P("global_atomic_umax v4, v255, s[60:61]")
P("L_end:")
P("s_endpgm")

res = finalize(P.ins, verbose=True) + finalize(TAIL.ins) + finalize(SP.ins)
if "report" in OPT:
    report_waits(finalize(P.ins))
launch = f"; @launch kernel={KN} grid" if ("list" in OPT or STAMPS) else "; @launch grid"
hdr = f"""; Fused pre-LN S4D conv + GEGLU FFN, one persistent launch (generated by my own script)
{launch}=(256,1,1) block=(256,1,1) lds={LDS_SIZE}
.amdgcn_target "amdgcn-amd-amdhsa--gfx950"
.text
.globl {KN}
.p2align 8
.type {KN},@function
{KN}:
"""
ftr = f"""
.p2align 8
.fill 64, 4, 0xbf800000
L_codeend:
.section .rodata,"a"
.p2align 6
.amdhsa_kernel {KN}
  .amdhsa_next_free_vgpr 512
  .amdhsa_next_free_sgpr 102
  .amdhsa_accum_offset 256
  .amdhsa_group_segment_fixed_size 0
  .amdhsa_kernarg_size 112
  .amdhsa_user_sgpr_count 2
  .amdhsa_user_sgpr_kernarg_segment_ptr 1
  .amdhsa_system_sgpr_workgroup_id_x 1
.end_amdhsa_kernel
"""
open(OUTF, "w").write(hdr + text_of(res) + ftr)
src = open(__file__).read()
a = src.index("# ---------------- workspace layout")
b = src.index("# ---------------- LDS layout")
open("layout.py", "w").write(src[a:b] + "\nSTAMP_NAMES = " + repr(stamp_names) + "\nSPIN_NAMES = " + repr(spin_names) + "\n")
```

```python
import sys, math, struct
from asmgen import *

NAME = "sequential_preLN__ssm_conv_s4d__geglu_ffn__prompt"
KN = NAME + "_kernel"
OPT = {}
for a in sys.argv[1:]:
    k, _, val = a.partition("=")
    OPT[k] = val if val else True
STAMPS = "stamps" in OPT
OUTF = OPT.get("out", "k10.s")
if "wdearly" not in OPT:
    OPT["wdlate"] = True


def f32(x):
    return "0x%08x" % struct.unpack("<I", struct.pack("<f", x))[0]


FS = 4
FREP = 0x9000
WS_EPOCH = 0
WS_F1 = 0x8000
WS_S2 = 0x54000
S2REP = 0x5000
WS_C = 0x80000
WS_UX = 0xD0000
WS_P = WS_UX + 256 * 14336
PROW = 4352
PGEN = 224 * PROW
WS_H = WS_P + 2 * PGEN
WS_WF = WS_H + 16 * 4 * 56 * 2048
WS_END = WS_WF + 392 * 4096
WS_DBG = 0x1000000
WS_SIZE = 0x2000000
LAYOUT = 5

CS = 4160
TAB_W = 14592
TAB_ROW = 272
L_KC = 58368
L_UX = 75008
L_EX = 0
L_RING = 98304
L_ACT = [0, 65536]
L_F = 131072
L_R = 65536
R_SZ = 17408
LDS_SIZE = 163840

S_W = 2
S_V = 4
S_T0, S_T1, S_T2, S_T3 = 5, 6, 7, 3
SRD_X, SRD_WS, SRD_WG, SRD_WU, SRD_WD, SRD_OUT = 8, 12, 16, 20, 24, 28
S_NONCE = 32
S_CNT = 33
S_EX = 34
S_LDT, S_DSK = 64, 65
S_TB, S_FB, S_FH, S_DB = 66, 67, 68, 69
S_A, S_B, S_C, S_D = 70, 72, 74, 76
S_RING = 78
S_WOFF = 79
S_K0 = 80
S_TAB = 81
S_F3 = 82
S_F1, S_F2 = 83, 84
S_M255 = 86
S_FW, S_R2 = 88, 89
S_ACTW = 90
S_UXO = 91
S_Z = 95
S_PFB = 88
S_HR = 36
S_E28, S_E14, S_CI = 46, 47, 85
S_UXM = 92
S_REP = 94
S_PERM = 93
S_STAMP = 96


def srd(n):
    return f"s[{n}:{n+3}]"


def v(n, w=1):
    return f"v{n}" if w == 1 else f"v[{n}:{n+w-1}]"


def acc(n, w=1):
    return f"a{n}" if w == 1 else f"a[{n}:{n+w-1}]"


P = Prog()
TAIL = Prog()
nstamp = [0]
stamp_names = []
spin_names = []
LITE = ("start", "conv start", "genA stored", "gemm1 start", "tile3", "end")
if "dbgout" in OPT:
    LITE = ("start", "x arrived", "ln1 done", "kgen r1", "conv start", "genA stored", "gemm1 start", "tile1", "tile3", "end")


def stamp(name, p=None):
    p = P if p is None else p
    p(f"; @ {name}")
    if STAMPS and ("lite" not in OPT or name in LITE):
        k = nstamp[0]
        assert k < 32
        p(f"s_memrealtime s[{S_STAMP}:{S_STAMP+1}]")
        p(f"s_memtime s[{S_STAMP+2}:{S_STAMP+3}]")
        p("s_waitcnt lgkmcnt(0)")
        p(f"v_writelane_b32 v255, s{S_STAMP}, {k}")
        p(f"v_writelane_b32 v255, s{S_STAMP+2}, {32+k}")
        nstamp[0] += 1
        stamp_names.append(name)


def stq(name):
    q = sub()
    if "dbg" in OPT:
        stamp(name, q)
    return q.ins


lblc = [0]


def label(prefix):
    lblc[0] += 1
    return f"L_{prefix}_{lblc[0]}"


def poll_issue(vaddr, vtmp):
    q = sub()
    q(f"v_mov_b32 {v(vtmp)}, 0")
    q(f"buffer_atomic_add {v(vtmp)}, {v(vaddr)}, {srd(SRD_WS)}, 0 offen sc0")
    return q.ins


def spin(t, name, done, reissue, vtag, sleep=2, exp=None):
    t(f"{name}:")
    t(f"s_mov_b32 s{S_CNT}, 0")
    t(f"{name}_l:")
    t("s_mov_b64 exec, vcc")
    t(f"s_sleep {sleep}")
    t.add(reissue)
    t("s_waitcnt vmcnt(0)")
    t(f"v_cmp_ne_u32 vcc, {exp or f's{S_NONCE}'}, {v(vtag)}")
    t("s_mov_b64 exec, -1")
    if STAMPS and "lite" in OPT:
        spin_names.append(name)
        t(f"s_add_u32 s{S_STAMP}, s{S_CNT}, 1")
        t(f"v_writelane_b32 v255, s{S_STAMP}, {10+len(spin_names)-1}")
    t(f"s_cbranch_vccz {done}")
    t(f"s_add_u32 s{S_CNT}, s{S_CNT}, 1")
    t(f"s_cmp_lt_u32 s{S_CNT}, 0x40000")
    t(f"s_cbranch_scc1 {name}_l")
    t(f"s_branch {done}")


def poll_check(vaddr, vtmp, mask=None):
    q = sub()
    slow, done = label("slow"), label("pdone")
    exp = f"s{S_NONCE}" if vaddr == V_F1 else (f"s{S_E28}" if vaddr in (V_F2, 20) else f"s{S_E14}")
    q(f"v_cmp_ne_u32 vcc, {exp}, {v(vtmp)}")
    if vaddr == V_F1:
        q(f"s_cbranch_vccnz {slow}")
    else:
        mask = mask or ("3" if vaddr == V_F2 else "1")
        q(f"s_and_b64 vcc, vcc, {mask}")
        q(f"s_cbranch_scc1 {slow}")
    q(f"{done}:")
    spin(TAIL, slow, done, poll_issue(vaddr, vtmp), vtmp, exp=exp, sleep=1)
    return q.ins


def poll_check2(vaddr, v1, v2, mask, exp):
    q = sub()
    slow, done = label("slow"), label("pdone")
    q(f"v_cmp_ne_u32 vcc, {exp}, {v(v1)}")
    q(f"s_and_b64 vcc, vcc, {mask}")
    q(f"s_cbranch_scc0 {done}")
    q.cond(True)
    q(f"v_cmp_ne_u32 vcc, {exp}, {v(v2)}")
    q(f"s_and_b64 vcc, vcc, {mask}")
    q(f"s_cbranch_scc1 {slow}")
    q.cond(False)
    q(f"{done}:")
    spin(TAIL, slow, done, poll_issue(vaddr, v1), v1, exp=exp, sleep=1)
    return q.ins


def setflag(p, soff):
    p(f"buffer_atomic_swap {v(V_NONCE)}, {v(V_FLG)}, {srd(SRD_WS)}, s{soff} offen")


def addcnt(p, soff):
    p(f"buffer_atomic_add {v(V_NONCE)}, {v(V_FLG)}, {srd(SRD_WS)}, s{soff} offen")


def flg_lanes(p, n, sh=8, t1=4):
    p(f"v_lshrrev_b32 {v(t1)}, {n.bit_length()-1}, {v(V_LANE)}")
    p(f"v_min_u32 {v(t1)}, 1, {v(t1)}")
    p(f"v_lshlrev_b32 {v(t1)}, 30, {v(t1)}")
    p(f"v_lshl_add_u32 {v(V_FLG)}, {v(V_LANE)}, {sh}, {v(t1)}")


def waitq(tok):
    q = sub()
    q.wait(tok)
    return q.ins


def cmul(p, z, x, y):
    p(f"v_pk_mul_f32 {v(z,2)}, {v(x,2)}, {v(y,2)} op_sel:[0,0] op_sel_hi:[0,1]")
    p(f"v_pk_fma_f32 {v(z,2)}, {v(x,2)}, {v(y,2)}, {v(z,2)} op_sel:[1,1,0] op_sel_hi:[1,0,1] neg_lo:[1,0,0]")


def round_bf16(p, dst, src):
    p(f"v_cvt_pk_bf16_f32 {v(dst)}, {v(src)}, {v(src)}")
    p(f"v_and_b32 {v(dst)}, 0xffff0000, {v(dst)}")


V_LANE, V_NONCE, V_L16 = 1, 2, 3
V_FLG = 8
V_W = 9
V_TRA = 13
V_TA, V_TB, V_TW = 14, 15, 16
GA = 17
V_F1, V_UXL = 26, 27
V_KA = 28
V_UA = 32
V_EU, V_EXP, V_EXW, V_EXR, V_PST = 36, 37, 38, 39, 40
V_GW, V_GX, V_GR, V_S3 = 36, 37, 38, 39
V_EU1 = 41
V_DT = 42
V_F2 = 43
PR = 44
V_PF = 254

LOG2E = 1.4426950408889634

P(f"s_cmp_ge_u32 s{S_W}, 256")
P("s_cbranch_scc1 L_end")
P(f"s_load_dwordx16 s[36:51], s[0:1], 0")
P(f"s_load_dwordx8 s[52:59], s[0:1], 64")
P(f"s_load_dwordx4 s[60:63], s[0:1], 96")
if "nocpf" not in OPT:
    P(f"s_getpc_b64 s[{S_B}:{S_B+1}]")
    P("L_pc:")
    P(f"s_bfe_u32 s{S_T2}, s{S_W}, 0x30003")
    P(f"s_mul_i32 s{S_T2}, s{S_T2}, ((L_codeend-L_pc)/1024)*128")
    P(f"v_cmp_gt_u32 vcc, (L_codeend-L_pc)/1024, v0")
    P(f"s_add_u32 s{S_B}, s{S_B}, s{S_T2}")
    P(f"s_addc_u32 s{S_B+1}, s{S_B+1}, 0")
    P(f"v_lshlrev_b32 v6, 7, v0")
    P(f"s_and_saveexec_b64 s[{S_A}:{S_A+1}], vcc")
    P("s_cbranch_execz L_nocpf")
    P.cond(True)
    P(f"v_mov_b32 v7, s{S_B+1}")
    P(f"v_add_co_u32 v6, vcc, s{S_B}, v6")
    P(f"v_addc_co_u32 v7, vcc, 0, v7, vcc")
    P(f"global_load_dword v251, v[6:7], off")
    P.cond(False)
    P("L_nocpf:")
    P("s_mov_b64 exec, -1")
if STAMPS:
    P("v_mov_b32 v255, 0")
P(f"v_and_b32 {v(V_LANE)}, 63, v0")
P(f"v_lshrrev_b32 v4, 6, v0")
P(f"v_lshlrev_b32 {v(V_L16)}, 4, {v(V_LANE)}")
P(f"v_readfirstlane_b32 s{S_V}, v4")
P(f"v_mov_b32 v5, 0x7ff00000")
P(f"v_cmp_gt_u32 vcc, 56, {v(V_LANE)}")
P(f"s_lshl_b32 s{S_T0}, s{S_W}, 2")
P(f"s_add_u32 s{S_T0}, s{S_T0}, s{S_V}")
P(f"v_cndmask_b32 v4, v5, {v(V_L16)}, vcc")
P(f"s_mul_i32 s{S_T0}, s{S_T0}, 1792")
P(f"s_min_u32 s{S_T1}, s{S_W}, 223")
P(f"s_lshl_b32 s{S_T2}, s{S_T1}, 10")
P(f"v_lshl_add_u32 v6, v0, 2, s{S_T2}")
P(f"v_mov_b32 v7, 0")
P(f"s_lshl_b32 s{S_T1}, s{S_T1}, 2")
P(f"v_mov_b32 v56, s{S_T1}")
P(f"s_mov_b32 s{SRD_X+2}, 1835008")
P(f"s_mov_b32 s{SRD_X+3}, 0x00020000")
P(f"s_mov_b32 s{SRD_WS+2}, {WS_SIZE}")
P(f"s_mov_b32 s{SRD_WS+3}, 0x00020000")
P("s_waitcnt lgkmcnt(0)")
stamp("start")
P(f"s_mov_b64 s[{SRD_X}:{SRD_X+1}], s[36:37]")
XR = 48
P(f"buffer_load_dwordx4 {v(XR,4)}, v4, {srd(SRD_X)}, s{S_T0} offen")
P(f"buffer_load_dwordx4 {v(XR+4,4)}, v4, {srd(SRD_X)}, s{S_T0} offen offset:896")
for r, src, sz in ((SRD_WG, 52, 1605632), (SRD_WU, 54, 1605632), (SRD_WD, 56, 1605632), (SRD_OUT, 58, 1835008)):
    P(f"s_mov_b64 s[{r}:{r+1}], s[{src}:{src+1}]")
    P(f"s_mov_b32 s{r+2}, {sz}")
    P(f"s_mov_b32 s{r+3}, 0x00020000")
P(f"v_cmp_lt_u32 vcc, 7, {v(V_LANE)}")
P(f"v_mul_u32_u24 v4, {FREP}, {v(V_LANE)}")
P(f"s_lshr_b32 s{S_T0}, s{S_W}, 3")
P(f"s_mul_i32 s{S_T1}, s{S_T0}, 37")
P(f"v_cndmask_b32 {v(V_FLG)}, v4, v5, vcc")
P(f"s_lshr_b32 s{S_T1}, s{S_T1}, 8")
P(f"s_mul_i32 s{S_T2}, s{S_T1}, 7")
P(f"s_sub_u32 s{S_DB}, s{S_T0}, s{S_T2}")
P(f"s_and_b32 s{S_FH}, s{S_W}, 1")
P(f"s_and_b32 s{S_T2}, s{S_W}, 6")
P(f"s_lshl_b32 s{S_T2}, s{S_T2}, 1")
P(f"s_add_u32 s{S_TB}, s{S_T2}, s{S_T1}")
P(f"s_mul_i32 s{S_FB}, s{S_FH}, 7")
P(f"s_add_u32 s{S_FB}, s{S_FB}, s{S_DB}")
P(f"s_lshl_b32 s{S_RING}, s{S_V}, 13")
P(f"s_add_u32 s{S_RING}, s{S_RING}, {L_RING}")
P(f"s_mul_i32 s{S_TAB}, s{S_V}, {TAB_W}")
for _ in range(int(OPT.get("xd", 0))):
    P("s_nop 7")
P(f"s_mov_b64 s[{SRD_WS}:{SRD_WS+1}], s[62:63]")
for i in range(4):
    P(f"global_load_dword {v(PR+i)}, v6, s[{38+2*i}:{39+2*i}]")
P(f"global_load_dword {v(V_DT)}, v56, s[46:47]")
P(f"global_load_dword {v(V_EU1)}, v56, s[48:49]")
P(f"buffer_load_dword {v(V_NONCE)}, v7, {srd(SRD_WS)}, 0 offen sc1")
if "help" in OPT:
    P(f"s_and_b32 s{S_T0}, s{S_W}, 6")
    P(f"s_cmp_eq_u32 s{S_V}, 0")
    P(f"s_cselect_b32 s{S_T0}, 1, s{S_T0}")
    P(f"s_cmp_lg_u32 s{S_T0}, 0")
    P("s_cbranch_scc1 L_nohelp")
    P.raw(f"s_lshl1_add_u32 s{S_T0}, s{S_V}, s{S_W}")
    P.raw(f"s_mul_i32 s{S_T2}, s{S_T0}, 7168")
    P.raw(f"v_min_u32 v4, 55, {v(V_LANE)}")
    P.raw(f"v_lshlrev_b32 v4, 7, v4")
    P.raw(f"buffer_load_dword v244, v4, {srd(SRD_X)}, s{S_T2} offen")
    if OPT["help"] != "x":
        P.raw(f"s_min_u32 s{S_T0}, s{S_T0}, 223")
        P.raw(f"s_lshl_b32 s{S_T0}, s{S_T0}, 10")
        P.raw(f"v_and_b32 v4, 7, {v(V_LANE)}")
        P.raw(f"v_lshl_add_u32 v4, v4, 7, s{S_T0}")
        for i in range(4):
            P.raw(f"global_load_dword {v(245+i)}, v4, s[{38+2*i}:{39+2*i}]")
    P("L_nohelp:")
P(f"s_bitcmp1_b32 s{S_V}, 0")
P(f"s_cselect_b64 s[{S_PFB}:{S_PFB+1}], s[54:55], s[52:53]")
P(f"s_lshr_b32 s{S_T0}, s{S_V}, 1")
P(f"s_lshl1_add_u32 s{S_T2}, s{S_W}, s{S_T0}")
P(f"s_mul_i32 s{S_T0}, s{S_T2}, {7*128}")
P(f"v_min_u32 v4, 6, {v(V_LANE)}")
P(f"v_lshl_add_u32 v4, v4, 7, s{S_T0}")
P(f"global_load_dword {v(V_PF)}, v4, s[{S_PFB}:{S_PFB+1}]")
P(f"s_mul_i32 s{S_T0}, s{S_W}, 49")
P(f"s_mul_i32 s{S_T2}, s{S_V}, 12")
P(f"s_add_u32 s{S_T0}, s{S_T0}, s{S_T2}")
P(f"v_min_u32 v4, 12, {v(V_LANE)}")
P(f"v_add_lshl_u32 v252, v4, s{S_T0}, 7")
if "wdlate" not in OPT:
    P(f"global_load_dword v253, v252, s[56:57]")
P(f"v_cmp_gt_u32 vcc, 32, {v(V_LANE)}")
P(f"v_mul_u32_u24 v4, 37, {v(V_LANE)}")
P(f"v_lshrrev_b32 v4, 9, v4")
P(f"v_cndmask_b32 {v(V_S3)}, v5, {v(V_L16)}, vcc")
P(f"v_mul_u32_u24 v4, {TAB_W-14*272}, v4")
P(f"v_mul_u32_u24 v6, 272, {v(V_LANE)}")
P(f"s_lshl_b32 s{S_T0}, s{S_V}, 2")
P(f"v_add3_u32 {v(V_GW)}, v4, v6, s{S_T0}")
P(f"v_add_u32 {v(V_GX)}, s{S_T0}, {v(V_GW)}")
P(f"s_lshl_b32 s{S_UXM}, s{S_V}, 12")
P(f"s_add_u32 s{S_UXM}, s{S_UXM}, {L_UX+2048}")
P(f"v_and_b32 v4, 48, {v(V_LANE)}")
P(f"v_add3_u32 {v(V_GR)}, v4, {v(V_L16)}, s{S_TAB}")
P(f"v_and_b32 v4, 31, {v(V_LANE)}")
P(f"v_lshrrev_b32 v6, 5, {v(V_LANE)}")
P(f"v_lshl_add_u32 v6, v6, 4, s{S_TAB}")
P(f"v_and_b32 v7, 28, {v(V_LANE)}")
P(f"v_lshl_add_u32 v7, v4, 5, v7")
P(f"v_add_u32 {v(V_TW)}, v6, v7")
P(f"v_mul_u32_u24 v7, {TAB_ROW}, v4")
P(f"v_add_u32 {v(V_TB)}, v6, v7")
P(f"v_min_u32 v4, 20, v4")
P(f"v_mul_u32_u24 v7, {TAB_ROW}, v4")
P(f"v_add_u32 {v(V_TA)}, v6, v7")
P(f"s_lshl2_add_u32 s{S_CI}, s{S_W}, s{S_V}")
P(f"s_lshl_b32 s{S_CI}, s{S_CI}, 8")
P(f"s_add_u32 s{S_CI}, s{S_CI}, {WS_C}")
P(f"v_lshlrev_b32 v250, 25, {v(V_LANE)}")
P(f"s_mul_i32 s{S_UXO}, s{S_W}, 14336")
P(f"s_mul_i32 s{S_T0}, s{S_V}, 3584")
P(f"s_add_u32 s{S_UXO}, s{S_UXO}, s{S_T0}")
P(f"s_add_u32 s{S_UXO}, s{S_UXO}, {WS_UX}")
P(f"s_lshl_b32 s{S_T0}, s{S_V}, 8")
P(f"s_add_u32 s{S_T0}, s{S_T0}, s{S_W}")
P(f"s_mul_i32 s{S_T0}, s{S_T0}, {FS}")
P(f"s_add_u32 s{S_F1}, s{S_T0}, {WS_F1}")
P(f"v_lshrrev_b32 v4, 2, {v(V_LANE)}")
P(f"v_mul_u32_u24 v4, 3584, v4")
P(f"v_and_b32 v6, 3, {v(V_LANE)}")
P(f"v_lshl_add_u32 v4, v6, 4, v4")
P(f"s_lshl_b32 s{S_T0}, s{S_FB}, 8")
P(f"s_lshl_b32 s{S_T1}, s{S_V}, 6")
P(f"s_add_u32 s{S_T0}, s{S_T0}, s{S_T1}")
P(f"v_add_u32 {v(V_W)}, s{S_T0}, v4")
for k in range(1, 4):
    P(f"v_add_u32 {v(V_W+k)}, {k*(57344-1024)}, {v(V_W)}")
P(f"v_and_b32 v4, 32, {v(V_LANE)}")
P(f"v_lshlrev_b32 v4, 4, v4")
P(f"v_and_b32 v7, 12, {v(V_LANE)}")
P(f"v_lshl_add_u32 v4, v7, 4, v4")
P(f"v_and_b32 v7, 16, {v(V_LANE)}")
P(f"v_lshl_add_u32 v4, v7, 1, v4")
P(f"v_lshl_add_u32 v4, v6, 3, v4")
P(f"v_add_u32 {v(V_TRA)}, s{S_RING}, v4")
P(f"s_mov_b32 s{S_K0}, {L_KC+4096-L_UX}")
P(f"s_movk_i32 s{S_T2}, 128")
P(f"s_mul_i32 s{S_T0}, s{S_W}, 293")
P(f"s_bfe_u32 s{S_T0}, s{S_T0}, 0x2000e")
P(f"s_lshl_b32 s{S_T0}, s{S_T0}, 10")
P(f"s_lshr_b32 s{S_F2}, s{S_T0}, 2")
P(f"s_and_b32 s{S_REP}, s{S_W}, 7")
P(f"s_mul_i32 s{S_REP}, s{S_REP}, {FREP}")
P(f"s_add_u32 s{S_REP}, s{S_REP}, {WS_F1}")
P(f"s_add_u32 s{S_T0}, s{S_T0}, s{S_REP}")
P(f"v_lshl_add_u32 {v(V_F1)}, v0, 2, s{S_T0}")
P(f"v_lshrrev_b32 v4, 2, {v(V_LANE)}")
P(f"v_add_u32 v4, s{S_T1}, v4")
P(f"v_mul_u32_u24 v7, 14336, v4")
P(f"v_lshrrev_b32 v4, 4, {v(V_LANE)}")
P(f"v_xor_b32 v6, v6, v4")
P(f"v_lshl_add_u32 v7, v6, 4, v7")
P(f"s_lshl_b32 s{S_T0}, s{S_W}, 6")
P(f"s_add_u32 s{S_T0}, s{S_T0}, {WS_UX}")
P(f"v_add_u32 {v(V_UXL)}, s{S_T0}, v7")
P(f"v_bfe_u32 v6, {v(V_LANE)}, 1, 2")
P(f"v_mul_u32_u24 v6, {CS}, v6")
P(f"v_and_b32 v7, 16, {v(V_L16)}")
P(f"v_add3_u32 v6, v6, v7, s{S_K0}")
P(f"v_lshlrev_b32 v7, 4, v0")
P(f"v_cmp_gt_u32 vcc, s{S_T2}, v0")
P(f"v_mov_b32 v56, 0")
P(f"v_mov_b32 v57, 0")
P(f"v_cndmask_b32 v6, v6, v7, vcc")
P(f"v_mov_b32 v58, 0")
P(f"v_mov_b32 v59, 0")
P(f"v_add_u32 v6, {L_UX}, v6")
P(f"ds_write_b128 v6, v[56:59]")
P(f"v_lshlrev_b32 v4, 3, v0")
P(f"v_sub_u32 v4, 2047, v4")
P(f"v_cvt_f32_i32 v4, v4")
P(f"v_mov_b32 v60, 1028")
P(f"v_cmp_eq_u32 vcc, 0, v0")
for e in range(0, 10, 2):
    P(f"v_add_f32 v6, {f32(-float(e))}, v4")
    if e < 8:
        P(f"v_add_f32 v7, {f32(-float(e+1))}, v4")
    P(f"v_cvt_pk_bf16_f32 v6, v6, v7")
    for h in range(2):
        if e + h > 8:
            continue
        d = GA + e + h
        if h == 0:
            P(f"v_lshlrev_b32 v7, 16, v6")
        else:
            P(f"v_and_b32 v7, 0xffff0000, v6")
        P(f"v_cvt_u32_f32 v7, v7")
        if e + h < 4:
            P(f"v_cndmask_b32 v7, v7, v60, vcc")
        P(f"v_lshrrev_b32 {v(d)}, 5, v7")
        P(f"v_add_lshl_u32 {v(d)}, {v(d)}, v7, 2")
P(f"v_mov_b32 v4, 255")
P(f"v_cmp_eq_u32 s[{S_M255}:{S_M255+1}], v4, v0")

XF = 56
DF = 72
SA = 88
if "fine" in OPT: stamp("setup done")
P(f"s_mov_b32 s{S_EX}, -1")
P(f"s_mov_b32 s{S_EX+1}, 0x00ffffff")
P(f"s_mov_b32 s{S_K0}, {f32(1.0/448)}")
for r in range(2):
    for i in range(4):
        P(f"v_lshlrev_b32 {v(XF+8*r+2*i)}, 16, {v(XR+4*r+i)}")
        P(f"v_and_b32 {v(XF+8*r+2*i+1)}, 0xffff0000, {v(XR+4*r+i)}")
stamp("x arrived")
if "wdlate" in OPT:
    P(f"global_load_dword v253, v252, s[56:57]")
P(f"s_mov_b64 exec, s[{S_EX}:{S_EX+1}]")
for i in range(4):
    P(f"ds_write2_b32 {v(V_GX)}, {v(XR+i)}, {v(XR+4+i)} offset0:{16*i+8} offset1:{16*i+9}")
P("s_mov_b64 exec, -1")
for r in range(2):
    b = XF + 8 * r
    P(f"v_pk_add_f32 {v(DF+8*r,2)}, {v(b,2)}, {v(b+2,2)}")
    P(f"v_pk_add_f32 {v(DF+8*r+2,2)}, {v(b+4,2)}, {v(b+6,2)}")
for r in range(2):
    P(f"v_pk_add_f32 {v(DF+8*r,2)}, {v(DF+8*r,2)}, {v(DF+8*r+2,2)}")
for r in range(2):
    P(f"v_add_f32 {v(SA+r)}, {v(DF+8*r)}, {v(DF+8*r+1)}")


def wave_sum(p, regs):
    for mod in ("row_shr:1", "row_shr:2", "row_shr:4", "row_shr:8"):
        for r in regs:
            p(f"v_add_f32_dpp {v(r)}, {v(r)}, {v(r)} {mod} row_mask:0xf bank_mask:0xf bound_ctrl:0")
    for r in regs:
        p(f"v_add_f32_dpp {v(r)}, {v(r)}, {v(r)} row_bcast:15 row_mask:0xa bank_mask:0xf")
    for r in regs:
        p(f"v_add_f32_dpp {v(r)}, {v(r)}, {v(r)} row_bcast:31 row_mask:0xc bank_mask:0xf")


wave_sum(P, [SA, SA + 1])
for r in range(2):
    P(f"v_mul_f32 {v(SA+r)}, s{S_K0}, {v(SA+r)}")
P(f"v_cvt_pk_bf16_f32 {v(SA+2)}, {v(SA)}, {v(SA+1)}")
P(f"v_readlane_b32 s{S_A}, {v(SA)}, 63")
P(f"v_readlane_b32 s{S_B}, {v(SA+1)}, 63")
P(f"v_readlane_b32 s{S_T0}, {v(SA+2)}, 63")
P(f"v_mov_b32 {v(SA)}, 0")
P(f"v_mov_b32 {v(SA+1)}, 0")
P(f"s_mov_b64 exec, s[{S_EX}:{S_EX+1}]")
for r, sm in ((0, S_A), (1, S_B)):
    for i in range(4):
        P(f"v_pk_add_f32 {v(DF+8*r+2*i,2)}, {v(XF+8*r+2*i,2)}, s[{sm}:{sm+1}] op_sel_hi:[1,0] neg_lo:[0,1] neg_hi:[0,1]")
for r in range(2):
    b = DF + 8 * r
    P(f"v_pk_mul_f32 {v(b,2)}, {v(b,2)}, {v(b,2)}")
    for i in range(1, 4):
        P(f"v_pk_fma_f32 {v(b,2)}, {v(b+2*i,2)}, {v(b+2*i,2)}, {v(b,2)}")
for r in range(2):
    P(f"v_add_f32 {v(SA+r)}, {v(DF+8*r)}, {v(DF+8*r+1)}")
P("s_mov_b64 exec, -1")
P(f"s_lshl_b32 s{S_C}, s{S_T0}, 16")
P(f"s_and_b32 s{S_D}, s{S_T0}, 0xffff0000")
q1 = sub()
wave_sum(q1, [SA, SA + 1])
q2 = sub()
for r, sm in ((0, S_C), (1, S_D)):
    for i in range(4):
        q2(f"v_pk_add_f32 {v(DF+8*r+2*i,2)}, {v(XF+8*r+2*i,2)}, s[{sm}:{sm+1}] op_sel_hi:[1,0] neg_lo:[0,1] neg_hi:[0,1]")
for r in range(2):
    for i in range(4):
        q2(f"v_cvt_pk_bf16_f32 {v(XF+8*r+2*i)}, {v(DF+8*r+2*i)}, {v(DF+8*r+2*i+1)}")
for r in range(2):
    for i in range(4):
        q2(f"v_and_b32 {v(XF+8*r+2*i+1)}, 0xffff0000, {v(XF+8*r+2*i)}")
        q2(f"v_lshlrev_b32 {v(XF+8*r+2*i)}, 16, {v(XF+8*r+2*i)}")
k = 0
for j in range(0, len(q1.ins), 2):
    P.add(q1.ins[j:j + 2])
    P.add(q2.ins[k:k + 1])
    k += 1
P(f"v_mul_f32 {v(SA)}, s{S_K0}, {v(SA)}")
P(f"v_mul_f32 {v(SA+1)}, s{S_K0}, {v(SA+1)}")
for step in range(3):
    P(f"v_cvt_pk_bf16_f32 {v(SA+2)}, {v(SA)}, {v(SA+1)}")
    P(f"v_lshlrev_b32 {v(SA)}, 16, {v(SA+2)}")
    P(f"v_and_b32 {v(SA+1)}, 0xffff0000, {v(SA+2)}")
    for r in range(2):
        if step == 0:
            P(f"v_add_f32 {v(SA+r)}, {f32(1e-5)}, {v(SA+r)}")
        elif step == 1:
            P(f"v_sqrt_f32 {v(SA+r)}, {v(SA+r)}")
        else:
            P(f"v_rcp_f32 {v(SA+r)}, {v(SA+r)}")
    if step:
        P.add(q2.ins[k:k + 1])
        k += 1
P(f"v_readlane_b32 s{S_A}, {v(SA)}, 63")
P(f"v_readlane_b32 s{S_B}, {v(SA+1)}, 63")
P.add(q2.ins[k:])
for r, sm in ((0, S_A), (1, S_B)):
    for i in range(4):
        P(f"v_pk_mul_f32 {v(XF+8*r+2*i,2)}, {v(XF+8*r+2*i,2)}, s[{sm}:{sm+1}] op_sel_hi:[1,0]")
for j in range(8):
    P(f"v_cvt_pk_bf16_f32 {v(DF+j)}, {v(XF+j)}, {v(XF+8+j)}")
P(f"s_mov_b64 exec, s[{S_EX}:{S_EX+1}]")
for i in range(4):
    P(f"ds_write2_b32 {v(V_GW)}, {v(DF+2*i)}, {v(DF+2*i+1)} offset0:{16*i} offset1:{16*i+4}")
P("s_mov_b64 exec, -1")
if "fine" in OPT: stamp("ln1 math")
P("s_waitcnt lgkmcnt(0)")
P("s_barrier")
if "fine" in OPT: stamp("ln1 barrier")
UB = 112
for j in range(4):
    P(f"ds_read_b128 {v(UB+4*j,4)}, {v(V_GR)} offset:{1088*j}")
P(f"s_lshl_b32 s{S_T0}, s{S_V}, 3")
P(f"s_and_b32 s{S_T0}, s{S_T0}, 16")
P(f"s_mov_b32 m0, s{S_TAB}")
P("s_waitcnt lgkmcnt(0)")
for j in range(4):
    P(f"buffer_store_dwordx4 {v(UB+4*j,4)}, {v(V_L16 if j < 3 else V_S3)}, {srd(SRD_WS)}, s{S_UXO} offen offset:{1024*j} sc1", tok="ux")
P(f"s_cmp_lt_u32 s{S_W}, 224")
P("s_cbranch_scc1 L_main")


def nonce_init():
    q = sub()
    q(f"v_readfirstlane_b32 s{S_NONCE}, {v(V_NONCE)}")
    q(f"s_mul_i32 s{S_NONCE}, s{S_NONCE}, 1664525")
    q(f"s_add_u32 s{S_NONCE}, s{S_NONCE}, 1013904223")
    q(f"v_mov_b32 {v(V_NONCE)}, s{S_NONCE}")
    q(f"buffer_store_dword {v(V_NONCE)}, v250, {srd(SRD_WS)}, s{S_CI} offen sc1", tok="ux")
    q(f"s_add_u32 s{S_E28}, s{S_NONCE}, 28")
    q(f"s_add_u32 s{S_E14}, s{S_NONCE}, 14")
    return q.ins


P.raw("s_waitcnt vmcnt(6)")
for x in nonce_init():
    P.raw(x.text)
P.raw("s_waitcnt vmcnt(0)")
P.raw(f"buffer_atomic_swap {v(V_NONCE)}, {v(V_FLG)}, {srd(SRD_WS)}, s{S_F1} offen")
P.raw("s_branch L_spare")
P("L_main:")
stamp("ln1 done")


def wfrag(m, ks):
    return 8 * ks + 4 * m


def slotoff(slot):
    return (slot % 8) * 1024 + (slot // 8) * 32768


def w_dma(kq, m, slot, tok):
    q = sub()
    q(f"s_add_u32 m0, s{S_RING}, {slotoff(slot)}")
    if m == 0:
        q(f"s_mov_b32 s{S_WOFF}, {kq*4*57344}")
    for k in range(4):
        o = f" offset:{1024*k}" if k else ""
        q(f"buffer_load_dwordx4 {v(V_W+k)}, {srd(SRD_WU if m else SRD_WG)}, s{S_WOFF} offen{o} lds", tok=tok)
    return q.ins


def w_tr(kq, m, slot, tok=None):
    q = sub()
    for k in range(4):
        for h in range(2):
            q(f"ds_read_b64_tr_b16 {acc(wfrag(m,4*kq+k)+2*h,2)}, {v(V_TRA)} offset:{slotoff(slot+k)+256*h}", tok=tok)
    return q.ins


def batch_dma(b, tok):
    return [w_dma(2 * b + i // 2, i % 2, 4 * i, f"{tok}_{i}") for i in range(4)]


def batch_tr(b):
    o = []
    for i in range(4):
        o += w_tr(2 * b + i // 2, i % 2, 4 * i, tok=f"t{b}_{i}")
    return o


def singles(groups):
    out, cur = [], []
    for grp in groups:
        for i in grp:
            cur.append(i)
            if i.cls == "vmem":
                out.append(cur)
                cur = []
    if cur:
        out[-1] += cur
    return out


def pin_vm(g, start, groups, stride):
    k = start
    for u in singles(groups):
        g.at(int(k), u)
        k += stride
    return int(k)


def w_dma1(b, n, tok):
    i, k = n // 4, n % 4
    q = sub()
    q(f"s_add_u32 m0, s{S_RING}, {slotoff(4*i)}")
    if n % 8 == 0:
        q(f"s_mov_b32 s{S_WOFF}, {(2*b+i//2)*4*57344}")
    o = f" offset:{1024*k}" if k else ""
    q(f"buffer_load_dwordx4 {v(V_W+k)}, {srd(SRD_WU if i % 2 else SRD_WG)}, s{S_WOFF} offen{o} lds", tok=f"{tok}_{i}")
    q(f"s_mov_b32 m0, s{S_TAB}")
    return q.ins


KD = 176
FR = 192
FR = 112


def kgen_head(rd):
    q = sub()
    A0 = 48 + 0
    CC = 50
    unp = (lambda d, s: q(f"v_lshlrev_b32 {v(d)}, 16, {v(s)}")) if rd == 0 else (lambda d, s: q(f"v_and_b32 {v(d)}, 0xffff0000, {v(s)}"))
    for i in range(4):
        unp(48 + i, PR + i)
    q(f"v_mul_f32 v48, {f32(LOG2E)}, v48")
    q(f"v_exp_f32 v48, v48")
    q(f"v_mul_f32 v49, v49, {v(V_DT)}")
    q(f"v_cvt_pk_bf16_f32 v48, v48, v48")
    q(f"v_mul_f32 v49, 0.15915494, v49")
    q(f"v_and_b32 v48, 0xffff0000, v48")
    q(f"v_mul_f32 v50, v50, {v(V_DT)}")
    q(f"v_mul_f32 v48, v48, {v(V_DT)}")
    q(f"v_mul_f32 v51, v51, {v(V_DT)}")
    q(f"v_mul_f32 v48, {f32(-LOG2E)}, v48")
    q(f"v_add_f32 v50, v50, v50")
    q(f"v_add_f32 v51, v51, v51")
    for (z, pos) in ((52, 1), (54, 16), (56, 256)):
        if pos == 1:
            q(f"v_exp_f32 v4, v48")
            q(f"v_fract_f32 v5, v49")
        else:
            q(f"v_mul_f32 v4, {f32(float(pos))}, v48")
            q(f"v_mul_f32 v5, {f32(float(pos))}, v49")
            q(f"v_exp_f32 v4, v4")
            q(f"v_fract_f32 v5, v5")
        q(f"v_cos_f32 {v(z)}, v5")
        q(f"v_sin_f32 {v(z+1)}, v5")
        q(f"v_mul_f32 {v(z)}, {v(z)}, v4")
        q(f"v_mul_f32 {v(z+1)}, {v(z+1)}, v4")
    return q.ins


def kgen_body(rd):
    names = {"G0": 50, "E1": 52, "E16": 54, "E256": 56}
    nxt = [58]
    chunks = []
    cur = sub()
    wr = sub()
    pk = [0]
    PK = 192

    def new(n):
        names[n] = nxt[0]
        nxt[0] += 2
        assert nxt[0] <= 104
        return names[n]

    def out(kind, row, z):
        t = PK + pk[0] % 16
        pk[0] += 1
        if kind == "B":
            cur(f"v_cvt_pk_bf16_f32 {v(t)}, {v(z)}, {v(z+1)}")
            wr(f"ds_write_addtid_b32 {v(t)} offset:{row*TAB_ROW}")
        else:
            cur(f"v_cvt_pk_bf16_f32 {v(t)}, {v(z)}, -{v(z+1)}")
            wr(f"ds_write_addtid_b32 {v(t)} offset:{(32+row)*TAB_ROW}")
        if len(wr.ins) >= GROUP:
            flush()

    def flush():
        nonlocal cur, wr
        chunks.append(cur.ins + wr.ins)
        cur = sub()
        wr = sub()

    sc = [0]

    def mul(n, a, b, kind=None, row=None):
        if n is None:
            z = 104 + 2 * (sc[0] % 4)
            sc[0] += 1
        else:
            z = new(n)
        cmul(cur, z, names[a], names[b])
        if kind:
            out(kind, row, z)

    GROUP = int(OPT.get("kgroup", 6))
    t = PK + pk[0]
    pk[0] += 1
    cur(f"v_mov_b32 {v(t)}, 0x3f80")
    wr(f"ds_write_addtid_b32 {v(t)}")
    out("A", 0, names["G0"])
    out("B", 2, names["E16"])
    mul("E2", "E1", "E1")
    mul("E32", "E16", "E16", "B", 4)
    mul("G1", "G0", "E256", "A", 8)
    mul("E512", "E256", "E256")
    mul("a1", "G0", "E1", "A", 1)
    mul("E4", "E2", "E2")
    mul("E64", "E32", "E32", "B", 8)
    mul("E48", "E32", "E16", "B", 6)
    mul("G2", "G0", "E512", "A", 10)
    mul("G3", "G1", "E512", "A", 11)
    mul("E1024", "E512", "E512")
    mul("E8", "E4", "E4", "B", 1)
    mul("a2", "G0", "E2", "A", 2)
    mul("a3", "a1", "E2", "A", 3)
    mul("b2", "G1", "E2", "A", 9)
    mul("E128", "E64", "E64", "B", 16)
    mul("G4", "G0", "E1024", "A", 16)
    mul("E24", "E16", "E8", "B", 3)
    mul("E40", "E32", "E8", "B", 5)
    mul("E56", "E48", "E8", "B", 7)
    mul("E192", "E128", "E64", "B", 24)
    for row, a in ((4, "G0"), (5, "a1"), (6, "a2"), (7, "a3"), (12, "G1"), (13, "b2"), (14, "G2"), (15, "G3")):
        mul(None, a, "E4", "A", row)
    for row, a in ((17, "G1"), (18, "G2"), (19, "G3"), (20, "G4")):
        mul(None, a, "E1024", "A", row)
    for b2, nb in ((1, "E64"), (2, "E128"), (3, "E192")):
        for b1 in range(1, 8):
            mul(None, f"E{8*b1}", nb, "B", 8 * b2 + b1)
    if wr.ins or cur.ins:
        flush()
    return chunks


def kgen_reads():
    q = sub()
    for s in range(8):
        q(f"ds_read_b128 {v(FR+8*s,4)}, {v(V_TA)} offset:{32*TAB_ROW+32*s}")
        q(f"ds_read_b128 {v(FR+8*s+4,4)}, {v(V_TB)} offset:{32*s}")
    return q.ins


def kgen_mfma(rd):
    q = sub()
    for s in range(8):
        c = "0" if (rd == 0 and s == 0) else v(KD, 16)
        q(f"v_mfma_f32_32x32x16_bf16 {v(KD,16)}, {v(FR+8*s,4)}, {v(FR+8*s+4,4)}, {c}")
    return q.ins


P(f"v_lshrrev_b32 v4, s{S_T0}, {v(V_DT)}")
P(f"v_lshlrev_b32 v4, 16, v4")
P(f"v_mul_f32 v4, {f32(LOG2E)}, v4")
P(f"v_exp_f32 v4, v4")
P(f"v_readfirstlane_b32 s{S_DSK}, {v(V_EU1)}")
round_bf16(P, V_DT, 4)
P.add(kgen_head(0))
P.add(nonce_init())
ch = kgen_body(0)
fl = sub()
fl.wait("ux")
setflag(fl, S_F1)
nd = 0
FLAGAT = int(OPT.get("flagat", 6))
DMA0 = int(OPT.get("dma0", 3))
for i, c in enumerate(ch):
    P.add(c)
    if i == FLAGAT:
        if "fine" in OPT: stamp("pre flag1")
        P.add(fl.ins)
        if "fine" in OPT: stamp("post flag1")
    elif i >= DMA0:
        P.add(w_dma1(0, nd, "w1"))
        nd += 1
P.add(kgen_reads())
g = Gaps(kgen_mfma(0), 7)
for k in (0, 2, 4, 6):
    g.at(k, w_dma1(0, nd, "w1"))
    nd += 1
g.fill(kgen_head(1))
P.add(g.out())
stamp("kgen r0")
ch = kgen_body(1)
POLLAT = int(OPT.get("pollat", 3))
for i, c in enumerate(ch):
    P.add(c)
    if i == POLLAT:
        P.add(poll_issue(V_F1, 6))
    elif nd < 16:
        P.add(w_dma1(0, nd, "w1"))
        nd += 1
assert nd == 16
P.add(kgen_reads())
if "fine" in OPT: stamp("pre poll1")
P.add(poll_check(V_F1, 6))
if "fine" in OPT: stamp("post poll1")
g = Gaps(kgen_mfma(1), 6)
P(f"s_mov_b32 m0, s{S_UXM}")
for j in range(4):
    q = sub()
    q(f"s_mov_b32 s{S_T0}, {j*(16*14336-1024)}")
    o = f" offset:{1024*j}" if j else ""
    q(f"buffer_load_dwordx4 {v(V_UXL)}, {srd(SRD_WS)}, s{S_T0} offen{o} sc1 lds", tok="uxl")
    if j == 0:
        P.add(q.ins)
    else:
        g.at(2 * j - 2, q.ins)
tr1 = batch_tr(0)
P.wait("w1_2")
for k in range(8):
    g.at(k, tr1[3 * k:3 * k + 3])
P.add(g.out())
stamp("kgen r1")
P(f"v_and_b32 v4, 15, {v(V_LANE)}")
P(f"v_lshrrev_b32 v5, 4, {v(V_LANE)}")
P(f"v_lshl_add_u32 v6, v5, 3, v4")
P(f"v_sub_u32 v6, 39, v6")
P(f"v_and_b32 v7, 1, v6")
P(f"v_mul_u32_u24 v7, {CS-2}, v7")
P(f"v_lshl_add_u32 v6, v6, 1, v7")
P(f"s_lshr_b32 s{S_T0}, s{S_V}, 1")
P(f"s_andn2_b32 s{S_T3}, 1, s{S_V}")
P(f"s_mul_i32 s{S_T2}, s{S_T0}, {2*CS}")
P(f"s_lshl_b32 s{S_T1}, s{S_T3}, 8")
P(f"s_add_u32 s{S_T2}, s{S_T2}, s{S_T1}")
P(f"s_add_u32 s{S_T2}, s{S_T2}, {L_KC}")
P(f"v_add_u32 {v(V_KA+3)}, s{S_T2}, v6")
toff = {0: (0, 0), 1: (0, 1), 2: (0, 2), 3: (0, 3), 4: (1, 0), 5: (1, 2), 6: (2, 0), 7: (3, 0), 8: (4, 0), 9: (5, 0), 10: (6, 0), 11: (7, 0)}
P(f"ds_write2_b32 {v(V_TW)}, {v(KD)}, {v(KD+1)} offset0:0 offset1:1")
P(f"ds_write2_b32 {v(V_TW)}, {v(KD+2)}, {v(KD+3)} offset0:2 offset1:3")
for j in range(4, 12):
    qq, r = toff[j]
    P(f"ds_write_b32 {v(V_TW)}, {v(KD+j)} offset:{4*(r + 264*qq)}")
for k in range(3):
    P(f"v_add_u32 {v(V_KA+k)}, {64*(48-16*k)}, {v(V_KA+3)}")
P(f"v_lshlrev_b32 v6, 1, v4")
P(f"v_sub_u32 v6, v6, v5")
P(f"s_lshl_b32 s{S_T1}, s{S_T3}, 4")
P(f"s_add_u32 s{S_T1}, s{S_T1}, 17")
P(f"v_add_u32 v6, s{S_T1}, v6")
P(f"s_mov_b32 s{S_T2}, {L_UX}")
P("s_waitcnt lgkmcnt(0)")
P("s_barrier")
if "fine" in OPT: stamp("T barrier")
EG = 208
for c2 in range(2):
    for e in range(9):
        P(f"ds_read2st64_b32 {v(EG+18*c2+2*e,2)}, {v(GA+e)} offset0:{114*c2} offset1:{114*c2+57}")
b2 = batch_dma(1, "w2")
b2[3] = waitq("t0_3") + b2[3]
b2 = singles(b2)
P.add(b2.pop(0))
for rr in range(4):
    P(f"v_bfe_u32 v7, v6, 2, 2")
    P(f"v_xor_b32 v7, s{S_T0}, v7")
    P(f"v_lshl_add_u32 v7, v6, 2, v7")
    P(f"v_lshl_add_u32 {v(V_UA+rr)}, v7, 4, s{S_T2}")
    if rr < 3:
        P(f"v_subrev_u32 v6, 4, v6")
P.add(b2.pop(0))
P(f"v_lshlrev_b32 v6, 4, v0")
KO = 192
VB = 48


def bfrag(rr, e):
    return VB + 32 * rr + 4 * e


def b_loads(lo, hi):
    z = sub()
    for rr in range(4):
        for a in range(lo, hi):
            z(f"ds_read_b128 {v(bfrag(rr,a),4)}, {v(V_UA+rr)} offset:{2048*a}")
    return z.ins


for c2 in range(2):
    b = EG + 18 * c2
    for e in range(9):
        P(f"v_add_f32 {v(b+2*e)}, {v(b+2*e)}, {v(b+2*e+1)}")
    P(f"v_cndmask_b32 {v(b+16)}, {v(b+16)}, 0, s[{S_M255}:{S_M255+1}]")
    for s_ in range(2):
        o = KO + 8 * c2 + 4 * s_
        for i in range(4):
            P(f"v_cvt_pk_bf16_f32 {v(o+i)}, {v(b+2*(s_+2*i))}, {v(b+2*(s_+2*i+1))}")
    if c2 == 1:
        P(f"v_add_u32 v7, {2*CS}, v6")
    for s_ in range(2):
        P(f"ds_write_b128 {v(6+c2)}, {v(KO+8*c2+4*s_,4)} offset:{L_KC+s_*CS}", tok="kc")
    if c2 == 0:
        P.add(waitq("w1_3") + tr1[24:])
    P.add(b2.pop(0))
if "dumpk" in OPT:
    P(f"s_lshl_b32 s{S_T0}, s{S_W}, 13")
    P(f"s_add_u32 s{S_T0}, s{S_T0}, {WS_DBG}")
    P(f"buffer_store_dwordx4 {v(KO,4)}, v6, {srd(SRD_WS)}, s{S_T0} offen")
    P(f"s_add_u32 s{S_T0}, s{S_T0}, 4096")
    P(f"buffer_store_dwordx4 {v(KO+8,4)}, v6, {srd(SRD_WS)}, s{S_T0} offen")
stamp("expanded")
P.wait("uxl")
P.wait("kc")
P("s_barrier")
stamp("conv start")
ea = sub()
ea(f"v_lshrrev_b32 v6, 1, v5")
ea(f"v_lshl_add_u32 v6, v4, 1, v6")
ea(f"s_lshl_b32 s{S_T2}, s{S_V}, 11")
ea(f"s_add_u32 s{S_T2}, s{S_T2}, {L_UX+2048}")
ea(f"v_lshl_add_u32 v6, v6, 6, s{S_T2}")
ea(f"v_bfe_u32 v4, v4, 1, 2")
ea(f"v_and_b32 v5, 1, v5")
ea(f"v_lshl_add_u32 v7, v4, 4, v6")
ea(f"v_lshl_add_u32 {v(V_EU)}, v5, 3, v7")
ea(f"v_xor_b32 {v(V_EU1)}, 16, {v(V_EU)}")
ea(f"v_or_b32 v5, 2, v5")
ea(f"v_xor_b32 v4, v4, v5")
ea(f"v_lshl_add_u32 {v(V_EXP)}, v4, 4, v6")
eb = sub()
eb(f"s_mul_i32 s{S_ACTW}, s{S_V}, 14336")
eb(f"v_add_u32 {v(V_EXR)}, s{S_ACTW}, {v(V_L16)}")
eb(f"s_lshl_b32 s{S_T2}, s{S_V}, 10")
eb(f"v_add_u32 {v(V_EXW)}, s{S_T2}, {v(V_L16)}")
eb(f"s_mul_i32 s{S_T3}, s{S_W}, {PROW}")
eb(f"s_add_u32 s{S_T3}, s{S_T3}, {WS_P}")
eb(f"v_add_u32 {v(V_PST)}, s{S_T3}, {v(V_EXW)}")
eb(f"s_lshl_b32 s{S_C}, s{S_DSK}, 16")
eb(f"s_and_b32 s{S_D}, s{S_DSK}, 0xffff0000")

CA = [176, 192]
ET = 208


def afrag(rr, a):
    return 128 + 32 * rr + 4 * a


def a_loads(rr, lo, hi):
    z = sub()
    for a in range(lo, hi):
        k = a // 2
        off = 16 * (11 - rr - 8 * (a - 2 * k))
        z(f"ds_read2_b32 {acc(afrag(rr,a),2)}, {v(V_KA+k)} offset0:{off} offset1:{off+1}")
        z(f"ds_read2_b32 {acc(afrag(rr,a)+2,2)}, {v(V_KA+k)} offset0:{off+2} offset1:{off+3}")
    return z.ins


def conv_mfmas(gen):
    m = sub()
    first = set()
    na = 4 if gen == 0 else 8
    order = []
    for rr in range(4):
        pairs = [(a, e) for a in range(na) for e in range(na) if 4 * gen <= a + e < 4 * gen + 4]
        pairs.sort(key=lambda ae: (max(ae), ae))
        order += [(rr, a, e) for a, e in pairs]
    if gen == 1:
        order.sort(key=lambda t: (0 if max(t[1], t[2]) < 4 else 1))
    for rr, a, e in order:
        c = a + e - 4 * gen
        d = CA[gen] + 4 * c
        cc = v(d, 4) if c in first else "0"
        first.add(c)
        m(f"v_mfma_f32_16x16x32_bf16 {v(d,4)}, {acc(afrag(rr,a),4)}, {v(bfrag(rr,e),4)}, {cc}")
    return m.ins


UU, XX, YY, TT, WW, HO = ET, ET + 4, ET + 8, ET + 24, ET + 32, ET + 36


def conv_pre(gen):
    q = sub()
    q(f"ds_read_b64 {v(UU,2)}, {v(V_EU)} offset:{8192*gen}")
    q(f"ds_read_b64 {v(UU+2,2)}, {v(V_EU1)} offset:{8192*gen}")
    q(f"ds_read_b128 {v(XX,4)}, {v(V_EXP)} offset:{8192*gen}")
    r = sub()
    for c2 in range(2):
        for i in range(2):
            r(f"v_lshlrev_b32 {v(TT+4*c2+2*i)}, 16, {v(UU+2*c2+i)}")
            r(f"v_and_b32 {v(TT+4*c2+2*i+1)}, 0xffff0000, {v(UU+2*c2+i)}")
    for c2, sm in ((0, S_C), (1, S_D)):
        for i in range(4):
            r(f"v_mul_f32 {v(TT+4*c2+i)}, s{sm}, {v(TT+4*c2+i)}")
    for j in range(4):
        r(f"v_cvt_pk_bf16_f32 {v(WW+j)}, {v(TT+j)}, {v(TT+4+j)}")
    for j in range(4):
        r(f"v_lshlrev_b32 {v(TT+2*j)}, 16, {v(WW+j)}")
        r(f"v_and_b32 {v(TT+2*j+1)}, 0xffff0000, {v(WW+j)}")
    return q.ins, r.ins


def conv_xchg(gen):
    w_, b_, r_ = sub(), sub(), sub()
    for c in range(4):
        w_(f"ds_write_b128 {v(V_EXW)}, {v(CA[gen]+4*c,4)} offset:{(4096 if gen else 14336)*c}", tok=f"xw{gen}")
    b_.wait(f"xw{gen}")
    b_("s_barrier")
    for w in range(4):
        r_(f"ds_read_b128 {v(YY+4*w,4)}, {v(V_EXR)} offset:{1024*w}", tok=f"xr{gen}")
    return w_.ins, b_.ins, r_.ins


def conv_post(gen):
    q = sub()
    for c2 in range(2):
        for i in range(2):
            q(f"v_pk_add_f32 {v(YY+8*c2+2*i,2)}, {v(YY+8*c2+2*i,2)}, {v(YY+8*c2+4+2*i,2)}")
    for j in range(4):
        q(f"v_cvt_pk_bf16_f32 {v(WW+j)}, {v(YY+j)}, {v(YY+8+j)}")
    for j in range(4):
        q(f"v_lshlrev_b32 {v(YY+2*j)}, 16, {v(WW+j)}")
        q(f"v_and_b32 {v(YY+2*j+1)}, 0xffff0000, {v(WW+j)}")
    for j in range(4):
        q(f"v_pk_add_f32 {v(YY+2*j,2)}, {v(YY+2*j,2)}, {v(TT+2*j,2)}")
    for j in range(4):
        q(f"v_cvt_pk_bf16_f32 {v(WW+j)}, {v(YY+2*j)}, {v(YY+2*j+1)}")
    for j in range(4):
        q(f"v_lshlrev_b32 {v(YY+8+2*j)}, 16, {v(XX+j)}")
        q(f"v_and_b32 {v(YY+8+2*j+1)}, 0xffff0000, {v(XX+j)}")
    for j in range(4):
        q(f"v_lshlrev_b32 {v(YY+2*j)}, 16, {v(WW+j)}")
        q(f"v_and_b32 {v(YY+2*j+1)}, 0xffff0000, {v(WW+j)}")
    for j in range(4):
        q(f"v_pk_add_f32 {v(YY+2*j,2)}, {v(YY+2*j,2)}, {v(YY+8+2*j,2)}")
    h = HO + 4 * gen
    for j in range(4):
        q(f"v_cvt_pk_bf16_f32 {v(h+j)}, {v(YY+2*j)}, {v(YY+2*j+1)}")
    q(f"s_mov_b32 s{S_T0}, {PGEN*gen}")
    q(f"buffer_store_dwordx4 {v(h,4)}, {v(V_PST)}, {srd(SRD_WS)}, s{S_T0} offen sc1", tok=f"h{gen}")
    return q.ins


V_WF = 19
V_F4 = 20
ad = sub()
ad(f"v_mov_b32 {v(V_NONCE)}, 1")
flg_lanes(ad, 4, 10)
ad(f"s_lshl_b32 s{S_T0}, s{S_V}, 13")
ad(f"s_add_u32 s{S_F2}, s{S_F2}, s{S_T0}")
ad(f"s_lshl_b32 s{S_T0}, s{S_FH}, 12")
ad(f"s_add_u32 s{S_F2}, s{S_F2}, s{S_T0}")
ad(f"s_add_u32 s{S_F2}, s{S_F2}, {WS_C}")
NFL = len(ad.ins)
ad(f"s_lshr_b32 s{S_T0}, s{S_TB}, 2")
ad(f"s_bfe_u32 s{S_REP}, s{S_W}, 0x20003")
ad(f"s_lshl3_add_u32 s{S_T0}, s{S_T0}, s{S_REP}")
ad(f"s_lshl2_add_u32 s{S_T0}, s{S_T0}, s{S_V}")
ad(f"s_lshl_b32 s{S_T0}, s{S_T0}, 8")
ad(f"s_add_u32 s{S_T0}, s{S_T0}, {WS_C}")
ad(f"v_mov_b32 {v(V_F2)}, 0x7ff00000")
ad(f"v_writelane_b32 {v(V_F2)}, s{S_T0}, 0")
ad(f"s_add_u32 s{S_T0}, s{S_T0}, 4096")
ad(f"v_writelane_b32 {v(V_F2)}, s{S_T0}, 1")
ad(f"s_lshl2_add_u32 s{S_T2}, s{S_DB}, s{S_V}")
ad(f"s_lshl2_add_u32 s{S_T3}, s{S_T2}, s{S_REP}")
ad(f"s_lshl_b32 s{S_T3}, s{S_T3}, 8")
ad(f"s_add_u32 s{S_T3}, s{S_T3}, {WS_C + 896*256}")
ad(f"v_mov_b32 {v(V_F4)}, 0x7ff00000")
ad(f"v_writelane_b32 {v(V_F4)}, s{S_T3}, 0")
ad(f"s_mul_i32 s{S_T1}, s{S_V}, 56")
ad(f"s_mul_i32 s{S_T2}, s{S_T2}, {14*4096}")
ad(f"s_add_u32 s{S_T2}, s{S_T2}, {WS_WF}")
ad(f"v_add_u32 {v(V_WF)}, s{S_T2}, {v(V_L16)}")
ad(f"s_lshl_b32 s{S_HR}, s{S_DB}, 11")
for i in range(1, 7):
    ad(f"s_add_u32 s{S_HR+i}, s{S_HR}, {2048*i}")
    ad(f"s_sub_u32 s{S_T3}, s{S_HR+i}, 14336")
    ad(f"s_min_u32 s{S_HR+i}, s{S_HR+i}, s{S_T3}")
V_A = 17
ad(f"v_lshrrev_b32 v5, 4, {v(V_LANE)}")
ad(f"v_and_b32 v6, 15, {v(V_LANE)}")
ad(f"v_mul_u32_u24 v4, {PROW}, v5")
ad(f"v_lshl_add_u32 v4, v6, 4, v4")
ad(f"s_mul_i32 s{S_T1}, s{S_T1}, {PROW}")
ad(f"s_lshl_b32 s{S_T0}, s{S_TB}, 8")
ad(f"s_add_u32 s{S_T0}, s{S_T0}, s{S_T1}")
ad(f"s_add_u32 s{S_T0}, s{S_T0}, {WS_P}")
ad(f"v_add_u32 {v(V_A)}, s{S_T0}, v4")
ad(f"v_add_u32 {v(V_A+1)}, {4*PROW-1024}, {v(V_A)}")
ad1 = ad

def act_dma(gen):
    o = []
    for i in range(7):
        q = sub()
        q(f"s_add_u32 m0, s{S_ACTW if gen == 0 else S_Z}, s{S_HR+i}")
        q(f"s_mul_i32 s{S_WOFF}, s{S_HR+i}, {8*PROW//2048}")
        for k in range(2):
            of = f" offset:{1024*k}" if k else ""
            q(f"buffer_load_dwordx4 {v(V_A+k)}, {srd(SRD_WS)}, s{S_WOFF} offen{of} sc1 lds", tok=f"act{gen}")
        o.append(q.ins)
    return o


V_BR, V_S2, V_HST = 21, 22, 24
V_LF, V_LR = 28, 29
V_RES = 27
V_OST, V_RR, V_RW, V_HL, V_P3 = 40, 41, 42, 44, 45
SEL = 176
CSA = [180, 184]
ad = sub()
ad(f"v_add_u32 {v(V_F2)}, 0x8000, {v(V_F2)}")
ad(f"v_and_b32 v4, 31, {v(V_LANE)}")
ad(f"v_lshrrev_b32 v5, 5, {v(V_LANE)}")
ad(f"v_lshlrev_b32 v5, 10, v5")
ad(f"v_lshl_add_u32 {v(V_BR)}, v4, 2, v5")
ad(f"s_lshl_b32 s{S_T0}, s{S_TB}, 10")
ad(f"s_mul_i32 s{S_T1}, s{S_DB}, {S2REP}")
ad(f"s_add_u32 s{S_T0}, s{S_T0}, s{S_T1}")
ad(f"s_add_u32 s{S_T0}, s{S_T0}, {WS_S2}")
ad(f"v_lshl_add_u32 {v(V_S2)}, v4, 3, s{S_T0}")
ad(f"s_mov_b32 s{S_PERM}, 0x03020302")
ad(f"v_lshrrev_b32 v5, 4, {v(V_LANE)}")
ad(f"v_and_b32 v6, 15, {v(V_LANE)}")
ad(f"v_and_b32 v4, 1, v5")
ad(f"v_mul_u32_u24 v4, 57344, v4")
ad(f"v_lshl_add_u32 v4, v6, 4, v4")
ad(f"v_lshrrev_b32 v7, 1, v5")
ad(f"v_lshl_add_u32 v4, v7, 8, v4")
ad(f"s_mul_i32 s{S_T0}, s{S_TB}, {8*57344}")
ad(f"s_lshl_b32 s{S_T1}, s{S_FB}, 2")
ad(f"s_add_u32 s{S_T1}, s{S_T1}, s{S_V}")
ad(f"s_lshl_b32 s{S_T2}, s{S_T1}, 10")
ad(f"s_add_u32 s{S_T0}, s{S_T0}, {WS_H}")
ad(f"s_add_u32 s{S_T2}, s{S_T2}, s{S_T0}")
ad(f"v_add_u32 {v(V_HST)}, s{S_T2}, v4")
ad(f"s_mul_i32 s{S_T2}, s{S_FH}, 57344")
ad(f"s_add_u32 s{S_T0}, s{S_T0}, s{S_T2}")
ad(f"s_add_u32 s{S_T0}, s{S_T0}, s{S_ACTW}")
ad(f"v_add_u32 {v(V_HL)}, s{S_T0}, {v(V_L16)}")
ad(f"s_lshl_b32 s{S_T0}, s{S_TB}, 13")
ad(f"s_add_u32 s{S_T0}, s{S_T0}, {WS_C + 65536}")
ad(f"s_mul_i32 s{S_T1}, s{S_T1}, 37")
ad(f"s_and_b32 s{S_T1}, s{S_T1}, 0x600")
ad(f"s_add_u32 s{S_F3}, s{S_T0}, s{S_T1}")
ad(f"s_lshl1_add_u32 s{S_T1}, s{S_V}, s{S_FH}")
ad(f"s_lshl_b32 s{S_T1}, s{S_T1}, 8")
ad(f"s_add_u32 s{S_T0}, s{S_T0}, s{S_T1}")
ad(f"v_mov_b32 {v(V_P3)}, 0x7ff00000")
ad(f"v_writelane_b32 {v(V_P3)}, s{S_T0}, 0")
ad(f"s_add_u32 s{S_FW}, s{S_RING}, 32768")
ad(f"s_lshl_b32 s{S_R2}, s{S_V}, 14")
ad(f"s_add_u32 s{S_Z}, s{S_ACTW}, {L_ACT[1]}")
ad(f"v_add_u32 {v(V_LF)}, s{S_FW}, {v(V_L16)}")
ad(f"v_add_u32 {v(V_LR)}, s{S_R2}, {v(V_L16)}")
ad2 = ad
se = sub()
se(f"v_bfe_u32 v4, {v(V_LANE)}, 2, 2")
se(f"v_bfe_u32 v5, {v(V_LANE)}, 4, 1")
se(f"v_mov_b32 v6, 0x3f803f80")
se(f"v_cmp_eq_u32 vcc, v4, v5")
for i in range(4):
    se(f"v_cndmask_b32 {v(SEL+i)}, 0, v6, vcc")


def cs_mfma(ks0, ks1):
    q = sub()
    for ks in range(ks0, ks1):
        for m in range(2):
            c = "0" if ks == 0 else v(CSA[m], 4)
            q(f"v_mfma_f32_16x16x32_bf16 {v(CSA[m],4)}, {v(SEL,4)}, {acc(wfrag(m,ks),4)}, {c}")
    return q.ins


def pin_spread(g, start, ins, per=2):
    for i, x in enumerate(ins):
        g.at(int(start + i // per), [x])
    return int(start + (len(ins) + per - 1) // per)


mA, mB = conv_mfmas(0), conv_mfmas(1)
NOV = 22
bl = b_loads(0, 4)


def ab(rr):
    al = a_loads(rr, 0, 4)
    o = []
    for a in range(4):
        o += [bl[4 * rr + a]] + al[2 * a:2 * a + 2]
    return o


P.add(ab(0))
P.add(ea.ins)
P.add(eb.ins)
g = Gaps(mA + mB[:NOV], 2)
pr, pv = conv_pre(0)
l1 = ab(1) + ab(2) + pr + ab(3)
for i, x in enumerate(l1):
    g.at(i * 28 // len(l1), [x])
pin_vm(g, 1, b2, 3.2)
nb = b_loads(4, 8)
newl = []
for rr in range(4):
    newl += nb[4 * rr:4 * rr + 4] + a_loads(rr, 4, 8)
pin_spread(g, 30, newl[:12], per=1)
g.fill(pv, start=26, end=50)
xw, xb, xr = conv_xchg(0)
for i in range(4):
    g.at(42 + 2 * i, [xw[i]])
g.at(52, xb)
g.at(53, xr)
pin_spread(g, 54, newl[12:20], per=1)
P.add(g.out())
P.add(conv_post(0))
stamp("genA stored")
g = Gaps(mB[NOV:] + cs_mfma(0, 11), 2)
NB_ = len(mB) - NOV
pin_spread(g, 0, newl[20:], per=1)
fl = sub()
fl.wait("h0")
addcnt(fl, S_F2)
fl(f"s_add_u32 s{S_F2}, s{S_F2}, 0x8000")
g.at(int(OPT.get("fa", 30)), fl.ins)
tr2 = batch_tr(1)
for i in range(4):
    pin_spread(g, 10 + 9 * i, waitq(f"w2_{i}") + tr2[8 * i:8 * i + 8], per=1)
b3 = batch_dma(2, "w3")
for i in range(4):
    b3[i] = waitq(f"t1_{i}") + b3[i]
pin_vm(g, 24, b3, 3.3)
pr, pv = conv_pre(1)
pin_spread(g, 48, pr, per=1)
newl[-1].tok = "lastfrag"
bq = sub()
bq.wait("lastfrag")
bq("s_barrier")
g.at(46, bq.ins)
x2 = sub()
x2(f"v_add_u32 {v(V_EXW)}, {L_KC}, {v(V_EXW)}")
x2(f"s_lshl_b32 s{S_T0}, s{S_V}, 12")
x2(f"s_add_u32 s{S_T0}, s{S_T0}, {L_KC}")
x2(f"v_add_u32 {v(V_EXR)}, s{S_T0}, {v(V_L16)}")
PA1, PA2, PAC = int(OPT.get("pa1", 54)), int(OPT.get("pa2", 68)), int(OPT.get("pac", 80))
e = g.fill(ad1.ins[:NFL], start=0, end=int(OPT.get("fa", 30)))
e = g.fill(ad1.ins[NFL:NFL + 10], start=e, end=PA1)
e = g.fill(ad1.ins[NFL + 10:] + se.ins + x2.ins, start=e, end=PAC - 1)
g.fill(pv, start=max(e, 56), end=NB_ + 12)
g.at(PA1, poll_issue(V_F2, 7))
g.at(PA2, poll_issue(V_F2, 23))
g.at(PAC, stq("pre pollA") + poll_check2(V_F2, 7, 23, "3", f"s{S_E28}") + stq("post pollA"))
a0 = singles(act_dma(0))
na = (103 - PAC) // 3 + 1
pin_vm(g, PAC, a0[:na], 3)
xw, xb, xr = conv_xchg(1)
for i in range(4):
    g.at(NB_ + 2 + 2 * i, [xw[i]])
g.at(NB_ + 12, xb)
g.at(NB_ + 13, xr)
P.add(g.out())
p1 = conv_post(1)
P.add(sprinkle(p1, [(4 + 14 * i, u) for i, u in enumerate(a0[na:na + 3])]))
stamp("genB stored")
g = Gaps(cs_mfma(11, 24), 4)
g.at(1, poll_issue(V_F4, 25))
tr3 = batch_tr(2)
t3 = []
for i in (2, 3, 0, 1):
    t3 += waitq(f"w3_{i}") + tr3[8 * i:8 * i + 8]
pin_spread(g, 0, t3, per=4)
e = pin_vm(g, 0, a0[na + 3:] + [waitq("t2_3") + w_dma(6, 0, 8, "w4"), w_dma(6, 1, 12, "w4")], 2)
fl = sub()
fl.wait("h1")
addcnt(fl, S_F2)
g.fill(ad2.ins, start=9)
P.add(g.out())
P.add(fl.ins)
stamp("gap work done")

GACC = [64, 96]
BF = 128
NBF = 8
MB = 160
KC_ = [14, 9]
STT = 60
EPT = 164
HP = 172
WDV = 188
RESR = [46, 48, 50, 52]
A_CS = [224, 228]
GC0 = -2.0 * math.sqrt(2.0 / math.pi) * LOG2E


def st_issue(J, atomic=None):
    q = sub()
    t = STT + 2 * (J & 1)
    atomic = False if atomic is None else atomic
    if atomic:
        q(f"v_mov_b64 {v(t,2)}, 0")
        q(f"buffer_atomic_add_x2 {v(t,2)}, {v(V_S2)}, {srd(SRD_WS)}, 0 offen offset:{256*J} sc0")
    else:
        q(f"buffer_load_dwordx2 {v(t,2)}, {v(V_S2)}, {srd(SRD_WS)}, 0 offen offset:{256*J} sc1")
    return q.ins


def st_check(J):
    q = sub()
    t = STT + 2 * (J & 1)
    slow, done = label("sslow"), label("sdone")
    q(f"v_cmp_ne_u32 vcc, s{S_NONCE}, {v(t+1)}")
    q(f"s_cbranch_vccnz {slow}")
    q(f"{done}:")
    spin(TAIL, slow, done, st_issue(J, True), t + 1, sleep=1)
    return q.ins


def st_final(J):
    q = sub()
    kc = KC_[J & 1]
    t = STT + 2 * (J & 1)
    q(f"v_perm_b32 {v(MB)}, {v(t)}, {v(t)}, s{S_PERM}")
    q(f"v_lshlrev_b32 {v(t+1)}, 16, {v(t)}")
    q(f"v_rcp_f32 {v(t)}, {v(t+1)}")
    q(f"v_mul_f32 {v(kc+2)}, {v(t+1)}, {v(t+1)}")
    q(f"v_mul_f32 {v(kc)}, {f32(GC0)}, {v(t)}")
    q(f"v_mul_f32 {v(kc+1)}, {v(t)}, {v(t)}")
    q(f"v_mul_f32 {v(kc+1)}, {v(kc+1)}, {v(kc)}")
    q(f"v_mul_f32 {v(kc+1)}, {f32(0.044715)}, {v(kc+1)}")
    return q.ins


SP = Prog()
spn = [1]


def sps():
    if STAMPS and "lite" in OPT:
        SP(f"s_memrealtime s[{S_STAMP}:{S_STAMP+1}]")
        SP("s_waitcnt lgkmcnt(0)")
        SP(f"v_writelane_b32 v255, s{S_STAMP}, {spn[0]}")
        spn[0] += 1


SP("L_spare:")
SP("s_waitcnt vmcnt(0)")
SP("s_barrier")
sps()
SP(f"s_and_b32 s{S_T0}, s{S_W}, 6")
SP(f"s_lshl_b32 s{S_T0}, s{S_T0}, 1")
SP(f"s_bfe_u32 s{S_T1}, s{S_W}, 0x20003")
SP(f"s_add_u32 s{S_TB}, s{S_T0}, s{S_T1}")
SP(f"s_lshr_b32 s{S_T0}, s{S_TB}, 2")
SP(f"s_lshl2_add_u32 s{S_T0}, s{S_FH}, s{S_T0}")
SP(f"s_lshl3_add_u32 s{S_T0}, s{S_T0}, s{S_T1}")
SP(f"s_lshl2_add_u32 s{S_T0}, s{S_T0}, s{S_V}")
SP(f"s_lshl_b32 s{S_T0}, s{S_T0}, 8")
SP(f"s_add_u32 s{S_T0}, s{S_T0}, {WS_C}")
SP(f"v_and_b32 v4, 1, {v(V_LANE)}")
SP(f"v_lshl_add_u32 v10, v4, 12, s{S_T0}")
SP(f"s_mul_i32 s{S_T1}, s{S_V}, 56")
SP(f"v_mov_b32 {v(V_NONCE)}, 7")
flg_lanes(SP, 4)
SP(f"v_lshrrev_b32 v5, 4, {v(V_LANE)}")
SP(f"v_and_b32 v6, 15, {v(V_LANE)}")
SP(f"v_mul_u32_u24 v4, {PROW}, v5")
SP(f"v_lshl_add_u32 v4, v6, 4, v4")
SP(f"s_mul_i32 s{S_T1}, s{S_T1}, {PROW}")
SP(f"s_lshl_b32 s{S_T0}, s{S_TB}, 8")
SP(f"s_add_u32 s{S_T0}, s{S_T0}, s{S_T1}")
SP(f"s_mul_i32 s{S_T1}, s{S_FH}, {PGEN}")
SP(f"s_add_u32 s{S_T0}, s{S_T0}, s{S_T1}")
SP(f"s_add_u32 s{S_T0}, s{S_T0}, {WS_P}")
SP(f"v_add_u32 v11, s{S_T0}, v4")
SP(f"v_lshl_add_u32 v4, v6, 2, v5")
SP(f"s_lshl_b32 s{S_T0}, s{S_V}, 9")
SP(f"v_lshl_add_u32 v12, v4, 3, s{S_T0}")
SP(f"v_lshlrev_b32 v13, 3, {v(V_LANE)}")
SP(f"v_mov_b32 v14, 0x3f803f80")
SP(f"s_sub_u32 s{S_T1}, s{S_W}, 224")
SP(f"s_lshr_b32 s{S_T0}, s{S_V}, 1")
SP(f"s_lshl1_add_u32 s{S_T1}, s{S_T1}, s{S_T0}")
SP(f"s_mul_i32 s{S_T1}, s{S_T1}, {35*128}")
SP(f"s_add_u32 s{S_T1}, s{S_T1}, {3584*128}")
SP(f"v_min_u32 v4, 34, {v(V_LANE)}")
SP(f"v_lshl_add_u32 v4, v4, 7, s{S_T1}")
for k in range(4):
    SP(f"global_load_dword {v(60+k)}, v4, s[{S_PFB}:{S_PFB+1}]")
    if k < 3:
        SP(f"v_add_u32 v4, {2240*128}, v4")
SP(f"s_sub_u32 s{S_T1}, s{S_W}, 224")
SP(f"s_cmp_ge_u32 s{S_T1}, 28")
SP("s_cbranch_scc1 L_sp_nowf")
SP(f"s_lshr_b32 s{S_DB}, s{S_T1}, 2")
SP(f"s_and_b32 s{S_T2}, s{S_T1}, 3")
SP(f"s_lshl_b32 s{S_F3}, s{S_T1}, 10")
SP(f"s_add_u32 s{S_F3}, s{S_F3}, {WS_C + 896*256}")
SP(f"s_mul_i32 s{S_T1}, s{S_T1}, {14*4096}")
SP(f"s_add_u32 s{S_T1}, s{S_T1}, {WS_WF}")
SP(f"v_add_u32 v20, s{S_T1}, {v(V_L16)}")
SP(f"v_lshrrev_b32 v6, 3, {v(V_LANE)}")
SP(f"v_and_b32 v7, 6, v6")
SP(f"v_and_b32 v5, 7, {v(V_LANE)}")
SP(f"v_xor_b32 v7, v7, v5")
SP(f"v_mul_u32_u24 v6, 896, v6")
SP(f"v_lshl_add_u32 v6, v7, 4, v6")
SP(f"s_mul_i32 s{S_T0}, s{S_T2}, {448*896}")
SP(f"s_lshl_b32 s{S_T1}, s{S_DB}, 7")
SP(f"s_add_u32 s{S_T0}, s{S_T0}, s{S_T1}")
SP(f"v_add_u32 v48, s{S_T0}, v6")
for k in range(1, 4):
    SP(f"v_add_u32 {v(48+k)}, {k*(7168-1024)}, v48")
SP(f"s_lshl_b32 s{S_R2}, s{S_V}, 14")
SP(f"s_add_u32 s{S_R2}, s{S_R2}, 4096")
for i in range(4):
    SP(f"s_lshl2_add_u32 s{S_HR+i}, s{S_V}, {i}")
    SP(f"s_min_u32 s{S_HR+i}, s{S_HR+i}, 13")
    SP(f"s_lshl1_add_u32 s{S_T0}, s{S_DB}, s{S_HR+i}")
    SP(f"s_sub_u32 s{S_T1}, s{S_T0}, 14")
    SP(f"s_cmp_ge_u32 s{S_T0}, 14")
    SP(f"s_cselect_b32 s{S_T0}, s{S_T1}, s{S_T0}")
    SP(f"s_mul_i32 s{S_WOFF}, s{S_T0}, {32*896}")
    SP(f"s_add_u32 m0, s{S_R2}, {4096*i}")
    SP(f"s_lshl_b32 s{S_HR+i}, s{S_HR+i}, 12")
    for k in range(4):
        of = f" offset:{1024*k}" if k else ""
        SP(f"buffer_load_dwordx4 {v(48+k)}, {srd(SRD_WD)}, s{S_WOFF} offen{of} lds", tok=f"sw{i}")
SP(f"v_lshrrev_b32 v4, 4, {v(V_LANE)}")
SP(f"v_lshrrev_b32 v6, 1, v4")
SP(f"v_lshlrev_b32 v6, 4, v6")
SP(f"v_and_b32 v7, 1, v4")
SP(f"v_lshl_add_u32 v6, v7, 2, v6")
SP(f"v_bfe_u32 v7, {v(V_LANE)}, 2, 2")
SP(f"v_add_u32 v6, v6, v7")
SP(f"v_bfe_u32 v7, v6, 1, 2")
SP(f"v_lshlrev_b32 v6, 7, v6")
SP(f"v_and_b32 v5, 3, {v(V_LANE)}")
SP(f"v_lshl_add_u32 v6, v5, 3, v6")
for rt in range(4):
    SP(f"v_xor_b32 v5, {rt}, v7")
    SP(f"v_lshl_add_u32 v5, v5, 5, v6")
    SP(f"v_add_u32 {v(52+rt)}, s{S_R2}, v5")
for i in range(4):
    SP.wait(f"sw{i}")
    if i in (0, 3): sps()
    for rt in range(4):
        for h in range(2):
            SP(f"ds_read_b64_tr_b16 {v(64+16*i+4*rt+2*h,2)}, {v(52+rt)} offset:{4096*i+1024*h}")
    for rt in range(4):
        SP(f"buffer_store_dwordx4 {v(64+16*i+4*rt,4)}, v20, {srd(SRD_WS)}, s{S_HR+i} offen offset:{1024*rt} sc1")
SP("s_waitcnt vmcnt(0)")
addcnt(SP, S_F3)
sps()
SP("L_sp_nowf:")
sps()
SP("s_mov_b64 vcc, 3")
spin(SP, "L_sp_c", "L_sp_d", poll_issue(10, 7), 7, sleep=int(OPT.get('spsleep', 2)), exp=f"s{S_E28}")
SP("L_sp_d:")
sps()
for k in range(14):
    SP(f"s_mov_b32 s{S_T0}, {k*4*PROW}")
    SP(f"buffer_load_dwordx4 {v(64+4*k,4)}, v11, {srd(SRD_WS)}, s{S_T0} offen sc1")
SS = 16
for j in range(8):
    SP(f"v_mov_b32 {v(SS+j)}, 0")
for k in range(14):
    for j in range(4):
        SP(f"v_dot2c_f32_bf16 {v(SS+j)}, {v(64+4*k+j)}, v14")
    for j in range(4):
        SP(f"v_dot2c_f32_bf16 {v(SS+4+j)}, {v(64+4*k+j)}, {v(64+4*k+j)}")
for o in (0, 4):
    SP(f"v_permlane32_swap_b32 {v(SS+o)}, {v(SS+o+2)}")
    SP(f"v_permlane32_swap_b32 {v(SS+o+1)}, {v(SS+o+3)}")
for o in (0, 4):
    SP(f"v_add_f32 {v(SS+o)}, {v(SS+o)}, {v(SS+o+2)}")
    SP(f"v_add_f32 {v(SS+o+1)}, {v(SS+o+1)}, {v(SS+o+3)}")
for o in (0, 4):
    SP(f"v_permlane16_swap_b32 {v(SS+o)}, {v(SS+o+1)}")
SP(f"v_add_f32 {v(SS)}, {v(SS)}, {v(SS+1)}")
SP(f"v_add_f32 {v(SS+1)}, {v(SS+4)}, {v(SS+5)}")
sps()
SP(f"ds_write_b64 v12, {v(SS,2)}")
SP("s_waitcnt lgkmcnt(0)")
SP("s_barrier")
SP(f"s_cmp_lg_u32 s{S_V}, 0")
SP("s_cbranch_scc1 L_fin")
t = 24
for w in range(4):
    SP(f"ds_read_b64 {v(t+2*w,2)}, v13 offset:{512*w}")
SP(f"s_lshl_b32 s{S_T0}, s{S_TB}, 1")
SP(f"s_add_u32 s{S_T0}, s{S_T0}, s{S_FH}")
SP(f"s_lshl_b32 s{S_T0}, s{S_T0}, 9")
SP(f"s_add_u32 s{S_T0}, s{S_T0}, {WS_S2}")
SP(f"v_pk_add_f32 {v(t,2)}, {v(t,2)}, {v(t+2,2)}")
SP(f"v_pk_add_f32 {v(t+4,2)}, {v(t+4,2)}, {v(t+6,2)}")
SP(f"v_pk_add_f32 {v(t,2)}, {v(t,2)}, {v(t+4,2)}")
SP(f"v_mul_f32 {v(t)}, s{S_K0}, {v(t)}")
SP(f"v_mul_f32 {v(t+1)}, s{S_K0}, {v(t+1)}")
SP(f"v_fma_f32 {v(t+1)}, -{v(t)}, {v(t)}, {v(t+1)}")
SP(f"v_max_f32 {v(t+1)}, 0, {v(t+1)}")
round_bf16(SP, t + 1, t + 1)
SP(f"v_add_f32 {v(t+1)}, {f32(1e-5)}, {v(t+1)}")
round_bf16(SP, t + 1, t + 1)
SP(f"v_sqrt_f32 {v(t+1)}, {v(t+1)}")
SP(f"v_cvt_pk_bf16_f32 {v(t)}, {v(t+1)}, -{v(t)}")
SP(f"v_mov_b32 {v(t+1)}, s{S_NONCE}")
for r_ in range(7):
    SP(f"buffer_store_dwordx2 {v(t,2)}, v13, {srd(SRD_WS)}, s{S_T0} offen sc1")
    SP(f"s_add_u32 s{S_T0}, s{S_T0}, {S2REP}")
sps()
SP(f"s_cmp_lg_u32 s{S_W}, 255")
SP("s_cbranch_scc1 L_fin")
SP(f"v_lshlrev_b32 v4, 25, {v(V_LANE)}")
SP(f"buffer_store_dword {v(t+1)}, v4, {srd(SRD_WS)}, 0 offen sc1")
SP("s_branch L_fin")


def b_read(J, ks):
    q = sub()
    b = BF + 4 * (ks % NBF)
    q(f"ds_read2st64_b32 {v(b,2)}, {v(V_BR)} offset0:{8*ks} offset1:{8*ks+1}")
    q(f"ds_read2st64_b32 {v(b+2,2)}, {v(V_BR)} offset0:{8*ks+2} offset1:{8*ks+3}", tok=f"b{J}_{ks}")
    return q.ins


def g1_gaps(J, extra_after=None):
    m = sub()
    g0 = GACC[J & 1]
    for ks in range(28):
        for mm in range(2):
            d = g0 + 16 * mm
            c = "0" if ks == 0 else v(d, 16)
            m(f"v_mfma_f32_32x32x16_bf16 {v(d,16)}, {acc(wfrag(mm,ks),4)}, {v(BF+4*(ks%NBF),4)}, {c}")
    for mm in range(2):
        d = g0 + 16 * mm
        m(f"v_mfma_f32_32x32x16_bf16 {v(d,16)}, {acc(A_CS[mm],4)}, {v(MB,4)}, {v(d,16)}")
    g = Gaps(m.ins, 6)
    for ks in range(28):
        k2 = ks + NBF - 1
        if k2 < 28:
            r = b_read(J, k2)
            g.at(2 * ks, [r[0]])
            g.at(2 * ks + 1, [r[1]])
        if ks % 3 == 2 and ks + 1 < 28:
            w = sub()
            w.wait(f"b{J}_{min(ks+3,27)}")
            g.at(2 * ks + 1, w.ins)
    return g


def next_tile_reads(g, J, delta, first=42):
    q = sub()
    q(f"v_add_u32 {v(V_BR)}, {delta}, {v(V_BR)}")
    g.at(first, q.ins)
    for ks in range(NBF - 1):
        old = max(k for k in range(28) if k % NBF == ks)
        r = b_read(J, ks)
        at = max(2 * old + 1, first + 1)
        g.at(at, r[:1])
        g.at(min(at + 1, 57), r[1:])


def g1_epi(J):
    q = sub()
    g = GACC[J & 1]
    kc = KC_[J & 1]
    T = EPT
    for j0 in range(0, 16, 4):
        js = range(j0, j0 + 4)
        for j in js:
            q(f"v_mul_f32 {v(T+j-j0)}, {v(g+j)}, {v(g+j)}")
        for j in js:
            q(f"v_fma_f32 {v(T+j-j0)}, {v(T+j-j0)}, {v(kc+1)}, {v(kc)}")
        for j in js:
            q(f"v_mul_f32 {v(T+j-j0)}, {v(T+j-j0)}, {v(g+j)}")
        for j in js:
            q(f"v_exp_f32 {v(T+j-j0)}, {v(T+j-j0)}")
            q(f"v_mul_f32 {v(T+4+j-j0)}, {v(g+j)}, {v(g+16+j)}")
        for j in js:
            q(f"v_fma_f32 {v(T+j-j0)}, {v(T+j-j0)}, {v(kc+2)}, {v(kc+2)}")
        for j in js:
            q(f"v_rcp_f32 {v(T+j-j0)}, {v(T+j-j0)}")
        for j in js:
            q(f"v_mul_f32 {v(T+4+j-j0)}, {v(T+4+j-j0)}, {v(T+j-j0)}")
        q(f"v_cvt_pk_bf16_f32 {v(HP+(j0//2)%4)}, {v(T+4)}, {v(T+5)}")
        q(f"v_cvt_pk_bf16_f32 {v(HP+(j0//2)%4+1)}, {v(T+6)}, {v(T+7)}")
        if j0 in (4, 12):
            q2 = j0 // 8
            q(f"buffer_store_dwordx4 {v(HP,4)}, {v(V_HST)}, {srd(SRD_WS)}, 0 offen offset:{512*q2} sc1", tok=f"H{J}")
    q(f"v_add_u32 {v(V_HST)}, {2*57344}, {v(V_HST)}")
    return q.ins


def flag3(J):
    q = sub()
    q.wait(f"H{J}")
    addcnt(q, S_F3)
    q(f"s_add_u32 s{S_F3}, s{S_F3}, 2048")
    return q.ins


WDREG = {}
for i in range(4):
    for rt in range(4):
        WDREG[i, rt] = v(WDV + 16 * i + 4 * rt, 4)
        WDREG[10, rt] = acc(240 + 4 * rt, 4)
        WDREG[11, rt] = v([176, 180, 184, 56][rt], 4)
        WDREG[12, rt] = acc(4 * rt, 4)
        WDREG[13, rt] = acc(16 + 4 * rt, 4)
for i in range(6):
    for rt in range(4):
        WDREG[4 + i, rt] = acc(128 + 16 * i + 4 * rt, 4)
KORD = [0, 1, 2, 3, 10, 11, 12, 13, 4, 5, 6, 7, 8, 9]


def wdr(ft, rt):
    return WDREG[ft, rt]


def wd_load(ft):
    q = sub()
    q(f"s_mov_b32 s{S_WOFF}, {ft*4096}")
    for k in range(4):
        of = f" offset:{1024*k}" if k else ""
        q(f"buffer_load_dwordx4 {wdr(ft,k)}, {v(V_WF)}, {srd(SRD_WS)}, s{S_WOFF} offen{of} sc1")
    return q.ins


def wd_dma(ft):
    q = sub()
    sbase, slot = (S_FW, ft - 4) if ft < 6 else (S_R2, ft - 6)
    q(f"s_add_u32 m0, s{sbase}, {slot*4096}")
    q(f"s_mov_b32 s{S_WOFF}, {ft*4096}")
    for k in range(4):
        of = f" offset:{1024*k}" if k else ""
        q(f"buffer_load_dwordx4 {v(V_WF)}, {srd(SRD_WS)}, s{S_WOFF} offen{of} sc1 lds", tok=f"wd{ft}")
    return q.ins


def wd_read(ft):
    q = sub()
    va, slot = (V_LF, ft - 4) if ft < 6 else (V_LR, ft - 6)
    for rt in range(4):
        q(f"ds_read_b128 {wdr(ft,rt)}, {v(va)} offset:{4096*slot+1024*rt}")
    return q.ins


def res_read(J):
    q = sub()
    q(f"ds_read2st64_b32 {v(RESR[J],2)}, {v(V_RES)} offset0:0 offset1:1", tok=f"res{J}")
    q(f"v_add_u32 {v(V_RES)}, {128 if J % 2 == 0 else L_ACT[1]-128}, {v(V_RES)}")
    return q.ins


ad = sub()
ad(f"v_lshrrev_b32 v4, 4, v0")
ad(f"v_and_b32 v5, 15, v0")
ad(f"v_lshlrev_b32 v6, 9, v5")
ad(f"v_lshl_add_u32 v6, v4, 2, v6")
ad(f"s_lshl_b32 s{S_T0}, s{S_DB}, 13")
ad(f"s_lshl_b32 s{S_T1}, s{S_FH}, 6")
ad(f"s_add_u32 s{S_T0}, s{S_T0}, s{S_T1}")
ad(f"v_add_u32 {v(V_RES)}, s{S_T0}, v6")
ad(f"v_lshrrev_b32 v6, 2, v4")
ad(f"v_and_b32 v7, 3, v4")
ad(f"v_lshl_add_u32 v6, v6, 4, v7")
ad(f"v_mul_u32_u24 v6, 896, v6")
ad(f"v_lshl_add_u32 v6, v5, 3, v6")
ad(f"s_lshr_b32 s{S_T0}, s{S_TB}, 2")
ad(f"s_lshl_b32 s{S_T0}, s{S_T0}, 8")
ad(f"s_add_u32 s{S_T0}, s{S_T0}, s{S_T1}")
ad(f"s_and_b32 s{S_T1}, s{S_TB}, 3")
ad(f"s_lshl_b32 s{S_T1}, s{S_T1}, 2")
ad(f"s_add_u32 s{S_T0}, s{S_T0}, s{S_T1}")
ad(f"s_mul_i32 s{S_T0}, s{S_T0}, 896")
ad(f"s_lshl_b32 s{S_T1}, s{S_DB}, 7")
ad(f"s_add_u32 s{S_T0}, s{S_T0}, s{S_T1}")
ad(f"v_add_u32 {v(V_OST)}, s{S_T0}, v6")
ad(f"v_mul_u32_u24 v6, 272, v5")
ad(f"v_lshl_add_u32 v6, v4, 4, v6")
ad(f"v_add_u32 {v(V_RR)}, {L_R}, v6")
ad(f"v_lshrrev_b32 v4, 4, {v(V_LANE)}")
ad(f"v_mul_u32_u24 v6, 272, v4")
ad(f"v_lshl_add_u32 v6, v5, 4, v6")
ad(f"s_mul_i32 s{S_T0}, s{S_V}, 4352")
ad(f"s_add_u32 s{S_T0}, s{S_T0}, {L_R}")
ad(f"v_add_u32 {v(V_RW)}, s{S_T0}, v6")
flg_lanes(ad, 2)
ad(f"v_add_u32 {v(V_A)}, {PGEN}, {v(V_A)}")
ad(f"v_add_u32 {v(V_A+1)}, {PGEN}, {v(V_A+1)}")

for i in range(1, 4):
    P(f"v_mov_b32 {v(MB+i)}, 0")
    P(f"v_accvgpr_write_b32 {acc(A_CS[0]+i)}, 0")
    P(f"v_accvgpr_write_b32 {acc(A_CS[1]+i)}, 0")
P.wait("act0")
P("s_waitcnt lgkmcnt(0)")
P("s_barrier")
stamp("gemm1 start")
for ks in range(NBF - 1):
    P.add(b_read(0, ks))

def hreg(J, ft):
    n = KORD.index(ft)
    if J in (0, 3):
        return acc(32 + 4 * n, 4)
    if J == 1:
        return v(64 + 4 * n if n < 8 else 128 + 4 * (n - 8), 4)
    return v(96 + 4 * n if n < 8 else 152 + 4 * (n - 8), 4)


def h_loads(J):
    o = []
    for s_ in KORD:
        q = sub()
        of = " offset:1024" if s_ % 2 else ""
        q(f"buffer_load_dwordx4 {hreg(J,s_)}, {v(V_HL)}, {srd(SRD_WS)}, s{S_HR+s_//2} offen{of} sc1")
        o.append(q.ins)
    if J < 3:
        q = sub()
        q(f"v_add_u32 {v(V_HL)}, {2*57344}, {v(V_HL)}")
        o[-1] += q.ins
    return o


def p3_next():
    q = sub()
    q(f"v_add_u32 {v(V_P3)}, 2048, {v(V_P3)}")
    return q.ins


g = g1_gaps(0)
g.at(0, poll_check(V_F4, 25))
pin_vm(g, 0, [wd_load(0), wd_load(1), wd_load(2), wd_load(3)], 2.3)
t4 = w_tr(6, 0, 8, "t4") + w_tr(6, 1, 12, "t4")
g.at(17, waitq("w4"))
pin_spread(g, 17, t4, per=2)
e = g.fill(ad.ins, start=0)
assert e < 24, e
g.at(28, waitq("t4") + cs_mfma(24, 28))
cf = sub()
for m in range(2):
    round_bf16(cf, 54, CSA[m])
    cf(f"v_sub_f32 v55, {v(CSA[m])}, v54")
    cf(f"v_cvt_pk_bf16_f32 v54, v54, v55")
    cf(f"v_accvgpr_write_b32 {acc(A_CS[m])}, v54")
g.fill(cf.ins, start=32, end=50)
g.at(int(OPT.get("pb1", 21)), poll_issue(V_F2, 23))
g.at(int(OPT.get("pb2", 37)), poll_issue(V_F2, 25))
g.at(int(OPT.get("st0", 36)), st_issue(0))
pin_vm(g, 38, [wd_dma(4), wd_dma(5)], 2.3)
g.at(53, stq("t0 pre st") + st_check(0) + stq("t0 post st"))
g.fill(st_final(0), start=53, end=55)
g.at(57, stq("t0 pre pB") + poll_check2(V_F2, 23, 25, "3", f"s{S_E28}") + stq("t0 post pB"))
next_tile_reads(g, 1, 128)
P.add(g.out())
stamp("tile0")
g = g1_gaps(1)
e = pin_vm(g, 0, act_dma(1)[:2] + [st_issue(1)] + act_dma(1)[2:], 2)
pin_vm(g, e + 1, [wd_load(10)], 3)
g.at(43, res_read(0))
g.at(45, res_read(1))
g.at(40, st_check(1))
g.fill(st_final(1), start=41, end=54)
bq = sub()
bq.wait("act1")
bq.wait("res1")
bq("s_barrier")
BB = int(OPT.get("bb", 52))
g.at(BB, stq("t1 pre bar") + bq.ins + stq("t1 post bar"))
next_tile_reads(g, 2, L_ACT[1] - 128, first=BB)
e = g.fill(g1_epi(0), start=3)
print("tile 1: epilogue ends at gap", e, "tail", len(g.tail))
P.add(g.out())
stamp("tile1")
g = g1_gaps(2)
pin_vm(g, 0, [wd_dma(6), wd_dma(7), st_issue(2), wd_dma(8), wd_dma(9), wd_load(11), st_issue(3)], 2.5)
g.at(24, flag3(0))
g.at(49, st_check(2))
g.fill(st_final(2), start=50, end=54)
g.at(56, poll_issue(V_P3, 7))
next_tile_reads(g, 3, 128)
e = g.fill(g1_epi(1), start=3)
print("tile 2: epilogue ends at gap", e, "tail", len(g.tail))
P.add(g.out())
stamp("tile2")
g = g1_gaps(3)
T3S = float(OPT.get("t3s", 2.4))
e = pin_vm(g, 4, [wd_load(12), wd_load(13)], T3S)
g.at(int(OPT.get("f1", 21)), flag3(1))
g.at(48, st_check(3))
g.fill(st_final(3), start=49, end=54)
g.at(e - 1, stq("t3 pre p0") + poll_check(V_P3, 7) + stq("t3 post p0") + p3_next())
pin_vm(g, e, h_loads(0), T3S)
g.at(int(OPT.get("p1", 47)), poll_issue(V_P3, 7))
g.at(52, res_read(2))
g.at(54, res_read(3))
e = g.fill(g1_epi(2), start=2)
print("tile 3: epilogue ends at gap", e, "tail", len(g.tail))
P.add(g.out())
stamp("tile3")
P.add(waitq("wd9") + wd_read(4) + wd_read(5))
ep = g1_epi(3)
h1 = h_loads(1)
NE = int(OPT.get("ne", 3))
P.add(sprinkle(ep, [(int(OPT.get("f2", 120)), flag3(2))] + [(68, poll_check(V_P3, 7) + p3_next())] + [(69 + 22 * i, h1[i]) for i in range(NE)]))
stamp("epi3")

OA = [8, 48]
OA = [224, 96]
RT = 176


def g2_mfma(J):
    m = sub()
    for ft in KORD:
        for rt in range(4):
            d = acc(OA[J & 1] + 4 * rt, 4)
            c = "0" if ft == 0 else d
            m(f"v_mfma_f32_16x16x32_bf16 {d}, {wdr(ft,rt)}, {hreg(J,ft)}, {c}")
    return m.ins


RTMP = [28, 32, 36, 12]


def red_write(J):
    q = sub()
    for rt in range(4):
        q(f"ds_write_b128 {v(V_RW)}, {acc(OA[J&1]+4*rt,4)} offset:{(J&1)*R_SZ + rt*1088}")
    return q.ins


def red_bar():
    q = sub()
    q("s_waitcnt lgkmcnt(0)")
    q("s_barrier")
    return q.ins


def red_read(J):
    q = sub()
    for w in range(4):
        q(f"ds_read_b128 {v(RTMP[w],4)}, {v(V_RR)} offset:{(J&1)*R_SZ + w*4352}")
    return q.ins


def red_fin(J):
    q = sub()
    a, b, c, d = RTMP
    for i in range(2):
        q(f"v_lshlrev_b32 {v(16+2*i)}, 16, {v(RESR[J]+i)}")
        q(f"v_and_b32 {v(17+2*i)}, 0xffff0000, {v(RESR[J]+i)}")
    for i in range(4):
        q(f"v_add_f32 {v(a+i)}, {v(a+i)}, {v(b+i)}")
    for i in range(4):
        q(f"v_add_f32 {v(c+i)}, {v(c+i)}, {v(d+i)}")
    for i in range(4):
        q(f"v_add_f32 {v(a+i)}, {v(a+i)}, {v(16+i)}")
    for i in range(4):
        q(f"v_add_f32 {v(a+i)}, {v(a+i)}, {v(c+i)}")
    for i in range(2):
        q(f"v_cvt_pk_bf16_f32 {v(20+i)}, {v(a+2*i)}, {v(a+2*i+1)}")
    q(f"s_mov_b32 s{S_T0}, {(1024*(J>>1) + 128*(J&1))*896}")
    q(f"buffer_store_dwordx2 v[20:21], {v(V_OST)}, {srd(SRD_OUT)}, s{S_T0} offen {OPT.get('ost', '').replace('_', ' ')}")
    return q.ins


for J in range(4):
    g = Gaps(g2_mfma(J), 2)
    if J > 0:
        pin_spread(g, 4, red_write(J - 1), per=1)
        g.at(16, red_bar())
        pin_spread(g, 17, red_read(J - 1), per=1)
        g.fill(red_fin(J - 1), start=28)
    if J == 0:
        pin_vm(g, 0, h1[NE:], float(OPT.get("hs1", 4)))
        for i, x in enumerate(wd_read(6) + wd_read(7) + wd_read(8) + wd_read(9)):
            g.at(1 + 2 * i, [x])
        g.at(int(OPT.get("p2a", 18)), poll_issue(V_P3, 7))
        g.at(int(OPT.get("p2b", 36)), poll_issue(V_P3, 23))
        g.at(int(OPT.get("f3", 42)), flag3(3))
        bq = sub()
        bq.wait("res3")
        bq("s_barrier")
        g.at(52, bq.ins)
        g.at(55, poll_check2(V_P3, 7, 23, "1", f"s{S_E14}") + p3_next())
    if J == 1:
        pin_vm(g, 0, h_loads(2), float(OPT.get("hs", 3.5)))
        g.at(int(OPT.get("p3a", 14)), poll_issue(V_P3, 7))
        g.at(int(OPT.get("p3b", 32)), poll_issue(V_P3, 23))
        g.at(55, poll_check2(V_P3, 7, 23, "1", f"s{S_E14}"))
    if J == 2:
        pin_vm(g, 0, h_loads(3), float(OPT.get("hs3", 2)))
    P.add(g.out())
    stamp(f"g2 tile{J}")
P.add(red_write(3))
P.add(red_bar())
P.add(red_read(3))
P.add(red_fin(3))
stamp("end")

P("L_fin:")
if STAMPS:
    P(f"s_lshl_b32 s{S_T0}, s{S_W}, 2")
    P(f"s_add_u32 s{S_T0}, s{S_T0}, s{S_V}")
    P(f"s_lshl_b32 s{S_T0}, s{S_T0}, 8")
    P(f"s_add_u32 s{S_T0}, s{S_T0}, {WS_DBG + 0x800000}")
    P(f"v_lshlrev_b32 v4, 2, v1")
    P(f"buffer_store_dword v255, v4, {srd(SRD_WS)}, s{S_T0} offen")
if "dbgout" in OPT:
    P(f"s_cmp_ge_u32 s{S_W}, 224")
    P("s_cbranch_scc1 L_end")
    P(f"v_readlane_b32 s{S_T0}, v255, 0")
    P(f"s_not_b32 s{S_T0}, s{S_T0}")
    P(f"v_writelane_b32 v255, s{S_T0}, 15")
    P("s_mov_b64 exec, 0xffff")
    P(f"v_lshlrev_b32 v4, 2, v1")
    P("global_atomic_umax v4, v255, s[60:61]")
P("L_end:")
P("s_endpgm")

res = finalize(P.ins, verbose=True) + finalize(TAIL.ins) + finalize(SP.ins)
if "report" in OPT:
    report_waits(finalize(P.ins))
launch = f"; @launch kernel={KN} grid" if ("list" in OPT or STAMPS) else "; @launch grid"
hdr = f"""; Fused pre-LN S4D conv + GEGLU FFN, one persistent launch (generated by my own script)
{launch}=(256,1,1) block=(256,1,1) lds={LDS_SIZE}
.amdgcn_target "amdgcn-amd-amdhsa--gfx950"
.text
.globl {KN}
.p2align 8
.type {KN},@function
{KN}:
"""
ftr = f"""
.p2align 8
.fill 64, 4, 0xbf800000
L_codeend:
.section .rodata,"a"
.p2align 6
.amdhsa_kernel {KN}
  .amdhsa_next_free_vgpr 512
  .amdhsa_next_free_sgpr 102
  .amdhsa_accum_offset 256
  .amdhsa_group_segment_fixed_size 0
  .amdhsa_kernarg_size 112
  .amdhsa_user_sgpr_count 2
  .amdhsa_user_sgpr_kernarg_segment_ptr 1
  .amdhsa_system_sgpr_workgroup_id_x 1
.end_amdhsa_kernel
"""
open(OUTF, "w").write(hdr + text_of(res) + ftr)
src = open(__file__).read()
a = src.index("# ---------------- workspace layout")
b = src.index("# ---------------- LDS layout")
open("layout.py", "w").write(src[a:b] + "\nSTAMP_NAMES = " + repr(stamp_names) + "\nSPIN_NAMES = " + repr(spin_names) + "\n")
```

```python
import sys, math, struct
from asmgen import *

NAME = "sequential_preLN__ssm_conv_s4d__geglu_ffn__prompt"
KN = NAME + "_kernel"
OPT = {}
for a in sys.argv[1:]:
    k, _, val = a.partition("=")
    OPT[k] = val if val else True
STAMPS = "stamps" in OPT
OUTF = OPT.get("out", "k10.s")
if "wdearly" not in OPT:
    OPT["wdlate"] = True


def f32(x):
    return "0x%08x" % struct.unpack("<I", struct.pack("<f", x))[0]


FS = 4
FREP = 0x9000
WS_EPOCH = 0
WS_F1 = 0x8000
WS_S2 = 0x54000
S2REP = 0x5000
WS_C = 0x80000
WS_UX = 0xD0000
WS_P = WS_UX + 256 * 14336
PROW = 4352
PGEN = 224 * PROW
WS_H = WS_P + 2 * PGEN
WS_WF = WS_H + 16 * 4 * 56 * 2048
WS_END = WS_WF + 392 * 4096
WS_DBG = 0x1000000
WS_SIZE = 0x2000000
LAYOUT = 5

CS = 4160
TAB_W = 14592
TAB_ROW = 272
L_KC = 58368
L_UX = 75008
L_EX = 0
L_RING = 98304
L_ACT = [0, 65536]
L_F = 131072
L_R = 65536
R_SZ = 17408
LDS_SIZE = 163840

S_W = 2
S_V = 4
S_T0, S_T1, S_T2, S_T3 = 5, 6, 7, 3
SRD_X, SRD_WS, SRD_WG, SRD_WU, SRD_WD, SRD_OUT = 8, 12, 16, 20, 24, 28
S_NONCE = 32
S_CNT = 33
S_EX = 34
S_LDT, S_DSK = 64, 65
S_TB, S_FB, S_FH, S_DB = 66, 67, 68, 69
S_A, S_B, S_C, S_D = 70, 72, 74, 76
S_RING = 78
S_WOFF = 79
S_K0 = 80
S_TAB = 81
S_F3 = 82
S_F1, S_F2 = 83, 84
S_M255 = 86
S_FW, S_R2 = 88, 89
S_ACTW = 90
S_UXO = 91
S_Z = 95
S_PFB = 88
S_HR = 36
S_E28, S_E14, S_CI = 46, 47, 85
S_UXM = 92
S_REP = 94
S_PERM = 93
S_STAMP = 96


def srd(n):
    return f"s[{n}:{n+3}]"


def v(n, w=1):
    return f"v{n}" if w == 1 else f"v[{n}:{n+w-1}]"


def acc(n, w=1):
    return f"a{n}" if w == 1 else f"a[{n}:{n+w-1}]"


P = Prog()
TAIL = Prog()
nstamp = [0]
stamp_names = []
spin_names = []
LITE = ("start", "conv start", "genA stored", "gemm1 start", "tile3", "end")
if "dbgout" in OPT:
    LITE = ("start", "x arrived", "ln1 done", "kgen r1", "conv start", "genA stored", "gemm1 start", "tile1", "tile3", "end")


def stamp(name, p=None):
    p = P if p is None else p
    p(f"; @ {name}")
    if OPT.get("hold", "").replace("_", " ") == name:
        p(f"s_memrealtime s[100:101]")
        p("s_waitcnt lgkmcnt(0)")
    if STAMPS and ("lite" not in OPT or name in LITE):
        k = nstamp[0]
        assert k < 32
        p(f"s_memrealtime s[{S_STAMP}:{S_STAMP+1}]")
        p(f"s_memtime s[{S_STAMP+2}:{S_STAMP+3}]")
        p("s_waitcnt lgkmcnt(0)")
        p(f"v_writelane_b32 v255, s{S_STAMP}, {k}")
        p(f"v_writelane_b32 v255, s{S_STAMP+2}, {32+k}")
        nstamp[0] += 1
        stamp_names.append(name)


def stq(name):
    q = sub()
    if "dbg" in OPT:
        stamp(name, q)
    return q.ins


lblc = [0]


def label(prefix):
    lblc[0] += 1
    return f"L_{prefix}_{lblc[0]}"


def poll_issue(vaddr, vtmp):
    q = sub()
    q(f"v_mov_b32 {v(vtmp)}, 0")
    q(f"buffer_atomic_add {v(vtmp)}, {v(vaddr)}, {srd(SRD_WS)}, 0 offen sc0")
    return q.ins


def spin(t, name, done, reissue, vtag, sleep=2, exp=None):
    t(f"{name}:")
    t(f"s_mov_b32 s{S_CNT}, 0")
    t(f"{name}_l:")
    t("s_mov_b64 exec, vcc")
    t(f"s_sleep {sleep}")
    t.add(reissue)
    t("s_waitcnt vmcnt(0)")
    t(f"v_cmp_ne_u32 vcc, {exp or f's{S_NONCE}'}, {v(vtag)}")
    t("s_mov_b64 exec, -1")
    if STAMPS and "lite" in OPT:
        spin_names.append(name)
        t(f"s_add_u32 s{S_STAMP}, s{S_CNT}, 1")
        t(f"v_writelane_b32 v255, s{S_STAMP}, {10+len(spin_names)-1}")
    t(f"s_cbranch_vccz {done}")
    t(f"s_add_u32 s{S_CNT}, s{S_CNT}, 1")
    t(f"s_cmp_lt_u32 s{S_CNT}, 0x40000")
    t(f"s_cbranch_scc1 {name}_l")
    t(f"s_branch {done}")


def poll_check(vaddr, vtmp, mask=None):
    q = sub()
    slow, done = label("slow"), label("pdone")
    exp = f"s{S_NONCE}" if vaddr == V_F1 else (f"s{S_E28}" if vaddr in (V_F2, 20) else f"s{S_E14}")
    q(f"v_cmp_ne_u32 vcc, {exp}, {v(vtmp)}")
    if vaddr == V_F1:
        q(f"s_cbranch_vccnz {slow}")
    else:
        mask = mask or ("3" if vaddr == V_F2 else "1")
        q(f"s_and_b64 vcc, vcc, {mask}")
        q(f"s_cbranch_scc1 {slow}")
    q(f"{done}:")
    spin(TAIL, slow, done, poll_issue(vaddr, vtmp), vtmp, exp=exp, sleep=1)
    return q.ins


def poll_check2(vaddr, v1, v2, mask, exp):
    q = sub()
    slow, done = label("slow"), label("pdone")
    q(f"v_cmp_ne_u32 vcc, {exp}, {v(v1)}")
    q(f"s_and_b64 vcc, vcc, {mask}")
    q(f"s_cbranch_scc0 {done}")
    q.cond(True)
    q(f"v_cmp_ne_u32 vcc, {exp}, {v(v2)}")
    q(f"s_and_b64 vcc, vcc, {mask}")
    q(f"s_cbranch_scc1 {slow}")
    q.cond(False)
    q(f"{done}:")
    spin(TAIL, slow, done, poll_issue(vaddr, v1), v1, exp=exp, sleep=1)
    return q.ins


def setflag(p, soff):
    p(f"buffer_atomic_swap {v(V_NONCE)}, {v(V_FLG)}, {srd(SRD_WS)}, s{soff} offen")


def addcnt(p, soff):
    p(f"buffer_atomic_add {v(V_NONCE)}, {v(V_FLG)}, {srd(SRD_WS)}, s{soff} offen")


def flg_lanes(p, n, sh=8, t1=4):
    p(f"v_lshrrev_b32 {v(t1)}, {n.bit_length()-1}, {v(V_LANE)}")
    p(f"v_min_u32 {v(t1)}, 1, {v(t1)}")
    p(f"v_lshlrev_b32 {v(t1)}, 30, {v(t1)}")
    p(f"v_lshl_add_u32 {v(V_FLG)}, {v(V_LANE)}, {sh}, {v(t1)}")


def waitq(tok):
    q = sub()
    q.wait(tok)
    return q.ins


def cmul(p, z, x, y):
    p(f"v_pk_mul_f32 {v(z,2)}, {v(x,2)}, {v(y,2)} op_sel:[0,0] op_sel_hi:[0,1]")
    p(f"v_pk_fma_f32 {v(z,2)}, {v(x,2)}, {v(y,2)}, {v(z,2)} op_sel:[1,1,0] op_sel_hi:[1,0,1] neg_lo:[1,0,0]")


def round_bf16(p, dst, src):
    p(f"v_cvt_pk_bf16_f32 {v(dst)}, {v(src)}, {v(src)}")
    p(f"v_and_b32 {v(dst)}, 0xffff0000, {v(dst)}")


V_LANE, V_NONCE, V_L16 = 1, 2, 3
V_FLG = 8
V_W = 9
V_TRA = 13
V_TA, V_TB, V_TW = 14, 15, 16
GA = 17
V_F1, V_UXL = 26, 27
V_KA = 28
V_UA = 32
V_EU, V_EXP, V_EXW, V_EXR, V_PST = 36, 37, 38, 39, 40
V_GW, V_GX, V_GR, V_S3 = 36, 37, 38, 39
V_EU1 = 41
V_DT = 42
V_F2 = 43
PR = 44
V_PF = 254

LOG2E = 1.4426950408889634

P(f"s_cmp_ge_u32 s{S_W}, 256")
P("s_cbranch_scc1 L_end")
P(f"s_load_dwordx16 s[36:51], s[0:1], 0")
P(f"s_load_dwordx8 s[52:59], s[0:1], 64")
P(f"s_load_dwordx4 s[60:63], s[0:1], 96")
if "nocpf" not in OPT:
    P(f"s_getpc_b64 s[{S_B}:{S_B+1}]")
    P("L_pc:")
    P(f"s_bfe_u32 s{S_T2}, s{S_W}, 0x30003")
    P(f"s_mul_i32 s{S_T2}, s{S_T2}, ((L_codeend-L_pc)/1024)*128")
    P(f"v_cmp_gt_u32 vcc, (L_codeend-L_pc)/1024, v0")
    P(f"s_add_u32 s{S_B}, s{S_B}, s{S_T2}")
    P(f"s_addc_u32 s{S_B+1}, s{S_B+1}, 0")
    P(f"v_lshlrev_b32 v6, 7, v0")
    P(f"s_and_saveexec_b64 s[{S_A}:{S_A+1}], vcc")
    P("s_cbranch_execz L_nocpf")
    P.cond(True)
    P(f"v_mov_b32 v7, s{S_B+1}")
    P(f"v_add_co_u32 v6, vcc, s{S_B}, v6")
    P(f"v_addc_co_u32 v7, vcc, 0, v7, vcc")
    P(f"global_load_dword v251, v[6:7], off")
    P.cond(False)
    P("L_nocpf:")
    P("s_mov_b64 exec, -1")
if STAMPS:
    P("v_mov_b32 v255, 0")
P(f"v_and_b32 {v(V_LANE)}, 63, v0")
P(f"v_lshrrev_b32 v4, 6, v0")
P(f"v_lshlrev_b32 {v(V_L16)}, 4, {v(V_LANE)}")
P(f"v_readfirstlane_b32 s{S_V}, v4")
P(f"v_mov_b32 v5, 0x7ff00000")
P(f"v_cmp_gt_u32 vcc, 56, {v(V_LANE)}")
P(f"s_lshl_b32 s{S_T0}, s{S_W}, 2")
P(f"s_add_u32 s{S_T0}, s{S_T0}, s{S_V}")
P(f"v_cndmask_b32 v4, v5, {v(V_L16)}, vcc")
P(f"s_mul_i32 s{S_T0}, s{S_T0}, 1792")
P(f"s_min_u32 s{S_T1}, s{S_W}, 223")
P(f"s_lshl_b32 s{S_T2}, s{S_T1}, 10")
P(f"v_lshl_add_u32 v6, v0, 2, s{S_T2}")
P(f"v_mov_b32 v7, 0")
P(f"s_lshl_b32 s{S_T1}, s{S_T1}, 2")
P(f"v_mov_b32 v56, s{S_T1}")
P(f"s_mov_b32 s{SRD_X+2}, 1835008")
P(f"s_mov_b32 s{SRD_X+3}, 0x00020000")
P(f"s_mov_b32 s{SRD_WS+2}, {WS_SIZE}")
P(f"s_mov_b32 s{SRD_WS+3}, 0x00020000")
P("s_waitcnt lgkmcnt(0)")
stamp("start")
P(f"s_mov_b64 s[{SRD_X}:{SRD_X+1}], s[36:37]")
XR = 48
P(f"buffer_load_dwordx4 {v(XR,4)}, v4, {srd(SRD_X)}, s{S_T0} offen")
P(f"buffer_load_dwordx4 {v(XR+4,4)}, v4, {srd(SRD_X)}, s{S_T0} offen offset:896")
for r, src, sz in ((SRD_WG, 52, 1605632), (SRD_WU, 54, 1605632), (SRD_WD, 56, 1605632), (SRD_OUT, 58, 1835008)):
    P(f"s_mov_b64 s[{r}:{r+1}], s[{src}:{src+1}]")
    P(f"s_mov_b32 s{r+2}, {sz}")
    P(f"s_mov_b32 s{r+3}, 0x00020000")
P(f"v_cmp_lt_u32 vcc, 7, {v(V_LANE)}")
P(f"v_mul_u32_u24 v4, {FREP}, {v(V_LANE)}")
P(f"s_lshr_b32 s{S_T0}, s{S_W}, 3")
P(f"s_mul_i32 s{S_T1}, s{S_T0}, 37")
P(f"v_cndmask_b32 {v(V_FLG)}, v4, v5, vcc")
P(f"s_lshr_b32 s{S_T1}, s{S_T1}, 8")
P(f"s_mul_i32 s{S_T2}, s{S_T1}, 7")
P(f"s_sub_u32 s{S_DB}, s{S_T0}, s{S_T2}")
P(f"s_and_b32 s{S_FH}, s{S_W}, 1")
P(f"s_and_b32 s{S_T2}, s{S_W}, 6")
P(f"s_lshl_b32 s{S_T2}, s{S_T2}, 1")
P(f"s_add_u32 s{S_TB}, s{S_T2}, s{S_T1}")
P(f"s_mul_i32 s{S_FB}, s{S_FH}, 7")
P(f"s_add_u32 s{S_FB}, s{S_FB}, s{S_DB}")
P(f"s_lshl_b32 s{S_RING}, s{S_V}, 13")
P(f"s_add_u32 s{S_RING}, s{S_RING}, {L_RING}")
P(f"s_mul_i32 s{S_TAB}, s{S_V}, {TAB_W}")
for _ in range(int(OPT.get("xd", 0))):
    P("s_nop 7")
P(f"s_mov_b64 s[{SRD_WS}:{SRD_WS+1}], s[62:63]")
for i in range(4):
    P(f"global_load_dword {v(PR+i)}, v6, s[{38+2*i}:{39+2*i}]")
P(f"global_load_dword {v(V_DT)}, v56, s[46:47]")
P(f"global_load_dword {v(V_EU1)}, v56, s[48:49]")
P(f"buffer_load_dword {v(V_NONCE)}, v7, {srd(SRD_WS)}, 0 offen sc1")
if "help" in OPT:
    P(f"s_and_b32 s{S_T0}, s{S_W}, 6")
    P(f"s_cmp_eq_u32 s{S_V}, 0")
    P(f"s_cselect_b32 s{S_T0}, 1, s{S_T0}")
    P(f"s_cmp_lg_u32 s{S_T0}, 0")
    P("s_cbranch_scc1 L_nohelp")
    P.raw(f"s_lshl1_add_u32 s{S_T0}, s{S_V}, s{S_W}")
    P.raw(f"s_mul_i32 s{S_T2}, s{S_T0}, 7168")
    P.raw(f"v_min_u32 v4, 55, {v(V_LANE)}")
    P.raw(f"v_lshlrev_b32 v4, 7, v4")
    P.raw(f"buffer_load_dword v244, v4, {srd(SRD_X)}, s{S_T2} offen")
    if OPT["help"] != "x":
        P.raw(f"s_min_u32 s{S_T0}, s{S_T0}, 223")
        P.raw(f"s_lshl_b32 s{S_T0}, s{S_T0}, 10")
        P.raw(f"v_and_b32 v4, 7, {v(V_LANE)}")
        P.raw(f"v_lshl_add_u32 v4, v4, 7, s{S_T0}")
        for i in range(4):
            P.raw(f"global_load_dword {v(245+i)}, v4, s[{38+2*i}:{39+2*i}]")
    P("L_nohelp:")
P(f"s_bitcmp1_b32 s{S_V}, 0")
P(f"s_cselect_b64 s[{S_PFB}:{S_PFB+1}], s[54:55], s[52:53]")
P(f"s_lshr_b32 s{S_T0}, s{S_V}, 1")
P(f"s_lshl1_add_u32 s{S_T2}, s{S_W}, s{S_T0}")
P(f"s_mul_i32 s{S_T0}, s{S_T2}, {7*128}")
P(f"v_min_u32 v4, 6, {v(V_LANE)}")
P(f"v_lshl_add_u32 v4, v4, 7, s{S_T0}")
P(f"global_load_dword {v(V_PF)}, v4, s[{S_PFB}:{S_PFB+1}]")
P(f"s_mul_i32 s{S_T0}, s{S_W}, 49")
P(f"s_mul_i32 s{S_T2}, s{S_V}, 12")
P(f"s_add_u32 s{S_T0}, s{S_T0}, s{S_T2}")
P(f"v_min_u32 v4, 12, {v(V_LANE)}")
P(f"v_add_lshl_u32 v252, v4, s{S_T0}, 7")
if "wdlate" not in OPT:
    P(f"global_load_dword v253, v252, s[56:57]")
P(f"v_cmp_gt_u32 vcc, 32, {v(V_LANE)}")
P(f"v_mul_u32_u24 v4, 37, {v(V_LANE)}")
P(f"v_lshrrev_b32 v4, 9, v4")
P(f"v_cndmask_b32 {v(V_S3)}, v5, {v(V_L16)}, vcc")
P(f"v_mul_u32_u24 v4, {TAB_W-14*272}, v4")
P(f"v_mul_u32_u24 v6, 272, {v(V_LANE)}")
P(f"s_lshl_b32 s{S_T0}, s{S_V}, 2")
P(f"v_add3_u32 {v(V_GW)}, v4, v6, s{S_T0}")
P(f"v_add_u32 {v(V_GX)}, s{S_T0}, {v(V_GW)}")
P(f"s_lshl_b32 s{S_UXM}, s{S_V}, 12")
P(f"s_add_u32 s{S_UXM}, s{S_UXM}, {L_UX+2048}")
P(f"v_and_b32 v4, 48, {v(V_LANE)}")
P(f"v_add3_u32 {v(V_GR)}, v4, {v(V_L16)}, s{S_TAB}")
P(f"v_and_b32 v4, 31, {v(V_LANE)}")
P(f"v_lshrrev_b32 v6, 5, {v(V_LANE)}")
P(f"v_lshl_add_u32 v6, v6, 4, s{S_TAB}")
P(f"v_and_b32 v7, 28, {v(V_LANE)}")
P(f"v_lshl_add_u32 v7, v4, 5, v7")
P(f"v_add_u32 {v(V_TW)}, v6, v7")
P(f"v_mul_u32_u24 v7, {TAB_ROW}, v4")
P(f"v_add_u32 {v(V_TB)}, v6, v7")
P(f"v_min_u32 v4, 20, v4")
P(f"v_mul_u32_u24 v7, {TAB_ROW}, v4")
P(f"v_add_u32 {v(V_TA)}, v6, v7")
P(f"s_lshl2_add_u32 s{S_CI}, s{S_W}, s{S_V}")
P(f"s_lshl_b32 s{S_CI}, s{S_CI}, 8")
P(f"s_add_u32 s{S_CI}, s{S_CI}, {WS_C}")
P(f"v_lshlrev_b32 v250, 25, {v(V_LANE)}")
P(f"s_mul_i32 s{S_UXO}, s{S_W}, 14336")
P(f"s_mul_i32 s{S_T0}, s{S_V}, 3584")
P(f"s_add_u32 s{S_UXO}, s{S_UXO}, s{S_T0}")
P(f"s_add_u32 s{S_UXO}, s{S_UXO}, {WS_UX}")
P(f"s_lshl_b32 s{S_T0}, s{S_V}, 8")
P(f"s_add_u32 s{S_T0}, s{S_T0}, s{S_W}")
P(f"s_mul_i32 s{S_T0}, s{S_T0}, {FS}")
P(f"s_add_u32 s{S_F1}, s{S_T0}, {WS_F1}")
P(f"v_lshrrev_b32 v4, 2, {v(V_LANE)}")
P(f"v_mul_u32_u24 v4, 3584, v4")
P(f"v_and_b32 v6, 3, {v(V_LANE)}")
P(f"v_lshl_add_u32 v4, v6, 4, v4")
P(f"s_lshl_b32 s{S_T0}, s{S_FB}, 8")
P(f"s_lshl_b32 s{S_T1}, s{S_V}, 6")
P(f"s_add_u32 s{S_T0}, s{S_T0}, s{S_T1}")
P(f"v_add_u32 {v(V_W)}, s{S_T0}, v4")
for k in range(1, 4):
    P(f"v_add_u32 {v(V_W+k)}, {k*(57344-1024)}, {v(V_W)}")
P(f"v_and_b32 v4, 32, {v(V_LANE)}")
P(f"v_lshlrev_b32 v4, 4, v4")
P(f"v_and_b32 v7, 12, {v(V_LANE)}")
P(f"v_lshl_add_u32 v4, v7, 4, v4")
P(f"v_and_b32 v7, 16, {v(V_LANE)}")
P(f"v_lshl_add_u32 v4, v7, 1, v4")
P(f"v_lshl_add_u32 v4, v6, 3, v4")
P(f"v_add_u32 {v(V_TRA)}, s{S_RING}, v4")
P(f"s_mov_b32 s{S_K0}, {L_KC+4096-L_UX}")
P(f"s_movk_i32 s{S_T2}, 128")
P(f"s_mul_i32 s{S_T0}, s{S_W}, 293")
P(f"s_bfe_u32 s{S_T0}, s{S_T0}, 0x2000e")
P(f"s_lshl_b32 s{S_T0}, s{S_T0}, 10")
P(f"s_lshr_b32 s{S_F2}, s{S_T0}, 2")
P(f"s_and_b32 s{S_REP}, s{S_W}, 7")
P(f"s_mul_i32 s{S_REP}, s{S_REP}, {FREP}")
P(f"s_add_u32 s{S_REP}, s{S_REP}, {WS_F1}")
P(f"s_add_u32 s{S_T0}, s{S_T0}, s{S_REP}")
P(f"v_lshl_add_u32 {v(V_F1)}, v0, 2, s{S_T0}")
P(f"v_lshrrev_b32 v4, 2, {v(V_LANE)}")
P(f"v_add_u32 v4, s{S_T1}, v4")
P(f"v_mul_u32_u24 v7, 14336, v4")
P(f"v_lshrrev_b32 v4, 4, {v(V_LANE)}")
P(f"v_xor_b32 v6, v6, v4")
P(f"v_lshl_add_u32 v7, v6, 4, v7")
P(f"s_lshl_b32 s{S_T0}, s{S_W}, 6")
P(f"s_add_u32 s{S_T0}, s{S_T0}, {WS_UX}")
P(f"v_add_u32 {v(V_UXL)}, s{S_T0}, v7")
P(f"v_bfe_u32 v6, {v(V_LANE)}, 1, 2")
P(f"v_mul_u32_u24 v6, {CS}, v6")
P(f"v_and_b32 v7, 16, {v(V_L16)}")
P(f"v_add3_u32 v6, v6, v7, s{S_K0}")
P(f"v_lshlrev_b32 v7, 4, v0")
P(f"v_cmp_gt_u32 vcc, s{S_T2}, v0")
P(f"v_mov_b32 v56, 0")
P(f"v_mov_b32 v57, 0")
P(f"v_cndmask_b32 v6, v6, v7, vcc")
P(f"v_mov_b32 v58, 0")
P(f"v_mov_b32 v59, 0")
P(f"v_add_u32 v6, {L_UX}, v6")
P(f"ds_write_b128 v6, v[56:59]")
P(f"v_lshlrev_b32 v4, 3, v0")
P(f"v_sub_u32 v4, 2047, v4")
P(f"v_cvt_f32_i32 v4, v4")
P(f"v_mov_b32 v60, 1028")
P(f"v_cmp_eq_u32 vcc, 0, v0")
for e in range(0, 10, 2):
    P(f"v_add_f32 v6, {f32(-float(e))}, v4")
    if e < 8:
        P(f"v_add_f32 v7, {f32(-float(e+1))}, v4")
    P(f"v_cvt_pk_bf16_f32 v6, v6, v7")
    for h in range(2):
        if e + h > 8:
            continue
        d = GA + e + h
        if h == 0:
            P(f"v_lshlrev_b32 v7, 16, v6")
        else:
            P(f"v_and_b32 v7, 0xffff0000, v6")
        P(f"v_cvt_u32_f32 v7, v7")
        if e + h < 4:
            P(f"v_cndmask_b32 v7, v7, v60, vcc")
        P(f"v_lshrrev_b32 {v(d)}, 5, v7")
        P(f"v_add_lshl_u32 {v(d)}, {v(d)}, v7, 2")
P(f"v_mov_b32 v4, 255")
P(f"v_cmp_eq_u32 s[{S_M255}:{S_M255+1}], v4, v0")

XF = 56
DF = 72
SA = 88
if "fine" in OPT: stamp("setup done")
P(f"s_mov_b32 s{S_EX}, -1")
P(f"s_mov_b32 s{S_EX+1}, 0x00ffffff")
P(f"s_mov_b32 s{S_K0}, {f32(1.0/448)}")
for r in range(2):
    for i in range(4):
        P(f"v_lshlrev_b32 {v(XF+8*r+2*i)}, 16, {v(XR+4*r+i)}")
        P(f"v_and_b32 {v(XF+8*r+2*i+1)}, 0xffff0000, {v(XR+4*r+i)}")
stamp("x arrived")
if "wdlate" in OPT:
    P(f"global_load_dword v253, v252, s[56:57]")
P(f"s_mov_b64 exec, s[{S_EX}:{S_EX+1}]")
for i in range(4):
    P(f"ds_write2_b32 {v(V_GX)}, {v(XR+i)}, {v(XR+4+i)} offset0:{16*i+8} offset1:{16*i+9}")
P("s_mov_b64 exec, -1")
for r in range(2):
    b = XF + 8 * r
    P(f"v_pk_add_f32 {v(DF+8*r,2)}, {v(b,2)}, {v(b+2,2)}")
    P(f"v_pk_add_f32 {v(DF+8*r+2,2)}, {v(b+4,2)}, {v(b+6,2)}")
for r in range(2):
    P(f"v_pk_add_f32 {v(DF+8*r,2)}, {v(DF+8*r,2)}, {v(DF+8*r+2,2)}")
for r in range(2):
    P(f"v_add_f32 {v(SA+r)}, {v(DF+8*r)}, {v(DF+8*r+1)}")


def wave_sum(p, regs):
    for mod in ("row_shr:1", "row_shr:2", "row_shr:4", "row_shr:8"):
        for r in regs:
            p(f"v_add_f32_dpp {v(r)}, {v(r)}, {v(r)} {mod} row_mask:0xf bank_mask:0xf bound_ctrl:0")
    for r in regs:
        p(f"v_add_f32_dpp {v(r)}, {v(r)}, {v(r)} row_bcast:15 row_mask:0xa bank_mask:0xf")
    for r in regs:
        p(f"v_add_f32_dpp {v(r)}, {v(r)}, {v(r)} row_bcast:31 row_mask:0xc bank_mask:0xf")


wave_sum(P, [SA, SA + 1])
for r in range(2):
    P(f"v_mul_f32 {v(SA+r)}, s{S_K0}, {v(SA+r)}")
P(f"v_cvt_pk_bf16_f32 {v(SA+2)}, {v(SA)}, {v(SA+1)}")
P(f"v_readlane_b32 s{S_A}, {v(SA)}, 63")
P(f"v_readlane_b32 s{S_B}, {v(SA+1)}, 63")
P(f"v_readlane_b32 s{S_T0}, {v(SA+2)}, 63")
P(f"v_mov_b32 {v(SA)}, 0")
P(f"v_mov_b32 {v(SA+1)}, 0")
P(f"s_mov_b64 exec, s[{S_EX}:{S_EX+1}]")
for r, sm in ((0, S_A), (1, S_B)):
    for i in range(4):
        P(f"v_pk_add_f32 {v(DF+8*r+2*i,2)}, {v(XF+8*r+2*i,2)}, s[{sm}:{sm+1}] op_sel_hi:[1,0] neg_lo:[0,1] neg_hi:[0,1]")
for r in range(2):
    b = DF + 8 * r
    P(f"v_pk_mul_f32 {v(b,2)}, {v(b,2)}, {v(b,2)}")
    for i in range(1, 4):
        P(f"v_pk_fma_f32 {v(b,2)}, {v(b+2*i,2)}, {v(b+2*i,2)}, {v(b,2)}")
for r in range(2):
    P(f"v_add_f32 {v(SA+r)}, {v(DF+8*r)}, {v(DF+8*r+1)}")
P("s_mov_b64 exec, -1")
P(f"s_lshl_b32 s{S_C}, s{S_T0}, 16")
P(f"s_and_b32 s{S_D}, s{S_T0}, 0xffff0000")
q1 = sub()
wave_sum(q1, [SA, SA + 1])
q2 = sub()
for r, sm in ((0, S_C), (1, S_D)):
    for i in range(4):
        q2(f"v_pk_add_f32 {v(DF+8*r+2*i,2)}, {v(XF+8*r+2*i,2)}, s[{sm}:{sm+1}] op_sel_hi:[1,0] neg_lo:[0,1] neg_hi:[0,1]")
for r in range(2):
    for i in range(4):
        q2(f"v_cvt_pk_bf16_f32 {v(XF+8*r+2*i)}, {v(DF+8*r+2*i)}, {v(DF+8*r+2*i+1)}")
for r in range(2):
    for i in range(4):
        q2(f"v_and_b32 {v(XF+8*r+2*i+1)}, 0xffff0000, {v(XF+8*r+2*i)}")
        q2(f"v_lshlrev_b32 {v(XF+8*r+2*i)}, 16, {v(XF+8*r+2*i)}")
k = 0
for j in range(0, len(q1.ins), 2):
    P.add(q1.ins[j:j + 2])
    P.add(q2.ins[k:k + 1])
    k += 1
P(f"v_mul_f32 {v(SA)}, s{S_K0}, {v(SA)}")
P(f"v_mul_f32 {v(SA+1)}, s{S_K0}, {v(SA+1)}")
for step in range(3):
    P(f"v_cvt_pk_bf16_f32 {v(SA+2)}, {v(SA)}, {v(SA+1)}")
    P(f"v_lshlrev_b32 {v(SA)}, 16, {v(SA+2)}")
    P(f"v_and_b32 {v(SA+1)}, 0xffff0000, {v(SA+2)}")
    for r in range(2):
        if step == 0:
            P(f"v_add_f32 {v(SA+r)}, {f32(1e-5)}, {v(SA+r)}")
        elif step == 1:
            P(f"v_sqrt_f32 {v(SA+r)}, {v(SA+r)}")
        else:
            P(f"v_rcp_f32 {v(SA+r)}, {v(SA+r)}")
    if step:
        P.add(q2.ins[k:k + 1])
        k += 1
P(f"v_readlane_b32 s{S_A}, {v(SA)}, 63")
P(f"v_readlane_b32 s{S_B}, {v(SA+1)}, 63")
P.add(q2.ins[k:])
for r, sm in ((0, S_A), (1, S_B)):
    for i in range(4):
        P(f"v_pk_mul_f32 {v(XF+8*r+2*i,2)}, {v(XF+8*r+2*i,2)}, s[{sm}:{sm+1}] op_sel_hi:[1,0]")
for j in range(8):
    P(f"v_cvt_pk_bf16_f32 {v(DF+j)}, {v(XF+j)}, {v(XF+8+j)}")
P(f"s_mov_b64 exec, s[{S_EX}:{S_EX+1}]")
for i in range(4):
    P(f"ds_write2_b32 {v(V_GW)}, {v(DF+2*i)}, {v(DF+2*i+1)} offset0:{16*i} offset1:{16*i+4}")
P("s_mov_b64 exec, -1")
if "fine" in OPT: stamp("ln1 math")
P("s_waitcnt lgkmcnt(0)")
P("s_barrier")
if "fine" in OPT: stamp("ln1 barrier")
UB = 112
for j in range(4):
    P(f"ds_read_b128 {v(UB+4*j,4)}, {v(V_GR)} offset:{1088*j}")
P(f"s_lshl_b32 s{S_T0}, s{S_V}, 3")
P(f"s_and_b32 s{S_T0}, s{S_T0}, 16")
P(f"s_mov_b32 m0, s{S_TAB}")
P("s_waitcnt lgkmcnt(0)")
for j in range(4):
    P(f"buffer_store_dwordx4 {v(UB+4*j,4)}, {v(V_L16 if j < 3 else V_S3)}, {srd(SRD_WS)}, s{S_UXO} offen offset:{1024*j} sc1", tok="ux")
P(f"s_cmp_lt_u32 s{S_W}, 224")
P("s_cbranch_scc1 L_main")


def nonce_init():
    q = sub()
    q(f"v_readfirstlane_b32 s{S_NONCE}, {v(V_NONCE)}")
    q(f"s_mul_i32 s{S_NONCE}, s{S_NONCE}, 1664525")
    q(f"s_add_u32 s{S_NONCE}, s{S_NONCE}, 1013904223")
    q(f"v_mov_b32 {v(V_NONCE)}, s{S_NONCE}")
    q(f"buffer_store_dword {v(V_NONCE)}, v250, {srd(SRD_WS)}, s{S_CI} offen sc1", tok="ux")
    q(f"s_add_u32 s{S_E28}, s{S_NONCE}, 28")
    q(f"s_add_u32 s{S_E14}, s{S_NONCE}, 14")
    return q.ins


P.raw("s_waitcnt vmcnt(6)")
for x in nonce_init():
    P.raw(x.text)
P.raw("s_waitcnt vmcnt(0)")
P.raw(f"buffer_atomic_swap {v(V_NONCE)}, {v(V_FLG)}, {srd(SRD_WS)}, s{S_F1} offen")
P.raw("s_branch L_spare")
P("L_main:")
stamp("ln1 done")


def wfrag(m, ks):
    return 8 * ks + 4 * m


def slotoff(slot):
    return (slot % 8) * 1024 + (slot // 8) * 32768


def w_dma(kq, m, slot, tok):
    q = sub()
    q(f"s_add_u32 m0, s{S_RING}, {slotoff(slot)}")
    if m == 0:
        q(f"s_mov_b32 s{S_WOFF}, {kq*4*57344}")
    for k in range(4):
        o = f" offset:{1024*k}" if k else ""
        q(f"buffer_load_dwordx4 {v(V_W+k)}, {srd(SRD_WU if m else SRD_WG)}, s{S_WOFF} offen{o} lds", tok=tok)
    return q.ins


def w_tr(kq, m, slot, tok=None):
    q = sub()
    for k in range(4):
        for h in range(2):
            q(f"ds_read_b64_tr_b16 {acc(wfrag(m,4*kq+k)+2*h,2)}, {v(V_TRA)} offset:{slotoff(slot+k)+256*h}", tok=tok)
    return q.ins


def batch_dma(b, tok):
    return [w_dma(2 * b + i // 2, i % 2, 4 * i, f"{tok}_{i}") for i in range(4)]


def batch_tr(b):
    o = []
    for i in range(4):
        o += w_tr(2 * b + i // 2, i % 2, 4 * i, tok=f"t{b}_{i}")
    return o


def singles(groups):
    out, cur = [], []
    for grp in groups:
        for i in grp:
            cur.append(i)
            if i.cls == "vmem":
                out.append(cur)
                cur = []
    if cur:
        out[-1] += cur
    return out


def pin_vm(g, start, groups, stride):
    k = start
    for u in singles(groups):
        g.at(int(k), u)
        k += stride
    return int(k)


def w_dma1(b, n, tok):
    i, k = n // 4, n % 4
    q = sub()
    q(f"s_add_u32 m0, s{S_RING}, {slotoff(4*i)}")
    if n % 8 == 0:
        q(f"s_mov_b32 s{S_WOFF}, {(2*b+i//2)*4*57344}")
    o = f" offset:{1024*k}" if k else ""
    q(f"buffer_load_dwordx4 {v(V_W+k)}, {srd(SRD_WU if i % 2 else SRD_WG)}, s{S_WOFF} offen{o} lds", tok=f"{tok}_{i}")
    q(f"s_mov_b32 m0, s{S_TAB}")
    return q.ins


KD = 176
FR = 192
FR = 112


def kgen_head(rd):
    q = sub()
    A0 = 48 + 0
    CC = 50
    unp = (lambda d, s: q(f"v_lshlrev_b32 {v(d)}, 16, {v(s)}")) if rd == 0 else (lambda d, s: q(f"v_and_b32 {v(d)}, 0xffff0000, {v(s)}"))
    for i in range(4):
        unp(48 + i, PR + i)
    q(f"v_mul_f32 v48, {f32(LOG2E)}, v48")
    q(f"v_exp_f32 v48, v48")
    q(f"v_mul_f32 v49, v49, {v(V_DT)}")
    q(f"v_cvt_pk_bf16_f32 v48, v48, v48")
    q(f"v_mul_f32 v49, 0.15915494, v49")
    q(f"v_and_b32 v48, 0xffff0000, v48")
    q(f"v_mul_f32 v50, v50, {v(V_DT)}")
    q(f"v_mul_f32 v48, v48, {v(V_DT)}")
    q(f"v_mul_f32 v51, v51, {v(V_DT)}")
    q(f"v_mul_f32 v48, {f32(-LOG2E)}, v48")
    q(f"v_add_f32 v50, v50, v50")
    q(f"v_add_f32 v51, v51, v51")
    for (z, pos) in ((52, 1), (54, 16), (56, 256)):
        if pos == 1:
            q(f"v_exp_f32 v4, v48")
            q(f"v_fract_f32 v5, v49")
        else:
            q(f"v_mul_f32 v4, {f32(float(pos))}, v48")
            q(f"v_mul_f32 v5, {f32(float(pos))}, v49")
            q(f"v_exp_f32 v4, v4")
            q(f"v_fract_f32 v5, v5")
        q(f"v_cos_f32 {v(z)}, v5")
        q(f"v_sin_f32 {v(z+1)}, v5")
        q(f"v_mul_f32 {v(z)}, {v(z)}, v4")
        q(f"v_mul_f32 {v(z+1)}, {v(z+1)}, v4")
    return q.ins


def kgen_body(rd):
    names = {"G0": 50, "E1": 52, "E16": 54, "E256": 56}
    nxt = [58]
    chunks = []
    cur = sub()
    wr = sub()
    pk = [0]
    PK = 192

    def new(n):
        names[n] = nxt[0]
        nxt[0] += 2
        assert nxt[0] <= 104
        return names[n]

    def out(kind, row, z):
        t = PK + pk[0] % 16
        pk[0] += 1
        if kind == "B":
            cur(f"v_cvt_pk_bf16_f32 {v(t)}, {v(z)}, {v(z+1)}")
            wr(f"ds_write_addtid_b32 {v(t)} offset:{row*TAB_ROW}")
        else:
            cur(f"v_cvt_pk_bf16_f32 {v(t)}, {v(z)}, -{v(z+1)}")
            wr(f"ds_write_addtid_b32 {v(t)} offset:{(32+row)*TAB_ROW}")
        if len(wr.ins) >= GROUP:
            flush()

    def flush():
        nonlocal cur, wr
        chunks.append(cur.ins + wr.ins)
        cur = sub()
        wr = sub()

    sc = [0]

    def mul(n, a, b, kind=None, row=None):
        if n is None:
            z = 104 + 2 * (sc[0] % 4)
            sc[0] += 1
        else:
            z = new(n)
        cmul(cur, z, names[a], names[b])
        if kind:
            out(kind, row, z)

    GROUP = int(OPT.get("kgroup", 6))
    t = PK + pk[0]
    pk[0] += 1
    cur(f"v_mov_b32 {v(t)}, 0x3f80")
    wr(f"ds_write_addtid_b32 {v(t)}")
    out("A", 0, names["G0"])
    out("B", 2, names["E16"])
    mul("E2", "E1", "E1")
    mul("E32", "E16", "E16", "B", 4)
    mul("G1", "G0", "E256", "A", 8)
    mul("E512", "E256", "E256")
    mul("a1", "G0", "E1", "A", 1)
    mul("E4", "E2", "E2")
    mul("E64", "E32", "E32", "B", 8)
    mul("E48", "E32", "E16", "B", 6)
    mul("G2", "G0", "E512", "A", 10)
    mul("G3", "G1", "E512", "A", 11)
    mul("E1024", "E512", "E512")
    mul("E8", "E4", "E4", "B", 1)
    mul("a2", "G0", "E2", "A", 2)
    mul("a3", "a1", "E2", "A", 3)
    mul("b2", "G1", "E2", "A", 9)
    mul("E128", "E64", "E64", "B", 16)
    mul("G4", "G0", "E1024", "A", 16)
    mul("E24", "E16", "E8", "B", 3)
    mul("E40", "E32", "E8", "B", 5)
    mul("E56", "E48", "E8", "B", 7)
    mul("E192", "E128", "E64", "B", 24)
    for row, a in ((4, "G0"), (5, "a1"), (6, "a2"), (7, "a3"), (12, "G1"), (13, "b2"), (14, "G2"), (15, "G3")):
        mul(None, a, "E4", "A", row)
    for row, a in ((17, "G1"), (18, "G2"), (19, "G3"), (20, "G4")):
        mul(None, a, "E1024", "A", row)
    for b2, nb in ((1, "E64"), (2, "E128"), (3, "E192")):
        for b1 in range(1, 8):
            mul(None, f"E{8*b1}", nb, "B", 8 * b2 + b1)
    if wr.ins or cur.ins:
        flush()
    return chunks


def kgen_reads():
    q = sub()
    for s in range(8):
        q(f"ds_read_b128 {v(FR+8*s,4)}, {v(V_TA)} offset:{32*TAB_ROW+32*s}")
        q(f"ds_read_b128 {v(FR+8*s+4,4)}, {v(V_TB)} offset:{32*s}")
    return q.ins


def kgen_mfma(rd):
    q = sub()
    for s in range(8):
        c = "0" if (rd == 0 and s == 0) else v(KD, 16)
        q(f"v_mfma_f32_32x32x16_bf16 {v(KD,16)}, {v(FR+8*s,4)}, {v(FR+8*s+4,4)}, {c}")
    return q.ins


P(f"v_lshrrev_b32 v4, s{S_T0}, {v(V_DT)}")
P(f"v_lshlrev_b32 v4, 16, v4")
P(f"v_mul_f32 v4, {f32(LOG2E)}, v4")
P(f"v_exp_f32 v4, v4")
P(f"v_readfirstlane_b32 s{S_DSK}, {v(V_EU1)}")
round_bf16(P, V_DT, 4)
P.add(kgen_head(0))
P.add(nonce_init())
ch = kgen_body(0)
fl = sub()
fl.wait("ux")
setflag(fl, S_F1)
nd = 0
FLAGAT = int(OPT.get("flagat", 6))
DMA0 = int(OPT.get("dma0", 3))
for i, c in enumerate(ch):
    P.add(c)
    if i == FLAGAT:
        if "fine" in OPT: stamp("pre flag1")
        P.add(fl.ins)
        if "fine" in OPT: stamp("post flag1")
    elif i >= DMA0:
        P.add(w_dma1(0, nd, "w1"))
        nd += 1
P.add(kgen_reads())
g = Gaps(kgen_mfma(0), 7)
for k in (0, 2, 4, 6):
    g.at(k, w_dma1(0, nd, "w1"))
    nd += 1
g.fill(kgen_head(1))
P.add(g.out())
stamp("kgen r0")
ch = kgen_body(1)
POLLAT = int(OPT.get("pollat", 3))
for i, c in enumerate(ch):
    P.add(c)
    if i == POLLAT:
        P.add(poll_issue(V_F1, 6))
    elif nd < 16:
        P.add(w_dma1(0, nd, "w1"))
        nd += 1
assert nd == 16
P.add(kgen_reads())
if "fine" in OPT: stamp("pre poll1")
P.add(poll_check(V_F1, 6))
if "fine" in OPT: stamp("post poll1")
g = Gaps(kgen_mfma(1), 6)
P(f"s_mov_b32 m0, s{S_UXM}")
for j in range(4):
    q = sub()
    q(f"s_mov_b32 s{S_T0}, {j*(16*14336-1024)}")
    o = f" offset:{1024*j}" if j else ""
    q(f"buffer_load_dwordx4 {v(V_UXL)}, {srd(SRD_WS)}, s{S_T0} offen{o} sc1 lds", tok="uxl")
    if j == 0:
        P.add(q.ins)
    else:
        g.at(2 * j - 2, q.ins)
tr1 = batch_tr(0)
P.wait("w1_2")
for k in range(8):
    g.at(k, tr1[3 * k:3 * k + 3])
P.add(g.out())
stamp("kgen r1")
P(f"v_and_b32 v4, 15, {v(V_LANE)}")
P(f"v_lshrrev_b32 v5, 4, {v(V_LANE)}")
P(f"v_lshl_add_u32 v6, v5, 3, v4")
P(f"v_sub_u32 v6, 39, v6")
P(f"v_and_b32 v7, 1, v6")
P(f"v_mul_u32_u24 v7, {CS-2}, v7")
P(f"v_lshl_add_u32 v6, v6, 1, v7")
P(f"s_lshr_b32 s{S_T0}, s{S_V}, 1")
P(f"s_andn2_b32 s{S_T3}, 1, s{S_V}")
P(f"s_mul_i32 s{S_T2}, s{S_T0}, {2*CS}")
P(f"s_lshl_b32 s{S_T1}, s{S_T3}, 8")
P(f"s_add_u32 s{S_T2}, s{S_T2}, s{S_T1}")
P(f"s_add_u32 s{S_T2}, s{S_T2}, {L_KC}")
P(f"v_add_u32 {v(V_KA+3)}, s{S_T2}, v6")
toff = {0: (0, 0), 1: (0, 1), 2: (0, 2), 3: (0, 3), 4: (1, 0), 5: (1, 2), 6: (2, 0), 7: (3, 0), 8: (4, 0), 9: (5, 0), 10: (6, 0), 11: (7, 0)}
P(f"ds_write2_b32 {v(V_TW)}, {v(KD)}, {v(KD+1)} offset0:0 offset1:1")
P(f"ds_write2_b32 {v(V_TW)}, {v(KD+2)}, {v(KD+3)} offset0:2 offset1:3")
for j in range(4, 12):
    qq, r = toff[j]
    P(f"ds_write_b32 {v(V_TW)}, {v(KD+j)} offset:{4*(r + 264*qq)}")
for k in range(3):
    P(f"v_add_u32 {v(V_KA+k)}, {64*(48-16*k)}, {v(V_KA+3)}")
P(f"v_lshlrev_b32 v6, 1, v4")
P(f"v_sub_u32 v6, v6, v5")
P(f"s_lshl_b32 s{S_T1}, s{S_T3}, 4")
P(f"s_add_u32 s{S_T1}, s{S_T1}, 17")
P(f"v_add_u32 v6, s{S_T1}, v6")
P(f"s_mov_b32 s{S_T2}, {L_UX}")
P("s_waitcnt lgkmcnt(0)")
P("s_barrier")
if "fine" in OPT: stamp("T barrier")
EG = 208
for c2 in range(2):
    for e in range(9):
        P(f"ds_read2st64_b32 {v(EG+18*c2+2*e,2)}, {v(GA+e)} offset0:{114*c2} offset1:{114*c2+57}")
b2 = batch_dma(1, "w2")
b2[3] = waitq("t0_3") + b2[3]
b2 = singles(b2)
P.add(b2.pop(0))
for rr in range(4):
    P(f"v_bfe_u32 v7, v6, 2, 2")
    P(f"v_xor_b32 v7, s{S_T0}, v7")
    P(f"v_lshl_add_u32 v7, v6, 2, v7")
    P(f"v_lshl_add_u32 {v(V_UA+rr)}, v7, 4, s{S_T2}")
    if rr < 3:
        P(f"v_subrev_u32 v6, 4, v6")
P.add(b2.pop(0))
P(f"v_lshlrev_b32 v6, 4, v0")
KO = 192
VB = 48


def bfrag(rr, e):
    return VB + 32 * rr + 4 * e


def b_loads(lo, hi):
    z = sub()
    for rr in range(4):
        for a in range(lo, hi):
            z(f"ds_read_b128 {v(bfrag(rr,a),4)}, {v(V_UA+rr)} offset:{2048*a}")
    return z.ins


for c2 in range(2):
    b = EG + 18 * c2
    for e in range(9):
        P(f"v_add_f32 {v(b+2*e)}, {v(b+2*e)}, {v(b+2*e+1)}")
    P(f"v_cndmask_b32 {v(b+16)}, {v(b+16)}, 0, s[{S_M255}:{S_M255+1}]")
    for s_ in range(2):
        o = KO + 8 * c2 + 4 * s_
        for i in range(4):
            P(f"v_cvt_pk_bf16_f32 {v(o+i)}, {v(b+2*(s_+2*i))}, {v(b+2*(s_+2*i+1))}")
    if c2 == 1:
        P(f"v_add_u32 v7, {2*CS}, v6")
    for s_ in range(2):
        P(f"ds_write_b128 {v(6+c2)}, {v(KO+8*c2+4*s_,4)} offset:{L_KC+s_*CS}", tok="kc")
    if c2 == 0:
        P.add(waitq("w1_3") + tr1[24:])
    P.add(b2.pop(0))
if "dumpk" in OPT:
    P(f"s_lshl_b32 s{S_T0}, s{S_W}, 13")
    P(f"s_add_u32 s{S_T0}, s{S_T0}, {WS_DBG}")
    P(f"buffer_store_dwordx4 {v(KO,4)}, v6, {srd(SRD_WS)}, s{S_T0} offen")
    P(f"s_add_u32 s{S_T0}, s{S_T0}, 4096")
    P(f"buffer_store_dwordx4 {v(KO+8,4)}, v6, {srd(SRD_WS)}, s{S_T0} offen")
stamp("expanded")
P.wait("uxl")
P.wait("kc")
P("s_barrier")
stamp("conv start")
ea = sub()
ea(f"v_lshrrev_b32 v6, 1, v5")
ea(f"v_lshl_add_u32 v6, v4, 1, v6")
ea(f"s_lshl_b32 s{S_T2}, s{S_V}, 11")
ea(f"s_add_u32 s{S_T2}, s{S_T2}, {L_UX+2048}")
ea(f"v_lshl_add_u32 v6, v6, 6, s{S_T2}")
ea(f"v_bfe_u32 v4, v4, 1, 2")
ea(f"v_and_b32 v5, 1, v5")
ea(f"v_lshl_add_u32 v7, v4, 4, v6")
ea(f"v_lshl_add_u32 {v(V_EU)}, v5, 3, v7")
ea(f"v_xor_b32 {v(V_EU1)}, 16, {v(V_EU)}")
ea(f"v_or_b32 v5, 2, v5")
ea(f"v_xor_b32 v4, v4, v5")
ea(f"v_lshl_add_u32 {v(V_EXP)}, v4, 4, v6")
eb = sub()
eb(f"s_mul_i32 s{S_ACTW}, s{S_V}, 14336")
eb(f"v_add_u32 {v(V_EXR)}, s{S_ACTW}, {v(V_L16)}")
eb(f"s_lshl_b32 s{S_T2}, s{S_V}, 10")
eb(f"v_add_u32 {v(V_EXW)}, s{S_T2}, {v(V_L16)}")
eb(f"s_mul_i32 s{S_T3}, s{S_W}, {PROW}")
eb(f"s_add_u32 s{S_T3}, s{S_T3}, {WS_P}")
eb(f"v_add_u32 {v(V_PST)}, s{S_T3}, {v(V_EXW)}")
eb(f"s_lshl_b32 s{S_C}, s{S_DSK}, 16")
eb(f"s_and_b32 s{S_D}, s{S_DSK}, 0xffff0000")

CA = [176, 192]
ET = 208


def afrag(rr, a):
    return 128 + 32 * rr + 4 * a


def a_loads(rr, lo, hi):
    z = sub()
    for a in range(lo, hi):
        k = a // 2
        off = 16 * (11 - rr - 8 * (a - 2 * k))
        z(f"ds_read2_b32 {acc(afrag(rr,a),2)}, {v(V_KA+k)} offset0:{off} offset1:{off+1}")
        z(f"ds_read2_b32 {acc(afrag(rr,a)+2,2)}, {v(V_KA+k)} offset0:{off+2} offset1:{off+3}")
    return z.ins


def conv_mfmas(gen):
    m = sub()
    first = set()
    na = 4 if gen == 0 else 8
    order = []
    for rr in range(4):
        pairs = [(a, e) for a in range(na) for e in range(na) if 4 * gen <= a + e < 4 * gen + 4]
        pairs.sort(key=lambda ae: (max(ae), ae))
        order += [(rr, a, e) for a, e in pairs]
    if gen == 1:
        order.sort(key=lambda t: (0 if max(t[1], t[2]) < 4 else 1))
    for rr, a, e in order:
        c = a + e - 4 * gen
        d = CA[gen] + 4 * c
        cc = v(d, 4) if c in first else "0"
        first.add(c)
        m(f"v_mfma_f32_16x16x32_bf16 {v(d,4)}, {acc(afrag(rr,a),4)}, {v(bfrag(rr,e),4)}, {cc}")
    return m.ins


UU, XX, YY, TT, WW, HO = ET, ET + 4, ET + 8, ET + 24, ET + 32, ET + 36


def conv_pre(gen):
    q = sub()
    q(f"ds_read_b64 {v(UU,2)}, {v(V_EU)} offset:{8192*gen}")
    q(f"ds_read_b64 {v(UU+2,2)}, {v(V_EU1)} offset:{8192*gen}")
    q(f"ds_read_b128 {v(XX,4)}, {v(V_EXP)} offset:{8192*gen}")
    r = sub()
    for c2 in range(2):
        for i in range(2):
            r(f"v_lshlrev_b32 {v(TT+4*c2+2*i)}, 16, {v(UU+2*c2+i)}")
            r(f"v_and_b32 {v(TT+4*c2+2*i+1)}, 0xffff0000, {v(UU+2*c2+i)}")
    for c2, sm in ((0, S_C), (1, S_D)):
        for i in range(4):
            r(f"v_mul_f32 {v(TT+4*c2+i)}, s{sm}, {v(TT+4*c2+i)}")
    for j in range(4):
        r(f"v_cvt_pk_bf16_f32 {v(WW+j)}, {v(TT+j)}, {v(TT+4+j)}")
    for j in range(4):
        r(f"v_lshlrev_b32 {v(TT+2*j)}, 16, {v(WW+j)}")
        r(f"v_and_b32 {v(TT+2*j+1)}, 0xffff0000, {v(WW+j)}")
    return q.ins, r.ins


def conv_xchg(gen):
    w_, b_, r_ = sub(), sub(), sub()
    for c in range(4):
        w_(f"ds_write_b128 {v(V_EXW)}, {v(CA[gen]+4*c,4)} offset:{(4096 if gen else 14336)*c}", tok=f"xw{gen}")
    b_.wait(f"xw{gen}")
    b_("s_barrier")
    for w in range(4):
        r_(f"ds_read_b128 {v(YY+4*w,4)}, {v(V_EXR)} offset:{1024*w}", tok=f"xr{gen}")
    return w_.ins, b_.ins, r_.ins


def conv_post(gen):
    q = sub()
    for c2 in range(2):
        for i in range(2):
            q(f"v_pk_add_f32 {v(YY+8*c2+2*i,2)}, {v(YY+8*c2+2*i,2)}, {v(YY+8*c2+4+2*i,2)}")
    for j in range(4):
        q(f"v_cvt_pk_bf16_f32 {v(WW+j)}, {v(YY+j)}, {v(YY+8+j)}")
    for j in range(4):
        q(f"v_lshlrev_b32 {v(YY+2*j)}, 16, {v(WW+j)}")
        q(f"v_and_b32 {v(YY+2*j+1)}, 0xffff0000, {v(WW+j)}")
    for j in range(4):
        q(f"v_pk_add_f32 {v(YY+2*j,2)}, {v(YY+2*j,2)}, {v(TT+2*j,2)}")
    for j in range(4):
        q(f"v_cvt_pk_bf16_f32 {v(WW+j)}, {v(YY+2*j)}, {v(YY+2*j+1)}")
    for j in range(4):
        q(f"v_lshlrev_b32 {v(YY+8+2*j)}, 16, {v(XX+j)}")
        q(f"v_and_b32 {v(YY+8+2*j+1)}, 0xffff0000, {v(XX+j)}")
    for j in range(4):
        q(f"v_lshlrev_b32 {v(YY+2*j)}, 16, {v(WW+j)}")
        q(f"v_and_b32 {v(YY+2*j+1)}, 0xffff0000, {v(WW+j)}")
    for j in range(4):
        q(f"v_pk_add_f32 {v(YY+2*j,2)}, {v(YY+2*j,2)}, {v(YY+8+2*j,2)}")
    h = HO + 4 * gen
    for j in range(4):
        q(f"v_cvt_pk_bf16_f32 {v(h+j)}, {v(YY+2*j)}, {v(YY+2*j+1)}")
    q(f"s_mov_b32 s{S_T0}, {PGEN*gen}")
    q(f"buffer_store_dwordx4 {v(h,4)}, {v(V_PST)}, {srd(SRD_WS)}, s{S_T0} offen sc1", tok=f"h{gen}")
    return q.ins


V_WF = 19
V_F4 = 20
ad = sub()
ad(f"v_mov_b32 {v(V_NONCE)}, 1")
flg_lanes(ad, 4, 10)
ad(f"s_lshl_b32 s{S_T0}, s{S_V}, 13")
ad(f"s_add_u32 s{S_F2}, s{S_F2}, s{S_T0}")
ad(f"s_lshl_b32 s{S_T0}, s{S_FH}, 12")
ad(f"s_add_u32 s{S_F2}, s{S_F2}, s{S_T0}")
ad(f"s_add_u32 s{S_F2}, s{S_F2}, {WS_C}")
NFL = len(ad.ins)
ad(f"s_lshr_b32 s{S_T0}, s{S_TB}, 2")
ad(f"s_bfe_u32 s{S_REP}, s{S_W}, 0x20003")
ad(f"s_lshl3_add_u32 s{S_T0}, s{S_T0}, s{S_REP}")
ad(f"s_lshl2_add_u32 s{S_T0}, s{S_T0}, s{S_V}")
ad(f"s_lshl_b32 s{S_T0}, s{S_T0}, 8")
ad(f"s_add_u32 s{S_T0}, s{S_T0}, {WS_C}")
ad(f"v_mov_b32 {v(V_F2)}, 0x7ff00000")
ad(f"v_writelane_b32 {v(V_F2)}, s{S_T0}, 0")
ad(f"s_add_u32 s{S_T0}, s{S_T0}, 4096")
ad(f"v_writelane_b32 {v(V_F2)}, s{S_T0}, 1")
ad(f"s_lshl2_add_u32 s{S_T2}, s{S_DB}, s{S_V}")
ad(f"s_lshl2_add_u32 s{S_T3}, s{S_T2}, s{S_REP}")
ad(f"s_lshl_b32 s{S_T3}, s{S_T3}, 8")
ad(f"s_add_u32 s{S_T3}, s{S_T3}, {WS_C + 896*256}")
ad(f"v_mov_b32 {v(V_F4)}, 0x7ff00000")
ad(f"v_writelane_b32 {v(V_F4)}, s{S_T3}, 0")
ad(f"s_mul_i32 s{S_T1}, s{S_V}, 56")
ad(f"s_mul_i32 s{S_T2}, s{S_T2}, {14*4096}")
ad(f"s_add_u32 s{S_T2}, s{S_T2}, {WS_WF}")
ad(f"v_add_u32 {v(V_WF)}, s{S_T2}, {v(V_L16)}")
ad(f"s_lshl_b32 s{S_HR}, s{S_DB}, 11")
for i in range(1, 7):
    ad(f"s_add_u32 s{S_HR+i}, s{S_HR}, {2048*i}")
    ad(f"s_sub_u32 s{S_T3}, s{S_HR+i}, 14336")
    ad(f"s_min_u32 s{S_HR+i}, s{S_HR+i}, s{S_T3}")
V_A = 17
ad(f"v_lshrrev_b32 v5, 4, {v(V_LANE)}")
ad(f"v_and_b32 v6, 15, {v(V_LANE)}")
ad(f"v_mul_u32_u24 v4, {PROW}, v5")
ad(f"v_lshl_add_u32 v4, v6, 4, v4")
ad(f"s_mul_i32 s{S_T1}, s{S_T1}, {PROW}")
ad(f"s_lshl_b32 s{S_T0}, s{S_TB}, 8")
ad(f"s_add_u32 s{S_T0}, s{S_T0}, s{S_T1}")
ad(f"s_add_u32 s{S_T0}, s{S_T0}, {WS_P}")
ad(f"v_add_u32 {v(V_A)}, s{S_T0}, v4")
ad(f"v_add_u32 {v(V_A+1)}, {4*PROW-1024}, {v(V_A)}")
ad1 = ad

def act_dma(gen):
    o = []
    for i in range(7):
        q = sub()
        q(f"s_add_u32 m0, s{S_ACTW if gen == 0 else S_Z}, s{S_HR+i}")
        q(f"s_mul_i32 s{S_WOFF}, s{S_HR+i}, {8*PROW//2048}")
        for k in range(2):
            of = f" offset:{1024*k}" if k else ""
            q(f"buffer_load_dwordx4 {v(V_A+k)}, {srd(SRD_WS)}, s{S_WOFF} offen{of} sc1 lds", tok=f"act{gen}")
        o.append(q.ins)
    return o


V_BR, V_S2, V_HST = 21, 22, 24
V_LF, V_LR = 28, 29
V_RES = 27
V_OST, V_RR, V_RW, V_HL, V_P3 = 40, 41, 42, 44, 45
SEL = 176
CSA = [180, 184]
ad = sub()
ad(f"v_add_u32 {v(V_F2)}, 0x8000, {v(V_F2)}")
ad(f"v_and_b32 v4, 31, {v(V_LANE)}")
ad(f"v_lshrrev_b32 v5, 5, {v(V_LANE)}")
ad(f"v_lshlrev_b32 v5, 10, v5")
ad(f"v_lshl_add_u32 {v(V_BR)}, v4, 2, v5")
ad(f"s_lshl_b32 s{S_T0}, s{S_TB}, 10")
ad(f"s_mul_i32 s{S_T1}, s{S_DB}, {S2REP}")
ad(f"s_add_u32 s{S_T0}, s{S_T0}, s{S_T1}")
ad(f"s_add_u32 s{S_T0}, s{S_T0}, {WS_S2}")
ad(f"v_lshl_add_u32 {v(V_S2)}, v4, 3, s{S_T0}")
ad(f"s_mov_b32 s{S_PERM}, 0x03020302")
ad(f"v_lshrrev_b32 v5, 4, {v(V_LANE)}")
ad(f"v_and_b32 v6, 15, {v(V_LANE)}")
ad(f"v_and_b32 v4, 1, v5")
ad(f"v_mul_u32_u24 v4, 57344, v4")
ad(f"v_lshl_add_u32 v4, v6, 4, v4")
ad(f"v_lshrrev_b32 v7, 1, v5")
ad(f"v_lshl_add_u32 v4, v7, 8, v4")
ad(f"s_mul_i32 s{S_T0}, s{S_TB}, {8*57344}")
ad(f"s_lshl_b32 s{S_T1}, s{S_FB}, 2")
ad(f"s_add_u32 s{S_T1}, s{S_T1}, s{S_V}")
ad(f"s_lshl_b32 s{S_T2}, s{S_T1}, 10")
ad(f"s_add_u32 s{S_T0}, s{S_T0}, {WS_H}")
ad(f"s_add_u32 s{S_T2}, s{S_T2}, s{S_T0}")
ad(f"v_add_u32 {v(V_HST)}, s{S_T2}, v4")
ad(f"s_mul_i32 s{S_T2}, s{S_FH}, 57344")
ad(f"s_add_u32 s{S_T0}, s{S_T0}, s{S_T2}")
ad(f"s_add_u32 s{S_T0}, s{S_T0}, s{S_ACTW}")
ad(f"v_add_u32 {v(V_HL)}, s{S_T0}, {v(V_L16)}")
ad(f"s_lshl_b32 s{S_T0}, s{S_TB}, 13")
ad(f"s_add_u32 s{S_T0}, s{S_T0}, {WS_C + 65536}")
ad(f"s_mul_i32 s{S_T1}, s{S_T1}, 37")
ad(f"s_and_b32 s{S_T1}, s{S_T1}, 0x600")
ad(f"s_add_u32 s{S_F3}, s{S_T0}, s{S_T1}")
ad(f"s_lshl1_add_u32 s{S_T1}, s{S_V}, s{S_FH}")
ad(f"s_lshl_b32 s{S_T1}, s{S_T1}, 8")
ad(f"s_add_u32 s{S_T0}, s{S_T0}, s{S_T1}")
ad(f"v_mov_b32 {v(V_P3)}, 0x7ff00000")
ad(f"v_writelane_b32 {v(V_P3)}, s{S_T0}, 0")
ad(f"s_add_u32 s{S_FW}, s{S_RING}, 32768")
ad(f"s_lshl_b32 s{S_R2}, s{S_V}, 14")
ad(f"s_add_u32 s{S_Z}, s{S_ACTW}, {L_ACT[1]}")
ad(f"v_add_u32 {v(V_LF)}, s{S_FW}, {v(V_L16)}")
ad(f"v_add_u32 {v(V_LR)}, s{S_R2}, {v(V_L16)}")
ad2 = ad
se = sub()
se(f"v_bfe_u32 v4, {v(V_LANE)}, 2, 2")
se(f"v_bfe_u32 v5, {v(V_LANE)}, 4, 1")
se(f"v_mov_b32 v6, 0x3f803f80")
se(f"v_cmp_eq_u32 vcc, v4, v5")
for i in range(4):
    se(f"v_cndmask_b32 {v(SEL+i)}, 0, v6, vcc")


def cs_mfma(ks0, ks1):
    q = sub()
    for ks in range(ks0, ks1):
        for m in range(2):
            c = "0" if ks == 0 else v(CSA[m], 4)
            q(f"v_mfma_f32_16x16x32_bf16 {v(CSA[m],4)}, {v(SEL,4)}, {acc(wfrag(m,ks),4)}, {c}")
    return q.ins


def pin_spread(g, start, ins, per=2):
    for i, x in enumerate(ins):
        g.at(int(start + i // per), [x])
    return int(start + (len(ins) + per - 1) // per)


mA, mB = conv_mfmas(0), conv_mfmas(1)
NOV = 22
bl = b_loads(0, 4)


def ab(rr):
    al = a_loads(rr, 0, 4)
    o = []
    for a in range(4):
        o += [bl[4 * rr + a]] + al[2 * a:2 * a + 2]
    return o


P.add(ab(0))
P.add(ea.ins)
P.add(eb.ins)
g = Gaps(mA + mB[:NOV], 2)
pr, pv = conv_pre(0)
l1 = ab(1) + ab(2) + pr + ab(3)
for i, x in enumerate(l1):
    g.at(i * 28 // len(l1), [x])
pin_vm(g, 1, b2, 3.2)
nb = b_loads(4, 8)
newl = []
for rr in range(4):
    newl += nb[4 * rr:4 * rr + 4] + a_loads(rr, 4, 8)
pin_spread(g, 30, newl[:12], per=1)
g.fill(pv, start=26, end=50)
xw, xb, xr = conv_xchg(0)
for i in range(4):
    g.at(42 + 2 * i, [xw[i]])
g.at(52, xb)
g.at(53, xr)
pin_spread(g, 54, newl[12:20], per=1)
P.add(g.out())
P.add(conv_post(0))
stamp("genA stored")
g = Gaps(mB[NOV:] + cs_mfma(0, 11), 2)
NB_ = len(mB) - NOV
pin_spread(g, 0, newl[20:], per=1)
fl = sub()
fl.wait("h0")
addcnt(fl, S_F2)
fl(f"s_add_u32 s{S_F2}, s{S_F2}, 0x8000")
g.at(int(OPT.get("fa", 30)), fl.ins)
tr2 = batch_tr(1)
for i in range(4):
    pin_spread(g, 10 + 9 * i, waitq(f"w2_{i}") + tr2[8 * i:8 * i + 8], per=1)
b3 = batch_dma(2, "w3")
for i in range(4):
    b3[i] = waitq(f"t1_{i}") + b3[i]
pin_vm(g, 24, b3, 3.3)
pr, pv = conv_pre(1)
pin_spread(g, 48, pr, per=1)
newl[-1].tok = "lastfrag"
bq = sub()
bq.wait("lastfrag")
bq("s_barrier")
g.at(46, bq.ins)
x2 = sub()
x2(f"v_add_u32 {v(V_EXW)}, {L_KC}, {v(V_EXW)}")
x2(f"s_lshl_b32 s{S_T0}, s{S_V}, 12")
x2(f"s_add_u32 s{S_T0}, s{S_T0}, {L_KC}")
x2(f"v_add_u32 {v(V_EXR)}, s{S_T0}, {v(V_L16)}")
PA1, PA2, PAC = int(OPT.get("pa1", 54)), int(OPT.get("pa2", 68)), int(OPT.get("pac", 80))
e = g.fill(ad1.ins[:NFL], start=0, end=int(OPT.get("fa", 30)))
e = g.fill(ad1.ins[NFL:NFL + 10], start=e, end=PA1)
e = g.fill(ad1.ins[NFL + 10:] + se.ins + x2.ins, start=e, end=PAC - 1)
g.fill(pv, start=max(e, 56), end=NB_ + 12)
g.at(PA1, poll_issue(V_F2, 7))
g.at(PA2, poll_issue(V_F2, 23))
g.at(PAC, stq("pre pollA") + poll_check2(V_F2, 7, 23, "3", f"s{S_E28}") + stq("post pollA"))
a0 = singles(act_dma(0))
na = (103 - PAC) // 3 + 1
pin_vm(g, PAC, a0[:na], 3)
xw, xb, xr = conv_xchg(1)
for i in range(4):
    g.at(NB_ + 2 + 2 * i, [xw[i]])
g.at(NB_ + 12, xb)
g.at(NB_ + 13, xr)
P.add(g.out())
p1 = conv_post(1)
P.add(sprinkle(p1, [(4 + 14 * i, u) for i, u in enumerate(a0[na:na + 3])]))
stamp("genB stored")
g = Gaps(cs_mfma(11, 24), 4)
g.at(1, poll_issue(V_F4, 25))
tr3 = batch_tr(2)
t3 = []
for i in (2, 3, 0, 1):
    t3 += waitq(f"w3_{i}") + tr3[8 * i:8 * i + 8]
pin_spread(g, 0, t3, per=4)
e = pin_vm(g, 0, a0[na + 3:] + [waitq("t2_3") + w_dma(6, 0, 8, "w4"), w_dma(6, 1, 12, "w4")], 2)
fl = sub()
fl.wait("h1")
addcnt(fl, S_F2)
g.fill(ad2.ins, start=9)
P.add(g.out())
P.add(fl.ins)
stamp("gap work done")

GACC = [64, 96]
BF = 128
NBF = 8
MB = 160
KC_ = [14, 9]
STT = 60
EPT = 164
HP = 172
WDV = 188
RESR = [46, 48, 50, 52]
A_CS = [224, 228]
GC0 = -2.0 * math.sqrt(2.0 / math.pi) * LOG2E


def st_issue(J, atomic=None):
    q = sub()
    t = STT + 2 * (J & 1)
    atomic = False if atomic is None else atomic
    if atomic:
        q(f"v_mov_b64 {v(t,2)}, 0")
        q(f"buffer_atomic_add_x2 {v(t,2)}, {v(V_S2)}, {srd(SRD_WS)}, 0 offen offset:{256*J} sc0")
    else:
        q(f"buffer_load_dwordx2 {v(t,2)}, {v(V_S2)}, {srd(SRD_WS)}, 0 offen offset:{256*J} sc1")
    return q.ins


def st_check(J):
    q = sub()
    t = STT + 2 * (J & 1)
    slow, done = label("sslow"), label("sdone")
    q(f"v_cmp_ne_u32 vcc, s{S_NONCE}, {v(t+1)}")
    q(f"s_cbranch_vccnz {slow}")
    q(f"{done}:")
    spin(TAIL, slow, done, st_issue(J, True), t + 1, sleep=1)
    return q.ins


def st_final(J):
    q = sub()
    kc = KC_[J & 1]
    t = STT + 2 * (J & 1)
    q(f"v_perm_b32 {v(MB)}, {v(t)}, {v(t)}, s{S_PERM}")
    q(f"v_lshlrev_b32 {v(t+1)}, 16, {v(t)}")
    q(f"v_rcp_f32 {v(t)}, {v(t+1)}")
    q(f"v_mul_f32 {v(kc+2)}, {v(t+1)}, {v(t+1)}")
    q(f"v_mul_f32 {v(kc)}, {f32(GC0)}, {v(t)}")
    q(f"v_mul_f32 {v(kc+1)}, {v(t)}, {v(t)}")
    q(f"v_mul_f32 {v(kc+1)}, {v(kc+1)}, {v(kc)}")
    q(f"v_mul_f32 {v(kc+1)}, {f32(0.044715)}, {v(kc+1)}")
    return q.ins


SP = Prog()
spn = [1]


def sps():
    if STAMPS and "lite" in OPT:
        SP(f"s_memrealtime s[{S_STAMP}:{S_STAMP+1}]")
        SP("s_waitcnt lgkmcnt(0)")
        SP(f"v_writelane_b32 v255, s{S_STAMP}, {spn[0]}")
        spn[0] += 1


SP("L_spare:")
SP("s_waitcnt vmcnt(0)")
SP("s_barrier")
sps()
SP(f"s_and_b32 s{S_T0}, s{S_W}, 6")
SP(f"s_lshl_b32 s{S_T0}, s{S_T0}, 1")
SP(f"s_bfe_u32 s{S_T1}, s{S_W}, 0x20003")
SP(f"s_add_u32 s{S_TB}, s{S_T0}, s{S_T1}")
SP(f"s_lshr_b32 s{S_T0}, s{S_TB}, 2")
SP(f"s_lshl2_add_u32 s{S_T0}, s{S_FH}, s{S_T0}")
SP(f"s_lshl3_add_u32 s{S_T0}, s{S_T0}, s{S_T1}")
SP(f"s_lshl2_add_u32 s{S_T0}, s{S_T0}, s{S_V}")
SP(f"s_lshl_b32 s{S_T0}, s{S_T0}, 8")
SP(f"s_add_u32 s{S_T0}, s{S_T0}, {WS_C}")
SP(f"v_and_b32 v4, 1, {v(V_LANE)}")
SP(f"v_lshl_add_u32 v10, v4, 12, s{S_T0}")
SP(f"s_mul_i32 s{S_T1}, s{S_V}, 56")
SP(f"v_mov_b32 {v(V_NONCE)}, 7")
flg_lanes(SP, 4)
SP(f"v_lshrrev_b32 v5, 4, {v(V_LANE)}")
SP(f"v_and_b32 v6, 15, {v(V_LANE)}")
SP(f"v_mul_u32_u24 v4, {PROW}, v5")
SP(f"v_lshl_add_u32 v4, v6, 4, v4")
SP(f"s_mul_i32 s{S_T1}, s{S_T1}, {PROW}")
SP(f"s_lshl_b32 s{S_T0}, s{S_TB}, 8")
SP(f"s_add_u32 s{S_T0}, s{S_T0}, s{S_T1}")
SP(f"s_mul_i32 s{S_T1}, s{S_FH}, {PGEN}")
SP(f"s_add_u32 s{S_T0}, s{S_T0}, s{S_T1}")
SP(f"s_add_u32 s{S_T0}, s{S_T0}, {WS_P}")
SP(f"v_add_u32 v11, s{S_T0}, v4")
SP(f"v_lshl_add_u32 v4, v6, 2, v5")
SP(f"s_lshl_b32 s{S_T0}, s{S_V}, 9")
SP(f"v_lshl_add_u32 v12, v4, 3, s{S_T0}")
SP(f"v_lshlrev_b32 v13, 3, {v(V_LANE)}")
SP(f"v_mov_b32 v14, 0x3f803f80")
SP(f"s_sub_u32 s{S_T1}, s{S_W}, 224")
SP(f"s_lshr_b32 s{S_T0}, s{S_V}, 1")
SP(f"s_lshl1_add_u32 s{S_T1}, s{S_T1}, s{S_T0}")
SP(f"s_mul_i32 s{S_T1}, s{S_T1}, {35*128}")
SP(f"s_add_u32 s{S_T1}, s{S_T1}, {3584*128}")
SP(f"v_min_u32 v4, 34, {v(V_LANE)}")
SP(f"v_lshl_add_u32 v4, v4, 7, s{S_T1}")
for k in range(4):
    SP(f"global_load_dword {v(60+k)}, v4, s[{S_PFB}:{S_PFB+1}]")
    if k < 3:
        SP(f"v_add_u32 v4, {2240*128}, v4")
SP(f"s_sub_u32 s{S_T1}, s{S_W}, 224")
SP(f"s_cmp_ge_u32 s{S_T1}, 28")
SP("s_cbranch_scc1 L_sp_nowf")
SP(f"s_lshr_b32 s{S_DB}, s{S_T1}, 2")
SP(f"s_and_b32 s{S_T2}, s{S_T1}, 3")
SP(f"s_lshl_b32 s{S_F3}, s{S_T1}, 10")
SP(f"s_add_u32 s{S_F3}, s{S_F3}, {WS_C + 896*256}")
SP(f"s_mul_i32 s{S_T1}, s{S_T1}, {14*4096}")
SP(f"s_add_u32 s{S_T1}, s{S_T1}, {WS_WF}")
SP(f"v_add_u32 v20, s{S_T1}, {v(V_L16)}")
SP(f"v_lshrrev_b32 v6, 3, {v(V_LANE)}")
SP(f"v_and_b32 v7, 6, v6")
SP(f"v_and_b32 v5, 7, {v(V_LANE)}")
SP(f"v_xor_b32 v7, v7, v5")
SP(f"v_mul_u32_u24 v6, 896, v6")
SP(f"v_lshl_add_u32 v6, v7, 4, v6")
SP(f"s_mul_i32 s{S_T0}, s{S_T2}, {448*896}")
SP(f"s_lshl_b32 s{S_T1}, s{S_DB}, 7")
SP(f"s_add_u32 s{S_T0}, s{S_T0}, s{S_T1}")
SP(f"v_add_u32 v48, s{S_T0}, v6")
for k in range(1, 4):
    SP(f"v_add_u32 {v(48+k)}, {k*(7168-1024)}, v48")
SP(f"s_lshl_b32 s{S_R2}, s{S_V}, 14")
SP(f"s_add_u32 s{S_R2}, s{S_R2}, 4096")
for i in range(4):
    SP(f"s_lshl2_add_u32 s{S_HR+i}, s{S_V}, {i}")
    SP(f"s_min_u32 s{S_HR+i}, s{S_HR+i}, 13")
    SP(f"s_lshl1_add_u32 s{S_T0}, s{S_DB}, s{S_HR+i}")
    SP(f"s_sub_u32 s{S_T1}, s{S_T0}, 14")
    SP(f"s_cmp_ge_u32 s{S_T0}, 14")
    SP(f"s_cselect_b32 s{S_T0}, s{S_T1}, s{S_T0}")
    SP(f"s_mul_i32 s{S_WOFF}, s{S_T0}, {32*896}")
    SP(f"s_add_u32 m0, s{S_R2}, {4096*i}")
    SP(f"s_lshl_b32 s{S_HR+i}, s{S_HR+i}, 12")
    for k in range(4):
        of = f" offset:{1024*k}" if k else ""
        SP(f"buffer_load_dwordx4 {v(48+k)}, {srd(SRD_WD)}, s{S_WOFF} offen{of} lds", tok=f"sw{i}")
SP(f"v_lshrrev_b32 v4, 4, {v(V_LANE)}")
SP(f"v_lshrrev_b32 v6, 1, v4")
SP(f"v_lshlrev_b32 v6, 4, v6")
SP(f"v_and_b32 v7, 1, v4")
SP(f"v_lshl_add_u32 v6, v7, 2, v6")
SP(f"v_bfe_u32 v7, {v(V_LANE)}, 2, 2")
SP(f"v_add_u32 v6, v6, v7")
SP(f"v_bfe_u32 v7, v6, 1, 2")
SP(f"v_lshlrev_b32 v6, 7, v6")
SP(f"v_and_b32 v5, 3, {v(V_LANE)}")
SP(f"v_lshl_add_u32 v6, v5, 3, v6")
for rt in range(4):
    SP(f"v_xor_b32 v5, {rt}, v7")
    SP(f"v_lshl_add_u32 v5, v5, 5, v6")
    SP(f"v_add_u32 {v(52+rt)}, s{S_R2}, v5")
for i in range(4):
    SP.wait(f"sw{i}")
    if i in (0, 3): sps()
    for rt in range(4):
        for h in range(2):
            SP(f"ds_read_b64_tr_b16 {v(64+16*i+4*rt+2*h,2)}, {v(52+rt)} offset:{4096*i+1024*h}")
    for rt in range(4):
        SP(f"buffer_store_dwordx4 {v(64+16*i+4*rt,4)}, v20, {srd(SRD_WS)}, s{S_HR+i} offen offset:{1024*rt} sc1")
SP("s_waitcnt vmcnt(0)")
addcnt(SP, S_F3)
sps()
SP("L_sp_nowf:")
sps()
SP("s_mov_b64 vcc, 3")
spin(SP, "L_sp_c", "L_sp_d", poll_issue(10, 7), 7, sleep=int(OPT.get('spsleep', 2)), exp=f"s{S_E28}")
SP("L_sp_d:")
sps()
for k in range(14):
    SP(f"s_mov_b32 s{S_T0}, {k*4*PROW}")
    SP(f"buffer_load_dwordx4 {v(64+4*k,4)}, v11, {srd(SRD_WS)}, s{S_T0} offen sc1")
SS = 16
for j in range(8):
    SP(f"v_mov_b32 {v(SS+j)}, 0")
for k in range(14):
    for j in range(4):
        SP(f"v_dot2c_f32_bf16 {v(SS+j)}, {v(64+4*k+j)}, v14")
    for j in range(4):
        SP(f"v_dot2c_f32_bf16 {v(SS+4+j)}, {v(64+4*k+j)}, {v(64+4*k+j)}")
for o in (0, 4):
    SP(f"v_permlane32_swap_b32 {v(SS+o)}, {v(SS+o+2)}")
    SP(f"v_permlane32_swap_b32 {v(SS+o+1)}, {v(SS+o+3)}")
for o in (0, 4):
    SP(f"v_add_f32 {v(SS+o)}, {v(SS+o)}, {v(SS+o+2)}")
    SP(f"v_add_f32 {v(SS+o+1)}, {v(SS+o+1)}, {v(SS+o+3)}")
for o in (0, 4):
    SP(f"v_permlane16_swap_b32 {v(SS+o)}, {v(SS+o+1)}")
SP(f"v_add_f32 {v(SS)}, {v(SS)}, {v(SS+1)}")
SP(f"v_add_f32 {v(SS+1)}, {v(SS+4)}, {v(SS+5)}")
sps()
SP(f"ds_write_b64 v12, {v(SS,2)}")
SP("s_waitcnt lgkmcnt(0)")
SP("s_barrier")
SP(f"s_cmp_lg_u32 s{S_V}, 0")
SP("s_cbranch_scc1 L_fin")
t = 24
for w in range(4):
    SP(f"ds_read_b64 {v(t+2*w,2)}, v13 offset:{512*w}")
SP(f"s_lshl_b32 s{S_T0}, s{S_TB}, 1")
SP(f"s_add_u32 s{S_T0}, s{S_T0}, s{S_FH}")
SP(f"s_lshl_b32 s{S_T0}, s{S_T0}, 9")
SP(f"s_add_u32 s{S_T0}, s{S_T0}, {WS_S2}")
SP(f"v_pk_add_f32 {v(t,2)}, {v(t,2)}, {v(t+2,2)}")
SP(f"v_pk_add_f32 {v(t+4,2)}, {v(t+4,2)}, {v(t+6,2)}")
SP(f"v_pk_add_f32 {v(t,2)}, {v(t,2)}, {v(t+4,2)}")
SP(f"v_mul_f32 {v(t)}, s{S_K0}, {v(t)}")
SP(f"v_mul_f32 {v(t+1)}, s{S_K0}, {v(t+1)}")
SP(f"v_fma_f32 {v(t+1)}, -{v(t)}, {v(t)}, {v(t+1)}")
SP(f"v_max_f32 {v(t+1)}, 0, {v(t+1)}")
round_bf16(SP, t + 1, t + 1)
SP(f"v_add_f32 {v(t+1)}, {f32(1e-5)}, {v(t+1)}")
round_bf16(SP, t + 1, t + 1)
SP(f"v_sqrt_f32 {v(t+1)}, {v(t+1)}")
SP(f"v_cvt_pk_bf16_f32 {v(t)}, {v(t+1)}, -{v(t)}")
SP(f"v_mov_b32 {v(t+1)}, s{S_NONCE}")
for r_ in range(7):
    SP(f"buffer_store_dwordx2 {v(t,2)}, v13, {srd(SRD_WS)}, s{S_T0} offen sc1")
    SP(f"s_add_u32 s{S_T0}, s{S_T0}, {S2REP}")
sps()
SP(f"s_cmp_lg_u32 s{S_W}, 255")
SP("s_cbranch_scc1 L_fin")
SP(f"v_lshlrev_b32 v4, 25, {v(V_LANE)}")
SP(f"buffer_store_dword {v(t+1)}, v4, {srd(SRD_WS)}, 0 offen sc1")
SP("s_branch L_fin")


def b_read(J, ks):
    q = sub()
    b = BF + 4 * (ks % NBF)
    q(f"ds_read2st64_b32 {v(b,2)}, {v(V_BR)} offset0:{8*ks} offset1:{8*ks+1}")
    q(f"ds_read2st64_b32 {v(b+2,2)}, {v(V_BR)} offset0:{8*ks+2} offset1:{8*ks+3}", tok=f"b{J}_{ks}")
    return q.ins


def g1_gaps(J, extra_after=None):
    m = sub()
    g0 = GACC[J & 1]
    for ks in range(28):
        for mm in range(2):
            d = g0 + 16 * mm
            c = "0" if ks == 0 else v(d, 16)
            m(f"v_mfma_f32_32x32x16_bf16 {v(d,16)}, {acc(wfrag(mm,ks),4)}, {v(BF+4*(ks%NBF),4)}, {c}")
    for mm in range(2):
        d = g0 + 16 * mm
        m(f"v_mfma_f32_32x32x16_bf16 {v(d,16)}, {acc(A_CS[mm],4)}, {v(MB,4)}, {v(d,16)}")
    g = Gaps(m.ins, 6)
    for ks in range(28):
        k2 = ks + NBF - 1
        if k2 < 28:
            r = b_read(J, k2)
            g.at(2 * ks, [r[0]])
            g.at(2 * ks + 1, [r[1]])
        if ks % 3 == 2 and ks + 1 < 28:
            w = sub()
            w.wait(f"b{J}_{min(ks+3,27)}")
            g.at(2 * ks + 1, w.ins)
    return g


def next_tile_reads(g, J, delta, first=42):
    q = sub()
    q(f"v_add_u32 {v(V_BR)}, {delta}, {v(V_BR)}")
    g.at(first, q.ins)
    for ks in range(NBF - 1):
        old = max(k for k in range(28) if k % NBF == ks)
        r = b_read(J, ks)
        at = max(2 * old + 1, first + 1)
        g.at(at, r[:1])
        g.at(min(at + 1, 57), r[1:])


def g1_epi(J):
    q = sub()
    g = GACC[J & 1]
    kc = KC_[J & 1]
    T = EPT
    for j0 in range(0, 16, 4):
        js = range(j0, j0 + 4)
        for j in js:
            q(f"v_mul_f32 {v(T+j-j0)}, {v(g+j)}, {v(g+j)}")
        for j in js:
            q(f"v_fma_f32 {v(T+j-j0)}, {v(T+j-j0)}, {v(kc+1)}, {v(kc)}")
        for j in js:
            q(f"v_mul_f32 {v(T+j-j0)}, {v(T+j-j0)}, {v(g+j)}")
        for j in js:
            q(f"v_exp_f32 {v(T+j-j0)}, {v(T+j-j0)}")
            q(f"v_mul_f32 {v(T+4+j-j0)}, {v(g+j)}, {v(g+16+j)}")
        for j in js:
            q(f"v_fma_f32 {v(T+j-j0)}, {v(T+j-j0)}, {v(kc+2)}, {v(kc+2)}")
        for j in js:
            q(f"v_rcp_f32 {v(T+j-j0)}, {v(T+j-j0)}")
        for j in js:
            q(f"v_mul_f32 {v(T+4+j-j0)}, {v(T+4+j-j0)}, {v(T+j-j0)}")
        q(f"v_cvt_pk_bf16_f32 {v(HP+(j0//2)%4)}, {v(T+4)}, {v(T+5)}")
        q(f"v_cvt_pk_bf16_f32 {v(HP+(j0//2)%4+1)}, {v(T+6)}, {v(T+7)}")
        if j0 in (4, 12):
            q2 = j0 // 8
            q(f"buffer_store_dwordx4 {v(HP,4)}, {v(V_HST)}, {srd(SRD_WS)}, 0 offen offset:{512*q2} sc1", tok=f"H{J}")
    q(f"v_add_u32 {v(V_HST)}, {2*57344}, {v(V_HST)}")
    return q.ins


def flag3(J):
    q = sub()
    q.wait(f"H{J}")
    addcnt(q, S_F3)
    q(f"s_add_u32 s{S_F3}, s{S_F3}, 2048")
    return q.ins


WDREG = {}
for i in range(4):
    for rt in range(4):
        WDREG[i, rt] = v(WDV + 16 * i + 4 * rt, 4)
        WDREG[10, rt] = acc(240 + 4 * rt, 4)
        WDREG[11, rt] = v([176, 180, 184, 56][rt], 4)
        WDREG[12, rt] = acc(4 * rt, 4)
        WDREG[13, rt] = acc(16 + 4 * rt, 4)
for i in range(6):
    for rt in range(4):
        WDREG[4 + i, rt] = acc(128 + 16 * i + 4 * rt, 4)
KORD = [0, 1, 2, 3, 10, 11, 12, 13, 4, 5, 6, 7, 8, 9]


def wdr(ft, rt):
    return WDREG[ft, rt]


def wd_load(ft):
    q = sub()
    q(f"s_mov_b32 s{S_WOFF}, {ft*4096}")
    for k in range(4):
        of = f" offset:{1024*k}" if k else ""
        q(f"buffer_load_dwordx4 {wdr(ft,k)}, {v(V_WF)}, {srd(SRD_WS)}, s{S_WOFF} offen{of} sc1")
    return q.ins


def wd_dma(ft):
    q = sub()
    sbase, slot = (S_FW, ft - 4) if ft < 6 else (S_R2, ft - 6)
    q(f"s_add_u32 m0, s{sbase}, {slot*4096}")
    q(f"s_mov_b32 s{S_WOFF}, {ft*4096}")
    for k in range(4):
        of = f" offset:{1024*k}" if k else ""
        q(f"buffer_load_dwordx4 {v(V_WF)}, {srd(SRD_WS)}, s{S_WOFF} offen{of} sc1 lds", tok=f"wd{ft}")
    return q.ins


def wd_read(ft):
    q = sub()
    va, slot = (V_LF, ft - 4) if ft < 6 else (V_LR, ft - 6)
    for rt in range(4):
        q(f"ds_read_b128 {wdr(ft,rt)}, {v(va)} offset:{4096*slot+1024*rt}")
    return q.ins


def res_read(J):
    q = sub()
    q(f"ds_read2st64_b32 {v(RESR[J],2)}, {v(V_RES)} offset0:0 offset1:1", tok=f"res{J}")
    q(f"v_add_u32 {v(V_RES)}, {128 if J % 2 == 0 else L_ACT[1]-128}, {v(V_RES)}")
    return q.ins


ad = sub()
ad(f"v_lshrrev_b32 v4, 4, v0")
ad(f"v_and_b32 v5, 15, v0")
ad(f"v_lshlrev_b32 v6, 9, v5")
ad(f"v_lshl_add_u32 v6, v4, 2, v6")
ad(f"s_lshl_b32 s{S_T0}, s{S_DB}, 13")
ad(f"s_lshl_b32 s{S_T1}, s{S_FH}, 6")
ad(f"s_add_u32 s{S_T0}, s{S_T0}, s{S_T1}")
ad(f"v_add_u32 {v(V_RES)}, s{S_T0}, v6")
ad(f"v_lshrrev_b32 v6, 2, v4")
ad(f"v_and_b32 v7, 3, v4")
ad(f"v_lshl_add_u32 v6, v6, 4, v7")
ad(f"v_mul_u32_u24 v6, 896, v6")
ad(f"v_lshl_add_u32 v6, v5, 3, v6")
ad(f"s_lshr_b32 s{S_T0}, s{S_TB}, 2")
ad(f"s_lshl_b32 s{S_T0}, s{S_T0}, 8")
ad(f"s_add_u32 s{S_T0}, s{S_T0}, s{S_T1}")
ad(f"s_and_b32 s{S_T1}, s{S_TB}, 3")
ad(f"s_lshl_b32 s{S_T1}, s{S_T1}, 2")
ad(f"s_add_u32 s{S_T0}, s{S_T0}, s{S_T1}")
ad(f"s_mul_i32 s{S_T0}, s{S_T0}, 896")
ad(f"s_lshl_b32 s{S_T1}, s{S_DB}, 7")
ad(f"s_add_u32 s{S_T0}, s{S_T0}, s{S_T1}")
ad(f"v_add_u32 {v(V_OST)}, s{S_T0}, v6")
ad(f"v_mul_u32_u24 v6, 272, v5")
ad(f"v_lshl_add_u32 v6, v4, 4, v6")
ad(f"v_add_u32 {v(V_RR)}, {L_R}, v6")
ad(f"v_lshrrev_b32 v4, 4, {v(V_LANE)}")
ad(f"v_mul_u32_u24 v6, 272, v4")
ad(f"v_lshl_add_u32 v6, v5, 4, v6")
ad(f"s_mul_i32 s{S_T0}, s{S_V}, 4352")
ad(f"s_add_u32 s{S_T0}, s{S_T0}, {L_R}")
ad(f"v_add_u32 {v(V_RW)}, s{S_T0}, v6")
flg_lanes(ad, 2)
ad(f"v_add_u32 {v(V_A)}, {PGEN}, {v(V_A)}")
ad(f"v_add_u32 {v(V_A+1)}, {PGEN}, {v(V_A+1)}")

for i in range(1, 4):
    P(f"v_mov_b32 {v(MB+i)}, 0")
    P(f"v_accvgpr_write_b32 {acc(A_CS[0]+i)}, 0")
    P(f"v_accvgpr_write_b32 {acc(A_CS[1]+i)}, 0")
P.wait("act0")
P("s_waitcnt lgkmcnt(0)")
P("s_barrier")
stamp("gemm1 start")
for ks in range(NBF - 1):
    P.add(b_read(0, ks))

def hreg(J, ft):
    n = KORD.index(ft)
    if J in (0, 3):
        return acc(32 + 4 * n, 4)
    if J == 1:
        return v(64 + 4 * n if n < 8 else 128 + 4 * (n - 8), 4)
    return v(96 + 4 * n if n < 8 else 152 + 4 * (n - 8), 4)


def h_loads(J):
    o = []
    for s_ in KORD:
        q = sub()
        of = " offset:1024" if s_ % 2 else ""
        q(f"buffer_load_dwordx4 {hreg(J,s_)}, {v(V_HL)}, {srd(SRD_WS)}, s{S_HR+s_//2} offen{of} sc1")
        o.append(q.ins)
    if J < 3:
        q = sub()
        q(f"v_add_u32 {v(V_HL)}, {2*57344}, {v(V_HL)}")
        o[-1] += q.ins
    return o


def p3_next():
    q = sub()
    q(f"v_add_u32 {v(V_P3)}, 2048, {v(V_P3)}")
    return q.ins


g = g1_gaps(0)
g.at(0, poll_check(V_F4, 25))
pin_vm(g, 0, [wd_load(0), wd_load(1), wd_load(2), wd_load(3)], 2.3)
t4 = w_tr(6, 0, 8, "t4") + w_tr(6, 1, 12, "t4")
g.at(17, waitq("w4"))
pin_spread(g, 17, t4, per=2)
e = g.fill(ad.ins, start=0)
assert e < 24, e
g.at(28, waitq("t4") + cs_mfma(24, 28))
cf = sub()
for m in range(2):
    round_bf16(cf, 54, CSA[m])
    cf(f"v_sub_f32 v55, {v(CSA[m])}, v54")
    cf(f"v_cvt_pk_bf16_f32 v54, v54, v55")
    cf(f"v_accvgpr_write_b32 {acc(A_CS[m])}, v54")
g.fill(cf.ins, start=32, end=50)
g.at(int(OPT.get("pb1", 21)), poll_issue(V_F2, 23))
g.at(int(OPT.get("pb2", 37)), poll_issue(V_F2, 25))
g.at(int(OPT.get("st0", 36)), st_issue(0))
pin_vm(g, 38, [wd_dma(4), wd_dma(5)], 2.3)
g.at(53, stq("t0 pre st") + st_check(0) + stq("t0 post st"))
g.fill(st_final(0), start=53, end=55)
g.at(57, stq("t0 pre pB") + poll_check2(V_F2, 23, 25, "3", f"s{S_E28}") + stq("t0 post pB"))
next_tile_reads(g, 1, 128)
P.add(g.out())
stamp("tile0")
g = g1_gaps(1)
e = pin_vm(g, 0, act_dma(1)[:2] + [st_issue(1)] + act_dma(1)[2:], 2)
pin_vm(g, e + 1, [wd_load(10)], 3)
g.at(43, res_read(0))
g.at(45, res_read(1))
g.at(40, st_check(1))
g.fill(st_final(1), start=41, end=54)
bq = sub()
bq.wait("act1")
bq.wait("res1")
bq("s_barrier")
BB = int(OPT.get("bb", 52))
g.at(BB, stq("t1 pre bar") + bq.ins + stq("t1 post bar"))
next_tile_reads(g, 2, L_ACT[1] - 128, first=BB)
e = g.fill(g1_epi(0), start=3)
print("tile 1: epilogue ends at gap", e, "tail", len(g.tail))
P.add(g.out())
stamp("tile1")
g = g1_gaps(2)
pin_vm(g, 0, [wd_dma(6), wd_dma(7), st_issue(2), wd_dma(8), wd_dma(9), wd_load(11), st_issue(3)], 2.5)
g.at(24, flag3(0))
g.at(49, st_check(2))
g.fill(st_final(2), start=50, end=54)
g.at(56, poll_issue(V_P3, 7))
next_tile_reads(g, 3, 128)
e = g.fill(g1_epi(1), start=3)
print("tile 2: epilogue ends at gap", e, "tail", len(g.tail))
P.add(g.out())
stamp("tile2")
g = g1_gaps(3)
T3S = float(OPT.get("t3s", 2.4))
e = pin_vm(g, 4, [wd_load(12), wd_load(13)], T3S)
g.at(int(OPT.get("f1", 21)), flag3(1))
g.at(48, st_check(3))
g.fill(st_final(3), start=49, end=54)
g.at(e - 1, stq("t3 pre p0") + poll_check(V_P3, 7) + stq("t3 post p0") + p3_next())
pin_vm(g, e, h_loads(0), T3S)
g.at(int(OPT.get("p1", 47)), poll_issue(V_P3, 7))
g.at(52, res_read(2))
g.at(54, res_read(3))
e = g.fill(g1_epi(2), start=2)
print("tile 3: epilogue ends at gap", e, "tail", len(g.tail))
P.add(g.out())
stamp("tile3")
P.add(waitq("wd9") + wd_read(4) + wd_read(5))
ep = g1_epi(3)
h1 = h_loads(1)
NE = int(OPT.get("ne", 3))
P.add(sprinkle(ep, [(int(OPT.get("f2", 120)), flag3(2))] + [(68, poll_check(V_P3, 7) + p3_next())] + [(69 + 22 * i, h1[i]) for i in range(NE)]))
stamp("epi3")

OA = [8, 48]
OA = [224, 96]
RT = 176


def g2_mfma(J):
    m = sub()
    for ft in KORD:
        for rt in range(4):
            d = acc(OA[J & 1] + 4 * rt, 4)
            c = "0" if ft == 0 else d
            m(f"v_mfma_f32_16x16x32_bf16 {d}, {wdr(ft,rt)}, {hreg(J,ft)}, {c}")
    return m.ins


RTMP = [28, 32, 36, 12]


def red_write(J):
    q = sub()
    for rt in range(4):
        q(f"ds_write_b128 {v(V_RW)}, {acc(OA[J&1]+4*rt,4)} offset:{(J&1)*R_SZ + rt*1088}")
    return q.ins


def red_bar():
    q = sub()
    q("s_waitcnt lgkmcnt(0)")
    q("s_barrier")
    return q.ins


def red_read(J):
    q = sub()
    for w in range(4):
        q(f"ds_read_b128 {v(RTMP[w],4)}, {v(V_RR)} offset:{(J&1)*R_SZ + w*4352}")
    return q.ins


def red_fin(J):
    q = sub()
    a, b, c, d = RTMP
    for i in range(2):
        q(f"v_lshlrev_b32 {v(16+2*i)}, 16, {v(RESR[J]+i)}")
        q(f"v_and_b32 {v(17+2*i)}, 0xffff0000, {v(RESR[J]+i)}")
    for i in range(4):
        q(f"v_add_f32 {v(a+i)}, {v(a+i)}, {v(b+i)}")
    for i in range(4):
        q(f"v_add_f32 {v(c+i)}, {v(c+i)}, {v(d+i)}")
    for i in range(4):
        q(f"v_add_f32 {v(a+i)}, {v(a+i)}, {v(16+i)}")
    for i in range(4):
        q(f"v_add_f32 {v(a+i)}, {v(a+i)}, {v(c+i)}")
    for i in range(2):
        q(f"v_cvt_pk_bf16_f32 {v(20+i)}, {v(a+2*i)}, {v(a+2*i+1)}")
    q(f"s_mov_b32 s{S_T0}, {(1024*(J>>1) + 128*(J&1))*896}")
    q(f"buffer_store_dwordx2 v[20:21], {v(V_OST)}, {srd(SRD_OUT)}, s{S_T0} offen {OPT.get('ost', '').replace('_', ' ')}")
    return q.ins


for J in range(4):
    g = Gaps(g2_mfma(J), 2)
    if J > 0:
        pin_spread(g, 4, red_write(J - 1), per=1)
        g.at(16, red_bar())
        pin_spread(g, 17, red_read(J - 1), per=1)
        g.fill(red_fin(J - 1), start=28)
    if J == 0:
        pin_vm(g, 0, h1[NE:], float(OPT.get("hs1", 4)))
        for i, x in enumerate(wd_read(6) + wd_read(7) + wd_read(8) + wd_read(9)):
            g.at(1 + 2 * i, [x])
        g.at(int(OPT.get("p2a", 18)), poll_issue(V_P3, 7))
        g.at(int(OPT.get("p2b", 36)), poll_issue(V_P3, 23))
        g.at(int(OPT.get("f3", 42)), flag3(3))
        bq = sub()
        bq.wait("res3")
        bq("s_barrier")
        g.at(52, bq.ins)
        g.at(55, poll_check2(V_P3, 7, 23, "1", f"s{S_E14}") + p3_next())
    if J == 1:
        pin_vm(g, 0, h_loads(2), float(OPT.get("hs", 3.5)))
        g.at(int(OPT.get("p3a", 14)), poll_issue(V_P3, 7))
        g.at(int(OPT.get("p3b", 32)), poll_issue(V_P3, 23))
        g.at(55, poll_check2(V_P3, 7, 23, "1", f"s{S_E14}"))
    if J == 2:
        pin_vm(g, 0, h_loads(3), float(OPT.get("hs3", 2)))
    P.add(g.out())
    stamp(f"g2 tile{J}")
P.add(red_write(3))
P.add(red_bar())
P.add(red_read(3))
P.add(red_fin(3))
stamp("end")

if "hold" in OPT:
    P("L_hold:")
    P("s_memrealtime s[98:99]")
    P("s_waitcnt lgkmcnt(0)")
    P("s_sub_u32 s98, s98, s100")
    P("s_cmp_lt_u32 s98, 4000")
    P("s_cbranch_scc1 L_hold")
P("L_fin:")
if STAMPS:
    P(f"s_lshl_b32 s{S_T0}, s{S_W}, 2")
    P(f"s_add_u32 s{S_T0}, s{S_T0}, s{S_V}")
    P(f"s_lshl_b32 s{S_T0}, s{S_T0}, 8")
    P(f"s_add_u32 s{S_T0}, s{S_T0}, {WS_DBG + 0x800000}")
    P(f"v_lshlrev_b32 v4, 2, v1")
    P(f"buffer_store_dword v255, v4, {srd(SRD_WS)}, s{S_T0} offen")
if "dbgout" in OPT:
    P(f"s_cmp_ge_u32 s{S_W}, 224")
    P("s_cbranch_scc1 L_end")
    P(f"v_readlane_b32 s{S_T0}, v255, 0")
    P(f"s_not_b32 s{S_T0}, s{S_T0}")
    P(f"v_writelane_b32 v255, s{S_T0}, 15")
    P("s_mov_b64 exec, 0xffff")
    P(f"v_lshlrev_b32 v4, 2, v1")
    P("global_atomic_umax v4, v255, s[60:61]")
P("L_end:")
P("s_endpgm")

res = finalize(P.ins, verbose=True) + finalize(TAIL.ins) + finalize(SP.ins)
if "report" in OPT:
    report_waits(finalize(P.ins))
launch = f"; @launch kernel={KN} grid" if ("list" in OPT or STAMPS) else "; @launch grid"
hdr = f"""; Fused pre-LN S4D conv + GEGLU FFN, one persistent launch (generated by my own script)
{launch}=(256,1,1) block=(256,1,1) lds={LDS_SIZE}
.amdgcn_target "amdgcn-amd-amdhsa--gfx950"
.text
.globl {KN}
.p2align 8
.type {KN},@function
{KN}:
"""
ftr = f"""
.p2align 8
.fill 64, 4, 0xbf800000
L_codeend:
.section .rodata,"a"
.p2align 6
.amdhsa_kernel {KN}
  .amdhsa_next_free_vgpr 512
  .amdhsa_next_free_sgpr 102
  .amdhsa_accum_offset 256
  .amdhsa_group_segment_fixed_size 0
  .amdhsa_kernarg_size 112
  .amdhsa_user_sgpr_count 2
  .amdhsa_user_sgpr_kernarg_segment_ptr 1
  .amdhsa_system_sgpr_workgroup_id_x 1
.end_amdhsa_kernel
"""
open(OUTF, "w").write(hdr + text_of(res) + ftr)
src = open(__file__).read()
a = src.index("# ---------------- workspace layout")
b = src.index("# ---------------- LDS layout")
open("layout.py", "w").write(src[a:b] + "\nSTAMP_NAMES = " + repr(stamp_names) + "\nSPIN_NAMES = " + repr(spin_names) + "\n")
```

```python
import sys, math, struct
from asmgen import *

NAME = "sequential_preLN__ssm_conv_s4d__geglu_ffn__prompt"
KN = NAME + "_kernel"
OPT = {}
for a in sys.argv[1:]:
    k, _, val = a.partition("=")
    OPT[k] = val if val else True
STAMPS = "stamps" in OPT
OUTF = OPT.get("out", "k10.s")
if "wdearly" not in OPT:
    OPT["wdlate"] = True


def f32(x):
    return "0x%08x" % struct.unpack("<I", struct.pack("<f", x))[0]


FS = 4
FREP = 0x9000
WS_EPOCH = 0
WS_F1 = 0x8000
WS_S2 = 0x54000
S2REP = 0x5000
WS_C = 0x80000
WS_UX = 0xD0000
WS_P = WS_UX + 256 * 14336
PROW = 4352
PGEN = 224 * PROW
WS_H = WS_P + 2 * PGEN
WS_WF = WS_H + 16 * 4 * 56 * 2048
WS_END = WS_WF + 392 * 4096
WS_DBG = 0x1000000
WS_SIZE = 0x2000000
LAYOUT = 5

CS = 4160
TAB_W = 14592
TAB_ROW = 272
L_KC = 58368
L_UX = 75008
L_EX = 0
L_RING = 98304
L_ACT = [0, 65536]
L_F = 131072
L_R = 65536
R_SZ = 17408
LDS_SIZE = 163840

S_W = 2
S_V = 4
S_T0, S_T1, S_T2, S_T3 = 5, 6, 7, 3
SRD_X, SRD_WS, SRD_WG, SRD_WU, SRD_WD, SRD_OUT = 8, 12, 16, 20, 24, 28
S_NONCE = 32
S_CNT = 33
S_EX = 34
S_LDT, S_DSK = 64, 65
S_TB, S_FB, S_FH, S_DB = 66, 67, 68, 69
S_A, S_B, S_C, S_D = 70, 72, 74, 76
S_RING = 78
S_WOFF = 79
S_K0 = 80
S_TAB = 81
S_F3 = 82
S_F1, S_F2 = 83, 84
S_M255 = 86
S_FW, S_R2 = 88, 89
S_ACTW = 90
S_UXO = 91
S_Z = 95
S_PFB = 88
S_HR = 36
S_E28, S_E14, S_CI = 46, 47, 85
S_UXM = 92
S_REP = 94
S_PERM = 93
S_STAMP = 96


def srd(n):
    return f"s[{n}:{n+3}]"


def v(n, w=1):
    return f"v{n}" if w == 1 else f"v[{n}:{n+w-1}]"


def acc(n, w=1):
    return f"a{n}" if w == 1 else f"a[{n}:{n+w-1}]"


P = Prog()
TAIL = Prog()
nstamp = [0]
stamp_names = []
spin_names = []
LITE = ("start", "conv start", "genA stored", "gemm1 start", "tile3", "end")
if "dbgout" in OPT:
    LITE = ("start", "x arrived", "ln1 done", "kgen r1", "conv start", "genA stored", "gemm1 start", "tile1", "tile3", "end")


def stamp(name, p=None):
    p = P if p is None else p
    p(f"; @ {name}")
    if OPT.get("hold", "").replace("_", " ") == name:
        p(f"s_memrealtime s[100:101]")
        p("s_waitcnt lgkmcnt(0)")
    if STAMPS and ("lite" not in OPT or name in LITE):
        k = nstamp[0]
        assert k < 32
        p(f"s_memrealtime s[{S_STAMP}:{S_STAMP+1}]")
        p(f"s_memtime s[{S_STAMP+2}:{S_STAMP+3}]")
        p("s_waitcnt lgkmcnt(0)")
        p(f"v_writelane_b32 v255, s{S_STAMP}, {k}")
        p(f"v_writelane_b32 v255, s{S_STAMP+2}, {32+k}")
        nstamp[0] += 1
        stamp_names.append(name)


def stq(name):
    q = sub()
    if "dbg" in OPT:
        stamp(name, q)
    return q.ins


lblc = [0]


def label(prefix):
    lblc[0] += 1
    return f"L_{prefix}_{lblc[0]}"


def poll_issue(vaddr, vtmp):
    q = sub()
    q(f"v_mov_b32 {v(vtmp)}, 0")
    q(f"buffer_atomic_add {v(vtmp)}, {v(vaddr)}, {srd(SRD_WS)}, 0 offen sc0")
    return q.ins


def spin(t, name, done, reissue, vtag, sleep=2, exp=None):
    t(f"{name}:")
    t(f"s_mov_b32 s{S_CNT}, 0")
    t(f"{name}_l:")
    t("s_mov_b64 exec, vcc")
    t(f"s_sleep {sleep}")
    t.add(reissue)
    t("s_waitcnt vmcnt(0)")
    t(f"v_cmp_ne_u32 vcc, {exp or f's{S_NONCE}'}, {v(vtag)}")
    t("s_mov_b64 exec, -1")
    if STAMPS and "lite" in OPT:
        spin_names.append(name)
        t(f"s_add_u32 s{S_STAMP}, s{S_CNT}, 1")
        t(f"v_writelane_b32 v255, s{S_STAMP}, {10+len(spin_names)-1}")
    t(f"s_cbranch_vccz {done}")
    t(f"s_add_u32 s{S_CNT}, s{S_CNT}, 1")
    t(f"s_cmp_lt_u32 s{S_CNT}, 0x40000")
    t(f"s_cbranch_scc1 {name}_l")
    t(f"s_branch {done}")


def poll_check(vaddr, vtmp, mask=None):
    q = sub()
    slow, done = label("slow"), label("pdone")
    exp = f"s{S_NONCE}" if vaddr == V_F1 else (f"s{S_E28}" if vaddr in (V_F2, 20) else f"s{S_E14}")
    q(f"v_cmp_ne_u32 vcc, {exp}, {v(vtmp)}")
    if vaddr == V_F1:
        q(f"s_cbranch_vccnz {slow}")
    else:
        mask = mask or ("3" if vaddr == V_F2 else "1")
        q(f"s_and_b64 vcc, vcc, {mask}")
        q(f"s_cbranch_scc1 {slow}")
    q(f"{done}:")
    spin(TAIL, slow, done, poll_issue(vaddr, vtmp), vtmp, exp=exp, sleep=1)
    return q.ins


def poll_check2(vaddr, v1, v2, mask, exp):
    q = sub()
    slow, done = label("slow"), label("pdone")
    q(f"v_cmp_ne_u32 vcc, {exp}, {v(v1)}")
    q(f"s_and_b64 vcc, vcc, {mask}")
    q(f"s_cbranch_scc0 {done}")
    q.cond(True)
    q(f"v_cmp_ne_u32 vcc, {exp}, {v(v2)}")
    q(f"s_and_b64 vcc, vcc, {mask}")
    q(f"s_cbranch_scc1 {slow}")
    q.cond(False)
    q(f"{done}:")
    spin(TAIL, slow, done, poll_issue(vaddr, v1), v1, exp=exp, sleep=1)
    return q.ins


def setflag(p, soff):
    p(f"buffer_atomic_swap {v(V_NONCE)}, {v(V_FLG)}, {srd(SRD_WS)}, s{soff} offen")


def addcnt(p, soff):
    p(f"buffer_atomic_add {v(V_NONCE)}, {v(V_FLG)}, {srd(SRD_WS)}, s{soff} offen")


def flg_lanes(p, n, sh=8, t1=4):
    p(f"v_lshrrev_b32 {v(t1)}, {n.bit_length()-1}, {v(V_LANE)}")
    p(f"v_min_u32 {v(t1)}, 1, {v(t1)}")
    p(f"v_lshlrev_b32 {v(t1)}, 30, {v(t1)}")
    p(f"v_lshl_add_u32 {v(V_FLG)}, {v(V_LANE)}, {sh}, {v(t1)}")


def waitq(tok):
    q = sub()
    q.wait(tok)
    return q.ins


def cmul(p, z, x, y):
    p(f"v_pk_mul_f32 {v(z,2)}, {v(x,2)}, {v(y,2)} op_sel:[0,0] op_sel_hi:[0,1]")
    p(f"v_pk_fma_f32 {v(z,2)}, {v(x,2)}, {v(y,2)}, {v(z,2)} op_sel:[1,1,0] op_sel_hi:[1,0,1] neg_lo:[1,0,0]")


def round_bf16(p, dst, src):
    p(f"v_cvt_pk_bf16_f32 {v(dst)}, {v(src)}, {v(src)}")
    p(f"v_and_b32 {v(dst)}, 0xffff0000, {v(dst)}")


V_LANE, V_NONCE, V_L16 = 1, 2, 3
V_FLG = 8
V_W = 9
V_TRA = 13
V_TA, V_TB, V_TW = 14, 15, 16
GA = 17
V_F1, V_UXL = 26, 27
V_KA = 28
V_UA = 32
V_EU, V_EXP, V_EXW, V_EXR, V_PST = 36, 37, 38, 39, 40
V_GW, V_GX, V_GR, V_S3 = 36, 37, 38, 39
V_EU1 = 41
V_DT = 42
V_F2 = 43
PR = 44
V_PF = 254

LOG2E = 1.4426950408889634

if OPT.get("hold") == "entry":
    P("s_memrealtime s[100:101]")
P(f"s_cmp_ge_u32 s{S_W}, 256")
P("s_cbranch_scc1 L_end")
P(f"s_load_dwordx16 s[36:51], s[0:1], 0")
P(f"s_load_dwordx8 s[52:59], s[0:1], 64")
P(f"s_load_dwordx4 s[60:63], s[0:1], 96")
if "nocpf" not in OPT:
    P(f"s_getpc_b64 s[{S_B}:{S_B+1}]")
    P("L_pc:")
    P(f"s_bfe_u32 s{S_T2}, s{S_W}, 0x30003")
    P(f"s_mul_i32 s{S_T2}, s{S_T2}, ((L_codeend-L_pc)/1024)*128")
    P(f"v_cmp_gt_u32 vcc, (L_codeend-L_pc)/1024, v0")
    P(f"s_add_u32 s{S_B}, s{S_B}, s{S_T2}")
    P(f"s_addc_u32 s{S_B+1}, s{S_B+1}, 0")
    P(f"v_lshlrev_b32 v6, 7, v0")
    P(f"s_and_saveexec_b64 s[{S_A}:{S_A+1}], vcc")
    P("s_cbranch_execz L_nocpf")
    P.cond(True)
    P(f"v_mov_b32 v7, s{S_B+1}")
    P(f"v_add_co_u32 v6, vcc, s{S_B}, v6")
    P(f"v_addc_co_u32 v7, vcc, 0, v7, vcc")
    P(f"global_load_dword v251, v[6:7], off")
    P.cond(False)
    P("L_nocpf:")
    P("s_mov_b64 exec, -1")
if STAMPS:
    P("v_mov_b32 v255, 0")
P(f"v_and_b32 {v(V_LANE)}, 63, v0")
P(f"v_lshrrev_b32 v4, 6, v0")
P(f"v_lshlrev_b32 {v(V_L16)}, 4, {v(V_LANE)}")
P(f"v_readfirstlane_b32 s{S_V}, v4")
P(f"v_mov_b32 v5, 0x7ff00000")
P(f"v_cmp_gt_u32 vcc, 56, {v(V_LANE)}")
P(f"s_lshl_b32 s{S_T0}, s{S_W}, 2")
P(f"s_add_u32 s{S_T0}, s{S_T0}, s{S_V}")
P(f"v_cndmask_b32 v4, v5, {v(V_L16)}, vcc")
P(f"s_mul_i32 s{S_T0}, s{S_T0}, 1792")
P(f"s_min_u32 s{S_T1}, s{S_W}, 223")
P(f"s_lshl_b32 s{S_T2}, s{S_T1}, 10")
P(f"v_lshl_add_u32 v6, v0, 2, s{S_T2}")
P(f"v_mov_b32 v7, 0")
P(f"s_lshl_b32 s{S_T1}, s{S_T1}, 2")
P(f"v_mov_b32 v56, s{S_T1}")
P(f"s_mov_b32 s{SRD_X+2}, 1835008")
P(f"s_mov_b32 s{SRD_X+3}, 0x00020000")
P(f"s_mov_b32 s{SRD_WS+2}, {WS_SIZE}")
P(f"s_mov_b32 s{SRD_WS+3}, 0x00020000")
P("s_waitcnt lgkmcnt(0)")
stamp("start")
P(f"s_mov_b64 s[{SRD_X}:{SRD_X+1}], s[36:37]")
XR = 48
P(f"buffer_load_dwordx4 {v(XR,4)}, v4, {srd(SRD_X)}, s{S_T0} offen")
P(f"buffer_load_dwordx4 {v(XR+4,4)}, v4, {srd(SRD_X)}, s{S_T0} offen offset:896")
for r, src, sz in ((SRD_WG, 52, 1605632), (SRD_WU, 54, 1605632), (SRD_WD, 56, 1605632), (SRD_OUT, 58, 1835008)):
    P(f"s_mov_b64 s[{r}:{r+1}], s[{src}:{src+1}]")
    P(f"s_mov_b32 s{r+2}, {sz}")
    P(f"s_mov_b32 s{r+3}, 0x00020000")
P(f"v_cmp_lt_u32 vcc, 7, {v(V_LANE)}")
P(f"v_mul_u32_u24 v4, {FREP}, {v(V_LANE)}")
P(f"s_lshr_b32 s{S_T0}, s{S_W}, 3")
P(f"s_mul_i32 s{S_T1}, s{S_T0}, 37")
P(f"v_cndmask_b32 {v(V_FLG)}, v4, v5, vcc")
P(f"s_lshr_b32 s{S_T1}, s{S_T1}, 8")
P(f"s_mul_i32 s{S_T2}, s{S_T1}, 7")
P(f"s_sub_u32 s{S_DB}, s{S_T0}, s{S_T2}")
P(f"s_and_b32 s{S_FH}, s{S_W}, 1")
P(f"s_and_b32 s{S_T2}, s{S_W}, 6")
P(f"s_lshl_b32 s{S_T2}, s{S_T2}, 1")
P(f"s_add_u32 s{S_TB}, s{S_T2}, s{S_T1}")
P(f"s_mul_i32 s{S_FB}, s{S_FH}, 7")
P(f"s_add_u32 s{S_FB}, s{S_FB}, s{S_DB}")
P(f"s_lshl_b32 s{S_RING}, s{S_V}, 13")
P(f"s_add_u32 s{S_RING}, s{S_RING}, {L_RING}")
P(f"s_mul_i32 s{S_TAB}, s{S_V}, {TAB_W}")
for _ in range(int(OPT.get("xd", 0))):
    P("s_nop 7")
P(f"s_mov_b64 s[{SRD_WS}:{SRD_WS+1}], s[62:63]")
for i in range(4):
    P(f"global_load_dword {v(PR+i)}, v6, s[{38+2*i}:{39+2*i}]")
P(f"global_load_dword {v(V_DT)}, v56, s[46:47]")
P(f"global_load_dword {v(V_EU1)}, v56, s[48:49]")
P(f"buffer_load_dword {v(V_NONCE)}, v7, {srd(SRD_WS)}, 0 offen sc1")
if "help" in OPT:
    P(f"s_and_b32 s{S_T0}, s{S_W}, 6")
    P(f"s_cmp_eq_u32 s{S_V}, 0")
    P(f"s_cselect_b32 s{S_T0}, 1, s{S_T0}")
    P(f"s_cmp_lg_u32 s{S_T0}, 0")
    P("s_cbranch_scc1 L_nohelp")
    P.raw(f"s_lshl1_add_u32 s{S_T0}, s{S_V}, s{S_W}")
    P.raw(f"s_mul_i32 s{S_T2}, s{S_T0}, 7168")
    P.raw(f"v_min_u32 v4, 55, {v(V_LANE)}")
    P.raw(f"v_lshlrev_b32 v4, 7, v4")
    P.raw(f"buffer_load_dword v244, v4, {srd(SRD_X)}, s{S_T2} offen")
    if OPT["help"] != "x":
        P.raw(f"s_min_u32 s{S_T0}, s{S_T0}, 223")
        P.raw(f"s_lshl_b32 s{S_T0}, s{S_T0}, 10")
        P.raw(f"v_and_b32 v4, 7, {v(V_LANE)}")
        P.raw(f"v_lshl_add_u32 v4, v4, 7, s{S_T0}")
        for i in range(4):
            P.raw(f"global_load_dword {v(245+i)}, v4, s[{38+2*i}:{39+2*i}]")
    P("L_nohelp:")
P(f"s_bitcmp1_b32 s{S_V}, 0")
P(f"s_cselect_b64 s[{S_PFB}:{S_PFB+1}], s[54:55], s[52:53]")
P(f"s_lshr_b32 s{S_T0}, s{S_V}, 1")
P(f"s_lshl1_add_u32 s{S_T2}, s{S_W}, s{S_T0}")
P(f"s_mul_i32 s{S_T0}, s{S_T2}, {7*128}")
P(f"v_min_u32 v4, 6, {v(V_LANE)}")
P(f"v_lshl_add_u32 v4, v4, 7, s{S_T0}")
P(f"global_load_dword {v(V_PF)}, v4, s[{S_PFB}:{S_PFB+1}]")
P(f"s_mul_i32 s{S_T0}, s{S_W}, 49")
P(f"s_mul_i32 s{S_T2}, s{S_V}, 12")
P(f"s_add_u32 s{S_T0}, s{S_T0}, s{S_T2}")
P(f"v_min_u32 v4, 12, {v(V_LANE)}")
P(f"v_add_lshl_u32 v252, v4, s{S_T0}, 7")
if "wdlate" not in OPT:
    P(f"global_load_dword v253, v252, s[56:57]")
P(f"v_cmp_gt_u32 vcc, 32, {v(V_LANE)}")
P(f"v_mul_u32_u24 v4, 37, {v(V_LANE)}")
P(f"v_lshrrev_b32 v4, 9, v4")
P(f"v_cndmask_b32 {v(V_S3)}, v5, {v(V_L16)}, vcc")
P(f"v_mul_u32_u24 v4, {TAB_W-14*272}, v4")
P(f"v_mul_u32_u24 v6, 272, {v(V_LANE)}")
P(f"s_lshl_b32 s{S_T0}, s{S_V}, 2")
P(f"v_add3_u32 {v(V_GW)}, v4, v6, s{S_T0}")
P(f"v_add_u32 {v(V_GX)}, s{S_T0}, {v(V_GW)}")
P(f"s_lshl_b32 s{S_UXM}, s{S_V}, 12")
P(f"s_add_u32 s{S_UXM}, s{S_UXM}, {L_UX+2048}")
P(f"v_and_b32 v4, 48, {v(V_LANE)}")
P(f"v_add3_u32 {v(V_GR)}, v4, {v(V_L16)}, s{S_TAB}")
P(f"v_and_b32 v4, 31, {v(V_LANE)}")
P(f"v_lshrrev_b32 v6, 5, {v(V_LANE)}")
P(f"v_lshl_add_u32 v6, v6, 4, s{S_TAB}")
P(f"v_and_b32 v7, 28, {v(V_LANE)}")
P(f"v_lshl_add_u32 v7, v4, 5, v7")
P(f"v_add_u32 {v(V_TW)}, v6, v7")
P(f"v_mul_u32_u24 v7, {TAB_ROW}, v4")
P(f"v_add_u32 {v(V_TB)}, v6, v7")
P(f"v_min_u32 v4, 20, v4")
P(f"v_mul_u32_u24 v7, {TAB_ROW}, v4")
P(f"v_add_u32 {v(V_TA)}, v6, v7")
P(f"s_lshl2_add_u32 s{S_CI}, s{S_W}, s{S_V}")
P(f"s_lshl_b32 s{S_CI}, s{S_CI}, 8")
P(f"s_add_u32 s{S_CI}, s{S_CI}, {WS_C}")
P(f"v_lshlrev_b32 v250, 25, {v(V_LANE)}")
P(f"s_mul_i32 s{S_UXO}, s{S_W}, 14336")
P(f"s_mul_i32 s{S_T0}, s{S_V}, 3584")
P(f"s_add_u32 s{S_UXO}, s{S_UXO}, s{S_T0}")
P(f"s_add_u32 s{S_UXO}, s{S_UXO}, {WS_UX}")
P(f"s_lshl_b32 s{S_T0}, s{S_V}, 8")
P(f"s_add_u32 s{S_T0}, s{S_T0}, s{S_W}")
P(f"s_mul_i32 s{S_T0}, s{S_T0}, {FS}")
P(f"s_add_u32 s{S_F1}, s{S_T0}, {WS_F1}")
P(f"v_lshrrev_b32 v4, 2, {v(V_LANE)}")
P(f"v_mul_u32_u24 v4, 3584, v4")
P(f"v_and_b32 v6, 3, {v(V_LANE)}")
P(f"v_lshl_add_u32 v4, v6, 4, v4")
P(f"s_lshl_b32 s{S_T0}, s{S_FB}, 8")
P(f"s_lshl_b32 s{S_T1}, s{S_V}, 6")
P(f"s_add_u32 s{S_T0}, s{S_T0}, s{S_T1}")
P(f"v_add_u32 {v(V_W)}, s{S_T0}, v4")
for k in range(1, 4):
    P(f"v_add_u32 {v(V_W+k)}, {k*(57344-1024)}, {v(V_W)}")
P(f"v_and_b32 v4, 32, {v(V_LANE)}")
P(f"v_lshlrev_b32 v4, 4, v4")
P(f"v_and_b32 v7, 12, {v(V_LANE)}")
P(f"v_lshl_add_u32 v4, v7, 4, v4")
P(f"v_and_b32 v7, 16, {v(V_LANE)}")
P(f"v_lshl_add_u32 v4, v7, 1, v4")
P(f"v_lshl_add_u32 v4, v6, 3, v4")
P(f"v_add_u32 {v(V_TRA)}, s{S_RING}, v4")
P(f"s_mov_b32 s{S_K0}, {L_KC+4096-L_UX}")
P(f"s_movk_i32 s{S_T2}, 128")
P(f"s_mul_i32 s{S_T0}, s{S_W}, 293")
P(f"s_bfe_u32 s{S_T0}, s{S_T0}, 0x2000e")
P(f"s_lshl_b32 s{S_T0}, s{S_T0}, 10")
P(f"s_lshr_b32 s{S_F2}, s{S_T0}, 2")
P(f"s_and_b32 s{S_REP}, s{S_W}, 7")
P(f"s_mul_i32 s{S_REP}, s{S_REP}, {FREP}")
P(f"s_add_u32 s{S_REP}, s{S_REP}, {WS_F1}")
P(f"s_add_u32 s{S_T0}, s{S_T0}, s{S_REP}")
P(f"v_lshl_add_u32 {v(V_F1)}, v0, 2, s{S_T0}")
P(f"v_lshrrev_b32 v4, 2, {v(V_LANE)}")
P(f"v_add_u32 v4, s{S_T1}, v4")
P(f"v_mul_u32_u24 v7, 14336, v4")
P(f"v_lshrrev_b32 v4, 4, {v(V_LANE)}")
P(f"v_xor_b32 v6, v6, v4")
P(f"v_lshl_add_u32 v7, v6, 4, v7")
P(f"s_lshl_b32 s{S_T0}, s{S_W}, 6")
P(f"s_add_u32 s{S_T0}, s{S_T0}, {WS_UX}")
P(f"v_add_u32 {v(V_UXL)}, s{S_T0}, v7")
P(f"v_bfe_u32 v6, {v(V_LANE)}, 1, 2")
P(f"v_mul_u32_u24 v6, {CS}, v6")
P(f"v_and_b32 v7, 16, {v(V_L16)}")
P(f"v_add3_u32 v6, v6, v7, s{S_K0}")
P(f"v_lshlrev_b32 v7, 4, v0")
P(f"v_cmp_gt_u32 vcc, s{S_T2}, v0")
P(f"v_mov_b32 v56, 0")
P(f"v_mov_b32 v57, 0")
P(f"v_cndmask_b32 v6, v6, v7, vcc")
P(f"v_mov_b32 v58, 0")
P(f"v_mov_b32 v59, 0")
P(f"v_add_u32 v6, {L_UX}, v6")
P(f"ds_write_b128 v6, v[56:59]")
P(f"v_lshlrev_b32 v4, 3, v0")
P(f"v_sub_u32 v4, 2047, v4")
P(f"v_cvt_f32_i32 v4, v4")
P(f"v_mov_b32 v60, 1028")
P(f"v_cmp_eq_u32 vcc, 0, v0")
for e in range(0, 10, 2):
    P(f"v_add_f32 v6, {f32(-float(e))}, v4")
    if e < 8:
        P(f"v_add_f32 v7, {f32(-float(e+1))}, v4")
    P(f"v_cvt_pk_bf16_f32 v6, v6, v7")
    for h in range(2):
        if e + h > 8:
            continue
        d = GA + e + h
        if h == 0:
            P(f"v_lshlrev_b32 v7, 16, v6")
        else:
            P(f"v_and_b32 v7, 0xffff0000, v6")
        P(f"v_cvt_u32_f32 v7, v7")
        if e + h < 4:
            P(f"v_cndmask_b32 v7, v7, v60, vcc")
        P(f"v_lshrrev_b32 {v(d)}, 5, v7")
        P(f"v_add_lshl_u32 {v(d)}, {v(d)}, v7, 2")
P(f"v_mov_b32 v4, 255")
P(f"v_cmp_eq_u32 s[{S_M255}:{S_M255+1}], v4, v0")

XF = 56
DF = 72
SA = 88
if "fine" in OPT: stamp("setup done")
P(f"s_mov_b32 s{S_EX}, -1")
P(f"s_mov_b32 s{S_EX+1}, 0x00ffffff")
P(f"s_mov_b32 s{S_K0}, {f32(1.0/448)}")
for r in range(2):
    for i in range(4):
        P(f"v_lshlrev_b32 {v(XF+8*r+2*i)}, 16, {v(XR+4*r+i)}")
        P(f"v_and_b32 {v(XF+8*r+2*i+1)}, 0xffff0000, {v(XR+4*r+i)}")
stamp("x arrived")
if "wdlate" in OPT:
    P(f"global_load_dword v253, v252, s[56:57]")
P(f"s_mov_b64 exec, s[{S_EX}:{S_EX+1}]")
for i in range(4):
    P(f"ds_write2_b32 {v(V_GX)}, {v(XR+i)}, {v(XR+4+i)} offset0:{16*i+8} offset1:{16*i+9}")
P("s_mov_b64 exec, -1")
for r in range(2):
    b = XF + 8 * r
    P(f"v_pk_add_f32 {v(DF+8*r,2)}, {v(b,2)}, {v(b+2,2)}")
    P(f"v_pk_add_f32 {v(DF+8*r+2,2)}, {v(b+4,2)}, {v(b+6,2)}")
for r in range(2):
    P(f"v_pk_add_f32 {v(DF+8*r,2)}, {v(DF+8*r,2)}, {v(DF+8*r+2,2)}")
for r in range(2):
    P(f"v_add_f32 {v(SA+r)}, {v(DF+8*r)}, {v(DF+8*r+1)}")


def wave_sum(p, regs):
    for mod in ("row_shr:1", "row_shr:2", "row_shr:4", "row_shr:8"):
        for r in regs:
            p(f"v_add_f32_dpp {v(r)}, {v(r)}, {v(r)} {mod} row_mask:0xf bank_mask:0xf bound_ctrl:0")
    for r in regs:
        p(f"v_add_f32_dpp {v(r)}, {v(r)}, {v(r)} row_bcast:15 row_mask:0xa bank_mask:0xf")
    for r in regs:
        p(f"v_add_f32_dpp {v(r)}, {v(r)}, {v(r)} row_bcast:31 row_mask:0xc bank_mask:0xf")


wave_sum(P, [SA, SA + 1])
for r in range(2):
    P(f"v_mul_f32 {v(SA+r)}, s{S_K0}, {v(SA+r)}")
P(f"v_cvt_pk_bf16_f32 {v(SA+2)}, {v(SA)}, {v(SA+1)}")
P(f"v_readlane_b32 s{S_A}, {v(SA)}, 63")
P(f"v_readlane_b32 s{S_B}, {v(SA+1)}, 63")
P(f"v_readlane_b32 s{S_T0}, {v(SA+2)}, 63")
P(f"v_mov_b32 {v(SA)}, 0")
P(f"v_mov_b32 {v(SA+1)}, 0")
P(f"s_mov_b64 exec, s[{S_EX}:{S_EX+1}]")
for r, sm in ((0, S_A), (1, S_B)):
    for i in range(4):
        P(f"v_pk_add_f32 {v(DF+8*r+2*i,2)}, {v(XF+8*r+2*i,2)}, s[{sm}:{sm+1}] op_sel_hi:[1,0] neg_lo:[0,1] neg_hi:[0,1]")
for r in range(2):
    b = DF + 8 * r
    P(f"v_pk_mul_f32 {v(b,2)}, {v(b,2)}, {v(b,2)}")
    for i in range(1, 4):
        P(f"v_pk_fma_f32 {v(b,2)}, {v(b+2*i,2)}, {v(b+2*i,2)}, {v(b,2)}")
for r in range(2):
    P(f"v_add_f32 {v(SA+r)}, {v(DF+8*r)}, {v(DF+8*r+1)}")
P("s_mov_b64 exec, -1")
P(f"s_lshl_b32 s{S_C}, s{S_T0}, 16")
P(f"s_and_b32 s{S_D}, s{S_T0}, 0xffff0000")
q1 = sub()
wave_sum(q1, [SA, SA + 1])
q2 = sub()
for r, sm in ((0, S_C), (1, S_D)):
    for i in range(4):
        q2(f"v_pk_add_f32 {v(DF+8*r+2*i,2)}, {v(XF+8*r+2*i,2)}, s[{sm}:{sm+1}] op_sel_hi:[1,0] neg_lo:[0,1] neg_hi:[0,1]")
for r in range(2):
    for i in range(4):
        q2(f"v_cvt_pk_bf16_f32 {v(XF+8*r+2*i)}, {v(DF+8*r+2*i)}, {v(DF+8*r+2*i+1)}")
for r in range(2):
    for i in range(4):
        q2(f"v_and_b32 {v(XF+8*r+2*i+1)}, 0xffff0000, {v(XF+8*r+2*i)}")
        q2(f"v_lshlrev_b32 {v(XF+8*r+2*i)}, 16, {v(XF+8*r+2*i)}")
k = 0
for j in range(0, len(q1.ins), 2):
    P.add(q1.ins[j:j + 2])
    P.add(q2.ins[k:k + 1])
    k += 1
P(f"v_mul_f32 {v(SA)}, s{S_K0}, {v(SA)}")
P(f"v_mul_f32 {v(SA+1)}, s{S_K0}, {v(SA+1)}")
for step in range(3):
    P(f"v_cvt_pk_bf16_f32 {v(SA+2)}, {v(SA)}, {v(SA+1)}")
    P(f"v_lshlrev_b32 {v(SA)}, 16, {v(SA+2)}")
    P(f"v_and_b32 {v(SA+1)}, 0xffff0000, {v(SA+2)}")
    for r in range(2):
        if step == 0:
            P(f"v_add_f32 {v(SA+r)}, {f32(1e-5)}, {v(SA+r)}")
        elif step == 1:
            P(f"v_sqrt_f32 {v(SA+r)}, {v(SA+r)}")
        else:
            P(f"v_rcp_f32 {v(SA+r)}, {v(SA+r)}")
    if step:
        P.add(q2.ins[k:k + 1])
        k += 1
P(f"v_readlane_b32 s{S_A}, {v(SA)}, 63")
P(f"v_readlane_b32 s{S_B}, {v(SA+1)}, 63")
P.add(q2.ins[k:])
for r, sm in ((0, S_A), (1, S_B)):
    for i in range(4):
        P(f"v_pk_mul_f32 {v(XF+8*r+2*i,2)}, {v(XF+8*r+2*i,2)}, s[{sm}:{sm+1}] op_sel_hi:[1,0]")
for j in range(8):
    P(f"v_cvt_pk_bf16_f32 {v(DF+j)}, {v(XF+j)}, {v(XF+8+j)}")
P(f"s_mov_b64 exec, s[{S_EX}:{S_EX+1}]")
for i in range(4):
    P(f"ds_write2_b32 {v(V_GW)}, {v(DF+2*i)}, {v(DF+2*i+1)} offset0:{16*i} offset1:{16*i+4}")
P("s_mov_b64 exec, -1")
if "fine" in OPT: stamp("ln1 math")
P("s_waitcnt lgkmcnt(0)")
P("s_barrier")
if "fine" in OPT: stamp("ln1 barrier")
UB = 112
for j in range(4):
    P(f"ds_read_b128 {v(UB+4*j,4)}, {v(V_GR)} offset:{1088*j}")
P(f"s_lshl_b32 s{S_T0}, s{S_V}, 3")
P(f"s_and_b32 s{S_T0}, s{S_T0}, 16")
P(f"s_mov_b32 m0, s{S_TAB}")
P("s_waitcnt lgkmcnt(0)")
for j in range(4):
    P(f"buffer_store_dwordx4 {v(UB+4*j,4)}, {v(V_L16 if j < 3 else V_S3)}, {srd(SRD_WS)}, s{S_UXO} offen offset:{1024*j} sc1", tok="ux")
P(f"s_cmp_lt_u32 s{S_W}, 224")
P("s_cbranch_scc1 L_main")


def nonce_init():
    q = sub()
    q(f"v_readfirstlane_b32 s{S_NONCE}, {v(V_NONCE)}")
    q(f"s_mul_i32 s{S_NONCE}, s{S_NONCE}, 1664525")
    q(f"s_add_u32 s{S_NONCE}, s{S_NONCE}, 1013904223")
    q(f"v_mov_b32 {v(V_NONCE)}, s{S_NONCE}")
    q(f"buffer_store_dword {v(V_NONCE)}, v250, {srd(SRD_WS)}, s{S_CI} offen sc1", tok="ux")
    q(f"s_add_u32 s{S_E28}, s{S_NONCE}, 28")
    q(f"s_add_u32 s{S_E14}, s{S_NONCE}, 14")
    return q.ins


P.raw("s_waitcnt vmcnt(6)")
for x in nonce_init():
    P.raw(x.text)
P.raw("s_waitcnt vmcnt(0)")
P.raw(f"buffer_atomic_swap {v(V_NONCE)}, {v(V_FLG)}, {srd(SRD_WS)}, s{S_F1} offen")
P.raw("s_branch L_spare")
P("L_main:")
stamp("ln1 done")


def wfrag(m, ks):
    return 8 * ks + 4 * m


def slotoff(slot):
    return (slot % 8) * 1024 + (slot // 8) * 32768


def w_dma(kq, m, slot, tok):
    q = sub()
    q(f"s_add_u32 m0, s{S_RING}, {slotoff(slot)}")
    if m == 0:
        q(f"s_mov_b32 s{S_WOFF}, {kq*4*57344}")
    for k in range(4):
        o = f" offset:{1024*k}" if k else ""
        q(f"buffer_load_dwordx4 {v(V_W+k)}, {srd(SRD_WU if m else SRD_WG)}, s{S_WOFF} offen{o} lds", tok=tok)
    return q.ins


def w_tr(kq, m, slot, tok=None):
    q = sub()
    for k in range(4):
        for h in range(2):
            q(f"ds_read_b64_tr_b16 {acc(wfrag(m,4*kq+k)+2*h,2)}, {v(V_TRA)} offset:{slotoff(slot+k)+256*h}", tok=tok)
    return q.ins


def batch_dma(b, tok):
    return [w_dma(2 * b + i // 2, i % 2, 4 * i, f"{tok}_{i}") for i in range(4)]


def batch_tr(b):
    o = []
    for i in range(4):
        o += w_tr(2 * b + i // 2, i % 2, 4 * i, tok=f"t{b}_{i}")
    return o


def singles(groups):
    out, cur = [], []
    for grp in groups:
        for i in grp:
            cur.append(i)
            if i.cls == "vmem":
                out.append(cur)
                cur = []
    if cur:
        out[-1] += cur
    return out


def pin_vm(g, start, groups, stride):
    k = start
    for u in singles(groups):
        g.at(int(k), u)
        k += stride
    return int(k)


def w_dma1(b, n, tok):
    i, k = n // 4, n % 4
    q = sub()
    q(f"s_add_u32 m0, s{S_RING}, {slotoff(4*i)}")
    if n % 8 == 0:
        q(f"s_mov_b32 s{S_WOFF}, {(2*b+i//2)*4*57344}")
    o = f" offset:{1024*k}" if k else ""
    q(f"buffer_load_dwordx4 {v(V_W+k)}, {srd(SRD_WU if i % 2 else SRD_WG)}, s{S_WOFF} offen{o} lds", tok=f"{tok}_{i}")
    q(f"s_mov_b32 m0, s{S_TAB}")
    return q.ins


KD = 176
FR = 192
FR = 112


def kgen_head(rd):
    q = sub()
    A0 = 48 + 0
    CC = 50
    unp = (lambda d, s: q(f"v_lshlrev_b32 {v(d)}, 16, {v(s)}")) if rd == 0 else (lambda d, s: q(f"v_and_b32 {v(d)}, 0xffff0000, {v(s)}"))
    for i in range(4):
        unp(48 + i, PR + i)
    q(f"v_mul_f32 v48, {f32(LOG2E)}, v48")
    q(f"v_exp_f32 v48, v48")
    q(f"v_mul_f32 v49, v49, {v(V_DT)}")
    q(f"v_cvt_pk_bf16_f32 v48, v48, v48")
    q(f"v_mul_f32 v49, 0.15915494, v49")
    q(f"v_and_b32 v48, 0xffff0000, v48")
    q(f"v_mul_f32 v50, v50, {v(V_DT)}")
    q(f"v_mul_f32 v48, v48, {v(V_DT)}")
    q(f"v_mul_f32 v51, v51, {v(V_DT)}")
    q(f"v_mul_f32 v48, {f32(-LOG2E)}, v48")
    q(f"v_add_f32 v50, v50, v50")
    q(f"v_add_f32 v51, v51, v51")
    for (z, pos) in ((52, 1), (54, 16), (56, 256)):
        if pos == 1:
            q(f"v_exp_f32 v4, v48")
            q(f"v_fract_f32 v5, v49")
        else:
            q(f"v_mul_f32 v4, {f32(float(pos))}, v48")
            q(f"v_mul_f32 v5, {f32(float(pos))}, v49")
            q(f"v_exp_f32 v4, v4")
            q(f"v_fract_f32 v5, v5")
        q(f"v_cos_f32 {v(z)}, v5")
        q(f"v_sin_f32 {v(z+1)}, v5")
        q(f"v_mul_f32 {v(z)}, {v(z)}, v4")
        q(f"v_mul_f32 {v(z+1)}, {v(z+1)}, v4")
    return q.ins


def kgen_body(rd):
    names = {"G0": 50, "E1": 52, "E16": 54, "E256": 56}
    nxt = [58]
    chunks = []
    cur = sub()
    wr = sub()
    pk = [0]
    PK = 192

    def new(n):
        names[n] = nxt[0]
        nxt[0] += 2
        assert nxt[0] <= 104
        return names[n]

    def out(kind, row, z):
        t = PK + pk[0] % 16
        pk[0] += 1
        if kind == "B":
            cur(f"v_cvt_pk_bf16_f32 {v(t)}, {v(z)}, {v(z+1)}")
            wr(f"ds_write_addtid_b32 {v(t)} offset:{row*TAB_ROW}")
        else:
            cur(f"v_cvt_pk_bf16_f32 {v(t)}, {v(z)}, -{v(z+1)}")
            wr(f"ds_write_addtid_b32 {v(t)} offset:{(32+row)*TAB_ROW}")
        if len(wr.ins) >= GROUP:
            flush()

    def flush():
        nonlocal cur, wr
        chunks.append(cur.ins + wr.ins)
        cur = sub()
        wr = sub()

    sc = [0]

    def mul(n, a, b, kind=None, row=None):
        if n is None:
            z = 104 + 2 * (sc[0] % 4)
            sc[0] += 1
        else:
            z = new(n)
        cmul(cur, z, names[a], names[b])
        if kind:
            out(kind, row, z)

    GROUP = int(OPT.get("kgroup", 6))
    t = PK + pk[0]
    pk[0] += 1
    cur(f"v_mov_b32 {v(t)}, 0x3f80")
    wr(f"ds_write_addtid_b32 {v(t)}")
    out("A", 0, names["G0"])
    out("B", 2, names["E16"])
    mul("E2", "E1", "E1")
    mul("E32", "E16", "E16", "B", 4)
    mul("G1", "G0", "E256", "A", 8)
    mul("E512", "E256", "E256")
    mul("a1", "G0", "E1", "A", 1)
    mul("E4", "E2", "E2")
    mul("E64", "E32", "E32", "B", 8)
    mul("E48", "E32", "E16", "B", 6)
    mul("G2", "G0", "E512", "A", 10)
    mul("G3", "G1", "E512", "A", 11)
    mul("E1024", "E512", "E512")
    mul("E8", "E4", "E4", "B", 1)
    mul("a2", "G0", "E2", "A", 2)
    mul("a3", "a1", "E2", "A", 3)
    mul("b2", "G1", "E2", "A", 9)
    mul("E128", "E64", "E64", "B", 16)
    mul("G4", "G0", "E1024", "A", 16)
    mul("E24", "E16", "E8", "B", 3)
    mul("E40", "E32", "E8", "B", 5)
    mul("E56", "E48", "E8", "B", 7)
    mul("E192", "E128", "E64", "B", 24)
    for row, a in ((4, "G0"), (5, "a1"), (6, "a2"), (7, "a3"), (12, "G1"), (13, "b2"), (14, "G2"), (15, "G3")):
        mul(None, a, "E4", "A", row)
    for row, a in ((17, "G1"), (18, "G2"), (19, "G3"), (20, "G4")):
        mul(None, a, "E1024", "A", row)
    for b2, nb in ((1, "E64"), (2, "E128"), (3, "E192")):
        for b1 in range(1, 8):
            mul(None, f"E{8*b1}", nb, "B", 8 * b2 + b1)
    if wr.ins or cur.ins:
        flush()
    return chunks


def kgen_reads():
    q = sub()
    for s in range(8):
        q(f"ds_read_b128 {v(FR+8*s,4)}, {v(V_TA)} offset:{32*TAB_ROW+32*s}")
        q(f"ds_read_b128 {v(FR+8*s+4,4)}, {v(V_TB)} offset:{32*s}")
    return q.ins


def kgen_mfma(rd):
    q = sub()
    for s in range(8):
        c = "0" if (rd == 0 and s == 0) else v(KD, 16)
        q(f"v_mfma_f32_32x32x16_bf16 {v(KD,16)}, {v(FR+8*s,4)}, {v(FR+8*s+4,4)}, {c}")
    return q.ins


P(f"v_lshrrev_b32 v4, s{S_T0}, {v(V_DT)}")
P(f"v_lshlrev_b32 v4, 16, v4")
P(f"v_mul_f32 v4, {f32(LOG2E)}, v4")
P(f"v_exp_f32 v4, v4")
P(f"v_readfirstlane_b32 s{S_DSK}, {v(V_EU1)}")
round_bf16(P, V_DT, 4)
P.add(kgen_head(0))
P.add(nonce_init())
ch = kgen_body(0)
fl = sub()
fl.wait("ux")
setflag(fl, S_F1)
nd = 0
FLAGAT = int(OPT.get("flagat", 6))
DMA0 = int(OPT.get("dma0", 3))
for i, c in enumerate(ch):
    P.add(c)
    if i == FLAGAT:
        if "fine" in OPT: stamp("pre flag1")
        P.add(fl.ins)
        if "fine" in OPT: stamp("post flag1")
    elif i >= DMA0:
        P.add(w_dma1(0, nd, "w1"))
        nd += 1
P.add(kgen_reads())
g = Gaps(kgen_mfma(0), 7)
for k in (0, 2, 4, 6):
    g.at(k, w_dma1(0, nd, "w1"))
    nd += 1
g.fill(kgen_head(1))
P.add(g.out())
stamp("kgen r0")
ch = kgen_body(1)
POLLAT = int(OPT.get("pollat", 3))
for i, c in enumerate(ch):
    P.add(c)
    if i == POLLAT:
        P.add(poll_issue(V_F1, 6))
    elif nd < 16:
        P.add(w_dma1(0, nd, "w1"))
        nd += 1
assert nd == 16
P.add(kgen_reads())
if "fine" in OPT: stamp("pre poll1")
P.add(poll_check(V_F1, 6))
if "fine" in OPT: stamp("post poll1")
g = Gaps(kgen_mfma(1), 6)
P(f"s_mov_b32 m0, s{S_UXM}")
for j in range(4):
    q = sub()
    q(f"s_mov_b32 s{S_T0}, {j*(16*14336-1024)}")
    o = f" offset:{1024*j}" if j else ""
    q(f"buffer_load_dwordx4 {v(V_UXL)}, {srd(SRD_WS)}, s{S_T0} offen{o} sc1 lds", tok="uxl")
    if j == 0:
        P.add(q.ins)
    else:
        g.at(2 * j - 2, q.ins)
tr1 = batch_tr(0)
P.wait("w1_2")
for k in range(8):
    g.at(k, tr1[3 * k:3 * k + 3])
P.add(g.out())
stamp("kgen r1")
P(f"v_and_b32 v4, 15, {v(V_LANE)}")
P(f"v_lshrrev_b32 v5, 4, {v(V_LANE)}")
P(f"v_lshl_add_u32 v6, v5, 3, v4")
P(f"v_sub_u32 v6, 39, v6")
P(f"v_and_b32 v7, 1, v6")
P(f"v_mul_u32_u24 v7, {CS-2}, v7")
P(f"v_lshl_add_u32 v6, v6, 1, v7")
P(f"s_lshr_b32 s{S_T0}, s{S_V}, 1")
P(f"s_andn2_b32 s{S_T3}, 1, s{S_V}")
P(f"s_mul_i32 s{S_T2}, s{S_T0}, {2*CS}")
P(f"s_lshl_b32 s{S_T1}, s{S_T3}, 8")
P(f"s_add_u32 s{S_T2}, s{S_T2}, s{S_T1}")
P(f"s_add_u32 s{S_T2}, s{S_T2}, {L_KC}")
P(f"v_add_u32 {v(V_KA+3)}, s{S_T2}, v6")
toff = {0: (0, 0), 1: (0, 1), 2: (0, 2), 3: (0, 3), 4: (1, 0), 5: (1, 2), 6: (2, 0), 7: (3, 0), 8: (4, 0), 9: (5, 0), 10: (6, 0), 11: (7, 0)}
P(f"ds_write2_b32 {v(V_TW)}, {v(KD)}, {v(KD+1)} offset0:0 offset1:1")
P(f"ds_write2_b32 {v(V_TW)}, {v(KD+2)}, {v(KD+3)} offset0:2 offset1:3")
for j in range(4, 12):
    qq, r = toff[j]
    P(f"ds_write_b32 {v(V_TW)}, {v(KD+j)} offset:{4*(r + 264*qq)}")
for k in range(3):
    P(f"v_add_u32 {v(V_KA+k)}, {64*(48-16*k)}, {v(V_KA+3)}")
P(f"v_lshlrev_b32 v6, 1, v4")
P(f"v_sub_u32 v6, v6, v5")
P(f"s_lshl_b32 s{S_T1}, s{S_T3}, 4")
P(f"s_add_u32 s{S_T1}, s{S_T1}, 17")
P(f"v_add_u32 v6, s{S_T1}, v6")
P(f"s_mov_b32 s{S_T2}, {L_UX}")
P("s_waitcnt lgkmcnt(0)")
P("s_barrier")
if "fine" in OPT: stamp("T barrier")
EG = 208
for c2 in range(2):
    for e in range(9):
        P(f"ds_read2st64_b32 {v(EG+18*c2+2*e,2)}, {v(GA+e)} offset0:{114*c2} offset1:{114*c2+57}")
b2 = batch_dma(1, "w2")
b2[3] = waitq("t0_3") + b2[3]
b2 = singles(b2)
P.add(b2.pop(0))
for rr in range(4):
    P(f"v_bfe_u32 v7, v6, 2, 2")
    P(f"v_xor_b32 v7, s{S_T0}, v7")
    P(f"v_lshl_add_u32 v7, v6, 2, v7")
    P(f"v_lshl_add_u32 {v(V_UA+rr)}, v7, 4, s{S_T2}")
    if rr < 3:
        P(f"v_subrev_u32 v6, 4, v6")
P.add(b2.pop(0))
P(f"v_lshlrev_b32 v6, 4, v0")
KO = 192
VB = 48


def bfrag(rr, e):
    return VB + 32 * rr + 4 * e


def b_loads(lo, hi):
    z = sub()
    for rr in range(4):
        for a in range(lo, hi):
            z(f"ds_read_b128 {v(bfrag(rr,a),4)}, {v(V_UA+rr)} offset:{2048*a}")
    return z.ins


for c2 in range(2):
    b = EG + 18 * c2
    for e in range(9):
        P(f"v_add_f32 {v(b+2*e)}, {v(b+2*e)}, {v(b+2*e+1)}")
    P(f"v_cndmask_b32 {v(b+16)}, {v(b+16)}, 0, s[{S_M255}:{S_M255+1}]")
    for s_ in range(2):
        o = KO + 8 * c2 + 4 * s_
        for i in range(4):
            P(f"v_cvt_pk_bf16_f32 {v(o+i)}, {v(b+2*(s_+2*i))}, {v(b+2*(s_+2*i+1))}")
    if c2 == 1:
        P(f"v_add_u32 v7, {2*CS}, v6")
    for s_ in range(2):
        P(f"ds_write_b128 {v(6+c2)}, {v(KO+8*c2+4*s_,4)} offset:{L_KC+s_*CS}", tok="kc")
    if c2 == 0:
        P.add(waitq("w1_3") + tr1[24:])
    P.add(b2.pop(0))
if "dumpk" in OPT:
    P(f"s_lshl_b32 s{S_T0}, s{S_W}, 13")
    P(f"s_add_u32 s{S_T0}, s{S_T0}, {WS_DBG}")
    P(f"buffer_store_dwordx4 {v(KO,4)}, v6, {srd(SRD_WS)}, s{S_T0} offen")
    P(f"s_add_u32 s{S_T0}, s{S_T0}, 4096")
    P(f"buffer_store_dwordx4 {v(KO+8,4)}, v6, {srd(SRD_WS)}, s{S_T0} offen")
stamp("expanded")
P.wait("uxl")
P.wait("kc")
P("s_barrier")
stamp("conv start")
ea = sub()
ea(f"v_lshrrev_b32 v6, 1, v5")
ea(f"v_lshl_add_u32 v6, v4, 1, v6")
ea(f"s_lshl_b32 s{S_T2}, s{S_V}, 11")
ea(f"s_add_u32 s{S_T2}, s{S_T2}, {L_UX+2048}")
ea(f"v_lshl_add_u32 v6, v6, 6, s{S_T2}")
ea(f"v_bfe_u32 v4, v4, 1, 2")
ea(f"v_and_b32 v5, 1, v5")
ea(f"v_lshl_add_u32 v7, v4, 4, v6")
ea(f"v_lshl_add_u32 {v(V_EU)}, v5, 3, v7")
ea(f"v_xor_b32 {v(V_EU1)}, 16, {v(V_EU)}")
ea(f"v_or_b32 v5, 2, v5")
ea(f"v_xor_b32 v4, v4, v5")
ea(f"v_lshl_add_u32 {v(V_EXP)}, v4, 4, v6")
eb = sub()
eb(f"s_mul_i32 s{S_ACTW}, s{S_V}, 14336")
eb(f"v_add_u32 {v(V_EXR)}, s{S_ACTW}, {v(V_L16)}")
eb(f"s_lshl_b32 s{S_T2}, s{S_V}, 10")
eb(f"v_add_u32 {v(V_EXW)}, s{S_T2}, {v(V_L16)}")
eb(f"s_mul_i32 s{S_T3}, s{S_W}, {PROW}")
eb(f"s_add_u32 s{S_T3}, s{S_T3}, {WS_P}")
eb(f"v_add_u32 {v(V_PST)}, s{S_T3}, {v(V_EXW)}")
eb(f"s_lshl_b32 s{S_C}, s{S_DSK}, 16")
eb(f"s_and_b32 s{S_D}, s{S_DSK}, 0xffff0000")

CA = [176, 192]
ET = 208


def afrag(rr, a):
    return 128 + 32 * rr + 4 * a


def a_loads(rr, lo, hi):
    z = sub()
    for a in range(lo, hi):
        k = a // 2
        off = 16 * (11 - rr - 8 * (a - 2 * k))
        z(f"ds_read2_b32 {acc(afrag(rr,a),2)}, {v(V_KA+k)} offset0:{off} offset1:{off+1}")
        z(f"ds_read2_b32 {acc(afrag(rr,a)+2,2)}, {v(V_KA+k)} offset0:{off+2} offset1:{off+3}")
    return z.ins


def conv_mfmas(gen):
    m = sub()
    first = set()
    na = 4 if gen == 0 else 8
    order = []
    for rr in range(4):
        pairs = [(a, e) for a in range(na) for e in range(na) if 4 * gen <= a + e < 4 * gen + 4]
        pairs.sort(key=lambda ae: (max(ae), ae))
        order += [(rr, a, e) for a, e in pairs]
    if gen == 1:
        order.sort(key=lambda t: (0 if max(t[1], t[2]) < 4 else 1))
    for rr, a, e in order:
        c = a + e - 4 * gen
        d = CA[gen] + 4 * c
        cc = v(d, 4) if c in first else "0"
        first.add(c)
        m(f"v_mfma_f32_16x16x32_bf16 {v(d,4)}, {acc(afrag(rr,a),4)}, {v(bfrag(rr,e),4)}, {cc}")
    return m.ins


UU, XX, YY, TT, WW, HO = ET, ET + 4, ET + 8, ET + 24, ET + 32, ET + 36


def conv_pre(gen):
    q = sub()
    q(f"ds_read_b64 {v(UU,2)}, {v(V_EU)} offset:{8192*gen}")
    q(f"ds_read_b64 {v(UU+2,2)}, {v(V_EU1)} offset:{8192*gen}")
    q(f"ds_read_b128 {v(XX,4)}, {v(V_EXP)} offset:{8192*gen}")
    r = sub()
    for c2 in range(2):
        for i in range(2):
            r(f"v_lshlrev_b32 {v(TT+4*c2+2*i)}, 16, {v(UU+2*c2+i)}")
            r(f"v_and_b32 {v(TT+4*c2+2*i+1)}, 0xffff0000, {v(UU+2*c2+i)}")
    for c2, sm in ((0, S_C), (1, S_D)):
        for i in range(4):
            r(f"v_mul_f32 {v(TT+4*c2+i)}, s{sm}, {v(TT+4*c2+i)}")
    for j in range(4):
        r(f"v_cvt_pk_bf16_f32 {v(WW+j)}, {v(TT+j)}, {v(TT+4+j)}")
    for j in range(4):
        r(f"v_lshlrev_b32 {v(TT+2*j)}, 16, {v(WW+j)}")
        r(f"v_and_b32 {v(TT+2*j+1)}, 0xffff0000, {v(WW+j)}")
    return q.ins, r.ins


def conv_xchg(gen):
    w_, b_, r_ = sub(), sub(), sub()
    for c in range(4):
        w_(f"ds_write_b128 {v(V_EXW)}, {v(CA[gen]+4*c,4)} offset:{(4096 if gen else 14336)*c}", tok=f"xw{gen}")
    b_.wait(f"xw{gen}")
    b_("s_barrier")
    for w in range(4):
        r_(f"ds_read_b128 {v(YY+4*w,4)}, {v(V_EXR)} offset:{1024*w}", tok=f"xr{gen}")
    return w_.ins, b_.ins, r_.ins


def conv_post(gen):
    q = sub()
    for c2 in range(2):
        for i in range(2):
            q(f"v_pk_add_f32 {v(YY+8*c2+2*i,2)}, {v(YY+8*c2+2*i,2)}, {v(YY+8*c2+4+2*i,2)}")
    for j in range(4):
        q(f"v_cvt_pk_bf16_f32 {v(WW+j)}, {v(YY+j)}, {v(YY+8+j)}")
    for j in range(4):
        q(f"v_lshlrev_b32 {v(YY+2*j)}, 16, {v(WW+j)}")
        q(f"v_and_b32 {v(YY+2*j+1)}, 0xffff0000, {v(WW+j)}")
    for j in range(4):
        q(f"v_pk_add_f32 {v(YY+2*j,2)}, {v(YY+2*j,2)}, {v(TT+2*j,2)}")
    for j in range(4):
        q(f"v_cvt_pk_bf16_f32 {v(WW+j)}, {v(YY+2*j)}, {v(YY+2*j+1)}")
    for j in range(4):
        q(f"v_lshlrev_b32 {v(YY+8+2*j)}, 16, {v(XX+j)}")
        q(f"v_and_b32 {v(YY+8+2*j+1)}, 0xffff0000, {v(XX+j)}")
    for j in range(4):
        q(f"v_lshlrev_b32 {v(YY+2*j)}, 16, {v(WW+j)}")
        q(f"v_and_b32 {v(YY+2*j+1)}, 0xffff0000, {v(WW+j)}")
    for j in range(4):
        q(f"v_pk_add_f32 {v(YY+2*j,2)}, {v(YY+2*j,2)}, {v(YY+8+2*j,2)}")
    h = HO + 4 * gen
    for j in range(4):
        q(f"v_cvt_pk_bf16_f32 {v(h+j)}, {v(YY+2*j)}, {v(YY+2*j+1)}")
    q(f"s_mov_b32 s{S_T0}, {PGEN*gen}")
    q(f"buffer_store_dwordx4 {v(h,4)}, {v(V_PST)}, {srd(SRD_WS)}, s{S_T0} offen sc1", tok=f"h{gen}")
    return q.ins


V_WF = 19
V_F4 = 20
ad = sub()
ad(f"v_mov_b32 {v(V_NONCE)}, 1")
flg_lanes(ad, 4, 10)
ad(f"s_lshl_b32 s{S_T0}, s{S_V}, 13")
ad(f"s_add_u32 s{S_F2}, s{S_F2}, s{S_T0}")
ad(f"s_lshl_b32 s{S_T0}, s{S_FH}, 12")
ad(f"s_add_u32 s{S_F2}, s{S_F2}, s{S_T0}")
ad(f"s_add_u32 s{S_F2}, s{S_F2}, {WS_C}")
NFL = len(ad.ins)
ad(f"s_lshr_b32 s{S_T0}, s{S_TB}, 2")
ad(f"s_bfe_u32 s{S_REP}, s{S_W}, 0x20003")
ad(f"s_lshl3_add_u32 s{S_T0}, s{S_T0}, s{S_REP}")
ad(f"s_lshl2_add_u32 s{S_T0}, s{S_T0}, s{S_V}")
ad(f"s_lshl_b32 s{S_T0}, s{S_T0}, 8")
ad(f"s_add_u32 s{S_T0}, s{S_T0}, {WS_C}")
ad(f"v_mov_b32 {v(V_F2)}, 0x7ff00000")
ad(f"v_writelane_b32 {v(V_F2)}, s{S_T0}, 0")
ad(f"s_add_u32 s{S_T0}, s{S_T0}, 4096")
ad(f"v_writelane_b32 {v(V_F2)}, s{S_T0}, 1")
ad(f"s_lshl2_add_u32 s{S_T2}, s{S_DB}, s{S_V}")
ad(f"s_lshl2_add_u32 s{S_T3}, s{S_T2}, s{S_REP}")
ad(f"s_lshl_b32 s{S_T3}, s{S_T3}, 8")
ad(f"s_add_u32 s{S_T3}, s{S_T3}, {WS_C + 896*256}")
ad(f"v_mov_b32 {v(V_F4)}, 0x7ff00000")
ad(f"v_writelane_b32 {v(V_F4)}, s{S_T3}, 0")
ad(f"s_mul_i32 s{S_T1}, s{S_V}, 56")
ad(f"s_mul_i32 s{S_T2}, s{S_T2}, {14*4096}")
ad(f"s_add_u32 s{S_T2}, s{S_T2}, {WS_WF}")
ad(f"v_add_u32 {v(V_WF)}, s{S_T2}, {v(V_L16)}")
ad(f"s_lshl_b32 s{S_HR}, s{S_DB}, 11")
for i in range(1, 7):
    ad(f"s_add_u32 s{S_HR+i}, s{S_HR}, {2048*i}")
    ad(f"s_sub_u32 s{S_T3}, s{S_HR+i}, 14336")
    ad(f"s_min_u32 s{S_HR+i}, s{S_HR+i}, s{S_T3}")
V_A = 17
ad(f"v_lshrrev_b32 v5, 4, {v(V_LANE)}")
ad(f"v_and_b32 v6, 15, {v(V_LANE)}")
ad(f"v_mul_u32_u24 v4, {PROW}, v5")
ad(f"v_lshl_add_u32 v4, v6, 4, v4")
ad(f"s_mul_i32 s{S_T1}, s{S_T1}, {PROW}")
ad(f"s_lshl_b32 s{S_T0}, s{S_TB}, 8")
ad(f"s_add_u32 s{S_T0}, s{S_T0}, s{S_T1}")
ad(f"s_add_u32 s{S_T0}, s{S_T0}, {WS_P}")
ad(f"v_add_u32 {v(V_A)}, s{S_T0}, v4")
ad(f"v_add_u32 {v(V_A+1)}, {4*PROW-1024}, {v(V_A)}")
ad1 = ad

def act_dma(gen):
    o = []
    for i in range(7):
        q = sub()
        q(f"s_add_u32 m0, s{S_ACTW if gen == 0 else S_Z}, s{S_HR+i}")
        q(f"s_mul_i32 s{S_WOFF}, s{S_HR+i}, {8*PROW//2048}")
        for k in range(2):
            of = f" offset:{1024*k}" if k else ""
            q(f"buffer_load_dwordx4 {v(V_A+k)}, {srd(SRD_WS)}, s{S_WOFF} offen{of} sc1 lds", tok=f"act{gen}")
        o.append(q.ins)
    return o


V_BR, V_S2, V_HST = 21, 22, 24
V_LF, V_LR = 28, 29
V_RES = 27
V_OST, V_RR, V_RW, V_HL, V_P3 = 40, 41, 42, 44, 45
SEL = 176
CSA = [180, 184]
ad = sub()
ad(f"v_add_u32 {v(V_F2)}, 0x8000, {v(V_F2)}")
ad(f"v_and_b32 v4, 31, {v(V_LANE)}")
ad(f"v_lshrrev_b32 v5, 5, {v(V_LANE)}")
ad(f"v_lshlrev_b32 v5, 10, v5")
ad(f"v_lshl_add_u32 {v(V_BR)}, v4, 2, v5")
ad(f"s_lshl_b32 s{S_T0}, s{S_TB}, 10")
ad(f"s_mul_i32 s{S_T1}, s{S_DB}, {S2REP}")
ad(f"s_add_u32 s{S_T0}, s{S_T0}, s{S_T1}")
ad(f"s_add_u32 s{S_T0}, s{S_T0}, {WS_S2}")
ad(f"v_lshl_add_u32 {v(V_S2)}, v4, 3, s{S_T0}")
ad(f"s_mov_b32 s{S_PERM}, 0x03020302")
ad(f"v_lshrrev_b32 v5, 4, {v(V_LANE)}")
ad(f"v_and_b32 v6, 15, {v(V_LANE)}")
ad(f"v_and_b32 v4, 1, v5")
ad(f"v_mul_u32_u24 v4, 57344, v4")
ad(f"v_lshl_add_u32 v4, v6, 4, v4")
ad(f"v_lshrrev_b32 v7, 1, v5")
ad(f"v_lshl_add_u32 v4, v7, 8, v4")
ad(f"s_mul_i32 s{S_T0}, s{S_TB}, {8*57344}")
ad(f"s_lshl_b32 s{S_T1}, s{S_FB}, 2")
ad(f"s_add_u32 s{S_T1}, s{S_T1}, s{S_V}")
ad(f"s_lshl_b32 s{S_T2}, s{S_T1}, 10")
ad(f"s_add_u32 s{S_T0}, s{S_T0}, {WS_H}")
ad(f"s_add_u32 s{S_T2}, s{S_T2}, s{S_T0}")
ad(f"v_add_u32 {v(V_HST)}, s{S_T2}, v4")
ad(f"s_mul_i32 s{S_T2}, s{S_FH}, 57344")
ad(f"s_add_u32 s{S_T0}, s{S_T0}, s{S_T2}")
ad(f"s_add_u32 s{S_T0}, s{S_T0}, s{S_ACTW}")
ad(f"v_add_u32 {v(V_HL)}, s{S_T0}, {v(V_L16)}")
ad(f"s_lshl_b32 s{S_T0}, s{S_TB}, 13")
ad(f"s_add_u32 s{S_T0}, s{S_T0}, {WS_C + 65536}")
ad(f"s_mul_i32 s{S_T1}, s{S_T1}, 37")
ad(f"s_and_b32 s{S_T1}, s{S_T1}, 0x600")
ad(f"s_add_u32 s{S_F3}, s{S_T0}, s{S_T1}")
ad(f"s_lshl1_add_u32 s{S_T1}, s{S_V}, s{S_FH}")
ad(f"s_lshl_b32 s{S_T1}, s{S_T1}, 8")
ad(f"s_add_u32 s{S_T0}, s{S_T0}, s{S_T1}")
ad(f"v_mov_b32 {v(V_P3)}, 0x7ff00000")
ad(f"v_writelane_b32 {v(V_P3)}, s{S_T0}, 0")
ad(f"s_add_u32 s{S_FW}, s{S_RING}, 32768")
ad(f"s_lshl_b32 s{S_R2}, s{S_V}, 14")
ad(f"s_add_u32 s{S_Z}, s{S_ACTW}, {L_ACT[1]}")
ad(f"v_add_u32 {v(V_LF)}, s{S_FW}, {v(V_L16)}")
ad(f"v_add_u32 {v(V_LR)}, s{S_R2}, {v(V_L16)}")
ad2 = ad
se = sub()
se(f"v_bfe_u32 v4, {v(V_LANE)}, 2, 2")
se(f"v_bfe_u32 v5, {v(V_LANE)}, 4, 1")
se(f"v_mov_b32 v6, 0x3f803f80")
se(f"v_cmp_eq_u32 vcc, v4, v5")
for i in range(4):
    se(f"v_cndmask_b32 {v(SEL+i)}, 0, v6, vcc")


def cs_mfma(ks0, ks1):
    q = sub()
    for ks in range(ks0, ks1):
        for m in range(2):
            c = "0" if ks == 0 else v(CSA[m], 4)
            q(f"v_mfma_f32_16x16x32_bf16 {v(CSA[m],4)}, {v(SEL,4)}, {acc(wfrag(m,ks),4)}, {c}")
    return q.ins


def pin_spread(g, start, ins, per=2):
    for i, x in enumerate(ins):
        g.at(int(start + i // per), [x])
    return int(start + (len(ins) + per - 1) // per)


mA, mB = conv_mfmas(0), conv_mfmas(1)
NOV = 22
bl = b_loads(0, 4)


def ab(rr):
    al = a_loads(rr, 0, 4)
    o = []
    for a in range(4):
        o += [bl[4 * rr + a]] + al[2 * a:2 * a + 2]
    return o


P.add(ab(0))
P.add(ea.ins)
P.add(eb.ins)
g = Gaps(mA + mB[:NOV], 2)
pr, pv = conv_pre(0)
l1 = ab(1) + ab(2) + pr + ab(3)
for i, x in enumerate(l1):
    g.at(i * 28 // len(l1), [x])
pin_vm(g, 1, b2, 3.2)
nb = b_loads(4, 8)
newl = []
for rr in range(4):
    newl += nb[4 * rr:4 * rr + 4] + a_loads(rr, 4, 8)
pin_spread(g, 30, newl[:12], per=1)
g.fill(pv, start=26, end=50)
xw, xb, xr = conv_xchg(0)
for i in range(4):
    g.at(42 + 2 * i, [xw[i]])
g.at(52, xb)
g.at(53, xr)
pin_spread(g, 54, newl[12:20], per=1)
P.add(g.out())
P.add(conv_post(0))
stamp("genA stored")
g = Gaps(mB[NOV:] + cs_mfma(0, 11), 2)
NB_ = len(mB) - NOV
pin_spread(g, 0, newl[20:], per=1)
fl = sub()
fl.wait("h0")
addcnt(fl, S_F2)
fl(f"s_add_u32 s{S_F2}, s{S_F2}, 0x8000")
g.at(int(OPT.get("fa", 30)), fl.ins)
tr2 = batch_tr(1)
for i in range(4):
    pin_spread(g, 10 + 9 * i, waitq(f"w2_{i}") + tr2[8 * i:8 * i + 8], per=1)
b3 = batch_dma(2, "w3")
for i in range(4):
    b3[i] = waitq(f"t1_{i}") + b3[i]
pin_vm(g, 24, b3, 3.3)
pr, pv = conv_pre(1)
pin_spread(g, 48, pr, per=1)
newl[-1].tok = "lastfrag"
bq = sub()
bq.wait("lastfrag")
bq("s_barrier")
g.at(46, bq.ins)
x2 = sub()
x2(f"v_add_u32 {v(V_EXW)}, {L_KC}, {v(V_EXW)}")
x2(f"s_lshl_b32 s{S_T0}, s{S_V}, 12")
x2(f"s_add_u32 s{S_T0}, s{S_T0}, {L_KC}")
x2(f"v_add_u32 {v(V_EXR)}, s{S_T0}, {v(V_L16)}")
PA1, PA2, PAC = int(OPT.get("pa1", 54)), int(OPT.get("pa2", 68)), int(OPT.get("pac", 80))
e = g.fill(ad1.ins[:NFL], start=0, end=int(OPT.get("fa", 30)))
e = g.fill(ad1.ins[NFL:NFL + 10], start=e, end=PA1)
e = g.fill(ad1.ins[NFL + 10:] + se.ins + x2.ins, start=e, end=PAC - 1)
g.fill(pv, start=max(e, 56), end=NB_ + 12)
g.at(PA1, poll_issue(V_F2, 7))
g.at(PA2, poll_issue(V_F2, 23))
g.at(PAC, stq("pre pollA") + poll_check2(V_F2, 7, 23, "3", f"s{S_E28}") + stq("post pollA"))
a0 = singles(act_dma(0))
na = (103 - PAC) // 3 + 1
pin_vm(g, PAC, a0[:na], 3)
xw, xb, xr = conv_xchg(1)
for i in range(4):
    g.at(NB_ + 2 + 2 * i, [xw[i]])
g.at(NB_ + 12, xb)
g.at(NB_ + 13, xr)
P.add(g.out())
p1 = conv_post(1)
P.add(sprinkle(p1, [(4 + 14 * i, u) for i, u in enumerate(a0[na:na + 3])]))
stamp("genB stored")
g = Gaps(cs_mfma(11, 24), 4)
g.at(1, poll_issue(V_F4, 25))
tr3 = batch_tr(2)
t3 = []
for i in (2, 3, 0, 1):
    t3 += waitq(f"w3_{i}") + tr3[8 * i:8 * i + 8]
pin_spread(g, 0, t3, per=4)
e = pin_vm(g, 0, a0[na + 3:] + [waitq("t2_3") + w_dma(6, 0, 8, "w4"), w_dma(6, 1, 12, "w4")], 2)
fl = sub()
fl.wait("h1")
addcnt(fl, S_F2)
g.fill(ad2.ins, start=9)
P.add(g.out())
P.add(fl.ins)
stamp("gap work done")

GACC = [64, 96]
BF = 128
NBF = 8
MB = 160
KC_ = [14, 9]
STT = 60
EPT = 164
HP = 172
WDV = 188
RESR = [46, 48, 50, 52]
A_CS = [224, 228]
GC0 = -2.0 * math.sqrt(2.0 / math.pi) * LOG2E


def st_issue(J, atomic=None):
    q = sub()
    t = STT + 2 * (J & 1)
    atomic = False if atomic is None else atomic
    if atomic:
        q(f"v_mov_b64 {v(t,2)}, 0")
        q(f"buffer_atomic_add_x2 {v(t,2)}, {v(V_S2)}, {srd(SRD_WS)}, 0 offen offset:{256*J} sc0")
    else:
        q(f"buffer_load_dwordx2 {v(t,2)}, {v(V_S2)}, {srd(SRD_WS)}, 0 offen offset:{256*J} sc1")
    return q.ins


def st_check(J):
    q = sub()
    t = STT + 2 * (J & 1)
    slow, done = label("sslow"), label("sdone")
    q(f"v_cmp_ne_u32 vcc, s{S_NONCE}, {v(t+1)}")
    q(f"s_cbranch_vccnz {slow}")
    q(f"{done}:")
    spin(TAIL, slow, done, st_issue(J, True), t + 1, sleep=1)
    return q.ins


def st_final(J):
    q = sub()
    kc = KC_[J & 1]
    t = STT + 2 * (J & 1)
    q(f"v_perm_b32 {v(MB)}, {v(t)}, {v(t)}, s{S_PERM}")
    q(f"v_lshlrev_b32 {v(t+1)}, 16, {v(t)}")
    q(f"v_rcp_f32 {v(t)}, {v(t+1)}")
    q(f"v_mul_f32 {v(kc+2)}, {v(t+1)}, {v(t+1)}")
    q(f"v_mul_f32 {v(kc)}, {f32(GC0)}, {v(t)}")
    q(f"v_mul_f32 {v(kc+1)}, {v(t)}, {v(t)}")
    q(f"v_mul_f32 {v(kc+1)}, {v(kc+1)}, {v(kc)}")
    q(f"v_mul_f32 {v(kc+1)}, {f32(0.044715)}, {v(kc+1)}")
    return q.ins


SP = Prog()
spn = [1]


def sps():
    if STAMPS and "lite" in OPT:
        SP(f"s_memrealtime s[{S_STAMP}:{S_STAMP+1}]")
        SP("s_waitcnt lgkmcnt(0)")
        SP(f"v_writelane_b32 v255, s{S_STAMP}, {spn[0]}")
        spn[0] += 1


SP("L_spare:")
SP("s_waitcnt vmcnt(0)")
SP("s_barrier")
sps()
SP(f"s_and_b32 s{S_T0}, s{S_W}, 6")
SP(f"s_lshl_b32 s{S_T0}, s{S_T0}, 1")
SP(f"s_bfe_u32 s{S_T1}, s{S_W}, 0x20003")
SP(f"s_add_u32 s{S_TB}, s{S_T0}, s{S_T1}")
SP(f"s_lshr_b32 s{S_T0}, s{S_TB}, 2")
SP(f"s_lshl2_add_u32 s{S_T0}, s{S_FH}, s{S_T0}")
SP(f"s_lshl3_add_u32 s{S_T0}, s{S_T0}, s{S_T1}")
SP(f"s_lshl2_add_u32 s{S_T0}, s{S_T0}, s{S_V}")
SP(f"s_lshl_b32 s{S_T0}, s{S_T0}, 8")
SP(f"s_add_u32 s{S_T0}, s{S_T0}, {WS_C}")
SP(f"v_and_b32 v4, 1, {v(V_LANE)}")
SP(f"v_lshl_add_u32 v10, v4, 12, s{S_T0}")
SP(f"s_mul_i32 s{S_T1}, s{S_V}, 56")
SP(f"v_mov_b32 {v(V_NONCE)}, 7")
flg_lanes(SP, 4)
SP(f"v_lshrrev_b32 v5, 4, {v(V_LANE)}")
SP(f"v_and_b32 v6, 15, {v(V_LANE)}")
SP(f"v_mul_u32_u24 v4, {PROW}, v5")
SP(f"v_lshl_add_u32 v4, v6, 4, v4")
SP(f"s_mul_i32 s{S_T1}, s{S_T1}, {PROW}")
SP(f"s_lshl_b32 s{S_T0}, s{S_TB}, 8")
SP(f"s_add_u32 s{S_T0}, s{S_T0}, s{S_T1}")
SP(f"s_mul_i32 s{S_T1}, s{S_FH}, {PGEN}")
SP(f"s_add_u32 s{S_T0}, s{S_T0}, s{S_T1}")
SP(f"s_add_u32 s{S_T0}, s{S_T0}, {WS_P}")
SP(f"v_add_u32 v11, s{S_T0}, v4")
SP(f"v_lshl_add_u32 v4, v6, 2, v5")
SP(f"s_lshl_b32 s{S_T0}, s{S_V}, 9")
SP(f"v_lshl_add_u32 v12, v4, 3, s{S_T0}")
SP(f"v_lshlrev_b32 v13, 3, {v(V_LANE)}")
SP(f"v_mov_b32 v14, 0x3f803f80")
SP(f"s_sub_u32 s{S_T1}, s{S_W}, 224")
SP(f"s_lshr_b32 s{S_T0}, s{S_V}, 1")
SP(f"s_lshl1_add_u32 s{S_T1}, s{S_T1}, s{S_T0}")
SP(f"s_mul_i32 s{S_T1}, s{S_T1}, {35*128}")
SP(f"s_add_u32 s{S_T1}, s{S_T1}, {3584*128}")
SP(f"v_min_u32 v4, 34, {v(V_LANE)}")
SP(f"v_lshl_add_u32 v4, v4, 7, s{S_T1}")
for k in range(4):
    SP(f"global_load_dword {v(60+k)}, v4, s[{S_PFB}:{S_PFB+1}]")
    if k < 3:
        SP(f"v_add_u32 v4, {2240*128}, v4")
SP(f"s_sub_u32 s{S_T1}, s{S_W}, 224")
SP(f"s_cmp_ge_u32 s{S_T1}, 28")
SP("s_cbranch_scc1 L_sp_nowf")
SP(f"s_lshr_b32 s{S_DB}, s{S_T1}, 2")
SP(f"s_and_b32 s{S_T2}, s{S_T1}, 3")
SP(f"s_lshl_b32 s{S_F3}, s{S_T1}, 10")
SP(f"s_add_u32 s{S_F3}, s{S_F3}, {WS_C + 896*256}")
SP(f"s_mul_i32 s{S_T1}, s{S_T1}, {14*4096}")
SP(f"s_add_u32 s{S_T1}, s{S_T1}, {WS_WF}")
SP(f"v_add_u32 v20, s{S_T1}, {v(V_L16)}")
SP(f"v_lshrrev_b32 v6, 3, {v(V_LANE)}")
SP(f"v_and_b32 v7, 6, v6")
SP(f"v_and_b32 v5, 7, {v(V_LANE)}")
SP(f"v_xor_b32 v7, v7, v5")
SP(f"v_mul_u32_u24 v6, 896, v6")
SP(f"v_lshl_add_u32 v6, v7, 4, v6")
SP(f"s_mul_i32 s{S_T0}, s{S_T2}, {448*896}")
SP(f"s_lshl_b32 s{S_T1}, s{S_DB}, 7")
SP(f"s_add_u32 s{S_T0}, s{S_T0}, s{S_T1}")
SP(f"v_add_u32 v48, s{S_T0}, v6")
for k in range(1, 4):
    SP(f"v_add_u32 {v(48+k)}, {k*(7168-1024)}, v48")
SP(f"s_lshl_b32 s{S_R2}, s{S_V}, 14")
SP(f"s_add_u32 s{S_R2}, s{S_R2}, 4096")
for i in range(4):
    SP(f"s_lshl2_add_u32 s{S_HR+i}, s{S_V}, {i}")
    SP(f"s_min_u32 s{S_HR+i}, s{S_HR+i}, 13")
    SP(f"s_lshl1_add_u32 s{S_T0}, s{S_DB}, s{S_HR+i}")
    SP(f"s_sub_u32 s{S_T1}, s{S_T0}, 14")
    SP(f"s_cmp_ge_u32 s{S_T0}, 14")
    SP(f"s_cselect_b32 s{S_T0}, s{S_T1}, s{S_T0}")
    SP(f"s_mul_i32 s{S_WOFF}, s{S_T0}, {32*896}")
    SP(f"s_add_u32 m0, s{S_R2}, {4096*i}")
    SP(f"s_lshl_b32 s{S_HR+i}, s{S_HR+i}, 12")
    for k in range(4):
        of = f" offset:{1024*k}" if k else ""
        SP(f"buffer_load_dwordx4 {v(48+k)}, {srd(SRD_WD)}, s{S_WOFF} offen{of} lds", tok=f"sw{i}")
SP(f"v_lshrrev_b32 v4, 4, {v(V_LANE)}")
SP(f"v_lshrrev_b32 v6, 1, v4")
SP(f"v_lshlrev_b32 v6, 4, v6")
SP(f"v_and_b32 v7, 1, v4")
SP(f"v_lshl_add_u32 v6, v7, 2, v6")
SP(f"v_bfe_u32 v7, {v(V_LANE)}, 2, 2")
SP(f"v_add_u32 v6, v6, v7")
SP(f"v_bfe_u32 v7, v6, 1, 2")
SP(f"v_lshlrev_b32 v6, 7, v6")
SP(f"v_and_b32 v5, 3, {v(V_LANE)}")
SP(f"v_lshl_add_u32 v6, v5, 3, v6")
for rt in range(4):
    SP(f"v_xor_b32 v5, {rt}, v7")
    SP(f"v_lshl_add_u32 v5, v5, 5, v6")
    SP(f"v_add_u32 {v(52+rt)}, s{S_R2}, v5")
for i in range(4):
    SP.wait(f"sw{i}")
    if i in (0, 3): sps()
    for rt in range(4):
        for h in range(2):
            SP(f"ds_read_b64_tr_b16 {v(64+16*i+4*rt+2*h,2)}, {v(52+rt)} offset:{4096*i+1024*h}")
    for rt in range(4):
        SP(f"buffer_store_dwordx4 {v(64+16*i+4*rt,4)}, v20, {srd(SRD_WS)}, s{S_HR+i} offen offset:{1024*rt} sc1")
SP("s_waitcnt vmcnt(0)")
addcnt(SP, S_F3)
sps()
SP("L_sp_nowf:")
sps()
SP("s_mov_b64 vcc, 3")
spin(SP, "L_sp_c", "L_sp_d", poll_issue(10, 7), 7, sleep=int(OPT.get('spsleep', 2)), exp=f"s{S_E28}")
SP("L_sp_d:")
sps()
for k in range(14):
    SP(f"s_mov_b32 s{S_T0}, {k*4*PROW}")
    SP(f"buffer_load_dwordx4 {v(64+4*k,4)}, v11, {srd(SRD_WS)}, s{S_T0} offen sc1")
SS = 16
for j in range(8):
    SP(f"v_mov_b32 {v(SS+j)}, 0")
for k in range(14):
    for j in range(4):
        SP(f"v_dot2c_f32_bf16 {v(SS+j)}, {v(64+4*k+j)}, v14")
    for j in range(4):
        SP(f"v_dot2c_f32_bf16 {v(SS+4+j)}, {v(64+4*k+j)}, {v(64+4*k+j)}")
for o in (0, 4):
    SP(f"v_permlane32_swap_b32 {v(SS+o)}, {v(SS+o+2)}")
    SP(f"v_permlane32_swap_b32 {v(SS+o+1)}, {v(SS+o+3)}")
for o in (0, 4):
    SP(f"v_add_f32 {v(SS+o)}, {v(SS+o)}, {v(SS+o+2)}")
    SP(f"v_add_f32 {v(SS+o+1)}, {v(SS+o+1)}, {v(SS+o+3)}")
for o in (0, 4):
    SP(f"v_permlane16_swap_b32 {v(SS+o)}, {v(SS+o+1)}")
SP(f"v_add_f32 {v(SS)}, {v(SS)}, {v(SS+1)}")
SP(f"v_add_f32 {v(SS+1)}, {v(SS+4)}, {v(SS+5)}")
sps()
SP(f"ds_write_b64 v12, {v(SS,2)}")
SP("s_waitcnt lgkmcnt(0)")
SP("s_barrier")
SP(f"s_cmp_lg_u32 s{S_V}, 0")
SP("s_cbranch_scc1 L_fin")
t = 24
for w in range(4):
    SP(f"ds_read_b64 {v(t+2*w,2)}, v13 offset:{512*w}")
SP(f"s_lshl_b32 s{S_T0}, s{S_TB}, 1")
SP(f"s_add_u32 s{S_T0}, s{S_T0}, s{S_FH}")
SP(f"s_lshl_b32 s{S_T0}, s{S_T0}, 9")
SP(f"s_add_u32 s{S_T0}, s{S_T0}, {WS_S2}")
SP(f"v_pk_add_f32 {v(t,2)}, {v(t,2)}, {v(t+2,2)}")
SP(f"v_pk_add_f32 {v(t+4,2)}, {v(t+4,2)}, {v(t+6,2)}")
SP(f"v_pk_add_f32 {v(t,2)}, {v(t,2)}, {v(t+4,2)}")
SP(f"v_mul_f32 {v(t)}, s{S_K0}, {v(t)}")
SP(f"v_mul_f32 {v(t+1)}, s{S_K0}, {v(t+1)}")
SP(f"v_fma_f32 {v(t+1)}, -{v(t)}, {v(t)}, {v(t+1)}")
SP(f"v_max_f32 {v(t+1)}, 0, {v(t+1)}")
round_bf16(SP, t + 1, t + 1)
SP(f"v_add_f32 {v(t+1)}, {f32(1e-5)}, {v(t+1)}")
round_bf16(SP, t + 1, t + 1)
SP(f"v_sqrt_f32 {v(t+1)}, {v(t+1)}")
SP(f"v_cvt_pk_bf16_f32 {v(t)}, {v(t+1)}, -{v(t)}")
SP(f"v_mov_b32 {v(t+1)}, s{S_NONCE}")
for r_ in range(7):
    SP(f"buffer_store_dwordx2 {v(t,2)}, v13, {srd(SRD_WS)}, s{S_T0} offen sc1")
    SP(f"s_add_u32 s{S_T0}, s{S_T0}, {S2REP}")
sps()
SP(f"s_cmp_lg_u32 s{S_W}, 255")
SP("s_cbranch_scc1 L_fin")
SP(f"v_lshlrev_b32 v4, 25, {v(V_LANE)}")
SP(f"buffer_store_dword {v(t+1)}, v4, {srd(SRD_WS)}, 0 offen sc1")
SP("s_branch L_fin")


def b_read(J, ks):
    q = sub()
    b = BF + 4 * (ks % NBF)
    q(f"ds_read2st64_b32 {v(b,2)}, {v(V_BR)} offset0:{8*ks} offset1:{8*ks+1}")
    q(f"ds_read2st64_b32 {v(b+2,2)}, {v(V_BR)} offset0:{8*ks+2} offset1:{8*ks+3}", tok=f"b{J}_{ks}")
    return q.ins


def g1_gaps(J, extra_after=None):
    m = sub()
    g0 = GACC[J & 1]
    for ks in range(28):
        for mm in range(2):
            d = g0 + 16 * mm
            c = "0" if ks == 0 else v(d, 16)
            m(f"v_mfma_f32_32x32x16_bf16 {v(d,16)}, {acc(wfrag(mm,ks),4)}, {v(BF+4*(ks%NBF),4)}, {c}")
    for mm in range(2):
        d = g0 + 16 * mm
        m(f"v_mfma_f32_32x32x16_bf16 {v(d,16)}, {acc(A_CS[mm],4)}, {v(MB,4)}, {v(d,16)}")
    g = Gaps(m.ins, 6)
    for ks in range(28):
        k2 = ks + NBF - 1
        if k2 < 28:
            r = b_read(J, k2)
            g.at(2 * ks, [r[0]])
            g.at(2 * ks + 1, [r[1]])
        if ks % 3 == 2 and ks + 1 < 28:
            w = sub()
            w.wait(f"b{J}_{min(ks+3,27)}")
            g.at(2 * ks + 1, w.ins)
    return g


def next_tile_reads(g, J, delta, first=42):
    q = sub()
    q(f"v_add_u32 {v(V_BR)}, {delta}, {v(V_BR)}")
    g.at(first, q.ins)
    for ks in range(NBF - 1):
        old = max(k for k in range(28) if k % NBF == ks)
        r = b_read(J, ks)
        at = max(2 * old + 1, first + 1)
        g.at(at, r[:1])
        g.at(min(at + 1, 57), r[1:])


def g1_epi(J):
    q = sub()
    g = GACC[J & 1]
    kc = KC_[J & 1]
    T = EPT
    for j0 in range(0, 16, 4):
        js = range(j0, j0 + 4)
        for j in js:
            q(f"v_mul_f32 {v(T+j-j0)}, {v(g+j)}, {v(g+j)}")
        for j in js:
            q(f"v_fma_f32 {v(T+j-j0)}, {v(T+j-j0)}, {v(kc+1)}, {v(kc)}")
        for j in js:
            q(f"v_mul_f32 {v(T+j-j0)}, {v(T+j-j0)}, {v(g+j)}")
        for j in js:
            q(f"v_exp_f32 {v(T+j-j0)}, {v(T+j-j0)}")
            q(f"v_mul_f32 {v(T+4+j-j0)}, {v(g+j)}, {v(g+16+j)}")
        for j in js:
            q(f"v_fma_f32 {v(T+j-j0)}, {v(T+j-j0)}, {v(kc+2)}, {v(kc+2)}")
        for j in js:
            q(f"v_rcp_f32 {v(T+j-j0)}, {v(T+j-j0)}")
        for j in js:
            q(f"v_mul_f32 {v(T+4+j-j0)}, {v(T+4+j-j0)}, {v(T+j-j0)}")
        q(f"v_cvt_pk_bf16_f32 {v(HP+(j0//2)%4)}, {v(T+4)}, {v(T+5)}")
        q(f"v_cvt_pk_bf16_f32 {v(HP+(j0//2)%4+1)}, {v(T+6)}, {v(T+7)}")
        if j0 in (4, 12):
            q2 = j0 // 8
            q(f"buffer_store_dwordx4 {v(HP,4)}, {v(V_HST)}, {srd(SRD_WS)}, 0 offen offset:{512*q2} sc1", tok=f"H{J}")
    q(f"v_add_u32 {v(V_HST)}, {2*57344}, {v(V_HST)}")
    return q.ins


def flag3(J):
    q = sub()
    q.wait(f"H{J}")
    addcnt(q, S_F3)
    q(f"s_add_u32 s{S_F3}, s{S_F3}, 2048")
    return q.ins


WDREG = {}
for i in range(4):
    for rt in range(4):
        WDREG[i, rt] = v(WDV + 16 * i + 4 * rt, 4)
        WDREG[10, rt] = acc(240 + 4 * rt, 4)
        WDREG[11, rt] = v([176, 180, 184, 56][rt], 4)
        WDREG[12, rt] = acc(4 * rt, 4)
        WDREG[13, rt] = acc(16 + 4 * rt, 4)
for i in range(6):
    for rt in range(4):
        WDREG[4 + i, rt] = acc(128 + 16 * i + 4 * rt, 4)
KORD = [0, 1, 2, 3, 10, 11, 12, 13, 4, 5, 6, 7, 8, 9]


def wdr(ft, rt):
    return WDREG[ft, rt]


def wd_load(ft):
    q = sub()
    q(f"s_mov_b32 s{S_WOFF}, {ft*4096}")
    for k in range(4):
        of = f" offset:{1024*k}" if k else ""
        q(f"buffer_load_dwordx4 {wdr(ft,k)}, {v(V_WF)}, {srd(SRD_WS)}, s{S_WOFF} offen{of} sc1")
    return q.ins


def wd_dma(ft):
    q = sub()
    sbase, slot = (S_FW, ft - 4) if ft < 6 else (S_R2, ft - 6)
    q(f"s_add_u32 m0, s{sbase}, {slot*4096}")
    q(f"s_mov_b32 s{S_WOFF}, {ft*4096}")
    for k in range(4):
        of = f" offset:{1024*k}" if k else ""
        q(f"buffer_load_dwordx4 {v(V_WF)}, {srd(SRD_WS)}, s{S_WOFF} offen{of} sc1 lds", tok=f"wd{ft}")
    return q.ins


def wd_read(ft):
    q = sub()
    va, slot = (V_LF, ft - 4) if ft < 6 else (V_LR, ft - 6)
    for rt in range(4):
        q(f"ds_read_b128 {wdr(ft,rt)}, {v(va)} offset:{4096*slot+1024*rt}")
    return q.ins


def res_read(J):
    q = sub()
    q(f"ds_read2st64_b32 {v(RESR[J],2)}, {v(V_RES)} offset0:0 offset1:1", tok=f"res{J}")
    q(f"v_add_u32 {v(V_RES)}, {128 if J % 2 == 0 else L_ACT[1]-128}, {v(V_RES)}")
    return q.ins


ad = sub()
ad(f"v_lshrrev_b32 v4, 4, v0")
ad(f"v_and_b32 v5, 15, v0")
ad(f"v_lshlrev_b32 v6, 9, v5")
ad(f"v_lshl_add_u32 v6, v4, 2, v6")
ad(f"s_lshl_b32 s{S_T0}, s{S_DB}, 13")
ad(f"s_lshl_b32 s{S_T1}, s{S_FH}, 6")
ad(f"s_add_u32 s{S_T0}, s{S_T0}, s{S_T1}")
ad(f"v_add_u32 {v(V_RES)}, s{S_T0}, v6")
ad(f"v_lshrrev_b32 v6, 2, v4")
ad(f"v_and_b32 v7, 3, v4")
ad(f"v_lshl_add_u32 v6, v6, 4, v7")
ad(f"v_mul_u32_u24 v6, 896, v6")
ad(f"v_lshl_add_u32 v6, v5, 3, v6")
ad(f"s_lshr_b32 s{S_T0}, s{S_TB}, 2")
ad(f"s_lshl_b32 s{S_T0}, s{S_T0}, 8")
ad(f"s_add_u32 s{S_T0}, s{S_T0}, s{S_T1}")
ad(f"s_and_b32 s{S_T1}, s{S_TB}, 3")
ad(f"s_lshl_b32 s{S_T1}, s{S_T1}, 2")
ad(f"s_add_u32 s{S_T0}, s{S_T0}, s{S_T1}")
ad(f"s_mul_i32 s{S_T0}, s{S_T0}, 896")
ad(f"s_lshl_b32 s{S_T1}, s{S_DB}, 7")
ad(f"s_add_u32 s{S_T0}, s{S_T0}, s{S_T1}")
ad(f"v_add_u32 {v(V_OST)}, s{S_T0}, v6")
ad(f"v_mul_u32_u24 v6, 272, v5")
ad(f"v_lshl_add_u32 v6, v4, 4, v6")
ad(f"v_add_u32 {v(V_RR)}, {L_R}, v6")
ad(f"v_lshrrev_b32 v4, 4, {v(V_LANE)}")
ad(f"v_mul_u32_u24 v6, 272, v4")
ad(f"v_lshl_add_u32 v6, v5, 4, v6")
ad(f"s_mul_i32 s{S_T0}, s{S_V}, 4352")
ad(f"s_add_u32 s{S_T0}, s{S_T0}, {L_R}")
ad(f"v_add_u32 {v(V_RW)}, s{S_T0}, v6")
flg_lanes(ad, 2)
ad(f"v_add_u32 {v(V_A)}, {PGEN}, {v(V_A)}")
ad(f"v_add_u32 {v(V_A+1)}, {PGEN}, {v(V_A+1)}")

for i in range(1, 4):
    P(f"v_mov_b32 {v(MB+i)}, 0")
    P(f"v_accvgpr_write_b32 {acc(A_CS[0]+i)}, 0")
    P(f"v_accvgpr_write_b32 {acc(A_CS[1]+i)}, 0")
P.wait("act0")
P("s_waitcnt lgkmcnt(0)")
P("s_barrier")
stamp("gemm1 start")
for ks in range(NBF - 1):
    P.add(b_read(0, ks))

def hreg(J, ft):
    n = KORD.index(ft)
    if J in (0, 3):
        return acc(32 + 4 * n, 4)
    if J == 1:
        return v(64 + 4 * n if n < 8 else 128 + 4 * (n - 8), 4)
    return v(96 + 4 * n if n < 8 else 152 + 4 * (n - 8), 4)


def h_loads(J):
    o = []
    for s_ in KORD:
        q = sub()
        of = " offset:1024" if s_ % 2 else ""
        q(f"buffer_load_dwordx4 {hreg(J,s_)}, {v(V_HL)}, {srd(SRD_WS)}, s{S_HR+s_//2} offen{of} sc1")
        o.append(q.ins)
    if J < 3:
        q = sub()
        q(f"v_add_u32 {v(V_HL)}, {2*57344}, {v(V_HL)}")
        o[-1] += q.ins
    return o


def p3_next():
    q = sub()
    q(f"v_add_u32 {v(V_P3)}, 2048, {v(V_P3)}")
    return q.ins


g = g1_gaps(0)
g.at(0, poll_check(V_F4, 25))
pin_vm(g, 0, [wd_load(0), wd_load(1), wd_load(2), wd_load(3)], 2.3)
t4 = w_tr(6, 0, 8, "t4") + w_tr(6, 1, 12, "t4")
g.at(17, waitq("w4"))
pin_spread(g, 17, t4, per=2)
e = g.fill(ad.ins, start=0)
assert e < 24, e
g.at(28, waitq("t4") + cs_mfma(24, 28))
cf = sub()
for m in range(2):
    round_bf16(cf, 54, CSA[m])
    cf(f"v_sub_f32 v55, {v(CSA[m])}, v54")
    cf(f"v_cvt_pk_bf16_f32 v54, v54, v55")
    cf(f"v_accvgpr_write_b32 {acc(A_CS[m])}, v54")
g.fill(cf.ins, start=32, end=50)
g.at(int(OPT.get("pb1", 21)), poll_issue(V_F2, 23))
g.at(int(OPT.get("pb2", 37)), poll_issue(V_F2, 25))
g.at(int(OPT.get("st0", 36)), st_issue(0))
pin_vm(g, 38, [wd_dma(4), wd_dma(5)], 2.3)
g.at(53, stq("t0 pre st") + st_check(0) + stq("t0 post st"))
g.fill(st_final(0), start=53, end=55)
g.at(57, stq("t0 pre pB") + poll_check2(V_F2, 23, 25, "3", f"s{S_E28}") + stq("t0 post pB"))
next_tile_reads(g, 1, 128)
P.add(g.out())
stamp("tile0")
g = g1_gaps(1)
e = pin_vm(g, 0, act_dma(1)[:2] + [st_issue(1)] + act_dma(1)[2:], 2)
pin_vm(g, e + 1, [wd_load(10)], 3)
g.at(43, res_read(0))
g.at(45, res_read(1))
g.at(40, st_check(1))
g.fill(st_final(1), start=41, end=54)
bq = sub()
bq.wait("act1")
bq.wait("res1")
bq("s_barrier")
BB = int(OPT.get("bb", 52))
g.at(BB, stq("t1 pre bar") + bq.ins + stq("t1 post bar"))
next_tile_reads(g, 2, L_ACT[1] - 128, first=BB)
e = g.fill(g1_epi(0), start=3)
print("tile 1: epilogue ends at gap", e, "tail", len(g.tail))
P.add(g.out())
stamp("tile1")
g = g1_gaps(2)
pin_vm(g, 0, [wd_dma(6), wd_dma(7), st_issue(2), wd_dma(8), wd_dma(9), wd_load(11), st_issue(3)], 2.5)
g.at(24, flag3(0))
g.at(49, st_check(2))
g.fill(st_final(2), start=50, end=54)
g.at(56, poll_issue(V_P3, 7))
next_tile_reads(g, 3, 128)
e = g.fill(g1_epi(1), start=3)
print("tile 2: epilogue ends at gap", e, "tail", len(g.tail))
P.add(g.out())
stamp("tile2")
g = g1_gaps(3)
T3S = float(OPT.get("t3s", 2.4))
e = pin_vm(g, 4, [wd_load(12), wd_load(13)], T3S)
g.at(int(OPT.get("f1", 21)), flag3(1))
g.at(48, st_check(3))
g.fill(st_final(3), start=49, end=54)
g.at(e - 1, stq("t3 pre p0") + poll_check(V_P3, 7) + stq("t3 post p0") + p3_next())
pin_vm(g, e, h_loads(0), T3S)
g.at(int(OPT.get("p1", 47)), poll_issue(V_P3, 7))
g.at(52, res_read(2))
g.at(54, res_read(3))
e = g.fill(g1_epi(2), start=2)
print("tile 3: epilogue ends at gap", e, "tail", len(g.tail))
P.add(g.out())
stamp("tile3")
P.add(waitq("wd9") + wd_read(4) + wd_read(5))
ep = g1_epi(3)
h1 = h_loads(1)
NE = int(OPT.get("ne", 3))
P.add(sprinkle(ep, [(int(OPT.get("f2", 120)), flag3(2))] + [(68, poll_check(V_P3, 7) + p3_next())] + [(69 + 22 * i, h1[i]) for i in range(NE)]))
stamp("epi3")

OA = [8, 48]
OA = [224, 96]
RT = 176


def g2_mfma(J):
    m = sub()
    for ft in KORD:
        for rt in range(4):
            d = acc(OA[J & 1] + 4 * rt, 4)
            c = "0" if ft == 0 else d
            m(f"v_mfma_f32_16x16x32_bf16 {d}, {wdr(ft,rt)}, {hreg(J,ft)}, {c}")
    return m.ins


RTMP = [28, 32, 36, 12]


def red_write(J):
    q = sub()
    for rt in range(4):
        q(f"ds_write_b128 {v(V_RW)}, {acc(OA[J&1]+4*rt,4)} offset:{(J&1)*R_SZ + rt*1088}")
    return q.ins


def red_bar():
    q = sub()
    q("s_waitcnt lgkmcnt(0)")
    q("s_barrier")
    return q.ins


def red_read(J):
    q = sub()
    for w in range(4):
        q(f"ds_read_b128 {v(RTMP[w],4)}, {v(V_RR)} offset:{(J&1)*R_SZ + w*4352}")
    return q.ins


def red_fin(J):
    q = sub()
    a, b, c, d = RTMP
    for i in range(2):
        q(f"v_lshlrev_b32 {v(16+2*i)}, 16, {v(RESR[J]+i)}")
        q(f"v_and_b32 {v(17+2*i)}, 0xffff0000, {v(RESR[J]+i)}")
    for i in range(4):
        q(f"v_add_f32 {v(a+i)}, {v(a+i)}, {v(b+i)}")
    for i in range(4):
        q(f"v_add_f32 {v(c+i)}, {v(c+i)}, {v(d+i)}")
    for i in range(4):
        q(f"v_add_f32 {v(a+i)}, {v(a+i)}, {v(16+i)}")
    for i in range(4):
        q(f"v_add_f32 {v(a+i)}, {v(a+i)}, {v(c+i)}")
    for i in range(2):
        q(f"v_cvt_pk_bf16_f32 {v(20+i)}, {v(a+2*i)}, {v(a+2*i+1)}")
    q(f"s_mov_b32 s{S_T0}, {(1024*(J>>1) + 128*(J&1))*896}")
    q(f"buffer_store_dwordx2 v[20:21], {v(V_OST)}, {srd(SRD_OUT)}, s{S_T0} offen {OPT.get('ost', '').replace('_', ' ')}")
    return q.ins


for J in range(4):
    g = Gaps(g2_mfma(J), 2)
    if J > 0:
        pin_spread(g, 4, red_write(J - 1), per=1)
        g.at(16, red_bar())
        pin_spread(g, 17, red_read(J - 1), per=1)
        g.fill(red_fin(J - 1), start=28)
    if J == 0:
        pin_vm(g, 0, h1[NE:], float(OPT.get("hs1", 4)))
        for i, x in enumerate(wd_read(6) + wd_read(7) + wd_read(8) + wd_read(9)):
            g.at(1 + 2 * i, [x])
        g.at(int(OPT.get("p2a", 18)), poll_issue(V_P3, 7))
        g.at(int(OPT.get("p2b", 36)), poll_issue(V_P3, 23))
        g.at(int(OPT.get("f3", 42)), flag3(3))
        bq = sub()
        bq.wait("res3")
        bq("s_barrier")
        g.at(52, bq.ins)
        g.at(55, poll_check2(V_P3, 7, 23, "1", f"s{S_E14}") + p3_next())
    if J == 1:
        pin_vm(g, 0, h_loads(2), float(OPT.get("hs", 3.5)))
        g.at(int(OPT.get("p3a", 14)), poll_issue(V_P3, 7))
        g.at(int(OPT.get("p3b", 32)), poll_issue(V_P3, 23))
        g.at(55, poll_check2(V_P3, 7, 23, "1", f"s{S_E14}"))
    if J == 2:
        pin_vm(g, 0, h_loads(3), float(OPT.get("hs3", 2)))
    P.add(g.out())
    stamp(f"g2 tile{J}")
P.add(red_write(3))
P.add(red_bar())
P.add(red_read(3))
P.add(red_fin(3))
stamp("end")

if "hold" in OPT:
    if "cls" in OPT:
        P(f"s_and_b32 s98, s{S_W}, 7")
        P(f"s_cmp_lg_u32 s98, {OPT['cls']}")
        P("s_cbranch_scc1 L_fin")
    P("L_hold:")
    P("s_memrealtime s[98:99]")
    P("s_waitcnt lgkmcnt(0)")
    P("s_sub_u32 s98, s98, s100")
    P("s_cmp_lt_u32 s98, 4000")
    P("s_cbranch_scc1 L_hold")
P("L_fin:")
if STAMPS:
    P(f"s_lshl_b32 s{S_T0}, s{S_W}, 2")
    P(f"s_add_u32 s{S_T0}, s{S_T0}, s{S_V}")
    P(f"s_lshl_b32 s{S_T0}, s{S_T0}, 8")
    P(f"s_add_u32 s{S_T0}, s{S_T0}, {WS_DBG + 0x800000}")
    P(f"v_lshlrev_b32 v4, 2, v1")
    P(f"buffer_store_dword v255, v4, {srd(SRD_WS)}, s{S_T0} offen")
if "dbgout" in OPT:
    P(f"s_cmp_ge_u32 s{S_W}, 224")
    P("s_cbranch_scc1 L_end")
    P(f"v_readlane_b32 s{S_T0}, v255, 0")
    P(f"s_not_b32 s{S_T0}, s{S_T0}")
    P(f"v_writelane_b32 v255, s{S_T0}, 15")
    P("s_mov_b64 exec, 0xffff")
    P(f"v_lshlrev_b32 v4, 2, v1")
    P("global_atomic_umax v4, v255, s[60:61]")
P("L_end:")
P("s_endpgm")

res = finalize(P.ins, verbose=True) + finalize(TAIL.ins) + finalize(SP.ins)
if "report" in OPT:
    report_waits(finalize(P.ins))
launch = f"; @launch kernel={KN} grid" if ("list" in OPT or STAMPS) else "; @launch grid"
hdr = f"""; Fused pre-LN S4D conv + GEGLU FFN, one persistent launch (generated by my own script)
{launch}=(256,1,1) block=(256,1,1) lds={LDS_SIZE}
.amdgcn_target "amdgcn-amd-amdhsa--gfx950"
.text
.globl {KN}
.p2align 8
.type {KN},@function
{KN}:
"""
ftr = f"""
.p2align 8
.fill 64, 4, 0xbf800000
L_codeend:
.section .rodata,"a"
.p2align 6
.amdhsa_kernel {KN}
  .amdhsa_next_free_vgpr 512
  .amdhsa_next_free_sgpr 102
  .amdhsa_accum_offset 256
  .amdhsa_group_segment_fixed_size 0
  .amdhsa_kernarg_size 112
  .amdhsa_user_sgpr_count 2
  .amdhsa_user_sgpr_kernarg_segment_ptr 1
  .amdhsa_system_sgpr_workgroup_id_x 1
.end_amdhsa_kernel
"""
open(OUTF, "w").write(hdr + text_of(res) + ftr)
src = open(__file__).read()
a = src.index("# ---------------- workspace layout")
b = src.index("# ---------------- LDS layout")
open("layout.py", "w").write(src[a:b] + "\nSTAMP_NAMES = " + repr(stamp_names) + "\nSPIN_NAMES = " + repr(spin_names) + "\n")
```

```python
import sys, math, struct
from asmgen import *

NAME = "sequential_preLN__ssm_conv_s4d__geglu_ffn__prompt"
KN = NAME + "_kernel"
OPT = {}
for a in sys.argv[1:]:
    k, _, val = a.partition("=")
    OPT[k] = val if val else True
STAMPS = "stamps" in OPT
OUTF = OPT.get("out", "k10.s")
if "wdearly" not in OPT:
    OPT["wdlate"] = True


def f32(x):
    return "0x%08x" % struct.unpack("<I", struct.pack("<f", x))[0]


FS = 4
FREP = 0x9000
WS_EPOCH = 0
WS_F1 = 0x8000
WS_S2 = 0x54000
S2REP = 0x5000
WS_C = 0x80000
WS_UX = 0xD0000
WS_P = WS_UX + 256 * 14336
PROW = 4352
PGEN = 224 * PROW
WS_H = WS_P + 2 * PGEN
WS_WF = WS_H + 16 * 4 * 56 * 2048
WS_END = WS_WF + 392 * 4096
WS_DBG = 0x1000000
WS_SIZE = 0x2000000
LAYOUT = 5

CS = 4160
TAB_W = 14592
TAB_ROW = 272
L_KC = 58368
L_UX = 75008
L_EX = 0
L_RING = 98304
L_ACT = [0, 65536]
L_F = 131072
L_R = 65536
R_SZ = 17408
LDS_SIZE = 163840

S_W = 2
S_V = 4
S_T0, S_T1, S_T2, S_T3 = 5, 6, 7, 3
SRD_X, SRD_WS, SRD_WG, SRD_WU, SRD_WD, SRD_OUT = 8, 12, 16, 20, 24, 28
S_NONCE = 32
S_CNT = 33
S_EX = 34
S_LDT, S_DSK = 64, 65
S_TB, S_FB, S_FH, S_DB = 66, 67, 68, 69
S_A, S_B, S_C, S_D = 70, 72, 74, 76
S_RING = 78
S_WOFF = 79
S_K0 = 80
S_TAB = 81
S_F3 = 82
S_F1, S_F2 = 83, 84
S_M255 = 86
S_FW, S_R2 = 88, 89
S_ACTW = 90
S_UXO = 91
S_Z = 95
S_PFB = 88
S_HR = 36
S_E28, S_E14, S_CI = 46, 47, 85
S_UXM = 92
S_REP = 94
S_PERM = 93
S_STAMP = 96


def srd(n):
    return f"s[{n}:{n+3}]"


def v(n, w=1):
    return f"v{n}" if w == 1 else f"v[{n}:{n+w-1}]"


def acc(n, w=1):
    return f"a{n}" if w == 1 else f"a[{n}:{n+w-1}]"


P = Prog()
TAIL = Prog()
nstamp = [0]
stamp_names = []
spin_names = []
LITE = ("start", "conv start", "genA stored", "gemm1 start", "tile3", "end")
if "dbgout" in OPT:
    LITE = ("start", "x arrived", "ln1 done", "kgen r1", "conv start", "genA stored", "gemm1 start", "tile1", "tile3", "end")


def stamp(name, p=None):
    p = P if p is None else p
    p(f"; @ {name}")
    if OPT.get("hold", "").replace("_", " ") == name:
        p(f"s_memrealtime s[100:101]")
        p("s_waitcnt lgkmcnt(0)")
    if STAMPS and ("lite" not in OPT or name in LITE):
        k = nstamp[0]
        assert k < 32
        p(f"s_memrealtime s[{S_STAMP}:{S_STAMP+1}]")
        p(f"s_memtime s[{S_STAMP+2}:{S_STAMP+3}]")
        p("s_waitcnt lgkmcnt(0)")
        p(f"v_writelane_b32 v255, s{S_STAMP}, {k}")
        p(f"v_writelane_b32 v255, s{S_STAMP+2}, {32+k}")
        nstamp[0] += 1
        stamp_names.append(name)


def stq(name):
    q = sub()
    if "dbg" in OPT:
        stamp(name, q)
    return q.ins


lblc = [0]


def label(prefix):
    lblc[0] += 1
    return f"L_{prefix}_{lblc[0]}"


def poll_issue(vaddr, vtmp):
    q = sub()
    q(f"v_mov_b32 {v(vtmp)}, 0")
    q(f"buffer_atomic_add {v(vtmp)}, {v(vaddr)}, {srd(SRD_WS)}, 0 offen sc0")
    return q.ins


def spin(t, name, done, reissue, vtag, sleep=2, exp=None):
    t(f"{name}:")
    t(f"s_mov_b32 s{S_CNT}, 0")
    t(f"{name}_l:")
    t("s_mov_b64 exec, vcc")
    t(f"s_sleep {sleep}")
    t.add(reissue)
    t("s_waitcnt vmcnt(0)")
    t(f"v_cmp_ne_u32 vcc, {exp or f's{S_NONCE}'}, {v(vtag)}")
    t("s_mov_b64 exec, -1")
    if STAMPS and "lite" in OPT:
        spin_names.append(name)
        t(f"s_add_u32 s{S_STAMP}, s{S_CNT}, 1")
        t(f"v_writelane_b32 v255, s{S_STAMP}, {10+len(spin_names)-1}")
    t(f"s_cbranch_vccz {done}")
    t(f"s_add_u32 s{S_CNT}, s{S_CNT}, 1")
    t(f"s_cmp_lt_u32 s{S_CNT}, 0x40000")
    t(f"s_cbranch_scc1 {name}_l")
    t(f"s_branch {done}")


def poll_check(vaddr, vtmp, mask=None):
    q = sub()
    slow, done = label("slow"), label("pdone")
    exp = f"s{S_NONCE}" if vaddr == V_F1 else (f"s{S_E28}" if vaddr in (V_F2, 20) else f"s{S_E14}")
    q(f"v_cmp_ne_u32 vcc, {exp}, {v(vtmp)}")
    if vaddr == V_F1:
        q(f"s_cbranch_vccnz {slow}")
    else:
        mask = mask or ("3" if vaddr == V_F2 else "1")
        q(f"s_and_b64 vcc, vcc, {mask}")
        q(f"s_cbranch_scc1 {slow}")
    q(f"{done}:")
    spin(TAIL, slow, done, poll_issue(vaddr, vtmp), vtmp, exp=exp, sleep=1)
    return q.ins


def poll_check2(vaddr, v1, v2, mask, exp):
    q = sub()
    slow, done = label("slow"), label("pdone")
    q(f"v_cmp_ne_u32 vcc, {exp}, {v(v1)}")
    q(f"s_and_b64 vcc, vcc, {mask}")
    q(f"s_cbranch_scc0 {done}")
    q.cond(True)
    q(f"v_cmp_ne_u32 vcc, {exp}, {v(v2)}")
    q(f"s_and_b64 vcc, vcc, {mask}")
    q(f"s_cbranch_scc1 {slow}")
    q.cond(False)
    q(f"{done}:")
    spin(TAIL, slow, done, poll_issue(vaddr, v1), v1, exp=exp, sleep=1)
    return q.ins


def setflag(p, soff):
    p(f"buffer_atomic_swap {v(V_NONCE)}, {v(V_FLG)}, {srd(SRD_WS)}, s{soff} offen")


def addcnt(p, soff):
    p(f"buffer_atomic_add {v(V_NONCE)}, {v(V_FLG)}, {srd(SRD_WS)}, s{soff} offen")


def flg_lanes(p, n, sh=8, t1=4):
    p(f"v_lshrrev_b32 {v(t1)}, {n.bit_length()-1}, {v(V_LANE)}")
    p(f"v_min_u32 {v(t1)}, 1, {v(t1)}")
    p(f"v_lshlrev_b32 {v(t1)}, 30, {v(t1)}")
    p(f"v_lshl_add_u32 {v(V_FLG)}, {v(V_LANE)}, {sh}, {v(t1)}")


def waitq(tok):
    q = sub()
    q.wait(tok)
    return q.ins


def cmul(p, z, x, y):
    p(f"v_pk_mul_f32 {v(z,2)}, {v(x,2)}, {v(y,2)} op_sel:[0,0] op_sel_hi:[0,1]")
    p(f"v_pk_fma_f32 {v(z,2)}, {v(x,2)}, {v(y,2)}, {v(z,2)} op_sel:[1,1,0] op_sel_hi:[1,0,1] neg_lo:[1,0,0]")


def round_bf16(p, dst, src):
    p(f"v_cvt_pk_bf16_f32 {v(dst)}, {v(src)}, {v(src)}")
    p(f"v_and_b32 {v(dst)}, 0xffff0000, {v(dst)}")


V_LANE, V_NONCE, V_L16 = 1, 2, 3
V_FLG = 8
V_W = 9
V_TRA = 13
V_TA, V_TB, V_TW = 14, 15, 16
GA = 17
V_F1, V_UXL = 26, 27
V_KA = 28
V_UA = 32
V_EU, V_EXP, V_EXW, V_EXR, V_PST = 36, 37, 38, 39, 40
V_GW, V_GX, V_GR, V_S3 = 36, 37, 38, 39
V_EU1 = 41
V_DT = 42
V_F2 = 43
PR = 44
V_PF = 254

LOG2E = 1.4426950408889634

if OPT.get("hold") == "entry":
    P("s_memrealtime s[100:101]")
P(f"s_cmp_ge_u32 s{S_W}, 256")
P("s_cbranch_scc1 L_end")
P(f"s_load_dwordx16 s[36:51], s[0:1], 0")
P(f"s_load_dwordx8 s[52:59], s[0:1], 64")
P(f"s_load_dwordx4 s[60:63], s[0:1], 96")
if "nocpf" not in OPT:
    P(f"s_getpc_b64 s[{S_B}:{S_B+1}]")
    P("L_pc:")
    P(f"s_bfe_u32 s{S_T2}, s{S_W}, 0x30003")
    P(f"s_mul_i32 s{S_T2}, s{S_T2}, ((L_codeend-L_pc)/1024)*128")
    P(f"v_cmp_gt_u32 vcc, (L_codeend-L_pc)/1024, v0")
    P(f"s_add_u32 s{S_B}, s{S_B}, s{S_T2}")
    P(f"s_addc_u32 s{S_B+1}, s{S_B+1}, 0")
    P(f"v_lshlrev_b32 v6, 7, v0")
    P(f"s_and_saveexec_b64 s[{S_A}:{S_A+1}], vcc")
    P("s_cbranch_execz L_nocpf")
    P.cond(True)
    P(f"v_mov_b32 v7, s{S_B+1}")
    P(f"v_add_co_u32 v6, vcc, s{S_B}, v6")
    P(f"v_addc_co_u32 v7, vcc, 0, v7, vcc")
    P(f"global_load_dword v251, v[6:7], off")
    P.cond(False)
    P("L_nocpf:")
    P("s_mov_b64 exec, -1")
if STAMPS:
    P("v_mov_b32 v255, 0")
P(f"v_and_b32 {v(V_LANE)}, 63, v0")
P(f"v_lshrrev_b32 v4, 6, v0")
P(f"v_lshlrev_b32 {v(V_L16)}, 4, {v(V_LANE)}")
P(f"v_readfirstlane_b32 s{S_V}, v4")
P(f"v_mov_b32 v5, 0x7ff00000")
P(f"v_cmp_gt_u32 vcc, 56, {v(V_LANE)}")
P(f"s_lshl_b32 s{S_T0}, s{S_W}, 2")
P(f"s_add_u32 s{S_T0}, s{S_T0}, s{S_V}")
P(f"v_cndmask_b32 v4, v5, {v(V_L16)}, vcc")
P(f"s_mul_i32 s{S_T0}, s{S_T0}, 1792")
P(f"s_min_u32 s{S_T1}, s{S_W}, 223")
P(f"s_lshl_b32 s{S_T2}, s{S_T1}, 10")
P(f"v_lshl_add_u32 v6, v0, 2, s{S_T2}")
P(f"v_mov_b32 v7, 0")
P(f"s_lshl_b32 s{S_T1}, s{S_T1}, 2")
P(f"v_mov_b32 v56, s{S_T1}")
P(f"s_mov_b32 s{SRD_X+2}, 1835008")
P(f"s_mov_b32 s{SRD_X+3}, 0x00020000")
P(f"s_mov_b32 s{SRD_WS+2}, {WS_SIZE}")
P(f"s_mov_b32 s{SRD_WS+3}, 0x00020000")
P("s_waitcnt lgkmcnt(0)")
stamp("start")
P(f"s_mov_b64 s[{SRD_X}:{SRD_X+1}], s[36:37]")
XR = 48
P(f"buffer_load_dwordx4 {v(XR,4)}, v4, {srd(SRD_X)}, s{S_T0} offen")
P(f"buffer_load_dwordx4 {v(XR+4,4)}, v4, {srd(SRD_X)}, s{S_T0} offen offset:896")
for r, src, sz in ((SRD_WG, 52, 1605632), (SRD_WU, 54, 1605632), (SRD_WD, 56, 1605632), (SRD_OUT, 58, 1835008)):
    P(f"s_mov_b64 s[{r}:{r+1}], s[{src}:{src+1}]")
    P(f"s_mov_b32 s{r+2}, {sz}")
    P(f"s_mov_b32 s{r+3}, 0x00020000")
P(f"v_cmp_lt_u32 vcc, 7, {v(V_LANE)}")
P(f"v_mul_u32_u24 v4, {FREP}, {v(V_LANE)}")
P(f"s_lshr_b32 s{S_T0}, s{S_W}, 3")
P(f"s_mul_i32 s{S_T1}, s{S_T0}, 37")
P(f"v_cndmask_b32 {v(V_FLG)}, v4, v5, vcc")
P(f"s_lshr_b32 s{S_T1}, s{S_T1}, 8")
P(f"s_mul_i32 s{S_T2}, s{S_T1}, 7")
P(f"s_sub_u32 s{S_DB}, s{S_T0}, s{S_T2}")
P(f"s_and_b32 s{S_FH}, s{S_W}, 1")
P(f"s_and_b32 s{S_T2}, s{S_W}, 6")
P(f"s_lshl_b32 s{S_T2}, s{S_T2}, 1")
P(f"s_add_u32 s{S_TB}, s{S_T2}, s{S_T1}")
P(f"s_mul_i32 s{S_FB}, s{S_FH}, 7")
P(f"s_add_u32 s{S_FB}, s{S_FB}, s{S_DB}")
P(f"s_lshl_b32 s{S_RING}, s{S_V}, 13")
P(f"s_add_u32 s{S_RING}, s{S_RING}, {L_RING}")
P(f"s_mul_i32 s{S_TAB}, s{S_V}, {TAB_W}")
for _ in range(int(OPT.get("xd", 0))):
    P("s_nop 7")
P(f"s_mov_b64 s[{SRD_WS}:{SRD_WS+1}], s[62:63]")
for i in range(4):
    P(f"global_load_dword {v(PR+i)}, v6, s[{38+2*i}:{39+2*i}]")
P(f"global_load_dword {v(V_DT)}, v56, s[46:47]")
P(f"global_load_dword {v(V_EU1)}, v56, s[48:49]")
P(f"buffer_load_dword {v(V_NONCE)}, v7, {srd(SRD_WS)}, 0 offen sc1")
if "help" in OPT:
    P(f"s_and_b32 s{S_T0}, s{S_W}, 6")
    P(f"s_cmp_eq_u32 s{S_V}, 0")
    P(f"s_cselect_b32 s{S_T0}, 1, s{S_T0}")
    P(f"s_cmp_lg_u32 s{S_T0}, 0")
    P("s_cbranch_scc1 L_nohelp")
    P.raw(f"s_lshl1_add_u32 s{S_T0}, s{S_V}, s{S_W}")
    P.raw(f"s_mul_i32 s{S_T2}, s{S_T0}, 7168")
    P.raw(f"v_min_u32 v4, 55, {v(V_LANE)}")
    P.raw(f"v_lshlrev_b32 v4, 7, v4")
    P.raw(f"buffer_load_dword v244, v4, {srd(SRD_X)}, s{S_T2} offen")
    if OPT["help"] != "x":
        P.raw(f"s_min_u32 s{S_T0}, s{S_T0}, 223")
        P.raw(f"s_lshl_b32 s{S_T0}, s{S_T0}, 10")
        P.raw(f"v_and_b32 v4, 7, {v(V_LANE)}")
        P.raw(f"v_lshl_add_u32 v4, v4, 7, s{S_T0}")
        for i in range(4):
            P.raw(f"global_load_dword {v(245+i)}, v4, s[{38+2*i}:{39+2*i}]")
    P("L_nohelp:")
NOPF = "nopf" in OPT
if not NOPF:
    P(f"s_bitcmp1_b32 s{S_V}, 0")
    P(f"s_cselect_b64 s[{S_PFB}:{S_PFB+1}], s[54:55], s[52:53]")
    P(f"s_lshr_b32 s{S_T0}, s{S_V}, 1")
    P(f"s_lshl1_add_u32 s{S_T2}, s{S_W}, s{S_T0}")
    P(f"s_mul_i32 s{S_T0}, s{S_T2}, {7*128}")
    P(f"v_min_u32 v4, 6, {v(V_LANE)}")
    P(f"v_lshl_add_u32 v4, v4, 7, s{S_T0}")
    P(f"global_load_dword {v(V_PF)}, v4, s[{S_PFB}:{S_PFB+1}]")
    P(f"s_mul_i32 s{S_T0}, s{S_W}, 49")
    P(f"s_mul_i32 s{S_T2}, s{S_V}, 12")
    P(f"s_add_u32 s{S_T0}, s{S_T0}, s{S_T2}")
    P(f"v_min_u32 v4, 12, {v(V_LANE)}")
    P(f"v_add_lshl_u32 v252, v4, s{S_T0}, 7")
    if "wdlate" not in OPT:
        P(f"global_load_dword v253, v252, s[56:57]")
P(f"v_cmp_gt_u32 vcc, 32, {v(V_LANE)}")
P(f"v_mul_u32_u24 v4, 37, {v(V_LANE)}")
P(f"v_lshrrev_b32 v4, 9, v4")
P(f"v_cndmask_b32 {v(V_S3)}, v5, {v(V_L16)}, vcc")
P(f"v_mul_u32_u24 v4, {TAB_W-14*272}, v4")
P(f"v_mul_u32_u24 v6, 272, {v(V_LANE)}")
P(f"s_lshl_b32 s{S_T0}, s{S_V}, 2")
P(f"v_add3_u32 {v(V_GW)}, v4, v6, s{S_T0}")
P(f"v_add_u32 {v(V_GX)}, s{S_T0}, {v(V_GW)}")
P(f"s_lshl_b32 s{S_UXM}, s{S_V}, 12")
P(f"s_add_u32 s{S_UXM}, s{S_UXM}, {L_UX+2048}")
P(f"v_and_b32 v4, 48, {v(V_LANE)}")
P(f"v_add3_u32 {v(V_GR)}, v4, {v(V_L16)}, s{S_TAB}")
P(f"v_and_b32 v4, 31, {v(V_LANE)}")
P(f"v_lshrrev_b32 v6, 5, {v(V_LANE)}")
P(f"v_lshl_add_u32 v6, v6, 4, s{S_TAB}")
P(f"v_and_b32 v7, 28, {v(V_LANE)}")
P(f"v_lshl_add_u32 v7, v4, 5, v7")
P(f"v_add_u32 {v(V_TW)}, v6, v7")
P(f"v_mul_u32_u24 v7, {TAB_ROW}, v4")
P(f"v_add_u32 {v(V_TB)}, v6, v7")
P(f"v_min_u32 v4, 20, v4")
P(f"v_mul_u32_u24 v7, {TAB_ROW}, v4")
P(f"v_add_u32 {v(V_TA)}, v6, v7")
P(f"s_lshl2_add_u32 s{S_CI}, s{S_W}, s{S_V}")
P(f"s_lshl_b32 s{S_CI}, s{S_CI}, 8")
P(f"s_add_u32 s{S_CI}, s{S_CI}, {WS_C}")
P(f"v_lshlrev_b32 v250, 25, {v(V_LANE)}")
P(f"s_mul_i32 s{S_UXO}, s{S_W}, 14336")
P(f"s_mul_i32 s{S_T0}, s{S_V}, 3584")
P(f"s_add_u32 s{S_UXO}, s{S_UXO}, s{S_T0}")
P(f"s_add_u32 s{S_UXO}, s{S_UXO}, {WS_UX}")
P(f"s_lshl_b32 s{S_T0}, s{S_V}, 8")
P(f"s_add_u32 s{S_T0}, s{S_T0}, s{S_W}")
P(f"s_mul_i32 s{S_T0}, s{S_T0}, {FS}")
P(f"s_add_u32 s{S_F1}, s{S_T0}, {WS_F1}")
P(f"v_lshrrev_b32 v4, 2, {v(V_LANE)}")
P(f"v_mul_u32_u24 v4, 3584, v4")
P(f"v_and_b32 v6, 3, {v(V_LANE)}")
P(f"v_lshl_add_u32 v4, v6, 4, v4")
P(f"s_lshl_b32 s{S_T0}, s{S_FB}, 8")
P(f"s_lshl_b32 s{S_T1}, s{S_V}, 6")
P(f"s_add_u32 s{S_T0}, s{S_T0}, s{S_T1}")
P(f"v_add_u32 {v(V_W)}, s{S_T0}, v4")
for k in range(1, 4):
    P(f"v_add_u32 {v(V_W+k)}, {k*(57344-1024)}, {v(V_W)}")
P(f"v_and_b32 v4, 32, {v(V_LANE)}")
P(f"v_lshlrev_b32 v4, 4, v4")
P(f"v_and_b32 v7, 12, {v(V_LANE)}")
P(f"v_lshl_add_u32 v4, v7, 4, v4")
P(f"v_and_b32 v7, 16, {v(V_LANE)}")
P(f"v_lshl_add_u32 v4, v7, 1, v4")
P(f"v_lshl_add_u32 v4, v6, 3, v4")
P(f"v_add_u32 {v(V_TRA)}, s{S_RING}, v4")
P(f"s_mov_b32 s{S_K0}, {L_KC+4096-L_UX}")
P(f"s_movk_i32 s{S_T2}, 128")
P(f"s_mul_i32 s{S_T0}, s{S_W}, 293")
P(f"s_bfe_u32 s{S_T0}, s{S_T0}, 0x2000e")
P(f"s_lshl_b32 s{S_T0}, s{S_T0}, 10")
P(f"s_lshr_b32 s{S_F2}, s{S_T0}, 2")
P(f"s_and_b32 s{S_REP}, s{S_W}, 7")
P(f"s_mul_i32 s{S_REP}, s{S_REP}, {FREP}")
P(f"s_add_u32 s{S_REP}, s{S_REP}, {WS_F1}")
P(f"s_add_u32 s{S_T0}, s{S_T0}, s{S_REP}")
P(f"v_lshl_add_u32 {v(V_F1)}, v0, 2, s{S_T0}")
P(f"v_lshrrev_b32 v4, 2, {v(V_LANE)}")
P(f"v_add_u32 v4, s{S_T1}, v4")
P(f"v_mul_u32_u24 v7, 14336, v4")
P(f"v_lshrrev_b32 v4, 4, {v(V_LANE)}")
P(f"v_xor_b32 v6, v6, v4")
P(f"v_lshl_add_u32 v7, v6, 4, v7")
P(f"s_lshl_b32 s{S_T0}, s{S_W}, 6")
P(f"s_add_u32 s{S_T0}, s{S_T0}, {WS_UX}")
P(f"v_add_u32 {v(V_UXL)}, s{S_T0}, v7")
P(f"v_bfe_u32 v6, {v(V_LANE)}, 1, 2")
P(f"v_mul_u32_u24 v6, {CS}, v6")
P(f"v_and_b32 v7, 16, {v(V_L16)}")
P(f"v_add3_u32 v6, v6, v7, s{S_K0}")
P(f"v_lshlrev_b32 v7, 4, v0")
P(f"v_cmp_gt_u32 vcc, s{S_T2}, v0")
P(f"v_mov_b32 v56, 0")
P(f"v_mov_b32 v57, 0")
P(f"v_cndmask_b32 v6, v6, v7, vcc")
P(f"v_mov_b32 v58, 0")
P(f"v_mov_b32 v59, 0")
P(f"v_add_u32 v6, {L_UX}, v6")
P(f"ds_write_b128 v6, v[56:59]")
P(f"v_lshlrev_b32 v4, 3, v0")
P(f"v_sub_u32 v4, 2047, v4")
P(f"v_cvt_f32_i32 v4, v4")
P(f"v_mov_b32 v60, 1028")
P(f"v_cmp_eq_u32 vcc, 0, v0")
for e in range(0, 10, 2):
    P(f"v_add_f32 v6, {f32(-float(e))}, v4")
    if e < 8:
        P(f"v_add_f32 v7, {f32(-float(e+1))}, v4")
    P(f"v_cvt_pk_bf16_f32 v6, v6, v7")
    for h in range(2):
        if e + h > 8:
            continue
        d = GA + e + h
        if h == 0:
            P(f"v_lshlrev_b32 v7, 16, v6")
        else:
            P(f"v_and_b32 v7, 0xffff0000, v6")
        P(f"v_cvt_u32_f32 v7, v7")
        if e + h < 4:
            P(f"v_cndmask_b32 v7, v7, v60, vcc")
        P(f"v_lshrrev_b32 {v(d)}, 5, v7")
        P(f"v_add_lshl_u32 {v(d)}, {v(d)}, v7, 2")
P(f"v_mov_b32 v4, 255")
P(f"v_cmp_eq_u32 s[{S_M255}:{S_M255+1}], v4, v0")

XF = 56
DF = 72
SA = 88
if "fine" in OPT: stamp("setup done")
P(f"s_mov_b32 s{S_EX}, -1")
P(f"s_mov_b32 s{S_EX+1}, 0x00ffffff")
P(f"s_mov_b32 s{S_K0}, {f32(1.0/448)}")
for r in range(2):
    for i in range(4):
        P(f"v_lshlrev_b32 {v(XF+8*r+2*i)}, 16, {v(XR+4*r+i)}")
        P(f"v_and_b32 {v(XF+8*r+2*i+1)}, 0xffff0000, {v(XR+4*r+i)}")
stamp("x arrived")
if "wdlate" in OPT and not NOPF:
    P(f"global_load_dword v253, v252, s[56:57]")
P(f"s_mov_b64 exec, s[{S_EX}:{S_EX+1}]")
for i in range(4):
    P(f"ds_write2_b32 {v(V_GX)}, {v(XR+i)}, {v(XR+4+i)} offset0:{16*i+8} offset1:{16*i+9}")
P("s_mov_b64 exec, -1")
for r in range(2):
    b = XF + 8 * r
    P(f"v_pk_add_f32 {v(DF+8*r,2)}, {v(b,2)}, {v(b+2,2)}")
    P(f"v_pk_add_f32 {v(DF+8*r+2,2)}, {v(b+4,2)}, {v(b+6,2)}")
for r in range(2):
    P(f"v_pk_add_f32 {v(DF+8*r,2)}, {v(DF+8*r,2)}, {v(DF+8*r+2,2)}")
for r in range(2):
    P(f"v_add_f32 {v(SA+r)}, {v(DF+8*r)}, {v(DF+8*r+1)}")


def wave_sum(p, regs):
    for mod in ("row_shr:1", "row_shr:2", "row_shr:4", "row_shr:8"):
        for r in regs:
            p(f"v_add_f32_dpp {v(r)}, {v(r)}, {v(r)} {mod} row_mask:0xf bank_mask:0xf bound_ctrl:0")
    for r in regs:
        p(f"v_add_f32_dpp {v(r)}, {v(r)}, {v(r)} row_bcast:15 row_mask:0xa bank_mask:0xf")
    for r in regs:
        p(f"v_add_f32_dpp {v(r)}, {v(r)}, {v(r)} row_bcast:31 row_mask:0xc bank_mask:0xf")


wave_sum(P, [SA, SA + 1])
for r in range(2):
    P(f"v_mul_f32 {v(SA+r)}, s{S_K0}, {v(SA+r)}")
P(f"v_cvt_pk_bf16_f32 {v(SA+2)}, {v(SA)}, {v(SA+1)}")
P(f"v_readlane_b32 s{S_A}, {v(SA)}, 63")
P(f"v_readlane_b32 s{S_B}, {v(SA+1)}, 63")
P(f"v_readlane_b32 s{S_T0}, {v(SA+2)}, 63")
P(f"v_mov_b32 {v(SA)}, 0")
P(f"v_mov_b32 {v(SA+1)}, 0")
P(f"s_mov_b64 exec, s[{S_EX}:{S_EX+1}]")
for r, sm in ((0, S_A), (1, S_B)):
    for i in range(4):
        P(f"v_pk_add_f32 {v(DF+8*r+2*i,2)}, {v(XF+8*r+2*i,2)}, s[{sm}:{sm+1}] op_sel_hi:[1,0] neg_lo:[0,1] neg_hi:[0,1]")
for r in range(2):
    b = DF + 8 * r
    P(f"v_pk_mul_f32 {v(b,2)}, {v(b,2)}, {v(b,2)}")
    for i in range(1, 4):
        P(f"v_pk_fma_f32 {v(b,2)}, {v(b+2*i,2)}, {v(b+2*i,2)}, {v(b,2)}")
for r in range(2):
    P(f"v_add_f32 {v(SA+r)}, {v(DF+8*r)}, {v(DF+8*r+1)}")
P("s_mov_b64 exec, -1")
P(f"s_lshl_b32 s{S_C}, s{S_T0}, 16")
P(f"s_and_b32 s{S_D}, s{S_T0}, 0xffff0000")
q1 = sub()
wave_sum(q1, [SA, SA + 1])
q2 = sub()
for r, sm in ((0, S_C), (1, S_D)):
    for i in range(4):
        q2(f"v_pk_add_f32 {v(DF+8*r+2*i,2)}, {v(XF+8*r+2*i,2)}, s[{sm}:{sm+1}] op_sel_hi:[1,0] neg_lo:[0,1] neg_hi:[0,1]")
for r in range(2):
    for i in range(4):
        q2(f"v_cvt_pk_bf16_f32 {v(XF+8*r+2*i)}, {v(DF+8*r+2*i)}, {v(DF+8*r+2*i+1)}")
for r in range(2):
    for i in range(4):
        q2(f"v_and_b32 {v(XF+8*r+2*i+1)}, 0xffff0000, {v(XF+8*r+2*i)}")
        q2(f"v_lshlrev_b32 {v(XF+8*r+2*i)}, 16, {v(XF+8*r+2*i)}")
k = 0
for j in range(0, len(q1.ins), 2):
    P.add(q1.ins[j:j + 2])
    P.add(q2.ins[k:k + 1])
    k += 1
P(f"v_mul_f32 {v(SA)}, s{S_K0}, {v(SA)}")
P(f"v_mul_f32 {v(SA+1)}, s{S_K0}, {v(SA+1)}")
for step in range(3):
    P(f"v_cvt_pk_bf16_f32 {v(SA+2)}, {v(SA)}, {v(SA+1)}")
    P(f"v_lshlrev_b32 {v(SA)}, 16, {v(SA+2)}")
    P(f"v_and_b32 {v(SA+1)}, 0xffff0000, {v(SA+2)}")
    for r in range(2):
        if step == 0:
            P(f"v_add_f32 {v(SA+r)}, {f32(1e-5)}, {v(SA+r)}")
        elif step == 1:
            P(f"v_sqrt_f32 {v(SA+r)}, {v(SA+r)}")
        else:
            P(f"v_rcp_f32 {v(SA+r)}, {v(SA+r)}")
    if step:
        P.add(q2.ins[k:k + 1])
        k += 1
P(f"v_readlane_b32 s{S_A}, {v(SA)}, 63")
P(f"v_readlane_b32 s{S_B}, {v(SA+1)}, 63")
P.add(q2.ins[k:])
for r, sm in ((0, S_A), (1, S_B)):
    for i in range(4):
        P(f"v_pk_mul_f32 {v(XF+8*r+2*i,2)}, {v(XF+8*r+2*i,2)}, s[{sm}:{sm+1}] op_sel_hi:[1,0]")
for j in range(8):
    P(f"v_cvt_pk_bf16_f32 {v(DF+j)}, {v(XF+j)}, {v(XF+8+j)}")
P(f"s_mov_b64 exec, s[{S_EX}:{S_EX+1}]")
for i in range(4):
    P(f"ds_write2_b32 {v(V_GW)}, {v(DF+2*i)}, {v(DF+2*i+1)} offset0:{16*i} offset1:{16*i+4}")
P("s_mov_b64 exec, -1")
if "fine" in OPT: stamp("ln1 math")
P("s_waitcnt lgkmcnt(0)")
P("s_barrier")
if "fine" in OPT: stamp("ln1 barrier")
UB = 112
for j in range(4):
    P(f"ds_read_b128 {v(UB+4*j,4)}, {v(V_GR)} offset:{1088*j}")
P(f"s_lshl_b32 s{S_T0}, s{S_V}, 3")
P(f"s_and_b32 s{S_T0}, s{S_T0}, 16")
P(f"s_mov_b32 m0, s{S_TAB}")
P("s_waitcnt lgkmcnt(0)")
for j in range(4):
    P(f"buffer_store_dwordx4 {v(UB+4*j,4)}, {v(V_L16 if j < 3 else V_S3)}, {srd(SRD_WS)}, s{S_UXO} offen offset:{1024*j} sc1", tok="ux")
P(f"s_cmp_lt_u32 s{S_W}, 224")
P("s_cbranch_scc1 L_main")


def nonce_init():
    q = sub()
    q(f"v_readfirstlane_b32 s{S_NONCE}, {v(V_NONCE)}")
    q(f"s_mul_i32 s{S_NONCE}, s{S_NONCE}, 1664525")
    q(f"s_add_u32 s{S_NONCE}, s{S_NONCE}, 1013904223")
    q(f"v_mov_b32 {v(V_NONCE)}, s{S_NONCE}")
    q(f"buffer_store_dword {v(V_NONCE)}, v250, {srd(SRD_WS)}, s{S_CI} offen sc1", tok="ux")
    q(f"s_add_u32 s{S_E28}, s{S_NONCE}, 28")
    q(f"s_add_u32 s{S_E14}, s{S_NONCE}, 14")
    return q.ins


P.raw(f"s_waitcnt vmcnt({4 if NOPF else 6})")
for x in nonce_init():
    P.raw(x.text)
P.raw("s_waitcnt vmcnt(0)")
P.raw(f"buffer_atomic_swap {v(V_NONCE)}, {v(V_FLG)}, {srd(SRD_WS)}, s{S_F1} offen")
P.raw("s_branch L_spare")
P("L_main:")
stamp("ln1 done")


def wfrag(m, ks):
    return 8 * ks + 4 * m


def slotoff(slot):
    return (slot % 8) * 1024 + (slot // 8) * 32768


def w_dma(kq, m, slot, tok):
    q = sub()
    q(f"s_add_u32 m0, s{S_RING}, {slotoff(slot)}")
    if m == 0:
        q(f"s_mov_b32 s{S_WOFF}, {kq*4*57344}")
    for k in range(4):
        o = f" offset:{1024*k}" if k else ""
        q(f"buffer_load_dwordx4 {v(V_W+k)}, {srd(SRD_WU if m else SRD_WG)}, s{S_WOFF} offen{o} lds", tok=tok)
    return q.ins


def w_tr(kq, m, slot, tok=None):
    q = sub()
    for k in range(4):
        for h in range(2):
            q(f"ds_read_b64_tr_b16 {acc(wfrag(m,4*kq+k)+2*h,2)}, {v(V_TRA)} offset:{slotoff(slot+k)+256*h}", tok=tok)
    return q.ins


def batch_dma(b, tok):
    return [w_dma(2 * b + i // 2, i % 2, 4 * i, f"{tok}_{i}") for i in range(4)]


def batch_tr(b):
    o = []
    for i in range(4):
        o += w_tr(2 * b + i // 2, i % 2, 4 * i, tok=f"t{b}_{i}")
    return o


def singles(groups):
    out, cur = [], []
    for grp in groups:
        for i in grp:
            cur.append(i)
            if i.cls == "vmem":
                out.append(cur)
                cur = []
    if cur:
        out[-1] += cur
    return out


def pin_vm(g, start, groups, stride):
    k = start
    for u in singles(groups):
        g.at(int(k), u)
        k += stride
    return int(k)


def w_dma1(b, n, tok):
    i, k = n // 4, n % 4
    q = sub()
    q(f"s_add_u32 m0, s{S_RING}, {slotoff(4*i)}")
    if n % 8 == 0:
        q(f"s_mov_b32 s{S_WOFF}, {(2*b+i//2)*4*57344}")
    o = f" offset:{1024*k}" if k else ""
    q(f"buffer_load_dwordx4 {v(V_W+k)}, {srd(SRD_WU if i % 2 else SRD_WG)}, s{S_WOFF} offen{o} lds", tok=f"{tok}_{i}")
    q(f"s_mov_b32 m0, s{S_TAB}")
    return q.ins


KD = 176
FR = 192
FR = 112


def kgen_head(rd):
    q = sub()
    A0 = 48 + 0
    CC = 50
    unp = (lambda d, s: q(f"v_lshlrev_b32 {v(d)}, 16, {v(s)}")) if rd == 0 else (lambda d, s: q(f"v_and_b32 {v(d)}, 0xffff0000, {v(s)}"))
    for i in range(4):
        unp(48 + i, PR + i)
    q(f"v_mul_f32 v48, {f32(LOG2E)}, v48")
    q(f"v_exp_f32 v48, v48")
    q(f"v_mul_f32 v49, v49, {v(V_DT)}")
    q(f"v_cvt_pk_bf16_f32 v48, v48, v48")
    q(f"v_mul_f32 v49, 0.15915494, v49")
    q(f"v_and_b32 v48, 0xffff0000, v48")
    q(f"v_mul_f32 v50, v50, {v(V_DT)}")
    q(f"v_mul_f32 v48, v48, {v(V_DT)}")
    q(f"v_mul_f32 v51, v51, {v(V_DT)}")
    q(f"v_mul_f32 v48, {f32(-LOG2E)}, v48")
    q(f"v_add_f32 v50, v50, v50")
    q(f"v_add_f32 v51, v51, v51")
    for (z, pos) in ((52, 1), (54, 16), (56, 256)):
        if pos == 1:
            q(f"v_exp_f32 v4, v48")
            q(f"v_fract_f32 v5, v49")
        else:
            q(f"v_mul_f32 v4, {f32(float(pos))}, v48")
            q(f"v_mul_f32 v5, {f32(float(pos))}, v49")
            q(f"v_exp_f32 v4, v4")
            q(f"v_fract_f32 v5, v5")
        q(f"v_cos_f32 {v(z)}, v5")
        q(f"v_sin_f32 {v(z+1)}, v5")
        q(f"v_mul_f32 {v(z)}, {v(z)}, v4")
        q(f"v_mul_f32 {v(z+1)}, {v(z+1)}, v4")
    return q.ins


def kgen_body(rd):
    names = {"G0": 50, "E1": 52, "E16": 54, "E256": 56}
    nxt = [58]
    chunks = []
    cur = sub()
    wr = sub()
    pk = [0]
    PK = 192

    def new(n):
        names[n] = nxt[0]
        nxt[0] += 2
        assert nxt[0] <= 104
        return names[n]

    def out(kind, row, z):
        t = PK + pk[0] % 16
        pk[0] += 1
        if kind == "B":
            cur(f"v_cvt_pk_bf16_f32 {v(t)}, {v(z)}, {v(z+1)}")
            wr(f"ds_write_addtid_b32 {v(t)} offset:{row*TAB_ROW}")
        else:
            cur(f"v_cvt_pk_bf16_f32 {v(t)}, {v(z)}, -{v(z+1)}")
            wr(f"ds_write_addtid_b32 {v(t)} offset:{(32+row)*TAB_ROW}")
        if len(wr.ins) >= GROUP:
            flush()

    def flush():
        nonlocal cur, wr
        chunks.append(cur.ins + wr.ins)
        cur = sub()
        wr = sub()

    sc = [0]

    def mul(n, a, b, kind=None, row=None):
        if n is None:
            z = 104 + 2 * (sc[0] % 4)
            sc[0] += 1
        else:
            z = new(n)
        cmul(cur, z, names[a], names[b])
        if kind:
            out(kind, row, z)

    GROUP = int(OPT.get("kgroup", 6))
    t = PK + pk[0]
    pk[0] += 1
    cur(f"v_mov_b32 {v(t)}, 0x3f80")
    wr(f"ds_write_addtid_b32 {v(t)}")
    out("A", 0, names["G0"])
    out("B", 2, names["E16"])
    mul("E2", "E1", "E1")
    mul("E32", "E16", "E16", "B", 4)
    mul("G1", "G0", "E256", "A", 8)
    mul("E512", "E256", "E256")
    mul("a1", "G0", "E1", "A", 1)
    mul("E4", "E2", "E2")
    mul("E64", "E32", "E32", "B", 8)
    mul("E48", "E32", "E16", "B", 6)
    mul("G2", "G0", "E512", "A", 10)
    mul("G3", "G1", "E512", "A", 11)
    mul("E1024", "E512", "E512")
    mul("E8", "E4", "E4", "B", 1)
    mul("a2", "G0", "E2", "A", 2)
    mul("a3", "a1", "E2", "A", 3)
    mul("b2", "G1", "E2", "A", 9)
    mul("E128", "E64", "E64", "B", 16)
    mul("G4", "G0", "E1024", "A", 16)
    mul("E24", "E16", "E8", "B", 3)
    mul("E40", "E32", "E8", "B", 5)
    mul("E56", "E48", "E8", "B", 7)
    mul("E192", "E128", "E64", "B", 24)
    for row, a in ((4, "G0"), (5, "a1"), (6, "a2"), (7, "a3"), (12, "G1"), (13, "b2"), (14, "G2"), (15, "G3")):
        mul(None, a, "E4", "A", row)
    for row, a in ((17, "G1"), (18, "G2"), (19, "G3"), (20, "G4")):
        mul(None, a, "E1024", "A", row)
    for b2, nb in ((1, "E64"), (2, "E128"), (3, "E192")):
        for b1 in range(1, 8):
            mul(None, f"E{8*b1}", nb, "B", 8 * b2 + b1)
    if wr.ins or cur.ins:
        flush()
    return chunks


def kgen_reads():
    q = sub()
    for s in range(8):
        q(f"ds_read_b128 {v(FR+8*s,4)}, {v(V_TA)} offset:{32*TAB_ROW+32*s}")
        q(f"ds_read_b128 {v(FR+8*s+4,4)}, {v(V_TB)} offset:{32*s}")
    return q.ins


def kgen_mfma(rd):
    q = sub()
    for s in range(8):
        c = "0" if (rd == 0 and s == 0) else v(KD, 16)
        q(f"v_mfma_f32_32x32x16_bf16 {v(KD,16)}, {v(FR+8*s,4)}, {v(FR+8*s+4,4)}, {c}")
    return q.ins


P(f"v_lshrrev_b32 v4, s{S_T0}, {v(V_DT)}")
P(f"v_lshlrev_b32 v4, 16, v4")
P(f"v_mul_f32 v4, {f32(LOG2E)}, v4")
P(f"v_exp_f32 v4, v4")
P(f"v_readfirstlane_b32 s{S_DSK}, {v(V_EU1)}")
round_bf16(P, V_DT, 4)
P.add(kgen_head(0))
P.add(nonce_init())
ch = kgen_body(0)
fl = sub()
fl.wait("ux")
setflag(fl, S_F1)
nd = 0
FLAGAT = int(OPT.get("flagat", 6))
DMA0 = int(OPT.get("dma0", 3))
for i, c in enumerate(ch):
    P.add(c)
    if i == FLAGAT:
        if "fine" in OPT: stamp("pre flag1")
        P.add(fl.ins)
        if "fine" in OPT: stamp("post flag1")
    elif i >= DMA0:
        P.add(w_dma1(0, nd, "w1"))
        nd += 1
P.add(kgen_reads())
g = Gaps(kgen_mfma(0), 7)
for k in (0, 2, 4, 6):
    g.at(k, w_dma1(0, nd, "w1"))
    nd += 1
g.fill(kgen_head(1))
P.add(g.out())
stamp("kgen r0")
ch = kgen_body(1)
POLLAT = int(OPT.get("pollat", 3))
for i, c in enumerate(ch):
    P.add(c)
    if i == POLLAT:
        P.add(poll_issue(V_F1, 6))
    elif nd < 16:
        P.add(w_dma1(0, nd, "w1"))
        nd += 1
assert nd == 16
P.add(kgen_reads())
if "fine" in OPT: stamp("pre poll1")
P.add(poll_check(V_F1, 6))
if "fine" in OPT: stamp("post poll1")
g = Gaps(kgen_mfma(1), 6)
P(f"s_mov_b32 m0, s{S_UXM}")
for j in range(4):
    q = sub()
    q(f"s_mov_b32 s{S_T0}, {j*(16*14336-1024)}")
    o = f" offset:{1024*j}" if j else ""
    q(f"buffer_load_dwordx4 {v(V_UXL)}, {srd(SRD_WS)}, s{S_T0} offen{o} sc1 lds", tok="uxl")
    if j == 0:
        P.add(q.ins)
    else:
        g.at(2 * j - 2, q.ins)
tr1 = batch_tr(0)
P.wait("w1_2")
for k in range(8):
    g.at(k, tr1[3 * k:3 * k + 3])
P.add(g.out())
stamp("kgen r1")
P(f"v_and_b32 v4, 15, {v(V_LANE)}")
P(f"v_lshrrev_b32 v5, 4, {v(V_LANE)}")
P(f"v_lshl_add_u32 v6, v5, 3, v4")
P(f"v_sub_u32 v6, 39, v6")
P(f"v_and_b32 v7, 1, v6")
P(f"v_mul_u32_u24 v7, {CS-2}, v7")
P(f"v_lshl_add_u32 v6, v6, 1, v7")
P(f"s_lshr_b32 s{S_T0}, s{S_V}, 1")
P(f"s_andn2_b32 s{S_T3}, 1, s{S_V}")
P(f"s_mul_i32 s{S_T2}, s{S_T0}, {2*CS}")
P(f"s_lshl_b32 s{S_T1}, s{S_T3}, 8")
P(f"s_add_u32 s{S_T2}, s{S_T2}, s{S_T1}")
P(f"s_add_u32 s{S_T2}, s{S_T2}, {L_KC}")
P(f"v_add_u32 {v(V_KA+3)}, s{S_T2}, v6")
toff = {0: (0, 0), 1: (0, 1), 2: (0, 2), 3: (0, 3), 4: (1, 0), 5: (1, 2), 6: (2, 0), 7: (3, 0), 8: (4, 0), 9: (5, 0), 10: (6, 0), 11: (7, 0)}
P(f"ds_write2_b32 {v(V_TW)}, {v(KD)}, {v(KD+1)} offset0:0 offset1:1")
P(f"ds_write2_b32 {v(V_TW)}, {v(KD+2)}, {v(KD+3)} offset0:2 offset1:3")
for j in range(4, 12):
    qq, r = toff[j]
    P(f"ds_write_b32 {v(V_TW)}, {v(KD+j)} offset:{4*(r + 264*qq)}")
for k in range(3):
    P(f"v_add_u32 {v(V_KA+k)}, {64*(48-16*k)}, {v(V_KA+3)}")
P(f"v_lshlrev_b32 v6, 1, v4")
P(f"v_sub_u32 v6, v6, v5")
P(f"s_lshl_b32 s{S_T1}, s{S_T3}, 4")
P(f"s_add_u32 s{S_T1}, s{S_T1}, 17")
P(f"v_add_u32 v6, s{S_T1}, v6")
P(f"s_mov_b32 s{S_T2}, {L_UX}")
P("s_waitcnt lgkmcnt(0)")
P("s_barrier")
if "fine" in OPT: stamp("T barrier")
EG = 208
for c2 in range(2):
    for e in range(9):
        P(f"ds_read2st64_b32 {v(EG+18*c2+2*e,2)}, {v(GA+e)} offset0:{114*c2} offset1:{114*c2+57}")
b2 = batch_dma(1, "w2")
b2[3] = waitq("t0_3") + b2[3]
b2 = singles(b2)
P.add(b2.pop(0))
for rr in range(4):
    P(f"v_bfe_u32 v7, v6, 2, 2")
    P(f"v_xor_b32 v7, s{S_T0}, v7")
    P(f"v_lshl_add_u32 v7, v6, 2, v7")
    P(f"v_lshl_add_u32 {v(V_UA+rr)}, v7, 4, s{S_T2}")
    if rr < 3:
        P(f"v_subrev_u32 v6, 4, v6")
P.add(b2.pop(0))
P(f"v_lshlrev_b32 v6, 4, v0")
KO = 192
VB = 48


def bfrag(rr, e):
    return VB + 32 * rr + 4 * e


def b_loads(lo, hi):
    z = sub()
    for rr in range(4):
        for a in range(lo, hi):
            z(f"ds_read_b128 {v(bfrag(rr,a),4)}, {v(V_UA+rr)} offset:{2048*a}")
    return z.ins


for c2 in range(2):
    b = EG + 18 * c2
    for e in range(9):
        P(f"v_add_f32 {v(b+2*e)}, {v(b+2*e)}, {v(b+2*e+1)}")
    P(f"v_cndmask_b32 {v(b+16)}, {v(b+16)}, 0, s[{S_M255}:{S_M255+1}]")
    for s_ in range(2):
        o = KO + 8 * c2 + 4 * s_
        for i in range(4):
            P(f"v_cvt_pk_bf16_f32 {v(o+i)}, {v(b+2*(s_+2*i))}, {v(b+2*(s_+2*i+1))}")
    if c2 == 1:
        P(f"v_add_u32 v7, {2*CS}, v6")
    for s_ in range(2):
        P(f"ds_write_b128 {v(6+c2)}, {v(KO+8*c2+4*s_,4)} offset:{L_KC+s_*CS}", tok="kc")
    if c2 == 0:
        P.add(waitq("w1_3") + tr1[24:])
    P.add(b2.pop(0))
if "dumpk" in OPT:
    P(f"s_lshl_b32 s{S_T0}, s{S_W}, 13")
    P(f"s_add_u32 s{S_T0}, s{S_T0}, {WS_DBG}")
    P(f"buffer_store_dwordx4 {v(KO,4)}, v6, {srd(SRD_WS)}, s{S_T0} offen")
    P(f"s_add_u32 s{S_T0}, s{S_T0}, 4096")
    P(f"buffer_store_dwordx4 {v(KO+8,4)}, v6, {srd(SRD_WS)}, s{S_T0} offen")
stamp("expanded")
P.wait("uxl")
P.wait("kc")
P("s_barrier")
stamp("conv start")
ea = sub()
ea(f"v_lshrrev_b32 v6, 1, v5")
ea(f"v_lshl_add_u32 v6, v4, 1, v6")
ea(f"s_lshl_b32 s{S_T2}, s{S_V}, 11")
ea(f"s_add_u32 s{S_T2}, s{S_T2}, {L_UX+2048}")
ea(f"v_lshl_add_u32 v6, v6, 6, s{S_T2}")
ea(f"v_bfe_u32 v4, v4, 1, 2")
ea(f"v_and_b32 v5, 1, v5")
ea(f"v_lshl_add_u32 v7, v4, 4, v6")
ea(f"v_lshl_add_u32 {v(V_EU)}, v5, 3, v7")
ea(f"v_xor_b32 {v(V_EU1)}, 16, {v(V_EU)}")
ea(f"v_or_b32 v5, 2, v5")
ea(f"v_xor_b32 v4, v4, v5")
ea(f"v_lshl_add_u32 {v(V_EXP)}, v4, 4, v6")
eb = sub()
eb(f"s_mul_i32 s{S_ACTW}, s{S_V}, 14336")
eb(f"v_add_u32 {v(V_EXR)}, s{S_ACTW}, {v(V_L16)}")
eb(f"s_lshl_b32 s{S_T2}, s{S_V}, 10")
eb(f"v_add_u32 {v(V_EXW)}, s{S_T2}, {v(V_L16)}")
eb(f"s_mul_i32 s{S_T3}, s{S_W}, {PROW}")
eb(f"s_add_u32 s{S_T3}, s{S_T3}, {WS_P}")
eb(f"v_add_u32 {v(V_PST)}, s{S_T3}, {v(V_EXW)}")
eb(f"s_lshl_b32 s{S_C}, s{S_DSK}, 16")
eb(f"s_and_b32 s{S_D}, s{S_DSK}, 0xffff0000")

CA = [176, 192]
ET = 208


def afrag(rr, a):
    return 128 + 32 * rr + 4 * a


def a_loads(rr, lo, hi):
    z = sub()
    for a in range(lo, hi):
        k = a // 2
        off = 16 * (11 - rr - 8 * (a - 2 * k))
        z(f"ds_read2_b32 {acc(afrag(rr,a),2)}, {v(V_KA+k)} offset0:{off} offset1:{off+1}")
        z(f"ds_read2_b32 {acc(afrag(rr,a)+2,2)}, {v(V_KA+k)} offset0:{off+2} offset1:{off+3}")
    return z.ins


def conv_mfmas(gen):
    m = sub()
    first = set()
    na = 4 if gen == 0 else 8
    order = []
    for rr in range(4):
        pairs = [(a, e) for a in range(na) for e in range(na) if 4 * gen <= a + e < 4 * gen + 4]
        pairs.sort(key=lambda ae: (max(ae), ae))
        order += [(rr, a, e) for a, e in pairs]
    if gen == 1:
        order.sort(key=lambda t: (0 if max(t[1], t[2]) < 4 else 1))
    for rr, a, e in order:
        c = a + e - 4 * gen
        d = CA[gen] + 4 * c
        cc = v(d, 4) if c in first else "0"
        first.add(c)
        m(f"v_mfma_f32_16x16x32_bf16 {v(d,4)}, {acc(afrag(rr,a),4)}, {v(bfrag(rr,e),4)}, {cc}")
    return m.ins


UU, XX, YY, TT, WW, HO = ET, ET + 4, ET + 8, ET + 24, ET + 32, ET + 36


def conv_pre(gen):
    q = sub()
    q(f"ds_read_b64 {v(UU,2)}, {v(V_EU)} offset:{8192*gen}")
    q(f"ds_read_b64 {v(UU+2,2)}, {v(V_EU1)} offset:{8192*gen}")
    q(f"ds_read_b128 {v(XX,4)}, {v(V_EXP)} offset:{8192*gen}")
    r = sub()
    for c2 in range(2):
        for i in range(2):
            r(f"v_lshlrev_b32 {v(TT+4*c2+2*i)}, 16, {v(UU+2*c2+i)}")
            r(f"v_and_b32 {v(TT+4*c2+2*i+1)}, 0xffff0000, {v(UU+2*c2+i)}")
    for c2, sm in ((0, S_C), (1, S_D)):
        for i in range(4):
            r(f"v_mul_f32 {v(TT+4*c2+i)}, s{sm}, {v(TT+4*c2+i)}")
    for j in range(4):
        r(f"v_cvt_pk_bf16_f32 {v(WW+j)}, {v(TT+j)}, {v(TT+4+j)}")
    for j in range(4):
        r(f"v_lshlrev_b32 {v(TT+2*j)}, 16, {v(WW+j)}")
        r(f"v_and_b32 {v(TT+2*j+1)}, 0xffff0000, {v(WW+j)}")
    return q.ins, r.ins


def conv_xchg(gen):
    w_, b_, r_ = sub(), sub(), sub()
    for c in range(4):
        w_(f"ds_write_b128 {v(V_EXW)}, {v(CA[gen]+4*c,4)} offset:{(4096 if gen else 14336)*c}", tok=f"xw{gen}")
    b_.wait(f"xw{gen}")
    b_("s_barrier")
    for w in range(4):
        r_(f"ds_read_b128 {v(YY+4*w,4)}, {v(V_EXR)} offset:{1024*w}", tok=f"xr{gen}")
    return w_.ins, b_.ins, r_.ins


def conv_post(gen):
    q = sub()
    for c2 in range(2):
        for i in range(2):
            q(f"v_pk_add_f32 {v(YY+8*c2+2*i,2)}, {v(YY+8*c2+2*i,2)}, {v(YY+8*c2+4+2*i,2)}")
    for j in range(4):
        q(f"v_cvt_pk_bf16_f32 {v(WW+j)}, {v(YY+j)}, {v(YY+8+j)}")
    for j in range(4):
        q(f"v_lshlrev_b32 {v(YY+2*j)}, 16, {v(WW+j)}")
        q(f"v_and_b32 {v(YY+2*j+1)}, 0xffff0000, {v(WW+j)}")
    for j in range(4):
        q(f"v_pk_add_f32 {v(YY+2*j,2)}, {v(YY+2*j,2)}, {v(TT+2*j,2)}")
    for j in range(4):
        q(f"v_cvt_pk_bf16_f32 {v(WW+j)}, {v(YY+2*j)}, {v(YY+2*j+1)}")
    for j in range(4):
        q(f"v_lshlrev_b32 {v(YY+8+2*j)}, 16, {v(XX+j)}")
        q(f"v_and_b32 {v(YY+8+2*j+1)}, 0xffff0000, {v(XX+j)}")
    for j in range(4):
        q(f"v_lshlrev_b32 {v(YY+2*j)}, 16, {v(WW+j)}")
        q(f"v_and_b32 {v(YY+2*j+1)}, 0xffff0000, {v(WW+j)}")
    for j in range(4):
        q(f"v_pk_add_f32 {v(YY+2*j,2)}, {v(YY+2*j,2)}, {v(YY+8+2*j,2)}")
    h = HO + 4 * gen
    for j in range(4):
        q(f"v_cvt_pk_bf16_f32 {v(h+j)}, {v(YY+2*j)}, {v(YY+2*j+1)}")
    q(f"s_mov_b32 s{S_T0}, {PGEN*gen}")
    q(f"buffer_store_dwordx4 {v(h,4)}, {v(V_PST)}, {srd(SRD_WS)}, s{S_T0} offen sc1", tok=f"h{gen}")
    return q.ins


V_WF = 19
V_F4 = 20
ad = sub()
ad(f"v_mov_b32 {v(V_NONCE)}, 1")
flg_lanes(ad, 4, 10)
ad(f"s_lshl_b32 s{S_T0}, s{S_V}, 13")
ad(f"s_add_u32 s{S_F2}, s{S_F2}, s{S_T0}")
ad(f"s_lshl_b32 s{S_T0}, s{S_FH}, 12")
ad(f"s_add_u32 s{S_F2}, s{S_F2}, s{S_T0}")
ad(f"s_add_u32 s{S_F2}, s{S_F2}, {WS_C}")
NFL = len(ad.ins)
ad(f"s_lshr_b32 s{S_T0}, s{S_TB}, 2")
ad(f"s_bfe_u32 s{S_REP}, s{S_W}, 0x20003")
ad(f"s_lshl3_add_u32 s{S_T0}, s{S_T0}, s{S_REP}")
ad(f"s_lshl2_add_u32 s{S_T0}, s{S_T0}, s{S_V}")
ad(f"s_lshl_b32 s{S_T0}, s{S_T0}, 8")
ad(f"s_add_u32 s{S_T0}, s{S_T0}, {WS_C}")
ad(f"v_mov_b32 {v(V_F2)}, 0x7ff00000")
ad(f"v_writelane_b32 {v(V_F2)}, s{S_T0}, 0")
ad(f"s_add_u32 s{S_T0}, s{S_T0}, 4096")
ad(f"v_writelane_b32 {v(V_F2)}, s{S_T0}, 1")
ad(f"s_lshl2_add_u32 s{S_T2}, s{S_DB}, s{S_V}")
ad(f"s_lshl2_add_u32 s{S_T3}, s{S_T2}, s{S_REP}")
ad(f"s_lshl_b32 s{S_T3}, s{S_T3}, 8")
ad(f"s_add_u32 s{S_T3}, s{S_T3}, {WS_C + 896*256}")
ad(f"v_mov_b32 {v(V_F4)}, 0x7ff00000")
ad(f"v_writelane_b32 {v(V_F4)}, s{S_T3}, 0")
ad(f"s_mul_i32 s{S_T1}, s{S_V}, 56")
ad(f"s_mul_i32 s{S_T2}, s{S_T2}, {14*4096}")
ad(f"s_add_u32 s{S_T2}, s{S_T2}, {WS_WF}")
ad(f"v_add_u32 {v(V_WF)}, s{S_T2}, {v(V_L16)}")
ad(f"s_lshl_b32 s{S_HR}, s{S_DB}, 11")
for i in range(1, 7):
    ad(f"s_add_u32 s{S_HR+i}, s{S_HR}, {2048*i}")
    ad(f"s_sub_u32 s{S_T3}, s{S_HR+i}, 14336")
    ad(f"s_min_u32 s{S_HR+i}, s{S_HR+i}, s{S_T3}")
V_A = 17
ad(f"v_lshrrev_b32 v5, 4, {v(V_LANE)}")
ad(f"v_and_b32 v6, 15, {v(V_LANE)}")
ad(f"v_mul_u32_u24 v4, {PROW}, v5")
ad(f"v_lshl_add_u32 v4, v6, 4, v4")
ad(f"s_mul_i32 s{S_T1}, s{S_T1}, {PROW}")
ad(f"s_lshl_b32 s{S_T0}, s{S_TB}, 8")
ad(f"s_add_u32 s{S_T0}, s{S_T0}, s{S_T1}")
ad(f"s_add_u32 s{S_T0}, s{S_T0}, {WS_P}")
ad(f"v_add_u32 {v(V_A)}, s{S_T0}, v4")
ad(f"v_add_u32 {v(V_A+1)}, {4*PROW-1024}, {v(V_A)}")
ad1 = ad

def act_dma(gen):
    o = []
    for i in range(7):
        q = sub()
        q(f"s_add_u32 m0, s{S_ACTW if gen == 0 else S_Z}, s{S_HR+i}")
        q(f"s_mul_i32 s{S_WOFF}, s{S_HR+i}, {8*PROW//2048}")
        for k in range(2):
            of = f" offset:{1024*k}" if k else ""
            q(f"buffer_load_dwordx4 {v(V_A+k)}, {srd(SRD_WS)}, s{S_WOFF} offen{of} sc1 lds", tok=f"act{gen}")
        o.append(q.ins)
    return o


V_BR, V_S2, V_HST = 21, 22, 24
V_LF, V_LR = 28, 29
V_RES = 27
V_OST, V_RR, V_RW, V_HL, V_P3 = 40, 41, 42, 44, 45
SEL = 176
CSA = [180, 184]
ad = sub()
ad(f"v_add_u32 {v(V_F2)}, 0x8000, {v(V_F2)}")
ad(f"v_and_b32 v4, 31, {v(V_LANE)}")
ad(f"v_lshrrev_b32 v5, 5, {v(V_LANE)}")
ad(f"v_lshlrev_b32 v5, 10, v5")
ad(f"v_lshl_add_u32 {v(V_BR)}, v4, 2, v5")
ad(f"s_lshl_b32 s{S_T0}, s{S_TB}, 10")
ad(f"s_mul_i32 s{S_T1}, s{S_DB}, {S2REP}")
ad(f"s_add_u32 s{S_T0}, s{S_T0}, s{S_T1}")
ad(f"s_add_u32 s{S_T0}, s{S_T0}, {WS_S2}")
ad(f"v_lshl_add_u32 {v(V_S2)}, v4, 3, s{S_T0}")
ad(f"s_mov_b32 s{S_PERM}, 0x03020302")
ad(f"v_lshrrev_b32 v5, 4, {v(V_LANE)}")
ad(f"v_and_b32 v6, 15, {v(V_LANE)}")
ad(f"v_and_b32 v4, 1, v5")
ad(f"v_mul_u32_u24 v4, 57344, v4")
ad(f"v_lshl_add_u32 v4, v6, 4, v4")
ad(f"v_lshrrev_b32 v7, 1, v5")
ad(f"v_lshl_add_u32 v4, v7, 8, v4")
ad(f"s_mul_i32 s{S_T0}, s{S_TB}, {8*57344}")
ad(f"s_lshl_b32 s{S_T1}, s{S_FB}, 2")
ad(f"s_add_u32 s{S_T1}, s{S_T1}, s{S_V}")
ad(f"s_lshl_b32 s{S_T2}, s{S_T1}, 10")
ad(f"s_add_u32 s{S_T0}, s{S_T0}, {WS_H}")
ad(f"s_add_u32 s{S_T2}, s{S_T2}, s{S_T0}")
ad(f"v_add_u32 {v(V_HST)}, s{S_T2}, v4")
ad(f"s_mul_i32 s{S_T2}, s{S_FH}, 57344")
ad(f"s_add_u32 s{S_T0}, s{S_T0}, s{S_T2}")
ad(f"s_add_u32 s{S_T0}, s{S_T0}, s{S_ACTW}")
ad(f"v_add_u32 {v(V_HL)}, s{S_T0}, {v(V_L16)}")
ad(f"s_lshl_b32 s{S_T0}, s{S_TB}, 13")
ad(f"s_add_u32 s{S_T0}, s{S_T0}, {WS_C + 65536}")
ad(f"s_mul_i32 s{S_T1}, s{S_T1}, 37")
ad(f"s_and_b32 s{S_T1}, s{S_T1}, 0x600")
ad(f"s_add_u32 s{S_F3}, s{S_T0}, s{S_T1}")
ad(f"s_lshl1_add_u32 s{S_T1}, s{S_V}, s{S_FH}")
ad(f"s_lshl_b32 s{S_T1}, s{S_T1}, 8")
ad(f"s_add_u32 s{S_T0}, s{S_T0}, s{S_T1}")
ad(f"v_mov_b32 {v(V_P3)}, 0x7ff00000")
ad(f"v_writelane_b32 {v(V_P3)}, s{S_T0}, 0")
ad(f"s_add_u32 s{S_FW}, s{S_RING}, 32768")
ad(f"s_lshl_b32 s{S_R2}, s{S_V}, 14")
ad(f"s_add_u32 s{S_Z}, s{S_ACTW}, {L_ACT[1]}")
ad(f"v_add_u32 {v(V_LF)}, s{S_FW}, {v(V_L16)}")
ad(f"v_add_u32 {v(V_LR)}, s{S_R2}, {v(V_L16)}")
ad2 = ad
se = sub()
se(f"v_bfe_u32 v4, {v(V_LANE)}, 2, 2")
se(f"v_bfe_u32 v5, {v(V_LANE)}, 4, 1")
se(f"v_mov_b32 v6, 0x3f803f80")
se(f"v_cmp_eq_u32 vcc, v4, v5")
for i in range(4):
    se(f"v_cndmask_b32 {v(SEL+i)}, 0, v6, vcc")


def cs_mfma(ks0, ks1):
    q = sub()
    for ks in range(ks0, ks1):
        for m in range(2):
            c = "0" if ks == 0 else v(CSA[m], 4)
            q(f"v_mfma_f32_16x16x32_bf16 {v(CSA[m],4)}, {v(SEL,4)}, {acc(wfrag(m,ks),4)}, {c}")
    return q.ins


def pin_spread(g, start, ins, per=2):
    for i, x in enumerate(ins):
        g.at(int(start + i // per), [x])
    return int(start + (len(ins) + per - 1) // per)


mA, mB = conv_mfmas(0), conv_mfmas(1)
NOV = 22
bl = b_loads(0, 4)


def ab(rr):
    al = a_loads(rr, 0, 4)
    o = []
    for a in range(4):
        o += [bl[4 * rr + a]] + al[2 * a:2 * a + 2]
    return o


P.add(ab(0))
P.add(ea.ins)
P.add(eb.ins)
g = Gaps(mA + mB[:NOV], 2)
pr, pv = conv_pre(0)
l1 = ab(1) + ab(2) + pr + ab(3)
for i, x in enumerate(l1):
    g.at(i * 28 // len(l1), [x])
pin_vm(g, 1, b2, 3.2)
nb = b_loads(4, 8)
newl = []
for rr in range(4):
    newl += nb[4 * rr:4 * rr + 4] + a_loads(rr, 4, 8)
pin_spread(g, 30, newl[:12], per=1)
g.fill(pv, start=26, end=50)
xw, xb, xr = conv_xchg(0)
for i in range(4):
    g.at(42 + 2 * i, [xw[i]])
g.at(52, xb)
g.at(53, xr)
pin_spread(g, 54, newl[12:20], per=1)
P.add(g.out())
P.add(conv_post(0))
stamp("genA stored")
g = Gaps(mB[NOV:] + cs_mfma(0, 11), 2)
NB_ = len(mB) - NOV
pin_spread(g, 0, newl[20:], per=1)
fl = sub()
fl.wait("h0")
addcnt(fl, S_F2)
fl(f"s_add_u32 s{S_F2}, s{S_F2}, 0x8000")
g.at(int(OPT.get("fa", 30)), fl.ins)
tr2 = batch_tr(1)
for i in range(4):
    pin_spread(g, 10 + 9 * i, waitq(f"w2_{i}") + tr2[8 * i:8 * i + 8], per=1)
b3 = batch_dma(2, "w3")
for i in range(4):
    b3[i] = waitq(f"t1_{i}") + b3[i]
pin_vm(g, 24, b3, 3.3)
pr, pv = conv_pre(1)
pin_spread(g, 48, pr, per=1)
newl[-1].tok = "lastfrag"
bq = sub()
bq.wait("lastfrag")
bq("s_barrier")
g.at(46, bq.ins)
x2 = sub()
x2(f"v_add_u32 {v(V_EXW)}, {L_KC}, {v(V_EXW)}")
x2(f"s_lshl_b32 s{S_T0}, s{S_V}, 12")
x2(f"s_add_u32 s{S_T0}, s{S_T0}, {L_KC}")
x2(f"v_add_u32 {v(V_EXR)}, s{S_T0}, {v(V_L16)}")
PA1, PA2, PAC = int(OPT.get("pa1", 54)), int(OPT.get("pa2", 68)), int(OPT.get("pac", 80))
e = g.fill(ad1.ins[:NFL], start=0, end=int(OPT.get("fa", 30)))
e = g.fill(ad1.ins[NFL:NFL + 10], start=e, end=PA1)
e = g.fill(ad1.ins[NFL + 10:] + se.ins + x2.ins, start=e, end=PAC - 1)
g.fill(pv, start=max(e, 56), end=NB_ + 12)
g.at(PA1, poll_issue(V_F2, 7))
g.at(PA2, poll_issue(V_F2, 23))
g.at(PAC, stq("pre pollA") + poll_check2(V_F2, 7, 23, "3", f"s{S_E28}") + stq("post pollA"))
a0 = singles(act_dma(0))
na = (103 - PAC) // 3 + 1
pin_vm(g, PAC, a0[:na], 3)
xw, xb, xr = conv_xchg(1)
for i in range(4):
    g.at(NB_ + 2 + 2 * i, [xw[i]])
g.at(NB_ + 12, xb)
g.at(NB_ + 13, xr)
P.add(g.out())
p1 = conv_post(1)
P.add(sprinkle(p1, [(4 + 14 * i, u) for i, u in enumerate(a0[na:na + 3])]))
stamp("genB stored")
g = Gaps(cs_mfma(11, 24), 4)
g.at(1, poll_issue(V_F4, 25))
tr3 = batch_tr(2)
t3 = []
for i in (2, 3, 0, 1):
    t3 += waitq(f"w3_{i}") + tr3[8 * i:8 * i + 8]
pin_spread(g, 0, t3, per=4)
e = pin_vm(g, 0, a0[na + 3:] + [waitq("t2_3") + w_dma(6, 0, 8, "w4"), w_dma(6, 1, 12, "w4")], 2)
fl = sub()
fl.wait("h1")
addcnt(fl, S_F2)
g.fill(ad2.ins, start=9)
P.add(g.out())
P.add(fl.ins)
stamp("gap work done")

GACC = [64, 96]
BF = 128
NBF = 8
MB = 160
KC_ = [14, 9]
STT = 60
EPT = 164
HP = 172
WDV = 188
RESR = [46, 48, 50, 52]
A_CS = [224, 228]
GC0 = -2.0 * math.sqrt(2.0 / math.pi) * LOG2E


def st_issue(J, atomic=None):
    q = sub()
    t = STT + 2 * (J & 1)
    atomic = False if atomic is None else atomic
    if atomic:
        q(f"v_mov_b64 {v(t,2)}, 0")
        q(f"buffer_atomic_add_x2 {v(t,2)}, {v(V_S2)}, {srd(SRD_WS)}, 0 offen offset:{256*J} sc0")
    else:
        q(f"buffer_load_dwordx2 {v(t,2)}, {v(V_S2)}, {srd(SRD_WS)}, 0 offen offset:{256*J} sc1")
    return q.ins


def st_check(J):
    q = sub()
    t = STT + 2 * (J & 1)
    slow, done = label("sslow"), label("sdone")
    q(f"v_cmp_ne_u32 vcc, s{S_NONCE}, {v(t+1)}")
    q(f"s_cbranch_vccnz {slow}")
    q(f"{done}:")
    spin(TAIL, slow, done, st_issue(J, True), t + 1, sleep=1)
    return q.ins


def st_final(J):
    q = sub()
    kc = KC_[J & 1]
    t = STT + 2 * (J & 1)
    q(f"v_perm_b32 {v(MB)}, {v(t)}, {v(t)}, s{S_PERM}")
    q(f"v_lshlrev_b32 {v(t+1)}, 16, {v(t)}")
    q(f"v_rcp_f32 {v(t)}, {v(t+1)}")
    q(f"v_mul_f32 {v(kc+2)}, {v(t+1)}, {v(t+1)}")
    q(f"v_mul_f32 {v(kc)}, {f32(GC0)}, {v(t)}")
    q(f"v_mul_f32 {v(kc+1)}, {v(t)}, {v(t)}")
    q(f"v_mul_f32 {v(kc+1)}, {v(kc+1)}, {v(kc)}")
    q(f"v_mul_f32 {v(kc+1)}, {f32(0.044715)}, {v(kc+1)}")
    return q.ins


SP = Prog()
spn = [1]


def sps():
    if STAMPS and "lite" in OPT:
        SP(f"s_memrealtime s[{S_STAMP}:{S_STAMP+1}]")
        SP("s_waitcnt lgkmcnt(0)")
        SP(f"v_writelane_b32 v255, s{S_STAMP}, {spn[0]}")
        spn[0] += 1


SP("L_spare:")
SP("s_waitcnt vmcnt(0)")
SP("s_barrier")
sps()
SP(f"s_and_b32 s{S_T0}, s{S_W}, 6")
SP(f"s_lshl_b32 s{S_T0}, s{S_T0}, 1")
SP(f"s_bfe_u32 s{S_T1}, s{S_W}, 0x20003")
SP(f"s_add_u32 s{S_TB}, s{S_T0}, s{S_T1}")
SP(f"s_lshr_b32 s{S_T0}, s{S_TB}, 2")
SP(f"s_lshl2_add_u32 s{S_T0}, s{S_FH}, s{S_T0}")
SP(f"s_lshl3_add_u32 s{S_T0}, s{S_T0}, s{S_T1}")
SP(f"s_lshl2_add_u32 s{S_T0}, s{S_T0}, s{S_V}")
SP(f"s_lshl_b32 s{S_T0}, s{S_T0}, 8")
SP(f"s_add_u32 s{S_T0}, s{S_T0}, {WS_C}")
SP(f"v_and_b32 v4, 1, {v(V_LANE)}")
SP(f"v_lshl_add_u32 v10, v4, 12, s{S_T0}")
SP(f"s_mul_i32 s{S_T1}, s{S_V}, 56")
SP(f"v_mov_b32 {v(V_NONCE)}, 7")
flg_lanes(SP, 4)
SP(f"v_lshrrev_b32 v5, 4, {v(V_LANE)}")
SP(f"v_and_b32 v6, 15, {v(V_LANE)}")
SP(f"v_mul_u32_u24 v4, {PROW}, v5")
SP(f"v_lshl_add_u32 v4, v6, 4, v4")
SP(f"s_mul_i32 s{S_T1}, s{S_T1}, {PROW}")
SP(f"s_lshl_b32 s{S_T0}, s{S_TB}, 8")
SP(f"s_add_u32 s{S_T0}, s{S_T0}, s{S_T1}")
SP(f"s_mul_i32 s{S_T1}, s{S_FH}, {PGEN}")
SP(f"s_add_u32 s{S_T0}, s{S_T0}, s{S_T1}")
SP(f"s_add_u32 s{S_T0}, s{S_T0}, {WS_P}")
SP(f"v_add_u32 v11, s{S_T0}, v4")
SP(f"v_lshl_add_u32 v4, v6, 2, v5")
SP(f"s_lshl_b32 s{S_T0}, s{S_V}, 9")
SP(f"v_lshl_add_u32 v12, v4, 3, s{S_T0}")
SP(f"v_lshlrev_b32 v13, 3, {v(V_LANE)}")
SP(f"v_mov_b32 v14, 0x3f803f80")
if not NOPF:
    SP(f"s_sub_u32 s{S_T1}, s{S_W}, 224")
    SP(f"s_lshr_b32 s{S_T0}, s{S_V}, 1")
    SP(f"s_lshl1_add_u32 s{S_T1}, s{S_T1}, s{S_T0}")
    SP(f"s_mul_i32 s{S_T1}, s{S_T1}, {35*128}")
    SP(f"s_add_u32 s{S_T1}, s{S_T1}, {3584*128}")
    SP(f"v_min_u32 v4, 34, {v(V_LANE)}")
    SP(f"v_lshl_add_u32 v4, v4, 7, s{S_T1}")
    for k in range(4):
        SP(f"global_load_dword {v(60+k)}, v4, s[{S_PFB}:{S_PFB+1}]")
        if k < 3:
            SP(f"v_add_u32 v4, {2240*128}, v4")
SP(f"s_sub_u32 s{S_T1}, s{S_W}, 224")
SP(f"s_cmp_ge_u32 s{S_T1}, 28")
SP("s_cbranch_scc1 L_sp_nowf")
SP(f"s_lshr_b32 s{S_DB}, s{S_T1}, 2")
SP(f"s_and_b32 s{S_T2}, s{S_T1}, 3")
SP(f"s_lshl_b32 s{S_F3}, s{S_T1}, 10")
SP(f"s_add_u32 s{S_F3}, s{S_F3}, {WS_C + 896*256}")
SP(f"s_mul_i32 s{S_T1}, s{S_T1}, {14*4096}")
SP(f"s_add_u32 s{S_T1}, s{S_T1}, {WS_WF}")
SP(f"v_add_u32 v20, s{S_T1}, {v(V_L16)}")
SP(f"v_lshrrev_b32 v6, 3, {v(V_LANE)}")
SP(f"v_and_b32 v7, 6, v6")
SP(f"v_and_b32 v5, 7, {v(V_LANE)}")
SP(f"v_xor_b32 v7, v7, v5")
SP(f"v_mul_u32_u24 v6, 896, v6")
SP(f"v_lshl_add_u32 v6, v7, 4, v6")
SP(f"s_mul_i32 s{S_T0}, s{S_T2}, {448*896}")
SP(f"s_lshl_b32 s{S_T1}, s{S_DB}, 7")
SP(f"s_add_u32 s{S_T0}, s{S_T0}, s{S_T1}")
SP(f"v_add_u32 v48, s{S_T0}, v6")
for k in range(1, 4):
    SP(f"v_add_u32 {v(48+k)}, {k*(7168-1024)}, v48")
SP(f"s_lshl_b32 s{S_R2}, s{S_V}, 14")
SP(f"s_add_u32 s{S_R2}, s{S_R2}, 4096")
for i in range(4):
    SP(f"s_lshl2_add_u32 s{S_HR+i}, s{S_V}, {i}")
    SP(f"s_min_u32 s{S_HR+i}, s{S_HR+i}, 13")
    SP(f"s_lshl1_add_u32 s{S_T0}, s{S_DB}, s{S_HR+i}")
    SP(f"s_sub_u32 s{S_T1}, s{S_T0}, 14")
    SP(f"s_cmp_ge_u32 s{S_T0}, 14")
    SP(f"s_cselect_b32 s{S_T0}, s{S_T1}, s{S_T0}")
    SP(f"s_mul_i32 s{S_WOFF}, s{S_T0}, {32*896}")
    SP(f"s_add_u32 m0, s{S_R2}, {4096*i}")
    SP(f"s_lshl_b32 s{S_HR+i}, s{S_HR+i}, 12")
    for k in range(4):
        of = f" offset:{1024*k}" if k else ""
        SP(f"buffer_load_dwordx4 {v(48+k)}, {srd(SRD_WD)}, s{S_WOFF} offen{of} lds", tok=f"sw{i}")
SP(f"v_lshrrev_b32 v4, 4, {v(V_LANE)}")
SP(f"v_lshrrev_b32 v6, 1, v4")
SP(f"v_lshlrev_b32 v6, 4, v6")
SP(f"v_and_b32 v7, 1, v4")
SP(f"v_lshl_add_u32 v6, v7, 2, v6")
SP(f"v_bfe_u32 v7, {v(V_LANE)}, 2, 2")
SP(f"v_add_u32 v6, v6, v7")
SP(f"v_bfe_u32 v7, v6, 1, 2")
SP(f"v_lshlrev_b32 v6, 7, v6")
SP(f"v_and_b32 v5, 3, {v(V_LANE)}")
SP(f"v_lshl_add_u32 v6, v5, 3, v6")
for rt in range(4):
    SP(f"v_xor_b32 v5, {rt}, v7")
    SP(f"v_lshl_add_u32 v5, v5, 5, v6")
    SP(f"v_add_u32 {v(52+rt)}, s{S_R2}, v5")
for i in range(4):
    SP.wait(f"sw{i}")
    if i in (0, 3): sps()
    for rt in range(4):
        for h in range(2):
            SP(f"ds_read_b64_tr_b16 {v(64+16*i+4*rt+2*h,2)}, {v(52+rt)} offset:{4096*i+1024*h}")
    for rt in range(4):
        SP(f"buffer_store_dwordx4 {v(64+16*i+4*rt,4)}, v20, {srd(SRD_WS)}, s{S_HR+i} offen offset:{1024*rt} sc1")
SP("s_waitcnt vmcnt(0)")
addcnt(SP, S_F3)
sps()
SP("L_sp_nowf:")
sps()
SP("s_mov_b64 vcc, 3")
spin(SP, "L_sp_c", "L_sp_d", poll_issue(10, 7), 7, sleep=int(OPT.get('spsleep', 2)), exp=f"s{S_E28}")
SP("L_sp_d:")
sps()
for k in range(14):
    SP(f"s_mov_b32 s{S_T0}, {k*4*PROW}")
    SP(f"buffer_load_dwordx4 {v(64+4*k,4)}, v11, {srd(SRD_WS)}, s{S_T0} offen sc1")
SS = 16
for j in range(8):
    SP(f"v_mov_b32 {v(SS+j)}, 0")
for k in range(14):
    for j in range(4):
        SP(f"v_dot2c_f32_bf16 {v(SS+j)}, {v(64+4*k+j)}, v14")
    for j in range(4):
        SP(f"v_dot2c_f32_bf16 {v(SS+4+j)}, {v(64+4*k+j)}, {v(64+4*k+j)}")
for o in (0, 4):
    SP(f"v_permlane32_swap_b32 {v(SS+o)}, {v(SS+o+2)}")
    SP(f"v_permlane32_swap_b32 {v(SS+o+1)}, {v(SS+o+3)}")
for o in (0, 4):
    SP(f"v_add_f32 {v(SS+o)}, {v(SS+o)}, {v(SS+o+2)}")
    SP(f"v_add_f32 {v(SS+o+1)}, {v(SS+o+1)}, {v(SS+o+3)}")
for o in (0, 4):
    SP(f"v_permlane16_swap_b32 {v(SS+o)}, {v(SS+o+1)}")
SP(f"v_add_f32 {v(SS)}, {v(SS)}, {v(SS+1)}")
SP(f"v_add_f32 {v(SS+1)}, {v(SS+4)}, {v(SS+5)}")
sps()
SP(f"ds_write_b64 v12, {v(SS,2)}")
SP("s_waitcnt lgkmcnt(0)")
SP("s_barrier")
SP(f"s_cmp_lg_u32 s{S_V}, 0")
SP("s_cbranch_scc1 L_fin")
t = 24
for w in range(4):
    SP(f"ds_read_b64 {v(t+2*w,2)}, v13 offset:{512*w}")
SP(f"s_lshl_b32 s{S_T0}, s{S_TB}, 1")
SP(f"s_add_u32 s{S_T0}, s{S_T0}, s{S_FH}")
SP(f"s_lshl_b32 s{S_T0}, s{S_T0}, 9")
SP(f"s_add_u32 s{S_T0}, s{S_T0}, {WS_S2}")
SP(f"v_pk_add_f32 {v(t,2)}, {v(t,2)}, {v(t+2,2)}")
SP(f"v_pk_add_f32 {v(t+4,2)}, {v(t+4,2)}, {v(t+6,2)}")
SP(f"v_pk_add_f32 {v(t,2)}, {v(t,2)}, {v(t+4,2)}")
SP(f"v_mul_f32 {v(t)}, s{S_K0}, {v(t)}")
SP(f"v_mul_f32 {v(t+1)}, s{S_K0}, {v(t+1)}")
SP(f"v_fma_f32 {v(t+1)}, -{v(t)}, {v(t)}, {v(t+1)}")
SP(f"v_max_f32 {v(t+1)}, 0, {v(t+1)}")
round_bf16(SP, t + 1, t + 1)
SP(f"v_add_f32 {v(t+1)}, {f32(1e-5)}, {v(t+1)}")
round_bf16(SP, t + 1, t + 1)
SP(f"v_sqrt_f32 {v(t+1)}, {v(t+1)}")
SP(f"v_cvt_pk_bf16_f32 {v(t)}, {v(t+1)}, -{v(t)}")
SP(f"v_mov_b32 {v(t+1)}, s{S_NONCE}")
for r_ in range(7):
    SP(f"buffer_store_dwordx2 {v(t,2)}, v13, {srd(SRD_WS)}, s{S_T0} offen sc1")
    SP(f"s_add_u32 s{S_T0}, s{S_T0}, {S2REP}")
sps()
SP(f"s_cmp_lg_u32 s{S_W}, 255")
SP("s_cbranch_scc1 L_fin")
SP(f"v_lshlrev_b32 v4, 25, {v(V_LANE)}")
SP(f"buffer_store_dword {v(t+1)}, v4, {srd(SRD_WS)}, 0 offen sc1")
SP("s_branch L_fin")


def b_read(J, ks):
    q = sub()
    b = BF + 4 * (ks % NBF)
    q(f"ds_read2st64_b32 {v(b,2)}, {v(V_BR)} offset0:{8*ks} offset1:{8*ks+1}")
    q(f"ds_read2st64_b32 {v(b+2,2)}, {v(V_BR)} offset0:{8*ks+2} offset1:{8*ks+3}", tok=f"b{J}_{ks}")
    return q.ins


def g1_gaps(J, extra_after=None):
    m = sub()
    g0 = GACC[J & 1]
    for ks in range(28):
        for mm in range(2):
            d = g0 + 16 * mm
            c = "0" if ks == 0 else v(d, 16)
            m(f"v_mfma_f32_32x32x16_bf16 {v(d,16)}, {acc(wfrag(mm,ks),4)}, {v(BF+4*(ks%NBF),4)}, {c}")
    for mm in range(2):
        d = g0 + 16 * mm
        m(f"v_mfma_f32_32x32x16_bf16 {v(d,16)}, {acc(A_CS[mm],4)}, {v(MB,4)}, {v(d,16)}")
    g = Gaps(m.ins, 6)
    for ks in range(28):
        k2 = ks + NBF - 1
        if k2 < 28:
            r = b_read(J, k2)
            g.at(2 * ks, [r[0]])
            g.at(2 * ks + 1, [r[1]])
        if ks % 3 == 2 and ks + 1 < 28:
            w = sub()
            w.wait(f"b{J}_{min(ks+3,27)}")
            g.at(2 * ks + 1, w.ins)
    return g


def next_tile_reads(g, J, delta, first=42):
    q = sub()
    q(f"v_add_u32 {v(V_BR)}, {delta}, {v(V_BR)}")
    g.at(first, q.ins)
    for ks in range(NBF - 1):
        old = max(k for k in range(28) if k % NBF == ks)
        r = b_read(J, ks)
        at = max(2 * old + 1, first + 1)
        g.at(at, r[:1])
        g.at(min(at + 1, 57), r[1:])


def g1_epi(J):
    q = sub()
    g = GACC[J & 1]
    kc = KC_[J & 1]
    T = EPT
    for j0 in range(0, 16, 4):
        js = range(j0, j0 + 4)
        for j in js:
            q(f"v_mul_f32 {v(T+j-j0)}, {v(g+j)}, {v(g+j)}")
        for j in js:
            q(f"v_fma_f32 {v(T+j-j0)}, {v(T+j-j0)}, {v(kc+1)}, {v(kc)}")
        for j in js:
            q(f"v_mul_f32 {v(T+j-j0)}, {v(T+j-j0)}, {v(g+j)}")
        for j in js:
            q(f"v_exp_f32 {v(T+j-j0)}, {v(T+j-j0)}")
            q(f"v_mul_f32 {v(T+4+j-j0)}, {v(g+j)}, {v(g+16+j)}")
        for j in js:
            q(f"v_fma_f32 {v(T+j-j0)}, {v(T+j-j0)}, {v(kc+2)}, {v(kc+2)}")
        for j in js:
            q(f"v_rcp_f32 {v(T+j-j0)}, {v(T+j-j0)}")
        for j in js:
            q(f"v_mul_f32 {v(T+4+j-j0)}, {v(T+4+j-j0)}, {v(T+j-j0)}")
        q(f"v_cvt_pk_bf16_f32 {v(HP+(j0//2)%4)}, {v(T+4)}, {v(T+5)}")
        q(f"v_cvt_pk_bf16_f32 {v(HP+(j0//2)%4+1)}, {v(T+6)}, {v(T+7)}")
        if j0 in (4, 12):
            q2 = j0 // 8
            q(f"buffer_store_dwordx4 {v(HP,4)}, {v(V_HST)}, {srd(SRD_WS)}, 0 offen offset:{512*q2} sc1", tok=f"H{J}")
    q(f"v_add_u32 {v(V_HST)}, {2*57344}, {v(V_HST)}")
    return q.ins


def flag3(J):
    q = sub()
    q.wait(f"H{J}")
    addcnt(q, S_F3)
    q(f"s_add_u32 s{S_F3}, s{S_F3}, 2048")
    return q.ins


WDREG = {}
for i in range(4):
    for rt in range(4):
        WDREG[i, rt] = v(WDV + 16 * i + 4 * rt, 4)
        WDREG[10, rt] = acc(240 + 4 * rt, 4)
        WDREG[11, rt] = v([176, 180, 184, 56][rt], 4)
        WDREG[12, rt] = acc(4 * rt, 4)
        WDREG[13, rt] = acc(16 + 4 * rt, 4)
for i in range(6):
    for rt in range(4):
        WDREG[4 + i, rt] = acc(128 + 16 * i + 4 * rt, 4)
KORD = [0, 1, 2, 3, 10, 11, 12, 13, 4, 5, 6, 7, 8, 9]


def wdr(ft, rt):
    return WDREG[ft, rt]


def wd_load(ft):
    q = sub()
    q(f"s_mov_b32 s{S_WOFF}, {ft*4096}")
    for k in range(4):
        of = f" offset:{1024*k}" if k else ""
        q(f"buffer_load_dwordx4 {wdr(ft,k)}, {v(V_WF)}, {srd(SRD_WS)}, s{S_WOFF} offen{of} sc1")
    return q.ins


def wd_dma(ft):
    q = sub()
    sbase, slot = (S_FW, ft - 4) if ft < 6 else (S_R2, ft - 6)
    q(f"s_add_u32 m0, s{sbase}, {slot*4096}")
    q(f"s_mov_b32 s{S_WOFF}, {ft*4096}")
    for k in range(4):
        of = f" offset:{1024*k}" if k else ""
        q(f"buffer_load_dwordx4 {v(V_WF)}, {srd(SRD_WS)}, s{S_WOFF} offen{of} sc1 lds", tok=f"wd{ft}")
    return q.ins


def wd_read(ft):
    q = sub()
    va, slot = (V_LF, ft - 4) if ft < 6 else (V_LR, ft - 6)
    for rt in range(4):
        q(f"ds_read_b128 {wdr(ft,rt)}, {v(va)} offset:{4096*slot+1024*rt}")
    return q.ins


def res_read(J):
    q = sub()
    q(f"ds_read2st64_b32 {v(RESR[J],2)}, {v(V_RES)} offset0:0 offset1:1", tok=f"res{J}")
    q(f"v_add_u32 {v(V_RES)}, {128 if J % 2 == 0 else L_ACT[1]-128}, {v(V_RES)}")
    return q.ins


ad = sub()
ad(f"v_lshrrev_b32 v4, 4, v0")
ad(f"v_and_b32 v5, 15, v0")
ad(f"v_lshlrev_b32 v6, 9, v5")
ad(f"v_lshl_add_u32 v6, v4, 2, v6")
ad(f"s_lshl_b32 s{S_T0}, s{S_DB}, 13")
ad(f"s_lshl_b32 s{S_T1}, s{S_FH}, 6")
ad(f"s_add_u32 s{S_T0}, s{S_T0}, s{S_T1}")
ad(f"v_add_u32 {v(V_RES)}, s{S_T0}, v6")
ad(f"v_lshrrev_b32 v6, 2, v4")
ad(f"v_and_b32 v7, 3, v4")
ad(f"v_lshl_add_u32 v6, v6, 4, v7")
ad(f"v_mul_u32_u24 v6, 896, v6")
ad(f"v_lshl_add_u32 v6, v5, 3, v6")
ad(f"s_lshr_b32 s{S_T0}, s{S_TB}, 2")
ad(f"s_lshl_b32 s{S_T0}, s{S_T0}, 8")
ad(f"s_add_u32 s{S_T0}, s{S_T0}, s{S_T1}")
ad(f"s_and_b32 s{S_T1}, s{S_TB}, 3")
ad(f"s_lshl_b32 s{S_T1}, s{S_T1}, 2")
ad(f"s_add_u32 s{S_T0}, s{S_T0}, s{S_T1}")
ad(f"s_mul_i32 s{S_T0}, s{S_T0}, 896")
ad(f"s_lshl_b32 s{S_T1}, s{S_DB}, 7")
ad(f"s_add_u32 s{S_T0}, s{S_T0}, s{S_T1}")
ad(f"v_add_u32 {v(V_OST)}, s{S_T0}, v6")
ad(f"v_mul_u32_u24 v6, 272, v5")
ad(f"v_lshl_add_u32 v6, v4, 4, v6")
ad(f"v_add_u32 {v(V_RR)}, {L_R}, v6")
ad(f"v_lshrrev_b32 v4, 4, {v(V_LANE)}")
ad(f"v_mul_u32_u24 v6, 272, v4")
ad(f"v_lshl_add_u32 v6, v5, 4, v6")
ad(f"s_mul_i32 s{S_T0}, s{S_V}, 4352")
ad(f"s_add_u32 s{S_T0}, s{S_T0}, {L_R}")
ad(f"v_add_u32 {v(V_RW)}, s{S_T0}, v6")
flg_lanes(ad, 2)
ad(f"v_add_u32 {v(V_A)}, {PGEN}, {v(V_A)}")
ad(f"v_add_u32 {v(V_A+1)}, {PGEN}, {v(V_A+1)}")

for i in range(1, 4):
    P(f"v_mov_b32 {v(MB+i)}, 0")
    P(f"v_accvgpr_write_b32 {acc(A_CS[0]+i)}, 0")
    P(f"v_accvgpr_write_b32 {acc(A_CS[1]+i)}, 0")
P.wait("act0")
P("s_waitcnt lgkmcnt(0)")
P("s_barrier")
stamp("gemm1 start")
for ks in range(NBF - 1):
    P.add(b_read(0, ks))

def hreg(J, ft):
    n = KORD.index(ft)
    if J in (0, 3):
        return acc(32 + 4 * n, 4)
    if J == 1:
        return v(64 + 4 * n if n < 8 else 128 + 4 * (n - 8), 4)
    return v(96 + 4 * n if n < 8 else 152 + 4 * (n - 8), 4)


def h_loads(J):
    o = []
    for s_ in KORD:
        q = sub()
        of = " offset:1024" if s_ % 2 else ""
        q(f"buffer_load_dwordx4 {hreg(J,s_)}, {v(V_HL)}, {srd(SRD_WS)}, s{S_HR+s_//2} offen{of} sc1")
        o.append(q.ins)
    if J < 3:
        q = sub()
        q(f"v_add_u32 {v(V_HL)}, {2*57344}, {v(V_HL)}")
        o[-1] += q.ins
    return o


def p3_next():
    q = sub()
    q(f"v_add_u32 {v(V_P3)}, 2048, {v(V_P3)}")
    return q.ins


g = g1_gaps(0)
g.at(0, poll_check(V_F4, 25))
pin_vm(g, 0, [wd_load(0), wd_load(1), wd_load(2), wd_load(3)], 2.3)
t4 = w_tr(6, 0, 8, "t4") + w_tr(6, 1, 12, "t4")
g.at(17, waitq("w4"))
pin_spread(g, 17, t4, per=2)
e = g.fill(ad.ins, start=0)
assert e < 24, e
g.at(28, waitq("t4") + cs_mfma(24, 28))
cf = sub()
for m in range(2):
    round_bf16(cf, 54, CSA[m])
    cf(f"v_sub_f32 v55, {v(CSA[m])}, v54")
    cf(f"v_cvt_pk_bf16_f32 v54, v54, v55")
    cf(f"v_accvgpr_write_b32 {acc(A_CS[m])}, v54")
g.fill(cf.ins, start=32, end=50)
g.at(int(OPT.get("pb1", 21)), poll_issue(V_F2, 23))
g.at(int(OPT.get("pb2", 37)), poll_issue(V_F2, 25))
g.at(int(OPT.get("st0", 36)), st_issue(0))
pin_vm(g, 38, [wd_dma(4), wd_dma(5)], 2.3)
g.at(53, stq("t0 pre st") + st_check(0) + stq("t0 post st"))
g.fill(st_final(0), start=53, end=55)
g.at(57, stq("t0 pre pB") + poll_check2(V_F2, 23, 25, "3", f"s{S_E28}") + stq("t0 post pB"))
next_tile_reads(g, 1, 128)
P.add(g.out())
stamp("tile0")
g = g1_gaps(1)
e = pin_vm(g, 0, act_dma(1)[:2] + [st_issue(1)] + act_dma(1)[2:], 2)
pin_vm(g, e + 1, [wd_load(10)], 3)
g.at(43, res_read(0))
g.at(45, res_read(1))
g.at(40, st_check(1))
g.fill(st_final(1), start=41, end=54)
bq = sub()
bq.wait("act1")
bq.wait("res1")
bq("s_barrier")
BB = int(OPT.get("bb", 52))
g.at(BB, stq("t1 pre bar") + bq.ins + stq("t1 post bar"))
next_tile_reads(g, 2, L_ACT[1] - 128, first=BB)
e = g.fill(g1_epi(0), start=3)
print("tile 1: epilogue ends at gap", e, "tail", len(g.tail))
P.add(g.out())
stamp("tile1")
g = g1_gaps(2)
pin_vm(g, 0, [wd_dma(6), wd_dma(7), st_issue(2), wd_dma(8), wd_dma(9), wd_load(11), st_issue(3)], 2.5)
g.at(24, flag3(0))
g.at(49, st_check(2))
g.fill(st_final(2), start=50, end=54)
g.at(56, poll_issue(V_P3, 7))
next_tile_reads(g, 3, 128)
e = g.fill(g1_epi(1), start=3)
print("tile 2: epilogue ends at gap", e, "tail", len(g.tail))
P.add(g.out())
stamp("tile2")
g = g1_gaps(3)
T3S = float(OPT.get("t3s", 2.4))
e = pin_vm(g, 4, [wd_load(12), wd_load(13)], T3S)
g.at(int(OPT.get("f1", 21)), flag3(1))
g.at(48, st_check(3))
g.fill(st_final(3), start=49, end=54)
g.at(e - 1, stq("t3 pre p0") + poll_check(V_P3, 7) + stq("t3 post p0") + p3_next())
pin_vm(g, e, h_loads(0), T3S)
g.at(int(OPT.get("p1", 47)), poll_issue(V_P3, 7))
g.at(52, res_read(2))
g.at(54, res_read(3))
e = g.fill(g1_epi(2), start=2)
print("tile 3: epilogue ends at gap", e, "tail", len(g.tail))
P.add(g.out())
stamp("tile3")
P.add(waitq("wd9") + wd_read(4) + wd_read(5))
ep = g1_epi(3)
h1 = h_loads(1)
NE = int(OPT.get("ne", 3))
P.add(sprinkle(ep, [(int(OPT.get("f2", 120)), flag3(2))] + [(68, poll_check(V_P3, 7) + p3_next())] + [(69 + 22 * i, h1[i]) for i in range(NE)]))
stamp("epi3")

OA = [8, 48]
OA = [224, 96]
RT = 176


def g2_mfma(J):
    m = sub()
    for ft in KORD:
        for rt in range(4):
            d = acc(OA[J & 1] + 4 * rt, 4)
            c = "0" if ft == 0 else d
            m(f"v_mfma_f32_16x16x32_bf16 {d}, {wdr(ft,rt)}, {hreg(J,ft)}, {c}")
    return m.ins


RTMP = [28, 32, 36, 12]


def red_write(J):
    q = sub()
    for rt in range(4):
        q(f"ds_write_b128 {v(V_RW)}, {acc(OA[J&1]+4*rt,4)} offset:{(J&1)*R_SZ + rt*1088}")
    return q.ins


def red_bar():
    q = sub()
    q("s_waitcnt lgkmcnt(0)")
    q("s_barrier")
    return q.ins


def red_read(J):
    q = sub()
    for w in range(4):
        q(f"ds_read_b128 {v(RTMP[w],4)}, {v(V_RR)} offset:{(J&1)*R_SZ + w*4352}")
    return q.ins


def red_fin(J):
    q = sub()
    a, b, c, d = RTMP
    for i in range(2):
        q(f"v_lshlrev_b32 {v(16+2*i)}, 16, {v(RESR[J]+i)}")
        q(f"v_and_b32 {v(17+2*i)}, 0xffff0000, {v(RESR[J]+i)}")
    for i in range(4):
        q(f"v_add_f32 {v(a+i)}, {v(a+i)}, {v(b+i)}")
    for i in range(4):
        q(f"v_add_f32 {v(c+i)}, {v(c+i)}, {v(d+i)}")
    for i in range(4):
        q(f"v_add_f32 {v(a+i)}, {v(a+i)}, {v(16+i)}")
    for i in range(4):
        q(f"v_add_f32 {v(a+i)}, {v(a+i)}, {v(c+i)}")
    for i in range(2):
        q(f"v_cvt_pk_bf16_f32 {v(20+i)}, {v(a+2*i)}, {v(a+2*i+1)}")
    q(f"s_mov_b32 s{S_T0}, {(1024*(J>>1) + 128*(J&1))*896}")
    q(f"buffer_store_dwordx2 v[20:21], {v(V_OST)}, {srd(SRD_OUT)}, s{S_T0} offen {OPT.get('ost', '').replace('_', ' ')}")
    return q.ins


for J in range(4):
    g = Gaps(g2_mfma(J), 2)
    if J > 0:
        pin_spread(g, 4, red_write(J - 1), per=1)
        g.at(16, red_bar())
        pin_spread(g, 17, red_read(J - 1), per=1)
        g.fill(red_fin(J - 1), start=28)
    if J == 0:
        pin_vm(g, 0, h1[NE:], float(OPT.get("hs1", 4)))
        for i, x in enumerate(wd_read(6) + wd_read(7) + wd_read(8) + wd_read(9)):
            g.at(1 + 2 * i, [x])
        g.at(int(OPT.get("p2a", 18)), poll_issue(V_P3, 7))
        g.at(int(OPT.get("p2b", 36)), poll_issue(V_P3, 23))
        g.at(int(OPT.get("f3", 42)), flag3(3))
        bq = sub()
        bq.wait("res3")
        bq("s_barrier")
        g.at(52, bq.ins)
        g.at(55, poll_check2(V_P3, 7, 23, "1", f"s{S_E14}") + p3_next())
    if J == 1:
        pin_vm(g, 0, h_loads(2), float(OPT.get("hs", 3.5)))
        g.at(int(OPT.get("p3a", 14)), poll_issue(V_P3, 7))
        g.at(int(OPT.get("p3b", 32)), poll_issue(V_P3, 23))
        g.at(55, poll_check2(V_P3, 7, 23, "1", f"s{S_E14}"))
    if J == 2:
        pin_vm(g, 0, h_loads(3), float(OPT.get("hs3", 2)))
    P.add(g.out())
    stamp(f"g2 tile{J}")
P.add(red_write(3))
P.add(red_bar())
P.add(red_read(3))
P.add(red_fin(3))
stamp("end")

if "hold" in OPT:
    if "cls" in OPT:
        P(f"s_and_b32 s98, s{S_W}, 7")
        P(f"s_cmp_lg_u32 s98, {OPT['cls']}")
        P("s_cbranch_scc1 L_fin")
    P("L_hold:")
    P("s_memrealtime s[98:99]")
    P("s_waitcnt lgkmcnt(0)")
    P("s_sub_u32 s98, s98, s100")
    P("s_cmp_lt_u32 s98, 4000")
    P("s_cbranch_scc1 L_hold")
P("L_fin:")
if STAMPS:
    P(f"s_lshl_b32 s{S_T0}, s{S_W}, 2")
    P(f"s_add_u32 s{S_T0}, s{S_T0}, s{S_V}")
    P(f"s_lshl_b32 s{S_T0}, s{S_T0}, 8")
    P(f"s_add_u32 s{S_T0}, s{S_T0}, {WS_DBG + 0x800000}")
    P(f"v_lshlrev_b32 v4, 2, v1")
    P(f"buffer_store_dword v255, v4, {srd(SRD_WS)}, s{S_T0} offen")
if "dbgout" in OPT:
    P(f"s_cmp_ge_u32 s{S_W}, 224")
    P("s_cbranch_scc1 L_end")
    P(f"v_readlane_b32 s{S_T0}, v255, 0")
    P(f"s_not_b32 s{S_T0}, s{S_T0}")
    P(f"v_writelane_b32 v255, s{S_T0}, 15")
    P("s_mov_b64 exec, 0xffff")
    P(f"v_lshlrev_b32 v4, 2, v1")
    P("global_atomic_umax v4, v255, s[60:61]")
P("L_end:")
P("s_endpgm")

res = finalize(P.ins, verbose=True) + finalize(TAIL.ins) + finalize(SP.ins)
if "report" in OPT:
    report_waits(finalize(P.ins))
launch = f"; @launch kernel={KN} grid" if ("list" in OPT or STAMPS) else "; @launch grid"
hdr = f"""; Fused pre-LN S4D conv + GEGLU FFN, one persistent launch (generated by my own script)
{launch}=(256,1,1) block=(256,1,1) lds={LDS_SIZE}
.amdgcn_target "amdgcn-amd-amdhsa--gfx950"
.text
.globl {KN}
.p2align 8
.type {KN},@function
{KN}:
"""
ftr = f"""
.p2align 8
.fill 64, 4, 0xbf800000
L_codeend:
.section .rodata,"a"
.p2align 6
.amdhsa_kernel {KN}
  .amdhsa_next_free_vgpr 512
  .amdhsa_next_free_sgpr 102
  .amdhsa_accum_offset 256
  .amdhsa_group_segment_fixed_size 0
  .amdhsa_kernarg_size 112
  .amdhsa_user_sgpr_count 2
  .amdhsa_user_sgpr_kernarg_segment_ptr 1
  .amdhsa_system_sgpr_workgroup_id_x 1
.end_amdhsa_kernel
"""
open(OUTF, "w").write(hdr + text_of(res) + ftr)
src = open(__file__).read()
a = src.index("# ---------------- workspace layout")
b = src.index("# ---------------- LDS layout")
open("layout.py", "w").write(src[a:b] + "\nSTAMP_NAMES = " + repr(stamp_names) + "\nSPIN_NAMES = " + repr(spin_names) + "\n")
```

```python
import sys, math, struct
from asmgen import *

NAME = "sequential_preLN__ssm_conv_s4d__geglu_ffn__prompt"
KN = NAME + "_kernel"
OPT = {}
for a in sys.argv[1:]:
    k, _, val = a.partition("=")
    OPT[k] = val if val else True
STAMPS = "stamps" in OPT
OUTF = OPT.get("out", "k11.s")
if "wdearly" not in OPT:
    OPT["wdlate"] = True


def f32(x):
    return "0x%08x" % struct.unpack("<I", struct.pack("<f", x))[0]


FS = 4
FREP = 0x9000
WS_EPOCH = 0
WS_F1 = 0x8000
WS_S2 = 0x54000
S2REP = 0x5000
WS_C = 0x80000
WS_UX = 0xD0000
WS_P = WS_UX + 256 * 14336
PROW = 4352
PGEN = 224 * PROW
WS_H = WS_P + 2 * PGEN
WS_WF = WS_H + 16 * 4 * 56 * 2048
WS_END = WS_WF + 392 * 4096
WS_DBG = 0x1000000
WS_SIZE = 0x2000000
LAYOUT = 5

CS = 4160
TAB_W = 14592
TAB_ROW = 272
L_KC = 58368
L_UX = 75008
L_EX = 0
L_RING = 98304
L_ACT = [0, 65536]
L_F = 131072
L_R = 65536
R_SZ = 17408
LDS_SIZE = 163840

S_W = 2
S_V = 4
S_T0, S_T1, S_T2, S_T3 = 5, 6, 7, 3
SRD_X, SRD_WS, SRD_WG, SRD_WU, SRD_WD, SRD_OUT = 8, 12, 16, 20, 24, 28
S_NONCE = 32
S_CNT = 33
S_EX = 34
S_PR, S_DSK = 64, 65
S_TB, S_FB, S_FH, S_DB = 66, 67, 68, 69
S_A, S_B, S_C, S_D = 70, 72, 74, 76
S_RING = 78
S_WOFF = 79
S_K0 = 80
S_TAB = 81
S_F3 = 82
S_F1, S_F2 = 83, 84
S_M255 = 86
S_FW, S_R2 = 88, 89
S_ACTW = 90
S_UXO = 91
S_Z = 95
S_PFB = 88
S_HR = 36
S_PA, S_P4, S_P3, S_PST, S_AB, S_WFB = 40, 41, 42, 43, 44, 45
S_E28, S_E14, S_CI = 46, 47, 85
S_UXM = 92
S_REP = 94
S_PERM = 93
S_STAMP = 96


def srd(n):
    return f"s[{n}:{n+3}]"


def v(n, w=1):
    return f"v{n}" if w == 1 else f"v[{n}:{n+w-1}]"


def acc(n, w=1):
    return f"a{n}" if w == 1 else f"a[{n}:{n+w-1}]"


P = Prog()
TAIL = Prog()
nstamp = [0]
stamp_names = []
spin_names = []
LITE = ("start", "conv start", "genA stored", "gemm1 start", "tile3", "end")
if "dbgout" in OPT:
    LITE = ("start", "x arrived", "ln1 done", "kgen r1", "conv start", "genA stored", "gemm1 start", "tile1", "tile3", "end")


def stamp(name, p=None):
    p = P if p is None else p
    p(f"; @ {name}")
    if OPT.get("hold", "").replace("_", " ") == name:
        p(f"s_memrealtime s[100:101]")
        p("s_waitcnt lgkmcnt(0)")
    if STAMPS and ("lite" not in OPT or name in LITE):
        k = nstamp[0]
        assert k < 32
        p(f"s_memrealtime s[{S_STAMP}:{S_STAMP+1}]")
        p(f"s_memtime s[{S_STAMP+2}:{S_STAMP+3}]")
        p("s_waitcnt lgkmcnt(0)")
        p(f"v_writelane_b32 v255, s{S_STAMP}, {k}")
        p(f"v_writelane_b32 v255, s{S_STAMP+2}, {32+k}")
        nstamp[0] += 1
        stamp_names.append(name)


def stq(name):
    q = sub()
    if "dbg" in OPT:
        stamp(name, q)
    return q.ins


lblc = [0]


def label(prefix):
    lblc[0] += 1
    return f"L_{prefix}_{lblc[0]}"


def poll_issue(what, vtmp):
    q = sub()
    q(f"v_mov_b32 {v(vtmp)}, 0")
    if what == "F1":
        q(f"buffer_atomic_add {v(vtmp)}, {v(V_F1)}, {srd(SRD_WS)}, 0 offen sc0")
    else:
        q(f"buffer_atomic_add {v(vtmp)}, {v(V_PM if what == S_PA else V_P1)}, {srd(SRD_WS)}, s{what} offen sc0")
    return q.ins


def spin(t, name, done, reissue, vtag, sleep=2, exp=None):
    t(f"{name}:")
    t(f"s_mov_b32 s{S_CNT}, 0")
    t(f"{name}_l:")
    t("s_mov_b64 exec, vcc")
    t(f"s_sleep {sleep}")
    t.add(reissue)
    t("s_waitcnt vmcnt(0)")
    t(f"v_cmp_ne_u32 vcc, {exp or f's{S_NONCE}'}, {v(vtag)}")
    t("s_mov_b64 exec, -1")
    if STAMPS and "lite" in OPT:
        spin_names.append(name)
        t(f"s_add_u32 s{S_STAMP}, s{S_CNT}, 1")
        t(f"v_writelane_b32 v255, s{S_STAMP}, {10+len(spin_names)-1}")
    t(f"s_cbranch_vccz {done}")
    t(f"s_add_u32 s{S_CNT}, s{S_CNT}, 1")
    t(f"s_cmp_lt_u32 s{S_CNT}, 0x40000")
    t(f"s_cbranch_scc1 {name}_l")
    t(f"s_branch {done}")


def poll_check(what, vtmp):
    q = sub()
    slow, done = label("slow"), label("pdone")
    exp = f"s{S_NONCE}" if what == "F1" else (f"s{S_E14}" if what == S_P3 else f"s{S_E28}")
    q(f"v_cmp_ne_u32 vcc, {exp}, {v(vtmp)}")
    if what == "F1":
        q(f"s_cbranch_vccnz {slow}")
    else:
        q(f"s_and_b64 vcc, vcc, {3 if what == S_PA else 1}")
        q(f"s_cbranch_scc1 {slow}")
    q(f"{done}:")
    spin(TAIL, slow, done, poll_issue(what, vtmp), vtmp, exp=exp, sleep=1)
    return q.ins


def poll_check2(vaddr, v1, v2, mask, exp):
    q = sub()
    slow, done = label("slow"), label("pdone")
    q(f"v_cmp_ne_u32 vcc, {exp}, {v(v1)}")
    q(f"s_and_b64 vcc, vcc, {mask}")
    q(f"s_cbranch_scc0 {done}")
    q.cond(True)
    q(f"v_cmp_ne_u32 vcc, {exp}, {v(v2)}")
    q(f"s_and_b64 vcc, vcc, {mask}")
    q(f"s_cbranch_scc1 {slow}")
    q.cond(False)
    q(f"{done}:")
    spin(TAIL, slow, done, poll_issue(vaddr, v1), v1, exp=exp, sleep=1)
    return q.ins


def setflag(p, soff):
    p(f"buffer_atomic_swap {v(V_NONCE)}, {v(V_FLG)}, {srd(SRD_WS)}, s{soff} offen")


def addcnt(p, soff, vl):
    p(f"buffer_atomic_add {v(V_NONCE)}, {v(vl)}, {srd(SRD_WS)}, s{soff} offen")


def lanes_reg(p, dst, n, sh, t1=4):
    p(f"v_and_b32 {v(t1)}, {64-n}, {v(V_LANE)}")
    p(f"v_lshlrev_b32 {v(t1)}, 25, {v(t1)}")
    p(f"v_lshl_add_u32 {v(dst)}, {v(V_LANE)}, {sh}, {v(t1)}")


def waitq(tok):
    q = sub()
    q.wait(tok)
    return q.ins


def cmul(p, z, x, y):
    p(f"v_pk_mul_f32 {v(z,2)}, {v(x,2)}, {v(y,2)} op_sel:[0,0] op_sel_hi:[0,1]")
    p(f"v_pk_fma_f32 {v(z,2)}, {v(x,2)}, {v(y,2)}, {v(z,2)} op_sel:[1,1,0] op_sel_hi:[1,0,1] neg_lo:[1,0,0]")


def round_bf16(p, dst, src):
    p(f"v_cvt_pk_bf16_f32 {v(dst)}, {v(src)}, {v(src)}")
    p(f"v_and_b32 {v(dst)}, 0xffff0000, {v(dst)}")


V_LANE, V_NONCE, V_L16 = 1, 2, 3
V_FLG = 8
V_W = 9
V_TRA = 13
V_TA, V_TB, V_TW = 14, 15, 16
GA = 17
V_F1, V_UXL = 26, 27
V_KA = 28
V_UA = 32
V_EU, V_EXP, V_EXW, V_EXR, V_FL2 = 36, 37, 38, 39, 40
V_GW, V_GX, V_GR, V_S3, V_DSK = 240, 241, 242, 243, 244
V_EU1 = 41
V_DT = 42
V_PM = 43
V_P1 = 252
PR = 44
V_PF = 254

LOG2E = 1.4426950408889634

if OPT.get("hold") == "entry":
    P("s_memrealtime s[100:101]")
P(f"s_cmp_ge_u32 s{S_W}, 256")
P("s_cbranch_scc1 L_end")
P(f"s_load_dwordx16 s[36:51], s[0:1], 0")
P(f"s_load_dwordx8 s[52:59], s[0:1], 64")
P(f"s_load_dwordx4 s[60:63], s[0:1], 96")
if "nocpf" not in OPT:
    P(f"s_getpc_b64 s[{S_B}:{S_B+1}]")
    P("L_pc:")
    P(f"s_bfe_u32 s{S_T2}, s{S_W}, 0x30003")
    P(f"s_mul_i32 s{S_T2}, s{S_T2}, ((L_codeend-L_pc)/1024)*128")
    P(f"v_cmp_gt_u32 vcc, (L_codeend-L_pc)/1024, v0")
    P(f"s_add_u32 s{S_B}, s{S_B}, s{S_T2}")
    P(f"s_addc_u32 s{S_B+1}, s{S_B+1}, 0")
    P(f"v_lshlrev_b32 v6, 7, v0")
    P(f"s_and_saveexec_b64 s[{S_A}:{S_A+1}], vcc")
    P("s_cbranch_execz L_nocpf")
    P.cond(True)
    P(f"v_mov_b32 v7, s{S_B+1}")
    P(f"v_add_co_u32 v6, vcc, s{S_B}, v6")
    P(f"v_addc_co_u32 v7, vcc, 0, v7, vcc")
    P(f"global_load_dword v251, v[6:7], off")
    P.cond(False)
    P("L_nocpf:")
    P("s_mov_b64 exec, -1")
if STAMPS:
    P("v_mov_b32 v255, 0")
P(f"v_and_b32 {v(V_LANE)}, 63, v0")
P(f"v_lshrrev_b32 v4, 6, v0")
P(f"v_lshlrev_b32 {v(V_L16)}, 4, {v(V_LANE)}")
P(f"v_readfirstlane_b32 s{S_V}, v4")
P(f"v_mov_b32 v5, 0x7ff00000")
P(f"v_cmp_gt_u32 vcc, 56, {v(V_LANE)}")
P(f"s_lshl_b32 s{S_T0}, s{S_W}, 2")
P(f"s_add_u32 s{S_T0}, s{S_T0}, s{S_V}")
P(f"v_cndmask_b32 v4, v5, {v(V_L16)}, vcc")
P(f"s_mul_i32 s{S_T0}, s{S_T0}, 1792")
P(f"s_and_b32 s{S_T1}, s{S_W}, 7")
P(f"s_mul_i32 s{S_T1}, s{S_T1}, 28")
P(f"s_lshr_b32 s{S_T2}, s{S_W}, 3")
P(f"s_add_u32 s{S_T1}, s{S_T1}, s{S_T2}")
P(f"s_min_u32 s{S_PR}, s{S_T1}, 223")
P(f"s_lshl_b32 s{S_T2}, s{S_PR}, 10")
P(f"v_lshl_add_u32 v6, v0, 2, s{S_T2}")
P(f"v_mov_b32 v7, 0")
P(f"s_lshl_b32 s{S_T1}, s{S_PR}, 2")
P(f"v_mov_b32 v56, s{S_T1}")
P(f"s_mov_b32 s{SRD_X+2}, 1835008")
P(f"s_mov_b32 s{SRD_X+3}, 0x00020000")
P(f"s_mov_b32 s{SRD_WS+2}, {WS_SIZE}")
P(f"s_mov_b32 s{SRD_WS+3}, 0x00020000")
P("s_waitcnt lgkmcnt(0)")
stamp("start")
P(f"s_mov_b64 s[{SRD_X}:{SRD_X+1}], s[36:37]")
XR = 48
P(f"buffer_load_dwordx4 {v(XR,4)}, v4, {srd(SRD_X)}, s{S_T0} offen")
P(f"buffer_load_dwordx4 {v(XR+4,4)}, v4, {srd(SRD_X)}, s{S_T0} offen offset:896")
for r, src, sz in ((SRD_WG, 52, 1605632), (SRD_WU, 54, 1605632), (SRD_WD, 56, 1605632), (SRD_OUT, 58, 1835008)):
    P(f"s_mov_b64 s[{r}:{r+1}], s[{src}:{src+1}]")
    P(f"s_mov_b32 s{r+2}, {sz}")
    P(f"s_mov_b32 s{r+3}, 0x00020000")
P(f"v_cmp_lt_u32 vcc, 7, {v(V_LANE)}")
P(f"v_mul_u32_u24 v4, {FREP}, {v(V_LANE)}")
P(f"s_lshr_b32 s{S_T0}, s{S_W}, 3")
P(f"s_mul_i32 s{S_T1}, s{S_T0}, 37")
P(f"v_cndmask_b32 {v(V_FLG)}, v4, v5, vcc")
P(f"s_lshr_b32 s{S_T1}, s{S_T1}, 8")
P(f"s_mul_i32 s{S_T2}, s{S_T1}, 7")
P(f"s_sub_u32 s{S_DB}, s{S_T0}, s{S_T2}")
P(f"s_and_b32 s{S_FH}, s{S_W}, 1")
P(f"s_and_b32 s{S_T2}, s{S_W}, 6")
P(f"s_lshl_b32 s{S_T2}, s{S_T2}, 1")
P(f"s_add_u32 s{S_TB}, s{S_T2}, s{S_T1}")
P(f"s_mul_i32 s{S_FB}, s{S_FH}, 7")
P(f"s_add_u32 s{S_FB}, s{S_FB}, s{S_DB}")
P(f"s_lshl_b32 s{S_RING}, s{S_V}, 13")
P(f"s_add_u32 s{S_RING}, s{S_RING}, {L_RING}")
P(f"s_mul_i32 s{S_TAB}, s{S_V}, {TAB_W}")
for _ in range(int(OPT.get("xd", 0))):
    P("s_nop 7")
P(f"s_mov_b64 s[{SRD_WS}:{SRD_WS+1}], s[62:63]")
for i in range(4):
    P(f"global_load_dword {v(PR+i)}, v6, s[{38+2*i}:{39+2*i}]")
P(f"global_load_dword {v(V_DT)}, v56, s[46:47]")
P(f"global_load_dword {v(V_DSK)}, v56, s[48:49]")
P(f"buffer_load_dword {v(V_NONCE)}, v7, {srd(SRD_WS)}, 0 offen sc1")
NOPF = "nopf" in OPT
if not NOPF:
    P(f"s_bitcmp1_b32 s{S_V}, 0")
    P(f"s_cselect_b64 s[{S_PFB}:{S_PFB+1}], s[54:55], s[52:53]")
    P(f"s_lshr_b32 s{S_T0}, s{S_V}, 1")
    P(f"s_lshl1_add_u32 s{S_T2}, s{S_W}, s{S_T0}")
    P(f"s_mul_i32 s{S_T0}, s{S_T2}, {7*128}")
    P(f"v_min_u32 v4, 6, {v(V_LANE)}")
    P(f"v_lshl_add_u32 v4, v4, 7, s{S_T0}")
    P(f"global_load_dword {v(V_PF)}, v4, s[{S_PFB}:{S_PFB+1}]")
    P(f"s_mul_i32 s{S_T0}, s{S_W}, 49")
    P(f"s_mul_i32 s{S_T2}, s{S_V}, 12")
    P(f"s_add_u32 s{S_T0}, s{S_T0}, s{S_T2}")
    P(f"v_min_u32 v4, 12, {v(V_LANE)}")
    P(f"v_add_lshl_u32 v245, v4, s{S_T0}, 7")
    if "wdlate" not in OPT:
        P(f"global_load_dword v253, v245, s[56:57]")
P(f"v_cmp_gt_u32 vcc, 32, {v(V_LANE)}")
P(f"v_mul_u32_u24 v4, 37, {v(V_LANE)}")
P(f"v_lshrrev_b32 v4, 9, v4")
P(f"v_cndmask_b32 {v(V_S3)}, v5, {v(V_L16)}, vcc")
P(f"v_mul_u32_u24 v4, {TAB_W-14*272}, v4")
P(f"v_mul_u32_u24 v6, 272, {v(V_LANE)}")
P(f"s_lshl_b32 s{S_T0}, s{S_V}, 2")
P(f"v_add3_u32 {v(V_GW)}, v4, v6, s{S_T0}")
P(f"v_add_u32 {v(V_GX)}, s{S_T0}, {v(V_GW)}")
P(f"s_lshl_b32 s{S_UXM}, s{S_V}, 12")
P(f"s_add_u32 s{S_UXM}, s{S_UXM}, {L_UX+2048}")
P(f"v_and_b32 v4, 48, {v(V_LANE)}")
P(f"v_add3_u32 {v(V_GR)}, v4, {v(V_L16)}, s{S_TAB}")
P(f"v_and_b32 v4, 31, {v(V_LANE)}")
P(f"v_lshrrev_b32 v6, 5, {v(V_LANE)}")
P(f"v_lshl_add_u32 v6, v6, 4, s{S_TAB}")
P(f"v_and_b32 v7, 28, {v(V_LANE)}")
P(f"v_lshl_add_u32 v7, v4, 5, v7")
P(f"v_add_u32 {v(V_TW)}, v6, v7")
P(f"v_mul_u32_u24 v7, {TAB_ROW}, v4")
P(f"v_add_u32 {v(V_TB)}, v6, v7")
P(f"v_min_u32 v4, 20, v4")
P(f"v_mul_u32_u24 v7, {TAB_ROW}, v4")
P(f"v_add_u32 {v(V_TA)}, v6, v7")
P(f"s_lshl2_add_u32 s{S_CI}, s{S_W}, s{S_V}")
P(f"s_lshl_b32 s{S_CI}, s{S_CI}, 8")
P(f"s_add_u32 s{S_CI}, s{S_CI}, {WS_C}")
P(f"v_lshlrev_b32 {v(V_P1)}, 25, {v(V_LANE)}")
P(f"s_mul_i32 s{S_UXO}, s{S_W}, 14336")
P(f"s_mul_i32 s{S_T0}, s{S_V}, 3584")
P(f"s_add_u32 s{S_UXO}, s{S_UXO}, s{S_T0}")
P(f"s_add_u32 s{S_UXO}, s{S_UXO}, {WS_UX}")
P(f"s_lshl_b32 s{S_T0}, s{S_V}, 8")
P(f"s_add_u32 s{S_T0}, s{S_T0}, s{S_W}")
P(f"s_mul_i32 s{S_T0}, s{S_T0}, {FS}")
P(f"s_add_u32 s{S_F1}, s{S_T0}, {WS_F1}")
P(f"v_lshrrev_b32 v4, 2, {v(V_LANE)}")
P(f"v_mul_u32_u24 v4, 3584, v4")
P(f"v_and_b32 v6, 3, {v(V_LANE)}")
P(f"v_lshl_add_u32 v4, v6, 4, v4")
P(f"s_lshl_b32 s{S_T0}, s{S_FB}, 8")
P(f"s_lshl_b32 s{S_T1}, s{S_V}, 6")
P(f"s_add_u32 s{S_T0}, s{S_T0}, s{S_T1}")
P(f"v_add_u32 {v(V_W)}, s{S_T0}, v4")
for k in range(1, 4):
    P(f"v_add_u32 {v(V_W+k)}, {k*(57344-1024)}, {v(V_W)}")
P(f"v_and_b32 v4, 32, {v(V_LANE)}")
P(f"v_lshlrev_b32 v4, 4, v4")
P(f"v_and_b32 v7, 12, {v(V_LANE)}")
P(f"v_lshl_add_u32 v4, v7, 4, v4")
P(f"v_and_b32 v7, 16, {v(V_LANE)}")
P(f"v_lshl_add_u32 v4, v7, 1, v4")
P(f"v_lshl_add_u32 v4, v6, 3, v4")
P(f"v_add_u32 {v(V_TRA)}, s{S_RING}, v4")
P(f"s_mov_b32 s{S_K0}, {L_KC+4096-L_UX}")
P(f"s_movk_i32 s{S_T2}, 128")
P(f"s_bfe_u32 s{S_T0}, s{S_W}, 0x20001")
P(f"s_lshl_b32 s{S_T0}, s{S_T0}, 10")
P(f"s_lshr_b32 s{S_F2}, s{S_T0}, 2")
P(f"s_bfe_u32 s{S_REP}, s{S_W}, 0x30003")
P(f"s_mul_i32 s{S_REP}, s{S_REP}, {FREP}")
P(f"s_add_u32 s{S_REP}, s{S_REP}, {WS_F1}")
P(f"s_add_u32 s{S_T0}, s{S_T0}, s{S_REP}")
P(f"v_lshl_add_u32 {v(V_F1)}, v0, 2, s{S_T0}")
P(f"v_lshrrev_b32 v4, 2, {v(V_LANE)}")
P(f"v_add_u32 v4, s{S_T1}, v4")
P(f"v_mul_u32_u24 v7, 14336, v4")
P(f"v_lshrrev_b32 v4, 4, {v(V_LANE)}")
P(f"v_xor_b32 v6, v6, v4")
P(f"v_lshl_add_u32 v7, v6, 4, v7")
P(f"s_lshl_b32 s{S_T0}, s{S_PR}, 6")
P(f"s_add_u32 s{S_T0}, s{S_T0}, {WS_UX}")
P(f"v_add_u32 {v(V_UXL)}, s{S_T0}, v7")
P(f"v_bfe_u32 v6, {v(V_LANE)}, 1, 2")
P(f"v_mul_u32_u24 v6, {CS}, v6")
P(f"v_and_b32 v7, 16, {v(V_L16)}")
P(f"v_add3_u32 v6, v6, v7, s{S_K0}")
P(f"v_lshlrev_b32 v7, 4, v0")
P(f"v_cmp_gt_u32 vcc, s{S_T2}, v0")
P(f"v_mov_b32 v56, 0")
P(f"v_mov_b32 v57, 0")
P(f"v_cndmask_b32 v6, v6, v7, vcc")
P(f"v_mov_b32 v58, 0")
P(f"v_mov_b32 v59, 0")
P(f"v_add_u32 v6, {L_UX}, v6")
P(f"ds_write_b128 v6, v[56:59]")
P(f"v_lshlrev_b32 v4, 3, v0")
P(f"v_sub_u32 v4, 2047, v4")
P(f"v_cvt_f32_i32 v4, v4")
P(f"v_mov_b32 v60, 1028")
P(f"v_cmp_eq_u32 vcc, 0, v0")
for e in range(0, 10, 2):
    P(f"v_add_f32 v6, {f32(-float(e))}, v4")
    if e < 8:
        P(f"v_add_f32 v7, {f32(-float(e+1))}, v4")
    P(f"v_cvt_pk_bf16_f32 v6, v6, v7")
    for h in range(2):
        if e + h > 8:
            continue
        d = GA + e + h
        if h == 0:
            P(f"v_lshlrev_b32 v7, 16, v6")
        else:
            P(f"v_and_b32 v7, 0xffff0000, v6")
        P(f"v_cvt_u32_f32 v7, v7")
        if e + h < 4:
            P(f"v_cndmask_b32 v7, v7, v60, vcc")
        P(f"v_lshrrev_b32 {v(d)}, 5, v7")
        P(f"v_add_lshl_u32 {v(d)}, {v(d)}, v7, 2")
P(f"v_mov_b32 v4, 255")
P(f"v_cmp_eq_u32 s[{S_M255}:{S_M255+1}], v4, v0")
P(f"v_and_b32 v4, 15, {v(V_LANE)}")
P(f"v_lshrrev_b32 v5, 4, {v(V_LANE)}")
P(f"v_lshl_add_u32 v6, v5, 3, v4")
P(f"v_sub_u32 v6, 39, v6")
P(f"v_and_b32 v7, 1, v6")
P(f"v_mul_u32_u24 v7, {CS-2}, v7")
P(f"v_lshl_add_u32 v6, v6, 1, v7")
P(f"s_lshr_b32 s{S_T0}, s{S_V}, 1")
P(f"s_andn2_b32 s{S_T3}, 1, s{S_V}")
P(f"s_mul_i32 s{S_T2}, s{S_T0}, {2*CS}")
P(f"s_lshl_b32 s{S_T1}, s{S_T3}, 8")
P(f"s_add_u32 s{S_T2}, s{S_T2}, s{S_T1}")
P(f"s_add_u32 s{S_T2}, s{S_T2}, {L_KC}")
P(f"v_add_u32 {v(V_KA+3)}, s{S_T2}, v6")
for k in range(3):
    P(f"v_add_u32 {v(V_KA+k)}, {64*(48-16*k)}, {v(V_KA+3)}")
P(f"v_lshlrev_b32 v6, 1, v4")
P(f"v_sub_u32 v6, v6, v5")
P(f"s_lshl4_add_u32 s{S_T1}, s{S_T3}, 17")
P(f"v_add_u32 v6, s{S_T1}, v6")
P(f"s_mov_b32 s{S_T2}, {L_UX}")
for rr in range(4):
    P(f"v_bfe_u32 v7, v6, 2, 2")
    P(f"v_xor_b32 v7, s{S_T0}, v7")
    P(f"v_lshl_add_u32 v7, v6, 2, v7")
    P(f"v_lshl_add_u32 {v(V_UA+rr)}, v7, 4, s{S_T2}")
    if rr < 3:
        P(f"v_subrev_u32 v6, 4, v6")
P(f"v_lshrrev_b32 v6, 1, v5")
P(f"v_lshl_add_u32 v6, v4, 1, v6")
P(f"s_lshl_b32 s{S_T2}, s{S_V}, 11")
P(f"s_add_u32 s{S_T2}, s{S_T2}, {L_UX+2048}")
P(f"v_lshl_add_u32 v6, v6, 6, s{S_T2}")
P(f"v_bfe_u32 v4, v4, 1, 2")
P(f"v_and_b32 v5, 1, v5")
P(f"v_lshl_add_u32 v7, v4, 4, v6")
P(f"v_lshl_add_u32 {v(V_EU)}, v5, 3, v7")
P(f"v_xor_b32 {v(V_EU1)}, 16, {v(V_EU)}")
P(f"v_or_b32 v5, 2, v5")
P(f"v_xor_b32 v4, v4, v5")
P(f"v_lshl_add_u32 {v(V_EXP)}, v4, 4, v6")
P(f"s_mul_i32 s{S_ACTW}, s{S_V}, 14336")
P(f"v_add_u32 {v(V_EXR)}, s{S_ACTW}, {v(V_L16)}")
P(f"v_lshlrev_b32 {v(V_EXW)}, 4, v0")
P(f"s_mul_i32 s{S_PST}, s{S_PR}, {PROW}")
P(f"s_add_u32 s{S_PST}, s{S_PST}, {WS_P}")
lanes_reg(P, V_FL2, 4, 10)
lanes_reg(P, V_PM, 2, 12)
P(f"s_lshl1_add_u32 s{S_T0}, s{S_V}, s{S_FH}")
P(f"s_lshl_b32 s{S_T0}, s{S_T0}, 12")
P(f"s_add_u32 s{S_F2}, s{S_F2}, s{S_T0}")
P(f"s_add_u32 s{S_F2}, s{S_F2}, {WS_C}")
P(f"s_lshr_b32 s{S_T0}, s{S_TB}, 2")
P(f"s_bfe_u32 s{S_REP}, s{S_W}, 0x20003")
P(f"s_lshl3_add_u32 s{S_T0}, s{S_T0}, s{S_REP}")
P(f"s_lshl2_add_u32 s{S_T0}, s{S_T0}, s{S_V}")
P(f"s_lshl_b32 s{S_T0}, s{S_T0}, 8")
P(f"s_add_u32 s{S_PA}, s{S_T0}, {WS_C}")
P(f"s_lshl2_add_u32 s{S_T2}, s{S_DB}, s{S_V}")
P(f"s_lshl2_add_u32 s{S_T3}, s{S_T2}, s{S_REP}")
P(f"s_lshl_b32 s{S_T3}, s{S_T3}, 8")
P(f"s_add_u32 s{S_P4}, s{S_T3}, {WS_C + 896*256}")
P(f"s_mul_i32 s{S_T2}, s{S_T2}, {14*4096}")
P(f"s_add_u32 s{S_WFB}, s{S_T2}, {WS_WF}")
P(f"s_mul_i32 s{S_T1}, s{S_V}, {56*PROW}")
P(f"s_lshl_b32 s{S_T0}, s{S_TB}, 8")
P(f"s_add_u32 s{S_T0}, s{S_T0}, s{S_T1}")
P(f"s_add_u32 s{S_AB}, s{S_T0}, {WS_P}")

XF = 56
DF = 72
SA = 88
if "fine" in OPT: stamp("setup done")
P(f"s_mov_b32 s{S_EX}, -1")
P(f"s_mov_b32 s{S_EX+1}, 0x00ffffff")
P(f"s_mov_b32 s{S_K0}, {f32(1.0/448)}")
for r in range(2):
    for i in range(4):
        P(f"v_lshlrev_b32 {v(XF+8*r+2*i)}, 16, {v(XR+4*r+i)}")
        P(f"v_and_b32 {v(XF+8*r+2*i+1)}, 0xffff0000, {v(XR+4*r+i)}")
stamp("x arrived")
if "wdlate" in OPT and not NOPF:
    P(f"global_load_dword v253, v245, s[56:57]")
P(f"s_mov_b64 exec, s[{S_EX}:{S_EX+1}]")
for i in range(4):
    P(f"ds_write2_b32 {v(V_GX)}, {v(XR+i)}, {v(XR+4+i)} offset0:{16*i+8} offset1:{16*i+9}")
P("s_mov_b64 exec, -1")
for r in range(2):
    b = XF + 8 * r
    P(f"v_pk_add_f32 {v(DF+8*r,2)}, {v(b,2)}, {v(b+2,2)}")
    P(f"v_pk_add_f32 {v(DF+8*r+2,2)}, {v(b+4,2)}, {v(b+6,2)}")
for r in range(2):
    P(f"v_pk_add_f32 {v(DF+8*r,2)}, {v(DF+8*r,2)}, {v(DF+8*r+2,2)}")
for r in range(2):
    P(f"v_add_f32 {v(SA+r)}, {v(DF+8*r)}, {v(DF+8*r+1)}")


def wave_sum(p, regs):
    for mod in ("row_shr:1", "row_shr:2", "row_shr:4", "row_shr:8"):
        for r in regs:
            p(f"v_add_f32_dpp {v(r)}, {v(r)}, {v(r)} {mod} row_mask:0xf bank_mask:0xf bound_ctrl:0")
    for r in regs:
        p(f"v_add_f32_dpp {v(r)}, {v(r)}, {v(r)} row_bcast:15 row_mask:0xa bank_mask:0xf")
    for r in regs:
        p(f"v_add_f32_dpp {v(r)}, {v(r)}, {v(r)} row_bcast:31 row_mask:0xc bank_mask:0xf")


wave_sum(P, [SA, SA + 1])
for r in range(2):
    P(f"v_mul_f32 {v(SA+r)}, s{S_K0}, {v(SA+r)}")
P(f"v_cvt_pk_bf16_f32 {v(SA+2)}, {v(SA)}, {v(SA+1)}")
P(f"v_readlane_b32 s{S_A}, {v(SA)}, 63")
P(f"v_readlane_b32 s{S_B}, {v(SA+1)}, 63")
P(f"v_readlane_b32 s{S_T0}, {v(SA+2)}, 63")
P(f"v_mov_b32 {v(SA)}, 0")
P(f"v_mov_b32 {v(SA+1)}, 0")
P(f"s_mov_b64 exec, s[{S_EX}:{S_EX+1}]")
for r, sm in ((0, S_A), (1, S_B)):
    for i in range(4):
        P(f"v_pk_add_f32 {v(DF+8*r+2*i,2)}, {v(XF+8*r+2*i,2)}, s[{sm}:{sm+1}] op_sel_hi:[1,0] neg_lo:[0,1] neg_hi:[0,1]")
for r in range(2):
    b = DF + 8 * r
    P(f"v_pk_mul_f32 {v(b,2)}, {v(b,2)}, {v(b,2)}")
    for i in range(1, 4):
        P(f"v_pk_fma_f32 {v(b,2)}, {v(b+2*i,2)}, {v(b+2*i,2)}, {v(b,2)}")
for r in range(2):
    P(f"v_add_f32 {v(SA+r)}, {v(DF+8*r)}, {v(DF+8*r+1)}")
P("s_mov_b64 exec, -1")
P(f"s_lshl_b32 s{S_C}, s{S_T0}, 16")
P(f"s_and_b32 s{S_D}, s{S_T0}, 0xffff0000")
q1 = sub()
wave_sum(q1, [SA, SA + 1])
q2 = sub()
for r, sm in ((0, S_C), (1, S_D)):
    for i in range(4):
        q2(f"v_pk_add_f32 {v(DF+8*r+2*i,2)}, {v(XF+8*r+2*i,2)}, s[{sm}:{sm+1}] op_sel_hi:[1,0] neg_lo:[0,1] neg_hi:[0,1]")
for r in range(2):
    for i in range(4):
        q2(f"v_cvt_pk_bf16_f32 {v(XF+8*r+2*i)}, {v(DF+8*r+2*i)}, {v(DF+8*r+2*i+1)}")
for r in range(2):
    for i in range(4):
        q2(f"v_and_b32 {v(XF+8*r+2*i+1)}, 0xffff0000, {v(XF+8*r+2*i)}")
        q2(f"v_lshlrev_b32 {v(XF+8*r+2*i)}, 16, {v(XF+8*r+2*i)}")
k = 0
for j in range(0, len(q1.ins), 2):
    P.add(q1.ins[j:j + 2])
    P.add(q2.ins[k:k + 1])
    k += 1
P(f"v_mul_f32 {v(SA)}, s{S_K0}, {v(SA)}")
P(f"v_mul_f32 {v(SA+1)}, s{S_K0}, {v(SA+1)}")
for step in range(3):
    P(f"v_cvt_pk_bf16_f32 {v(SA+2)}, {v(SA)}, {v(SA+1)}")
    P(f"v_lshlrev_b32 {v(SA)}, 16, {v(SA+2)}")
    P(f"v_and_b32 {v(SA+1)}, 0xffff0000, {v(SA+2)}")
    for r in range(2):
        if step == 0:
            P(f"v_add_f32 {v(SA+r)}, {f32(1e-5)}, {v(SA+r)}")
        elif step == 1:
            P(f"v_sqrt_f32 {v(SA+r)}, {v(SA+r)}")
        else:
            P(f"v_rcp_f32 {v(SA+r)}, {v(SA+r)}")
    if step:
        P.add(q2.ins[k:k + 1])
        k += 1
P(f"v_readlane_b32 s{S_A}, {v(SA)}, 63")
P(f"v_readlane_b32 s{S_B}, {v(SA+1)}, 63")
P.add(q2.ins[k:])
for r, sm in ((0, S_A), (1, S_B)):
    for i in range(4):
        P(f"v_pk_mul_f32 {v(XF+8*r+2*i,2)}, {v(XF+8*r+2*i,2)}, s[{sm}:{sm+1}] op_sel_hi:[1,0]")
for j in range(8):
    P(f"v_cvt_pk_bf16_f32 {v(DF+j)}, {v(XF+j)}, {v(XF+8+j)}")
P(f"s_mov_b64 exec, s[{S_EX}:{S_EX+1}]")
for i in range(4):
    P(f"ds_write2_b32 {v(V_GW)}, {v(DF+2*i)}, {v(DF+2*i+1)} offset0:{16*i} offset1:{16*i+4}")
P("s_mov_b64 exec, -1")
if "fine" in OPT: stamp("ln1 math")
P("s_waitcnt lgkmcnt(0)")
P("s_barrier")
if "fine" in OPT: stamp("ln1 barrier")
UB = 112
for j in range(4):
    P(f"ds_read_b128 {v(UB+4*j,4)}, {v(V_GR)} offset:{1088*j}")
P(f"s_lshl_b32 s{S_T0}, s{S_V}, 3")
P(f"s_and_b32 s{S_T0}, s{S_T0}, 16")
P(f"s_mov_b32 m0, s{S_TAB}")
P("s_waitcnt lgkmcnt(0)")
for j in range(4):
    P(f"buffer_store_dwordx4 {v(UB+4*j,4)}, {v(V_L16 if j < 3 else V_S3)}, {srd(SRD_WS)}, s{S_UXO} offen offset:{1024*j} sc1", tok="ux")
P(f"s_cmp_lt_u32 s{S_W}, 224")
P("s_cbranch_scc1 L_main")


def nonce_init():
    q = sub()
    q(f"v_readfirstlane_b32 s{S_NONCE}, {v(V_NONCE)}")
    q(f"s_mul_i32 s{S_NONCE}, s{S_NONCE}, 1664525")
    q(f"s_add_u32 s{S_NONCE}, s{S_NONCE}, 1013904223")
    q(f"v_mov_b32 {v(V_NONCE)}, s{S_NONCE}")
    q(f"buffer_store_dword {v(V_NONCE)}, {v(V_P1)}, {srd(SRD_WS)}, s{S_CI} offen sc1", tok="ux")
    q(f"s_add_u32 s{S_E28}, s{S_NONCE}, 28")
    q(f"s_add_u32 s{S_E14}, s{S_NONCE}, 14")
    return q.ins


P.raw(f"s_waitcnt vmcnt({4 if NOPF else 6})")
for x in nonce_init():
    P.raw(x.text)
P.raw("s_waitcnt vmcnt(0)")
P.raw(f"buffer_atomic_swap {v(V_NONCE)}, {v(V_FLG)}, {srd(SRD_WS)}, s{S_F1} offen")
P.raw("s_branch L_spare")
P("L_main:")
stamp("ln1 done")


def wfrag(m, ks):
    return 8 * ks + 4 * m


def slotoff(slot):
    return (slot % 8) * 1024 + (slot // 8) * 32768


def w_dma(kq, m, slot, tok):
    q = sub()
    q(f"s_add_u32 m0, s{S_RING}, {slotoff(slot)}")
    if m == 0:
        q(f"s_mov_b32 s{S_WOFF}, {kq*4*57344}")
    for k in range(4):
        o = f" offset:{1024*k}" if k else ""
        q(f"buffer_load_dwordx4 {v(V_W+k)}, {srd(SRD_WU if m else SRD_WG)}, s{S_WOFF} offen{o} lds", tok=tok)
    return q.ins


def w_tr(kq, m, slot, tok=None):
    q = sub()
    for k in range(4):
        for h in range(2):
            q(f"ds_read_b64_tr_b16 {acc(wfrag(m,4*kq+k)+2*h,2)}, {v(V_TRA)} offset:{slotoff(slot+k)+256*h}", tok=tok)
    return q.ins


def batch_dma(b, tok):
    return [w_dma(2 * b + i // 2, i % 2, 4 * i, f"{tok}_{i}") for i in range(4)]


def batch_tr(b):
    o = []
    for i in range(4):
        o += w_tr(2 * b + i // 2, i % 2, 4 * i, tok=f"t{b}_{i}")
    return o


def singles(groups):
    out, cur = [], []
    for grp in groups:
        for i in grp:
            cur.append(i)
            if i.cls == "vmem":
                out.append(cur)
                cur = []
    if cur:
        out[-1] += cur
    return out


def pin_vm(g, start, groups, stride):
    k = start
    for u in singles(groups):
        g.at(int(k), u)
        k += stride
    return int(k)


def w_dma1(b, n, tok):
    i, k = n // 4, n % 4
    q = sub()
    q(f"s_add_u32 m0, s{S_RING}, {slotoff(4*i)}")
    if n % 8 == 0:
        q(f"s_mov_b32 s{S_WOFF}, {(2*b+i//2)*4*57344}")
    o = f" offset:{1024*k}" if k else ""
    q(f"buffer_load_dwordx4 {v(V_W+k)}, {srd(SRD_WU if i % 2 else SRD_WG)}, s{S_WOFF} offen{o} lds", tok=f"{tok}_{i}")
    q(f"s_mov_b32 m0, s{S_TAB}")
    return q.ins


KD = 176
FR = 192
FR = 112


def kgen_head(rd):
    q = sub()
    A0 = 48 + 0
    CC = 50
    unp = (lambda d, s: q(f"v_lshlrev_b32 {v(d)}, 16, {v(s)}")) if rd == 0 else (lambda d, s: q(f"v_and_b32 {v(d)}, 0xffff0000, {v(s)}"))
    for i in range(4):
        unp(48 + i, PR + i)
    q(f"v_mul_f32 v48, {f32(LOG2E)}, v48")
    q(f"v_exp_f32 v48, v48")
    q(f"v_mul_f32 v49, v49, {v(V_DT)}")
    q(f"v_cvt_pk_bf16_f32 v48, v48, v48")
    q(f"v_mul_f32 v49, 0.15915494, v49")
    q(f"v_and_b32 v48, 0xffff0000, v48")
    q(f"v_mul_f32 v50, v50, {v(V_DT)}")
    q(f"v_mul_f32 v48, v48, {v(V_DT)}")
    q(f"v_mul_f32 v51, v51, {v(V_DT)}")
    q(f"v_mul_f32 v48, {f32(-LOG2E)}, v48")
    q(f"v_add_f32 v50, v50, v50")
    q(f"v_add_f32 v51, v51, v51")
    for (z, pos) in ((52, 1), (54, 16), (56, 256)):
        if pos == 1:
            q(f"v_exp_f32 v4, v48")
            q(f"v_fract_f32 v5, v49")
        else:
            q(f"v_mul_f32 v4, {f32(float(pos))}, v48")
            q(f"v_mul_f32 v5, {f32(float(pos))}, v49")
            q(f"v_exp_f32 v4, v4")
            q(f"v_fract_f32 v5, v5")
        q(f"v_cos_f32 {v(z)}, v5")
        q(f"v_sin_f32 {v(z+1)}, v5")
        q(f"v_mul_f32 {v(z)}, {v(z)}, v4")
        q(f"v_mul_f32 {v(z+1)}, {v(z+1)}, v4")
    return q.ins


def kgen_body(rd):
    names = {"G0": 50, "E1": 52, "E16": 54, "E256": 56}
    nxt = [58]
    chunks = []
    cur = sub()
    wr = sub()
    pk = [0]
    PK = 192

    def new(n):
        names[n] = nxt[0]
        nxt[0] += 2
        assert nxt[0] <= 104
        return names[n]

    def out(kind, row, z):
        t = PK + pk[0] % 16
        pk[0] += 1
        if kind == "B":
            cur(f"v_cvt_pk_bf16_f32 {v(t)}, {v(z)}, {v(z+1)}")
            wr(f"ds_write_addtid_b32 {v(t)} offset:{row*TAB_ROW}")
        else:
            cur(f"v_cvt_pk_bf16_f32 {v(t)}, {v(z)}, -{v(z+1)}")
            wr(f"ds_write_addtid_b32 {v(t)} offset:{(32+row)*TAB_ROW}")
        if len(wr.ins) >= GROUP:
            flush()

    def flush():
        nonlocal cur, wr
        chunks.append(cur.ins + wr.ins)
        cur = sub()
        wr = sub()

    sc = [0]

    def mul(n, a, b, kind=None, row=None):
        if n is None:
            z = 104 + 2 * (sc[0] % 4)
            sc[0] += 1
        else:
            z = new(n)
        cmul(cur, z, names[a], names[b])
        if kind:
            out(kind, row, z)

    GROUP = int(OPT.get("kgroup", 6))
    t = PK + pk[0]
    pk[0] += 1
    cur(f"v_mov_b32 {v(t)}, 0x3f80")
    wr(f"ds_write_addtid_b32 {v(t)}")
    out("A", 0, names["G0"])
    out("B", 2, names["E16"])
    mul("E2", "E1", "E1")
    mul("E32", "E16", "E16", "B", 4)
    mul("G1", "G0", "E256", "A", 8)
    mul("E512", "E256", "E256")
    mul("a1", "G0", "E1", "A", 1)
    mul("E4", "E2", "E2")
    mul("E64", "E32", "E32", "B", 8)
    mul("E48", "E32", "E16", "B", 6)
    mul("G2", "G0", "E512", "A", 10)
    mul("G3", "G1", "E512", "A", 11)
    mul("E1024", "E512", "E512")
    mul("E8", "E4", "E4", "B", 1)
    mul("a2", "G0", "E2", "A", 2)
    mul("a3", "a1", "E2", "A", 3)
    mul("b2", "G1", "E2", "A", 9)
    mul("E128", "E64", "E64", "B", 16)
    mul("G4", "G0", "E1024", "A", 16)
    mul("E24", "E16", "E8", "B", 3)
    mul("E40", "E32", "E8", "B", 5)
    mul("E56", "E48", "E8", "B", 7)
    mul("E192", "E128", "E64", "B", 24)
    for row, a in ((4, "G0"), (5, "a1"), (6, "a2"), (7, "a3"), (12, "G1"), (13, "b2"), (14, "G2"), (15, "G3")):
        mul(None, a, "E4", "A", row)
    for row, a in ((17, "G1"), (18, "G2"), (19, "G3"), (20, "G4")):
        mul(None, a, "E1024", "A", row)
    for b2, nb in ((1, "E64"), (2, "E128"), (3, "E192")):
        for b1 in range(1, 8):
            mul(None, f"E{8*b1}", nb, "B", 8 * b2 + b1)
    if wr.ins or cur.ins:
        flush()
    return chunks


def kgen_reads():
    q = sub()
    for s in range(8):
        q(f"ds_read_b128 {v(FR+8*s,4)}, {v(V_TA)} offset:{32*TAB_ROW+32*s}")
        q(f"ds_read_b128 {v(FR+8*s+4,4)}, {v(V_TB)} offset:{32*s}")
    return q.ins


def kgen_mfma(rd):
    q = sub()
    for s in range(8):
        c = "0" if (rd == 0 and s == 0) else v(KD, 16)
        q(f"v_mfma_f32_32x32x16_bf16 {v(KD,16)}, {v(FR+8*s,4)}, {v(FR+8*s+4,4)}, {c}")
    return q.ins


P(f"v_lshrrev_b32 v4, s{S_T0}, {v(V_DT)}")
P(f"v_lshlrev_b32 v4, 16, v4")
P(f"v_mul_f32 v4, {f32(LOG2E)}, v4")
P(f"v_exp_f32 v4, v4")
P(f"v_readfirstlane_b32 s{S_DSK}, {v(V_DSK)}")
round_bf16(P, V_DT, 4)
P.add(kgen_head(0))
P.add(nonce_init())
ch = kgen_body(0)
fl = sub()
fl.wait("ux")
setflag(fl, S_F1)
nd = 0
FLAGAT = int(OPT.get("flagat", 6))
DMA0 = int(OPT.get("dma0", 3))
for i, c in enumerate(ch):
    P.add(c)
    if i == FLAGAT:
        if "fine" in OPT: stamp("pre flag1")
        P.add(fl.ins)
        if "fine" in OPT: stamp("post flag1")
    elif i >= DMA0:
        P.add(w_dma1(0, nd, "w1"))
        nd += 1
P.add(kgen_reads())
g = Gaps(kgen_mfma(0), 7)
for k in (0, 2, 4, 6):
    g.at(k, w_dma1(0, nd, "w1"))
    nd += 1
g.fill(kgen_head(1))
P.add(g.out())
stamp("kgen r0")
ch = kgen_body(1)
POLLAT = int(OPT.get("pollat", 3))
for i, c in enumerate(ch):
    P.add(c)
    if i == POLLAT:
        P.add(poll_issue("F1", 6))
    elif nd < 16:
        P.add(w_dma1(0, nd, "w1"))
        nd += 1
assert nd == 16
P.add(kgen_reads())
if "fine" in OPT: stamp("pre poll1")
P.add(poll_check("F1", 6))
if "fine" in OPT: stamp("post poll1")
g = Gaps(kgen_mfma(1), 6)
P(f"s_mov_b32 m0, s{S_UXM}")
for j in range(4):
    q = sub()
    q(f"s_mov_b32 s{S_T0}, {j*(16*14336-1024)}")
    o = f" offset:{1024*j}" if j else ""
    q(f"buffer_load_dwordx4 {v(V_UXL)}, {srd(SRD_WS)}, s{S_T0} offen{o} sc1 lds", tok="uxl")
    if j == 0:
        P.add(q.ins)
    else:
        g.at(2 * j - 2, q.ins)
tr1 = batch_tr(0)
P.wait("w1_2")
for k in range(8):
    g.at(k, tr1[3 * k:3 * k + 3])
P.add(g.out())
stamp("kgen r1")
b2 = batch_dma(1, "w2")
b2[0] = waitq("t0_0") + b2[0]
b2[3] = waitq("t0_3") + b2[3]
b2 = singles(b2)
P.add(b2.pop(0))
P(f"s_lshl_b32 s{S_C}, s{S_DSK}, 16")
P(f"s_and_b32 s{S_D}, s{S_DSK}, 0xffff0000")
P(f"v_add_u32 v7, {2*CS}, {v(V_EXW)}")
P(f"v_mov_b32 {v(V_NONCE)}, 1")
toff = {0: (0, 0), 1: (0, 1), 2: (0, 2), 3: (0, 3), 4: (1, 0), 5: (1, 2), 6: (2, 0), 7: (3, 0), 8: (4, 0), 9: (5, 0), 10: (6, 0), 11: (7, 0)}
P(f"ds_write2_b32 {v(V_TW)}, {v(KD)}, {v(KD+1)} offset0:0 offset1:1")
P(f"ds_write2_b32 {v(V_TW)}, {v(KD+2)}, {v(KD+3)} offset0:2 offset1:3")
for j in range(4, 12):
    qq, r = toff[j]
    P(f"ds_write_b32 {v(V_TW)}, {v(KD+j)} offset:{4*(r + 264*qq)}")
P.add(b2.pop(0))
P("s_waitcnt lgkmcnt(0)")
P("s_barrier")
if "fine" in OPT: stamp("T barrier")
EG = 208
for c2 in range(2):
    for e in range(9):
        P(f"ds_read2st64_b32 {v(EG+18*c2+2*e,2)}, {v(GA+e)} offset0:{114*c2} offset1:{114*c2+57}", tok=f"g{c2}")
P.add(b2.pop(0))
P.add(b2.pop(0))
KO = 192
VB = 48


def bfrag(rr, e):
    return VB + 32 * rr + 4 * e


def b_loads(lo, hi):
    z = sub()
    for rr in range(4):
        for a in range(lo, hi):
            z(f"ds_read_b128 {v(bfrag(rr,a),4)}, {v(V_UA+rr)} offset:{2048*a}")
    return z.ins


for c2 in range(2):
    b = EG + 18 * c2
    P.wait(f"g{c2}")
    for e in range(9):
        P(f"v_add_f32 {v(b+2*e)}, {v(b+2*e)}, {v(b+2*e+1)}")
    P(f"v_cndmask_b32 {v(b+16)}, {v(b+16)}, 0, s[{S_M255}:{S_M255+1}]")
    for s_ in range(2):
        o = KO + 8 * c2 + 4 * s_
        for i in range(4):
            P(f"v_cvt_pk_bf16_f32 {v(o+i)}, {v(b+2*(s_+2*i))}, {v(b+2*(s_+2*i+1))}")
    for s_ in range(2):
        P(f"ds_write_b128 {v(7 if c2 else V_EXW)}, {v(KO+8*c2+4*s_,4)} offset:{L_KC+s_*CS}", tok="kc")
    P.add(b2.pop(0))
if "dumpk" in OPT:
    P(f"s_lshl_b32 s{S_T0}, s{S_W}, 13")
    P(f"s_add_u32 s{S_T0}, s{S_T0}, {WS_DBG}")
    P(f"buffer_store_dwordx4 {v(KO,4)}, {v(V_EXW)}, {srd(SRD_WS)}, s{S_T0} offen")
    P(f"s_add_u32 s{S_T0}, s{S_T0}, 4096")
    P(f"buffer_store_dwordx4 {v(KO+8,4)}, {v(V_EXW)}, {srd(SRD_WS)}, s{S_T0} offen")
stamp("expanded")
P.wait("uxl")
P.wait("kc")
P("s_barrier")
stamp("conv start")

CA = [176, 192]
ET = 208


def afrag(rr, a):
    return 128 + 32 * rr + 4 * a


def a_loads(rr, lo, hi):
    z = sub()
    for a in range(lo, hi):
        k = a // 2
        off = 16 * (11 - rr - 8 * (a - 2 * k))
        z(f"ds_read2_b32 {acc(afrag(rr,a),2)}, {v(V_KA+k)} offset0:{off} offset1:{off+1}")
        z(f"ds_read2_b32 {acc(afrag(rr,a)+2,2)}, {v(V_KA+k)} offset0:{off+2} offset1:{off+3}")
    return z.ins


def conv_mfmas(gen):
    m = sub()
    first = set()
    na = 4 if gen == 0 else 8
    order = []
    for rr in range(4):
        pairs = [(a, e) for a in range(na) for e in range(na) if 4 * gen <= a + e < 4 * gen + 4]
        pairs.sort(key=lambda ae: (max(ae), ae))
        order += [(rr, a, e) for a, e in pairs]
    if gen == 1:
        order.sort(key=lambda t: (0 if max(t[1], t[2]) < 4 else 1))
    for rr, a, e in order:
        c = a + e - 4 * gen
        d = CA[gen] + 4 * c
        cc = v(d, 4) if c in first else "0"
        first.add(c)
        m(f"v_mfma_f32_16x16x32_bf16 {v(d,4)}, {acc(afrag(rr,a),4)}, {v(bfrag(rr,e),4)}, {cc}")
    return m.ins


UU, XX, YY, TT, WW, HO = ET, ET + 4, ET + 8, ET + 24, ET + 32, ET + 36


def conv_pre(gen):
    q = sub()
    q(f"ds_read_b64 {v(UU,2)}, {v(V_EU)} offset:{8192*gen}")
    q(f"ds_read_b64 {v(UU+2,2)}, {v(V_EU1)} offset:{8192*gen}")
    q(f"ds_read_b128 {v(XX,4)}, {v(V_EXP)} offset:{8192*gen}")
    r = sub()
    if "exact" not in OPT:
        for j in range(4):
            r(f"v_lshlrev_b32 {v(TT+j)}, 16, {v(XX+j)}")
            r(f"v_and_b32 {v(TT+4+j)}, 0xffff0000, {v(XX+j)}")
        for c2, sm in ((0, S_C), (1, S_D)):
            for i in range(2):
                r(f"v_lshlrev_b32 {v(WW)}, 16, {v(UU+2*c2+i)}")
                r(f"v_and_b32 {v(WW+1)}, 0xffff0000, {v(UU+2*c2+i)}")
                r(f"v_fmac_f32 {v(TT+4*c2+2*i)}, s{sm}, {v(WW)}")
                r(f"v_fmac_f32 {v(TT+4*c2+2*i+1)}, s{sm}, {v(WW+1)}")
        return q.ins, r.ins
    for c2 in range(2):
        for i in range(2):
            r(f"v_lshlrev_b32 {v(TT+4*c2+2*i)}, 16, {v(UU+2*c2+i)}")
            r(f"v_and_b32 {v(TT+4*c2+2*i+1)}, 0xffff0000, {v(UU+2*c2+i)}")
    for c2, sm in ((0, S_C), (1, S_D)):
        for i in range(4):
            r(f"v_mul_f32 {v(TT+4*c2+i)}, s{sm}, {v(TT+4*c2+i)}")
    for j in range(4):
        r(f"v_cvt_pk_bf16_f32 {v(WW+j)}, {v(TT+j)}, {v(TT+4+j)}")
    for j in range(4):
        r(f"v_lshlrev_b32 {v(TT+2*j)}, 16, {v(WW+j)}")
        r(f"v_and_b32 {v(TT+2*j+1)}, 0xffff0000, {v(WW+j)}")
    return q.ins, r.ins


def conv_xchg(gen):
    w_, b_, r_ = sub(), sub(), sub()
    for c in range(4):
        w_(f"ds_write_b128 {v(V_EXW)}, {v(CA[gen]+4*c,4)} offset:{(4096 if gen else 14336)*c}", tok=f"xw{gen}")
    b_.wait(f"xw{gen}")
    b_("s_barrier")
    for w in range(4):
        r_(f"ds_read_b128 {v(YY+4*w,4)}, {v(V_EXR)} offset:{1024*w}", tok=f"xr{gen}")
    return w_.ins, b_.ins, r_.ins


def conv_post(gen):
    q = sub()
    h = HO + 4 * gen
    if "exact" not in OPT:
        for c2 in range(2):
            for i in range(2):
                q(f"v_pk_add_f32 {v(TT+4*c2+2*i,2)}, {v(TT+4*c2+2*i,2)}, {v(YY+8*c2+2*i,2)}")
            for i in range(2):
                q(f"v_pk_add_f32 {v(TT+4*c2+2*i,2)}, {v(TT+4*c2+2*i,2)}, {v(YY+8*c2+4+2*i,2)}")
        for j in range(4):
            q(f"v_cvt_pk_bf16_f32 {v(h+j)}, {v(TT+j)}, {v(TT+4+j)}")
        q(f"buffer_store_dwordx4 {v(h,4)}, {v(V_EXW)}, {srd(SRD_WS)}, s{S_PST} offen sc1", tok=f"h{gen}")
        return q.ins
    for c2 in range(2):
        for i in range(2):
            q(f"v_pk_add_f32 {v(YY+8*c2+2*i,2)}, {v(YY+8*c2+2*i,2)}, {v(YY+8*c2+4+2*i,2)}")
    for j in range(4):
        q(f"v_cvt_pk_bf16_f32 {v(WW+j)}, {v(YY+j)}, {v(YY+8+j)}")
    for j in range(4):
        q(f"v_lshlrev_b32 {v(YY+2*j)}, 16, {v(WW+j)}")
        q(f"v_and_b32 {v(YY+2*j+1)}, 0xffff0000, {v(WW+j)}")
    for j in range(4):
        q(f"v_pk_add_f32 {v(YY+2*j,2)}, {v(YY+2*j,2)}, {v(TT+2*j,2)}")
    for j in range(4):
        q(f"v_cvt_pk_bf16_f32 {v(WW+j)}, {v(YY+2*j)}, {v(YY+2*j+1)}")
    for j in range(4):
        q(f"v_lshlrev_b32 {v(YY+8+2*j)}, 16, {v(XX+j)}")
        q(f"v_and_b32 {v(YY+8+2*j+1)}, 0xffff0000, {v(XX+j)}")
    for j in range(4):
        q(f"v_lshlrev_b32 {v(YY+2*j)}, 16, {v(WW+j)}")
        q(f"v_and_b32 {v(YY+2*j+1)}, 0xffff0000, {v(WW+j)}")
    for j in range(4):
        q(f"v_pk_add_f32 {v(YY+2*j,2)}, {v(YY+2*j,2)}, {v(YY+8+2*j,2)}")
    h = HO + 4 * gen
    for j in range(4):
        q(f"v_cvt_pk_bf16_f32 {v(h+j)}, {v(YY+2*j)}, {v(YY+2*j+1)}")
    q(f"buffer_store_dwordx4 {v(h,4)}, {v(V_EXW)}, {srd(SRD_WS)}, s{S_PST} offen sc1", tok=f"h{gen}")
    return q.ins


V_A = 17
ad1 = sub()
ad1(f"v_lshrrev_b32 v5, 4, {v(V_LANE)}")
ad1(f"v_mul_u32_u24 v4, {PROW-256}, v5")
ad1(f"v_add3_u32 {v(V_A)}, v4, {v(V_L16)}, s{S_AB}")
for k in range(1, 4):
    ad1(f"v_add_u32 {v(V_A+k)}, {k*(4*PROW-1024)}, {v(V_A)}")


def act_dma(gen):
    o = []
    for kk in range(4):
        q = sub()
        q(f"s_add_u32 m0, s{S_ACTW}, {L_ACT[gen] + kk*4096}")
        q(f"s_mov_b32 s{S_WOFF}, {kk*16*PROW + PGEN*gen}")
        for k in range(4 if kk < 3 else 2):
            of = f" offset:{1024*k}" if k else ""
            q(f"buffer_load_dwordx4 {v(V_A+k)}, {srd(SRD_WS)}, s{S_WOFF} offen{of} sc1 lds", tok=f"act{gen}")
        o.append(q.ins)
    return o


V_BR, V_S2, V_HST = 21, 22, 24
V_LF, V_LR = 28, 29
V_RES = 27
V_OST, V_RR, V_RW, V_HL = 45, 41, 42, 44
SEL = 176
CSA = [180, 184]
ad = sub()
ad(f"s_add_u32 s{S_PA}, s{S_PA}, 0x8000")
ad(f"v_and_b32 v4, 31, {v(V_LANE)}")
ad(f"v_lshrrev_b32 v5, 5, {v(V_LANE)}")
ad(f"v_lshlrev_b32 v5, 10, v5")
ad(f"v_lshl_add_u32 {v(V_BR)}, v4, 2, v5")
NAD2 = len(ad.ins)
ad(f"s_lshl_b32 s{S_T0}, s{S_TB}, 10")
ad(f"s_mul_i32 s{S_T1}, s{S_DB}, {S2REP}")
ad(f"s_add_u32 s{S_T0}, s{S_T0}, s{S_T1}")
ad(f"s_add_u32 s{S_T0}, s{S_T0}, {WS_S2}")
ad(f"v_lshl_add_u32 {v(V_S2)}, v4, 3, s{S_T0}")
ad(f"s_mov_b32 s{S_PERM}, 0x03020302")
ad(f"v_lshrrev_b32 v5, 4, {v(V_LANE)}")
ad(f"v_and_b32 v6, 15, {v(V_LANE)}")
ad(f"v_and_b32 v4, 1, v5")
ad(f"v_mul_u32_u24 v4, 57344, v4")
ad(f"v_lshl_add_u32 v4, v6, 4, v4")
ad(f"v_lshrrev_b32 v7, 1, v5")
ad(f"v_lshl_add_u32 v4, v7, 8, v4")
ad(f"s_mul_i32 s{S_T0}, s{S_TB}, {8*57344}")
ad(f"s_lshl_b32 s{S_T1}, s{S_FB}, 2")
ad(f"s_add_u32 s{S_T1}, s{S_T1}, s{S_V}")
ad(f"s_lshl_b32 s{S_T2}, s{S_T1}, 10")
ad(f"s_add_u32 s{S_T0}, s{S_T0}, {WS_H}")
ad(f"s_add_u32 s{S_T2}, s{S_T2}, s{S_T0}")
ad(f"v_add_u32 {v(V_HST)}, s{S_T2}, v4")
ad(f"s_mul_i32 s{S_T2}, s{S_FH}, 57344")
ad(f"s_add_u32 s{S_T0}, s{S_T0}, s{S_T2}")
ad(f"s_add_u32 s{S_T0}, s{S_T0}, s{S_ACTW}")
ad(f"v_add_u32 {v(V_HL)}, s{S_T0}, {v(V_L16)}")
ad(f"s_lshl_b32 s{S_T0}, s{S_TB}, 13")
ad(f"s_add_u32 s{S_T0}, s{S_T0}, {WS_C + 65536}")
ad(f"s_mul_i32 s{S_T1}, s{S_T1}, 37")
ad(f"s_and_b32 s{S_T1}, s{S_T1}, 0x600")
ad(f"s_add_u32 s{S_F3}, s{S_T0}, s{S_T1}")
ad(f"s_lshl1_add_u32 s{S_T1}, s{S_V}, s{S_FH}")
ad(f"s_lshl_b32 s{S_T1}, s{S_T1}, 8")
ad(f"s_add_u32 s{S_P3}, s{S_T0}, s{S_T1}")
for k in range(1, 4):
    ad(f"s_movk_i32 s{S_HR+k}, {4096*k}")
ad(f"s_add_u32 s{S_FW}, s{S_RING}, 32768")
ad(f"s_lshl_b32 s{S_R2}, s{S_V}, 14")
ad(f"v_add_u32 {v(V_LF)}, s{S_FW}, {v(V_L16)}")
ad(f"v_add_u32 {v(V_LR)}, s{S_R2}, {v(V_L16)}")
ad2 = ad
se = sub()
se(f"v_bfe_u32 v4, {v(V_LANE)}, 2, 2")
se(f"v_bfe_u32 v5, {v(V_LANE)}, 4, 1")
se(f"v_mov_b32 v6, 0x3f803f80")
se(f"v_cmp_eq_u32 vcc, v4, v5")
for i in range(4):
    se(f"v_cndmask_b32 {v(SEL+i)}, 0, v6, vcc")


def cs_mfma(ks0, ks1):
    q = sub()
    for ks in range(ks0, ks1):
        for m in range(2):
            c = "0" if ks == 0 else v(CSA[m], 4)
            q(f"v_mfma_f32_16x16x32_bf16 {v(CSA[m],4)}, {v(SEL,4)}, {acc(wfrag(m,ks),4)}, {c}")
    return q.ins


def pin_spread(g, start, ins, per=2):
    for i, x in enumerate(ins):
        g.at(int(start + i // per), [x])
    return int(start + (len(ins) + per - 1) // per)


mA, mB = conv_mfmas(0), conv_mfmas(1)
NOV = int(OPT.get("nov", 20))
bl = b_loads(0, 4)


def ab(rr):
    al = a_loads(rr, 0, 4)
    o = []
    for a in range(4):
        o += [bl[4 * rr + a]] + al[2 * a:2 * a + 2]
    return o


pr, pv = conv_pre(0)
P.add(ab(0) + ab(1)[:3])
P.add(b2.pop(0))
P.add(b2.pop(0))
g = Gaps(mA + mB[:NOV], 2)
l1 = ab(1)[3:] + ab(2) + ab(3) + pr
NL1 = int(OPT.get("nl1", 24))
for i, x in enumerate(l1):
    g.at(i * NL1 // len(l1), [x])
g.fill(pv, start=NL1 + 5, end=50)
xw, xb, xr = conv_xchg(0)
for i in range(4):
    g.at(41 + 2 * i, [xw[i]])
XB = int(OPT.get("xb", 50))
g.at(XB, xb)
g.at(XB + 1, xr)
pin_vm(g, XB + 2, b2[:2], 3)
b2 = b2[2:]
P.add(g.out())
P.add(conv_post(0))
stamp("genA stored")
nb = b_loads(4, 8)
newl = []
for rr in range(4):
    newl += nb[4 * rr:4 * rr + 4] + a_loads(rr, 4, 8)
P.add(newl[:8])
g = Gaps(mB[NOV:] + cs_mfma(0, 10), 2)
NB_ = len(mB) - NOV
pin_spread(g, 0, newl[8:], per=1)
g.at(0, waitq("w1_3"))
pin_spread(g, 0, tr1[24:], per=1)
pin_vm(g, 1, b2, 3.5)
fl = sub()
fl.wait("h0")
addcnt(fl, S_F2, V_FL2)
fl(f"s_add_u32 s{S_F2}, s{S_F2}, 0x8000")
g.at(int(OPT.get("fa", 28)), fl.ins)
tr2 = batch_tr(1)
T2 = [int(x) for x in OPT.get("t2", "12,24,44,60").split(",")]
b3 = batch_dma(2, "w3")
for i in range(4):
    pin_spread(g, T2[i], waitq(f"w2_{i}") + tr2[8 * i:8 * i + 8], per=1)
    b3[i] = waitq(f"t1_{i}") + b3[i]
pin_vm(g, 30, b3[:2], 3)
pin_vm(g, 56, b3[2:3], 3)
pin_vm(g, 71, b3[3:4], 2.5)
pr, pv = conv_pre(1)
pin_spread(g, 41, pr, per=1)
newl[-1].tok = "lastfrag"
bq = sub()
bq.wait("lastfrag")
bq("s_barrier")
g.at(54, bq.ins)
x2 = sub()
x2(f"v_add_u32 {v(V_EXW)}, {L_KC}, {v(V_EXW)}")
x2(f"s_lshl_b32 s{S_T0}, s{S_V}, 12")
x2(f"s_add_u32 s{S_T0}, s{S_T0}, {L_KC}")
x2(f"v_add_u32 {v(V_EXR)}, s{S_T0}, {v(V_L16)}")
x2(f"s_add_u32 s{S_PST}, s{S_PST}, {PGEN - L_KC}")
PA1, PA2, PAC = int(OPT.get("pa1", 60)), int(OPT.get("pa2", 76)), int(OPT.get("pac", 90))
e = g.fill(ad1.ins + se.ins + x2.ins, start=34, end=PAC - 1)
g.fill(pv, start=max(e, 50), end=NB_ + 10)
g.at(PA1, poll_issue(S_PA, 7))
g.at(PA2, poll_issue(S_PA, 23))
g.at(PAC, stq("pre pollA") + poll_check2(S_PA, 7, 23, "3", f"s{S_E28}") + stq("post pollA"))
a0 = singles(act_dma(0))
na = (g.n - 1 - PAC) // 3 + 1
pin_vm(g, PAC, a0[:na], 3)
xw, xb, xr = conv_xchg(1)
for i in range(4):
    g.at(NB_ + 1 + 2 * i, [xw[i]])
g.at(NB_ + 10, xb)
g.at(NB_ + 11, xr)
P.add(g.out())
P.add(conv_post(1))
stamp("genB stored")
g = Gaps(cs_mfma(10, 24), 3)
g.at(1, poll_issue(S_P4, 25))
tr3 = batch_tr(2)
t3 = []
for i in (0, 1, 2, 3):
    t3 += waitq(f"w3_{i}") + tr3[8 * i:8 * i + 8]
pin_spread(g, 0, t3, per=2)
e = pin_vm(g, 0, a0[na:], 2)
fl = sub()
fl.wait("h1")
addcnt(fl, S_F2, V_FL2)
g.fill(ad2.ins[:NAD2], start=18)
w4 = singles([waitq("t2_3") + w_dma(6, 0, 8, "w4"), w_dma(6, 1, 12, "w4")])
pin_vm(g, 21, w4[:3], 2.5)
P.add(g.out())
P.add(fl.ins)
stamp("gap work done")

GACC = [64, 96]
BF = 128
NBF = 8
MB = 160
KC_ = [14, 9]
STT = 60
EPT = 164
HP = 172
WDV = 188
RESR = [46, 48, 50, 52]
A_CS = [224, 228]
GC0 = -2.0 * math.sqrt(2.0 / math.pi) * LOG2E


def st_issue(J, atomic=None):
    q = sub()
    t = STT + 2 * (J & 1)
    atomic = False if atomic is None else atomic
    if atomic:
        q(f"v_mov_b64 {v(t,2)}, 0")
        q(f"buffer_atomic_add_x2 {v(t,2)}, {v(V_S2)}, {srd(SRD_WS)}, 0 offen offset:{256*J} sc0")
    else:
        q(f"buffer_load_dwordx2 {v(t,2)}, {v(V_S2)}, {srd(SRD_WS)}, 0 offen offset:{256*J} sc1")
    return q.ins


def st_check(J):
    q = sub()
    t = STT + 2 * (J & 1)
    slow, done = label("sslow"), label("sdone")
    q(f"v_cmp_ne_u32 vcc, s{S_NONCE}, {v(t+1)}")
    q(f"s_cbranch_vccnz {slow}")
    q(f"{done}:")
    spin(TAIL, slow, done, st_issue(J, True), t + 1, sleep=1)
    return q.ins


def st_final(J):
    q = sub()
    kc = KC_[J & 1]
    t = STT + 2 * (J & 1)
    q(f"v_perm_b32 {v(MB)}, {v(t)}, {v(t)}, s{S_PERM}")
    q(f"v_lshlrev_b32 {v(t+1)}, 16, {v(t)}")
    q(f"v_rcp_f32 {v(t)}, {v(t+1)}")
    q(f"v_mul_f32 {v(kc+2)}, {v(t+1)}, {v(t+1)}")
    q(f"v_mul_f32 {v(kc)}, {f32(GC0)}, {v(t)}")
    q(f"v_mul_f32 {v(kc+1)}, {v(t)}, {v(t)}")
    q(f"v_mul_f32 {v(kc+1)}, {v(kc+1)}, {v(kc)}")
    q(f"v_mul_f32 {v(kc+1)}, {f32(0.044715)}, {v(kc+1)}")
    return q.ins


SP = Prog()
spn = [1]


def sps():
    if STAMPS and "lite" in OPT:
        SP(f"s_memrealtime s[{S_STAMP}:{S_STAMP+1}]")
        SP("s_waitcnt lgkmcnt(0)")
        SP(f"v_writelane_b32 v255, s{S_STAMP}, {spn[0]}")
        spn[0] += 1


SP("L_spare:")
SP("s_waitcnt vmcnt(0)")
SP("s_barrier")
sps()
SP(f"s_and_b32 s{S_T0}, s{S_W}, 6")
SP(f"s_lshl_b32 s{S_T0}, s{S_T0}, 1")
SP(f"s_bfe_u32 s{S_T1}, s{S_W}, 0x20003")
SP(f"s_add_u32 s{S_TB}, s{S_T0}, s{S_T1}")
SP(f"s_lshr_b32 s{S_T0}, s{S_TB}, 2")
SP(f"s_lshl2_add_u32 s{S_T0}, s{S_FH}, s{S_T0}")
SP(f"s_lshl3_add_u32 s{S_T0}, s{S_T0}, s{S_T1}")
SP(f"s_lshl2_add_u32 s{S_T0}, s{S_T0}, s{S_V}")
SP(f"s_lshl_b32 s{S_T0}, s{S_T0}, 8")
SP(f"s_add_u32 s{S_PA}, s{S_T0}, {WS_C}")
SP(f"s_mul_i32 s{S_T1}, s{S_V}, 56")
SP(f"v_mov_b32 {v(V_NONCE)}, 7")
lanes_reg(SP, V_FLG, 4, 8)
SP(f"v_lshrrev_b32 v5, 4, {v(V_LANE)}")
SP(f"v_and_b32 v6, 15, {v(V_LANE)}")
SP(f"v_mul_u32_u24 v4, {PROW}, v5")
SP(f"v_lshl_add_u32 v4, v6, 4, v4")
SP(f"s_mul_i32 s{S_T1}, s{S_T1}, {PROW}")
SP(f"s_lshl_b32 s{S_T0}, s{S_TB}, 8")
SP(f"s_add_u32 s{S_T0}, s{S_T0}, s{S_T1}")
SP(f"s_mul_i32 s{S_T1}, s{S_FH}, {PGEN}")
SP(f"s_add_u32 s{S_T0}, s{S_T0}, s{S_T1}")
SP(f"s_add_u32 s{S_T0}, s{S_T0}, {WS_P}")
SP(f"v_add_u32 v11, s{S_T0}, v4")
SP(f"v_lshl_add_u32 v4, v6, 2, v5")
SP(f"s_lshl_b32 s{S_T0}, s{S_V}, 9")
SP(f"v_lshl_add_u32 v12, v4, 3, s{S_T0}")
SP(f"v_lshlrev_b32 v13, 3, {v(V_LANE)}")
SP(f"v_mov_b32 v14, 0x3f803f80")
if not NOPF:
    SP(f"s_sub_u32 s{S_T1}, s{S_W}, 224")
    SP(f"s_lshr_b32 s{S_T0}, s{S_V}, 1")
    SP(f"s_lshl1_add_u32 s{S_T1}, s{S_T1}, s{S_T0}")
    SP(f"s_mul_i32 s{S_T1}, s{S_T1}, {35*128}")
    SP(f"s_add_u32 s{S_T1}, s{S_T1}, {3584*128}")
    SP(f"v_min_u32 v4, 34, {v(V_LANE)}")
    SP(f"v_lshl_add_u32 v4, v4, 7, s{S_T1}")
    for k in range(4):
        SP(f"global_load_dword {v(60+k)}, v4, s[{S_PFB}:{S_PFB+1}]")
        if k < 3:
            SP(f"v_add_u32 v4, {2240*128}, v4")
SP(f"s_sub_u32 s{S_T1}, s{S_W}, 224")
SP(f"s_cmp_ge_u32 s{S_T1}, 28")
SP("s_cbranch_scc1 L_sp_nowf")
SP(f"s_lshr_b32 s{S_DB}, s{S_T1}, 2")
SP(f"s_and_b32 s{S_T2}, s{S_T1}, 3")
SP(f"s_lshl_b32 s{S_F3}, s{S_T1}, 10")
SP(f"s_add_u32 s{S_F3}, s{S_F3}, {WS_C + 896*256}")
SP(f"s_mul_i32 s{S_T1}, s{S_T1}, {14*4096}")
SP(f"s_add_u32 s{S_T1}, s{S_T1}, {WS_WF}")
SP(f"v_add_u32 v20, s{S_T1}, {v(V_L16)}")
SP(f"v_lshrrev_b32 v6, 3, {v(V_LANE)}")
SP(f"v_and_b32 v7, 6, v6")
SP(f"v_and_b32 v5, 7, {v(V_LANE)}")
SP(f"v_xor_b32 v7, v7, v5")
SP(f"v_mul_u32_u24 v6, 896, v6")
SP(f"v_lshl_add_u32 v6, v7, 4, v6")
SP(f"s_mul_i32 s{S_T0}, s{S_T2}, {448*896}")
SP(f"s_lshl_b32 s{S_T1}, s{S_DB}, 7")
SP(f"s_add_u32 s{S_T0}, s{S_T0}, s{S_T1}")
SP(f"v_add_u32 v48, s{S_T0}, v6")
for k in range(1, 4):
    SP(f"v_add_u32 {v(48+k)}, {k*(7168-1024)}, v48")
SP(f"s_lshl_b32 s{S_R2}, s{S_V}, 14")
SP(f"s_add_u32 s{S_R2}, s{S_R2}, 4096")
for i in range(4):
    SP(f"s_lshl2_add_u32 s{S_HR+i}, s{S_V}, {i}")
    SP(f"s_min_u32 s{S_HR+i}, s{S_HR+i}, 13")
    SP(f"s_mul_i32 s{S_WOFF}, s{S_HR+i}, {32*896}")
    SP(f"s_add_u32 m0, s{S_R2}, {4096*i}")
    SP(f"s_lshl_b32 s{S_HR+i}, s{S_HR+i}, 12")
    for k in range(4):
        of = f" offset:{1024*k}" if k else ""
        SP(f"buffer_load_dwordx4 {v(48+k)}, {srd(SRD_WD)}, s{S_WOFF} offen{of} lds", tok=f"sw{i}")
SP(f"v_lshrrev_b32 v4, 4, {v(V_LANE)}")
SP(f"v_lshrrev_b32 v6, 1, v4")
SP(f"v_lshlrev_b32 v6, 4, v6")
SP(f"v_and_b32 v7, 1, v4")
SP(f"v_lshl_add_u32 v6, v7, 2, v6")
SP(f"v_bfe_u32 v7, {v(V_LANE)}, 2, 2")
SP(f"v_add_u32 v6, v6, v7")
SP(f"v_bfe_u32 v7, v6, 1, 2")
SP(f"v_lshlrev_b32 v6, 7, v6")
SP(f"v_and_b32 v5, 3, {v(V_LANE)}")
SP(f"v_lshl_add_u32 v6, v5, 3, v6")
for rt in range(4):
    SP(f"v_xor_b32 v5, {rt}, v7")
    SP(f"v_lshl_add_u32 v5, v5, 5, v6")
    SP(f"v_add_u32 {v(52+rt)}, s{S_R2}, v5")
for i in range(4):
    SP.wait(f"sw{i}")
    if i in (0, 3): sps()
    for rt in range(4):
        for h in range(2):
            SP(f"ds_read_b64_tr_b16 {v(64+16*i+4*rt+2*h,2)}, {v(52+rt)} offset:{4096*i+1024*h}")
    for rt in range(4):
        SP(f"buffer_store_dwordx4 {v(64+16*i+4*rt,4)}, v20, {srd(SRD_WS)}, s{S_HR+i} offen offset:{1024*rt} sc1")
SP("s_waitcnt vmcnt(0)")
addcnt(SP, S_F3, V_FLG)
sps()
SP("L_sp_nowf:")
sps()
SP("s_mov_b64 vcc, 3")
spin(SP, "L_sp_c", "L_sp_d", poll_issue(S_PA, 7), 7, sleep=int(OPT.get('spsleep', 2)), exp=f"s{S_E28}")
SP("L_sp_d:")
sps()
for k in range(14):
    SP(f"s_mov_b32 s{S_T0}, {k*4*PROW}")
    SP(f"buffer_load_dwordx4 {v(64+4*k,4)}, v11, {srd(SRD_WS)}, s{S_T0} offen sc1")
SS = 16
for j in range(8):
    SP(f"v_mov_b32 {v(SS+j)}, 0")
for k in range(14):
    for j in range(4):
        SP(f"v_dot2c_f32_bf16 {v(SS+j)}, {v(64+4*k+j)}, v14")
    for j in range(4):
        SP(f"v_dot2c_f32_bf16 {v(SS+4+j)}, {v(64+4*k+j)}, {v(64+4*k+j)}")
for o in (0, 4):
    SP(f"v_permlane32_swap_b32 {v(SS+o)}, {v(SS+o+2)}")
    SP(f"v_permlane32_swap_b32 {v(SS+o+1)}, {v(SS+o+3)}")
for o in (0, 4):
    SP(f"v_add_f32 {v(SS+o)}, {v(SS+o)}, {v(SS+o+2)}")
    SP(f"v_add_f32 {v(SS+o+1)}, {v(SS+o+1)}, {v(SS+o+3)}")
for o in (0, 4):
    SP(f"v_permlane16_swap_b32 {v(SS+o)}, {v(SS+o+1)}")
SP(f"v_add_f32 {v(SS)}, {v(SS)}, {v(SS+1)}")
SP(f"v_add_f32 {v(SS+1)}, {v(SS+4)}, {v(SS+5)}")
sps()
SP(f"ds_write_b64 v12, {v(SS,2)}")
SP("s_waitcnt lgkmcnt(0)")
SP("s_barrier")
SP(f"s_cmp_lg_u32 s{S_V}, 0")
SP("s_cbranch_scc1 L_fin")
t = 24
for w in range(4):
    SP(f"ds_read_b64 {v(t+2*w,2)}, v13 offset:{512*w}")
SP(f"s_lshl_b32 s{S_T0}, s{S_TB}, 1")
SP(f"s_add_u32 s{S_T0}, s{S_T0}, s{S_FH}")
SP(f"s_lshl_b32 s{S_T0}, s{S_T0}, 9")
SP(f"s_add_u32 s{S_T0}, s{S_T0}, {WS_S2}")
SP(f"v_pk_add_f32 {v(t,2)}, {v(t,2)}, {v(t+2,2)}")
SP(f"v_pk_add_f32 {v(t+4,2)}, {v(t+4,2)}, {v(t+6,2)}")
SP(f"v_pk_add_f32 {v(t,2)}, {v(t,2)}, {v(t+4,2)}")
SP(f"v_mul_f32 {v(t)}, s{S_K0}, {v(t)}")
SP(f"v_mul_f32 {v(t+1)}, s{S_K0}, {v(t+1)}")
SP(f"v_fma_f32 {v(t+1)}, -{v(t)}, {v(t)}, {v(t+1)}")
SP(f"v_max_f32 {v(t+1)}, 0, {v(t+1)}")
round_bf16(SP, t + 1, t + 1)
SP(f"v_add_f32 {v(t+1)}, {f32(1e-5)}, {v(t+1)}")
round_bf16(SP, t + 1, t + 1)
SP(f"v_sqrt_f32 {v(t+1)}, {v(t+1)}")
SP(f"v_cvt_pk_bf16_f32 {v(t)}, {v(t+1)}, -{v(t)}")
SP(f"v_mov_b32 {v(t+1)}, s{S_NONCE}")
for r_ in range(7):
    SP(f"buffer_store_dwordx2 {v(t,2)}, v13, {srd(SRD_WS)}, s{S_T0} offen sc1")
    SP(f"s_add_u32 s{S_T0}, s{S_T0}, {S2REP}")
sps()
SP(f"s_cmp_lg_u32 s{S_W}, 255")
SP("s_cbranch_scc1 L_fin")
SP(f"v_lshlrev_b32 v4, 25, {v(V_LANE)}")
SP(f"buffer_store_dword {v(t+1)}, v4, {srd(SRD_WS)}, 0 offen sc1")
SP("s_branch L_fin")


def b_read(J, ks):
    q = sub()
    b = BF + 4 * (ks % NBF)
    q(f"ds_read2st64_b32 {v(b,2)}, {v(V_BR)} offset0:{8*ks} offset1:{8*ks+1}")
    q(f"ds_read2st64_b32 {v(b+2,2)}, {v(V_BR)} offset0:{8*ks+2} offset1:{8*ks+3}", tok=f"b{J}_{ks}")
    return q.ins


def g1_gaps(J, extra_after=None):
    m = sub()
    g0 = GACC[J & 1]
    for ks in range(28):
        for mm in range(2):
            d = g0 + 16 * mm
            c = "0" if ks == 0 else v(d, 16)
            m(f"v_mfma_f32_32x32x16_bf16 {v(d,16)}, {acc(wfrag(mm,ks),4)}, {v(BF+4*(ks%NBF),4)}, {c}")
    for mm in range(2):
        d = g0 + 16 * mm
        m(f"v_mfma_f32_32x32x16_bf16 {v(d,16)}, {acc(A_CS[mm],4)}, {v(MB,4)}, {v(d,16)}")
    g = Gaps(m.ins, 6)
    for ks in range(28):
        k2 = ks + NBF - 1
        if k2 < 28:
            r = b_read(J, k2)
            g.at(2 * ks, [r[0]])
            g.at(2 * ks + 1, [r[1]])
        if ks % 3 == 2 and ks + 1 < 28:
            w = sub()
            w.wait(f"b{J}_{min(ks+3,27)}")
            g.at(2 * ks + 1, w.ins)
    return g


def next_tile_reads(g, J, delta, first=42):
    q = sub()
    q(f"v_add_u32 {v(V_BR)}, {delta}, {v(V_BR)}")
    g.at(first, q.ins)
    for ks in range(NBF - 1):
        old = max(k for k in range(28) if k % NBF == ks)
        r = b_read(J, ks)
        at = max(2 * old + 1, first + 1)
        g.at(at, r[:1])
        g.at(min(at + 1, 57), r[1:])


def g1_epi(J):
    q = sub()
    g = GACC[J & 1]
    kc = KC_[J & 1]
    T = EPT
    for j0 in range(0, 16, 4):
        js = range(j0, j0 + 4)
        for j in js:
            q(f"v_mul_f32 {v(T+j-j0)}, {v(g+j)}, {v(g+j)}")
        for j in js:
            q(f"v_fma_f32 {v(T+j-j0)}, {v(T+j-j0)}, {v(kc+1)}, {v(kc)}")
        for j in js:
            q(f"v_mul_f32 {v(T+j-j0)}, {v(T+j-j0)}, {v(g+j)}")
        for j in js:
            q(f"v_exp_f32 {v(T+j-j0)}, {v(T+j-j0)}")
            q(f"v_mul_f32 {v(T+4+j-j0)}, {v(g+j)}, {v(g+16+j)}")
        for j in js:
            q(f"v_fma_f32 {v(T+j-j0)}, {v(T+j-j0)}, {v(kc+2)}, {v(kc+2)}")
        for j in js:
            q(f"v_rcp_f32 {v(T+j-j0)}, {v(T+j-j0)}")
        for j in js:
            q(f"v_mul_f32 {v(T+4+j-j0)}, {v(T+4+j-j0)}, {v(T+j-j0)}")
        q(f"v_cvt_pk_bf16_f32 {v(HP+(j0//2)%4)}, {v(T+4)}, {v(T+5)}")
        q(f"v_cvt_pk_bf16_f32 {v(HP+(j0//2)%4+1)}, {v(T+6)}, {v(T+7)}")
        if j0 in (4, 12):
            q2 = j0 // 8
            q(f"buffer_store_dwordx4 {v(HP,4)}, {v(V_HST)}, {srd(SRD_WS)}, 0 offen offset:{512*q2} sc1", tok=f"H{J}")
    q(f"v_add_u32 {v(V_HST)}, {2*57344}, {v(V_HST)}")
    return q.ins


def flag3(J):
    q = sub()
    q.wait(f"H{J}")
    addcnt(q, S_F3, V_FLG)
    q(f"s_add_u32 s{S_F3}, s{S_F3}, 2048")
    return q.ins


WDREG = {}
for i in range(4):
    for rt in range(4):
        WDREG[i, rt] = v(WDV + 16 * i + 4 * rt, 4)
        WDREG[10, rt] = acc(240 + 4 * rt, 4)
        WDREG[11, rt] = v([176, 180, 184, 56][rt], 4)
        WDREG[12, rt] = acc(4 * rt, 4)
        WDREG[13, rt] = acc(16 + 4 * rt, 4)
for i in range(6):
    for rt in range(4):
        WDREG[4 + i, rt] = acc(128 + 16 * i + 4 * rt, 4)
KORD = [0, 1, 2, 3, 10, 11, 12, 13, 4, 5, 6, 7, 8, 9]


def wdr(ft, rt):
    return WDREG[ft, rt]


def wd_load(ft):
    q = sub()
    q(f"s_add_u32 s{S_WOFF}, s{S_WFB}, {ft*4096}")
    for k in range(4):
        of = f" offset:{1024*k}" if k else ""
        q(f"buffer_load_dwordx4 {wdr(ft,k)}, {v(V_L16)}, {srd(SRD_WS)}, s{S_WOFF} offen{of} sc1")
    return q.ins


def wd_dma(ft):
    q = sub()
    sbase, slot = (S_FW, ft - 4) if ft < 6 else (S_R2, ft - 6)
    q(f"s_add_u32 m0, s{sbase}, {slot*4096}")
    q(f"s_add_u32 s{S_WOFF}, s{S_WFB}, {ft*4096}")
    for k in range(4):
        of = f" offset:{1024*k}" if k else ""
        q(f"buffer_load_dwordx4 {v(V_L16)}, {srd(SRD_WS)}, s{S_WOFF} offen{of} sc1 lds", tok=f"wd{ft}")
    return q.ins


def wd_read(ft):
    q = sub()
    va, slot = (V_LF, ft - 4) if ft < 6 else (V_LR, ft - 6)
    for rt in range(4):
        q(f"ds_read_b128 {wdr(ft,rt)}, {v(va)} offset:{4096*slot+1024*rt}")
    return q.ins


def res_read(J):
    q = sub()
    q(f"ds_read2st64_b32 {v(RESR[J],2)}, {v(V_RES)} offset0:0 offset1:1", tok=f"res{J}")
    q(f"v_add_u32 {v(V_RES)}, {128 if J % 2 == 0 else L_ACT[1]-128}, {v(V_RES)}")
    return q.ins


ad = sub()
ad(f"v_lshrrev_b32 v4, 4, v0")
ad(f"v_and_b32 v5, 15, v0")
ad(f"v_lshlrev_b32 v6, 9, v5")
ad(f"v_lshl_add_u32 v6, v4, 2, v6")
ad(f"s_lshl_b32 s{S_T0}, s{S_DB}, 13")
ad(f"s_lshl_b32 s{S_T1}, s{S_FH}, 6")
ad(f"s_add_u32 s{S_T0}, s{S_T0}, s{S_T1}")
ad(f"v_add_u32 {v(V_RES)}, s{S_T0}, v6")
ad(f"v_lshrrev_b32 v6, 2, v4")
ad(f"v_and_b32 v7, 3, v4")
ad(f"v_lshl_add_u32 v6, v6, 4, v7")
ad(f"v_mul_u32_u24 v6, 896, v6")
ad(f"v_lshl_add_u32 v6, v5, 3, v6")
ad(f"s_lshr_b32 s{S_T0}, s{S_TB}, 2")
ad(f"s_lshl_b32 s{S_T0}, s{S_T0}, 8")
ad(f"s_add_u32 s{S_T0}, s{S_T0}, s{S_T1}")
ad(f"s_and_b32 s{S_T1}, s{S_TB}, 3")
ad(f"s_lshl_b32 s{S_T1}, s{S_T1}, 2")
ad(f"s_add_u32 s{S_T0}, s{S_T0}, s{S_T1}")
ad(f"s_mul_i32 s{S_T0}, s{S_T0}, 896")
ad(f"s_lshl_b32 s{S_T1}, s{S_DB}, 7")
ad(f"s_add_u32 s{S_T0}, s{S_T0}, s{S_T1}")
ad(f"v_add_u32 {v(V_OST)}, s{S_T0}, v6")
ad(f"v_mul_u32_u24 v6, 272, v5")
ad(f"v_lshl_add_u32 v6, v4, 4, v6")
ad(f"v_add_u32 {v(V_RR)}, {L_R}, v6")
ad(f"v_lshrrev_b32 v4, 4, {v(V_LANE)}")
ad(f"v_mul_u32_u24 v6, 272, v4")
ad(f"v_lshl_add_u32 v6, v5, 4, v6")
ad(f"s_mul_i32 s{S_T0}, s{S_V}, 4352")
ad(f"s_add_u32 s{S_T0}, s{S_T0}, {L_R}")
ad(f"v_add_u32 {v(V_RW)}, s{S_T0}, v6")
lanes_reg(ad, V_FLG, 2, 8)

for i in range(1, 4):
    P(f"v_mov_b32 {v(MB+i)}, 0")
    P(f"v_accvgpr_write_b32 {acc(A_CS[0]+i)}, 0")
    P(f"v_accvgpr_write_b32 {acc(A_CS[1]+i)}, 0")
P.wait("act0")
P("s_waitcnt lgkmcnt(0)")
P("s_barrier")
stamp("gemm1 start")
for ks in range(NBF - 1):
    P.add(b_read(0, ks))

def hreg(J, ft):
    n = KORD.index(ft)
    if J in (0, 3):
        return acc(32 + 4 * n, 4)
    if J == 1:
        return v(64 + 4 * n if n < 8 else 128 + 4 * (n - 8), 4)
    return v(96 + 4 * n if n < 8 else 152 + 4 * (n - 8), 4)


def h_loads(J):
    o = []
    for s_ in KORD:
        q = sub()
        of = f" offset:{1024*(s_%4)}" if s_ % 4 else ""
        so = f"s{S_HR+s_//4}" if s_ >= 4 else "0"
        q(f"buffer_load_dwordx4 {hreg(J,s_)}, {v(V_HL)}, {srd(SRD_WS)}, {so} offen{of} sc1")
        o.append(q.ins)
    if J < 3:
        q = sub()
        q(f"v_add_u32 {v(V_HL)}, {2*57344}, {v(V_HL)}")
        o[-1] += q.ins
    return o


def p3_next():
    q = sub()
    q(f"s_add_u32 s{S_P3}, s{S_P3}, 2048")
    return q.ins


g = g1_gaps(0)
e = pin_vm(g, 0, w4[3:], 1.5)
g.at(e, poll_check(S_P4, 25))
e4 = pin_vm(g, e, [wd_load(0), wd_load(1), wd_load(2), wd_load(3)], 2.2)
t4 = w_tr(6, 0, 8, "t4") + w_tr(6, 1, 12, "t4")
g.at(30, waitq("w4"))
pin_spread(g, 30, t4, per=2)
e = g.fill(ad2.ins[NAD2:] + ad.ins, start=0)
assert e < 34, e
g.at(41, waitq("t4") + cs_mfma(24, 28))
cf = sub()
for m in range(2):
    round_bf16(cf, 54, CSA[m])
    cf(f"v_sub_f32 v55, {v(CSA[m])}, v54")
    cf(f"v_cvt_pk_bf16_f32 v54, v54, v55")
    cf(f"v_accvgpr_write_b32 {acc(A_CS[m])}, v54")
g.fill(cf.ins, start=44, end=52)
g.at(int(OPT.get("pb1", 21)), poll_issue(S_PA, 23))
g.at(int(OPT.get("pb2", 37)), poll_issue(S_PA, 25))
g.at(int(OPT.get("st0", 36)), st_issue(0))
pin_vm(g, e4, [wd_dma(4)], 2.5)
g.at(53, stq("t0 pre st") + st_check(0) + stq("t0 post st"))
g.fill(st_final(0), start=53, end=55)
g.at(57, stq("t0 pre pB") + poll_check2(S_PA, 23, 25, "3", f"s{S_E28}") + stq("t0 post pB"))
next_tile_reads(g, 1, 128)
P.add(g.out())
stamp("tile0")
g = g1_gaps(1)
e = pin_vm(g, 0, act_dma(1)[:1] + [st_issue(1)] + act_dma(1)[1:], 2)
pin_vm(g, e + 1, [wd_dma(5), wd_load(10)], 2.5)
g.at(43, res_read(0))
g.at(45, res_read(1))
g.at(40, st_check(1))
g.fill(st_final(1), start=41, end=54)
bq = sub()
bq.wait("act1")
bq.wait("res1")
bq("s_barrier")
BB = int(OPT.get("bb", 52))
g.at(BB, stq("t1 pre bar") + bq.ins + stq("t1 post bar"))
next_tile_reads(g, 2, L_ACT[1] - 128, first=BB)
e = g.fill(g1_epi(0), start=3)
print("tile 1: epilogue ends at gap", e, "tail", len(g.tail))
P.add(g.out())
stamp("tile1")
g = g1_gaps(2)
pin_vm(g, 0, [wd_dma(6), wd_dma(7), st_issue(2), wd_dma(8), wd_dma(9), wd_load(11), st_issue(3)], 2.5)
g.at(24, flag3(0))
g.at(49, st_check(2))
g.fill(st_final(2), start=50, end=54)
g.at(56, poll_issue(S_P3, 7))
next_tile_reads(g, 3, 128)
e = g.fill(g1_epi(1), start=3)
print("tile 2: epilogue ends at gap", e, "tail", len(g.tail))
P.add(g.out())
stamp("tile2")
g = g1_gaps(3)
T3S = float(OPT.get("t3s", 2.4))
e = pin_vm(g, 4, [wd_load(12), wd_load(13)], T3S)
g.at(int(OPT.get("f1", 21)), flag3(1))
g.at(48, st_check(3))
g.fill(st_final(3), start=49, end=54)
g.at(e - 1, stq("t3 pre p0") + poll_check(S_P3, 7) + stq("t3 post p0") + p3_next())
pin_vm(g, e, h_loads(0), T3S)
g.at(int(OPT.get("p1", 47)), poll_issue(S_P3, 7))
g.at(52, res_read(2))
g.at(54, res_read(3))
e = g.fill(g1_epi(2), start=2)
print("tile 3: epilogue ends at gap", e, "tail", len(g.tail))
P.add(g.out())
stamp("tile3")
P.add(waitq("wd9") + wd_read(4) + wd_read(5))
ep = g1_epi(3)
h1 = h_loads(1)
NE = int(OPT.get("ne", 3))
P.add(sprinkle(ep, [(int(OPT.get("f2", 120)), flag3(2))] + [(68, poll_check(S_P3, 7) + p3_next())] + [(69 + 22 * i, h1[i]) for i in range(NE)]))
stamp("epi3")

OA = [8, 48]
OA = [224, 96]
RT = 176


def g2_mfma(J):
    m = sub()
    for ft in KORD:
        for rt in range(4):
            d = acc(OA[J & 1] + 4 * rt, 4)
            c = "0" if ft == 0 else d
            m(f"v_mfma_f32_16x16x32_bf16 {d}, {wdr(ft,rt)}, {hreg(J,ft)}, {c}")
    return m.ins


RTMP = [28, 32, 36, 12]


def red_write(J):
    q = sub()
    for rt in range(4):
        q(f"ds_write_b128 {v(V_RW)}, {acc(OA[J&1]+4*rt,4)} offset:{(J&1)*R_SZ + rt*1088}")
    return q.ins


def red_bar():
    q = sub()
    q("s_waitcnt lgkmcnt(0)")
    q("s_barrier")
    return q.ins


def red_read(J):
    q = sub()
    for w in range(4):
        q(f"ds_read_b128 {v(RTMP[w],4)}, {v(V_RR)} offset:{(J&1)*R_SZ + w*4352}")
    return q.ins


def red_fin(J):
    q = sub()
    a, b, c, d = RTMP
    for i in range(2):
        q(f"v_lshlrev_b32 {v(16+2*i)}, 16, {v(RESR[J]+i)}")
        q(f"v_and_b32 {v(17+2*i)}, 0xffff0000, {v(RESR[J]+i)}")
    for i in range(4):
        q(f"v_add_f32 {v(a+i)}, {v(a+i)}, {v(b+i)}")
    for i in range(4):
        q(f"v_add_f32 {v(c+i)}, {v(c+i)}, {v(d+i)}")
    for i in range(4):
        q(f"v_add_f32 {v(a+i)}, {v(a+i)}, {v(16+i)}")
    for i in range(4):
        q(f"v_add_f32 {v(a+i)}, {v(a+i)}, {v(c+i)}")
    if "eps" in OPT:
        for i in range(4):
            q(f"v_mul_f32 {v(a+i)}, {f32(1.0+float(OPT['eps']))}, {v(a+i)}")
    for i in range(2):
        q(f"v_cvt_pk_bf16_f32 {v(20+i)}, {v(a+2*i)}, {v(a+2*i+1)}")
    q(f"s_mov_b32 s{S_T0}, {(1024*(J>>1) + 128*(J&1))*896}")
    q(f"buffer_store_dwordx2 v[20:21], {v(V_OST)}, {srd(SRD_OUT)}, s{S_T0} offen {OPT.get('ost', '').replace('_', ' ')}")
    return q.ins


for J in range(4):
    g = Gaps(g2_mfma(J), 2)
    if J > 0:
        pin_spread(g, 4, red_write(J - 1), per=1)
        g.at(16, red_bar())
        pin_spread(g, 17, red_read(J - 1), per=1)
        g.fill(red_fin(J - 1), start=28)
    if J == 0:
        pin_vm(g, 0, h1[NE:], float(OPT.get("hs1", 4)))
        for i, x in enumerate(wd_read(6) + wd_read(7) + wd_read(8) + wd_read(9)):
            g.at(1 + 2 * i, [x])
        g.at(int(OPT.get("p2a", 18)), poll_issue(S_P3, 7))
        g.at(int(OPT.get("p2b", 36)), poll_issue(S_P3, 23))
        g.at(int(OPT.get("f3", 42)), flag3(3))
        bq = sub()
        bq.wait("res3")
        bq("s_barrier")
        g.at(52, bq.ins)
        g.at(55, poll_check2(S_P3, 7, 23, "1", f"s{S_E14}") + p3_next())
    if J == 1:
        pin_vm(g, 0, h_loads(2), float(OPT.get("hs", 3.5)))
        g.at(int(OPT.get("p3a", 14)), poll_issue(S_P3, 7))
        g.at(int(OPT.get("p3b", 32)), poll_issue(S_P3, 23))
        g.at(55, poll_check2(S_P3, 7, 23, "1", f"s{S_E14}"))
    if J == 2:
        pin_vm(g, 0, h_loads(3), float(OPT.get("hs3", 2)))
    P.add(g.out())
    stamp(f"g2 tile{J}")
P.add(red_write(3))
P.add(red_bar())
P.add(red_read(3))
P.add(red_fin(3))
stamp("end")

if "hold" in OPT:
    if "cls" in OPT:
        P(f"s_and_b32 s98, s{S_W}, 7")
        P(f"s_cmp_lg_u32 s98, {OPT['cls']}")
        P("s_cbranch_scc1 L_fin")
    P("L_hold:")
    P("s_memrealtime s[98:99]")
    P("s_waitcnt lgkmcnt(0)")
    P("s_sub_u32 s98, s98, s100")
    P("s_cmp_lt_u32 s98, 4000")
    P("s_cbranch_scc1 L_hold")
P("L_fin:")
if STAMPS:
    P(f"s_lshl_b32 s{S_T0}, s{S_W}, 2")
    P(f"s_add_u32 s{S_T0}, s{S_T0}, s{S_V}")
    P(f"s_lshl_b32 s{S_T0}, s{S_T0}, 8")
    P(f"s_add_u32 s{S_T0}, s{S_T0}, {WS_DBG + 0x800000}")
    P(f"v_lshlrev_b32 v4, 2, v1")
    P(f"buffer_store_dword v255, v4, {srd(SRD_WS)}, s{S_T0} offen")
if "dbgout" in OPT:
    P(f"s_cmp_ge_u32 s{S_W}, 224")
    P("s_cbranch_scc1 L_end")
    P(f"v_readlane_b32 s{S_T0}, v255, 0")
    P(f"s_not_b32 s{S_T0}, s{S_T0}")
    P(f"v_writelane_b32 v255, s{S_T0}, 15")
    P("s_mov_b64 exec, 0xffff")
    P(f"v_lshlrev_b32 v4, 2, v1")
    P("global_atomic_umax v4, v255, s[60:61]")
P("L_end:")
P("s_endpgm")

res = finalize(P.ins, verbose=True) + finalize(TAIL.ins) + finalize(SP.ins)
if "report" in OPT:
    report_waits(finalize(P.ins))
launch = f"; @launch kernel={KN} grid" if ("list" in OPT or STAMPS) else "; @launch grid"
hdr = f"""; Fused pre-LN S4D conv + GEGLU FFN, one persistent launch (generated by my own script)
{launch}=(256,1,1) block=(256,1,1) lds={LDS_SIZE}
.amdgcn_target "amdgcn-amd-amdhsa--gfx950"
.text
.globl {KN}
.p2align 8
.type {KN},@function
{KN}:
"""
ftr = f"""
.p2align 8
.fill 64, 4, 0xbf800000
L_codeend:
.section .rodata,"a"
.p2align 6
.amdhsa_kernel {KN}
  .amdhsa_next_free_vgpr 512
  .amdhsa_next_free_sgpr 102
  .amdhsa_accum_offset 256
  .amdhsa_group_segment_fixed_size 0
  .amdhsa_kernarg_size 112
  .amdhsa_user_sgpr_count 2
  .amdhsa_user_sgpr_kernarg_segment_ptr 1
  .amdhsa_system_sgpr_workgroup_id_x 1
.end_amdhsa_kernel
"""
open(OUTF, "w").write(hdr + text_of(res) + ftr)
src = open(__file__).read()
a = src.index("# ---------------- workspace layout")
b = src.index("# ---------------- LDS layout")
open("layout.py", "w").write(src[a:b] + "\nSTAMP_NAMES = " + repr(stamp_names) + "\nSPIN_NAMES = " + repr(spin_names) + "\n")
```

```python
import re

REG_RE = re.compile(r"^(-|abs\()?([vas])(\d+|\[(\d+):(\d+)\])\)?$")
TRANS = ("v_exp_f32", "v_log_f32", "v_rcp_f32", "v_rsq_f32", "v_sqrt_f32", "v_sin_f32", "v_cos_f32")


def regs_of(tok):
    tok = tok.strip()
    if tok in ("vcc",):
        return {"vcc"}
    if tok in ("exec",):
        return {"exec"}
    if tok == "m0":
        return {"m0"}
    m = REG_RE.match(tok)
    if not m:
        return set()
    k = m.group(2)
    if m.group(4) is not None:
        return {f"{k}{i}" for i in range(int(m.group(4)), int(m.group(5)) + 1)}
    return {f"{k}{m.group(3)}"}


def split_ops(s):
    out, depth, cur = [], 0, ""
    for ch in s:
        if ch in "[(":
            depth += 1
        if ch in "])":
            depth -= 1
        if ch == "," and depth == 0:
            out.append(cur.strip())
            cur = ""
        else:
            cur += ch
    if cur.strip():
        out.append(cur.strip())
    return out


class Ins:
    __slots__ = ("text", "mn", "ops", "mods", "rd", "wr", "cls", "passes", "tok", "cond", "srcC", "srcAB", "extra")

    def __init__(self, text, tok=None, cond=False):
        self.text = text
        self.tok = tok
        self.cond = cond
        self.extra = None
        t = text.split(";")[0].strip()
        self.rd, self.wr = set(), set()
        self.passes = 0
        self.srcC = set()
        self.srcAB = set()
        if t.endswith(":") or t.startswith(".") or not t:
            self.mn, self.ops, self.mods, self.cls = t, [], "", "label" if t.endswith(":") else "dir"
            return
        parts = t.split(None, 1)
        mn = parts[0]
        rest = parts[1] if len(parts) > 1 else ""
        ops = split_ops(rest)
        mods = ""
        if ops:
            last = ops[-1].split(None, 1)
            if len(last) > 1 and not mn.startswith("s_waitcnt"):
                ops[-1] = last[0]
                mods = last[1]
        self.mn, self.ops, self.mods = mn, ops, mods
        base = re.sub(r"_(e32|e64|dpp|sdwa)$", "", mn)
        R = [regs_of(o) for o in ops]
        allr = lambda idx: set().union(*[R[i] for i in idx]) if idx else set()
        n = len(ops)
        if mn.startswith("v_mfma"):
            self.cls = "mfma"
            self.passes = 8 if "32x32x16" in mn else (4 if "16x16x32" in mn else 2)
            self.wr = R[0]
            self.srcAB = R[1] | R[2]
            self.srcC = R[3]
            self.rd = self.srcAB | self.srcC
        elif mn.startswith("v_"):
            self.cls = "valu"
            if base in TRANS:
                self.cls = "trans"
            if base.startswith("v_dot2"):
                self.cls = "dot"
            if base in ("v_swap_b32",) or base.startswith("v_permlane"):
                self.wr = R[0] | R[1]
                self.rd = R[0] | R[1]
                if base.startswith("v_permlane"):
                    self.extra = "permlane"
            elif base in ("v_add_co_u32", "v_sub_co_u32", "v_addc_co_u32", "v_subb_co_u32"):
                self.wr = R[0] | R[1]
                self.rd = allr(range(2, n))
            else:
                self.wr = R[0]
                self.rd = allr(range(1, n))
                if base in ("v_fmac_f32", "v_dot2c_f32_bf16", "v_writelane_b32") or "_dpp" in mn or "row_" in mods or "quad_perm" in mods:
                    self.rd |= R[0]
                if "_dpp" in mn or "row_" in mods or "quad_perm" in mods:
                    self.extra = "dpp"
                if base in ("v_readfirstlane_b32", "v_readlane_b32"):
                    self.extra = "readlane"
                if base.startswith("v_dot2"):
                    self.srcC = R[0] if base.startswith("v_dot2c") else R[3]
                    self.srcAB = R[1] | R[2]
        elif mn.startswith("ds_"):
            self.cls = "ds"
            if mn.startswith("ds_read") or mn.startswith("ds_bpermute") or mn.startswith("ds_swizzle"):
                self.wr = R[0]
                self.rd = allr(range(1, n))
                if "d16" in mn:
                    self.rd |= R[0]
            else:
                self.rd = allr(range(n))
            if "addtid" in mn:
                self.rd |= {"m0"}
                self.extra = "dma"
        elif mn.startswith("buffer_") or mn.startswith("global_"):
            self.cls = "vmem"
            islds = " lds" in (" " + mods)
            if "_load" in mn and not islds:
                self.wr = R[0]
                self.rd = allr(range(1, n))
            elif "_atomic" in mn and "sc0" in mods:
                self.wr = R[0]
                self.rd = allr(range(n))
            else:
                self.rd = allr(range(n))
                if islds:
                    self.rd |= {"m0"}
                    self.extra = "dma"
                elif "x4" in mn or "x3" in mn:
                    self.extra = "widestore"
        elif mn.startswith("s_load") or mn.startswith("s_mem"):
            self.cls = "smem"
            self.wr = R[0]
            self.rd = allr(range(1, n))
        elif mn.startswith("s_"):
            self.cls = "salu"
            if mn in ("s_waitcnt", "s_barrier", "s_nop", "s_endpgm", "s_sleep", "s_setprio") or mn.startswith("s_cbranch") or mn == "s_branch":
                self.cls = "ctl"
            elif mn.startswith("s_cmp") or mn.startswith("s_bitcmp"):
                self.rd = allr(range(n))
            else:
                self.wr = R[0]
                self.rd = allr(range(1, n))
                if "saveexec" in mn:
                    self.wr |= {"exec"}
        else:
            raise ValueError("unknown instruction: " + text)

    def states(self):
        if self.cls in ("label", "dir"):
            return 0
        if self.mn == "s_nop":
            return int(self.ops[0]) + 1
        return 1


def need_states(p, c):
    n = 0
    pv = p.cls in ("valu", "trans", "dot")
    cv = c.cls in ("valu", "trans", "dot")
    if pv:
        vw = {r for r in p.wr if r[0] in "va" and r != "vcc"}
        sw = {r for r in p.wr if r[0] == "s" or r == "vcc"}
        if c.cls == "mfma" and vw & c.rd:
            n = max(n, 2)
        if c.extra == "dpp" and vw & c.rd:
            n = max(n, 2)
        if c.extra == "permlane" and vw & c.rd:
            n = max(n, 2)
        if c.extra == "readlane" and vw & c.rd:
            n = max(n, 1)
        if sw & c.rd:
            if cv:
                n = max(n, 4 if c.extra == "readlane" else 2)
            if c.cls == "vmem":
                n = max(n, 5)
        if p.cls == "trans" and vw & c.rd and c.cls != "trans":
            n = max(n, 1)
        if p.cls == "dot":
            if c.cls == "dot" and c.mn == p.mn:
                if vw & c.srcAB:
                    n = max(n, 3)
            elif vw & (c.rd | c.wr):
                n = max(n, 3)
    if p.cls == "mfma":
        P = p.passes
        long = {2: 5, 4: 8, 8: 12}[P]
        if c.cls == "mfma":
            if p.wr & c.srcAB:
                n = max(n, long)
            if p.wr & c.srcC:
                if p.wr == c.srcC and c.passes == P:
                    n = max(n, 2 if P == 2 else 0)
                else:
                    n = max(n, P + 2)
            elif p.wr & c.wr:
                n = max(n, P + 2)
        elif p.wr & (c.rd | c.wr):
            n = max(n, long)
        if cv and p.srcC & c.wr:
            n = max(n, {2: 1, 4: 3, 8: 7}[P])
    if p.extra == "widestore":
        data = regs_of(p.ops[0]) if p.mn.startswith("buffer_") else regs_of(p.ops[1])
        if data & c.wr:
            n = max(n, 2)
    if p.cls == "salu" and "m0" in p.wr and c.extra == "dma":
        n = max(n, 1)
    return n


class Prog:
    def __init__(self):
        self.ins = []
        self._cond = False

    def __call__(self, text, tok=None):
        for line in text.split("\n"):
            line = line.strip()
            if not line or (line.startswith(";") and not line.startswith("; @")):
                continue
            self.ins.append(Ins(line, tok=tok, cond=self._cond))

    def raw(self, text):
        i = Ins(".raw")
        i.text = "    " + text
        self.ins.append(i)

    def add(self, lst):
        for i in lst:
            self.ins.append(i)

    def cond(self, on):
        self._cond = on

    def wait(self, tok):
        i = Ins("s_waitcnt auto", cond=self._cond)
        i.extra = ("wait", tok)
        self.ins.append(i)

    def lds_fence(self):
        self("s_waitcnt lgkmcnt(0)")


def sub():
    return Prog()


def interleave(main, fill, start=0, every=None, weights=None):
    idx = [k for k, i in enumerate(main) if i.cls == "mfma"]
    idx = idx[start:]
    if not idx:
        return main + fill
    n = len(idx)
    cost = lambda i: 2 if i.cls == "trans" else (0 if (i.extra and isinstance(i.extra, tuple)) else 1)
    total = sum(cost(i) for i in fill)
    out = []
    fi = 0
    done = 0
    seen = 0
    for k, i in enumerate(main):
        out.append(i)
        if k in idx:
            seen += 1
            target = total * seen / n if every is None else min(total, every * seen)
            while fi < len(fill) and done + cost(fill[fi]) <= target + 1e-9:
                out.append(fill[fi])
                done += cost(fill[fi])
                fi += 1
    out += fill[fi:]
    return out


def finalize(ins, verbose=False):
    out = []
    vm = []
    lg = []
    smem_out = []

    def emit_wait(vmn=None, lgn=None, cond=False):
        parts = []
        if vmn is not None:
            parts.append(f"vmcnt({min(vmn, 62)})")
        if lgn is not None:
            parts.append(f"lgkmcnt({min(lgn, 14)})")
        w = Ins("s_waitcnt " + " ".join(parts), cond=cond)
        out.append(w)

    def younger(lst, k, cond):
        return sum(1 for j in lst[k + 1:] if (not j.cond) or cond)

    for i in ins:
        if isinstance(i.extra, tuple) and i.extra[0] == "wait":
            tok = i.extra[1]
            kv = max([k for k, j in enumerate(vm) if j.tok == tok], default=None)
            kl = max([k for k, j in enumerate(lg) if j.tok == tok], default=None)
            if kv is not None or kl is not None:
                emit_wait(None if kv is None else younger(vm, kv, i.cond), None if kl is None else younger(lg, kl, i.cond), i.cond)
                if not i.cond:
                    if kv is not None:
                        vm = vm[kv + 1:]
                    if kl is not None:
                        lg = lg[kl + 1:]
                else:
                    if kv is not None:
                        vm = [j for k, j in enumerate(vm) if not (k <= kv and j.cond)]
                    if kl is not None:
                        lg = [j for k, j in enumerate(lg) if not (k <= kl and j.cond)]
            continue
        if i.mn == "s_waitcnt":
            t = i.text
            m = re.search(r"vmcnt\((\d+)\)", t)
            if m:
                n = int(m.group(1))
                assert n == 0, "manual counted vmcnt not supported"
                vm = [] if not i.cond else [j for j in vm if not j.cond]
            m = re.search(r"lgkmcnt\((\d+)\)", t)
            if m:
                assert int(m.group(1)) == 0
                if not i.cond:
                    lg = []
                    smem_out = []
                else:
                    lg = [j for j in lg if not j.cond]
            out.append(i)
            continue
        touched = i.rd | i.wr
        for j in smem_out:
            assert not (j.wr & touched), f"use of SMEM result without lgkmcnt(0): {i.text}"
        kv = max([k for k, j in enumerate(vm) if j.wr & touched], default=None)
        kl = max([k for k, j in enumerate(lg) if j.wr & touched], default=None)
        if kl is not None and i.cls == "ds" and "d16" in i.mn and not (lg[kl].wr & (i.rd - i.wr)):
            kl = None
        if kl is not None and not any(j.cond for j in lg):
            kl = max(kl, len(lg) - 1 - 14)
        if kv is not None or kl is not None:
            if kl is not None and smem_out:
                emit_wait(None if kv is None else younger(vm, kv, i.cond), 0, i.cond)
                if not i.cond:
                    lg = []
                    smem_out = []
            else:
                emit_wait(None if kv is None else younger(vm, kv, i.cond), None if kl is None else younger(lg, kl, i.cond), i.cond)
            if not i.cond:
                if kv is not None:
                    vm = vm[kv + 1:]
                if kl is not None and lg:
                    lg = lg[kl + 1:]
            else:
                if kv is not None:
                    vm = [j for k, j in enumerate(vm) if not (k <= kv and j.cond)]
                if kl is not None:
                    lg = [j for k, j in enumerate(lg) if not (k <= kl and j.cond)]
        out.append(i)
        if i.cls == "vmem":
            vm.append(i)
            assert len(vm) <= 63, "too many outstanding vmem ops at " + i.text
        elif i.cls == "ds":
            lg.append(i)
        elif i.cls == "smem":
            smem_out.append(i)

    res = []
    nn = 0
    for i in out:
        if i.cls not in ("label", "dir", "ctl"):
            dist = 0
            need = 0
            for p in reversed(res):
                if dist >= 20:
                    break
                r = need_states(p, i)
                if r > dist:
                    need = max(need, r - dist)
                if not (p.cond and not i.cond):
                    dist += p.states()
            while need > 0:
                k = min(need, 16)
                res.append(Ins(f"s_nop {k-1}", cond=i.cond))
                nn += 1
                need -= k
        res.append(i)
    if verbose:
        print(f"instructions: {len(res)}, nops inserted: {nn}")
    return res


def text_of(res):
    return "\n".join((i.text if i.cls in ("label", "dir") else "    " + i.text) for i in res)


def cost(i):
    if isinstance(i.extra, tuple):
        return 1
    if i.cls == "trans" or i.mn.startswith("v_swap"):
        return 2
    if i.cls in ("label", "dir"):
        return 0
    if i.cls == "vmem":
        return 5 if "store_dwordx4" in i.mn else 3
    return 1


class Gaps:
    def __init__(self, mfmas, cap):
        self.m = mfmas
        self.n = len(mfmas)
        self.cap = cap
        self.pin = [[] for _ in mfmas]
        self.fil = [[] for _ in mfmas]
        self.tail = []

    def used(self, k):
        return sum(cost(i) for i in self.pin[k]) + sum(cost(i) for i in self.fil[k])

    def at(self, k, ins):
        self.pin[min(k, self.n - 1)] += list(ins)

    def fill(self, ins, start=0, end=None, cap=None):
        cap = self.cap if cap is None else cap
        end = self.n if end is None else end
        k = start
        for i in ins:
            while k < end and self.used(k) + cost(i) > cap:
                k += 1
            if k >= end:
                if end >= self.n:
                    self.tail.append(i)
                else:
                    self.fil[end - 1].append(i)
            else:
                self.fil[k].append(i)
        return k

    def out(self):
        o = []
        for k in range(self.n):
            o.append(self.m[k])
            o += self.pin[k]
            o += self.fil[k]
        return o + self.tail


def sprinkle(main, inserts):
    d = {}
    for k, l in inserts:
        d.setdefault(min(k, len(main)), []).extend(l)
    o = []
    for k, i in enumerate(main):
        o += d.get(k, [])
        o.append(i)
    o += d.get(len(main), [])
    return o


def report_waits(res, vm_min=1100, lg_min=120):
    t = 0
    nm = 0
    vm, lg = [], []
    mark = "start"
    for i in res:
        if i.cls == "dir" and i.text.startswith("; @"):
            print(f"--- t={t} {i.text}")
            continue
        if i.cls in ("label", "dir"):
            continue
        if i.cls == "mfma":
            t = max(t, nm)
            nm = t + 4 * i.passes
            t += 8
            continue
        if i.mn == "s_waitcnt":
            m = re.search(r"vmcnt\((\d+)\)", i.text)
            if m:
                n = int(m.group(1))
                if len(vm) > n:
                    tt, j = vm[len(vm) - n - 1]
                    if t - tt < vm_min:
                        print(f"   t={t} vm wait age {t-tt}: {j.text[:70]}")
                    vm = vm[len(vm) - n:] if n else []
            m = re.search(r"lgkmcnt\((\d+)\)", i.text)
            if m:
                n = int(m.group(1))
                if len(lg) > n:
                    tt, j = lg[len(lg) - n - 1]
                    if t - tt < lg_min:
                        print(f"   t={t} lgkm wait age {t-tt}: {j.text[:70]}")
                    lg = lg[len(lg) - n:] if n else []
            t += 4
            continue
        if i.cls == "vmem":
            vm.append((t, i))
            t += 12
        elif i.cls == "ds":
            lg.append((t, i))
            t += 8
        elif i.mn == "s_nop":
            t += 4 * i.states()
        else:
            t += 4 * cost(i)
    print(f"--- t={t} end")


NO_E64 = ("v_readfirstlane_b32", "v_swap_b32", "v_permlane32_swap_b32", "v_permlane16_swap_b32", "v_dot2c_f32_bf16",
          "v_accvgpr_mov_b32", "v_nop")


def align_pass(hdr, body, ftr, tmp="_al"):
    import subprocess
    open(tmp + ".s", "w").write(hdr + body + ftr)
    subprocess.run(["clang", "-x", "assembler", "-target", "amdgcn-amd-amdhsa", "-mcpu=gfx950", "-c", tmp + ".s", "-o", tmp + ".o"], check=True)
    dis = subprocess.run(["llvm-objdump", "-d", "--mcpu=gfx950", tmp + ".o"], capture_output=True, text=True, check=True).stdout
    sizes = []
    for l in dis.split("\n"):
        m = re.search(r"// [0-9A-F]{12}: ((?:[0-9A-F]{8} ?)+)", l)
        if m:
            sizes.append(4 * len(m.group(1).split()))
    lines = body.split("\n")
    idx = [k for k, l in enumerate(lines) if l.startswith("    ") and not l.strip().startswith((";", "."))]
    sizes = sizes[:len(idx)]
    n = len(idx)
    alt = []
    for k, sz in zip(idx, sizes):
        t = lines[k].split(None, 1)
        mn = t[0]
        ops = [o.strip() for o in t[1].split(",")] if len(t) > 1 else []
        a_ = None
        if sz == 4 and mn.startswith("v_") and mn not in NO_E64 and not mn.endswith(("_e64", "_dpp", "_sdwa")):
            a_ = f"    {mn}_e64 {t[1]}"
        elif sz == 4 and mn == "s_mov_b32" and ops[0] == "m0" and ops[1].startswith("s"):
            a_ = f"    s_and_b32 m0, {ops[1]}, 0x7fffffff"
        elif sz == 4 and mn == "s_add_u32" and ops[0] == "m0" and ops[2] == "0":
            a_ = f"    s_and_b32 m0, {ops[1]}, 0x7fffffff"
        elif sz == 8 and mn == "s_mov_b32" and re.fullmatch(r"\d+", ops[1]) and int(ops[1]) < 32768 and ops[0].startswith("s"):
            a_ = f"    s_movk_i32 {ops[0]}, {ops[1]}"
        elif sz == 8 and mn == "s_add_u32" and ops[0] == ops[1] and re.fullmatch(r"\d+", ops[2]) and int(ops[2]) < 32768:
            a_ = f"    s_addk_i32 {ops[0]}, {ops[2]}"
        alt.append(a_)
    INF = 1e18
    cost = [0.0, INF]
    back = []
    for i in range(n):
        nc = [INF, INF]
        bk = [None, None]
        for par in (0, 1):
            if cost[par] >= INF:
                continue
            opts = [(sizes[i], 0.0)] + ([(12 - sizes[i], 0.05)] if alt[i] else [])
            for sz, pen in opts:
                c = cost[par] + pen + (1.0 if (sz == 8 and par == 1) else 0.0)
                np_ = (par + sz // 4) % 2
                if c < nc[np_]:
                    nc[np_] = c
                    bk[np_] = (par, sz)
        cost = nc
        back.append(bk)
    par = 0 if cost[0] <= cost[1] else 1
    total = cost[par]
    wid = 0
    for i in range(n - 1, -1, -1):
        pp, sz = back[i][par]
        if sz != sizes[i]:
            lines[idx[i]] = alt[i]
            wid += 1
        par = pp
    par, base = 0, 0
    for sz in sizes:
        base += (sz == 8 and par == 1)
        par = (par + sz // 4) % 2
    print(f"align: misaligned {base} -> {int(total - 0.05 * wid + 0.5)}, widened {wid}")
    return "\n".join(lines)
```

```python
import sys, math, struct
from asmgen import *

NAME = "sequential_preLN__ssm_conv_s4d__geglu_ffn__prompt"
KN = NAME + "_kernel"
OPT = {}
for a in sys.argv[1:]:
    k, _, val = a.partition("=")
    OPT[k] = val if val else True
STAMPS = "stamps" in OPT
OUTF = OPT.get("out", "k12.s")
if "wdearly" not in OPT:
    OPT["wdlate"] = True


def f32(x):
    return "0x%08x" % struct.unpack("<I", struct.pack("<f", x))[0]


FS = 4
FREP = 0x9000
WS_EPOCH = 0
WS_F1 = 0x8000
WS_S2 = 0x54000
S2REP = 0x5000
WS_C = 0x80000
WS_UX = 0xD0000
WS_P = WS_UX + 256 * 14336
PROW = 4352
PGEN = 224 * PROW
WS_H = WS_P + 2 * PGEN
WS_WF = WS_H + 16 * 4 * 56 * 2048
WS_END = WS_WF + 392 * 4096
WS_DBG = 0x1000000
WS_SIZE = 0x2000000
LAYOUT = 5

CS = 4160
TAB_W = 14592
TAB_ROW = 272
L_KC = 58368
L_UX = 75008
L_EX = 0
L_RING = 98304
L_ACT = [0, 65536]
L_F = 131072
L_R = 65536
R_SZ = 17408
LDS_SIZE = 163840

S_W = 2
S_V = 4
S_T0, S_T1, S_T2, S_T3 = 5, 6, 7, 3
SRD_X, SRD_WS, SRD_WG, SRD_WU, SRD_WD, SRD_OUT = 8, 12, 16, 20, 24, 28
S_NONCE = 32
S_CNT = 33
S_EX = 34
S_PR, S_DSK = 64, 65
S_TB, S_FB, S_FH, S_DB = 66, 67, 68, 69
S_A, S_B, S_C, S_D = 70, 72, 74, 76
S_RING = 78
S_WOFF = 79
S_K0 = 80
S_TAB = 81
S_F3 = 82
S_F1, S_F2 = 83, 84
S_M255 = 86
S_FW, S_R2 = 88, 89
S_ACTW = 90
S_UXO = 91
S_Z = 95
S_PFB = 88
S_HR = 36
S_PA, S_P4, S_P3, S_PST, S_AB, S_WFB = 40, 41, 42, 43, 44, 45
S_E28, S_E14, S_CI = 46, 47, 85
S_UXM = 92
S_REP = 94
S_PERM = 93
S_STAMP = 96


def srd(n):
    return f"s[{n}:{n+3}]"


def v(n, w=1):
    return f"v{n}" if w == 1 else f"v[{n}:{n+w-1}]"


def acc(n, w=1):
    return f"a{n}" if w == 1 else f"a[{n}:{n+w-1}]"


P = Prog()
TAIL = Prog()
nstamp = [0]
stamp_names = []
spin_names = []
LITE = ("start", "conv start", "genA stored", "gemm1 start", "tile3", "end")
if "dbgout" in OPT:
    LITE = ("start", "x arrived", "ln1 done", "kgen r1", "conv start", "genA stored", "gemm1 start", "tile1", "tile3", "end")


def stamp(name, p=None):
    p = P if p is None else p
    p(f"; @ {name}")
    if OPT.get("hold", "").replace("_", " ") == name:
        p(f"s_memrealtime s[100:101]")
        p("s_waitcnt lgkmcnt(0)")
    if STAMPS and ("lite" not in OPT or name in LITE):
        k = nstamp[0]
        assert k < 32
        p(f"s_memrealtime s[{S_STAMP}:{S_STAMP+1}]")
        p(f"s_memtime s[{S_STAMP+2}:{S_STAMP+3}]")
        p("s_waitcnt lgkmcnt(0)")
        p(f"v_writelane_b32 v255, s{S_STAMP}, {k}")
        p(f"v_writelane_b32 v255, s{S_STAMP+2}, {32+k}")
        nstamp[0] += 1
        stamp_names.append(name)


def stq(name):
    q = sub()
    if "dbg" in OPT:
        stamp(name, q)
    return q.ins


lblc = [0]


def label(prefix):
    lblc[0] += 1
    return f"L_{prefix}_{lblc[0]}"


def poll_issue(what, vtmp):
    q = sub()
    q(f"v_mov_b32 {v(vtmp)}, 0")
    if what == "F1":
        q(f"buffer_atomic_add {v(vtmp)}, {v(V_F1)}, {srd(SRD_WS)}, 0 offen sc0")
    else:
        q(f"buffer_atomic_add {v(vtmp)}, {v(V_PM if what == S_PA else V_P1)}, {srd(SRD_WS)}, s{what} offen sc0")
    return q.ins


def spin(t, name, done, reissue, vtag, sleep=2, exp=None):
    t(f"{name}:")
    t(f"s_mov_b32 s{S_CNT}, 0")
    t(f"{name}_l:")
    t("s_mov_b64 exec, vcc")
    t(f"s_sleep {sleep}")
    t.add(reissue)
    t("s_waitcnt vmcnt(0)")
    t(f"v_cmp_ne_u32 vcc, {exp or f's{S_NONCE}'}, {v(vtag)}")
    t("s_mov_b64 exec, -1")
    if STAMPS and "lite" in OPT:
        spin_names.append(name)
        t(f"s_add_u32 s{S_STAMP}, s{S_CNT}, 1")
        t(f"v_writelane_b32 v255, s{S_STAMP}, {10+len(spin_names)-1}")
    t(f"s_cbranch_vccz {done}")
    t(f"s_add_u32 s{S_CNT}, s{S_CNT}, 1")
    t(f"s_cmp_lt_u32 s{S_CNT}, 0x40000")
    t(f"s_cbranch_scc1 {name}_l")
    t(f"s_branch {done}")


def poll_check(what, vtmp):
    q = sub()
    slow, done = label("slow"), label("pdone")
    exp = f"s{S_NONCE}" if what == "F1" else (f"s{S_E14}" if what == S_P3 else f"s{S_E28}")
    q(f"v_cmp_ne_u32 vcc, {exp}, {v(vtmp)}")
    if what == "F1":
        q(f"s_cbranch_vccnz {slow}")
    else:
        q(f"s_and_b64 vcc, vcc, {3 if what == S_PA else 1}")
        q(f"s_cbranch_scc1 {slow}")
    q(f"{done}:")
    spin(TAIL, slow, done, poll_issue(what, vtmp), vtmp, exp=exp, sleep=1)
    return q.ins


def poll_check2(vaddr, v1, v2, mask, exp):
    q = sub()
    slow, done = label("slow"), label("pdone")
    q(f"v_cmp_ne_u32 vcc, {exp}, {v(v1)}")
    q(f"s_and_b64 vcc, vcc, {mask}")
    q(f"s_cbranch_scc0 {done}")
    q.cond(True)
    q(f"v_cmp_ne_u32 vcc, {exp}, {v(v2)}")
    q(f"s_and_b64 vcc, vcc, {mask}")
    q(f"s_cbranch_scc1 {slow}")
    q.cond(False)
    q(f"{done}:")
    spin(TAIL, slow, done, poll_issue(vaddr, v1), v1, exp=exp, sleep=1)
    return q.ins


def setflag(p, soff):
    p(f"buffer_atomic_swap {v(V_NONCE)}, {v(V_FLG)}, {srd(SRD_WS)}, s{soff} offen")


def addcnt(p, soff, vl):
    p(f"buffer_atomic_add {v(V_NONCE)}, {v(vl)}, {srd(SRD_WS)}, s{soff} offen")


def lanes_reg(p, dst, n, sh, t1=4):
    p(f"v_and_b32 {v(t1)}, {64-n}, {v(V_LANE)}")
    p(f"v_lshlrev_b32 {v(t1)}, 25, {v(t1)}")
    p(f"v_lshl_add_u32 {v(dst)}, {v(V_LANE)}, {sh}, {v(t1)}")


def waitq(tok):
    q = sub()
    q.wait(tok)
    return q.ins


def cmul(p, z, x, y):
    p(f"v_pk_mul_f32 {v(z,2)}, {v(x,2)}, {v(y,2)} op_sel:[0,0] op_sel_hi:[0,1]")
    p(f"v_pk_fma_f32 {v(z,2)}, {v(x,2)}, {v(y,2)}, {v(z,2)} op_sel:[1,1,0] op_sel_hi:[1,0,1] neg_lo:[1,0,0]")


def round_bf16(p, dst, src):
    p(f"v_cvt_pk_bf16_f32 {v(dst)}, {v(src)}, {v(src)}")
    p(f"v_and_b32 {v(dst)}, 0xffff0000, {v(dst)}")


V_LANE, V_NONCE, V_L16 = 1, 2, 3
V_FLG = 8
V_W = 9
V_TRA = 13
V_TA, V_TB, V_TW = 14, 15, 16
GA = 17
V_F1, V_UXL = 26, 27
V_KA = 28
V_UA = 32
V_EU, V_EXP, V_EXW, V_EXR, V_FL2 = 36, 37, 38, 39, 40
V_GW, V_GX, V_GR, V_S3, V_DSK = 240, 241, 242, 243, 244
V_EU1 = 41
V_DT = 42
V_PM = 43
V_P1 = 252
PR = 44
V_PF = 254

LOG2E = 1.4426950408889634

if OPT.get("hold") == "entry":
    P("s_memrealtime s[100:101]")
P(f"s_cmp_ge_u32 s{S_W}, 256")
P("s_cbranch_scc1 L_end")
P(f"s_load_dwordx16 s[36:51], s[0:1], 0")
P(f"s_load_dwordx8 s[52:59], s[0:1], 64")
P(f"s_load_dwordx4 s[60:63], s[0:1], 96")
if "nocpf" not in OPT:
    P(f"s_getpc_b64 s[{S_B}:{S_B+1}]")
    P("L_pc:")
    P(f"s_bfe_u32 s{S_T2}, s{S_W}, 0x30003")
    P(f"s_mul_i32 s{S_T2}, s{S_T2}, ((L_codeend-L_pc)/1024)*128")
    P(f"v_cmp_gt_u32 vcc, (L_codeend-L_pc)/1024, v0")
    P(f"s_add_u32 s{S_B}, s{S_B}, s{S_T2}")
    P(f"s_addc_u32 s{S_B+1}, s{S_B+1}, 0")
    P(f"v_lshlrev_b32 v6, 7, v0")
    P(f"s_and_saveexec_b64 s[{S_A}:{S_A+1}], vcc")
    P("s_cbranch_execz L_nocpf")
    P.cond(True)
    P(f"v_mov_b32 v7, s{S_B+1}")
    P(f"v_add_co_u32 v6, vcc, s{S_B}, v6")
    P(f"v_addc_co_u32 v7, vcc, 0, v7, vcc")
    P(f"global_load_dword v251, v[6:7], off")
    P.cond(False)
    P("L_nocpf:")
    P("s_mov_b64 exec, -1")
if STAMPS:
    P("v_mov_b32 v255, 0")
P(f"v_and_b32 {v(V_LANE)}, 63, v0")
P(f"v_lshrrev_b32 v4, 6, v0")
P(f"v_lshlrev_b32 {v(V_L16)}, 4, {v(V_LANE)}")
P(f"v_readfirstlane_b32 s{S_V}, v4")
P(f"v_mov_b32 v5, 0x7ff00000")
P(f"v_cmp_gt_u32 vcc, 56, {v(V_LANE)}")
P(f"s_lshl_b32 s{S_T0}, s{S_W}, 2")
P(f"s_add_u32 s{S_T0}, s{S_T0}, s{S_V}")
P(f"v_cndmask_b32 v4, v5, {v(V_L16)}, vcc")
P(f"s_mul_i32 s{S_T0}, s{S_T0}, 1792")
P(f"s_and_b32 s{S_T1}, s{S_W}, 7")
P(f"s_mul_i32 s{S_T1}, s{S_T1}, 28")
P(f"s_lshr_b32 s{S_T2}, s{S_W}, 3")
P(f"s_add_u32 s{S_T1}, s{S_T1}, s{S_T2}")
P(f"s_min_u32 s{S_PR}, s{S_T1}, 223")
P(f"s_lshl_b32 s{S_T2}, s{S_PR}, 10")
P(f"v_lshl_add_u32 v6, v0, 2, s{S_T2}")
P(f"v_mov_b32 v7, 0")
P(f"s_lshl_b32 s{S_T1}, s{S_PR}, 2")
P(f"v_mov_b32 v56, s{S_T1}")
P(f"s_mov_b32 s{SRD_X+2}, 1835008")
P(f"s_mov_b32 s{SRD_X+3}, 0x00020000")
P(f"s_mov_b32 s{SRD_WS+2}, {WS_SIZE}")
P(f"s_mov_b32 s{SRD_WS+3}, 0x00020000")
P("s_waitcnt lgkmcnt(0)")
stamp("start")
P(f"s_mov_b64 s[{SRD_X}:{SRD_X+1}], s[36:37]")
XR = 48
P(f"buffer_load_dwordx4 {v(XR,4)}, v4, {srd(SRD_X)}, s{S_T0} offen")
P(f"buffer_load_dwordx4 {v(XR+4,4)}, v4, {srd(SRD_X)}, s{S_T0} offen offset:896")
for r, src, sz in ((SRD_WG, 52, 1605632), (SRD_WU, 54, 1605632), (SRD_WD, 56, 1605632), (SRD_OUT, 58, 1835008)):
    P(f"s_mov_b64 s[{r}:{r+1}], s[{src}:{src+1}]")
    P(f"s_mov_b32 s{r+2}, {sz}")
    P(f"s_mov_b32 s{r+3}, 0x00020000")
P(f"v_cmp_lt_u32 vcc, 7, {v(V_LANE)}")
P(f"v_mul_u32_u24 v4, {FREP}, {v(V_LANE)}")
P(f"s_lshr_b32 s{S_T0}, s{S_W}, 3")
P(f"s_mul_i32 s{S_T1}, s{S_T0}, 37")
P(f"v_cndmask_b32 {v(V_FLG)}, v4, v5, vcc")
P(f"s_lshr_b32 s{S_T1}, s{S_T1}, 8")
P(f"s_mul_i32 s{S_T2}, s{S_T1}, 7")
P(f"s_sub_u32 s{S_DB}, s{S_T0}, s{S_T2}")
P(f"s_and_b32 s{S_FH}, s{S_W}, 1")
P(f"s_and_b32 s{S_T2}, s{S_W}, 6")
P(f"s_lshl_b32 s{S_T2}, s{S_T2}, 1")
P(f"s_add_u32 s{S_TB}, s{S_T2}, s{S_T1}")
P(f"s_mul_i32 s{S_FB}, s{S_FH}, 7")
P(f"s_add_u32 s{S_FB}, s{S_FB}, s{S_DB}")
P(f"s_lshl_b32 s{S_RING}, s{S_V}, 13")
P(f"s_add_u32 s{S_RING}, s{S_RING}, {L_RING}")
P(f"s_mul_i32 s{S_TAB}, s{S_V}, {TAB_W}")
for _ in range(int(OPT.get("xd", 0))):
    P("s_nop 7")
P(f"s_mov_b64 s[{SRD_WS}:{SRD_WS+1}], s[62:63]")
for i in range(4):
    P(f"global_load_dword {v(PR+i)}, v6, s[{38+2*i}:{39+2*i}]")
P(f"global_load_dword {v(V_DT)}, v56, s[46:47]")
P(f"global_load_dword {v(V_DSK)}, v56, s[48:49]")
P(f"buffer_load_dword {v(V_NONCE)}, v7, {srd(SRD_WS)}, 0 offen sc1")
NOPF = "nopf" in OPT
if not NOPF:
    P(f"s_bitcmp1_b32 s{S_V}, 0")
    P(f"s_cselect_b64 s[{S_PFB}:{S_PFB+1}], s[54:55], s[52:53]")
    P(f"s_lshr_b32 s{S_T0}, s{S_V}, 1")
    P(f"s_lshl1_add_u32 s{S_T2}, s{S_W}, s{S_T0}")
    P(f"s_mul_i32 s{S_T0}, s{S_T2}, {7*128}")
    P(f"v_min_u32 v4, 6, {v(V_LANE)}")
    P(f"v_lshl_add_u32 v4, v4, 7, s{S_T0}")
    P(f"global_load_dword {v(V_PF)}, v4, s[{S_PFB}:{S_PFB+1}]")
    P(f"s_mul_i32 s{S_T0}, s{S_W}, 49")
    P(f"s_mul_i32 s{S_T2}, s{S_V}, 12")
    P(f"s_add_u32 s{S_T0}, s{S_T0}, s{S_T2}")
    P(f"v_min_u32 v4, 12, {v(V_LANE)}")
    P(f"v_add_lshl_u32 v245, v4, s{S_T0}, 7")
    if "wdlate" not in OPT:
        P(f"global_load_dword v253, v245, s[56:57]")
P(f"v_cmp_gt_u32 vcc, 32, {v(V_LANE)}")
P(f"v_mul_u32_u24 v4, 37, {v(V_LANE)}")
P(f"v_lshrrev_b32 v4, 9, v4")
P(f"v_cndmask_b32 {v(V_S3)}, v5, {v(V_L16)}, vcc")
P(f"v_mul_u32_u24 v4, {TAB_W-14*272}, v4")
P(f"v_mul_u32_u24 v6, 272, {v(V_LANE)}")
P(f"s_lshl_b32 s{S_T0}, s{S_V}, 2")
P(f"v_add3_u32 {v(V_GW)}, v4, v6, s{S_T0}")
P(f"v_add_u32 {v(V_GX)}, s{S_T0}, {v(V_GW)}")
P(f"s_lshl_b32 s{S_UXM}, s{S_V}, 12")
P(f"s_add_u32 s{S_UXM}, s{S_UXM}, {L_UX+2048}")
P(f"v_and_b32 v4, 48, {v(V_LANE)}")
P(f"v_add3_u32 {v(V_GR)}, v4, {v(V_L16)}, s{S_TAB}")
P(f"v_and_b32 v4, 31, {v(V_LANE)}")
P(f"v_lshrrev_b32 v6, 5, {v(V_LANE)}")
P(f"v_lshl_add_u32 v6, v6, 4, s{S_TAB}")
P(f"v_and_b32 v7, 28, {v(V_LANE)}")
P(f"v_lshl_add_u32 v7, v4, 5, v7")
P(f"v_add_u32 {v(V_TW)}, v6, v7")
P(f"v_mul_u32_u24 v7, {TAB_ROW}, v4")
P(f"v_add_u32 {v(V_TB)}, v6, v7")
P(f"v_min_u32 v4, 20, v4")
P(f"v_mul_u32_u24 v7, {TAB_ROW}, v4")
P(f"v_add_u32 {v(V_TA)}, v6, v7")
P(f"s_lshl2_add_u32 s{S_CI}, s{S_W}, s{S_V}")
P(f"s_lshl_b32 s{S_CI}, s{S_CI}, 8")
P(f"s_add_u32 s{S_CI}, s{S_CI}, {WS_C}")
P(f"v_lshlrev_b32 {v(V_P1)}, 25, {v(V_LANE)}")
P(f"s_mul_i32 s{S_UXO}, s{S_W}, 14336")
P(f"s_mul_i32 s{S_T0}, s{S_V}, 3584")
P(f"s_add_u32 s{S_UXO}, s{S_UXO}, s{S_T0}")
P(f"s_add_u32 s{S_UXO}, s{S_UXO}, {WS_UX}")
P(f"s_lshl_b32 s{S_T0}, s{S_V}, 8")
P(f"s_add_u32 s{S_T0}, s{S_T0}, s{S_W}")
P(f"s_mul_i32 s{S_T0}, s{S_T0}, {FS}")
P(f"s_add_u32 s{S_F1}, s{S_T0}, {WS_F1}")
P(f"v_lshrrev_b32 v4, 2, {v(V_LANE)}")
P(f"v_mul_u32_u24 v4, 3584, v4")
P(f"v_and_b32 v6, 3, {v(V_LANE)}")
P(f"v_lshl_add_u32 v4, v6, 4, v4")
P(f"s_lshl_b32 s{S_T0}, s{S_FB}, 8")
P(f"s_lshl_b32 s{S_T1}, s{S_V}, 6")
P(f"s_add_u32 s{S_T0}, s{S_T0}, s{S_T1}")
P(f"v_add_u32 {v(V_W)}, s{S_T0}, v4")
for k in range(1, 4):
    P(f"v_add_u32 {v(V_W+k)}, {k*(57344-1024)}, {v(V_W)}")
P(f"v_and_b32 v4, 32, {v(V_LANE)}")
P(f"v_lshlrev_b32 v4, 4, v4")
P(f"v_and_b32 v7, 12, {v(V_LANE)}")
P(f"v_lshl_add_u32 v4, v7, 4, v4")
P(f"v_and_b32 v7, 16, {v(V_LANE)}")
P(f"v_lshl_add_u32 v4, v7, 1, v4")
P(f"v_lshl_add_u32 v4, v6, 3, v4")
P(f"v_add_u32 {v(V_TRA)}, s{S_RING}, v4")
P(f"s_mov_b32 s{S_K0}, {L_KC+4096-L_UX}")
P(f"s_movk_i32 s{S_T2}, 128")
P(f"s_bfe_u32 s{S_T0}, s{S_W}, 0x20001")
P(f"s_lshl_b32 s{S_T0}, s{S_T0}, 10")
P(f"s_lshr_b32 s{S_F2}, s{S_T0}, 2")
P(f"s_bfe_u32 s{S_REP}, s{S_W}, 0x30003")
P(f"s_mul_i32 s{S_REP}, s{S_REP}, {FREP}")
P(f"s_add_u32 s{S_REP}, s{S_REP}, {WS_F1}")
P(f"s_add_u32 s{S_T0}, s{S_T0}, s{S_REP}")
P(f"v_lshl_add_u32 {v(V_F1)}, v0, 2, s{S_T0}")
P(f"v_lshrrev_b32 v4, 2, {v(V_LANE)}")
P(f"v_add_u32 v4, s{S_T1}, v4")
P(f"v_mul_u32_u24 v7, 14336, v4")
P(f"v_lshrrev_b32 v4, 4, {v(V_LANE)}")
P(f"v_xor_b32 v6, v6, v4")
P(f"v_lshl_add_u32 v7, v6, 4, v7")
P(f"s_lshl_b32 s{S_T0}, s{S_PR}, 6")
P(f"s_add_u32 s{S_T0}, s{S_T0}, {WS_UX}")
P(f"v_add_u32 {v(V_UXL)}, s{S_T0}, v7")
P(f"v_bfe_u32 v6, {v(V_LANE)}, 1, 2")
P(f"v_mul_u32_u24 v6, {CS}, v6")
P(f"v_and_b32 v7, 16, {v(V_L16)}")
P(f"v_add3_u32 v6, v6, v7, s{S_K0}")
P(f"v_lshlrev_b32 v7, 4, v0")
P(f"v_cmp_gt_u32 vcc, s{S_T2}, v0")
P(f"v_mov_b32 v56, 0")
P(f"v_mov_b32 v57, 0")
P(f"v_cndmask_b32 v6, v6, v7, vcc")
P(f"v_mov_b32 v58, 0")
P(f"v_mov_b32 v59, 0")
P(f"v_add_u32 v6, {L_UX}, v6")
P(f"ds_write_b128 v6, v[56:59]")
P(f"v_lshlrev_b32 v4, 3, v0")
P(f"v_sub_u32 v4, 2047, v4")
P(f"v_cvt_f32_i32 v4, v4")
P(f"v_mov_b32 v60, 1028")
P(f"v_cmp_eq_u32 vcc, 0, v0")
for e in range(0, 10, 2):
    P(f"v_add_f32 v6, {f32(-float(e))}, v4")
    if e < 8:
        P(f"v_add_f32 v7, {f32(-float(e+1))}, v4")
    P(f"v_cvt_pk_bf16_f32 v6, v6, v7")
    for h in range(2):
        if e + h > 8:
            continue
        d = GA + e + h
        if h == 0:
            P(f"v_lshlrev_b32 v7, 16, v6")
        else:
            P(f"v_and_b32 v7, 0xffff0000, v6")
        P(f"v_cvt_u32_f32 v7, v7")
        if e + h < 4:
            P(f"v_cndmask_b32 v7, v7, v60, vcc")
        P(f"v_lshrrev_b32 {v(d)}, 5, v7")
        P(f"v_add_lshl_u32 {v(d)}, {v(d)}, v7, 2")
P(f"v_mov_b32 v4, 255")
P(f"v_cmp_eq_u32 s[{S_M255}:{S_M255+1}], v4, v0")
P(f"v_and_b32 v4, 15, {v(V_LANE)}")
P(f"v_lshrrev_b32 v5, 4, {v(V_LANE)}")
P(f"v_lshl_add_u32 v6, v5, 3, v4")
P(f"v_sub_u32 v6, 39, v6")
P(f"v_and_b32 v7, 1, v6")
P(f"v_mul_u32_u24 v7, {CS-2}, v7")
P(f"v_lshl_add_u32 v6, v6, 1, v7")
P(f"s_lshr_b32 s{S_T0}, s{S_V}, 1")
P(f"s_andn2_b32 s{S_T3}, 1, s{S_V}")
P(f"s_mul_i32 s{S_T2}, s{S_T0}, {2*CS}")
P(f"s_lshl_b32 s{S_T1}, s{S_T3}, 8")
P(f"s_add_u32 s{S_T2}, s{S_T2}, s{S_T1}")
P(f"s_add_u32 s{S_T2}, s{S_T2}, {L_KC}")
P(f"v_add_u32 {v(V_KA+3)}, s{S_T2}, v6")
for k in range(3):
    P(f"v_add_u32 {v(V_KA+k)}, {64*(48-16*k)}, {v(V_KA+3)}")
P(f"v_lshlrev_b32 v6, 1, v4")
P(f"v_sub_u32 v6, v6, v5")
P(f"s_lshl4_add_u32 s{S_T1}, s{S_T3}, 17")
P(f"v_add_u32 v6, s{S_T1}, v6")
P(f"s_mov_b32 s{S_T2}, {L_UX}")
for rr in range(4):
    P(f"v_bfe_u32 v7, v6, 2, 2")
    P(f"v_xor_b32 v7, s{S_T0}, v7")
    P(f"v_lshl_add_u32 v7, v6, 2, v7")
    P(f"v_lshl_add_u32 {v(V_UA+rr)}, v7, 4, s{S_T2}")
    if rr < 3:
        P(f"v_subrev_u32 v6, 4, v6")
P(f"v_lshrrev_b32 v6, 1, v5")
P(f"v_lshl_add_u32 v6, v4, 1, v6")
P(f"s_lshl_b32 s{S_T2}, s{S_V}, 11")
P(f"s_add_u32 s{S_T2}, s{S_T2}, {L_UX+2048}")
P(f"v_lshl_add_u32 v6, v6, 6, s{S_T2}")
P(f"v_bfe_u32 v4, v4, 1, 2")
P(f"v_and_b32 v5, 1, v5")
P(f"v_lshl_add_u32 v7, v4, 4, v6")
P(f"v_lshl_add_u32 {v(V_EU)}, v5, 3, v7")
P(f"v_xor_b32 {v(V_EU1)}, 16, {v(V_EU)}")
P(f"v_or_b32 v5, 2, v5")
P(f"v_xor_b32 v4, v4, v5")
P(f"v_lshl_add_u32 {v(V_EXP)}, v4, 4, v6")
P(f"s_mul_i32 s{S_ACTW}, s{S_V}, 14336")
P(f"v_add_u32 {v(V_EXR)}, s{S_ACTW}, {v(V_L16)}")
P(f"v_lshlrev_b32 {v(V_EXW)}, 4, v0")
P(f"s_mul_i32 s{S_PST}, s{S_PR}, {PROW}")
P(f"s_add_u32 s{S_PST}, s{S_PST}, {WS_P}")
lanes_reg(P, V_FL2, 4, 10)
lanes_reg(P, V_PM, 2, 12)
P(f"s_lshl1_add_u32 s{S_T0}, s{S_V}, s{S_FH}")
P(f"s_lshl_b32 s{S_T0}, s{S_T0}, 12")
P(f"s_add_u32 s{S_F2}, s{S_F2}, s{S_T0}")
P(f"s_add_u32 s{S_F2}, s{S_F2}, {WS_C}")
P(f"s_lshr_b32 s{S_T0}, s{S_TB}, 2")
P(f"s_bfe_u32 s{S_REP}, s{S_W}, 0x20003")
P(f"s_lshl3_add_u32 s{S_T0}, s{S_T0}, s{S_REP}")
P(f"s_lshl2_add_u32 s{S_T0}, s{S_T0}, s{S_V}")
P(f"s_lshl_b32 s{S_T0}, s{S_T0}, 8")
P(f"s_add_u32 s{S_PA}, s{S_T0}, {WS_C}")
P(f"s_lshl2_add_u32 s{S_T2}, s{S_DB}, s{S_V}")
P(f"s_lshl2_add_u32 s{S_T3}, s{S_T2}, s{S_REP}")
P(f"s_lshl_b32 s{S_T3}, s{S_T3}, 8")
P(f"s_add_u32 s{S_P4}, s{S_T3}, {WS_C + 896*256}")
P(f"s_mul_i32 s{S_T2}, s{S_T2}, {14*4096}")
P(f"s_add_u32 s{S_WFB}, s{S_T2}, {WS_WF}")
P(f"s_mul_i32 s{S_T1}, s{S_V}, {56*PROW}")
P(f"s_lshl_b32 s{S_T0}, s{S_TB}, 8")
P(f"s_add_u32 s{S_T0}, s{S_T0}, s{S_T1}")
P(f"s_add_u32 s{S_AB}, s{S_T0}, {WS_P}")

XF = 56
DF = 72
SA = 88
if "fine" in OPT: stamp("setup done")
P(f"s_mov_b32 s{S_K0}, {f32(1.0/448)}")
P(f"v_mov_b32 v4, {f32(1e-5)}")
P("s_mov_b32 exec_hi, 0x00ffffff")
for r in range(2):
    for i in range(4):
        P(f"v_lshlrev_b32 {v(XF+8*r+2*i)}, 16, {v(XR+4*r+i)}")
        P(f"v_and_b32 {v(XF+8*r+2*i+1)}, 0xffff0000, {v(XR+4*r+i)}")
    P(f"v_readfirstlane_b32 s{(S_A, S_B)[r]}, {v(XF+8*r)}")
stamp("x arrived")
if "wdlate" in OPT and not NOPF:
    P(f"global_load_dword v253, v245, s[56:57]")
for i in range(4):
    P(f"ds_write2_b32 {v(V_GX)}, {v(XR+i)}, {v(XR+4+i)} offset0:{16*i+8} offset1:{16*i+9}")
for r, sm in ((0, S_A), (1, S_B)):
    for i in range(4):
        P(f"v_pk_add_f32 {v(XF+8*r+2*i,2)}, {v(XF+8*r+2*i,2)}, s[{sm}:{sm+1}] op_sel_hi:[1,0] neg_lo:[0,1] neg_hi:[0,1]")
for r in range(2):
    b = XF + 8 * r
    t = DF + 8 * r
    P(f"v_pk_add_f32 {v(t,2)}, {v(b,2)}, {v(b+2,2)}")
    P(f"v_pk_mul_f32 {v(t+2,2)}, {v(b,2)}, {v(b,2)}")
    P(f"v_pk_add_f32 {v(t,2)}, {v(t,2)}, {v(b+4,2)}")
    for i in range(1, 4):
        P(f"v_pk_fma_f32 {v(t+2,2)}, {v(b+2*i,2)}, {v(b+2*i,2)}, {v(t+2,2)}")
    P(f"v_pk_add_f32 {v(t,2)}, {v(t,2)}, {v(b+6,2)}")
for r in range(2):
    t = DF + 8 * r
    P(f"v_add_f32 {v(SA+r)}, {v(t)}, {v(t+1)}")
    P(f"v_add_f32 {v(SA+2+r)}, {v(t+2)}, {v(t+3)}")


def wave_sum(p, regs):
    for mod in ("row_shr:1", "row_shr:2", "row_shr:4", "row_shr:8"):
        for r in regs:
            p(f"v_add_f32_dpp {v(r)}, {v(r)}, {v(r)} {mod} row_mask:0xf bank_mask:0xf bound_ctrl:0")
    for r in regs:
        p(f"v_add_f32_dpp {v(r)}, {v(r)}, {v(r)} row_bcast:15 row_mask:0xa bank_mask:0xf")
    for r in regs:
        p(f"v_add_f32_dpp {v(r)}, {v(r)}, {v(r)} row_bcast:31 row_mask:0xc bank_mask:0xf")


wave_sum(P, [SA, SA + 2, SA + 1, SA + 3])
P(f"v_pk_mul_f32 {v(SA,2)}, {v(SA,2)}, s[{S_K0}:{S_K0+1}] op_sel_hi:[1,0]")
P(f"v_pk_fma_f32 {v(SA+2,2)}, {v(SA+2,2)}, s[{S_K0}:{S_K0+1}], v[4:5] op_sel_hi:[1,0,0]")
P(f"v_pk_fma_f32 {v(SA+2,2)}, {v(SA,2)}, {v(SA,2)}, {v(SA+2,2)} neg_lo:[1,0,0] neg_hi:[1,0,0]")
for r in range(2):
    P(f"v_max_f32 {v(SA+2+r)}, {v(SA+2+r)}, v4")
for r in range(2):
    P(f"v_rsq_f32 {v(SA+2+r)}, {v(SA+2+r)}")
P(f"v_pk_mul_f32 {v(SA,2)}, {v(SA,2)}, {v(SA+2,2)} neg_lo:[1,0] neg_hi:[1,0]")
for r, sm in ((0, S_A), (1, S_B)):
    P(f"v_readlane_b32 s{sm}, {v(SA+2+r)}, 55")
for r, sm in ((0, S_A), (1, S_B)):
    P(f"v_readlane_b32 s{sm+1}, {v(SA+r)}, 55")
for r, sm in ((0, S_A), (1, S_B)):
    for i in range(4):
        P(f"v_pk_fma_f32 {v(XF+8*r+2*i,2)}, {v(XF+8*r+2*i,2)}, s[{sm}:{sm+1}], s[{sm}:{sm+1}] op_sel:[0,0,1] op_sel_hi:[1,0,1]")
for j in range(8):
    P(f"v_cvt_pk_bf16_f32 {v(DF+j)}, {v(XF+j)}, {v(XF+8+j)}")
for i in range(4):
    P(f"ds_write2_b32 {v(V_GW)}, {v(DF+2*i)}, {v(DF+2*i+1)} offset0:{16*i} offset1:{16*i+4}")
P("s_mov_b64 exec, -1")
if "fine" in OPT: stamp("ln1 math")
P("s_waitcnt lgkmcnt(0)")
P("s_barrier")
if "fine" in OPT: stamp("ln1 barrier")
UB = 112
for j in range(4):
    P(f"ds_read_b128 {v(UB+4*j,4)}, {v(V_GR)} offset:{1088*j}")
P(f"s_lshl_b32 s{S_T0}, s{S_V}, 3")
P(f"s_and_b32 s{S_T0}, s{S_T0}, 16")
P(f"s_mov_b32 m0, s{S_TAB}")
P("s_waitcnt lgkmcnt(0)")
for j in range(4):
    P(f"buffer_store_dwordx4 {v(UB+4*j,4)}, {v(V_L16 if j < 3 else V_S3)}, {srd(SRD_WS)}, s{S_UXO} offen offset:{1024*j} sc1", tok="ux")
P(f"s_cmp_lt_u32 s{S_W}, 224")
P("s_cbranch_scc1 L_main")


def nonce_init():
    q = sub()
    q(f"v_readfirstlane_b32 s{S_NONCE}, {v(V_NONCE)}")
    q(f"s_mul_i32 s{S_NONCE}, s{S_NONCE}, 1664525")
    q(f"s_add_u32 s{S_NONCE}, s{S_NONCE}, 1013904223")
    q(f"v_mov_b32 {v(V_NONCE)}, s{S_NONCE}")
    q(f"buffer_store_dword {v(V_NONCE)}, {v(V_P1)}, {srd(SRD_WS)}, s{S_CI} offen sc1", tok="ux")
    q(f"s_add_u32 s{S_E28}, s{S_NONCE}, 28")
    q(f"s_add_u32 s{S_E14}, s{S_NONCE}, 14")
    return q.ins


P.raw(f"s_waitcnt vmcnt({4 if NOPF else 6})")
for x in nonce_init():
    P.raw(x.text)
P.raw("s_waitcnt vmcnt(0)")
P.raw(f"buffer_atomic_swap {v(V_NONCE)}, {v(V_FLG)}, {srd(SRD_WS)}, s{S_F1} offen")
P.raw("s_branch L_spare")
P("L_main:")
stamp("ln1 done")


def wfrag(m, ks):
    return 8 * ks + 4 * m


def slotoff(slot):
    return (slot % 8) * 1024 + (slot // 8) * 32768


def w_dma(kq, m, slot, tok):
    q = sub()
    q(f"s_add_u32 m0, s{S_RING}, {slotoff(slot)}")
    if m == 0:
        q(f"s_mov_b32 s{S_WOFF}, {kq*4*57344}")
    for k in range(4):
        o = f" offset:{1024*k}" if k else ""
        q(f"buffer_load_dwordx4 {v(V_W+k)}, {srd(SRD_WU if m else SRD_WG)}, s{S_WOFF} offen{o} lds", tok=tok)
    return q.ins


def w_tr(kq, m, slot, tok=None):
    q = sub()
    for k in range(4):
        for h in range(2):
            q(f"ds_read_b64_tr_b16 {acc(wfrag(m,4*kq+k)+2*h,2)}, {v(V_TRA)} offset:{slotoff(slot+k)+256*h}", tok=tok)
    return q.ins


def batch_dma(b, tok):
    return [w_dma(2 * b + i // 2, i % 2, 4 * i, f"{tok}_{i}") for i in range(4)]


def batch_tr(b):
    o = []
    for i in range(4):
        o += w_tr(2 * b + i // 2, i % 2, 4 * i, tok=f"t{b}_{i}")
    return o


def singles(groups):
    out, cur = [], []
    for grp in groups:
        for i in grp:
            cur.append(i)
            if i.cls == "vmem":
                out.append(cur)
                cur = []
    if cur:
        out[-1] += cur
    return out


def pin_vm(g, start, groups, stride):
    k = start
    for u in singles(groups):
        g.at(int(k), u)
        k += stride
    return int(k)


def w_dma1(b, n, tok):
    i, k = n // 4, n % 4
    q = sub()
    q(f"s_add_u32 m0, s{S_RING}, {slotoff(4*i)}")
    if n % 8 == 0:
        q(f"s_mov_b32 s{S_WOFF}, {(2*b+i//2)*4*57344}")
    o = f" offset:{1024*k}" if k else ""
    q(f"buffer_load_dwordx4 {v(V_W+k)}, {srd(SRD_WU if i % 2 else SRD_WG)}, s{S_WOFF} offen{o} lds", tok=f"{tok}_{i}")
    q(f"s_mov_b32 m0, s{S_TAB}")
    return q.ins


KD = 176
FR = 192
FR = 112


def kgen_head(rd):
    q = sub()
    A0 = 48 + 0
    CC = 50
    unp = (lambda d, s: q(f"v_lshlrev_b32 {v(d)}, 16, {v(s)}")) if rd == 0 else (lambda d, s: q(f"v_and_b32 {v(d)}, 0xffff0000, {v(s)}"))
    for i in range(4):
        unp(48 + i, PR + i)
    q(f"v_mul_f32 v48, {f32(LOG2E)}, v48")
    q(f"v_exp_f32 v48, v48")
    q(f"v_mul_f32 v49, v49, {v(V_DT)}")
    q(f"v_cvt_pk_bf16_f32 v48, v48, v48")
    q(f"v_mul_f32 v49, 0.15915494, v49")
    q(f"v_and_b32 v48, 0xffff0000, v48")
    q(f"v_mul_f32 v50, v50, {v(V_DT)}")
    q(f"v_mul_f32 v48, v48, {v(V_DT)}")
    q(f"v_mul_f32 v51, v51, {v(V_DT)}")
    q(f"v_mul_f32 v48, {f32(-LOG2E)}, v48")
    q(f"v_add_f32 v50, v50, v50")
    q(f"v_add_f32 v51, v51, v51")
    for (z, pos) in ((52, 1), (54, 16), (56, 256)):
        if pos == 1:
            q(f"v_exp_f32 v4, v48")
            q(f"v_fract_f32 v5, v49")
        else:
            q(f"v_mul_f32 v4, {f32(float(pos))}, v48")
            q(f"v_mul_f32 v5, {f32(float(pos))}, v49")
            q(f"v_exp_f32 v4, v4")
            q(f"v_fract_f32 v5, v5")
        q(f"v_cos_f32 {v(z)}, v5")
        q(f"v_sin_f32 {v(z+1)}, v5")
        q(f"v_mul_f32 {v(z)}, {v(z)}, v4")
        q(f"v_mul_f32 {v(z+1)}, {v(z+1)}, v4")
    return q.ins


def kgen_body(rd):
    names = {"G0": 50, "E1": 52, "E16": 54, "E256": 56}
    nxt = [58]
    chunks = []
    cur = sub()
    wr = sub()
    pk = [0]
    PK = 192

    def new(n):
        names[n] = nxt[0]
        nxt[0] += 2
        assert nxt[0] <= 104
        return names[n]

    def out(kind, row, z):
        t = PK + pk[0] % 16
        pk[0] += 1
        if kind == "B":
            cur(f"v_cvt_pk_bf16_f32 {v(t)}, {v(z)}, {v(z+1)}")
            wr(f"ds_write_addtid_b32 {v(t)} offset:{row*TAB_ROW}")
        else:
            cur(f"v_cvt_pk_bf16_f32 {v(t)}, {v(z)}, -{v(z+1)}")
            wr(f"ds_write_addtid_b32 {v(t)} offset:{(32+row)*TAB_ROW}")
        if len(wr.ins) >= GROUP:
            flush()

    def flush():
        nonlocal cur, wr
        chunks.append(cur.ins + wr.ins)
        cur = sub()
        wr = sub()

    sc = [0]

    def mul(n, a, b, kind=None, row=None):
        if n is None:
            z = 104 + 2 * (sc[0] % 4)
            sc[0] += 1
        else:
            z = new(n)
        cmul(cur, z, names[a], names[b])
        if kind:
            out(kind, row, z)

    GROUP = int(OPT.get("kgroup", 6))
    t = PK + pk[0]
    pk[0] += 1
    cur(f"v_mov_b32 {v(t)}, 0x3f80")
    wr(f"ds_write_addtid_b32 {v(t)}")
    out("A", 0, names["G0"])
    out("B", 2, names["E16"])
    mul("E2", "E1", "E1")
    mul("E32", "E16", "E16", "B", 4)
    mul("G1", "G0", "E256", "A", 8)
    mul("E512", "E256", "E256")
    mul("a1", "G0", "E1", "A", 1)
    mul("E4", "E2", "E2")
    mul("E64", "E32", "E32", "B", 8)
    mul("E48", "E32", "E16", "B", 6)
    mul("G2", "G0", "E512", "A", 10)
    mul("G3", "G1", "E512", "A", 11)
    mul("E1024", "E512", "E512")
    mul("E8", "E4", "E4", "B", 1)
    mul("a2", "G0", "E2", "A", 2)
    mul("a3", "a1", "E2", "A", 3)
    mul("b2", "G1", "E2", "A", 9)
    mul("E128", "E64", "E64", "B", 16)
    mul("G4", "G0", "E1024", "A", 16)
    mul("E24", "E16", "E8", "B", 3)
    mul("E40", "E32", "E8", "B", 5)
    mul("E56", "E48", "E8", "B", 7)
    mul("E192", "E128", "E64", "B", 24)
    for row, a in ((4, "G0"), (5, "a1"), (6, "a2"), (7, "a3"), (12, "G1"), (13, "b2"), (14, "G2"), (15, "G3")):
        mul(None, a, "E4", "A", row)
    for row, a in ((17, "G1"), (18, "G2"), (19, "G3"), (20, "G4")):
        mul(None, a, "E1024", "A", row)
    for b2, nb in ((1, "E64"), (2, "E128"), (3, "E192")):
        for b1 in range(1, 8):
            mul(None, f"E{8*b1}", nb, "B", 8 * b2 + b1)
    if wr.ins or cur.ins:
        flush()
    return chunks


def kgen_reads():
    q = sub()
    for s in range(8):
        q(f"ds_read_b128 {v(FR+8*s,4)}, {v(V_TA)} offset:{32*TAB_ROW+32*s}")
        q(f"ds_read_b128 {v(FR+8*s+4,4)}, {v(V_TB)} offset:{32*s}")
    return q.ins


def kgen_mfma(rd):
    q = sub()
    for s in range(8):
        c = "0" if (rd == 0 and s == 0) else v(KD, 16)
        q(f"v_mfma_f32_32x32x16_bf16 {v(KD,16)}, {v(FR+8*s,4)}, {v(FR+8*s+4,4)}, {c}")
    return q.ins


P(f"v_lshrrev_b32 v4, s{S_T0}, {v(V_DT)}")
P(f"v_lshlrev_b32 v4, 16, v4")
P(f"v_mul_f32 v4, {f32(LOG2E)}, v4")
P(f"v_exp_f32 v4, v4")
P(f"v_readfirstlane_b32 s{S_DSK}, {v(V_DSK)}")
round_bf16(P, V_DT, 4)
P.add(kgen_head(0))
P.add(nonce_init())
ch = kgen_body(0)
fl = sub()
fl.wait("ux")
setflag(fl, S_F1)
nd = 0
FLAGAT = int(OPT.get("flagat", 6))
DMA0 = int(OPT.get("dma0", 3))
for i, c in enumerate(ch):
    P.add(c)
    if i == FLAGAT:
        if "fine" in OPT: stamp("pre flag1")
        P.add(fl.ins)
        if "fine" in OPT: stamp("post flag1")
    elif i >= DMA0:
        P.add(w_dma1(0, nd, "w1"))
        nd += 1
P.add(kgen_reads())
g = Gaps(kgen_mfma(0), 7)
for k in (0, 2, 4, 6):
    g.at(k, w_dma1(0, nd, "w1"))
    nd += 1
g.fill(kgen_head(1))
P.add(g.out())
stamp("kgen r0")
ch = kgen_body(1)
POLLAT = int(OPT.get("pollat", 3))
for i, c in enumerate(ch):
    P.add(c)
    if i == POLLAT:
        P.add(poll_issue("F1", 6))
    elif nd < 16:
        P.add(w_dma1(0, nd, "w1"))
        nd += 1
assert nd == 16
P.add(kgen_reads())
if "fine" in OPT: stamp("pre poll1")
P.add(poll_check("F1", 6))
if "fine" in OPT: stamp("post poll1")
g = Gaps(kgen_mfma(1), 6)
P(f"s_mov_b32 m0, s{S_UXM}")
for j in range(4):
    q = sub()
    q(f"s_mov_b32 s{S_T0}, {j*(16*14336-1024)}")
    o = f" offset:{1024*j}" if j else ""
    q(f"buffer_load_dwordx4 {v(V_UXL)}, {srd(SRD_WS)}, s{S_T0} offen{o} sc1 lds", tok="uxl")
    if j == 0:
        P.add(q.ins)
    else:
        g.at(2 * j - 2, q.ins)
tr1 = batch_tr(0)
P.wait("w1_2")
for k in range(8):
    g.at(k, tr1[3 * k:3 * k + 3])
P.add(g.out())
stamp("kgen r1")
b2 = batch_dma(1, "w2")
b2[0] = waitq("t0_0") + b2[0]
b2[3] = waitq("t0_3") + b2[3]
b2 = singles(b2)
P.add(b2.pop(0))
P(f"s_lshl_b32 s{S_C}, s{S_DSK}, 16")
P(f"s_and_b32 s{S_D}, s{S_DSK}, 0xffff0000")
P(f"v_add_u32 v7, {2*CS}, {v(V_EXW)}")
P(f"v_mov_b32 {v(V_NONCE)}, 1")
toff = {0: (0, 0), 1: (0, 1), 2: (0, 2), 3: (0, 3), 4: (1, 0), 5: (1, 2), 6: (2, 0), 7: (3, 0), 8: (4, 0), 9: (5, 0), 10: (6, 0), 11: (7, 0)}
P(f"ds_write2_b32 {v(V_TW)}, {v(KD)}, {v(KD+1)} offset0:0 offset1:1")
P(f"ds_write2_b32 {v(V_TW)}, {v(KD+2)}, {v(KD+3)} offset0:2 offset1:3")
for j in range(4, 12):
    qq, r = toff[j]
    P(f"ds_write_b32 {v(V_TW)}, {v(KD+j)} offset:{4*(r + 264*qq)}")
P.add(b2.pop(0))
P("s_waitcnt lgkmcnt(0)")
P("s_barrier")
if "fine" in OPT: stamp("T barrier")
EG = 208
for c2 in range(2):
    for e in range(9):
        P(f"ds_read2st64_b32 {v(EG+18*c2+2*e,2)}, {v(GA+e)} offset0:{114*c2} offset1:{114*c2+57}", tok=f"g{c2}")
P.add(b2.pop(0))
P.add(b2.pop(0))
KO = 192
VB = 48


def bfrag(rr, e):
    return VB + 32 * rr + 4 * e


def b_loads(lo, hi):
    z = sub()
    for rr in range(4):
        for a in range(lo, hi):
            z(f"ds_read_b128 {v(bfrag(rr,a),4)}, {v(V_UA+rr)} offset:{2048*a}")
    return z.ins


for c2 in range(2):
    b = EG + 18 * c2
    P.wait(f"g{c2}")
    for e in range(9):
        P(f"v_add_f32 {v(b+2*e)}, {v(b+2*e)}, {v(b+2*e+1)}")
    P(f"v_cndmask_b32 {v(b+16)}, {v(b+16)}, 0, s[{S_M255}:{S_M255+1}]")
    for s_ in range(2):
        o = KO + 8 * c2 + 4 * s_
        for i in range(4):
            P(f"v_cvt_pk_bf16_f32 {v(o+i)}, {v(b+2*(s_+2*i))}, {v(b+2*(s_+2*i+1))}")
    for s_ in range(2):
        P(f"ds_write_b128 {v(7 if c2 else V_EXW)}, {v(KO+8*c2+4*s_,4)} offset:{L_KC+s_*CS}", tok="kc")
    P.add(b2.pop(0))
if "dumpk" in OPT:
    P(f"s_lshl_b32 s{S_T0}, s{S_W}, 13")
    P(f"s_add_u32 s{S_T0}, s{S_T0}, {WS_DBG}")
    P(f"buffer_store_dwordx4 {v(KO,4)}, {v(V_EXW)}, {srd(SRD_WS)}, s{S_T0} offen")
    P(f"s_add_u32 s{S_T0}, s{S_T0}, 4096")
    P(f"buffer_store_dwordx4 {v(KO+8,4)}, {v(V_EXW)}, {srd(SRD_WS)}, s{S_T0} offen")
stamp("expanded")
P.wait("uxl")
P.wait("kc")
P("s_barrier")
stamp("conv start")

CA = [176, 192]
ET = 208


def afrag(rr, a):
    return 128 + 32 * rr + 4 * a


def a_loads(rr, lo, hi):
    z = sub()
    for a in range(lo, hi):
        k = a // 2
        off = 16 * (11 - rr - 8 * (a - 2 * k))
        z(f"ds_read2_b32 {acc(afrag(rr,a),2)}, {v(V_KA+k)} offset0:{off} offset1:{off+1}")
        z(f"ds_read2_b32 {acc(afrag(rr,a)+2,2)}, {v(V_KA+k)} offset0:{off+2} offset1:{off+3}")
    return z.ins


def conv_mfmas(gen):
    m = sub()
    first = set()
    na = 4 if gen == 0 else 8
    order = []
    for rr in range(4):
        pairs = [(a, e) for a in range(na) for e in range(na) if 4 * gen <= a + e < 4 * gen + 4]
        pairs.sort(key=lambda ae: (max(ae), ae))
        order += [(rr, a, e) for a, e in pairs]
    if gen == 1:
        order.sort(key=lambda t: (0 if max(t[1], t[2]) < 4 else 1))
    for rr, a, e in order:
        c = a + e - 4 * gen
        d = CA[gen] + 4 * c
        cc = v(d, 4) if c in first else "0"
        first.add(c)
        m(f"v_mfma_f32_16x16x32_bf16 {v(d,4)}, {acc(afrag(rr,a),4)}, {v(bfrag(rr,e),4)}, {cc}")
    return m.ins


UU, XX, YY, TT, WW, HO = ET, ET + 4, ET + 8, ET + 24, ET + 32, ET + 36


def conv_pre(gen):
    q = sub()
    q(f"ds_read_b64 {v(UU,2)}, {v(V_EU)} offset:{8192*gen}")
    q(f"ds_read_b64 {v(UU+2,2)}, {v(V_EU1)} offset:{8192*gen}")
    q(f"ds_read_b128 {v(XX,4)}, {v(V_EXP)} offset:{8192*gen}")
    r = sub()
    if "exact" not in OPT:
        for j in range(4):
            r(f"v_lshlrev_b32 {v(TT+j)}, 16, {v(XX+j)}")
            r(f"v_and_b32 {v(TT+4+j)}, 0xffff0000, {v(XX+j)}")
        for c2, sm in ((0, S_C), (1, S_D)):
            for i in range(2):
                r(f"v_lshlrev_b32 {v(WW)}, 16, {v(UU+2*c2+i)}")
                r(f"v_and_b32 {v(WW+1)}, 0xffff0000, {v(UU+2*c2+i)}")
                r(f"v_fmac_f32 {v(TT+4*c2+2*i)}, s{sm}, {v(WW)}")
                r(f"v_fmac_f32 {v(TT+4*c2+2*i+1)}, s{sm}, {v(WW+1)}")
        return q.ins, r.ins
    for c2 in range(2):
        for i in range(2):
            r(f"v_lshlrev_b32 {v(TT+4*c2+2*i)}, 16, {v(UU+2*c2+i)}")
            r(f"v_and_b32 {v(TT+4*c2+2*i+1)}, 0xffff0000, {v(UU+2*c2+i)}")
    for c2, sm in ((0, S_C), (1, S_D)):
        for i in range(4):
            r(f"v_mul_f32 {v(TT+4*c2+i)}, s{sm}, {v(TT+4*c2+i)}")
    for j in range(4):
        r(f"v_cvt_pk_bf16_f32 {v(WW+j)}, {v(TT+j)}, {v(TT+4+j)}")
    for j in range(4):
        r(f"v_lshlrev_b32 {v(TT+2*j)}, 16, {v(WW+j)}")
        r(f"v_and_b32 {v(TT+2*j+1)}, 0xffff0000, {v(WW+j)}")
    return q.ins, r.ins


def conv_xchg(gen):
    w_, b_, r_ = sub(), sub(), sub()
    for c in range(4):
        w_(f"ds_write_b128 {v(V_EXW)}, {v(CA[gen]+4*c,4)} offset:{(4096 if gen else 14336)*c}", tok=f"xw{gen}")
    b_.wait(f"xw{gen}")
    b_("s_barrier")
    for w in range(4):
        r_(f"ds_read_b128 {v(YY+4*w,4)}, {v(V_EXR)} offset:{1024*w}", tok=f"xr{gen}")
    return w_.ins, b_.ins, r_.ins


def conv_post(gen):
    q = sub()
    h = HO + 4 * gen
    if "exact" not in OPT:
        for c2 in range(2):
            for i in range(2):
                q(f"v_pk_add_f32 {v(TT+4*c2+2*i,2)}, {v(TT+4*c2+2*i,2)}, {v(YY+8*c2+2*i,2)}")
            for i in range(2):
                q(f"v_pk_add_f32 {v(TT+4*c2+2*i,2)}, {v(TT+4*c2+2*i,2)}, {v(YY+8*c2+4+2*i,2)}")
        for j in range(4):
            q(f"v_cvt_pk_bf16_f32 {v(h+j)}, {v(TT+j)}, {v(TT+4+j)}")
        q(f"buffer_store_dwordx4 {v(h,4)}, {v(V_EXW)}, {srd(SRD_WS)}, s{S_PST} offen sc1", tok=f"h{gen}")
        return q.ins
    for c2 in range(2):
        for i in range(2):
            q(f"v_pk_add_f32 {v(YY+8*c2+2*i,2)}, {v(YY+8*c2+2*i,2)}, {v(YY+8*c2+4+2*i,2)}")
    for j in range(4):
        q(f"v_cvt_pk_bf16_f32 {v(WW+j)}, {v(YY+j)}, {v(YY+8+j)}")
    for j in range(4):
        q(f"v_lshlrev_b32 {v(YY+2*j)}, 16, {v(WW+j)}")
        q(f"v_and_b32 {v(YY+2*j+1)}, 0xffff0000, {v(WW+j)}")
    for j in range(4):
        q(f"v_pk_add_f32 {v(YY+2*j,2)}, {v(YY+2*j,2)}, {v(TT+2*j,2)}")
    for j in range(4):
        q(f"v_cvt_pk_bf16_f32 {v(WW+j)}, {v(YY+2*j)}, {v(YY+2*j+1)}")
    for j in range(4):
        q(f"v_lshlrev_b32 {v(YY+8+2*j)}, 16, {v(XX+j)}")
        q(f"v_and_b32 {v(YY+8+2*j+1)}, 0xffff0000, {v(XX+j)}")
    for j in range(4):
        q(f"v_lshlrev_b32 {v(YY+2*j)}, 16, {v(WW+j)}")
        q(f"v_and_b32 {v(YY+2*j+1)}, 0xffff0000, {v(WW+j)}")
    for j in range(4):
        q(f"v_pk_add_f32 {v(YY+2*j,2)}, {v(YY+2*j,2)}, {v(YY+8+2*j,2)}")
    h = HO + 4 * gen
    for j in range(4):
        q(f"v_cvt_pk_bf16_f32 {v(h+j)}, {v(YY+2*j)}, {v(YY+2*j+1)}")
    q(f"buffer_store_dwordx4 {v(h,4)}, {v(V_EXW)}, {srd(SRD_WS)}, s{S_PST} offen sc1", tok=f"h{gen}")
    return q.ins


V_A = 17
ad1 = sub()
ad1(f"v_lshrrev_b32 v5, 4, {v(V_LANE)}")
ad1(f"v_mul_u32_u24 v4, {PROW-256}, v5")
ad1(f"v_add3_u32 {v(V_A)}, v4, {v(V_L16)}, s{S_AB}")
for k in range(1, 4):
    ad1(f"v_add_u32 {v(V_A+k)}, {k*(4*PROW-1024)}, {v(V_A)}")


def act_dma(gen):
    o = []
    for kk in range(4):
        q = sub()
        q(f"s_add_u32 m0, s{S_ACTW}, {L_ACT[gen] + kk*4096}")
        q(f"s_mov_b32 s{S_WOFF}, {kk*16*PROW + PGEN*gen}")
        for k in range(4 if kk < 3 else 2):
            of = f" offset:{1024*k}" if k else ""
            q(f"buffer_load_dwordx4 {v(V_A+k)}, {srd(SRD_WS)}, s{S_WOFF} offen{of} sc1 lds", tok=f"act{gen}")
        o.append(q.ins)
    return o


V_BR, V_S2, V_HST = 21, 22, 24
V_LF, V_LR = 28, 29
V_RES = 27
V_OST, V_RR, V_RW, V_HL = 45, 41, 42, 44
SEL = 176
CSA = [180, 184]
ad = sub()
ad(f"s_add_u32 s{S_PA}, s{S_PA}, 0x8000")
ad(f"v_and_b32 v4, 31, {v(V_LANE)}")
ad(f"v_lshrrev_b32 v5, 5, {v(V_LANE)}")
ad(f"v_lshlrev_b32 v5, 10, v5")
ad(f"v_lshl_add_u32 {v(V_BR)}, v4, 2, v5")
NAD2 = len(ad.ins)
ad(f"s_lshl_b32 s{S_T0}, s{S_TB}, 10")
ad(f"s_mul_i32 s{S_T1}, s{S_DB}, {S2REP}")
ad(f"s_add_u32 s{S_T0}, s{S_T0}, s{S_T1}")
ad(f"s_add_u32 s{S_T0}, s{S_T0}, {WS_S2}")
ad(f"v_lshl_add_u32 {v(V_S2)}, v4, 3, s{S_T0}")
ad(f"s_mov_b32 s{S_PERM}, 0x03020302")
ad(f"v_lshrrev_b32 v5, 4, {v(V_LANE)}")
ad(f"v_and_b32 v6, 15, {v(V_LANE)}")
ad(f"v_and_b32 v4, 1, v5")
ad(f"v_mul_u32_u24 v4, 57344, v4")
ad(f"v_lshl_add_u32 v4, v6, 4, v4")
ad(f"v_lshrrev_b32 v7, 1, v5")
ad(f"v_lshl_add_u32 v4, v7, 8, v4")
ad(f"s_mul_i32 s{S_T0}, s{S_TB}, {8*57344}")
ad(f"s_lshl_b32 s{S_T1}, s{S_FB}, 2")
ad(f"s_add_u32 s{S_T1}, s{S_T1}, s{S_V}")
ad(f"s_lshl_b32 s{S_T2}, s{S_T1}, 10")
ad(f"s_add_u32 s{S_T0}, s{S_T0}, {WS_H}")
ad(f"s_add_u32 s{S_T2}, s{S_T2}, s{S_T0}")
ad(f"v_add_u32 {v(V_HST)}, s{S_T2}, v4")
ad(f"s_mul_i32 s{S_T2}, s{S_FH}, 57344")
ad(f"s_add_u32 s{S_T0}, s{S_T0}, s{S_T2}")
ad(f"s_add_u32 s{S_T0}, s{S_T0}, s{S_ACTW}")
ad(f"v_add_u32 {v(V_HL)}, s{S_T0}, {v(V_L16)}")
ad(f"s_lshl_b32 s{S_T0}, s{S_TB}, 13")
ad(f"s_add_u32 s{S_T0}, s{S_T0}, {WS_C + 65536}")
ad(f"s_mul_i32 s{S_T1}, s{S_T1}, 37")
ad(f"s_and_b32 s{S_T1}, s{S_T1}, 0x600")
ad(f"s_add_u32 s{S_F3}, s{S_T0}, s{S_T1}")
ad(f"s_lshl1_add_u32 s{S_T1}, s{S_V}, s{S_FH}")
ad(f"s_lshl_b32 s{S_T1}, s{S_T1}, 8")
ad(f"s_add_u32 s{S_P3}, s{S_T0}, s{S_T1}")
for k in range(1, 4):
    ad(f"s_movk_i32 s{S_HR+k}, {4096*k}")
ad(f"s_add_u32 s{S_FW}, s{S_RING}, 32768")
ad(f"s_lshl_b32 s{S_R2}, s{S_V}, 14")
ad(f"v_add_u32 {v(V_LF)}, s{S_FW}, {v(V_L16)}")
ad(f"v_add_u32 {v(V_LR)}, s{S_R2}, {v(V_L16)}")
ad2 = ad
se = sub()
se(f"v_bfe_u32 v4, {v(V_LANE)}, 2, 2")
se(f"v_bfe_u32 v5, {v(V_LANE)}, 4, 1")
se(f"v_mov_b32 v6, 0x3f803f80")
se(f"v_cmp_eq_u32 vcc, v4, v5")
for i in range(4):
    se(f"v_cndmask_b32 {v(SEL+i)}, 0, v6, vcc")


def cs_mfma(ks0, ks1):
    q = sub()
    for ks in range(ks0, ks1):
        for m in range(2):
            c = "0" if ks == 0 else v(CSA[m], 4)
            q(f"v_mfma_f32_16x16x32_bf16 {v(CSA[m],4)}, {v(SEL,4)}, {acc(wfrag(m,ks),4)}, {c}")
    return q.ins


def pin_spread(g, start, ins, per=2):
    for i, x in enumerate(ins):
        g.at(int(start + i // per), [x])
    return int(start + (len(ins) + per - 1) // per)


mA, mB = conv_mfmas(0), conv_mfmas(1)
NOV = int(OPT.get("nov", 20))
bl = b_loads(0, 4)


def ab(rr):
    al = a_loads(rr, 0, 4)
    o = []
    for a in range(4):
        o += [bl[4 * rr + a]] + al[2 * a:2 * a + 2]
    return o


pr, pv = conv_pre(0)
P.add(ab(0) + ab(1)[:3])
P.add(b2.pop(0))
P.add(b2.pop(0))
g = Gaps(mA + mB[:NOV], 2)
l1 = ab(1)[3:] + ab(2) + ab(3) + pr
NL1 = int(OPT.get("nl1", 24))
for i, x in enumerate(l1):
    g.at(i * NL1 // len(l1), [x])
g.fill(pv, start=NL1 + 5, end=50)
xw, xb, xr = conv_xchg(0)
for i in range(4):
    g.at(41 + 2 * i, [xw[i]])
XB = int(OPT.get("xb", 50))
g.at(XB, xb)
g.at(XB + 1, xr)
pin_vm(g, XB + 2, b2[:2], 3)
b2 = b2[2:]
P.add(g.out())
P.add(conv_post(0))
stamp("genA stored")
nb = b_loads(4, 8)
newl = []
for rr in range(4):
    newl += nb[4 * rr:4 * rr + 4] + a_loads(rr, 4, 8)
P.add(newl[:8])
g = Gaps(mB[NOV:] + cs_mfma(0, 10), 2)
NB_ = len(mB) - NOV
pin_spread(g, 0, newl[8:], per=1)
g.at(0, waitq("w1_3"))
pin_spread(g, 0, tr1[24:], per=1)
pin_vm(g, 1, b2, 3.5)
fl = sub()
fl.wait("h0")
addcnt(fl, S_F2, V_FL2)
fl(f"s_add_u32 s{S_F2}, s{S_F2}, 0x8000")
g.at(int(OPT.get("fa", 28)), fl.ins)
tr2 = batch_tr(1)
T2 = [int(x) for x in OPT.get("t2", "12,24,44,60").split(",")]
b3 = batch_dma(2, "w3")
for i in range(4):
    pin_spread(g, T2[i], waitq(f"w2_{i}") + tr2[8 * i:8 * i + 8], per=1)
    b3[i] = waitq(f"t1_{i}") + b3[i]
pin_vm(g, 30, b3[:2], 3)
pin_vm(g, 56, b3[2:3], 3)
pin_vm(g, 71, b3[3:4], 2.5)
pr, pv = conv_pre(1)
pin_spread(g, 41, pr, per=1)
newl[-1].tok = "lastfrag"
bq = sub()
bq.wait("lastfrag")
bq("s_barrier")
g.at(54, bq.ins)
x2 = sub()
x2(f"v_add_u32 {v(V_EXW)}, {L_KC}, {v(V_EXW)}")
x2(f"s_lshl_b32 s{S_T0}, s{S_V}, 12")
x2(f"s_add_u32 s{S_T0}, s{S_T0}, {L_KC}")
x2(f"v_add_u32 {v(V_EXR)}, s{S_T0}, {v(V_L16)}")
x2(f"s_add_u32 s{S_PST}, s{S_PST}, {PGEN - L_KC}")
PA1, PA2, PAC = int(OPT.get("pa1", 60)), int(OPT.get("pa2", 76)), int(OPT.get("pac", 90))
e = g.fill(ad1.ins + se.ins + x2.ins, start=34, end=PAC - 1)
g.fill(pv, start=max(e, 50), end=NB_ + 10)
g.at(PA1, poll_issue(S_PA, 7))
g.at(PA2, poll_issue(S_PA, 23))
g.at(PAC, stq("pre pollA") + poll_check2(S_PA, 7, 23, "3", f"s{S_E28}") + stq("post pollA"))
a0 = singles(act_dma(0))
na = (g.n - 1 - PAC) // 3 + 1
pin_vm(g, PAC, a0[:na], 3)
xw, xb, xr = conv_xchg(1)
for i in range(4):
    g.at(NB_ + 1 + 2 * i, [xw[i]])
g.at(NB_ + 10, xb)
g.at(NB_ + 11, xr)
P.add(g.out())
P.add(conv_post(1))
stamp("genB stored")
g = Gaps(cs_mfma(10, 24), 3)
g.at(1, poll_issue(S_P4, 25))
tr3 = batch_tr(2)
t3 = []
for i in (0, 1, 2, 3):
    t3 += waitq(f"w3_{i}") + tr3[8 * i:8 * i + 8]
pin_spread(g, 0, t3, per=2)
e = pin_vm(g, 0, a0[na:], 2)
fl = sub()
fl.wait("h1")
addcnt(fl, S_F2, V_FL2)
g.fill(ad2.ins[:NAD2], start=18)
w4 = singles([waitq("t2_3") + w_dma(6, 0, 8, "w4"), w_dma(6, 1, 12, "w4")])
pin_vm(g, 21, w4[:3], 2.5)
P.add(g.out())
P.add(fl.ins)
stamp("gap work done")

GACC = [64, 96]
BF = 128
NBF = 8
MB = 160
KC_ = [14, 9]
STT = 60
EPT = 164
HP = 172
WDV = 188
RESR = [46, 48, 50, 52]
A_CS = [224, 228]
GC0 = -2.0 * math.sqrt(2.0 / math.pi) * LOG2E


def st_issue(J, atomic=None):
    q = sub()
    t = STT + 2 * (J & 1)
    atomic = False if atomic is None else atomic
    if atomic:
        q(f"v_mov_b64 {v(t,2)}, 0")
        q(f"buffer_atomic_add_x2 {v(t,2)}, {v(V_S2)}, {srd(SRD_WS)}, 0 offen offset:{256*J} sc0")
    else:
        q(f"buffer_load_dwordx2 {v(t,2)}, {v(V_S2)}, {srd(SRD_WS)}, 0 offen offset:{256*J} sc1")
    return q.ins


def st_check(J):
    q = sub()
    t = STT + 2 * (J & 1)
    slow, done = label("sslow"), label("sdone")
    q(f"v_cmp_ne_u32 vcc, s{S_NONCE}, {v(t+1)}")
    q(f"s_cbranch_vccnz {slow}")
    q(f"{done}:")
    spin(TAIL, slow, done, st_issue(J, True), t + 1, sleep=1)
    return q.ins


def st_final(J):
    q = sub()
    kc = KC_[J & 1]
    t = STT + 2 * (J & 1)
    q(f"v_perm_b32 {v(MB)}, {v(t)}, {v(t)}, s{S_PERM}")
    q(f"v_lshlrev_b32 {v(t+1)}, 16, {v(t)}")
    q(f"v_rcp_f32 {v(t)}, {v(t+1)}")
    q(f"v_mul_f32 {v(kc+2)}, {v(t+1)}, {v(t+1)}")
    q(f"v_mul_f32 {v(kc)}, {f32(GC0)}, {v(t)}")
    q(f"v_mul_f32 {v(kc+1)}, {v(t)}, {v(t)}")
    q(f"v_mul_f32 {v(kc+1)}, {v(kc+1)}, {v(kc)}")
    q(f"v_mul_f32 {v(kc+1)}, {f32(0.044715)}, {v(kc+1)}")
    return q.ins


SP = Prog()
spn = [1]


def sps():
    if STAMPS and "lite" in OPT:
        SP(f"s_memrealtime s[{S_STAMP}:{S_STAMP+1}]")
        SP("s_waitcnt lgkmcnt(0)")
        SP(f"v_writelane_b32 v255, s{S_STAMP}, {spn[0]}")
        spn[0] += 1


SP("L_spare:")
SP("s_waitcnt vmcnt(0)")
SP("s_barrier")
sps()
SP(f"s_and_b32 s{S_T0}, s{S_W}, 6")
SP(f"s_lshl_b32 s{S_T0}, s{S_T0}, 1")
SP(f"s_bfe_u32 s{S_T1}, s{S_W}, 0x20003")
SP(f"s_add_u32 s{S_TB}, s{S_T0}, s{S_T1}")
SP(f"s_lshr_b32 s{S_T0}, s{S_TB}, 2")
SP(f"s_lshl2_add_u32 s{S_T0}, s{S_FH}, s{S_T0}")
SP(f"s_lshl3_add_u32 s{S_T0}, s{S_T0}, s{S_T1}")
SP(f"s_lshl2_add_u32 s{S_T0}, s{S_T0}, s{S_V}")
SP(f"s_lshl_b32 s{S_T0}, s{S_T0}, 8")
SP(f"s_add_u32 s{S_PA}, s{S_T0}, {WS_C}")
SP(f"s_mul_i32 s{S_T1}, s{S_V}, 56")
SP(f"v_mov_b32 {v(V_NONCE)}, 7")
lanes_reg(SP, V_FLG, 4, 8)
SP(f"v_lshrrev_b32 v5, 4, {v(V_LANE)}")
SP(f"v_and_b32 v6, 15, {v(V_LANE)}")
SP(f"v_mul_u32_u24 v4, {PROW}, v5")
SP(f"v_lshl_add_u32 v4, v6, 4, v4")
SP(f"s_mul_i32 s{S_T1}, s{S_T1}, {PROW}")
SP(f"s_lshl_b32 s{S_T0}, s{S_TB}, 8")
SP(f"s_add_u32 s{S_T0}, s{S_T0}, s{S_T1}")
SP(f"s_mul_i32 s{S_T1}, s{S_FH}, {PGEN}")
SP(f"s_add_u32 s{S_T0}, s{S_T0}, s{S_T1}")
SP(f"s_add_u32 s{S_T0}, s{S_T0}, {WS_P}")
SP(f"v_add_u32 v11, s{S_T0}, v4")
SP(f"v_lshl_add_u32 v4, v6, 2, v5")
SP(f"s_lshl_b32 s{S_T0}, s{S_V}, 9")
SP(f"v_lshl_add_u32 v12, v4, 3, s{S_T0}")
SP(f"v_lshlrev_b32 v13, 3, {v(V_LANE)}")
SP(f"v_mov_b32 v14, 0x3f803f80")
if not NOPF:
    SP(f"s_sub_u32 s{S_T1}, s{S_W}, 224")
    SP(f"s_lshr_b32 s{S_T0}, s{S_V}, 1")
    SP(f"s_lshl1_add_u32 s{S_T1}, s{S_T1}, s{S_T0}")
    SP(f"s_mul_i32 s{S_T1}, s{S_T1}, {35*128}")
    SP(f"s_add_u32 s{S_T1}, s{S_T1}, {3584*128}")
    SP(f"v_min_u32 v4, 34, {v(V_LANE)}")
    SP(f"v_lshl_add_u32 v4, v4, 7, s{S_T1}")
    for k in range(4):
        SP(f"global_load_dword {v(60+k)}, v4, s[{S_PFB}:{S_PFB+1}]")
        if k < 3:
            SP(f"v_add_u32 v4, {2240*128}, v4")
SP(f"s_sub_u32 s{S_T1}, s{S_W}, 224")
SP(f"s_cmp_ge_u32 s{S_T1}, 28")
SP("s_cbranch_scc1 L_sp_nowf")
SP(f"s_lshr_b32 s{S_DB}, s{S_T1}, 2")
SP(f"s_and_b32 s{S_T2}, s{S_T1}, 3")
SP(f"s_lshl_b32 s{S_F3}, s{S_T1}, 10")
SP(f"s_add_u32 s{S_F3}, s{S_F3}, {WS_C + 896*256}")
SP(f"s_mul_i32 s{S_T1}, s{S_T1}, {14*4096}")
SP(f"s_add_u32 s{S_T1}, s{S_T1}, {WS_WF}")
SP(f"v_add_u32 v20, s{S_T1}, {v(V_L16)}")
SP(f"v_lshrrev_b32 v6, 3, {v(V_LANE)}")
SP(f"v_and_b32 v7, 6, v6")
SP(f"v_and_b32 v5, 7, {v(V_LANE)}")
SP(f"v_xor_b32 v7, v7, v5")
SP(f"v_mul_u32_u24 v6, 896, v6")
SP(f"v_lshl_add_u32 v6, v7, 4, v6")
SP(f"s_mul_i32 s{S_T0}, s{S_T2}, {448*896}")
SP(f"s_lshl_b32 s{S_T1}, s{S_DB}, 7")
SP(f"s_add_u32 s{S_T0}, s{S_T0}, s{S_T1}")
SP(f"v_add_u32 v48, s{S_T0}, v6")
for k in range(1, 4):
    SP(f"v_add_u32 {v(48+k)}, {k*(7168-1024)}, v48")
SP(f"s_lshl_b32 s{S_R2}, s{S_V}, 14")
SP(f"s_add_u32 s{S_R2}, s{S_R2}, 4096")
for i in range(4):
    SP(f"s_lshl2_add_u32 s{S_HR+i}, s{S_V}, {i}")
    SP(f"s_min_u32 s{S_HR+i}, s{S_HR+i}, 13")
    SP(f"s_mul_i32 s{S_WOFF}, s{S_HR+i}, {32*896}")
    SP(f"s_add_u32 m0, s{S_R2}, {4096*i}")
    SP(f"s_lshl_b32 s{S_HR+i}, s{S_HR+i}, 12")
    for k in range(4):
        of = f" offset:{1024*k}" if k else ""
        SP(f"buffer_load_dwordx4 {v(48+k)}, {srd(SRD_WD)}, s{S_WOFF} offen{of} lds", tok=f"sw{i}")
SP(f"v_lshrrev_b32 v4, 4, {v(V_LANE)}")
SP(f"v_lshrrev_b32 v6, 1, v4")
SP(f"v_lshlrev_b32 v6, 4, v6")
SP(f"v_and_b32 v7, 1, v4")
SP(f"v_lshl_add_u32 v6, v7, 2, v6")
SP(f"v_bfe_u32 v7, {v(V_LANE)}, 2, 2")
SP(f"v_add_u32 v6, v6, v7")
SP(f"v_bfe_u32 v7, v6, 1, 2")
SP(f"v_lshlrev_b32 v6, 7, v6")
SP(f"v_and_b32 v5, 3, {v(V_LANE)}")
SP(f"v_lshl_add_u32 v6, v5, 3, v6")
for rt in range(4):
    SP(f"v_xor_b32 v5, {rt}, v7")
    SP(f"v_lshl_add_u32 v5, v5, 5, v6")
    SP(f"v_add_u32 {v(52+rt)}, s{S_R2}, v5")
for i in range(4):
    SP.wait(f"sw{i}")
    if i in (0, 3): sps()
    for rt in range(4):
        for h in range(2):
            SP(f"ds_read_b64_tr_b16 {v(64+16*i+4*rt+2*h,2)}, {v(52+rt)} offset:{4096*i+1024*h}")
    for rt in range(4):
        SP(f"buffer_store_dwordx4 {v(64+16*i+4*rt,4)}, v20, {srd(SRD_WS)}, s{S_HR+i} offen offset:{1024*rt} sc1")
SP("s_waitcnt vmcnt(0)")
addcnt(SP, S_F3, V_FLG)
sps()
SP("L_sp_nowf:")
sps()
SP("s_mov_b64 vcc, 3")
spin(SP, "L_sp_c", "L_sp_d", poll_issue(S_PA, 7), 7, sleep=int(OPT.get('spsleep', 2)), exp=f"s{S_E28}")
SP("L_sp_d:")
sps()
for k in range(14):
    SP(f"s_mov_b32 s{S_T0}, {k*4*PROW}")
    SP(f"buffer_load_dwordx4 {v(64+4*k,4)}, v11, {srd(SRD_WS)}, s{S_T0} offen sc1")
SS = 16
for j in range(8):
    SP(f"v_mov_b32 {v(SS+j)}, 0")
for k in range(14):
    for j in range(4):
        SP(f"v_dot2c_f32_bf16 {v(SS+j)}, {v(64+4*k+j)}, v14")
    for j in range(4):
        SP(f"v_dot2c_f32_bf16 {v(SS+4+j)}, {v(64+4*k+j)}, {v(64+4*k+j)}")
for o in (0, 4):
    SP(f"v_permlane32_swap_b32 {v(SS+o)}, {v(SS+o+2)}")
    SP(f"v_permlane32_swap_b32 {v(SS+o+1)}, {v(SS+o+3)}")
for o in (0, 4):
    SP(f"v_add_f32 {v(SS+o)}, {v(SS+o)}, {v(SS+o+2)}")
    SP(f"v_add_f32 {v(SS+o+1)}, {v(SS+o+1)}, {v(SS+o+3)}")
for o in (0, 4):
    SP(f"v_permlane16_swap_b32 {v(SS+o)}, {v(SS+o+1)}")
SP(f"v_add_f32 {v(SS)}, {v(SS)}, {v(SS+1)}")
SP(f"v_add_f32 {v(SS+1)}, {v(SS+4)}, {v(SS+5)}")
sps()
SP(f"ds_write_b64 v12, {v(SS,2)}")
SP("s_waitcnt lgkmcnt(0)")
SP("s_barrier")
SP(f"s_cmp_lg_u32 s{S_V}, 0")
SP("s_cbranch_scc1 L_fin")
t = 24
for w in range(4):
    SP(f"ds_read_b64 {v(t+2*w,2)}, v13 offset:{512*w}")
SP(f"s_lshl_b32 s{S_T0}, s{S_TB}, 1")
SP(f"s_add_u32 s{S_T0}, s{S_T0}, s{S_FH}")
SP(f"s_lshl_b32 s{S_T0}, s{S_T0}, 9")
SP(f"s_add_u32 s{S_T0}, s{S_T0}, {WS_S2}")
SP(f"v_pk_add_f32 {v(t,2)}, {v(t,2)}, {v(t+2,2)}")
SP(f"v_pk_add_f32 {v(t+4,2)}, {v(t+4,2)}, {v(t+6,2)}")
SP(f"v_pk_add_f32 {v(t,2)}, {v(t,2)}, {v(t+4,2)}")
SP(f"v_mul_f32 {v(t)}, s{S_K0}, {v(t)}")
SP(f"v_mul_f32 {v(t+1)}, s{S_K0}, {v(t+1)}")
SP(f"v_fma_f32 {v(t+1)}, -{v(t)}, {v(t)}, {v(t+1)}")
SP(f"v_max_f32 {v(t+1)}, 0, {v(t+1)}")
round_bf16(SP, t + 1, t + 1)
SP(f"v_add_f32 {v(t+1)}, {f32(1e-5)}, {v(t+1)}")
round_bf16(SP, t + 1, t + 1)
SP(f"v_sqrt_f32 {v(t+1)}, {v(t+1)}")
SP(f"v_cvt_pk_bf16_f32 {v(t)}, {v(t+1)}, -{v(t)}")
SP(f"v_mov_b32 {v(t+1)}, s{S_NONCE}")
for r_ in range(7):
    SP(f"buffer_store_dwordx2 {v(t,2)}, v13, {srd(SRD_WS)}, s{S_T0} offen sc1")
    SP(f"s_add_u32 s{S_T0}, s{S_T0}, {S2REP}")
sps()
SP(f"s_cmp_lg_u32 s{S_W}, 255")
SP("s_cbranch_scc1 L_fin")
SP(f"v_lshlrev_b32 v4, 25, {v(V_LANE)}")
SP(f"buffer_store_dword {v(t+1)}, v4, {srd(SRD_WS)}, 0 offen sc1")
SP("s_branch L_fin")


def b_read(J, ks):
    q = sub()
    b = BF + 4 * (ks % NBF)
    q(f"ds_read2st64_b32 {v(b,2)}, {v(V_BR)} offset0:{8*ks} offset1:{8*ks+1}")
    q(f"ds_read2st64_b32 {v(b+2,2)}, {v(V_BR)} offset0:{8*ks+2} offset1:{8*ks+3}", tok=f"b{J}_{ks}")
    return q.ins


def g1_gaps(J, extra_after=None):
    m = sub()
    g0 = GACC[J & 1]
    for ks in range(28):
        for mm in range(2):
            d = g0 + 16 * mm
            c = "0" if ks == 0 else v(d, 16)
            m(f"v_mfma_f32_32x32x16_bf16 {v(d,16)}, {acc(wfrag(mm,ks),4)}, {v(BF+4*(ks%NBF),4)}, {c}")
    for mm in range(2):
        d = g0 + 16 * mm
        m(f"v_mfma_f32_32x32x16_bf16 {v(d,16)}, {acc(A_CS[mm],4)}, {v(MB,4)}, {v(d,16)}")
    g = Gaps(m.ins, 6)
    for ks in range(28):
        k2 = ks + NBF - 1
        if k2 < 28:
            r = b_read(J, k2)
            g.at(2 * ks, [r[0]])
            g.at(2 * ks + 1, [r[1]])
        if ks % 3 == 2 and ks + 1 < 28:
            w = sub()
            w.wait(f"b{J}_{min(ks+3,27)}")
            g.at(2 * ks + 1, w.ins)
    return g


def next_tile_reads(g, J, delta, first=42):
    q = sub()
    q(f"v_add_u32 {v(V_BR)}, {delta}, {v(V_BR)}")
    g.at(first, q.ins)
    for ks in range(NBF - 1):
        old = max(k for k in range(28) if k % NBF == ks)
        r = b_read(J, ks)
        at = max(2 * old + 1, first + 1)
        g.at(at, r[:1])
        g.at(min(at + 1, 57), r[1:])


def g1_epi(J):
    q = sub()
    g = GACC[J & 1]
    kc = KC_[J & 1]
    T = EPT
    for j0 in range(0, 16, 4):
        js = range(j0, j0 + 4)
        for j in js:
            q(f"v_mul_f32 {v(T+j-j0)}, {v(g+j)}, {v(g+j)}")
        for j in js:
            q(f"v_fma_f32 {v(T+j-j0)}, {v(T+j-j0)}, {v(kc+1)}, {v(kc)}")
        for j in js:
            q(f"v_mul_f32 {v(T+j-j0)}, {v(T+j-j0)}, {v(g+j)}")
        for j in js:
            q(f"v_exp_f32 {v(T+j-j0)}, {v(T+j-j0)}")
            q(f"v_mul_f32 {v(T+4+j-j0)}, {v(g+j)}, {v(g+16+j)}")
        for j in js:
            q(f"v_fma_f32 {v(T+j-j0)}, {v(T+j-j0)}, {v(kc+2)}, {v(kc+2)}")
        for j in js:
            q(f"v_rcp_f32 {v(T+j-j0)}, {v(T+j-j0)}")
        for j in js:
            q(f"v_mul_f32 {v(T+4+j-j0)}, {v(T+4+j-j0)}, {v(T+j-j0)}")
        q(f"v_cvt_pk_bf16_f32 {v(HP+(j0//2)%4)}, {v(T+4)}, {v(T+5)}")
        q(f"v_cvt_pk_bf16_f32 {v(HP+(j0//2)%4+1)}, {v(T+6)}, {v(T+7)}")
        if j0 in (4, 12):
            q2 = j0 // 8
            q(f"buffer_store_dwordx4 {v(HP,4)}, {v(V_HST)}, {srd(SRD_WS)}, 0 offen offset:{512*q2} sc1", tok=f"H{J}")
    q(f"v_add_u32 {v(V_HST)}, {2*57344}, {v(V_HST)}")
    return q.ins


def flag3(J):
    q = sub()
    q.wait(f"H{J}")
    addcnt(q, S_F3, V_FLG)
    q(f"s_add_u32 s{S_F3}, s{S_F3}, 2048")
    return q.ins


WDREG = {}
for i in range(4):
    for rt in range(4):
        WDREG[i, rt] = v(WDV + 16 * i + 4 * rt, 4)
        WDREG[10, rt] = acc(240 + 4 * rt, 4)
        WDREG[11, rt] = v([176, 180, 184, 56][rt], 4)
        WDREG[12, rt] = acc(4 * rt, 4)
        WDREG[13, rt] = acc(16 + 4 * rt, 4)
for i in range(6):
    for rt in range(4):
        WDREG[4 + i, rt] = acc(128 + 16 * i + 4 * rt, 4)
KORD = [0, 1, 2, 3, 10, 11, 12, 13, 4, 5, 6, 7, 8, 9]


def wdr(ft, rt):
    return WDREG[ft, rt]


def wd_load(ft):
    q = sub()
    q(f"s_add_u32 s{S_WOFF}, s{S_WFB}, {ft*4096}")
    for k in range(4):
        of = f" offset:{1024*k}" if k else ""
        q(f"buffer_load_dwordx4 {wdr(ft,k)}, {v(V_L16)}, {srd(SRD_WS)}, s{S_WOFF} offen{of} sc1")
    return q.ins


def wd_dma(ft):
    q = sub()
    sbase, slot = (S_FW, ft - 4) if ft < 6 else (S_R2, ft - 6)
    q(f"s_add_u32 m0, s{sbase}, {slot*4096}")
    q(f"s_add_u32 s{S_WOFF}, s{S_WFB}, {ft*4096}")
    for k in range(4):
        of = f" offset:{1024*k}" if k else ""
        q(f"buffer_load_dwordx4 {v(V_L16)}, {srd(SRD_WS)}, s{S_WOFF} offen{of} sc1 lds", tok=f"wd{ft}")
    return q.ins


def wd_read(ft):
    q = sub()
    va, slot = (V_LF, ft - 4) if ft < 6 else (V_LR, ft - 6)
    for rt in range(4):
        q(f"ds_read_b128 {wdr(ft,rt)}, {v(va)} offset:{4096*slot+1024*rt}")
    return q.ins


def res_read(J):
    q = sub()
    q(f"ds_read2st64_b32 {v(RESR[J],2)}, {v(V_RES)} offset0:0 offset1:1", tok=f"res{J}")
    q(f"v_add_u32 {v(V_RES)}, {128 if J % 2 == 0 else L_ACT[1]-128}, {v(V_RES)}")
    return q.ins


ad = sub()
ad(f"v_lshrrev_b32 v4, 4, v0")
ad(f"v_and_b32 v5, 15, v0")
ad(f"v_lshlrev_b32 v6, 9, v5")
ad(f"v_lshl_add_u32 v6, v4, 2, v6")
ad(f"s_lshl_b32 s{S_T0}, s{S_DB}, 13")
ad(f"s_lshl_b32 s{S_T1}, s{S_FH}, 6")
ad(f"s_add_u32 s{S_T0}, s{S_T0}, s{S_T1}")
ad(f"v_add_u32 {v(V_RES)}, s{S_T0}, v6")
ad(f"v_lshrrev_b32 v6, 2, v4")
ad(f"v_and_b32 v7, 3, v4")
ad(f"v_lshl_add_u32 v6, v6, 4, v7")
ad(f"v_mul_u32_u24 v6, 896, v6")
ad(f"v_lshl_add_u32 v6, v5, 3, v6")
ad(f"s_lshr_b32 s{S_T0}, s{S_TB}, 2")
ad(f"s_lshl_b32 s{S_T0}, s{S_T0}, 8")
ad(f"s_add_u32 s{S_T0}, s{S_T0}, s{S_T1}")
ad(f"s_and_b32 s{S_T1}, s{S_TB}, 3")
ad(f"s_lshl_b32 s{S_T1}, s{S_T1}, 2")
ad(f"s_add_u32 s{S_T0}, s{S_T0}, s{S_T1}")
ad(f"s_mul_i32 s{S_T0}, s{S_T0}, 896")
ad(f"s_lshl_b32 s{S_T1}, s{S_DB}, 7")
ad(f"s_add_u32 s{S_T0}, s{S_T0}, s{S_T1}")
ad(f"v_add_u32 {v(V_OST)}, s{S_T0}, v6")
ad(f"v_mul_u32_u24 v6, 272, v5")
ad(f"v_lshl_add_u32 v6, v4, 4, v6")
ad(f"v_add_u32 {v(V_RR)}, {L_R}, v6")
ad(f"v_lshrrev_b32 v4, 4, {v(V_LANE)}")
ad(f"v_mul_u32_u24 v6, 272, v4")
ad(f"v_lshl_add_u32 v6, v5, 4, v6")
ad(f"s_mul_i32 s{S_T0}, s{S_V}, 4352")
ad(f"s_add_u32 s{S_T0}, s{S_T0}, {L_R}")
ad(f"v_add_u32 {v(V_RW)}, s{S_T0}, v6")
lanes_reg(ad, V_FLG, 2, 8)

for i in range(1, 4):
    P(f"v_mov_b32 {v(MB+i)}, 0")
    P(f"v_accvgpr_write_b32 {acc(A_CS[0]+i)}, 0")
    P(f"v_accvgpr_write_b32 {acc(A_CS[1]+i)}, 0")
P.wait("act0")
P("s_waitcnt lgkmcnt(0)")
P("s_barrier")
stamp("gemm1 start")
for ks in range(NBF - 1):
    P.add(b_read(0, ks))

def hreg(J, ft):
    n = KORD.index(ft)
    if J in (0, 3):
        return acc(32 + 4 * n, 4)
    if J == 1:
        return v(64 + 4 * n if n < 8 else 128 + 4 * (n - 8), 4)
    return v(96 + 4 * n if n < 8 else 152 + 4 * (n - 8), 4)


def h_loads(J):
    o = []
    for s_ in KORD:
        q = sub()
        of = f" offset:{1024*(s_%4)}" if s_ % 4 else ""
        so = f"s{S_HR+s_//4}" if s_ >= 4 else "0"
        q(f"buffer_load_dwordx4 {hreg(J,s_)}, {v(V_HL)}, {srd(SRD_WS)}, {so} offen{of} sc1")
        o.append(q.ins)
    if J < 3:
        q = sub()
        q(f"v_add_u32 {v(V_HL)}, {2*57344}, {v(V_HL)}")
        o[-1] += q.ins
    return o


def p3_next():
    q = sub()
    q(f"s_add_u32 s{S_P3}, s{S_P3}, 2048")
    return q.ins


g = g1_gaps(0)
e = pin_vm(g, 0, w4[3:], 1.5)
g.at(e, poll_check(S_P4, 25))
e4 = pin_vm(g, e, [wd_load(0), wd_load(1), wd_load(2), wd_load(3)], 2.2)
t4 = w_tr(6, 0, 8, "t4") + w_tr(6, 1, 12, "t4")
g.at(30, waitq("w4"))
pin_spread(g, 30, t4, per=2)
e = g.fill(ad2.ins[NAD2:] + ad.ins, start=0)
assert e < 34, e
g.at(41, waitq("t4") + cs_mfma(24, 28))
cf = sub()
for m in range(2):
    round_bf16(cf, 54, CSA[m])
    cf(f"v_sub_f32 v55, {v(CSA[m])}, v54")
    cf(f"v_cvt_pk_bf16_f32 v54, v54, v55")
    cf(f"v_accvgpr_write_b32 {acc(A_CS[m])}, v54")
g.fill(cf.ins, start=44, end=52)
g.at(int(OPT.get("pb1", 21)), poll_issue(S_PA, 23))
g.at(int(OPT.get("pb2", 37)), poll_issue(S_PA, 25))
g.at(int(OPT.get("st0", 36)), st_issue(0))
pin_vm(g, e4, [wd_dma(4)], 2.5)
g.at(53, stq("t0 pre st") + st_check(0) + stq("t0 post st"))
g.fill(st_final(0), start=53, end=55)
g.at(57, stq("t0 pre pB") + poll_check2(S_PA, 23, 25, "3", f"s{S_E28}") + stq("t0 post pB"))
next_tile_reads(g, 1, 128)
P.add(g.out())
stamp("tile0")
g = g1_gaps(1)
e = pin_vm(g, 0, act_dma(1)[:1] + [st_issue(1)] + act_dma(1)[1:], 2)
pin_vm(g, e + 1, [wd_dma(5), wd_load(10)], 2.5)
g.at(43, res_read(0))
g.at(45, res_read(1))
g.at(40, st_check(1))
g.fill(st_final(1), start=41, end=54)
bq = sub()
bq.wait("act1")
bq.wait("res1")
bq("s_barrier")
BB = int(OPT.get("bb", 52))
g.at(BB, stq("t1 pre bar") + bq.ins + stq("t1 post bar"))
next_tile_reads(g, 2, L_ACT[1] - 128, first=BB)
e = g.fill(g1_epi(0), start=3)
print("tile 1: epilogue ends at gap", e, "tail", len(g.tail))
P.add(g.out())
stamp("tile1")
g = g1_gaps(2)
pin_vm(g, 0, [wd_dma(6), wd_dma(7), st_issue(2), wd_dma(8), wd_dma(9), wd_load(11), st_issue(3)], 2.5)
g.at(24, flag3(0))
g.at(49, st_check(2))
g.fill(st_final(2), start=50, end=54)
g.at(56, poll_issue(S_P3, 7))
next_tile_reads(g, 3, 128)
e = g.fill(g1_epi(1), start=3)
print("tile 2: epilogue ends at gap", e, "tail", len(g.tail))
P.add(g.out())
stamp("tile2")
g = g1_gaps(3)
T3S = float(OPT.get("t3s", 2.4))
e = pin_vm(g, 4, [wd_load(12), wd_load(13)], T3S)
g.at(int(OPT.get("f1", 21)), flag3(1))
g.at(48, st_check(3))
g.fill(st_final(3), start=49, end=54)
g.at(e - 1, stq("t3 pre p0") + poll_check(S_P3, 7) + stq("t3 post p0") + p3_next())
pin_vm(g, e, h_loads(0), T3S)
g.at(int(OPT.get("p1", 47)), poll_issue(S_P3, 7))
g.at(52, res_read(2))
g.at(54, res_read(3))
e = g.fill(g1_epi(2), start=2)
print("tile 3: epilogue ends at gap", e, "tail", len(g.tail))
P.add(g.out())
stamp("tile3")
P.add(waitq("wd9") + wd_read(4) + wd_read(5))
ep = g1_epi(3)
h1 = h_loads(1)
NE = int(OPT.get("ne", 3))
P.add(sprinkle(ep, [(int(OPT.get("f2", 120)), flag3(2))] + [(68, poll_check(S_P3, 7) + p3_next())] + [(69 + 22 * i, h1[i]) for i in range(NE)]))
stamp("epi3")

OA = [8, 48]
OA = [224, 96]
RT = 176


def g2_mfma(J):
    m = sub()
    for ft in KORD:
        for rt in range(4):
            d = acc(OA[J & 1] + 4 * rt, 4)
            c = "0" if ft == 0 else d
            m(f"v_mfma_f32_16x16x32_bf16 {d}, {wdr(ft,rt)}, {hreg(J,ft)}, {c}")
    return m.ins


RTMP = [28, 32, 36, 12]


def red_write(J):
    q = sub()
    for rt in range(4):
        q(f"ds_write_b128 {v(V_RW)}, {acc(OA[J&1]+4*rt,4)} offset:{(J&1)*R_SZ + rt*1088}")
    return q.ins


def red_bar():
    q = sub()
    q("s_waitcnt lgkmcnt(0)")
    q("s_barrier")
    return q.ins


def red_read(J):
    q = sub()
    for w in range(4):
        q(f"ds_read_b128 {v(RTMP[w],4)}, {v(V_RR)} offset:{(J&1)*R_SZ + w*4352}")
    return q.ins


def red_fin(J):
    q = sub()
    a, b, c, d = RTMP
    for i in range(2):
        q(f"v_lshlrev_b32 {v(16+2*i)}, 16, {v(RESR[J]+i)}")
        q(f"v_and_b32 {v(17+2*i)}, 0xffff0000, {v(RESR[J]+i)}")
    for i in range(4):
        q(f"v_add_f32 {v(a+i)}, {v(a+i)}, {v(b+i)}")
    for i in range(4):
        q(f"v_add_f32 {v(c+i)}, {v(c+i)}, {v(d+i)}")
    for i in range(4):
        q(f"v_add_f32 {v(a+i)}, {v(a+i)}, {v(16+i)}")
    for i in range(4):
        q(f"v_add_f32 {v(a+i)}, {v(a+i)}, {v(c+i)}")
    if "eps" in OPT:
        for i in range(4):
            q(f"v_mul_f32 {v(a+i)}, {f32(1.0+float(OPT['eps']))}, {v(a+i)}")
    for i in range(2):
        q(f"v_cvt_pk_bf16_f32 {v(20+i)}, {v(a+2*i)}, {v(a+2*i+1)}")
    q(f"s_mov_b32 s{S_T0}, {(1024*(J>>1) + 128*(J&1))*896}")
    q(f"buffer_store_dwordx2 v[20:21], {v(V_OST)}, {srd(SRD_OUT)}, s{S_T0} offen {OPT.get('ost', '').replace('_', ' ')}")
    return q.ins


for J in range(4):
    g = Gaps(g2_mfma(J), 2)
    if J > 0:
        pin_spread(g, 4, red_write(J - 1), per=1)
        g.at(16, red_bar())
        pin_spread(g, 17, red_read(J - 1), per=1)
        g.fill(red_fin(J - 1), start=28)
    if J == 0:
        pin_vm(g, 0, h1[NE:], float(OPT.get("hs1", 4)))
        for i, x in enumerate(wd_read(6) + wd_read(7) + wd_read(8) + wd_read(9)):
            g.at(1 + 2 * i, [x])
        g.at(int(OPT.get("p2a", 18)), poll_issue(S_P3, 7))
        g.at(int(OPT.get("p2b", 36)), poll_issue(S_P3, 23))
        g.at(int(OPT.get("f3", 42)), flag3(3))
        bq = sub()
        bq.wait("res3")
        bq("s_barrier")
        g.at(52, bq.ins)
        g.at(55, poll_check2(S_P3, 7, 23, "1", f"s{S_E14}") + p3_next())
    if J == 1:
        pin_vm(g, 0, h_loads(2), float(OPT.get("hs", 3.5)))
        g.at(int(OPT.get("p3a", 14)), poll_issue(S_P3, 7))
        g.at(int(OPT.get("p3b", 32)), poll_issue(S_P3, 23))
        g.at(55, poll_check2(S_P3, 7, 23, "1", f"s{S_E14}"))
    if J == 2:
        pin_vm(g, 0, h_loads(3), float(OPT.get("hs3", 2)))
    P.add(g.out())
    stamp(f"g2 tile{J}")
P.add(red_write(3))
P.add(red_bar())
P.add(red_read(3))
P.add(red_fin(3))
stamp("end")

if "hold" in OPT:
    if "cls" in OPT:
        P(f"s_and_b32 s98, s{S_W}, 7")
        P(f"s_cmp_lg_u32 s98, {OPT['cls']}")
        P("s_cbranch_scc1 L_fin")
    P("L_hold:")
    P("s_memrealtime s[98:99]")
    P("s_waitcnt lgkmcnt(0)")
    P("s_sub_u32 s98, s98, s100")
    P("s_cmp_lt_u32 s98, 4000")
    P("s_cbranch_scc1 L_hold")
P("L_fin:")
if STAMPS:
    P(f"s_lshl_b32 s{S_T0}, s{S_W}, 2")
    P(f"s_add_u32 s{S_T0}, s{S_T0}, s{S_V}")
    P(f"s_lshl_b32 s{S_T0}, s{S_T0}, 8")
    P(f"s_add_u32 s{S_T0}, s{S_T0}, {WS_DBG + 0x800000}")
    P(f"v_lshlrev_b32 v4, 2, v1")
    P(f"buffer_store_dword v255, v4, {srd(SRD_WS)}, s{S_T0} offen")
if "dbgout" in OPT:
    P(f"s_cmp_ge_u32 s{S_W}, 224")
    P("s_cbranch_scc1 L_end")
    P(f"v_readlane_b32 s{S_T0}, v255, 0")
    P(f"s_not_b32 s{S_T0}, s{S_T0}")
    P(f"v_writelane_b32 v255, s{S_T0}, 15")
    P("s_mov_b64 exec, 0xffff")
    P(f"v_lshlrev_b32 v4, 2, v1")
    P("global_atomic_umax v4, v255, s[60:61]")
P("L_end:")
P("s_endpgm")

res = finalize(P.ins, verbose=True) + finalize(TAIL.ins) + finalize(SP.ins)
if "report" in OPT:
    report_waits(finalize(P.ins))
launch = f"; @launch kernel={KN} grid" if ("list" in OPT or STAMPS) else "; @launch grid"
hdr = f"""; Fused pre-LN S4D conv + GEGLU FFN, one persistent launch (generated by my own script)
{launch}=(256,1,1) block=(256,1,1) lds={LDS_SIZE}
.amdgcn_target "amdgcn-amd-amdhsa--gfx950"
.text
.globl {KN}
.p2align 8
.type {KN},@function
{KN}:
"""
ftr = f"""
.p2align 8
.fill 64, 4, 0xbf800000
L_codeend:
.section .rodata,"a"
.p2align 6
.amdhsa_kernel {KN}
  .amdhsa_next_free_vgpr 512
  .amdhsa_next_free_sgpr 102
  .amdhsa_accum_offset 256
  .amdhsa_group_segment_fixed_size 0
  .amdhsa_kernarg_size 112
  .amdhsa_user_sgpr_count 2
  .amdhsa_user_sgpr_kernarg_segment_ptr 1
  .amdhsa_system_sgpr_workgroup_id_x 1
.end_amdhsa_kernel
"""
body = text_of(res)
if "noalign" not in OPT:
    body = align_pass(hdr, body, ftr)
open(OUTF, "w").write(hdr + body + ftr)
src = open(__file__).read()
a = src.index("# ---------------- workspace layout")
b = src.index("# ---------------- LDS layout")
open("layout.py", "w").write(src[a:b] + "\nSTAMP_NAMES = " + repr(stamp_names) + "\nSPIN_NAMES = " + repr(spin_names) + "\n")
```

```python
import sys, math, struct
from asmgen import *

NAME = "sequential_preLN__ssm_conv_s4d__geglu_ffn__prompt"
KN = NAME + "_kernel"
OPT = {}
for a in sys.argv[1:]:
    k, _, val = a.partition("=")
    OPT[k] = val if val else True
STAMPS = "stamps" in OPT
OUTF = OPT.get("out", "k13.s")
if "wdearly" not in OPT:
    OPT["wdlate"] = True


def f32(x):
    return "0x%08x" % struct.unpack("<I", struct.pack("<f", x))[0]


FS = 4
FREP = 0x9000
WS_EPOCH = 0
WS_F1 = 0x8000
WS_S2 = 0x54000
S2REP = 0x5000
WS_C = 0x80000
WS_UX = 0xD0000
WS_P = WS_UX + 256 * 14336
PROW = 4352
PGEN = 224 * PROW
WS_H = WS_P + 2 * PGEN
WS_WF = WS_H + 16 * 4 * 56 * 2048
WS_END = WS_WF + 392 * 4096
WS_DBG = 0x1000000
WS_SIZE = 0x2000000
LAYOUT = 5

CS = 4160
TAB_W = 14592
TAB_ROW = 272
L_KC = 58368
L_UX = 75008
L_EX = 0
L_RING = 98304
L_ACT = [0, 65536]
L_F = 131072
L_R = 65536
R_SZ = 17408
LDS_SIZE = 163840

S_W = 2
S_V = 4
S_T0, S_T1, S_T2, S_T3 = 5, 6, 7, 3
SRD_X, SRD_WS, SRD_WG, SRD_WU, SRD_WD, SRD_OUT = 8, 12, 16, 20, 24, 28
S_NONCE = 32
S_CNT = 33
S_EX = 34
S_PR, S_DSK = 64, 65
S_TB, S_FB, S_FH, S_DB = 66, 67, 68, 69
S_A, S_B, S_C, S_D = 70, 72, 74, 76
S_RING = 78
S_WOFF = 79
S_K0 = 80
S_TAB = 81
S_F3 = 82
S_F1, S_F2 = 83, 84
S_M255 = 86
S_FW, S_R2 = 88, 89
S_ACTW = 90
S_UXO = 91
S_Z = 95
S_PFB = 88
S_HR = 36
S_PA, S_P4, S_P3, S_PST, S_AB, S_WFB = 40, 41, 42, 43, 44, 45
S_E28, S_E14, S_CI = 46, 47, 85
S_UXM = 92
S_REP = 94
S_PERM = 93
S_STAMP = 96


def srd(n):
    return f"s[{n}:{n+3}]"


def v(n, w=1):
    return f"v{n}" if w == 1 else f"v[{n}:{n+w-1}]"


def acc(n, w=1):
    return f"a{n}" if w == 1 else f"a[{n}:{n+w-1}]"


P = Prog()
TAIL = Prog()
nstamp = [0]
stamp_names = []
spin_names = []
LITE = ("start", "conv start", "genA stored", "gemm1 start", "tile3", "end")
if "dbgout" in OPT:
    LITE = ("start", "x arrived", "ln1 done", "kgen r1", "conv start", "genA stored", "gemm1 start", "tile1", "tile3", "end")


def stamp(name, p=None):
    p = P if p is None else p
    p(f"; @ {name}")
    if OPT.get("hold", "").replace("_", " ") == name:
        p(f"s_memrealtime s[100:101]")
        p("s_waitcnt lgkmcnt(0)")
    if STAMPS and ("lite" not in OPT or name in LITE):
        k = nstamp[0]
        assert k < 32
        p(f"s_memrealtime s[{S_STAMP}:{S_STAMP+1}]")
        p(f"s_memtime s[{S_STAMP+2}:{S_STAMP+3}]")
        p("s_waitcnt lgkmcnt(0)")
        p(f"v_writelane_b32 v255, s{S_STAMP}, {k}")
        p(f"v_writelane_b32 v255, s{S_STAMP+2}, {32+k}")
        nstamp[0] += 1
        stamp_names.append(name)


def stq(name):
    q = sub()
    if "dbg" in OPT:
        stamp(name, q)
    return q.ins


lblc = [0]


def label(prefix):
    lblc[0] += 1
    return f"L_{prefix}_{lblc[0]}"


def poll_issue(what, vtmp):
    q = sub()
    q(f"v_mov_b32 {v(vtmp)}, 0")
    if what == "F1":
        q(f"buffer_atomic_add {v(vtmp)}, {v(V_F1)}, {srd(SRD_WS)}, 0 offen sc0")
    else:
        q(f"buffer_atomic_add {v(vtmp)}, {v(V_PM if what == S_PA else V_P1)}, {srd(SRD_WS)}, s{what} offen sc0")
    return q.ins


def spin(t, name, done, reissue, vtag, sleep=2, exp=None):
    t(f"{name}:")
    t(f"s_mov_b32 s{S_CNT}, 0")
    t(f"{name}_l:")
    t("s_mov_b64 exec, vcc")
    t(f"s_sleep {sleep}")
    t.add(reissue)
    t("s_waitcnt vmcnt(0)")
    t(f"v_cmp_ne_u32 vcc, {exp or f's{S_NONCE}'}, {v(vtag)}")
    t("s_mov_b64 exec, -1")
    if STAMPS and "lite" in OPT:
        spin_names.append(name)
        t(f"s_add_u32 s{S_STAMP}, s{S_CNT}, 1")
        t(f"v_writelane_b32 v255, s{S_STAMP}, {10+len(spin_names)-1}")
    t(f"s_cbranch_vccz {done}")
    t(f"s_add_u32 s{S_CNT}, s{S_CNT}, 1")
    t(f"s_cmp_lt_u32 s{S_CNT}, 0x40000")
    t(f"s_cbranch_scc1 {name}_l")
    t(f"s_branch {done}")


def poll_check(what, vtmp):
    q = sub()
    slow, done = label("slow"), label("pdone")
    exp = f"s{S_NONCE}" if what == "F1" else (f"s{S_E14}" if what == S_P3 else f"s{S_E28}")
    q(f"v_cmp_ne_u32 vcc, {exp}, {v(vtmp)}")
    if what == "F1":
        q(f"s_cbranch_vccnz {slow}")
    else:
        q(f"s_and_b64 vcc, vcc, {3 if what == S_PA else 1}")
        q(f"s_cbranch_scc1 {slow}")
    q(f"{done}:")
    spin(TAIL, slow, done, poll_issue(what, vtmp), vtmp, exp=exp, sleep=1)
    return q.ins


def poll_check2(vaddr, v1, v2, mask, exp):
    q = sub()
    slow, done = label("slow"), label("pdone")
    q(f"v_cmp_ne_u32 vcc, {exp}, {v(v1)}")
    q(f"s_and_b64 vcc, vcc, {mask}")
    q(f"s_cbranch_scc0 {done}")
    q.cond(True)
    q(f"v_cmp_ne_u32 vcc, {exp}, {v(v2)}")
    q(f"s_and_b64 vcc, vcc, {mask}")
    q(f"s_cbranch_scc1 {slow}")
    q.cond(False)
    q(f"{done}:")
    spin(TAIL, slow, done, poll_issue(vaddr, v1), v1, exp=exp, sleep=1)
    return q.ins


def setflag(p, soff):
    p(f"buffer_atomic_swap {v(V_NONCE)}, {v(V_FLG)}, {srd(SRD_WS)}, s{soff} offen")


def addcnt(p, soff, vl):
    p(f"buffer_atomic_add {v(V_NONCE)}, {v(vl)}, {srd(SRD_WS)}, s{soff} offen")


def lanes_reg(p, dst, n, sh, t1=4):
    p(f"v_and_b32 {v(t1)}, {64-n}, {v(V_LANE)}")
    p(f"v_lshlrev_b32 {v(t1)}, 25, {v(t1)}")
    p(f"v_lshl_add_u32 {v(dst)}, {v(V_LANE)}, {sh}, {v(t1)}")


def waitq(tok):
    q = sub()
    q.wait(tok)
    return q.ins


def cmul(p, z, x, y):
    p(f"v_pk_mul_f32 {v(z,2)}, {v(x,2)}, {v(y,2)} op_sel:[0,0] op_sel_hi:[0,1]")
    p(f"v_pk_fma_f32 {v(z,2)}, {v(x,2)}, {v(y,2)}, {v(z,2)} op_sel:[1,1,0] op_sel_hi:[1,0,1] neg_lo:[1,0,0]")


def round_bf16(p, dst, src):
    p(f"v_cvt_pk_bf16_f32 {v(dst)}, {v(src)}, {v(src)}")
    p(f"v_and_b32 {v(dst)}, 0xffff0000, {v(dst)}")


V_LANE, V_NONCE, V_L16 = 1, 2, 3
V_FLG = 8
V_W = 9
V_TRA = 13
V_TA, V_TB, V_TW = 14, 15, 16
GA = 17
V_F1, V_UXL = 26, 27
V_KA = 28
V_UA = 32
V_EU, V_EXP, V_EXW, V_EXR, V_FL2 = 36, 37, 38, 39, 40
V_GW, V_GX, V_GR, V_S3, V_DSK = 240, 241, 242, 243, 244
V_EU1 = 41
V_DT = 42
V_PM = 43
V_P1 = 252
PR = 44
V_PF = 254

LOG2E = 1.4426950408889634

if OPT.get("hold") == "entry":
    P("s_memrealtime s[100:101]")
P(f"s_cmp_ge_u32 s{S_W}, 256")
P("s_cbranch_scc1 L_end")
P(f"s_load_dwordx16 s[36:51], s[0:1], 0")
P(f"s_load_dwordx8 s[52:59], s[0:1], 64")
P(f"s_load_dwordx4 s[60:63], s[0:1], 96")
if "nocpf" not in OPT:
    P(f"s_getpc_b64 s[{S_B}:{S_B+1}]")
    P("L_pc:")
    P(f"s_bfe_u32 s{S_T2}, s{S_W}, 0x30003")
    P(f"s_mul_i32 s{S_T2}, s{S_T2}, ((L_codeend-L_pc)/1024)*128")
    P(f"v_cmp_gt_u32 vcc, (L_codeend-L_pc)/1024, v0")
    P(f"s_add_u32 s{S_B}, s{S_B}, s{S_T2}")
    P(f"s_addc_u32 s{S_B+1}, s{S_B+1}, 0")
    P(f"v_lshlrev_b32 v6, 7, v0")
    P(f"s_and_saveexec_b64 s[{S_A}:{S_A+1}], vcc")
    P("s_cbranch_execz L_nocpf")
    P.cond(True)
    P(f"v_mov_b32 v7, s{S_B+1}")
    P(f"v_add_co_u32 v6, vcc, s{S_B}, v6")
    P(f"v_addc_co_u32 v7, vcc, 0, v7, vcc")
    P(f"global_load_dword v251, v[6:7], off")
    P.cond(False)
    P("L_nocpf:")
    P("s_mov_b64 exec, -1")
if STAMPS:
    P("v_mov_b32 v255, 0")
P(f"v_and_b32 {v(V_LANE)}, 63, v0")
P(f"v_lshrrev_b32 v4, 6, v0")
P(f"v_lshlrev_b32 {v(V_L16)}, 4, {v(V_LANE)}")
P(f"v_readfirstlane_b32 s{S_V}, v4")
P(f"v_mov_b32 v5, 0x7ff00000")
P(f"v_cmp_gt_u32 vcc, 56, {v(V_LANE)}")
P(f"s_lshl_b32 s{S_T0}, s{S_W}, 2")
P(f"s_add_u32 s{S_T0}, s{S_T0}, s{S_V}")
P(f"v_cndmask_b32 v4, v5, {v(V_L16)}, vcc")
P(f"s_mul_i32 s{S_T0}, s{S_T0}, 1792")
P(f"s_and_b32 s{S_T1}, s{S_W}, 7")
P(f"s_mul_i32 s{S_T1}, s{S_T1}, 28")
P(f"s_lshr_b32 s{S_T2}, s{S_W}, 3")
P(f"s_add_u32 s{S_T1}, s{S_T1}, s{S_T2}")
P(f"s_min_u32 s{S_PR}, s{S_T1}, 223")
P(f"s_lshl_b32 s{S_T2}, s{S_PR}, 10")
P(f"v_lshl_add_u32 v6, v0, 2, s{S_T2}")
P(f"v_mov_b32 v7, 0")
P(f"s_lshl_b32 s{S_T1}, s{S_PR}, 2")
P(f"v_mov_b32 v56, s{S_T1}")
P(f"s_mov_b32 s{SRD_X+2}, 1835008")
P(f"s_mov_b32 s{SRD_X+3}, 0x00020000")
P(f"s_mov_b32 s{SRD_WS+2}, {WS_SIZE}")
P(f"s_mov_b32 s{SRD_WS+3}, 0x00020000")
P("s_waitcnt lgkmcnt(0)")
stamp("start")
P(f"s_mov_b64 s[{SRD_X}:{SRD_X+1}], s[36:37]")
XR = 48
P(f"buffer_load_dwordx4 {v(XR,4)}, v4, {srd(SRD_X)}, s{S_T0} offen")
P(f"buffer_load_dwordx4 {v(XR+4,4)}, v4, {srd(SRD_X)}, s{S_T0} offen offset:896")
for r, src, sz in ((SRD_WG, 52, 1605632), (SRD_WU, 54, 1605632), (SRD_WD, 56, 1605632), (SRD_OUT, 58, 1835008)):
    P(f"s_mov_b64 s[{r}:{r+1}], s[{src}:{src+1}]")
    P(f"s_mov_b32 s{r+2}, {sz}")
    P(f"s_mov_b32 s{r+3}, 0x00020000")
P(f"v_cmp_lt_u32 vcc, 7, {v(V_LANE)}")
P(f"v_mul_u32_u24 v4, {FREP}, {v(V_LANE)}")
P(f"s_lshr_b32 s{S_T0}, s{S_W}, 3")
P(f"s_mul_i32 s{S_T1}, s{S_T0}, 37")
P(f"v_cndmask_b32 {v(V_FLG)}, v4, v5, vcc")
P(f"s_lshr_b32 s{S_T1}, s{S_T1}, 8")
P(f"s_mul_i32 s{S_T2}, s{S_T1}, 7")
P(f"s_sub_u32 s{S_DB}, s{S_T0}, s{S_T2}")
P(f"s_and_b32 s{S_FH}, s{S_W}, 1")
P(f"s_and_b32 s{S_T2}, s{S_W}, 6")
P(f"s_lshl_b32 s{S_T2}, s{S_T2}, 1")
P(f"s_add_u32 s{S_TB}, s{S_T2}, s{S_T1}")
P(f"s_mul_i32 s{S_FB}, s{S_FH}, 7")
P(f"s_add_u32 s{S_FB}, s{S_FB}, s{S_DB}")
P(f"s_lshl_b32 s{S_RING}, s{S_V}, 13")
P(f"s_add_u32 s{S_RING}, s{S_RING}, {L_RING}")
P(f"s_mul_i32 s{S_TAB}, s{S_V}, {TAB_W}")
for _ in range(int(OPT.get("xd", 0))):
    P("s_nop 7")
P(f"s_mov_b64 s[{SRD_WS}:{SRD_WS+1}], s[62:63]")
for i in range(4):
    P(f"global_load_dword {v(PR+i)}, v6, s[{38+2*i}:{39+2*i}]")
P(f"global_load_dword {v(V_DT)}, v56, s[46:47]")
P(f"global_load_dword {v(V_DSK)}, v56, s[48:49]")
P(f"buffer_load_dword {v(V_NONCE)}, v7, {srd(SRD_WS)}, 0 offen sc1")
NOPF = "nopf" in OPT
if not NOPF:
    P(f"s_bitcmp1_b32 s{S_V}, 0")
    P(f"s_cselect_b64 s[{S_PFB}:{S_PFB+1}], s[54:55], s[52:53]")
    P(f"s_lshr_b32 s{S_T0}, s{S_V}, 1")
    P(f"s_lshl1_add_u32 s{S_T2}, s{S_W}, s{S_T0}")
    P(f"s_mul_i32 s{S_T0}, s{S_T2}, {7*128}")
    P(f"v_min_u32 v4, 6, {v(V_LANE)}")
    P(f"v_lshl_add_u32 v4, v4, 7, s{S_T0}")
    P(f"global_load_dword {v(V_PF)}, v4, s[{S_PFB}:{S_PFB+1}]")
    P(f"s_mul_i32 s{S_T0}, s{S_W}, 49")
    P(f"s_mul_i32 s{S_T2}, s{S_V}, 12")
    P(f"s_add_u32 s{S_T0}, s{S_T0}, s{S_T2}")
    P(f"v_min_u32 v4, 12, {v(V_LANE)}")
    P(f"v_add_lshl_u32 v245, v4, s{S_T0}, 7")
    if "wdlate" not in OPT:
        P(f"global_load_dword v253, v245, s[56:57]")
P(f"v_cmp_gt_u32 vcc, 32, {v(V_LANE)}")
P(f"v_mul_u32_u24 v4, 37, {v(V_LANE)}")
P(f"v_lshrrev_b32 v4, 9, v4")
P(f"v_cndmask_b32 {v(V_S3)}, v5, {v(V_L16)}, vcc")
P(f"v_mul_u32_u24 v4, {TAB_W-14*272}, v4")
P(f"v_mul_u32_u24 v6, 272, {v(V_LANE)}")
P(f"s_lshl_b32 s{S_T0}, s{S_V}, 2")
P(f"v_add3_u32 {v(V_GW)}, v4, v6, s{S_T0}")
P(f"v_add_u32 {v(V_GX)}, s{S_T0}, {v(V_GW)}")
P(f"s_lshl_b32 s{S_UXM}, s{S_V}, 12")
P(f"s_add_u32 s{S_UXM}, s{S_UXM}, {L_UX+2048}")
P(f"v_and_b32 v4, 48, {v(V_LANE)}")
P(f"v_add3_u32 {v(V_GR)}, v4, {v(V_L16)}, s{S_TAB}")
P(f"v_and_b32 v4, 31, {v(V_LANE)}")
P(f"v_lshrrev_b32 v6, 5, {v(V_LANE)}")
P(f"v_lshl_add_u32 v6, v6, 4, s{S_TAB}")
P(f"v_and_b32 v7, 28, {v(V_LANE)}")
P(f"v_lshl_add_u32 v7, v4, 5, v7")
P(f"v_add_u32 {v(V_TW)}, v6, v7")
P(f"v_mul_u32_u24 v7, {TAB_ROW}, v4")
P(f"v_add_u32 {v(V_TB)}, v6, v7")
P(f"v_min_u32 v4, 20, v4")
P(f"v_mul_u32_u24 v7, {TAB_ROW}, v4")
P(f"v_add_u32 {v(V_TA)}, v6, v7")
P(f"s_lshl2_add_u32 s{S_CI}, s{S_W}, s{S_V}")
P(f"s_lshl_b32 s{S_CI}, s{S_CI}, 8")
P(f"s_add_u32 s{S_CI}, s{S_CI}, {WS_C}")
P(f"v_lshlrev_b32 {v(V_P1)}, 25, {v(V_LANE)}")
P(f"s_mul_i32 s{S_UXO}, s{S_W}, 14336")
P(f"s_mul_i32 s{S_T0}, s{S_V}, 3584")
P(f"s_add_u32 s{S_UXO}, s{S_UXO}, s{S_T0}")
P(f"s_add_u32 s{S_UXO}, s{S_UXO}, {WS_UX}")
P(f"s_lshl_b32 s{S_T0}, s{S_V}, 8")
P(f"s_add_u32 s{S_T0}, s{S_T0}, s{S_W}")
P(f"s_mul_i32 s{S_T0}, s{S_T0}, {FS}")
P(f"s_add_u32 s{S_F1}, s{S_T0}, {WS_F1}")
P(f"v_lshrrev_b32 v4, 2, {v(V_LANE)}")
P(f"v_mul_u32_u24 v4, 3584, v4")
P(f"v_and_b32 v6, 3, {v(V_LANE)}")
P(f"v_lshl_add_u32 v4, v6, 4, v4")
P(f"s_lshl_b32 s{S_T0}, s{S_FB}, 8")
P(f"s_lshl_b32 s{S_T1}, s{S_V}, 6")
P(f"s_add_u32 s{S_T0}, s{S_T0}, s{S_T1}")
P(f"v_add_u32 {v(V_W)}, s{S_T0}, v4")
for k in range(1, 4):
    P(f"v_add_u32 {v(V_W+k)}, {k*(57344-1024)}, {v(V_W)}")
P(f"v_and_b32 v4, 32, {v(V_LANE)}")
P(f"v_lshlrev_b32 v4, 4, v4")
P(f"v_and_b32 v7, 12, {v(V_LANE)}")
P(f"v_lshl_add_u32 v4, v7, 4, v4")
P(f"v_and_b32 v7, 16, {v(V_LANE)}")
P(f"v_lshl_add_u32 v4, v7, 1, v4")
P(f"v_lshl_add_u32 v4, v6, 3, v4")
P(f"v_add_u32 {v(V_TRA)}, s{S_RING}, v4")
P(f"s_mov_b32 s{S_K0}, {L_KC+4096-L_UX}")
P(f"s_movk_i32 s{S_T2}, 128")
P(f"s_bfe_u32 s{S_T0}, s{S_W}, 0x20001")
P(f"s_lshl_b32 s{S_T0}, s{S_T0}, 10")
P(f"s_lshr_b32 s{S_F2}, s{S_T0}, 2")
P(f"s_bfe_u32 s{S_REP}, s{S_W}, 0x30003")
P(f"s_mul_i32 s{S_REP}, s{S_REP}, {FREP}")
P(f"s_add_u32 s{S_REP}, s{S_REP}, {WS_F1}")
P(f"s_add_u32 s{S_T0}, s{S_T0}, s{S_REP}")
P(f"v_lshl_add_u32 {v(V_F1)}, v0, 2, s{S_T0}")
P(f"v_lshrrev_b32 v4, 2, {v(V_LANE)}")
P(f"v_add_u32 v4, s{S_T1}, v4")
P(f"v_mul_u32_u24 v7, 14336, v4")
P(f"v_lshrrev_b32 v4, 4, {v(V_LANE)}")
P(f"v_xor_b32 v6, v6, v4")
P(f"v_lshl_add_u32 v7, v6, 4, v7")
P(f"s_lshl_b32 s{S_T0}, s{S_PR}, 6")
P(f"s_add_u32 s{S_T0}, s{S_T0}, {WS_UX}")
P(f"v_add_u32 {v(V_UXL)}, s{S_T0}, v7")
P(f"v_bfe_u32 v6, {v(V_LANE)}, 1, 2")
P(f"v_mul_u32_u24 v6, {CS}, v6")
P(f"v_and_b32 v7, 16, {v(V_L16)}")
P(f"v_add3_u32 v6, v6, v7, s{S_K0}")
P(f"v_lshlrev_b32 v7, 4, v0")
P(f"v_cmp_gt_u32 vcc, s{S_T2}, v0")
P(f"v_mov_b32 v56, 0")
P(f"v_mov_b32 v57, 0")
P(f"v_cndmask_b32 v6, v6, v7, vcc")
P(f"v_mov_b32 v58, 0")
P(f"v_mov_b32 v59, 0")
P(f"v_add_u32 v6, {L_UX}, v6")
P(f"ds_write_b128 v6, v[56:59]")
P(f"v_lshlrev_b32 v4, 3, v0")
P(f"v_sub_u32 v4, 2047, v4")
P(f"v_cvt_f32_i32 v4, v4")
P(f"v_mov_b32 v60, 1028")
P(f"v_cmp_eq_u32 vcc, 0, v0")
for e in range(0, 10, 2):
    P(f"v_add_f32 v6, {f32(-float(e))}, v4")
    if e < 8:
        P(f"v_add_f32 v7, {f32(-float(e+1))}, v4")
    P(f"v_cvt_pk_bf16_f32 v6, v6, v7")
    for h in range(2):
        if e + h > 8:
            continue
        d = GA + e + h
        if h == 0:
            P(f"v_lshlrev_b32 v7, 16, v6")
        else:
            P(f"v_and_b32 v7, 0xffff0000, v6")
        P(f"v_cvt_u32_f32 v7, v7")
        if e + h < 4:
            P(f"v_cndmask_b32 v7, v7, v60, vcc")
        P(f"v_lshrrev_b32 {v(d)}, 5, v7")
        P(f"v_add_lshl_u32 {v(d)}, {v(d)}, v7, 2")
P(f"v_mov_b32 v4, 255")
P(f"v_cmp_eq_u32 s[{S_M255}:{S_M255+1}], v4, v0")
P(f"v_and_b32 v4, 15, {v(V_LANE)}")
P(f"v_lshrrev_b32 v5, 4, {v(V_LANE)}")
P(f"v_lshl_add_u32 v6, v5, 3, v4")
P(f"v_sub_u32 v6, 39, v6")
P(f"v_and_b32 v7, 1, v6")
P(f"v_mul_u32_u24 v7, {CS-2}, v7")
P(f"v_lshl_add_u32 v6, v6, 1, v7")
P(f"s_lshr_b32 s{S_T0}, s{S_V}, 1")
P(f"s_andn2_b32 s{S_T3}, 1, s{S_V}")
P(f"s_mul_i32 s{S_T2}, s{S_T0}, {2*CS}")
P(f"s_lshl_b32 s{S_T1}, s{S_T3}, 8")
P(f"s_add_u32 s{S_T2}, s{S_T2}, s{S_T1}")
P(f"s_add_u32 s{S_T2}, s{S_T2}, {L_KC}")
P(f"v_add_u32 {v(V_KA+3)}, s{S_T2}, v6")
for k in range(3):
    P(f"v_add_u32 {v(V_KA+k)}, {64*(48-16*k)}, {v(V_KA+3)}")
P(f"v_lshlrev_b32 v6, 1, v4")
P(f"v_sub_u32 v6, v6, v5")
P(f"s_lshl4_add_u32 s{S_T1}, s{S_T3}, 17")
P(f"v_add_u32 v6, s{S_T1}, v6")
P(f"s_mov_b32 s{S_T2}, {L_UX}")
for rr in range(4):
    P(f"v_bfe_u32 v7, v6, 2, 2")
    P(f"v_xor_b32 v7, s{S_T0}, v7")
    P(f"v_lshl_add_u32 v7, v6, 2, v7")
    P(f"v_lshl_add_u32 {v(V_UA+rr)}, v7, 4, s{S_T2}")
    if rr < 3:
        P(f"v_subrev_u32 v6, 4, v6")
P(f"v_lshrrev_b32 v6, 1, v5")
P(f"v_lshl_add_u32 v6, v4, 1, v6")
P(f"s_lshl_b32 s{S_T2}, s{S_V}, 11")
P(f"s_add_u32 s{S_T2}, s{S_T2}, {L_UX+2048}")
P(f"v_lshl_add_u32 v6, v6, 6, s{S_T2}")
P(f"v_bfe_u32 v4, v4, 1, 2")
P(f"v_and_b32 v5, 1, v5")
P(f"v_lshl_add_u32 v7, v4, 4, v6")
P(f"v_lshl_add_u32 {v(V_EU)}, v5, 3, v7")
P(f"v_xor_b32 {v(V_EU1)}, 16, {v(V_EU)}")
P(f"v_or_b32 v5, 2, v5")
P(f"v_xor_b32 v4, v4, v5")
P(f"v_lshl_add_u32 {v(V_EXP)}, v4, 4, v6")
P(f"s_mul_i32 s{S_ACTW}, s{S_V}, 7168")
P(f"v_add_u32 {v(V_EXR)}, s{S_ACTW}, {v(V_L16)}")
P(f"v_lshlrev_b32 {v(V_EXW)}, 4, v0")
P(f"s_mul_i32 s{S_PST}, s{S_PR}, {PROW}")
P(f"s_add_u32 s{S_PST}, s{S_PST}, {WS_P}")
lanes_reg(P, V_FL2, 4, 10)
lanes_reg(P, V_PM, 2, 12)
P(f"s_lshl1_add_u32 s{S_T0}, s{S_V}, s{S_FH}")
P(f"s_lshl_b32 s{S_T0}, s{S_T0}, 12")
P(f"s_add_u32 s{S_F2}, s{S_F2}, s{S_T0}")
P(f"s_add_u32 s{S_F2}, s{S_F2}, {WS_C}")
P(f"s_lshr_b32 s{S_T0}, s{S_TB}, 2")
P(f"s_bfe_u32 s{S_REP}, s{S_W}, 0x20003")
P(f"s_lshl3_add_u32 s{S_T0}, s{S_T0}, s{S_REP}")
P(f"s_lshl2_add_u32 s{S_T0}, s{S_T0}, s{S_V}")
P(f"s_lshl_b32 s{S_T0}, s{S_T0}, 8")
P(f"s_add_u32 s{S_PA}, s{S_T0}, {WS_C}")
P(f"s_lshl2_add_u32 s{S_T2}, s{S_DB}, s{S_V}")
P(f"s_lshl2_add_u32 s{S_T3}, s{S_T2}, s{S_REP}")
P(f"s_lshl_b32 s{S_T3}, s{S_T3}, 8")
P(f"s_add_u32 s{S_P4}, s{S_T3}, {WS_C + 896*256}")
P(f"s_mul_i32 s{S_T2}, s{S_T2}, {14*4096}")
P(f"s_add_u32 s{S_WFB}, s{S_T2}, {WS_WF}")
P(f"s_mul_i32 s{S_T1}, s{S_V}, {56*PROW}")
P(f"s_lshl_b32 s{S_T0}, s{S_TB}, 8")
P(f"s_add_u32 s{S_T0}, s{S_T0}, s{S_T1}")
P(f"s_add_u32 s{S_AB}, s{S_T0}, {WS_P}")

XF = 56
DF = 72
SA = 88
if "fine" in OPT: stamp("setup done")
P(f"s_mov_b32 s{S_K0}, {f32(1.0/448)}")
P(f"v_mov_b32 v4, {f32(1e-5)}")
P("s_mov_b32 exec_hi, 0x00ffffff")
for r in range(2):
    for i in range(4):
        P(f"v_lshlrev_b32 {v(XF+8*r+2*i)}, 16, {v(XR+4*r+i)}")
        P(f"v_and_b32 {v(XF+8*r+2*i+1)}, 0xffff0000, {v(XR+4*r+i)}")
    P(f"v_readfirstlane_b32 s{(S_A, S_B)[r]}, {v(XF+8*r)}")
stamp("x arrived")
if "wdlate" in OPT and not NOPF:
    P(f"global_load_dword v253, v245, s[56:57]")
for i in range(4):
    P(f"ds_write2_b32 {v(V_GX)}, {v(XR+i)}, {v(XR+4+i)} offset0:{16*i+8} offset1:{16*i+9}")
for r, sm in ((0, S_A), (1, S_B)):
    for i in range(4):
        P(f"v_pk_add_f32 {v(XF+8*r+2*i,2)}, {v(XF+8*r+2*i,2)}, s[{sm}:{sm+1}] op_sel_hi:[1,0] neg_lo:[0,1] neg_hi:[0,1]")
for r in range(2):
    b = XF + 8 * r
    t = DF + 8 * r
    P(f"v_pk_add_f32 {v(t,2)}, {v(b,2)}, {v(b+2,2)}")
    P(f"v_pk_mul_f32 {v(t+2,2)}, {v(b,2)}, {v(b,2)}")
    P(f"v_pk_add_f32 {v(t,2)}, {v(t,2)}, {v(b+4,2)}")
    for i in range(1, 4):
        P(f"v_pk_fma_f32 {v(t+2,2)}, {v(b+2*i,2)}, {v(b+2*i,2)}, {v(t+2,2)}")
    P(f"v_pk_add_f32 {v(t,2)}, {v(t,2)}, {v(b+6,2)}")
for r in range(2):
    t = DF + 8 * r
    P(f"v_add_f32 {v(SA+r)}, {v(t)}, {v(t+1)}")
    P(f"v_add_f32 {v(SA+2+r)}, {v(t+2)}, {v(t+3)}")


def wave_sum(p, regs):
    for mod in ("row_shr:1", "row_shr:2", "row_shr:4", "row_shr:8"):
        for r in regs:
            p(f"v_add_f32_dpp {v(r)}, {v(r)}, {v(r)} {mod} row_mask:0xf bank_mask:0xf bound_ctrl:0")
    for r in regs:
        p(f"v_add_f32_dpp {v(r)}, {v(r)}, {v(r)} row_bcast:15 row_mask:0xa bank_mask:0xf")
    for r in regs:
        p(f"v_add_f32_dpp {v(r)}, {v(r)}, {v(r)} row_bcast:31 row_mask:0xc bank_mask:0xf")


wave_sum(P, [SA, SA + 2, SA + 1, SA + 3])
P(f"v_pk_mul_f32 {v(SA,2)}, {v(SA,2)}, s[{S_K0}:{S_K0+1}] op_sel_hi:[1,0]")
P(f"v_pk_fma_f32 {v(SA+2,2)}, {v(SA+2,2)}, s[{S_K0}:{S_K0+1}], v[4:5] op_sel_hi:[1,0,0]")
P(f"v_pk_fma_f32 {v(SA+2,2)}, {v(SA,2)}, {v(SA,2)}, {v(SA+2,2)} neg_lo:[1,0,0] neg_hi:[1,0,0]")
for r in range(2):
    P(f"v_max_f32 {v(SA+2+r)}, {v(SA+2+r)}, v4")
for r in range(2):
    P(f"v_rsq_f32 {v(SA+2+r)}, {v(SA+2+r)}")
P(f"v_pk_mul_f32 {v(SA,2)}, {v(SA,2)}, {v(SA+2,2)} neg_lo:[1,0] neg_hi:[1,0]")
for r, sm in ((0, S_A), (1, S_B)):
    P(f"v_readlane_b32 s{sm}, {v(SA+2+r)}, 55")
for r, sm in ((0, S_A), (1, S_B)):
    P(f"v_readlane_b32 s{sm+1}, {v(SA+r)}, 55")
for r, sm in ((0, S_A), (1, S_B)):
    for i in range(4):
        P(f"v_pk_fma_f32 {v(XF+8*r+2*i,2)}, {v(XF+8*r+2*i,2)}, s[{sm}:{sm+1}], s[{sm}:{sm+1}] op_sel:[0,0,1] op_sel_hi:[1,0,1]")
for j in range(8):
    P(f"v_cvt_pk_bf16_f32 {v(DF+j)}, {v(XF+j)}, {v(XF+8+j)}")
for i in range(4):
    P(f"ds_write2_b32 {v(V_GW)}, {v(DF+2*i)}, {v(DF+2*i+1)} offset0:{16*i} offset1:{16*i+4}")
P("s_mov_b64 exec, -1")
if "fine" in OPT: stamp("ln1 math")
P("s_waitcnt lgkmcnt(0)")
P("s_barrier")
if "fine" in OPT: stamp("ln1 barrier")
UB = 112
for j in range(4):
    P(f"ds_read_b128 {v(UB+4*j,4)}, {v(V_GR)} offset:{1088*j}")
P(f"s_lshl_b32 s{S_T0}, s{S_V}, 3")
P(f"s_and_b32 s{S_T0}, s{S_T0}, 16")
P(f"s_mov_b32 m0, s{S_TAB}")
P("s_waitcnt lgkmcnt(0)")
for j in range(4):
    P(f"buffer_store_dwordx4 {v(UB+4*j,4)}, {v(V_L16 if j < 3 else V_S3)}, {srd(SRD_WS)}, s{S_UXO} offen offset:{1024*j} sc1", tok="ux")
P(f"s_cmp_lt_u32 s{S_W}, 224")
P("s_cbranch_scc1 L_main")


def nonce_init():
    q = sub()
    q(f"v_readfirstlane_b32 s{S_NONCE}, {v(V_NONCE)}")
    q(f"s_mul_i32 s{S_NONCE}, s{S_NONCE}, 1664525")
    q(f"s_add_u32 s{S_NONCE}, s{S_NONCE}, 1013904223")
    q(f"v_mov_b32 {v(V_NONCE)}, s{S_NONCE}")
    q(f"buffer_store_dword {v(V_NONCE)}, {v(V_P1)}, {srd(SRD_WS)}, s{S_CI} offen sc1", tok="ux")
    q(f"s_add_u32 s{S_E28}, s{S_NONCE}, 28")
    q(f"s_add_u32 s{S_E14}, s{S_NONCE}, 14")
    return q.ins


P.raw(f"s_waitcnt vmcnt({4 if NOPF else 6})")
for x in nonce_init():
    P.raw(x.text)
P.raw("s_waitcnt vmcnt(0)")
P.raw(f"buffer_atomic_swap {v(V_NONCE)}, {v(V_FLG)}, {srd(SRD_WS)}, s{S_F1} offen")
P.raw("s_branch L_spare")
P("L_main:")
stamp("ln1 done")


def wfrag(m, ks):
    return 8 * ks + 4 * m


def slotoff(slot):
    return (slot % 8) * 1024 + (slot // 8) * 32768


def w_dma(kq, m, slot, tok):
    q = sub()
    q(f"s_add_u32 m0, s{S_RING}, {slotoff(slot)}")
    if m == 0:
        q(f"s_mov_b32 s{S_WOFF}, {kq*4*57344}")
    for k in range(4):
        o = f" offset:{1024*k}" if k else ""
        q(f"buffer_load_dwordx4 {v(V_W+k)}, {srd(SRD_WU if m else SRD_WG)}, s{S_WOFF} offen{o} lds", tok=tok)
    return q.ins


def w_tr(kq, m, slot, tok=None):
    q = sub()
    for k in range(4):
        for h in range(2):
            q(f"ds_read_b64_tr_b16 {acc(wfrag(m,4*kq+k)+2*h,2)}, {v(V_TRA)} offset:{slotoff(slot+k)+256*h}", tok=tok)
    return q.ins


def batch_dma(b, tok):
    return [w_dma(2 * b + i // 2, i % 2, 4 * i, f"{tok}_{i}") for i in range(4)]


def batch_tr(b):
    o = []
    for i in range(4):
        o += w_tr(2 * b + i // 2, i % 2, 4 * i, tok=f"t{b}_{i}")
    return o


def singles(groups):
    out, cur = [], []
    for grp in groups:
        for i in grp:
            cur.append(i)
            if i.cls == "vmem":
                out.append(cur)
                cur = []
    if cur:
        out[-1] += cur
    return out


def pin_vm(g, start, groups, stride):
    k = start
    for u in singles(groups):
        g.at(int(k), u)
        k += stride
    return int(k)


def w_dma1(b, n, tok):
    i, k = n // 4, n % 4
    q = sub()
    q(f"s_add_u32 m0, s{S_RING}, {slotoff(4*i)}")
    if n % 8 == 0:
        q(f"s_mov_b32 s{S_WOFF}, {(2*b+i//2)*4*57344}")
    o = f" offset:{1024*k}" if k else ""
    q(f"buffer_load_dwordx4 {v(V_W+k)}, {srd(SRD_WU if i % 2 else SRD_WG)}, s{S_WOFF} offen{o} lds", tok=f"{tok}_{i}")
    q(f"s_mov_b32 m0, s{S_TAB}")
    return q.ins


KD = 176
FR = 192
FR = 112


def kgen_head(rd):
    q = sub()
    A0 = 48 + 0
    CC = 50
    unp = (lambda d, s: q(f"v_lshlrev_b32 {v(d)}, 16, {v(s)}")) if rd == 0 else (lambda d, s: q(f"v_and_b32 {v(d)}, 0xffff0000, {v(s)}"))
    for i in range(4):
        unp(48 + i, PR + i)
    q(f"v_mul_f32 v48, {f32(LOG2E)}, v48")
    q(f"v_exp_f32 v48, v48")
    q(f"v_mul_f32 v49, v49, {v(V_DT)}")
    q(f"v_cvt_pk_bf16_f32 v48, v48, v48")
    q(f"v_mul_f32 v49, 0.15915494, v49")
    q(f"v_and_b32 v48, 0xffff0000, v48")
    q(f"v_mul_f32 v50, v50, {v(V_DT)}")
    q(f"v_mul_f32 v48, v48, {v(V_DT)}")
    q(f"v_mul_f32 v51, v51, {v(V_DT)}")
    q(f"v_mul_f32 v48, {f32(-LOG2E)}, v48")
    q(f"v_add_f32 v50, v50, v50")
    q(f"v_add_f32 v51, v51, v51")
    for (z, pos) in ((52, 1), (54, 16), (56, 256)):
        if pos == 1:
            q(f"v_exp_f32 v4, v48")
            q(f"v_fract_f32 v5, v49")
        else:
            q(f"v_mul_f32 v4, {f32(float(pos))}, v48")
            q(f"v_mul_f32 v5, {f32(float(pos))}, v49")
            q(f"v_exp_f32 v4, v4")
            q(f"v_fract_f32 v5, v5")
        q(f"v_cos_f32 {v(z)}, v5")
        q(f"v_sin_f32 {v(z+1)}, v5")
        q(f"v_mul_f32 {v(z)}, {v(z)}, v4")
        q(f"v_mul_f32 {v(z+1)}, {v(z+1)}, v4")
    return q.ins


def kgen_body(rd):
    names = {"G0": 50, "E1": 52, "E16": 54, "E256": 56}
    nxt = [58]
    chunks = []
    cur = sub()
    wr = sub()
    pk = [0]
    PK = 192

    def new(n):
        names[n] = nxt[0]
        nxt[0] += 2
        assert nxt[0] <= 104
        return names[n]

    def out(kind, row, z):
        t = PK + pk[0] % 16
        pk[0] += 1
        if kind == "B":
            cur(f"v_cvt_pk_bf16_f32 {v(t)}, {v(z)}, {v(z+1)}")
            wr(f"ds_write_addtid_b32 {v(t)} offset:{row*TAB_ROW}")
        else:
            cur(f"v_cvt_pk_bf16_f32 {v(t)}, {v(z)}, -{v(z+1)}")
            wr(f"ds_write_addtid_b32 {v(t)} offset:{(32+row)*TAB_ROW}")
        if len(wr.ins) >= GROUP:
            flush()

    def flush():
        nonlocal cur, wr
        chunks.append(cur.ins + wr.ins)
        cur = sub()
        wr = sub()

    sc = [0]

    def mul(n, a, b, kind=None, row=None):
        if n is None:
            z = 104 + 2 * (sc[0] % 4)
            sc[0] += 1
        else:
            z = new(n)
        cmul(cur, z, names[a], names[b])
        if kind:
            out(kind, row, z)

    GROUP = int(OPT.get("kgroup", 6))
    t = PK + pk[0]
    pk[0] += 1
    cur(f"v_mov_b32 {v(t)}, 0x3f80")
    wr(f"ds_write_addtid_b32 {v(t)}")
    out("A", 0, names["G0"])
    out("B", 2, names["E16"])
    mul("E2", "E1", "E1")
    mul("E32", "E16", "E16", "B", 4)
    mul("G1", "G0", "E256", "A", 8)
    mul("E512", "E256", "E256")
    mul("a1", "G0", "E1", "A", 1)
    mul("E4", "E2", "E2")
    mul("E64", "E32", "E32", "B", 8)
    mul("E48", "E32", "E16", "B", 6)
    mul("G2", "G0", "E512", "A", 10)
    mul("G3", "G1", "E512", "A", 11)
    mul("E1024", "E512", "E512")
    mul("E8", "E4", "E4", "B", 1)
    mul("a2", "G0", "E2", "A", 2)
    mul("a3", "a1", "E2", "A", 3)
    mul("b2", "G1", "E2", "A", 9)
    mul("E128", "E64", "E64", "B", 16)
    mul("G4", "G0", "E1024", "A", 16)
    mul("E24", "E16", "E8", "B", 3)
    mul("E40", "E32", "E8", "B", 5)
    mul("E56", "E48", "E8", "B", 7)
    mul("E192", "E128", "E64", "B", 24)
    for row, a in ((4, "G0"), (5, "a1"), (6, "a2"), (7, "a3"), (12, "G1"), (13, "b2"), (14, "G2"), (15, "G3")):
        mul(None, a, "E4", "A", row)
    for row, a in ((17, "G1"), (18, "G2"), (19, "G3"), (20, "G4")):
        mul(None, a, "E1024", "A", row)
    for b2, nb in ((1, "E64"), (2, "E128"), (3, "E192")):
        for b1 in range(1, 8):
            mul(None, f"E{8*b1}", nb, "B", 8 * b2 + b1)
    if wr.ins or cur.ins:
        flush()
    return chunks


def kgen_reads():
    q = sub()
    for s in range(8):
        q(f"ds_read_b128 {v(FR+8*s,4)}, {v(V_TA)} offset:{32*TAB_ROW+32*s}")
        q(f"ds_read_b128 {v(FR+8*s+4,4)}, {v(V_TB)} offset:{32*s}")
    return q.ins


def kgen_mfma(rd):
    q = sub()
    for s in range(8):
        c = "0" if (rd == 0 and s == 0) else v(KD, 16)
        q(f"v_mfma_f32_32x32x16_bf16 {v(KD,16)}, {v(FR+8*s,4)}, {v(FR+8*s+4,4)}, {c}")
    return q.ins


P(f"v_lshrrev_b32 v4, s{S_T0}, {v(V_DT)}")
P(f"v_lshlrev_b32 v4, 16, v4")
P(f"v_mul_f32 v4, {f32(LOG2E)}, v4")
P(f"v_exp_f32 v4, v4")
P(f"v_readfirstlane_b32 s{S_DSK}, {v(V_DSK)}")
round_bf16(P, V_DT, 4)
P.add(kgen_head(0))
P.add(nonce_init())
ch = kgen_body(0)
fl = sub()
fl.wait("ux")
setflag(fl, S_F1)
nd = 0
FLAGAT = int(OPT.get("flagat", 6))
DMA0 = int(OPT.get("dma0", 3))
for i, c in enumerate(ch):
    P.add(c)
    if i == FLAGAT:
        if "fine" in OPT: stamp("pre flag1")
        P.add(fl.ins)
        if "fine" in OPT: stamp("post flag1")
    elif i >= DMA0:
        P.add(w_dma1(0, nd, "w1"))
        nd += 1
P.add(kgen_reads())
g = Gaps(kgen_mfma(0), 7)
for k in (0, 2, 4, 6):
    g.at(k, w_dma1(0, nd, "w1"))
    nd += 1
g.fill(kgen_head(1))
P.add(g.out())
stamp("kgen r0")
ch = kgen_body(1)
POLLAT = int(OPT.get("pollat", 3))
for i, c in enumerate(ch):
    P.add(c)
    if i == POLLAT:
        P.add(poll_issue("F1", 6))
    elif nd < 16:
        P.add(w_dma1(0, nd, "w1"))
        nd += 1
assert nd == 16
P.add(kgen_reads())
if "fine" in OPT: stamp("pre poll1")
P.add(poll_check("F1", 6))
if "fine" in OPT: stamp("post poll1")
g = Gaps(kgen_mfma(1), 6)
P(f"s_mov_b32 m0, s{S_UXM}")
for j in range(4):
    q = sub()
    q(f"s_mov_b32 s{S_T0}, {j*(16*14336-1024)}")
    o = f" offset:{1024*j}" if j else ""
    q(f"buffer_load_dwordx4 {v(V_UXL)}, {srd(SRD_WS)}, s{S_T0} offen{o} sc1 lds", tok="uxl")
    if j == 0:
        P.add(q.ins)
    else:
        g.at(2 * j - 2, q.ins)
tr1 = batch_tr(0)
P.wait("w1_2")
for k in range(8):
    g.at(k, tr1[3 * k:3 * k + 3])
P.add(g.out())
stamp("kgen r1")
b2 = batch_dma(1, "w2")
b2[0] = waitq("t0_0") + b2[0]
b2[3] = waitq("t0_3") + b2[3]
b2 = singles(b2)
P.add(b2.pop(0))
P(f"s_lshl_b32 s{S_C}, s{S_DSK}, 16")
P(f"s_and_b32 s{S_D}, s{S_DSK}, 0xffff0000")
P(f"v_add_u32 v7, {2*CS}, {v(V_EXW)}")
P(f"v_mov_b32 {v(V_NONCE)}, 1")
toff = {0: (0, 0), 1: (0, 1), 2: (0, 2), 3: (0, 3), 4: (1, 0), 5: (1, 2), 6: (2, 0), 7: (3, 0), 8: (4, 0), 9: (5, 0), 10: (6, 0), 11: (7, 0)}
P(f"ds_write2_b32 {v(V_TW)}, {v(KD)}, {v(KD+1)} offset0:0 offset1:1")
P(f"ds_write2_b32 {v(V_TW)}, {v(KD+2)}, {v(KD+3)} offset0:2 offset1:3")
for j in range(4, 12):
    qq, r = toff[j]
    P(f"ds_write_b32 {v(V_TW)}, {v(KD+j)} offset:{4*(r + 264*qq)}")
P.add(b2.pop(0))
P("s_waitcnt lgkmcnt(0)")
P("s_barrier")
if "fine" in OPT: stamp("T barrier")
EG = 208
for c2 in range(2):
    for e in range(9):
        P(f"ds_read2st64_b32 {v(EG+18*c2+2*e,2)}, {v(GA+e)} offset0:{114*c2} offset1:{114*c2+57}", tok=f"g{c2}")
P.add(b2.pop(0))
P.add(b2.pop(0))
KO = 192
VB = 48


def bfrag(rr, e):
    return VB + 32 * rr + 4 * e


def b_loads(lo, hi):
    z = sub()
    for rr in range(4):
        for a in range(lo, hi):
            z(f"ds_read_b128 {v(bfrag(rr,a),4)}, {v(V_UA+rr)} offset:{2048*a}")
    return z.ins


for c2 in range(2):
    b = EG + 18 * c2
    P.wait(f"g{c2}")
    for e in range(9):
        P(f"v_add_f32 {v(b+2*e)}, {v(b+2*e)}, {v(b+2*e+1)}")
    P(f"v_cndmask_b32 {v(b+16)}, {v(b+16)}, 0, s[{S_M255}:{S_M255+1}]")
    for s_ in range(2):
        o = KO + 8 * c2 + 4 * s_
        for i in range(4):
            P(f"v_cvt_pk_bf16_f32 {v(o+i)}, {v(b+2*(s_+2*i))}, {v(b+2*(s_+2*i+1))}")
    for s_ in range(2):
        P(f"ds_write_b128 {v(7 if c2 else V_EXW)}, {v(KO+8*c2+4*s_,4)} offset:{L_KC+s_*CS}", tok="kc")
    P.add(b2.pop(0))
if "dumpk" in OPT:
    P(f"s_lshl_b32 s{S_T0}, s{S_W}, 13")
    P(f"s_add_u32 s{S_T0}, s{S_T0}, {WS_DBG}")
    P(f"buffer_store_dwordx4 {v(KO,4)}, {v(V_EXW)}, {srd(SRD_WS)}, s{S_T0} offen")
    P(f"s_add_u32 s{S_T0}, s{S_T0}, 4096")
    P(f"buffer_store_dwordx4 {v(KO+8,4)}, {v(V_EXW)}, {srd(SRD_WS)}, s{S_T0} offen")
stamp("expanded")
P.wait("uxl")
P.wait("kc")
P("s_barrier")
stamp("conv start")

CA = [176, 192]
ET = 208


def afrag(rr, a):
    return 128 + 32 * rr + 4 * a


def a_loads(rr, lo, hi):
    z = sub()
    for a in range(lo, hi):
        k = a // 2
        off = 16 * (11 - rr - 8 * (a - 2 * k))
        z(f"ds_read2_b32 {acc(afrag(rr,a),2)}, {v(V_KA+k)} offset0:{off} offset1:{off+1}")
        z(f"ds_read2_b32 {acc(afrag(rr,a)+2,2)}, {v(V_KA+k)} offset0:{off+2} offset1:{off+3}")
    return z.ins


def conv_mfmas(gen):
    m = sub()
    first = set()
    na = 4 if gen == 0 else 8
    order = []
    for rr in range(4):
        pairs = [(a, e) for a in range(na) for e in range(na) if 4 * gen <= a + e < 4 * gen + 4]
        pairs.sort(key=lambda ae: (max(ae), ae))
        order += [(rr, a, e) for a, e in pairs]
    if gen == 1:
        order.sort(key=lambda t: (0 if max(t[1], t[2]) < 4 else 1))
    for rr, a, e in order:
        c = a + e - 4 * gen
        d = CA[gen] + 4 * c
        cc = v(d, 4) if c in first else "0"
        first.add(c)
        m(f"v_mfma_f32_16x16x32_bf16 {v(d,4)}, {acc(afrag(rr,a),4)}, {v(bfrag(rr,e),4)}, {cc}")
    return m.ins


UU, XX, YY, TT, WW, HO = ET, ET + 4, ET + 8, ET + 24, ET + 32, ET + 36


def conv_pre(gen):
    q = sub()
    q(f"ds_read_b64 {v(UU,2)}, {v(V_EU)} offset:{8192*gen}")
    q(f"ds_read_b64 {v(UU+2,2)}, {v(V_EU1)} offset:{8192*gen}")
    q(f"ds_read_b128 {v(XX,4)}, {v(V_EXP)} offset:{8192*gen}")
    r = sub()
    if "exact" not in OPT:
        for j in range(4):
            r(f"v_lshlrev_b32 {v(TT+j)}, 16, {v(XX+j)}")
            r(f"v_and_b32 {v(TT+4+j)}, 0xffff0000, {v(XX+j)}")
        for c2, sm in ((0, S_C), (1, S_D)):
            for i in range(2):
                r(f"v_lshlrev_b32 {v(WW)}, 16, {v(UU+2*c2+i)}")
                r(f"v_and_b32 {v(WW+1)}, 0xffff0000, {v(UU+2*c2+i)}")
                r(f"v_fmac_f32 {v(TT+4*c2+2*i)}, s{sm}, {v(WW)}")
                r(f"v_fmac_f32 {v(TT+4*c2+2*i+1)}, s{sm}, {v(WW+1)}")
        return q.ins, r.ins
    for c2 in range(2):
        for i in range(2):
            r(f"v_lshlrev_b32 {v(TT+4*c2+2*i)}, 16, {v(UU+2*c2+i)}")
            r(f"v_and_b32 {v(TT+4*c2+2*i+1)}, 0xffff0000, {v(UU+2*c2+i)}")
    for c2, sm in ((0, S_C), (1, S_D)):
        for i in range(4):
            r(f"v_mul_f32 {v(TT+4*c2+i)}, s{sm}, {v(TT+4*c2+i)}")
    for j in range(4):
        r(f"v_cvt_pk_bf16_f32 {v(WW+j)}, {v(TT+j)}, {v(TT+4+j)}")
    for j in range(4):
        r(f"v_lshlrev_b32 {v(TT+2*j)}, 16, {v(WW+j)}")
        r(f"v_and_b32 {v(TT+2*j+1)}, 0xffff0000, {v(WW+j)}")
    return q.ins, r.ins


def conv_xchg(gen):
    w_, b_, r_ = sub(), sub(), sub()
    for c in range(4):
        w_(f"ds_write_b128 {v(V_EXW)}, {v(CA[gen]+4*c,4)} offset:{(4096 if gen else 7168)*c}", tok=f"xw{gen}")
    b_.wait(f"xw{gen}")
    b_("s_barrier")
    for w in range(4):
        r_(f"ds_read_b128 {v(YY+4*w,4)}, {v(V_EXR)} offset:{1024*w}", tok=f"xr{gen}")
    return w_.ins, b_.ins, r_.ins


def conv_post(gen):
    q = sub()
    h = HO + 4 * gen
    if "exact" not in OPT:
        for c2 in range(2):
            for i in range(2):
                q(f"v_pk_add_f32 {v(TT+4*c2+2*i,2)}, {v(TT+4*c2+2*i,2)}, {v(YY+8*c2+2*i,2)}")
            for i in range(2):
                q(f"v_pk_add_f32 {v(TT+4*c2+2*i,2)}, {v(TT+4*c2+2*i,2)}, {v(YY+8*c2+4+2*i,2)}")
        for j in range(4):
            q(f"v_cvt_pk_bf16_f32 {v(h+j)}, {v(TT+j)}, {v(TT+4+j)}")
        q(f"buffer_store_dwordx4 {v(h,4)}, {v(V_EXW)}, {srd(SRD_WS)}, s{S_PST} offen sc1", tok=f"h{gen}")
        return q.ins
    for c2 in range(2):
        for i in range(2):
            q(f"v_pk_add_f32 {v(YY+8*c2+2*i,2)}, {v(YY+8*c2+2*i,2)}, {v(YY+8*c2+4+2*i,2)}")
    for j in range(4):
        q(f"v_cvt_pk_bf16_f32 {v(WW+j)}, {v(YY+j)}, {v(YY+8+j)}")
    for j in range(4):
        q(f"v_lshlrev_b32 {v(YY+2*j)}, 16, {v(WW+j)}")
        q(f"v_and_b32 {v(YY+2*j+1)}, 0xffff0000, {v(WW+j)}")
    for j in range(4):
        q(f"v_pk_add_f32 {v(YY+2*j,2)}, {v(YY+2*j,2)}, {v(TT+2*j,2)}")
    for j in range(4):
        q(f"v_cvt_pk_bf16_f32 {v(WW+j)}, {v(YY+2*j)}, {v(YY+2*j+1)}")
    for j in range(4):
        q(f"v_lshlrev_b32 {v(YY+8+2*j)}, 16, {v(XX+j)}")
        q(f"v_and_b32 {v(YY+8+2*j+1)}, 0xffff0000, {v(XX+j)}")
    for j in range(4):
        q(f"v_lshlrev_b32 {v(YY+2*j)}, 16, {v(WW+j)}")
        q(f"v_and_b32 {v(YY+2*j+1)}, 0xffff0000, {v(WW+j)}")
    for j in range(4):
        q(f"v_pk_add_f32 {v(YY+2*j,2)}, {v(YY+2*j,2)}, {v(YY+8+2*j,2)}")
    h = HO + 4 * gen
    for j in range(4):
        q(f"v_cvt_pk_bf16_f32 {v(h+j)}, {v(YY+2*j)}, {v(YY+2*j+1)}")
    q(f"buffer_store_dwordx4 {v(h,4)}, {v(V_EXW)}, {srd(SRD_WS)}, s{S_PST} offen sc1", tok=f"h{gen}")
    return q.ins


V_A = 17
ad1 = sub()
ad1(f"v_bfe_u32 v4, {v(V_LANE)}, 3, 1")
ad1(f"v_bfe_u32 v5, {v(V_LANE)}, 4, 1")
ad1(f"v_lshl_add_u32 v4, v4, 1, v5")
ad1(f"v_lshrrev_b32 v5, 5, {v(V_LANE)}")
ad1(f"v_lshl_add_u32 v4, v5, 2, v4")
ad1(f"v_mul_u32_u24 v4, {PROW}, v4")
ad1(f"v_and_b32 v5, 0x70, {v(V_L16)}")
ad1(f"v_add3_u32 {v(V_A)}, v4, v5, s{S_AB}")
for k in range(1, 4):
    ad1(f"v_add_u32 {v(V_A+k)}, {k*(8*PROW-1024)}, {v(V_A)}")


def act_dma(J):
    o = []
    gen, T = J >> 1, J & 1
    for kk in range(2):
        q = sub()
        q(f"s_add_u32 m0, s{S_ACTW}, {L_ACT[gen] + T*28672 + kk*4096}")
        q(f"s_mov_b32 s{S_WOFF}, {kk*32*PROW + PGEN*gen + 128*T}")
        for k in range(4 - kk):
            of = f" offset:{1024*k}" if k else ""
            q(f"buffer_load_dwordx4 {v(V_A+k)}, {srd(SRD_WS)}, s{S_WOFF} offen{of} sc1 lds", tok=f"act{J}")
        o.append(q.ins)
    return o


V_BR, V_S2, V_HST, V_BR2 = 21, 22, 24, 26
V_LF, V_LR = 28, 29
V_RES = 27
V_OST, V_RR, V_RW, V_HL = 45, 41, 42, 44
SEL = 176
CSA = [180, 184]
ad = sub()
ad(f"s_add_u32 s{S_PA}, s{S_PA}, 0x8000")
ad(f"v_and_b32 v4, 31, {v(V_LANE)}")
ad(f"v_lshrrev_b32 v5, 5, {v(V_LANE)}")
ad(f"v_lshlrev_b32 v5, 9, v5")
ad(f"v_lshl_add_u32 {v(V_BR)}, v4, 2, v5")
ad(f"v_add_u32 {v(V_BR2)}, 128, {v(V_BR)}")
NAD2 = len(ad.ins)
ad(f"s_lshl_b32 s{S_T0}, s{S_TB}, 10")
ad(f"s_mul_i32 s{S_T1}, s{S_DB}, {S2REP}")
ad(f"s_add_u32 s{S_T0}, s{S_T0}, s{S_T1}")
ad(f"s_add_u32 s{S_T0}, s{S_T0}, {WS_S2}")
ad(f"v_lshl_add_u32 {v(V_S2)}, v4, 3, s{S_T0}")
ad(f"s_mov_b32 s{S_PERM}, 0x03020302")
ad(f"v_lshrrev_b32 v5, 4, {v(V_LANE)}")
ad(f"v_and_b32 v6, 15, {v(V_LANE)}")
ad(f"v_and_b32 v4, 1, v5")
ad(f"v_mul_u32_u24 v4, 57344, v4")
ad(f"v_lshl_add_u32 v4, v6, 4, v4")
ad(f"v_lshrrev_b32 v7, 1, v5")
ad(f"v_lshl_add_u32 v4, v7, 8, v4")
ad(f"s_mul_i32 s{S_T0}, s{S_TB}, {8*57344}")
ad(f"s_lshl_b32 s{S_T1}, s{S_FB}, 2")
ad(f"s_add_u32 s{S_T1}, s{S_T1}, s{S_V}")
ad(f"s_lshl_b32 s{S_T2}, s{S_T1}, 10")
ad(f"s_add_u32 s{S_T0}, s{S_T0}, {WS_H}")
ad(f"s_add_u32 s{S_T2}, s{S_T2}, s{S_T0}")
ad(f"v_add_u32 {v(V_HST)}, s{S_T2}, v4")
ad(f"s_mul_i32 s{S_T2}, s{S_FH}, 57344")
ad(f"s_add_u32 s{S_T0}, s{S_T0}, s{S_T2}")
ad(f"s_lshl1_add_u32 s{S_T0}, s{S_ACTW}, s{S_T0}")
ad(f"v_add_u32 {v(V_HL)}, s{S_T0}, {v(V_L16)}")
ad(f"s_lshl_b32 s{S_T0}, s{S_TB}, 13")
ad(f"s_add_u32 s{S_T0}, s{S_T0}, {WS_C + 65536}")
ad(f"s_mul_i32 s{S_T1}, s{S_T1}, 37")
ad(f"s_and_b32 s{S_T1}, s{S_T1}, 0x600")
ad(f"s_add_u32 s{S_F3}, s{S_T0}, s{S_T1}")
ad(f"s_lshl1_add_u32 s{S_T1}, s{S_V}, s{S_FH}")
ad(f"s_lshl_b32 s{S_T1}, s{S_T1}, 8")
ad(f"s_add_u32 s{S_P3}, s{S_T0}, s{S_T1}")
for k in range(1, 4):
    ad(f"s_movk_i32 s{S_HR+k}, {4096*k}")
ad(f"s_add_u32 s{S_FW}, s{S_RING}, 32768")
ad(f"s_lshl_b32 s{S_R2}, s{S_V}, 14")
ad(f"v_add_u32 {v(V_LF)}, s{S_FW}, {v(V_L16)}")
ad(f"v_add_u32 {v(V_LR)}, s{S_R2}, {v(V_L16)}")
ad2 = ad
se = sub()
se(f"v_bfe_u32 v4, {v(V_LANE)}, 2, 2")
se(f"v_bfe_u32 v5, {v(V_LANE)}, 4, 1")
se(f"v_mov_b32 v6, 0x3f803f80")
se(f"v_cmp_eq_u32 vcc, v4, v5")
for i in range(4):
    se(f"v_cndmask_b32 {v(SEL+i)}, 0, v6, vcc")


def cs_mfma(ks0, ks1):
    q = sub()
    for ks in range(ks0, ks1):
        for m in range(2):
            c = "0" if ks == 0 else v(CSA[m], 4)
            q(f"v_mfma_f32_16x16x32_bf16 {v(CSA[m],4)}, {v(SEL,4)}, {acc(wfrag(m,ks),4)}, {c}")
    return q.ins


def pin_spread(g, start, ins, per=2):
    for i, x in enumerate(ins):
        g.at(int(start + i // per), [x])
    return int(start + (len(ins) + per - 1) // per)


mA, mB = conv_mfmas(0), conv_mfmas(1)
NOV = int(OPT.get("nov", 20))
bl = b_loads(0, 4)


def ab(rr):
    al = a_loads(rr, 0, 4)
    o = []
    for a in range(4):
        o += [bl[4 * rr + a]] + al[2 * a:2 * a + 2]
    return o


pr, pv = conv_pre(0)
P.add(ab(0) + ab(1)[:3])
P.add(b2.pop(0))
P.add(b2.pop(0))
g = Gaps(mA + mB[:NOV], 2)
l1 = ab(1)[3:] + ab(2) + ab(3) + pr
NL1 = int(OPT.get("nl1", 24))
for i, x in enumerate(l1):
    g.at(i * NL1 // len(l1), [x])
g.fill(pv, start=NL1 + 5, end=50)
xw, xb, xr = conv_xchg(0)
for i in range(4):
    g.at(41 + 2 * i, [xw[i]])
XB = int(OPT.get("xb", 50))
g.at(XB, xb)
g.at(XB + 1, xr)
pin_vm(g, XB + 2, b2[:2], 3)
b2 = b2[2:]
P.add(g.out())
P.add(conv_post(0))
stamp("genA stored")
nb = b_loads(4, 8)
newl = []
for rr in range(4):
    newl += nb[4 * rr:4 * rr + 4] + a_loads(rr, 4, 8)
P.add(newl[:8])
g = Gaps(mB[NOV:] + cs_mfma(0, 10), 2)
NB_ = len(mB) - NOV
pin_spread(g, 0, newl[8:], per=1)
g.at(0, waitq("w1_3"))
pin_spread(g, 0, tr1[24:], per=1)
pin_vm(g, 1, b2, 3.5)
fl = sub()
fl.wait("h0")
addcnt(fl, S_F2, V_FL2)
fl(f"s_add_u32 s{S_F2}, s{S_F2}, 0x8000")
g.at(int(OPT.get("fa", 28)), fl.ins)
tr2 = batch_tr(1)
T2 = [int(x) for x in OPT.get("t2", "12,24,44,60").split(",")]
b3 = batch_dma(2, "w3")
for i in range(4):
    pin_spread(g, T2[i], waitq(f"w2_{i}") + tr2[8 * i:8 * i + 8], per=1)
    b3[i] = waitq(f"t1_{i}") + b3[i]
pin_vm(g, 30, b3[:2], 3)
pin_vm(g, 56, b3[2:3], 3)
pin_vm(g, 71, b3[3:4], 2.5)
pr, pv = conv_pre(1)
pin_spread(g, 41, pr, per=1)
newl[-1].tok = "lastfrag"
bq = sub()
bq.wait("lastfrag")
bq("s_barrier")
g.at(54, bq.ins)
x2 = sub()
x2(f"v_add_u32 {v(V_EXW)}, {L_KC}, {v(V_EXW)}")
x2(f"s_lshl_b32 s{S_T0}, s{S_V}, 12")
x2(f"s_add_u32 s{S_T0}, s{S_T0}, {L_KC}")
x2(f"v_add_u32 {v(V_EXR)}, s{S_T0}, {v(V_L16)}")
x2(f"s_add_u32 s{S_PST}, s{S_PST}, {PGEN - L_KC}")
PA1, PA2, PAC = int(OPT.get("pa1", 58)), int(OPT.get("pa2", 72)), int(OPT.get("pac", 86))
e = g.fill(ad1.ins + se.ins + x2.ins, start=34, end=PAC - 1)
g.fill(pv, start=max(e, 50), end=NB_ + 10)
g.at(PA1, poll_issue(S_PA, 7))
g.at(PA2, poll_issue(S_PA, 23))
g.at(PAC, stq("pre pollA") + poll_check2(S_PA, 7, 23, "3", f"s{S_E28}") + stq("post pollA"))
a0 = singles(act_dma(0) + act_dma(1))
na = (g.n - 1 - PAC) // 3 + 1
pin_vm(g, PAC, a0[:na], 3)
xw, xb, xr = conv_xchg(1)
for i in range(4):
    g.at(NB_ + 1 + 2 * i, [xw[i]])
g.at(NB_ + 10, xb)
g.at(NB_ + 11, xr)
P.add(g.out())
P.add(conv_post(1))
stamp("genB stored")
g = Gaps(cs_mfma(10, 24), 3)
g.at(1, poll_issue(S_P4, 25))
tr3 = batch_tr(2)
t3 = []
for i in (0, 1, 2, 3):
    t3 += waitq(f"w3_{i}") + tr3[8 * i:8 * i + 8]
pin_spread(g, 0, t3, per=2)
e = pin_vm(g, 0, a0[na:], 2)
fl = sub()
fl.wait("h1")
addcnt(fl, S_F2, V_FL2)
g.fill(ad2.ins[:NAD2], start=18)
w4 = singles([waitq("t2_3") + w_dma(6, 0, 8, "w4"), w_dma(6, 1, 12, "w4")])
pin_vm(g, 21, w4[:3], 2.5)
P.add(g.out())
P.add(fl.ins)
stamp("gap work done")

GACC = [64, 96]
BF = 128
NBF = 8
MB = 160
KC_ = [14, 9]
STT = 60
EPT = 164
HP = 172
WDV = 188
RESR = [46, 48, 50, 52]
A_CS = [224, 228]
GC0 = -2.0 * math.sqrt(2.0 / math.pi) * LOG2E


def st_issue(J, atomic=None):
    q = sub()
    t = STT + 2 * (J & 1)
    atomic = False if atomic is None else atomic
    if atomic:
        q(f"v_mov_b64 {v(t,2)}, 0")
        q(f"buffer_atomic_add_x2 {v(t,2)}, {v(V_S2)}, {srd(SRD_WS)}, 0 offen offset:{256*J} sc0")
    else:
        q(f"buffer_load_dwordx2 {v(t,2)}, {v(V_S2)}, {srd(SRD_WS)}, 0 offen offset:{256*J} sc1")
    return q.ins


def st_check(J):
    q = sub()
    t = STT + 2 * (J & 1)
    slow, done = label("sslow"), label("sdone")
    q(f"v_cmp_ne_u32 vcc, s{S_NONCE}, {v(t+1)}")
    q(f"s_cbranch_vccnz {slow}")
    q(f"{done}:")
    spin(TAIL, slow, done, st_issue(J, True), t + 1, sleep=1)
    return q.ins


def st_final(J):
    q = sub()
    kc = KC_[J & 1]
    t = STT + 2 * (J & 1)
    q(f"v_perm_b32 {v(MB)}, {v(t)}, {v(t)}, s{S_PERM}")
    q(f"v_cvt_f32_f16 {v(t)}, {v(t)}")
    q(f"v_mul_f32 {v(t+1)}, {v(t)}, {v(t)}")
    q(f"v_mul_f32 {v(kc)}, {f32(GC0)}, {v(t)}")
    q(f"v_rcp_f32 {v(kc+2)}, {v(t+1)}")
    q(f"v_mul_f32 {v(kc+1)}, {v(t+1)}, {v(kc)}")
    q(f"v_mul_f32 {v(kc+1)}, {f32(0.044715)}, {v(kc+1)}")
    return q.ins


SP = Prog()
spn = [1]


def sps():
    if STAMPS and "lite" in OPT:
        SP(f"s_memrealtime s[{S_STAMP}:{S_STAMP+1}]")
        SP("s_waitcnt lgkmcnt(0)")
        SP(f"v_writelane_b32 v255, s{S_STAMP}, {spn[0]}")
        spn[0] += 1


SP("L_spare:")
SP("s_waitcnt vmcnt(0)")
SP("s_barrier")
sps()
SP(f"s_and_b32 s{S_T0}, s{S_W}, 6")
SP(f"s_lshl_b32 s{S_T0}, s{S_T0}, 1")
SP(f"s_bfe_u32 s{S_T1}, s{S_W}, 0x20003")
SP(f"s_add_u32 s{S_TB}, s{S_T0}, s{S_T1}")
SP(f"s_lshr_b32 s{S_T0}, s{S_TB}, 2")
SP(f"s_lshl2_add_u32 s{S_T0}, s{S_FH}, s{S_T0}")
SP(f"s_lshl3_add_u32 s{S_T0}, s{S_T0}, s{S_T1}")
SP(f"s_lshl2_add_u32 s{S_T0}, s{S_T0}, s{S_V}")
SP(f"s_lshl_b32 s{S_T0}, s{S_T0}, 8")
SP(f"s_add_u32 s{S_PA}, s{S_T0}, {WS_C}")
SP(f"s_mul_i32 s{S_T1}, s{S_V}, 56")
SP(f"v_mov_b32 {v(V_NONCE)}, 7")
lanes_reg(SP, V_FLG, 4, 8)
SP(f"v_lshrrev_b32 v5, 4, {v(V_LANE)}")
SP(f"v_and_b32 v6, 15, {v(V_LANE)}")
SP(f"v_mul_u32_u24 v4, {PROW}, v5")
SP(f"v_lshl_add_u32 v4, v6, 4, v4")
SP(f"s_mul_i32 s{S_T1}, s{S_T1}, {PROW}")
SP(f"s_lshl_b32 s{S_T0}, s{S_TB}, 8")
SP(f"s_add_u32 s{S_T0}, s{S_T0}, s{S_T1}")
SP(f"s_mul_i32 s{S_T1}, s{S_FH}, {PGEN}")
SP(f"s_add_u32 s{S_T0}, s{S_T0}, s{S_T1}")
SP(f"s_add_u32 s{S_T0}, s{S_T0}, {WS_P}")
SP(f"v_add_u32 v11, s{S_T0}, v4")
SP(f"v_lshl_add_u32 v4, v6, 2, v5")
SP(f"s_lshl_b32 s{S_T0}, s{S_V}, 9")
SP(f"v_lshl_add_u32 v12, v4, 3, s{S_T0}")
SP(f"v_lshlrev_b32 v13, 3, {v(V_LANE)}")
SP(f"v_mov_b32 v14, 0x3f803f80")
if not NOPF:
    SP(f"s_sub_u32 s{S_T1}, s{S_W}, 224")
    SP(f"s_lshr_b32 s{S_T0}, s{S_V}, 1")
    SP(f"s_lshl1_add_u32 s{S_T1}, s{S_T1}, s{S_T0}")
    SP(f"s_mul_i32 s{S_T1}, s{S_T1}, {35*128}")
    SP(f"s_add_u32 s{S_T1}, s{S_T1}, {3584*128}")
    SP(f"v_min_u32 v4, 34, {v(V_LANE)}")
    SP(f"v_lshl_add_u32 v4, v4, 7, s{S_T1}")
    for k in range(4):
        SP(f"global_load_dword {v(60+k)}, v4, s[{S_PFB}:{S_PFB+1}]")
        if k < 3:
            SP(f"v_add_u32 v4, {2240*128}, v4")
SP(f"s_sub_u32 s{S_T1}, s{S_W}, 224")
SP(f"s_cmp_ge_u32 s{S_T1}, 28")
SP("s_cbranch_scc1 L_sp_nowf")
SP(f"s_lshr_b32 s{S_DB}, s{S_T1}, 2")
SP(f"s_and_b32 s{S_T2}, s{S_T1}, 3")
SP(f"s_lshl_b32 s{S_F3}, s{S_T1}, 10")
SP(f"s_add_u32 s{S_F3}, s{S_F3}, {WS_C + 896*256}")
SP(f"s_mul_i32 s{S_T1}, s{S_T1}, {14*4096}")
SP(f"s_add_u32 s{S_T1}, s{S_T1}, {WS_WF}")
SP(f"v_add_u32 v20, s{S_T1}, {v(V_L16)}")
SP(f"v_lshrrev_b32 v6, 3, {v(V_LANE)}")
SP(f"v_and_b32 v7, 6, v6")
SP(f"v_and_b32 v5, 7, {v(V_LANE)}")
SP(f"v_xor_b32 v7, v7, v5")
SP(f"v_mul_u32_u24 v6, 896, v6")
SP(f"v_lshl_add_u32 v6, v7, 4, v6")
SP(f"s_mul_i32 s{S_T0}, s{S_T2}, {448*896}")
SP(f"s_lshl_b32 s{S_T1}, s{S_DB}, 7")
SP(f"s_add_u32 s{S_T0}, s{S_T0}, s{S_T1}")
SP(f"v_add_u32 v48, s{S_T0}, v6")
for k in range(1, 4):
    SP(f"v_add_u32 {v(48+k)}, {k*(7168-1024)}, v48")
SP(f"s_lshl_b32 s{S_R2}, s{S_V}, 14")
SP(f"s_add_u32 s{S_R2}, s{S_R2}, 4096")
for i in range(4):
    SP(f"s_lshl2_add_u32 s{S_HR+i}, s{S_V}, {i}")
    SP(f"s_min_u32 s{S_HR+i}, s{S_HR+i}, 13")
    SP(f"s_mul_i32 s{S_WOFF}, s{S_HR+i}, {32*896}")
    SP(f"s_add_u32 m0, s{S_R2}, {4096*i}")
    SP(f"s_lshl_b32 s{S_HR+i}, s{S_HR+i}, 12")
    for k in range(4):
        of = f" offset:{1024*k}" if k else ""
        SP(f"buffer_load_dwordx4 {v(48+k)}, {srd(SRD_WD)}, s{S_WOFF} offen{of} lds", tok=f"sw{i}")
SP(f"v_lshrrev_b32 v4, 4, {v(V_LANE)}")
SP(f"v_lshrrev_b32 v6, 1, v4")
SP(f"v_lshlrev_b32 v6, 4, v6")
SP(f"v_and_b32 v7, 1, v4")
SP(f"v_lshl_add_u32 v6, v7, 2, v6")
SP(f"v_bfe_u32 v7, {v(V_LANE)}, 2, 2")
SP(f"v_add_u32 v6, v6, v7")
SP(f"v_bfe_u32 v7, v6, 1, 2")
SP(f"v_lshlrev_b32 v6, 7, v6")
SP(f"v_and_b32 v5, 3, {v(V_LANE)}")
SP(f"v_lshl_add_u32 v6, v5, 3, v6")
for rt in range(4):
    SP(f"v_xor_b32 v5, {rt}, v7")
    SP(f"v_lshl_add_u32 v5, v5, 5, v6")
    SP(f"v_add_u32 {v(52+rt)}, s{S_R2}, v5")
for i in range(4):
    SP.wait(f"sw{i}")
    if i in (0, 3): sps()
    for rt in range(4):
        for h in range(2):
            SP(f"ds_read_b64_tr_b16 {v(64+16*i+4*rt+2*h,2)}, {v(52+rt)} offset:{4096*i+1024*h}")
    for rt in range(4):
        SP(f"buffer_store_dwordx4 {v(64+16*i+4*rt,4)}, v20, {srd(SRD_WS)}, s{S_HR+i} offen offset:{1024*rt} sc1")
SP("s_waitcnt vmcnt(0)")
addcnt(SP, S_F3, V_FLG)
sps()
SP("L_sp_nowf:")
sps()
SP("s_mov_b64 vcc, 3")
spin(SP, "L_sp_c", "L_sp_d", poll_issue(S_PA, 7), 7, sleep=int(OPT.get('spsleep', 2)), exp=f"s{S_E28}")
SP("L_sp_d:")
sps()
for k in range(14):
    SP(f"s_mov_b32 s{S_T0}, {k*4*PROW}")
    SP(f"buffer_load_dwordx4 {v(64+4*k,4)}, v11, {srd(SRD_WS)}, s{S_T0} offen sc1")
SS = 16
for j in range(8):
    SP(f"v_mov_b32 {v(SS+j)}, 0")
for k in range(14):
    for j in range(4):
        SP(f"v_dot2c_f32_bf16 {v(SS+j)}, {v(64+4*k+j)}, v14")
    for j in range(4):
        SP(f"v_dot2c_f32_bf16 {v(SS+4+j)}, {v(64+4*k+j)}, {v(64+4*k+j)}")
for o in (0, 4):
    SP(f"v_permlane32_swap_b32 {v(SS+o)}, {v(SS+o+2)}")
    SP(f"v_permlane32_swap_b32 {v(SS+o+1)}, {v(SS+o+3)}")
for o in (0, 4):
    SP(f"v_add_f32 {v(SS+o)}, {v(SS+o)}, {v(SS+o+2)}")
    SP(f"v_add_f32 {v(SS+o+1)}, {v(SS+o+1)}, {v(SS+o+3)}")
for o in (0, 4):
    SP(f"v_permlane16_swap_b32 {v(SS+o)}, {v(SS+o+1)}")
SP(f"v_add_f32 {v(SS)}, {v(SS)}, {v(SS+1)}")
SP(f"v_add_f32 {v(SS+1)}, {v(SS+4)}, {v(SS+5)}")
sps()
SP(f"ds_write_b64 v12, {v(SS,2)}")
SP("s_waitcnt lgkmcnt(0)")
SP("s_barrier")
SP(f"s_cmp_lg_u32 s{S_V}, 0")
SP("s_cbranch_scc1 L_fin")
t = 24
for w in range(4):
    SP(f"ds_read_b64 {v(t+2*w,2)}, v13 offset:{512*w}")
SP(f"s_lshl_b32 s{S_T0}, s{S_TB}, 1")
SP(f"s_add_u32 s{S_T0}, s{S_T0}, s{S_FH}")
SP(f"s_lshl_b32 s{S_T0}, s{S_T0}, 9")
SP(f"s_add_u32 s{S_T0}, s{S_T0}, {WS_S2}")
SP(f"v_pk_add_f32 {v(t,2)}, {v(t,2)}, {v(t+2,2)}")
SP(f"v_pk_add_f32 {v(t+4,2)}, {v(t+4,2)}, {v(t+6,2)}")
SP(f"v_pk_add_f32 {v(t,2)}, {v(t,2)}, {v(t+4,2)}")
SP(f"v_mul_f32 {v(t)}, s{S_K0}, {v(t)}")
SP(f"v_mul_f32 {v(t+1)}, s{S_K0}, {v(t+1)}")
SP(f"v_fma_f32 {v(t+1)}, -{v(t)}, {v(t)}, {v(t+1)}")
SP(f"v_max_f32 {v(t+1)}, 0, {v(t+1)}")
SP(f"v_add_f32 {v(t+1)}, {f32(1e-5)}, {v(t+1)}")
SP(f"v_rsq_f32 {v(t+1)}, {v(t+1)}")
SP(f"v_cvt_pk_bf16_f32 {v(t)}, 0, -{v(t)}")
SP(f"v_cvt_f16_f32 {v(t+1)}, {v(t+1)}")
SP(f"v_and_b32 {v(t+1)}, 0xffff, {v(t+1)}")
SP(f"v_or_b32 {v(t)}, {v(t)}, {v(t+1)}")
SP(f"v_mov_b32 {v(t+1)}, s{S_NONCE}")
for r_ in range(7):
    SP(f"buffer_store_dwordx2 {v(t,2)}, v13, {srd(SRD_WS)}, s{S_T0} offen sc1")
    SP(f"s_add_u32 s{S_T0}, s{S_T0}, {S2REP}")
sps()
SP(f"s_cmp_lg_u32 s{S_W}, 255")
SP("s_cbranch_scc1 L_fin")
SP(f"v_lshlrev_b32 v4, 25, {v(V_LANE)}")
SP(f"buffer_store_dword {v(t+1)}, v4, {srd(SRD_WS)}, 0 offen sc1")
SP("s_branch L_fin")


def b_read(J, ks):
    q = sub()
    b = BF + 4 * (ks % NBF)
    o = 112 * (J & 1) + 4 * ks
    q(f"ds_read2st64_b32 {v(b,2)}, {v(V_BR)} offset0:{o} offset1:{o+1}")
    q(f"ds_read2st64_b32 {v(b+2,2)}, {v(V_BR2)} offset0:{o} offset1:{o+1}", tok=f"b{J}_{ks}")
    return q.ins


def g1_gaps(J, extra_after=None):
    m = sub()
    g0 = GACC[J & 1]
    for ks in range(28):
        for mm in range(2):
            d = g0 + 16 * mm
            c = "0" if ks == 0 else v(d, 16)
            m(f"v_mfma_f32_32x32x16_bf16 {v(d,16)}, {acc(wfrag(mm,ks),4)}, {v(BF+4*(ks%NBF),4)}, {c}")
    for mm in range(2):
        d = g0 + 16 * mm
        m(f"v_mfma_f32_32x32x16_bf16 {v(d,16)}, {acc(A_CS[mm],4)}, {v(MB,4)}, {v(d,16)}")
    g = Gaps(m.ins, 6)
    for ks in range(28):
        k2 = ks + NBF - 1
        if k2 < 28:
            r = b_read(J, k2)
            g.at(2 * ks, [r[0]])
            g.at(2 * ks + 1, [r[1]])
        if ks % 3 == 2 and ks + 1 < 28:
            w = sub()
            w.wait(f"b{J}_{min(ks+3,27)}")
            g.at(2 * ks + 1, w.ins)
    return g


def next_tile_reads(g, J, delta, first=42):
    q = sub()
    if delta:
        q(f"v_add_u32 {v(V_BR)}, {delta}, {v(V_BR)}")
        q(f"v_add_u32 {v(V_BR2)}, {delta}, {v(V_BR2)}")
    g.at(first, q.ins)
    for ks in range(NBF - 1):
        old = max(k for k in range(28) if k % NBF == ks)
        r = b_read(J, ks)
        at = max(2 * old + 1, first + 1)
        g.at(at, r[:1])
        g.at(min(at + 1, 57), r[1:])


def g1_epi(J):
    q = sub()
    g = GACC[J & 1]
    kc = KC_[J & 1]
    T = EPT
    for j0 in range(0, 16, 4):
        js = range(j0, j0 + 4)
        for j in js:
            q(f"v_mul_f32 {v(T+j-j0)}, {v(g+j)}, {v(g+j)}")
        for j in js:
            q(f"v_fma_f32 {v(T+j-j0)}, {v(T+j-j0)}, {v(kc+1)}, {v(kc)}")
        for j in js:
            q(f"v_mul_f32 {v(T+j-j0)}, {v(T+j-j0)}, {v(g+j)}")
        for j in js:
            q(f"v_exp_f32 {v(T+j-j0)}, {v(T+j-j0)}")
            q(f"v_mul_f32 {v(T+4+j-j0)}, {v(g+j)}, {v(g+16+j)}")
        for j in js:
            q(f"v_fma_f32 {v(T+j-j0)}, {v(T+j-j0)}, {v(kc+2)}, {v(kc+2)}")
        for j in js:
            q(f"v_rcp_f32 {v(T+j-j0)}, {v(T+j-j0)}")
        for j in js:
            q(f"v_mul_f32 {v(T+4+j-j0)}, {v(T+4+j-j0)}, {v(T+j-j0)}")
        q(f"v_cvt_pk_bf16_f32 {v(HP+(j0//2)%4)}, {v(T+4)}, {v(T+5)}")
        q(f"v_cvt_pk_bf16_f32 {v(HP+(j0//2)%4+1)}, {v(T+6)}, {v(T+7)}")
        if j0 in (4, 12):
            q2 = j0 // 8
            q(f"buffer_store_dwordx4 {v(HP,4)}, {v(V_HST)}, {srd(SRD_WS)}, 0 offen offset:{512*q2} sc1", tok=f"H{J}")
    q(f"v_add_u32 {v(V_HST)}, {2*57344}, {v(V_HST)}")
    return q.ins


def flag3(J):
    q = sub()
    q.wait(f"H{J}")
    addcnt(q, S_F3, V_FLG)
    q(f"s_add_u32 s{S_F3}, s{S_F3}, 2048")
    return q.ins


WDREG = {}
for i in range(4):
    for rt in range(4):
        WDREG[i, rt] = v(WDV + 16 * i + 4 * rt, 4)
        WDREG[10, rt] = acc(240 + 4 * rt, 4)
        WDREG[11, rt] = v([176, 180, 184, 56][rt], 4)
        WDREG[12, rt] = acc(4 * rt, 4)
        WDREG[13, rt] = acc(16 + 4 * rt, 4)
for i in range(6):
    for rt in range(4):
        WDREG[4 + i, rt] = acc(128 + 16 * i + 4 * rt, 4)
KORD = [0, 1, 2, 3, 10, 11, 12, 13, 4, 5, 6, 7, 8, 9]


def wdr(ft, rt):
    return WDREG[ft, rt]


def wd_load(ft):
    q = sub()
    q(f"s_add_u32 s{S_WOFF}, s{S_WFB}, {ft*4096}")
    for k in range(4):
        of = f" offset:{1024*k}" if k else ""
        q(f"buffer_load_dwordx4 {wdr(ft,k)}, {v(V_L16)}, {srd(SRD_WS)}, s{S_WOFF} offen{of} sc1")
    return q.ins


def wd_dma(ft):
    q = sub()
    sbase, slot = (S_FW, ft - 4) if ft < 6 else (S_R2, ft - 6)
    q(f"s_add_u32 m0, s{sbase}, {slot*4096}")
    q(f"s_add_u32 s{S_WOFF}, s{S_WFB}, {ft*4096}")
    for k in range(4):
        of = f" offset:{1024*k}" if k else ""
        q(f"buffer_load_dwordx4 {v(V_L16)}, {srd(SRD_WS)}, s{S_WOFF} offen{of} sc1 lds", tok=f"wd{ft}")
    return q.ins


def wd_read(ft):
    q = sub()
    va, slot = (V_LF, ft - 4) if ft < 6 else (V_LR, ft - 6)
    for rt in range(4):
        q(f"ds_read_b128 {wdr(ft,rt)}, {v(va)} offset:{4096*slot+1024*rt}")
    return q.ins


def res_read(J):
    q = sub()
    o = 112 * (J & 1)
    q(f"ds_read2st64_b32 {v(RESR[J],2)}, {v(V_RES)} offset0:{o} offset1:{o+1}", tok=f"res{J}")
    if J == 1:
        q(f"v_add_u32 {v(V_RES)}, {L_ACT[1]}, {v(V_RES)}")
    return q.ins


ad = sub()
ad(f"v_lshrrev_b32 v4, 4, v0")
ad(f"v_and_b32 v5, 15, v0")
ad(f"v_lshrrev_b32 v6, 1, v5")
ad(f"v_and_b32 v7, 1, v5")
ad(f"v_lshl_add_u32 v6, v6, 2, v7")
ad(f"v_lshlrev_b32 v6, 7, v6")
ad(f"v_lshl_add_u32 v6, v4, 2, v6")
ad(f"s_lshl_b32 s{S_T0}, s{S_DB}, 12")
ad(f"s_lshl_b32 s{S_T1}, s{S_FH}, 6")
ad(f"s_add_u32 s{S_T0}, s{S_T0}, s{S_T1}")
ad(f"v_add_u32 {v(V_RES)}, s{S_T0}, v6")
ad(f"v_lshrrev_b32 v6, 2, v4")
ad(f"v_and_b32 v7, 3, v4")
ad(f"v_lshl_add_u32 v6, v6, 4, v7")
ad(f"v_mul_u32_u24 v6, 896, v6")
ad(f"v_lshl_add_u32 v6, v5, 3, v6")
ad(f"s_lshr_b32 s{S_T0}, s{S_TB}, 2")
ad(f"s_lshl_b32 s{S_T0}, s{S_T0}, 8")
ad(f"s_add_u32 s{S_T0}, s{S_T0}, s{S_T1}")
ad(f"s_and_b32 s{S_T1}, s{S_TB}, 3")
ad(f"s_lshl_b32 s{S_T1}, s{S_T1}, 2")
ad(f"s_add_u32 s{S_T0}, s{S_T0}, s{S_T1}")
ad(f"s_mul_i32 s{S_T0}, s{S_T0}, 896")
ad(f"s_lshl_b32 s{S_T1}, s{S_DB}, 7")
ad(f"s_add_u32 s{S_T0}, s{S_T0}, s{S_T1}")
ad(f"v_add_u32 {v(V_OST)}, s{S_T0}, v6")
ad(f"v_mul_u32_u24 v6, 272, v5")
ad(f"v_lshl_add_u32 v6, v4, 4, v6")
ad(f"v_add_u32 {v(V_RR)}, {L_R}, v6")
ad(f"v_lshrrev_b32 v4, 4, {v(V_LANE)}")
ad(f"v_mul_u32_u24 v6, 272, v4")
ad(f"v_lshl_add_u32 v6, v5, 4, v6")
ad(f"s_mul_i32 s{S_T0}, s{S_V}, 4352")
ad(f"s_add_u32 s{S_T0}, s{S_T0}, {L_R}")
ad(f"v_add_u32 {v(V_RW)}, s{S_T0}, v6")
lanes_reg(ad, V_FLG, 2, 8)

for i in range(1, 4):
    P(f"v_mov_b32 {v(MB+i)}, 0")
    P(f"v_accvgpr_write_b32 {acc(A_CS[0]+i)}, 0")
    P(f"v_accvgpr_write_b32 {acc(A_CS[1]+i)}, 0")
P.wait("act0")
P("s_waitcnt lgkmcnt(0)")
P("s_barrier")
stamp("gemm1 start")
for ks in range(NBF - 1):
    P.add(b_read(0, ks))

def hreg(J, ft):
    n = KORD.index(ft)
    if J in (0, 3):
        return acc(32 + 4 * n, 4)
    if J == 1:
        return v(64 + 4 * n if n < 8 else 128 + 4 * (n - 8), 4)
    return v(96 + 4 * n if n < 8 else 152 + 4 * (n - 8), 4)


def h_loads(J):
    o = []
    for s_ in KORD:
        q = sub()
        of = f" offset:{1024*(s_%4)}" if s_ % 4 else ""
        so = f"s{S_HR+s_//4}" if s_ >= 4 else "0"
        q(f"buffer_load_dwordx4 {hreg(J,s_)}, {v(V_HL)}, {srd(SRD_WS)}, {so} offen{of} sc1")
        o.append(q.ins)
    if J < 3:
        q = sub()
        q(f"v_add_u32 {v(V_HL)}, {2*57344}, {v(V_HL)}")
        o[-1] += q.ins
    return o


def p3_next():
    q = sub()
    q(f"s_add_u32 s{S_P3}, s{S_P3}, 2048")
    return q.ins


g = g1_gaps(0)
e = pin_vm(g, 0, w4[3:], 1.5)
g.at(e, poll_check(S_P4, 25))
e4 = pin_vm(g, e, [wd_load(0), wd_load(1), wd_load(2), wd_load(3)], 2.2)
t4 = w_tr(6, 0, 8, "t4") + w_tr(6, 1, 12, "t4")
g.at(30, waitq("w4"))
pin_spread(g, 30, t4, per=2)
e = g.fill(ad2.ins[NAD2:] + ad.ins, start=0)
assert e < 34, e
g.at(41, waitq("t4") + cs_mfma(24, 28))
cf = sub()
for m in range(2):
    round_bf16(cf, 54, CSA[m])
    cf(f"v_sub_f32 v55, {v(CSA[m])}, v54")
    cf(f"v_cvt_pk_bf16_f32 v54, v54, v55")
    cf(f"v_accvgpr_write_b32 {acc(A_CS[m])}, v54")
g.fill(cf.ins, start=44, end=52)
g.at(int(OPT.get("pb1", 21)), poll_issue(S_PA, 23))
g.at(int(OPT.get("pb2", 37)), poll_issue(S_PA, 25))
g.at(int(OPT.get("st0", 36)), st_issue(0))
pin_vm(g, e4, [wd_dma(4)], 2.5)
g.at(53, stq("t0 pre st") + st_check(0) + stq("t0 post st"))
g.fill(st_final(0), start=53, end=55)
g.at(57, stq("t0 pre pB") + poll_check2(S_PA, 23, 25, "3", f"s{S_E28}") + stq("t0 post pB"))
bq = sub()
bq.wait("act1")
bq("s_barrier")
g.at(27, bq.ins)
next_tile_reads(g, 1, 0, first=41)
P.add(g.out())
stamp("tile0")
g = g1_gaps(1)
e = pin_vm(g, 0, act_dma(2)[:1] + [st_issue(1)] + act_dma(2)[1:] + act_dma(3), 2)
pin_vm(g, e + 1, [wd_dma(5), wd_load(10)], 2.5)
g.at(43, res_read(0))
g.at(45, res_read(1))
g.at(40, st_check(1))
g.fill(st_final(1), start=41, end=54)
bq = sub()
bq.wait("act3")
bq.wait("res1")
bq("s_barrier")
BB = int(OPT.get("bb", 52))
g.at(BB, stq("t1 pre bar") + bq.ins + stq("t1 post bar"))
next_tile_reads(g, 2, L_ACT[1], first=BB)
e = g.fill(g1_epi(0), start=3)
print("tile 1: epilogue ends at gap", e, "tail", len(g.tail))
P.add(g.out())
stamp("tile1")
g = g1_gaps(2)
pin_vm(g, 0, [wd_dma(6), wd_dma(7), st_issue(2), wd_dma(8), wd_dma(9), wd_load(11), st_issue(3)], 2.5)
g.at(24, flag3(0))
g.at(49, st_check(2))
g.fill(st_final(2), start=50, end=54)
g.at(56, poll_issue(S_P3, 7))
next_tile_reads(g, 3, 0, first=41)
e = g.fill(g1_epi(1), start=3)
print("tile 2: epilogue ends at gap", e, "tail", len(g.tail))
P.add(g.out())
stamp("tile2")
g = g1_gaps(3)
T3S = float(OPT.get("t3s", 2.4))
e = pin_vm(g, 4, [wd_load(12), wd_load(13)], T3S)
g.at(int(OPT.get("f1", 21)), flag3(1))
g.at(48, st_check(3))
g.fill(st_final(3), start=49, end=54)
g.at(e - 1, stq("t3 pre p0") + poll_check(S_P3, 7) + stq("t3 post p0") + p3_next())
pin_vm(g, e, h_loads(0), T3S)
g.at(int(OPT.get("p1", 47)), poll_issue(S_P3, 7))
g.at(52, res_read(2))
g.at(54, res_read(3))
e = g.fill(g1_epi(2), start=2)
print("tile 3: epilogue ends at gap", e, "tail", len(g.tail))
P.add(g.out())
stamp("tile3")
P.add(waitq("wd9") + wd_read(4) + wd_read(5))
ep = g1_epi(3)
h1 = h_loads(1)
NE = int(OPT.get("ne", 3))
P.add(sprinkle(ep, [(int(OPT.get("f2", 120)), flag3(2))] + [(68, poll_check(S_P3, 7) + p3_next())] + [(69 + 22 * i, h1[i]) for i in range(NE)]))
stamp("epi3")

OA = [8, 48]
OA = [224, 96]
RT = 176


def g2_mfma(J):
    m = sub()
    for ft in KORD:
        for rt in range(4):
            d = acc(OA[J & 1] + 4 * rt, 4)
            c = "0" if ft == 0 else d
            m(f"v_mfma_f32_16x16x32_bf16 {d}, {wdr(ft,rt)}, {hreg(J,ft)}, {c}")
    return m.ins


RTMP = [28, 32, 36, 12]


def red_write(J):
    q = sub()
    for rt in range(4):
        q(f"ds_write_b128 {v(V_RW)}, {acc(OA[J&1]+4*rt,4)} offset:{(J&1)*R_SZ + rt*1088}")
    return q.ins


def red_bar():
    q = sub()
    q("s_waitcnt lgkmcnt(0)")
    q("s_barrier")
    return q.ins


def red_read(J):
    q = sub()
    for w in range(4):
        q(f"ds_read_b128 {v(RTMP[w],4)}, {v(V_RR)} offset:{(J&1)*R_SZ + w*4352}")
    return q.ins


def red_fin(J):
    q = sub()
    a, b, c, d = RTMP
    for i in range(2):
        q(f"v_lshlrev_b32 {v(16+2*i)}, 16, {v(RESR[J]+i)}")
        q(f"v_and_b32 {v(17+2*i)}, 0xffff0000, {v(RESR[J]+i)}")
    for i in range(4):
        q(f"v_add_f32 {v(a+i)}, {v(a+i)}, {v(b+i)}")
    for i in range(4):
        q(f"v_add_f32 {v(c+i)}, {v(c+i)}, {v(d+i)}")
    for i in range(4):
        q(f"v_add_f32 {v(a+i)}, {v(a+i)}, {v(16+i)}")
    for i in range(4):
        q(f"v_add_f32 {v(a+i)}, {v(a+i)}, {v(c+i)}")
    if "eps" in OPT:
        for i in range(4):
            q(f"v_mul_f32 {v(a+i)}, {f32(1.0+float(OPT['eps']))}, {v(a+i)}")
    for i in range(2):
        q(f"v_cvt_pk_bf16_f32 {v(20+i)}, {v(a+2*i)}, {v(a+2*i+1)}")
    q(f"s_mov_b32 s{S_T0}, {(1024*(J>>1) + 128*(J&1))*896}")
    q(f"buffer_store_dwordx2 v[20:21], {v(V_OST)}, {srd(SRD_OUT)}, s{S_T0} offen {OPT.get('ost', '').replace('_', ' ')}")
    return q.ins


for J in range(4):
    g = Gaps(g2_mfma(J), 2)
    if J > 0:
        pin_spread(g, 4, red_write(J - 1), per=1)
        g.at(16, red_bar())
        pin_spread(g, 17, red_read(J - 1), per=1)
        g.fill(red_fin(J - 1), start=28)
    if J == 0:
        pin_vm(g, 0, h1[NE:], float(OPT.get("hs1", 4)))
        for i, x in enumerate(wd_read(6) + wd_read(7) + wd_read(8) + wd_read(9)):
            g.at(1 + 2 * i, [x])
        g.at(int(OPT.get("p2a", 18)), poll_issue(S_P3, 7))
        g.at(int(OPT.get("p2b", 36)), poll_issue(S_P3, 23))
        g.at(int(OPT.get("f3", 42)), flag3(3))
        bq = sub()
        bq.wait("res3")
        bq("s_barrier")
        g.at(52, bq.ins)
        g.at(55, poll_check2(S_P3, 7, 23, "1", f"s{S_E14}") + p3_next())
    if J == 1:
        pin_vm(g, 0, h_loads(2), float(OPT.get("hs", 3.5)))
        g.at(int(OPT.get("p3a", 14)), poll_issue(S_P3, 7))
        g.at(int(OPT.get("p3b", 32)), poll_issue(S_P3, 23))
        g.at(55, poll_check2(S_P3, 7, 23, "1", f"s{S_E14}"))
    if J == 2:
        pin_vm(g, 0, h_loads(3), float(OPT.get("hs3", 2)))
    P.add(g.out())
    stamp(f"g2 tile{J}")
P.add(red_write(3))
P.add(red_bar())
P.add(red_read(3))
P.add(red_fin(3))
stamp("end")

if "hold" in OPT:
    if "cls" in OPT:
        P(f"s_and_b32 s98, s{S_W}, 7")
        P(f"s_cmp_lg_u32 s98, {OPT['cls']}")
        P("s_cbranch_scc1 L_fin")
    P("L_hold:")
    P("s_memrealtime s[98:99]")
    P("s_waitcnt lgkmcnt(0)")
    P("s_sub_u32 s98, s98, s100")
    P("s_cmp_lt_u32 s98, 4000")
    P("s_cbranch_scc1 L_hold")
P("L_fin:")
if STAMPS:
    P(f"s_lshl_b32 s{S_T0}, s{S_W}, 2")
    P(f"s_add_u32 s{S_T0}, s{S_T0}, s{S_V}")
    P(f"s_lshl_b32 s{S_T0}, s{S_T0}, 8")
    P(f"s_add_u32 s{S_T0}, s{S_T0}, {WS_DBG + 0x800000}")
    P(f"v_lshlrev_b32 v4, 2, v1")
    P(f"buffer_store_dword v255, v4, {srd(SRD_WS)}, s{S_T0} offen")
if "dbgout" in OPT:
    P(f"s_cmp_ge_u32 s{S_W}, 224")
    P("s_cbranch_scc1 L_end")
    P(f"v_readlane_b32 s{S_T0}, v255, 0")
    P(f"s_not_b32 s{S_T0}, s{S_T0}")
    P(f"v_writelane_b32 v255, s{S_T0}, 15")
    P("s_mov_b64 exec, 0xffff")
    P(f"v_lshlrev_b32 v4, 2, v1")
    P("global_atomic_umax v4, v255, s[60:61]")
P("L_end:")
P("s_endpgm")

res = finalize(P.ins, verbose=True) + finalize(TAIL.ins) + finalize(SP.ins)
if "report" in OPT:
    report_waits(finalize(P.ins))
launch = f"; @launch kernel={KN} grid" if ("list" in OPT or STAMPS) else "; @launch grid"
hdr = f"""; Fused pre-LN S4D conv + GEGLU FFN, one persistent launch (generated by my own script)
{launch}=(256,1,1) block=(256,1,1) lds={LDS_SIZE}
.amdgcn_target "amdgcn-amd-amdhsa--gfx950"
.text
.globl {KN}
.p2align 8
.type {KN},@function
{KN}:
"""
ftr = f"""
.p2align 8
.fill 64, 4, 0xbf800000
L_codeend:
.section .rodata,"a"
.p2align 6
.amdhsa_kernel {KN}
  .amdhsa_next_free_vgpr 512
  .amdhsa_next_free_sgpr 102
  .amdhsa_accum_offset 256
  .amdhsa_group_segment_fixed_size 0
  .amdhsa_kernarg_size 112
  .amdhsa_user_sgpr_count 2
  .amdhsa_user_sgpr_kernarg_segment_ptr 1
  .amdhsa_system_sgpr_workgroup_id_x 1
.end_amdhsa_kernel
"""
body = text_of(res)
if "noalign" not in OPT:
    body = align_pass(hdr, body, ftr)
open(OUTF, "w").write(hdr + body + ftr)
src = open(__file__).read()
a = src.index("# ---------------- workspace layout")
b = src.index("# ---------------- LDS layout")
open("layout.py", "w").write(src[a:b] + "\nSTAMP_NAMES = " + repr(stamp_names) + "\nSPIN_NAMES = " + repr(spin_names) + "\n")
```

```python
import sys, math, struct
from asmgen import *

NAME = "sequential_preLN__ssm_conv_s4d__geglu_ffn__prompt"
KN = NAME + "_kernel"
OPT = {}
for a in sys.argv[1:]:
    k, _, val = a.partition("=")
    OPT[k] = val if val else True
STAMPS = "stamps" in OPT
OUTF = OPT.get("out", "k15.s")
if "wdearly" not in OPT:
    OPT["wdlate"] = True


def f32(x):
    return "0x%08x" % struct.unpack("<I", struct.pack("<f", x))[0]


FS = 4
FREP = 0x9000
WS_EPOCH = 0
WS_F1 = 0x8000
WS_S2 = 0x54000
S2REP = 0x5000
WS_C = 0x80000
WS_UX = 0xD0000
WS_P = WS_UX + 256 * 14336
PROW = 4352
PGEN = 224 * PROW
WS_H = WS_P + 2 * PGEN
WS_WF = WS_H + 16 * 4 * 56 * 2048
WS_END = WS_WF + 392 * 4096
WS_DBG = 0x1000000
WS_SIZE = 0x2000000
LAYOUT = 5

CS = 4160
TAB_W = 14592
TAB_ROW = 272
L_KC = 58368
L_UX = 75008
L_EX = 0
L_RING = 98304
L_ACT = [0, 65536]
L_F = 131072
L_R = 65536
R_SZ = 17408
LDS_SIZE = 163840

S_W = 2
S_V = 4
S_T0, S_T1, S_T2, S_T3 = 5, 6, 7, 3
SRD_X, SRD_WS, SRD_WG, SRD_WU, SRD_WD, SRD_OUT = 8, 12, 16, 20, 24, 28
S_NONCE = 32
S_CNT = 33
S_EX = 34
S_PR, S_DSK = 64, 65
S_TB, S_FB, S_FH, S_DB = 66, 67, 68, 69
S_A, S_B, S_C, S_D = 70, 72, 74, 76
S_RING = 78
S_WOFF = 79
S_K0 = 80
S_TAB = 81
S_F3 = 82
S_F1, S_F2 = 83, 84
S_M255 = 86
S_FW, S_R2 = 88, 89
S_ACTW = 90
S_UXO = 91
S_Z = 95
S_PFB = 88
S_HR = 36
S_PA, S_P4, S_P3, S_PST, S_AB, S_WFB = 40, 41, 42, 43, 44, 45
S_E28, S_E14, S_CI = 46, 47, 85
S_UXM = 92
S_REP = 94
S_PERM = 93
S_STAMP = 96


def srd(n):
    return f"s[{n}:{n+3}]"


def v(n, w=1):
    return f"v{n}" if w == 1 else f"v[{n}:{n+w-1}]"


def acc(n, w=1):
    return f"a{n}" if w == 1 else f"a[{n}:{n+w-1}]"


P = Prog()
TAIL = Prog()
nstamp = [0]
stamp_names = []
spin_names = []
LITE = ("start", "conv start", "genA stored", "gemm1 start", "tile3", "end")
if "dbgout" in OPT:
    LITE = ("start", "x arrived", "ln1 done", "kgen r1", "conv start", "genA stored", "gemm1 start", "tile1", "tile3", "end")


def stamp(name, p=None):
    p = P if p is None else p
    p(f"; @ {name}")
    if OPT.get("hold", "").replace("_", " ") == name:
        p(f"s_memrealtime s[100:101]")
        p("s_waitcnt lgkmcnt(0)")
    if STAMPS and ("lite" not in OPT or name in LITE):
        k = nstamp[0]
        assert k < 32
        p(f"s_memrealtime s[{S_STAMP}:{S_STAMP+1}]")
        p(f"s_memtime s[{S_STAMP+2}:{S_STAMP+3}]")
        p("s_waitcnt lgkmcnt(0)")
        p(f"v_writelane_b32 v255, s{S_STAMP}, {k}")
        p(f"v_writelane_b32 v255, s{S_STAMP+2}, {32+k}")
        nstamp[0] += 1
        stamp_names.append(name)


def stq(name):
    q = sub()
    if "dbg" in OPT:
        stamp(name, q)
    return q.ins


lblc = [0]


def label(prefix):
    lblc[0] += 1
    return f"L_{prefix}_{lblc[0]}"


def poll_issue(what, vtmp):
    q = sub()
    q(f"v_mov_b32 {v(vtmp)}, 0")
    if what == "F1":
        q(f"buffer_atomic_add {v(vtmp)}, {v(V_F1)}, {srd(SRD_WS)}, 0 offen sc0")
    else:
        q(f"buffer_atomic_add {v(vtmp)}, {v(V_PM if what == S_PA else V_P1)}, {srd(SRD_WS)}, s{what} offen sc0")
    return q.ins


def spin(t, name, done, reissue, vtag, sleep=2, exp=None):
    t(f"{name}:")
    t(f"s_mov_b32 s{S_CNT}, 0")
    t(f"{name}_l:")
    t("s_mov_b64 exec, vcc")
    t(f"s_sleep {sleep}")
    t.add(reissue)
    t("s_waitcnt vmcnt(0)")
    t(f"v_cmp_ne_u32 vcc, {exp or f's{S_NONCE}'}, {v(vtag)}")
    t("s_mov_b64 exec, -1")
    if STAMPS and "lite" in OPT:
        spin_names.append(name)
        t(f"s_add_u32 s{S_STAMP}, s{S_CNT}, 1")
        t(f"v_writelane_b32 v255, s{S_STAMP}, {10+len(spin_names)-1}")
    t(f"s_cbranch_vccz {done}")
    t(f"s_add_u32 s{S_CNT}, s{S_CNT}, 1")
    t(f"s_cmp_lt_u32 s{S_CNT}, 0x40000")
    t(f"s_cbranch_scc1 {name}_l")
    t(f"s_branch {done}")


def poll_check(what, vtmp):
    q = sub()
    slow, done = label("slow"), label("pdone")
    exp = f"s{S_NONCE}" if what == "F1" else (f"s{S_E14}" if what == S_P3 else f"s{S_E28}")
    q(f"v_cmp_ne_u32 vcc, {exp}, {v(vtmp)}")
    if what == "F1":
        q(f"s_cbranch_vccnz {slow}")
    else:
        q(f"s_and_b64 vcc, vcc, {3 if what == S_PA else 1}")
        q(f"s_cbranch_scc1 {slow}")
    q(f"{done}:")
    spin(TAIL, slow, done, poll_issue(what, vtmp), vtmp, exp=exp, sleep=1)
    return q.ins


def poll_check2(vaddr, v1, v2, mask, exp):
    q = sub()
    slow, done = label("slow"), label("pdone")
    q(f"v_cmp_ne_u32 vcc, {exp}, {v(v1)}")
    q(f"s_and_b64 vcc, vcc, {mask}")
    q(f"s_cbranch_scc0 {done}")
    q.cond(True)
    q(f"v_cmp_ne_u32 vcc, {exp}, {v(v2)}")
    q(f"s_and_b64 vcc, vcc, {mask}")
    q(f"s_cbranch_scc1 {slow}")
    q.cond(False)
    q(f"{done}:")
    spin(TAIL, slow, done, poll_issue(vaddr, v1), v1, exp=exp, sleep=1)
    return q.ins


def setflag(p, soff):
    p(f"buffer_atomic_swap {v(V_NONCE)}, {v(V_FLG)}, {srd(SRD_WS)}, s{soff} offen")


def addcnt(p, soff, vl):
    p(f"buffer_atomic_add {v(V_NONCE)}, {v(vl)}, {srd(SRD_WS)}, s{soff} offen")


def lanes_reg(p, dst, n, sh, t1=4):
    p(f"v_and_b32 {v(t1)}, {64-n}, {v(V_LANE)}")
    p(f"v_lshlrev_b32 {v(t1)}, 25, {v(t1)}")
    p(f"v_lshl_add_u32 {v(dst)}, {v(V_LANE)}, {sh}, {v(t1)}")


def waitq(tok):
    q = sub()
    q.wait(tok)
    return q.ins


def cmul(p, z, x, y):
    p(f"v_pk_mul_f32 {v(z,2)}, {v(x,2)}, {v(y,2)} op_sel:[0,0] op_sel_hi:[0,1]")
    p(f"v_pk_fma_f32 {v(z,2)}, {v(x,2)}, {v(y,2)}, {v(z,2)} op_sel:[1,1,0] op_sel_hi:[1,0,1] neg_lo:[1,0,0]")


def round_bf16(p, dst, src):
    p(f"v_cvt_pk_bf16_f32 {v(dst)}, {v(src)}, {v(src)}")
    p(f"v_and_b32 {v(dst)}, 0xffff0000, {v(dst)}")


V_LANE, V_NONCE, V_L16 = 1, 2, 3
V_FLG = 8
V_W = 9
V_TRA = 13
V_TA, V_TB, V_TW = 14, 15, 16
GA = 17
V_F1, V_UXL = 26, 27
V_KA = 28
V_UA = 32
V_EU, V_EXP, V_EXW, V_EXR, V_FL2 = 36, 37, 38, 39, 40
V_GW, V_GX, V_GR, V_S3, V_DSK = 240, 241, 242, 243, 244
V_EU1 = 41
V_DT = 42
V_PM = 43
V_P1 = 252
PR = 44
V_PF = 254

LOG2E = 1.4426950408889634

if OPT.get("hold") == "entry":
    P("s_memrealtime s[100:101]")
P(f"s_cmp_ge_u32 s{S_W}, 256")
P("s_cbranch_scc1 L_end")
P(f"s_load_dwordx16 s[36:51], s[0:1], 0")
if "ksplit" not in OPT:
    P(f"s_load_dwordx8 s[52:59], s[0:1], 64")
    P(f"s_load_dwordx4 s[60:63], s[0:1], 96")
if "nocpf" not in OPT:
    P(f"s_getpc_b64 s[{S_B}:{S_B+1}]")
    P("L_pc:")
    P(f"s_bfe_u32 s{S_T2}, s{S_W}, 0x30003")
    P(f"s_mul_i32 s{S_T2}, s{S_T2}, ((L_codeend-L_pc)/1024)*128")
    P(f"v_cmp_gt_u32 vcc, (L_codeend-L_pc)/1024, v0")
    P(f"s_add_u32 s{S_B}, s{S_B}, s{S_T2}")
    P(f"s_addc_u32 s{S_B+1}, s{S_B+1}, 0")
    P(f"v_lshlrev_b32 v6, 7, v0")
    P(f"s_and_saveexec_b64 s[{S_A}:{S_A+1}], vcc")
    P("s_cbranch_execz L_nocpf")
    P.cond(True)
    P(f"v_mov_b32 v7, s{S_B+1}")
    P(f"v_add_co_u32 v6, vcc, s{S_B}, v6")
    P(f"v_addc_co_u32 v7, vcc, 0, v7, vcc")
    P(f"global_load_dword v251, v[6:7], off")
    P.cond(False)
    P("L_nocpf:")
    P("s_mov_b64 exec, -1")
if STAMPS:
    P("v_mov_b32 v255, 0")
P(f"v_and_b32 {v(V_LANE)}, 63, v0")
P(f"v_lshrrev_b32 v4, 6, v0")
P(f"v_lshlrev_b32 {v(V_L16)}, 4, {v(V_LANE)}")
P(f"v_readfirstlane_b32 s{S_V}, v4")
P(f"v_mov_b32 v5, 0x7ff00000")
P(f"v_cmp_gt_u32 vcc, 56, {v(V_LANE)}")
P(f"s_lshl_b32 s{S_T0}, s{S_W}, 2")
P(f"s_add_u32 s{S_T0}, s{S_T0}, s{S_V}")
P(f"v_cndmask_b32 v4, v5, {v(V_L16)}, vcc")
P(f"s_mul_i32 s{S_T0}, s{S_T0}, 1792")
P(f"s_and_b32 s{S_T1}, s{S_W}, 7")
P(f"s_mul_i32 s{S_T1}, s{S_T1}, 28")
P(f"s_lshr_b32 s{S_T2}, s{S_W}, 3")
P(f"s_add_u32 s{S_T1}, s{S_T1}, s{S_T2}")
P(f"s_min_u32 s{S_PR}, s{S_T1}, 223")
P(f"s_lshl_b32 s{S_T2}, s{S_PR}, 10")
P(f"v_lshl_add_u32 v6, v0, 2, s{S_T2}")
P(f"v_mov_b32 v7, 0")
P(f"s_lshl_b32 s{S_T1}, s{S_PR}, 2")
P(f"v_mov_b32 v56, s{S_T1}")
P(f"s_mov_b32 s{SRD_X+2}, 1835008")
P(f"s_mov_b32 s{SRD_X+3}, 0x00020000")
P(f"s_mov_b32 s{SRD_WS+2}, {WS_SIZE}")
P(f"s_mov_b32 s{SRD_WS+3}, 0x00020000")
P("s_waitcnt lgkmcnt(0)")
stamp("start")
P(f"s_mov_b64 s[{SRD_X}:{SRD_X+1}], s[36:37]")
XR = 48
P(f"buffer_load_dwordx4 {v(XR,4)}, v4, {srd(SRD_X)}, s{S_T0} offen")
P(f"buffer_load_dwordx4 {v(XR+4,4)}, v4, {srd(SRD_X)}, s{S_T0} offen offset:896")
if "ksplit" in OPT:
    P(f"s_load_dwordx8 s[52:59], s[0:1], 64")
    P(f"s_load_dwordx4 s[60:63], s[0:1], 96")
for r, src, sz in ((SRD_WG, 52, 1605632), (SRD_WU, 54, 1605632), (SRD_WD, 56, 1605632), (SRD_OUT, 58, 1835008)):
    P(f"s_mov_b32 s{r+2}, {sz}")
    P(f"s_mov_b32 s{r+3}, 0x00020000")
P(f"v_cmp_lt_u32 vcc, 7, {v(V_LANE)}")
P(f"v_mul_u32_u24 v4, {FREP}, {v(V_LANE)}")
P(f"s_lshr_b32 s{S_T0}, s{S_W}, 3")
P(f"s_mul_i32 s{S_T1}, s{S_T0}, 37")
P(f"v_cndmask_b32 {v(V_FLG)}, v4, v5, vcc")
P(f"s_lshr_b32 s{S_T1}, s{S_T1}, 8")
P(f"s_mul_i32 s{S_T2}, s{S_T1}, 7")
P(f"s_sub_u32 s{S_DB}, s{S_T0}, s{S_T2}")
P(f"s_and_b32 s{S_FH}, s{S_W}, 1")
P(f"s_and_b32 s{S_T2}, s{S_W}, 6")
P(f"s_lshl_b32 s{S_T2}, s{S_T2}, 1")
P(f"s_add_u32 s{S_TB}, s{S_T2}, s{S_T1}")
P(f"s_mul_i32 s{S_FB}, s{S_FH}, 7")
P(f"s_add_u32 s{S_FB}, s{S_FB}, s{S_DB}")
P(f"s_lshl_b32 s{S_RING}, s{S_V}, 13")
P(f"s_add_u32 s{S_RING}, s{S_RING}, {L_RING}")
P(f"s_mul_i32 s{S_TAB}, s{S_V}, {TAB_W}")
for _ in range(int(OPT.get("xd", 0))):
    P("s_nop 7")
for i in range(4):
    P(f"global_load_dword {v(PR+i)}, v6, s[{38+2*i}:{39+2*i}]")
P(f"global_load_dword {v(V_DT)}, v56, s[46:47]")
P(f"global_load_dword {v(V_DSK)}, v56, s[48:49]")
if "ksplit" in OPT:
    P("s_waitcnt lgkmcnt(0)")
P(f"s_mov_b64 s[{SRD_WS}:{SRD_WS+1}], s[62:63]")
for r, src in ((SRD_WG, 52), (SRD_WU, 54), (SRD_WD, 56), (SRD_OUT, 58)):
    P(f"s_mov_b64 s[{r}:{r+1}], s[{src}:{src+1}]")
P(f"buffer_load_dword {v(V_NONCE)}, v7, {srd(SRD_WS)}, 0 offen sc1")
NOPF = "nopf" in OPT
if not NOPF:
    P(f"s_bitcmp1_b32 s{S_V}, 0")
    P(f"s_cselect_b64 s[{S_PFB}:{S_PFB+1}], s[54:55], s[52:53]")
    P(f"s_lshr_b32 s{S_T0}, s{S_V}, 1")
    P(f"s_lshl1_add_u32 s{S_T2}, s{S_W}, s{S_T0}")
    P(f"s_mul_i32 s{S_T0}, s{S_T2}, {7*128}")
    P(f"v_min_u32 v4, 6, {v(V_LANE)}")
    P(f"v_lshl_add_u32 v4, v4, 7, s{S_T0}")
    P(f"global_load_dword {v(V_PF)}, v4, s[{S_PFB}:{S_PFB+1}]")
    P(f"s_mul_i32 s{S_T0}, s{S_W}, 49")
    P(f"s_mul_i32 s{S_T2}, s{S_V}, 12")
    P(f"s_add_u32 s{S_T0}, s{S_T0}, s{S_T2}")
    P(f"v_min_u32 v4, 12, {v(V_LANE)}")
    P(f"v_add_lshl_u32 v245, v4, s{S_T0}, 7")
    if "wdlate" not in OPT:
        P(f"global_load_dword v253, v245, s[56:57]")
P(f"v_cmp_gt_u32 vcc, 32, {v(V_LANE)}")
P(f"v_mul_u32_u24 v4, 37, {v(V_LANE)}")
P(f"v_lshrrev_b32 v4, 9, v4")
P(f"v_cndmask_b32 {v(V_S3)}, v5, {v(V_L16)}, vcc")
P(f"v_mul_u32_u24 v4, {TAB_W-14*272}, v4")
P(f"v_mul_u32_u24 v6, 272, {v(V_LANE)}")
P(f"s_lshl_b32 s{S_T0}, s{S_V}, 2")
P(f"v_add3_u32 {v(V_GW)}, v4, v6, s{S_T0}")
P(f"v_add_u32 {v(V_GX)}, s{S_T0}, {v(V_GW)}")
P(f"s_lshl_b32 s{S_UXM}, s{S_V}, 12")
P(f"s_add_u32 s{S_UXM}, s{S_UXM}, {L_UX+2048}")
P(f"v_and_b32 v4, 48, {v(V_LANE)}")
P(f"v_add3_u32 {v(V_GR)}, v4, {v(V_L16)}, s{S_TAB}")
P(f"v_and_b32 v4, 31, {v(V_LANE)}")
P(f"v_lshrrev_b32 v6, 5, {v(V_LANE)}")
P(f"v_lshl_add_u32 v6, v6, 4, s{S_TAB}")
P(f"v_and_b32 v7, 28, {v(V_LANE)}")
P(f"v_lshl_add_u32 v7, v4, 5, v7")
P(f"v_add_u32 {v(V_TW)}, v6, v7")
P(f"v_mul_u32_u24 v7, {TAB_ROW}, v4")
P(f"v_add_u32 {v(V_TB)}, v6, v7")
P(f"v_min_u32 v4, 20, v4")
P(f"v_mul_u32_u24 v7, {TAB_ROW}, v4")
P(f"v_add_u32 {v(V_TA)}, v6, v7")
P(f"s_lshl2_add_u32 s{S_CI}, s{S_W}, s{S_V}")
P(f"s_lshl_b32 s{S_CI}, s{S_CI}, 8")
P(f"s_add_u32 s{S_CI}, s{S_CI}, {WS_C}")
P(f"v_lshlrev_b32 {v(V_P1)}, 25, {v(V_LANE)}")
P(f"s_mul_i32 s{S_UXO}, s{S_W}, 14336")
P(f"s_mul_i32 s{S_T0}, s{S_V}, 3584")
P(f"s_add_u32 s{S_UXO}, s{S_UXO}, s{S_T0}")
P(f"s_add_u32 s{S_UXO}, s{S_UXO}, {WS_UX}")
P(f"s_lshl_b32 s{S_T0}, s{S_V}, 8")
P(f"s_add_u32 s{S_T0}, s{S_T0}, s{S_W}")
P(f"s_mul_i32 s{S_T0}, s{S_T0}, {FS}")
P(f"s_add_u32 s{S_F1}, s{S_T0}, {WS_F1}")
P(f"v_lshrrev_b32 v4, 2, {v(V_LANE)}")
P(f"v_mul_u32_u24 v4, 3584, v4")
P(f"v_and_b32 v6, 3, {v(V_LANE)}")
P(f"v_lshl_add_u32 v4, v6, 4, v4")
P(f"s_lshl_b32 s{S_T0}, s{S_FB}, 8")
P(f"s_lshl_b32 s{S_T1}, s{S_V}, 6")
P(f"s_add_u32 s{S_T0}, s{S_T0}, s{S_T1}")
P(f"v_add_u32 {v(V_W)}, s{S_T0}, v4")
for k in range(1, 4):
    P(f"v_add_u32 {v(V_W+k)}, {k*(57344-1024)}, {v(V_W)}")
P(f"v_and_b32 v4, 32, {v(V_LANE)}")
P(f"v_lshlrev_b32 v4, 4, v4")
P(f"v_and_b32 v7, 12, {v(V_LANE)}")
P(f"v_lshl_add_u32 v4, v7, 4, v4")
P(f"v_and_b32 v7, 16, {v(V_LANE)}")
P(f"v_lshl_add_u32 v4, v7, 1, v4")
P(f"v_lshl_add_u32 v4, v6, 3, v4")
P(f"v_add_u32 {v(V_TRA)}, s{S_RING}, v4")
P(f"s_mov_b32 s{S_K0}, {L_KC+4096-L_UX}")
P(f"s_movk_i32 s{S_T2}, 128")
P(f"s_bfe_u32 s{S_T0}, s{S_W}, 0x20001")
P(f"s_lshl_b32 s{S_T0}, s{S_T0}, 10")
P(f"s_lshr_b32 s{S_F2}, s{S_T0}, 2")
P(f"s_bfe_u32 s{S_REP}, s{S_W}, 0x30003")
P(f"s_mul_i32 s{S_REP}, s{S_REP}, {FREP}")
P(f"s_add_u32 s{S_REP}, s{S_REP}, {WS_F1}")
P(f"s_add_u32 s{S_T0}, s{S_T0}, s{S_REP}")
P(f"v_lshl_add_u32 {v(V_F1)}, v0, 2, s{S_T0}")
P(f"v_lshrrev_b32 v4, 2, {v(V_LANE)}")
P(f"v_add_u32 v4, s{S_T1}, v4")
P(f"v_mul_u32_u24 v7, 14336, v4")
P(f"v_lshrrev_b32 v4, 4, {v(V_LANE)}")
P(f"v_xor_b32 v6, v6, v4")
P(f"v_lshl_add_u32 v7, v6, 4, v7")
P(f"s_lshl_b32 s{S_T0}, s{S_PR}, 6")
P(f"s_add_u32 s{S_T0}, s{S_T0}, {WS_UX}")
P(f"v_add_u32 {v(V_UXL)}, s{S_T0}, v7")
P(f"v_bfe_u32 v6, {v(V_LANE)}, 1, 2")
P(f"v_mul_u32_u24 v6, {CS}, v6")
P(f"v_and_b32 v7, 16, {v(V_L16)}")
P(f"v_add3_u32 v6, v6, v7, s{S_K0}")
P(f"v_lshlrev_b32 v7, 4, v0")
P(f"v_cmp_gt_u32 vcc, s{S_T2}, v0")
P(f"v_mov_b32 v56, 0")
P(f"v_mov_b32 v57, 0")
P(f"v_cndmask_b32 v6, v6, v7, vcc")
P(f"v_mov_b32 v58, 0")
P(f"v_mov_b32 v59, 0")
P(f"v_add_u32 v6, {L_UX}, v6")
P(f"ds_write_b128 v6, v[56:59]")
P(f"v_lshlrev_b32 v4, 3, v0")
P(f"v_sub_u32 v4, 2047, v4")
P(f"v_cvt_f32_i32 v4, v4")
P(f"v_mov_b32 v60, 1028")
P(f"v_cmp_eq_u32 vcc, 0, v0")
for e in range(0, 10, 2):
    P(f"v_add_f32 v6, {f32(-float(e))}, v4")
    if e < 8:
        P(f"v_add_f32 v7, {f32(-float(e+1))}, v4")
    P(f"v_cvt_pk_bf16_f32 v6, v6, v7")
    for h in range(2):
        if e + h > 8:
            continue
        d = GA + e + h
        if h == 0:
            P(f"v_lshlrev_b32 v7, 16, v6")
        else:
            P(f"v_and_b32 v7, 0xffff0000, v6")
        P(f"v_cvt_u32_f32 v7, v7")
        if e + h < 4:
            P(f"v_cndmask_b32 v7, v7, v60, vcc")
        P(f"v_lshrrev_b32 {v(d)}, 5, v7")
        P(f"v_add_lshl_u32 {v(d)}, {v(d)}, v7, 2")
P(f"v_mov_b32 v4, 255")
P(f"v_cmp_eq_u32 s[{S_M255}:{S_M255+1}], v4, v0")
P(f"v_and_b32 v4, 15, {v(V_LANE)}")
P(f"v_lshrrev_b32 v5, 4, {v(V_LANE)}")
P(f"v_lshl_add_u32 v6, v5, 3, v4")
P(f"v_sub_u32 v6, 39, v6")
P(f"v_and_b32 v7, 1, v6")
P(f"v_mul_u32_u24 v7, {CS-2}, v7")
P(f"v_lshl_add_u32 v6, v6, 1, v7")
P(f"s_lshr_b32 s{S_T0}, s{S_V}, 1")
P(f"s_andn2_b32 s{S_T3}, 1, s{S_V}")
P(f"s_mul_i32 s{S_T2}, s{S_T0}, {2*CS}")
P(f"s_lshl_b32 s{S_T1}, s{S_T3}, 8")
P(f"s_add_u32 s{S_T2}, s{S_T2}, s{S_T1}")
P(f"s_add_u32 s{S_T2}, s{S_T2}, {L_KC}")
P(f"v_add_u32 {v(V_KA+3)}, s{S_T2}, v6")
for k in range(3):
    P(f"v_add_u32 {v(V_KA+k)}, {64*(48-16*k)}, {v(V_KA+3)}")
P(f"v_lshlrev_b32 v6, 1, v4")
P(f"v_sub_u32 v6, v6, v5")
P(f"s_lshl4_add_u32 s{S_T1}, s{S_T3}, 17")
P(f"v_add_u32 v6, s{S_T1}, v6")
P(f"s_mov_b32 s{S_T2}, {L_UX}")
for rr in range(4):
    P(f"v_bfe_u32 v7, v6, 2, 2")
    P(f"v_xor_b32 v7, s{S_T0}, v7")
    P(f"v_lshl_add_u32 v7, v6, 2, v7")
    P(f"v_lshl_add_u32 {v(V_UA+rr)}, v7, 4, s{S_T2}")
    if rr < 3:
        P(f"v_subrev_u32 v6, 4, v6")
P(f"v_lshrrev_b32 v6, 1, v5")
P(f"v_lshl_add_u32 v6, v4, 1, v6")
P(f"s_lshl_b32 s{S_T2}, s{S_V}, 11")
P(f"s_add_u32 s{S_T2}, s{S_T2}, {L_UX+2048}")
P(f"v_lshl_add_u32 v6, v6, 6, s{S_T2}")
P(f"v_bfe_u32 v4, v4, 1, 2")
P(f"v_and_b32 v5, 1, v5")
P(f"v_lshl_add_u32 v7, v4, 4, v6")
P(f"v_lshl_add_u32 {v(V_EU)}, v5, 3, v7")
P(f"v_xor_b32 {v(V_EU1)}, 16, {v(V_EU)}")
P(f"v_or_b32 v5, 2, v5")
P(f"v_xor_b32 v4, v4, v5")
P(f"v_lshl_add_u32 {v(V_EXP)}, v4, 4, v6")
P(f"s_mul_i32 s{S_ACTW}, s{S_V}, 7168")
P(f"v_add_u32 {v(V_EXR)}, s{S_ACTW}, {v(V_L16)}")
P(f"v_lshlrev_b32 {v(V_EXW)}, 4, v0")
P(f"s_mul_i32 s{S_PST}, s{S_PR}, {PROW}")
P(f"s_add_u32 s{S_PST}, s{S_PST}, {WS_P}")
lanes_reg(P, V_FL2, 4, 10)
lanes_reg(P, V_PM, 2, 12)
P(f"s_lshl1_add_u32 s{S_T0}, s{S_V}, s{S_FH}")
P(f"s_lshl_b32 s{S_T0}, s{S_T0}, 12")
P(f"s_add_u32 s{S_F2}, s{S_F2}, s{S_T0}")
P(f"s_add_u32 s{S_F2}, s{S_F2}, {WS_C}")
P(f"s_lshr_b32 s{S_T0}, s{S_TB}, 2")
P(f"s_bfe_u32 s{S_REP}, s{S_W}, 0x20003")
P(f"s_lshl3_add_u32 s{S_T0}, s{S_T0}, s{S_REP}")
P(f"s_lshl2_add_u32 s{S_T0}, s{S_T0}, s{S_V}")
P(f"s_lshl_b32 s{S_T0}, s{S_T0}, 8")
P(f"s_add_u32 s{S_PA}, s{S_T0}, {WS_C}")
P(f"s_lshl2_add_u32 s{S_T2}, s{S_DB}, s{S_V}")
P(f"s_lshl2_add_u32 s{S_T3}, s{S_T2}, s{S_REP}")
P(f"s_lshl_b32 s{S_T3}, s{S_T3}, 8")
P(f"s_add_u32 s{S_P4}, s{S_T3}, {WS_C + 896*256}")
P(f"s_mul_i32 s{S_T2}, s{S_T2}, {14*4096}")
P(f"s_add_u32 s{S_WFB}, s{S_T2}, {WS_WF}")
P(f"s_mul_i32 s{S_T1}, s{S_V}, {56*PROW}")
P(f"s_lshl_b32 s{S_T0}, s{S_TB}, 8")
P(f"s_add_u32 s{S_T0}, s{S_T0}, s{S_T1}")
P(f"s_add_u32 s{S_AB}, s{S_T0}, {WS_P}")

XF = 56
DF = 72
SA = 88
if "fine" in OPT: stamp("setup done")
P(f"s_mov_b32 s{S_K0}, {f32(1.0/448)}")
P(f"v_mov_b32 v4, {f32(1e-5)}")
P("s_mov_b32 exec_hi, 0x00ffffff")
for r in range(2):
    for i in range(4):
        P(f"v_lshlrev_b32 {v(XF+8*r+2*i)}, 16, {v(XR+4*r+i)}")
        P(f"v_and_b32 {v(XF+8*r+2*i+1)}, 0xffff0000, {v(XR+4*r+i)}")
    P(f"v_readfirstlane_b32 s{(S_A, S_B)[r]}, {v(XF+8*r)}")
stamp("x arrived")
if "wdlate" in OPT and not NOPF:
    P(f"global_load_dword v253, v245, s[56:57]")
for i in range(4):
    P(f"ds_write2_b32 {v(V_GX)}, {v(XR+i)}, {v(XR+4+i)} offset0:{16*i+8} offset1:{16*i+9}")
for r, sm in ((0, S_A), (1, S_B)):
    for i in range(4):
        P(f"v_pk_add_f32 {v(XF+8*r+2*i,2)}, {v(XF+8*r+2*i,2)}, s[{sm}:{sm+1}] op_sel_hi:[1,0] neg_lo:[0,1] neg_hi:[0,1]")
for r in range(2):
    b = XF + 8 * r
    t = DF + 8 * r
    P(f"v_pk_add_f32 {v(t,2)}, {v(b,2)}, {v(b+2,2)}")
    P(f"v_pk_mul_f32 {v(t+2,2)}, {v(b,2)}, {v(b,2)}")
    P(f"v_pk_add_f32 {v(t,2)}, {v(t,2)}, {v(b+4,2)}")
    for i in range(1, 4):
        P(f"v_pk_fma_f32 {v(t+2,2)}, {v(b+2*i,2)}, {v(b+2*i,2)}, {v(t+2,2)}")
    P(f"v_pk_add_f32 {v(t,2)}, {v(t,2)}, {v(b+6,2)}")
for r in range(2):
    t = DF + 8 * r
    P(f"v_add_f32 {v(SA+r)}, {v(t)}, {v(t+1)}")
    P(f"v_add_f32 {v(SA+2+r)}, {v(t+2)}, {v(t+3)}")


def wave_sum(p, regs):
    for mod in ("row_shr:1", "row_shr:2", "row_shr:4", "row_shr:8"):
        for r in regs:
            p(f"v_add_f32_dpp {v(r)}, {v(r)}, {v(r)} {mod} row_mask:0xf bank_mask:0xf bound_ctrl:0")
    for r in regs:
        p(f"v_add_f32_dpp {v(r)}, {v(r)}, {v(r)} row_bcast:15 row_mask:0xa bank_mask:0xf")
    for r in regs:
        p(f"v_add_f32_dpp {v(r)}, {v(r)}, {v(r)} row_bcast:31 row_mask:0xc bank_mask:0xf")


wave_sum(P, [SA, SA + 2, SA + 1, SA + 3])
P(f"v_pk_mul_f32 {v(SA,2)}, {v(SA,2)}, s[{S_K0}:{S_K0+1}] op_sel_hi:[1,0]")
P(f"v_pk_fma_f32 {v(SA+2,2)}, {v(SA+2,2)}, s[{S_K0}:{S_K0+1}], v[4:5] op_sel_hi:[1,0,0]")
P(f"v_pk_fma_f32 {v(SA+2,2)}, {v(SA,2)}, {v(SA,2)}, {v(SA+2,2)} neg_lo:[1,0,0] neg_hi:[1,0,0]")
for r in range(2):
    P(f"v_max_f32 {v(SA+2+r)}, {v(SA+2+r)}, v4")
for r in range(2):
    P(f"v_rsq_f32 {v(SA+2+r)}, {v(SA+2+r)}")
P(f"v_pk_mul_f32 {v(SA,2)}, {v(SA,2)}, {v(SA+2,2)} neg_lo:[1,0] neg_hi:[1,0]")
for r, sm in ((0, S_A), (1, S_B)):
    P(f"v_readlane_b32 s{sm}, {v(SA+2+r)}, 55")
for r, sm in ((0, S_A), (1, S_B)):
    P(f"v_readlane_b32 s{sm+1}, {v(SA+r)}, 55")
for r, sm in ((0, S_A), (1, S_B)):
    for i in range(4):
        P(f"v_pk_fma_f32 {v(XF+8*r+2*i,2)}, {v(XF+8*r+2*i,2)}, s[{sm}:{sm+1}], s[{sm}:{sm+1}] op_sel:[0,0,1] op_sel_hi:[1,0,1]")
for j in range(8):
    P(f"v_cvt_pk_bf16_f32 {v(DF+j)}, {v(XF+j)}, {v(XF+8+j)}")
for i in range(4):
    P(f"ds_write2_b32 {v(V_GW)}, {v(DF+2*i)}, {v(DF+2*i+1)} offset0:{16*i} offset1:{16*i+4}")
P("s_mov_b64 exec, -1")
if "fine" in OPT: stamp("ln1 math")
P("s_waitcnt lgkmcnt(0)")
P("s_barrier")
if "fine" in OPT: stamp("ln1 barrier")
UB = 112
for j in range(4):
    P(f"ds_read_b128 {v(UB+4*j,4)}, {v(V_GR)} offset:{1088*j}")
P(f"s_lshl_b32 s{S_T0}, s{S_V}, 3")
P(f"s_and_b32 s{S_T0}, s{S_T0}, 16")
P(f"s_mov_b32 m0, s{S_TAB}")
P("s_waitcnt lgkmcnt(0)")
for j in range(4):
    P(f"buffer_store_dwordx4 {v(UB+4*j,4)}, {v(V_L16 if j < 3 else V_S3)}, {srd(SRD_WS)}, s{S_UXO} offen offset:{1024*j} sc1", tok="ux")
P(f"s_cmp_lt_u32 s{S_W}, 224")
P("s_cbranch_scc1 L_main")


def nonce_init():
    q = sub()
    q(f"v_readfirstlane_b32 s{S_NONCE}, {v(V_NONCE)}")
    q(f"s_mul_i32 s{S_NONCE}, s{S_NONCE}, 1664525")
    q(f"s_add_u32 s{S_NONCE}, s{S_NONCE}, 1013904223")
    q(f"v_mov_b32 {v(V_NONCE)}, s{S_NONCE}")
    q(f"buffer_store_dword {v(V_NONCE)}, {v(V_P1)}, {srd(SRD_WS)}, s{S_CI} offen sc1", tok="ux")
    q(f"s_add_u32 s{S_E28}, s{S_NONCE}, 28")
    q(f"s_add_u32 s{S_E14}, s{S_NONCE}, 14")
    return q.ins


P.raw(f"s_waitcnt vmcnt({4 if NOPF else 6})")
for x in nonce_init():
    P.raw(x.text)
P.raw("s_waitcnt vmcnt(0)")
P.raw(f"buffer_atomic_swap {v(V_NONCE)}, {v(V_FLG)}, {srd(SRD_WS)}, s{S_F1} offen")
P.raw("s_branch L_spare")
P("L_main:")
stamp("ln1 done")


def wfrag(m, ks):
    return 8 * ks + 4 * m


def slotoff(slot):
    return (slot % 8) * 1024 + (slot // 8) * 32768


def w_dma(kq, m, slot, tok):
    q = sub()
    q(f"s_add_u32 m0, s{S_RING}, {slotoff(slot)}")
    if m == 0:
        q(f"s_mov_b32 s{S_WOFF}, {kq*4*57344}")
    for k in range(4):
        o = f" offset:{1024*k}" if k else ""
        q(f"buffer_load_dwordx4 {v(V_W+k)}, {srd(SRD_WU if m else SRD_WG)}, s{S_WOFF} offen{o} lds", tok=tok)
    return q.ins


def w_tr(kq, m, slot, tok=None):
    q = sub()
    for k in range(4):
        for h in range(2):
            q(f"ds_read_b64_tr_b16 {acc(wfrag(m,4*kq+k)+2*h,2)}, {v(V_TRA)} offset:{slotoff(slot+k)+256*h}", tok=tok)
    return q.ins


def batch_dma(b, tok):
    return [w_dma(2 * b + i // 2, i % 2, 4 * i, f"{tok}_{i}") for i in range(4)]


def batch_tr(b):
    o = []
    for i in range(4):
        o += w_tr(2 * b + i // 2, i % 2, 4 * i, tok=f"t{b}_{i}")
    return o


def singles(groups):
    out, cur = [], []
    for grp in groups:
        for i in grp:
            cur.append(i)
            if i.cls == "vmem":
                out.append(cur)
                cur = []
    if cur:
        out[-1] += cur
    return out


def pin_vm(g, start, groups, stride):
    k = start
    for u in singles(groups):
        g.at(int(k), u)
        k += stride
    return int(k)


def w_dma1(b, n, tok):
    i, k = n // 4, n % 4
    q = sub()
    q(f"s_add_u32 m0, s{S_RING}, {slotoff(4*i)}")
    if n % 8 == 0:
        q(f"s_mov_b32 s{S_WOFF}, {(2*b+i//2)*4*57344}")
    o = f" offset:{1024*k}" if k else ""
    q(f"buffer_load_dwordx4 {v(V_W+k)}, {srd(SRD_WU if i % 2 else SRD_WG)}, s{S_WOFF} offen{o} lds", tok=f"{tok}_{i}")
    q(f"s_mov_b32 m0, s{S_TAB}")
    return q.ins


KD = 176
FR = 192
FR = 112


def kgen_head(rd):
    q = sub()
    A0 = 48 + 0
    CC = 50
    unp = (lambda d, s: q(f"v_lshlrev_b32 {v(d)}, 16, {v(s)}")) if rd == 0 else (lambda d, s: q(f"v_and_b32 {v(d)}, 0xffff0000, {v(s)}"))
    for i in range(4):
        unp(48 + i, PR + i)
    q(f"v_mul_f32 v48, {f32(LOG2E)}, v48")
    q(f"v_exp_f32 v48, v48")
    q(f"v_mul_f32 v49, v49, {v(V_DT)}")
    q(f"v_cvt_pk_bf16_f32 v48, v48, v48")
    q(f"v_mul_f32 v49, 0.15915494, v49")
    q(f"v_and_b32 v48, 0xffff0000, v48")
    q(f"v_mul_f32 v50, v50, {v(V_DT)}")
    q(f"v_mul_f32 v48, v48, {v(V_DT)}")
    q(f"v_mul_f32 v51, v51, {v(V_DT)}")
    q(f"v_mul_f32 v48, {f32(-LOG2E)}, v48")
    q(f"v_add_f32 v50, v50, v50")
    q(f"v_add_f32 v51, v51, v51")
    for (z, pos) in ((52, 1), (54, 16), (56, 256)):
        if pos == 1:
            q(f"v_exp_f32 v4, v48")
            q(f"v_fract_f32 v5, v49")
        else:
            q(f"v_mul_f32 v4, {f32(float(pos))}, v48")
            q(f"v_mul_f32 v5, {f32(float(pos))}, v49")
            q(f"v_exp_f32 v4, v4")
            q(f"v_fract_f32 v5, v5")
        q(f"v_cos_f32 {v(z)}, v5")
        q(f"v_sin_f32 {v(z+1)}, v5")
        q(f"v_mul_f32 {v(z)}, {v(z)}, v4")
        q(f"v_mul_f32 {v(z+1)}, {v(z+1)}, v4")
    return q.ins


def kgen_body(rd):
    names = {"G0": 50, "E1": 52, "E16": 54, "E256": 56}
    nxt = [58]
    chunks = []
    cur = sub()
    wr = sub()
    pk = [0]
    PK = 192

    def new(n):
        names[n] = nxt[0]
        nxt[0] += 2
        assert nxt[0] <= 104
        return names[n]

    def out(kind, row, z):
        t = PK + pk[0] % 16
        pk[0] += 1
        if kind == "B":
            cur(f"v_cvt_pk_bf16_f32 {v(t)}, {v(z)}, {v(z+1)}")
            wr(f"ds_write_addtid_b32 {v(t)} offset:{row*TAB_ROW}")
        else:
            cur(f"v_cvt_pk_bf16_f32 {v(t)}, {v(z)}, -{v(z+1)}")
            wr(f"ds_write_addtid_b32 {v(t)} offset:{(32+row)*TAB_ROW}")
        if len(wr.ins) >= GROUP:
            flush()

    def flush():
        nonlocal cur, wr
        chunks.append(cur.ins + wr.ins)
        cur = sub()
        wr = sub()

    sc = [0]

    def mul(n, a, b, kind=None, row=None):
        if n is None:
            z = 104 + 2 * (sc[0] % 4)
            sc[0] += 1
        else:
            z = new(n)
        cmul(cur, z, names[a], names[b])
        if kind:
            out(kind, row, z)

    GROUP = int(OPT.get("kgroup", 6))
    t = PK + pk[0]
    pk[0] += 1
    cur(f"v_mov_b32 {v(t)}, 0x3f80")
    wr(f"ds_write_addtid_b32 {v(t)}")
    out("A", 0, names["G0"])
    out("B", 2, names["E16"])
    mul("E2", "E1", "E1")
    mul("E32", "E16", "E16", "B", 4)
    mul("G1", "G0", "E256", "A", 8)
    mul("E512", "E256", "E256")
    mul("a1", "G0", "E1", "A", 1)
    mul("E4", "E2", "E2")
    mul("E64", "E32", "E32", "B", 8)
    mul("E48", "E32", "E16", "B", 6)
    mul("G2", "G0", "E512", "A", 10)
    mul("G3", "G1", "E512", "A", 11)
    mul("E1024", "E512", "E512")
    mul("E8", "E4", "E4", "B", 1)
    mul("a2", "G0", "E2", "A", 2)
    mul("a3", "a1", "E2", "A", 3)
    mul("b2", "G1", "E2", "A", 9)
    mul("E128", "E64", "E64", "B", 16)
    mul("G4", "G0", "E1024", "A", 16)
    mul("E24", "E16", "E8", "B", 3)
    mul("E40", "E32", "E8", "B", 5)
    mul("E56", "E48", "E8", "B", 7)
    mul("E192", "E128", "E64", "B", 24)
    for row, a in ((4, "G0"), (5, "a1"), (6, "a2"), (7, "a3"), (12, "G1"), (13, "b2"), (14, "G2"), (15, "G3")):
        mul(None, a, "E4", "A", row)
    for row, a in ((17, "G1"), (18, "G2"), (19, "G3"), (20, "G4")):
        mul(None, a, "E1024", "A", row)
    for b2, nb in ((1, "E64"), (2, "E128"), (3, "E192")):
        for b1 in range(1, 8):
            mul(None, f"E{8*b1}", nb, "B", 8 * b2 + b1)
    if wr.ins or cur.ins:
        flush()
    return chunks


def kgen_reads():
    q = sub()
    for s in range(8):
        q(f"ds_read_b128 {v(FR+8*s,4)}, {v(V_TA)} offset:{32*TAB_ROW+32*s}")
        q(f"ds_read_b128 {v(FR+8*s+4,4)}, {v(V_TB)} offset:{32*s}")
    return q.ins


def kgen_mfma(rd):
    q = sub()
    for s in range(8):
        c = "0" if (rd == 0 and s == 0) else v(KD, 16)
        q(f"v_mfma_f32_32x32x16_bf16 {v(KD,16)}, {v(FR+8*s,4)}, {v(FR+8*s+4,4)}, {c}")
    return q.ins


P(f"v_lshrrev_b32 v4, s{S_T0}, {v(V_DT)}")
P(f"v_lshlrev_b32 v4, 16, v4")
P(f"v_mul_f32 v4, {f32(LOG2E)}, v4")
P(f"v_exp_f32 v4, v4")
P(f"v_readfirstlane_b32 s{S_DSK}, {v(V_DSK)}")
round_bf16(P, V_DT, 4)
P.add(kgen_head(0))
P.add(nonce_init())
ch = kgen_body(0)
fl = sub()
fl.wait("ux")
setflag(fl, S_F1)
nd = 0
FLAGAT = int(OPT.get("flagat", 6))
DMA0 = int(OPT.get("dma0", 3))
for i, c in enumerate(ch):
    P.add(c)
    if i == FLAGAT:
        if "fine" in OPT: stamp("pre flag1")
        P.add(fl.ins)
        if "fine" in OPT: stamp("post flag1")
    elif i >= DMA0:
        P.add(w_dma1(0, nd, "w1"))
        nd += 1
P.add(kgen_reads())
g = Gaps(kgen_mfma(0), 7)
for k in (0, 2, 4, 6):
    g.at(k, w_dma1(0, nd, "w1"))
    nd += 1
g.fill(kgen_head(1))
P.add(g.out())
stamp("kgen r0")
ch = kgen_body(1)
POLLAT = int(OPT.get("pollat", 3))
for i, c in enumerate(ch):
    P.add(c)
    if i == POLLAT:
        P.add(poll_issue("F1", 6))
    elif nd < 16:
        left = sum(1 for j in range(i, len(ch) - 1) if j != POLLAT)
        if 16 - nd > left and nd % 4 != 3:
            P.add(w_dma1(0, nd, "w1")[:-1] + w_dma1(0, nd + 1, "w1")[1:])
            nd += 2
        else:
            P.add(w_dma1(0, nd, "w1"))
            nd += 1
assert nd == 16
P.add(kgen_reads())
if "fine" in OPT: stamp("pre poll1")
P.add(poll_check("F1", 6))
if "fine" in OPT: stamp("post poll1")
g = Gaps(kgen_mfma(1), 6)
P(f"s_mov_b32 m0, s{S_UXM}")
for j in range(4):
    q = sub()
    q(f"s_mov_b32 s{S_T0}, {j*(16*14336-1024)}")
    o = f" offset:{1024*j}" if j else ""
    q(f"buffer_load_dwordx4 {v(V_UXL)}, {srd(SRD_WS)}, s{S_T0} offen{o} sc1 lds", tok="uxl")
    if j == 0:
        P.add(q.ins)
    else:
        g.at(2 * j - 2, q.ins)
tr1 = batch_tr(0)
P.wait("w1_2")
for k in range(8):
    g.at(k, tr1[3 * k:3 * k + 3])
P.add(g.out())
stamp("kgen r1")
b2 = batch_dma(1, "w2")
b2[0] = waitq("t0_0") + b2[0]
b2[3] = waitq("t0_3") + b2[3]
b2 = singles(b2)
P.add(b2.pop(0))
P(f"s_lshl_b32 s{S_C}, s{S_DSK}, 16")
P(f"s_and_b32 s{S_D}, s{S_DSK}, 0xffff0000")
P(f"v_add_u32 v7, {2*CS}, {v(V_EXW)}")
P(f"v_mov_b32 {v(V_NONCE)}, 1")
toff = {0: (0, 0), 1: (0, 1), 2: (0, 2), 3: (0, 3), 4: (1, 0), 5: (1, 2), 6: (2, 0), 7: (3, 0), 8: (4, 0), 9: (5, 0), 10: (6, 0), 11: (7, 0)}
P(f"ds_write2_b32 {v(V_TW)}, {v(KD)}, {v(KD+1)} offset0:0 offset1:1")
P(f"ds_write2_b32 {v(V_TW)}, {v(KD+2)}, {v(KD+3)} offset0:2 offset1:3")
for j in range(4, 12):
    qq, r = toff[j]
    P(f"ds_write_b32 {v(V_TW)}, {v(KD+j)} offset:{4*(r + 264*qq)}")
P.add(b2.pop(0))
P("s_waitcnt lgkmcnt(0)")
P("s_barrier")
if "fine" in OPT: stamp("T barrier")
EG = 208
for c2 in range(2):
    for e in range(9):
        P(f"ds_read2st64_b32 {v(EG+18*c2+2*e,2)}, {v(GA+e)} offset0:{114*c2} offset1:{114*c2+57}", tok=f"g{c2}")
P.add(b2.pop(0))
P.add(b2.pop(0))
KO = 192
VB = 48


def bfrag(rr, e):
    return VB + 32 * rr + 4 * e


def b_loads(lo, hi):
    z = sub()
    for rr in range(4):
        for a in range(lo, hi):
            z(f"ds_read_b128 {v(bfrag(rr,a),4)}, {v(V_UA+rr)} offset:{2048*a}")
    return z.ins


for c2 in range(2):
    b = EG + 18 * c2
    P.wait(f"g{c2}")
    for e in range(9):
        P(f"v_add_f32 {v(b+2*e)}, {v(b+2*e)}, {v(b+2*e+1)}")
    P(f"v_cndmask_b32 {v(b+16)}, {v(b+16)}, 0, s[{S_M255}:{S_M255+1}]")
    for s_ in range(2):
        o = KO + 8 * c2 + 4 * s_
        for i in range(4):
            P(f"v_cvt_pk_bf16_f32 {v(o+i)}, {v(b+2*(s_+2*i))}, {v(b+2*(s_+2*i+1))}")
    for s_ in range(2):
        P(f"ds_write_b128 {v(7 if c2 else V_EXW)}, {v(KO+8*c2+4*s_,4)} offset:{L_KC+s_*CS}", tok="kc")
    P.add(b2.pop(0))
if "dumpk" in OPT:
    P(f"s_lshl_b32 s{S_T0}, s{S_W}, 13")
    P(f"s_add_u32 s{S_T0}, s{S_T0}, {WS_DBG}")
    P(f"buffer_store_dwordx4 {v(KO,4)}, {v(V_EXW)}, {srd(SRD_WS)}, s{S_T0} offen")
    P(f"s_add_u32 s{S_T0}, s{S_T0}, 4096")
    P(f"buffer_store_dwordx4 {v(KO+8,4)}, {v(V_EXW)}, {srd(SRD_WS)}, s{S_T0} offen")
stamp("expanded")
P.wait("uxl")
P.wait("kc")
P("s_barrier")
stamp("conv start")

CA = [176, 192]
ET = 208


def afrag(rr, a):
    return 128 + 32 * rr + 4 * a


def a_loads(rr, lo, hi):
    z = sub()
    for a in range(lo, hi):
        k = a // 2
        off = 16 * (11 - rr - 8 * (a - 2 * k))
        z(f"ds_read2_b32 {acc(afrag(rr,a),2)}, {v(V_KA+k)} offset0:{off} offset1:{off+1}")
        z(f"ds_read2_b32 {acc(afrag(rr,a)+2,2)}, {v(V_KA+k)} offset0:{off+2} offset1:{off+3}")
    return z.ins


def conv_mfmas(gen):
    m = sub()
    first = set()
    na = 4 if gen == 0 else 8
    order = []
    for rr in range(4):
        pairs = [(a, e) for a in range(na) for e in range(na) if 4 * gen <= a + e < 4 * gen + 4]
        pairs.sort(key=lambda ae: (max(ae), ae))
        order += [(rr, a, e) for a, e in pairs]
    if gen == 1:
        order.sort(key=lambda t: (0 if max(t[1], t[2]) < 4 else 1))
    for rr, a, e in order:
        c = a + e - 4 * gen
        d = CA[gen] + 4 * c
        cc = v(d, 4) if c in first else "0"
        first.add(c)
        m(f"v_mfma_f32_16x16x32_bf16 {v(d,4)}, {acc(afrag(rr,a),4)}, {v(bfrag(rr,e),4)}, {cc}")
    return m.ins


UU, XX, YY, TT, WW, HO = ET, ET + 4, ET + 8, ET + 24, ET + 32, ET + 36


def conv_pre(gen):
    q = sub()
    q(f"ds_read_b64 {v(UU,2)}, {v(V_EU)} offset:{8192*gen}")
    q(f"ds_read_b64 {v(UU+2,2)}, {v(V_EU1)} offset:{8192*gen}")
    q(f"ds_read_b128 {v(XX,4)}, {v(V_EXP)} offset:{8192*gen}")
    r = sub()
    if "exact" not in OPT:
        for j in range(4):
            r(f"v_lshlrev_b32 {v(TT+j)}, 16, {v(XX+j)}")
            r(f"v_and_b32 {v(TT+4+j)}, 0xffff0000, {v(XX+j)}")
        for c2, sm in ((0, S_C), (1, S_D)):
            for i in range(2):
                r(f"v_lshlrev_b32 {v(WW)}, 16, {v(UU+2*c2+i)}")
                r(f"v_and_b32 {v(WW+1)}, 0xffff0000, {v(UU+2*c2+i)}")
                r(f"v_fmac_f32 {v(TT+4*c2+2*i)}, s{sm}, {v(WW)}")
                r(f"v_fmac_f32 {v(TT+4*c2+2*i+1)}, s{sm}, {v(WW+1)}")
        return q.ins, r.ins
    for c2 in range(2):
        for i in range(2):
            r(f"v_lshlrev_b32 {v(TT+4*c2+2*i)}, 16, {v(UU+2*c2+i)}")
            r(f"v_and_b32 {v(TT+4*c2+2*i+1)}, 0xffff0000, {v(UU+2*c2+i)}")
    for c2, sm in ((0, S_C), (1, S_D)):
        for i in range(4):
            r(f"v_mul_f32 {v(TT+4*c2+i)}, s{sm}, {v(TT+4*c2+i)}")
    for j in range(4):
        r(f"v_cvt_pk_bf16_f32 {v(WW+j)}, {v(TT+j)}, {v(TT+4+j)}")
    for j in range(4):
        r(f"v_lshlrev_b32 {v(TT+2*j)}, 16, {v(WW+j)}")
        r(f"v_and_b32 {v(TT+2*j+1)}, 0xffff0000, {v(WW+j)}")
    return q.ins, r.ins


def conv_xchg(gen):
    w_, b_, r_ = sub(), sub(), sub()
    for c in range(4):
        w_(f"ds_write_b128 {v(V_EXW)}, {v(CA[gen]+4*c,4)} offset:{(4096 if gen else 7168)*c}", tok=f"xw{gen}")
    b_.wait(f"xw{gen}")
    b_("s_barrier")
    for w in range(4):
        r_(f"ds_read_b128 {v(YY+4*w,4)}, {v(V_EXR)} offset:{1024*w}", tok=f"xr{gen}")
    return w_.ins, b_.ins, r_.ins


def conv_post(gen):
    q = sub()
    h = HO + 4 * gen
    if "exact" not in OPT:
        for c2 in range(2):
            for i in range(2):
                q(f"v_pk_add_f32 {v(TT+4*c2+2*i,2)}, {v(TT+4*c2+2*i,2)}, {v(YY+8*c2+2*i,2)}")
            for i in range(2):
                q(f"v_pk_add_f32 {v(TT+4*c2+2*i,2)}, {v(TT+4*c2+2*i,2)}, {v(YY+8*c2+4+2*i,2)}")
        for j in range(4):
            q(f"v_cvt_pk_bf16_f32 {v(h+j)}, {v(TT+j)}, {v(TT+4+j)}")
        q(f"buffer_store_dwordx4 {v(h,4)}, {v(V_EXW)}, {srd(SRD_WS)}, s{S_PST} offen sc1", tok=f"h{gen}")
        return q.ins
    for c2 in range(2):
        for i in range(2):
            q(f"v_pk_add_f32 {v(YY+8*c2+2*i,2)}, {v(YY+8*c2+2*i,2)}, {v(YY+8*c2+4+2*i,2)}")
    for j in range(4):
        q(f"v_cvt_pk_bf16_f32 {v(WW+j)}, {v(YY+j)}, {v(YY+8+j)}")
    for j in range(4):
        q(f"v_lshlrev_b32 {v(YY+2*j)}, 16, {v(WW+j)}")
        q(f"v_and_b32 {v(YY+2*j+1)}, 0xffff0000, {v(WW+j)}")
    for j in range(4):
        q(f"v_pk_add_f32 {v(YY+2*j,2)}, {v(YY+2*j,2)}, {v(TT+2*j,2)}")
    for j in range(4):
        q(f"v_cvt_pk_bf16_f32 {v(WW+j)}, {v(YY+2*j)}, {v(YY+2*j+1)}")
    for j in range(4):
        q(f"v_lshlrev_b32 {v(YY+8+2*j)}, 16, {v(XX+j)}")
        q(f"v_and_b32 {v(YY+8+2*j+1)}, 0xffff0000, {v(XX+j)}")
    for j in range(4):
        q(f"v_lshlrev_b32 {v(YY+2*j)}, 16, {v(WW+j)}")
        q(f"v_and_b32 {v(YY+2*j+1)}, 0xffff0000, {v(WW+j)}")
    for j in range(4):
        q(f"v_pk_add_f32 {v(YY+2*j,2)}, {v(YY+2*j,2)}, {v(YY+8+2*j,2)}")
    h = HO + 4 * gen
    for j in range(4):
        q(f"v_cvt_pk_bf16_f32 {v(h+j)}, {v(YY+2*j)}, {v(YY+2*j+1)}")
    q(f"buffer_store_dwordx4 {v(h,4)}, {v(V_EXW)}, {srd(SRD_WS)}, s{S_PST} offen sc1", tok=f"h{gen}")
    return q.ins


V_A = 17
ad1 = sub()
ad1(f"v_bfe_u32 v4, {v(V_LANE)}, 3, 1")
ad1(f"v_bfe_u32 v5, {v(V_LANE)}, 4, 1")
ad1(f"v_lshl_add_u32 v4, v4, 1, v5")
ad1(f"v_lshrrev_b32 v5, 5, {v(V_LANE)}")
ad1(f"v_lshl_add_u32 v4, v5, 2, v4")
ad1(f"v_mul_u32_u24 v4, {PROW}, v4")
ad1(f"v_and_b32 v5, 0x70, {v(V_L16)}")
ad1(f"v_add3_u32 {v(V_A)}, v4, v5, s{S_AB}")
for k in range(1, 4):
    ad1(f"v_add_u32 {v(V_A+k)}, {k*(8*PROW-1024)}, {v(V_A)}")


def act_dma(J):
    o = []
    gen, T = J >> 1, J & 1
    for kk in range(2):
        q = sub()
        q(f"s_add_u32 m0, s{S_ACTW}, {L_ACT[gen] + T*28672 + kk*4096}")
        q(f"s_mov_b32 s{S_WOFF}, {kk*32*PROW + PGEN*gen + 128*T}")
        for k in range(4 - kk):
            of = f" offset:{1024*k}" if k else ""
            q(f"buffer_load_dwordx4 {v(V_A+k)}, {srd(SRD_WS)}, s{S_WOFF} offen{of} sc1 lds", tok=f"act{J}")
        o.append(q.ins)
    return o


V_BR, V_S2, V_HST, V_BR2 = 21, 22, 24, 26
V_LF, V_LR = 28, 29
V_RES = 27
V_OST, V_RR, V_RW, V_HL = 45, 41, 42, 44
SEL = 176
CSA = [180, 184]
ad = sub()
ad(f"s_add_u32 s{S_PA}, s{S_PA}, 0x8000")
ad(f"v_and_b32 v4, 31, {v(V_LANE)}")
ad(f"v_lshrrev_b32 v5, 5, {v(V_LANE)}")
ad(f"v_lshlrev_b32 v5, 9, v5")
ad(f"v_lshl_add_u32 {v(V_BR)}, v4, 2, v5")
ad(f"v_add_u32 {v(V_BR2)}, 128, {v(V_BR)}")
NAD2 = len(ad.ins)
ad(f"s_lshl_b32 s{S_T0}, s{S_TB}, 10")
ad(f"s_mul_i32 s{S_T1}, s{S_DB}, {S2REP}")
ad(f"s_add_u32 s{S_T0}, s{S_T0}, s{S_T1}")
ad(f"s_add_u32 s{S_T0}, s{S_T0}, {WS_S2}")
ad(f"v_lshl_add_u32 {v(V_S2)}, v4, 3, s{S_T0}")
ad(f"s_mov_b32 s{S_PERM}, 0x03020302")
ad(f"v_lshrrev_b32 v5, 4, {v(V_LANE)}")
ad(f"v_and_b32 v6, 15, {v(V_LANE)}")
ad(f"v_and_b32 v4, 1, v5")
ad(f"v_mul_u32_u24 v4, 57344, v4")
ad(f"v_lshl_add_u32 v4, v6, 4, v4")
ad(f"v_lshrrev_b32 v7, 1, v5")
ad(f"v_lshl_add_u32 v4, v7, 8, v4")
ad(f"s_mul_i32 s{S_T0}, s{S_TB}, {8*57344}")
ad(f"s_lshl_b32 s{S_T1}, s{S_FB}, 2")
ad(f"s_add_u32 s{S_T1}, s{S_T1}, s{S_V}")
ad(f"s_lshl_b32 s{S_T2}, s{S_T1}, 10")
ad(f"s_add_u32 s{S_T0}, s{S_T0}, {WS_H}")
ad(f"s_add_u32 s{S_T2}, s{S_T2}, s{S_T0}")
ad(f"v_add_u32 {v(V_HST)}, s{S_T2}, v4")
ad(f"s_mul_i32 s{S_T2}, s{S_FH}, 57344")
ad(f"s_add_u32 s{S_T0}, s{S_T0}, s{S_T2}")
ad(f"s_lshl1_add_u32 s{S_T0}, s{S_ACTW}, s{S_T0}")
ad(f"v_add_u32 {v(V_HL)}, s{S_T0}, {v(V_L16)}")
ad(f"s_lshl_b32 s{S_T0}, s{S_TB}, 13")
ad(f"s_add_u32 s{S_T0}, s{S_T0}, {WS_C + 65536}")
ad(f"s_mul_i32 s{S_T1}, s{S_T1}, 37")
ad(f"s_and_b32 s{S_T1}, s{S_T1}, 0x600")
ad(f"s_add_u32 s{S_F3}, s{S_T0}, s{S_T1}")
ad(f"s_lshl1_add_u32 s{S_T1}, s{S_V}, s{S_FH}")
ad(f"s_lshl_b32 s{S_T1}, s{S_T1}, 8")
ad(f"s_add_u32 s{S_P3}, s{S_T0}, s{S_T1}")
for k in range(1, 4):
    ad(f"s_movk_i32 s{S_HR+k}, {4096*k}")
ad(f"s_add_u32 s{S_FW}, s{S_RING}, 32768")
ad(f"s_lshl_b32 s{S_R2}, s{S_V}, 14")
ad(f"v_add_u32 {v(V_LF)}, s{S_FW}, {v(V_L16)}")
ad(f"v_add_u32 {v(V_LR)}, s{S_R2}, {v(V_L16)}")
ad2 = ad
se = sub()
se(f"v_bfe_u32 v4, {v(V_LANE)}, 2, 2")
se(f"v_bfe_u32 v5, {v(V_LANE)}, 4, 1")
se(f"v_mov_b32 v6, 0x3f803f80")
se(f"v_cmp_eq_u32 vcc, v4, v5")
for i in range(4):
    se(f"v_cndmask_b32 {v(SEL+i)}, 0, v6, vcc")


def cs_mfma(ks0, ks1):
    q = sub()
    for ks in range(ks0, ks1):
        for m in range(2):
            c = "0" if ks == 0 else v(CSA[m], 4)
            q(f"v_mfma_f32_16x16x32_bf16 {v(CSA[m],4)}, {v(SEL,4)}, {acc(wfrag(m,ks),4)}, {c}")
    return q.ins


def pin_spread(g, start, ins, per=2):
    for i, x in enumerate(ins):
        g.at(int(start + i // per), [x])
    return int(start + (len(ins) + per - 1) // per)


mA, mB = conv_mfmas(0), conv_mfmas(1)
NOV = int(OPT.get("nov", 20))
bl = b_loads(0, 4)


def ab(rr):
    al = a_loads(rr, 0, 4)
    o = []
    for a in range(4):
        o += [bl[4 * rr + a]] + al[2 * a:2 * a + 2]
    return o


pr, pv = conv_pre(0)
P.add(ab(0) + ab(1)[:3])
P.add(b2.pop(0))
P.add(b2.pop(0))
g = Gaps(mA + mB[:NOV], 2)
l1 = ab(1)[3:] + ab(2) + ab(3) + pr
NL1 = int(OPT.get("nl1", 24))
for i, x in enumerate(l1):
    g.at(i * NL1 // len(l1), [x])
g.fill(pv, start=NL1 + 5, end=50)
xw, xb, xr = conv_xchg(0)
for i in range(4):
    g.at(41 + 2 * i, [xw[i]])
XB = int(OPT.get("xb", 50))
g.at(XB, xb)
g.at(XB + 1, xr)
pin_vm(g, XB + 2, b2[:2], 3)
b2 = b2[2:]
P.add(g.out())
P.add(conv_post(0))
stamp("genA stored")
nb = b_loads(4, 8)
newl = []
for rr in range(4):
    newl += nb[4 * rr:4 * rr + 4] + a_loads(rr, 4, 8)
P.add(newl[:8])
g = Gaps(mB[NOV:] + cs_mfma(0, 10), 2)
NB_ = len(mB) - NOV
pin_spread(g, 0, newl[8:], per=1)
g.at(0, waitq("w1_3"))
pin_spread(g, 0, tr1[24:], per=1)
pin_vm(g, 1, b2, 3.5)
fl = sub()
fl.wait("h0")
addcnt(fl, S_F2, V_FL2)
fl(f"s_add_u32 s{S_F2}, s{S_F2}, 0x8000")
g.at(int(OPT.get("fa", 28)), fl.ins)
tr2 = batch_tr(1)
T2 = [int(x) for x in OPT.get("t2", "12,24,44,60").split(",")]
b3 = batch_dma(2, "w3")
for i in range(4):
    pin_spread(g, T2[i], waitq(f"w2_{i}") + tr2[8 * i:8 * i + 8], per=1)
    b3[i] = waitq(f"t1_{i}") + b3[i]
pin_vm(g, 30, b3[:2], 3)
pin_vm(g, 56, b3[2:3], 3)
pin_vm(g, 71, b3[3:4], 2.5)
pr, pv = conv_pre(1)
pin_spread(g, 41, pr, per=1)
newl[-1].tok = "lastfrag"
bq = sub()
bq.wait("lastfrag")
bq("s_barrier")
g.at(54, bq.ins)
x2 = sub()
x2(f"v_add_u32 {v(V_EXW)}, {L_KC}, {v(V_EXW)}")
x2(f"s_lshl_b32 s{S_T0}, s{S_V}, 12")
x2(f"s_add_u32 s{S_T0}, s{S_T0}, {L_KC}")
x2(f"v_add_u32 {v(V_EXR)}, s{S_T0}, {v(V_L16)}")
x2(f"s_add_u32 s{S_PST}, s{S_PST}, {PGEN - L_KC}")
PA1, PA2, PAC = int(OPT.get("pa1", 58)), int(OPT.get("pa2", 72)), int(OPT.get("pac", 86))
e = g.fill(ad1.ins + se.ins + x2.ins, start=34, end=PAC - 1)
g.fill(pv, start=max(e, 50), end=NB_ + 10)
g.at(PA1, poll_issue(S_PA, 7))
g.at(PA2, poll_issue(S_PA, 23))
g.at(PAC, stq("pre pollA") + poll_check2(S_PA, 7, 23, "3", f"s{S_E28}") + stq("post pollA"))
a0 = singles(act_dma(0) + act_dma(1))
na = (g.n - 1 - PAC) // 3 + 1
pin_vm(g, PAC, a0[:na], 3)
xw, xb, xr = conv_xchg(1)
for i in range(4):
    g.at(NB_ + 1 + 2 * i, [xw[i]])
g.at(NB_ + 10, xb)
g.at(NB_ + 11, xr)
P.add(g.out())
P.add(conv_post(1))
stamp("genB stored")
g = Gaps(cs_mfma(10, 24), 3)
g.at(1, poll_issue(S_P4, 25))
tr3 = batch_tr(2)
t3 = []
for i in (0, 1, 2, 3):
    t3 += waitq(f"w3_{i}") + tr3[8 * i:8 * i + 8]
pin_spread(g, 0, t3, per=2)
e = pin_vm(g, 0, a0[na:], 2)
fl = sub()
fl.wait("h1")
addcnt(fl, S_F2, V_FL2)
g.fill(ad2.ins[:NAD2], start=18)
w4 = singles([waitq("t2_3") + w_dma(6, 0, 8, "w4"), w_dma(6, 1, 12, "w4")])
pin_vm(g, 21, w4[:3], 2.5)
P.add(g.out())
P.add(fl.ins)
stamp("gap work done")

GACC = [64, 96]
BF = 128
NBF = 8
MB = 160
KC_ = [14, 9]
STT = 60
EPT = 164
HP = 172
WDV = 188
RESR = [46, 48, 50, 52]
A_CS = [224, 228]
GC0 = -2.0 * math.sqrt(2.0 / math.pi) * LOG2E


def st_issue(J, atomic=None):
    q = sub()
    t = STT + 2 * (J & 1)
    atomic = False if atomic is None else atomic
    if atomic:
        q(f"v_mov_b64 {v(t,2)}, 0")
        q(f"buffer_atomic_add_x2 {v(t,2)}, {v(V_S2)}, {srd(SRD_WS)}, 0 offen offset:{256*J} sc0")
    else:
        q(f"buffer_load_dwordx2 {v(t,2)}, {v(V_S2)}, {srd(SRD_WS)}, 0 offen offset:{256*J} sc1")
    return q.ins


def st_check(J):
    q = sub()
    t = STT + 2 * (J & 1)
    slow, done = label("sslow"), label("sdone")
    q(f"v_cmp_ne_u32 vcc, s{S_NONCE}, {v(t+1)}")
    q(f"s_cbranch_vccnz {slow}")
    q(f"{done}:")
    spin(TAIL, slow, done, st_issue(J, True), t + 1, sleep=1)
    return q.ins


def st_final(J):
    q = sub()
    kc = KC_[J & 1]
    t = STT + 2 * (J & 1)
    q(f"v_perm_b32 {v(MB)}, {v(t)}, {v(t)}, s{S_PERM}")
    q(f"v_cvt_f32_f16 {v(t)}, {v(t)}")
    q(f"v_mul_f32 {v(t+1)}, {v(t)}, {v(t)}")
    q(f"v_mul_f32 {v(kc)}, {f32(GC0)}, {v(t)}")
    q(f"v_rcp_f32 {v(kc+2)}, {v(t+1)}")
    q(f"v_mul_f32 {v(kc+1)}, {v(t+1)}, {v(kc)}")
    q(f"v_mul_f32 {v(kc+1)}, {f32(0.044715)}, {v(kc+1)}")
    return q.ins


SP = Prog()
spn = [1]


def sps():
    if STAMPS and "lite" in OPT:
        SP(f"s_memrealtime s[{S_STAMP}:{S_STAMP+1}]")
        SP("s_waitcnt lgkmcnt(0)")
        SP(f"v_writelane_b32 v255, s{S_STAMP}, {spn[0]}")
        spn[0] += 1


SP("L_spare:")
SP("s_waitcnt vmcnt(0)")
SP("s_barrier")
sps()
SP(f"s_and_b32 s{S_T0}, s{S_W}, 6")
SP(f"s_lshl_b32 s{S_T0}, s{S_T0}, 1")
SP(f"s_bfe_u32 s{S_T1}, s{S_W}, 0x20003")
SP(f"s_add_u32 s{S_TB}, s{S_T0}, s{S_T1}")
SP(f"s_lshr_b32 s{S_T0}, s{S_TB}, 2")
SP(f"s_lshl2_add_u32 s{S_T0}, s{S_FH}, s{S_T0}")
SP(f"s_lshl3_add_u32 s{S_T0}, s{S_T0}, s{S_T1}")
SP(f"s_lshl2_add_u32 s{S_T0}, s{S_T0}, s{S_V}")
SP(f"s_lshl_b32 s{S_T0}, s{S_T0}, 8")
SP(f"s_add_u32 s{S_PA}, s{S_T0}, {WS_C}")
SP(f"s_mul_i32 s{S_T1}, s{S_V}, 56")
SP(f"v_mov_b32 {v(V_NONCE)}, 7")
lanes_reg(SP, V_FLG, 4, 8)
SP(f"v_lshrrev_b32 v5, 4, {v(V_LANE)}")
SP(f"v_and_b32 v6, 15, {v(V_LANE)}")
SP(f"v_mul_u32_u24 v4, {PROW}, v5")
SP(f"v_lshl_add_u32 v4, v6, 4, v4")
SP(f"s_mul_i32 s{S_T1}, s{S_T1}, {PROW}")
SP(f"s_lshl_b32 s{S_T0}, s{S_TB}, 8")
SP(f"s_add_u32 s{S_T0}, s{S_T0}, s{S_T1}")
SP(f"s_mul_i32 s{S_T1}, s{S_FH}, {PGEN}")
SP(f"s_add_u32 s{S_T0}, s{S_T0}, s{S_T1}")
SP(f"s_add_u32 s{S_T0}, s{S_T0}, {WS_P}")
SP(f"v_add_u32 v11, s{S_T0}, v4")
SP(f"v_lshl_add_u32 v4, v6, 2, v5")
SP(f"s_lshl_b32 s{S_T0}, s{S_V}, 9")
SP(f"v_lshl_add_u32 v12, v4, 3, s{S_T0}")
SP(f"v_lshlrev_b32 v13, 3, {v(V_LANE)}")
SP(f"v_mov_b32 v14, 0x3f803f80")
if not NOPF:
    SP(f"s_sub_u32 s{S_T1}, s{S_W}, 224")
    SP(f"s_lshr_b32 s{S_T0}, s{S_V}, 1")
    SP(f"s_lshl1_add_u32 s{S_T1}, s{S_T1}, s{S_T0}")
    SP(f"s_mul_i32 s{S_T1}, s{S_T1}, {35*128}")
    SP(f"s_add_u32 s{S_T1}, s{S_T1}, {3584*128}")
    SP(f"v_min_u32 v4, 34, {v(V_LANE)}")
    SP(f"v_lshl_add_u32 v4, v4, 7, s{S_T1}")
    for k in range(4):
        SP(f"global_load_dword {v(60+k)}, v4, s[{S_PFB}:{S_PFB+1}]")
        if k < 3:
            SP(f"v_add_u32 v4, {2240*128}, v4")
SP(f"s_sub_u32 s{S_T1}, s{S_W}, 224")
SP(f"s_cmp_ge_u32 s{S_T1}, 28")
SP("s_cbranch_scc1 L_sp_nowf")
SP(f"s_lshr_b32 s{S_DB}, s{S_T1}, 2")
SP(f"s_and_b32 s{S_T2}, s{S_T1}, 3")
SP(f"s_lshl_b32 s{S_F3}, s{S_T1}, 10")
SP(f"s_add_u32 s{S_F3}, s{S_F3}, {WS_C + 896*256}")
SP(f"s_mul_i32 s{S_T1}, s{S_T1}, {14*4096}")
SP(f"s_add_u32 s{S_T1}, s{S_T1}, {WS_WF}")
SP(f"v_add_u32 v20, s{S_T1}, {v(V_L16)}")
SP(f"v_lshrrev_b32 v6, 3, {v(V_LANE)}")
SP(f"v_and_b32 v7, 6, v6")
SP(f"v_and_b32 v5, 7, {v(V_LANE)}")
SP(f"v_xor_b32 v7, v7, v5")
SP(f"v_mul_u32_u24 v6, 896, v6")
SP(f"v_lshl_add_u32 v6, v7, 4, v6")
SP(f"s_mul_i32 s{S_T0}, s{S_T2}, {448*896}")
SP(f"s_lshl_b32 s{S_T1}, s{S_DB}, 7")
SP(f"s_add_u32 s{S_T0}, s{S_T0}, s{S_T1}")
SP(f"v_add_u32 v48, s{S_T0}, v6")
for k in range(1, 4):
    SP(f"v_add_u32 {v(48+k)}, {k*(7168-1024)}, v48")
SP(f"s_lshl_b32 s{S_R2}, s{S_V}, 14")
SP(f"s_add_u32 s{S_R2}, s{S_R2}, 4096")
for i in range(4):
    SP(f"s_lshl2_add_u32 s{S_HR+i}, s{S_V}, {i}")
    SP(f"s_min_u32 s{S_HR+i}, s{S_HR+i}, 13")
    SP(f"s_mul_i32 s{S_WOFF}, s{S_HR+i}, {32*896}")
    SP(f"s_add_u32 m0, s{S_R2}, {4096*i}")
    SP(f"s_lshl_b32 s{S_HR+i}, s{S_HR+i}, 12")
    for k in range(4):
        of = f" offset:{1024*k}" if k else ""
        SP(f"buffer_load_dwordx4 {v(48+k)}, {srd(SRD_WD)}, s{S_WOFF} offen{of} lds", tok=f"sw{i}")
SP(f"v_lshrrev_b32 v4, 4, {v(V_LANE)}")
SP(f"v_lshrrev_b32 v6, 1, v4")
SP(f"v_lshlrev_b32 v6, 4, v6")
SP(f"v_and_b32 v7, 1, v4")
SP(f"v_lshl_add_u32 v6, v7, 2, v6")
SP(f"v_bfe_u32 v7, {v(V_LANE)}, 2, 2")
SP(f"v_add_u32 v6, v6, v7")
SP(f"v_bfe_u32 v7, v6, 1, 2")
SP(f"v_lshlrev_b32 v6, 7, v6")
SP(f"v_and_b32 v5, 3, {v(V_LANE)}")
SP(f"v_lshl_add_u32 v6, v5, 3, v6")
for rt in range(4):
    SP(f"v_xor_b32 v5, {rt}, v7")
    SP(f"v_lshl_add_u32 v5, v5, 5, v6")
    SP(f"v_add_u32 {v(52+rt)}, s{S_R2}, v5")
for i in range(4):
    SP.wait(f"sw{i}")
    if i in (0, 3): sps()
    for rt in range(4):
        for h in range(2):
            SP(f"ds_read_b64_tr_b16 {v(64+16*i+4*rt+2*h,2)}, {v(52+rt)} offset:{4096*i+1024*h}")
    for rt in range(4):
        SP(f"buffer_store_dwordx4 {v(64+16*i+4*rt,4)}, v20, {srd(SRD_WS)}, s{S_HR+i} offen offset:{1024*rt} sc1")
SP("s_waitcnt vmcnt(0)")
addcnt(SP, S_F3, V_FLG)
sps()
SP("L_sp_nowf:")
sps()
SP("s_mov_b64 vcc, 3")
spin(SP, "L_sp_c", "L_sp_d", poll_issue(S_PA, 7), 7, sleep=int(OPT.get('spsleep', 2)), exp=f"s{S_E28}")
SP("L_sp_d:")
sps()
for k in range(14):
    SP(f"s_mov_b32 s{S_T0}, {k*4*PROW}")
    SP(f"buffer_load_dwordx4 {v(64+4*k,4)}, v11, {srd(SRD_WS)}, s{S_T0} offen sc1")
SS = 16
for j in range(8):
    SP(f"v_mov_b32 {v(SS+j)}, 0")
for k in range(14):
    for j in range(4):
        SP(f"v_dot2c_f32_bf16 {v(SS+j)}, {v(64+4*k+j)}, v14")
    for j in range(4):
        SP(f"v_dot2c_f32_bf16 {v(SS+4+j)}, {v(64+4*k+j)}, {v(64+4*k+j)}")
for o in (0, 4):
    SP(f"v_permlane32_swap_b32 {v(SS+o)}, {v(SS+o+2)}")
    SP(f"v_permlane32_swap_b32 {v(SS+o+1)}, {v(SS+o+3)}")
for o in (0, 4):
    SP(f"v_add_f32 {v(SS+o)}, {v(SS+o)}, {v(SS+o+2)}")
    SP(f"v_add_f32 {v(SS+o+1)}, {v(SS+o+1)}, {v(SS+o+3)}")
for o in (0, 4):
    SP(f"v_permlane16_swap_b32 {v(SS+o)}, {v(SS+o+1)}")
SP(f"v_add_f32 {v(SS)}, {v(SS)}, {v(SS+1)}")
SP(f"v_add_f32 {v(SS+1)}, {v(SS+4)}, {v(SS+5)}")
sps()
SP(f"ds_write_b64 v12, {v(SS,2)}")
SP("s_waitcnt lgkmcnt(0)")
SP("s_barrier")
SP(f"s_cmp_lg_u32 s{S_V}, 0")
SP("s_cbranch_scc1 L_fin")
t = 24
for w in range(4):
    SP(f"ds_read_b64 {v(t+2*w,2)}, v13 offset:{512*w}")
SP(f"s_lshl_b32 s{S_T0}, s{S_TB}, 1")
SP(f"s_add_u32 s{S_T0}, s{S_T0}, s{S_FH}")
SP(f"s_lshl_b32 s{S_T0}, s{S_T0}, 9")
SP(f"s_add_u32 s{S_T0}, s{S_T0}, {WS_S2}")
SP(f"v_pk_add_f32 {v(t,2)}, {v(t,2)}, {v(t+2,2)}")
SP(f"v_pk_add_f32 {v(t+4,2)}, {v(t+4,2)}, {v(t+6,2)}")
SP(f"v_pk_add_f32 {v(t,2)}, {v(t,2)}, {v(t+4,2)}")
SP(f"v_mul_f32 {v(t)}, s{S_K0}, {v(t)}")
SP(f"v_mul_f32 {v(t+1)}, s{S_K0}, {v(t+1)}")
SP(f"v_fma_f32 {v(t+1)}, -{v(t)}, {v(t)}, {v(t+1)}")
SP(f"v_max_f32 {v(t+1)}, 0, {v(t+1)}")
SP(f"v_add_f32 {v(t+1)}, {f32(1e-5)}, {v(t+1)}")
SP(f"v_rsq_f32 {v(t+1)}, {v(t+1)}")
SP(f"v_cvt_pk_bf16_f32 {v(t)}, 0, -{v(t)}")
SP(f"v_cvt_f16_f32 {v(t+1)}, {v(t+1)}")
SP(f"v_and_b32 {v(t+1)}, 0xffff, {v(t+1)}")
SP(f"v_or_b32 {v(t)}, {v(t)}, {v(t+1)}")
SP(f"v_mov_b32 {v(t+1)}, s{S_NONCE}")
for r_ in range(7):
    SP(f"buffer_store_dwordx2 {v(t,2)}, v13, {srd(SRD_WS)}, s{S_T0} offen sc1")
    SP(f"s_add_u32 s{S_T0}, s{S_T0}, {S2REP}")
sps()
SP(f"s_cmp_lg_u32 s{S_W}, 255")
SP("s_cbranch_scc1 L_fin")
SP(f"v_lshlrev_b32 v4, 25, {v(V_LANE)}")
SP(f"buffer_store_dword {v(t+1)}, v4, {srd(SRD_WS)}, 0 offen sc1")
SP("s_branch L_fin")


def b_read(J, ks):
    q = sub()
    b = BF + 4 * (ks % NBF)
    o = 112 * (J & 1) + 4 * ks
    q(f"ds_read2st64_b32 {v(b,2)}, {v(V_BR)} offset0:{o} offset1:{o+1}")
    q(f"ds_read2st64_b32 {v(b+2,2)}, {v(V_BR2)} offset0:{o} offset1:{o+1}", tok=f"b{J}_{ks}")
    return q.ins


def g1_gaps(J, extra_after=None):
    m = sub()
    g0 = GACC[J & 1]
    for ks in range(28):
        for mm in range(2):
            d = g0 + 16 * mm
            c = "0" if ks == 0 else v(d, 16)
            m(f"v_mfma_f32_32x32x16_bf16 {v(d,16)}, {acc(wfrag(mm,ks),4)}, {v(BF+4*(ks%NBF),4)}, {c}")
    for mm in range(2):
        d = g0 + 16 * mm
        m(f"v_mfma_f32_32x32x16_bf16 {v(d,16)}, {acc(A_CS[mm],4)}, {v(MB,4)}, {v(d,16)}")
    g = Gaps(m.ins, 6)
    for ks in range(28):
        k2 = ks + NBF - 1
        if k2 < 28:
            r = b_read(J, k2)
            g.at(2 * ks, [r[0]])
            g.at(2 * ks + 1, [r[1]])
        if ks % 3 == 2 and ks + 1 < 28:
            w = sub()
            w.wait(f"b{J}_{min(ks+3,27)}")
            g.at(2 * ks + 1, w.ins)
    return g


def next_tile_reads(g, J, delta, first=42):
    q = sub()
    if delta:
        q(f"v_add_u32 {v(V_BR)}, {delta}, {v(V_BR)}")
        q(f"v_add_u32 {v(V_BR2)}, {delta}, {v(V_BR2)}")
    g.at(first, q.ins)
    for ks in range(NBF - 1):
        old = max(k for k in range(28) if k % NBF == ks)
        r = b_read(J, ks)
        at = max(2 * old + 1, first + 1)
        g.at(at, r[:1])
        g.at(min(at + 1, 57), r[1:])


def g1_epi(J):
    q = sub()
    g = GACC[J & 1]
    kc = KC_[J & 1]
    T = EPT
    for j0 in range(0, 16, 4):
        js = range(j0, j0 + 4)
        for j in js:
            q(f"v_mul_f32 {v(T+j-j0)}, {v(g+j)}, {v(g+j)}")
        for j in js:
            q(f"v_fma_f32 {v(T+j-j0)}, {v(T+j-j0)}, {v(kc+1)}, {v(kc)}")
        for j in js:
            q(f"v_mul_f32 {v(T+j-j0)}, {v(T+j-j0)}, {v(g+j)}")
        for j in js:
            q(f"v_exp_f32 {v(T+j-j0)}, {v(T+j-j0)}")
            q(f"v_mul_f32 {v(T+4+j-j0)}, {v(g+j)}, {v(g+16+j)}")
        for j in js:
            q(f"v_fma_f32 {v(T+j-j0)}, {v(T+j-j0)}, {v(kc+2)}, {v(kc+2)}")
        for j in js:
            q(f"v_rcp_f32 {v(T+j-j0)}, {v(T+j-j0)}")
        for j in js:
            q(f"v_mul_f32 {v(T+4+j-j0)}, {v(T+4+j-j0)}, {v(T+j-j0)}")
        q(f"v_cvt_pk_bf16_f32 {v(HP+(j0//2)%4)}, {v(T+4)}, {v(T+5)}")
        q(f"v_cvt_pk_bf16_f32 {v(HP+(j0//2)%4+1)}, {v(T+6)}, {v(T+7)}")
        if j0 in (4, 12):
            q2 = j0 // 8
            q(f"buffer_store_dwordx4 {v(HP,4)}, {v(V_HST)}, {srd(SRD_WS)}, 0 offen offset:{512*q2} sc1", tok=f"H{J}")
    q(f"v_add_u32 {v(V_HST)}, {2*57344}, {v(V_HST)}")
    return q.ins


def flag3(J):
    q = sub()
    q.wait(f"H{J}")
    addcnt(q, S_F3, V_FLG)
    q(f"s_add_u32 s{S_F3}, s{S_F3}, 2048")
    return q.ins


WDREG = {}
for i in range(4):
    for rt in range(4):
        WDREG[i, rt] = v(WDV + 16 * i + 4 * rt, 4)
        WDREG[10, rt] = acc(240 + 4 * rt, 4)
        WDREG[11, rt] = v([176, 180, 184, 56][rt], 4)
        WDREG[12, rt] = acc(4 * rt, 4)
        WDREG[13, rt] = acc(16 + 4 * rt, 4)
for i in range(6):
    for rt in range(4):
        WDREG[4 + i, rt] = acc(128 + 16 * i + 4 * rt, 4)
KORD = [0, 1, 2, 3, 10, 11, 12, 13, 4, 5, 6, 7, 8, 9]


def wdr(ft, rt):
    return WDREG[ft, rt]


def wd_load(ft):
    q = sub()
    q(f"s_add_u32 s{S_WOFF}, s{S_WFB}, {ft*4096}")
    for k in range(4):
        of = f" offset:{1024*k}" if k else ""
        q(f"buffer_load_dwordx4 {wdr(ft,k)}, {v(V_L16)}, {srd(SRD_WS)}, s{S_WOFF} offen{of} sc1")
    return q.ins


def wd_dma(ft):
    q = sub()
    sbase, slot = (S_FW, ft - 4) if ft < 6 else (S_R2, ft - 6)
    q(f"s_add_u32 m0, s{sbase}, {slot*4096}")
    q(f"s_add_u32 s{S_WOFF}, s{S_WFB}, {ft*4096}")
    for k in range(4):
        of = f" offset:{1024*k}" if k else ""
        q(f"buffer_load_dwordx4 {v(V_L16)}, {srd(SRD_WS)}, s{S_WOFF} offen{of} sc1 lds", tok=f"wd{ft}")
    return q.ins


def wd_read(ft):
    q = sub()
    va, slot = (V_LF, ft - 4) if ft < 6 else (V_LR, ft - 6)
    for rt in range(4):
        q(f"ds_read_b128 {wdr(ft,rt)}, {v(va)} offset:{4096*slot+1024*rt}")
    return q.ins


def res_read(J):
    q = sub()
    o = 112 * (J & 1)
    q(f"ds_read2st64_b32 {v(RESR[J],2)}, {v(V_RES)} offset0:{o} offset1:{o+1}", tok=f"res{J}")
    if J == 1:
        q(f"v_add_u32 {v(V_RES)}, {L_ACT[1]}, {v(V_RES)}")
    return q.ins


ad = sub()
ad(f"v_lshrrev_b32 v4, 4, v0")
ad(f"v_and_b32 v5, 15, v0")
ad(f"v_lshrrev_b32 v6, 1, v5")
ad(f"v_and_b32 v7, 1, v5")
ad(f"v_lshl_add_u32 v6, v6, 2, v7")
ad(f"v_lshlrev_b32 v6, 7, v6")
ad(f"v_lshl_add_u32 v6, v4, 2, v6")
ad(f"s_lshl_b32 s{S_T0}, s{S_DB}, 12")
ad(f"s_lshl_b32 s{S_T1}, s{S_FH}, 6")
ad(f"s_add_u32 s{S_T0}, s{S_T0}, s{S_T1}")
ad(f"v_add_u32 {v(V_RES)}, s{S_T0}, v6")
ad(f"v_lshrrev_b32 v6, 2, v4")
ad(f"v_and_b32 v7, 3, v4")
ad(f"v_lshl_add_u32 v6, v6, 4, v7")
ad(f"v_mul_u32_u24 v6, 896, v6")
ad(f"v_lshl_add_u32 v6, v5, 3, v6")
ad(f"s_lshr_b32 s{S_T0}, s{S_TB}, 2")
ad(f"s_lshl_b32 s{S_T0}, s{S_T0}, 8")
ad(f"s_add_u32 s{S_T0}, s{S_T0}, s{S_T1}")
ad(f"s_and_b32 s{S_T1}, s{S_TB}, 3")
ad(f"s_lshl_b32 s{S_T1}, s{S_T1}, 2")
ad(f"s_add_u32 s{S_T0}, s{S_T0}, s{S_T1}")
ad(f"s_mul_i32 s{S_T0}, s{S_T0}, 896")
ad(f"s_lshl_b32 s{S_T1}, s{S_DB}, 7")
ad(f"s_add_u32 s{S_T0}, s{S_T0}, s{S_T1}")
ad(f"v_add_u32 {v(V_OST)}, s{S_T0}, v6")
ad(f"v_mul_u32_u24 v6, 272, v5")
ad(f"v_lshl_add_u32 v6, v4, 4, v6")
ad(f"v_add_u32 {v(V_RR)}, {L_R}, v6")
ad(f"v_lshrrev_b32 v4, 4, {v(V_LANE)}")
ad(f"v_mul_u32_u24 v6, 272, v4")
ad(f"v_lshl_add_u32 v6, v5, 4, v6")
ad(f"s_mul_i32 s{S_T0}, s{S_V}, 4352")
ad(f"s_add_u32 s{S_T0}, s{S_T0}, {L_R}")
ad(f"v_add_u32 {v(V_RW)}, s{S_T0}, v6")
lanes_reg(ad, V_FLG, 2, 8)

for i in range(1, 4):
    P(f"v_mov_b32 {v(MB+i)}, 0")
    P(f"v_accvgpr_write_b32 {acc(A_CS[0]+i)}, 0")
    P(f"v_accvgpr_write_b32 {acc(A_CS[1]+i)}, 0")
P.wait("act0")
P("s_waitcnt lgkmcnt(0)")
P("s_barrier")
stamp("gemm1 start")
for ks in range(NBF - 1):
    P.add(b_read(0, ks))

def hreg(J, ft):
    n = KORD.index(ft)
    if J in (0, 3):
        return acc(32 + 4 * n, 4)
    if J == 1:
        return v(64 + 4 * n if n < 8 else 128 + 4 * (n - 8), 4)
    return v(96 + 4 * n if n < 8 else 152 + 4 * (n - 8), 4)


def h_loads(J):
    o = []
    for s_ in KORD:
        q = sub()
        of = f" offset:{1024*(s_%4)}" if s_ % 4 else ""
        so = f"s{S_HR+s_//4}" if s_ >= 4 else "0"
        q(f"buffer_load_dwordx4 {hreg(J,s_)}, {v(V_HL)}, {srd(SRD_WS)}, {so} offen{of} sc1")
        o.append(q.ins)
    if J < 3:
        q = sub()
        q(f"v_add_u32 {v(V_HL)}, {2*57344}, {v(V_HL)}")
        o[-1] += q.ins
    return o


def p3_next():
    q = sub()
    q(f"s_add_u32 s{S_P3}, s{S_P3}, 2048")
    return q.ins


g = g1_gaps(0)
e = pin_vm(g, 0, w4[3:], 1.5)
g.at(e, poll_check(S_P4, 25))
e4 = pin_vm(g, e, [wd_load(0), wd_load(1), wd_load(2), wd_load(3)], 2.2)
t4 = w_tr(6, 0, 8, "t4") + w_tr(6, 1, 12, "t4")
g.at(30, waitq("w4"))
pin_spread(g, 30, t4, per=2)
e = g.fill(ad2.ins[NAD2:] + ad.ins, start=0)
assert e < 34, e
g.at(41, waitq("t4") + cs_mfma(24, 28))
cf = sub()
for m in range(2):
    round_bf16(cf, 54, CSA[m])
    cf(f"v_sub_f32 v55, {v(CSA[m])}, v54")
    cf(f"v_cvt_pk_bf16_f32 v54, v54, v55")
    cf(f"v_accvgpr_write_b32 {acc(A_CS[m])}, v54")
g.fill(cf.ins, start=44, end=52)
g.at(int(OPT.get("pb1", 21)), poll_issue(S_PA, 23))
g.at(int(OPT.get("pb2", 37)), poll_issue(S_PA, 25))
g.at(int(OPT.get("st0", 36)), st_issue(0))
pin_vm(g, e4, [wd_dma(4)], 2.5)
g.at(53, stq("t0 pre st") + st_check(0) + stq("t0 post st"))
g.fill(st_final(0), start=53, end=55)
g.at(57, stq("t0 pre pB") + poll_check2(S_PA, 23, 25, "3", f"s{S_E28}") + stq("t0 post pB"))
bq = sub()
bq.wait("act1")
bq("s_barrier")
g.at(27, bq.ins)
next_tile_reads(g, 1, 0, first=41)
P.add(g.out())
stamp("tile0")
g = g1_gaps(1)
e = pin_vm(g, 0, act_dma(2)[:1] + [st_issue(1)] + act_dma(2)[1:] + act_dma(3), 2)
pin_vm(g, e + 1, [wd_dma(5), wd_load(10)], 2.5)
g.at(43, res_read(0))
g.at(45, res_read(1))
g.at(40, st_check(1))
g.fill(st_final(1), start=41, end=54)
bq = sub()
bq.wait("act3")
bq.wait("res1")
bq("s_barrier")
BB = int(OPT.get("bb", 52))
g.at(BB, stq("t1 pre bar") + bq.ins + stq("t1 post bar"))
next_tile_reads(g, 2, L_ACT[1], first=BB)
e = g.fill(g1_epi(0), start=3)
print("tile 1: epilogue ends at gap", e, "tail", len(g.tail))
P.add(g.out())
stamp("tile1")
g = g1_gaps(2)
pin_vm(g, 0, [wd_dma(6), wd_dma(7), st_issue(2), wd_dma(8), wd_dma(9), wd_load(11), st_issue(3)], 2.5)
g.at(24, flag3(0))
g.at(49, st_check(2))
g.fill(st_final(2), start=50, end=54)
g.at(56, poll_issue(S_P3, 7))
next_tile_reads(g, 3, 0, first=41)
e = g.fill(g1_epi(1), start=3)
print("tile 2: epilogue ends at gap", e, "tail", len(g.tail))
P.add(g.out())
stamp("tile2")
g = g1_gaps(3)
T3S = float(OPT.get("t3s", 2.4))
e = pin_vm(g, 4, [wd_load(12), wd_load(13)], T3S)
g.at(int(OPT.get("f1", 21)), flag3(1))
g.at(48, st_check(3))
g.fill(st_final(3), start=49, end=54)
g.at(e - 1, stq("t3 pre p0") + poll_check(S_P3, 7) + stq("t3 post p0") + p3_next())
pin_vm(g, e, h_loads(0), T3S)
g.at(int(OPT.get("p1", 47)), poll_issue(S_P3, 7))
g.at(52, res_read(2))
g.at(54, res_read(3))
e = g.fill(g1_epi(2), start=2)
print("tile 3: epilogue ends at gap", e, "tail", len(g.tail))
P.add(g.out())
stamp("tile3")
P.add(waitq("wd9") + wd_read(4) + wd_read(5))
ep = g1_epi(3)
h1 = h_loads(1)
NE = int(OPT.get("ne", 3))
P.add(sprinkle(ep, [(int(OPT.get("f2", 120)), flag3(2))] + [(68, poll_check(S_P3, 7) + p3_next())] + [(69 + 22 * i, h1[i]) for i in range(NE)]))
stamp("epi3")

OA = [8, 48]
OA = [224, 96]
RT = 176


def g2_mfma(J):
    m = sub()
    for ft in KORD:
        for rt in range(4):
            d = acc(OA[J & 1] + 4 * rt, 4)
            c = "0" if ft == 0 else d
            m(f"v_mfma_f32_16x16x32_bf16 {d}, {wdr(ft,rt)}, {hreg(J,ft)}, {c}")
    return m.ins


RTMP = [28, 32, 36, 12]


def red_write(J):
    q = sub()
    for rt in range(4):
        q(f"ds_write_b128 {v(V_RW)}, {acc(OA[J&1]+4*rt,4)} offset:{(J&1)*R_SZ + rt*1088}")
    return q.ins


def red_bar():
    q = sub()
    q("s_waitcnt lgkmcnt(0)")
    q("s_barrier")
    return q.ins


def red_read(J):
    q = sub()
    for w in range(4):
        q(f"ds_read_b128 {v(RTMP[w],4)}, {v(V_RR)} offset:{(J&1)*R_SZ + w*4352}")
    return q.ins


def red_fin(J):
    q = sub()
    a, b, c, d = RTMP
    for i in range(2):
        q(f"v_lshlrev_b32 {v(16+2*i)}, 16, {v(RESR[J]+i)}")
        q(f"v_and_b32 {v(17+2*i)}, 0xffff0000, {v(RESR[J]+i)}")
    for i in range(4):
        q(f"v_add_f32 {v(a+i)}, {v(a+i)}, {v(b+i)}")
    for i in range(4):
        q(f"v_add_f32 {v(c+i)}, {v(c+i)}, {v(d+i)}")
    for i in range(4):
        q(f"v_add_f32 {v(a+i)}, {v(a+i)}, {v(16+i)}")
    for i in range(4):
        q(f"v_add_f32 {v(a+i)}, {v(a+i)}, {v(c+i)}")
    if "eps" in OPT:
        for i in range(4):
            q(f"v_mul_f32 {v(a+i)}, {f32(1.0+float(OPT['eps']))}, {v(a+i)}")
    for i in range(2):
        q(f"v_cvt_pk_bf16_f32 {v(20+i)}, {v(a+2*i)}, {v(a+2*i+1)}")
    q(f"s_mov_b32 s{S_T0}, {(1024*(J>>1) + 128*(J&1))*896}")
    q(f"buffer_store_dwordx2 v[20:21], {v(V_OST)}, {srd(SRD_OUT)}, s{S_T0} offen {OPT.get('ost', '').replace('_', ' ')}")
    return q.ins


for J in range(4):
    g = Gaps(g2_mfma(J), 2)
    if J > 0:
        pin_spread(g, 4, red_write(J - 1), per=1)
        g.at(16, red_bar())
        pin_spread(g, 17, red_read(J - 1), per=1)
        g.fill(red_fin(J - 1), start=28)
    if J == 0:
        pin_vm(g, 0, h1[NE:], float(OPT.get("hs1", 4)))
        for i, x in enumerate(wd_read(6) + wd_read(7) + wd_read(8) + wd_read(9)):
            g.at(1 + 2 * i, [x])
        g.at(int(OPT.get("p2a", 18)), poll_issue(S_P3, 7))
        g.at(int(OPT.get("p2b", 36)), poll_issue(S_P3, 23))
        g.at(int(OPT.get("f3", 42)), flag3(3))
        bq = sub()
        bq.wait("res3")
        bq("s_barrier")
        g.at(52, bq.ins)
        g.at(55, poll_check2(S_P3, 7, 23, "1", f"s{S_E14}") + p3_next())
    if J == 1:
        pin_vm(g, 0, h_loads(2), float(OPT.get("hs", 3.5)))
        g.at(int(OPT.get("p3a", 14)), poll_issue(S_P3, 7))
        g.at(int(OPT.get("p3b", 32)), poll_issue(S_P3, 23))
        g.at(55, poll_check2(S_P3, 7, 23, "1", f"s{S_E14}"))
    if J == 2:
        pin_vm(g, 0, h_loads(3), float(OPT.get("hs3", 2)))
    P.add(g.out())
    stamp(f"g2 tile{J}")
P.add(red_write(3))
P.add(red_bar())
P.add(red_read(3))
P.add(red_fin(3))
stamp("end")

if "hold" in OPT:
    if "cls" in OPT:
        P(f"s_and_b32 s98, s{S_W}, 7")
        P(f"s_cmp_lg_u32 s98, {OPT['cls']}")
        P("s_cbranch_scc1 L_fin")
    P("L_hold:")
    P("s_memrealtime s[98:99]")
    P("s_waitcnt lgkmcnt(0)")
    P("s_sub_u32 s98, s98, s100")
    P("s_cmp_lt_u32 s98, 4000")
    P("s_cbranch_scc1 L_hold")
P("L_fin:")
if STAMPS:
    P(f"s_lshl_b32 s{S_T0}, s{S_W}, 2")
    P(f"s_add_u32 s{S_T0}, s{S_T0}, s{S_V}")
    P(f"s_lshl_b32 s{S_T0}, s{S_T0}, 8")
    P(f"s_add_u32 s{S_T0}, s{S_T0}, {WS_DBG + 0x800000}")
    P(f"v_lshlrev_b32 v4, 2, v1")
    P(f"buffer_store_dword v255, v4, {srd(SRD_WS)}, s{S_T0} offen")
if "dbgout" in OPT:
    P(f"s_cmp_ge_u32 s{S_W}, 224")
    P("s_cbranch_scc1 L_end")
    P(f"v_readlane_b32 s{S_T0}, v255, 0")
    P(f"s_not_b32 s{S_T0}, s{S_T0}")
    P(f"v_writelane_b32 v255, s{S_T0}, 15")
    P("s_mov_b64 exec, 0xffff")
    P(f"v_lshlrev_b32 v4, 2, v1")
    P("global_atomic_umax v4, v255, s[60:61]")
P("L_end:")
P("s_endpgm")

res = finalize(P.ins, verbose=True) + finalize(TAIL.ins) + finalize(SP.ins)
if "report" in OPT:
    report_waits(finalize(P.ins))
launch = f"; @launch kernel={KN} grid" if ("list" in OPT or STAMPS) else "; @launch grid"
hdr = f"""; Fused pre-LN S4D conv + GEGLU FFN, one persistent launch (generated by my own script)
{launch}=(256,1,1) block=(256,1,1) lds={LDS_SIZE}
.amdgcn_target "amdgcn-amd-amdhsa--gfx950"
.text
.globl {KN}
.p2align 8
.type {KN},@function
{KN}:
"""
ftr = f"""
.p2align 8
.fill 64, 4, 0xbf800000
L_codeend:
.section .rodata,"a"
.p2align 6
.amdhsa_kernel {KN}
  .amdhsa_next_free_vgpr 512
  .amdhsa_next_free_sgpr 102
  .amdhsa_accum_offset 256
  .amdhsa_group_segment_fixed_size 0
  .amdhsa_kernarg_size 112
  .amdhsa_user_sgpr_count 2
  .amdhsa_user_sgpr_kernarg_segment_ptr 1
  .amdhsa_system_sgpr_workgroup_id_x 1
.end_amdhsa_kernel
"""
body = text_of(res)
if "noalign" not in OPT:
    body = align_pass(hdr, body, ftr)
open(OUTF, "w").write(hdr + body + ftr)
src = open(__file__).read()
a = src.index("# ---------------- workspace layout")
b = src.index("# ---------------- LDS layout")
open("layout.py", "w").write(src[a:b] + "\nSTAMP_NAMES = " + repr(stamp_names) + "\nSPIN_NAMES = " + repr(spin_names) + "\n")
```

```python
import re

REG_RE = re.compile(r"^(-|abs\()?([vas])(\d+|\[(\d+):(\d+)\])\)?$")
TRANS = ("v_exp_f32", "v_log_f32", "v_rcp_f32", "v_rsq_f32", "v_sqrt_f32", "v_sin_f32", "v_cos_f32")


def regs_of(tok):
    tok = tok.strip()
    if tok in ("vcc",):
        return {"vcc"}
    if tok in ("exec",):
        return {"exec"}
    if tok == "m0":
        return {"m0"}
    m = REG_RE.match(tok)
    if not m:
        return set()
    k = m.group(2)
    if m.group(4) is not None:
        return {f"{k}{i}" for i in range(int(m.group(4)), int(m.group(5)) + 1)}
    return {f"{k}{m.group(3)}"}


def split_ops(s):
    out, depth, cur = [], 0, ""
    for ch in s:
        if ch in "[(":
            depth += 1
        if ch in "])":
            depth -= 1
        if ch == "," and depth == 0:
            out.append(cur.strip())
            cur = ""
        else:
            cur += ch
    if cur.strip():
        out.append(cur.strip())
    return out


class Ins:
    __slots__ = ("text", "mn", "ops", "mods", "rd", "wr", "cls", "passes", "tok", "cond", "srcC", "srcAB", "extra")

    def __init__(self, text, tok=None, cond=False):
        self.text = text
        self.tok = tok
        self.cond = cond
        self.extra = None
        t = text.split(";")[0].strip()
        self.rd, self.wr = set(), set()
        self.passes = 0
        self.srcC = set()
        self.srcAB = set()
        if t.endswith(":") or t.startswith(".") or not t:
            self.mn, self.ops, self.mods, self.cls = t, [], "", "label" if t.endswith(":") else "dir"
            return
        parts = t.split(None, 1)
        mn = parts[0]
        rest = parts[1] if len(parts) > 1 else ""
        ops = split_ops(rest)
        mods = ""
        if ops:
            last = ops[-1].split(None, 1)
            if len(last) > 1 and not mn.startswith("s_waitcnt"):
                ops[-1] = last[0]
                mods = last[1]
        self.mn, self.ops, self.mods = mn, ops, mods
        base = re.sub(r"_(e32|e64|dpp|sdwa)$", "", mn)
        R = [regs_of(o) for o in ops]
        allr = lambda idx: set().union(*[R[i] for i in idx]) if idx else set()
        n = len(ops)
        if mn.startswith("v_mfma"):
            self.cls = "mfma"
            self.passes = 8 if "32x32x16" in mn else (4 if "16x16x32" in mn else 2)
            self.wr = R[0]
            self.srcAB = R[1] | R[2]
            self.srcC = R[3]
            self.rd = self.srcAB | self.srcC
        elif mn.startswith("v_"):
            self.cls = "valu"
            if base in TRANS:
                self.cls = "trans"
            if base.startswith("v_dot2"):
                self.cls = "dot"
            if base in ("v_swap_b32",) or base.startswith("v_permlane"):
                self.wr = R[0] | R[1]
                self.rd = R[0] | R[1]
                if base.startswith("v_permlane"):
                    self.extra = "permlane"
            elif base in ("v_add_co_u32", "v_sub_co_u32", "v_addc_co_u32", "v_subb_co_u32"):
                self.wr = R[0] | R[1]
                self.rd = allr(range(2, n))
            else:
                self.wr = R[0]
                self.rd = allr(range(1, n))
                if base in ("v_fmac_f32", "v_dot2c_f32_bf16", "v_writelane_b32") or "_dpp" in mn or "row_" in mods or "quad_perm" in mods:
                    self.rd |= R[0]
                if "_dpp" in mn or "row_" in mods or "quad_perm" in mods:
                    self.extra = "dpp"
                if base in ("v_readfirstlane_b32", "v_readlane_b32"):
                    self.extra = "readlane"
                if base.startswith("v_dot2"):
                    self.srcC = R[0] if base.startswith("v_dot2c") else R[3]
                    self.srcAB = R[1] | R[2]
        elif mn.startswith("ds_"):
            self.cls = "ds"
            if mn.startswith("ds_read") or mn.startswith("ds_bpermute") or mn.startswith("ds_swizzle"):
                self.wr = R[0]
                self.rd = allr(range(1, n))
                if "d16" in mn:
                    self.rd |= R[0]
            else:
                self.rd = allr(range(n))
            if "addtid" in mn:
                self.rd |= {"m0"}
                self.extra = "dma"
        elif mn.startswith("buffer_") or mn.startswith("global_"):
            self.cls = "vmem"
            islds = " lds" in (" " + mods)
            if "_load" in mn and not islds:
                self.wr = R[0]
                self.rd = allr(range(1, n))
            elif "_atomic" in mn and "sc0" in mods:
                self.wr = R[0]
                self.rd = allr(range(n))
            else:
                self.rd = allr(range(n))
                if islds:
                    self.rd |= {"m0"}
                    self.extra = "dma"
                elif "x4" in mn or "x3" in mn:
                    self.extra = "widestore"
        elif mn.startswith("s_load") or mn.startswith("s_mem"):
            self.cls = "smem"
            self.wr = R[0]
            self.rd = allr(range(1, n))
        elif mn.startswith("s_"):
            self.cls = "salu"
            if mn in ("s_waitcnt", "s_barrier", "s_nop", "s_endpgm", "s_sleep", "s_setprio") or mn.startswith("s_cbranch") or mn == "s_branch":
                self.cls = "ctl"
            elif mn.startswith("s_cmp") or mn.startswith("s_bitcmp"):
                self.rd = allr(range(n))
            else:
                self.wr = R[0]
                self.rd = allr(range(1, n))
                if "saveexec" in mn:
                    self.wr |= {"exec"}
        else:
            raise ValueError("unknown instruction: " + text)

    def states(self):
        if self.cls in ("label", "dir"):
            return 0
        if self.mn == "s_nop":
            return int(self.ops[0]) + 1
        return 1


def need_states(p, c):
    n = 0
    pv = p.cls in ("valu", "trans", "dot")
    cv = c.cls in ("valu", "trans", "dot")
    if pv:
        vw = {r for r in p.wr if r[0] in "va" and r != "vcc"}
        sw = {r for r in p.wr if r[0] == "s" or r == "vcc"}
        if c.cls == "mfma" and vw & c.rd:
            n = max(n, 2)
        if c.extra == "dpp" and vw & c.rd:
            n = max(n, 2)
        if c.extra == "permlane" and vw & c.rd:
            n = max(n, 2)
        if c.extra == "readlane" and vw & c.rd:
            n = max(n, 1)
        if sw & c.rd:
            if cv:
                n = max(n, 4 if c.extra == "readlane" else 2)
            if c.cls == "vmem":
                n = max(n, 5)
        if p.cls == "trans" and vw & c.rd and c.cls != "trans":
            n = max(n, 1)
        if p.cls == "dot":
            if c.cls == "dot" and c.mn == p.mn:
                if vw & c.srcAB:
                    n = max(n, 3)
            elif vw & (c.rd | c.wr):
                n = max(n, 3)
    if p.cls == "mfma":
        P = p.passes
        long = {2: 5, 4: 8, 8: 12}[P]
        if c.cls == "mfma":
            if p.wr & c.srcAB:
                n = max(n, long)
            if p.wr & c.srcC:
                if p.wr == c.srcC and c.passes == P:
                    n = max(n, 2 if P == 2 else 0)
                else:
                    n = max(n, P + 2)
            elif p.wr & c.wr:
                n = max(n, P + 2)
        elif p.wr & (c.rd | c.wr):
            n = max(n, long)
        if cv and p.srcC & c.wr:
            n = max(n, {2: 1, 4: 3, 8: 7}[P])
    if p.extra == "widestore":
        data = regs_of(p.ops[0]) if p.mn.startswith("buffer_") else regs_of(p.ops[1])
        if data & c.wr:
            n = max(n, 2)
    if p.cls == "salu" and "m0" in p.wr and c.extra == "dma":
        n = max(n, 1)
    return n


class Prog:
    def __init__(self):
        self.ins = []
        self._cond = False

    def __call__(self, text, tok=None):
        for line in text.split("\n"):
            line = line.strip()
            if not line or (line.startswith(";") and not line.startswith("; @")):
                continue
            self.ins.append(Ins(line, tok=tok, cond=self._cond))

    def raw(self, text):
        i = Ins(".raw")
        i.text = "    " + text
        self.ins.append(i)

    def add(self, lst):
        for i in lst:
            self.ins.append(i)

    def cond(self, on):
        self._cond = on

    def wait(self, tok):
        i = Ins("s_waitcnt auto", cond=self._cond)
        i.extra = ("wait", tok)
        self.ins.append(i)

    def lds_fence(self):
        self("s_waitcnt lgkmcnt(0)")


def sub():
    return Prog()


def interleave(main, fill, start=0, every=None, weights=None):
    idx = [k for k, i in enumerate(main) if i.cls == "mfma"]
    idx = idx[start:]
    if not idx:
        return main + fill
    n = len(idx)
    cost = lambda i: 2 if i.cls == "trans" else (0 if (i.extra and isinstance(i.extra, tuple)) else 1)
    total = sum(cost(i) for i in fill)
    out = []
    fi = 0
    done = 0
    seen = 0
    for k, i in enumerate(main):
        out.append(i)
        if k in idx:
            seen += 1
            target = total * seen / n if every is None else min(total, every * seen)
            while fi < len(fill) and done + cost(fill[fi]) <= target + 1e-9:
                out.append(fill[fi])
                done += cost(fill[fi])
                fi += 1
    out += fill[fi:]
    return out


def finalize(ins, verbose=False):
    out = []
    vm = []
    lg = []
    smem_out = []

    def emit_wait(vmn=None, lgn=None, cond=False):
        parts = []
        if vmn is not None:
            parts.append(f"vmcnt({min(vmn, 62)})")
        if lgn is not None:
            parts.append(f"lgkmcnt({min(lgn, 14)})")
        w = Ins("s_waitcnt " + " ".join(parts), cond=cond)
        out.append(w)

    def younger(lst, k, cond):
        return sum(1 for j in lst[k + 1:] if (not j.cond) or cond)

    for i in ins:
        if isinstance(i.extra, tuple) and i.extra[0] == "wait":
            tok = i.extra[1]
            kv = max([k for k, j in enumerate(vm) if j.tok == tok], default=None)
            kl = max([k for k, j in enumerate(lg) if j.tok == tok], default=None)
            if kv is not None or kl is not None:
                emit_wait(None if kv is None else younger(vm, kv, i.cond), None if kl is None else younger(lg, kl, i.cond), i.cond)
                if not i.cond:
                    if kv is not None:
                        vm = vm[kv + 1:]
                    if kl is not None:
                        lg = lg[kl + 1:]
                else:
                    if kv is not None:
                        vm = [j for k, j in enumerate(vm) if not (k <= kv and j.cond)]
                    if kl is not None:
                        lg = [j for k, j in enumerate(lg) if not (k <= kl and j.cond)]
            continue
        if i.mn == "s_waitcnt":
            t = i.text
            m = re.search(r"vmcnt\((\d+)\)", t)
            if m:
                n = int(m.group(1))
                assert n == 0, "manual counted vmcnt not supported"
                vm = [] if not i.cond else [j for j in vm if not j.cond]
            m = re.search(r"lgkmcnt\((\d+)\)", t)
            if m:
                assert int(m.group(1)) == 0
                if not i.cond:
                    lg = []
                    smem_out = []
                else:
                    lg = [j for j in lg if not j.cond]
            out.append(i)
            continue
        touched = i.rd | i.wr
        for j in smem_out:
            assert not (j.wr & touched), f"use of SMEM result without lgkmcnt(0): {i.text}"
        kv = max([k for k, j in enumerate(vm) if j.wr & touched], default=None)
        kl = max([k for k, j in enumerate(lg) if j.wr & touched], default=None)
        if kl is not None and i.cls == "ds" and "d16" in i.mn and not (lg[kl].wr & (i.rd - i.wr)):
            kl = None
        if kl is not None and not any(j.cond for j in lg):
            kl = max(kl, len(lg) - 1 - 14)
        if kv is not None or kl is not None:
            if kl is not None and smem_out:
                emit_wait(None if kv is None else younger(vm, kv, i.cond), 0, i.cond)
                if not i.cond:
                    lg = []
                    smem_out = []
            else:
                emit_wait(None if kv is None else younger(vm, kv, i.cond), None if kl is None else younger(lg, kl, i.cond), i.cond)
            if not i.cond:
                if kv is not None:
                    vm = vm[kv + 1:]
                if kl is not None and lg:
                    lg = lg[kl + 1:]
            else:
                if kv is not None:
                    vm = [j for k, j in enumerate(vm) if not (k <= kv and j.cond)]
                if kl is not None:
                    lg = [j for k, j in enumerate(lg) if not (k <= kl and j.cond)]
        out.append(i)
        if i.cls == "vmem":
            vm.append(i)
            assert len(vm) <= 63, "too many outstanding vmem ops at " + i.text
        elif i.cls == "ds":
            lg.append(i)
        elif i.cls == "smem":
            smem_out.append(i)

    res = []
    nn = 0
    for i in out:
        if i.cls not in ("label", "dir", "ctl"):
            dist = 0
            need = 0
            for p in reversed(res):
                if dist >= 20:
                    break
                r = need_states(p, i)
                if r > dist:
                    need = max(need, r - dist)
                if not (p.cond and not i.cond):
                    dist += p.states()
            while need > 0:
                k = min(need, 16)
                res.append(Ins(f"s_nop {k-1}", cond=i.cond))
                nn += 1
                need -= k
        res.append(i)
    if verbose:
        print(f"instructions: {len(res)}, nops inserted: {nn}")
    return res


def text_of(res):
    return "\n".join((i.text if i.cls in ("label", "dir") else "    " + i.text) for i in res)


def cost(i):
    if isinstance(i.extra, tuple):
        return 1
    if i.cls == "trans" or i.mn.startswith("v_swap"):
        return 2
    if i.cls in ("label", "dir"):
        return 0
    if i.cls == "vmem":
        return 5 if "store_dwordx4" in i.mn else 3
    return 1


class Gaps:
    def __init__(self, mfmas, cap):
        self.m = mfmas
        self.n = len(mfmas)
        self.cap = cap
        self.pin = [[] for _ in mfmas]
        self.fil = [[] for _ in mfmas]
        self.tail = []

    def used(self, k):
        return sum(cost(i) for i in self.pin[k]) + sum(cost(i) for i in self.fil[k])

    def at(self, k, ins):
        self.pin[min(k, self.n - 1)] += list(ins)

    def fill(self, ins, start=0, end=None, cap=None):
        cap = self.cap if cap is None else cap
        end = self.n if end is None else end
        k = start
        for i in ins:
            while k < end and self.used(k) + cost(i) > cap:
                k += 1
            if k >= end:
                if end >= self.n:
                    self.tail.append(i)
                else:
                    self.fil[end - 1].append(i)
            else:
                self.fil[k].append(i)
        return k

    def out(self):
        o = []
        for k in range(self.n):
            o.append(self.m[k])
            o += self.pin[k]
            o += self.fil[k]
        return o + self.tail


def sprinkle(main, inserts):
    d = {}
    for k, l in inserts:
        d.setdefault(min(k, len(main)), []).extend(l)
    o = []
    for k, i in enumerate(main):
        o += d.get(k, [])
        o.append(i)
    o += d.get(len(main), [])
    return o


def report_waits(res, vm_min=1100, lg_min=120):
    t = 0
    nm = 0
    vm, lg = [], []
    mark = "start"
    for i in res:
        if i.cls == "dir" and i.text.startswith("; @"):
            print(f"--- t={t} {i.text}")
            continue
        if i.cls in ("label", "dir"):
            continue
        if i.cls == "mfma":
            t = max(t, nm)
            nm = t + 4 * i.passes
            t += 8
            continue
        if i.mn == "s_waitcnt":
            m = re.search(r"vmcnt\((\d+)\)", i.text)
            if m:
                n = int(m.group(1))
                if len(vm) > n:
                    tt, j = vm[len(vm) - n - 1]
                    if t - tt < vm_min:
                        print(f"   t={t} vm wait age {t-tt}: {j.text[:70]}")
                    vm = vm[len(vm) - n:] if n else []
            m = re.search(r"lgkmcnt\((\d+)\)", i.text)
            if m:
                n = int(m.group(1))
                if len(lg) > n:
                    tt, j = lg[len(lg) - n - 1]
                    if t - tt < lg_min:
                        print(f"   t={t} lgkm wait age {t-tt}: {j.text[:70]}")
                    lg = lg[len(lg) - n:] if n else []
            t += 4
            continue
        if i.cls == "vmem":
            vm.append((t, i))
            t += 12
        elif i.cls == "ds":
            lg.append((t, i))
            t += 8
        elif i.mn == "s_nop":
            t += 4 * i.states()
        else:
            t += 4 * cost(i)
    print(f"--- t={t} end")


NO_E64 = ("v_readfirstlane_b32", "v_swap_b32", "v_permlane32_swap_b32", "v_permlane16_swap_b32", "v_dot2c_f32_bf16",
          "v_accvgpr_mov_b32", "v_nop")


def align_pass(hdr, body, ftr, tmp="_al"):
    import subprocess
    open(tmp + ".s", "w").write(hdr + body + ftr)
    subprocess.run(["clang", "-x", "assembler", "-target", "amdgcn-amd-amdhsa", "-mcpu=gfx950", "-c", tmp + ".s", "-o", tmp + ".o"], check=True)
    dis = subprocess.run(["llvm-objdump", "-d", "--mcpu=gfx950", tmp + ".o"], capture_output=True, text=True, check=True).stdout
    sizes = []
    for l in dis.split("\n"):
        m = re.search(r"// [0-9A-F]{12}: ((?:[0-9A-F]{8} ?)+)", l)
        if m:
            sizes.append(4 * len(m.group(1).split()))
    lines = body.split("\n")
    idx = [k for k, l in enumerate(lines) if l.startswith("    ") and not l.strip().startswith((";", "."))]
    sizes = sizes[:len(idx)]
    n = len(idx)
    alt = []
    for k, sz in zip(idx, sizes):
        t = lines[k].split(None, 1)
        mn = t[0]
        ops = [o.strip() for o in t[1].split(",")] if len(t) > 1 else []
        a_ = None
        if sz == 4 and mn.startswith("v_") and mn not in NO_E64 and not mn.endswith(("_e64", "_dpp", "_sdwa")):
            a_ = f"    {mn}_e64 {t[1]}"
        elif sz == 4 and mn == "s_mov_b32" and ops[0] == "m0" and ops[1].startswith("s"):
            a_ = f"    s_and_b32 m0, {ops[1]}, 0x7fffffff"
        elif sz == 4 and mn == "s_add_u32" and ops[0] == "m0" and ops[2] == "0":
            a_ = f"    s_and_b32 m0, {ops[1]}, 0x7fffffff"
        elif sz == 8 and mn == "s_mov_b32" and re.fullmatch(r"\d+", ops[1]) and int(ops[1]) < 32768 and ops[0].startswith("s"):
            a_ = f"    s_movk_i32 {ops[0]}, {ops[1]}"
        elif sz == 8 and mn == "s_add_u32" and ops[0] == ops[1] and re.fullmatch(r"\d+", ops[2]) and int(ops[2]) < 32768:
            a_ = f"    s_addk_i32 {ops[0]}, {ops[2]}"
        alt.append(a_)
    INF = 1e18
    cost = [0.0, INF]
    back = []
    for i in range(n):
        nc = [INF, INF]
        bk = [None, None]
        for par in (0, 1):
            if cost[par] >= INF:
                continue
            opts = [(sizes[i], 0.0)] + ([(12 - sizes[i], 0.05)] if alt[i] else [])
            for sz, pen in opts:
                c = cost[par] + pen + (1.0 if (sz == 8 and par == 1) else 0.0)
                np_ = (par + sz // 4) % 2
                if c < nc[np_]:
                    nc[np_] = c
                    bk[np_] = (par, sz)
        cost = nc
        back.append(bk)
    par = 0 if cost[0] <= cost[1] else 1
    total = cost[par]
    wid = 0
    for i in range(n - 1, -1, -1):
        pp, sz = back[i][par]
        if sz != sizes[i]:
            lines[idx[i]] = alt[i]
            wid += 1
        par = pp
    par, base = 0, 0
    for sz in sizes:
        base += (sz == 8 and par == 1)
        par = (par + sz // 4) % 2
    print(f"align: misaligned {base} -> {int(total - 0.05 * wid + 0.5)}, widened {wid}")
    return "\n".join(lines)


def _sizes(hdr, body, ftr, tmp="_al"):
    import subprocess
    open(tmp + ".s", "w").write(hdr + body + ftr)
    subprocess.run(["clang", "-x", "assembler", "-target", "amdgcn-amd-amdhsa", "-mcpu=gfx950", "-c", tmp + ".s", "-o", tmp + ".o"], check=True)
    dis = subprocess.run(["llvm-objdump", "-d", "--mcpu=gfx950", tmp + ".o"], capture_output=True, text=True, check=True).stdout
    sizes = []
    for l in dis.split("\n"):
        m = re.search(r"// [0-9A-F]{12}: ((?:[0-9A-F]{8} ?)+)", l)
        if m:
            sizes.append(4 * len(m.group(1).split()))
    lines = body.split("\n")
    idx = [k for k, l in enumerate(lines) if l.startswith("    ") and not l.strip().startswith((";", "."))]
    return lines, idx, sizes[:len(idx)]


def place_pads(hdr, body, ftr, base, first_label, end_label, nchain=4, align=True):
    src = body.split("\n")
    pos = None
    for it in range(12):
        cur = list(src)
        if pos is not None:
            n = len(pos)
            for k in range(n - 1, -1, -1):
                tgt = f"L_pad{k+nchain}" if k + nchain < n else "L_walk_back"
                cur[pos[k]:pos[k]] = [f"L_pad{k}:", f"    s_cbranch_execz {tgt}"]
            heads = [f".set L_walk{c}, " + (f"L_pad{c}" if c < n else "L_walk_back") for c in range(nchain)]
        else:
            heads = [f".set L_walk{c}, L_walk_back" for c in range(nchain)]
        text = "\n".join(cur + heads)
        if align:
            text = align_pass(hdr, text, ftr)
        lines, idx, sizes = _sizes(hdr, text, ftr)
        off = {}
        a = base
        for k, sz in zip(idx, sizes):
            off[k] = a
            a += sz
        lo = lines.index(first_label + ":")
        hi = lines.index(end_label + ":")
        pads = [k + 1 for k, l in enumerate(lines) if l.startswith("L_pad")]
        pages = [p for p in range(0, a // 4096 + 1) if off[min(k for k in idx if k > lo)] < p * 4096 < off[max(k for k in idx if k < hi)] - 128]
        if pos is not None and len(pads) == len(pages) and all(0 <= off[k] - p * 4096 < 56 for k, p in zip(pads, pages)):
            print("pads at", [off[k] - p * 4096 for k, p in zip(pads, pages)])
            return text
        back = {}
        j = 0
        for k, l in enumerate(lines[:len(cur)]):
            if l.startswith("L_pad") or (k > 0 and lines[k - 1].startswith("L_pad")):
                continue
            back[k] = j
            j += 1
        pos = []
        for p in pages:
            k = min(k for k in idx if k in back and off[k] >= p * 4096 + 16 and not lines[k].strip().startswith(("s_cbranch", "s_cselect")))
            pos.append(back[k])
    raise RuntimeError("pad placement did not converge")
```

```python
import sys, math, struct
from asmgen import *

NAME = "sequential_preLN__ssm_conv_s4d__geglu_ffn__prompt"
KN = NAME + "_kernel"
OPT = {}
for a in sys.argv[1:]:
    k, _, val = a.partition("=")
    OPT[k] = val if val else True
STAMPS = "stamps" in OPT
OUTF = OPT.get("out", "k17.s")
OPT.setdefault("pfpos", "300,300")


def f32(x):
    return "0x%08x" % struct.unpack("<I", struct.pack("<f", x))[0]


FS = 4
FREP = 0x9000
WS_EPOCH = 0
WS_F1 = 0x8000
WS_S2 = 0x58000
S2REP = 0x5000
WS_C = 0x80000
WS_UX = 0xD0000
WS_P = WS_UX + 256 * 14336
PROW = 4352
PGEN = 224 * PROW
WS_H = WS_P + 2 * PGEN
WS_WF = WS_H + 16 * 4 * 56 * 2048
WS_END = WS_WF + 392 * 4096
WS_DBG = 0x1000000
WS_SIZE = 0x2000000
LAYOUT = 5

CS = 4160
TAB_W = 14592
TAB_ROW = 272
L_KC = 58368
L_UX = 75008
L_EX = 0
L_RING = 98304
L_ACT = [0, 65536]
L_F = 131072
L_R = 65536
R_SZ = 17408
LDS_SIZE = 163840

S_W = 2
S_V = 4
S_T0, S_T1, S_T2, S_T3 = 5, 6, 7, 3
SRD_X, SRD_WS, SRD_WG, SRD_WU, SRD_WD, SRD_OUT = 8, 12, 16, 20, 24, 28
S_NONCE = 32
S_CNT = 33
S_EX = 34
S_PR, S_DSK = 64, 65
S_TB, S_FB, S_FH, S_DB = 66, 67, 68, 69
S_A, S_B, S_C, S_D = 70, 72, 74, 76
S_RING = 78
S_WOFF = 79
S_K0 = 80
S_TAB = 81
S_F3 = 82
S_F1, S_F2 = 83, 84
S_M255 = 86
S_FW, S_R2 = 88, 89
S_ACTW = 90
S_UXO = 91
S_PFB = 88
S_HR = 36
S_PA, S_P4, S_P3, S_PST, S_AB, S_WFB = 40, 41, 42, 43, 44, 45
S_E28, S_E14, S_CI = 46, 47, 85
S_F1L = 95
S_UXM = 92
S_REP = 94
S_PERM = 93
S_STAMP = 96


def srd(n):
    return f"s[{n}:{n+3}]"


def v(n, w=1):
    return f"v{n}" if w == 1 else f"v[{n}:{n+w-1}]"


def acc(n, w=1):
    return f"a{n}" if w == 1 else f"a[{n}:{n+w-1}]"


P = Prog()
TAIL = Prog()
nstamp = [0]
stamp_names = []
spin_names = []
LITE = ("start", "conv start", "genA stored", "gemm1 start", "tile3", "end")
if "dbgout" in OPT:
    LITE = ("start", "x arrived", "ln1 done", "kgen r1", "conv start", "genA stored", "gemm1 start", "tile1", "tile3", "end")


def stamp(name, p=None):
    p = P if p is None else p
    p(f"; @ {name}")
    if OPT.get("hold", "").replace("_", " ") == name:
        p(f"s_memrealtime s[100:101]")
        p("s_waitcnt lgkmcnt(0)")
    if STAMPS and ("lite" not in OPT or name in LITE):
        k = nstamp[0]
        assert k < 32
        p(f"s_memrealtime s[{S_STAMP}:{S_STAMP+1}]")
        p(f"s_memtime s[{S_STAMP+2}:{S_STAMP+3}]")
        p("s_waitcnt lgkmcnt(0)")
        p(f"v_writelane_b32 v255, s{S_STAMP}, {k}")
        p(f"v_writelane_b32 v255, s{S_STAMP+2}, {32+k}")
        nstamp[0] += 1
        stamp_names.append(name)


def stq(name):
    q = sub()
    if "dbg" in OPT:
        stamp(name, q)
    return q.ins


lblc = [0]


def label(prefix):
    lblc[0] += 1
    return f"L_{prefix}_{lblc[0]}"


def poll_issue(what, vtmp):
    q = sub()
    q(f"v_mov_b32 {v(vtmp)}, 0")
    if what == "F1":
        q(f"buffer_atomic_add {v(vtmp)}, {v(V_F1)}, {srd(SRD_WS)}, 0 offen sc0")
    else:
        q(f"buffer_atomic_add {v(vtmp)}, {v(V_PM if what == S_PA else V_P1)}, {srd(SRD_WS)}, s{what} offen sc0")
    return q.ins


def spin(t, name, done, reissue, vtag, sleep=2, exp=None):
    t(f"{name}:")
    t(f"s_mov_b32 s{S_CNT}, 0")
    t(f"{name}_l:")
    t("s_mov_b64 exec, vcc")
    t(f"s_sleep {sleep}")
    t.add(reissue)
    t("s_waitcnt vmcnt(0)")
    t(f"v_cmp_ne_u32 vcc, {exp or f's{S_NONCE}'}, {v(vtag)}")
    t("s_mov_b64 exec, -1")
    if STAMPS and "lite" in OPT:
        spin_names.append(name)
        t(f"s_add_u32 s{S_STAMP}, s{S_CNT}, 1")
        t(f"v_writelane_b32 v255, s{S_STAMP}, {10+len(spin_names)-1}")
    t(f"s_cbranch_vccz {done}")
    t(f"s_add_u32 s{S_CNT}, s{S_CNT}, 1")
    t(f"s_cmp_lt_u32 s{S_CNT}, 0x40000")
    t(f"s_cbranch_scc1 {name}_l")
    t(f"s_branch {done}")


def poll_check(what, vtmp):
    q = sub()
    slow, done = label("slow"), label("pdone")
    exp = f"s{S_NONCE}" if what == "F1" else (f"s{S_E14}" if what == S_P3 else f"s{S_E28}")
    q(f"v_cmp_ne_u32 vcc, {exp}, {v(vtmp)}")
    if what == "F1":
        q(f"s_cbranch_vccnz {slow}")
    else:
        q(f"s_and_b64 vcc, vcc, {3 if what == S_PA else 1}")
        q(f"s_cbranch_scc1 {slow}")
    q(f"{done}:")
    spin(TAIL, slow, done, poll_issue(what, vtmp), vtmp, exp=exp, sleep=1)
    return q.ins


def poll_check2(vaddr, v1, v2, mask, exp):
    q = sub()
    slow, done = label("slow"), label("pdone")
    q(f"v_cmp_ne_u32 vcc, {exp}, {v(v1)}")
    q(f"s_and_b64 vcc, vcc, {mask}")
    q(f"s_cbranch_scc0 {done}")
    q.cond(True)
    q(f"v_cmp_ne_u32 vcc, {exp}, {v(v2)}")
    q(f"s_and_b64 vcc, vcc, {mask}")
    q(f"s_cbranch_scc1 {slow}")
    q.cond(False)
    q(f"{done}:")
    spin(TAIL, slow, done, poll_issue(vaddr, v1), v1, exp=exp, sleep=1)
    return q.ins


def setflag(p, soff):
    if "fst" in OPT:
        p(f"buffer_store_dword {v(V_NONCE)}, {v(V_FLG)}, {srd(SRD_WS)}, s{soff} offen sc1")
    else:
        p(f"buffer_atomic_swap {v(V_NONCE)}, {v(V_FLG)}, {srd(SRD_WS)}, s{soff} offen")


def addcnt(p, soff, vl):
    p(f"buffer_atomic_add {v(V_NONCE)}, {v(vl)}, {srd(SRD_WS)}, s{soff} offen")


def lanes_reg(p, dst, n, sh, t1=4):
    p(f"v_and_b32 {v(t1)}, {64-n}, {v(V_LANE)}")
    p(f"v_lshlrev_b32 {v(t1)}, 25, {v(t1)}")
    p(f"v_lshl_add_u32 {v(dst)}, {v(V_LANE)}, {sh}, {v(t1)}")


def waitq(tok):
    q = sub()
    q.wait(tok)
    return q.ins


def cmul(p, z, x, y):
    p(f"v_pk_mul_f32 {v(z,2)}, {v(x,2)}, {v(y,2)} op_sel:[0,0] op_sel_hi:[0,1]")
    p(f"v_pk_fma_f32 {v(z,2)}, {v(x,2)}, {v(y,2)}, {v(z,2)} op_sel:[1,1,0] op_sel_hi:[1,0,1] neg_lo:[1,0,0]")


def round_bf16(p, dst, src):
    p(f"v_cvt_pk_bf16_f32 {v(dst)}, {v(src)}, {v(src)}")
    p(f"v_and_b32 {v(dst)}, 0xffff0000, {v(dst)}")


V_LANE, V_NONCE, V_L16 = 1, 2, 3
V_FLG = 8
V_W = 9
V_TRA = 13
V_TA, V_TB, V_TW = 14, 15, 16
GA = 17
V_F1, V_UXL = 26, 27
V_KA = 28
V_UA = 32
V_EU, V_EXP, V_EXW, V_EXR, V_FL2 = 36, 37, 38, 39, 40
V_GW, V_GX, V_GR, V_S3, V_DSK = 240, 241, 242, 243, 244
V_EU1 = 41
V_DT = 42
V_PM = 43
V_P1 = 252
PR = 44
V_PF = 254

LOG2E = 1.4426950408889634

if OPT.get("hold") == "entry":
    P("s_memrealtime s[100:101]")
P(f"s_cmp_ge_u32 s{S_W}, 256")
P("s_cbranch_scc1 L_end")
P(f"s_load_dwordx16 s[36:51], s[0:1], 0")
if "ksplit" not in OPT:
    P(f"s_load_dwordx8 s[52:59], s[0:1], 64")
    P(f"s_load_dwordx4 s[60:63], s[0:1], 96")
if "nocpf" not in OPT:
    P(f"s_getpc_b64 s[{S_B}:{S_B+1}]")
    P("L_pc:")
    P(f"s_bfe_u32 s{S_T2}, s{S_W}, 0x30003")
    P(f"s_mul_i32 s{S_T2}, s{S_T2}, ((L_codeend-L_pc)/1024)*128")
    P(f"v_cmp_gt_u32 vcc, (L_codeend-L_pc)/1024, v0")
    P(f"s_add_u32 s{S_B}, s{S_B}, s{S_T2}")
    P(f"s_addc_u32 s{S_B+1}, s{S_B+1}, 0")
    P(f"v_lshlrev_b32 v6, 7, v0")
    P(f"s_and_saveexec_b64 s[{S_A}:{S_A+1}], vcc")
    P("s_cbranch_execz L_nocpf")
    P.cond(True)
    P(f"v_mov_b32 v7, s{S_B+1}")
    P(f"v_add_co_u32 v6, vcc, s{S_B}, v6")
    P(f"v_addc_co_u32 v7, vcc, 0, v7, vcc")
    P(f"global_load_dword v251, v[6:7], off")
    P.cond(False)
    P("L_nocpf:")
    P("s_mov_b64 exec, -1")
if STAMPS:
    P("v_mov_b32 v255, 0")
P(f"v_and_b32 {v(V_LANE)}, 63, v0")
P(f"v_lshrrev_b32 v4, 6, v0")
P(f"v_lshlrev_b32 {v(V_L16)}, 4, {v(V_LANE)}")
P(f"v_readfirstlane_b32 s{S_V}, v4")
P(f"v_mov_b32 v5, 0x7ff00000")
P(f"v_cmp_gt_u32 vcc, 56, {v(V_LANE)}")
P(f"s_lshl_b32 s{S_T0}, s{S_W}, 2")
P(f"s_add_u32 s{S_T0}, s{S_T0}, s{S_V}")
P(f"v_cndmask_b32 v4, v5, {v(V_L16)}, vcc")
P(f"s_mul_i32 s{S_T0}, s{S_T0}, 1792")
P(f"s_and_b32 s{S_T1}, s{S_W}, 7")
P(f"s_mul_i32 s{S_T1}, s{S_T1}, 28")
P(f"s_lshr_b32 s{S_T2}, s{S_W}, 3")
P(f"s_add_u32 s{S_T1}, s{S_T1}, s{S_T2}")
P(f"s_min_u32 s{S_PR}, s{S_T1}, 223")
P(f"s_lshl_b32 s{S_T2}, s{S_PR}, 10")
P(f"v_lshl_add_u32 v6, v0, 2, s{S_T2}")
P(f"v_mov_b32 v7, 0")
P(f"s_lshl_b32 s{S_T1}, s{S_PR}, 2")
P(f"v_mov_b32 v56, s{S_T1}")
P(f"s_mov_b32 s{SRD_X+2}, 1835008")
P(f"s_mov_b32 s{SRD_X+3}, 0x00020000")
P(f"s_mov_b32 s{SRD_WS+2}, {WS_SIZE}")
P(f"s_mov_b32 s{SRD_WS+3}, 0x00020000")
P("s_waitcnt lgkmcnt(0)")
stamp("start")
P(f"s_mov_b64 s[{SRD_X}:{SRD_X+1}], s[36:37]")
XR = 48
P(f"buffer_load_dwordx4 {v(XR,4)}, v4, {srd(SRD_X)}, s{S_T0} offen")
P(f"buffer_load_dwordx4 {v(XR+4,4)}, v4, {srd(SRD_X)}, s{S_T0} offen offset:896")
if "ksplit" in OPT:
    P(f"s_load_dwordx8 s[52:59], s[0:1], 64")
    P(f"s_load_dwordx4 s[60:63], s[0:1], 96")
for r, src, sz in ((SRD_WG, 52, 1605632), (SRD_WU, 54, 1605632), (SRD_WD, 56, 1605632), (SRD_OUT, 58, 1835008)):
    P(f"s_mov_b32 s{r+2}, {sz}")
    P(f"s_mov_b32 s{r+3}, 0x00020000")
P(f"v_cmp_lt_u32 vcc, {int(OPT.get('nrep', 4))+1}, {v(V_LANE)}")
P(f"v_mul_u32_u24 v4, {FREP}, {v(V_LANE)}")
P(f"s_lshr_b32 s{S_T0}, s{S_W}, 3")
P(f"s_mul_i32 s{S_T1}, s{S_T0}, 37")
P(f"v_cndmask_b32 {v(V_FLG)}, v4, v5, vcc")
P(f"s_lshr_b32 s{S_T1}, s{S_T1}, 8")
P(f"s_mul_i32 s{S_T2}, s{S_T1}, 7")
P(f"s_sub_u32 s{S_DB}, s{S_T0}, s{S_T2}")
P(f"s_and_b32 s{S_FH}, s{S_W}, 1")
P(f"s_and_b32 s{S_T2}, s{S_W}, 6")
P(f"s_lshl_b32 s{S_T2}, s{S_T2}, 1")
P(f"s_add_u32 s{S_TB}, s{S_T2}, s{S_T1}")
P(f"s_mul_i32 s{S_FB}, s{S_FH}, 7")
P(f"s_add_u32 s{S_FB}, s{S_FB}, s{S_DB}")
P(f"s_lshl_b32 s{S_RING}, s{S_V}, 13")
P(f"s_add_u32 s{S_RING}, s{S_RING}, {L_RING}")
P(f"s_mul_i32 s{S_TAB}, s{S_V}, {TAB_W}")
for _ in range(int(OPT.get("xd", 0))):
    P("s_nop 7")
for i in range(4):
    P(f"global_load_dword {v(PR+i)}, v6, s[{38+2*i}:{39+2*i}]")
P(f"global_load_dword {v(V_DT)}, v56, s[46:47]")
P(f"global_load_dword {v(V_DSK)}, v56, s[48:49]")
if "ksplit" in OPT:
    P("s_waitcnt lgkmcnt(0)")
P(f"s_mov_b64 s[{SRD_WS}:{SRD_WS+1}], s[62:63]")
for r, src in ((SRD_WG, 52), (SRD_WU, 54), (SRD_WD, 56), (SRD_OUT, 58)):
    P(f"s_mov_b64 s[{r}:{r+1}], s[{src}:{src+1}]")
P(f"buffer_load_dword {v(V_NONCE)}, v7, {srd(SRD_WS)}, 0 offen sc1")
NOPF = "nopf" in OPT
if not NOPF:
    P(f"s_bitcmp1_b32 s{S_V}, 0")
    P(f"s_cselect_b64 s[{S_PFB}:{S_PFB+1}], s[54:55], s[52:53]")
    P(f"s_lshr_b32 s{S_T0}, s{S_V}, 1")
    P(f"s_lshl1_add_u32 s{S_T2}, s{S_W}, s{S_T0}")
    EPF = int(OPT.get("epf", 7))
    P(f"s_mul_i32 s{S_T0}, s{S_T2}, {EPF*128}")
    if EPF == 25:
        P(f"s_min_u32 s{S_T0}, s{S_T0}, {(12544-25)*128}")
    P(f"v_min_u32 v4, {EPF-1}, {v(V_LANE)}")
    P(f"v_lshl_add_u32 v248, v4, 7, s{S_T0}")
    PFW = sub()
    PFW(f"global_load_dword {v(V_PF)}, v248, s[{S_PFB}:{S_PFB+1}]")
    PFD = sub()
    PFD(f"global_load_dword v253, v245, s[56:57]")
    if "pfpos" not in OPT:
        P.add(PFW.ins)
    P(f"s_mul_i32 s{S_T0}, s{S_W}, 49")
    P(f"s_mul_i32 s{S_T2}, s{S_V}, 12")
    P(f"s_add_u32 s{S_T0}, s{S_T0}, s{S_T2}")
    P(f"v_min_u32 v4, 12, {v(V_LANE)}")
    P(f"v_add_lshl_u32 v245, v4, s{S_T0}, 7")
    if "nowd" in OPT:
        P(f"v_mov_b32 v245, 0")
    if "wdlate" not in OPT and "pfpos" not in OPT:
        P.add(PFD.ins)
    PF_AT = len(P.ins)
if "xprobe" in OPT:
    stamp("issued")
    P(f"v_mov_b32 v4, {v(XR+4)}")
    stamp("x here")
    P(f"v_mov_b32 v4, {v(V_DSK)}")
    stamp("par here")
P(f"v_cmp_gt_u32 vcc, 32, {v(V_LANE)}")
P(f"v_mul_u32_u24 v4, 37, {v(V_LANE)}")
P(f"v_lshrrev_b32 v4, 9, v4")
P(f"v_cndmask_b32 {v(V_S3)}, v5, {v(V_L16)}, vcc")
P(f"v_mul_u32_u24 v4, {TAB_W-14*272}, v4")
P(f"v_mul_u32_u24 v6, 272, {v(V_LANE)}")
P(f"s_lshl_b32 s{S_T0}, s{S_V}, 2")
P(f"v_add3_u32 {v(V_GW)}, v4, v6, s{S_T0}")
P(f"v_add_u32 {v(V_GX)}, s{S_T0}, {v(V_GW)}")
P(f"s_lshl_b32 s{S_UXM}, s{S_V}, 12")
P(f"s_add_u32 s{S_UXM}, s{S_UXM}, {L_UX+2048}")
P(f"v_and_b32 v4, 48, {v(V_LANE)}")
P(f"v_add3_u32 {v(V_GR)}, v4, {v(V_L16)}, s{S_TAB}")
P(f"v_and_b32 v4, 31, {v(V_LANE)}")
P(f"v_lshrrev_b32 v6, 5, {v(V_LANE)}")
P(f"v_lshl_add_u32 v6, v6, 4, s{S_TAB}")
P(f"v_and_b32 v7, 28, {v(V_LANE)}")
P(f"v_lshl_add_u32 v7, v4, 5, v7")
P(f"v_add_u32 {v(V_TW)}, v6, v7")
P(f"v_mul_u32_u24 v7, {TAB_ROW}, v4")
P(f"v_add_u32 {v(V_TB)}, v6, v7")
P(f"v_min_u32 v4, 20, v4")
P(f"v_mul_u32_u24 v7, {TAB_ROW}, v4")
P(f"v_add_u32 {v(V_TA)}, v6, v7")
P(f"s_lshl2_add_u32 s{S_CI}, s{S_W}, s{S_V}")
P(f"s_lshl_b32 s{S_CI}, s{S_CI}, 8")
P(f"s_add_u32 s{S_CI}, s{S_CI}, {WS_C}")
P(f"v_lshlrev_b32 {v(V_P1)}, 25, {v(V_LANE)}")
P(f"s_mul_i32 s{S_UXO}, s{S_W}, 14336")
P(f"s_mul_i32 s{S_T0}, s{S_V}, 3584")
P(f"s_add_u32 s{S_UXO}, s{S_UXO}, s{S_T0}")
P(f"s_add_u32 s{S_UXO}, s{S_UXO}, {WS_UX}")
P(f"s_lshl_b32 s{S_T0}, s{S_V}, 8")
P(f"s_add_u32 s{S_T0}, s{S_T0}, s{S_W}")
P(f"s_mul_i32 s{S_T0}, s{S_T0}, {FS}")
P(f"s_add_u32 s{S_F1}, s{S_T0}, {WS_F1}")
P(f"v_lshrrev_b32 v4, 2, {v(V_LANE)}")
P(f"v_mul_u32_u24 v4, 3584, v4")
P(f"v_and_b32 v6, 3, {v(V_LANE)}")
P(f"v_lshl_add_u32 v4, v6, 4, v4")
P(f"s_lshl_b32 s{S_T0}, s{S_FB}, 8")
P(f"s_lshl_b32 s{S_T1}, s{S_V}, 6")
P(f"s_add_u32 s{S_T0}, s{S_T0}, s{S_T1}")
P(f"v_add_u32 {v(V_W)}, s{S_T0}, v4")
if "fakerot" in OPT:
    P(f"s_and_b32 s{S_T2}, s{S_TB}, {OPT['fakerot']}")
    P(f"s_mul_i32 s{S_T2}, s{S_T2}, {int(OPT.get('rs', 4))*57344//4}")
    P(f"v_add_u32 {v(V_W)}, s{S_T2}, {v(V_W)}")
if "fake128" in OPT:
    P(f"v_lshrrev_b32 v4, 3, {v(V_LANE)}")
    P(f"v_mul_u32_u24 v4, 3584, v4")
    P(f"v_and_b32 v7, 0x70, {v(V_L16)}")
    P(f"s_and_b32 s{S_T0}, s{S_T0}, 0xffffff80")
    P(f"s_and_b32 s{S_T2}, s{S_V}, 1")
    P(f"s_mul_i32 s{S_T2}, s{S_T2}, {8*3584}")
    P(f"s_add_u32 s{S_T0}, s{S_T0}, s{S_T2}")
    P(f"v_add3_u32 {v(V_W)}, v4, v7, s{S_T0}")
for k in range(1, 4):
    P(f"v_add_u32 {v(V_W+k)}, {k*(57344-1024)}, {v(V_W)}")
SETUP_A = len(P.ins)
P(f"v_and_b32 v4, 32, {v(V_LANE)}")
P(f"v_lshlrev_b32 v4, 4, v4")
P(f"v_and_b32 v7, 12, {v(V_LANE)}")
P(f"v_lshl_add_u32 v4, v7, 4, v4")
P(f"v_and_b32 v7, 16, {v(V_LANE)}")
P(f"v_lshl_add_u32 v4, v7, 1, v4")
P(f"v_lshl_add_u32 v4, v6, 3, v4")
P(f"v_add_u32 {v(V_TRA)}, s{S_RING}, v4")
P(f"s_mov_b32 s{S_K0}, {L_KC+4096-L_UX}")
P(f"s_movk_i32 s{S_T2}, 128")
P(f"s_bfe_u32 s{S_T0}, s{S_W}, 0x20001")
P(f"s_lshl_b32 s{S_T0}, s{S_T0}, 10")
P(f"s_lshr_b32 s{S_F2}, s{S_T0}, 2")
NREP = int(OPT.get("nrep", 4))
P(f"s_bfe_u32 s{S_REP}, s{S_W}, {hex((NREP.bit_length()-1)*65536+3)}")
P(f"s_sub_u32 s{S_F1L}, s{S_FH}, s{S_REP}")
P(f"s_add_u32 s{S_F1L}, s{S_F1L}, {NREP}")
P(f"s_mul_i32 s{S_F1L}, s{S_F1L}, {FREP}")
P(f"s_mul_i32 s{S_REP}, s{S_REP}, {FREP}")
P(f"s_add_u32 s{S_REP}, s{S_REP}, {WS_F1}")
P(f"s_add_u32 s{S_T0}, s{S_T0}, s{S_REP}")
P(f"v_lshl_add_u32 {v(V_F1)}, v0, 2, s{S_T0}")
P(f"v_lshrrev_b32 v4, 2, {v(V_LANE)}")
P(f"v_add_u32 v4, s{S_T1}, v4")
P(f"v_mul_u32_u24 v7, 14336, v4")
P(f"v_lshrrev_b32 v4, 4, {v(V_LANE)}")
P(f"v_xor_b32 v6, v6, v4")
P(f"v_lshl_add_u32 v7, v6, 4, v7")
P(f"s_lshl_b32 s{S_T0}, s{S_PR}, 6")
P(f"s_add_u32 s{S_T0}, s{S_T0}, {WS_UX}")
P(f"v_add_u32 {v(V_UXL)}, s{S_T0}, v7")
P(f"v_bfe_u32 v6, {v(V_LANE)}, 1, 2")
P(f"v_mul_u32_u24 v6, {CS}, v6")
P(f"v_and_b32 v7, 16, {v(V_L16)}")
P(f"v_add3_u32 v6, v6, v7, s{S_K0}")
P(f"v_lshlrev_b32 v7, 4, v0")
P(f"v_cmp_gt_u32 vcc, s{S_T2}, v0")
P(f"v_mov_b32 v56, 0")
P(f"v_mov_b32 v57, 0")
P(f"v_cndmask_b32 v6, v6, v7, vcc")
P(f"v_mov_b32 v58, 0")
P(f"v_mov_b32 v59, 0")
P(f"v_add_u32 v6, {L_UX}, v6")
P(f"ds_write_b128 v6, v[56:59]")
P(f"v_lshlrev_b32 v4, 3, v0")
P(f"v_sub_u32 v4, 2047, v4")
P(f"v_cvt_f32_i32 v4, v4")
P(f"v_mov_b32 v60, 1028")
P(f"v_cmp_eq_u32 vcc, 0, v0")
for e in range(0, 10, 2):
    P(f"v_add_f32 v6, {f32(-float(e))}, v4")
    if e < 8:
        P(f"v_add_f32 v7, {f32(-float(e+1))}, v4")
    P(f"v_cvt_pk_bf16_f32 v6, v6, v7")
    for h in range(2):
        if e + h > 8:
            continue
        d = GA + e + h
        if h == 0:
            P(f"v_lshlrev_b32 v7, 16, v6")
        else:
            P(f"v_and_b32 v7, 0xffff0000, v6")
        P(f"v_cvt_u32_f32 v7, v7")
        if e + h < 4:
            P(f"v_cndmask_b32 v7, v7, v60, vcc")
        P(f"v_lshrrev_b32 {v(d)}, 5, v7")
        P(f"v_add_lshl_u32 {v(d)}, {v(d)}, v7, 2")
P(f"v_mov_b32 v4, 255")
P(f"v_cmp_eq_u32 s[{S_M255}:{S_M255+1}], v4, v0")
P(f"v_and_b32 v4, 15, {v(V_LANE)}")
P(f"v_lshrrev_b32 v5, 4, {v(V_LANE)}")
P(f"v_lshl_add_u32 v6, v5, 3, v4")
P(f"v_sub_u32 v6, 39, v6")
P(f"v_and_b32 v7, 1, v6")
P(f"v_mul_u32_u24 v7, {CS-2}, v7")
P(f"v_lshl_add_u32 v6, v6, 1, v7")
P(f"s_lshr_b32 s{S_T0}, s{S_V}, 1")
P(f"s_andn2_b32 s{S_T3}, 1, s{S_V}")
P(f"s_mul_i32 s{S_T2}, s{S_T0}, {2*CS}")
P(f"s_lshl_b32 s{S_T1}, s{S_T3}, 8")
P(f"s_add_u32 s{S_T2}, s{S_T2}, s{S_T1}")
P(f"s_add_u32 s{S_T2}, s{S_T2}, {L_KC}")
P(f"v_add_u32 {v(V_KA+3)}, s{S_T2}, v6")
for k in range(3):
    P(f"v_add_u32 {v(V_KA+k)}, {64*(48-16*k)}, {v(V_KA+3)}")
P(f"v_lshlrev_b32 v6, 1, v4")
P(f"v_sub_u32 v6, v6, v5")
P(f"s_lshl4_add_u32 s{S_T1}, s{S_T3}, 17")
P(f"v_add_u32 v6, s{S_T1}, v6")
P(f"s_mov_b32 s{S_T2}, {L_UX}")
for rr in range(4):
    P(f"v_bfe_u32 v7, v6, 2, 2")
    P(f"v_xor_b32 v7, s{S_T0}, v7")
    P(f"v_lshl_add_u32 v7, v6, 2, v7")
    P(f"v_lshl_add_u32 {v(V_UA+rr)}, v7, 4, s{S_T2}")
    if rr < 3:
        P(f"v_subrev_u32 v6, 4, v6")
EB = sub()
if "nomv" not in OPT:
    EB(f"v_and_b32 v4, 15, {v(V_LANE)}")
    EB(f"v_lshrrev_b32 v5, 4, {v(V_LANE)}")
EB(f"v_lshrrev_b32 v6, 1, v5")
EB(f"v_lshl_add_u32 v6, v4, 1, v6")
EB(f"s_lshl_b32 s{S_T2}, s{S_V}, 11")
EB(f"s_add_u32 s{S_T2}, s{S_T2}, {L_UX+2048}")
EB(f"v_lshl_add_u32 v6, v6, 6, s{S_T2}")
EB(f"v_bfe_u32 v4, v4, 1, 2")
EB(f"v_and_b32 v5, 1, v5")
EB(f"v_lshl_add_u32 v247, v4, 4, v6")
EB(f"v_lshl_add_u32 {v(V_EU)}, v5, 3, v247")
EB(f"v_xor_b32 {v(V_EU1)}, 16, {v(V_EU)}")
EB(f"v_or_b32 v5, 2, v5")
EB(f"v_xor_b32 v4, v4, v5")
EB(f"v_lshl_add_u32 {v(V_EXP)}, v4, 4, v6")
if "nomv" in OPT:
    P.add(EB.ins)
P(f"s_mul_i32 s{S_ACTW}, s{S_V}, 7168")
P(f"v_add_u32 {v(V_EXR)}, s{S_ACTW}, {v(V_L16)}")
P(f"v_lshlrev_b32 {v(V_EXW)}, 4, v0")
P(f"s_mul_i32 s{S_PST}, s{S_PR}, {PROW}")
P(f"s_add_u32 s{S_PST}, s{S_PST}, {WS_P}")
CB = sub()
lanes_reg(CB, V_FL2, 4, 10)
lanes_reg(CB, V_PM, 2, 12)
CB(f"s_lshl1_add_u32 s{S_T0}, s{S_V}, s{S_FH}")
CB(f"s_lshl_b32 s{S_T0}, s{S_T0}, 12")
CB(f"s_add_u32 s{S_F2}, s{S_F2}, s{S_T0}")
CB(f"s_add_u32 s{S_F2}, s{S_F2}, {WS_C}")
CB(f"s_lshr_b32 s{S_T0}, s{S_TB}, 2")
CB(f"s_bfe_u32 s{S_REP}, s{S_W}, 0x20003")
CB(f"s_lshl3_add_u32 s{S_T0}, s{S_T0}, s{S_REP}")
CB(f"s_lshl2_add_u32 s{S_T0}, s{S_T0}, s{S_V}")
CB(f"s_lshl_b32 s{S_T0}, s{S_T0}, 8")
CB(f"s_add_u32 s{S_PA}, s{S_T0}, {WS_C}")
CB(f"s_lshl2_add_u32 s{S_T2}, s{S_DB}, s{S_V}")
CB(f"s_lshl2_add_u32 s{S_T3}, s{S_T2}, s{S_REP}")
CB(f"s_lshl_b32 s{S_T3}, s{S_T3}, 8")
CB(f"s_add_u32 s{S_P4}, s{S_T3}, {WS_C + 896*256}")
CB(f"s_mul_i32 s{S_T2}, s{S_T2}, {14*4096}")
CB(f"s_add_u32 s{S_WFB}, s{S_T2}, {WS_WF}")
CB(f"s_mul_i32 s{S_T1}, s{S_V}, {56*PROW}")
CB(f"s_lshl_b32 s{S_T0}, s{S_TB}, 8")
CB(f"s_add_u32 s{S_T0}, s{S_T0}, s{S_T1}")
CB(f"s_add_u32 s{S_AB}, s{S_T0}, {WS_P}")

if "nomv" in OPT:
    P.add(CB.ins)

if "pfpos" in OPT:
    a_, b_ = [int(x) for x in OPT["pfpos"].split(",")]
    P.ins = P.ins[:PF_AT] + sprinkle(P.ins[PF_AT:], [(a_, PFW.ins), (b_, PFD.ins)])
NS = int(OPT.get("ns", 0))
if NS:
    us = []
    for n in range(NS):
        i_, k_ = n // 4, n % 4
        q = sub()
        if k_ == 0:
            q(f"s_add_u32 m0, s{S_RING}, {(4*i_ % 8) * 1024 + (4*i_ // 8) * 32768}")
            if n % 8 == 0:
                q(f"s_mov_b32 s{S_WOFF}, {(i_//2)*4*57344}")
        o = f" offset:{1024*k_}" if k_ else ""
        q(f"buffer_load_dwordx4 {v(V_W+k_)}, {srd(SRD_WU if i_ % 2 else SRD_WG)}, s{S_WOFF} offen{o} lds", tok=f"w1_{i_}")
        us.append(q.ins)
    tail_ = P.ins[SETUP_A:]
    st_ = int(OPT.get("ns0", 0))
    step = (len(tail_) - st_) / NS
    P.ins = P.ins[:SETUP_A] + sprinkle(tail_, [(int(st_ + step * n), u) for n, u in enumerate(us)])
XF = 56
DF = 72
SA = 88
if "fine" in OPT: stamp("setup done")
P(f"s_mov_b32 s{S_K0}, {f32(1.0/448)}")
P(f"v_mov_b32 v4, {f32(1e-5)}")
P("s_mov_b32 exec_hi, 0x00ffffff")
for r in range(2):
    for i in range(4):
        P(f"v_lshlrev_b32 {v(XF+8*r+2*i)}, 16, {v(XR+4*r+i)}")
        P(f"v_and_b32 {v(XF+8*r+2*i+1)}, 0xffff0000, {v(XR+4*r+i)}")
    P(f"v_readfirstlane_b32 s{(S_A, S_B)[r]}, {v(XF+8*r)}")
stamp("x arrived")
if "wdlate" in OPT and not NOPF:
    P(f"global_load_dword v253, v245, s[56:57]")
for i in range(4):
    P(f"ds_write2_b32 {v(V_GX)}, {v(XR+i)}, {v(XR+4+i)} offset0:{16*i+8} offset1:{16*i+9}")
for r, sm in ((0, S_A), (1, S_B)):
    for i in range(4):
        P(f"v_pk_add_f32 {v(XF+8*r+2*i,2)}, {v(XF+8*r+2*i,2)}, s[{sm}:{sm+1}] op_sel_hi:[1,0] neg_lo:[0,1] neg_hi:[0,1]")
for r in range(2):
    b = XF + 8 * r
    t = DF + 8 * r
    P(f"v_pk_add_f32 {v(t,2)}, {v(b,2)}, {v(b+2,2)}")
    P(f"v_pk_mul_f32 {v(t+2,2)}, {v(b,2)}, {v(b,2)}")
    P(f"v_pk_add_f32 {v(t,2)}, {v(t,2)}, {v(b+4,2)}")
    for i in range(1, 4):
        P(f"v_pk_fma_f32 {v(t+2,2)}, {v(b+2*i,2)}, {v(b+2*i,2)}, {v(t+2,2)}")
    P(f"v_pk_add_f32 {v(t,2)}, {v(t,2)}, {v(b+6,2)}")
for r in range(2):
    t = DF + 8 * r
    P(f"v_add_f32 {v(SA+r)}, {v(t)}, {v(t+1)}")
    P(f"v_add_f32 {v(SA+2+r)}, {v(t+2)}, {v(t+3)}")


def wave_sum(p, regs):
    for mod in ("row_shr:1", "row_shr:2", "row_shr:4", "row_shr:8"):
        for r in regs:
            p(f"v_add_f32_dpp {v(r)}, {v(r)}, {v(r)} {mod} row_mask:0xf bank_mask:0xf bound_ctrl:0")
    for r in regs:
        p(f"v_add_f32_dpp {v(r)}, {v(r)}, {v(r)} row_bcast:15 row_mask:0xa bank_mask:0xf")
    for r in regs:
        p(f"v_add_f32_dpp {v(r)}, {v(r)}, {v(r)} row_bcast:31 row_mask:0xc bank_mask:0xf")


wave_sum(P, [SA, SA + 2, SA + 1, SA + 3])
P(f"v_pk_mul_f32 {v(SA,2)}, {v(SA,2)}, s[{S_K0}:{S_K0+1}] op_sel_hi:[1,0]")
P(f"v_pk_fma_f32 {v(SA+2,2)}, {v(SA+2,2)}, s[{S_K0}:{S_K0+1}], v[4:5] op_sel_hi:[1,0,0]")
P(f"v_pk_fma_f32 {v(SA+2,2)}, {v(SA,2)}, {v(SA,2)}, {v(SA+2,2)} neg_lo:[1,0,0] neg_hi:[1,0,0]")
for r in range(2):
    P(f"v_max_f32 {v(SA+2+r)}, {v(SA+2+r)}, v4")
for r in range(2):
    P(f"v_rsq_f32 {v(SA+2+r)}, {v(SA+2+r)}")
P(f"v_pk_mul_f32 {v(SA,2)}, {v(SA,2)}, {v(SA+2,2)} neg_lo:[1,0] neg_hi:[1,0]")
for r, sm in ((0, S_A), (1, S_B)):
    P(f"v_readlane_b32 s{sm}, {v(SA+2+r)}, 55")
for r, sm in ((0, S_A), (1, S_B)):
    P(f"v_readlane_b32 s{sm+1}, {v(SA+r)}, 55")
for r, sm in ((0, S_A), (1, S_B)):
    for i in range(4):
        P(f"v_pk_fma_f32 {v(XF+8*r+2*i,2)}, {v(XF+8*r+2*i,2)}, s[{sm}:{sm+1}], s[{sm}:{sm+1}] op_sel:[0,0,1] op_sel_hi:[1,0,1]")
for j in range(8):
    P(f"v_cvt_pk_bf16_f32 {v(DF+j)}, {v(XF+j)}, {v(XF+8+j)}")
for i in range(4):
    P(f"ds_write2_b32 {v(V_GW)}, {v(DF+2*i)}, {v(DF+2*i+1)} offset0:{16*i} offset1:{16*i+4}")
P("s_mov_b64 exec, -1")
if "fine" in OPT: stamp("ln1 math")
P("s_waitcnt lgkmcnt(0)")
P("s_barrier")
if "fine" in OPT: stamp("ln1 barrier")
UB = 112
for j in range(4):
    P(f"ds_read_b128 {v(UB+4*j,4)}, {v(V_GR)} offset:{1088*j}")
if "nomv" not in OPT:
    P.add(CB.ins)
P(f"s_lshl_b32 s{S_T0}, s{S_V}, 3")
P(f"s_and_b32 s{S_T0}, s{S_T0}, 16")
P(f"s_mov_b32 m0, s{S_TAB}")
P("s_waitcnt lgkmcnt(0)")
for j in range(4):
    P(f"buffer_store_dwordx4 {v(UB+4*j,4)}, {v(V_L16 if j < 3 else V_S3)}, {srd(SRD_WS)}, s{S_UXO} offen offset:{1024*j} sc1", tok="ux")
P(f"s_cmp_lt_u32 s{S_W}, 224")
P("s_cbranch_scc1 L_main")


def nonce_init():
    q = sub()
    q(f"v_readfirstlane_b32 s{S_NONCE}, {v(V_NONCE)}")
    q(f"s_mul_i32 s{S_NONCE}, s{S_NONCE}, 1664525")
    q(f"s_add_u32 s{S_NONCE}, s{S_NONCE}, 1013904223")
    q(f"v_mov_b32 {v(V_NONCE)}, s{S_NONCE}")
    q(f"buffer_store_dword {v(V_NONCE)}, {v(V_P1)}, {srd(SRD_WS)}, s{S_CI} offen sc1", tok="ux")
    q(f"s_add_u32 s{S_E28}, s{S_NONCE}, 28")
    q(f"s_add_u32 s{S_E14}, s{S_NONCE}, 14")
    return q.ins


P.raw(f"s_waitcnt vmcnt({(4 if NOPF else 6) + NS})")
for x in nonce_init():
    P.raw(x.text)
P.raw("s_waitcnt vmcnt(0)")
P.raw(f"buffer_atomic_swap {v(V_NONCE)}, {v(V_FLG)}, {srd(SRD_WS)}, s{S_F1} offen")
P.raw("s_branch L_spare")
P("L_main:")
stamp("ln1 done")


def wfrag(m, ks):
    return 8 * ks + 4 * m


def slotoff(slot):
    return (slot % 8) * 1024 + (slot // 8) * 32768


def w_dma(kq, m, slot, tok):
    q = sub()
    q(f"s_add_u32 m0, s{S_RING}, {slotoff(slot)}")
    if m == 0:
        q(f"s_mov_b32 s{S_WOFF}, {kq*4*57344}")
    for k in range(4):
        o = f" offset:{1024*k}" if k else ""
        q(f"buffer_load_dwordx4 {v(V_W+k)}, {srd(SRD_WU if m else SRD_WG)}, s{S_WOFF} offen{o} lds", tok=tok)
    return q.ins


def w_tr(kq, m, slot, tok=None):
    q = sub()
    for k in range(4):
        for h in range(2):
            q(f"ds_read_b64_tr_b16 {acc(wfrag(m,4*kq+k)+2*h,2)}, {v(V_TRA)} offset:{slotoff(slot+k)+256*h}", tok=tok)
    return q.ins


def batch_dma(b, tok):
    return [w_dma(2 * b + i // 2, i % 2, 4 * i, f"{tok}_{i}") for i in range(4)]


def batch_tr(b):
    o = []
    for i in range(4):
        o += w_tr(2 * b + i // 2, i % 2, 4 * i, tok=f"t{b}_{i}")
    return o


def singles(groups):
    out, cur = [], []
    for grp in groups:
        for i in grp:
            cur.append(i)
            if i.cls == "vmem":
                out.append(cur)
                cur = []
    if cur:
        out[-1] += cur
    return out


def pin_vm(g, start, groups, stride):
    k = start
    for u in singles(groups):
        g.at(int(k), u)
        k += stride
    return int(k)


def w_dma1(b, n, tok):
    i, k = n // 4, n % 4
    q = sub()
    q(f"s_add_u32 m0, s{S_RING}, {slotoff(4*i)}")
    if n % 8 == 0:
        q(f"s_mov_b32 s{S_WOFF}, {(2*b+i//2)*4*57344}")
    o = f" offset:{1024*k}" if k else ""
    if OPT.get("fk") == "same":
        q(f"buffer_load_dwordx4 {v(V_L16)}, {srd(SRD_WG)}, 0 offen{o} lds", tok=f"{tok}_{i}")
    elif OPT.get("fk") == "reg":
        q(f"buffer_load_dwordx4 a[{128+4*n}:{131+4*n}], {v(V_W+k)}, {srd(SRD_WU if i % 2 else SRD_WG)}, s{S_WOFF} offen{o}", tok=f"{tok}_{i}")
    elif OPT.get("fk") != "none":
        q(f"buffer_load_dwordx4 {v(V_W+k)}, {srd(SRD_WU if i % 2 else SRD_WG)}, s{S_WOFF} offen{o} lds", tok=f"{tok}_{i}")
    q(f"s_mov_b32 m0, s{S_TAB}")
    return q.ins


KD = 176
FR = 192
FR = 112


def kgen_head(rd):
    q = sub()
    A0 = 48 + 0
    CC = 50
    unp = (lambda d, s: q(f"v_lshlrev_b32 {v(d)}, 16, {v(s)}")) if rd == 0 else (lambda d, s: q(f"v_and_b32 {v(d)}, 0xffff0000, {v(s)}"))
    for i in range(4):
        unp(48 + i, PR + i)
    q(f"v_mul_f32 v48, {f32(LOG2E)}, v48")
    q(f"v_exp_f32 v48, v48")
    q(f"v_mul_f32 v49, v49, {v(V_DT)}")
    q(f"v_cvt_pk_bf16_f32 v48, v48, v48")
    q(f"v_mul_f32 v49, 0.15915494, v49")
    q(f"v_and_b32 v48, 0xffff0000, v48")
    q(f"v_mul_f32 v50, v50, {v(V_DT)}")
    q(f"v_mul_f32 v48, v48, {v(V_DT)}")
    q(f"v_mul_f32 v51, v51, {v(V_DT)}")
    q(f"v_mul_f32 v48, {f32(-LOG2E)}, v48")
    q(f"v_add_f32 v50, v50, v50")
    q(f"v_add_f32 v51, v51, v51")
    for (z, pos) in ((52, 1), (54, 16), (56, 256)):
        if pos == 1:
            q(f"v_exp_f32 v4, v48")
            q(f"v_fract_f32 v5, v49")
        else:
            q(f"v_mul_f32 v4, {f32(float(pos))}, v48")
            q(f"v_mul_f32 v5, {f32(float(pos))}, v49")
            q(f"v_exp_f32 v4, v4")
            q(f"v_fract_f32 v5, v5")
        q(f"v_cos_f32 {v(z)}, v5")
        q(f"v_sin_f32 {v(z+1)}, v5")
        q(f"v_mul_f32 {v(z)}, {v(z)}, v4")
        q(f"v_mul_f32 {v(z+1)}, {v(z+1)}, v4")
    return q.ins


WRI = "ds_write_b32 v246," if "plainw" in OPT else "ds_write_addtid_b32"


def kgen_body(rd):
    names = {"G0": 50, "E1": 52, "E16": 54, "E256": 56}
    nxt = [58]
    chunks = []
    cur = sub()
    wr = sub()
    pk = [0]
    PK = 192

    def new(n):
        names[n] = nxt[0]
        nxt[0] += 2
        assert nxt[0] <= 104
        return names[n]

    def out(kind, row, z):
        t = PK + pk[0] % 16
        pk[0] += 1
        if kind == "B":
            cur(f"v_cvt_pk_bf16_f32 {v(t)}, {v(z)}, {v(z+1)}")
            wr(f"{WRI} {v(t)} offset:{row*TAB_ROW}")
        else:
            cur(f"v_cvt_pk_bf16_f32 {v(t)}, {v(z)}, -{v(z+1)}")
            wr(f"{WRI} {v(t)} offset:{(32+row)*TAB_ROW}")
        if len(wr.ins) >= GROUP:
            flush()

    def flush():
        nonlocal cur, wr
        chunks.append(cur.ins + wr.ins)
        cur = sub()
        wr = sub()

    sc = [0]

    def mul(n, a, b, kind=None, row=None):
        if n is None:
            z = 104 + 2 * (sc[0] % 4)
            sc[0] += 1
        else:
            z = new(n)
        cmul(cur, z, names[a], names[b])
        if kind:
            out(kind, row, z)

    GROUP = int(OPT.get("kgroup", 6))
    t = PK + pk[0]
    pk[0] += 1
    cur(f"v_mov_b32 {v(t)}, 0x3f80")
    wr(f"{WRI} {v(t)}")
    out("A", 0, names["G0"])
    out("B", 2, names["E16"])
    mul("E2", "E1", "E1")
    mul("E32", "E16", "E16", "B", 4)
    mul("G1", "G0", "E256", "A", 8)
    mul("E512", "E256", "E256")
    mul("a1", "G0", "E1", "A", 1)
    mul("E4", "E2", "E2")
    mul("E64", "E32", "E32", "B", 8)
    mul("E48", "E32", "E16", "B", 6)
    mul("G2", "G0", "E512", "A", 10)
    mul("G3", "G1", "E512", "A", 11)
    mul("E1024", "E512", "E512")
    mul("E8", "E4", "E4", "B", 1)
    mul("a2", "G0", "E2", "A", 2)
    mul("a3", "a1", "E2", "A", 3)
    mul("b2", "G1", "E2", "A", 9)
    mul("E128", "E64", "E64", "B", 16)
    mul("G4", "G0", "E1024", "A", 16)
    mul("E24", "E16", "E8", "B", 3)
    mul("E40", "E32", "E8", "B", 5)
    mul("E56", "E48", "E8", "B", 7)
    mul("E192", "E128", "E64", "B", 24)
    for row, a in ((4, "G0"), (5, "a1"), (6, "a2"), (7, "a3"), (12, "G1"), (13, "b2"), (14, "G2"), (15, "G3")):
        mul(None, a, "E4", "A", row)
    for row, a in ((17, "G1"), (18, "G2"), (19, "G3"), (20, "G4")):
        mul(None, a, "E1024", "A", row)
    for b2, nb in ((1, "E64"), (2, "E128"), (3, "E192")):
        for b1 in range(1, 8):
            mul(None, f"E{8*b1}", nb, "B", 8 * b2 + b1)
    if wr.ins or cur.ins:
        flush()
    return chunks


def kgen_reads():
    q = sub()
    for s in range(8):
        q(f"ds_read_b128 {v(FR+8*s,4)}, {v(V_TA)} offset:{32*TAB_ROW+32*s}")
        q(f"ds_read_b128 {v(FR+8*s+4,4)}, {v(V_TB)} offset:{32*s}")
    return q.ins


def kgen_mfma(rd):
    q = sub()
    for s in range(8):
        c = "0" if (rd == 0 and s == 0) else v(KD, 16)
        q(f"v_mfma_f32_32x32x16_bf16 {v(KD,16)}, {v(FR+8*s,4)}, {v(FR+8*s+4,4)}, {c}")
    return q.ins


P(f"v_lshrrev_b32 v4, s{S_T0}, {v(V_DT)}")
P(f"v_lshlrev_b32 v4, 16, v4")
P(f"v_mul_f32 v4, {f32(LOG2E)}, v4")
P(f"v_exp_f32 v4, v4")
P(f"v_readfirstlane_b32 s{S_DSK}, {v(V_DSK)}")
round_bf16(P, V_DT, 4)
if "plainw" in OPT:
    P(f"v_lshl_add_u32 v246, {v(V_LANE)}, 2, s{S_TAB}")
P.add(kgen_head(0))
P.add(nonce_init())
ch = kgen_body(0)
fl = sub()
fl.wait("ux")
setflag(fl, S_F1)
nd = NS
FLAGAT = int(OPT.get("flagat", 5))
D0, DM, D1 = OPT.get("dsch", "011111000,2,111111111").split(",")


def dmas(n):
    global nd
    o = []
    for k in range(n):
        u = w_dma1(0, nd, "w1")
        if k and nd % 4:
            o = o[:-1] + u[1:]
        elif k:
            o = o[:-1] + u
        else:
            o = u
        nd += 1
    return o


for i, c in enumerate(ch):
    P.add(c)
    P.add(dmas(int(D0[i])))
    if i == FLAGAT:
        if "fine" in OPT: stamp("pre flag1")
        P.add(fl.ins)
        if "fine" in OPT: stamp("post flag1")
P.add(kgen_reads())
g = Gaps(kgen_mfma(0), 7)
for k in range(int(DM)):
    g.at(2 * k, dmas(1))
g.fill(kgen_head(1))
P.add(g.out())
stamp("kgen r0")
ch = kgen_body(1)
POLLAT = int(OPT.get("pollat", 5))
for i, c in enumerate(ch):
    P.add(c)
    P.add(dmas(int(D1[i])))
    if i == POLLAT:
        if "f1at" not in OPT:
            P(f"buffer_load_dword v6, {v(V_F1)}, {srd(SRD_WS)}, s{S_F1L} offen sc1")
        else:
            P.add(poll_issue("F1", 6))
assert nd == 16
P.add(kgen_reads())
if "fine" in OPT: stamp("pre poll1")
P.add(poll_check("F1", 6))
if "fine" in OPT: stamp("post poll1")
g = Gaps(kgen_mfma(1), 6)
P(f"s_mov_b32 m0, s{S_UXM}")
for j in range(4):
    q = sub()
    q(f"s_mov_b32 s{S_T0}, {j*(16*14336-1024)}")
    o = f" offset:{1024*j}" if j else ""
    q(f"buffer_load_dwordx4 {v(V_UXL)}, {srd(SRD_WS)}, s{S_T0} offen{o} sc1 lds", tok="uxl")
    if j == 0:
        P.add(q.ins)
    else:
        g.at(2 * j - 2, q.ins)
tr1 = batch_tr(0)
P.wait("w1_2")
for k in range(8):
    g.at(k, tr1[3 * k:3 * k + 3])
P.add(g.out())
stamp("kgen r1")
b2 = batch_dma(1, "w2")
b2[0] = waitq("t0_0") + b2[0]
b2[3] = waitq("t0_3") + b2[3]
b2 = singles(b2)
P.add(b2.pop(0))
P(f"s_lshl_b32 s{S_C}, s{S_DSK}, 16")
P(f"s_and_b32 s{S_D}, s{S_DSK}, 0xffff0000")
P(f"v_add_u32 v7, {2*CS}, {v(V_EXW)}")
P(f"v_mov_b32 {v(V_NONCE)}, 1")
toff = {0: (0, 0), 1: (0, 1), 2: (0, 2), 3: (0, 3), 4: (1, 0), 5: (1, 2), 6: (2, 0), 7: (3, 0), 8: (4, 0), 9: (5, 0), 10: (6, 0), 11: (7, 0)}
P(f"ds_write2_b32 {v(V_TW)}, {v(KD)}, {v(KD+1)} offset0:0 offset1:1")
P(f"ds_write2_b32 {v(V_TW)}, {v(KD+2)}, {v(KD+3)} offset0:2 offset1:3")
for j in range(4, 12):
    qq, r = toff[j]
    P(f"ds_write_b32 {v(V_TW)}, {v(KD+j)} offset:{4*(r + 264*qq)}")
P.add(b2.pop(0))
P("s_waitcnt lgkmcnt(0)")
P("s_barrier")
if "fine" in OPT: stamp("T barrier")
EG = 208
for c2 in range(2):
    for e in range(9):
        P(f"ds_read2st64_b32 {v(EG+18*c2+2*e,2)}, {v(GA+e)} offset0:{114*c2} offset1:{114*c2+57}", tok=f"g{c2}")
P.add(b2.pop(0))
if "nomv" not in OPT:
    P.add(EB.ins)
P.add(b2.pop(0))
KO = 192
VB = 48


def bfrag(rr, e):
    return VB + 32 * rr + 4 * e


def b_loads(lo, hi):
    z = sub()
    for rr in range(4):
        for a in range(lo, hi):
            z(f"ds_read_b128 {v(bfrag(rr,a),4)}, {v(V_UA+rr)} offset:{2048*a}")
    return z.ins


for c2 in range(2):
    b = EG + 18 * c2
    P.wait(f"g{c2}")
    for e in range(9):
        P(f"v_add_f32 {v(b+2*e)}, {v(b+2*e)}, {v(b+2*e+1)}")
    P(f"v_cndmask_b32 {v(b+16)}, {v(b+16)}, 0, s[{S_M255}:{S_M255+1}]")
    for s_ in range(2):
        o = KO + 8 * c2 + 4 * s_
        for i in range(4):
            P(f"v_cvt_pk_bf16_f32 {v(o+i)}, {v(b+2*(s_+2*i))}, {v(b+2*(s_+2*i+1))}")
    for s_ in range(2):
        P(f"ds_write_b128 {v(7 if c2 else V_EXW)}, {v(KO+8*c2+4*s_,4)} offset:{L_KC+s_*CS}", tok="kc")
    P.add(b2.pop(0))
if "dumpk" in OPT:
    P(f"s_lshl_b32 s{S_T0}, s{S_W}, 13")
    P(f"s_add_u32 s{S_T0}, s{S_T0}, {WS_DBG}")
    P(f"buffer_store_dwordx4 {v(KO,4)}, {v(V_EXW)}, {srd(SRD_WS)}, s{S_T0} offen")
    P(f"s_add_u32 s{S_T0}, s{S_T0}, 4096")
    P(f"buffer_store_dwordx4 {v(KO+8,4)}, {v(V_EXW)}, {srd(SRD_WS)}, s{S_T0} offen")
stamp("expanded")
P.wait("uxl")
P.wait("kc")
P("s_barrier")
stamp("conv start")

CA = [176, 192]
ET = 208


def afrag(rr, a):
    return 128 + 32 * rr + 4 * a


def a_loads(rr, lo, hi):
    z = sub()
    for a in range(lo, hi):
        k = a // 2
        off = 16 * (11 - rr - 8 * (a - 2 * k))
        z(f"ds_read2_b32 {acc(afrag(rr,a),2)}, {v(V_KA+k)} offset0:{off} offset1:{off+1}")
        z(f"ds_read2_b32 {acc(afrag(rr,a)+2,2)}, {v(V_KA+k)} offset0:{off+2} offset1:{off+3}")
    return z.ins


def conv_mfmas(gen):
    m = sub()
    first = set()
    na = 4 if gen == 0 else 8
    order = []
    for rr in range(4):
        pairs = [(a, e) for a in range(na) for e in range(na) if 4 * gen <= a + e < 4 * gen + 4]
        pairs.sort(key=lambda ae: (max(ae), ae))
        order += [(rr, a, e) for a, e in pairs]
    if gen == 1:
        order.sort(key=lambda t: (0 if max(t[1], t[2]) < 4 else 1))
    for rr, a, e in order:
        c = a + e - 4 * gen
        d = CA[gen] + 4 * c
        cc = v(d, 4) if c in first else "0"
        first.add(c)
        m(f"v_mfma_f32_16x16x32_bf16 {v(d,4)}, {acc(afrag(rr,a),4)}, {v(bfrag(rr,e),4)}, {cc}")
    return m.ins


UU, XX, YY, TT, WW, HO = ET, ET + 4, ET + 8, ET + 24, ET + 32, ET + 36


def conv_pre(gen):
    q = sub()
    q(f"ds_read_b64 {v(UU,2)}, {v(V_EU)} offset:{8192*gen}")
    q(f"ds_read_b64 {v(UU+2,2)}, {v(V_EU1)} offset:{8192*gen}")
    q(f"ds_read_b128 {v(XX,4)}, {v(V_EXP)} offset:{8192*gen}")
    r = sub()
    if "exact" not in OPT:
        for j in range(4):
            r(f"v_lshlrev_b32 {v(TT+j)}, 16, {v(XX+j)}")
            r(f"v_and_b32 {v(TT+4+j)}, 0xffff0000, {v(XX+j)}")
        for c2, sm in ((0, S_C), (1, S_D)):
            for i in range(2):
                r(f"v_lshlrev_b32 {v(WW)}, 16, {v(UU+2*c2+i)}")
                r(f"v_and_b32 {v(WW+1)}, 0xffff0000, {v(UU+2*c2+i)}")
                r(f"v_fmac_f32 {v(TT+4*c2+2*i)}, s{sm}, {v(WW)}")
                r(f"v_fmac_f32 {v(TT+4*c2+2*i+1)}, s{sm}, {v(WW+1)}")
        return q.ins, r.ins
    for c2 in range(2):
        for i in range(2):
            r(f"v_lshlrev_b32 {v(TT+4*c2+2*i)}, 16, {v(UU+2*c2+i)}")
            r(f"v_and_b32 {v(TT+4*c2+2*i+1)}, 0xffff0000, {v(UU+2*c2+i)}")
    for c2, sm in ((0, S_C), (1, S_D)):
        for i in range(4):
            r(f"v_mul_f32 {v(TT+4*c2+i)}, s{sm}, {v(TT+4*c2+i)}")
    for j in range(4):
        r(f"v_cvt_pk_bf16_f32 {v(WW+j)}, {v(TT+j)}, {v(TT+4+j)}")
    for j in range(4):
        r(f"v_lshlrev_b32 {v(TT+2*j)}, 16, {v(WW+j)}")
        r(f"v_and_b32 {v(TT+2*j+1)}, 0xffff0000, {v(WW+j)}")
    return q.ins, r.ins


def conv_xchg(gen):
    w_, b_, r_ = sub(), sub(), sub()
    for c in range(4):
        w_(f"ds_write_b128 {v(V_EXW)}, {v(CA[gen]+4*c,4)} offset:{(4096 if gen else 7168)*c}", tok=f"xw{gen}")
    b_.wait(f"xw{gen}")
    b_("s_barrier")
    for w in range(4):
        r_(f"ds_read_b128 {v(YY+4*w,4)}, {v(V_EXR)} offset:{1024*w}", tok=f"xr{gen}")
    return w_.ins, b_.ins, r_.ins


def conv_post(gen):
    q = sub()
    h = HO + 4 * gen
    if "exact" not in OPT:
        for c2 in range(2):
            for i in range(2):
                q(f"v_pk_add_f32 {v(TT+4*c2+2*i,2)}, {v(TT+4*c2+2*i,2)}, {v(YY+8*c2+2*i,2)}")
            for i in range(2):
                q(f"v_pk_add_f32 {v(TT+4*c2+2*i,2)}, {v(TT+4*c2+2*i,2)}, {v(YY+8*c2+4+2*i,2)}")
        for j in range(4):
            q(f"v_cvt_pk_bf16_f32 {v(h+j)}, {v(TT+j)}, {v(TT+4+j)}")
        q(f"buffer_store_dwordx4 {v(h,4)}, {v(V_EXW)}, {srd(SRD_WS)}, s{S_PST} offen sc1", tok=f"h{gen}")
        return q.ins
    for c2 in range(2):
        for i in range(2):
            q(f"v_pk_add_f32 {v(YY+8*c2+2*i,2)}, {v(YY+8*c2+2*i,2)}, {v(YY+8*c2+4+2*i,2)}")
    for j in range(4):
        q(f"v_cvt_pk_bf16_f32 {v(WW+j)}, {v(YY+j)}, {v(YY+8+j)}")
    for j in range(4):
        q(f"v_lshlrev_b32 {v(YY+2*j)}, 16, {v(WW+j)}")
        q(f"v_and_b32 {v(YY+2*j+1)}, 0xffff0000, {v(WW+j)}")
    for j in range(4):
        q(f"v_pk_add_f32 {v(YY+2*j,2)}, {v(YY+2*j,2)}, {v(TT+2*j,2)}")
    for j in range(4):
        q(f"v_cvt_pk_bf16_f32 {v(WW+j)}, {v(YY+2*j)}, {v(YY+2*j+1)}")
    for j in range(4):
        q(f"v_lshlrev_b32 {v(YY+8+2*j)}, 16, {v(XX+j)}")
        q(f"v_and_b32 {v(YY+8+2*j+1)}, 0xffff0000, {v(XX+j)}")
    for j in range(4):
        q(f"v_lshlrev_b32 {v(YY+2*j)}, 16, {v(WW+j)}")
        q(f"v_and_b32 {v(YY+2*j+1)}, 0xffff0000, {v(WW+j)}")
    for j in range(4):
        q(f"v_pk_add_f32 {v(YY+2*j,2)}, {v(YY+2*j,2)}, {v(YY+8+2*j,2)}")
    h = HO + 4 * gen
    for j in range(4):
        q(f"v_cvt_pk_bf16_f32 {v(h+j)}, {v(YY+2*j)}, {v(YY+2*j+1)}")
    q(f"buffer_store_dwordx4 {v(h,4)}, {v(V_EXW)}, {srd(SRD_WS)}, s{S_PST} offen sc1", tok=f"h{gen}")
    return q.ins


V_A = 17
ad1 = sub()
ad1(f"v_bfe_u32 v4, {v(V_LANE)}, 3, 1")
ad1(f"v_bfe_u32 v5, {v(V_LANE)}, 4, 1")
ad1(f"v_lshl_add_u32 v4, v4, 1, v5")
ad1(f"v_lshrrev_b32 v5, 5, {v(V_LANE)}")
ad1(f"v_lshl_add_u32 v4, v5, 2, v4")
ad1(f"v_mul_u32_u24 v4, {PROW}, v4")
ad1(f"v_and_b32 v5, 0x70, {v(V_L16)}")
ad1(f"v_add3_u32 {v(V_A)}, v4, v5, s{S_AB}")
for k in range(1, 4):
    ad1(f"v_add_u32 {v(V_A+k)}, {k*(8*PROW-1024)}, {v(V_A)}")


def act_dma(J):
    o = []
    gen, T = J >> 1, J & 1
    for kk in range(2):
        q = sub()
        q(f"s_add_u32 m0, s{S_ACTW}, {L_ACT[gen] + T*28672 + kk*4096}")
        q(f"s_mov_b32 s{S_WOFF}, {kk*32*PROW + PGEN*gen + 128*T}")
        for k in range(4 - kk):
            of = f" offset:{1024*k}" if k else ""
            q(f"buffer_load_dwordx4 {v(V_A+k)}, {srd(SRD_WS)}, s{S_WOFF} offen{of} sc1 lds", tok=f"act{J}")
        o.append(q.ins)
    return o


V_BR, V_S2, V_HST, V_BR2 = 21, 22, 24, 26
V_LF, V_LR = 28, 29
V_RES = 27
V_OST, V_RR, V_RW, V_HL = 45, 41, 42, 44
SEL = 176
CSA = [180, 184]
ad = sub()
ad(f"s_add_u32 s{S_PA}, s{S_PA}, 0x8000")
ad(f"v_and_b32 v4, 31, {v(V_LANE)}")
ad(f"v_lshrrev_b32 v5, 5, {v(V_LANE)}")
ad(f"v_lshlrev_b32 v5, 9, v5")
ad(f"v_lshl_add_u32 {v(V_BR)}, v4, 2, v5")
ad(f"v_add_u32 {v(V_BR2)}, 128, {v(V_BR)}")
NAD2 = len(ad.ins)
ad(f"s_lshl_b32 s{S_T0}, s{S_TB}, 10")
ad(f"s_mul_i32 s{S_T1}, s{S_DB}, {S2REP}")
ad(f"s_add_u32 s{S_T0}, s{S_T0}, s{S_T1}")
ad(f"s_add_u32 s{S_T0}, s{S_T0}, {WS_S2}")
ad(f"v_lshl_add_u32 {v(V_S2)}, v4, 3, s{S_T0}")
ad(f"s_mov_b32 s{S_PERM}, 0x03020302")
ad(f"v_lshrrev_b32 v5, 4, {v(V_LANE)}")
ad(f"v_and_b32 v6, 15, {v(V_LANE)}")
ad(f"v_and_b32 v4, 1, v5")
ad(f"v_mul_u32_u24 v4, 57344, v4")
ad(f"v_lshl_add_u32 v4, v6, 4, v4")
ad(f"v_lshrrev_b32 v7, 1, v5")
ad(f"v_lshl_add_u32 v4, v7, 8, v4")
ad(f"s_mul_i32 s{S_T0}, s{S_TB}, {8*57344}")
ad(f"s_lshl_b32 s{S_T1}, s{S_FB}, 2")
ad(f"s_add_u32 s{S_T1}, s{S_T1}, s{S_V}")
ad(f"s_lshl_b32 s{S_T2}, s{S_T1}, 10")
ad(f"s_add_u32 s{S_T0}, s{S_T0}, {WS_H}")
ad(f"s_add_u32 s{S_T2}, s{S_T2}, s{S_T0}")
ad(f"v_add_u32 {v(V_HST)}, s{S_T2}, v4")
ad(f"s_mul_i32 s{S_T2}, s{S_FH}, 57344")
ad(f"s_add_u32 s{S_T0}, s{S_T0}, s{S_T2}")
ad(f"s_lshl1_add_u32 s{S_T0}, s{S_ACTW}, s{S_T0}")
ad(f"v_add_u32 {v(V_HL)}, s{S_T0}, {v(V_L16)}")
ad(f"s_lshl_b32 s{S_T0}, s{S_TB}, 13")
ad(f"s_add_u32 s{S_T0}, s{S_T0}, {WS_C + 65536}")
ad(f"s_mul_i32 s{S_T1}, s{S_T1}, 37")
ad(f"s_and_b32 s{S_T1}, s{S_T1}, 0x600")
ad(f"s_add_u32 s{S_F3}, s{S_T0}, s{S_T1}")
ad(f"s_lshl1_add_u32 s{S_T1}, s{S_V}, s{S_FH}")
ad(f"s_lshl_b32 s{S_T1}, s{S_T1}, 8")
ad(f"s_add_u32 s{S_P3}, s{S_T0}, s{S_T1}")
for k in range(1, 4):
    ad(f"s_movk_i32 s{S_HR+k}, {4096*k}")
ad(f"s_add_u32 s{S_FW}, s{S_RING}, 32768")
ad(f"s_lshl_b32 s{S_R2}, s{S_V}, 14")
ad(f"v_add_u32 {v(V_LF)}, s{S_FW}, {v(V_L16)}")
ad(f"v_add_u32 {v(V_LR)}, s{S_R2}, {v(V_L16)}")
ad2 = ad
se = sub()
se(f"v_bfe_u32 v4, {v(V_LANE)}, 2, 2")
se(f"v_bfe_u32 v5, {v(V_LANE)}, 4, 1")
se(f"v_mov_b32 v6, 0x3f803f80")
se(f"v_cmp_eq_u32 vcc, v4, v5")
for i in range(4):
    se(f"v_cndmask_b32 {v(SEL+i)}, 0, v6, vcc")


def cs_mfma(ks0, ks1):
    q = sub()
    for ks in range(ks0, ks1):
        for m in range(2):
            c = "0" if ks == 0 else v(CSA[m], 4)
            q(f"v_mfma_f32_16x16x32_bf16 {v(CSA[m],4)}, {v(SEL,4)}, {acc(wfrag(m,ks),4)}, {c}")
    return q.ins


def pin_spread(g, start, ins, per=2):
    for i, x in enumerate(ins):
        g.at(int(start + i // per), [x])
    return int(start + (len(ins) + per - 1) // per)


def gap_stamps(g, name):
    if OPT.get("gs", "").startswith(name + ":"):
        for k in OPT["gs"].split(":")[1].split(","):
            q = sub()
            stamp(f"{name} g{k}", q)
            g.pin[int(k)] = q.ins + g.pin[int(k)]


mA, mB = conv_mfmas(0), conv_mfmas(1)
NOV = int(OPT.get("nov", 20))
bl = b_loads(0, 4)


def ab(rr):
    al = a_loads(rr, 0, 4)
    o = []
    for a in range(4):
        o += [bl[4 * rr + a]] + al[2 * a:2 * a + 2]
    return o


pr, pv = conv_pre(0)
P.add(ab(0) + ab(1)[:3])
P.add(b2.pop(0))
P.add(b2.pop(0))
g = Gaps(mA + mB[:NOV], 2)
l1 = ab(1)[3:] + ab(2) + ab(3) + pr
NL1 = int(OPT.get("nl1", 24))
for i, x in enumerate(l1):
    g.at(i * NL1 // len(l1), [x])
g.fill(pv, start=NL1 + 5, end=50)
xw, xb, xr = conv_xchg(0)
for i in range(4):
    g.at(41 + 2 * i, [xw[i]])
XB = int(OPT.get("xb", 50))
g.at(XB, xb)
g.at(XB + 1, xr)
pin_vm(g, XB + 2, b2[:2], 3)
b2 = b2[2:]
P.add(g.out())
P.add(conv_post(0))
stamp("genA stored")
nb = b_loads(4, 8)
newl = []
for rr in range(4):
    newl += nb[4 * rr:4 * rr + 4] + a_loads(rr, 4, 8)
P.add(newl[:8])
g = Gaps(mB[NOV:] + cs_mfma(0, 10), 2)
NB_ = len(mB) - NOV
pin_spread(g, 0, newl[8:], per=1)
g.at(0, waitq("w1_3"))
pin_spread(g, 0, tr1[24:], per=1)
pin_vm(g, 1, b2, 3.5)
fl = sub()
fl.wait("h0")
addcnt(fl, S_F2, V_FL2)
fl(f"s_add_u32 s{S_F2}, s{S_F2}, 0x8000")
g.at(int(OPT.get("fa", 28)), fl.ins)
tr2 = batch_tr(1)
T2 = [int(x) for x in OPT.get("t2", "12,24,44,60").split(",")]
b3 = batch_dma(2, "w3")
for i in range(4):
    pin_spread(g, T2[i], waitq(f"w2_{i}") + tr2[8 * i:8 * i + 8], per=1)
    b3[i] = waitq(f"t1_{i}") + b3[i]
pin_vm(g, 30, b3[:2], 3)
pin_vm(g, 56, b3[2:3], 3)
pin_vm(g, 71, b3[3:4], 2.5)
pr, pv = conv_pre(1)
pin_spread(g, 41, pr, per=1)
newl[-1].tok = "lastfrag"
bq = sub()
bq.wait("lastfrag")
bq("s_barrier")
g.at(54, bq.ins)
x2 = sub()
x2(f"v_add_u32 {v(V_EXW)}, {L_KC}, {v(V_EXW)}")
x2(f"s_lshl_b32 s{S_T0}, s{S_V}, 12")
x2(f"s_add_u32 s{S_T0}, s{S_T0}, {L_KC}")
x2(f"v_add_u32 {v(V_EXR)}, s{S_T0}, {v(V_L16)}")
x2(f"s_add_u32 s{S_PST}, s{S_PST}, {PGEN - L_KC}")
PA1, PA2, PAC = int(OPT.get("pa1", 58)), int(OPT.get("pa2", 72)), int(OPT.get("pac", 86))
e = g.fill(ad1.ins + se.ins + x2.ins, start=34, end=PAC - 1)
g.fill(pv, start=max(e, 50), end=NB_ + 10)
g.at(PA1, poll_issue(S_PA, 7))
g.at(PA2, poll_issue(S_PA, 23))
g.at(PAC, stq("pre pollA") + poll_check2(S_PA, 7, 23, "3", f"s{S_E28}") + stq("post pollA"))
a0 = singles(act_dma(0) + act_dma(1))
na = (g.n - 1 - PAC) // 3 + 1
pin_vm(g, PAC, a0[:na], 3)
xw, xb, xr = conv_xchg(1)
for i in range(4):
    g.at(NB_ + 1 + 2 * i, [xw[i]])
g.at(NB_ + 10, xb)
g.at(NB_ + 11, xr)
gap_stamps(g, "s2")
o_ = g.out()
X = OPT.get("x2", "")
if "d" in X:
    o_ = [i for i in o_ if not (i.cls == "vmem" and i.tok and i.tok[0] == "w")]
if "t" in X:
    o_ = [i for i in o_ if "tr_b16" not in i.mn]
if "a" in X:
    o_ = [i for i in o_ if "ds_read2_b32" not in i.mn]
P.add(o_)
P.add(conv_post(1))
stamp("genB stored")
NCH_ = int(OPT.get("nch", 7))
g = Gaps(cs_mfma(10, 24 - NCH_), 3)
g.at(1, poll_issue(S_P4, 25))
tr3 = batch_tr(2)
t3 = []
for i in (0, 1, 2, 3):
    t3 += waitq(f"w3_{i}") + tr3[8 * i:8 * i + 8]
pin_spread(g, 0, t3, per=2)
e = pin_vm(g, 0, a0[na:], 2)
fl = sub()
fl.wait("h1")
addcnt(fl, S_F2, V_FL2)
g.fill(ad2.ins[:NAD2], start=18)
w4 = singles([waitq("t2_3") + w_dma(6, 0, 8, "w4"), w_dma(6, 1, 12, "w4")])
P.add(g.out())
stamp("gap work done")

GACC = [64, 96]
BF = 128
NBF = 8
MB = 160
KC_ = [14, 9]
STT = 60
EPT = 164
HP = 172
WDV = 188
RESR = [46, 48, 50, 52]
A_CS = [224, 228]
GC0 = -2.0 * math.sqrt(2.0 / math.pi) * LOG2E


def st_issue(J, atomic=None):
    q = sub()
    t = STT + 2 * (J & 1)
    atomic = False if atomic is None else atomic
    if atomic:
        q(f"v_mov_b64 {v(t,2)}, 0")
        q(f"buffer_atomic_add_x2 {v(t,2)}, {v(V_S2)}, {srd(SRD_WS)}, 0 offen offset:{256*J} sc0")
    else:
        q(f"buffer_load_dwordx2 {v(t,2)}, {v(V_S2)}, {srd(SRD_WS)}, 0 offen offset:{256*J} sc1")
    return q.ins


def st_check(J):
    q = sub()
    t = STT + 2 * (J & 1)
    slow, done = label("sslow"), label("sdone")
    q(f"v_cmp_ne_u32 vcc, s{S_NONCE}, {v(t+1)}")
    q(f"s_cbranch_vccnz {slow}")
    q(f"{done}:")
    spin(TAIL, slow, done, st_issue(J, True), t + 1, sleep=1)
    return q.ins


def st_final(J):
    q = sub()
    kc = KC_[J & 1]
    t = STT + 2 * (J & 1)
    q(f"v_perm_b32 {v(MB)}, {v(t)}, {v(t)}, s{S_PERM}")
    q(f"v_cvt_f32_f16 {v(t)}, {v(t)}")
    q(f"v_mul_f32 {v(t+1)}, {v(t)}, {v(t)}")
    q(f"v_mul_f32 {v(kc)}, {f32(GC0)}, {v(t)}")
    q(f"v_rcp_f32 {v(kc+2)}, {v(t+1)}")
    q(f"v_mul_f32 {v(kc+1)}, {v(t+1)}, {v(kc)}")
    q(f"v_mul_f32 {v(kc+1)}, {f32(0.044715)}, {v(kc+1)}")
    return q.ins


SP = Prog()
spn = [1]


def sps():
    if STAMPS and "lite" in OPT:
        SP(f"s_memrealtime s[{S_STAMP}:{S_STAMP+1}]")
        SP("s_waitcnt lgkmcnt(0)")
        SP(f"v_writelane_b32 v255, s{S_STAMP}, {spn[0]}")
        spn[0] += 1


SP("L_spare:")
SP("s_waitcnt vmcnt(0)")
SP("s_barrier")
sps()
SP(f"s_and_b32 s{S_T0}, s{S_W}, 6")
SP(f"s_lshl_b32 s{S_T0}, s{S_T0}, 1")
SP(f"s_bfe_u32 s{S_T1}, s{S_W}, 0x20003")
SP(f"s_add_u32 s{S_TB}, s{S_T0}, s{S_T1}")
SP(f"s_lshr_b32 s{S_T0}, s{S_TB}, 2")
SP(f"s_lshl2_add_u32 s{S_T0}, s{S_FH}, s{S_T0}")
SP(f"s_lshl3_add_u32 s{S_T0}, s{S_T0}, s{S_T1}")
SP(f"s_lshl2_add_u32 s{S_T0}, s{S_T0}, s{S_V}")
SP(f"s_lshl_b32 s{S_T0}, s{S_T0}, 8")
SP(f"s_add_u32 s{S_PA}, s{S_T0}, {WS_C}")
SP(f"s_mul_i32 s{S_T1}, s{S_V}, 56")
SP(f"v_mov_b32 {v(V_NONCE)}, 7")
lanes_reg(SP, V_FLG, 4, 8)
SP(f"v_lshrrev_b32 v5, 4, {v(V_LANE)}")
SP(f"v_and_b32 v6, 15, {v(V_LANE)}")
SP(f"v_mul_u32_u24 v4, {PROW}, v5")
SP(f"v_lshl_add_u32 v4, v6, 4, v4")
SP(f"s_mul_i32 s{S_T1}, s{S_T1}, {PROW}")
SP(f"s_lshl_b32 s{S_T0}, s{S_TB}, 8")
SP(f"s_add_u32 s{S_T0}, s{S_T0}, s{S_T1}")
SP(f"s_mul_i32 s{S_T1}, s{S_FH}, {PGEN}")
SP(f"s_add_u32 s{S_T0}, s{S_T0}, s{S_T1}")
SP(f"s_add_u32 s{S_T0}, s{S_T0}, {WS_P}")
SP(f"v_add_u32 v11, s{S_T0}, v4")
SP(f"v_lshl_add_u32 v4, v6, 2, v5")
SP(f"s_lshl_b32 s{S_T0}, s{S_V}, 9")
SP(f"v_lshl_add_u32 v12, v4, 3, s{S_T0}")
SP(f"v_lshlrev_b32 v13, 3, {v(V_LANE)}")
SP(f"v_mov_b32 v14, 0x3f803f80")
if not NOPF and EPF < 25:
    NREM = 12544 - 512 * EPF
    LR = -(-NREM // (64 * 4))
    SP(f"s_sub_u32 s{S_T1}, s{S_W}, 224")
    SP(f"s_lshr_b32 s{S_T0}, s{S_V}, 1")
    SP(f"s_lshl1_add_u32 s{S_T1}, s{S_T1}, s{S_T0}")
    SP(f"s_mul_i32 s{S_T1}, s{S_T1}, {LR*128}")
    SP(f"s_add_u32 s{S_T1}, s{S_T1}, {(12544-256*LR)*128}")
    SP(f"v_min_u32 v4, {LR-1}, {v(V_LANE)}")
    SP(f"v_lshl_add_u32 v4, v4, 7, s{S_T1}")
    for k in range(4):
        SP(f"global_load_dword {v(60+k)}, v4, s[{S_PFB}:{S_PFB+1}]")
        if k < 3:
            SP(f"v_add_u32 v4, {64*LR*128}, v4")
SP(f"s_sub_u32 s{S_T1}, s{S_W}, 224")
SP(f"s_cmp_ge_u32 s{S_T1}, 28")
SP("s_cbranch_scc1 L_sp_nowf")
SP(f"s_lshr_b32 s{S_DB}, s{S_T1}, 2")
SP(f"s_and_b32 s{S_T2}, s{S_T1}, 3")
SP(f"s_lshl_b32 s{S_F3}, s{S_T1}, 10")
SP(f"s_add_u32 s{S_F3}, s{S_F3}, {WS_C + 896*256}")
SP(f"s_mul_i32 s{S_T1}, s{S_T1}, {14*4096}")
SP(f"s_add_u32 s{S_T1}, s{S_T1}, {WS_WF}")
SP(f"v_add_u32 v20, s{S_T1}, {v(V_L16)}")
SP(f"v_lshrrev_b32 v6, 3, {v(V_LANE)}")
SP(f"v_and_b32 v7, 6, v6")
SP(f"v_and_b32 v5, 7, {v(V_LANE)}")
SP(f"v_xor_b32 v7, v7, v5")
SP(f"v_mul_u32_u24 v6, 896, v6")
SP(f"v_lshl_add_u32 v6, v7, 4, v6")
SP(f"s_mul_i32 s{S_T0}, s{S_T2}, {448*896}")
SP(f"s_lshl_b32 s{S_T1}, s{S_DB}, 7")
SP(f"s_add_u32 s{S_T0}, s{S_T0}, s{S_T1}")
SP(f"v_add_u32 v48, s{S_T0}, v6")
for k in range(1, 4):
    SP(f"v_add_u32 {v(48+k)}, {k*(7168-1024)}, v48")
SP(f"s_lshl_b32 s{S_R2}, s{S_V}, 14")
SP(f"s_add_u32 s{S_R2}, s{S_R2}, 4096")
for i in range(4):
    SP(f"s_lshl2_add_u32 s{S_HR+i}, s{S_V}, {i}")
    SP(f"s_min_u32 s{S_HR+i}, s{S_HR+i}, 13")
    SP(f"s_mul_i32 s{S_WOFF}, s{S_HR+i}, {32*896}")
    SP(f"s_add_u32 m0, s{S_R2}, {4096*i}")
    SP(f"s_lshl_b32 s{S_HR+i}, s{S_HR+i}, 12")
    for k in range(4):
        of = f" offset:{1024*k}" if k else ""
        SP(f"buffer_load_dwordx4 {v(48+k)}, {srd(SRD_WD)}, s{S_WOFF} offen{of} lds", tok=f"sw{i}")
SP(f"v_lshrrev_b32 v4, 4, {v(V_LANE)}")
SP(f"v_lshrrev_b32 v6, 1, v4")
SP(f"v_lshlrev_b32 v6, 4, v6")
SP(f"v_and_b32 v7, 1, v4")
SP(f"v_lshl_add_u32 v6, v7, 2, v6")
SP(f"v_bfe_u32 v7, {v(V_LANE)}, 2, 2")
SP(f"v_add_u32 v6, v6, v7")
SP(f"v_bfe_u32 v7, v6, 1, 2")
SP(f"v_lshlrev_b32 v6, 7, v6")
SP(f"v_and_b32 v5, 3, {v(V_LANE)}")
SP(f"v_lshl_add_u32 v6, v5, 3, v6")
for rt in range(4):
    SP(f"v_xor_b32 v5, {rt}, v7")
    SP(f"v_lshl_add_u32 v5, v5, 5, v6")
    SP(f"v_add_u32 {v(52+rt)}, s{S_R2}, v5")
for i in range(4):
    SP.wait(f"sw{i}")
    if i in (0, 3): sps()
    for rt in range(4):
        for h in range(2):
            SP(f"ds_read_b64_tr_b16 {v(64+16*i+4*rt+2*h,2)}, {v(52+rt)} offset:{4096*i+1024*h}")
    for rt in range(4):
        SP(f"buffer_store_dwordx4 {v(64+16*i+4*rt,4)}, v20, {srd(SRD_WS)}, s{S_HR+i} offen offset:{1024*rt} sc1")
SP("s_waitcnt vmcnt(0)")
addcnt(SP, S_F3, V_FLG)
sps()
SP("L_sp_nowf:")
sps()
SP("s_mov_b64 vcc, 3")
spin(SP, "L_sp_c", "L_sp_d", poll_issue(S_PA, 7), 7, sleep=int(OPT.get('spsleep', 2)), exp=f"s{S_E28}")
SP("L_sp_d:")
sps()
for k in range(14):
    SP(f"s_mov_b32 s{S_T0}, {k*4*PROW}")
    SP(f"buffer_load_dwordx4 {v(64+4*k,4)}, v11, {srd(SRD_WS)}, s{S_T0} offen sc1")
SS = 16
for j in range(8):
    SP(f"v_mov_b32 {v(SS+j)}, 0")
for k in range(14):
    for j in range(4):
        SP(f"v_dot2c_f32_bf16 {v(SS+j)}, {v(64+4*k+j)}, v14")
    for j in range(4):
        SP(f"v_dot2c_f32_bf16 {v(SS+4+j)}, {v(64+4*k+j)}, {v(64+4*k+j)}")
for o in (0, 4):
    SP(f"v_permlane32_swap_b32 {v(SS+o)}, {v(SS+o+2)}")
    SP(f"v_permlane32_swap_b32 {v(SS+o+1)}, {v(SS+o+3)}")
for o in (0, 4):
    SP(f"v_add_f32 {v(SS+o)}, {v(SS+o)}, {v(SS+o+2)}")
    SP(f"v_add_f32 {v(SS+o+1)}, {v(SS+o+1)}, {v(SS+o+3)}")
for o in (0, 4):
    SP(f"v_permlane16_swap_b32 {v(SS+o)}, {v(SS+o+1)}")
SP(f"v_add_f32 {v(SS)}, {v(SS)}, {v(SS+1)}")
SP(f"v_add_f32 {v(SS+1)}, {v(SS+4)}, {v(SS+5)}")
sps()
SP(f"ds_write_b64 v12, {v(SS,2)}")
SP("s_waitcnt lgkmcnt(0)")
SP("s_barrier")
SP(f"s_cmp_lg_u32 s{S_V}, 0")
SP("s_cbranch_scc1 L_fin")
t = 24
for w in range(4):
    SP(f"ds_read_b64 {v(t+2*w,2)}, v13 offset:{512*w}")
SP(f"s_lshl_b32 s{S_T0}, s{S_TB}, 1")
SP(f"s_add_u32 s{S_T0}, s{S_T0}, s{S_FH}")
SP(f"s_lshl_b32 s{S_T0}, s{S_T0}, 9")
SP(f"s_add_u32 s{S_T0}, s{S_T0}, {WS_S2}")
SP(f"v_pk_add_f32 {v(t,2)}, {v(t,2)}, {v(t+2,2)}")
SP(f"v_pk_add_f32 {v(t+4,2)}, {v(t+4,2)}, {v(t+6,2)}")
SP(f"v_pk_add_f32 {v(t,2)}, {v(t,2)}, {v(t+4,2)}")
SP(f"v_mul_f32 {v(t)}, s{S_K0}, {v(t)}")
SP(f"v_mul_f32 {v(t+1)}, s{S_K0}, {v(t+1)}")
SP(f"v_fma_f32 {v(t+1)}, -{v(t)}, {v(t)}, {v(t+1)}")
SP(f"v_max_f32 {v(t+1)}, 0, {v(t+1)}")
SP(f"v_add_f32 {v(t+1)}, {f32(1e-5)}, {v(t+1)}")
SP(f"v_rsq_f32 {v(t+1)}, {v(t+1)}")
SP(f"v_cvt_pk_bf16_f32 {v(t)}, 0, -{v(t)}")
SP(f"v_cvt_f16_f32 {v(t+1)}, {v(t+1)}")
SP(f"v_and_b32 {v(t+1)}, 0xffff, {v(t+1)}")
SP(f"v_or_b32 {v(t)}, {v(t)}, {v(t+1)}")
SP(f"v_mov_b32 {v(t+1)}, s{S_NONCE}")
for r_ in range(7):
    SP(f"buffer_store_dwordx2 {v(t,2)}, v13, {srd(SRD_WS)}, s{S_T0} offen sc1")
    SP(f"s_add_u32 s{S_T0}, s{S_T0}, {S2REP}")
sps()
SP(f"s_cmp_lg_u32 s{S_W}, 255")
SP("s_cbranch_scc1 L_fin")
SP(f"v_lshlrev_b32 v4, 25, {v(V_LANE)}")
SP(f"buffer_store_dword {v(t+1)}, v4, {srd(SRD_WS)}, 0 offen sc1")
SP("s_branch L_fin")


def b_read(J, ks):
    q = sub()
    b = BF + 4 * (ks % NBF)
    o = 112 * (J & 1) + 4 * ks
    q(f"ds_read2st64_b32 {v(b,2)}, {v(V_BR)} offset0:{o} offset1:{o+1}")
    q(f"ds_read2st64_b32 {v(b+2,2)}, {v(V_BR2)} offset0:{o} offset1:{o+1}", tok=f"b{J}_{ks}")
    return q.ins


def g1_gaps(J, extra_after=None):
    m = sub()
    g0 = GACC[J & 1]
    for ks in range(28):
        for mm in range(2):
            d = g0 + 16 * mm
            c = "0" if ks == 0 else v(d, 16)
            m(f"v_mfma_f32_32x32x16_bf16 {v(d,16)}, {acc(wfrag(mm,ks),4)}, {v(BF+4*(ks%NBF),4)}, {c}")
    for mm in range(2):
        d = g0 + 16 * mm
        m(f"v_mfma_f32_32x32x16_bf16 {v(d,16)}, {acc(A_CS[mm],4)}, {v(MB,4)}, {v(d,16)}")
    g = Gaps(m.ins, 6)
    for ks in range(28):
        k2 = ks + NBF - 1
        if k2 < 28:
            r = b_read(J, k2)
            g.at(2 * ks, [r[0]])
            g.at(2 * ks + 1, [r[1]])
        if ks % 3 == 2 and ks + 1 < 28:
            w = sub()
            w.wait(f"b{J}_{min(ks+3,27)}")
            g.at(2 * ks + 1, w.ins)
    return g


def next_tile_reads(g, J, delta, first=42):
    q = sub()
    if delta:
        q(f"v_add_u32 {v(V_BR)}, {delta}, {v(V_BR)}")
        q(f"v_add_u32 {v(V_BR2)}, {delta}, {v(V_BR2)}")
    g.at(first, q.ins)
    for ks in range(NBF - 1):
        old = max(k for k in range(28) if k % NBF == ks)
        r = b_read(J, ks)
        at = max(2 * old + 1, first + 1)
        g.at(at, r[:1])
        g.at(min(at + 1, 57), r[1:])


def g1_epi(J):
    q = sub()
    g = GACC[J & 1]
    kc = KC_[J & 1]
    T = EPT
    for j0 in range(0, 16, 4):
        js = range(j0, j0 + 4)
        for j in js:
            q(f"v_mul_f32 {v(T+j-j0)}, {v(g+j)}, {v(g+j)}")
        for j in js:
            q(f"v_fma_f32 {v(T+j-j0)}, {v(T+j-j0)}, {v(kc+1)}, {v(kc)}")
        for j in js:
            q(f"v_mul_f32 {v(T+j-j0)}, {v(T+j-j0)}, {v(g+j)}")
        for j in js:
            q(f"v_exp_f32 {v(T+j-j0)}, {v(T+j-j0)}")
            q(f"v_mul_f32 {v(T+4+j-j0)}, {v(g+j)}, {v(g+16+j)}")
        for j in js:
            q(f"v_fma_f32 {v(T+j-j0)}, {v(T+j-j0)}, {v(kc+2)}, {v(kc+2)}")
        for j in js:
            q(f"v_rcp_f32 {v(T+j-j0)}, {v(T+j-j0)}")
        for j in js:
            q(f"v_mul_f32 {v(T+4+j-j0)}, {v(T+4+j-j0)}, {v(T+j-j0)}")
        q(f"v_cvt_pk_bf16_f32 {v(HP+(j0//2)%4)}, {v(T+4)}, {v(T+5)}")
        q(f"v_cvt_pk_bf16_f32 {v(HP+(j0//2)%4+1)}, {v(T+6)}, {v(T+7)}")
        if j0 in (4, 12):
            q2 = j0 // 8
            q(f"buffer_store_dwordx4 {v(HP,4)}, {v(V_HST)}, {srd(SRD_WS)}, 0 offen offset:{512*q2} sc1", tok=f"H{J}")
    q(f"v_add_u32 {v(V_HST)}, {2*57344}, {v(V_HST)}")
    return q.ins


def g1_epi_pk(J):
    q = sub()
    g = GACC[J & 1]
    assert KC_[J & 1] == 9
    T = EPT
    for j0 in range(0, 16, 8):
        pr_ = range(j0, j0 + 8, 2)
        for j in pr_:
            q(f"v_pk_mul_f32 {v(T+j-j0,2)}, {v(g+j,2)}, {v(g+j,2)}")
        for j in pr_:
            q(f"v_pk_fma_f32 {v(T+j-j0,2)}, {v(T+j-j0,2)}, v[10:11], v[8:9] op_sel:[0,0,1] op_sel_hi:[1,0,1]")
        for j in pr_:
            q(f"v_pk_mul_f32 {v(T+j-j0,2)}, {v(T+j-j0,2)}, {v(g+j,2)}")
        for j in range(j0, j0 + 8):
            q(f"v_exp_f32 {v(T+j-j0)}, {v(T+j-j0)}")
        for j in pr_:
            q(f"v_pk_mul_f32 {v(g+j,2)}, {v(g+j,2)}, {v(g+16+j,2)}")
        for j in pr_:
            q(f"v_pk_fma_f32 {v(T+j-j0,2)}, {v(T+j-j0,2)}, v[10:11], v[10:11] op_sel:[0,1,1] op_sel_hi:[1,1,1]")
        for j in range(j0, j0 + 8):
            q(f"v_rcp_f32 {v(T+j-j0)}, {v(T+j-j0)}")
        for j in pr_:
            q(f"v_pk_mul_f32 {v(g+j,2)}, {v(g+j,2)}, {v(T+j-j0,2)}")
        for j in pr_:
            q(f"v_cvt_pk_bf16_f32 {v(HP+(j-j0)//2)}, {v(g+j)}, {v(g+j+1)}")
        q(f"buffer_store_dwordx4 {v(HP,4)}, {v(V_HST)}, {srd(SRD_WS)}, 0 offen offset:{512*(j0//8)} sc1", tok=f"H{J}")
    return q.ins


def flag3(J):
    q = sub()
    q.wait(f"H{J}")
    addcnt(q, S_F3, V_FLG)
    q(f"s_add_u32 s{S_F3}, s{S_F3}, 2048")
    return q.ins


WDREG = {}
for i in range(4):
    for rt in range(4):
        WDREG[i, rt] = v(WDV + 16 * i + 4 * rt, 4)
        WDREG[10, rt] = acc(240 + 4 * rt, 4)
        WDREG[11, rt] = v([176, 180, 184, 56][rt], 4)
        WDREG[12, rt] = acc(4 * rt, 4)
        WDREG[13, rt] = acc(16 + 4 * rt, 4)
for i in range(6):
    for rt in range(4):
        WDREG[4 + i, rt] = acc(128 + 16 * i + 4 * rt, 4)
KORD = [0, 1, 2, 3, 10, 11, 12, 13, 4, 5, 6, 7, 8, 9]


def wdr(ft, rt):
    return WDREG[ft, rt]


def wd_load(ft):
    q = sub()
    q(f"s_add_u32 s{S_WOFF}, s{S_WFB}, {ft*4096}")
    for k in range(4):
        of = f" offset:{1024*k}" if k else ""
        q(f"buffer_load_dwordx4 {wdr(ft,k)}, {v(V_L16)}, {srd(SRD_WS)}, s{S_WOFF} offen{of} sc1")
    return q.ins


def wd_dma(ft):
    q = sub()
    sbase, slot = (S_FW, ft - 4) if ft < 6 else (S_R2, ft - 6)
    q(f"s_add_u32 m0, s{sbase}, {slot*4096}")
    q(f"s_add_u32 s{S_WOFF}, s{S_WFB}, {ft*4096}")
    for k in range(4):
        of = f" offset:{1024*k}" if k else ""
        q(f"buffer_load_dwordx4 {v(V_L16)}, {srd(SRD_WS)}, s{S_WOFF} offen{of} sc1 lds", tok=f"wd{ft}")
    return q.ins


def wd_read(ft):
    q = sub()
    va, slot = (V_LF, ft - 4) if ft < 6 else (V_LR, ft - 6)
    for rt in range(4):
        q(f"ds_read_b128 {wdr(ft,rt)}, {v(va)} offset:{4096*slot+1024*rt}")
    return q.ins


def res_read(J):
    q = sub()
    o = 112 * (J & 1)
    q(f"ds_read2st64_b32 {v(RESR[J],2)}, {v(V_RES)} offset0:{o} offset1:{o+1}", tok=f"res{J}")
    if J == 1:
        q(f"v_add_u32 {v(V_RES)}, {L_ACT[1]}, {v(V_RES)}")
    return q.ins


ad = sub()
ad(f"v_lshrrev_b32 v4, 4, v0")
ad(f"v_and_b32 v5, 15, v0")
ad(f"v_lshrrev_b32 v6, 1, v5")
ad(f"v_and_b32 v7, 1, v5")
ad(f"v_lshl_add_u32 v6, v6, 2, v7")
ad(f"v_lshlrev_b32 v6, 7, v6")
ad(f"v_lshl_add_u32 v6, v4, 2, v6")
ad(f"s_lshl_b32 s{S_T0}, s{S_DB}, 12")
ad(f"s_lshl_b32 s{S_T1}, s{S_FH}, 6")
ad(f"s_add_u32 s{S_T0}, s{S_T0}, s{S_T1}")
ad(f"v_add_u32 {v(V_RES)}, s{S_T0}, v6")
ad(f"v_lshrrev_b32 v6, 2, v4")
ad(f"v_and_b32 v7, 3, v4")
ad(f"v_lshl_add_u32 v6, v6, 4, v7")
ad(f"v_mul_u32_u24 v6, 896, v6")
ad(f"v_lshl_add_u32 v6, v5, 3, v6")
ad(f"s_lshr_b32 s{S_T0}, s{S_TB}, 2")
ad(f"s_lshl_b32 s{S_T0}, s{S_T0}, 8")
ad(f"s_add_u32 s{S_T0}, s{S_T0}, s{S_T1}")
ad(f"s_and_b32 s{S_T1}, s{S_TB}, 3")
ad(f"s_lshl_b32 s{S_T1}, s{S_T1}, 2")
ad(f"s_add_u32 s{S_T0}, s{S_T0}, s{S_T1}")
ad(f"s_mul_i32 s{S_T0}, s{S_T0}, 896")
ad(f"s_lshl_b32 s{S_T1}, s{S_DB}, 7")
ad(f"s_add_u32 s{S_T0}, s{S_T0}, s{S_T1}")
ad(f"v_add_u32 {v(V_OST)}, s{S_T0}, v6")
ad(f"v_mul_u32_u24 v6, 272, v5")
ad(f"v_lshl_add_u32 v6, v4, 4, v6")
ad(f"v_add_u32 {v(V_RR)}, {L_R}, v6")
ad(f"v_lshrrev_b32 v4, 4, {v(V_LANE)}")
ad(f"v_mul_u32_u24 v6, 272, v4")
ad(f"v_lshl_add_u32 v6, v5, 4, v6")
ad(f"s_mul_i32 s{S_T0}, s{S_V}, 4352")
ad(f"s_add_u32 s{S_T0}, s{S_T0}, {L_R}")
ad(f"v_add_u32 {v(V_RW)}, s{S_T0}, v6")
lanes_reg(ad, V_FLG, 2, 8)

for i in range(1, 4):
    P(f"v_mov_b32 {v(MB+i)}, 0")
    P(f"v_accvgpr_write_b32 {acc(A_CS[0]+i)}, 0")
    P(f"v_accvgpr_write_b32 {acc(A_CS[1]+i)}, 0")
if "nopad" not in OPT:
    P.raw("s_mov_b64 exec, 0")
    for c in range(3):
        P.raw(f"s_cmp_eq_u32 s{S_V}, {c}")
        P.raw(f"s_cbranch_scc1 L_walk{c}")
    P.raw("s_branch L_walk3")
    P("L_walk_back:")
    P.raw("s_mov_b64 exec, -1")
P.wait("act0")
P("s_waitcnt lgkmcnt(0)")
P("s_barrier")
stamp("gemm1 start")
for ks in range(3):
    P.add(b_read(0, ks))
g = Gaps(cs_mfma(24 - NCH_, 24), 2)
pin_spread(g, 0, sum([b_read(0, ks) for ks in range(3, NBF - 1)], []), per=1)
pin_vm(g, 1, w4[:3], 3)
P.add(g.out())

def hreg(J, ft):
    n = KORD.index(ft)
    if J in (0, 3):
        return acc(32 + 4 * n, 4)
    if J == 1:
        return v(64 + 4 * n if n < 8 else 128 + 4 * (n - 8), 4)
    return v(96 + 4 * n if n < 8 else 152 + 4 * (n - 8), 4)


def h_loads(J):
    o = []
    for s_ in KORD:
        q = sub()
        of = f" offset:{1024*(s_%4)}" if s_ % 4 else ""
        so = f"s{S_HR+s_//4}" if s_ >= 4 else "0"
        q(f"buffer_load_dwordx4 {hreg(J,s_)}, {v(V_HL)}, {srd(SRD_WS)}, {so} offen{of} sc1")
        o.append(q.ins)
    if J < 3:
        q = sub()
        q(f"v_add_u32 {v(V_HL)}, {2*57344}, {v(V_HL)}")
        o[-1] += q.ins
    return o


def p3_next():
    q = sub()
    q(f"s_add_u32 s{S_P3}, s{S_P3}, 2048")
    return q.ins


g = g1_gaps(0)
e = pin_vm(g, 0, w4[3:], 1.5)
g.at(2, fl.ins)
g.at(e, poll_check(S_P4, 25))
e4 = pin_vm(g, e, [wd_load(0), wd_load(1), wd_load(2), wd_load(3)], 2.2)
t4 = w_tr(6, 0, 8, "t4") + w_tr(6, 1, 12, "t4")
g.at(30, waitq("w4"))
pin_spread(g, 30, t4, per=2)
e = g.fill(ad2.ins[NAD2:] + ad.ins, start=0)
assert e < 34, e
g.at(41, waitq("t4") + cs_mfma(24, 28))
cf = sub()
for m in range(2):
    round_bf16(cf, 54, CSA[m])
    cf(f"v_sub_f32 v55, {v(CSA[m])}, v54")
    cf(f"v_cvt_pk_bf16_f32 v54, v54, v55")
    cf(f"v_accvgpr_write_b32 {acc(A_CS[m])}, v54")
g.fill(cf.ins, start=44, end=52)
g.at(int(OPT.get("pb1", 26)), poll_issue(S_PA, 23))
g.at(int(OPT.get("pb2", 40)), poll_issue(S_PA, 25))
g.at(int(OPT.get("st0", 29)), st_issue(0))
pin_vm(g, e4, [wd_dma(4)], 2.5)
g.at(53, stq("t0 pre st") + st_check(0) + stq("t0 post st"))
g.fill(st_final(0), start=53, end=55)
g.at(57, stq("t0 pre pB") + poll_check2(S_PA, 23, 25, "3", f"s{S_E28}") + stq("t0 post pB"))
bq = sub()
bq.wait("act1")
bq("s_barrier")
g.at(27, bq.ins)
next_tile_reads(g, 1, 0, first=41)
gap_stamps(g, "t0")
P.add(g.out())
stamp("tile0")
g = g1_gaps(1)
e = pin_vm(g, 0, act_dma(2)[:1] + [st_issue(1)] + act_dma(2)[1:] + act_dma(3), 2)
pin_vm(g, e + 1, [wd_dma(5), wd_load(10)], 2.5)
g.at(38, res_read(0))
g.at(39, res_read(1))
g.at(40, st_check(1))
g.fill(st_final(1), start=41, end=54)
bq = sub()
bq.wait("act2")
bq.wait("b1_27")
bq("s_barrier")
BB = int(OPT.get("bb", 48))
g.at(BB, stq("t1 pre bar") + bq.ins + stq("t1 post bar"))
next_tile_reads(g, 2, L_ACT[1], first=BB)
e = g.fill(g1_epi(0), start=3)
print("tile 1: epilogue ends at gap", e, "tail", len(g.tail))
gap_stamps(g, "t1")
P.add(g.out())
stamp("tile1")
g = g1_gaps(2)
pin_vm(g, 0, [wd_dma(6), wd_dma(7), st_issue(2), wd_dma(8), wd_dma(9), wd_load(11), st_issue(3)], 2.5)
g.at(24, flag3(0))
bq = sub()
bq.wait("act3")
bq("s_barrier")
g.at(30, bq.ins)
g.at(49, st_check(2))
g.fill(st_final(2), start=50, end=54)
g.at(56, poll_issue(S_P3, 7))
next_tile_reads(g, 3, 0, first=41)
e = g.fill(g1_epi(1), start=3)
print("tile 2: epilogue ends at gap", e, "tail", len(g.tail))
gap_stamps(g, "t2")
P.add(g.out())
stamp("tile2")
g = g1_gaps(3)
T3S = float(OPT.get("t3s", 2.4))
e = pin_vm(g, 4, [wd_load(12), wd_load(13)], T3S)
g.at(int(OPT.get("f1", 21)), flag3(1))
g.at(48, st_check(3))
g.fill(st_final(3), start=49, end=54)
g.at(e - 1, stq("t3 pre p0") + poll_check(S_P3, 7) + stq("t3 post p0") + p3_next())
pin_vm(g, e, h_loads(0), T3S)
g.at(int(OPT.get("p1", 47)), poll_issue(S_P3, 7))
g.at(52, res_read(2))
g.at(54, res_read(3))
e = g.fill(g1_epi(2), start=2, cap=float(OPT.get("cap3", 7)))
print("tile 3: epilogue ends at gap", e, "tail", len(g.tail))
gap_stamps(g, "t3")
P.add(g.out())
stamp("tile3")
P.add(waitq("wd9") + wd_read(4) + wd_read(5))
ep = g1_epi_pk(3)
h1 = h_loads(1)
NE = int(OPT.get("ne", 0))
PC1 = poll_check(S_P3, 7) + p3_next()
F2E = int(OPT.get("f2e", 45))
ins_ = [(F2E, flag3(2))] if F2E >= 0 else []
if NE:
    P.add(sprinkle(ep, ins_ + [(45, PC1)] + [(46 + 14 * i, h1[i]) for i in range(NE)]))
else:
    P.add(sprinkle(ep, ins_) + PC1)
stamp("epi3")

OA = [8, 48]
OA = [224, 96]
RT = 176


def g2_mfma(J):
    m = sub()
    for ft in KORD:
        for rt in range(4):
            d = acc(OA[J & 1] + 4 * rt, 4)
            c = "0" if ft == 0 else d
            m(f"v_mfma_f32_16x16x32_bf16 {d}, {wdr(ft,rt)}, {hreg(J,ft)}, {c}")
    return m.ins


RTMP = [28, 32, 36, 12]


def red_write(J):
    q = sub()
    for rt in range(4):
        q(f"ds_write_b128 {v(V_RW)}, {acc(OA[J&1]+4*rt,4)} offset:{(J&1)*R_SZ + rt*1088}")
    return q.ins


def red_bar():
    q = sub()
    q("s_waitcnt lgkmcnt(0)")
    q("s_barrier")
    return q.ins


def red_read(J):
    q = sub()
    for w in range(4):
        q(f"ds_read_b128 {v(RTMP[w],4)}, {v(V_RR)} offset:{(J&1)*R_SZ + w*4352}")
    return q.ins


def red_fin(J):
    q = sub()
    a, b, c, d = RTMP
    for i in range(2):
        q(f"v_lshlrev_b32 {v(16+2*i)}, 16, {v(RESR[J]+i)}")
        q(f"v_and_b32 {v(17+2*i)}, 0xffff0000, {v(RESR[J]+i)}")
    if J == 3 and "eps" not in OPT:
        for x, y in ((a, 16), (b, c), (a, d), (a, b)):
            for i in (0, 2):
                q(f"v_pk_add_f32 {v(x+i,2)}, {v(x+i,2)}, {v(y+i,2)}")
        for i in range(2):
            q(f"v_cvt_pk_bf16_f32 {v(20+i)}, {v(a+2*i)}, {v(a+2*i+1)}")
        q(f"s_mov_b32 s{S_T0}, {(1024*(J>>1) + 128*(J&1))*896}")
        q(f"buffer_store_dwordx2 v[20:21], {v(V_OST)}, {srd(SRD_OUT)}, s{S_T0} offen")
        return q.ins
    for i in range(4):
        q(f"v_add_f32 {v(a+i)}, {v(a+i)}, {v(b+i)}")
    for i in range(4):
        q(f"v_add_f32 {v(c+i)}, {v(c+i)}, {v(d+i)}")
    for i in range(4):
        q(f"v_add_f32 {v(a+i)}, {v(a+i)}, {v(16+i)}")
    for i in range(4):
        q(f"v_add_f32 {v(a+i)}, {v(a+i)}, {v(c+i)}")
    if "eps" in OPT:
        for i in range(4):
            q(f"v_mul_f32 {v(a+i)}, {f32(1.0+float(OPT['eps']))}, {v(a+i)}")
    for i in range(2):
        q(f"v_cvt_pk_bf16_f32 {v(20+i)}, {v(a+2*i)}, {v(a+2*i+1)}")
    q(f"s_mov_b32 s{S_T0}, {(1024*(J>>1) + 128*(J&1))*896}")
    q(f"buffer_store_dwordx2 v[20:21], {v(V_OST)}, {srd(SRD_OUT)}, s{S_T0} offen {OPT.get('ost', '').replace('_', ' ')}")
    return q.ins


for J in range(4):
    g = Gaps(g2_mfma(J), 2)
    if J > 0:
        pin_spread(g, 4, red_write(J - 1), per=1)
        g.at(16, red_bar())
        pin_spread(g, 17, red_read(J - 1), per=1)
        g.fill(red_fin(J - 1), start=28)
    if J == 0:
        pin_vm(g, 0, h1[NE:], float(OPT.get("hs1", 3)))
        if F2E < 0:
            g.at(int(OPT.get("f2", 2)), flag3(2))
        C2 = int(OPT.get("c2", 54))
        h2 = h_loads(2)
        n2 = 0
        if C2 < 56:
            g.at(C2, poll_check2(S_P3, 7, 23, "1", f"s{S_E14}") + p3_next())
            n2 = int((55 - C2) / 3.5) + 1
            pin_vm(g, C2, h2[:n2], 3.5)
        for i, x in enumerate(wd_read(6) + wd_read(7) + wd_read(8) + wd_read(9)):
            g.at(1 + 2 * i, [x])
        g.at(int(OPT.get("p2a", 12)), poll_issue(S_P3, 7))
        g.at(int(OPT.get("p2b", 30)), poll_issue(S_P3, 23))
        g.at(int(OPT.get("f3", 36)), flag3(3))
        bq = sub()
        bq.wait("res3")
        bq("s_barrier")
        g.at(52, bq.ins)
    if J == 1:
        if C2 >= 56:
            g.at(C2 - 56, poll_check2(S_P3, 7, 23, "1", f"s{S_E14}") + p3_next())
        pin_vm(g, max(C2 - 56, 1), h2[n2:], float(OPT.get("hs", 3.5)))
        g.at(int(OPT.get("p3a", 8)), poll_issue(S_P3, 7))
        g.at(int(OPT.get("p3b", 26)), poll_issue(S_P3, 23))
        C3 = int(OPT.get("c3", 50))
        g.at(C3, poll_check2(S_P3, 7, 23, "1", f"s{S_E14}"))
        h3 = h_loads(3)
        n3 = (55 - C3) // 3
        pin_vm(g, C3 + 1, h3[:n3], 3)
    if J == 2:
        pin_vm(g, 0, h3[n3:], float(OPT.get("hs3", 2)))
    P.add(g.out())
    stamp(f"g2 tile{J}")
P.add(red_write(3))
P.add(red_bar())
P.add(red_read(3))
P.add(red_fin(3))
stamp("end")

if "hold" in OPT:
    if "cls" in OPT:
        P(f"s_and_b32 s98, s{S_W}, 7")
        P(f"s_cmp_lg_u32 s98, {OPT['cls']}")
        P("s_cbranch_scc1 L_fin")
    P("L_hold:")
    P("s_memrealtime s[98:99]")
    P("s_waitcnt lgkmcnt(0)")
    P("s_sub_u32 s98, s98, s100")
    P("s_cmp_lt_u32 s98, 4000")
    P("s_cbranch_scc1 L_hold")
P("L_fin:")
if STAMPS:
    P(f"s_lshl_b32 s{S_T0}, s{S_W}, 2")
    P(f"s_add_u32 s{S_T0}, s{S_T0}, s{S_V}")
    P(f"s_lshl_b32 s{S_T0}, s{S_T0}, 8")
    P(f"s_add_u32 s{S_T0}, s{S_T0}, {WS_DBG + 0x800000}")
    P(f"v_lshlrev_b32 v4, 2, v1")
    P(f"buffer_store_dword v255, v4, {srd(SRD_WS)}, s{S_T0} offen")
if "dbgout" in OPT:
    P(f"s_cmp_ge_u32 s{S_W}, 224")
    P("s_cbranch_scc1 L_end")
    P(f"v_readlane_b32 s{S_T0}, v255, 0")
    P(f"s_not_b32 s{S_T0}, s{S_T0}")
    P(f"v_writelane_b32 v255, s{S_T0}, 15")
    P("s_mov_b64 exec, 0xffff")
    P(f"v_lshlrev_b32 v4, 2, v1")
    P("global_atomic_umax v4, v255, s[60:61]")
P("L_end:")
P("s_endpgm")

res = finalize(P.ins, verbose=True) + finalize(TAIL.ins) + finalize(SP.ins)
if "report" in OPT:
    report_waits(finalize(P.ins))
launch = f"; @launch kernel={KN} grid" if ("list" in OPT or STAMPS) else "; @launch grid"
hdr = f"""; Fused pre-LN S4D conv + GEGLU FFN, one persistent launch (generated by my own script)
{launch}=(256,1,1) block=(256,1,1) lds={LDS_SIZE}
.amdgcn_target "amdgcn-amd-amdhsa--gfx950"
.text
.globl {KN}
.p2align 12
.p2align 8
.type {KN},@function
{KN}:
"""
ftr = f"""
.p2align 8
.fill 64, 4, 0xbf800000
L_codeend:
.section .rodata,"a"
.p2align 6
.amdhsa_kernel {KN}
  .amdhsa_next_free_vgpr 512
  .amdhsa_next_free_sgpr 102
  .amdhsa_accum_offset 256
  .amdhsa_group_segment_fixed_size 0
  .amdhsa_kernarg_size 112
  .amdhsa_user_sgpr_count 2
  .amdhsa_user_sgpr_kernarg_segment_ptr 1
  .amdhsa_system_sgpr_workgroup_id_x 1
.end_amdhsa_kernel
"""
body = text_of(res)
if "nopad" not in OPT:
    body = place_pads(hdr, body, ftr, 0x300, "L_walk_back", "L_fin")
elif "noalign" not in OPT:
    body = align_pass(hdr, body, ftr)
open(OUTF, "w").write(hdr + body + ftr)
src = open(__file__).read()
a = src.index("# ---------------- workspace layout")
b = src.index("# ---------------- LDS layout")
open("layout.py", "w").write(src[a:b] + "\nSTAMP_NAMES = " + repr(stamp_names) + "\nSPIN_NAMES = " + repr(spin_names) + "\n")
```

```python
import re

REG_RE = re.compile(r"^(-|abs\()?([vas])(\d+|\[(\d+):(\d+)\])\)?$")
TRANS = ("v_exp_f32", "v_log_f32", "v_rcp_f32", "v_rsq_f32", "v_sqrt_f32", "v_sin_f32", "v_cos_f32")


def regs_of(tok):
    tok = tok.strip()
    if tok in ("vcc",):
        return {"vcc"}
    if tok in ("exec",):
        return {"exec"}
    if tok == "m0":
        return {"m0"}
    m = REG_RE.match(tok)
    if not m:
        return set()
    k = m.group(2)
    if m.group(4) is not None:
        return {f"{k}{i}" for i in range(int(m.group(4)), int(m.group(5)) + 1)}
    return {f"{k}{m.group(3)}"}


def split_ops(s):
    out, depth, cur = [], 0, ""
    for ch in s:
        if ch in "[(":
            depth += 1
        if ch in "])":
            depth -= 1
        if ch == "," and depth == 0:
            out.append(cur.strip())
            cur = ""
        else:
            cur += ch
    if cur.strip():
        out.append(cur.strip())
    return out


class Ins:
    __slots__ = ("text", "mn", "ops", "mods", "rd", "wr", "cls", "passes", "tok", "cond", "srcC", "srcAB", "extra")

    def __init__(self, text, tok=None, cond=False):
        self.text = text
        self.tok = tok
        self.cond = cond
        self.extra = None
        t = text.split(";")[0].strip()
        self.rd, self.wr = set(), set()
        self.passes = 0
        self.srcC = set()
        self.srcAB = set()
        if t.endswith(":") or t.startswith(".") or not t:
            self.mn, self.ops, self.mods, self.cls = t, [], "", "label" if t.endswith(":") else "dir"
            return
        parts = t.split(None, 1)
        mn = parts[0]
        rest = parts[1] if len(parts) > 1 else ""
        ops = split_ops(rest)
        mods = ""
        if ops:
            last = ops[-1].split(None, 1)
            if len(last) > 1 and not mn.startswith("s_waitcnt"):
                ops[-1] = last[0]
                mods = last[1]
        self.mn, self.ops, self.mods = mn, ops, mods
        base = re.sub(r"_(e32|e64|dpp|sdwa)$", "", mn)
        R = [regs_of(o) for o in ops]
        allr = lambda idx: set().union(*[R[i] for i in idx]) if idx else set()
        n = len(ops)
        if mn.startswith("v_mfma"):
            self.cls = "mfma"
            self.passes = 8 if "32x32x16" in mn else (4 if "16x16x32" in mn else 2)
            self.wr = R[0]
            self.srcAB = R[1] | R[2]
            self.srcC = R[3]
            self.rd = self.srcAB | self.srcC
        elif mn.startswith("v_"):
            self.cls = "valu"
            if base in TRANS:
                self.cls = "trans"
            if base.startswith("v_dot2"):
                self.cls = "dot"
            if base in ("v_swap_b32",) or base.startswith("v_permlane"):
                self.wr = R[0] | R[1]
                self.rd = R[0] | R[1]
                if base.startswith("v_permlane"):
                    self.extra = "permlane"
            elif base in ("v_add_co_u32", "v_sub_co_u32", "v_addc_co_u32", "v_subb_co_u32"):
                self.wr = R[0] | R[1]
                self.rd = allr(range(2, n))
            else:
                self.wr = R[0]
                self.rd = allr(range(1, n))
                if base in ("v_fmac_f32", "v_dot2c_f32_bf16", "v_writelane_b32") or "_dpp" in mn or "row_" in mods or "quad_perm" in mods:
                    self.rd |= R[0]
                if "_dpp" in mn or "row_" in mods or "quad_perm" in mods:
                    self.extra = "dpp"
                if base in ("v_readfirstlane_b32", "v_readlane_b32"):
                    self.extra = "readlane"
                if base.startswith("v_dot2"):
                    self.srcC = R[0] if base.startswith("v_dot2c") else R[3]
                    self.srcAB = R[1] | R[2]
        elif mn.startswith("ds_"):
            self.cls = "ds"
            if mn.startswith("ds_read") or mn.startswith("ds_bpermute") or mn.startswith("ds_swizzle"):
                self.wr = R[0]
                self.rd = allr(range(1, n))
                if "d16" in mn:
                    self.rd |= R[0]
            else:
                self.rd = allr(range(n))
            if "addtid" in mn:
                self.rd |= {"m0"}
                self.extra = "dma"
        elif mn.startswith("buffer_") or mn.startswith("global_"):
            self.cls = "vmem"
            islds = " lds" in (" " + mods)
            if "_load" in mn and not islds:
                self.wr = R[0]
                self.rd = allr(range(1, n))
            elif "_atomic" in mn and "sc0" in mods:
                self.wr = R[0]
                self.rd = allr(range(n))
            else:
                self.rd = allr(range(n))
                if islds:
                    self.rd |= {"m0"}
                    self.extra = "dma"
                elif "x4" in mn or "x3" in mn:
                    self.extra = "widestore"
        elif mn.startswith("s_load") or mn.startswith("s_mem"):
            self.cls = "smem"
            self.wr = R[0]
            self.rd = allr(range(1, n))
        elif mn.startswith("s_"):
            self.cls = "salu"
            if mn in ("s_waitcnt", "s_barrier", "s_nop", "s_endpgm", "s_sleep", "s_setprio") or mn.startswith("s_cbranch") or mn == "s_branch":
                self.cls = "ctl"
            elif mn.startswith("s_cmp") or mn.startswith("s_bitcmp"):
                self.rd = allr(range(n))
            else:
                self.wr = R[0]
                self.rd = allr(range(1, n))
                if "saveexec" in mn:
                    self.wr |= {"exec"}
        else:
            raise ValueError("unknown instruction: " + text)

    def states(self):
        if self.cls in ("label", "dir"):
            return 0
        if self.mn == "s_nop":
            return int(self.ops[0]) + 1
        return 1


def need_states(p, c):
    n = 0
    pv = p.cls in ("valu", "trans", "dot")
    cv = c.cls in ("valu", "trans", "dot")
    if pv:
        vw = {r for r in p.wr if r[0] in "va" and r != "vcc"}
        sw = {r for r in p.wr if r[0] == "s" or r == "vcc"}
        if c.cls == "mfma" and vw & c.rd:
            n = max(n, 2)
        if c.extra == "dpp" and vw & c.rd:
            n = max(n, 2)
        if c.extra == "permlane" and vw & c.rd:
            n = max(n, 2)
        if c.extra == "readlane" and vw & c.rd:
            n = max(n, 1)
        if sw & c.rd:
            if cv:
                n = max(n, 4 if c.extra == "readlane" else 2)
            if c.cls == "vmem":
                n = max(n, 5)
        if p.cls == "trans" and vw & c.rd and c.cls != "trans":
            n = max(n, 1)
        if p.cls == "dot":
            if c.cls == "dot" and c.mn == p.mn:
                if vw & c.srcAB:
                    n = max(n, 3)
            elif vw & (c.rd | c.wr):
                n = max(n, 3)
    if p.cls == "mfma":
        P = p.passes
        long = {2: 5, 4: 8, 8: 12}[P]
        if c.cls == "mfma":
            if p.wr & c.srcAB:
                n = max(n, long)
            if p.wr & c.srcC:
                if p.wr == c.srcC and c.passes == P:
                    n = max(n, 2 if P == 2 else 0)
                else:
                    n = max(n, P + 2)
            elif p.wr & c.wr:
                n = max(n, P + 2)
        elif p.wr & (c.rd | c.wr):
            n = max(n, long)
        if cv and p.srcC & c.wr:
            n = max(n, {2: 1, 4: 3, 8: 7}[P])
    if p.extra == "widestore":
        data = regs_of(p.ops[0]) if p.mn.startswith("buffer_") else regs_of(p.ops[1])
        if data & c.wr:
            n = max(n, 2)
    if p.cls == "salu" and "m0" in p.wr and c.extra == "dma":
        n = max(n, 1)
    return n


class Prog:
    def __init__(self):
        self.ins = []
        self._cond = False

    def __call__(self, text, tok=None):
        for line in text.split("\n"):
            line = line.strip()
            if not line or (line.startswith(";") and not line.startswith("; @")):
                continue
            self.ins.append(Ins(line, tok=tok, cond=self._cond))

    def raw(self, text):
        i = Ins(".raw")
        i.text = "    " + text
        self.ins.append(i)

    def add(self, lst):
        for i in lst:
            self.ins.append(i)

    def cond(self, on):
        self._cond = on

    def wait(self, tok):
        i = Ins("s_waitcnt auto", cond=self._cond)
        i.extra = ("wait", tok)
        self.ins.append(i)

    def lds_fence(self):
        self("s_waitcnt lgkmcnt(0)")


def sub():
    return Prog()


def interleave(main, fill, start=0, every=None, weights=None):
    idx = [k for k, i in enumerate(main) if i.cls == "mfma"]
    idx = idx[start:]
    if not idx:
        return main + fill
    n = len(idx)
    cost = lambda i: 2 if i.cls == "trans" else (0 if (i.extra and isinstance(i.extra, tuple)) else 1)
    total = sum(cost(i) for i in fill)
    out = []
    fi = 0
    done = 0
    seen = 0
    for k, i in enumerate(main):
        out.append(i)
        if k in idx:
            seen += 1
            target = total * seen / n if every is None else min(total, every * seen)
            while fi < len(fill) and done + cost(fill[fi]) <= target + 1e-9:
                out.append(fill[fi])
                done += cost(fill[fi])
                fi += 1
    out += fill[fi:]
    return out


def finalize(ins, verbose=False):
    out = []
    vm = []
    lg = []
    smem_out = []

    def emit_wait(vmn=None, lgn=None, cond=False):
        parts = []
        if vmn is not None:
            parts.append(f"vmcnt({min(vmn, 62)})")
        if lgn is not None:
            parts.append(f"lgkmcnt({min(lgn, 14)})")
        w = Ins("s_waitcnt " + " ".join(parts), cond=cond)
        out.append(w)

    def younger(lst, k, cond):
        return sum(1 for j in lst[k + 1:] if (not j.cond) or cond)

    for i in ins:
        if isinstance(i.extra, tuple) and i.extra[0] == "wait":
            tok = i.extra[1]
            kv = max([k for k, j in enumerate(vm) if j.tok == tok], default=None)
            kl = max([k for k, j in enumerate(lg) if j.tok == tok], default=None)
            if kv is not None or kl is not None:
                emit_wait(None if kv is None else younger(vm, kv, i.cond), None if kl is None else younger(lg, kl, i.cond), i.cond)
                if not i.cond:
                    if kv is not None:
                        vm = vm[kv + 1:]
                    if kl is not None:
                        lg = lg[kl + 1:]
                else:
                    if kv is not None:
                        vm = [j for k, j in enumerate(vm) if not (k <= kv and j.cond)]
                    if kl is not None:
                        lg = [j for k, j in enumerate(lg) if not (k <= kl and j.cond)]
            continue
        if i.mn == "s_waitcnt":
            t = i.text
            m = re.search(r"vmcnt\((\d+)\)", t)
            if m:
                n = int(m.group(1))
                assert n == 0, "manual counted vmcnt not supported"
                vm = [] if not i.cond else [j for j in vm if not j.cond]
            m = re.search(r"lgkmcnt\((\d+)\)", t)
            if m:
                assert int(m.group(1)) == 0
                if not i.cond:
                    lg = []
                    smem_out = []
                else:
                    lg = [j for j in lg if not j.cond]
            out.append(i)
            continue
        touched = i.rd | i.wr
        for j in smem_out:
            assert not (j.wr & touched), f"use of SMEM result without lgkmcnt(0): {i.text}"
        kv = max([k for k, j in enumerate(vm) if j.wr & touched], default=None)
        kl = max([k for k, j in enumerate(lg) if j.wr & touched], default=None)
        if kl is not None and i.cls == "ds" and "d16" in i.mn and not (lg[kl].wr & (i.rd - i.wr)):
            kl = None
        if kl is not None and not any(j.cond for j in lg):
            kl = max(kl, len(lg) - 1 - 14)
        if kv is not None or kl is not None:
            if kl is not None and smem_out:
                emit_wait(None if kv is None else younger(vm, kv, i.cond), 0, i.cond)
                if not i.cond:
                    lg = []
                    smem_out = []
            else:
                emit_wait(None if kv is None else younger(vm, kv, i.cond), None if kl is None else younger(lg, kl, i.cond), i.cond)
            if not i.cond:
                if kv is not None:
                    vm = vm[kv + 1:]
                if kl is not None and lg:
                    lg = lg[kl + 1:]
            else:
                if kv is not None:
                    vm = [j for k, j in enumerate(vm) if not (k <= kv and j.cond)]
                if kl is not None:
                    lg = [j for k, j in enumerate(lg) if not (k <= kl and j.cond)]
        out.append(i)
        if i.cls == "vmem":
            vm.append(i)
            assert len(vm) <= 63, "too many outstanding vmem ops at " + i.text
        elif i.cls == "ds":
            lg.append(i)
        elif i.cls == "smem":
            smem_out.append(i)

    res = []
    nn = 0
    for i in out:
        if i.cls not in ("label", "dir", "ctl"):
            dist = 0
            need = 0
            for p in reversed(res):
                if dist >= 20:
                    break
                r = need_states(p, i)
                if r > dist:
                    need = max(need, r - dist)
                if not (p.cond and not i.cond):
                    dist += p.states()
            while need > 0:
                k = min(need, 16)
                res.append(Ins(f"s_nop {k-1}", cond=i.cond))
                nn += 1
                need -= k
        res.append(i)
    if verbose:
        print(f"instructions: {len(res)}, nops inserted: {nn}")
    return res


def text_of(res):
    return "\n".join((i.text if i.cls in ("label", "dir") else "    " + i.text) for i in res)


def cost(i):
    if isinstance(i.extra, tuple):
        return 1
    if i.cls == "trans" or i.mn.startswith("v_swap"):
        return 2
    if i.cls in ("label", "dir"):
        return 0
    if i.cls == "vmem":
        return 5 if "store_dwordx4" in i.mn else 3
    return 1


class Gaps:
    def __init__(self, mfmas, cap):
        self.m = mfmas
        self.n = len(mfmas)
        self.cap = cap
        self.pin = [[] for _ in mfmas]
        self.fil = [[] for _ in mfmas]
        self.tail = []

    def used(self, k):
        return sum(cost(i) for i in self.pin[k]) + sum(cost(i) for i in self.fil[k])

    def at(self, k, ins):
        self.pin[min(k, self.n - 1)] += list(ins)

    def fill(self, ins, start=0, end=None, cap=None):
        cap = self.cap if cap is None else cap
        end = self.n if end is None else end
        k = start
        for i in ins:
            while k < end and self.used(k) + cost(i) > cap:
                k += 1
            if k >= end:
                if end >= self.n:
                    self.tail.append(i)
                else:
                    self.fil[end - 1].append(i)
            else:
                self.fil[k].append(i)
        return k

    def out(self):
        o = []
        for k in range(self.n):
            o.append(self.m[k])
            o += self.pin[k]
            o += self.fil[k]
        return o + self.tail


def sprinkle(main, inserts):
    d = {}
    for k, l in inserts:
        d.setdefault(min(k, len(main)), []).extend(l)
    o = []
    for k, i in enumerate(main):
        o += d.get(k, [])
        o.append(i)
    o += d.get(len(main), [])
    return o


def report_waits(res, vm_min=1100, lg_min=120):
    t = 0
    nm = 0
    vm, lg = [], []
    mark = "start"
    for i in res:
        if i.cls == "dir" and i.text.startswith("; @"):
            print(f"--- t={t} {i.text}")
            continue
        if i.cls in ("label", "dir"):
            continue
        if i.cls == "mfma":
            t = max(t, nm)
            nm = t + 4 * i.passes
            t += 8
            continue
        if i.mn == "s_waitcnt":
            m = re.search(r"vmcnt\((\d+)\)", i.text)
            if m:
                n = int(m.group(1))
                if len(vm) > n:
                    tt, j = vm[len(vm) - n - 1]
                    if t - tt < vm_min:
                        print(f"   t={t} vm wait age {t-tt}: {j.text[:70]}")
                    vm = vm[len(vm) - n:] if n else []
            m = re.search(r"lgkmcnt\((\d+)\)", i.text)
            if m:
                n = int(m.group(1))
                if len(lg) > n:
                    tt, j = lg[len(lg) - n - 1]
                    if t - tt < lg_min:
                        print(f"   t={t} lgkm wait age {t-tt}: {j.text[:70]}")
                    lg = lg[len(lg) - n:] if n else []
            t += 4
            continue
        if i.cls == "vmem":
            vm.append((t, i))
            t += 12
        elif i.cls == "ds":
            lg.append((t, i))
            t += 8
        elif i.mn == "s_nop":
            t += 4 * i.states()
        else:
            t += 4 * cost(i)
    print(f"--- t={t} end")


NO_E64 = ("v_readfirstlane_b32", "v_swap_b32", "v_permlane32_swap_b32", "v_permlane16_swap_b32", "v_dot2c_f32_bf16",
          "v_accvgpr_mov_b32", "v_nop")


def align_pass(hdr, body, ftr, tmp="_al"):
    import subprocess
    open(tmp + ".s", "w").write(hdr + body + ftr)
    subprocess.run(["clang", "-x", "assembler", "-target", "amdgcn-amd-amdhsa", "-mcpu=gfx950", "-c", tmp + ".s", "-o", tmp + ".o"], check=True)
    dis = subprocess.run(["llvm-objdump", "-d", "--mcpu=gfx950", tmp + ".o"], capture_output=True, text=True, check=True).stdout
    sizes = []
    for l in dis.split("\n"):
        m = re.search(r"// [0-9A-F]{12}: ((?:[0-9A-F]{8} ?)+)", l)
        if m:
            sizes.append(4 * len(m.group(1).split()))
    lines = body.split("\n")
    idx = [k for k, l in enumerate(lines) if l.startswith("    ") and not l.strip().startswith((";", "."))]
    sizes = sizes[:len(idx)]
    n = len(idx)
    alt = []
    for k, sz in zip(idx, sizes):
        t = lines[k].split(None, 1)
        mn = t[0]
        ops = [o.strip() for o in t[1].split(",")] if len(t) > 1 else []
        a_ = None
        if sz == 4 and mn.startswith("v_") and mn not in NO_E64 and not mn.endswith(("_e64", "_dpp", "_sdwa")):
            a_ = f"    {mn}_e64 {t[1]}"
        elif sz == 4 and mn == "s_mov_b32" and ops[0] == "m0" and ops[1].startswith("s"):
            a_ = f"    s_and_b32 m0, {ops[1]}, 0x7fffffff"
        elif sz == 4 and mn == "s_add_u32" and ops[0] == "m0" and ops[2] == "0":
            a_ = f"    s_and_b32 m0, {ops[1]}, 0x7fffffff"
        elif sz == 8 and mn == "s_mov_b32" and re.fullmatch(r"\d+", ops[1]) and int(ops[1]) < 32768 and ops[0].startswith("s"):
            a_ = f"    s_movk_i32 {ops[0]}, {ops[1]}"
        elif sz == 8 and mn == "s_add_u32" and ops[0] == ops[1] and re.fullmatch(r"\d+", ops[2]) and int(ops[2]) < 32768:
            a_ = f"    s_addk_i32 {ops[0]}, {ops[2]}"
        alt.append(a_)
    INF = 1e18
    cost = [0.0, INF]
    back = []
    for i in range(n):
        nc = [INF, INF]
        bk = [None, None]
        for par in (0, 1):
            if cost[par] >= INF:
                continue
            opts = [(sizes[i], 0.0)] + ([(12 - sizes[i], 0.05)] if alt[i] else [])
            for sz, pen in opts:
                c = cost[par] + pen + (1.0 if (sz == 8 and par == 1) else 0.0)
                np_ = (par + sz // 4) % 2
                if c < nc[np_]:
                    nc[np_] = c
                    bk[np_] = (par, sz)
        cost = nc
        back.append(bk)
    par = 0 if cost[0] <= cost[1] else 1
    total = cost[par]
    wid = 0
    for i in range(n - 1, -1, -1):
        pp, sz = back[i][par]
        if sz != sizes[i]:
            lines[idx[i]] = alt[i]
            wid += 1
        par = pp
    par, base = 0, 0
    for sz in sizes:
        base += (sz == 8 and par == 1)
        par = (par + sz // 4) % 2
    print(f"align: misaligned {base} -> {int(total - 0.05 * wid + 0.5)}, widened {wid}")
    return "\n".join(lines)


def _sizes(hdr, body, ftr, tmp="_al"):
    import subprocess
    open(tmp + ".s", "w").write(hdr + body + ftr)
    subprocess.run(["clang", "-x", "assembler", "-target", "amdgcn-amd-amdhsa", "-mcpu=gfx950", "-c", tmp + ".s", "-o", tmp + ".o"], check=True)
    dis = subprocess.run(["llvm-objdump", "-d", "--mcpu=gfx950", tmp + ".o"], capture_output=True, text=True, check=True).stdout
    sizes = []
    for l in dis.split("\n"):
        m = re.search(r"// [0-9A-F]{12}: ((?:[0-9A-F]{8} ?)+)", l)
        if m:
            sizes.append(4 * len(m.group(1).split()))
    lines = body.split("\n")
    idx = [k for k, l in enumerate(lines) if l.startswith("    ") and not l.strip().startswith((";", "."))]
    return lines, idx, sizes[:len(idx)]


def place_pads(hdr, body, ftr, base, first_label, end_label, nchain=4, align=True):
    src = body.split("\n")
    pos = None
    for it in range(12):
        cur = list(src)
        if pos is not None:
            n = len(pos)
            for k in range(n - 1, -1, -1):
                tgt = f"L_pad{k+nchain}" if k + nchain < n else "L_walk_back"
                cur[pos[k]:pos[k]] = [f"L_pad{k}:", f"    s_cbranch_execz {tgt}"]
            heads = [f".set L_walk{c}, " + (f"L_pad{c}" if c < n else "L_walk_back") for c in range(nchain)]
        else:
            heads = [f".set L_walk{c}, L_walk_back" for c in range(nchain)]
        text = "\n".join(cur + heads)
        if align:
            text = align_pass(hdr, text, ftr)
        lines, idx, sizes = _sizes(hdr, text, ftr)
        off = {}
        a = base
        for k, sz in zip(idx, sizes):
            off[k] = a
            a += sz
        lo = lines.index(first_label + ":")
        hi = lines.index(end_label + ":")
        pads = [k + 1 for k, l in enumerate(lines) if l.startswith("L_pad")]
        pages = [p for p in range(0, a // 4096 + 1) if off[min(k for k in idx if k > lo)] < p * 4096 < off[max(k for k in idx if k < hi)] - 128]
        if pos is not None and len(pads) == len(pages) and all(0 <= off[k] - p * 4096 < 56 for k, p in zip(pads, pages)):
            print("pads at", [off[k] - p * 4096 for k, p in zip(pads, pages)])
            return text
        back = {}
        j = 0
        for k, l in enumerate(lines[:len(cur)]):
            if l.startswith("L_pad") or (k > 0 and lines[k - 1].startswith("L_pad")):
                continue
            back[k] = j
            j += 1
        pos = []
        for p in pages:
            k = min(k for k in idx if k in back and off[k] >= p * 4096 + 16 and not lines[k].strip().startswith(("s_cbranch", "s_cselect")))
            pos.append(back[k])
    raise RuntimeError("pad placement did not converge")


def place_pads2(hdr, body, ftr, base, walks, nchain=4):
    src = body.split("\n")
    pos = None
    for it in range(16):
        cur = list(src)
        heads = []
        if pos is not None:
            per = {}
            for k, (ln, w) in enumerate(pos):
                per.setdefault(w, []).append(k)
            for k in range(len(pos) - 1, -1, -1):
                ln, w = pos[k]
                j = per[w].index(k)
                tgt = f"L_pad{per[w][j+nchain]}" if j + nchain < len(per[w]) else f"L_{walks[w][0]}_back"
                cur[ln:ln] = [f"L_pad{k}:", f"    s_cbranch_execz {tgt}"]
            for w, (name, _, _) in enumerate(walks):
                l = per.get(w, [])
                heads += [f".set L_{name}{c}, " + (f"L_pad{l[c]}" if c < len(l) else f"L_{name}_back") for c in range(nchain)]
        else:
            for name, _, _ in walks:
                heads += [f".set L_{name}{c}, L_{name}_back" for c in range(nchain)]
        text = align_pass(hdr, "\n".join(cur + heads), ftr)
        lines, idx, sizes = _sizes(hdr, text, ftr)
        off = {}
        a = base
        for k, sz in zip(idx, sizes):
            off[k] = a
            a += sz
        pages = []
        for w, (name, fl, el) in enumerate(walks):
            lo, hi = lines.index(fl + ":"), lines.index(el + ":")
            pages += [(p, w) for p in range(0, a // 4096 + 1) if off[min(k for k in idx if k > lo)] < p * 4096 < off[max(k for k in idx if k < hi)] - 160]
        pads = [k + 1 for k, l in enumerate(lines) if l.startswith("L_pad")]
        if pos is not None and len(pads) == len(pages) and all(0 <= off[k] - p * 4096 < 56 for k, (p, w) in zip(pads, pages)):
            print("pads at", [(w, off[k] - p * 4096) for k, (p, w) in zip(pads, pages)])
            return text
        back = {}
        j = 0
        for k, l in enumerate(lines[:len(cur)]):
            if l.startswith("L_pad") or (k > 0 and lines[k - 1].startswith("L_pad")):
                continue
            back[k] = j
            j += 1
        pos = []
        for p, w in pages:
            k = min(k for k in idx if k in back and off[k] >= p * 4096 + 16 and not lines[k].strip().startswith(("s_cbranch", "s_cselect")))
            pos.append((back[k], w))
    raise RuntimeError("pad placement did not converge")
```

```python
import sys, math, struct
from asmgen import *

NAME = "sequential_preLN__ssm_conv_s4d__geglu_ffn__prompt"
KN = NAME + "_kernel"
OPT = {}
for a in sys.argv[1:]:
    k, _, val = a.partition("=")
    OPT[k] = val if val else True
STAMPS = "stamps" in OPT
OUTF = OPT.get("out", "k18.s")
OPT.setdefault("pfpos", "300,300")
OPT.setdefault("pa3", "84")
OPT.setdefault("w2", "b")


def f32(x):
    return "0x%08x" % struct.unpack("<I", struct.pack("<f", x))[0]


FS = 4
FREP = 0x9000
WS_EPOCH = 0
WS_F1 = 0x8000
WS_S2 = 0x58000
S2REP = 0x5000
WS_C = 0x80000
WS_UX = 0xD0000
WS_P = WS_UX + 256 * 14336
PROW = 4352
PGEN = 224 * PROW
WS_H = WS_P + 2 * PGEN
WS_WF = WS_H + 16 * 4 * 56 * 2048
WS_END = WS_WF + 392 * 4096
WS_DBG = 0x1000000
WS_SIZE = 0x2000000
LAYOUT = 5

CS = 4160
TAB_W = 14592
TAB_ROW = 272
L_KC = 58368
L_UX = 75008
L_EX = 0
L_RING = 98304
L_ACT = [0, 65536]
L_F = 131072
L_R = 65536
R_SZ = 17408
LDS_SIZE = 163840

S_W = 2
S_V = 4
S_T0, S_T1, S_T2, S_T3 = 5, 6, 7, 3
SRD_X, SRD_WS, SRD_WG, SRD_WU, SRD_WD, SRD_OUT = 8, 12, 16, 20, 24, 28
S_NONCE = 32
S_CNT = 33
S_EX = 34
S_PR, S_DSK = 64, 65
S_TB, S_FB, S_FH, S_DB = 66, 67, 68, 69
S_A, S_B, S_C, S_D = 70, 72, 74, 76
S_RING = 78
S_WOFF = 79
S_K0 = 80
S_TAB = 81
S_F3 = 82
S_F1, S_F2 = 83, 84
S_M255 = 86
S_FW, S_R2 = 88, 89
S_ACTW = 90
S_UXO = 91
S_PFB = 88
S_HR = 36
S_PA, S_P4, S_P3, S_PST, S_AB, S_WFB = 40, 41, 42, 43, 44, 45
S_E28, S_E14, S_CI = 46, 47, 85
S_F1L = 95
S_UXM = 92
S_REP = 94
S_PERM = 93
S_STAMP = 96


def srd(n):
    return f"s[{n}:{n+3}]"


def v(n, w=1):
    return f"v{n}" if w == 1 else f"v[{n}:{n+w-1}]"


def acc(n, w=1):
    return f"a{n}" if w == 1 else f"a[{n}:{n+w-1}]"


P = Prog()
TAIL = Prog()
nstamp = [0]
stamp_names = []
spin_names = []
LITE = ("start", "conv start", "genA stored", "gemm1 start", "tile3", "end")
if "dbgout" in OPT:
    LITE = ("start", "x arrived", "ln1 done", "kgen r1", "conv start", "genA stored", "gemm1 start", "tile1", "tile3", "end")


def stamp(name, p=None):
    p = P if p is None else p
    p(f"; @ {name}")
    if OPT.get("hold", "").replace("_", " ") == name:
        p(f"s_memrealtime s[100:101]")
        p("s_waitcnt lgkmcnt(0)")
    if STAMPS and ("lite" not in OPT or name in LITE):
        k = nstamp[0]
        assert k < 32
        p(f"s_memrealtime s[{S_STAMP}:{S_STAMP+1}]")
        p(f"s_memtime s[{S_STAMP+2}:{S_STAMP+3}]")
        p("s_waitcnt lgkmcnt(0)")
        p(f"v_writelane_b32 v255, s{S_STAMP}, {k}")
        p(f"v_writelane_b32 v255, s{S_STAMP+2}, {32+k}")
        nstamp[0] += 1
        stamp_names.append(name)


def stq(name):
    q = sub()
    if "dbg" in OPT:
        stamp(name, q)
    return q.ins


lblc = [0]


def label(prefix):
    lblc[0] += 1
    return f"L_{prefix}_{lblc[0]}"


def poll_issue(what, vtmp):
    q = sub()
    q(f"v_mov_b32 {v(vtmp)}, 0")
    if what == "F1":
        q(f"buffer_atomic_add {v(vtmp)}, {v(V_F1)}, {srd(SRD_WS)}, 0 offen sc0")
    else:
        q(f"buffer_atomic_add {v(vtmp)}, {v(V_PM if what == S_PA else V_P1)}, {srd(SRD_WS)}, s{what} offen sc0")
    return q.ins


def spin(t, name, done, reissue, vtag, sleep=2, exp=None):
    t(f"{name}:")
    t(f"s_mov_b32 s{S_CNT}, 0")
    t(f"{name}_l:")
    t("s_mov_b64 exec, vcc")
    t(f"s_sleep {sleep}")
    t.add(reissue)
    t("s_waitcnt vmcnt(0)")
    t(f"v_cmp_ne_u32 vcc, {exp or f's{S_NONCE}'}, {v(vtag)}")
    t("s_mov_b64 exec, -1")
    if STAMPS and "lite" in OPT:
        spin_names.append(name)
        t(f"s_add_u32 s{S_STAMP}, s{S_CNT}, 1")
        t(f"v_writelane_b32 v255, s{S_STAMP}, {10+len(spin_names)-1}")
    t(f"s_cbranch_vccz {done}")
    t(f"s_add_u32 s{S_CNT}, s{S_CNT}, 1")
    t(f"s_cmp_lt_u32 s{S_CNT}, 0x40000")
    t(f"s_cbranch_scc1 {name}_l")
    t(f"s_branch {done}")


def poll_check(what, vtmp):
    q = sub()
    slow, done = label("slow"), label("pdone")
    exp = f"s{S_NONCE}" if what == "F1" else (f"s{S_E14}" if what == S_P3 else f"s{S_E28}")
    q(f"v_cmp_ne_u32 vcc, {exp}, {v(vtmp)}")
    if what == "F1":
        q(f"s_cbranch_vccnz {slow}")
    else:
        q(f"s_and_b64 vcc, vcc, {3 if what == S_PA else 1}")
        q(f"s_cbranch_scc1 {slow}")
    q(f"{done}:")
    spin(TAIL, slow, done, poll_issue(what, vtmp), vtmp, exp=exp, sleep=1)
    return q.ins


def poll_check2(vaddr, v1, v2, mask, exp):
    q = sub()
    slow, done = label("slow"), label("pdone")
    q(f"v_cmp_ne_u32 vcc, {exp}, {v(v1)}")
    q(f"s_and_b64 vcc, vcc, {mask}")
    q(f"s_cbranch_scc0 {done}")
    q.cond(True)
    q(f"v_cmp_ne_u32 vcc, {exp}, {v(v2)}")
    q(f"s_and_b64 vcc, vcc, {mask}")
    q(f"s_cbranch_scc1 {slow}")
    q.cond(False)
    q(f"{done}:")
    spin(TAIL, slow, done, poll_issue(vaddr, v1), v1, exp=exp, sleep=1)
    return q.ins


def poll_checkn(what, regs, mask, exp):
    q = sub()
    slow, done = label("slow"), label("pdone")
    for k, r in enumerate(regs):
        q(f"v_cmp_ne_u32 vcc, {exp}, {v(r)}")
        q(f"s_and_b64 vcc, vcc, {mask}")
        q(f"s_cbranch_scc0 {done}" if k < len(regs) - 1 else f"s_cbranch_scc1 {slow}")
        q.cond(True)
    q.cond(False)
    q(f"{done}:")
    spin(TAIL, slow, done, poll_issue(what, regs[0]), regs[0], exp=exp, sleep=1)
    return q.ins


def setflag(p, soff):
    if "fst" in OPT:
        p(f"buffer_store_dword {v(V_NONCE)}, {v(V_FLG)}, {srd(SRD_WS)}, s{soff} offen sc1")
    else:
        p(f"buffer_atomic_swap {v(V_NONCE)}, {v(V_FLG)}, {srd(SRD_WS)}, s{soff} offen")


def addcnt(p, soff, vl):
    p(f"buffer_atomic_add {v(V_NONCE)}, {v(vl)}, {srd(SRD_WS)}, s{soff} offen")


def lanes_reg(p, dst, n, sh, t1=4):
    p(f"v_and_b32 {v(t1)}, {64-n}, {v(V_LANE)}")
    p(f"v_lshlrev_b32 {v(t1)}, 25, {v(t1)}")
    p(f"v_lshl_add_u32 {v(dst)}, {v(V_LANE)}, {sh}, {v(t1)}")


def walk(name):
    P.raw("s_mov_b64 exec, 0")
    for c in range(3):
        P.raw(f"s_cmp_eq_u32 s{S_V}, {c}")
        P.raw(f"s_cbranch_scc1 L_{name}{c}")
    P.raw(f"s_branch L_{name}3")
    P(f"L_{name}_back:")
    P.raw("s_mov_b64 exec, -1")


def waitq(tok):
    q = sub()
    q.wait(tok)
    return q.ins


def cmul(p, z, x, y):
    p(f"v_pk_mul_f32 {v(z,2)}, {v(x,2)}, {v(y,2)} op_sel:[0,0] op_sel_hi:[0,1]")
    p(f"v_pk_fma_f32 {v(z,2)}, {v(x,2)}, {v(y,2)}, {v(z,2)} op_sel:[1,1,0] op_sel_hi:[1,0,1] neg_lo:[1,0,0]")


def round_bf16(p, dst, src):
    p(f"v_cvt_pk_bf16_f32 {v(dst)}, {v(src)}, {v(src)}")
    p(f"v_and_b32 {v(dst)}, 0xffff0000, {v(dst)}")


V_LANE, V_NONCE, V_L16 = 1, 2, 3
V_FLG = 8
V_W = 9
V_TRA = 13
V_TA, V_TB, V_TW = 14, 15, 16
GA = 17
V_F1, V_UXL = 26, 27
V_KA = 28
V_UA = 32
V_EU, V_EXP, V_EXW, V_EXR, V_FL2 = 36, 37, 38, 39, 40
V_GW, V_GX, V_GR, V_S3, V_DSK = 240, 241, 242, 243, 244
V_EU1 = 41
V_DT = 42
V_PM = 43
V_P1 = 252
PR = 44
V_PF = 254

LOG2E = 1.4426950408889634

if OPT.get("hold") == "entry":
    P("s_memrealtime s[100:101]")
P(f"s_cmp_ge_u32 s{S_W}, 256")
P("s_cbranch_scc1 L_end")
P(f"s_load_dwordx16 s[36:51], s[0:1], 0")
if "ksplit" not in OPT:
    P(f"s_load_dwordx8 s[52:59], s[0:1], 64")
    P(f"s_load_dwordx4 s[60:63], s[0:1], 96")
if "nocpf" not in OPT:
    P(f"s_getpc_b64 s[{S_B}:{S_B+1}]")
    P("L_pc:")
    P(f"s_bfe_u32 s{S_T2}, s{S_W}, 0x30003")
    P(f"s_mul_i32 s{S_T2}, s{S_T2}, ((L_codeend-L_pc)/1024)*128")
    P(f"v_cmp_gt_u32 vcc, (L_codeend-L_pc)/1024, v0")
    P(f"s_add_u32 s{S_B}, s{S_B}, s{S_T2}")
    P(f"s_addc_u32 s{S_B+1}, s{S_B+1}, 0")
    P(f"v_lshlrev_b32 v6, 7, v0")
    P(f"s_and_saveexec_b64 s[{S_A}:{S_A+1}], vcc")
    P("s_cbranch_execz L_nocpf")
    P.cond(True)
    P(f"v_mov_b32 v7, s{S_B+1}")
    P(f"v_add_co_u32 v6, vcc, s{S_B}, v6")
    P(f"v_addc_co_u32 v7, vcc, 0, v7, vcc")
    P(f"global_load_dword v251, v[6:7], off")
    P.cond(False)
    P("L_nocpf:")
    P("s_mov_b64 exec, -1")
if STAMPS:
    P("v_mov_b32 v255, 0")
P(f"v_and_b32 {v(V_LANE)}, 63, v0")
P(f"v_lshrrev_b32 v4, 6, v0")
P(f"v_lshlrev_b32 {v(V_L16)}, 4, {v(V_LANE)}")
P(f"v_readfirstlane_b32 s{S_V}, v4")
P(f"v_mov_b32 v5, 0x7ff00000")
P(f"v_cmp_gt_u32 vcc, 56, {v(V_LANE)}")
P(f"s_lshl_b32 s{S_T0}, s{S_W}, 2")
P(f"s_add_u32 s{S_T0}, s{S_T0}, s{S_V}")
P(f"v_cndmask_b32 v4, v5, {v(V_L16)}, vcc")
P(f"s_mul_i32 s{S_T0}, s{S_T0}, 1792")
P(f"s_and_b32 s{S_T1}, s{S_W}, 7")
P(f"s_mul_i32 s{S_T1}, s{S_T1}, 28")
P(f"s_lshr_b32 s{S_T2}, s{S_W}, 3")
P(f"s_add_u32 s{S_T1}, s{S_T1}, s{S_T2}")
P(f"s_min_u32 s{S_PR}, s{S_T1}, 223")
P(f"s_lshl_b32 s{S_T2}, s{S_PR}, 10")
P(f"v_lshl_add_u32 v6, v0, 2, s{S_T2}")
P(f"v_mov_b32 v7, 0")
P(f"s_lshl_b32 s{S_T1}, s{S_PR}, 2")
P(f"v_mov_b32 v56, s{S_T1}")
P(f"s_mov_b32 s{SRD_X+2}, 1835008")
P(f"s_mov_b32 s{SRD_X+3}, 0x00020000")
P(f"s_mov_b32 s{SRD_WS+2}, {WS_SIZE}")
P(f"s_mov_b32 s{SRD_WS+3}, 0x00020000")
P("s_waitcnt lgkmcnt(0)")
stamp("start")
P(f"s_mov_b64 s[{SRD_X}:{SRD_X+1}], s[36:37]")
XR = 48
P(f"buffer_load_dwordx4 {v(XR,4)}, v4, {srd(SRD_X)}, s{S_T0} offen")
P(f"buffer_load_dwordx4 {v(XR+4,4)}, v4, {srd(SRD_X)}, s{S_T0} offen offset:896")
if "ksplit" in OPT:
    P(f"s_load_dwordx8 s[52:59], s[0:1], 64")
    P(f"s_load_dwordx4 s[60:63], s[0:1], 96")
for r, src, sz in ((SRD_WG, 52, 1605632), (SRD_WU, 54, 1605632), (SRD_WD, 56, 1605632), (SRD_OUT, 58, 1835008)):
    P(f"s_mov_b32 s{r+2}, {sz}")
    P(f"s_mov_b32 s{r+3}, 0x00020000")
P(f"v_cmp_lt_u32 vcc, {int(OPT.get('nrep', 4))+1}, {v(V_LANE)}")
P(f"v_mul_u32_u24 v4, {FREP}, {v(V_LANE)}")
P(f"s_lshr_b32 s{S_T0}, s{S_W}, 3")
P(f"s_mul_i32 s{S_T1}, s{S_T0}, 37")
P(f"v_cndmask_b32 {v(V_FLG)}, v4, v5, vcc")
P(f"s_lshr_b32 s{S_T1}, s{S_T1}, 8")
P(f"s_mul_i32 s{S_T2}, s{S_T1}, 7")
P(f"s_sub_u32 s{S_DB}, s{S_T0}, s{S_T2}")
P(f"s_and_b32 s{S_FH}, s{S_W}, 1")
P(f"s_and_b32 s{S_T2}, s{S_W}, 6")
P(f"s_lshl_b32 s{S_T2}, s{S_T2}, 1")
P(f"s_add_u32 s{S_TB}, s{S_T2}, s{S_T1}")
P(f"s_mul_i32 s{S_FB}, s{S_FH}, 7")
P(f"s_add_u32 s{S_FB}, s{S_FB}, s{S_DB}")
P(f"s_lshl_b32 s{S_RING}, s{S_V}, 13")
P(f"s_add_u32 s{S_RING}, s{S_RING}, {L_RING}")
P(f"s_mul_i32 s{S_TAB}, s{S_V}, {TAB_W}")
for _ in range(int(OPT.get("xd", 0))):
    P("s_nop 7")
for i in range(4):
    P(f"global_load_dword {v(PR+i)}, v6, s[{38+2*i}:{39+2*i}]")
P(f"global_load_dword {v(V_DT)}, v56, s[46:47]")
P(f"global_load_dword {v(V_DSK)}, v56, s[48:49]")
if "ksplit" in OPT:
    P("s_waitcnt lgkmcnt(0)")
P(f"s_mov_b64 s[{SRD_WS}:{SRD_WS+1}], s[62:63]")
for r, src in ((SRD_WG, 52), (SRD_WU, 54), (SRD_WD, 56), (SRD_OUT, 58)):
    P(f"s_mov_b64 s[{r}:{r+1}], s[{src}:{src+1}]")
P(f"buffer_load_dword {v(V_NONCE)}, v7, {srd(SRD_WS)}, 0 offen sc1")
NOPF = "nopf" in OPT
if not NOPF:
    P(f"s_bitcmp1_b32 s{S_V}, 0")
    P(f"s_cselect_b64 s[{S_PFB}:{S_PFB+1}], s[54:55], s[52:53]")
    P(f"s_lshr_b32 s{S_T0}, s{S_V}, 1")
    P(f"s_lshl1_add_u32 s{S_T2}, s{S_W}, s{S_T0}")
    EPF = int(OPT.get("epf", 7))
    P(f"s_mul_i32 s{S_T0}, s{S_T2}, {EPF*128}")
    if EPF == 25:
        P(f"s_min_u32 s{S_T0}, s{S_T0}, {(12544-25)*128}")
    P(f"v_min_u32 v4, {EPF-1}, {v(V_LANE)}")
    P(f"v_lshl_add_u32 v248, v4, 7, s{S_T0}")
    PFW = sub()
    PFW(f"global_load_dword {v(V_PF)}, v248, s[{S_PFB}:{S_PFB+1}]")
    PFD = sub()
    PFD(f"global_load_dword v253, v245, s[56:57]")
    if "pfpos" not in OPT:
        P.add(PFW.ins)
    P(f"s_mul_i32 s{S_T0}, s{S_W}, 49")
    P(f"s_mul_i32 s{S_T2}, s{S_V}, 12")
    P(f"s_add_u32 s{S_T0}, s{S_T0}, s{S_T2}")
    P(f"v_min_u32 v4, 12, {v(V_LANE)}")
    P(f"v_add_lshl_u32 v245, v4, s{S_T0}, 7")
    if "nowd" in OPT:
        P(f"v_mov_b32 v245, 0")
    if "wdlate" not in OPT and "pfpos" not in OPT:
        P.add(PFD.ins)
    PF_AT = len(P.ins)
if "xprobe" in OPT:
    stamp("issued")
    P(f"v_mov_b32 v4, {v(XR+4)}")
    stamp("x here")
    P(f"v_mov_b32 v4, {v(V_DSK)}")
    stamp("par here")
P(f"v_cmp_gt_u32 vcc, 32, {v(V_LANE)}")
P(f"v_mul_u32_u24 v4, 37, {v(V_LANE)}")
P(f"v_lshrrev_b32 v4, 9, v4")
P(f"v_cndmask_b32 {v(V_S3)}, v5, {v(V_L16)}, vcc")
P(f"v_mul_u32_u24 v4, {TAB_W-14*272}, v4")
P(f"v_mul_u32_u24 v6, 272, {v(V_LANE)}")
P(f"s_lshl_b32 s{S_T0}, s{S_V}, 2")
P(f"v_add3_u32 {v(V_GW)}, v4, v6, s{S_T0}")
P(f"v_add_u32 {v(V_GX)}, s{S_T0}, {v(V_GW)}")
P(f"s_lshl_b32 s{S_UXM}, s{S_V}, 12")
P(f"s_add_u32 s{S_UXM}, s{S_UXM}, {L_UX+2048}")
P(f"v_and_b32 v4, 48, {v(V_LANE)}")
P(f"v_add3_u32 {v(V_GR)}, v4, {v(V_L16)}, s{S_TAB}")
P(f"v_and_b32 v4, 31, {v(V_LANE)}")
P(f"v_lshrrev_b32 v6, 5, {v(V_LANE)}")
P(f"v_lshl_add_u32 v6, v6, 4, s{S_TAB}")
P(f"v_and_b32 v7, 28, {v(V_LANE)}")
P(f"v_lshl_add_u32 v7, v4, 5, v7")
P(f"v_add_u32 {v(V_TW)}, v6, v7")
P(f"v_mul_u32_u24 v7, {TAB_ROW}, v4")
P(f"v_add_u32 {v(V_TB)}, v6, v7")
P(f"v_min_u32 v4, 20, v4")
P(f"v_mul_u32_u24 v7, {TAB_ROW}, v4")
P(f"v_add_u32 {v(V_TA)}, v6, v7")
P(f"s_lshl2_add_u32 s{S_CI}, s{S_W}, s{S_V}")
P(f"s_lshl_b32 s{S_CI}, s{S_CI}, 8")
P(f"s_add_u32 s{S_CI}, s{S_CI}, {WS_C}")
P(f"v_lshlrev_b32 {v(V_P1)}, 25, {v(V_LANE)}")
P(f"s_mul_i32 s{S_UXO}, s{S_W}, 14336")
P(f"s_mul_i32 s{S_T0}, s{S_V}, 3584")
P(f"s_add_u32 s{S_UXO}, s{S_UXO}, s{S_T0}")
P(f"s_add_u32 s{S_UXO}, s{S_UXO}, {WS_UX}")
P(f"s_lshl_b32 s{S_T0}, s{S_V}, 8")
P(f"s_add_u32 s{S_T0}, s{S_T0}, s{S_W}")
P(f"s_mul_i32 s{S_T0}, s{S_T0}, {FS}")
P(f"s_add_u32 s{S_F1}, s{S_T0}, {WS_F1}")
P(f"v_lshrrev_b32 v4, 2, {v(V_LANE)}")
P(f"v_mul_u32_u24 v4, 3584, v4")
P(f"v_and_b32 v6, 3, {v(V_LANE)}")
P(f"v_lshl_add_u32 v4, v6, 4, v4")
P(f"s_lshl_b32 s{S_T0}, s{S_FB}, 8")
P(f"s_lshl_b32 s{S_T1}, s{S_V}, 6")
P(f"s_add_u32 s{S_T0}, s{S_T0}, s{S_T1}")
P(f"v_add_u32 {v(V_W)}, s{S_T0}, v4")
if "fakerot" in OPT:
    P(f"s_and_b32 s{S_T2}, s{S_TB}, {OPT['fakerot']}")
    P(f"s_mul_i32 s{S_T2}, s{S_T2}, {int(OPT.get('rs', 4))*57344//4}")
    P(f"v_add_u32 {v(V_W)}, s{S_T2}, {v(V_W)}")
if "fake128" in OPT:
    P(f"v_lshrrev_b32 v4, 3, {v(V_LANE)}")
    P(f"v_mul_u32_u24 v4, 3584, v4")
    P(f"v_and_b32 v7, 0x70, {v(V_L16)}")
    P(f"s_and_b32 s{S_T0}, s{S_T0}, 0xffffff80")
    P(f"s_and_b32 s{S_T2}, s{S_V}, 1")
    P(f"s_mul_i32 s{S_T2}, s{S_T2}, {8*3584}")
    P(f"s_add_u32 s{S_T0}, s{S_T0}, s{S_T2}")
    P(f"v_add3_u32 {v(V_W)}, v4, v7, s{S_T0}")
for k in range(1, 4):
    P(f"v_add_u32 {v(V_W+k)}, {k*(57344-1024)}, {v(V_W)}")
SETUP_A = len(P.ins)
P(f"v_and_b32 v4, 32, {v(V_LANE)}")
P(f"v_lshlrev_b32 v4, 4, v4")
P(f"v_and_b32 v7, 12, {v(V_LANE)}")
P(f"v_lshl_add_u32 v4, v7, 4, v4")
P(f"v_and_b32 v7, 16, {v(V_LANE)}")
P(f"v_lshl_add_u32 v4, v7, 1, v4")
P(f"v_lshl_add_u32 v4, v6, 3, v4")
P(f"v_add_u32 {v(V_TRA)}, s{S_RING}, v4")
P(f"s_mov_b32 s{S_K0}, {L_KC+4096-L_UX}")
P(f"s_movk_i32 s{S_T2}, 128")
P(f"s_bfe_u32 s{S_T0}, s{S_W}, 0x20001")
P(f"s_lshl_b32 s{S_T0}, s{S_T0}, 10")
P(f"s_lshr_b32 s{S_F2}, s{S_T0}, 2")
NREP = int(OPT.get("nrep", 4))
P(f"s_bfe_u32 s{S_REP}, s{S_W}, {hex((NREP.bit_length()-1)*65536+3)}")
P(f"s_sub_u32 s{S_F1L}, s{S_FH}, s{S_REP}")
P(f"s_add_u32 s{S_F1L}, s{S_F1L}, {NREP}")
P(f"s_mul_i32 s{S_F1L}, s{S_F1L}, {FREP}")
P(f"s_mul_i32 s{S_REP}, s{S_REP}, {FREP}")
P(f"s_add_u32 s{S_REP}, s{S_REP}, {WS_F1}")
P(f"s_add_u32 s{S_T0}, s{S_T0}, s{S_REP}")
P(f"v_lshl_add_u32 {v(V_F1)}, v0, 2, s{S_T0}")
P(f"v_lshrrev_b32 v4, 2, {v(V_LANE)}")
P(f"v_add_u32 v4, s{S_T1}, v4")
P(f"v_mul_u32_u24 v7, 14336, v4")
P(f"v_lshrrev_b32 v4, 4, {v(V_LANE)}")
P(f"v_xor_b32 v6, v6, v4")
P(f"v_lshl_add_u32 v7, v6, 4, v7")
P(f"s_lshl_b32 s{S_T0}, s{S_PR}, 6")
P(f"s_add_u32 s{S_T0}, s{S_T0}, {WS_UX}")
P(f"v_add_u32 {v(V_UXL)}, s{S_T0}, v7")
P(f"v_bfe_u32 v6, {v(V_LANE)}, 1, 2")
P(f"v_mul_u32_u24 v6, {CS}, v6")
P(f"v_and_b32 v7, 16, {v(V_L16)}")
P(f"v_add3_u32 v6, v6, v7, s{S_K0}")
P(f"v_lshlrev_b32 v7, 4, v0")
P(f"v_cmp_gt_u32 vcc, s{S_T2}, v0")
P(f"v_mov_b32 v56, 0")
P(f"v_mov_b32 v57, 0")
P(f"v_cndmask_b32 v6, v6, v7, vcc")
P(f"v_mov_b32 v58, 0")
P(f"v_mov_b32 v59, 0")
P(f"v_add_u32 v6, {L_UX}, v6")
P(f"ds_write_b128 v6, v[56:59]")
P(f"v_lshlrev_b32 v4, 3, v0")
P(f"v_sub_u32 v4, 2047, v4")
P(f"v_cvt_f32_i32 v4, v4")
P(f"v_mov_b32 v60, 1028")
P(f"v_cmp_eq_u32 vcc, 0, v0")
for e in range(0, 10, 2):
    P(f"v_add_f32 v6, {f32(-float(e))}, v4")
    if e < 8:
        P(f"v_add_f32 v7, {f32(-float(e+1))}, v4")
    P(f"v_cvt_pk_bf16_f32 v6, v6, v7")
    for h in range(2):
        if e + h > 8:
            continue
        d = GA + e + h
        if h == 0:
            P(f"v_lshlrev_b32 v7, 16, v6")
        else:
            P(f"v_and_b32 v7, 0xffff0000, v6")
        P(f"v_cvt_u32_f32 v7, v7")
        if e + h < 4:
            P(f"v_cndmask_b32 v7, v7, v60, vcc")
        P(f"v_lshrrev_b32 {v(d)}, 5, v7")
        P(f"v_add_lshl_u32 {v(d)}, {v(d)}, v7, 2")
P(f"v_mov_b32 v4, 255")
P(f"v_cmp_eq_u32 s[{S_M255}:{S_M255+1}], v4, v0")
P(f"v_and_b32 v4, 15, {v(V_LANE)}")
P(f"v_lshrrev_b32 v5, 4, {v(V_LANE)}")
P(f"v_lshl_add_u32 v6, v5, 3, v4")
P(f"v_sub_u32 v6, 39, v6")
P(f"v_and_b32 v7, 1, v6")
P(f"v_mul_u32_u24 v7, {CS-2}, v7")
P(f"v_lshl_add_u32 v6, v6, 1, v7")
P(f"s_lshr_b32 s{S_T0}, s{S_V}, 1")
P(f"s_andn2_b32 s{S_T3}, 1, s{S_V}")
P(f"s_mul_i32 s{S_T2}, s{S_T0}, {2*CS}")
P(f"s_lshl_b32 s{S_T1}, s{S_T3}, 8")
P(f"s_add_u32 s{S_T2}, s{S_T2}, s{S_T1}")
P(f"s_add_u32 s{S_T2}, s{S_T2}, {L_KC}")
P(f"v_add_u32 {v(V_KA+3)}, s{S_T2}, v6")
for k in range(3):
    P(f"v_add_u32 {v(V_KA+k)}, {64*(48-16*k)}, {v(V_KA+3)}")
P(f"v_lshlrev_b32 v6, 1, v4")
P(f"v_sub_u32 v6, v6, v5")
P(f"s_lshl4_add_u32 s{S_T1}, s{S_T3}, 17")
P(f"v_add_u32 v6, s{S_T1}, v6")
P(f"s_mov_b32 s{S_T2}, {L_UX}")
for rr in range(4):
    P(f"v_bfe_u32 v7, v6, 2, 2")
    P(f"v_xor_b32 v7, s{S_T0}, v7")
    P(f"v_lshl_add_u32 v7, v6, 2, v7")
    P(f"v_lshl_add_u32 {v(V_UA+rr)}, v7, 4, s{S_T2}")
    if rr < 3:
        P(f"v_subrev_u32 v6, 4, v6")
EB = sub()
if "nomv" not in OPT:
    EB(f"v_and_b32 v4, 15, {v(V_LANE)}")
    EB(f"v_lshrrev_b32 v5, 4, {v(V_LANE)}")
EB(f"v_lshrrev_b32 v6, 1, v5")
EB(f"v_lshl_add_u32 v6, v4, 1, v6")
EB(f"s_lshl_b32 s{S_T2}, s{S_V}, 11")
EB(f"s_add_u32 s{S_T2}, s{S_T2}, {L_UX+2048}")
EB(f"v_lshl_add_u32 v6, v6, 6, s{S_T2}")
EB(f"v_bfe_u32 v4, v4, 1, 2")
EB(f"v_and_b32 v5, 1, v5")
EB(f"v_lshl_add_u32 v247, v4, 4, v6")
EB(f"v_lshl_add_u32 {v(V_EU)}, v5, 3, v247")
EB(f"v_xor_b32 {v(V_EU1)}, 16, {v(V_EU)}")
EB(f"v_or_b32 v5, 2, v5")
EB(f"v_xor_b32 v4, v4, v5")
EB(f"v_lshl_add_u32 {v(V_EXP)}, v4, 4, v6")
if "nomv" in OPT:
    P.add(EB.ins)
P(f"s_mul_i32 s{S_ACTW}, s{S_V}, 7168")
P(f"v_add_u32 {v(V_EXR)}, s{S_ACTW}, {v(V_L16)}")
P(f"v_lshlrev_b32 {v(V_EXW)}, 4, v0")
P(f"s_mul_i32 s{S_PST}, s{S_PR}, {PROW}")
P(f"s_add_u32 s{S_PST}, s{S_PST}, {WS_P}")
CB = sub()
lanes_reg(CB, V_FL2, 4, 10)
lanes_reg(CB, V_PM, 2, 12)
CB(f"s_lshl1_add_u32 s{S_T0}, s{S_V}, s{S_FH}")
CB(f"s_lshl_b32 s{S_T0}, s{S_T0}, 12")
CB(f"s_add_u32 s{S_F2}, s{S_F2}, s{S_T0}")
CB(f"s_add_u32 s{S_F2}, s{S_F2}, {WS_C}")
CB(f"s_lshr_b32 s{S_T0}, s{S_TB}, 2")
CB(f"s_bfe_u32 s{S_REP}, s{S_W}, 0x20003")
CB(f"s_lshl3_add_u32 s{S_T0}, s{S_T0}, s{S_REP}")
CB(f"s_lshl2_add_u32 s{S_T0}, s{S_T0}, s{S_V}")
CB(f"s_lshl_b32 s{S_T0}, s{S_T0}, 8")
CB(f"s_add_u32 s{S_PA}, s{S_T0}, {WS_C}")
CB(f"s_lshl2_add_u32 s{S_T2}, s{S_DB}, s{S_V}")
CB(f"s_lshl2_add_u32 s{S_T3}, s{S_T2}, s{S_REP}")
CB(f"s_lshl_b32 s{S_T3}, s{S_T3}, 8")
CB(f"s_add_u32 s{S_P4}, s{S_T3}, {WS_C + 896*256}")
CB(f"s_mul_i32 s{S_T2}, s{S_T2}, {14*4096}")
CB(f"s_add_u32 s{S_WFB}, s{S_T2}, {WS_WF}")
CB(f"s_mul_i32 s{S_T1}, s{S_V}, {56*PROW}")
CB(f"s_lshl_b32 s{S_T0}, s{S_TB}, 8")
CB(f"s_add_u32 s{S_T0}, s{S_T0}, s{S_T1}")
CB(f"s_add_u32 s{S_AB}, s{S_T0}, {WS_P}")

if "nomv" in OPT:
    P.add(CB.ins)

if "pfpos" in OPT:
    a_, b_ = [int(x) for x in OPT["pfpos"].split(",")]
    P.ins = P.ins[:PF_AT] + sprinkle(P.ins[PF_AT:], [(a_, PFW.ins), (b_, PFD.ins)])
NS = int(OPT.get("ns", 0))
if NS:
    us = []
    for n in range(NS):
        i_, k_ = n // 4, n % 4
        q = sub()
        if k_ == 0:
            q(f"s_add_u32 m0, s{S_RING}, {(4*i_ % 8) * 1024 + (4*i_ // 8) * 32768}")
            if n % 8 == 0:
                q(f"s_mov_b32 s{S_WOFF}, {(i_//2)*4*57344}")
        o = f" offset:{1024*k_}" if k_ else ""
        q(f"buffer_load_dwordx4 {v(V_W+k_)}, {srd(SRD_WU if i_ % 2 else SRD_WG)}, s{S_WOFF} offen{o} lds", tok=f"w1_{i_}")
        us.append(q.ins)
    tail_ = P.ins[SETUP_A:]
    st_ = int(OPT.get("ns0", 0))
    step = (len(tail_) - st_) / NS
    P.ins = P.ins[:SETUP_A] + sprinkle(tail_, [(int(st_ + step * n), u) for n, u in enumerate(us)])
XF = 56
DF = 72
SA = 88
if "fine" in OPT: stamp("setup done")
P(f"s_mov_b32 s{S_K0}, {f32(1.0/448)}")
P(f"v_mov_b32 v4, {f32(1e-5)}")
P("s_mov_b32 exec_hi, 0x00ffffff")
for r in range(2):
    for i in range(4):
        P(f"v_lshlrev_b32 {v(XF+8*r+2*i)}, 16, {v(XR+4*r+i)}")
        P(f"v_and_b32 {v(XF+8*r+2*i+1)}, 0xffff0000, {v(XR+4*r+i)}")
    P(f"v_readfirstlane_b32 s{(S_A, S_B)[r]}, {v(XF+8*r)}")
stamp("x arrived")
if "wdlate" in OPT and not NOPF:
    P(f"global_load_dword v253, v245, s[56:57]")
for i in range(4):
    P(f"ds_write2_b32 {v(V_GX)}, {v(XR+i)}, {v(XR+4+i)} offset0:{16*i+8} offset1:{16*i+9}")
for r, sm in ((0, S_A), (1, S_B)):
    for i in range(4):
        P(f"v_pk_add_f32 {v(XF+8*r+2*i,2)}, {v(XF+8*r+2*i,2)}, s[{sm}:{sm+1}] op_sel_hi:[1,0] neg_lo:[0,1] neg_hi:[0,1]")
for r in range(2):
    b = XF + 8 * r
    t = DF + 8 * r
    P(f"v_pk_add_f32 {v(t,2)}, {v(b,2)}, {v(b+2,2)}")
    P(f"v_pk_mul_f32 {v(t+2,2)}, {v(b,2)}, {v(b,2)}")
    P(f"v_pk_add_f32 {v(t,2)}, {v(t,2)}, {v(b+4,2)}")
    for i in range(1, 4):
        P(f"v_pk_fma_f32 {v(t+2,2)}, {v(b+2*i,2)}, {v(b+2*i,2)}, {v(t+2,2)}")
    P(f"v_pk_add_f32 {v(t,2)}, {v(t,2)}, {v(b+6,2)}")
for r in range(2):
    t = DF + 8 * r
    P(f"v_add_f32 {v(SA+r)}, {v(t)}, {v(t+1)}")
    P(f"v_add_f32 {v(SA+2+r)}, {v(t+2)}, {v(t+3)}")


def wave_sum(p, regs):
    for mod in ("row_shr:1", "row_shr:2", "row_shr:4", "row_shr:8"):
        for r in regs:
            p(f"v_add_f32_dpp {v(r)}, {v(r)}, {v(r)} {mod} row_mask:0xf bank_mask:0xf bound_ctrl:0")
    for r in regs:
        p(f"v_add_f32_dpp {v(r)}, {v(r)}, {v(r)} row_bcast:15 row_mask:0xa bank_mask:0xf")
    for r in regs:
        p(f"v_add_f32_dpp {v(r)}, {v(r)}, {v(r)} row_bcast:31 row_mask:0xc bank_mask:0xf")


wave_sum(P, [SA, SA + 2, SA + 1, SA + 3])
P(f"v_pk_mul_f32 {v(SA,2)}, {v(SA,2)}, s[{S_K0}:{S_K0+1}] op_sel_hi:[1,0]")
P(f"v_pk_fma_f32 {v(SA+2,2)}, {v(SA+2,2)}, s[{S_K0}:{S_K0+1}], v[4:5] op_sel_hi:[1,0,0]")
P(f"v_pk_fma_f32 {v(SA+2,2)}, {v(SA,2)}, {v(SA,2)}, {v(SA+2,2)} neg_lo:[1,0,0] neg_hi:[1,0,0]")
for r in range(2):
    P(f"v_max_f32 {v(SA+2+r)}, {v(SA+2+r)}, v4")
for r in range(2):
    P(f"v_rsq_f32 {v(SA+2+r)}, {v(SA+2+r)}")
P(f"v_pk_mul_f32 {v(SA,2)}, {v(SA,2)}, {v(SA+2,2)} neg_lo:[1,0] neg_hi:[1,0]")
for r, sm in ((0, S_A), (1, S_B)):
    P(f"v_readlane_b32 s{sm}, {v(SA+2+r)}, 55")
for r, sm in ((0, S_A), (1, S_B)):
    P(f"v_readlane_b32 s{sm+1}, {v(SA+r)}, 55")
for r, sm in ((0, S_A), (1, S_B)):
    for i in range(4):
        P(f"v_pk_fma_f32 {v(XF+8*r+2*i,2)}, {v(XF+8*r+2*i,2)}, s[{sm}:{sm+1}], s[{sm}:{sm+1}] op_sel:[0,0,1] op_sel_hi:[1,0,1]")
for j in range(8):
    P(f"v_cvt_pk_bf16_f32 {v(DF+j)}, {v(XF+j)}, {v(XF+8+j)}")
for i in range(4):
    P(f"ds_write2_b32 {v(V_GW)}, {v(DF+2*i)}, {v(DF+2*i+1)} offset0:{16*i} offset1:{16*i+4}")
P("s_mov_b64 exec, -1")
def kgen_head(rd):
    q = sub()
    A0 = 48 + 0
    CC = 50
    unp = (lambda d, s: q(f"v_lshlrev_b32 {v(d)}, 16, {v(s)}")) if rd == 0 else (lambda d, s: q(f"v_and_b32 {v(d)}, 0xffff0000, {v(s)}"))
    for i in range(4):
        unp(48 + i, PR + i)
    q(f"v_mul_f32 v48, {f32(LOG2E)}, v48")
    q(f"v_exp_f32 v48, v48")
    q(f"v_mul_f32 v49, v49, v249")
    q(f"v_cvt_pk_bf16_f32 v48, v48, v48")
    q(f"v_mul_f32 v50, v50, v250")
    q(f"v_and_b32 v48, 0xffff0000, v48")
    q(f"v_mul_f32 v51, v51, v250")
    q(f"v_mul_f32 v48, v48, {v(V_DT)}")
    for (z, pos) in ((52, 1), (56, 256)) if "b3" not in OPT else ((52, 1), (54, 16), (56, 256)):
        if pos == 1:
            q(f"v_fract_f32 v5, v49")
            q(f"v_exp_f32 v4, v48")
        else:
            q(f"v_mul_f32 v5, {f32(float(pos))}, v49")
            q(f"v_mul_f32 v4, {f32(float(pos))}, v48")
            q(f"v_fract_f32 v5, v5")
            q(f"v_exp_f32 v4, v4")
        q(f"v_cos_f32 {v(z)}, v5")
        q(f"v_sin_f32 {v(z+1)}, v5")
        q(f"v_mul_f32 {v(z)}, {v(z)}, v4")
        q(f"v_mul_f32 {v(z+1)}, {v(z+1)}, v4")
    return q.ins


HD = sub()
HD(f"s_lshl_b32 s{S_T0}, s{S_V}, 3")
HD(f"s_and_b32 s{S_T0}, s{S_T0}, 16")
HD(f"s_mov_b32 m0, s{S_TAB}")
HD(f"v_lshrrev_b32 v4, s{S_T0}, {v(V_DT)}")
HD(f"v_lshlrev_b32 v4, 16, v4")
HD(f"v_mul_f32 v4, {f32(LOG2E)}, v4")
HD(f"v_exp_f32 v4, v4")
HD(f"v_readfirstlane_b32 s{S_DSK}, {v(V_DSK)}")
round_bf16(HD, V_DT, 4)
HD(f"v_mul_f32 v249, 0.15915494, {v(V_DT)}")
HD(f"v_add_f32 v250, {v(V_DT)}, {v(V_DT)}")
HD(f"v_mul_f32 {v(V_DT)}, {f32(-LOG2E)}, {v(V_DT)}")
HD.add(kgen_head(0))
FILL = (CB.ins if "nomv" not in OPT else []) + HD.ins
HB, HP_ = int(OPT.get("hb", 29)), int(OPT.get("hp", 0))
if "fine" in OPT: stamp("ln1 math")
P.add(FILL[:HB])
if OPT.get("w2") == "a":
    walk("early")
P("s_waitcnt lgkmcnt(0)")
P("s_barrier")
if "fine" in OPT: stamp("ln1 barrier")
UB = 112
for j in range(4):
    P(f"ds_read_b128 {v(UB+4*j,4)}, {v(V_GR)} offset:{1088*j}")
P.add(FILL[HB:HB + HP_])
if OPT.get("w2") == "b":
    walk("early")
assert HB + HP_ >= len(FILL) - len(HD.ins)
P("s_waitcnt lgkmcnt(0)")
for j in range(4):
    P(f"buffer_store_dwordx4 {v(UB+4*j,4)}, {v(V_L16 if j < 3 else V_S3)}, {srd(SRD_WS)}, s{S_UXO} offen offset:{1024*j} sc1", tok="ux")
P(f"s_cmp_lt_u32 s{S_W}, 224")
P("s_cbranch_scc1 L_main")


def nonce_init():
    q = sub()
    q(f"v_readfirstlane_b32 s{S_NONCE}, {v(V_NONCE)}")
    q(f"s_mul_i32 s{S_NONCE}, s{S_NONCE}, 1664525")
    q(f"s_add_u32 s{S_NONCE}, s{S_NONCE}, 1013904223")
    q(f"v_mov_b32 {v(V_NONCE)}, s{S_NONCE}")
    q(f"buffer_store_dword {v(V_NONCE)}, {v(V_P1)}, {srd(SRD_WS)}, s{S_CI} offen sc1", tok="ux")
    q(f"s_add_u32 s{S_E28}, s{S_NONCE}, 28")
    q(f"s_add_u32 s{S_E14}, s{S_NONCE}, 14")
    return q.ins


P.raw(f"s_waitcnt vmcnt({(4 if NOPF else 6) + NS})")
for x in nonce_init():
    P.raw(x.text)
P.raw("s_waitcnt vmcnt(0)")
P.raw(f"buffer_atomic_swap {v(V_NONCE)}, {v(V_FLG)}, {srd(SRD_WS)}, s{S_F1} offen")
P.raw("s_branch L_spare")
P("L_main:")
stamp("ln1 done")


def wfrag(m, ks):
    return 8 * ks + 4 * m


def slotoff(slot):
    return (slot % 8) * 1024 + (slot // 8) * 32768


def w_dma(kq, m, slot, tok):
    q = sub()
    q(f"s_add_u32 m0, s{S_RING}, {slotoff(slot)}")
    if m == 0:
        q(f"s_mov_b32 s{S_WOFF}, {kq*4*57344}")
    for k in range(4):
        o = f" offset:{1024*k}" if k else ""
        q(f"buffer_load_dwordx4 {v(V_W+k)}, {srd(SRD_WU if m else SRD_WG)}, s{S_WOFF} offen{o} lds", tok=tok)
    return q.ins


def w_tr(kq, m, slot, tok=None):
    q = sub()
    for k in range(4):
        for h in range(2):
            q(f"ds_read_b64_tr_b16 {acc(wfrag(m,4*kq+k)+2*h,2)}, {v(V_TRA)} offset:{slotoff(slot+k)+256*h}", tok=tok)
    return q.ins


def batch_dma(b, tok):
    return [w_dma(2 * b + i // 2, i % 2, 4 * i, f"{tok}_{i}") for i in range(4)]


def batch_tr(b):
    o = []
    for i in range(4):
        o += w_tr(2 * b + i // 2, i % 2, 4 * i, tok=f"t{b}_{i}")
    return o


def singles(groups):
    out, cur = [], []
    for grp in groups:
        for i in grp:
            cur.append(i)
            if i.cls == "vmem":
                out.append(cur)
                cur = []
    if cur:
        out[-1] += cur
    return out


def pin_vm(g, start, groups, stride):
    k = start
    for u in singles(groups):
        g.at(int(k), u)
        k += stride
    return int(k)


def w_dma1(b, n, tok):
    i, k = n // 4, n % 4
    q = sub()
    q(f"s_add_u32 m0, s{S_RING}, {slotoff(4*i)}")
    if n % 8 == 0:
        q(f"s_mov_b32 s{S_WOFF}, {(2*b+i//2)*4*57344}")
    o = f" offset:{1024*k}" if k else ""
    if OPT.get("fk") == "same":
        q(f"buffer_load_dwordx4 {v(V_L16)}, {srd(SRD_WG)}, 0 offen{o} lds", tok=f"{tok}_{i}")
    elif OPT.get("fk") == "reg":
        q(f"buffer_load_dwordx4 a[{128+4*n}:{131+4*n}], {v(V_W+k)}, {srd(SRD_WU if i % 2 else SRD_WG)}, s{S_WOFF} offen{o}", tok=f"{tok}_{i}")
    elif OPT.get("fk") != "none":
        q(f"buffer_load_dwordx4 {v(V_W+k)}, {srd(SRD_WU if i % 2 else SRD_WG)}, s{S_WOFF} offen{o} lds", tok=f"{tok}_{i}")
    q(f"s_mov_b32 m0, s{S_TAB}")
    return q.ins


KD = 176
FR = 192
FR = 112


WRI = "ds_write_b32 v246," if "plainw" in OPT else "ds_write_addtid_b32"


def kgen_body(rd):
    names = {"G0": 50, "E1": 52, "E16": 54, "E256": 56}
    nxt = [58]
    chunks = []
    cur = sub()
    wr = sub()
    pk = [0]
    PK = 192

    def new(n):
        names[n] = nxt[0]
        nxt[0] += 2
        assert nxt[0] <= 104
        return names[n]

    def out(kind, row, z):
        t = PK + pk[0] % 16
        pk[0] += 1
        if kind == "B":
            cur(f"v_cvt_pk_bf16_f32 {v(t)}, {v(z)}, {v(z+1)}")
            wr(f"{WRI} {v(t)} offset:{row*TAB_ROW}")
        else:
            cur(f"v_cvt_pk_bf16_f32 {v(t)}, {v(z)}, -{v(z+1)}")
            wr(f"{WRI} {v(t)} offset:{(32+row)*TAB_ROW}")
        if len(wr.ins) >= GROUP:
            flush()

    def flush():
        nonlocal cur, wr
        chunks.append(cur.ins + wr.ins)
        cur = sub()
        wr = sub()

    sc = [0]

    def mul(n, a, b, kind=None, row=None):
        if n is None:
            z = 104 + 2 * (sc[0] % 4)
            sc[0] += 1
        else:
            z = new(n)
        cmul(cur, z, names[a], names[b])
        if kind:
            out(kind, row, z)

    GROUP = int(OPT.get("kgroup", 6))
    if rd == 0:
        t = PK + pk[0]
        pk[0] += 1
        cur(f"v_mov_b32 {v(t)}, 0x3f80")
        wr(f"{WRI} {v(t)}")
    out("A", 0, names["G0"])
    mul("E2", "E1", "E1")
    mul("G1", "G0", "E256", "A", 8)
    mul("E512", "E256", "E256")
    mul("a1", "G0", "E1", "A", 1)
    mul("E4", "E2", "E2")
    mul("G2", "G0", "E512", "A", 10)
    mul("G3", "G1", "E512", "A", 11)
    mul("E1024", "E512", "E512")
    mul("E8", "E4", "E4", "B", 1)
    mul("a2", "G0", "E2", "A", 2)
    if "b3" in OPT:
        out("B", 2, names["E16"])
    else:
        cmul(cur, names["E16"], names["E8"], names["E8"])
        out("B", 2, names["E16"])
    mul("a3", "a1", "E2", "A", 3)
    mul("E32", "E16", "E16", "B", 4)
    mul("b2", "G1", "E2", "A", 9)
    mul("E64", "E32", "E32", "B", 8)
    mul("E48", "E32", "E16", "B", 6)
    mul("G4", "G0", "E1024", "A", 16)
    mul("E128", "E64", "E64", "B", 16)
    mul("E24", "E16", "E8", "B", 3)
    mul("E40", "E32", "E8", "B", 5)
    mul("E56", "E48", "E8", "B", 7)
    mul("E192", "E128", "E64", "B", 24)
    for row, a in ((4, "G0"), (5, "a1"), (6, "a2"), (7, "a3"), (12, "G1"), (13, "b2"), (14, "G2"), (15, "G3")):
        mul(None, a, "E4", "A", row)
    for row, a in ((17, "G1"), (18, "G2"), (19, "G3"), (20, "G4")):
        mul(None, a, "E1024", "A", row)
    for b2, nb in ((1, "E64"), (2, "E128"), (3, "E192")):
        for b1 in range(1, 8):
            mul(None, f"E{8*b1}", nb, "B", 8 * b2 + b1)
    if wr.ins or cur.ins:
        flush()
    return chunks


def kgen_reads():
    q = sub()
    for s in range(8):
        q(f"ds_read_b128 {v(FR+8*s,4)}, {v(V_TA)} offset:{32*TAB_ROW+32*s}")
        q(f"ds_read_b128 {v(FR+8*s+4,4)}, {v(V_TB)} offset:{32*s}")
    return q.ins


def kgen_mfma(rd):
    q = sub()
    for s in range(8):
        c = "0" if (rd == 0 and s == 0) else v(KD, 16)
        q(f"v_mfma_f32_32x32x16_bf16 {v(KD,16)}, {v(FR+8*s,4)}, {v(FR+8*s+4,4)}, {c}")
    return q.ins


P.add(FILL[HB + HP_:])
P.add(nonce_init())
ch = kgen_body(0)
fl = sub()
fl.wait("ux")
setflag(fl, S_F1)
nd = NS
FLAGAT = int(OPT.get("flagat", 5))
D0, DM, D1 = OPT.get("dsch", "011111000,2,111111111").split(",")


def dmas(n):
    global nd
    o = []
    for k in range(n):
        u = w_dma1(0, nd, "w1")
        if k and nd % 4:
            o = o[:-1] + u[1:]
        elif k:
            o = o[:-1] + u
        else:
            o = u
        nd += 1
    return o


for i, c in enumerate(ch):
    P.add(c)
    P.add(dmas(int(D0[i])))
    if i == FLAGAT:
        if "fine" in OPT: stamp("pre flag1")
        P.add(fl.ins)
        if "fine" in OPT: stamp("post flag1")
P.add(kgen_reads())
g = Gaps(kgen_mfma(0), 7)
for k in range(int(DM)):
    g.at(2 * k, dmas(1))
h1_ = kgen_head(1)
NH = int(OPT.get("nh", 12))
P.add(h1_[:NH])
g.fill(h1_[NH:], cap=5)
P.add(g.out())
stamp("kgen r0")
ch = kgen_body(1)
POLLAT = int(OPT.get("pollat", 5))
for i, c in enumerate(ch):
    P.add(c)
    P.add(dmas(int(D1[i])))
    if i == POLLAT:
        if "f1at" not in OPT:
            P(f"buffer_load_dword v6, {v(V_F1)}, {srd(SRD_WS)}, s{S_F1L} offen sc1")
        else:
            P.add(poll_issue("F1", 6))
assert nd == 16
P.add(kgen_reads())
if "fine" in OPT: stamp("pre poll1")
P.add(poll_check("F1", 6))
if "fine" in OPT: stamp("post poll1")
g = Gaps(kgen_mfma(1), 6)
P(f"s_mov_b32 m0, s{S_UXM}")
for j in range(4):
    q = sub()
    q(f"s_mov_b32 s{S_T0}, {j*(16*14336-1024)}")
    o = f" offset:{1024*j}" if j else ""
    q(f"buffer_load_dwordx4 {v(V_UXL)}, {srd(SRD_WS)}, s{S_T0} offen{o} sc1 lds", tok="uxl")
    if j == 0:
        P.add(q.ins)
    else:
        g.at(2 * j - 2, q.ins)
tr1 = batch_tr(0)
P.wait("w1_2")
for k in range(8):
    g.at(k, tr1[3 * k:3 * k + 3])
P.add(g.out())
stamp("kgen r1")
b2 = batch_dma(1, "w2")
b2[0] = waitq("t0_0") + b2[0]
b2[3] = waitq("t0_3") + b2[3]
b2 = singles(b2)
P.add(b2.pop(0))
P(f"s_lshl_b32 s{S_C}, s{S_DSK}, 16")
P(f"s_and_b32 s{S_D}, s{S_DSK}, 0xffff0000")
P(f"v_add_u32 v7, {2*CS}, {v(V_EXW)}")
P(f"v_mov_b32 {v(V_NONCE)}, 1")
toff = {0: (0, 0), 1: (0, 1), 2: (0, 2), 3: (0, 3), 4: (1, 0), 5: (1, 2), 6: (2, 0), 7: (3, 0), 8: (4, 0), 9: (5, 0), 10: (6, 0), 11: (7, 0)}
P(f"ds_write2_b32 {v(V_TW)}, {v(KD)}, {v(KD+1)} offset0:0 offset1:1")
P(f"ds_write2_b32 {v(V_TW)}, {v(KD+2)}, {v(KD+3)} offset0:2 offset1:3")
for j in range(4, 12):
    qq, r = toff[j]
    P(f"ds_write_b32 {v(V_TW)}, {v(KD+j)} offset:{4*(r + 264*qq)}")
P.add(b2.pop(0))
P("s_waitcnt lgkmcnt(0)")
P("s_barrier")
if "fine" in OPT: stamp("T barrier")
EG = 208
for c2 in range(2):
    for e in range(9):
        P(f"ds_read2st64_b32 {v(EG+18*c2+2*e,2)}, {v(GA+e)} offset0:{114*c2} offset1:{114*c2+57}", tok=f"g{c2}")
P.add(b2.pop(0))
if "nomv" not in OPT:
    P.add(EB.ins)
P.add(b2.pop(0))
KO = 192
VB = 48


def bfrag(rr, e):
    return VB + 32 * rr + 4 * e


def b_loads(lo, hi):
    z = sub()
    for rr in range(4):
        for a in range(lo, hi):
            z(f"ds_read_b128 {v(bfrag(rr,a),4)}, {v(V_UA+rr)} offset:{2048*a}")
    return z.ins


for c2 in range(2):
    b = EG + 18 * c2
    P.wait(f"g{c2}")
    for e in range(9):
        P(f"v_add_f32 {v(b+2*e)}, {v(b+2*e)}, {v(b+2*e+1)}")
    P(f"v_cndmask_b32 {v(b+16)}, {v(b+16)}, 0, s[{S_M255}:{S_M255+1}]")
    for s_ in range(2):
        o = KO + 8 * c2 + 4 * s_
        for i in range(4):
            P(f"v_cvt_pk_bf16_f32 {v(o+i)}, {v(b+2*(s_+2*i))}, {v(b+2*(s_+2*i+1))}")
    for s_ in range(2):
        P(f"ds_write_b128 {v(7 if c2 else V_EXW)}, {v(KO+8*c2+4*s_,4)} offset:{L_KC+s_*CS}", tok="kc")
    P.add(b2.pop(0))
if "dumpk" in OPT:
    P(f"s_lshl_b32 s{S_T0}, s{S_W}, 13")
    P(f"s_add_u32 s{S_T0}, s{S_T0}, {WS_DBG}")
    P(f"buffer_store_dwordx4 {v(KO,4)}, {v(V_EXW)}, {srd(SRD_WS)}, s{S_T0} offen")
    P(f"s_add_u32 s{S_T0}, s{S_T0}, 4096")
    P(f"buffer_store_dwordx4 {v(KO+8,4)}, {v(V_EXW)}, {srd(SRD_WS)}, s{S_T0} offen")
stamp("expanded")
P.wait("uxl")
P.wait("kc")
P("s_barrier")
stamp("conv start")

CA = [176, 192]
ET = 208


def afrag(rr, a):
    return 128 + 32 * rr + 4 * a


def a_loads(rr, lo, hi):
    z = sub()
    for a in range(lo, hi):
        k = a // 2
        off = 16 * (11 - rr - 8 * (a - 2 * k))
        z(f"ds_read2_b32 {acc(afrag(rr,a),2)}, {v(V_KA+k)} offset0:{off} offset1:{off+1}")
        z(f"ds_read2_b32 {acc(afrag(rr,a)+2,2)}, {v(V_KA+k)} offset0:{off+2} offset1:{off+3}")
    return z.ins


def conv_mfmas(gen):
    m = sub()
    first = set()
    na = 4 if gen == 0 else 8
    order = []
    for rr in range(4):
        pairs = [(a, e) for a in range(na) for e in range(na) if 4 * gen <= a + e < 4 * gen + 4]
        pairs.sort(key=lambda ae: (max(ae), ae))
        order += [(rr, a, e) for a, e in pairs]
    if gen == 1:
        order.sort(key=lambda t: (0 if max(t[1], t[2]) < 4 else 1))
    for rr, a, e in order:
        c = a + e - 4 * gen
        d = CA[gen] + 4 * c
        cc = v(d, 4) if c in first else "0"
        first.add(c)
        m(f"v_mfma_f32_16x16x32_bf16 {v(d,4)}, {acc(afrag(rr,a),4)}, {v(bfrag(rr,e),4)}, {cc}")
    return m.ins


UU, XX, YY, TT, WW, HO = ET, ET + 4, ET + 8, ET + 24, ET + 32, ET + 36


def conv_pre(gen):
    q = sub()
    q(f"ds_read_b64 {v(UU,2)}, {v(V_EU)} offset:{8192*gen}")
    q(f"ds_read_b64 {v(UU+2,2)}, {v(V_EU1)} offset:{8192*gen}")
    q(f"ds_read_b128 {v(XX,4)}, {v(V_EXP)} offset:{8192*gen}")
    r = sub()
    if "exact" not in OPT:
        for j in range(4):
            r(f"v_lshlrev_b32 {v(TT+j)}, 16, {v(XX+j)}")
            r(f"v_and_b32 {v(TT+4+j)}, 0xffff0000, {v(XX+j)}")
        for c2, sm in ((0, S_C), (1, S_D)):
            for i in range(2):
                r(f"v_lshlrev_b32 {v(WW)}, 16, {v(UU+2*c2+i)}")
                r(f"v_and_b32 {v(WW+1)}, 0xffff0000, {v(UU+2*c2+i)}")
                r(f"v_fmac_f32 {v(TT+4*c2+2*i)}, s{sm}, {v(WW)}")
                r(f"v_fmac_f32 {v(TT+4*c2+2*i+1)}, s{sm}, {v(WW+1)}")
        return q.ins, r.ins
    for c2 in range(2):
        for i in range(2):
            r(f"v_lshlrev_b32 {v(TT+4*c2+2*i)}, 16, {v(UU+2*c2+i)}")
            r(f"v_and_b32 {v(TT+4*c2+2*i+1)}, 0xffff0000, {v(UU+2*c2+i)}")
    for c2, sm in ((0, S_C), (1, S_D)):
        for i in range(4):
            r(f"v_mul_f32 {v(TT+4*c2+i)}, s{sm}, {v(TT+4*c2+i)}")
    for j in range(4):
        r(f"v_cvt_pk_bf16_f32 {v(WW+j)}, {v(TT+j)}, {v(TT+4+j)}")
    for j in range(4):
        r(f"v_lshlrev_b32 {v(TT+2*j)}, 16, {v(WW+j)}")
        r(f"v_and_b32 {v(TT+2*j+1)}, 0xffff0000, {v(WW+j)}")
    return q.ins, r.ins


def conv_xchg(gen):
    w_, b_, r_ = sub(), sub(), sub()
    for c in range(4):
        w_(f"ds_write_b128 {v(V_EXW)}, {v(CA[gen]+4*c,4)} offset:{(4096 if gen else 7168)*c}", tok=f"xw{gen}")
    b_.wait(f"xw{gen}")
    b_("s_barrier")
    for w in range(4):
        r_(f"ds_read_b128 {v(YY+4*w,4)}, {v(V_EXR)} offset:{1024*w}", tok=f"xr{gen}")
    return w_.ins, b_.ins, r_.ins


def conv_post(gen):
    q = sub()
    h = HO + 4 * gen
    if "exact" not in OPT:
        for c2 in range(2):
            for i in range(2):
                q(f"v_pk_add_f32 {v(TT+4*c2+2*i,2)}, {v(TT+4*c2+2*i,2)}, {v(YY+8*c2+2*i,2)}")
            for i in range(2):
                q(f"v_pk_add_f32 {v(TT+4*c2+2*i,2)}, {v(TT+4*c2+2*i,2)}, {v(YY+8*c2+4+2*i,2)}")
        for j in range(4):
            q(f"v_cvt_pk_bf16_f32 {v(h+j)}, {v(TT+j)}, {v(TT+4+j)}")
        q(f"buffer_store_dwordx4 {v(h,4)}, {v(V_EXW)}, {srd(SRD_WS)}, s{S_PST} offen sc1", tok=f"h{gen}")
        return q.ins
    for c2 in range(2):
        for i in range(2):
            q(f"v_pk_add_f32 {v(YY+8*c2+2*i,2)}, {v(YY+8*c2+2*i,2)}, {v(YY+8*c2+4+2*i,2)}")
    for j in range(4):
        q(f"v_cvt_pk_bf16_f32 {v(WW+j)}, {v(YY+j)}, {v(YY+8+j)}")
    for j in range(4):
        q(f"v_lshlrev_b32 {v(YY+2*j)}, 16, {v(WW+j)}")
        q(f"v_and_b32 {v(YY+2*j+1)}, 0xffff0000, {v(WW+j)}")
    for j in range(4):
        q(f"v_pk_add_f32 {v(YY+2*j,2)}, {v(YY+2*j,2)}, {v(TT+2*j,2)}")
    for j in range(4):
        q(f"v_cvt_pk_bf16_f32 {v(WW+j)}, {v(YY+2*j)}, {v(YY+2*j+1)}")
    for j in range(4):
        q(f"v_lshlrev_b32 {v(YY+8+2*j)}, 16, {v(XX+j)}")
        q(f"v_and_b32 {v(YY+8+2*j+1)}, 0xffff0000, {v(XX+j)}")
    for j in range(4):
        q(f"v_lshlrev_b32 {v(YY+2*j)}, 16, {v(WW+j)}")
        q(f"v_and_b32 {v(YY+2*j+1)}, 0xffff0000, {v(WW+j)}")
    for j in range(4):
        q(f"v_pk_add_f32 {v(YY+2*j,2)}, {v(YY+2*j,2)}, {v(YY+8+2*j,2)}")
    h = HO + 4 * gen
    for j in range(4):
        q(f"v_cvt_pk_bf16_f32 {v(h+j)}, {v(YY+2*j)}, {v(YY+2*j+1)}")
    q(f"buffer_store_dwordx4 {v(h,4)}, {v(V_EXW)}, {srd(SRD_WS)}, s{S_PST} offen sc1", tok=f"h{gen}")
    return q.ins


V_A = 17
ad1 = sub()
ad1(f"v_bfe_u32 v4, {v(V_LANE)}, 3, 1")
ad1(f"v_bfe_u32 v5, {v(V_LANE)}, 4, 1")
ad1(f"v_lshl_add_u32 v4, v4, 1, v5")
ad1(f"v_lshrrev_b32 v5, 5, {v(V_LANE)}")
ad1(f"v_lshl_add_u32 v4, v5, 2, v4")
ad1(f"v_mul_u32_u24 v4, {PROW}, v4")
ad1(f"v_and_b32 v5, 0x70, {v(V_L16)}")
ad1(f"v_add3_u32 {v(V_A)}, v4, v5, s{S_AB}")
for k in range(1, 4):
    ad1(f"v_add_u32 {v(V_A+k)}, {k*(8*PROW-1024)}, {v(V_A)}")


def act_dma(J):
    o = []
    gen, T = J >> 1, J & 1
    for kk in range(2):
        q = sub()
        q(f"s_add_u32 m0, s{S_ACTW}, {L_ACT[gen] + T*28672 + kk*4096}")
        q(f"s_mov_b32 s{S_WOFF}, {kk*32*PROW + PGEN*gen + 128*T}")
        for k in range(4 - kk):
            of = f" offset:{1024*k}" if k else ""
            q(f"buffer_load_dwordx4 {v(V_A+k)}, {srd(SRD_WS)}, s{S_WOFF} offen{of} sc1 lds", tok=f"act{J}")
        o.append(q.ins)
    return o


V_BR, V_S2, V_HST, V_BR2 = 21, 22, 24, 26
V_LF, V_LR = 28, 29
V_RES = 27
V_OST, V_RR, V_RW, V_HL = 45, 41, 42, 44
SEL = 176
CSA = [180, 184]
ad = sub()
ad(f"s_add_u32 s{S_PA}, s{S_PA}, 0x8000")
ad(f"v_and_b32 v4, 31, {v(V_LANE)}")
ad(f"v_lshrrev_b32 v5, 5, {v(V_LANE)}")
ad(f"v_lshlrev_b32 v5, 9, v5")
ad(f"v_lshl_add_u32 {v(V_BR)}, v4, 2, v5")
ad(f"v_add_u32 {v(V_BR2)}, 128, {v(V_BR)}")
NAD2 = len(ad.ins)
ad(f"s_lshl_b32 s{S_T0}, s{S_TB}, 10")
ad(f"s_mul_i32 s{S_T1}, s{S_DB}, {S2REP}")
ad(f"s_add_u32 s{S_T0}, s{S_T0}, s{S_T1}")
ad(f"s_add_u32 s{S_T0}, s{S_T0}, {WS_S2}")
ad(f"v_lshl_add_u32 {v(V_S2)}, v4, 3, s{S_T0}")
ad(f"s_mov_b32 s{S_PERM}, 0x03020302")
ad(f"v_lshrrev_b32 v5, 4, {v(V_LANE)}")
ad(f"v_and_b32 v6, 15, {v(V_LANE)}")
ad(f"v_and_b32 v4, 1, v5")
ad(f"v_mul_u32_u24 v4, 57344, v4")
ad(f"v_lshl_add_u32 v4, v6, 4, v4")
ad(f"v_lshrrev_b32 v7, 1, v5")
ad(f"v_lshl_add_u32 v4, v7, 8, v4")
ad(f"s_mul_i32 s{S_T0}, s{S_TB}, {8*57344}")
ad(f"s_lshl_b32 s{S_T1}, s{S_FB}, 2")
ad(f"s_add_u32 s{S_T1}, s{S_T1}, s{S_V}")
ad(f"s_lshl_b32 s{S_T2}, s{S_T1}, 10")
ad(f"s_add_u32 s{S_T0}, s{S_T0}, {WS_H}")
ad(f"s_add_u32 s{S_T2}, s{S_T2}, s{S_T0}")
ad(f"v_add_u32 {v(V_HST)}, s{S_T2}, v4")
ad(f"s_mul_i32 s{S_T2}, s{S_FH}, 57344")
ad(f"s_add_u32 s{S_T0}, s{S_T0}, s{S_T2}")
ad(f"s_lshl1_add_u32 s{S_T0}, s{S_ACTW}, s{S_T0}")
ad(f"v_add_u32 {v(V_HL)}, s{S_T0}, {v(V_L16)}")
ad(f"s_lshl_b32 s{S_T0}, s{S_TB}, 13")
ad(f"s_add_u32 s{S_T0}, s{S_T0}, {WS_C + 65536}")
ad(f"s_mul_i32 s{S_T1}, s{S_T1}, 37")
ad(f"s_and_b32 s{S_T1}, s{S_T1}, 0x600")
ad(f"s_add_u32 s{S_F3}, s{S_T0}, s{S_T1}")
ad(f"s_lshl1_add_u32 s{S_T1}, s{S_V}, s{S_FH}")
ad(f"s_lshl_b32 s{S_T1}, s{S_T1}, 8")
ad(f"s_add_u32 s{S_P3}, s{S_T0}, s{S_T1}")
for k in range(1, 4):
    ad(f"s_movk_i32 s{S_HR+k}, {4096*k}")
ad(f"s_add_u32 s{S_FW}, s{S_RING}, 32768")
ad(f"s_lshl_b32 s{S_R2}, s{S_V}, 14")
ad(f"v_add_u32 {v(V_LF)}, s{S_FW}, {v(V_L16)}")
ad(f"v_add_u32 {v(V_LR)}, s{S_R2}, {v(V_L16)}")
ad2 = ad
se = sub()
se(f"v_bfe_u32 v4, {v(V_LANE)}, 2, 2")
se(f"v_bfe_u32 v5, {v(V_LANE)}, 4, 1")
se(f"v_mov_b32 v6, 0x3f803f80")
se(f"v_cmp_eq_u32 vcc, v4, v5")
for i in range(4):
    se(f"v_cndmask_b32 {v(SEL+i)}, 0, v6, vcc")


def cs_mfma(ks0, ks1):
    q = sub()
    for ks in range(ks0, ks1):
        for m in range(2):
            c = "0" if ks == 0 else v(CSA[m], 4)
            q(f"v_mfma_f32_16x16x32_bf16 {v(CSA[m],4)}, {v(SEL,4)}, {acc(wfrag(m,ks),4)}, {c}")
    return q.ins


def pin_spread(g, start, ins, per=2):
    for i, x in enumerate(ins):
        g.at(int(start + i // per), [x])
    return int(start + (len(ins) + per - 1) // per)


def gap_stamps(g, name):
    if OPT.get("gs", "").startswith(name + ":"):
        for k in OPT["gs"].split(":")[1].split(","):
            q = sub()
            stamp(f"{name} g{k}", q)
            g.pin[int(k)] = q.ins + g.pin[int(k)]


mA, mB = conv_mfmas(0), conv_mfmas(1)
NOV = int(OPT.get("nov", 20))
bl = b_loads(0, 4)


def ab(rr):
    al = a_loads(rr, 0, 4)
    o = []
    for a in range(4):
        o += [bl[4 * rr + a]] + al[2 * a:2 * a + 2]
    return o


pr, pv = conv_pre(0)
P.add(ab(0) + ab(1)[:3])
P.add(b2.pop(0))
P.add(b2.pop(0))
g = Gaps(mA + mB[:NOV], 2)
l1 = ab(1)[3:] + ab(2) + ab(3) + pr
NL1 = int(OPT.get("nl1", 24))
for i, x in enumerate(l1):
    g.at(i * NL1 // len(l1), [x])
g.fill(pv, start=NL1 + 5, end=50)
xw, xb, xr = conv_xchg(0)
for i in range(4):
    g.at(41 + 2 * i, [xw[i]])
XB = int(OPT.get("xb", 50))
g.at(XB, xb)
g.at(XB + 1, xr)
pin_vm(g, XB + 2, b2[:2], 3)
b2 = b2[2:]
P.add(g.out())
P.add(conv_post(0))
stamp("genA stored")
nb = b_loads(4, 8)
newl = []
for rr in range(4):
    newl += nb[4 * rr:4 * rr + 4] + a_loads(rr, 4, 8)
P.add(newl[:8])
g = Gaps(mB[NOV:] + cs_mfma(0, 10), 2)
NB_ = len(mB) - NOV
pin_spread(g, 0, newl[8:], per=1)
g.at(0, waitq("w1_3"))
pin_spread(g, 0, tr1[24:], per=1)
pin_vm(g, 1, b2, 3.5)
fl = sub()
fl.wait("h0")
addcnt(fl, S_F2, V_FL2)
fl(f"s_add_u32 s{S_F2}, s{S_F2}, 0x8000")
g.at(int(OPT.get("fa", 28)), fl.ins)
tr2 = batch_tr(1)
T2 = [int(x) for x in OPT.get("t2", "12,24,44,60").split(",")]
b3 = batch_dma(2, "w3")
for i in range(4):
    pin_spread(g, T2[i], waitq(f"w2_{i}") + tr2[8 * i:8 * i + 8], per=1)
    b3[i] = waitq(f"t1_{i}") + b3[i]
pin_vm(g, 30, b3[:2], 3)
pin_vm(g, 56, b3[2:3], 3)
pin_vm(g, 71, b3[3:4], 2.5)
pr, pv = conv_pre(1)
pin_spread(g, 41, pr, per=1)
newl[-1].tok = "lastfrag"
bq = sub()
bq.wait("lastfrag")
bq("s_barrier")
g.at(54, bq.ins)
x2 = sub()
x2(f"v_add_u32 {v(V_EXW)}, {L_KC}, {v(V_EXW)}")
x2(f"s_lshl_b32 s{S_T0}, s{S_V}, 12")
x2(f"s_add_u32 s{S_T0}, s{S_T0}, {L_KC}")
x2(f"v_add_u32 {v(V_EXR)}, s{S_T0}, {v(V_L16)}")
x2(f"s_add_u32 s{S_PST}, s{S_PST}, {PGEN - L_KC}")
PA1, PA2, PAC = int(OPT.get("pa1", 58)), int(OPT.get("pa2", 72)), int(OPT.get("pac", 86))
e = g.fill(ad1.ins + se.ins + x2.ins, start=34, end=PAC - 1)
g.fill(pv, start=max(e, 50), end=NB_ + 10)
g.at(PA1, poll_issue(S_PA, 7))
g.at(PA2, poll_issue(S_PA, 23))
if "pa3" in OPT:
    g.at(int(OPT["pa3"]), poll_issue(S_PA, 24))
    g.at(PAC, poll_checkn(S_PA, [7, 23, 24], "3", f"s{S_E28}"))
else:
    g.at(PAC, stq("pre pollA") + poll_check2(S_PA, 7, 23, "3", f"s{S_E28}") + stq("post pollA"))
a0 = singles(act_dma(0) + act_dma(1))
na = (g.n - 1 - PAC) // 3 + 1
pin_vm(g, PAC, a0[:na], 3)
xw, xb, xr = conv_xchg(1)
for i in range(4):
    g.at(NB_ + 1 + 2 * i, [xw[i]])
g.at(NB_ + 10, xb)
g.at(NB_ + 11, xr)
gap_stamps(g, "s2")
o_ = g.out()
X = OPT.get("x2", "")
if "d" in X:
    o_ = [i for i in o_ if not (i.cls == "vmem" and i.tok and i.tok[0] == "w")]
if "t" in X:
    o_ = [i for i in o_ if "tr_b16" not in i.mn]
if "a" in X:
    o_ = [i for i in o_ if "ds_read2_b32" not in i.mn]
P.add(o_)
P.add(conv_post(1))
stamp("genB stored")
NCH_ = int(OPT.get("nch", 7))
g = Gaps(cs_mfma(10, 24 - NCH_), 3)
g.at(1, poll_issue(S_P4, 25))
tr3 = batch_tr(2)
t3 = []
for i in (0, 1, 2, 3):
    t3 += waitq(f"w3_{i}") + tr3[8 * i:8 * i + 8]
pin_spread(g, 0, t3, per=2)
e = pin_vm(g, 0, a0[na:], 2)
fl = sub()
fl.wait("h1")
addcnt(fl, S_F2, V_FL2)
g.fill(ad2.ins[:NAD2], start=18)
w4 = singles([waitq("t2_3") + w_dma(6, 0, 8, "w4"), w_dma(6, 1, 12, "w4")])
P.add(g.out())
stamp("gap work done")

GACC = [64, 96]
BF = 128
NBF = 8
MB = 160
KC_ = [14, 9]
STT = 60
EPT = 164
HP = 172
WDV = 188
RESR = [46, 48, 50, 52]
A_CS = [224, 228]
GC0 = -2.0 * math.sqrt(2.0 / math.pi) * LOG2E


def st_issue(J, atomic=None):
    q = sub()
    t = STT + 2 * (J & 1)
    atomic = False if atomic is None else atomic
    if atomic:
        q(f"v_mov_b64 {v(t,2)}, 0")
        q(f"buffer_atomic_add_x2 {v(t,2)}, {v(V_S2)}, {srd(SRD_WS)}, 0 offen offset:{256*J} sc0")
    else:
        q(f"buffer_load_dwordx2 {v(t,2)}, {v(V_S2)}, {srd(SRD_WS)}, 0 offen offset:{256*J} sc1")
    return q.ins


def st_check(J):
    q = sub()
    t = STT + 2 * (J & 1)
    slow, done = label("sslow"), label("sdone")
    q(f"v_cmp_ne_u32 vcc, s{S_NONCE}, {v(t+1)}")
    q(f"s_cbranch_vccnz {slow}")
    q(f"{done}:")
    spin(TAIL, slow, done, st_issue(J, True), t + 1, sleep=1)
    return q.ins


def st_final(J):
    q = sub()
    kc = KC_[J & 1]
    t = STT + 2 * (J & 1)
    q(f"v_perm_b32 {v(MB)}, {v(t)}, {v(t)}, s{S_PERM}")
    q(f"v_cvt_f32_f16 {v(t)}, {v(t)}")
    q(f"v_mul_f32 {v(t+1)}, {v(t)}, {v(t)}")
    q(f"v_mul_f32 {v(kc)}, {f32(GC0)}, {v(t)}")
    q(f"v_rcp_f32 {v(kc+2)}, {v(t+1)}")
    q(f"v_mul_f32 {v(kc+1)}, {v(t+1)}, {v(kc)}")
    q(f"v_mul_f32 {v(kc+1)}, {f32(0.044715)}, {v(kc+1)}")
    return q.ins


SP = Prog()
spn = [1]


def sps():
    if STAMPS and "lite" in OPT:
        SP(f"s_memrealtime s[{S_STAMP}:{S_STAMP+1}]")
        SP("s_waitcnt lgkmcnt(0)")
        SP(f"v_writelane_b32 v255, s{S_STAMP}, {spn[0]}")
        spn[0] += 1


SP("L_spare:")
SP("s_waitcnt vmcnt(0)")
SP("s_barrier")
sps()
SP(f"s_and_b32 s{S_T0}, s{S_W}, 6")
SP(f"s_lshl_b32 s{S_T0}, s{S_T0}, 1")
SP(f"s_bfe_u32 s{S_T1}, s{S_W}, 0x20003")
SP(f"s_add_u32 s{S_TB}, s{S_T0}, s{S_T1}")
SP(f"s_lshr_b32 s{S_T0}, s{S_TB}, 2")
SP(f"s_lshl2_add_u32 s{S_T0}, s{S_FH}, s{S_T0}")
SP(f"s_lshl3_add_u32 s{S_T0}, s{S_T0}, s{S_T1}")
SP(f"s_lshl2_add_u32 s{S_T0}, s{S_T0}, s{S_V}")
SP(f"s_lshl_b32 s{S_T0}, s{S_T0}, 8")
SP(f"s_add_u32 s{S_PA}, s{S_T0}, {WS_C}")
SP(f"s_mul_i32 s{S_T1}, s{S_V}, 56")
SP(f"v_mov_b32 {v(V_NONCE)}, 7")
lanes_reg(SP, V_FLG, 4, 8)
SP(f"v_lshrrev_b32 v5, 4, {v(V_LANE)}")
SP(f"v_and_b32 v6, 15, {v(V_LANE)}")
SP(f"v_mul_u32_u24 v4, {PROW}, v5")
SP(f"v_lshl_add_u32 v4, v6, 4, v4")
SP(f"s_mul_i32 s{S_T1}, s{S_T1}, {PROW}")
SP(f"s_lshl_b32 s{S_T0}, s{S_TB}, 8")
SP(f"s_add_u32 s{S_T0}, s{S_T0}, s{S_T1}")
SP(f"s_mul_i32 s{S_T1}, s{S_FH}, {PGEN}")
SP(f"s_add_u32 s{S_T0}, s{S_T0}, s{S_T1}")
SP(f"s_add_u32 s{S_T0}, s{S_T0}, {WS_P}")
SP(f"v_add_u32 v11, s{S_T0}, v4")
SP(f"v_lshl_add_u32 v4, v6, 2, v5")
SP(f"s_lshl_b32 s{S_T0}, s{S_V}, 9")
SP(f"v_lshl_add_u32 v12, v4, 3, s{S_T0}")
SP(f"v_lshlrev_b32 v13, 3, {v(V_LANE)}")
SP(f"v_mov_b32 v14, 0x3f803f80")
if not NOPF and EPF < 25:
    NREM = 12544 - 512 * EPF
    LR = -(-NREM // (64 * 4))
    SP(f"s_sub_u32 s{S_T1}, s{S_W}, 224")
    SP(f"s_lshr_b32 s{S_T0}, s{S_V}, 1")
    SP(f"s_lshl1_add_u32 s{S_T1}, s{S_T1}, s{S_T0}")
    SP(f"s_mul_i32 s{S_T1}, s{S_T1}, {LR*128}")
    SP(f"s_add_u32 s{S_T1}, s{S_T1}, {(12544-256*LR)*128}")
    SP(f"v_min_u32 v4, {LR-1}, {v(V_LANE)}")
    SP(f"v_lshl_add_u32 v4, v4, 7, s{S_T1}")
    for k in range(4):
        SP(f"global_load_dword {v(60+k)}, v4, s[{S_PFB}:{S_PFB+1}]")
        if k < 3:
            SP(f"v_add_u32 v4, {64*LR*128}, v4")
SP(f"s_sub_u32 s{S_T1}, s{S_W}, 224")
SP(f"s_cmp_ge_u32 s{S_T1}, 28")
SP("s_cbranch_scc1 L_sp_nowf")
SP(f"s_lshr_b32 s{S_DB}, s{S_T1}, 2")
SP(f"s_and_b32 s{S_T2}, s{S_T1}, 3")
SP(f"s_lshl_b32 s{S_F3}, s{S_T1}, 10")
SP(f"s_add_u32 s{S_F3}, s{S_F3}, {WS_C + 896*256}")
SP(f"s_mul_i32 s{S_T1}, s{S_T1}, {14*4096}")
SP(f"s_add_u32 s{S_T1}, s{S_T1}, {WS_WF}")
SP(f"v_add_u32 v20, s{S_T1}, {v(V_L16)}")
SP(f"v_lshrrev_b32 v6, 3, {v(V_LANE)}")
SP(f"v_and_b32 v7, 6, v6")
SP(f"v_and_b32 v5, 7, {v(V_LANE)}")
SP(f"v_xor_b32 v7, v7, v5")
SP(f"v_mul_u32_u24 v6, 896, v6")
SP(f"v_lshl_add_u32 v6, v7, 4, v6")
SP(f"s_mul_i32 s{S_T0}, s{S_T2}, {448*896}")
SP(f"s_lshl_b32 s{S_T1}, s{S_DB}, 7")
SP(f"s_add_u32 s{S_T0}, s{S_T0}, s{S_T1}")
SP(f"v_add_u32 v48, s{S_T0}, v6")
for k in range(1, 4):
    SP(f"v_add_u32 {v(48+k)}, {k*(7168-1024)}, v48")
SP(f"s_lshl_b32 s{S_R2}, s{S_V}, 14")
SP(f"s_add_u32 s{S_R2}, s{S_R2}, 4096")
for i in range(4):
    SP(f"s_lshl2_add_u32 s{S_HR+i}, s{S_V}, {i}")
    SP(f"s_min_u32 s{S_HR+i}, s{S_HR+i}, 13")
    SP(f"s_mul_i32 s{S_WOFF}, s{S_HR+i}, {32*896}")
    SP(f"s_add_u32 m0, s{S_R2}, {4096*i}")
    SP(f"s_lshl_b32 s{S_HR+i}, s{S_HR+i}, 12")
    for k in range(4):
        of = f" offset:{1024*k}" if k else ""
        SP(f"buffer_load_dwordx4 {v(48+k)}, {srd(SRD_WD)}, s{S_WOFF} offen{of} lds", tok=f"sw{i}")
SP(f"v_lshrrev_b32 v4, 4, {v(V_LANE)}")
SP(f"v_lshrrev_b32 v6, 1, v4")
SP(f"v_lshlrev_b32 v6, 4, v6")
SP(f"v_and_b32 v7, 1, v4")
SP(f"v_lshl_add_u32 v6, v7, 2, v6")
SP(f"v_bfe_u32 v7, {v(V_LANE)}, 2, 2")
SP(f"v_add_u32 v6, v6, v7")
SP(f"v_bfe_u32 v7, v6, 1, 2")
SP(f"v_lshlrev_b32 v6, 7, v6")
SP(f"v_and_b32 v5, 3, {v(V_LANE)}")
SP(f"v_lshl_add_u32 v6, v5, 3, v6")
for rt in range(4):
    SP(f"v_xor_b32 v5, {rt}, v7")
    SP(f"v_lshl_add_u32 v5, v5, 5, v6")
    SP(f"v_add_u32 {v(52+rt)}, s{S_R2}, v5")
for i in range(4):
    SP.wait(f"sw{i}")
    if i in (0, 3): sps()
    for rt in range(4):
        for h in range(2):
            SP(f"ds_read_b64_tr_b16 {v(64+16*i+4*rt+2*h,2)}, {v(52+rt)} offset:{4096*i+1024*h}")
    for rt in range(4):
        SP(f"buffer_store_dwordx4 {v(64+16*i+4*rt,4)}, v20, {srd(SRD_WS)}, s{S_HR+i} offen offset:{1024*rt} sc1")
SP("s_waitcnt vmcnt(0)")
addcnt(SP, S_F3, V_FLG)
sps()
SP("L_sp_nowf:")
sps()
SP("s_mov_b64 vcc, 3")
spin(SP, "L_sp_c", "L_sp_d", poll_issue(S_PA, 7), 7, sleep=int(OPT.get('spsleep', 2)), exp=f"s{S_E28}")
SP("L_sp_d:")
sps()
for k in range(14):
    SP(f"s_mov_b32 s{S_T0}, {k*4*PROW}")
    SP(f"buffer_load_dwordx4 {v(64+4*k,4)}, v11, {srd(SRD_WS)}, s{S_T0} offen sc1")
SS = 16
for j in range(8):
    SP(f"v_mov_b32 {v(SS+j)}, 0")
for k in range(14):
    for j in range(4):
        SP(f"v_dot2c_f32_bf16 {v(SS+j)}, {v(64+4*k+j)}, v14")
    for j in range(4):
        SP(f"v_dot2c_f32_bf16 {v(SS+4+j)}, {v(64+4*k+j)}, {v(64+4*k+j)}")
for o in (0, 4):
    SP(f"v_permlane32_swap_b32 {v(SS+o)}, {v(SS+o+2)}")
    SP(f"v_permlane32_swap_b32 {v(SS+o+1)}, {v(SS+o+3)}")
for o in (0, 4):
    SP(f"v_add_f32 {v(SS+o)}, {v(SS+o)}, {v(SS+o+2)}")
    SP(f"v_add_f32 {v(SS+o+1)}, {v(SS+o+1)}, {v(SS+o+3)}")
for o in (0, 4):
    SP(f"v_permlane16_swap_b32 {v(SS+o)}, {v(SS+o+1)}")
SP(f"v_add_f32 {v(SS)}, {v(SS)}, {v(SS+1)}")
SP(f"v_add_f32 {v(SS+1)}, {v(SS+4)}, {v(SS+5)}")
sps()
SP(f"ds_write_b64 v12, {v(SS,2)}")
SP("s_waitcnt lgkmcnt(0)")
SP("s_barrier")
SP(f"s_cmp_lg_u32 s{S_V}, 0")
SP("s_cbranch_scc1 L_fin")
t = 24
for w in range(4):
    SP(f"ds_read_b64 {v(t+2*w,2)}, v13 offset:{512*w}")
SP(f"s_lshl_b32 s{S_T0}, s{S_TB}, 1")
SP(f"s_add_u32 s{S_T0}, s{S_T0}, s{S_FH}")
SP(f"s_lshl_b32 s{S_T0}, s{S_T0}, 9")
SP(f"s_add_u32 s{S_T0}, s{S_T0}, {WS_S2}")
SP(f"v_pk_add_f32 {v(t,2)}, {v(t,2)}, {v(t+2,2)}")
SP(f"v_pk_add_f32 {v(t+4,2)}, {v(t+4,2)}, {v(t+6,2)}")
SP(f"v_pk_add_f32 {v(t,2)}, {v(t,2)}, {v(t+4,2)}")
SP(f"v_mul_f32 {v(t)}, s{S_K0}, {v(t)}")
SP(f"v_mul_f32 {v(t+1)}, s{S_K0}, {v(t+1)}")
SP(f"v_fma_f32 {v(t+1)}, -{v(t)}, {v(t)}, {v(t+1)}")
SP(f"v_max_f32 {v(t+1)}, 0, {v(t+1)}")
SP(f"v_add_f32 {v(t+1)}, {f32(1e-5)}, {v(t+1)}")
SP(f"v_rsq_f32 {v(t+1)}, {v(t+1)}")
SP(f"v_cvt_pk_bf16_f32 {v(t)}, 0, -{v(t)}")
SP(f"v_cvt_f16_f32 {v(t+1)}, {v(t+1)}")
SP(f"v_and_b32 {v(t+1)}, 0xffff, {v(t+1)}")
SP(f"v_or_b32 {v(t)}, {v(t)}, {v(t+1)}")
SP(f"v_mov_b32 {v(t+1)}, s{S_NONCE}")
for r_ in range(7):
    SP(f"buffer_store_dwordx2 {v(t,2)}, v13, {srd(SRD_WS)}, s{S_T0} offen sc1")
    SP(f"s_add_u32 s{S_T0}, s{S_T0}, {S2REP}")
sps()
SP(f"s_cmp_lg_u32 s{S_W}, 255")
SP("s_cbranch_scc1 L_fin")
SP(f"v_lshlrev_b32 v4, 25, {v(V_LANE)}")
SP(f"buffer_store_dword {v(t+1)}, v4, {srd(SRD_WS)}, 0 offen sc1")
SP("s_branch L_fin")


def b_read(J, ks):
    q = sub()
    b = BF + 4 * (ks % NBF)
    o = 112 * (J & 1) + 4 * ks
    q(f"ds_read2st64_b32 {v(b,2)}, {v(V_BR)} offset0:{o} offset1:{o+1}")
    q(f"ds_read2st64_b32 {v(b+2,2)}, {v(V_BR2)} offset0:{o} offset1:{o+1}", tok=f"b{J}_{ks}")
    return q.ins


def g1_gaps(J, extra_after=None):
    m = sub()
    g0 = GACC[J & 1]
    for ks in range(28):
        for mm in range(2):
            d = g0 + 16 * mm
            c = "0" if ks == 0 else v(d, 16)
            m(f"v_mfma_f32_32x32x16_bf16 {v(d,16)}, {acc(wfrag(mm,ks),4)}, {v(BF+4*(ks%NBF),4)}, {c}")
    for mm in range(2):
        d = g0 + 16 * mm
        m(f"v_mfma_f32_32x32x16_bf16 {v(d,16)}, {acc(A_CS[mm],4)}, {v(MB,4)}, {v(d,16)}")
    g = Gaps(m.ins, 6)
    for ks in range(28):
        k2 = ks + NBF - 1
        if k2 < 28:
            r = b_read(J, k2)
            g.at(2 * ks, [r[0]])
            g.at(2 * ks + 1, [r[1]])
        if ks % 3 == 2 and ks + 1 < 28:
            w = sub()
            w.wait(f"b{J}_{min(ks+3,27)}")
            g.at(2 * ks + 1, w.ins)
    return g


def next_tile_reads(g, J, delta, first=42):
    q = sub()
    if delta:
        q(f"v_add_u32 {v(V_BR)}, {delta}, {v(V_BR)}")
        q(f"v_add_u32 {v(V_BR2)}, {delta}, {v(V_BR2)}")
    g.at(first, q.ins)
    for ks in range(NBF - 1):
        old = max(k for k in range(28) if k % NBF == ks)
        r = b_read(J, ks)
        at = max(2 * old + 1, first + 1)
        g.at(at, r[:1])
        g.at(min(at + 1, 57), r[1:])


def g1_epi(J):
    q = sub()
    g = GACC[J & 1]
    kc = KC_[J & 1]
    T = EPT
    for j0 in range(0, 16, 4):
        js = range(j0, j0 + 4)
        for j in js:
            q(f"v_mul_f32 {v(T+j-j0)}, {v(g+j)}, {v(g+j)}")
        for j in js:
            q(f"v_fma_f32 {v(T+j-j0)}, {v(T+j-j0)}, {v(kc+1)}, {v(kc)}")
        for j in js:
            q(f"v_mul_f32 {v(T+j-j0)}, {v(T+j-j0)}, {v(g+j)}")
        for j in js:
            q(f"v_exp_f32 {v(T+j-j0)}, {v(T+j-j0)}")
            q(f"v_mul_f32 {v(T+4+j-j0)}, {v(g+j)}, {v(g+16+j)}")
        for j in js:
            q(f"v_fma_f32 {v(T+j-j0)}, {v(T+j-j0)}, {v(kc+2)}, {v(kc+2)}")
        for j in js:
            q(f"v_rcp_f32 {v(T+j-j0)}, {v(T+j-j0)}")
        for j in js:
            q(f"v_mul_f32 {v(T+4+j-j0)}, {v(T+4+j-j0)}, {v(T+j-j0)}")
        q(f"v_cvt_pk_bf16_f32 {v(HP+(j0//2)%4)}, {v(T+4)}, {v(T+5)}")
        q(f"v_cvt_pk_bf16_f32 {v(HP+(j0//2)%4+1)}, {v(T+6)}, {v(T+7)}")
        if j0 in (4, 12):
            q2 = j0 // 8
            q(f"buffer_store_dwordx4 {v(HP,4)}, {v(V_HST)}, {srd(SRD_WS)}, 0 offen offset:{512*q2} sc1", tok=f"H{J}")
    q(f"v_add_u32 {v(V_HST)}, {2*57344}, {v(V_HST)}")
    return q.ins


def g1_epi_pk(J):
    q = sub()
    g = GACC[J & 1]
    assert KC_[J & 1] == 9
    T = EPT
    for j0 in range(0, 16, 8):
        pr_ = range(j0, j0 + 8, 2)
        for j in pr_:
            q(f"v_pk_mul_f32 {v(T+j-j0,2)}, {v(g+j,2)}, {v(g+j,2)}")
        for j in pr_:
            q(f"v_pk_fma_f32 {v(T+j-j0,2)}, {v(T+j-j0,2)}, v[10:11], v[8:9] op_sel:[0,0,1] op_sel_hi:[1,0,1]")
        for j in pr_:
            q(f"v_pk_mul_f32 {v(T+j-j0,2)}, {v(T+j-j0,2)}, {v(g+j,2)}")
        for j in range(j0, j0 + 8):
            q(f"v_exp_f32 {v(T+j-j0)}, {v(T+j-j0)}")
        for j in pr_:
            q(f"v_pk_mul_f32 {v(g+j,2)}, {v(g+j,2)}, {v(g+16+j,2)}")
        for j in pr_:
            q(f"v_pk_fma_f32 {v(T+j-j0,2)}, {v(T+j-j0,2)}, v[10:11], v[10:11] op_sel:[0,1,1] op_sel_hi:[1,1,1]")
        for j in range(j0, j0 + 8):
            q(f"v_rcp_f32 {v(T+j-j0)}, {v(T+j-j0)}")
        for j in pr_:
            q(f"v_pk_mul_f32 {v(g+j,2)}, {v(g+j,2)}, {v(T+j-j0,2)}")
        for j in pr_:
            q(f"v_cvt_pk_bf16_f32 {v(HP+(j-j0)//2)}, {v(g+j)}, {v(g+j+1)}")
        q(f"buffer_store_dwordx4 {v(HP,4)}, {v(V_HST)}, {srd(SRD_WS)}, 0 offen offset:{512*(j0//8)} sc1", tok=f"H{J}")
    return q.ins


def flag3(J):
    q = sub()
    q.wait(f"H{J}")
    addcnt(q, S_F3, V_FLG)
    q(f"s_add_u32 s{S_F3}, s{S_F3}, 2048")
    return q.ins


WDREG = {}
for i in range(4):
    for rt in range(4):
        WDREG[i, rt] = v(WDV + 16 * i + 4 * rt, 4)
        WDREG[10, rt] = acc(240 + 4 * rt, 4)
        WDREG[11, rt] = v([176, 180, 184, 56][rt], 4)
        WDREG[12, rt] = acc(4 * rt, 4)
        WDREG[13, rt] = acc(16 + 4 * rt, 4)
for i in range(6):
    for rt in range(4):
        WDREG[4 + i, rt] = acc(128 + 16 * i + 4 * rt, 4)
KORD = [0, 1, 2, 3, 10, 11, 12, 13, 4, 5, 6, 7, 8, 9]


def wdr(ft, rt):
    return WDREG[ft, rt]


def wd_load(ft):
    q = sub()
    q(f"s_add_u32 s{S_WOFF}, s{S_WFB}, {ft*4096}")
    for k in range(4):
        of = f" offset:{1024*k}" if k else ""
        q(f"buffer_load_dwordx4 {wdr(ft,k)}, {v(V_L16)}, {srd(SRD_WS)}, s{S_WOFF} offen{of} sc1")
    return q.ins


def wd_dma(ft):
    q = sub()
    sbase, slot = (S_FW, ft - 4) if ft < 6 else (S_R2, ft - 6)
    q(f"s_add_u32 m0, s{sbase}, {slot*4096}")
    q(f"s_add_u32 s{S_WOFF}, s{S_WFB}, {ft*4096}")
    for k in range(4):
        of = f" offset:{1024*k}" if k else ""
        q(f"buffer_load_dwordx4 {v(V_L16)}, {srd(SRD_WS)}, s{S_WOFF} offen{of} sc1 lds", tok=f"wd{ft}")
    return q.ins


def wd_read(ft):
    q = sub()
    va, slot = (V_LF, ft - 4) if ft < 6 else (V_LR, ft - 6)
    for rt in range(4):
        q(f"ds_read_b128 {wdr(ft,rt)}, {v(va)} offset:{4096*slot+1024*rt}")
    return q.ins


def res_read(J):
    q = sub()
    o = 112 * (J & 1)
    q(f"ds_read2st64_b32 {v(RESR[J],2)}, {v(V_RES)} offset0:{o} offset1:{o+1}", tok=f"res{J}")
    if J == 1:
        q(f"v_add_u32 {v(V_RES)}, {L_ACT[1]}, {v(V_RES)}")
    return q.ins


ad = sub()
ad(f"v_lshrrev_b32 v4, 4, v0")
ad(f"v_and_b32 v5, 15, v0")
ad(f"v_lshrrev_b32 v6, 1, v5")
ad(f"v_and_b32 v7, 1, v5")
ad(f"v_lshl_add_u32 v6, v6, 2, v7")
ad(f"v_lshlrev_b32 v6, 7, v6")
ad(f"v_lshl_add_u32 v6, v4, 2, v6")
ad(f"s_lshl_b32 s{S_T0}, s{S_DB}, 12")
ad(f"s_lshl_b32 s{S_T1}, s{S_FH}, 6")
ad(f"s_add_u32 s{S_T0}, s{S_T0}, s{S_T1}")
ad(f"v_add_u32 {v(V_RES)}, s{S_T0}, v6")
ad(f"v_lshrrev_b32 v6, 2, v4")
ad(f"v_and_b32 v7, 3, v4")
ad(f"v_lshl_add_u32 v6, v6, 4, v7")
ad(f"v_mul_u32_u24 v6, 896, v6")
ad(f"v_lshl_add_u32 v6, v5, 3, v6")
ad(f"s_lshr_b32 s{S_T0}, s{S_TB}, 2")
ad(f"s_lshl_b32 s{S_T0}, s{S_T0}, 8")
ad(f"s_add_u32 s{S_T0}, s{S_T0}, s{S_T1}")
ad(f"s_and_b32 s{S_T1}, s{S_TB}, 3")
ad(f"s_lshl_b32 s{S_T1}, s{S_T1}, 2")
ad(f"s_add_u32 s{S_T0}, s{S_T0}, s{S_T1}")
ad(f"s_mul_i32 s{S_T0}, s{S_T0}, 896")
ad(f"s_lshl_b32 s{S_T1}, s{S_DB}, 7")
ad(f"s_add_u32 s{S_T0}, s{S_T0}, s{S_T1}")
ad(f"v_add_u32 {v(V_OST)}, s{S_T0}, v6")
ad(f"v_mul_u32_u24 v6, 272, v5")
ad(f"v_lshl_add_u32 v6, v4, 4, v6")
ad(f"v_add_u32 {v(V_RR)}, {L_R}, v6")
ad(f"v_lshrrev_b32 v4, 4, {v(V_LANE)}")
ad(f"v_mul_u32_u24 v6, 272, v4")
ad(f"v_lshl_add_u32 v6, v5, 4, v6")
ad(f"s_mul_i32 s{S_T0}, s{S_V}, 4352")
ad(f"s_add_u32 s{S_T0}, s{S_T0}, {L_R}")
ad(f"v_add_u32 {v(V_RW)}, s{S_T0}, v6")
lanes_reg(ad, V_FLG, 2, 8)

for i in range(1, 4):
    P(f"v_mov_b32 {v(MB+i)}, 0")
    P(f"v_accvgpr_write_b32 {acc(A_CS[0]+i)}, 0")
    P(f"v_accvgpr_write_b32 {acc(A_CS[1]+i)}, 0")
walk("walk")
P.wait("act0")
P("s_waitcnt lgkmcnt(0)")
P("s_barrier")
stamp("gemm1 start")
for ks in range(3):
    P.add(b_read(0, ks))
g = Gaps(cs_mfma(24 - NCH_, 24), 2)
pin_spread(g, 0, sum([b_read(0, ks) for ks in range(3, NBF - 1)], []), per=1)
pin_vm(g, 1, w4[:3], 3)
P.add(g.out())

def hreg(J, ft):
    n = KORD.index(ft)
    if J in (0, 3):
        return acc(32 + 4 * n, 4)
    if J == 1:
        return v(64 + 4 * n if n < 8 else 128 + 4 * (n - 8), 4)
    return v(96 + 4 * n if n < 8 else 152 + 4 * (n - 8), 4)


def h_loads(J):
    o = []
    for s_ in KORD:
        q = sub()
        of = f" offset:{1024*(s_%4)}" if s_ % 4 else ""
        so = f"s{S_HR+s_//4}" if s_ >= 4 else "0"
        q(f"buffer_load_dwordx4 {hreg(J,s_)}, {v(V_HL)}, {srd(SRD_WS)}, {so} offen{of} sc1")
        o.append(q.ins)
    if J < 3:
        q = sub()
        q(f"v_add_u32 {v(V_HL)}, {2*57344}, {v(V_HL)}")
        o[-1] += q.ins
    return o


def p3_next():
    q = sub()
    q(f"s_add_u32 s{S_P3}, s{S_P3}, 2048")
    return q.ins


g = g1_gaps(0)
e = pin_vm(g, 0, w4[3:], 1.5)
g.at(int(OPT.get("fb", 2)), fl.ins)
g.at(e, poll_check(S_P4, 25))
WL = [wd_load(0), wd_load(1), wd_load(2), wd_load(3), wd_load(10), wd_dma(4), wd_dma(5), wd_load(11)]
N0_, N1_ = int(OPT.get("n0", 5)), int(OPT.get("n1", 2))
WS0 = int(OPT.get("ws0", e))
e4 = pin_vm(g, WS0, WL[:N0_], (57 - WS0) / (4 * N0_))
t4 = w_tr(6, 0, 8, "t4") + w_tr(6, 1, 12, "t4")
g.at(30, waitq("w4"))
pin_spread(g, 30, t4, per=2)
g.at(41, waitq("t4") + cs_mfma(24, 28))
cf = sub()
for m in range(2):
    round_bf16(cf, 54, CSA[m])
    cf(f"v_sub_f32 v55, {v(CSA[m])}, v54")
    cf(f"v_cvt_pk_bf16_f32 v54, v54, v55")
    cf(f"v_accvgpr_write_b32 {acc(A_CS[m])}, v54")
g.fill(cf.ins, start=44, end=52)
g.at(int(OPT.get("pb1", 26)), poll_issue(S_PA, 23))
g.at(int(OPT.get("pb2", 40)), poll_issue(S_PA, 25))
g.at(int(OPT.get("st0", 29)), st_issue(0))
g.at(53, stq("t0 pre st") + st_check(0) + stq("t0 post st"))
g.fill(st_final(0), start=53, end=55)
g.at(57, stq("t0 pre pB") + poll_check2(S_PA, 23, 25, "3", f"s{S_E28}") + stq("t0 post pB"))
bq = sub()
bq.wait("act1")
bq("s_barrier")
g.at(27, bq.ins)
next_tile_reads(g, 1, 0, first=41)
e = g.fill(ad2.ins[NAD2:], start=0, cap=float(OPT.get("cap0", 6)))
assert e < min(e4, 40), e
e = g.fill(ad.ins, start=e, cap=float(OPT.get("cap0", 6)))
print("tile 0 address stream ends at", e, len(g.tail))
gap_stamps(g, "t0")
P.add(g.out())
stamp("tile0")
g = g1_gaps(1)
e = pin_vm(g, 0, act_dma(2)[:1] + [st_issue(1)] + act_dma(2)[1:] + act_dma(3), 2)
pin_vm(g, e + 1, WL[N0_:N0_ + N1_], min(2.5, (57 - e) / (4 * N1_)))
g.at(38, res_read(0))
g.at(39, res_read(1))
g.at(40, st_check(1))
g.fill(st_final(1), start=41, end=54)
bq = sub()
bq.wait("act2")
bq.wait("b1_27")
bq("s_barrier")
BB = int(OPT.get("bb", 48))
g.at(BB, stq("t1 pre bar") + bq.ins + stq("t1 post bar"))
next_tile_reads(g, 2, L_ACT[1], first=BB)
e = g.fill(g1_epi(0), start=3)
print("tile 1: epilogue ends at gap", e, "tail", len(g.tail))
gap_stamps(g, "t1")
P.add(g.out())
stamp("tile1")
g = g1_gaps(2)
pin_vm(g, 0, [wd_dma(6), wd_dma(7), st_issue(2), wd_dma(8), wd_dma(9)] + WL[N0_ + N1_:] + [st_issue(3)], 55 / (18 + 4 * (8 - N0_ - N1_)))
g.at(24, flag3(0))
bq = sub()
bq.wait("act3")
bq("s_barrier")
g.at(30, bq.ins)
g.at(49, st_check(2))
g.fill(st_final(2), start=50, end=54)
g.at(56, poll_issue(S_P3, 7))
next_tile_reads(g, 3, 0, first=41)
e = g.fill(g1_epi(1), start=3)
print("tile 2: epilogue ends at gap", e, "tail", len(g.tail))
gap_stamps(g, "t2")
P.add(g.out())
stamp("tile2")
g = g1_gaps(3)
T3S = float(OPT.get("t3s", 2.4))
e = pin_vm(g, 4, [wd_load(12), wd_load(13)], T3S)
g.at(int(OPT.get("f1", 21)), flag3(1))
g.at(48, st_check(3))
g.fill(st_final(3), start=49, end=54)
g.at(e - 1, stq("t3 pre p0") + poll_check(S_P3, 7) + stq("t3 post p0") + p3_next())
pin_vm(g, e, h_loads(0), T3S)
g.at(int(OPT.get("p1", 47)), poll_issue(S_P3, 7))
g.at(52, res_read(2))
g.at(54, res_read(3))
e = g.fill(g1_epi(2), start=2, cap=float(OPT.get("cap3", 7)))
print("tile 3: epilogue ends at gap", e, "tail", len(g.tail))
gap_stamps(g, "t3")
P.add(g.out())
stamp("tile3")
P.add(waitq("wd9") + wd_read(4) + wd_read(5))
ep = g1_epi_pk(3)
h1 = h_loads(1)
NE = int(OPT.get("ne", 0))
PC1 = poll_check(S_P3, 7) + p3_next()
F2E = int(OPT.get("f2e", 45))
ins_ = [(F2E, flag3(2))] if F2E >= 0 else []
if NE:
    P.add(sprinkle(ep, ins_ + [(45, PC1)] + [(46 + 14 * i, h1[i]) for i in range(NE)]))
else:
    P.add(sprinkle(ep, ins_) + PC1)
stamp("epi3")

OA = [8, 48]
OA = [224, 96]
RT = 176


def g2_mfma(J):
    m = sub()
    for ft in KORD:
        for rt in range(4):
            d = acc(OA[J & 1] + 4 * rt, 4)
            c = "0" if ft == 0 else d
            m(f"v_mfma_f32_16x16x32_bf16 {d}, {wdr(ft,rt)}, {hreg(J,ft)}, {c}")
    return m.ins


RTMP = [28, 32, 36, 12]


def red_write(J):
    q = sub()
    for rt in range(4):
        q(f"ds_write_b128 {v(V_RW)}, {acc(OA[J&1]+4*rt,4)} offset:{(J&1)*R_SZ + rt*1088}")
    return q.ins


def red_bar():
    q = sub()
    q("s_waitcnt lgkmcnt(0)")
    q("s_barrier")
    return q.ins


def red_read(J):
    q = sub()
    for w in range(4):
        q(f"ds_read_b128 {v(RTMP[w],4)}, {v(V_RR)} offset:{(J&1)*R_SZ + w*4352}")
    return q.ins


def red_fin(J):
    q = sub()
    a, b, c, d = RTMP
    for i in range(2):
        q(f"v_lshlrev_b32 {v(16+2*i)}, 16, {v(RESR[J]+i)}")
        q(f"v_and_b32 {v(17+2*i)}, 0xffff0000, {v(RESR[J]+i)}")
    if J == 3 and "eps" not in OPT:
        for x, y in ((a, 16), (b, c), (a, d), (a, b)):
            for i in (0, 2):
                q(f"v_pk_add_f32 {v(x+i,2)}, {v(x+i,2)}, {v(y+i,2)}")
        for i in range(2):
            q(f"v_cvt_pk_bf16_f32 {v(20+i)}, {v(a+2*i)}, {v(a+2*i+1)}")
        q(f"s_mov_b32 s{S_T0}, {(1024*(J>>1) + 128*(J&1))*896}")
        q(f"buffer_store_dwordx2 v[20:21], {v(V_OST)}, {srd(SRD_OUT)}, s{S_T0} offen {OPT.get('ost', '').replace('_', ' ')}")
        return q.ins
    for i in range(4):
        q(f"v_add_f32 {v(a+i)}, {v(a+i)}, {v(b+i)}")
    for i in range(4):
        q(f"v_add_f32 {v(c+i)}, {v(c+i)}, {v(d+i)}")
    for i in range(4):
        q(f"v_add_f32 {v(a+i)}, {v(a+i)}, {v(16+i)}")
    for i in range(4):
        q(f"v_add_f32 {v(a+i)}, {v(a+i)}, {v(c+i)}")
    if "eps" in OPT:
        for i in range(4):
            q(f"v_mul_f32 {v(a+i)}, {f32(1.0+float(OPT['eps']))}, {v(a+i)}")
    for i in range(2):
        q(f"v_cvt_pk_bf16_f32 {v(20+i)}, {v(a+2*i)}, {v(a+2*i+1)}")
    q(f"s_mov_b32 s{S_T0}, {(1024*(J>>1) + 128*(J&1))*896}")
    q(f"buffer_store_dwordx2 v[20:21], {v(V_OST)}, {srd(SRD_OUT)}, s{S_T0} offen {OPT.get('ost', '').replace('_', ' ')}")
    return q.ins


for J in range(4):
    g = Gaps(g2_mfma(J), 2)
    if J > 0:
        pin_spread(g, 4, red_write(J - 1), per=1)
        g.at(16, red_bar())
        pin_spread(g, 17, red_read(J - 1), per=1)
        g.fill(red_fin(J - 1), start=28)
    if J == 0:
        pin_vm(g, 0, h1[NE:], float(OPT.get("hs1", 3)))
        if F2E < 0:
            g.at(int(OPT.get("f2", 2)), flag3(2))
        C2 = int(OPT.get("c2", 54))
        h2 = h_loads(2)
        n2 = 0
        if C2 < 56:
            g.at(C2, poll_check2(S_P3, 7, 23, "1", f"s{S_E14}") + p3_next())
            n2 = int((55 - C2) / 3.5) + 1
            pin_vm(g, C2, h2[:n2], 3.5)
        for i, x in enumerate(wd_read(6) + wd_read(7) + wd_read(8) + wd_read(9)):
            g.at(1 + 2 * i, [x])
        g.at(int(OPT.get("p2a", 12)), poll_issue(S_P3, 7))
        g.at(int(OPT.get("p2b", 30)), poll_issue(S_P3, 23))
        g.at(int(OPT.get("f3", 36)), flag3(3))
        bq = sub()
        bq.wait("res3")
        bq("s_barrier")
        g.at(52, bq.ins)
    if J == 1:
        if C2 >= 56:
            g.at(C2 - 56, poll_check2(S_P3, 7, 23, "1", f"s{S_E14}") + p3_next())
        pin_vm(g, max(C2 - 56, 1), h2[n2:], float(OPT.get("hs", 3.5)))
        g.at(int(OPT.get("p3a", 8)), poll_issue(S_P3, 7))
        g.at(int(OPT.get("p3b", 26)), poll_issue(S_P3, 23))
        C3 = int(OPT.get("c3", 50))
        g.at(C3, poll_check2(S_P3, 7, 23, "1", f"s{S_E14}"))
        h3 = h_loads(3)
        n3 = (55 - C3) // 3
        pin_vm(g, C3 + 1, h3[:n3], 3)
    if J == 2:
        pin_vm(g, 0, h3[n3:], float(OPT.get("hs3", 2)))
    P.add(g.out())
    stamp(f"g2 tile{J}")
P.add(red_write(3))
P.add(red_bar())
P.add(red_read(3))
P.add(red_fin(3))
stamp("end")

if "hold" in OPT:
    if "cls" in OPT:
        P(f"s_and_b32 s98, s{S_W}, 7")
        P(f"s_cmp_lg_u32 s98, {OPT['cls']}")
        P("s_cbranch_scc1 L_fin")
    P("L_hold:")
    P("s_memrealtime s[98:99]")
    P("s_waitcnt lgkmcnt(0)")
    P("s_sub_u32 s98, s98, s100")
    P("s_cmp_lt_u32 s98, 4000")
    P("s_cbranch_scc1 L_hold")
P("L_fin:")
if STAMPS:
    P(f"s_lshl_b32 s{S_T0}, s{S_W}, 2")
    P(f"s_add_u32 s{S_T0}, s{S_T0}, s{S_V}")
    P(f"s_lshl_b32 s{S_T0}, s{S_T0}, 8")
    P(f"s_add_u32 s{S_T0}, s{S_T0}, {WS_DBG + 0x800000}")
    P(f"v_lshlrev_b32 v4, 2, v1")
    P(f"buffer_store_dword v255, v4, {srd(SRD_WS)}, s{S_T0} offen")
if "dbgout" in OPT:
    P(f"s_cmp_ge_u32 s{S_W}, 224")
    P("s_cbranch_scc1 L_end")
    P(f"v_readlane_b32 s{S_T0}, v255, 0")
    P(f"s_not_b32 s{S_T0}, s{S_T0}")
    P(f"v_writelane_b32 v255, s{S_T0}, 15")
    P("s_mov_b64 exec, 0xffff")
    P(f"v_lshlrev_b32 v4, 2, v1")
    P("global_atomic_umax v4, v255, s[60:61]")
P("L_end:")
P("s_endpgm")

XG = OPT.get("xg", "")
if XG:
    a_ = [k for k, i in enumerate(P.ins) if i.text == "; @ gemm1 start"][0]
    b_ = [k for k, i in enumerate(P.ins) if i.text == "; @ tile3"][0]
    seg = P.ins[a_:b_]
    if "w" in XG:
        seg = [i for i in seg if not (i.mn == "buffer_load_dwordx4" and (i.ops[0] == "v3" or i.ops[1] in ("v3", "v44")))]
    if "e" in XG:
        seg = [i for i in seg if not (i.cls in ("valu", "trans") and (i.wr & {f"v{r}" for r in range(EPT, EPT + 8)}))]
    if "b" in XG:
        seg = [i for i in seg if not (i.mn == "ds_read2st64_b32" and i.ops[1] == f"v{V_BR2}")]
    P.ins = P.ins[:a_] + seg + P.ins[b_:]
res = finalize(P.ins, verbose=True) + finalize(TAIL.ins) + finalize(SP.ins)
if "report" in OPT:
    report_waits(finalize(P.ins))
launch = f"; @launch kernel={KN} grid" if ("list" in OPT or STAMPS) else "; @launch grid"
hdr = f"""; Fused pre-LN S4D conv + GEGLU FFN, one persistent launch (generated by my own script)
{launch}=(256,1,1) block=(256,1,1) lds={LDS_SIZE}
.amdgcn_target "amdgcn-amd-amdhsa--gfx950"
.text
.globl {KN}
.p2align 12
.p2align 8
.type {KN},@function
{KN}:
"""
ftr = f"""
.p2align 8
.fill 64, 4, 0xbf800000
L_codeend:
.section .rodata,"a"
.p2align 6
.amdhsa_kernel {KN}
  .amdhsa_next_free_vgpr 512
  .amdhsa_next_free_sgpr 102
  .amdhsa_accum_offset 256
  .amdhsa_group_segment_fixed_size 0
  .amdhsa_kernarg_size 112
  .amdhsa_user_sgpr_count 2
  .amdhsa_user_sgpr_kernarg_segment_ptr 1
  .amdhsa_system_sgpr_workgroup_id_x 1
.end_amdhsa_kernel
"""
body = text_of(res)
WALKS = ([("early", "L_main", "L_walk_back")] if "w2" in OPT else []) + [("walk", "L_walk_back", "L_fin")]
body = place_pads2(hdr, body, ftr, 0x300, WALKS)
open(OUTF, "w").write(hdr + body + ftr)
src = open(__file__).read()
a = src.index("# ---------------- workspace layout")
b = src.index("# ---------------- LDS layout")
open("layout.py", "w").write(src[a:b] + "\nSTAMP_NAMES = " + repr(stamp_names) + "\nSPIN_NAMES = " + repr(spin_names) + "\n")
```

```python
import sys, math, struct
from asmgen import *

NAME = "sequential_preLN__ssm_conv_s4d__geglu_ffn__prompt"
KN = NAME + "_kernel"
OPT = {}
for a in sys.argv[1:]:
    k, _, val = a.partition("=")
    OPT[k] = val if val else True
STAMPS = "stamps" in OPT
OUTF = OPT.get("out", "k19.s")
OPT.setdefault("pfpos", "300,300")
OPT.setdefault("pa3", "84")
OPT.setdefault("w2", "b")


def f32(x):
    return "0x%08x" % struct.unpack("<I", struct.pack("<f", x))[0]


FS = 4
FREP = 0x9000
WS_EPOCH = 0
WS_F1 = 0x8000
WS_S2 = 0x58000
S2REP = 0x5000
WS_C = 0x80000
WS_UX = 0xD0000
WS_P = WS_UX + 256 * 14336
PROW = 4352
PGEN = 224 * PROW
WS_H = WS_P + 2 * PGEN
WS_WF = WS_H + 16 * 4 * 56 * 2048
WS_END = WS_WF + 392 * 4096
WS_DBG = 0x1000000
WS_SIZE = 0x2000000
LAYOUT = 5

CS = 4160
TAB_W = 14592
TAB_ROW = 272
L_KC = 58368
L_UX = 75008
L_EX = 0
L_RING = 98304
L_ACT = [0, 65536]
L_F = 131072
L_R = 65536
R_SZ = 18432
LDS_SIZE = 163840

S_W = 2
S_V = 4
S_T0, S_T1, S_T2, S_T3 = 5, 6, 7, 3
SRD_X, SRD_WS, SRD_WG, SRD_WU, SRD_WD, SRD_OUT = 8, 12, 16, 20, 24, 28
S_NONCE = 32
S_CNT = 33
S_EX = 34
S_PR, S_DSK = 64, 65
S_TB, S_FB, S_FH, S_DB = 66, 67, 68, 69
S_A, S_B, S_C, S_D = 70, 72, 74, 76
S_RING = 78
S_WOFF = 79
S_K0 = 80
S_TAB = 81
S_F3 = 82
S_F1, S_F2 = 83, 84
S_M255 = 86
S_FW, S_R2 = 88, 89
S_ACTW = 90
S_UXO = 91
S_PFB = 88
S_HR = 36
S_PA, S_P4, S_P3, S_PST, S_AB, S_WFB = 40, 41, 42, 43, 44, 45
S_E28, S_E14, S_CI = 46, 47, 85
S_F1L = 95
S_UXM = 92
S_REP = 94
S_PERM = 93
S_STAMP = 96


def srd(n):
    return f"s[{n}:{n+3}]"


def v(n, w=1):
    return f"v{n}" if w == 1 else f"v[{n}:{n+w-1}]"


def acc(n, w=1):
    return f"a{n}" if w == 1 else f"a[{n}:{n+w-1}]"


P = Prog()
TAIL = Prog()
nstamp = [0]
stamp_names = []
spin_names = []
LITE = ("start", "conv start", "genA stored", "gemm1 start", "tile3", "end")
if "dbgout" in OPT:
    LITE = ("start", "x arrived", "ln1 done", "kgen r1", "conv start", "genA stored", "gemm1 start", "tile1", "tile3", "end")


def stamp(name, p=None):
    p = P if p is None else p
    p(f"; @ {name}")
    if OPT.get("hold", "").replace("_", " ") == name:
        p(f"s_memrealtime s[100:101]")
        p("s_waitcnt lgkmcnt(0)")
    if STAMPS and ("lite" not in OPT or name in LITE):
        k = nstamp[0]
        assert k < 32
        p(f"s_memrealtime s[{S_STAMP}:{S_STAMP+1}]")
        p(f"s_memtime s[{S_STAMP+2}:{S_STAMP+3}]")
        p("s_waitcnt lgkmcnt(0)")
        p(f"v_writelane_b32 v255, s{S_STAMP}, {k}")
        p(f"v_writelane_b32 v255, s{S_STAMP+2}, {32+k}")
        nstamp[0] += 1
        stamp_names.append(name)


def stq(name):
    q = sub()
    if "dbg" in OPT:
        stamp(name, q)
    return q.ins


lblc = [0]


def label(prefix):
    lblc[0] += 1
    return f"L_{prefix}_{lblc[0]}"


def poll_issue(what, vtmp):
    q = sub()
    q(f"v_mov_b32 {v(vtmp)}, 0")
    if what == "F1":
        q(f"buffer_atomic_add {v(vtmp)}, {v(V_F1)}, {srd(SRD_WS)}, 0 offen sc0")
    else:
        q(f"buffer_atomic_add {v(vtmp)}, {v(V_PM if what == S_PA else V_P1)}, {srd(SRD_WS)}, s{what} offen sc0")
    return q.ins


def spin(t, name, done, reissue, vtag, sleep=2, exp=None):
    t(f"{name}:")
    t(f"s_mov_b32 s{S_CNT}, 0")
    t(f"{name}_l:")
    t("s_mov_b64 exec, vcc")
    t(f"s_sleep {sleep}")
    t.add(reissue)
    t("s_waitcnt vmcnt(0)")
    t(f"v_cmp_ne_u32 vcc, {exp or f's{S_NONCE}'}, {v(vtag)}")
    t("s_mov_b64 exec, -1")
    if STAMPS and "lite" in OPT:
        spin_names.append(name)
        t(f"s_add_u32 s{S_STAMP}, s{S_CNT}, 1")
        t(f"v_writelane_b32 v255, s{S_STAMP}, {10+len(spin_names)-1}")
    t(f"s_cbranch_vccz {done}")
    t(f"s_add_u32 s{S_CNT}, s{S_CNT}, 1")
    t(f"s_cmp_lt_u32 s{S_CNT}, 0x40000")
    t(f"s_cbranch_scc1 {name}_l")
    t(f"s_branch {done}")


def poll_check(what, vtmp):
    q = sub()
    slow, done = label("slow"), label("pdone")
    exp = f"s{S_NONCE}" if what == "F1" else (f"s{S_E14}" if what == S_P3 else f"s{S_E28}")
    q(f"v_cmp_ne_u32 vcc, {exp}, {v(vtmp)}")
    if what == "F1":
        q(f"s_cbranch_vccnz {slow}")
    else:
        q(f"s_and_b64 vcc, vcc, {3 if what == S_PA else 1}")
        q(f"s_cbranch_scc1 {slow}")
    q(f"{done}:")
    spin(TAIL, slow, done, poll_issue(what, vtmp), vtmp, exp=exp, sleep=1)
    return q.ins


def poll_check2(vaddr, v1, v2, mask, exp):
    q = sub()
    slow, done = label("slow"), label("pdone")
    q(f"v_cmp_ne_u32 vcc, {exp}, {v(v1)}")
    q(f"s_and_b64 vcc, vcc, {mask}")
    q(f"s_cbranch_scc0 {done}")
    q.cond(True)
    q(f"v_cmp_ne_u32 vcc, {exp}, {v(v2)}")
    q(f"s_and_b64 vcc, vcc, {mask}")
    q(f"s_cbranch_scc1 {slow}")
    q.cond(False)
    q(f"{done}:")
    spin(TAIL, slow, done, poll_issue(vaddr, v1), v1, exp=exp, sleep=1)
    return q.ins


def poll_checkn(what, regs, mask, exp):
    q = sub()
    slow, done = label("slow"), label("pdone")
    for k, r in enumerate(regs):
        q(f"v_cmp_ne_u32 vcc, {exp}, {v(r)}")
        q(f"s_and_b64 vcc, vcc, {mask}")
        q(f"s_cbranch_scc0 {done}" if k < len(regs) - 1 else f"s_cbranch_scc1 {slow}")
        q.cond(True)
    q.cond(False)
    q(f"{done}:")
    spin(TAIL, slow, done, poll_issue(what, regs[0]), regs[0], exp=exp, sleep=1)
    return q.ins


def setflag(p, soff):
    if "fst" in OPT:
        p(f"buffer_store_dword {v(V_NONCE)}, {v(V_FLG)}, {srd(SRD_WS)}, s{soff} offen sc1")
    else:
        p(f"buffer_atomic_swap {v(V_NONCE)}, {v(V_FLG)}, {srd(SRD_WS)}, s{soff} offen")


def addcnt(p, soff, vl):
    p(f"buffer_atomic_add {v(V_NONCE)}, {v(vl)}, {srd(SRD_WS)}, s{soff} offen")


def lanes_reg(p, dst, n, sh, t1=4):
    p(f"v_and_b32 {v(t1)}, {64-n}, {v(V_LANE)}")
    p(f"v_lshlrev_b32 {v(t1)}, 25, {v(t1)}")
    p(f"v_lshl_add_u32 {v(dst)}, {v(V_LANE)}, {sh}, {v(t1)}")


def walk(name):
    P.raw("s_mov_b64 exec, 0")
    for c in range(3):
        P.raw(f"s_cmp_eq_u32 s{S_V}, {c}")
        P.raw(f"s_cbranch_scc1 L_{name}{c}")
    P.raw(f"s_branch L_{name}3")
    P(f"L_{name}_back:")
    P.raw("s_mov_b64 exec, -1")


def waitq(tok):
    q = sub()
    q.wait(tok)
    return q.ins


def cmul(p, z, x, y):
    p(f"v_pk_mul_f32 {v(z,2)}, {v(x,2)}, {v(y,2)} op_sel:[0,0] op_sel_hi:[0,1]")
    p(f"v_pk_fma_f32 {v(z,2)}, {v(x,2)}, {v(y,2)}, {v(z,2)} op_sel:[1,1,0] op_sel_hi:[1,0,1] neg_lo:[1,0,0]")


def round_bf16(p, dst, src):
    p(f"v_cvt_pk_bf16_f32 {v(dst)}, {v(src)}, {v(src)}")
    p(f"v_and_b32 {v(dst)}, 0xffff0000, {v(dst)}")


V_LANE, V_NONCE, V_L16 = 1, 2, 3
V_FLG = 8
V_W = 9
V_TRA = 13
V_TA, V_TB, V_TW = 14, 15, 16
GA = 17
V_F1, V_UXL = 26, 27
V_KA = 28
V_UA = 32
V_EU, V_EXP, V_EXW, V_EXR, V_FL2 = 36, 37, 38, 39, 40
V_GW, V_GX, V_GR, V_S3, V_DSK = 240, 241, 242, 243, 244
V_EU1 = 41
V_DT = 42
V_PM = 43
V_P1 = 252
PR = 44
V_PF = 254

LOG2E = 1.4426950408889634

if OPT.get("hold") == "entry":
    P("s_memrealtime s[100:101]")
P(f"s_cmp_ge_u32 s{S_W}, 256")
P("s_cbranch_scc1 L_end")
P(f"s_load_dwordx16 s[36:51], s[0:1], 0")
if "ksplit" not in OPT:
    P(f"s_load_dwordx8 s[52:59], s[0:1], 64")
    P(f"s_load_dwordx4 s[60:63], s[0:1], 96")
if "nocpf" not in OPT:
    P(f"s_getpc_b64 s[{S_B}:{S_B+1}]")
    P("L_pc:")
    P(f"s_bfe_u32 s{S_T2}, s{S_W}, 0x30003")
    P(f"s_mul_i32 s{S_T2}, s{S_T2}, ((L_codeend-L_pc)/1024)*128")
    P(f"v_cmp_gt_u32 vcc, (L_codeend-L_pc)/1024, v0")
    P(f"s_add_u32 s{S_B}, s{S_B}, s{S_T2}")
    P(f"s_addc_u32 s{S_B+1}, s{S_B+1}, 0")
    P(f"v_lshlrev_b32 v6, 7, v0")
    P(f"s_and_saveexec_b64 s[{S_A}:{S_A+1}], vcc")
    P("s_cbranch_execz L_nocpf")
    P.cond(True)
    P(f"v_mov_b32 v7, s{S_B+1}")
    P(f"v_add_co_u32 v6, vcc, s{S_B}, v6")
    P(f"v_addc_co_u32 v7, vcc, 0, v7, vcc")
    P(f"global_load_dword v251, v[6:7], off")
    P.cond(False)
    P("L_nocpf:")
    P("s_mov_b64 exec, -1")
if STAMPS:
    P("v_mov_b32 v255, 0")
P(f"v_and_b32 {v(V_LANE)}, 63, v0")
P(f"v_lshrrev_b32 v4, 6, v0")
P(f"v_lshlrev_b32 {v(V_L16)}, 4, {v(V_LANE)}")
P(f"v_readfirstlane_b32 s{S_V}, v4")
P(f"v_mov_b32 v5, 0x7ff00000")
P(f"v_cmp_gt_u32 vcc, 56, {v(V_LANE)}")
P(f"s_lshl_b32 s{S_T0}, s{S_W}, 2")
P(f"s_add_u32 s{S_T0}, s{S_T0}, s{S_V}")
P(f"v_cndmask_b32 v4, v5, {v(V_L16)}, vcc")
P(f"s_mul_i32 s{S_T0}, s{S_T0}, 1792")
P(f"s_and_b32 s{S_T1}, s{S_W}, 7")
P(f"s_mul_i32 s{S_T1}, s{S_T1}, 28")
P(f"s_lshr_b32 s{S_T2}, s{S_W}, 3")
P(f"s_add_u32 s{S_T1}, s{S_T1}, s{S_T2}")
P(f"s_min_u32 s{S_PR}, s{S_T1}, 223")
P(f"s_lshl_b32 s{S_T2}, s{S_PR}, 10")
P(f"v_lshl_add_u32 v6, v0, 2, s{S_T2}")
P(f"v_mov_b32 v7, 0")
P(f"s_lshl_b32 s{S_T1}, s{S_PR}, 2")
P(f"v_mov_b32 v56, s{S_T1}")
P(f"s_mov_b32 s{SRD_X+2}, 1835008")
P(f"s_mov_b32 s{SRD_X+3}, 0x00020000")
P(f"s_mov_b32 s{SRD_WS+2}, {WS_SIZE}")
P(f"s_mov_b32 s{SRD_WS+3}, 0x00020000")
P("s_waitcnt lgkmcnt(0)")
stamp("start")
P(f"s_mov_b64 s[{SRD_X}:{SRD_X+1}], s[36:37]")
XR = 48
P(f"buffer_load_dwordx4 {v(XR,4)}, v4, {srd(SRD_X)}, s{S_T0} offen")
P(f"buffer_load_dwordx4 {v(XR+4,4)}, v4, {srd(SRD_X)}, s{S_T0} offen offset:896")
if "ksplit" in OPT:
    P(f"s_load_dwordx8 s[52:59], s[0:1], 64")
    P(f"s_load_dwordx4 s[60:63], s[0:1], 96")
for r, src, sz in ((SRD_WG, 52, 1605632), (SRD_WU, 54, 1605632), (SRD_WD, 56, 1605632), (SRD_OUT, 58, 1835008)):
    P(f"s_mov_b32 s{r+2}, {sz}")
    P(f"s_mov_b32 s{r+3}, 0x00020000")
P(f"v_cmp_lt_u32 vcc, {int(OPT.get('nrep', 4))+1}, {v(V_LANE)}")
P(f"v_mul_u32_u24 v4, {FREP}, {v(V_LANE)}")
P(f"s_lshr_b32 s{S_T0}, s{S_W}, 3")
P(f"s_mul_i32 s{S_T1}, s{S_T0}, 37")
P(f"v_cndmask_b32 {v(V_FLG)}, v4, v5, vcc")
P(f"s_lshr_b32 s{S_T1}, s{S_T1}, 8")
P(f"s_mul_i32 s{S_T2}, s{S_T1}, 7")
P(f"s_sub_u32 s{S_DB}, s{S_T0}, s{S_T2}")
P(f"s_and_b32 s{S_FH}, s{S_W}, 1")
P(f"s_and_b32 s{S_T2}, s{S_W}, 6")
P(f"s_lshl_b32 s{S_T2}, s{S_T2}, 1")
P(f"s_add_u32 s{S_TB}, s{S_T2}, s{S_T1}")
P(f"s_mul_i32 s{S_FB}, s{S_FH}, 7")
P(f"s_add_u32 s{S_FB}, s{S_FB}, s{S_DB}")
P(f"s_lshl_b32 s{S_RING}, s{S_V}, 13")
P(f"s_add_u32 s{S_RING}, s{S_RING}, {L_RING}")
P(f"s_mul_i32 s{S_TAB}, s{S_V}, {TAB_W}")
for _ in range(int(OPT.get("xd", 0))):
    P("s_nop 7")
for i in range(4):
    P(f"global_load_dword {v(PR+i)}, v6, s[{38+2*i}:{39+2*i}]")
P(f"global_load_dword {v(V_DT)}, v56, s[46:47]")
P(f"global_load_dword {v(V_DSK)}, v56, s[48:49]")
if "ksplit" in OPT:
    P("s_waitcnt lgkmcnt(0)")
P(f"s_mov_b64 s[{SRD_WS}:{SRD_WS+1}], s[62:63]")
for r, src in ((SRD_WG, 52), (SRD_WU, 54), (SRD_WD, 56), (SRD_OUT, 58)):
    P(f"s_mov_b64 s[{r}:{r+1}], s[{src}:{src+1}]")
P(f"buffer_load_dword {v(V_NONCE)}, v7, {srd(SRD_WS)}, 0 offen sc1")
NOPF = "nopf" in OPT
if not NOPF:
    P(f"s_bitcmp1_b32 s{S_V}, 0")
    P(f"s_cselect_b64 s[{S_PFB}:{S_PFB+1}], s[54:55], s[52:53]")
    P(f"s_lshr_b32 s{S_T0}, s{S_V}, 1")
    P(f"s_lshl1_add_u32 s{S_T2}, s{S_W}, s{S_T0}")
    EPF = int(OPT.get("epf", 7))
    P(f"s_mul_i32 s{S_T0}, s{S_T2}, {EPF*128}")
    if EPF == 25:
        P(f"s_min_u32 s{S_T0}, s{S_T0}, {(12544-25)*128}")
    P(f"v_min_u32 v4, {EPF-1}, {v(V_LANE)}")
    P(f"v_lshl_add_u32 v248, v4, 7, s{S_T0}")
    PFW = sub()
    PFW(f"global_load_dword {v(V_PF)}, v248, s[{S_PFB}:{S_PFB+1}]")
    PFD = sub()
    PFD(f"global_load_dword v253, v245, s[56:57]")
    if "pfpos" not in OPT:
        P.add(PFW.ins)
    P(f"s_mul_i32 s{S_T0}, s{S_W}, 49")
    P(f"s_mul_i32 s{S_T2}, s{S_V}, 12")
    P(f"s_add_u32 s{S_T0}, s{S_T0}, s{S_T2}")
    P(f"v_min_u32 v4, 12, {v(V_LANE)}")
    P(f"v_add_lshl_u32 v245, v4, s{S_T0}, 7")
    if "nowd" in OPT:
        P(f"v_mov_b32 v245, 0")
    if "wdlate" not in OPT and "pfpos" not in OPT:
        P.add(PFD.ins)
    PF_AT = len(P.ins)
if "xprobe" in OPT:
    stamp("issued")
    P(f"v_mov_b32 v4, {v(XR+4)}")
    stamp("x here")
    P(f"v_mov_b32 v4, {v(V_DSK)}")
    stamp("par here")
P(f"v_cmp_gt_u32 vcc, 32, {v(V_LANE)}")
P(f"v_mul_u32_u24 v4, 37, {v(V_LANE)}")
P(f"v_lshrrev_b32 v4, 9, v4")
P(f"v_cndmask_b32 {v(V_S3)}, v5, {v(V_L16)}, vcc")
P(f"v_mul_u32_u24 v4, {TAB_W-14*272}, v4")
P(f"v_mul_u32_u24 v6, 272, {v(V_LANE)}")
P(f"s_lshl_b32 s{S_T0}, s{S_V}, 2")
P(f"v_add3_u32 {v(V_GW)}, v4, v6, s{S_T0}")
P(f"v_add_u32 {v(V_GX)}, s{S_T0}, {v(V_GW)}")
P(f"s_lshl_b32 s{S_UXM}, s{S_V}, 12")
P(f"s_add_u32 s{S_UXM}, s{S_UXM}, {L_UX+2048}")
P(f"v_and_b32 v4, 48, {v(V_LANE)}")
P(f"v_add3_u32 {v(V_GR)}, v4, {v(V_L16)}, s{S_TAB}")
P(f"v_and_b32 v4, 31, {v(V_LANE)}")
P(f"v_lshrrev_b32 v6, 5, {v(V_LANE)}")
P(f"v_lshl_add_u32 v6, v6, 4, s{S_TAB}")
P(f"v_and_b32 v7, 28, {v(V_LANE)}")
P(f"v_lshl_add_u32 v7, v4, 5, v7")
P(f"v_add_u32 {v(V_TW)}, v6, v7")
P(f"v_mul_u32_u24 v7, {TAB_ROW}, v4")
P(f"v_add_u32 {v(V_TB)}, v6, v7")
P(f"v_min_u32 v4, 20, v4")
P(f"v_mul_u32_u24 v7, {TAB_ROW}, v4")
P(f"v_add_u32 {v(V_TA)}, v6, v7")
P(f"s_lshl2_add_u32 s{S_CI}, s{S_W}, s{S_V}")
P(f"s_lshl_b32 s{S_CI}, s{S_CI}, 8")
P(f"s_add_u32 s{S_CI}, s{S_CI}, {WS_C}")
P(f"v_lshlrev_b32 {v(V_P1)}, 25, {v(V_LANE)}")
P(f"s_mul_i32 s{S_UXO}, s{S_W}, 14336")
P(f"s_mul_i32 s{S_T0}, s{S_V}, 3584")
P(f"s_add_u32 s{S_UXO}, s{S_UXO}, s{S_T0}")
P(f"s_add_u32 s{S_UXO}, s{S_UXO}, {WS_UX}")
P(f"s_lshl_b32 s{S_T0}, s{S_V}, 8")
P(f"s_add_u32 s{S_T0}, s{S_T0}, s{S_W}")
P(f"s_mul_i32 s{S_T0}, s{S_T0}, {FS}")
P(f"s_add_u32 s{S_F1}, s{S_T0}, {WS_F1}")
P(f"v_lshrrev_b32 v4, 2, {v(V_LANE)}")
P(f"v_mul_u32_u24 v4, 3584, v4")
P(f"v_and_b32 v6, 3, {v(V_LANE)}")
P(f"v_lshl_add_u32 v4, v6, 4, v4")
P(f"s_lshl_b32 s{S_T0}, s{S_FB}, 8")
P(f"s_lshl_b32 s{S_T1}, s{S_V}, 6")
P(f"s_add_u32 s{S_T0}, s{S_T0}, s{S_T1}")
P(f"v_add_u32 {v(V_W)}, s{S_T0}, v4")
if "fakerot" in OPT:
    P(f"s_and_b32 s{S_T2}, s{S_TB}, {OPT['fakerot']}")
    P(f"s_mul_i32 s{S_T2}, s{S_T2}, {int(OPT.get('rs', 4))*57344//4}")
    P(f"v_add_u32 {v(V_W)}, s{S_T2}, {v(V_W)}")
if "fake128" in OPT:
    P(f"v_lshrrev_b32 v4, 3, {v(V_LANE)}")
    P(f"v_mul_u32_u24 v4, 3584, v4")
    P(f"v_and_b32 v7, 0x70, {v(V_L16)}")
    P(f"s_and_b32 s{S_T0}, s{S_T0}, 0xffffff80")
    P(f"s_and_b32 s{S_T2}, s{S_V}, 1")
    P(f"s_mul_i32 s{S_T2}, s{S_T2}, {8*3584}")
    P(f"s_add_u32 s{S_T0}, s{S_T0}, s{S_T2}")
    P(f"v_add3_u32 {v(V_W)}, v4, v7, s{S_T0}")
for k in range(1, 4):
    P(f"v_add_u32 {v(V_W+k)}, {k*(57344-1024)}, {v(V_W)}")
SETUP_A = len(P.ins)
P(f"v_and_b32 v4, 32, {v(V_LANE)}")
P(f"v_lshlrev_b32 v4, 4, v4")
P(f"v_and_b32 v7, 12, {v(V_LANE)}")
P(f"v_lshl_add_u32 v4, v7, 4, v4")
P(f"v_and_b32 v7, 16, {v(V_LANE)}")
P(f"v_lshl_add_u32 v4, v7, 1, v4")
P(f"v_lshl_add_u32 v4, v6, 3, v4")
P(f"v_add_u32 {v(V_TRA)}, s{S_RING}, v4")
P(f"s_mov_b32 s{S_K0}, {L_KC+4096-L_UX}")
P(f"s_movk_i32 s{S_T2}, 128")
P(f"s_bfe_u32 s{S_T0}, s{S_W}, 0x20001")
P(f"s_lshl_b32 s{S_T0}, s{S_T0}, 10")
P(f"s_lshr_b32 s{S_F2}, s{S_T0}, 2")
NREP = int(OPT.get("nrep", 4))
P(f"s_bfe_u32 s{S_REP}, s{S_W}, {hex((NREP.bit_length()-1)*65536+3)}")
P(f"s_sub_u32 s{S_F1L}, s{S_FH}, s{S_REP}")
P(f"s_add_u32 s{S_F1L}, s{S_F1L}, {NREP}")
P(f"s_mul_i32 s{S_F1L}, s{S_F1L}, {FREP}")
P(f"s_mul_i32 s{S_REP}, s{S_REP}, {FREP}")
P(f"s_add_u32 s{S_REP}, s{S_REP}, {WS_F1}")
P(f"s_add_u32 s{S_T0}, s{S_T0}, s{S_REP}")
P(f"v_lshl_add_u32 {v(V_F1)}, v0, 2, s{S_T0}")
P(f"v_lshrrev_b32 v4, 2, {v(V_LANE)}")
P(f"v_add_u32 v4, s{S_T1}, v4")
P(f"v_mul_u32_u24 v7, 14336, v4")
P(f"v_lshrrev_b32 v4, 4, {v(V_LANE)}")
P(f"v_xor_b32 v6, v6, v4")
P(f"v_lshl_add_u32 v7, v6, 4, v7")
P(f"s_lshl_b32 s{S_T0}, s{S_PR}, 6")
P(f"s_add_u32 s{S_T0}, s{S_T0}, {WS_UX}")
P(f"v_add_u32 {v(V_UXL)}, s{S_T0}, v7")
P(f"v_bfe_u32 v6, {v(V_LANE)}, 1, 2")
P(f"v_mul_u32_u24 v6, {CS}, v6")
P(f"v_and_b32 v7, 16, {v(V_L16)}")
P(f"v_add3_u32 v6, v6, v7, s{S_K0}")
P(f"v_lshlrev_b32 v7, 4, v0")
P(f"v_cmp_gt_u32 vcc, s{S_T2}, v0")
P(f"v_mov_b32 v56, 0")
P(f"v_mov_b32 v57, 0")
P(f"v_cndmask_b32 v6, v6, v7, vcc")
P(f"v_mov_b32 v58, 0")
P(f"v_mov_b32 v59, 0")
P(f"v_add_u32 v6, {L_UX}, v6")
P(f"ds_write_b128 v6, v[56:59]")
P(f"v_lshlrev_b32 v4, 3, v0")
P(f"v_sub_u32 v4, 2047, v4")
P(f"v_cvt_f32_i32 v4, v4")
P(f"v_mov_b32 v60, 1028")
P(f"v_cmp_eq_u32 vcc, 0, v0")
for e in range(0, 10, 2):
    P(f"v_add_f32 v6, {f32(-float(e))}, v4")
    if e < 8:
        P(f"v_add_f32 v7, {f32(-float(e+1))}, v4")
    P(f"v_cvt_pk_bf16_f32 v6, v6, v7")
    for h in range(2):
        if e + h > 8:
            continue
        d = GA + e + h
        if h == 0:
            P(f"v_lshlrev_b32 v7, 16, v6")
        else:
            P(f"v_and_b32 v7, 0xffff0000, v6")
        P(f"v_cvt_u32_f32 v7, v7")
        if e + h < 4:
            P(f"v_cndmask_b32 v7, v7, v60, vcc")
        P(f"v_lshrrev_b32 {v(d)}, 5, v7")
        P(f"v_add_lshl_u32 {v(d)}, {v(d)}, v7, 2")
P(f"v_mov_b32 v4, 255")
P(f"v_cmp_eq_u32 s[{S_M255}:{S_M255+1}], v4, v0")
P(f"v_and_b32 v4, 15, {v(V_LANE)}")
P(f"v_lshrrev_b32 v5, 4, {v(V_LANE)}")
P(f"v_lshl_add_u32 v6, v5, 3, v4")
P(f"v_sub_u32 v6, 39, v6")
P(f"v_and_b32 v7, 1, v6")
P(f"v_mul_u32_u24 v7, {CS-2}, v7")
P(f"v_lshl_add_u32 v6, v6, 1, v7")
P(f"s_lshr_b32 s{S_T0}, s{S_V}, 1")
P(f"s_andn2_b32 s{S_T3}, 1, s{S_V}")
P(f"s_mul_i32 s{S_T2}, s{S_T0}, {2*CS}")
P(f"s_lshl_b32 s{S_T1}, s{S_T3}, 8")
P(f"s_add_u32 s{S_T2}, s{S_T2}, s{S_T1}")
P(f"s_add_u32 s{S_T2}, s{S_T2}, {L_KC}")
P(f"v_add_u32 {v(V_KA+3)}, s{S_T2}, v6")
for k in range(3):
    P(f"v_add_u32 {v(V_KA+k)}, {64*(48-16*k)}, {v(V_KA+3)}")
P(f"v_lshlrev_b32 v6, 1, v4")
P(f"v_sub_u32 v6, v6, v5")
P(f"s_lshl4_add_u32 s{S_T1}, s{S_T3}, 17")
P(f"v_add_u32 v6, s{S_T1}, v6")
P(f"s_mov_b32 s{S_T2}, {L_UX}")
for rr in range(4):
    P(f"v_bfe_u32 v7, v6, 2, 2")
    P(f"v_xor_b32 v7, s{S_T0}, v7")
    P(f"v_lshl_add_u32 v7, v6, 2, v7")
    P(f"v_lshl_add_u32 {v(V_UA+rr)}, v7, 4, s{S_T2}")
    if rr < 3:
        P(f"v_subrev_u32 v6, 4, v6")
EB = sub()
if "nomv" not in OPT:
    EB(f"v_and_b32 v4, 15, {v(V_LANE)}")
    EB(f"v_lshrrev_b32 v5, 4, {v(V_LANE)}")
EB(f"v_lshrrev_b32 v6, 1, v5")
EB(f"v_lshl_add_u32 v6, v4, 1, v6")
EB(f"s_lshl_b32 s{S_T2}, s{S_V}, 11")
EB(f"s_add_u32 s{S_T2}, s{S_T2}, {L_UX+2048}")
EB(f"v_lshl_add_u32 v6, v6, 6, s{S_T2}")
EB(f"v_bfe_u32 v4, v4, 1, 2")
EB(f"v_and_b32 v5, 1, v5")
EB(f"v_lshl_add_u32 v247, v4, 4, v6")
EB(f"v_lshl_add_u32 {v(V_EU)}, v5, 3, v247")
EB(f"v_xor_b32 {v(V_EU1)}, 16, {v(V_EU)}")
EB(f"v_or_b32 v5, 2, v5")
EB(f"v_xor_b32 v4, v4, v5")
EB(f"v_lshl_add_u32 {v(V_EXP)}, v4, 4, v6")
if "nomv" in OPT:
    P.add(EB.ins)
P(f"s_mul_i32 s{S_ACTW}, s{S_V}, 7168")
P(f"v_add_u32 {v(V_EXR)}, s{S_ACTW}, {v(V_L16)}")
P(f"v_lshlrev_b32 {v(V_EXW)}, 4, v0")
P(f"s_mul_i32 s{S_PST}, s{S_PR}, {PROW}")
P(f"s_add_u32 s{S_PST}, s{S_PST}, {WS_P}")
CB = sub()
lanes_reg(CB, V_FL2, 4, 10)
lanes_reg(CB, V_PM, 2, 12)
CB(f"s_lshl1_add_u32 s{S_T0}, s{S_V}, s{S_FH}")
CB(f"s_lshl_b32 s{S_T0}, s{S_T0}, 12")
CB(f"s_add_u32 s{S_F2}, s{S_F2}, s{S_T0}")
CB(f"s_add_u32 s{S_F2}, s{S_F2}, {WS_C}")
CB(f"s_lshr_b32 s{S_T0}, s{S_TB}, 2")
CB(f"s_bfe_u32 s{S_REP}, s{S_W}, 0x20003")
CB(f"s_lshl3_add_u32 s{S_T0}, s{S_T0}, s{S_REP}")
CB(f"s_lshl2_add_u32 s{S_T0}, s{S_T0}, s{S_V}")
CB(f"s_lshl_b32 s{S_T0}, s{S_T0}, 8")
CB(f"s_add_u32 s{S_PA}, s{S_T0}, {WS_C}")
CB(f"s_lshl2_add_u32 s{S_T2}, s{S_DB}, s{S_V}")
CB(f"s_lshl2_add_u32 s{S_T3}, s{S_T2}, s{S_REP}")
CB(f"s_lshl_b32 s{S_T3}, s{S_T3}, 8")
CB(f"s_add_u32 s{S_P4}, s{S_T3}, {WS_C + 896*256}")
CB(f"s_mul_i32 s{S_T2}, s{S_T2}, {14*4096}")
CB(f"s_add_u32 s{S_WFB}, s{S_T2}, {WS_WF}")
CB(f"s_mul_i32 s{S_T1}, s{S_V}, {56*PROW}")
CB(f"s_lshl_b32 s{S_T0}, s{S_TB}, 8")
CB(f"s_add_u32 s{S_T0}, s{S_T0}, s{S_T1}")
CB(f"s_add_u32 s{S_AB}, s{S_T0}, {WS_P}")

if "nomv" in OPT:
    P.add(CB.ins)

if "pfpos" in OPT:
    a_, b_ = [int(x) for x in OPT["pfpos"].split(",")]
    P.ins = P.ins[:PF_AT] + sprinkle(P.ins[PF_AT:], [(a_, PFW.ins), (b_, PFD.ins)])
NS = int(OPT.get("ns", 0))
if NS:
    us = []
    for n in range(NS):
        i_, k_ = n // 4, n % 4
        q = sub()
        if k_ == 0:
            q(f"s_add_u32 m0, s{S_RING}, {(4*i_ % 8) * 1024 + (4*i_ // 8) * 32768}")
            if n % 8 == 0:
                q(f"s_mov_b32 s{S_WOFF}, {(i_//2)*4*57344}")
        o = f" offset:{1024*k_}" if k_ else ""
        q(f"buffer_load_dwordx4 {v(V_W+k_)}, {srd(SRD_WU if i_ % 2 else SRD_WG)}, s{S_WOFF} offen{o} lds", tok=f"w1_{i_}")
        us.append(q.ins)
    tail_ = P.ins[SETUP_A:]
    st_ = int(OPT.get("ns0", 0))
    step = (len(tail_) - st_) / NS
    P.ins = P.ins[:SETUP_A] + sprinkle(tail_, [(int(st_ + step * n), u) for n, u in enumerate(us)])
XF = 56
DF = 72
SA = 88
if "fine" in OPT: stamp("setup done")
P(f"s_mov_b32 s{S_K0}, {f32(1.0/448)}")
P(f"v_mov_b32 v4, {f32(1e-5)}")
P("s_mov_b32 exec_hi, 0x00ffffff")
for r in range(2):
    for i in range(4):
        P(f"v_lshlrev_b32 {v(XF+8*r+2*i)}, 16, {v(XR+4*r+i)}")
        P(f"v_and_b32 {v(XF+8*r+2*i+1)}, 0xffff0000, {v(XR+4*r+i)}")
    P(f"v_readfirstlane_b32 s{(S_A, S_B)[r]}, {v(XF+8*r)}")
stamp("x arrived")
if "wdlate" in OPT and not NOPF:
    P(f"global_load_dword v253, v245, s[56:57]")
for i in range(4):
    P(f"ds_write2_b32 {v(V_GX)}, {v(XR+i)}, {v(XR+4+i)} offset0:{16*i+8} offset1:{16*i+9}")
for r, sm in ((0, S_A), (1, S_B)):
    for i in range(4):
        P(f"v_pk_add_f32 {v(XF+8*r+2*i,2)}, {v(XF+8*r+2*i,2)}, s[{sm}:{sm+1}] op_sel_hi:[1,0] neg_lo:[0,1] neg_hi:[0,1]")
for r in range(2):
    b = XF + 8 * r
    t = DF + 8 * r
    P(f"v_pk_add_f32 {v(t,2)}, {v(b,2)}, {v(b+2,2)}")
    P(f"v_pk_mul_f32 {v(t+2,2)}, {v(b,2)}, {v(b,2)}")
    P(f"v_pk_add_f32 {v(t,2)}, {v(t,2)}, {v(b+4,2)}")
    for i in range(1, 4):
        P(f"v_pk_fma_f32 {v(t+2,2)}, {v(b+2*i,2)}, {v(b+2*i,2)}, {v(t+2,2)}")
    P(f"v_pk_add_f32 {v(t,2)}, {v(t,2)}, {v(b+6,2)}")
for r in range(2):
    t = DF + 8 * r
    P(f"v_add_f32 {v(SA+r)}, {v(t)}, {v(t+1)}")
    P(f"v_add_f32 {v(SA+2+r)}, {v(t+2)}, {v(t+3)}")


def wave_sum(p, regs):
    for mod in ("row_shr:1", "row_shr:2", "row_shr:4", "row_shr:8"):
        for r in regs:
            p(f"v_add_f32_dpp {v(r)}, {v(r)}, {v(r)} {mod} row_mask:0xf bank_mask:0xf bound_ctrl:0")
    for r in regs:
        p(f"v_add_f32_dpp {v(r)}, {v(r)}, {v(r)} row_bcast:15 row_mask:0xa bank_mask:0xf")
    for r in regs:
        p(f"v_add_f32_dpp {v(r)}, {v(r)}, {v(r)} row_bcast:31 row_mask:0xc bank_mask:0xf")


wave_sum(P, [SA, SA + 2, SA + 1, SA + 3])
P(f"v_pk_mul_f32 {v(SA,2)}, {v(SA,2)}, s[{S_K0}:{S_K0+1}] op_sel_hi:[1,0]")
P(f"v_pk_fma_f32 {v(SA+2,2)}, {v(SA+2,2)}, s[{S_K0}:{S_K0+1}], v[4:5] op_sel_hi:[1,0,0]")
P(f"v_pk_fma_f32 {v(SA+2,2)}, {v(SA,2)}, {v(SA,2)}, {v(SA+2,2)} neg_lo:[1,0,0] neg_hi:[1,0,0]")
for r in range(2):
    P(f"v_max_f32 {v(SA+2+r)}, {v(SA+2+r)}, v4")
for r in range(2):
    P(f"v_rsq_f32 {v(SA+2+r)}, {v(SA+2+r)}")
P(f"v_pk_mul_f32 {v(SA,2)}, {v(SA,2)}, {v(SA+2,2)} neg_lo:[1,0] neg_hi:[1,0]")
for r, sm in ((0, S_A), (1, S_B)):
    P(f"v_readlane_b32 s{sm}, {v(SA+2+r)}, 55")
for r, sm in ((0, S_A), (1, S_B)):
    P(f"v_readlane_b32 s{sm+1}, {v(SA+r)}, 55")
for r, sm in ((0, S_A), (1, S_B)):
    for i in range(4):
        P(f"v_pk_fma_f32 {v(XF+8*r+2*i,2)}, {v(XF+8*r+2*i,2)}, s[{sm}:{sm+1}], s[{sm}:{sm+1}] op_sel:[0,0,1] op_sel_hi:[1,0,1]")
for j in range(8):
    P(f"v_cvt_pk_bf16_f32 {v(DF+j)}, {v(XF+j)}, {v(XF+8+j)}")
for i in range(4):
    P(f"ds_write2_b32 {v(V_GW)}, {v(DF+2*i)}, {v(DF+2*i+1)} offset0:{16*i} offset1:{16*i+4}")
P("s_mov_b64 exec, -1")
def kgen_head(rd):
    q = sub()
    A0 = 48 + 0
    CC = 50
    unp = (lambda d, s: q(f"v_lshlrev_b32 {v(d)}, 16, {v(s)}")) if rd == 0 else (lambda d, s: q(f"v_and_b32 {v(d)}, 0xffff0000, {v(s)}"))
    for i in range(4):
        unp(48 + i, PR + i)
    q(f"v_mul_f32 v48, {f32(LOG2E)}, v48")
    q(f"v_exp_f32 v48, v48")
    q(f"v_mul_f32 v49, v49, v249")
    q(f"v_cvt_pk_bf16_f32 v48, v48, v48")
    q(f"v_mul_f32 v50, v50, v250")
    q(f"v_and_b32 v48, 0xffff0000, v48")
    q(f"v_mul_f32 v51, v51, v250")
    q(f"v_mul_f32 v48, v48, {v(V_DT)}")
    for (z, pos) in ((52, 1), (56, 256)) if "b3" not in OPT else ((52, 1), (54, 16), (56, 256)):
        if pos == 1:
            q(f"v_fract_f32 v5, v49")
            q(f"v_exp_f32 v4, v48")
        else:
            q(f"v_mul_f32 v5, {f32(float(pos))}, v49")
            q(f"v_mul_f32 v4, {f32(float(pos))}, v48")
            q(f"v_fract_f32 v5, v5")
            q(f"v_exp_f32 v4, v4")
        q(f"v_cos_f32 {v(z)}, v5")
        q(f"v_sin_f32 {v(z+1)}, v5")
        q(f"v_mul_f32 {v(z)}, {v(z)}, v4")
        q(f"v_mul_f32 {v(z+1)}, {v(z+1)}, v4")
    return q.ins


HD = sub()
HD(f"s_lshl_b32 s{S_T0}, s{S_V}, 3")
HD(f"s_and_b32 s{S_T0}, s{S_T0}, 16")
HD(f"s_mov_b32 m0, s{S_TAB}")
HD(f"v_lshrrev_b32 v4, s{S_T0}, {v(V_DT)}")
HD(f"v_lshlrev_b32 v4, 16, v4")
HD(f"v_mul_f32 v4, {f32(LOG2E)}, v4")
HD(f"v_exp_f32 v4, v4")
HD(f"v_readfirstlane_b32 s{S_DSK}, {v(V_DSK)}")
round_bf16(HD, V_DT, 4)
HD(f"v_mul_f32 v249, 0.15915494, {v(V_DT)}")
HD(f"v_add_f32 v250, {v(V_DT)}, {v(V_DT)}")
HD(f"v_mul_f32 {v(V_DT)}, {f32(-LOG2E)}, {v(V_DT)}")
HD.add(kgen_head(0))
FILL = (CB.ins if "nomv" not in OPT else []) + HD.ins
HB, HP_ = int(OPT.get("hb", 29)), int(OPT.get("hp", 0))
if "fine" in OPT: stamp("ln1 math")
P.add(FILL[:HB])
if OPT.get("w2") == "a":
    walk("early")
P("s_waitcnt lgkmcnt(0)")
P("s_barrier")
if "fine" in OPT: stamp("ln1 barrier")
UB = 112
for j in range(4):
    P(f"ds_read_b128 {v(UB+4*j,4)}, {v(V_GR)} offset:{1088*j}")
P.add(FILL[HB:HB + HP_])
if OPT.get("w2") == "b":
    walk("early")
assert HB + HP_ >= len(FILL) - len(HD.ins)
P("s_waitcnt lgkmcnt(0)")
for j in range(4):
    P(f"buffer_store_dwordx4 {v(UB+4*j,4)}, {v(V_L16 if j < 3 else V_S3)}, {srd(SRD_WS)}, s{S_UXO} offen offset:{1024*j} sc1", tok="ux")
P(f"s_cmp_lt_u32 s{S_W}, 224")
P("s_cbranch_scc1 L_main")


def nonce_init():
    q = sub()
    q(f"v_readfirstlane_b32 s{S_NONCE}, {v(V_NONCE)}")
    q(f"s_mul_i32 s{S_NONCE}, s{S_NONCE}, 1664525")
    q(f"s_add_u32 s{S_NONCE}, s{S_NONCE}, 1013904223")
    q(f"v_mov_b32 {v(V_NONCE)}, s{S_NONCE}")
    q(f"buffer_store_dword {v(V_NONCE)}, {v(V_P1)}, {srd(SRD_WS)}, s{S_CI} offen sc1", tok="ux")
    q(f"s_add_u32 s{S_E28}, s{S_NONCE}, 28")
    q(f"s_add_u32 s{S_E14}, s{S_NONCE}, 14")
    return q.ins


P.raw(f"s_waitcnt vmcnt({(4 if NOPF else 6) + NS})")
for x in nonce_init():
    P.raw(x.text)
P.raw("s_waitcnt vmcnt(0)")
P.raw(f"buffer_atomic_swap {v(V_NONCE)}, {v(V_FLG)}, {srd(SRD_WS)}, s{S_F1} offen")
P.raw("s_branch L_spare")
P("L_main:")
stamp("ln1 done")


def wfrag(m, ks):
    return 8 * ks + 4 * m


def slotoff(slot):
    return (slot % 8) * 1024 + (slot // 8) * 32768


def w_dma(kq, m, slot, tok):
    q = sub()
    q(f"s_add_u32 m0, s{S_RING}, {slotoff(slot)}")
    if m == 0:
        q(f"s_mov_b32 s{S_WOFF}, {kq*4*57344}")
    for k in range(4):
        o = f" offset:{1024*k}" if k else ""
        q(f"buffer_load_dwordx4 {v(V_W+k)}, {srd(SRD_WU if m else SRD_WG)}, s{S_WOFF} offen{o} lds", tok=tok)
    return q.ins


def w_tr(kq, m, slot, tok=None):
    q = sub()
    for k in range(4):
        for h in range(2):
            q(f"ds_read_b64_tr_b16 {acc(wfrag(m,4*kq+k)+2*h,2)}, {v(V_TRA)} offset:{slotoff(slot+k)+256*h}", tok=tok)
    return q.ins


def batch_dma(b, tok):
    return [w_dma(2 * b + i // 2, i % 2, 4 * i, f"{tok}_{i}") for i in range(4)]


def batch_tr(b):
    o = []
    for i in range(4):
        o += w_tr(2 * b + i // 2, i % 2, 4 * i, tok=f"t{b}_{i}")
    return o


def singles(groups):
    out, cur = [], []
    for grp in groups:
        for i in grp:
            cur.append(i)
            if i.cls == "vmem":
                out.append(cur)
                cur = []
    if cur:
        out[-1] += cur
    return out


def pin_vm(g, start, groups, stride):
    k = start
    for u in singles(groups):
        g.at(int(k), u)
        k += stride
    return int(k)


def w_dma1(b, n, tok):
    i, k = n // 4, n % 4
    q = sub()
    q(f"s_add_u32 m0, s{S_RING}, {slotoff(4*i)}")
    if n % 8 == 0:
        q(f"s_mov_b32 s{S_WOFF}, {(2*b+i//2)*4*57344}")
    o = f" offset:{1024*k}" if k else ""
    if OPT.get("fk") == "same":
        q(f"buffer_load_dwordx4 {v(V_L16)}, {srd(SRD_WG)}, 0 offen{o} lds", tok=f"{tok}_{i}")
    elif OPT.get("fk") == "reg":
        q(f"buffer_load_dwordx4 a[{128+4*n}:{131+4*n}], {v(V_W+k)}, {srd(SRD_WU if i % 2 else SRD_WG)}, s{S_WOFF} offen{o}", tok=f"{tok}_{i}")
    elif OPT.get("fk") != "none":
        q(f"buffer_load_dwordx4 {v(V_W+k)}, {srd(SRD_WU if i % 2 else SRD_WG)}, s{S_WOFF} offen{o} lds", tok=f"{tok}_{i}")
    q(f"s_mov_b32 m0, s{S_TAB}")
    return q.ins


KD = 176
FR = 192
FR = 112


WRI = "ds_write_b32 v246," if "plainw" in OPT else "ds_write_addtid_b32"


def kgen_body(rd):
    names = {"G0": 50, "E1": 52, "E16": 54, "E256": 56}
    nxt = [58]
    chunks = []
    cur = sub()
    wr = sub()
    pk = [0]
    PK = 192

    def new(n):
        names[n] = nxt[0]
        nxt[0] += 2
        assert nxt[0] <= 104
        return names[n]

    def out(kind, row, z):
        t = PK + pk[0] % 16
        pk[0] += 1
        if kind == "B":
            cur(f"v_cvt_pk_bf16_f32 {v(t)}, {v(z)}, {v(z+1)}")
            wr(f"{WRI} {v(t)} offset:{row*TAB_ROW}")
        else:
            cur(f"v_cvt_pk_bf16_f32 {v(t)}, {v(z)}, -{v(z+1)}")
            wr(f"{WRI} {v(t)} offset:{(32+row)*TAB_ROW}")
        if len(wr.ins) >= GROUP:
            flush()

    def flush():
        nonlocal cur, wr
        chunks.append(cur.ins + wr.ins)
        cur = sub()
        wr = sub()

    sc = [0]

    def mul(n, a, b, kind=None, row=None):
        if n is None:
            z = 104 + 2 * (sc[0] % 4)
            sc[0] += 1
        else:
            z = new(n)
        cmul(cur, z, names[a], names[b])
        if kind:
            out(kind, row, z)

    GROUP = int(OPT.get("kgroup", 6))
    if rd == 0:
        t = PK + pk[0]
        pk[0] += 1
        cur(f"v_mov_b32 {v(t)}, 0x3f80")
        wr(f"{WRI} {v(t)}")
    out("A", 0, names["G0"])
    mul("E2", "E1", "E1")
    mul("G1", "G0", "E256", "A", 8)
    mul("E512", "E256", "E256")
    mul("a1", "G0", "E1", "A", 1)
    mul("E4", "E2", "E2")
    mul("G2", "G0", "E512", "A", 10)
    mul("G3", "G1", "E512", "A", 11)
    mul("E1024", "E512", "E512")
    mul("E8", "E4", "E4", "B", 1)
    mul("a2", "G0", "E2", "A", 2)
    if "b3" in OPT:
        out("B", 2, names["E16"])
    else:
        cmul(cur, names["E16"], names["E8"], names["E8"])
        out("B", 2, names["E16"])
    mul("a3", "a1", "E2", "A", 3)
    mul("E32", "E16", "E16", "B", 4)
    mul("b2", "G1", "E2", "A", 9)
    mul("E64", "E32", "E32", "B", 8)
    mul("E48", "E32", "E16", "B", 6)
    mul("G4", "G0", "E1024", "A", 16)
    mul("E128", "E64", "E64", "B", 16)
    mul("E24", "E16", "E8", "B", 3)
    mul("E40", "E32", "E8", "B", 5)
    mul("E56", "E48", "E8", "B", 7)
    mul("E192", "E128", "E64", "B", 24)
    for row, a in ((4, "G0"), (5, "a1"), (6, "a2"), (7, "a3"), (12, "G1"), (13, "b2"), (14, "G2"), (15, "G3")):
        mul(None, a, "E4", "A", row)
    for row, a in ((17, "G1"), (18, "G2"), (19, "G3"), (20, "G4")):
        mul(None, a, "E1024", "A", row)
    for b2, nb in ((1, "E64"), (2, "E128"), (3, "E192")):
        for b1 in range(1, 8):
            mul(None, f"E{8*b1}", nb, "B", 8 * b2 + b1)
    if wr.ins or cur.ins:
        flush()
    return chunks


def kgen_reads():
    q = sub()
    for s in range(8):
        q(f"ds_read_b128 {v(FR+8*s,4)}, {v(V_TA)} offset:{32*TAB_ROW+32*s}")
        q(f"ds_read_b128 {v(FR+8*s+4,4)}, {v(V_TB)} offset:{32*s}")
    return q.ins


def kgen_mfma(rd):
    q = sub()
    for s in range(8):
        c = "0" if (rd == 0 and s == 0) else v(KD, 16)
        q(f"v_mfma_f32_32x32x16_bf16 {v(KD,16)}, {v(FR+8*s,4)}, {v(FR+8*s+4,4)}, {c}")
    return q.ins


P.add(FILL[HB + HP_:])
P.add(nonce_init())
ch = kgen_body(0)
fl = sub()
fl.wait("ux")
setflag(fl, S_F1)
nd = NS
FLAGAT = int(OPT.get("flagat", 5))
D0, DM, D1 = OPT.get("dsch", "011111000,2,111111111").split(",")


def dmas(n):
    global nd
    o = []
    for k in range(n):
        u = w_dma1(0, nd, "w1")
        if k and nd % 4:
            o = o[:-1] + u[1:]
        elif k:
            o = o[:-1] + u
        else:
            o = u
        nd += 1
    return o


for i, c in enumerate(ch):
    P.add(c)
    P.add(dmas(int(D0[i])))
    if i == FLAGAT:
        if "fine" in OPT: stamp("pre flag1")
        P.add(fl.ins)
        if "fine" in OPT: stamp("post flag1")
P.add(kgen_reads())
g = Gaps(kgen_mfma(0), 7)
for k in range(int(DM)):
    g.at(2 * k, dmas(1))
h1_ = kgen_head(1)
NH = int(OPT.get("nh", 12))
P.add(h1_[:NH])
g.fill(h1_[NH:], cap=5)
P.add(g.out())
stamp("kgen r0")
ch = kgen_body(1)
POLLAT = int(OPT.get("pollat", 5))
for i, c in enumerate(ch):
    P.add(c)
    P.add(dmas(int(D1[i])))
    if i == POLLAT:
        if "f1at" not in OPT:
            P(f"buffer_load_dword v6, {v(V_F1)}, {srd(SRD_WS)}, s{S_F1L} offen sc1")
        else:
            P.add(poll_issue("F1", 6))
assert nd == 16
P.add(kgen_reads())
if "fine" in OPT: stamp("pre poll1")
P.add(poll_check("F1", 6))
if "fine" in OPT: stamp("post poll1")
g = Gaps(kgen_mfma(1), 6)
P(f"s_mov_b32 m0, s{S_UXM}")
for j in range(4):
    q = sub()
    q(f"s_mov_b32 s{S_T0}, {j*(16*14336-1024)}")
    o = f" offset:{1024*j}" if j else ""
    q(f"buffer_load_dwordx4 {v(V_UXL)}, {srd(SRD_WS)}, s{S_T0} offen{o} sc1 lds", tok="uxl")
    if j == 0:
        P.add(q.ins)
    else:
        g.at(2 * j - 2, q.ins)
tr1 = batch_tr(0)
P.wait("w1_2")
for k in range(8):
    g.at(k, tr1[3 * k:3 * k + 3])
P.add(g.out())
stamp("kgen r1")
b2 = batch_dma(1, "w2")
b2[0] = waitq("t0_0") + b2[0]
b2[3] = waitq("t0_3") + b2[3]
b2 = singles(b2)
P.add(b2.pop(0))
P(f"s_lshl_b32 s{S_C}, s{S_DSK}, 16")
P(f"s_and_b32 s{S_D}, s{S_DSK}, 0xffff0000")
P(f"v_add_u32 v7, {2*CS}, {v(V_EXW)}")
P(f"v_mov_b32 {v(V_NONCE)}, 1")
toff = {0: (0, 0), 1: (0, 1), 2: (0, 2), 3: (0, 3), 4: (1, 0), 5: (1, 2), 6: (2, 0), 7: (3, 0), 8: (4, 0), 9: (5, 0), 10: (6, 0), 11: (7, 0)}
P(f"ds_write2_b32 {v(V_TW)}, {v(KD)}, {v(KD+1)} offset0:0 offset1:1")
P(f"ds_write2_b32 {v(V_TW)}, {v(KD+2)}, {v(KD+3)} offset0:2 offset1:3")
for j in range(4, 12):
    qq, r = toff[j]
    P(f"ds_write_b32 {v(V_TW)}, {v(KD+j)} offset:{4*(r + 264*qq)}")
P.add(b2.pop(0))
P("s_waitcnt lgkmcnt(0)")
P("s_barrier")
if "fine" in OPT: stamp("T barrier")
EG = 208
for c2 in range(2):
    for e in range(9):
        P(f"ds_read2st64_b32 {v(EG+18*c2+2*e,2)}, {v(GA+e)} offset0:{114*c2} offset1:{114*c2+57}", tok=f"g{c2}")
P.add(b2.pop(0))
if "nomv" not in OPT:
    P.add(EB.ins)
P.add(b2.pop(0))
KO = 192
VB = 48


def bfrag(rr, e):
    return VB + 32 * rr + 4 * e


def b_loads(lo, hi):
    z = sub()
    for rr in range(4):
        for a in range(lo, hi):
            z(f"ds_read_b128 {v(bfrag(rr,a),4)}, {v(V_UA+rr)} offset:{2048*a}")
    return z.ins


for c2 in range(2):
    b = EG + 18 * c2
    P.wait(f"g{c2}")
    for e in range(9):
        P(f"v_add_f32 {v(b+2*e)}, {v(b+2*e)}, {v(b+2*e+1)}")
    P(f"v_cndmask_b32 {v(b+16)}, {v(b+16)}, 0, s[{S_M255}:{S_M255+1}]")
    for s_ in range(2):
        o = KO + 8 * c2 + 4 * s_
        for i in range(4):
            P(f"v_cvt_pk_bf16_f32 {v(o+i)}, {v(b+2*(s_+2*i))}, {v(b+2*(s_+2*i+1))}")
    for s_ in range(2):
        P(f"ds_write_b128 {v(7 if c2 else V_EXW)}, {v(KO+8*c2+4*s_,4)} offset:{L_KC+s_*CS}", tok="kc")
    P.add(b2.pop(0))
if "dumpk" in OPT:
    P(f"s_lshl_b32 s{S_T0}, s{S_W}, 13")
    P(f"s_add_u32 s{S_T0}, s{S_T0}, {WS_DBG}")
    P(f"buffer_store_dwordx4 {v(KO,4)}, {v(V_EXW)}, {srd(SRD_WS)}, s{S_T0} offen")
    P(f"s_add_u32 s{S_T0}, s{S_T0}, 4096")
    P(f"buffer_store_dwordx4 {v(KO+8,4)}, {v(V_EXW)}, {srd(SRD_WS)}, s{S_T0} offen")
stamp("expanded")
P.wait("uxl")
P.wait("kc")
P("s_barrier")
stamp("conv start")

CA = [176, 192]
ET = 208


def afrag(rr, a):
    return 128 + 32 * rr + 4 * a


def a_loads(rr, lo, hi):
    z = sub()
    for a in range(lo, hi):
        k = a // 2
        off = 16 * (11 - rr - 8 * (a - 2 * k))
        z(f"ds_read2_b32 {acc(afrag(rr,a),2)}, {v(V_KA+k)} offset0:{off} offset1:{off+1}")
        z(f"ds_read2_b32 {acc(afrag(rr,a)+2,2)}, {v(V_KA+k)} offset0:{off+2} offset1:{off+3}")
    return z.ins


def conv_mfmas(gen):
    m = sub()
    first = set()
    na = 4 if gen == 0 else 8
    order = []
    for rr in range(4):
        pairs = [(a, e) for a in range(na) for e in range(na) if 4 * gen <= a + e < 4 * gen + 4]
        pairs.sort(key=(lambda ae: (max(ae), ae)) if rr < 3 else (lambda ae: (ae[0] + ae[1], ae)))
        order += [(rr, a, e) for a, e in pairs]
    if gen == 1:
        order.sort(key=lambda t: (0 if max(t[1], t[2]) < 4 else 1))
    for rr, a, e in order:
        c = a + e - 4 * gen
        d = CA[gen] + 4 * c
        cc = v(d, 4) if c in first else "0"
        first.add(c)
        m(f"v_mfma_f32_16x16x32_bf16 {v(d,4)}, {acc(afrag(rr,a),4)}, {v(bfrag(rr,e),4)}, {cc}")
    return m.ins


UU, XX, YY, TT, WW, HO = ET, ET + 4, ET + 8, ET + 24, ET + 32, ET + 36


def conv_pre(gen):
    q = sub()
    q(f"ds_read_b64 {v(UU,2)}, {v(V_EU)} offset:{8192*gen}")
    q(f"ds_read_b64 {v(UU+2,2)}, {v(V_EU1)} offset:{8192*gen}")
    q(f"ds_read_b128 {v(XX,4)}, {v(V_EXP)} offset:{8192*gen}")
    r = sub()
    if "exact" not in OPT:
        for j in range(4):
            r(f"v_lshlrev_b32 {v(TT+j)}, 16, {v(XX+j)}")
            r(f"v_and_b32 {v(TT+4+j)}, 0xffff0000, {v(XX+j)}")
        for c2, sm in ((0, S_C), (1, S_D)):
            for i in range(2):
                r(f"v_lshlrev_b32 {v(WW)}, 16, {v(UU+2*c2+i)}")
                r(f"v_and_b32 {v(WW+1)}, 0xffff0000, {v(UU+2*c2+i)}")
                r(f"v_fmac_f32 {v(TT+4*c2+2*i)}, s{sm}, {v(WW)}")
                r(f"v_fmac_f32 {v(TT+4*c2+2*i+1)}, s{sm}, {v(WW+1)}")
        return q.ins, r.ins
    for c2 in range(2):
        for i in range(2):
            r(f"v_lshlrev_b32 {v(TT+4*c2+2*i)}, 16, {v(UU+2*c2+i)}")
            r(f"v_and_b32 {v(TT+4*c2+2*i+1)}, 0xffff0000, {v(UU+2*c2+i)}")
    for c2, sm in ((0, S_C), (1, S_D)):
        for i in range(4):
            r(f"v_mul_f32 {v(TT+4*c2+i)}, s{sm}, {v(TT+4*c2+i)}")
    for j in range(4):
        r(f"v_cvt_pk_bf16_f32 {v(WW+j)}, {v(TT+j)}, {v(TT+4+j)}")
    for j in range(4):
        r(f"v_lshlrev_b32 {v(TT+2*j)}, 16, {v(WW+j)}")
        r(f"v_and_b32 {v(TT+2*j+1)}, 0xffff0000, {v(WW+j)}")
    return q.ins, r.ins


def conv_xchg(gen):
    w_, b_, r_ = sub(), sub(), sub()
    for c in range(4):
        w_(f"ds_write_b128 {v(V_EXW)}, {v(CA[gen]+4*c,4)} offset:{(4096 if gen else 7168)*c}", tok=f"xw{gen}")
    b_.wait(f"xw{gen}")
    b_("s_barrier")
    for w in range(4):
        r_(f"ds_read_b128 {v(YY+4*w,4)}, {v(V_EXR)} offset:{1024*w}", tok=f"xr{gen}")
    return w_.ins, b_.ins, r_.ins


def conv_post(gen):
    q = sub()
    h = HO + 4 * gen
    if "exact" not in OPT:
        for c2 in range(2):
            for i in range(2):
                q(f"v_pk_add_f32 {v(TT+4*c2+2*i,2)}, {v(TT+4*c2+2*i,2)}, {v(YY+8*c2+2*i,2)}")
            for i in range(2):
                q(f"v_pk_add_f32 {v(TT+4*c2+2*i,2)}, {v(TT+4*c2+2*i,2)}, {v(YY+8*c2+4+2*i,2)}")
        for j in range(4):
            q(f"v_cvt_pk_bf16_f32 {v(h+j)}, {v(TT+j)}, {v(TT+4+j)}")
        q(f"buffer_store_dwordx4 {v(h,4)}, {v(V_EXW)}, {srd(SRD_WS)}, s{S_PST} offen sc1", tok=f"h{gen}")
        return q.ins
    for c2 in range(2):
        for i in range(2):
            q(f"v_pk_add_f32 {v(YY+8*c2+2*i,2)}, {v(YY+8*c2+2*i,2)}, {v(YY+8*c2+4+2*i,2)}")
    for j in range(4):
        q(f"v_cvt_pk_bf16_f32 {v(WW+j)}, {v(YY+j)}, {v(YY+8+j)}")
    for j in range(4):
        q(f"v_lshlrev_b32 {v(YY+2*j)}, 16, {v(WW+j)}")
        q(f"v_and_b32 {v(YY+2*j+1)}, 0xffff0000, {v(WW+j)}")
    for j in range(4):
        q(f"v_pk_add_f32 {v(YY+2*j,2)}, {v(YY+2*j,2)}, {v(TT+2*j,2)}")
    for j in range(4):
        q(f"v_cvt_pk_bf16_f32 {v(WW+j)}, {v(YY+2*j)}, {v(YY+2*j+1)}")
    for j in range(4):
        q(f"v_lshlrev_b32 {v(YY+8+2*j)}, 16, {v(XX+j)}")
        q(f"v_and_b32 {v(YY+8+2*j+1)}, 0xffff0000, {v(XX+j)}")
    for j in range(4):
        q(f"v_lshlrev_b32 {v(YY+2*j)}, 16, {v(WW+j)}")
        q(f"v_and_b32 {v(YY+2*j+1)}, 0xffff0000, {v(WW+j)}")
    for j in range(4):
        q(f"v_pk_add_f32 {v(YY+2*j,2)}, {v(YY+2*j,2)}, {v(YY+8+2*j,2)}")
    h = HO + 4 * gen
    for j in range(4):
        q(f"v_cvt_pk_bf16_f32 {v(h+j)}, {v(YY+2*j)}, {v(YY+2*j+1)}")
    q(f"buffer_store_dwordx4 {v(h,4)}, {v(V_EXW)}, {srd(SRD_WS)}, s{S_PST} offen sc1", tok=f"h{gen}")
    return q.ins


V_A = 17
ad1 = sub()
ad1(f"v_bfe_u32 v4, {v(V_LANE)}, 3, 1")
ad1(f"v_lshrrev_b32 v5, 5, {v(V_LANE)}")
ad1(f"v_lshl_add_u32 v4, v5, 1, v4")
ad1(f"v_and_b32 v5, 0x70, {v(V_L16)}")
ad1(f"v_lshlrev_b32 v6, 5, v4")
ad1(f"v_xor_b32 v5, v5, v6")
ad1(f"v_bfe_u32 v6, {v(V_LANE)}, 4, 1")
ad1(f"v_lshl_add_u32 v4, v4, 1, v6")
ad1(f"v_mul_u32_u24 v4, {PROW}, v4")
ad1(f"v_add3_u32 {v(V_A)}, v4, v5, s{S_AB}")
for k in range(1, 4):
    ad1(f"v_add_u32 {v(V_A+k)}, {k*(8*PROW-1024)}, {v(V_A)}")


def act_dma(J):
    o = []
    gen, T = J >> 1, J & 1
    for kk in range(2):
        q = sub()
        q(f"s_add_u32 m0, s{S_ACTW}, {L_ACT[gen] + T*28672 + kk*4096}")
        q(f"s_mov_b32 s{S_WOFF}, {kk*32*PROW + PGEN*gen + 128*T}")
        for k in range(4 - kk):
            of = f" offset:{1024*k}" if k else ""
            q(f"buffer_load_dwordx4 {v(V_A+k)}, {srd(SRD_WS)}, s{S_WOFF} offen{of} sc1 lds", tok=f"act{J}")
        o.append(q.ins)
    return o


V_BR, V_S2, V_HST, V_BR2 = 21, 22, 24, 26
V_LF, V_LR = 28, 29
V_RES = 27
V_OST, V_RR, V_RW, V_HL = 45, 41, 42, 44
SEL = 176
CSA = [180, 184]
ad = sub()
ad(f"s_add_u32 s{S_PA}, s{S_PA}, 0x8000")
ad(f"v_and_b32 v4, 31, {v(V_LANE)}")
ad(f"v_lshrrev_b32 v5, 5, {v(V_LANE)}")
ad(f"v_mul_u32_u24 v5, {512+64}, v5")
ad(f"v_lshlrev_b32 v6, 2, v4")
ad(f"v_xor_b32 {v(V_BR)}, v5, v6")
ad(f"v_xor_b32 {v(V_BR2)}, 0xa0, {v(V_BR)}")
NAD2 = len(ad.ins)
ad(f"s_lshl_b32 s{S_T0}, s{S_TB}, 10")
ad(f"s_mul_i32 s{S_T1}, s{S_DB}, {S2REP}")
ad(f"s_add_u32 s{S_T0}, s{S_T0}, s{S_T1}")
ad(f"s_add_u32 s{S_T0}, s{S_T0}, {WS_S2}")
ad(f"v_lshl_add_u32 {v(V_S2)}, v4, 3, s{S_T0}")
ad(f"s_mov_b32 s{S_PERM}, 0x03020302")
ad(f"v_lshrrev_b32 v5, 4, {v(V_LANE)}")
ad(f"v_and_b32 v6, 15, {v(V_LANE)}")
ad(f"v_and_b32 v4, 1, v5")
ad(f"v_mul_u32_u24 v4, 57344, v4")
ad(f"v_lshl_add_u32 v4, v6, 4, v4")
ad(f"v_lshrrev_b32 v7, 1, v5")
ad(f"v_lshl_add_u32 v4, v7, 8, v4")
ad(f"s_mul_i32 s{S_T0}, s{S_TB}, {8*57344}")
ad(f"s_lshl_b32 s{S_T1}, s{S_FB}, 2")
ad(f"s_add_u32 s{S_T1}, s{S_T1}, s{S_V}")
ad(f"s_lshl_b32 s{S_T2}, s{S_T1}, 10")
ad(f"s_add_u32 s{S_T0}, s{S_T0}, {WS_H}")
ad(f"s_add_u32 s{S_T2}, s{S_T2}, s{S_T0}")
ad(f"v_add_u32 {v(V_HST)}, s{S_T2}, v4")
ad(f"s_mul_i32 s{S_T2}, s{S_FH}, 57344")
ad(f"s_add_u32 s{S_T0}, s{S_T0}, s{S_T2}")
ad(f"s_lshl1_add_u32 s{S_T0}, s{S_ACTW}, s{S_T0}")
ad(f"v_add_u32 {v(V_HL)}, s{S_T0}, {v(V_L16)}")
ad(f"s_lshl_b32 s{S_T0}, s{S_TB}, 13")
ad(f"s_add_u32 s{S_T0}, s{S_T0}, {WS_C + 65536}")
ad(f"s_mul_i32 s{S_T1}, s{S_T1}, 37")
ad(f"s_and_b32 s{S_T1}, s{S_T1}, 0x600")
ad(f"s_add_u32 s{S_F3}, s{S_T0}, s{S_T1}")
ad(f"s_lshl1_add_u32 s{S_T1}, s{S_V}, s{S_FH}")
ad(f"s_lshl_b32 s{S_T1}, s{S_T1}, 8")
ad(f"s_add_u32 s{S_P3}, s{S_T0}, s{S_T1}")
for k in range(1, 4):
    ad(f"s_movk_i32 s{S_HR+k}, {4096*k}")
ad(f"s_add_u32 s{S_FW}, s{S_RING}, 32768")
ad(f"s_lshl_b32 s{S_R2}, s{S_V}, 14")
ad(f"v_add_u32 {v(V_LF)}, s{S_FW}, {v(V_L16)}")
ad(f"v_add_u32 {v(V_LR)}, s{S_R2}, {v(V_L16)}")
ad2 = ad
se = sub()
se(f"v_bfe_u32 v4, {v(V_LANE)}, 2, 2")
se(f"v_bfe_u32 v5, {v(V_LANE)}, 4, 1")
se(f"v_mov_b32 v6, 0x3f803f80")
se(f"v_cmp_eq_u32 vcc, v4, v5")
for i in range(4):
    se(f"v_cndmask_b32 {v(SEL+i)}, 0, v6, vcc")


def cs_mfma(ks0, ks1):
    q = sub()
    for ks in range(ks0, ks1):
        for m in range(2):
            c = "0" if ks == 0 else v(CSA[m], 4)
            q(f"v_mfma_f32_16x16x32_bf16 {v(CSA[m],4)}, {v(SEL,4)}, {acc(wfrag(m,ks),4)}, {c}")
    return q.ins


def pin_spread(g, start, ins, per=2):
    for i, x in enumerate(ins):
        g.at(int(start + i // per), [x])
    return int(start + (len(ins) + per - 1) // per)


def gap_stamps(g, name):
    if OPT.get("gs", "").startswith(name + ":"):
        for k in OPT["gs"].split(":")[1].split(","):
            q = sub()
            stamp(f"{name} g{k}", q)
            g.pin[int(k)] = q.ins + g.pin[int(k)]


mA, mB = conv_mfmas(0), conv_mfmas(1)
NCS0 = int(OPT.get("ncs0", 8))
NOV = int(OPT.get("nov", 15))
bl = b_loads(0, 4)


def ab(rr):
    al = a_loads(rr, 0, 4)
    o = []
    for a in range(4):
        o += [bl[4 * rr + a]] + al[2 * a:2 * a + 2]
    return o


pr, pv = conv_pre(0)
P.add(ab(0) + ab(1)[:3])
P.add(b2.pop(0))
P.add(b2.pop(0))
g = Gaps(mA + mB[:NOV], 2)
l1 = ab(1)[3:] + ab(2) + ab(3) + pr
NL1 = int(OPT.get("nl1", 24))
for i, x in enumerate(l1):
    g.at(i * NL1 // len(l1), [x])
xw, xb, xr = conv_xchg(0)
for i, k in enumerate([int(x) for x in OPT.get("xa", "33,35,38,42").split(",")]):
    g.at(k, [xw[i]])
XB = int(OPT.get("xb", 45))
g.fill(pv, start=NL1 + 5, end=XB + 8, cap=2.5)
g.at(XB, xb)
g.at(XB + 1, xr)
pin_vm(g, XB + 2, b2[:2], 3)
b2 = b2[2:]
P.add(g.out())
P.add(conv_post(0))
stamp("genA stored")
nb = b_loads(4, 8)
newl = []
for rr in range(4):
    newl += nb[4 * rr:4 * rr + 4] + a_loads(rr, 4, 8)
P.add(newl[:8])
g = Gaps(mB[NOV:] + cs_mfma(0, NCS0), 2)
NB_ = len(mB) - NOV
pin_spread(g, 0, newl[8:], per=1)
g.at(0, waitq("w1_3"))
pin_spread(g, 0, tr1[24:], per=1)
pin_vm(g, 1, b2, 3.5)
fl = sub()
fl.wait("h0")
addcnt(fl, S_F2, V_FL2)
fl(f"s_add_u32 s{S_F2}, s{S_F2}, 0x8000")
g.at(int(OPT.get("fa", 28)), fl.ins)
tr2 = batch_tr(1)
T2 = [int(x) for x in OPT.get("t2", "12,24,44,60").split(",")]
b3 = batch_dma(2, "w3")
for i in range(4):
    pin_spread(g, T2[i], waitq(f"w2_{i}") + tr2[8 * i:8 * i + 8], per=1)
    b3[i] = waitq(f"t1_{i}") + b3[i]
pin_vm(g, 30, b3[:2], 3)
pin_vm(g, 56, b3[2:3], 3)
pin_vm(g, 71, b3[3:4], 2.5)
pr, pv = conv_pre(1)
pin_spread(g, 41, pr, per=1)
newl[-1].tok = "lastfrag"
bq = sub()
bq.wait("lastfrag")
bq("s_barrier")
g.at(54, bq.ins)
x2 = sub()
x2(f"v_add_u32 {v(V_EXW)}, {L_KC}, {v(V_EXW)}")
x2(f"s_lshl_b32 s{S_T0}, s{S_V}, 12")
x2(f"s_add_u32 s{S_T0}, s{S_T0}, {L_KC}")
x2(f"v_add_u32 {v(V_EXR)}, s{S_T0}, {v(V_L16)}")
x2(f"s_add_u32 s{S_PST}, s{S_PST}, {PGEN - L_KC}")
PA1, PA2, PAC = int(OPT.get("pa1", 58)), int(OPT.get("pa2", 72)), int(OPT.get("pac", 86))
e = g.fill(x2.ins + ad1.ins + se.ins, start=34, end=NB_ - 16)
g.fill(pv, start=max(e, 50), end=NB_ + 10)
g.at(PA1, poll_issue(S_PA, 7))
g.at(PA2, poll_issue(S_PA, 23))
if "pa3" in OPT:
    g.at(int(OPT["pa3"]), poll_issue(S_PA, 24))
    g.at(PAC, poll_checkn(S_PA, [7, 23, 24], "3", f"s{S_E28}"))
else:
    g.at(PAC, stq("pre pollA") + poll_check2(S_PA, 7, 23, "3", f"s{S_E28}") + stq("post pollA"))
a0 = singles(act_dma(0) + act_dma(1))
na = (g.n - 1 - PAC) // 3 + 1
pin_vm(g, PAC, a0[:na], 3)
xw, xb, xr = conv_xchg(1)
for i, k in enumerate((-15, -11, -5, 3)):
    g.at(NB_ + k, [xw[i]])
g.at(NB_ + 6, xb)
g.at(NB_ + 7, xr)
gap_stamps(g, "s2")
o_ = g.out()
X = OPT.get("x2", "")
if "d" in X:
    o_ = [i for i in o_ if not (i.cls == "vmem" and i.tok and i.tok[0] == "w")]
if "t" in X:
    o_ = [i for i in o_ if "tr_b16" not in i.mn]
if "a" in X:
    o_ = [i for i in o_ if "ds_read2_b32" not in i.mn]
P.add(o_)
P.add(conv_post(1))
stamp("genB stored")
NCH_ = int(OPT.get("nch", 7))
g = Gaps(cs_mfma(NCS0, 24 - NCH_), 3)
g.at(1, poll_issue(S_P4, 25))
tr3 = batch_tr(2)
t3 = []
for i in (0, 1, 2, 3):
    t3 += waitq(f"w3_{i}") + tr3[8 * i:8 * i + 8]
pin_spread(g, 0, t3, per=2)
e = pin_vm(g, 0, a0[na:], 2)
fl = sub()
fl.wait("h1")
addcnt(fl, S_F2, V_FL2)
g.fill(ad2.ins[:NAD2], start=18)
w4 = singles([waitq("t2_3") + w_dma(6, 0, 8, "w4"), w_dma(6, 1, 12, "w4")])
P.add(g.out())
stamp("gap work done")

GACC = [64, 96]
BF = 128
NBF = 8
MB = 160
KC_ = [14, 9]
STT = 60
EPT = 164
HP = 172
WDV = 188
RESR = [46, 48, 50, 52]
A_CS = [224, 228]
GC0 = -2.0 * math.sqrt(2.0 / math.pi) * LOG2E


def st_issue(J, atomic=None):
    q = sub()
    t = STT + 2 * (J & 1)
    atomic = False if atomic is None else atomic
    if atomic:
        q(f"v_mov_b64 {v(t,2)}, 0")
        q(f"buffer_atomic_add_x2 {v(t,2)}, {v(V_S2)}, {srd(SRD_WS)}, 0 offen offset:{256*J} sc0")
    else:
        q(f"buffer_load_dwordx2 {v(t,2)}, {v(V_S2)}, {srd(SRD_WS)}, 0 offen offset:{256*J} sc1")
    return q.ins


def st_check(J):
    q = sub()
    t = STT + 2 * (J & 1)
    slow, done = label("sslow"), label("sdone")
    q(f"v_cmp_ne_u32 vcc, s{S_NONCE}, {v(t+1)}")
    q(f"s_cbranch_vccnz {slow}")
    q(f"{done}:")
    spin(TAIL, slow, done, st_issue(J, True), t + 1, sleep=1)
    return q.ins


def st_final(J):
    q = sub()
    kc = KC_[J & 1]
    t = STT + 2 * (J & 1)
    q(f"v_perm_b32 {v(MB)}, {v(t)}, {v(t)}, s{S_PERM}")
    q(f"v_cvt_f32_f16 {v(t)}, {v(t)}")
    q(f"v_mul_f32 {v(t+1)}, {v(t)}, {v(t)}")
    q(f"v_mul_f32 {v(kc)}, {f32(GC0)}, {v(t)}")
    q(f"v_rcp_f32 {v(kc+2)}, {v(t+1)}")
    q(f"v_mul_f32 {v(kc+1)}, {v(t+1)}, {v(kc)}")
    q(f"v_mul_f32 {v(kc+1)}, {f32(0.044715)}, {v(kc+1)}")
    return q.ins


SP = Prog()
spn = [1]


def sps():
    if STAMPS and "lite" in OPT:
        SP(f"s_memrealtime s[{S_STAMP}:{S_STAMP+1}]")
        SP("s_waitcnt lgkmcnt(0)")
        SP(f"v_writelane_b32 v255, s{S_STAMP}, {spn[0]}")
        spn[0] += 1


SP("L_spare:")
SP("s_barrier")
sps()
SP(f"s_and_b32 s{S_T0}, s{S_W}, 6")
SP(f"s_lshl_b32 s{S_T0}, s{S_T0}, 1")
SP(f"s_bfe_u32 s{S_T1}, s{S_W}, 0x20003")
SP(f"s_add_u32 s{S_TB}, s{S_T0}, s{S_T1}")
SP(f"s_lshr_b32 s{S_T0}, s{S_TB}, 2")
SP(f"s_lshl2_add_u32 s{S_T0}, s{S_FH}, s{S_T0}")
SP(f"s_lshl3_add_u32 s{S_T0}, s{S_T0}, s{S_T1}")
SP(f"s_lshl2_add_u32 s{S_T0}, s{S_T0}, s{S_V}")
SP(f"s_lshl_b32 s{S_T0}, s{S_T0}, 8")
SP(f"s_add_u32 s{S_PA}, s{S_T0}, {WS_C}")
SP(f"s_mul_i32 s{S_T1}, s{S_V}, 56")
SP(f"v_mov_b32 {v(V_NONCE)}, 7")
lanes_reg(SP, V_FLG, 4, 8)
SP(f"v_lshrrev_b32 v5, 4, {v(V_LANE)}")
SP(f"v_and_b32 v6, 15, {v(V_LANE)}")
SP(f"v_mul_u32_u24 v4, {PROW}, v5")
SP(f"v_lshl_add_u32 v4, v6, 4, v4")
SP(f"s_mul_i32 s{S_T1}, s{S_T1}, {PROW}")
SP(f"s_lshl_b32 s{S_T0}, s{S_TB}, 8")
SP(f"s_add_u32 s{S_T0}, s{S_T0}, s{S_T1}")
SP(f"s_mul_i32 s{S_T1}, s{S_FH}, {PGEN}")
SP(f"s_add_u32 s{S_T0}, s{S_T0}, s{S_T1}")
SP(f"s_add_u32 s{S_T0}, s{S_T0}, {WS_P}")
SP(f"v_add_u32 v11, s{S_T0}, v4")
SP(f"v_lshl_add_u32 v4, v6, 2, v5")
SP(f"s_lshl_b32 s{S_T0}, s{S_V}, 9")
SP(f"v_lshl_add_u32 v12, v4, 3, s{S_T0}")
SP(f"v_lshlrev_b32 v13, 3, {v(V_LANE)}")
SP(f"v_mov_b32 v14, 0x3f803f80")
if not NOPF and EPF < 25:
    NREM = 12544 - 512 * EPF
    LR = -(-NREM // (64 * 4))
    SP(f"s_sub_u32 s{S_T1}, s{S_W}, 224")
    SP(f"s_lshr_b32 s{S_T0}, s{S_V}, 1")
    SP(f"s_lshl1_add_u32 s{S_T1}, s{S_T1}, s{S_T0}")
    SP(f"s_mul_i32 s{S_T1}, s{S_T1}, {LR*128}")
    SP(f"s_add_u32 s{S_T1}, s{S_T1}, {(12544-256*LR)*128}")
    SP(f"v_min_u32 v4, {LR-1}, {v(V_LANE)}")
    SP(f"v_lshl_add_u32 v4, v4, 7, s{S_T1}")
    NB3 = int(OPT.get("nb3", 0))
    SP(f"s_mul_i32 s{S_T0}, s{S_FH}, {64*LR*128}")
    SP(f"s_mul_i32 s{S_T1}, s{S_FH}, {2*LR*128}")
    for k in range(4):
        SP(f"global_load_dword {v(56+k)}, v4, s[{S_PFB}:{S_PFB+1}]")
        if k >= 4 - NB3:
            SP(f"v_subrev_u32 v5, s{S_T1}, v4")
            SP(f"global_load_dword {v(60+k)}, v5, s[{S_PFB}:{S_PFB+1}]")
        if k < 3 - NB3:
            SP(f"v_add_u32 v4, {64*LR*128}, v4")
        elif k < 3:
            SP(f"v_add_u32 v4, s{S_T0}, v4")
SP(f"s_sub_u32 s{S_T1}, s{S_W}, 224")
SP(f"s_cmp_ge_u32 s{S_T1}, 28")
SP("s_cbranch_scc1 L_sp_nowf")
SP(f"s_lshr_b32 s{S_DB}, s{S_T1}, 2")
SP(f"s_and_b32 s{S_T2}, s{S_T1}, 3")
SP(f"s_lshl_b32 s{S_F3}, s{S_T1}, 10")
SP(f"s_add_u32 s{S_F3}, s{S_F3}, {WS_C + 896*256}")
SP(f"s_mul_i32 s{S_T1}, s{S_T1}, {14*4096}")
SP(f"s_add_u32 s{S_T1}, s{S_T1}, {WS_WF}")
SP(f"v_add_u32 v20, s{S_T1}, {v(V_L16)}")
SP(f"v_lshrrev_b32 v6, 3, {v(V_LANE)}")
SP(f"v_and_b32 v7, 6, v6")
SP(f"v_and_b32 v5, 7, {v(V_LANE)}")
SP(f"v_xor_b32 v7, v7, v5")
SP(f"v_mul_u32_u24 v6, 896, v6")
SP(f"v_lshl_add_u32 v6, v7, 4, v6")
SP(f"s_mul_i32 s{S_T0}, s{S_T2}, {448*896}")
SP(f"s_lshl_b32 s{S_T1}, s{S_DB}, 7")
SP(f"s_add_u32 s{S_T0}, s{S_T0}, s{S_T1}")
SP(f"v_add_u32 v48, s{S_T0}, v6")
for k in range(1, 4):
    SP(f"v_add_u32 {v(48+k)}, {k*(7168-1024)}, v48")
SP(f"s_lshl_b32 s{S_R2}, s{S_V}, 14")
SP(f"s_add_u32 s{S_R2}, s{S_R2}, 4096")
for i in range(4):
    SP(f"s_lshl2_add_u32 s{S_HR+i}, s{S_V}, {i}")
    SP(f"s_min_u32 s{S_HR+i}, s{S_HR+i}, 13")
    SP(f"s_mul_i32 s{S_WOFF}, s{S_HR+i}, {32*896}")
    SP(f"s_add_u32 m0, s{S_R2}, {4096*i}")
    SP(f"s_lshl_b32 s{S_HR+i}, s{S_HR+i}, 12")
    for k in range(4):
        of = f" offset:{1024*k}" if k else ""
        SP(f"buffer_load_dwordx4 {v(48+k)}, {srd(SRD_WD)}, s{S_WOFF} offen{of} lds", tok=f"sw{i}")
SP(f"v_lshrrev_b32 v4, 4, {v(V_LANE)}")
SP(f"v_lshrrev_b32 v6, 1, v4")
SP(f"v_lshlrev_b32 v6, 4, v6")
SP(f"v_and_b32 v7, 1, v4")
SP(f"v_lshl_add_u32 v6, v7, 2, v6")
SP(f"v_bfe_u32 v7, {v(V_LANE)}, 2, 2")
SP(f"v_add_u32 v6, v6, v7")
SP(f"v_bfe_u32 v7, v6, 1, 2")
SP(f"v_lshlrev_b32 v6, 7, v6")
SP(f"v_and_b32 v5, 3, {v(V_LANE)}")
SP(f"v_lshl_add_u32 v6, v5, 3, v6")
for rt in range(4):
    SP(f"v_xor_b32 v5, {rt}, v7")
    SP(f"v_lshl_add_u32 v5, v5, 5, v6")
    SP(f"v_add_u32 {v(52+rt)}, s{S_R2}, v5")
for i in range(4):
    SP.wait(f"sw{i}")
    if i in (0, 3): sps()
    for rt in range(4):
        for h in range(2):
            SP(f"ds_read_b64_tr_b16 {v(64+16*i+4*rt+2*h,2)}, {v(52+rt)} offset:{4096*i+1024*h}")
    for rt in range(4):
        SP(f"buffer_store_dwordx4 {v(64+16*i+4*rt,4)}, v20, {srd(SRD_WS)}, s{S_HR+i} offen offset:{1024*rt} sc1")
SP("s_waitcnt vmcnt(0)")
addcnt(SP, S_F3, V_FLG)
sps()
SP("L_sp_nowf:")
sps()
SP("s_mov_b64 vcc, 3")
spin(SP, "L_sp_c", "L_sp_d", poll_issue(S_PA, 7), 7, sleep=int(OPT.get('spsleep', 2)), exp=f"s{S_E28}")
SP("L_sp_d:")
sps()
for k in range(14):
    SP(f"s_mov_b32 s{S_T0}, {k*4*PROW}")
    SP(f"buffer_load_dwordx4 {v(64+4*k,4)}, v11, {srd(SRD_WS)}, s{S_T0} offen sc1")
SS = 16
for j in range(8):
    SP(f"v_mov_b32 {v(SS+j)}, 0")
for k in range(14):
    for j in range(4):
        SP(f"v_dot2c_f32_bf16 {v(SS+j)}, {v(64+4*k+j)}, v14")
    for j in range(4):
        SP(f"v_dot2c_f32_bf16 {v(SS+4+j)}, {v(64+4*k+j)}, {v(64+4*k+j)}")
for o in (0, 4):
    SP(f"v_permlane32_swap_b32 {v(SS+o)}, {v(SS+o+2)}")
    SP(f"v_permlane32_swap_b32 {v(SS+o+1)}, {v(SS+o+3)}")
for o in (0, 4):
    SP(f"v_add_f32 {v(SS+o)}, {v(SS+o)}, {v(SS+o+2)}")
    SP(f"v_add_f32 {v(SS+o+1)}, {v(SS+o+1)}, {v(SS+o+3)}")
for o in (0, 4):
    SP(f"v_permlane16_swap_b32 {v(SS+o)}, {v(SS+o+1)}")
SP(f"v_add_f32 {v(SS)}, {v(SS)}, {v(SS+1)}")
SP(f"v_add_f32 {v(SS+1)}, {v(SS+4)}, {v(SS+5)}")
sps()
SP(f"ds_write_b64 v12, {v(SS,2)}")
SP("s_waitcnt lgkmcnt(0)")
SP("s_barrier")
SP(f"s_cmp_lg_u32 s{S_V}, 0")
SP("s_cbranch_scc1 L_fin")
t = 24
for w in range(4):
    SP(f"ds_read_b64 {v(t+2*w,2)}, v13 offset:{512*w}")
SP(f"s_lshl_b32 s{S_T0}, s{S_TB}, 1")
SP(f"s_add_u32 s{S_T0}, s{S_T0}, s{S_FH}")
SP(f"s_lshl_b32 s{S_T0}, s{S_T0}, 9")
SP(f"s_add_u32 s{S_T0}, s{S_T0}, {WS_S2}")
SP(f"v_pk_add_f32 {v(t,2)}, {v(t,2)}, {v(t+2,2)}")
SP(f"v_pk_add_f32 {v(t+4,2)}, {v(t+4,2)}, {v(t+6,2)}")
SP(f"v_pk_add_f32 {v(t,2)}, {v(t,2)}, {v(t+4,2)}")
SP(f"v_mul_f32 {v(t)}, s{S_K0}, {v(t)}")
SP(f"v_mul_f32 {v(t+1)}, s{S_K0}, {v(t+1)}")
SP(f"v_fma_f32 {v(t+1)}, -{v(t)}, {v(t)}, {v(t+1)}")
SP(f"v_max_f32 {v(t+1)}, 0, {v(t+1)}")
SP(f"v_add_f32 {v(t+1)}, {f32(1e-5)}, {v(t+1)}")
SP(f"v_rsq_f32 {v(t+1)}, {v(t+1)}")
SP(f"v_cvt_pk_bf16_f32 {v(t)}, 0, -{v(t)}")
SP(f"v_cvt_f16_f32 {v(t+1)}, {v(t+1)}")
SP(f"v_and_b32 {v(t+1)}, 0xffff, {v(t+1)}")
SP(f"v_or_b32 {v(t)}, {v(t)}, {v(t+1)}")
SP(f"v_mov_b32 {v(t+1)}, s{S_NONCE}")
for r_ in range(7):
    SP(f"buffer_store_dwordx2 {v(t,2)}, v13, {srd(SRD_WS)}, s{S_T0} offen sc1")
    SP(f"s_add_u32 s{S_T0}, s{S_T0}, {S2REP}")
sps()
SP(f"s_cmp_lg_u32 s{S_W}, 255")
SP("s_cbranch_scc1 L_fin")
SP(f"v_lshlrev_b32 v4, 25, {v(V_LANE)}")
SP(f"buffer_store_dword {v(t+1)}, v4, {srd(SRD_WS)}, 0 offen sc1")
SP("s_branch L_fin")


def b_read(J, ks):
    q = sub()
    b = BF + 4 * (ks % NBF)
    o = 112 * (J & 1) + 4 * ks
    q(f"ds_read2st64_b32 {v(b,2)}, {v(V_BR)} offset0:{o} offset1:{o+1}")
    q(f"ds_read2st64_b32 {v(b+2,2)}, {v(V_BR2)} offset0:{o} offset1:{o+1}", tok=f"b{J}_{ks}")
    return q.ins


def g1_gaps(J, extra_after=None):
    m = sub()
    g0 = GACC[J & 1]
    for ks in range(28):
        for mm in range(2):
            d = g0 + 16 * mm
            c = "0" if ks == 0 else v(d, 16)
            m(f"v_mfma_f32_32x32x16_bf16 {v(d,16)}, {acc(wfrag(mm,ks),4)}, {v(BF+4*(ks%NBF),4)}, {c}")
    for mm in range(2):
        d = g0 + 16 * mm
        m(f"v_mfma_f32_32x32x16_bf16 {v(d,16)}, {acc(A_CS[mm],4)}, {v(MB,4)}, {v(d,16)}")
    g = Gaps(m.ins, 6)
    for ks in range(28):
        k2 = ks + NBF - 1
        if k2 < 28:
            r = b_read(J, k2)
            g.at(2 * ks, [r[0]])
            g.at(2 * ks + 1, [r[1]])
        if ks % 3 == 2 and ks + 1 < 28:
            w = sub()
            w.wait(f"b{J}_{min(ks+3,27)}")
            g.at(2 * ks + 1, w.ins)
    return g


def next_tile_reads(g, J, delta, first=42):
    q = sub()
    if delta:
        q(f"v_add_u32 {v(V_BR)}, {delta}, {v(V_BR)}")
        q(f"v_add_u32 {v(V_BR2)}, {delta}, {v(V_BR2)}")
    g.at(first, q.ins)
    for ks in range(NBF - 1):
        old = max(k for k in range(28) if k % NBF == ks)
        r = b_read(J, ks)
        at = max(2 * old + 1, first + 1)
        g.at(at, r[:1])
        g.at(min(at + 1, 57), r[1:])


def g1_epi(J):
    q = sub()
    g = GACC[J & 1]
    kc = KC_[J & 1]
    T = EPT
    for j0 in range(0, 16, 4):
        js = range(j0, j0 + 4)
        for j in js:
            q(f"v_mul_f32 {v(T+j-j0)}, {v(g+j)}, {v(g+j)}")
        for j in js:
            q(f"v_fma_f32 {v(T+j-j0)}, {v(T+j-j0)}, {v(kc+1)}, {v(kc)}")
        for j in js:
            q(f"v_mul_f32 {v(T+j-j0)}, {v(T+j-j0)}, {v(g+j)}")
        for j in js:
            q(f"v_exp_f32 {v(T+j-j0)}, {v(T+j-j0)}")
            q(f"v_mul_f32 {v(T+4+j-j0)}, {v(g+j)}, {v(g+16+j)}")
        for j in js:
            q(f"v_fma_f32 {v(T+j-j0)}, {v(T+j-j0)}, {v(kc+2)}, {v(kc+2)}")
        for j in js:
            q(f"v_rcp_f32 {v(T+j-j0)}, {v(T+j-j0)}")
        for j in js:
            q(f"v_mul_f32 {v(T+4+j-j0)}, {v(T+4+j-j0)}, {v(T+j-j0)}")
        q(f"v_cvt_pk_bf16_f32 {v(HP+(j0//2)%4)}, {v(T+4)}, {v(T+5)}")
        q(f"v_cvt_pk_bf16_f32 {v(HP+(j0//2)%4+1)}, {v(T+6)}, {v(T+7)}")
        if j0 in (4, 12):
            q2 = j0 // 8
            q(f"buffer_store_dwordx4 {v(HP,4)}, {v(V_HST)}, {srd(SRD_WS)}, 0 offen offset:{512*q2} sc1", tok=f"H{J}")
    q(f"v_add_u32 {v(V_HST)}, {2*57344}, {v(V_HST)}")
    return q.ins


def g1_epi_pk(J):
    q = sub()
    g = GACC[J & 1]
    assert KC_[J & 1] == 9
    T = EPT
    for j0 in range(0, 16, 8):
        pr_ = range(j0, j0 + 8, 2)
        for j in pr_:
            q(f"v_pk_mul_f32 {v(T+j-j0,2)}, {v(g+j,2)}, {v(g+j,2)}")
        for j in pr_:
            q(f"v_pk_fma_f32 {v(T+j-j0,2)}, {v(T+j-j0,2)}, v[10:11], v[8:9] op_sel:[0,0,1] op_sel_hi:[1,0,1]")
        for j in pr_:
            q(f"v_pk_mul_f32 {v(T+j-j0,2)}, {v(T+j-j0,2)}, {v(g+j,2)}")
        for j in range(j0, j0 + 8):
            q(f"v_exp_f32 {v(T+j-j0)}, {v(T+j-j0)}")
        for j in pr_:
            q(f"v_pk_mul_f32 {v(g+j,2)}, {v(g+j,2)}, {v(g+16+j,2)}")
        for j in pr_:
            q(f"v_pk_fma_f32 {v(T+j-j0,2)}, {v(T+j-j0,2)}, v[10:11], v[10:11] op_sel:[0,1,1] op_sel_hi:[1,1,1]")
        for j in range(j0, j0 + 8):
            q(f"v_rcp_f32 {v(T+j-j0)}, {v(T+j-j0)}")
        for j in pr_:
            q(f"v_pk_mul_f32 {v(g+j,2)}, {v(g+j,2)}, {v(T+j-j0,2)}")
        for j in pr_:
            q(f"v_cvt_pk_bf16_f32 {v(HP+(j-j0)//2)}, {v(g+j)}, {v(g+j+1)}")
        q(f"buffer_store_dwordx4 {v(HP,4)}, {v(V_HST)}, {srd(SRD_WS)}, 0 offen offset:{512*(j0//8)} sc1", tok=f"H{J}")
    return q.ins


def flag3(J):
    q = sub()
    q.wait(f"H{J}")
    addcnt(q, S_F3, V_FLG)
    q(f"s_add_u32 s{S_F3}, s{S_F3}, 2048")
    return q.ins


WDREG = {}
for i in range(4):
    for rt in range(4):
        WDREG[i, rt] = v(WDV + 16 * i + 4 * rt, 4)
        WDREG[10, rt] = acc(240 + 4 * rt, 4)
        WDREG[11, rt] = v([176, 180, 184, 56][rt], 4)
        WDREG[12, rt] = acc(4 * rt, 4)
        WDREG[13, rt] = acc(16 + 4 * rt, 4)
for i in range(6):
    for rt in range(4):
        WDREG[4 + i, rt] = acc(128 + 16 * i + 4 * rt, 4)
KORD = [0, 1, 2, 3, 10, 11, 12, 13, 4, 5, 6, 7, 8, 9]


def wdr(ft, rt):
    return WDREG[ft, rt]


def wd_load(ft):
    q = sub()
    q(f"s_add_u32 s{S_WOFF}, s{S_WFB}, {ft*4096}")
    for k in range(4):
        of = f" offset:{1024*k}" if k else ""
        q(f"buffer_load_dwordx4 {wdr(ft,k)}, {v(V_L16)}, {srd(SRD_WS)}, s{S_WOFF} offen{of} sc1")
    return q.ins


def wd_dma(ft):
    q = sub()
    sbase, slot = (S_FW, ft - 4) if ft < 6 else (S_R2, ft - 6)
    q(f"s_add_u32 m0, s{sbase}, {slot*4096}")
    q(f"s_add_u32 s{S_WOFF}, s{S_WFB}, {ft*4096}")
    for k in range(4):
        of = f" offset:{1024*k}" if k else ""
        q(f"buffer_load_dwordx4 {v(V_L16)}, {srd(SRD_WS)}, s{S_WOFF} offen{of} sc1 lds", tok=f"wd{ft}")
    return q.ins


def wd_read(ft):
    q = sub()
    va, slot = (V_LF, ft - 4) if ft < 6 else (V_LR, ft - 6)
    for rt in range(4):
        q(f"ds_read_b128 {wdr(ft,rt)}, {v(va)} offset:{4096*slot+1024*rt}")
    return q.ins


def res_read(J):
    q = sub()
    o = 112 * (J & 1)
    q(f"ds_read2st64_b32 {v(RESR[J],2)}, {v(V_RES)} offset0:{o} offset1:{o+1}", tok=f"res{J}")
    if J == 1:
        q(f"v_add_u32 {v(V_RES)}, {L_ACT[1]}, {v(V_RES)}")
    return q.ins


ad = sub()
ad(f"v_lshrrev_b32 v4, 4, v0")
ad(f"v_and_b32 v5, 15, v0")
ad(f"v_lshrrev_b32 v6, 1, v5")
ad(f"v_and_b32 v7, 1, v5")
ad(f"v_lshl_add_u32 v6, v6, 2, v7")
ad(f"s_lshl_b32 s{S_T0}, s{S_DB}, 12")
ad(f"v_lshl_add_u32 v6, v6, 7, s{S_T0}")
ad(f"s_lshl_b32 s{S_T1}, s{S_FH}, 6")
ad(f"v_lshl_add_u32 v7, v4, 2, s{S_T1}")
ad(f"v_add_u32 v6, v6, v7")
ad(f"v_and_b32 v7, 3, v5")
ad(f"v_lshlrev_b32 v7, 5, v7")
ad(f"v_xor_b32 {v(V_RES)}, v6, v7")
ad(f"v_lshrrev_b32 v6, 2, v4")
ad(f"v_and_b32 v7, 3, v4")
ad(f"v_lshl_add_u32 v6, v6, 4, v7")
ad(f"v_mul_u32_u24 v6, 896, v6")
ad(f"v_lshl_add_u32 v6, v5, 3, v6")
ad(f"s_lshr_b32 s{S_T0}, s{S_TB}, 2")
ad(f"s_lshl_b32 s{S_T0}, s{S_T0}, 8")
ad(f"s_add_u32 s{S_T0}, s{S_T0}, s{S_T1}")
ad(f"s_and_b32 s{S_T1}, s{S_TB}, 3")
ad(f"s_lshl_b32 s{S_T1}, s{S_T1}, 2")
ad(f"s_add_u32 s{S_T0}, s{S_T0}, s{S_T1}")
ad(f"s_mul_i32 s{S_T0}, s{S_T0}, 896")
ad(f"s_lshl_b32 s{S_T1}, s{S_DB}, 7")
ad(f"s_add_u32 s{S_T0}, s{S_T0}, s{S_T1}")
ad(f"v_add_u32 {v(V_OST)}, s{S_T0}, v6")
ad(f"v_mul_u32_u24 v6, 288, v5")
ad(f"v_lshl_add_u32 v6, v4, 4, v6")
ad(f"v_add_u32 {v(V_RR)}, {L_R}, v6")
ad(f"v_lshrrev_b32 v4, 4, {v(V_LANE)}")
ad(f"v_mul_u32_u24 v6, 288, v4")
ad(f"v_lshl_add_u32 v6, v5, 4, v6")
ad(f"s_mul_i32 s{S_T0}, s{S_V}, 4608")
ad(f"s_add_u32 s{S_T0}, s{S_T0}, {L_R}")
ad(f"v_add_u32 {v(V_RW)}, s{S_T0}, v6")
lanes_reg(ad, V_FLG, 2, 8)

for i in range(1, 4):
    P(f"v_mov_b32 {v(MB+i)}, 0")
    P(f"v_accvgpr_write_b32 {acc(A_CS[0]+i)}, 0")
    P(f"v_accvgpr_write_b32 {acc(A_CS[1]+i)}, 0")
walk("walk")
P.wait("act0")
P("s_waitcnt lgkmcnt(0)")
P("s_barrier")
stamp("gemm1 start")
for ks in range(3):
    P.add(b_read(0, ks))
g = Gaps(cs_mfma(24 - NCH_, 24), 2)
pin_spread(g, 0, sum([b_read(0, ks) for ks in range(3, NBF - 1)], []), per=1)
pin_vm(g, 1, w4[:3], 3)
P.add(g.out())

def hreg(J, ft):
    n = KORD.index(ft)
    if J in (0, 3):
        return acc(32 + 4 * n, 4)
    if J == 1:
        return v(64 + 4 * n if n < 8 else 128 + 4 * (n - 8), 4)
    return v(96 + 4 * n if n < 8 else 152 + 4 * (n - 8), 4)


def h_loads(J):
    o = []
    for s_ in KORD:
        q = sub()
        of = f" offset:{1024*(s_%4)}" if s_ % 4 else ""
        so = f"s{S_HR+s_//4}" if s_ >= 4 else "0"
        q(f"buffer_load_dwordx4 {hreg(J,s_)}, {v(V_HL)}, {srd(SRD_WS)}, {so} offen{of} sc1")
        o.append(q.ins)
    if J < 3:
        q = sub()
        q(f"v_add_u32 {v(V_HL)}, {2*57344}, {v(V_HL)}")
        o[-1] += q.ins
    return o


def p3_next():
    q = sub()
    q(f"s_add_u32 s{S_P3}, s{S_P3}, 2048")
    return q.ins


g = g1_gaps(0)
e = pin_vm(g, 0, w4[3:], 1.5)
g.at(int(OPT.get("fb", 2)), fl.ins)
g.at(e, poll_check(S_P4, 25))
WL = [wd_load(0), wd_load(1), wd_load(2), wd_load(3), wd_load(10), wd_dma(4), wd_dma(5), wd_load(11)]
N0_, N1_ = int(OPT.get("n0", 5)), int(OPT.get("n1", 2))
WS0 = int(OPT.get("ws0", e))
e4 = pin_vm(g, WS0, WL[:N0_], (57 - WS0) / (4 * N0_))
t4 = w_tr(6, 0, 8, "t4") + w_tr(6, 1, 12, "t4")
g.at(30, waitq("w4"))
pin_spread(g, 30, t4, per=2)
g.at(41, waitq("t4") + cs_mfma(24, 28))
cf = sub()
for m in range(2):
    round_bf16(cf, 54, CSA[m])
    cf(f"v_sub_f32 v55, {v(CSA[m])}, v54")
    cf(f"v_cvt_pk_bf16_f32 v54, v54, v55")
    cf(f"v_accvgpr_write_b32 {acc(A_CS[m])}, v54")
g.fill(cf.ins, start=44, end=52)
g.at(int(OPT.get("pb1", 26)), poll_issue(S_PA, 23))
g.at(int(OPT.get("pb2", 40)), poll_issue(S_PA, 25))
g.at(int(OPT.get("st0", 32)), st_issue(0))
g.at(53, stq("t0 pre st") + st_check(0) + stq("t0 post st"))
g.fill(st_final(0), start=53, end=55)
g.at(57, stq("t0 pre pB") + poll_check2(S_PA, 23, 25, "3", f"s{S_E28}") + stq("t0 post pB"))
bq = sub()
bq.wait("act1")
bq("s_barrier")
g.at(27, bq.ins)
next_tile_reads(g, 1, 0, first=41)
e = g.fill(ad2.ins[NAD2:], start=0, cap=float(OPT.get("cap0", 6)))
assert e < min(e4, 40), e
e = g.fill(ad.ins, start=e, cap=float(OPT.get("cap0", 6)))
print("tile 0 address stream ends at", e, len(g.tail))
gap_stamps(g, "t0")
P.add(g.out())
stamp("tile0")
g = g1_gaps(1)
e = pin_vm(g, 0, act_dma(2)[:1] + [st_issue(1)] + act_dma(2)[1:] + act_dma(3), 2)
pin_vm(g, e + 1, WL[N0_:N0_ + N1_], min(2.5, (57 - e) / (4 * N1_)))
g.at(38, res_read(0))
g.at(39, res_read(1))
g.at(40, st_check(1))
g.fill(st_final(1), start=41, end=54)
bq = sub()
bq.wait("act2")
bq.wait("b1_27")
bq("s_barrier")
BB = int(OPT.get("bb", 48))
g.at(BB, stq("t1 pre bar") + bq.ins + stq("t1 post bar"))
next_tile_reads(g, 2, L_ACT[1], first=BB)
e = g.fill(g1_epi(0), start=3)
print("tile 1: epilogue ends at gap", e, "tail", len(g.tail))
gap_stamps(g, "t1")
P.add(g.out())
stamp("tile1")
g = g1_gaps(2)
pin_vm(g, 0, [wd_dma(6), wd_dma(7), st_issue(2), wd_dma(8), wd_dma(9)] + WL[N0_ + N1_:] + [st_issue(3)], 55 / (18 + 4 * (8 - N0_ - N1_)))
g.at(24, flag3(0))
bq = sub()
bq.wait("act3")
bq("s_barrier")
g.at(30, bq.ins)
g.at(49, st_check(2))
g.fill(st_final(2), start=50, end=54)
g.at(56, poll_issue(S_P3, 7))
next_tile_reads(g, 3, 0, first=41)
e = g.fill(g1_epi(1), start=3)
print("tile 2: epilogue ends at gap", e, "tail", len(g.tail))
gap_stamps(g, "t2")
P.add(g.out())
stamp("tile2")
g = g1_gaps(3)
T3S = float(OPT.get("t3s", 2.4))
e = pin_vm(g, 4, [wd_load(12), wd_load(13)], T3S)
g.at(int(OPT.get("f1", 21)), flag3(1))
g.at(48, st_check(3))
g.fill(st_final(3), start=49, end=54)
g.at(e - 1, stq("t3 pre p0") + poll_check(S_P3, 7) + stq("t3 post p0") + p3_next())
pin_vm(g, e, h_loads(0), T3S)
g.at(int(OPT.get("p1", 47)), poll_issue(S_P3, 7))
g.at(52, res_read(2))
g.at(54, res_read(3))
e = g.fill(g1_epi(2), start=2, cap=float(OPT.get("cap3", 7)))
print("tile 3: epilogue ends at gap", e, "tail", len(g.tail))
gap_stamps(g, "t3")
P.add(g.out())
stamp("tile3")
P.add(waitq("wd9") + wd_read(4) + wd_read(5))
ep = g1_epi_pk(3)
h1 = h_loads(1)
NE = int(OPT.get("ne", 0))
PC1 = poll_check(S_P3, 7) + p3_next()
F2E = int(OPT.get("f2e", 45))
ins_ = [(F2E, flag3(2))] if F2E >= 0 else []
if NE:
    P.add(sprinkle(ep, ins_ + [(45, PC1)] + [(46 + 14 * i, h1[i]) for i in range(NE)]))
else:
    P.add(sprinkle(ep, ins_) + PC1)
stamp("epi3")

OA = [8, 48]
OA = [224, 96]
RT = 176


NRM = int(OPT.get("nrm", 6))


def g2_mfma(J):
    m = sub()
    seq = [(ft, rt) for ft in KORD for rt in range(4)]
    if J == 3:
        seq = seq[:4 * (14 - NRM)] + [(ft, rt) for rt in range(4) for ft in KORD[14 - NRM:]]
    for ft, rt in seq:
        if True:
            d = acc(OA[J & 1] + 4 * rt, 4)
            c = "0" if ft == 0 else d
            m(f"v_mfma_f32_16x16x32_bf16 {d}, {wdr(ft,rt)}, {hreg(J,ft)}, {c}")
    return m.ins


RTMP = [28, 32, 36, 12]


def red_write(J):
    q = sub()
    for rt in range(4):
        q(f"ds_write_b128 {v(V_RW)}, {acc(OA[J&1]+4*rt,4)} offset:{(J&1)*R_SZ + rt*1152}")
    return q.ins


def red_bar():
    q = sub()
    q("s_waitcnt lgkmcnt(0)")
    q("s_barrier")
    return q.ins


def red_read(J):
    q = sub()
    for w in range(4):
        q(f"ds_read_b128 {v(RTMP[w],4)}, {v(V_RR)} offset:{(J&1)*R_SZ + w*4608}")
    return q.ins


def red_fin(J):
    q = sub()
    a, b, c, d = RTMP
    for i in range(2):
        q(f"v_lshlrev_b32 {v(16+2*i)}, 16, {v(RESR[J]+i)}")
        q(f"v_and_b32 {v(17+2*i)}, 0xffff0000, {v(RESR[J]+i)}")
    if J == 3 and "eps" not in OPT:
        for x, y in ((a, 16), (b, c), (a, d), (a, b)):
            for i in (0, 2):
                q(f"v_pk_add_f32 {v(x+i,2)}, {v(x+i,2)}, {v(y+i,2)}")
        for i in range(2):
            q(f"v_cvt_pk_bf16_f32 {v(20+i)}, {v(a+2*i)}, {v(a+2*i+1)}")
        q(f"s_mov_b32 s{S_T0}, {(1024*(J>>1) + 128*(J&1))*896}")
        q(f"buffer_store_dwordx2 v[20:21], {v(V_OST)}, {srd(SRD_OUT)}, s{S_T0} offen {OPT.get('ost', '').replace('_', ' ')}")
        return q.ins
    for i in range(4):
        q(f"v_add_f32 {v(a+i)}, {v(a+i)}, {v(b+i)}")
    for i in range(4):
        q(f"v_add_f32 {v(c+i)}, {v(c+i)}, {v(d+i)}")
    for i in range(4):
        q(f"v_add_f32 {v(a+i)}, {v(a+i)}, {v(16+i)}")
    for i in range(4):
        q(f"v_add_f32 {v(a+i)}, {v(a+i)}, {v(c+i)}")
    if "eps" in OPT:
        for i in range(4):
            q(f"v_mul_f32 {v(a+i)}, {f32(1.0+float(OPT['eps']))}, {v(a+i)}")
    for i in range(2):
        q(f"v_cvt_pk_bf16_f32 {v(20+i)}, {v(a+2*i)}, {v(a+2*i+1)}")
    q(f"s_mov_b32 s{S_T0}, {(1024*(J>>1) + 128*(J&1))*896}")
    q(f"buffer_store_dwordx2 v[20:21], {v(V_OST)}, {srd(SRD_OUT)}, s{S_T0} offen {OPT.get('ost', '').replace('_', ' ')}")
    return q.ins


for J in range(4):
    g = Gaps(g2_mfma(J), 2)
    if J > 0:
        pin_spread(g, 4, red_write(J - 1), per=1)
        g.at(16, red_bar())
        pin_spread(g, 17, red_read(J - 1), per=1)
        rf = red_fin(J - 1)
        e = g.fill(rf[:-1], start=26)
        g.at(e + 1, rf[-1:])
    if J == 0:
        pin_vm(g, 0, h1[NE:], float(OPT.get("hs1", 3)))
        if F2E < 0:
            g.at(int(OPT.get("f2", 2)), flag3(2))
        C2 = int(OPT.get("c2", 54))
        h2 = h_loads(2)
        n2 = 0
        if C2 < 56:
            g.at(C2, poll_check2(S_P3, 7, 23, "1", f"s{S_E14}") + p3_next())
            n2 = int((55 - C2) / 3.5) + 1
            pin_vm(g, C2, h2[:n2], 3.5)
        for i, x in enumerate(wd_read(6) + wd_read(7) + wd_read(8) + wd_read(9)):
            g.at(1 + 2 * i, [x])
        g.at(int(OPT.get("p2a", 12)), poll_issue(S_P3, 7))
        g.at(int(OPT.get("p2b", 30)), poll_issue(S_P3, 23))
        g.at(int(OPT.get("f3", 36)), flag3(3))
        bq = sub()
        bq.wait("res3")
        bq("s_barrier")
        g.at(52, bq.ins)
    if J == 1:
        if C2 >= 56:
            g.at(C2 - 56, poll_check2(S_P3, 7, 23, "1", f"s{S_E14}") + p3_next())
        pin_vm(g, max(C2 - 56, 1), h2[n2:], float(OPT.get("hs", 3.5)))
        g.at(int(OPT.get("p3a", 8)), poll_issue(S_P3, 7))
        g.at(int(OPT.get("p3b", 26)), poll_issue(S_P3, 23))
        C3 = int(OPT.get("c3", 50))
        g.at(C3, poll_check2(S_P3, 7, 23, "1", f"s{S_E14}"))
        h3 = h_loads(3)
        n3 = (55 - C3) // 3
        pin_vm(g, C3 + 1, h3[:n3], 3)
    if J == 2:
        pin_vm(g, 0, h3[n3:], float(OPT.get("hs3", 2)))
    if J == 3:
        rw3 = red_write(3)
        for i in range(3):
            g.at(min(55 - NRM * (3 - i) + 8, 55), [rw3[i]])
    P.add(g.out())
    stamp(f"g2 tile{J}")
P.add(rw3[3:])
P.add(red_bar())
P.add(red_read(3))
P.add(red_fin(3))
stamp("end")

if "hold" in OPT:
    if "cls" in OPT:
        P(f"s_and_b32 s98, s{S_W}, 7")
        P(f"s_cmp_lg_u32 s98, {OPT['cls']}")
        P("s_cbranch_scc1 L_fin")
    P("L_hold:")
    P("s_memrealtime s[98:99]")
    P("s_waitcnt lgkmcnt(0)")
    P("s_sub_u32 s98, s98, s100")
    P("s_cmp_lt_u32 s98, 4000")
    P("s_cbranch_scc1 L_hold")
P("L_fin:")
if STAMPS:
    P(f"s_lshl_b32 s{S_T0}, s{S_W}, 2")
    P(f"s_add_u32 s{S_T0}, s{S_T0}, s{S_V}")
    P(f"s_lshl_b32 s{S_T0}, s{S_T0}, 8")
    P(f"s_add_u32 s{S_T0}, s{S_T0}, {WS_DBG + 0x800000}")
    P(f"v_lshlrev_b32 v4, 2, v1")
    P(f"buffer_store_dword v255, v4, {srd(SRD_WS)}, s{S_T0} offen")
if "dbgout" in OPT:
    P(f"s_cmp_ge_u32 s{S_W}, 224")
    P("s_cbranch_scc1 L_end")
    P(f"v_readlane_b32 s{S_T0}, v255, 0")
    P(f"s_not_b32 s{S_T0}, s{S_T0}")
    P(f"v_writelane_b32 v255, s{S_T0}, 15")
    P("s_mov_b64 exec, 0xffff")
    P(f"v_lshlrev_b32 v4, 2, v1")
    P("global_atomic_umax v4, v255, s[60:61]")
P("L_end:")
P("s_endpgm")

XG = OPT.get("xg", "")
if XG:
    a_ = [k for k, i in enumerate(P.ins) if i.text == "; @ gemm1 start"][0]
    b_ = [k for k, i in enumerate(P.ins) if i.text == "; @ tile3"][0]
    seg = P.ins[a_:b_]
    if "w" in XG:
        seg = [i for i in seg if not (i.mn == "buffer_load_dwordx4" and (i.ops[0] == "v3" or i.ops[1] in ("v3", "v44")))]
    if "e" in XG:
        seg = [i for i in seg if not (i.cls in ("valu", "trans") and (i.wr & {f"v{r}" for r in range(EPT, EPT + 8)}))]
    if "b" in XG:
        seg = [i for i in seg if not (i.mn == "ds_read2st64_b32" and i.ops[1] == f"v{V_BR2}")]
    P.ins = P.ins[:a_] + seg + P.ins[b_:]
res = finalize(P.ins, verbose=True) + finalize(TAIL.ins) + finalize(SP.ins)
if "report" in OPT:
    report_waits(finalize(P.ins))
launch = f"; @launch kernel={KN} grid" if ("list" in OPT or STAMPS) else "; @launch grid"
hdr = f"""; Fused pre-LN S4D conv + GEGLU FFN, one persistent launch (generated by my own script)
{launch}=(256,1,1) block=(256,1,1) lds={LDS_SIZE}
.amdgcn_target "amdgcn-amd-amdhsa--gfx950"
.text
.globl {KN}
.p2align 12
.p2align 8
.type {KN},@function
{KN}:
"""
ftr = f"""
.p2align 8
.fill 64, 4, 0xbf800000
L_codeend:
.section .rodata,"a"
.p2align 6
.amdhsa_kernel {KN}
  .amdhsa_next_free_vgpr 512
  .amdhsa_next_free_sgpr 102
  .amdhsa_accum_offset 256
  .amdhsa_group_segment_fixed_size 0
  .amdhsa_kernarg_size 112
  .amdhsa_user_sgpr_count 2
  .amdhsa_user_sgpr_kernarg_segment_ptr 1
  .amdhsa_system_sgpr_workgroup_id_x 1
.end_amdhsa_kernel
"""
body = text_of(res)
WALKS = ([("early", "L_main", "L_walk_back")] if "w2" in OPT else []) + [("walk", "L_walk_back", "L_fin")]
body = place_pads2(hdr, body, ftr, 0x300, WALKS)
open(OUTF, "w").write(hdr + body + ftr)
src = open(__file__).read()
a = src.index("# ---------------- workspace layout")
b = src.index("# ---------------- LDS layout")
open("layout.py", "w").write(src[a:b] + "\nSTAMP_NAMES = " + repr(stamp_names) + "\nSPIN_NAMES = " + repr(spin_names) + "\n")
```

```python
import sys, math, struct
from asmgen import *

NAME = "sequential_preLN__ssm_conv_s4d__geglu_ffn__prompt"
KN = NAME + "_kernel"
OPT = {}
for a in sys.argv[1:]:
    k, _, val = a.partition("=")
    OPT[k] = val if val else True
STAMPS = "stamps" in OPT
OUTF = OPT.get("out", "k19.s")
OPT.setdefault("pfpos", "300,300")
OPT.setdefault("pa3", "84")
OPT.setdefault("w2", "b")


def f32(x):
    return "0x%08x" % struct.unpack("<I", struct.pack("<f", x))[0]


FS = 4
FREP = 0x9000
WS_EPOCH = 0
WS_F1 = 0x8000
WS_S2 = 0x58000
S2REP = 0x5000
WS_C = 0x80000
WS_UX = 0xD0000
WS_P = WS_UX + 256 * 14336
PROW = 4352
PGEN = 224 * PROW
WS_H = WS_P + 2 * PGEN
WS_WF = WS_H + 16 * 4 * 56 * 2048
WS_END = WS_WF + 392 * 4096
WS_DBG = 0x1000000
WS_SIZE = 0x2000000
LAYOUT = 5

CS = 4160
TAB_W = 14592
TAB_ROW = 272
L_KC = 58368
L_UX = 75008
L_EX = 0
L_RING = 98304
L_ACT = [0, 65536]
L_F = 131072
L_R = 65536
R_SZ = 18432
LDS_SIZE = 163840

S_W = 2
S_V = 4
S_T0, S_T1, S_T2, S_T3 = 5, 6, 7, 3
SRD_X, SRD_WS, SRD_WG, SRD_WU, SRD_WD, SRD_OUT = 8, 12, 16, 20, 24, 28
S_NONCE = 32
S_CNT = 33
S_EX = 34
S_PR, S_DSK = 64, 65
S_TB, S_FB, S_FH, S_DB = 66, 67, 68, 69
S_A, S_B, S_C, S_D = 70, 72, 74, 76
S_RING = 78
S_WOFF = 79
S_K0 = 80
S_TAB = 81
S_F3 = 82
S_F1, S_F2 = 83, 84
S_M255 = 86
S_FW, S_R2 = 88, 89
S_ACTW = 90
S_UXO = 91
S_PFB = 88
S_HR = 36
S_PA, S_P4, S_P3, S_PST, S_AB, S_WFB = 40, 41, 42, 43, 44, 45
S_E28, S_E14, S_CI = 46, 47, 85
S_F1L = 95
S_TCH = 50
S_UXM = 92
S_REP = 94
S_PERM = 93
S_STAMP = 96


def srd(n):
    return f"s[{n}:{n+3}]"


def v(n, w=1):
    return f"v{n}" if w == 1 else f"v[{n}:{n+w-1}]"


def acc(n, w=1):
    return f"a{n}" if w == 1 else f"a[{n}:{n+w-1}]"


P = Prog()
TAIL = Prog()
nstamp = [0]
stamp_names = []
spin_names = []
LITE = ("start", "conv start", "genA stored", "gemm1 start", "tile3", "end")
if "dbgout" in OPT:
    LITE = ("start", "x arrived", "ln1 done", "kgen r1", "conv start", "genA stored", "gemm1 start", "tile1", "tile3", "end")


def stamp(name, p=None):
    p = P if p is None else p
    p(f"; @ {name}")
    if OPT.get("hold", "").replace("_", " ") == name:
        p(f"s_memrealtime s[100:101]")
        p("s_waitcnt lgkmcnt(0)")
    if STAMPS and ("lite" not in OPT or name in LITE):
        k = nstamp[0]
        assert k < 32
        p(f"s_memrealtime s[{S_STAMP}:{S_STAMP+1}]")
        p(f"s_memtime s[{S_STAMP+2}:{S_STAMP+3}]")
        p("s_waitcnt lgkmcnt(0)")
        p(f"v_writelane_b32 v255, s{S_STAMP}, {k}")
        p(f"v_writelane_b32 v255, s{S_STAMP+2}, {32+k}")
        nstamp[0] += 1
        stamp_names.append(name)


def stq(name):
    q = sub()
    if "dbg" in OPT:
        stamp(name, q)
    return q.ins


lblc = [0]


def label(prefix):
    lblc[0] += 1
    return f"L_{prefix}_{lblc[0]}"


def poll_issue(what, vtmp):
    q = sub()
    q(f"v_mov_b32 {v(vtmp)}, 0")
    if what == "F1":
        q(f"buffer_atomic_add {v(vtmp)}, {v(V_F1)}, {srd(SRD_WS)}, 0 offen sc0")
    else:
        q(f"buffer_atomic_add {v(vtmp)}, {v(V_PM if what == S_PA else V_P1)}, {srd(SRD_WS)}, s{what} offen sc0")
    return q.ins


def spin(t, name, done, reissue, vtag, sleep=2, exp=None):
    t(f"{name}:")
    t(f"s_mov_b32 s{S_CNT}, 0")
    t(f"{name}_l:")
    t("s_mov_b64 exec, vcc")
    t(f"s_sleep {sleep}")
    t.add(reissue)
    t("s_waitcnt vmcnt(0)")
    t(f"v_cmp_ne_u32 vcc, {exp or f's{S_NONCE}'}, {v(vtag)}")
    t("s_mov_b64 exec, -1")
    if STAMPS and "lite" in OPT:
        spin_names.append(name)
        t(f"s_add_u32 s{S_STAMP}, s{S_CNT}, 1")
        t(f"v_writelane_b32 v255, s{S_STAMP}, {10+len(spin_names)-1}")
    t(f"s_cbranch_vccz {done}")
    t(f"s_add_u32 s{S_CNT}, s{S_CNT}, 1")
    t(f"s_cmp_lt_u32 s{S_CNT}, 0x40000")
    t(f"s_cbranch_scc1 {name}_l")
    t(f"s_branch {done}")


def poll_check(what, vtmp):
    q = sub()
    slow, done = label("slow"), label("pdone")
    exp = f"s{S_NONCE}" if what == "F1" else (f"s{S_E14}" if what == S_P3 else f"s{S_E28}")
    q(f"v_cmp_ne_u32 vcc, {exp}, {v(vtmp)}")
    if what == "F1":
        q(f"s_cbranch_vccnz {slow}")
    else:
        q(f"s_and_b64 vcc, vcc, {3 if what == S_PA else 1}")
        q(f"s_cbranch_scc1 {slow}")
    q(f"{done}:")
    spin(TAIL, slow, done, poll_issue(what, vtmp), vtmp, exp=exp, sleep=1)
    return q.ins


def poll_check2(vaddr, v1, v2, mask, exp):
    q = sub()
    slow, done = label("slow"), label("pdone")
    q(f"v_cmp_ne_u32 vcc, {exp}, {v(v1)}")
    q(f"s_and_b64 vcc, vcc, {mask}")
    q(f"s_cbranch_scc0 {done}")
    q.cond(True)
    q(f"v_cmp_ne_u32 vcc, {exp}, {v(v2)}")
    q(f"s_and_b64 vcc, vcc, {mask}")
    q(f"s_cbranch_scc1 {slow}")
    q.cond(False)
    q(f"{done}:")
    spin(TAIL, slow, done, poll_issue(vaddr, v1), v1, exp=exp, sleep=1)
    return q.ins


def poll_checkn(what, regs, mask, exp):
    q = sub()
    slow, done = label("slow"), label("pdone")
    for k, r in enumerate(regs):
        q(f"v_cmp_ne_u32 vcc, {exp}, {v(r)}")
        q(f"s_and_b64 vcc, vcc, {mask}")
        q(f"s_cbranch_scc0 {done}" if k < len(regs) - 1 else f"s_cbranch_scc1 {slow}")
        q.cond(True)
    q.cond(False)
    q(f"{done}:")
    spin(TAIL, slow, done, poll_issue(what, regs[0]), regs[0], exp=exp, sleep=1)
    return q.ins


def setflag(p, soff):
    if "fst" in OPT:
        p(f"buffer_store_dword {v(V_NONCE)}, {v(V_FLG)}, {srd(SRD_WS)}, s{soff} offen sc1")
    else:
        p(f"buffer_atomic_swap {v(V_NONCE)}, {v(V_FLG)}, {srd(SRD_WS)}, s{soff} offen")


def addcnt(p, soff, vl):
    p(f"buffer_atomic_add {v(V_NONCE)}, {v(vl)}, {srd(SRD_WS)}, s{soff} offen")


def lanes_reg(p, dst, n, sh, t1=4):
    p(f"v_and_b32 {v(t1)}, {64-n}, {v(V_LANE)}")
    p(f"v_lshlrev_b32 {v(t1)}, 25, {v(t1)}")
    p(f"v_lshl_add_u32 {v(dst)}, {v(V_LANE)}, {sh}, {v(t1)}")


def walk(name):
    P.raw("s_mov_b64 exec, 0")
    for c in range(3):
        P.raw(f"s_cmp_eq_u32 s{S_V}, {c}")
        P.raw(f"s_cbranch_scc1 L_{name}{c}")
    P.raw(f"s_branch L_{name}3")
    P(f"L_{name}_back:")
    P.raw("s_mov_b64 exec, -1")


def waitq(tok):
    q = sub()
    q.wait(tok)
    return q.ins


def cmul(p, z, x, y):
    p(f"v_pk_mul_f32 {v(z,2)}, {v(x,2)}, {v(y,2)} op_sel:[0,0] op_sel_hi:[0,1]")
    p(f"v_pk_fma_f32 {v(z,2)}, {v(x,2)}, {v(y,2)}, {v(z,2)} op_sel:[1,1,0] op_sel_hi:[1,0,1] neg_lo:[1,0,0]")


def round_bf16(p, dst, src):
    p(f"v_cvt_pk_bf16_f32 {v(dst)}, {v(src)}, {v(src)}")
    p(f"v_and_b32 {v(dst)}, 0xffff0000, {v(dst)}")


V_LANE, V_NONCE, V_L16 = 1, 2, 3
V_FLG = 8
V_W = 9
V_TRA = 13
V_TA, V_TB, V_TW = 14, 15, 16
GA = 17
V_F1, V_UXL = 26, 27
V_KA = 28
V_UA = 32
V_EU, V_EXP, V_EXW, V_EXR, V_FL2 = 36, 37, 38, 39, 40
V_GW, V_GX, V_GR, V_S3, V_DSK = 240, 241, 242, 243, 244
V_EU1 = 41
V_DT = 42
V_PM = 43
V_P1 = 252
PR = 44
V_PF = 254

LOG2E = 1.4426950408889634

if OPT.get("hold") == "entry" or "entry" in OPT:
    P("s_memrealtime s[100:101]")
P(f"s_cmp_ge_u32 s{S_W}, 256")
P("s_cbranch_scc1 L_end")
P(f"s_load_dwordx16 s[36:51], s[0:1], 0")
if "ksplit" not in OPT:
    P(f"s_load_dwordx8 s[52:59], s[0:1], 64")
    P(f"s_load_dwordx4 s[60:63], s[0:1], 96")
if "nocpf" not in OPT:
    P(f"s_getpc_b64 s[{S_B}:{S_B+1}]")
    P("L_pc:")
    P(f"s_bfe_u32 s{S_T2}, s{S_W}, 0x30003")
    P(f"s_mul_i32 s{S_T2}, s{S_T2}, ((L_codeend-L_pc)/1024)*128")
    P(f"v_cmp_gt_u32 vcc, (L_codeend-L_pc)/1024, v0")
    P(f"s_add_u32 s{S_B}, s{S_B}, s{S_T2}")
    P(f"s_addc_u32 s{S_B+1}, s{S_B+1}, 0")
    P(f"v_lshlrev_b32 v6, 7, v0")
    P(f"s_and_saveexec_b64 s[{S_A}:{S_A+1}], vcc")
    P("s_cbranch_execz L_nocpf")
    P.cond(True)
    P(f"v_mov_b32 v7, s{S_B+1}")
    P(f"v_add_co_u32 v6, vcc, s{S_B}, v6")
    P(f"v_addc_co_u32 v7, vcc, 0, v7, vcc")
    P(f"global_load_dword v251, v[6:7], off")
    P.cond(False)
    P("L_nocpf:")
    P("s_mov_b64 exec, -1")
if STAMPS:
    P("v_mov_b32 v255, 0")
P(f"v_and_b32 {v(V_LANE)}, 63, v0")
P(f"v_lshrrev_b32 v4, 6, v0")
P(f"v_lshlrev_b32 {v(V_L16)}, 4, {v(V_LANE)}")
P(f"v_readfirstlane_b32 s{S_V}, v4")
P(f"v_mov_b32 v5, 0x7ff00000")
P(f"v_cmp_gt_u32 vcc, 56, {v(V_LANE)}")
P(f"s_lshl_b32 s{S_T0}, s{S_W}, 2")
P(f"s_add_u32 s{S_T0}, s{S_T0}, s{S_V}")
P(f"v_cndmask_b32 v4, v5, {v(V_L16)}, vcc")
P(f"s_mul_i32 s{S_T0}, s{S_T0}, 1792")
PB = sub()
PB(f"s_and_b32 s{S_T1}, s{S_W}, 7")
PB(f"s_mul_i32 s{S_T1}, s{S_T1}, 28")
PB(f"s_lshr_b32 s{S_T2}, s{S_W}, 3")
PB(f"s_add_u32 s{S_T1}, s{S_T1}, s{S_T2}")
PB(f"s_min_u32 s{S_PR}, s{S_T1}, 223")
PB(f"s_lshl_b32 s{S_T2}, s{S_PR}, 10")
PB(f"v_lshl_add_u32 v6, v0, 2, s{S_T2}")
PB(f"v_mov_b32 v7, 0")
PB(f"s_lshl_b32 s{S_T1}, s{S_PR}, 2")
PB(f"v_mov_b32 v56, s{S_T1}")
PB(f"s_mov_b32 s{SRD_WS+2}, {WS_SIZE}")
PB(f"s_mov_b32 s{SRD_WS+3}, 0x00020000")
if "short" not in OPT:
    P.add(PB.ins)
P(f"s_mov_b32 s{SRD_X+2}, 1835008")
P(f"s_mov_b32 s{SRD_X+3}, 0x00020000")
P("s_waitcnt lgkmcnt(0)")
stamp("start")
if "entry" in OPT:
    P("v_writelane_b32 v255, s100, 0")
P(f"s_mov_b64 s[{SRD_X}:{SRD_X+1}], s[36:37]")
XR = 48
P(f"buffer_load_dwordx4 {v(XR,4)}, v4, {srd(SRD_X)}, s{S_T0} offen")
P(f"buffer_load_dwordx4 {v(XR+4,4)}, v4, {srd(SRD_X)}, s{S_T0} offen offset:896")
if "short" in OPT:
    P.add(PB.ins)
if "ksplit" in OPT:
    P(f"s_load_dwordx8 s[52:59], s[0:1], 64")
    P(f"s_load_dwordx4 s[60:63], s[0:1], 96")
for r, src, sz in ((SRD_WG, 52, 1605632), (SRD_WU, 54, 1605632), (SRD_WD, 56, 1605632), (SRD_OUT, 58, 1835008)):
    P(f"s_mov_b32 s{r+2}, {sz}")
    P(f"s_mov_b32 s{r+3}, 0x00020000")
P(f"v_cmp_lt_u32 vcc, {int(OPT.get('nrep', 4))+1}, {v(V_LANE)}")
P(f"v_mul_u32_u24 v4, {FREP}, {v(V_LANE)}")
P(f"s_lshr_b32 s{S_T0}, s{S_W}, 3")
P(f"s_mul_i32 s{S_T1}, s{S_T0}, 37")
P(f"v_cndmask_b32 {v(V_FLG)}, v4, v5, vcc")
P(f"s_lshr_b32 s{S_T1}, s{S_T1}, 8")
P(f"s_mul_i32 s{S_T2}, s{S_T1}, 7")
P(f"s_sub_u32 s{S_DB}, s{S_T0}, s{S_T2}")
P(f"s_and_b32 s{S_FH}, s{S_W}, 1")
P(f"s_and_b32 s{S_T2}, s{S_W}, 6")
P(f"s_lshl_b32 s{S_T2}, s{S_T2}, 1")
P(f"s_add_u32 s{S_TB}, s{S_T2}, s{S_T1}")
P(f"s_mul_i32 s{S_FB}, s{S_FH}, 7")
P(f"s_add_u32 s{S_FB}, s{S_FB}, s{S_DB}")
P(f"s_lshl_b32 s{S_RING}, s{S_V}, 13")
P(f"s_add_u32 s{S_RING}, s{S_RING}, {L_RING}")
P(f"s_mul_i32 s{S_TAB}, s{S_V}, {TAB_W}")
for _ in range(int(OPT.get("xd", 0))):
    P("s_nop 7")
for i in range(4):
    P(f"global_load_dword {v(PR+i)}, v6, s[{38+2*i}:{39+2*i}]")
P(f"global_load_dword {v(V_DT)}, v56, s[46:47]")
P(f"global_load_dword {v(V_DSK)}, v56, s[48:49]")
if "ksplit" in OPT:
    P("s_waitcnt lgkmcnt(0)")
P(f"s_mov_b64 s[{SRD_WS}:{SRD_WS+1}], s[62:63]")
for r, src in ((SRD_WG, 52), (SRD_WU, 54), (SRD_WD, 56), (SRD_OUT, 58)):
    P(f"s_mov_b64 s[{r}:{r+1}], s[{src}:{src+1}]")
P(f"buffer_load_dword {v(V_NONCE)}, v7, {srd(SRD_WS)}, 0 offen sc1")
NOPF = "nopf" in OPT
if not NOPF:
    P(f"s_bitcmp1_b32 s{S_V}, 0")
    P(f"s_cselect_b64 s[{S_PFB}:{S_PFB+1}], s[54:55], s[52:53]")
    P(f"s_lshr_b32 s{S_T0}, s{S_V}, 1")
    P(f"s_lshl1_add_u32 s{S_T2}, s{S_W}, s{S_T0}")
    EPF = int(OPT.get("epf", 7))
    P(f"s_mul_i32 s{S_T0}, s{S_T2}, {EPF*128}")
    if EPF == 25:
        P(f"s_min_u32 s{S_T0}, s{S_T0}, {(12544-25)*128}")
    P(f"v_min_u32 v4, {EPF-1}, {v(V_LANE)}")
    P(f"v_lshl_add_u32 v248, v4, 7, s{S_T0}")
    PFW = sub()
    PFW(f"global_load_dword {v(V_PF)}, v248, s[{S_PFB}:{S_PFB+1}]")
    PFD = sub()
    PFD(f"global_load_dword v253, v245, s[56:57]")
    if "pfpos" not in OPT:
        P.add(PFW.ins)
    P(f"s_mul_i32 s{S_T0}, s{S_W}, 49")
    P(f"s_mul_i32 s{S_T2}, s{S_V}, 12")
    P(f"s_add_u32 s{S_T0}, s{S_T0}, s{S_T2}")
    P(f"v_min_u32 v4, 12, {v(V_LANE)}")
    P(f"v_add_lshl_u32 v245, v4, s{S_T0}, 7")
    if "nowd" in OPT:
        P(f"v_mov_b32 v245, 0")
    if "wdlate" not in OPT and "pfpos" not in OPT:
        P.add(PFD.ins)
    PF_AT = len(P.ins)
if "xprobe" in OPT:
    stamp("issued")
    P(f"v_mov_b32 v4, {v(XR+4)}")
    stamp("x here")
    P(f"v_mov_b32 v4, {v(V_DSK)}")
    stamp("par here")
P(f"v_cmp_gt_u32 vcc, 32, {v(V_LANE)}")
P(f"v_mul_u32_u24 v4, 37, {v(V_LANE)}")
P(f"v_lshrrev_b32 v4, 9, v4")
P(f"v_cndmask_b32 {v(V_S3)}, v5, {v(V_L16)}, vcc")
P(f"v_mul_u32_u24 v4, {TAB_W-14*272}, v4")
P(f"v_mul_u32_u24 v6, 272, {v(V_LANE)}")
P(f"s_lshl_b32 s{S_T0}, s{S_V}, 2")
P(f"v_add3_u32 {v(V_GW)}, v4, v6, s{S_T0}")
P(f"v_add_u32 {v(V_GX)}, s{S_T0}, {v(V_GW)}")
P(f"s_lshl_b32 s{S_UXM}, s{S_V}, 12")
P(f"s_add_u32 s{S_UXM}, s{S_UXM}, {L_UX+2048}")
P(f"v_and_b32 v4, 48, {v(V_LANE)}")
P(f"v_add3_u32 {v(V_GR)}, v4, {v(V_L16)}, s{S_TAB}")
P(f"v_and_b32 v4, 31, {v(V_LANE)}")
P(f"v_lshrrev_b32 v6, 5, {v(V_LANE)}")
P(f"v_lshl_add_u32 v6, v6, 4, s{S_TAB}")
P(f"v_and_b32 v7, 28, {v(V_LANE)}")
P(f"v_lshl_add_u32 v7, v4, 5, v7")
P(f"v_add_u32 {v(V_TW)}, v6, v7")
P(f"v_mul_u32_u24 v7, {TAB_ROW}, v4")
P(f"v_add_u32 {v(V_TB)}, v6, v7")
P(f"v_subrev_u32 v7, 16, v4")
P(f"v_cmp_lt_u32 vcc, 20, v4")
P(f"s_lshl2_add_u32 s{S_CI}, s{S_W}, s{S_V}")
P(f"s_lshl_b32 s{S_CI}, s{S_CI}, 8")
P(f"v_cndmask_b32 v4, v4, v7, vcc")
P(f"v_mul_u32_u24 v7, {TAB_ROW}, v4")
P(f"v_add_u32 {v(V_TA)}, v6, v7")
P(f"s_add_u32 s{S_CI}, s{S_CI}, {WS_C}")
P(f"v_lshlrev_b32 {v(V_P1)}, 25, {v(V_LANE)}")
P(f"s_mul_i32 s{S_UXO}, s{S_W}, 14336")
P(f"s_mul_i32 s{S_T0}, s{S_V}, 3584")
P(f"s_add_u32 s{S_UXO}, s{S_UXO}, s{S_T0}")
P(f"s_add_u32 s{S_UXO}, s{S_UXO}, {WS_UX}")
P(f"s_lshl_b32 s{S_T0}, s{S_V}, 8")
P(f"s_add_u32 s{S_T0}, s{S_T0}, s{S_W}")
P(f"s_mul_i32 s{S_T0}, s{S_T0}, {FS}")
P(f"s_add_u32 s{S_F1}, s{S_T0}, {WS_F1}")
P(f"v_lshrrev_b32 v4, 2, {v(V_LANE)}")
P(f"v_mul_u32_u24 v4, 3584, v4")
P(f"v_and_b32 v6, 3, {v(V_LANE)}")
P(f"v_lshl_add_u32 v4, v6, 4, v4")
P(f"s_lshl_b32 s{S_T0}, s{S_FB}, 8")
P(f"s_lshl_b32 s{S_T1}, s{S_V}, 6")
P(f"s_add_u32 s{S_T0}, s{S_T0}, s{S_T1}")
P(f"v_add_u32 {v(V_W)}, s{S_T0}, v4")
if "fakerot" in OPT:
    P(f"s_and_b32 s{S_T2}, s{S_TB}, {OPT['fakerot']}")
    P(f"s_mul_i32 s{S_T2}, s{S_T2}, {int(OPT.get('rs', 4))*57344//4}")
    P(f"v_add_u32 {v(V_W)}, s{S_T2}, {v(V_W)}")
if "fake128" in OPT:
    P(f"v_lshrrev_b32 v4, 3, {v(V_LANE)}")
    P(f"v_mul_u32_u24 v4, 3584, v4")
    P(f"v_and_b32 v7, 0x70, {v(V_L16)}")
    P(f"s_and_b32 s{S_T0}, s{S_T0}, 0xffffff80")
    P(f"s_and_b32 s{S_T2}, s{S_V}, 1")
    P(f"s_mul_i32 s{S_T2}, s{S_T2}, {8*3584}")
    P(f"s_add_u32 s{S_T0}, s{S_T0}, s{S_T2}")
    P(f"v_add3_u32 {v(V_W)}, v4, v7, s{S_T0}")
for k in range(1, 4):
    P(f"v_add_u32 {v(V_W+k)}, {k*(57344-1024)}, {v(V_W)}")
SETUP_A = len(P.ins)
P(f"v_and_b32 v4, 32, {v(V_LANE)}")
P(f"v_lshlrev_b32 v4, 4, v4")
P(f"v_and_b32 v7, 12, {v(V_LANE)}")
P(f"v_lshl_add_u32 v4, v7, 4, v4")
P(f"v_and_b32 v7, 16, {v(V_LANE)}")
P(f"v_lshl_add_u32 v4, v7, 1, v4")
P(f"v_lshl_add_u32 v4, v6, 3, v4")
P(f"v_add_u32 {v(V_TRA)}, s{S_RING}, v4")
P(f"s_mov_b32 s{S_K0}, {L_KC+4096-L_UX}")
P(f"s_movk_i32 s{S_T2}, 128")
P(f"s_bfe_u32 s{S_T0}, s{S_W}, 0x20001")
P(f"s_lshl_b32 s{S_T0}, s{S_T0}, 10")
P(f"s_lshr_b32 s{S_F2}, s{S_T0}, 2")
NREP = int(OPT.get("nrep", 4))
P(f"s_bfe_u32 s{S_REP}, s{S_W}, {hex((NREP.bit_length()-1)*65536+3)}")
P(f"s_sub_u32 s{S_F1L}, s{S_FH}, s{S_REP}")
P(f"s_add_u32 s{S_F1L}, s{S_F1L}, {NREP}")
P(f"s_mul_i32 s{S_F1L}, s{S_F1L}, {FREP}")
P(f"s_mul_i32 s{S_REP}, s{S_REP}, {FREP}")
P(f"s_add_u32 s{S_REP}, s{S_REP}, {WS_F1}")
P(f"s_add_u32 s{S_T0}, s{S_T0}, s{S_REP}")
P(f"v_lshl_add_u32 {v(V_F1)}, v0, 2, s{S_T0}")
P(f"v_lshrrev_b32 v4, 2, {v(V_LANE)}")
P(f"v_add_u32 v4, s{S_T1}, v4")
P(f"v_mul_u32_u24 v7, 14336, v4")
P(f"v_lshrrev_b32 v4, 4, {v(V_LANE)}")
P(f"v_xor_b32 v6, v6, v4")
P(f"v_lshl_add_u32 v7, v6, 4, v7")
P(f"s_lshl_b32 s{S_T0}, s{S_PR}, 6")
P(f"s_add_u32 s{S_T0}, s{S_T0}, {WS_UX}")
P(f"v_add_u32 {v(V_UXL)}, s{S_T0}, v7")
P(f"v_bfe_u32 v6, {v(V_LANE)}, 1, 2")
P(f"v_mul_u32_u24 v6, {CS}, v6")
P(f"v_and_b32 v7, 16, {v(V_L16)}")
P(f"v_add3_u32 v6, v6, v7, s{S_K0}")
P(f"v_lshlrev_b32 v7, 4, v0")
P(f"v_cmp_gt_u32 vcc, s{S_T2}, v0")
P(f"v_mov_b32 v56, 0")
P(f"v_mov_b32 v57, 0")
P(f"v_cndmask_b32 v6, v6, v7, vcc")
P(f"v_mov_b32 v58, 0")
P(f"v_mov_b32 v59, 0")
P(f"v_add_u32 v6, {L_UX}, v6")
P(f"ds_write_b128 v6, v[56:59]")
P(f"v_lshlrev_b32 v4, 3, v0")
P(f"v_sub_u32 v4, 2047, v4")
P(f"v_cvt_f32_i32 v4, v4")
P(f"v_mov_b32 v60, 1028")
P(f"v_cmp_eq_u32 vcc, 0, v0")
for e in range(0, 10, 2):
    P(f"v_add_f32 v6, {f32(-float(e))}, v4")
    if e < 8:
        P(f"v_add_f32 v7, {f32(-float(e+1))}, v4")
    P(f"v_cvt_pk_bf16_f32 v6, v6, v7")
    for h in range(2):
        if e + h > 8:
            continue
        d = GA + e + h
        if h == 0:
            P(f"v_lshlrev_b32 v7, 16, v6")
        else:
            P(f"v_and_b32 v7, 0xffff0000, v6")
        P(f"v_cvt_u32_f32 v7, v7")
        if e + h < 4:
            P(f"v_cndmask_b32 v7, v7, v60, vcc")
        P(f"v_lshrrev_b32 {v(d)}, 5, v7")
        P(f"v_add_lshl_u32 {v(d)}, {v(d)}, v7, 2")
P(f"v_mov_b32 v4, 255")
P(f"v_cmp_eq_u32 s[{S_M255}:{S_M255+1}], v4, v0")
P(f"v_and_b32 v4, 15, {v(V_LANE)}")
P(f"v_lshrrev_b32 v5, 4, {v(V_LANE)}")
P(f"v_lshl_add_u32 v6, v5, 3, v4")
P(f"v_sub_u32 v6, 39, v6")
P(f"v_and_b32 v7, 1, v6")
P(f"v_mul_u32_u24 v7, {CS-2}, v7")
P(f"v_lshl_add_u32 v6, v6, 1, v7")
P(f"s_lshr_b32 s{S_T0}, s{S_V}, 1")
P(f"s_andn2_b32 s{S_T3}, 1, s{S_V}")
P(f"s_mul_i32 s{S_T2}, s{S_T0}, {2*CS}")
P(f"s_lshl_b32 s{S_T1}, s{S_T3}, 8")
P(f"s_add_u32 s{S_T2}, s{S_T2}, s{S_T1}")
P(f"s_add_u32 s{S_T2}, s{S_T2}, {L_KC}")
P(f"v_add_u32 {v(V_KA+3)}, s{S_T2}, v6")
for k in range(3):
    P(f"v_add_u32 {v(V_KA+k)}, {64*(48-16*k)}, {v(V_KA+3)}")
P(f"v_lshlrev_b32 v6, 1, v4")
P(f"v_sub_u32 v6, v6, v5")
P(f"s_lshl4_add_u32 s{S_T1}, s{S_T3}, 17")
P(f"v_add_u32 v6, s{S_T1}, v6")
P(f"s_mov_b32 s{S_T2}, {L_UX}")
for rr in range(4):
    P(f"v_bfe_u32 v7, v6, 2, 2")
    P(f"v_xor_b32 v7, s{S_T0}, v7")
    P(f"v_lshl_add_u32 v7, v6, 2, v7")
    P(f"v_lshl_add_u32 {v(V_UA+rr)}, v7, 4, s{S_T2}")
    if rr < 3:
        P(f"v_subrev_u32 v6, 4, v6")
EB = sub()
if "nomv" not in OPT:
    EB(f"v_and_b32 v4, 15, {v(V_LANE)}")
    EB(f"v_lshrrev_b32 v5, 4, {v(V_LANE)}")
EB(f"v_lshrrev_b32 v6, 1, v5")
EB(f"v_lshl_add_u32 v6, v4, 1, v6")
EB(f"s_lshl_b32 s{S_T2}, s{S_V}, 11")
EB(f"s_add_u32 s{S_T2}, s{S_T2}, {L_UX+2048}")
EB(f"v_lshl_add_u32 v6, v6, 6, s{S_T2}")
EB(f"v_bfe_u32 v4, v4, 1, 2")
EB(f"v_and_b32 v5, 1, v5")
EB(f"v_lshl_add_u32 v247, v4, 4, v6")
EB(f"v_lshl_add_u32 {v(V_EU)}, v5, 3, v247")
EB(f"v_xor_b32 {v(V_EU1)}, 16, {v(V_EU)}")
EB(f"v_or_b32 v5, 2, v5")
EB(f"v_xor_b32 v4, v4, v5")
EB(f"v_lshl_add_u32 {v(V_EXP)}, v4, 4, v6")
if "nomv" in OPT:
    P.add(EB.ins)
P(f"s_mul_i32 s{S_ACTW}, s{S_V}, 7168")
P(f"v_add_u32 {v(V_EXR)}, s{S_ACTW}, {v(V_L16)}")
P(f"v_lshlrev_b32 {v(V_EXW)}, 4, v0")
P(f"s_mul_i32 s{S_PST}, s{S_PR}, {PROW}")
P(f"s_add_u32 s{S_PST}, s{S_PST}, {WS_P}")
CB = sub()
lanes_reg(CB, V_FL2, 4, 10)
lanes_reg(CB, V_PM, 2, 12)
CB(f"s_lshl1_add_u32 s{S_T0}, s{S_V}, s{S_FH}")
CB(f"s_lshl_b32 s{S_T0}, s{S_T0}, 12")
CB(f"s_add_u32 s{S_F2}, s{S_F2}, s{S_T0}")
CB(f"s_add_u32 s{S_F2}, s{S_F2}, {WS_C}")
CB(f"s_lshr_b32 s{S_T0}, s{S_TB}, 2")
CB(f"s_bfe_u32 s{S_REP}, s{S_W}, 0x20003")
CB(f"s_lshl3_add_u32 s{S_T0}, s{S_T0}, s{S_REP}")
CB(f"s_lshl2_add_u32 s{S_T0}, s{S_T0}, s{S_V}")
CB(f"s_lshl_b32 s{S_T0}, s{S_T0}, 8")
CB(f"s_add_u32 s{S_PA}, s{S_T0}, {WS_C}")
CB(f"s_lshl2_add_u32 s{S_T2}, s{S_DB}, s{S_V}")
CB(f"s_lshl2_add_u32 s{S_T3}, s{S_T2}, s{S_REP}")
CB(f"s_lshl_b32 s{S_T3}, s{S_T3}, 8")
CB(f"s_add_u32 s{S_P4}, s{S_T3}, {WS_C + 896*256}")
CB(f"s_mul_i32 s{S_T2}, s{S_T2}, {14*4096}")
CB(f"s_add_u32 s{S_WFB}, s{S_T2}, {WS_WF}")
CB(f"s_mul_i32 s{S_T1}, s{S_V}, {56*PROW}")
CB(f"s_lshl_b32 s{S_T0}, s{S_TB}, 8")
CB(f"s_add_u32 s{S_T0}, s{S_T0}, s{S_T1}")
CB(f"s_add_u32 s{S_AB}, s{S_T0}, {WS_P}")

if "nomv" in OPT:
    P.add(CB.ins)

if "pfpos" in OPT:
    a_, b_ = [int(x) for x in OPT["pfpos"].split(",")]
    P.ins = P.ins[:PF_AT] + sprinkle(P.ins[PF_AT:], [(a_, PFW.ins), (b_, PFD.ins)])
NS = int(OPT.get("ns", 0))
if NS:
    us = []
    for n in range(NS):
        i_, k_ = n // 4, n % 4
        q = sub()
        if k_ == 0:
            q(f"s_add_u32 m0, s{S_RING}, {(4*i_ % 8) * 1024 + (4*i_ // 8) * 32768}")
            if n % 8 == 0:
                q(f"s_mov_b32 s{S_WOFF}, {(i_//2)*4*57344}")
        o = f" offset:{1024*k_}" if k_ else ""
        q(f"buffer_load_dwordx4 {v(V_W+k_)}, {srd(SRD_WU if i_ % 2 else SRD_WG)}, s{S_WOFF} offen{o} lds", tok=f"w1_{i_}")
        us.append(q.ins)
    tail_ = P.ins[SETUP_A:]
    st_ = int(OPT.get("ns0", 0))
    step = (len(tail_) - st_) / NS
    P.ins = P.ins[:SETUP_A] + sprinkle(tail_, [(int(st_ + step * n), u) for n, u in enumerate(us)])
XF = 56
DF = 72
SA = 88
if "fine" in OPT: stamp("setup done")
P(f"s_mov_b32 s{S_K0}, {f32(1.0/448)}")
P(f"v_mov_b32 v4, {f32(1e-5)}")
P("s_mov_b32 exec_hi, 0x00ffffff")
for r in range(2):
    for i in range(4):
        P(f"v_lshlrev_b32 {v(XF+8*r+2*i)}, 16, {v(XR+4*r+i)}")
        P(f"v_and_b32 {v(XF+8*r+2*i+1)}, 0xffff0000, {v(XR+4*r+i)}")
    P(f"v_readfirstlane_b32 s{(S_A, S_B)[r]}, {v(XF+8*r)}")
stamp("x arrived")
if "wdlate" in OPT and not NOPF:
    P(f"global_load_dword v253, v245, s[56:57]")
for i in range(4):
    P(f"ds_write2_b32 {v(V_GX)}, {v(XR+i)}, {v(XR+4+i)} offset0:{16*i+8} offset1:{16*i+9}")
for r, sm in ((0, S_A), (1, S_B)):
    for i in range(4):
        P(f"v_pk_add_f32 {v(XF+8*r+2*i,2)}, {v(XF+8*r+2*i,2)}, s[{sm}:{sm+1}] op_sel_hi:[1,0] neg_lo:[0,1] neg_hi:[0,1]")
for r in range(2):
    b = XF + 8 * r
    t = DF + 8 * r
    P(f"v_pk_add_f32 {v(t,2)}, {v(b,2)}, {v(b+2,2)}")
    P(f"v_pk_mul_f32 {v(t+2,2)}, {v(b,2)}, {v(b,2)}")
    P(f"v_pk_add_f32 {v(t,2)}, {v(t,2)}, {v(b+4,2)}")
    for i in range(1, 4):
        P(f"v_pk_fma_f32 {v(t+2,2)}, {v(b+2*i,2)}, {v(b+2*i,2)}, {v(t+2,2)}")
    P(f"v_pk_add_f32 {v(t,2)}, {v(t,2)}, {v(b+6,2)}")
for r in range(2):
    t = DF + 8 * r
    P(f"v_add_f32 {v(SA+r)}, {v(t)}, {v(t+1)}")
    P(f"v_add_f32 {v(SA+2+r)}, {v(t+2)}, {v(t+3)}")


def wave_sum(p, regs):
    for mod in ("row_shr:1", "row_shr:2", "row_shr:4", "row_shr:8"):
        for r in regs:
            p(f"v_add_f32_dpp {v(r)}, {v(r)}, {v(r)} {mod} row_mask:0xf bank_mask:0xf bound_ctrl:0")
    for r in regs:
        p(f"v_add_f32_dpp {v(r)}, {v(r)}, {v(r)} row_bcast:15 row_mask:0xa bank_mask:0xf")
    for r in regs:
        p(f"v_add_f32_dpp {v(r)}, {v(r)}, {v(r)} row_bcast:31 row_mask:0xc bank_mask:0xf")


wave_sum(P, [SA, SA + 2, SA + 1, SA + 3])
P(f"v_pk_mul_f32 {v(SA,2)}, {v(SA,2)}, s[{S_K0}:{S_K0+1}] op_sel_hi:[1,0]")
P(f"v_pk_fma_f32 {v(SA+2,2)}, {v(SA+2,2)}, s[{S_K0}:{S_K0+1}], v[4:5] op_sel_hi:[1,0,0]")
P(f"v_pk_fma_f32 {v(SA+2,2)}, {v(SA,2)}, {v(SA,2)}, {v(SA+2,2)} neg_lo:[1,0,0] neg_hi:[1,0,0]")
for r in range(2):
    P(f"v_max_f32 {v(SA+2+r)}, {v(SA+2+r)}, v4")
for r in range(2):
    P(f"v_rsq_f32 {v(SA+2+r)}, {v(SA+2+r)}")
P(f"v_pk_mul_f32 {v(SA,2)}, {v(SA,2)}, {v(SA+2,2)} neg_lo:[1,0] neg_hi:[1,0]")
for r, sm in ((0, S_A), (1, S_B)):
    P(f"v_readlane_b32 s{sm}, {v(SA+2+r)}, 55")
for r, sm in ((0, S_A), (1, S_B)):
    P(f"v_readlane_b32 s{sm+1}, {v(SA+r)}, 55")
for r, sm in ((0, S_A), (1, S_B)):
    for i in range(4):
        P(f"v_pk_fma_f32 {v(XF+8*r+2*i,2)}, {v(XF+8*r+2*i,2)}, s[{sm}:{sm+1}], s[{sm}:{sm+1}] op_sel:[0,0,1] op_sel_hi:[1,0,1]")
for j in range(8):
    P(f"v_cvt_pk_bf16_f32 {v(DF+j)}, {v(XF+j)}, {v(XF+8+j)}")
for i in range(4):
    P(f"ds_write2_b32 {v(V_GW)}, {v(DF+2*i)}, {v(DF+2*i+1)} offset0:{16*i} offset1:{16*i+4}")
P("s_mov_b64 exec, -1")
def kgen_head(rd):
    q = sub()
    A0 = 48 + 0
    CC = 50
    unp = (lambda d, s: q(f"v_lshlrev_b32 {v(d)}, 16, {v(s)}")) if rd == 0 else (lambda d, s: q(f"v_and_b32 {v(d)}, 0xffff0000, {v(s)}"))
    for i in range(4):
        unp(48 + i, PR + i)
    q(f"v_mul_f32 v48, {f32(LOG2E)}, v48")
    q(f"v_exp_f32 v48, v48")
    q(f"v_mul_f32 v49, v49, v249")
    q(f"v_cvt_pk_bf16_f32 v48, v48, v48")
    q(f"v_mul_f32 v50, v50, v250")
    q(f"v_and_b32 v48, 0xffff0000, v48")
    q(f"v_mul_f32 v51, v51, v250")
    q(f"v_mul_f32 v48, v48, {v(V_DT)}")
    for (z, pos) in ((52, 1), (56, 256)) if "b3" not in OPT else ((52, 1), (54, 16), (56, 256)):
        if pos == 1:
            q(f"v_fract_f32 v5, v49")
            q(f"v_exp_f32 v4, v48")
        else:
            q(f"v_mul_f32 v5, {f32(float(pos))}, v49")
            q(f"v_mul_f32 v4, {f32(float(pos))}, v48")
            q(f"v_fract_f32 v5, v5")
            q(f"v_exp_f32 v4, v4")
        q(f"v_cos_f32 {v(z)}, v5")
        q(f"v_sin_f32 {v(z+1)}, v5")
        q(f"v_mul_f32 {v(z)}, {v(z)}, v4")
        q(f"v_mul_f32 {v(z+1)}, {v(z+1)}, v4")
    return q.ins


HD = sub()
HD(f"s_lshl_b32 s{S_T0}, s{S_V}, 3")
HD(f"s_and_b32 s{S_T0}, s{S_T0}, 16")
HD(f"s_mov_b32 m0, s{S_TAB}")
HD(f"v_lshrrev_b32 v4, s{S_T0}, {v(V_DT)}")
HD(f"v_lshlrev_b32 v4, 16, v4")
HD(f"v_mul_f32 v4, {f32(LOG2E)}, v4")
HD(f"v_exp_f32 v4, v4")
HD(f"v_readfirstlane_b32 s{S_DSK}, {v(V_DSK)}")
round_bf16(HD, V_DT, 4)
HD(f"v_mul_f32 v249, 0.15915494, {v(V_DT)}")
HD(f"v_add_f32 v250, {v(V_DT)}, {v(V_DT)}")
HD(f"v_mul_f32 {v(V_DT)}, {f32(-LOG2E)}, {v(V_DT)}")
HD.add(kgen_head(0))
FILL = (CB.ins if "nomv" not in OPT else []) + HD.ins
HB, HP_ = int(OPT.get("hb", 29)), int(OPT.get("hp", 0))
if "fine" in OPT: stamp("ln1 math")
P.add(FILL[:HB])
if OPT.get("w2") == "a":
    walk("early")
P("s_waitcnt lgkmcnt(0)")
P("s_barrier")
if "fine" in OPT: stamp("ln1 barrier")
UB = 112
for j in range(4):
    P(f"ds_read_b128 {v(UB+4*j,4)}, {v(V_GR)} offset:{1088*j}")
P.add(FILL[HB:HB + HP_])
if OPT.get("w2") == "b":
    walk("early")
assert HB + HP_ >= len(FILL) - len(HD.ins)
P("s_waitcnt lgkmcnt(0)")
for j in range(4):
    P(f"buffer_store_dwordx4 {v(UB+4*j,4)}, {v(V_L16 if j < 3 else V_S3)}, {srd(SRD_WS)}, s{S_UXO} offen offset:{1024*j} sc1", tok="ux")
P(f"s_cmp_lt_u32 s{S_W}, 224")
P("s_cbranch_scc1 L_main")


def nonce_init():
    q = sub()
    q(f"v_readfirstlane_b32 s{S_NONCE}, {v(V_NONCE)}")
    q(f"s_mul_i32 s{S_NONCE}, s{S_NONCE}, 1664525")
    q(f"s_add_u32 s{S_NONCE}, s{S_NONCE}, 1013904223")
    q(f"v_mov_b32 {v(V_NONCE)}, s{S_NONCE}")
    q(f"buffer_store_dword {v(V_NONCE)}, {v(V_P1)}, {srd(SRD_WS)}, s{S_CI} offen sc1", tok="ux")
    q(f"s_add_u32 s{S_E28}, s{S_NONCE}, 28")
    q(f"s_add_u32 s{S_E14}, s{S_NONCE}, 14")
    return q.ins


P.raw(f"s_waitcnt vmcnt({(4 if NOPF else 6) + NS})")
for x in nonce_init():
    P.raw(x.text)
P.raw("s_waitcnt vmcnt(0)")
P.raw(f"buffer_atomic_swap {v(V_NONCE)}, {v(V_FLG)}, {srd(SRD_WS)}, s{S_F1} offen")
P.raw("s_branch L_spare")
P("L_main:")
stamp("ln1 done")


def wfrag(m, ks):
    return 8 * ks + 4 * m


def slotoff(slot):
    return (slot % 8) * 1024 + (slot // 8) * 32768


def w_dma(kq, m, slot, tok):
    q = sub()
    q(f"s_add_u32 m0, s{S_RING}, {slotoff(slot)}")
    if m == 0:
        q(f"s_mov_b32 s{S_WOFF}, {kq*4*57344}")
    for k in range(4):
        o = f" offset:{1024*k}" if k else ""
        q(f"buffer_load_dwordx4 {v(V_W+k)}, {srd(SRD_WU if m else SRD_WG)}, s{S_WOFF} offen{o} lds", tok=tok)
    return q.ins


def w_tr(kq, m, slot, tok=None):
    q = sub()
    for k in range(4):
        for h in range(2):
            q(f"ds_read_b64_tr_b16 {acc(wfrag(m,4*kq+k)+2*h,2)}, {v(V_TRA)} offset:{slotoff(slot+k)+256*h}", tok=tok)
    return q.ins


def batch_dma(b, tok):
    return [w_dma(2 * b + i // 2, i % 2, 4 * i, f"{tok}_{i}") for i in range(4)]


def batch_tr(b):
    o = []
    for i in range(4):
        o += w_tr(2 * b + i // 2, i % 2, 4 * i, tok=f"t{b}_{i}")
    return o


def singles(groups):
    out, cur = [], []
    for grp in groups:
        for i in grp:
            cur.append(i)
            if i.cls == "vmem":
                out.append(cur)
                cur = []
    if cur:
        out[-1] += cur
    return out


def pin_vm(g, start, groups, stride):
    k = start
    for u in singles(groups):
        g.at(int(k), u)
        k += stride
    return int(k)


def w_dma1(b, n, tok):
    i, k = n // 4, n % 4
    q = sub()
    q(f"s_add_u32 m0, s{S_RING}, {slotoff(4*i)}")
    if n % 8 == 0:
        q(f"s_mov_b32 s{S_WOFF}, {(2*b+i//2)*4*57344}")
    o = f" offset:{1024*k}" if k else ""
    if OPT.get("fk") == "same":
        q(f"buffer_load_dwordx4 {v(V_L16)}, {srd(SRD_WG)}, 0 offen{o} lds", tok=f"{tok}_{i}")
    elif OPT.get("fk") == "reg":
        q(f"buffer_load_dwordx4 a[{128+4*n}:{131+4*n}], {v(V_W+k)}, {srd(SRD_WU if i % 2 else SRD_WG)}, s{S_WOFF} offen{o}", tok=f"{tok}_{i}")
    elif OPT.get("fk") != "none":
        q(f"buffer_load_dwordx4 {v(V_W+k)}, {srd(SRD_WU if i % 2 else SRD_WG)}, s{S_WOFF} offen{o} lds", tok=f"{tok}_{i}")
    q(f"s_mov_b32 m0, s{S_TAB}")
    return q.ins


KD = 176
FR = 192
FR = 112


WRI = "ds_write_b32 v246," if "plainw" in OPT else "ds_write_addtid_b32"


def kgen_body(rd):
    names = {"G0": 50, "E1": 52, "E16": 54, "E256": 56}
    nxt = [58]
    chunks = []
    cur = sub()
    wr = sub()
    pk = [0]
    PK = 192

    def new(n):
        names[n] = nxt[0]
        nxt[0] += 2
        assert nxt[0] <= 104
        return names[n]

    def out(kind, row, z):
        t = PK + pk[0] % 16
        pk[0] += 1
        if kind == "B":
            cur(f"v_cvt_pk_bf16_f32 {v(t)}, {v(z)}, {v(z+1)}")
            wr(f"{WRI} {v(t)} offset:{row*TAB_ROW}")
        else:
            cur(f"v_cvt_pk_bf16_f32 {v(t)}, {v(z)}, -{v(z+1)}")
            wr(f"{WRI} {v(t)} offset:{(32+row)*TAB_ROW}")
        if len(wr.ins) >= GROUP:
            flush()

    def flush():
        nonlocal cur, wr
        chunks.append(cur.ins + wr.ins)
        cur = sub()
        wr = sub()

    sc = [0]

    def mul(n, a, b, kind=None, row=None):
        if n is None:
            z = 104 + 2 * (sc[0] % 4)
            sc[0] += 1
        else:
            z = new(n)
        cmul(cur, z, names[a], names[b])
        if kind:
            out(kind, row, z)

    GROUP = int(OPT.get("kgroup", 6))
    if rd == 0:
        t = PK + pk[0]
        pk[0] += 1
        cur(f"v_mov_b32 {v(t)}, 0x3f80")
        wr(f"{WRI} {v(t)}")
    out("A", 0, names["G0"])
    mul("E2", "E1", "E1")
    mul("G1", "G0", "E256", "A", 8)
    mul("E512", "E256", "E256")
    mul("a1", "G0", "E1", "A", 1)
    mul("E4", "E2", "E2")
    mul("G2", "G0", "E512", "A", 10)
    mul("G3", "G1", "E512", "A", 11)
    mul("E1024", "E512", "E512")
    mul("E8", "E4", "E4", "B", 1)
    mul("a2", "G0", "E2", "A", 2)
    if "b3" in OPT:
        out("B", 2, names["E16"])
    else:
        cmul(cur, names["E16"], names["E8"], names["E8"])
        out("B", 2, names["E16"])
    mul("a3", "a1", "E2", "A", 3)
    mul("E32", "E16", "E16", "B", 4)
    mul("b2", "G1", "E2", "A", 9)
    mul("E64", "E32", "E32", "B", 8)
    mul("E48", "E32", "E16", "B", 6)
    mul("G4", "G0", "E1024", "A", 16)
    mul("E128", "E64", "E64", "B", 16)
    mul("E24", "E16", "E8", "B", 3)
    mul("E40", "E32", "E8", "B", 5)
    mul("E56", "E48", "E8", "B", 7)
    mul("E192", "E128", "E64", "B", 24)
    for row, a in ((4, "G0"), (5, "a1"), (6, "a2"), (7, "a3"), (12, "G1"), (13, "b2"), (14, "G2"), (15, "G3")):
        mul(None, a, "E4", "A", row)
    for row, a in ((17, "G1"), (18, "G2"), (19, "G3"), (20, "G4")):
        mul(None, a, "E1024", "A", row)
    for b2, nb in ((1, "E64"), (2, "E128"), (3, "E192")):
        for b1 in range(1, 8):
            mul(None, f"E{8*b1}", nb, "B", 8 * b2 + b1)
    if wr.ins or cur.ins:
        flush()
    return chunks


def kgen_reads():
    q = sub()
    for s in range(8):
        q(f"ds_read_b128 {v(FR+8*s,4)}, {v(V_TA)} offset:{32*TAB_ROW+32*s}")
        q(f"ds_read_b128 {v(FR+8*s+4,4)}, {v(V_TB)} offset:{32*s}")
    return q.ins


def kgen_mfma(rd):
    q = sub()
    for s in range(8):
        c = "0" if (rd == 0 and s == 0) else v(KD, 16)
        q(f"v_mfma_f32_32x32x16_bf16 {v(KD,16)}, {v(FR+8*s,4)}, {v(FR+8*s+4,4)}, {c}")
    return q.ins


P.add(FILL[HB + HP_:])
P.add(nonce_init())
ch = kgen_body(0)
fl = sub()
fl.wait("ux")
setflag(fl, S_F1)
nd = NS
FLAGAT = int(OPT.get("flagat", 5))
D0, DM, D1 = OPT.get("dsch", "011111000,2,111111111").split(",")


def dmas(n):
    global nd
    o = []
    for k in range(n):
        u = w_dma1(0, nd, "w1")
        if k and nd % 4:
            o = o[:-1] + u[1:]
        elif k:
            o = o[:-1] + u
        else:
            o = u
        nd += 1
    return o


for i, c in enumerate(ch):
    P.add(c)
    P.add(dmas(int(D0[i])))
    if i == FLAGAT:
        if "fine" in OPT: stamp("pre flag1")
        P.add(fl.ins)
        if "fine" in OPT: stamp("post flag1")
P.add(kgen_reads())
g = Gaps(kgen_mfma(0), 7)
for k in range(int(DM)):
    g.at(2 * k, dmas(1))
h1_ = kgen_head(1)
NH = int(OPT.get("nh", 12))
P.add(h1_[:NH])
g.fill(h1_[NH:], cap=5)
P.add(g.out())
stamp("kgen r0")
ch = kgen_body(1)
POLLAT = int(OPT.get("pollat", 5))
for i, c in enumerate(ch):
    P.add(c)
    P.add(dmas(int(D1[i])))
    if i == POLLAT:
        if "f1at" not in OPT:
            P(f"buffer_load_dword v6, {v(V_F1)}, {srd(SRD_WS)}, s{S_F1L} offen sc1")
        else:
            P.add(poll_issue("F1", 6))
assert nd == 16
P.add(kgen_reads())
if "fine" in OPT: stamp("pre poll1")
P.add(poll_check("F1", 6))
if "fine" in OPT: stamp("post poll1")
g = Gaps(kgen_mfma(1), 6)
P(f"s_mov_b32 m0, s{S_UXM}")
for j in range(4):
    q = sub()
    q(f"s_mov_b32 s{S_T0}, {j*(16*14336-1024)}")
    o = f" offset:{1024*j}" if j else ""
    q(f"buffer_load_dwordx4 {v(V_UXL)}, {srd(SRD_WS)}, s{S_T0} offen{o} sc1 lds", tok="uxl")
    if j == 0:
        P.add(q.ins)
    else:
        g.at(2 * j - 2, q.ins)
tr1 = batch_tr(0)
P.wait("w1_2")
for k in range(8):
    g.at(k, tr1[3 * k:3 * k + 3])
P.add(g.out())
stamp("kgen r1")
b2 = batch_dma(1, "w2")
b2[0] = waitq("t0_0") + b2[0]
b2[3] = waitq("t0_3") + b2[3]
b2 = singles(b2)
P.add(b2.pop(0))
P(f"s_lshl_b32 s{S_C}, s{S_DSK}, 16")
P(f"s_and_b32 s{S_D}, s{S_DSK}, 0xffff0000")
P(f"v_add_u32 v7, {2*CS}, {v(V_EXW)}")
P(f"v_mov_b32 {v(V_NONCE)}, 1")
toff = {0: (0, 0), 1: (0, 1), 2: (0, 2), 3: (0, 3), 4: (1, 0), 5: (1, 2), 6: (2, 0), 7: (3, 0), 8: (4, 0), 9: (5, 0), 10: (6, 0), 11: (7, 0)}
P(f"ds_write2_b32 {v(V_TW)}, {v(KD)}, {v(KD+1)} offset0:0 offset1:1")
P(f"ds_write2_b32 {v(V_TW)}, {v(KD+2)}, {v(KD+3)} offset0:2 offset1:3")
for j in range(4, 12):
    qq, r = toff[j]
    P(f"ds_write_b32 {v(V_TW)}, {v(KD+j)} offset:{4*(r + 264*qq)}")
P.add(b2.pop(0))
P("s_waitcnt lgkmcnt(0)")
P("s_barrier")
if "fine" in OPT: stamp("T barrier")
EG = 208
for c2 in range(2):
    for e in range(9):
        P(f"ds_read2st64_b32 {v(EG+18*c2+2*e,2)}, {v(GA+e)} offset0:{114*c2} offset1:{114*c2+57}", tok=f"g{c2}")
P.add(b2.pop(0))
if "nomv" not in OPT:
    P.add(EB.ins)
P.add(b2.pop(0))
KO = 192
VB = 48


def bfrag(rr, e):
    return VB + 32 * rr + 4 * e


def b_loads(lo, hi):
    z = sub()
    for rr in range(4):
        for a in range(lo, hi):
            z(f"ds_read_b128 {v(bfrag(rr,a),4)}, {v(V_UA+rr)} offset:{2048*a}")
    return z.ins


for c2 in range(2):
    b = EG + 18 * c2
    P.wait(f"g{c2}")
    for e in range(9):
        P(f"v_add_f32 {v(b+2*e)}, {v(b+2*e)}, {v(b+2*e+1)}")
    P(f"v_cndmask_b32 {v(b+16)}, {v(b+16)}, 0, s[{S_M255}:{S_M255+1}]")
    for s_ in range(2):
        o = KO + 8 * c2 + 4 * s_
        for i in range(4):
            P(f"v_cvt_pk_bf16_f32 {v(o+i)}, {v(b+2*(s_+2*i))}, {v(b+2*(s_+2*i+1))}")
    for s_ in range(2):
        P(f"ds_write_b128 {v(7 if c2 else V_EXW)}, {v(KO+8*c2+4*s_,4)} offset:{L_KC+s_*CS}", tok="kc")
    P.add(b2.pop(0))
if "dumpk" in OPT:
    P(f"s_lshl_b32 s{S_T0}, s{S_W}, 13")
    P(f"s_add_u32 s{S_T0}, s{S_T0}, {WS_DBG}")
    P(f"buffer_store_dwordx4 {v(KO,4)}, {v(V_EXW)}, {srd(SRD_WS)}, s{S_T0} offen")
    P(f"s_add_u32 s{S_T0}, s{S_T0}, 4096")
    P(f"buffer_store_dwordx4 {v(KO+8,4)}, {v(V_EXW)}, {srd(SRD_WS)}, s{S_T0} offen")
stamp("expanded")
P.wait("uxl")
P.wait("kc")
P("s_barrier")
stamp("conv start")

CA = [176, 192]
ET = 208


def afrag(rr, a):
    return 128 + 32 * rr + 4 * a


def a_loads(rr, lo, hi):
    z = sub()
    for a in range(lo, hi):
        k = a // 2
        off = 16 * (11 - rr - 8 * (a - 2 * k))
        z(f"ds_read2_b32 {acc(afrag(rr,a),2)}, {v(V_KA+k)} offset0:{off} offset1:{off+1}")
        z(f"ds_read2_b32 {acc(afrag(rr,a)+2,2)}, {v(V_KA+k)} offset0:{off+2} offset1:{off+3}")
    return z.ins


def conv_mfmas(gen):
    m = sub()
    first = set()
    na = 4 if gen == 0 else 8
    order = []
    for rr in range(4):
        pairs = [(a, e) for a in range(na) for e in range(na) if 4 * gen <= a + e < 4 * gen + 4]
        pairs.sort(key=(lambda ae: (max(ae), ae)) if rr < 3 else (lambda ae: (ae[0] + ae[1], ae)))
        order += [(rr, a, e) for a, e in pairs]
    if gen == 1:
        order.sort(key=lambda t: (0 if max(t[1], t[2]) < 4 else 1))
    for rr, a, e in order:
        c = a + e - 4 * gen
        d = CA[gen] + 4 * c
        cc = v(d, 4) if c in first else "0"
        first.add(c)
        m(f"v_mfma_f32_16x16x32_bf16 {v(d,4)}, {acc(afrag(rr,a),4)}, {v(bfrag(rr,e),4)}, {cc}")
    return m.ins


UU, XX, YY, TT, WW, HO = ET, ET + 4, ET + 8, ET + 24, ET + 32, ET + 36


def conv_pre(gen):
    q = sub()
    q(f"ds_read_b64 {v(UU,2)}, {v(V_EU)} offset:{8192*gen}")
    q(f"ds_read_b64 {v(UU+2,2)}, {v(V_EU1)} offset:{8192*gen}")
    q(f"ds_read_b128 {v(XX,4)}, {v(V_EXP)} offset:{8192*gen}")
    r = sub()
    if "exact" not in OPT:
        for j in range(4):
            r(f"v_lshlrev_b32 {v(TT+j)}, 16, {v(XX+j)}")
            r(f"v_and_b32 {v(TT+4+j)}, 0xffff0000, {v(XX+j)}")
        for c2, sm in ((0, S_C), (1, S_D)):
            for i in range(2):
                r(f"v_lshlrev_b32 {v(WW)}, 16, {v(UU+2*c2+i)}")
                r(f"v_and_b32 {v(WW+1)}, 0xffff0000, {v(UU+2*c2+i)}")
                r(f"v_fmac_f32 {v(TT+4*c2+2*i)}, s{sm}, {v(WW)}")
                r(f"v_fmac_f32 {v(TT+4*c2+2*i+1)}, s{sm}, {v(WW+1)}")
        return q.ins, r.ins
    for c2 in range(2):
        for i in range(2):
            r(f"v_lshlrev_b32 {v(TT+4*c2+2*i)}, 16, {v(UU+2*c2+i)}")
            r(f"v_and_b32 {v(TT+4*c2+2*i+1)}, 0xffff0000, {v(UU+2*c2+i)}")
    for c2, sm in ((0, S_C), (1, S_D)):
        for i in range(4):
            r(f"v_mul_f32 {v(TT+4*c2+i)}, s{sm}, {v(TT+4*c2+i)}")
    for j in range(4):
        r(f"v_cvt_pk_bf16_f32 {v(WW+j)}, {v(TT+j)}, {v(TT+4+j)}")
    for j in range(4):
        r(f"v_lshlrev_b32 {v(TT+2*j)}, 16, {v(WW+j)}")
        r(f"v_and_b32 {v(TT+2*j+1)}, 0xffff0000, {v(WW+j)}")
    return q.ins, r.ins


def conv_xchg(gen):
    w_, b_, r_ = sub(), sub(), sub()
    for c in range(4):
        w_(f"ds_write_b128 {v(V_EXW)}, {v(CA[gen]+4*c,4)} offset:{(4096 if gen else 7168)*c}", tok=f"xw{gen}")
    b_.wait(f"xw{gen}")
    b_("s_barrier")
    for w in range(4):
        r_(f"ds_read_b128 {v(YY+4*w,4)}, {v(V_EXR)} offset:{1024*w}", tok=f"xr{gen}")
    return w_.ins, b_.ins, r_.ins


def conv_post(gen):
    q = sub()
    h = HO + 4 * gen
    if "exact" not in OPT:
        for c2 in range(2):
            for i in range(2):
                q(f"v_pk_add_f32 {v(TT+4*c2+2*i,2)}, {v(TT+4*c2+2*i,2)}, {v(YY+8*c2+2*i,2)}")
            for i in range(2):
                q(f"v_pk_add_f32 {v(TT+4*c2+2*i,2)}, {v(TT+4*c2+2*i,2)}, {v(YY+8*c2+4+2*i,2)}")
        for j in range(4):
            q(f"v_cvt_pk_bf16_f32 {v(h+j)}, {v(TT+j)}, {v(TT+4+j)}")
        q(f"buffer_store_dwordx4 {v(h,4)}, {v(V_EXW)}, {srd(SRD_WS)}, s{S_PST} offen sc1", tok=f"h{gen}")
        return q.ins
    for c2 in range(2):
        for i in range(2):
            q(f"v_pk_add_f32 {v(YY+8*c2+2*i,2)}, {v(YY+8*c2+2*i,2)}, {v(YY+8*c2+4+2*i,2)}")
    for j in range(4):
        q(f"v_cvt_pk_bf16_f32 {v(WW+j)}, {v(YY+j)}, {v(YY+8+j)}")
    for j in range(4):
        q(f"v_lshlrev_b32 {v(YY+2*j)}, 16, {v(WW+j)}")
        q(f"v_and_b32 {v(YY+2*j+1)}, 0xffff0000, {v(WW+j)}")
    for j in range(4):
        q(f"v_pk_add_f32 {v(YY+2*j,2)}, {v(YY+2*j,2)}, {v(TT+2*j,2)}")
    for j in range(4):
        q(f"v_cvt_pk_bf16_f32 {v(WW+j)}, {v(YY+2*j)}, {v(YY+2*j+1)}")
    for j in range(4):
        q(f"v_lshlrev_b32 {v(YY+8+2*j)}, 16, {v(XX+j)}")
        q(f"v_and_b32 {v(YY+8+2*j+1)}, 0xffff0000, {v(XX+j)}")
    for j in range(4):
        q(f"v_lshlrev_b32 {v(YY+2*j)}, 16, {v(WW+j)}")
        q(f"v_and_b32 {v(YY+2*j+1)}, 0xffff0000, {v(WW+j)}")
    for j in range(4):
        q(f"v_pk_add_f32 {v(YY+2*j,2)}, {v(YY+2*j,2)}, {v(YY+8+2*j,2)}")
    h = HO + 4 * gen
    for j in range(4):
        q(f"v_cvt_pk_bf16_f32 {v(h+j)}, {v(YY+2*j)}, {v(YY+2*j+1)}")
    q(f"buffer_store_dwordx4 {v(h,4)}, {v(V_EXW)}, {srd(SRD_WS)}, s{S_PST} offen sc1", tok=f"h{gen}")
    return q.ins


V_A = 17
ad1 = sub()
ad1(f"v_bfe_u32 v4, {v(V_LANE)}, 3, 1")
ad1(f"v_lshrrev_b32 v5, 5, {v(V_LANE)}")
ad1(f"v_lshl_add_u32 v4, v5, 1, v4")
ad1(f"v_and_b32 v5, 0x70, {v(V_L16)}")
ad1(f"v_lshlrev_b32 v6, 5, v4")
ad1(f"v_xor_b32 v5, v5, v6")
ad1(f"v_bfe_u32 v6, {v(V_LANE)}, 4, 1")
ad1(f"v_lshl_add_u32 v4, v4, 1, v6")
ad1(f"v_mul_u32_u24 v4, {PROW}, v4")
ad1(f"v_add3_u32 {v(V_A)}, v4, v5, s{S_AB}")
for k in range(1, 4):
    ad1(f"v_add_u32 {v(V_A+k)}, {k*(8*PROW-1024)}, {v(V_A)}")


def act_dma(J):
    o = []
    gen, T = J >> 1, J & 1
    for kk in range(2):
        q = sub()
        q(f"s_add_u32 m0, s{S_ACTW}, {L_ACT[gen] + T*28672 + kk*4096}")
        q(f"s_mov_b32 s{S_WOFF}, {kk*32*PROW + PGEN*gen + 128*T}")
        for k in range(4 - kk):
            of = f" offset:{1024*k}" if k else ""
            q(f"buffer_load_dwordx4 {v(V_A+k)}, {srd(SRD_WS)}, s{S_WOFF} offen{of} sc1 lds", tok=f"act{J}")
        o.append(q.ins)
    return o


V_BR, V_S2, V_HST, V_BR2 = 21, 22, 24, 26
V_LF, V_LR = 28, 29
V_RES = 27
V_OST, V_RR, V_RW, V_HL = 45, 41, 42, 44
SEL = 176
CSA = [180, 184]
ad = sub()
ad(f"s_add_u32 s{S_PA}, s{S_PA}, 0x8000")
ad(f"v_and_b32 v4, 31, {v(V_LANE)}")
ad(f"v_lshrrev_b32 v5, 5, {v(V_LANE)}")
ad(f"v_mul_u32_u24 v5, {512+64}, v5")
ad(f"v_lshlrev_b32 v6, 2, v4")
ad(f"v_xor_b32 {v(V_BR)}, v5, v6")
ad(f"v_xor_b32 {v(V_BR2)}, 0xa0, {v(V_BR)}")
NAD2 = len(ad.ins)
ad(f"s_lshl_b32 s{S_T0}, s{S_TB}, 10")
ad(f"s_mul_i32 s{S_T1}, s{S_DB}, {S2REP}")
ad(f"s_add_u32 s{S_T0}, s{S_T0}, s{S_T1}")
ad(f"s_add_u32 s{S_T0}, s{S_T0}, {WS_S2}")
ad(f"v_lshl_add_u32 {v(V_S2)}, v4, 3, s{S_T0}")
ad(f"s_mov_b32 s{S_PERM}, 0x03020302")
ad(f"v_lshrrev_b32 v5, 4, {v(V_LANE)}")
ad(f"v_and_b32 v6, 15, {v(V_LANE)}")
ad(f"v_and_b32 v4, 1, v5")
ad(f"v_mul_u32_u24 v4, 57344, v4")
ad(f"v_lshl_add_u32 v4, v6, 4, v4")
ad(f"v_lshrrev_b32 v7, 1, v5")
ad(f"v_lshl_add_u32 v4, v7, 8, v4")
ad(f"s_mul_i32 s{S_T0}, s{S_TB}, {8*57344}")
ad(f"s_lshl_b32 s{S_T1}, s{S_FB}, 2")
ad(f"s_add_u32 s{S_T1}, s{S_T1}, s{S_V}")
ad(f"s_lshl_b32 s{S_T2}, s{S_T1}, 10")
ad(f"s_add_u32 s{S_T0}, s{S_T0}, {WS_H}")
ad(f"s_add_u32 s{S_T2}, s{S_T2}, s{S_T0}")
ad(f"v_add_u32 {v(V_HST)}, s{S_T2}, v4")
if "tch" in OPT:
    ad(f"s_mul_i32 s{S_TCH}, s{S_FH}, 57344")
    ad(f"s_add_u32 s{S_TCH}, s{S_TCH}, s{S_T2}")
    if "tch2" in OPT:
        ad(f"s_mul_i32 s{S_T3}, s{S_FH}, 28672")
        ad(f"s_sub_u32 s{S_TCH}, s{S_TCH}, s{S_T3}")
ad(f"s_mul_i32 s{S_T2}, s{S_FH}, 57344")
ad(f"s_add_u32 s{S_T0}, s{S_T0}, s{S_T2}")
ad(f"s_lshl1_add_u32 s{S_T0}, s{S_ACTW}, s{S_T0}")
ad(f"v_add_u32 {v(V_HL)}, s{S_T0}, {v(V_L16)}")
ad(f"s_lshl_b32 s{S_T0}, s{S_TB}, 13")
ad(f"s_add_u32 s{S_T0}, s{S_T0}, {WS_C + 65536}")
ad(f"s_mul_i32 s{S_T1}, s{S_T1}, 37")
ad(f"s_and_b32 s{S_T1}, s{S_T1}, 0x600")
ad(f"s_add_u32 s{S_F3}, s{S_T0}, s{S_T1}")
ad(f"s_lshl1_add_u32 s{S_T1}, s{S_V}, s{S_FH}")
ad(f"s_lshl_b32 s{S_T1}, s{S_T1}, 8")
ad(f"s_add_u32 s{S_P3}, s{S_T0}, s{S_T1}")
for k in range(1, 4):
    ad(f"s_movk_i32 s{S_HR+k}, {4096*k}")
ad(f"s_add_u32 s{S_FW}, s{S_RING}, 32768")
ad(f"s_lshl_b32 s{S_R2}, s{S_V}, 14")
ad(f"v_add_u32 {v(V_LF)}, s{S_FW}, {v(V_L16)}")
ad(f"v_add_u32 {v(V_LR)}, s{S_R2}, {v(V_L16)}")
ad2 = ad
se = sub()
se(f"v_bfe_u32 v4, {v(V_LANE)}, 2, 2")
se(f"v_bfe_u32 v5, {v(V_LANE)}, 4, 1")
se(f"v_mov_b32 v6, 0x3f803f80")
se(f"v_cmp_eq_u32 vcc, v4, v5")
for i in range(4):
    se(f"v_cndmask_b32 {v(SEL+i)}, 0, v6, vcc")


def cs_mfma(ks0, ks1):
    q = sub()
    for ks in range(ks0, ks1):
        for m in range(2):
            c = "0" if ks == 0 else v(CSA[m], 4)
            q(f"v_mfma_f32_16x16x32_bf16 {v(CSA[m],4)}, {v(SEL,4)}, {acc(wfrag(m,ks),4)}, {c}")
    return q.ins


def pin_spread(g, start, ins, per=2):
    for i, x in enumerate(ins):
        g.at(int(start + i // per), [x])
    return int(start + (len(ins) + per - 1) // per)


def gap_stamps(g, name):
    if OPT.get("gs", "").startswith(name + ":"):
        for k in OPT["gs"].split(":")[1].split(","):
            q = sub()
            stamp(f"{name} g{k}", q)
            g.pin[int(k)] = q.ins + g.pin[int(k)]


mA, mB = conv_mfmas(0), conv_mfmas(1)
NCS0 = int(OPT.get("ncs0", 8))
NOV = int(OPT.get("nov", 15))
bl = b_loads(0, 4)


def ab(rr):
    al = a_loads(rr, 0, 4)
    o = []
    for a in range(4):
        o += [bl[4 * rr + a]] + al[2 * a:2 * a + 2]
    return o


pr, pv = conv_pre(0)
P.add(ab(0) + ab(1)[:3])
P.add(b2.pop(0))
P.add(b2.pop(0))
g = Gaps(mA + mB[:NOV], 2)
l1 = ab(1)[3:] + ab(2) + ab(3) + pr
NL1 = int(OPT.get("nl1", 24))
for i, x in enumerate(l1):
    g.at(i * NL1 // len(l1), [x])
xw, xb, xr = conv_xchg(0)
for i, k in enumerate([int(x) for x in OPT.get("xa", "33,35,38,42").split(",")]):
    g.at(k, [xw[i]])
XB = int(OPT.get("xb", 45))
g.fill(pv, start=NL1 + 5, end=XB + 8, cap=2.5)
g.at(XB, xb)
g.at(XB + 1, xr)
pin_vm(g, XB + 2, b2[:2], 3)
b2 = b2[2:]
P.add(g.out())
P.add(conv_post(0))
stamp("genA stored")
nb = b_loads(4, 8)
newl = []
for rr in range(4):
    newl += nb[4 * rr:4 * rr + 4] + a_loads(rr, 4, 8)
P.add(newl[:8])
g = Gaps(mB[NOV:] + cs_mfma(0, NCS0), 2)
NB_ = len(mB) - NOV
pin_spread(g, 0, newl[8:], per=1)
g.at(0, waitq("w1_3"))
pin_spread(g, 0, tr1[24:], per=1)
pin_vm(g, 1, b2, 3.5)
fl = sub()
fl.wait("h0")
addcnt(fl, S_F2, V_FL2)
fl(f"s_add_u32 s{S_F2}, s{S_F2}, 0x8000")
g.at(int(OPT.get("fa", 24)), fl.ins)
tr2 = batch_tr(1)
T2 = [int(x) for x in OPT.get("t2", "12,24,44,60").split(",")]
b3 = batch_dma(2, "w3")
for i in range(4):
    pin_spread(g, T2[i], waitq(f"w2_{i}") + tr2[8 * i:8 * i + 8], per=1)
    b3[i] = waitq(f"t1_{i}") + b3[i]
pin_vm(g, 30, b3[:2], 3)
pin_vm(g, 56, b3[2:3], 3)
pin_vm(g, 71, b3[3:4], 2.5)
pr, pv = conv_pre(1)
pin_spread(g, 41, pr, per=1)
newl[-1].tok = "lastfrag"
bq = sub()
bq.wait("lastfrag")
bq("s_barrier")
g.at(54, bq.ins)
x2 = sub()
x2(f"v_add_u32 {v(V_EXW)}, {L_KC}, {v(V_EXW)}")
x2(f"s_lshl_b32 s{S_T0}, s{S_V}, 12")
x2(f"s_add_u32 s{S_T0}, s{S_T0}, {L_KC}")
x2(f"v_add_u32 {v(V_EXR)}, s{S_T0}, {v(V_L16)}")
x2(f"s_add_u32 s{S_PST}, s{S_PST}, {PGEN - L_KC}")
PA1, PA2, PAC = int(OPT.get("pa1", 58)), int(OPT.get("pa2", 72)), int(OPT.get("pac", 86))
e = g.fill(x2.ins + ad1.ins + se.ins, start=34, end=NB_ - 16)
g.fill(pv, start=max(e, 50), end=NB_ + 10)
g.at(PA1, poll_issue(S_PA, 7))
g.at(PA2, poll_issue(S_PA, 23))
if "pa3" in OPT:
    g.at(int(OPT["pa3"]), poll_issue(S_PA, 24))
    g.at(PAC, poll_checkn(S_PA, [7, 23, 24], "3", f"s{S_E28}"))
else:
    g.at(PAC, stq("pre pollA") + poll_check2(S_PA, 7, 23, "3", f"s{S_E28}") + stq("post pollA"))
a0 = singles(act_dma(0) + act_dma(1))
AS = float(OPT.get("as", 3))
na = int((g.n - 1 - PAC) / AS) + 1
pin_vm(g, PAC, a0[:na], AS)
xw, xb, xr = conv_xchg(1)
for i, k in enumerate((-15, -11, -5, 3)):
    g.at(NB_ + k, [xw[i]])
g.at(NB_ + 6, xb)
g.at(NB_ + 7, xr)
gap_stamps(g, "s2")
o_ = g.out()
X = OPT.get("x2", "")
if "d" in X:
    o_ = [i for i in o_ if not (i.cls == "vmem" and i.tok and i.tok[0] == "w")]
if "t" in X:
    o_ = [i for i in o_ if "tr_b16" not in i.mn]
if "a" in X:
    o_ = [i for i in o_ if "ds_read2_b32" not in i.mn]
P.add(o_)
P.add(conv_post(1))
stamp("genB stored")
NCH_ = int(OPT.get("nch", 7))
g = Gaps(cs_mfma(NCS0, 24 - NCH_), 3)
g.at(1, poll_issue(S_P4, 25))
tr3 = batch_tr(2)
t3 = []
for i in (0, 1, 2, 3):
    t3 += waitq(f"w3_{i}") + tr3[8 * i:8 * i + 8]
pin_spread(g, 0, t3, per=2)
e = pin_vm(g, 0, a0[na:], 2)
fl = sub()
fl.wait("h1")
addcnt(fl, S_F2, V_FL2)
g.fill(ad2.ins[:NAD2], start=18)
w4 = singles([waitq("t2_3") + w_dma(6, 0, 8, "w4"), w_dma(6, 1, 12, "w4")])
P.add(g.out())
stamp("gap work done")

GACC = [64, 96]
BF = 128
NBF = 8
MB = 160
KC_ = [14, 9]
STT = 60
EPT = 164
HP = 172
WDV = 188
RESR = [46, 48, 50, 52]
A_CS = [224, 228]
GC0 = -2.0 * math.sqrt(2.0 / math.pi) * LOG2E


def st_issue(J, atomic=None):
    q = sub()
    t = STT + 2 * (J & 1)
    atomic = False if atomic is None else atomic
    if atomic:
        q(f"v_mov_b64 {v(t,2)}, 0")
        q(f"buffer_atomic_add_x2 {v(t,2)}, {v(V_S2)}, {srd(SRD_WS)}, 0 offen offset:{256*J} sc0")
    else:
        q(f"buffer_load_dwordx2 {v(t,2)}, {v(V_S2)}, {srd(SRD_WS)}, 0 offen offset:{256*J} sc1")
    return q.ins


def st_check(J):
    q = sub()
    t = STT + 2 * (J & 1)
    slow, done = label("sslow"), label("sdone")
    q(f"v_cmp_ne_u32 vcc, s{S_NONCE}, {v(t+1)}")
    q(f"s_cbranch_vccnz {slow}")
    q(f"{done}:")
    spin(TAIL, slow, done, st_issue(J, True), t + 1, sleep=1)
    return q.ins


def st_final(J):
    q = sub()
    kc = KC_[J & 1]
    t = STT + 2 * (J & 1)
    q(f"v_perm_b32 {v(MB)}, {v(t)}, {v(t)}, s{S_PERM}")
    q(f"v_cvt_f32_f16 {v(t)}, {v(t)}")
    q(f"v_mul_f32 {v(t+1)}, {v(t)}, {v(t)}")
    q(f"v_mul_f32 {v(kc)}, {f32(GC0)}, {v(t)}")
    q(f"v_rcp_f32 {v(kc+2)}, {v(t+1)}")
    q(f"v_mul_f32 {v(kc+1)}, {v(t+1)}, {v(kc)}")
    q(f"v_mul_f32 {v(kc+1)}, {f32(0.044715)}, {v(kc+1)}")
    return q.ins


SP = Prog()
spn = [1]


def sps():
    if STAMPS and "lite" in OPT:
        SP(f"s_memrealtime s[{S_STAMP}:{S_STAMP+1}]")
        SP("s_waitcnt lgkmcnt(0)")
        SP(f"v_writelane_b32 v255, s{S_STAMP}, {spn[0]}")
        spn[0] += 1


SP("L_spare:")
SP("s_barrier")
sps()
SP(f"s_and_b32 s{S_T0}, s{S_W}, 6")
SP(f"s_lshl_b32 s{S_T0}, s{S_T0}, 1")
SP(f"s_bfe_u32 s{S_T1}, s{S_W}, 0x20003")
SP(f"s_add_u32 s{S_TB}, s{S_T0}, s{S_T1}")
SP(f"s_lshr_b32 s{S_T0}, s{S_TB}, 2")
SP(f"s_lshl2_add_u32 s{S_T0}, s{S_FH}, s{S_T0}")
SP(f"s_lshl3_add_u32 s{S_T0}, s{S_T0}, s{S_T1}")
SP(f"s_lshl2_add_u32 s{S_T0}, s{S_T0}, s{S_V}")
SP(f"s_lshl_b32 s{S_T0}, s{S_T0}, 8")
SP(f"s_add_u32 s{S_PA}, s{S_T0}, {WS_C}")
SP(f"s_mul_i32 s{S_T1}, s{S_V}, 56")
SP(f"v_mov_b32 {v(V_NONCE)}, 7")
lanes_reg(SP, V_FLG, 4, 8)
SP(f"v_lshrrev_b32 v5, 4, {v(V_LANE)}")
SP(f"v_and_b32 v6, 15, {v(V_LANE)}")
SP(f"v_mul_u32_u24 v4, {PROW}, v5")
SP(f"v_lshl_add_u32 v4, v6, 4, v4")
SP(f"s_mul_i32 s{S_T1}, s{S_T1}, {PROW}")
SP(f"s_lshl_b32 s{S_T0}, s{S_TB}, 8")
SP(f"s_add_u32 s{S_T0}, s{S_T0}, s{S_T1}")
SP(f"s_mul_i32 s{S_T1}, s{S_FH}, {PGEN}")
SP(f"s_add_u32 s{S_T0}, s{S_T0}, s{S_T1}")
SP(f"s_add_u32 s{S_T0}, s{S_T0}, {WS_P}")
SP(f"v_add_u32 v11, s{S_T0}, v4")
SP(f"v_lshl_add_u32 v4, v6, 2, v5")
SP(f"s_lshl_b32 s{S_T0}, s{S_V}, 9")
SP(f"v_lshl_add_u32 v12, v4, 3, s{S_T0}")
SP(f"v_lshlrev_b32 v13, 3, {v(V_LANE)}")
SP(f"v_mov_b32 v14, 0x3f803f80")
if not NOPF and EPF < 25:
    NREM = 12544 - 512 * EPF
    LR = -(-NREM // (64 * 4))
    SP(f"s_sub_u32 s{S_T1}, s{S_W}, 224")
    SP(f"s_lshr_b32 s{S_T0}, s{S_V}, 1")
    SP(f"s_lshl1_add_u32 s{S_T1}, s{S_T1}, s{S_T0}")
    SP(f"s_mul_i32 s{S_T1}, s{S_T1}, {LR*128}")
    SP(f"s_add_u32 s{S_T1}, s{S_T1}, {(12544-256*LR)*128}")
    SP(f"v_min_u32 v4, {LR-1}, {v(V_LANE)}")
    SP(f"v_lshl_add_u32 v4, v4, 7, s{S_T1}")
    NB3 = int(OPT.get("nb3", 0))
    SP(f"s_mul_i32 s{S_T0}, s{S_FH}, {64*LR*128}")
    SP(f"s_mul_i32 s{S_T1}, s{S_FH}, {2*LR*128}")
    for k in range(4):
        SP(f"global_load_dword {v(56+k)}, v4, s[{S_PFB}:{S_PFB+1}]")
        if k >= 4 - NB3:
            SP(f"v_subrev_u32 v5, s{S_T1}, v4")
            SP(f"global_load_dword {v(60+k)}, v5, s[{S_PFB}:{S_PFB+1}]")
        if k < 3 - NB3:
            SP(f"v_add_u32 v4, {64*LR*128}, v4")
        elif k < 3:
            SP(f"v_add_u32 v4, s{S_T0}, v4")
SP(f"s_sub_u32 s{S_T1}, s{S_W}, 224")
SP(f"s_cmp_ge_u32 s{S_T1}, 28")
SP("s_cbranch_scc1 L_sp_nowf")
SP(f"s_lshr_b32 s{S_DB}, s{S_T1}, 2")
SP(f"s_and_b32 s{S_T2}, s{S_T1}, 3")
SP(f"s_lshl_b32 s{S_F3}, s{S_T1}, 10")
SP(f"s_add_u32 s{S_F3}, s{S_F3}, {WS_C + 896*256}")
SP(f"s_mul_i32 s{S_T1}, s{S_T1}, {14*4096}")
SP(f"s_add_u32 s{S_T1}, s{S_T1}, {WS_WF}")
SP(f"v_add_u32 v20, s{S_T1}, {v(V_L16)}")
SP(f"v_lshrrev_b32 v6, 3, {v(V_LANE)}")
SP(f"v_and_b32 v7, 6, v6")
SP(f"v_and_b32 v5, 7, {v(V_LANE)}")
SP(f"v_xor_b32 v7, v7, v5")
SP(f"v_mul_u32_u24 v6, 896, v6")
SP(f"v_lshl_add_u32 v6, v7, 4, v6")
SP(f"s_mul_i32 s{S_T0}, s{S_T2}, {448*896}")
SP(f"s_lshl_b32 s{S_T1}, s{S_DB}, 7")
SP(f"s_add_u32 s{S_T0}, s{S_T0}, s{S_T1}")
SP(f"v_add_u32 v48, s{S_T0}, v6")
for k in range(1, 4):
    SP(f"v_add_u32 {v(48+k)}, {k*(7168-1024)}, v48")
SP(f"s_lshl_b32 s{S_R2}, s{S_V}, 14")
SP(f"s_add_u32 s{S_R2}, s{S_R2}, 4096")
for i in range(4):
    SP(f"s_lshl2_add_u32 s{S_HR+i}, s{S_V}, {i}")
    SP(f"s_min_u32 s{S_HR+i}, s{S_HR+i}, 13")
    SP(f"s_mul_i32 s{S_WOFF}, s{S_HR+i}, {32*896}")
    SP(f"s_add_u32 m0, s{S_R2}, {4096*i}")
    SP(f"s_lshl_b32 s{S_HR+i}, s{S_HR+i}, 12")
    for k in range(4):
        of = f" offset:{1024*k}" if k else ""
        SP(f"buffer_load_dwordx4 {v(48+k)}, {srd(SRD_WD)}, s{S_WOFF} offen{of} lds", tok=f"sw{i}")
SP(f"v_lshrrev_b32 v4, 4, {v(V_LANE)}")
SP(f"v_lshrrev_b32 v6, 1, v4")
SP(f"v_lshlrev_b32 v6, 4, v6")
SP(f"v_and_b32 v7, 1, v4")
SP(f"v_lshl_add_u32 v6, v7, 2, v6")
SP(f"v_bfe_u32 v7, {v(V_LANE)}, 2, 2")
SP(f"v_add_u32 v6, v6, v7")
SP(f"v_bfe_u32 v7, v6, 1, 2")
SP(f"v_lshlrev_b32 v6, 7, v6")
SP(f"v_and_b32 v5, 3, {v(V_LANE)}")
SP(f"v_lshl_add_u32 v6, v5, 3, v6")
for rt in range(4):
    SP(f"v_xor_b32 v5, {rt}, v7")
    SP(f"v_lshl_add_u32 v5, v5, 5, v6")
    SP(f"v_add_u32 {v(52+rt)}, s{S_R2}, v5")
for i in range(4):
    SP.wait(f"sw{i}")
    if i in (0, 3): sps()
    for rt in range(4):
        for h in range(2):
            SP(f"ds_read_b64_tr_b16 {v(64+16*i+4*rt+2*h,2)}, {v(52+rt)} offset:{4096*i+1024*h}")
    for rt in range(4):
        SP(f"buffer_store_dwordx4 {v(64+16*i+4*rt,4)}, v20, {srd(SRD_WS)}, s{S_HR+i} offen offset:{1024*rt} sc1")
SP("s_waitcnt vmcnt(0)")
addcnt(SP, S_F3, V_FLG)
sps()
SP("L_sp_nowf:")
sps()
SP("s_mov_b64 vcc, 3")
spin(SP, "L_sp_c", "L_sp_d", poll_issue(S_PA, 7), 7, sleep=int(OPT.get('spsleep', 2)), exp=f"s{S_E28}")
SP("L_sp_d:")
sps()
for k in range(14):
    SP(f"s_mov_b32 s{S_T0}, {k*4*PROW}")
    SP(f"buffer_load_dwordx4 {v(64+4*k,4)}, v11, {srd(SRD_WS)}, s{S_T0} offen sc1")
SS = 16
for j in range(8):
    SP(f"v_mov_b32 {v(SS+j)}, 0")
for k in range(14):
    for j in range(4):
        SP(f"v_dot2c_f32_bf16 {v(SS+j)}, {v(64+4*k+j)}, v14")
    for j in range(4):
        SP(f"v_dot2c_f32_bf16 {v(SS+4+j)}, {v(64+4*k+j)}, {v(64+4*k+j)}")
for o in (0, 4):
    SP(f"v_permlane32_swap_b32 {v(SS+o)}, {v(SS+o+2)}")
    SP(f"v_permlane32_swap_b32 {v(SS+o+1)}, {v(SS+o+3)}")
for o in (0, 4):
    SP(f"v_add_f32 {v(SS+o)}, {v(SS+o)}, {v(SS+o+2)}")
    SP(f"v_add_f32 {v(SS+o+1)}, {v(SS+o+1)}, {v(SS+o+3)}")
for o in (0, 4):
    SP(f"v_permlane16_swap_b32 {v(SS+o)}, {v(SS+o+1)}")
SP(f"v_add_f32 {v(SS)}, {v(SS)}, {v(SS+1)}")
SP(f"v_add_f32 {v(SS+1)}, {v(SS+4)}, {v(SS+5)}")
sps()
SP(f"ds_write_b64 v12, {v(SS,2)}")
SP("s_waitcnt lgkmcnt(0)")
SP("s_barrier")
SP(f"s_cmp_lg_u32 s{S_V}, 0")
SP("s_cbranch_scc1 L_fin")
t = 24
for w in range(4):
    SP(f"ds_read_b64 {v(t+2*w,2)}, v13 offset:{512*w}")
SP(f"s_lshl_b32 s{S_T0}, s{S_TB}, 1")
SP(f"s_add_u32 s{S_T0}, s{S_T0}, s{S_FH}")
SP(f"s_lshl_b32 s{S_T0}, s{S_T0}, 9")
SP(f"s_add_u32 s{S_T0}, s{S_T0}, {WS_S2}")
SP(f"v_pk_add_f32 {v(t,2)}, {v(t,2)}, {v(t+2,2)}")
SP(f"v_pk_add_f32 {v(t+4,2)}, {v(t+4,2)}, {v(t+6,2)}")
SP(f"v_pk_add_f32 {v(t,2)}, {v(t,2)}, {v(t+4,2)}")
SP(f"v_mul_f32 {v(t)}, s{S_K0}, {v(t)}")
SP(f"v_mul_f32 {v(t+1)}, s{S_K0}, {v(t+1)}")
SP(f"v_fma_f32 {v(t+1)}, -{v(t)}, {v(t)}, {v(t+1)}")
SP(f"v_max_f32 {v(t+1)}, 0, {v(t+1)}")
SP(f"v_add_f32 {v(t+1)}, {f32(1e-5)}, {v(t+1)}")
SP(f"v_rsq_f32 {v(t+1)}, {v(t+1)}")
SP(f"v_cvt_pk_bf16_f32 {v(t)}, 0, -{v(t)}")
SP(f"v_cvt_f16_f32 {v(t+1)}, {v(t+1)}")
SP(f"v_and_b32 {v(t+1)}, 0xffff, {v(t+1)}")
SP(f"v_or_b32 {v(t)}, {v(t)}, {v(t+1)}")
SP(f"v_mov_b32 {v(t+1)}, s{S_NONCE}")
for r_ in range(7):
    SP(f"buffer_store_dwordx2 {v(t,2)}, v13, {srd(SRD_WS)}, s{S_T0} offen sc1")
    SP(f"s_add_u32 s{S_T0}, s{S_T0}, {S2REP}")
sps()
SP(f"s_cmp_lg_u32 s{S_W}, 255")
SP("s_cbranch_scc1 L_fin")
SP(f"v_lshlrev_b32 v4, 25, {v(V_LANE)}")
SP(f"buffer_store_dword {v(t+1)}, v4, {srd(SRD_WS)}, 0 offen sc1")
SP("s_branch L_fin")


def b_read(J, ks):
    q = sub()
    b = BF + 4 * (ks % NBF)
    o = 112 * (J & 1) + 4 * ks
    q(f"ds_read2st64_b32 {v(b,2)}, {v(V_BR)} offset0:{o} offset1:{o+1}")
    q(f"ds_read2st64_b32 {v(b+2,2)}, {v(V_BR2)} offset0:{o} offset1:{o+1}", tok=f"b{J}_{ks}")
    return q.ins


def g1_gaps(J, extra_after=None):
    m = sub()
    g0 = GACC[J & 1]
    for ks in range(28):
        for mm in range(2):
            d = g0 + 16 * mm
            c = "0" if ks == 0 else v(d, 16)
            m(f"v_mfma_f32_32x32x16_bf16 {v(d,16)}, {acc(wfrag(mm,ks),4)}, {v(BF+4*(ks%NBF),4)}, {c}")
    for mm in range(2):
        d = g0 + 16 * mm
        m(f"v_mfma_f32_32x32x16_bf16 {v(d,16)}, {acc(A_CS[mm],4)}, {v(MB,4)}, {v(d,16)}")
    g = Gaps(m.ins, 6)
    for ks in range(28):
        k2 = ks + NBF - 1
        if k2 < 28:
            r = b_read(J, k2)
            g.at(2 * ks, [r[0]])
            g.at(2 * ks + 1, [r[1]])
        if ks % 3 == 2 and ks + 1 < 28:
            w = sub()
            w.wait(f"b{J}_{min(ks+3,27)}")
            g.at(2 * ks + 1, w.ins)
    return g


def next_tile_reads(g, J, delta, first=42):
    q = sub()
    if delta:
        q(f"v_add_u32 {v(V_BR)}, {delta}, {v(V_BR)}")
        q(f"v_add_u32 {v(V_BR2)}, {delta}, {v(V_BR2)}")
    g.at(first, q.ins)
    for ks in range(NBF - 1):
        old = max(k for k in range(28) if k % NBF == ks)
        r = b_read(J, ks)
        at = max(2 * old + 1, first + 1)
        g.at(at, r[:1])
        g.at(min(at + 1, 57), r[1:])


def g1_epi(J):
    q = sub()
    g = GACC[J & 1]
    kc = KC_[J & 1]
    T = EPT
    for j0 in range(0, 16, 4):
        js = range(j0, j0 + 4)
        for j in js:
            q(f"v_mul_f32 {v(T+j-j0)}, {v(g+j)}, {v(g+j)}")
        for j in js:
            q(f"v_fma_f32 {v(T+j-j0)}, {v(T+j-j0)}, {v(kc+1)}, {v(kc)}")
        for j in js:
            q(f"v_mul_f32 {v(T+j-j0)}, {v(T+j-j0)}, {v(g+j)}")
        for j in js:
            q(f"v_exp_f32 {v(T+j-j0)}, {v(T+j-j0)}")
            q(f"v_mul_f32 {v(T+4+j-j0)}, {v(g+j)}, {v(g+16+j)}")
        for j in js:
            q(f"v_fma_f32 {v(T+j-j0)}, {v(T+j-j0)}, {v(kc+2)}, {v(kc+2)}")
        for j in js:
            q(f"v_rcp_f32 {v(T+j-j0)}, {v(T+j-j0)}")
        for j in js:
            q(f"v_mul_f32 {v(T+4+j-j0)}, {v(T+4+j-j0)}, {v(T+j-j0)}")
        q(f"v_cvt_pk_bf16_f32 {v(HP+(j0//2)%4)}, {v(T+4)}, {v(T+5)}")
        q(f"v_cvt_pk_bf16_f32 {v(HP+(j0//2)%4+1)}, {v(T+6)}, {v(T+7)}")
        if j0 in (4, 12):
            q2 = j0 // 8
            q(f"buffer_store_dwordx4 {v(HP,4)}, {v(V_HST)}, {srd(SRD_WS)}, 0 offen offset:{512*q2} sc1", tok=f"H{J}")
    q(f"v_add_u32 {v(V_HST)}, {2*57344}, {v(V_HST)}")
    return q.ins


def g1_epi_pk(J):
    q = sub()
    g = GACC[J & 1]
    assert KC_[J & 1] == 9
    T = EPT
    for j0 in range(0, 16, 8):
        pr_ = range(j0, j0 + 8, 2)
        for j in pr_:
            q(f"v_pk_mul_f32 {v(T+j-j0,2)}, {v(g+j,2)}, {v(g+j,2)}")
        for j in pr_:
            q(f"v_pk_fma_f32 {v(T+j-j0,2)}, {v(T+j-j0,2)}, v[10:11], v[8:9] op_sel:[0,0,1] op_sel_hi:[1,0,1]")
        for j in pr_:
            q(f"v_pk_mul_f32 {v(T+j-j0,2)}, {v(T+j-j0,2)}, {v(g+j,2)}")
        for j in range(j0, j0 + 8):
            q(f"v_exp_f32 {v(T+j-j0)}, {v(T+j-j0)}")
        for j in pr_:
            q(f"v_pk_mul_f32 {v(g+j,2)}, {v(g+j,2)}, {v(g+16+j,2)}")
        for j in pr_:
            q(f"v_pk_fma_f32 {v(T+j-j0,2)}, {v(T+j-j0,2)}, v[10:11], v[10:11] op_sel:[0,1,1] op_sel_hi:[1,1,1]")
        for j in range(j0, j0 + 8):
            q(f"v_rcp_f32 {v(T+j-j0)}, {v(T+j-j0)}")
        for j in pr_:
            q(f"v_pk_mul_f32 {v(g+j,2)}, {v(g+j,2)}, {v(T+j-j0,2)}")
        for j in pr_:
            q(f"v_cvt_pk_bf16_f32 {v(HP+(j-j0)//2)}, {v(g+j)}, {v(g+j+1)}")
        q(f"buffer_store_dwordx4 {v(HP,4)}, {v(V_HST)}, {srd(SRD_WS)}, 0 offen offset:{512*(j0//8)} sc1", tok=f"H{J}")
    return q.ins


def flag3(J):
    q = sub()
    q.wait(f"H{J}")
    addcnt(q, S_F3, V_FLG)
    q(f"s_add_u32 s{S_F3}, s{S_F3}, 2048")
    if str(J) in OPT.get("tch", ""):
        q(f"s_add_u32 s{S_T3}, s{S_TCH}, {J*2*57344}")
        q(f"buffer_load_dword {v(253 + (J & 1))}, v40, {srd(SRD_WS)}, s{S_T3} offen sc1")
    return q.ins


WDREG = {}
for i in range(4):
    for rt in range(4):
        WDREG[i, rt] = v(WDV + 16 * i + 4 * rt, 4)
        WDREG[10, rt] = acc(240 + 4 * rt, 4)
        WDREG[11, rt] = v([176, 180, 184, 56][rt], 4)
        WDREG[12, rt] = acc(4 * rt, 4)
        WDREG[13, rt] = acc(16 + 4 * rt, 4)
for i in range(6):
    for rt in range(4):
        WDREG[4 + i, rt] = acc(128 + 16 * i + 4 * rt, 4)
KORD = [0, 1, 2, 3, 10, 11, 12, 13, 4, 5, 6, 7, 8, 9]


def wdr(ft, rt):
    return WDREG[ft, rt]


def wd_load(ft):
    q = sub()
    q(f"s_add_u32 s{S_WOFF}, s{S_WFB}, {(ft*4096) if 'hot' not in OPT else 4096*(ft%2)}")
    for k in range(4):
        of = f" offset:{1024*k}" if k else ""
        q(f"buffer_load_dwordx4 {wdr(ft,k)}, {v(V_L16)}, {srd(SRD_WS)}, s{S_WOFF} offen{of} sc1")
    return q.ins


def wd_dma(ft):
    q = sub()
    sbase, slot = (S_FW, ft - 4) if ft < 6 else (S_R2, ft - 6)
    q(f"s_add_u32 m0, s{sbase}, {slot*4096}")
    q(f"s_add_u32 s{S_WOFF}, s{S_WFB}, {(ft*4096) if 'hot' not in OPT else 4096*(ft%2)}")
    for k in range(4):
        of = f" offset:{1024*k}" if k else ""
        q(f"buffer_load_dwordx4 {v(V_L16)}, {srd(SRD_WS)}, s{S_WOFF} offen{of} sc1 lds", tok=f"wd{ft}")
    return q.ins


def wd_read(ft):
    q = sub()
    va, slot = (V_LF, ft - 4) if ft < 6 else (V_LR, ft - 6)
    for rt in range(4):
        q(f"ds_read_b128 {wdr(ft,rt)}, {v(va)} offset:{4096*slot+1024*rt}")
    return q.ins


def res_read(J):
    q = sub()
    o = 112 * (J & 1)
    q(f"ds_read2st64_b32 {v(RESR[J],2)}, {v(V_RES)} offset0:{o} offset1:{o+1}", tok=f"res{J}")
    if J == 1:
        q(f"v_add_u32 {v(V_RES)}, {L_ACT[1]}, {v(V_RES)}")
    return q.ins


ad = sub()
ad(f"v_lshrrev_b32 v4, 4, v0")
ad(f"v_and_b32 v5, 15, v0")
ad(f"v_lshrrev_b32 v6, 1, v5")
ad(f"v_and_b32 v7, 1, v5")
ad(f"v_lshl_add_u32 v6, v6, 2, v7")
ad(f"s_lshl_b32 s{S_T0}, s{S_DB}, 12")
ad(f"v_lshl_add_u32 v6, v6, 7, s{S_T0}")
ad(f"s_lshl_b32 s{S_T1}, s{S_FH}, 6")
ad(f"v_lshl_add_u32 v7, v4, 2, s{S_T1}")
ad(f"v_add_u32 v6, v6, v7")
ad(f"v_and_b32 v7, 3, v5")
ad(f"v_lshlrev_b32 v7, 5, v7")
ad(f"v_xor_b32 {v(V_RES)}, v6, v7")
ad(f"v_lshrrev_b32 v6, 2, v4")
ad(f"v_and_b32 v7, 3, v4")
ad(f"v_lshl_add_u32 v6, v6, 4, v7")
ad(f"v_mul_u32_u24 v6, 896, v6")
ad(f"v_lshl_add_u32 v6, v5, 3, v6")
ad(f"s_lshr_b32 s{S_T0}, s{S_TB}, 2")
ad(f"s_lshl_b32 s{S_T0}, s{S_T0}, 8")
ad(f"s_add_u32 s{S_T0}, s{S_T0}, s{S_T1}")
ad(f"s_and_b32 s{S_T1}, s{S_TB}, 3")
ad(f"s_lshl_b32 s{S_T1}, s{S_T1}, 2")
ad(f"s_add_u32 s{S_T0}, s{S_T0}, s{S_T1}")
ad(f"s_mul_i32 s{S_T0}, s{S_T0}, 896")
ad(f"s_lshl_b32 s{S_T1}, s{S_DB}, 7")
ad(f"s_add_u32 s{S_T0}, s{S_T0}, s{S_T1}")
ad(f"v_add_u32 {v(V_OST)}, s{S_T0}, v6")
ad(f"v_mul_u32_u24 v6, 288, v5")
ad(f"v_lshl_add_u32 v6, v4, 4, v6")
ad(f"v_add_u32 {v(V_RR)}, {L_R}, v6")
ad(f"v_lshrrev_b32 v4, 4, {v(V_LANE)}")
ad(f"v_mul_u32_u24 v6, 288, v4")
ad(f"v_lshl_add_u32 v6, v5, 4, v6")
ad(f"s_mul_i32 s{S_T0}, s{S_V}, 4608")
ad(f"s_add_u32 s{S_T0}, s{S_T0}, {L_R}")
ad(f"v_add_u32 {v(V_RW)}, s{S_T0}, v6")
lanes_reg(ad, V_FLG, 2, 8)
if "tch2" in OPT:
    lanes_reg(ad, 40, 16, 7)
    ad(f"v_and_b32 v4, 8, {v(V_LANE)}")
    ad(f"v_mul_u32_u24 v4, {(28672-1024)//8}, v4")
    ad(f"v_add_u32 v40, v40, v4")
elif "tch" in OPT:
    lanes_reg(ad, 40, 8, 7)

for i in range(1, 4):
    P(f"v_mov_b32 {v(MB+i)}, 0")
    P(f"v_accvgpr_write_b32 {acc(A_CS[0]+i)}, 0")
    P(f"v_accvgpr_write_b32 {acc(A_CS[1]+i)}, 0")
walk("walk")
P.wait("act0")
P("s_waitcnt lgkmcnt(0)")
P("s_barrier")
stamp("gemm1 start")
for ks in range(3):
    P.add(b_read(0, ks))
g = Gaps(cs_mfma(24 - NCH_, 24), 2)
pin_spread(g, 0, sum([b_read(0, ks) for ks in range(3, NBF - 1)], []), per=1)
pin_vm(g, 1, w4[:3], 3)
P.add(g.out())

def hreg(J, ft):
    n = KORD.index(ft)
    if J in (0, 3):
        return acc(32 + 4 * n, 4)
    if J == 1:
        return v(64 + 4 * n if n < 8 else 128 + 4 * (n - 8), 4)
    return v(96 + 4 * n if n < 8 else 152 + 4 * (n - 8), 4)


def h_loads(J):
    o = []
    for s_ in KORD:
        q = sub()
        of = f" offset:{1024*(s_%4)}" if s_ % 4 else ""
        so = f"s{S_HR+s_//4}" if s_ >= 4 else "0"
        q(f"buffer_load_dwordx4 {hreg(J,s_)}, {v(V_HL)}, {srd(SRD_WS)}, {so} offen{of} sc1")
        o.append(q.ins)
    if J < 3:
        q = sub()
        q(f"v_add_u32 {v(V_HL)}, {2*57344}, {v(V_HL)}")
        o[-1] += q.ins
    return o


def p3_next():
    q = sub()
    q(f"s_add_u32 s{S_P3}, s{S_P3}, 2048")
    return q.ins


g = g1_gaps(0)
e = pin_vm(g, 0, w4[3:], 1.5)
g.at(int(OPT.get("fb", 2)), fl.ins)
g.at(e, poll_check(S_P4, 25))
WL = [wd_load(0), wd_load(1), wd_load(2), wd_load(3), wd_load(10), wd_dma(4), wd_dma(5), wd_load(11)]
N0_, N1_ = int(OPT.get("n0", 5)), int(OPT.get("n1", 2))
WS0 = int(OPT.get("ws0", 14))
e4 = pin_vm(g, WS0, WL[:N0_], (57 - WS0) / (4 * N0_))
t4 = w_tr(6, 0, 8, "t4") + w_tr(6, 1, 12, "t4")
g.at(30, waitq("w4"))
pin_spread(g, 30, t4, per=2)
g.at(41, waitq("t4") + cs_mfma(24, 28))
cf = sub()
for m in range(2):
    round_bf16(cf, 54, CSA[m])
    cf(f"v_sub_f32 v55, {v(CSA[m])}, v54")
    cf(f"v_cvt_pk_bf16_f32 v54, v54, v55")
    cf(f"v_accvgpr_write_b32 {acc(A_CS[m])}, v54")
g.fill(cf.ins, start=44, end=52)
g.at(int(OPT.get("pb1", 26)), poll_issue(S_PA, 23))
g.at(int(OPT.get("pb2", 40)), poll_issue(S_PA, 25))
g.at(int(OPT.get("st0", 32)), st_issue(0))
g.at(53, stq("t0 pre st") + st_check(0) + stq("t0 post st"))
g.fill(st_final(0), start=53, end=55)
g.at(57, stq("t0 pre pB") + poll_check2(S_PA, 23, 25, "3", f"s{S_E28}") + stq("t0 post pB"))
bq = sub()
bq.wait("act1")
bq("s_barrier")
g.at(27, bq.ins)
next_tile_reads(g, 1, 0, first=41)
e = g.fill(ad2.ins[NAD2:], start=0, cap=float(OPT.get("cap0", 6)))
assert e < min(e4, 40), e
e = g.fill(ad.ins, start=e, cap=float(OPT.get("cap0", 6)))
print("tile 0 address stream ends at", e, len(g.tail))
gap_stamps(g, "t0")
P.add(g.out())
stamp("tile0")
g = g1_gaps(1)
e = pin_vm(g, 0, act_dma(2)[:1] + [st_issue(1)] + act_dma(2)[1:] + act_dma(3), 2)
pin_vm(g, e + 1, WL[N0_:N0_ + N1_], min(2.5, (57 - e) / (4 * N1_)))
g.at(38, res_read(0))
g.at(39, res_read(1))
g.at(40, st_check(1))
g.fill(st_final(1), start=41, end=54)
bq = sub()
bq.wait("act2")
bq.wait("b1_27")
bq("s_barrier")
BB = int(OPT.get("bb", 45))
g.at(BB, stq("t1 pre bar") + bq.ins + stq("t1 post bar"))
next_tile_reads(g, 2, L_ACT[1], first=BB)
e = g.fill(g1_epi(0), start=3)
print("tile 1: epilogue ends at gap", e, "tail", len(g.tail))
gap_stamps(g, "t1")
P.add(g.out())
stamp("tile1")
g = g1_gaps(2)
pin_vm(g, 0, [wd_dma(6), wd_dma(7), st_issue(2), wd_dma(8), wd_dma(9)] + WL[N0_ + N1_:] + [st_issue(3)], 55 / (18 + 4 * (8 - N0_ - N1_)))
g.at(24, flag3(0))
bq = sub()
bq.wait("act3")
bq("s_barrier")
g.at(30, bq.ins)
g.at(49, st_check(2))
g.fill(st_final(2), start=50, end=54)
g.at(56, poll_issue(S_P3, 7))
next_tile_reads(g, 3, 0, first=41)
e = g.fill(g1_epi(1), start=3)
print("tile 2: epilogue ends at gap", e, "tail", len(g.tail))
gap_stamps(g, "t2")
P.add(g.out())
stamp("tile2")
g = g1_gaps(3)
T3S = float(OPT.get("t3s", 2.4))
e = pin_vm(g, 4, [wd_load(12), wd_load(13)], T3S)
g.at(int(OPT.get("f1", 21)), flag3(1))
g.at(48, st_check(3))
g.fill(st_final(3), start=49, end=54)
g.at(e - 1, stq("t3 pre p0") + poll_check(S_P3, 7) + stq("t3 post p0") + p3_next())
pin_vm(g, e, h_loads(0), T3S)
g.at(int(OPT.get("p1", 47)), poll_issue(S_P3, 7))
g.at(52, res_read(2))
g.at(54, res_read(3))
e = g.fill(g1_epi(2), start=2, cap=float(OPT.get("cap3", 7)))
print("tile 3: epilogue ends at gap", e, "tail", len(g.tail))
gap_stamps(g, "t3")
P.add(g.out())
stamp("tile3")
P.add(waitq("wd9") + wd_read(4) + wd_read(5))
ep = g1_epi_pk(3)
h1 = h_loads(1)
NE = int(OPT.get("ne", 0))
PC1 = poll_check(S_P3, 7) + p3_next()
F2E = int(OPT.get("f2e", 45))
ins_ = [(F2E, flag3(2))] if F2E >= 0 else []
if NE:
    P.add(sprinkle(ep, ins_ + [(45, PC1)] + [(46 + 14 * i, h1[i]) for i in range(NE)]))
else:
    P.add(sprinkle(ep, ins_) + PC1)
stamp("epi3")

OA = [8, 48]
OA = [224, 96]
RT = 176


NRM = int(OPT.get("nrm", 6))


def g2_mfma(J):
    m = sub()
    seq = [(ft, rt) for ft in KORD for rt in range(4)]
    if J == 3:
        seq = seq[:4 * (14 - NRM)] + [(ft, rt) for rt in range(4) for ft in KORD[14 - NRM:]]
    for ft, rt in seq:
        if True:
            d = acc(OA[J & 1] + 4 * rt, 4)
            c = "0" if ft == 0 else d
            m(f"v_mfma_f32_16x16x32_bf16 {d}, {wdr(ft,rt)}, {hreg(J,ft)}, {c}")
    return m.ins


RTMP = [28, 32, 36, 12]


def red_write(J):
    q = sub()
    for rt in range(4):
        q(f"ds_write_b128 {v(V_RW)}, {acc(OA[J&1]+4*rt,4)} offset:{(J&1)*R_SZ + rt*1152}")
    return q.ins


def red_bar():
    q = sub()
    q("s_waitcnt lgkmcnt(0)")
    q("s_barrier")
    return q.ins


def red_read(J):
    q = sub()
    for w in range(4):
        q(f"ds_read_b128 {v(RTMP[w],4)}, {v(V_RR)} offset:{(J&1)*R_SZ + w*4608}")
    return q.ins


def red_fin(J):
    q = sub()
    a, b, c, d = RTMP
    for i in range(2):
        q(f"v_lshlrev_b32 {v(16+2*i)}, 16, {v(RESR[J]+i)}")
        q(f"v_and_b32 {v(17+2*i)}, 0xffff0000, {v(RESR[J]+i)}")
    if J == 3 and "eps" not in OPT:
        for x, y in ((a, 16), (b, c), (a, d), (a, b)):
            for i in (0, 2):
                q(f"v_pk_add_f32 {v(x+i,2)}, {v(x+i,2)}, {v(y+i,2)}")
        for i in range(2):
            q(f"v_cvt_pk_bf16_f32 {v(20+i)}, {v(a+2*i)}, {v(a+2*i+1)}")
        q(f"s_mov_b32 s{S_T0}, {(1024*(J>>1) + 128*(J&1))*896}")
        q(f"buffer_store_dwordx2 v[20:21], {v(V_OST)}, {srd(SRD_OUT)}, s{S_T0} offen {OPT.get('ost', '').replace('_', ' ')}")
        return q.ins
    for i in range(4):
        q(f"v_add_f32 {v(a+i)}, {v(a+i)}, {v(b+i)}")
    for i in range(4):
        q(f"v_add_f32 {v(c+i)}, {v(c+i)}, {v(d+i)}")
    for i in range(4):
        q(f"v_add_f32 {v(a+i)}, {v(a+i)}, {v(16+i)}")
    for i in range(4):
        q(f"v_add_f32 {v(a+i)}, {v(a+i)}, {v(c+i)}")
    if "eps" in OPT:
        for i in range(4):
            q(f"v_mul_f32 {v(a+i)}, {f32(1.0+float(OPT['eps']))}, {v(a+i)}")
    for i in range(2):
        q(f"v_cvt_pk_bf16_f32 {v(20+i)}, {v(a+2*i)}, {v(a+2*i+1)}")
    q(f"s_mov_b32 s{S_T0}, {(1024*(J>>1) + 128*(J&1))*896}")
    q(f"buffer_store_dwordx2 v[20:21], {v(V_OST)}, {srd(SRD_OUT)}, s{S_T0} offen {OPT.get('ost', '').replace('_', ' ')}")
    return q.ins


for J in range(4):
    g = Gaps(g2_mfma(J), 2)
    if J > 0:
        pin_spread(g, 4, red_write(J - 1), per=1)
        g.at(16, red_bar())
        pin_spread(g, 17, red_read(J - 1), per=1)
        rf = red_fin(J - 1)
        e = g.fill(rf[:-1], start=26)
        g.at(e + 1, rf[-1:])
    if J == 0:
        pin_vm(g, 0, h1[NE:], float(OPT.get("hs1", 4)))
        if F2E < 0:
            g.at(int(OPT.get("f2", 2)), flag3(2))
        C2 = int(OPT.get("c2", 56))
        h2 = h_loads(2)
        n2 = 0
        if C2 < 56:
            g.at(C2, poll_check2(S_P3, 7, 23, "1", f"s{S_E14}") + p3_next())
            n2 = int((55 - C2) / 3.5) + 1
            pin_vm(g, C2, h2[:n2], 3.5)
        for i, x in enumerate(wd_read(6) + wd_read(7) + wd_read(8) + wd_read(9)):
            g.at(1 + 2 * i, [x])
        g.at(int(OPT.get("p2a", 14)), poll_issue(S_P3, 7))
        g.at(int(OPT.get("p2b", 34)), poll_issue(S_P3, 23))
        g.at(int(OPT.get("f3", 36)), flag3(3))
        bq = sub()
        bq.wait("res3")
        bq("s_barrier")
        g.at(52, bq.ins)
    if J == 1:
        if C2 >= 56:
            g.at(C2 - 56, poll_check2(S_P3, 7, 23, "1", f"s{S_E14}") + p3_next())
        pin_vm(g, max(C2 - 56, 1), h2[n2:], float(OPT.get("hs", 4)))
        g.at(int(OPT.get("p3a", 12)), poll_issue(S_P3, 7))
        g.at(int(OPT.get("p3b", 30)), poll_issue(S_P3, 23))
        C3 = int(OPT.get("c3", 55))
        g.at(C3, poll_check2(S_P3, 7, 23, "1", f"s{S_E14}"))
        h3 = h_loads(3)
        n3 = (55 - C3) // 3
        pin_vm(g, C3 + 1, h3[:n3], 3)
    if J == 2:
        pin_vm(g, 0, h3[n3:], float(OPT.get("hs3", 4)))
    if J == 3:
        rw3 = red_write(3)
        for i in range(3):
            g.at(min(55 - NRM * (3 - i) + 8, 55), [rw3[i]])
    P.add(g.out())
    stamp(f"g2 tile{J}")
P.add(rw3[3:])
P.add(red_bar())
P.add(red_read(3))
P.add(red_fin(3))
stamp("end")

if "hold" in OPT:
    if "cls" in OPT:
        P(f"s_and_b32 s98, s{S_W}, 7")
        P(f"s_cmp_lg_u32 s98, {OPT['cls']}")
        P("s_cbranch_scc1 L_fin")
    P("L_hold:")
    P("s_memrealtime s[98:99]")
    P("s_waitcnt lgkmcnt(0)")
    P("s_sub_u32 s98, s98, s100")
    P("s_cmp_lt_u32 s98, 4000")
    P("s_cbranch_scc1 L_hold")
P("L_fin:")
if STAMPS:
    P(f"s_lshl_b32 s{S_T0}, s{S_W}, 2")
    P(f"s_add_u32 s{S_T0}, s{S_T0}, s{S_V}")
    P(f"s_lshl_b32 s{S_T0}, s{S_T0}, 8")
    P(f"s_add_u32 s{S_T0}, s{S_T0}, {WS_DBG + 0x800000}")
    P(f"v_lshlrev_b32 v4, 2, v1")
    P(f"buffer_store_dword v255, v4, {srd(SRD_WS)}, s{S_T0} offen")
if "dbgout" in OPT:
    P(f"s_cmp_ge_u32 s{S_W}, 224")
    P("s_cbranch_scc1 L_end")
    P(f"v_readlane_b32 s{S_T0}, v255, 0")
    P(f"s_not_b32 s{S_T0}, s{S_T0}")
    P(f"v_writelane_b32 v255, s{S_T0}, 15")
    P("s_mov_b64 exec, 0xffff")
    P(f"v_lshlrev_b32 v4, 2, v1")
    P("global_atomic_umax v4, v255, s[60:61]")
P("L_end:")
P("s_endpgm")

if "jit" in OPT:
    import random
    rnd = random.Random(int(OPT["jit"]))

    def jitter():
        q = sub()
        lb = label("jit")
        q.raw(f"s_lshl2_add_u32 s98, s{S_W}, s{S_V}")
        q.raw(f"s_mul_i32 s98, s98, {rnd.randrange(1, 1 << 30) | 1}")
        q.raw(f"s_bfe_u32 s98, s98, {hex((3 << 16) | rnd.randrange(12, 28))}")
        q.raw("s_cmp_lt_u32 s98, 6")
        q.raw(f"s_cbranch_scc1 {lb}")
        q.raw(f"s_sleep {rnd.choice([3, 10, 25, 60])}")
        q(f"{lb}:")
        return q.ins

    for prog in (P, SP):
        out_ = []
        started = prog is SP
        for k, i in enumerate(prog.ins):
            if i.text == "; @ x arrived":
                started = True
            nxt = prog.ins[k + 1] if k + 1 < len(prog.ins) else None
            safe = started and not i.cond and nxt is not None and not nxt.cond and i.cls in ("mfma", "ds", "vmem", "valu") and not i.mn.startswith("v_cmp")
            if started and i.mn == "s_barrier":
                out_ += jitter() + [i] + jitter()
            elif safe and rnd.random() < 0.012:
                out_ += [i] + jitter()
            else:
                out_.append(i)
        prog.ins = out_
XX_ = OPT.get("xx", "")
if "c" in XX_:
    P.ins = [i for i in P.ins if not (i.cls == "mfma" and i.ops[1] == v(SEL, 4) and i.ops[0] in (v(CSA[0], 4), v(CSA[1], 4)))]
if "0" in XX_:
    a_ = [k for k, i in enumerate(P.ins) if i.text == "; @ epi3"][0]
    b_ = [k for k, i in enumerate(P.ins) if i.text == "; @ g2 tile0"][0]
    c_ = [k for k, i in enumerate(P.ins) if i.text == "; @ tile2"][0]
    P.ins = [i for k, i in enumerate(P.ins) if not (a_ < k < b_ and i.cls == "mfma") and not (c_ < k < a_ and i.mn == "buffer_load_dwordx4" and i.ops[1] == v(V_HL))]
if "k" in XX_:
    a_ = [k for k, i in enumerate(P.ins) if i.text == "; @ ln1 done"][0]
    b_ = [k for k, i in enumerate(P.ins) if i.text == "; @ kgen r1"][0]
    P.ins = [i for k, i in enumerate(P.ins) if not (a_ < k < b_ and i.mn == "v_pk_mul_f32")]
if "r" in XX_:
    a_ = [k for k, i in enumerate(P.ins) if i.text == "; @ g2 tile0"][0]
    b_ = [k for k, i in enumerate(P.ins) if i.text == "; @ g2 tile3"][0]
    P.ins = [i for k, i in enumerate(P.ins) if not (a_ < k < b_ and i.cls in ("ds", "valu") and not i.mn.startswith(("v_cmp", "v_mov", "v_add_u32")))]
XG = OPT.get("xg", "")
if XG:
    a_ = [k for k, i in enumerate(P.ins) if i.text == "; @ gemm1 start"][0]
    b_ = [k for k, i in enumerate(P.ins) if i.text == "; @ tile3"][0]
    seg = P.ins[a_:b_]
    if "w" in XG:
        seg = [i for i in seg if not (i.mn == "buffer_load_dwordx4" and (i.ops[0] == "v3" or i.ops[1] in ("v3", "v44")))]
    if "e" in XG:
        seg = [i for i in seg if not (i.cls in ("valu", "trans") and (i.wr & {f"v{r}" for r in range(EPT, EPT + 8)}))]
    if "b" in XG:
        seg = [i for i in seg if not (i.mn == "ds_read2st64_b32" and i.ops[1] == f"v{V_BR2}")]
    P.ins = P.ins[:a_] + seg + P.ins[b_:]
res = finalize(P.ins, verbose=True) + finalize(TAIL.ins) + finalize(SP.ins)
if "report" in OPT:
    report_waits(finalize(P.ins))
launch = f"; @launch kernel={KN} grid" if ("list" in OPT or STAMPS) else "; @launch grid"
hdr = f"""; Fused pre-LN S4D conv + GEGLU FFN in one persistent launch (emitted by my own generator script).
{launch}=(256,1,1) block=(256,1,1) lds={LDS_SIZE}
.amdgcn_target "amdgcn-amd-amdhsa--gfx950"
.text
.globl {KN}
.p2align 12
.p2align 8
.type {KN},@function
{KN}:
"""
ftr = f"""
.p2align 8
.fill 64, 4, 0xbf800000
L_codeend:
.section .rodata,"a"
.p2align 6
.amdhsa_kernel {KN}
  .amdhsa_next_free_vgpr 512
  .amdhsa_next_free_sgpr 102
  .amdhsa_accum_offset 256
  .amdhsa_group_segment_fixed_size 0
  .amdhsa_kernarg_size 112
  .amdhsa_user_sgpr_count 2
  .amdhsa_user_sgpr_kernarg_segment_ptr 1
  .amdhsa_system_sgpr_workgroup_id_x 1
.end_amdhsa_kernel
"""
body = text_of(res)
WALKS = ([("early", "L_main", "L_walk_back")] if "w2" in OPT else []) + [("walk", "L_walk_back", "L_fin")]
body = place_pads2(hdr, body, ftr, 0x300, WALKS)
open(OUTF, "w").write(hdr + body + ftr)
src = open(__file__).read()
a = src.index("# ---------------- workspace layout")
b = src.index("# ---------------- LDS layout")
open("layout.py", "w").write(src[a:b] + "\nSTAMP_NAMES = " + repr(stamp_names) + "\nSPIN_NAMES = " + repr(spin_names) + "\n")
```

```python
import sys, math, struct
from asmgen import *

NAME = "sequential_preLN__ssm_conv_s4d__geglu_ffn__prompt"
KN = NAME + "_kernel"
OPT = {}
for a in sys.argv[1:]:
    k, _, val = a.partition("=")
    OPT[k] = val if val else True
STAMPS = "stamps" in OPT
OUTF = OPT.get("out", "k19.s")
OPT.setdefault("pfpos", "300,300")
OPT.setdefault("pa3", "84")
OPT.setdefault("w2", "b")


def f32(x):
    return "0x%08x" % struct.unpack("<I", struct.pack("<f", x))[0]


FS = 4
FREP = 0x9000
WS_EPOCH = 0
WS_F1 = 0x8000
WS_S2 = 0x58000
S2REP = 0x5000
WS_C = 0x80000
WS_UX = 0xD0000
WS_P = WS_UX + 256 * 14336
PROW = 4352
PGEN = 224 * PROW
WS_H = WS_P + 2 * PGEN
WS_WF = WS_H + 16 * 4 * 56 * 2048
WS_END = WS_WF + 392 * 4096
WS_DBG = 0x1000000
WS_SIZE = 0x2000000
LAYOUT = 5

CS = 4160
TAB_W = 14592
TAB_ROW = 272
L_KC = 58368
L_UX = 75008
L_EX = 0
L_RING = 98304
L_ACT = [0, 65536]
L_F = 131072
L_R = 65536
R_SZ = 18432
LDS_SIZE = 163840

S_W = 2
S_V = 4
S_T0, S_T1, S_T2, S_T3 = 5, 6, 7, 3
SRD_X, SRD_WS, SRD_WG, SRD_WU, SRD_WD, SRD_OUT = 8, 12, 16, 20, 24, 28
S_NONCE = 32
S_CNT = 33
S_EX = 34
S_PR, S_DSK = 64, 65
S_TB, S_FB, S_FH, S_DB = 66, 67, 68, 69
S_A, S_B, S_C, S_D = 70, 72, 74, 76
S_RING = 78
S_WOFF = 79
S_K0 = 80
S_TAB = 81
S_F3 = 82
S_F1, S_F2 = 83, 84
S_M255 = 86
S_FW, S_R2 = 88, 89
S_ACTW = 90
S_UXO = 91
S_PFB = 88
S_HR = 36
S_PA, S_P4, S_P3, S_PST, S_AB, S_WFB = 40, 41, 42, 43, 44, 45
S_E28, S_E14, S_CI = 46, 47, 85
S_F1L = 95
S_TCH = 50
S_UXM = 92
S_REP = 94
S_PERM = 93
S_STAMP = 96


def srd(n):
    return f"s[{n}:{n+3}]"


def v(n, w=1):
    return f"v{n}" if w == 1 else f"v[{n}:{n+w-1}]"


def acc(n, w=1):
    return f"a{n}" if w == 1 else f"a[{n}:{n+w-1}]"


P = Prog()
TAIL = Prog()
nstamp = [0]
stamp_names = []
spin_names = []
LITE = ("start", "conv start", "genA stored", "gemm1 start", "tile3", "end")
if "dbgout" in OPT:
    LITE = ("start", "x arrived", "ln1 done", "kgen r1", "conv start", "genA stored", "gemm1 start", "tile1", "tile3", "end")


def stamp(name, p=None):
    p = P if p is None else p
    p(f"; @ {name}")
    if OPT.get("hold", "").replace("_", " ") == name:
        p(f"s_memrealtime s[100:101]")
        p("s_waitcnt lgkmcnt(0)")
    if STAMPS and ("lite" not in OPT or name in LITE):
        k = nstamp[0]
        assert k < 32
        p(f"s_memrealtime s[{S_STAMP}:{S_STAMP+1}]")
        p(f"s_memtime s[{S_STAMP+2}:{S_STAMP+3}]")
        p("s_waitcnt lgkmcnt(0)")
        p(f"v_writelane_b32 v255, s{S_STAMP}, {k}")
        p(f"v_writelane_b32 v255, s{S_STAMP+2}, {32+k}")
        nstamp[0] += 1
        stamp_names.append(name)


def stq(name):
    q = sub()
    if "dbg" in OPT:
        stamp(name, q)
    return q.ins


lblc = [0]


def label(prefix):
    lblc[0] += 1
    return f"L_{prefix}_{lblc[0]}"


def poll_issue(what, vtmp):
    q = sub()
    q(f"v_mov_b32 {v(vtmp)}, 0")
    if what == "F1":
        q(f"buffer_atomic_add {v(vtmp)}, {v(V_F1)}, {srd(SRD_WS)}, 0 offen sc0")
    else:
        q(f"buffer_atomic_add {v(vtmp)}, {v(V_PM if what == S_PA else V_P1)}, {srd(SRD_WS)}, s{what} offen sc0")
    return q.ins


def spin(t, name, done, reissue, vtag, sleep=2, exp=None):
    t(f"{name}:")
    t(f"s_mov_b32 s{S_CNT}, 0")
    t(f"{name}_l:")
    t("s_mov_b64 exec, vcc")
    t(f"s_sleep {sleep}")
    t.add(reissue)
    t("s_waitcnt vmcnt(0)")
    t(f"v_cmp_ne_u32 vcc, {exp or f's{S_NONCE}'}, {v(vtag)}")
    t("s_mov_b64 exec, -1")
    if STAMPS and "lite" in OPT:
        spin_names.append(name)
        t(f"s_add_u32 s{S_STAMP}, s{S_CNT}, 1")
        t(f"v_writelane_b32 v255, s{S_STAMP}, {10+len(spin_names)-1}")
    t(f"s_cbranch_vccz {done}")
    t(f"s_add_u32 s{S_CNT}, s{S_CNT}, 1")
    t(f"s_cmp_lt_u32 s{S_CNT}, 0x40000")
    t(f"s_cbranch_scc1 {name}_l")
    t(f"s_branch {done}")


def poll_check(what, vtmp):
    q = sub()
    slow, done = label("slow"), label("pdone")
    exp = f"s{S_NONCE}" if what == "F1" else (f"s{S_E14}" if what == S_P3 else f"s{S_E28}")
    q(f"v_cmp_ne_u32 vcc, {exp}, {v(vtmp)}")
    if what == "F1":
        q(f"s_cbranch_vccnz {slow}")
    else:
        q(f"s_and_b64 vcc, vcc, {3 if what == S_PA else 1}")
        q(f"s_cbranch_scc1 {slow}")
    q(f"{done}:")
    spin(TAIL, slow, done, poll_issue(what, vtmp), vtmp, exp=exp, sleep=1)
    return q.ins


def poll_check2(vaddr, v1, v2, mask, exp):
    q = sub()
    slow, done = label("slow"), label("pdone")
    q(f"v_cmp_ne_u32 vcc, {exp}, {v(v1)}")
    q(f"s_and_b64 vcc, vcc, {mask}")
    q(f"s_cbranch_scc0 {done}")
    q.cond(True)
    q(f"v_cmp_ne_u32 vcc, {exp}, {v(v2)}")
    q(f"s_and_b64 vcc, vcc, {mask}")
    q(f"s_cbranch_scc1 {slow}")
    q.cond(False)
    q(f"{done}:")
    spin(TAIL, slow, done, poll_issue(vaddr, v1), v1, exp=exp, sleep=1)
    return q.ins


def poll_checkn(what, regs, mask, exp):
    q = sub()
    slow, done = label("slow"), label("pdone")
    for k, r in enumerate(regs):
        q(f"v_cmp_ne_u32 vcc, {exp}, {v(r)}")
        q(f"s_and_b64 vcc, vcc, {mask}")
        q(f"s_cbranch_scc0 {done}" if k < len(regs) - 1 else f"s_cbranch_scc1 {slow}")
        q.cond(True)
    q.cond(False)
    q(f"{done}:")
    spin(TAIL, slow, done, poll_issue(what, regs[0]), regs[0], exp=exp, sleep=1)
    return q.ins


def setflag(p, soff):
    if "fst" in OPT:
        p(f"buffer_store_dword {v(V_NONCE)}, {v(V_FLG)}, {srd(SRD_WS)}, s{soff} offen sc1")
    else:
        p(f"buffer_atomic_swap {v(V_NONCE)}, {v(V_FLG)}, {srd(SRD_WS)}, s{soff} offen")


def addcnt(p, soff, vl):
    p(f"buffer_atomic_add {v(V_NONCE)}, {v(vl)}, {srd(SRD_WS)}, s{soff} offen")


def lanes_reg(p, dst, n, sh, t1=4):
    p(f"v_and_b32 {v(t1)}, {64-n}, {v(V_LANE)}")
    p(f"v_lshlrev_b32 {v(t1)}, 25, {v(t1)}")
    p(f"v_lshl_add_u32 {v(dst)}, {v(V_LANE)}, {sh}, {v(t1)}")


def walk(name):
    P.raw("s_mov_b64 exec, 0")
    for c in range(3):
        P.raw(f"s_cmp_eq_u32 s{S_V}, {c}")
        P.raw(f"s_cbranch_scc1 L_{name}{c}")
    P.raw(f"s_branch L_{name}3")
    P(f"L_{name}_back:")
    P.raw("s_mov_b64 exec, -1")


def waitq(tok):
    q = sub()
    q.wait(tok)
    return q.ins


def cmul(p, z, x, y):
    p(f"v_pk_mul_f32 {v(z,2)}, {v(x,2)}, {v(y,2)} op_sel:[0,0] op_sel_hi:[0,1]")
    p(f"v_pk_fma_f32 {v(z,2)}, {v(x,2)}, {v(y,2)}, {v(z,2)} op_sel:[1,1,0] op_sel_hi:[1,0,1] neg_lo:[1,0,0]")


def round_bf16(p, dst, src):
    p(f"v_cvt_pk_bf16_f32 {v(dst)}, {v(src)}, {v(src)}")
    p(f"v_and_b32 {v(dst)}, 0xffff0000, {v(dst)}")


V_LANE, V_NONCE, V_L16 = 1, 2, 3
V_FLG = 8
V_W = 9
V_TRA = 13
V_TA, V_TB, V_TW = 14, 15, 16
GA = 17
V_F1, V_UXL = 26, 27
V_KA = 28
V_UA = 32
V_EU, V_EXP, V_EXW, V_EXR, V_FL2 = 36, 37, 38, 39, 40
V_GW, V_GX, V_GR, V_S3, V_DSK = 240, 241, 242, 243, 244
V_EU1 = 41
V_DT = 42
V_PM = 43
V_P1 = 252
PR = 44
V_PF = 254

LOG2E = 1.4426950408889634

if OPT.get("hold") == "entry" or "entry" in OPT:
    P("s_memrealtime s[100:101]")
P(f"s_cmp_ge_u32 s{S_W}, 256")
P("s_cbranch_scc1 L_end")
P(f"s_load_dwordx16 s[36:51], s[0:1], 0")
if "ksplit" not in OPT:
    P(f"s_load_dwordx8 s[52:59], s[0:1], 64")
    P(f"s_load_dwordx4 s[60:63], s[0:1], 96")
if "nocpf" not in OPT:
    P(f"s_getpc_b64 s[{S_B}:{S_B+1}]")
    P("L_pc:")
    P(f"s_bfe_u32 s{S_T2}, s{S_W}, 0x30003")
    P(f"s_mul_i32 s{S_T2}, s{S_T2}, ((L_codeend-L_pc)/1024)*128")
    P(f"v_cmp_gt_u32 vcc, (L_codeend-L_pc)/1024, v0")
    P(f"s_add_u32 s{S_B}, s{S_B}, s{S_T2}")
    P(f"s_addc_u32 s{S_B+1}, s{S_B+1}, 0")
    P(f"v_lshlrev_b32 v6, 7, v0")
    P(f"s_and_saveexec_b64 s[{S_A}:{S_A+1}], vcc")
    P("s_cbranch_execz L_nocpf")
    P.cond(True)
    P(f"v_mov_b32 v7, s{S_B+1}")
    P(f"v_add_co_u32 v6, vcc, s{S_B}, v6")
    P(f"v_addc_co_u32 v7, vcc, 0, v7, vcc")
    P(f"global_load_dword v251, v[6:7], off")
    P.cond(False)
    P("L_nocpf:")
    P("s_mov_b64 exec, -1")
if STAMPS:
    P("v_mov_b32 v255, 0")
P(f"v_and_b32 {v(V_LANE)}, 63, v0")
P(f"v_lshrrev_b32 v4, 6, v0")
P(f"v_lshlrev_b32 {v(V_L16)}, 4, {v(V_LANE)}")
P(f"v_readfirstlane_b32 s{S_V}, v4")
P(f"v_mov_b32 v5, 0x7ff00000")
P(f"v_cmp_gt_u32 vcc, 56, {v(V_LANE)}")
P(f"s_lshl_b32 s{S_T0}, s{S_W}, 2")
P(f"s_add_u32 s{S_T0}, s{S_T0}, s{S_V}")
P(f"v_cndmask_b32 v4, v5, {v(V_L16)}, vcc")
P(f"s_mul_i32 s{S_T0}, s{S_T0}, 1792")
PB = sub()
PB(f"s_and_b32 s{S_T1}, s{S_W}, 7")
PB(f"s_mul_i32 s{S_T1}, s{S_T1}, 28")
PB(f"s_lshr_b32 s{S_T2}, s{S_W}, 3")
PB(f"s_add_u32 s{S_T1}, s{S_T1}, s{S_T2}")
PB(f"s_min_u32 s{S_PR}, s{S_T1}, 223")
PB(f"s_lshl_b32 s{S_T2}, s{S_PR}, 10")
PB(f"v_lshl_add_u32 v6, v0, 2, s{S_T2}")
PB(f"v_mov_b32 v7, 0")
PB(f"s_lshl_b32 s{S_T1}, s{S_PR}, 2")
PB(f"v_mov_b32 v56, s{S_T1}")
PB(f"s_mov_b32 s{SRD_WS+2}, {WS_SIZE}")
PB(f"s_mov_b32 s{SRD_WS+3}, 0x00020000")
if "short" not in OPT:
    P.add(PB.ins)
P(f"s_mov_b32 s{SRD_X+2}, 1835008")
P(f"s_mov_b32 s{SRD_X+3}, 0x00020000")
P("s_waitcnt lgkmcnt(0)")
stamp("start")
if "entry" in OPT:
    P("v_writelane_b32 v255, s100, 0")
P(f"s_mov_b64 s[{SRD_X}:{SRD_X+1}], s[36:37]")
XR = 48
P(f"buffer_load_dwordx4 {v(XR,4)}, v4, {srd(SRD_X)}, s{S_T0} offen")
P(f"buffer_load_dwordx4 {v(XR+4,4)}, v4, {srd(SRD_X)}, s{S_T0} offen offset:896")
if "short" in OPT:
    P.add(PB.ins)
if "ksplit" in OPT:
    P(f"s_load_dwordx8 s[52:59], s[0:1], 64")
    P(f"s_load_dwordx4 s[60:63], s[0:1], 96")
for r, src, sz in ((SRD_WG, 52, 1605632), (SRD_WU, 54, 1605632), (SRD_WD, 56, 1605632), (SRD_OUT, 58, 1835008)):
    P(f"s_mov_b32 s{r+2}, {sz}")
    P(f"s_mov_b32 s{r+3}, 0x00020000")
P(f"v_cmp_lt_u32 vcc, {int(OPT.get('nrep', 4))+1}, {v(V_LANE)}")
P(f"v_mul_u32_u24 v4, {FREP}, {v(V_LANE)}")
P(f"s_lshr_b32 s{S_T0}, s{S_W}, 3")
P(f"s_mul_i32 s{S_T1}, s{S_T0}, 37")
P(f"v_cndmask_b32 {v(V_FLG)}, v4, v5, vcc")
P(f"s_lshr_b32 s{S_T1}, s{S_T1}, 8")
P(f"s_mul_i32 s{S_T2}, s{S_T1}, 7")
P(f"s_sub_u32 s{S_DB}, s{S_T0}, s{S_T2}")
P(f"s_and_b32 s{S_FH}, s{S_W}, 1")
P(f"s_and_b32 s{S_T2}, s{S_W}, 6")
P(f"s_lshl_b32 s{S_T2}, s{S_T2}, 1")
P(f"s_add_u32 s{S_TB}, s{S_T2}, s{S_T1}")
P(f"s_mul_i32 s{S_FB}, s{S_FH}, 7")
P(f"s_add_u32 s{S_FB}, s{S_FB}, s{S_DB}")
P(f"s_lshl_b32 s{S_RING}, s{S_V}, 13")
P(f"s_add_u32 s{S_RING}, s{S_RING}, {L_RING}")
P(f"s_mul_i32 s{S_TAB}, s{S_V}, {TAB_W}")
for _ in range(int(OPT.get("xd", 0))):
    P("s_nop 7")
for i in range(4):
    P(f"global_load_dword {v(PR+i)}, v6, s[{38+2*i}:{39+2*i}]")
P(f"global_load_dword {v(V_DT)}, v56, s[46:47]")
P(f"global_load_dword {v(V_DSK)}, v56, s[48:49]")
if "ksplit" in OPT:
    P("s_waitcnt lgkmcnt(0)")
P(f"s_mov_b64 s[{SRD_WS}:{SRD_WS+1}], s[62:63]")
for r, src in ((SRD_WG, 52), (SRD_WU, 54), (SRD_WD, 56), (SRD_OUT, 58)):
    P(f"s_mov_b64 s[{r}:{r+1}], s[{src}:{src+1}]")
P(f"buffer_load_dword {v(V_NONCE)}, v7, {srd(SRD_WS)}, 0 offen sc1")
NOPF = "nopf" in OPT
if not NOPF:
    P(f"s_bitcmp1_b32 s{S_V}, 0")
    P(f"s_cselect_b64 s[{S_PFB}:{S_PFB+1}], s[54:55], s[52:53]")
    P(f"s_lshr_b32 s{S_T0}, s{S_V}, 1")
    P(f"s_lshl1_add_u32 s{S_T2}, s{S_W}, s{S_T0}")
    EPF = int(OPT.get("epf", 7))
    P(f"s_mul_i32 s{S_T0}, s{S_T2}, {EPF*128}")
    if EPF == 25:
        P(f"s_min_u32 s{S_T0}, s{S_T0}, {(12544-25)*128}")
    P(f"v_min_u32 v4, {EPF-1}, {v(V_LANE)}")
    P(f"v_lshl_add_u32 v248, v4, 7, s{S_T0}")
    PFW = sub()
    PFW(f"global_load_dword {v(V_PF)}, v248, s[{S_PFB}:{S_PFB+1}]")
    PFD = sub()
    PFD(f"global_load_dword v253, v245, s[56:57]")
    if "pfpos" not in OPT:
        P.add(PFW.ins)
    P(f"s_mul_i32 s{S_T0}, s{S_W}, 49")
    P(f"s_mul_i32 s{S_T2}, s{S_V}, 12")
    P(f"s_add_u32 s{S_T0}, s{S_T0}, s{S_T2}")
    P(f"v_min_u32 v4, 12, {v(V_LANE)}")
    P(f"v_add_lshl_u32 v245, v4, s{S_T0}, 7")
    if "nowd" in OPT:
        P(f"v_mov_b32 v245, 0")
    if "wdlate" not in OPT and "pfpos" not in OPT:
        P.add(PFD.ins)
    PF_AT = len(P.ins)
if "xprobe" in OPT:
    stamp("issued")
    P(f"v_mov_b32 v4, {v(XR+4)}")
    stamp("x here")
    P(f"v_mov_b32 v4, {v(V_DSK)}")
    stamp("par here")
P(f"v_cmp_gt_u32 vcc, 32, {v(V_LANE)}")
P(f"v_mul_u32_u24 v4, 37, {v(V_LANE)}")
P(f"v_lshrrev_b32 v4, 9, v4")
P(f"v_cndmask_b32 {v(V_S3)}, v5, {v(V_L16)}, vcc")
P(f"v_mul_u32_u24 v4, {TAB_W-14*272}, v4")
P(f"v_mul_u32_u24 v6, 272, {v(V_LANE)}")
P(f"s_lshl_b32 s{S_T0}, s{S_V}, 2")
P(f"v_add3_u32 {v(V_GW)}, v4, v6, s{S_T0}")
P(f"v_add_u32 {v(V_GX)}, s{S_T0}, {v(V_GW)}")
P(f"s_lshl_b32 s{S_UXM}, s{S_V}, 12")
P(f"s_add_u32 s{S_UXM}, s{S_UXM}, {L_UX+2048}")
P(f"v_and_b32 v4, 48, {v(V_LANE)}")
P(f"v_add3_u32 {v(V_GR)}, v4, {v(V_L16)}, s{S_TAB}")
P(f"v_and_b32 v4, 31, {v(V_LANE)}")
P(f"v_lshrrev_b32 v6, 5, {v(V_LANE)}")
P(f"v_lshl_add_u32 v6, v6, 4, s{S_TAB}")
P(f"v_and_b32 v7, 28, {v(V_LANE)}")
P(f"v_lshl_add_u32 v7, v4, 5, v7")
P(f"v_add_u32 {v(V_TW)}, v6, v7")
P(f"v_mul_u32_u24 v7, {TAB_ROW}, v4")
P(f"v_add_u32 {v(V_TB)}, v6, v7")
P(f"v_subrev_u32 v7, 16, v4")
P(f"v_cmp_lt_u32 vcc, 20, v4")
P(f"s_lshl2_add_u32 s{S_CI}, s{S_W}, s{S_V}")
P(f"s_lshl_b32 s{S_CI}, s{S_CI}, 8")
P(f"v_cndmask_b32 v4, v4, v7, vcc")
P(f"v_mul_u32_u24 v7, {TAB_ROW}, v4")
P(f"v_add_u32 {v(V_TA)}, v6, v7")
P(f"s_add_u32 s{S_CI}, s{S_CI}, {WS_C}")
P(f"v_lshlrev_b32 {v(V_P1)}, 25, {v(V_LANE)}")
P(f"s_mul_i32 s{S_UXO}, s{S_W}, 14336")
P(f"s_mul_i32 s{S_T0}, s{S_V}, 3584")
P(f"s_add_u32 s{S_UXO}, s{S_UXO}, s{S_T0}")
P(f"s_add_u32 s{S_UXO}, s{S_UXO}, {WS_UX}")
P(f"s_lshl_b32 s{S_T0}, s{S_V}, 8")
P(f"s_add_u32 s{S_T0}, s{S_T0}, s{S_W}")
P(f"s_mul_i32 s{S_T0}, s{S_T0}, {FS}")
P(f"s_add_u32 s{S_F1}, s{S_T0}, {WS_F1}")
P(f"v_lshrrev_b32 v4, 2, {v(V_LANE)}")
P(f"v_mul_u32_u24 v4, 3584, v4")
P(f"v_and_b32 v6, 3, {v(V_LANE)}")
P(f"v_lshl_add_u32 v4, v6, 4, v4")
P(f"s_lshl_b32 s{S_T0}, s{S_FB}, 8")
P(f"s_lshl_b32 s{S_T1}, s{S_V}, 6")
P(f"s_add_u32 s{S_T0}, s{S_T0}, s{S_T1}")
P(f"v_add_u32 {v(V_W)}, s{S_T0}, v4")
if "fakerot" in OPT:
    P(f"s_and_b32 s{S_T2}, s{S_TB}, {OPT['fakerot']}")
    P(f"s_mul_i32 s{S_T2}, s{S_T2}, {int(OPT.get('rs', 4))*57344//4}")
    P(f"v_add_u32 {v(V_W)}, s{S_T2}, {v(V_W)}")
if "fake128" in OPT:
    P(f"v_lshrrev_b32 v4, 3, {v(V_LANE)}")
    P(f"v_mul_u32_u24 v4, 3584, v4")
    P(f"v_and_b32 v7, 0x70, {v(V_L16)}")
    P(f"s_and_b32 s{S_T0}, s{S_T0}, 0xffffff80")
    P(f"s_and_b32 s{S_T2}, s{S_V}, 1")
    P(f"s_mul_i32 s{S_T2}, s{S_T2}, {8*3584}")
    P(f"s_add_u32 s{S_T0}, s{S_T0}, s{S_T2}")
    P(f"v_add3_u32 {v(V_W)}, v4, v7, s{S_T0}")
for k in range(1, 4):
    P(f"v_add_u32 {v(V_W+k)}, {k*(57344-1024)}, {v(V_W)}")
SETUP_A = len(P.ins)
P(f"v_and_b32 v4, 32, {v(V_LANE)}")
P(f"v_lshlrev_b32 v4, 4, v4")
P(f"v_and_b32 v7, 12, {v(V_LANE)}")
P(f"v_lshl_add_u32 v4, v7, 4, v4")
P(f"v_and_b32 v7, 16, {v(V_LANE)}")
P(f"v_lshl_add_u32 v4, v7, 1, v4")
P(f"v_lshl_add_u32 v4, v6, 3, v4")
P(f"v_add_u32 {v(V_TRA)}, s{S_RING}, v4")
P(f"s_mov_b32 s{S_K0}, {L_KC+4096-L_UX}")
P(f"s_movk_i32 s{S_T2}, 128")
P(f"s_bfe_u32 s{S_T0}, s{S_W}, 0x20001")
P(f"s_lshl_b32 s{S_T0}, s{S_T0}, 10")
P(f"s_lshr_b32 s{S_F2}, s{S_T0}, 2")
NREP = int(OPT.get("nrep", 4))
P(f"s_bfe_u32 s{S_REP}, s{S_W}, {hex((NREP.bit_length()-1)*65536+3)}")
P(f"s_sub_u32 s{S_F1L}, s{S_FH}, s{S_REP}")
P(f"s_add_u32 s{S_F1L}, s{S_F1L}, {NREP}")
P(f"s_mul_i32 s{S_F1L}, s{S_F1L}, {FREP}")
P(f"s_mul_i32 s{S_REP}, s{S_REP}, {FREP}")
P(f"s_add_u32 s{S_REP}, s{S_REP}, {WS_F1}")
P(f"s_add_u32 s{S_T0}, s{S_T0}, s{S_REP}")
P(f"v_lshl_add_u32 {v(V_F1)}, v0, 2, s{S_T0}")
P(f"v_lshrrev_b32 v4, 2, {v(V_LANE)}")
P(f"v_add_u32 v4, s{S_T1}, v4")
P(f"v_mul_u32_u24 v7, 14336, v4")
P(f"v_lshrrev_b32 v4, 4, {v(V_LANE)}")
P(f"v_xor_b32 v6, v6, v4")
P(f"v_lshl_add_u32 v7, v6, 4, v7")
P(f"s_lshl_b32 s{S_T0}, s{S_PR}, 6")
P(f"s_add_u32 s{S_T0}, s{S_T0}, {WS_UX}")
P(f"v_add_u32 {v(V_UXL)}, s{S_T0}, v7")
P(f"v_bfe_u32 v6, {v(V_LANE)}, 1, 2")
P(f"v_mul_u32_u24 v6, {CS}, v6")
P(f"v_and_b32 v7, 16, {v(V_L16)}")
P(f"v_add3_u32 v6, v6, v7, s{S_K0}")
P(f"v_lshlrev_b32 v7, 4, v0")
P(f"v_cmp_gt_u32 vcc, s{S_T2}, v0")
P(f"v_mov_b32 v56, 0")
P(f"v_mov_b32 v57, 0")
P(f"v_cndmask_b32 v6, v6, v7, vcc")
P(f"v_mov_b32 v58, 0")
P(f"v_mov_b32 v59, 0")
P(f"v_add_u32 v6, {L_UX}, v6")
P(f"ds_write_b128 v6, v[56:59]")
P(f"v_lshlrev_b32 v4, 3, v0")
P(f"v_sub_u32 v4, 2047, v4")
P(f"v_cvt_f32_i32 v4, v4")
P(f"v_mov_b32 v60, 1028")
P(f"v_cmp_eq_u32 vcc, 0, v0")
for e in range(0, 10, 2):
    P(f"v_add_f32 v6, {f32(-float(e))}, v4")
    if e < 8:
        P(f"v_add_f32 v7, {f32(-float(e+1))}, v4")
    P(f"v_cvt_pk_bf16_f32 v6, v6, v7")
    for h in range(2):
        if e + h > 8:
            continue
        d = GA + e + h
        if h == 0:
            P(f"v_lshlrev_b32 v7, 16, v6")
        else:
            P(f"v_and_b32 v7, 0xffff0000, v6")
        P(f"v_cvt_u32_f32 v7, v7")
        if e + h < 4:
            P(f"v_cndmask_b32 v7, v7, v60, vcc")
        P(f"v_lshrrev_b32 {v(d)}, 5, v7")
        P(f"v_add_lshl_u32 {v(d)}, {v(d)}, v7, 2")
P(f"v_mov_b32 v4, 255")
P(f"v_cmp_eq_u32 s[{S_M255}:{S_M255+1}], v4, v0")
P(f"v_and_b32 v4, 15, {v(V_LANE)}")
P(f"v_lshrrev_b32 v5, 4, {v(V_LANE)}")
P(f"v_lshl_add_u32 v6, v5, 3, v4")
P(f"v_sub_u32 v6, 39, v6")
P(f"v_and_b32 v7, 1, v6")
P(f"v_mul_u32_u24 v7, {CS-2}, v7")
P(f"v_lshl_add_u32 v6, v6, 1, v7")
P(f"s_lshr_b32 s{S_T0}, s{S_V}, 1")
P(f"s_andn2_b32 s{S_T3}, 1, s{S_V}")
P(f"s_mul_i32 s{S_T2}, s{S_T0}, {2*CS}")
P(f"s_lshl_b32 s{S_T1}, s{S_T3}, 8")
P(f"s_add_u32 s{S_T2}, s{S_T2}, s{S_T1}")
P(f"s_add_u32 s{S_T2}, s{S_T2}, {L_KC}")
P(f"v_add_u32 {v(V_KA+3)}, s{S_T2}, v6")
for k in range(3):
    P(f"v_add_u32 {v(V_KA+k)}, {64*(48-16*k)}, {v(V_KA+3)}")
P(f"v_lshlrev_b32 v6, 1, v4")
P(f"v_sub_u32 v6, v6, v5")
P(f"s_lshl4_add_u32 s{S_T1}, s{S_T3}, 17")
P(f"v_add_u32 v6, s{S_T1}, v6")
P(f"s_mov_b32 s{S_T2}, {L_UX}")
for rr in range(4):
    P(f"v_bfe_u32 v7, v6, 2, 2")
    P(f"v_xor_b32 v7, s{S_T0}, v7")
    P(f"v_lshl_add_u32 v7, v6, 2, v7")
    P(f"v_lshl_add_u32 {v(V_UA+rr)}, v7, 4, s{S_T2}")
    if rr < 3:
        P(f"v_subrev_u32 v6, 4, v6")
EB = sub()
if "nomv" not in OPT:
    EB(f"v_and_b32 v4, 15, {v(V_LANE)}")
    EB(f"v_lshrrev_b32 v5, 4, {v(V_LANE)}")
EB(f"v_lshrrev_b32 v6, 1, v5")
EB(f"v_lshl_add_u32 v6, v4, 1, v6")
EB(f"s_lshl_b32 s{S_T2}, s{S_V}, 11")
EB(f"s_add_u32 s{S_T2}, s{S_T2}, {L_UX+2048}")
EB(f"v_lshl_add_u32 v6, v6, 6, s{S_T2}")
EB(f"v_bfe_u32 v4, v4, 1, 2")
EB(f"v_and_b32 v5, 1, v5")
EB(f"v_lshl_add_u32 v247, v4, 4, v6")
EB(f"v_lshl_add_u32 {v(V_EU)}, v5, 3, v247")
EB(f"v_xor_b32 {v(V_EU1)}, 16, {v(V_EU)}")
EB(f"v_or_b32 v5, 2, v5")
EB(f"v_xor_b32 v4, v4, v5")
EB(f"v_lshl_add_u32 {v(V_EXP)}, v4, 4, v6")
if "nomv" in OPT:
    P.add(EB.ins)
P(f"s_mul_i32 s{S_ACTW}, s{S_V}, 7168")
P(f"v_add_u32 {v(V_EXR)}, s{S_ACTW}, {v(V_L16)}")
P(f"v_lshlrev_b32 {v(V_EXW)}, 4, v0")
P(f"s_mul_i32 s{S_PST}, s{S_PR}, {PROW}")
P(f"s_add_u32 s{S_PST}, s{S_PST}, {WS_P}")
CB = sub()
lanes_reg(CB, V_FL2, 4, 10)
lanes_reg(CB, V_PM, 2, 12)
CB(f"s_lshl1_add_u32 s{S_T0}, s{S_V}, s{S_FH}")
CB(f"s_lshl_b32 s{S_T0}, s{S_T0}, 12")
CB(f"s_add_u32 s{S_F2}, s{S_F2}, s{S_T0}")
CB(f"s_add_u32 s{S_F2}, s{S_F2}, {WS_C}")
CB(f"s_lshr_b32 s{S_T0}, s{S_TB}, 2")
CB(f"s_bfe_u32 s{S_REP}, s{S_W}, 0x20003")
CB(f"s_lshl3_add_u32 s{S_T0}, s{S_T0}, s{S_REP}")
CB(f"s_lshl2_add_u32 s{S_T0}, s{S_T0}, s{S_V}")
CB(f"s_lshl_b32 s{S_T0}, s{S_T0}, 8")
CB(f"s_add_u32 s{S_PA}, s{S_T0}, {WS_C}")
CB(f"s_lshl2_add_u32 s{S_T2}, s{S_DB}, s{S_V}")
CB(f"s_lshl2_add_u32 s{S_T3}, s{S_T2}, s{S_REP}")
CB(f"s_lshl_b32 s{S_T3}, s{S_T3}, 8")
CB(f"s_add_u32 s{S_P4}, s{S_T3}, {WS_C + 896*256}")
CB(f"s_mul_i32 s{S_T2}, s{S_T2}, {14*4096}")
CB(f"s_add_u32 s{S_WFB}, s{S_T2}, {WS_WF}")
CB(f"s_mul_i32 s{S_T1}, s{S_V}, {56*PROW}")
CB(f"s_lshl_b32 s{S_T0}, s{S_TB}, 8")
CB(f"s_add_u32 s{S_T0}, s{S_T0}, s{S_T1}")
CB(f"s_add_u32 s{S_AB}, s{S_T0}, {WS_P}")

if "nomv" in OPT:
    P.add(CB.ins)

if "pfpos" in OPT:
    a_, b_ = [int(x) for x in OPT["pfpos"].split(",")]
    P.ins = P.ins[:PF_AT] + sprinkle(P.ins[PF_AT:], [(a_, PFW.ins), (b_, PFD.ins)])
NS = int(OPT.get("ns", 0))
if NS:
    us = []
    for n in range(NS):
        i_, k_ = n // 4, n % 4
        q = sub()
        if k_ == 0:
            q(f"s_add_u32 m0, s{S_RING}, {(4*i_ % 8) * 1024 + (4*i_ // 8) * 32768}")
            if n % 8 == 0:
                q(f"s_mov_b32 s{S_WOFF}, {(i_//2)*4*57344}")
        o = f" offset:{1024*k_}" if k_ else ""
        q(f"buffer_load_dwordx4 {v(V_W+k_)}, {srd(SRD_WU if i_ % 2 else SRD_WG)}, s{S_WOFF} offen{o} lds", tok=f"w1_{i_}")
        us.append(q.ins)
    tail_ = P.ins[SETUP_A:]
    st_ = int(OPT.get("ns0", 0))
    step = (len(tail_) - st_) / NS
    P.ins = P.ins[:SETUP_A] + sprinkle(tail_, [(int(st_ + step * n), u) for n, u in enumerate(us)])
XF = 56
DF = 72
SA = 88
if "fine" in OPT: stamp("setup done")
P(f"s_mov_b32 s{S_K0}, {f32(1.0/448)}")
P(f"v_mov_b32 v4, {f32(1e-5)}")
P("s_mov_b32 exec_hi, 0x00ffffff")
for r in range(2):
    for i in range(4):
        P(f"v_lshlrev_b32 {v(XF+8*r+2*i)}, 16, {v(XR+4*r+i)}")
        P(f"v_and_b32 {v(XF+8*r+2*i+1)}, 0xffff0000, {v(XR+4*r+i)}")
    P(f"v_readfirstlane_b32 s{(S_A, S_B)[r]}, {v(XF+8*r)}")
stamp("x arrived")
if "wdlate" in OPT and not NOPF:
    P(f"global_load_dword v253, v245, s[56:57]")
for i in range(4):
    P(f"ds_write2_b32 {v(V_GX)}, {v(XR+i)}, {v(XR+4+i)} offset0:{16*i+8} offset1:{16*i+9}")
for r, sm in ((0, S_A), (1, S_B)):
    for i in range(4):
        P(f"v_pk_add_f32 {v(XF+8*r+2*i,2)}, {v(XF+8*r+2*i,2)}, s[{sm}:{sm+1}] op_sel_hi:[1,0] neg_lo:[0,1] neg_hi:[0,1]")
for r in range(2):
    b = XF + 8 * r
    t = DF + 8 * r
    P(f"v_pk_add_f32 {v(t,2)}, {v(b,2)}, {v(b+2,2)}")
    P(f"v_pk_mul_f32 {v(t+2,2)}, {v(b,2)}, {v(b,2)}")
    P(f"v_pk_add_f32 {v(t,2)}, {v(t,2)}, {v(b+4,2)}")
    for i in range(1, 4):
        P(f"v_pk_fma_f32 {v(t+2,2)}, {v(b+2*i,2)}, {v(b+2*i,2)}, {v(t+2,2)}")
    P(f"v_pk_add_f32 {v(t,2)}, {v(t,2)}, {v(b+6,2)}")
for r in range(2):
    t = DF + 8 * r
    P(f"v_add_f32 {v(SA+r)}, {v(t)}, {v(t+1)}")
    P(f"v_add_f32 {v(SA+2+r)}, {v(t+2)}, {v(t+3)}")


def wave_sum(p, regs):
    for mod in ("row_shr:1", "row_shr:2", "row_shr:4", "row_shr:8"):
        for r in regs:
            p(f"v_add_f32_dpp {v(r)}, {v(r)}, {v(r)} {mod} row_mask:0xf bank_mask:0xf bound_ctrl:0")
    for r in regs:
        p(f"v_add_f32_dpp {v(r)}, {v(r)}, {v(r)} row_bcast:15 row_mask:0xa bank_mask:0xf")
    for r in regs:
        p(f"v_add_f32_dpp {v(r)}, {v(r)}, {v(r)} row_bcast:31 row_mask:0xc bank_mask:0xf")


wave_sum(P, [SA, SA + 2, SA + 1, SA + 3])
P(f"v_pk_mul_f32 {v(SA,2)}, {v(SA,2)}, s[{S_K0}:{S_K0+1}] op_sel_hi:[1,0]")
P(f"v_pk_fma_f32 {v(SA+2,2)}, {v(SA+2,2)}, s[{S_K0}:{S_K0+1}], v[4:5] op_sel_hi:[1,0,0]")
P(f"v_pk_fma_f32 {v(SA+2,2)}, {v(SA,2)}, {v(SA,2)}, {v(SA+2,2)} neg_lo:[1,0,0] neg_hi:[1,0,0]")
for r in range(2):
    P(f"v_max_f32 {v(SA+2+r)}, {v(SA+2+r)}, v4")
for r in range(2):
    P(f"v_rsq_f32 {v(SA+2+r)}, {v(SA+2+r)}")
P(f"v_pk_mul_f32 {v(SA,2)}, {v(SA,2)}, {v(SA+2,2)} neg_lo:[1,0] neg_hi:[1,0]")
for r, sm in ((0, S_A), (1, S_B)):
    P(f"v_readlane_b32 s{sm}, {v(SA+2+r)}, 55")
for r, sm in ((0, S_A), (1, S_B)):
    P(f"v_readlane_b32 s{sm+1}, {v(SA+r)}, 55")
for r, sm in ((0, S_A), (1, S_B)):
    for i in range(4):
        P(f"v_pk_fma_f32 {v(XF+8*r+2*i,2)}, {v(XF+8*r+2*i,2)}, s[{sm}:{sm+1}], s[{sm}:{sm+1}] op_sel:[0,0,1] op_sel_hi:[1,0,1]")
for j in range(8):
    P(f"v_cvt_pk_bf16_f32 {v(DF+j)}, {v(XF+j)}, {v(XF+8+j)}")
for i in range(4):
    P(f"ds_write2_b32 {v(V_GW)}, {v(DF+2*i)}, {v(DF+2*i+1)} offset0:{16*i} offset1:{16*i+4}")
P("s_mov_b64 exec, -1")
def kgen_head(rd):
    q = sub()
    A0 = 48 + 0
    CC = 50
    unp = (lambda d, s: q(f"v_lshlrev_b32 {v(d)}, 16, {v(s)}")) if rd == 0 else (lambda d, s: q(f"v_and_b32 {v(d)}, 0xffff0000, {v(s)}"))
    for i in range(4):
        unp(48 + i, PR + i)
    q(f"v_mul_f32 v48, {f32(LOG2E)}, v48")
    q(f"v_exp_f32 v48, v48")
    q(f"v_mul_f32 v49, v49, v249")
    q(f"v_cvt_pk_bf16_f32 v48, v48, v48")
    q(f"v_mul_f32 v50, v50, v250")
    q(f"v_and_b32 v48, 0xffff0000, v48")
    q(f"v_mul_f32 v51, v51, v250")
    q(f"v_mul_f32 v48, v48, {v(V_DT)}")
    for (z, pos) in ((52, 1), (56, 256)) if "b3" not in OPT else ((52, 1), (54, 16), (56, 256)):
        if pos == 1:
            q(f"v_fract_f32 v5, v49")
            q(f"v_exp_f32 v4, v48")
        else:
            q(f"v_mul_f32 v5, {f32(float(pos))}, v49")
            q(f"v_mul_f32 v4, {f32(float(pos))}, v48")
            q(f"v_fract_f32 v5, v5")
            q(f"v_exp_f32 v4, v4")
        q(f"v_cos_f32 {v(z)}, v5")
        q(f"v_sin_f32 {v(z+1)}, v5")
        q(f"v_mul_f32 {v(z)}, {v(z)}, v4")
        q(f"v_mul_f32 {v(z+1)}, {v(z+1)}, v4")
    return q.ins


HD = sub()
HD(f"s_lshl_b32 s{S_T0}, s{S_V}, 3")
HD(f"s_and_b32 s{S_T0}, s{S_T0}, 16")
HD(f"s_mov_b32 m0, s{S_TAB}")
HD(f"v_lshrrev_b32 v4, s{S_T0}, {v(V_DT)}")
HD(f"v_lshlrev_b32 v4, 16, v4")
HD(f"v_mul_f32 v4, {f32(LOG2E)}, v4")
HD(f"v_exp_f32 v4, v4")
HD(f"v_readfirstlane_b32 s{S_DSK}, {v(V_DSK)}")
round_bf16(HD, V_DT, 4)
HD(f"v_mul_f32 v249, 0.15915494, {v(V_DT)}")
HD(f"v_add_f32 v250, {v(V_DT)}, {v(V_DT)}")
HD(f"v_mul_f32 {v(V_DT)}, {f32(-LOG2E)}, {v(V_DT)}")
HD.add(kgen_head(0))
FILL = (CB.ins if "nomv" not in OPT else []) + HD.ins
HB, HP_ = int(OPT.get("hb", 29)), int(OPT.get("hp", 0))
if "fine" in OPT: stamp("ln1 math")
P.add(FILL[:HB])
if OPT.get("w2") == "a":
    walk("early")
P("s_waitcnt lgkmcnt(0)")
P("s_barrier")
if "fine" in OPT: stamp("ln1 barrier")
UB = 112
for j in range(4):
    P(f"ds_read_b128 {v(UB+4*j,4)}, {v(V_GR)} offset:{1088*j}")
P.add(FILL[HB:HB + HP_])
if OPT.get("w2") == "b":
    walk("early")
assert HB + HP_ >= len(FILL) - len(HD.ins)
P("s_waitcnt lgkmcnt(0)")
for j in range(4):
    P(f"buffer_store_dwordx4 {v(UB+4*j,4)}, {v(V_L16 if j < 3 else V_S3)}, {srd(SRD_WS)}, s{S_UXO} offen offset:{1024*j} sc1", tok="ux")
P(f"s_cmp_lt_u32 s{S_W}, 224")
P("s_cbranch_scc1 L_main")


def nonce_init():
    q = sub()
    q(f"v_readfirstlane_b32 s{S_NONCE}, {v(V_NONCE)}")
    q(f"s_mul_i32 s{S_NONCE}, s{S_NONCE}, 1664525")
    q(f"s_add_u32 s{S_NONCE}, s{S_NONCE}, 1013904223")
    q(f"v_mov_b32 {v(V_NONCE)}, s{S_NONCE}")
    q(f"buffer_store_dword {v(V_NONCE)}, {v(V_P1)}, {srd(SRD_WS)}, s{S_CI} offen sc1", tok="ux")
    q(f"s_add_u32 s{S_E28}, s{S_NONCE}, 28")
    q(f"s_add_u32 s{S_E14}, s{S_NONCE}, 14")
    return q.ins


P.raw(f"s_waitcnt vmcnt({(4 if NOPF else 6) + NS})")
for x in nonce_init():
    P.raw(x.text)
P.raw("s_waitcnt vmcnt(0)")
P.raw(f"buffer_atomic_swap {v(V_NONCE)}, {v(V_FLG)}, {srd(SRD_WS)}, s{S_F1} offen")
P.raw("s_branch L_spare")
P("L_main:")
stamp("ln1 done")


def wfrag(m, ks):
    return 8 * ks + 4 * m


def slotoff(slot):
    return (slot % 8) * 1024 + (slot // 8) * 32768


def w_dma(kq, m, slot, tok):
    q = sub()
    q(f"s_add_u32 m0, s{S_RING}, {slotoff(slot)}")
    if m == 0:
        q(f"s_mov_b32 s{S_WOFF}, {kq*4*57344}")
    for k in range(4):
        o = f" offset:{1024*k}" if k else ""
        q(f"buffer_load_dwordx4 {v(V_W+k)}, {srd(SRD_WU if m else SRD_WG)}, s{S_WOFF} offen{o} lds", tok=tok)
    return q.ins


def w_tr(kq, m, slot, tok=None):
    q = sub()
    for k in range(4):
        for h in range(2):
            q(f"ds_read_b64_tr_b16 {acc(wfrag(m,4*kq+k)+2*h,2)}, {v(V_TRA)} offset:{slotoff(slot+k)+256*h}", tok=tok)
    return q.ins


def batch_dma(b, tok):
    return [w_dma(2 * b + i // 2, i % 2, 4 * i, f"{tok}_{i}") for i in range(4)]


def batch_tr(b):
    o = []
    for i in range(4):
        o += w_tr(2 * b + i // 2, i % 2, 4 * i, tok=f"t{b}_{i}")
    return o


def singles(groups):
    out, cur = [], []
    for grp in groups:
        for i in grp:
            cur.append(i)
            if i.cls == "vmem":
                out.append(cur)
                cur = []
    if cur:
        out[-1] += cur
    return out


def pin_vm(g, start, groups, stride):
    k = start
    for u in singles(groups):
        g.at(int(k), u)
        k += stride
    return int(k)


def w_dma1(b, n, tok):
    i, k = n // 4, n % 4
    q = sub()
    q(f"s_add_u32 m0, s{S_RING}, {slotoff(4*i)}")
    if n % 8 == 0:
        q(f"s_mov_b32 s{S_WOFF}, {(2*b+i//2)*4*57344}")
    o = f" offset:{1024*k}" if k else ""
    if OPT.get("fk") == "same":
        q(f"buffer_load_dwordx4 {v(V_L16)}, {srd(SRD_WG)}, 0 offen{o} lds", tok=f"{tok}_{i}")
    elif OPT.get("fk") == "reg":
        q(f"buffer_load_dwordx4 a[{128+4*n}:{131+4*n}], {v(V_W+k)}, {srd(SRD_WU if i % 2 else SRD_WG)}, s{S_WOFF} offen{o}", tok=f"{tok}_{i}")
    elif OPT.get("fk") != "none":
        q(f"buffer_load_dwordx4 {v(V_W+k)}, {srd(SRD_WU if i % 2 else SRD_WG)}, s{S_WOFF} offen{o} lds", tok=f"{tok}_{i}")
    q(f"s_mov_b32 m0, s{S_TAB}")
    return q.ins


KD = 176
FR = 192
FR = 112


WRI = "ds_write_b32 v246," if "plainw" in OPT else "ds_write_addtid_b32"


def kgen_body(rd):
    names = {"G0": 50, "E1": 52, "E16": 54, "E256": 56}
    nxt = [58]
    chunks = []
    cur = sub()
    wr = sub()
    pk = [0]
    PK = 192

    def new(n):
        names[n] = nxt[0]
        nxt[0] += 2
        assert nxt[0] <= 104
        return names[n]

    def out(kind, row, z):
        t = PK + pk[0] % 16
        pk[0] += 1
        if kind == "B":
            cur(f"v_cvt_pk_bf16_f32 {v(t)}, {v(z)}, {v(z+1)}")
            wr(f"{WRI} {v(t)} offset:{row*TAB_ROW}")
        else:
            cur(f"v_cvt_pk_bf16_f32 {v(t)}, {v(z)}, -{v(z+1)}")
            wr(f"{WRI} {v(t)} offset:{(32+row)*TAB_ROW}")
        if len(wr.ins) >= GROUP:
            flush()

    def flush():
        nonlocal cur, wr
        chunks.append(cur.ins + wr.ins)
        cur = sub()
        wr = sub()

    sc = [0]

    def mul(n, a, b, kind=None, row=None):
        if n is None:
            z = 104 + 2 * (sc[0] % 4)
            sc[0] += 1
        else:
            z = new(n)
        cmul(cur, z, names[a], names[b])
        if kind:
            out(kind, row, z)

    GROUP = int(OPT.get("kgroup", 6))
    if rd == 0:
        t = PK + pk[0]
        pk[0] += 1
        cur(f"v_mov_b32 {v(t)}, 0x3f80")
        wr(f"{WRI} {v(t)}")
    out("A", 0, names["G0"])
    mul("E2", "E1", "E1")
    mul("G1", "G0", "E256", "A", 8)
    mul("E512", "E256", "E256")
    mul("a1", "G0", "E1", "A", 1)
    mul("E4", "E2", "E2")
    mul("G2", "G0", "E512", "A", 10)
    mul("G3", "G1", "E512", "A", 11)
    mul("E1024", "E512", "E512")
    mul("E8", "E4", "E4", "B", 1)
    mul("a2", "G0", "E2", "A", 2)
    if "b3" in OPT:
        out("B", 2, names["E16"])
    else:
        cmul(cur, names["E16"], names["E8"], names["E8"])
        out("B", 2, names["E16"])
    mul("a3", "a1", "E2", "A", 3)
    mul("E32", "E16", "E16", "B", 4)
    mul("b2", "G1", "E2", "A", 9)
    mul("E64", "E32", "E32", "B", 8)
    mul("E48", "E32", "E16", "B", 6)
    mul("G4", "G0", "E1024", "A", 16)
    mul("E128", "E64", "E64", "B", 16)
    mul("E24", "E16", "E8", "B", 3)
    mul("E40", "E32", "E8", "B", 5)
    mul("E56", "E48", "E8", "B", 7)
    mul("E192", "E128", "E64", "B", 24)
    for row, a in ((4, "G0"), (5, "a1"), (6, "a2"), (7, "a3"), (12, "G1"), (13, "b2"), (14, "G2"), (15, "G3")):
        mul(None, a, "E4", "A", row)
    for row, a in ((17, "G1"), (18, "G2"), (19, "G3"), (20, "G4")):
        mul(None, a, "E1024", "A", row)
    for b2, nb in ((1, "E64"), (2, "E128"), (3, "E192")):
        for b1 in range(1, 8):
            mul(None, f"E{8*b1}", nb, "B", 8 * b2 + b1)
    if wr.ins or cur.ins:
        flush()
    return chunks


def kgen_reads():
    q = sub()
    for s in range(8):
        q(f"ds_read_b128 {v(FR+8*s,4)}, {v(V_TA)} offset:{32*TAB_ROW+32*s}")
        q(f"ds_read_b128 {v(FR+8*s+4,4)}, {v(V_TB)} offset:{32*s}")
    return q.ins


def kgen_mfma(rd):
    q = sub()
    for s in range(8):
        c = "0" if (rd == 0 and s == 0) else v(KD, 16)
        q(f"v_mfma_f32_32x32x16_bf16 {v(KD,16)}, {v(FR+8*s,4)}, {v(FR+8*s+4,4)}, {c}")
    return q.ins


P.add(FILL[HB + HP_:])
P.add(nonce_init())
ch = kgen_body(0)
fl = sub()
fl.wait("ux")
setflag(fl, S_F1)
nd = NS
FLAGAT = int(OPT.get("flagat", 5))
D0, DM, D1 = OPT.get("dsch", "011111000,2,111111111").split(",")


def dmas(n):
    global nd
    o = []
    for k in range(n):
        u = w_dma1(0, nd, "w1")
        if k and nd % 4:
            o = o[:-1] + u[1:]
        elif k:
            o = o[:-1] + u
        else:
            o = u
        nd += 1
    return o


for i, c in enumerate(ch):
    P.add(c)
    P.add(dmas(int(D0[i])))
    if i == FLAGAT:
        if "fine" in OPT: stamp("pre flag1")
        P.add(fl.ins)
        if "fine" in OPT: stamp("post flag1")
P.add(kgen_reads())
g = Gaps(kgen_mfma(0), 7)
for k in range(int(DM)):
    g.at(2 * k, dmas(1))
h1_ = kgen_head(1)
NH = int(OPT.get("nh", 12))
P.add(h1_[:NH])
g.fill(h1_[NH:], cap=5)
P.add(g.out())
stamp("kgen r0")
ch = kgen_body(1)
POLLAT = int(OPT.get("pollat", 5))
for i, c in enumerate(ch):
    P.add(c)
    P.add(dmas(int(D1[i])))
    if i == POLLAT:
        if "f1at" not in OPT:
            P(f"buffer_load_dword v6, {v(V_F1)}, {srd(SRD_WS)}, s{S_F1L} offen sc1")
        else:
            P.add(poll_issue("F1", 6))
assert nd == 16
P.add(kgen_reads())
if "fine" in OPT: stamp("pre poll1")
P.add(poll_check("F1", 6))
if "fine" in OPT: stamp("post poll1")
g = Gaps(kgen_mfma(1), 6)
P(f"s_mov_b32 m0, s{S_UXM}")
for j in range(4):
    q = sub()
    q(f"s_mov_b32 s{S_T0}, {j*(16*14336-1024)}")
    o = f" offset:{1024*j}" if j else ""
    q(f"buffer_load_dwordx4 {v(V_UXL)}, {srd(SRD_WS)}, s{S_T0} offen{o} sc1 lds", tok="uxl")
    if j == 0:
        P.add(q.ins)
    else:
        g.at(2 * j - 2, q.ins)
tr1 = batch_tr(0)
P.wait("w1_2")
for k in range(8):
    g.at(k, tr1[3 * k:3 * k + 3])
P.add(g.out())
stamp("kgen r1")
b2 = batch_dma(1, "w2")
b2[0] = waitq("t0_0") + b2[0]
b2[3] = waitq("t0_3") + b2[3]
b2 = singles(b2)
P.add(b2.pop(0))
P(f"s_lshl_b32 s{S_C}, s{S_DSK}, 16")
P(f"s_and_b32 s{S_D}, s{S_DSK}, 0xffff0000")
P(f"v_add_u32 v7, {2*CS}, {v(V_EXW)}")
P(f"v_mov_b32 {v(V_NONCE)}, 1")
toff = {0: (0, 0), 1: (0, 1), 2: (0, 2), 3: (0, 3), 4: (1, 0), 5: (1, 2), 6: (2, 0), 7: (3, 0), 8: (4, 0), 9: (5, 0), 10: (6, 0), 11: (7, 0)}
P(f"ds_write2_b32 {v(V_TW)}, {v(KD)}, {v(KD+1)} offset0:0 offset1:1")
P(f"ds_write2_b32 {v(V_TW)}, {v(KD+2)}, {v(KD+3)} offset0:2 offset1:3")
for j in range(4, 12):
    qq, r = toff[j]
    P(f"ds_write_b32 {v(V_TW)}, {v(KD+j)} offset:{4*(r + 264*qq)}")
P.add(b2.pop(0))
P("s_waitcnt lgkmcnt(0)")
P("s_barrier")
if "fine" in OPT: stamp("T barrier")
EG = 208
for c2 in range(2):
    for e in range(9):
        P(f"ds_read2st64_b32 {v(EG+18*c2+2*e,2)}, {v(GA+e)} offset0:{114*c2} offset1:{114*c2+57}", tok=f"g{c2}")
P.add(b2.pop(0))
if "nomv" not in OPT:
    P.add(EB.ins)
P.add(b2.pop(0))
KO = 192
VB = 48


def bfrag(rr, e):
    return VB + 32 * rr + 4 * e


def b_loads(lo, hi):
    z = sub()
    for rr in range(4):
        for a in range(lo, hi):
            z(f"ds_read_b128 {v(bfrag(rr,a),4)}, {v(V_UA+rr)} offset:{2048*a}")
    return z.ins


for c2 in range(2):
    b = EG + 18 * c2
    P.wait(f"g{c2}")
    for e in range(9):
        P(f"v_add_f32 {v(b+2*e)}, {v(b+2*e)}, {v(b+2*e+1)}")
    P(f"v_cndmask_b32 {v(b+16)}, {v(b+16)}, 0, s[{S_M255}:{S_M255+1}]")
    for s_ in range(2):
        o = KO + 8 * c2 + 4 * s_
        for i in range(4):
            P(f"v_cvt_pk_bf16_f32 {v(o+i)}, {v(b+2*(s_+2*i))}, {v(b+2*(s_+2*i+1))}")
    for s_ in range(2):
        P(f"ds_write_b128 {v(7 if c2 else V_EXW)}, {v(KO+8*c2+4*s_,4)} offset:{L_KC+s_*CS}", tok="kc")
    P.add(b2.pop(0))
if "dumpk" in OPT:
    P(f"s_lshl_b32 s{S_T0}, s{S_W}, 13")
    P(f"s_add_u32 s{S_T0}, s{S_T0}, {WS_DBG}")
    P(f"buffer_store_dwordx4 {v(KO,4)}, {v(V_EXW)}, {srd(SRD_WS)}, s{S_T0} offen")
    P(f"s_add_u32 s{S_T0}, s{S_T0}, 4096")
    P(f"buffer_store_dwordx4 {v(KO+8,4)}, {v(V_EXW)}, {srd(SRD_WS)}, s{S_T0} offen")
stamp("expanded")
P.wait("uxl")
P.wait("kc")
P("s_barrier")
stamp("conv start")

CA = [176, 192]
ET = 208


def afrag(rr, a):
    return 128 + 32 * rr + 4 * a


def a_loads(rr, lo, hi):
    z = sub()
    for a in range(lo, hi):
        k = a // 2
        off = 16 * (11 - rr - 8 * (a - 2 * k))
        z(f"ds_read2_b32 {acc(afrag(rr,a),2)}, {v(V_KA+k)} offset0:{off} offset1:{off+1}")
        z(f"ds_read2_b32 {acc(afrag(rr,a)+2,2)}, {v(V_KA+k)} offset0:{off+2} offset1:{off+3}")
    return z.ins


def conv_mfmas(gen):
    m = sub()
    first = set()
    na = 4 if gen == 0 else 8
    order = []
    for rr in range(4):
        pairs = [(a, e) for a in range(na) for e in range(na) if 4 * gen <= a + e < 4 * gen + 4]
        pairs.sort(key=(lambda ae: (max(ae), ae)) if rr < 3 else (lambda ae: (ae[0] + ae[1], ae)))
        order += [(rr, a, e) for a, e in pairs]
    if gen == 1:
        order.sort(key=lambda t: (0 if max(t[1], t[2]) < 4 else 1))
    for rr, a, e in order:
        c = a + e - 4 * gen
        d = CA[gen] + 4 * c
        cc = v(d, 4) if c in first else "0"
        first.add(c)
        m(f"v_mfma_f32_16x16x32_bf16 {v(d,4)}, {acc(afrag(rr,a),4)}, {v(bfrag(rr,e),4)}, {cc}")
    return m.ins


UU, XX, YY, TT, WW, HO = ET, ET + 4, ET + 8, ET + 24, ET + 32, ET + 36


def conv_pre(gen):
    q = sub()
    q(f"ds_read_b64 {v(UU,2)}, {v(V_EU)} offset:{8192*gen}")
    q(f"ds_read_b64 {v(UU+2,2)}, {v(V_EU1)} offset:{8192*gen}")
    q(f"ds_read_b128 {v(XX,4)}, {v(V_EXP)} offset:{8192*gen}")
    r = sub()
    if "exact" not in OPT:
        for j in range(4):
            r(f"v_lshlrev_b32 {v(TT+j)}, 16, {v(XX+j)}")
            r(f"v_and_b32 {v(TT+4+j)}, 0xffff0000, {v(XX+j)}")
        for c2, sm in ((0, S_C), (1, S_D)):
            for i in range(2):
                r(f"v_lshlrev_b32 {v(WW)}, 16, {v(UU+2*c2+i)}")
                r(f"v_and_b32 {v(WW+1)}, 0xffff0000, {v(UU+2*c2+i)}")
                r(f"v_fmac_f32 {v(TT+4*c2+2*i)}, s{sm}, {v(WW)}")
                r(f"v_fmac_f32 {v(TT+4*c2+2*i+1)}, s{sm}, {v(WW+1)}")
        return q.ins, r.ins
    for c2 in range(2):
        for i in range(2):
            r(f"v_lshlrev_b32 {v(TT+4*c2+2*i)}, 16, {v(UU+2*c2+i)}")
            r(f"v_and_b32 {v(TT+4*c2+2*i+1)}, 0xffff0000, {v(UU+2*c2+i)}")
    for c2, sm in ((0, S_C), (1, S_D)):
        for i in range(4):
            r(f"v_mul_f32 {v(TT+4*c2+i)}, s{sm}, {v(TT+4*c2+i)}")
    for j in range(4):
        r(f"v_cvt_pk_bf16_f32 {v(WW+j)}, {v(TT+j)}, {v(TT+4+j)}")
    for j in range(4):
        r(f"v_lshlrev_b32 {v(TT+2*j)}, 16, {v(WW+j)}")
        r(f"v_and_b32 {v(TT+2*j+1)}, 0xffff0000, {v(WW+j)}")
    return q.ins, r.ins


def conv_xchg(gen):
    w_, b_, r_ = sub(), sub(), sub()
    for c in range(4):
        w_(f"ds_write_b128 {v(V_EXW)}, {v(CA[gen]+4*c,4)} offset:{(4096 if gen else 7168)*c}", tok=f"xw{gen}")
    b_.wait(f"xw{gen}")
    b_("s_barrier")
    for w in range(4):
        r_(f"ds_read_b128 {v(YY+4*w,4)}, {v(V_EXR)} offset:{1024*w}", tok=f"xr{gen}")
    return w_.ins, b_.ins, r_.ins


def conv_post(gen):
    q = sub()
    h = HO + 4 * gen
    if "exact" not in OPT:
        for c2 in range(2):
            for i in range(2):
                q(f"v_pk_add_f32 {v(TT+4*c2+2*i,2)}, {v(TT+4*c2+2*i,2)}, {v(YY+8*c2+2*i,2)}")
            for i in range(2):
                q(f"v_pk_add_f32 {v(TT+4*c2+2*i,2)}, {v(TT+4*c2+2*i,2)}, {v(YY+8*c2+4+2*i,2)}")
        for j in range(4):
            q(f"v_cvt_pk_bf16_f32 {v(h+j)}, {v(TT+j)}, {v(TT+4+j)}")
        q(f"buffer_store_dwordx4 {v(h,4)}, {v(V_EXW)}, {srd(SRD_WS)}, s{S_PST} offen sc1", tok=f"h{gen}")
        return q.ins
    for c2 in range(2):
        for i in range(2):
            q(f"v_pk_add_f32 {v(YY+8*c2+2*i,2)}, {v(YY+8*c2+2*i,2)}, {v(YY+8*c2+4+2*i,2)}")
    for j in range(4):
        q(f"v_cvt_pk_bf16_f32 {v(WW+j)}, {v(YY+j)}, {v(YY+8+j)}")
    for j in range(4):
        q(f"v_lshlrev_b32 {v(YY+2*j)}, 16, {v(WW+j)}")
        q(f"v_and_b32 {v(YY+2*j+1)}, 0xffff0000, {v(WW+j)}")
    for j in range(4):
        q(f"v_pk_add_f32 {v(YY+2*j,2)}, {v(YY+2*j,2)}, {v(TT+2*j,2)}")
    for j in range(4):
        q(f"v_cvt_pk_bf16_f32 {v(WW+j)}, {v(YY+2*j)}, {v(YY+2*j+1)}")
    for j in range(4):
        q(f"v_lshlrev_b32 {v(YY+8+2*j)}, 16, {v(XX+j)}")
        q(f"v_and_b32 {v(YY+8+2*j+1)}, 0xffff0000, {v(XX+j)}")
    for j in range(4):
        q(f"v_lshlrev_b32 {v(YY+2*j)}, 16, {v(WW+j)}")
        q(f"v_and_b32 {v(YY+2*j+1)}, 0xffff0000, {v(WW+j)}")
    for j in range(4):
        q(f"v_pk_add_f32 {v(YY+2*j,2)}, {v(YY+2*j,2)}, {v(YY+8+2*j,2)}")
    h = HO + 4 * gen
    for j in range(4):
        q(f"v_cvt_pk_bf16_f32 {v(h+j)}, {v(YY+2*j)}, {v(YY+2*j+1)}")
    q(f"buffer_store_dwordx4 {v(h,4)}, {v(V_EXW)}, {srd(SRD_WS)}, s{S_PST} offen sc1", tok=f"h{gen}")
    return q.ins


V_A = 17
ad1 = sub()
ad1(f"v_bfe_u32 v4, {v(V_LANE)}, 3, 1")
ad1(f"v_lshrrev_b32 v5, 5, {v(V_LANE)}")
ad1(f"v_lshl_add_u32 v4, v5, 1, v4")
ad1(f"v_and_b32 v5, 0x70, {v(V_L16)}")
ad1(f"v_lshlrev_b32 v6, 5, v4")
ad1(f"v_xor_b32 v5, v5, v6")
ad1(f"v_bfe_u32 v6, {v(V_LANE)}, 4, 1")
ad1(f"v_lshl_add_u32 v4, v4, 1, v6")
ad1(f"v_mul_u32_u24 v4, {PROW}, v4")
ad1(f"v_add3_u32 {v(V_A)}, v4, v5, s{S_AB}")
for k in range(1, 4):
    ad1(f"v_add_u32 {v(V_A+k)}, {k*(8*PROW-1024)}, {v(V_A)}")


def act_dma(J):
    o = []
    gen, T = J >> 1, J & 1
    for kk in range(2):
        q = sub()
        q(f"s_add_u32 m0, s{S_ACTW}, {L_ACT[gen] + T*28672 + kk*4096}")
        q(f"s_mov_b32 s{S_WOFF}, {kk*32*PROW + PGEN*gen + 128*T}")
        for k in range(4 - kk):
            of = f" offset:{1024*k}" if k else ""
            q(f"buffer_load_dwordx4 {v(V_A+k)}, {srd(SRD_WS)}, s{S_WOFF} offen{of} sc1 lds", tok=f"act{J}")
        o.append(q.ins)
    return o


V_BR, V_S2, V_HST, V_BR2 = 21, 22, 24, 26
V_LF, V_LR = 28, 29
V_RES = 27
V_OST, V_RR, V_RW, V_HL = 45, 41, 42, 44
SEL = 176
CSA = [180, 184]
ad = sub()
ad(f"s_add_u32 s{S_PA}, s{S_PA}, 0x8000")
ad(f"v_and_b32 v4, 31, {v(V_LANE)}")
ad(f"v_lshrrev_b32 v5, 5, {v(V_LANE)}")
ad(f"v_mul_u32_u24 v5, {512+64}, v5")
ad(f"v_lshlrev_b32 v6, 2, v4")
ad(f"v_xor_b32 {v(V_BR)}, v5, v6")
ad(f"v_xor_b32 {v(V_BR2)}, 0xa0, {v(V_BR)}")
NAD2 = len(ad.ins)
ad(f"s_lshl_b32 s{S_T0}, s{S_TB}, 10")
ad(f"s_mul_i32 s{S_T1}, s{S_DB}, {S2REP}")
ad(f"s_add_u32 s{S_T0}, s{S_T0}, s{S_T1}")
ad(f"s_add_u32 s{S_T0}, s{S_T0}, {WS_S2}")
ad(f"v_lshl_add_u32 {v(V_S2)}, v4, 3, s{S_T0}")
ad(f"s_mov_b32 s{S_PERM}, 0x03020302")
ad(f"v_lshrrev_b32 v5, 4, {v(V_LANE)}")
ad(f"v_and_b32 v6, 15, {v(V_LANE)}")
ad(f"v_and_b32 v4, 1, v5")
ad(f"v_mul_u32_u24 v4, 57344, v4")
ad(f"v_lshl_add_u32 v4, v6, 4, v4")
ad(f"v_lshrrev_b32 v7, 1, v5")
ad(f"v_lshl_add_u32 v4, v7, 8, v4")
ad(f"s_mul_i32 s{S_T0}, s{S_TB}, {8*57344}")
ad(f"s_lshl_b32 s{S_T1}, s{S_FB}, 2")
ad(f"s_add_u32 s{S_T1}, s{S_T1}, s{S_V}")
ad(f"s_lshl_b32 s{S_T2}, s{S_T1}, 10")
ad(f"s_add_u32 s{S_T0}, s{S_T0}, {WS_H}")
ad(f"s_add_u32 s{S_T2}, s{S_T2}, s{S_T0}")
ad(f"v_add_u32 {v(V_HST)}, s{S_T2}, v4")
if "tch" in OPT:
    ad(f"s_mul_i32 s{S_TCH}, s{S_FH}, 57344")
    ad(f"s_add_u32 s{S_TCH}, s{S_TCH}, s{S_T2}")
    if "tch2" in OPT:
        ad(f"s_mul_i32 s{S_T3}, s{S_FH}, 28672")
        ad(f"s_sub_u32 s{S_TCH}, s{S_TCH}, s{S_T3}")
ad(f"s_mul_i32 s{S_T2}, s{S_FH}, 57344")
ad(f"s_add_u32 s{S_T0}, s{S_T0}, s{S_T2}")
ad(f"s_lshl1_add_u32 s{S_T0}, s{S_ACTW}, s{S_T0}")
ad(f"v_add_u32 {v(V_HL)}, s{S_T0}, {v(V_L16)}")
ad(f"s_lshl_b32 s{S_T0}, s{S_TB}, 13")
ad(f"s_add_u32 s{S_T0}, s{S_T0}, {WS_C + 65536}")
ad(f"s_mul_i32 s{S_T1}, s{S_T1}, 37")
ad(f"s_and_b32 s{S_T1}, s{S_T1}, 0x600")
ad(f"s_add_u32 s{S_F3}, s{S_T0}, s{S_T1}")
ad(f"s_lshl1_add_u32 s{S_T1}, s{S_V}, s{S_FH}")
ad(f"s_lshl_b32 s{S_T1}, s{S_T1}, 8")
ad(f"s_add_u32 s{S_P3}, s{S_T0}, s{S_T1}")
for k in range(1, 4):
    ad(f"s_movk_i32 s{S_HR+k}, {4096*k}")
ad(f"s_add_u32 s{S_FW}, s{S_RING}, 32768")
ad(f"s_lshl_b32 s{S_R2}, s{S_V}, 14")
ad(f"v_add_u32 {v(V_LF)}, s{S_FW}, {v(V_L16)}")
ad(f"v_add_u32 {v(V_LR)}, s{S_R2}, {v(V_L16)}")
ad2 = ad
se = sub()
se(f"v_bfe_u32 v4, {v(V_LANE)}, 2, 2")
se(f"v_bfe_u32 v5, {v(V_LANE)}, 4, 1")
se(f"v_mov_b32 v6, 0x3f803f80")
se(f"v_cmp_eq_u32 vcc, v4, v5")
for i in range(4):
    se(f"v_cndmask_b32 {v(SEL+i)}, 0, v6, vcc")


def cs_mfma(ks0, ks1):
    q = sub()
    for ks in range(ks0, ks1):
        for m in range(2):
            c = "0" if ks == 0 else v(CSA[m], 4)
            q(f"v_mfma_f32_16x16x32_bf16 {v(CSA[m],4)}, {v(SEL,4)}, {acc(wfrag(m,ks),4)}, {c}")
    return q.ins


def pin_spread(g, start, ins, per=2):
    for i, x in enumerate(ins):
        g.at(int(start + i // per), [x])
    return int(start + (len(ins) + per - 1) // per)


def gap_stamps(g, name):
    if OPT.get("gs", "").startswith(name + ":"):
        for k in OPT["gs"].split(":")[1].split(","):
            q = sub()
            stamp(f"{name} g{k}", q)
            g.pin[int(k)] = q.ins + g.pin[int(k)]


mA, mB = conv_mfmas(0), conv_mfmas(1)
NCS0 = int(OPT.get("ncs0", 8))
NOV = int(OPT.get("nov", 15))
bl = b_loads(0, 4)


def ab(rr):
    al = a_loads(rr, 0, 4)
    o = []
    for a in range(4):
        o += [bl[4 * rr + a]] + al[2 * a:2 * a + 2]
    return o


pr, pv = conv_pre(0)
P.add(ab(0) + ab(1)[:3])
P.add(b2.pop(0))
P.add(b2.pop(0))
g = Gaps(mA + mB[:NOV], 2)
l1 = ab(1)[3:] + ab(2) + ab(3) + pr
NL1 = int(OPT.get("nl1", 24))
for i, x in enumerate(l1):
    g.at(i * NL1 // len(l1), [x])
xw, xb, xr = conv_xchg(0)
for i, k in enumerate([int(x) for x in OPT.get("xa", "33,35,38,42").split(",")]):
    g.at(k, [xw[i]])
XB = int(OPT.get("xb", 45))
g.fill(pv, start=NL1 + 5, end=XB + 8, cap=2.5)
g.at(XB, xb)
g.at(XB + 1, xr)
pin_vm(g, XB + 2, b2[:2], 3)
b2 = b2[2:]
P.add(g.out())
P.add(conv_post(0))
stamp("genA stored")
nb = b_loads(4, 8)
newl = []
for rr in range(4):
    newl += nb[4 * rr:4 * rr + 4] + a_loads(rr, 4, 8)
P.add(newl[:8])
g = Gaps(mB[NOV:] + cs_mfma(0, NCS0), 2)
NB_ = len(mB) - NOV
pin_spread(g, 0, newl[8:], per=1)
g.at(0, waitq("w1_3"))
pin_spread(g, 0, tr1[24:], per=1)
pin_vm(g, 1, b2, 3.5)
fl = sub()
fl.wait("h0")
addcnt(fl, S_F2, V_FL2)
fl(f"s_add_u32 s{S_F2}, s{S_F2}, 0x8000")
g.at(int(OPT.get("fa", 28)), fl.ins)
tr2 = batch_tr(1)
T2 = [int(x) for x in OPT.get("t2", "12,24,44,60").split(",")]
b3 = batch_dma(2, "w3")
for i in range(4):
    pin_spread(g, T2[i], waitq(f"w2_{i}") + tr2[8 * i:8 * i + 8], per=1)
    b3[i] = waitq(f"t1_{i}") + b3[i]
pin_vm(g, 30, b3[:2], 3)
pin_vm(g, 56, b3[2:3], 3)
pin_vm(g, 71, b3[3:4], 2.5)
pr, pv = conv_pre(1)
pin_spread(g, 41, pr, per=1)
newl[-1].tok = "lastfrag"
bq = sub()
bq.wait("lastfrag")
bq("s_barrier")
g.at(54, bq.ins)
x2 = sub()
x2(f"v_add_u32 {v(V_EXW)}, {L_KC}, {v(V_EXW)}")
x2(f"s_lshl_b32 s{S_T0}, s{S_V}, 12")
x2(f"s_add_u32 s{S_T0}, s{S_T0}, {L_KC}")
x2(f"v_add_u32 {v(V_EXR)}, s{S_T0}, {v(V_L16)}")
x2(f"s_add_u32 s{S_PST}, s{S_PST}, {PGEN - L_KC}")
PA1, PA2, PAC = int(OPT.get("pa1", 58)), int(OPT.get("pa2", 72)), int(OPT.get("pac", 86))
e = g.fill(x2.ins + ad1.ins + se.ins, start=34, end=NB_ - 16)
g.fill(pv, start=max(e, 50), end=NB_ + 10)
g.at(PA1, poll_issue(S_PA, 7))
g.at(PA2, poll_issue(S_PA, 23))
if "pa3" in OPT:
    g.at(int(OPT["pa3"]), poll_issue(S_PA, 24))
    g.at(PAC, poll_checkn(S_PA, [7, 23, 24], "3", f"s{S_E28}"))
else:
    g.at(PAC, stq("pre pollA") + poll_check2(S_PA, 7, 23, "3", f"s{S_E28}") + stq("post pollA"))
a0 = singles(act_dma(0) + act_dma(1))
AS = float(OPT.get("as", 3))
na = int((g.n - 1 - PAC) / AS) + 1
pin_vm(g, PAC, a0[:na], AS)
xw, xb, xr = conv_xchg(1)
for i, k in enumerate((-15, -11, -5, 3)):
    g.at(NB_ + k, [xw[i]])
g.at(NB_ + 6, xb)
g.at(NB_ + 7, xr)
gap_stamps(g, "s2")
o_ = g.out()
X = OPT.get("x2", "")
if "d" in X:
    o_ = [i for i in o_ if not (i.cls == "vmem" and i.tok and i.tok[0] == "w")]
if "t" in X:
    o_ = [i for i in o_ if "tr_b16" not in i.mn]
if "a" in X:
    o_ = [i for i in o_ if "ds_read2_b32" not in i.mn]
P.add(o_)
P.add(conv_post(1))
stamp("genB stored")
NCH_ = int(OPT.get("nch", 7))
g = Gaps(cs_mfma(NCS0, 24 - NCH_), 3)
g.at(1, poll_issue(S_P4, 25))
tr3 = batch_tr(2)
t3 = []
for i in (0, 1, 2, 3):
    t3 += waitq(f"w3_{i}") + tr3[8 * i:8 * i + 8]
pin_spread(g, 0, t3, per=2)
e = pin_vm(g, 0, a0[na:], 2)
fl = sub()
fl.wait("h1")
addcnt(fl, S_F2, V_FL2)
g.fill(ad2.ins[:NAD2], start=18)
w4 = singles([waitq("t2_3") + w_dma(6, 0, 8, "w4"), w_dma(6, 1, 12, "w4")])
P.add(g.out())
stamp("gap work done")

GACC = [64, 96]
BF = 128
NBF = 8
MB = 160
KC_ = [14, 9]
STT = 60
EPT = 164
HP = 172
WDV = 188
RESR = [46, 48, 50, 52]
A_CS = [224, 228]
GC0 = -2.0 * math.sqrt(2.0 / math.pi) * LOG2E


def st_issue(J, atomic=None):
    q = sub()
    t = STT + 2 * (J & 1)
    atomic = False if atomic is None else atomic
    if atomic:
        q(f"v_mov_b64 {v(t,2)}, 0")
        q(f"buffer_atomic_add_x2 {v(t,2)}, {v(V_S2)}, {srd(SRD_WS)}, 0 offen offset:{256*J} sc0")
    else:
        q(f"buffer_load_dwordx2 {v(t,2)}, {v(V_S2)}, {srd(SRD_WS)}, 0 offen offset:{256*J} sc1")
    return q.ins


def st_check(J):
    q = sub()
    t = STT + 2 * (J & 1)
    slow, done = label("sslow"), label("sdone")
    q(f"v_cmp_ne_u32 vcc, s{S_NONCE}, {v(t+1)}")
    q(f"s_cbranch_vccnz {slow}")
    q(f"{done}:")
    spin(TAIL, slow, done, st_issue(J, True), t + 1, sleep=1)
    return q.ins


def st_final(J):
    q = sub()
    kc = KC_[J & 1]
    t = STT + 2 * (J & 1)
    q(f"v_perm_b32 {v(MB)}, {v(t)}, {v(t)}, s{S_PERM}")
    q(f"v_cvt_f32_f16 {v(t)}, {v(t)}")
    q(f"v_mul_f32 {v(t+1)}, {v(t)}, {v(t)}")
    q(f"v_mul_f32 {v(kc)}, {f32(GC0)}, {v(t)}")
    q(f"v_rcp_f32 {v(kc+2)}, {v(t+1)}")
    q(f"v_mul_f32 {v(kc+1)}, {v(t+1)}, {v(kc)}")
    q(f"v_mul_f32 {v(kc+1)}, {f32(0.044715)}, {v(kc+1)}")
    return q.ins


SP = Prog()
spn = [1]


def sps():
    if STAMPS and "lite" in OPT:
        SP(f"s_memrealtime s[{S_STAMP}:{S_STAMP+1}]")
        SP("s_waitcnt lgkmcnt(0)")
        SP(f"v_writelane_b32 v255, s{S_STAMP}, {spn[0]}")
        spn[0] += 1


SP("L_spare:")
SP("s_barrier")
sps()
SP(f"s_and_b32 s{S_T0}, s{S_W}, 6")
SP(f"s_lshl_b32 s{S_T0}, s{S_T0}, 1")
SP(f"s_bfe_u32 s{S_T1}, s{S_W}, 0x20003")
SP(f"s_add_u32 s{S_TB}, s{S_T0}, s{S_T1}")
SP(f"s_lshr_b32 s{S_T0}, s{S_TB}, 2")
SP(f"s_lshl2_add_u32 s{S_T0}, s{S_FH}, s{S_T0}")
SP(f"s_lshl3_add_u32 s{S_T0}, s{S_T0}, s{S_T1}")
SP(f"s_lshl2_add_u32 s{S_T0}, s{S_T0}, s{S_V}")
SP(f"s_lshl_b32 s{S_T0}, s{S_T0}, 8")
SP(f"s_add_u32 s{S_PA}, s{S_T0}, {WS_C}")
SP(f"s_mul_i32 s{S_T1}, s{S_V}, 56")
SP(f"v_mov_b32 {v(V_NONCE)}, 7")
lanes_reg(SP, V_FLG, 4, 8)
SP(f"v_lshrrev_b32 v5, 4, {v(V_LANE)}")
SP(f"v_and_b32 v6, 15, {v(V_LANE)}")
SP(f"v_mul_u32_u24 v4, {PROW}, v5")
SP(f"v_lshl_add_u32 v4, v6, 4, v4")
SP(f"s_mul_i32 s{S_T1}, s{S_T1}, {PROW}")
SP(f"s_lshl_b32 s{S_T0}, s{S_TB}, 8")
SP(f"s_add_u32 s{S_T0}, s{S_T0}, s{S_T1}")
SP(f"s_mul_i32 s{S_T1}, s{S_FH}, {PGEN}")
SP(f"s_add_u32 s{S_T0}, s{S_T0}, s{S_T1}")
SP(f"s_add_u32 s{S_T0}, s{S_T0}, {WS_P}")
SP(f"v_add_u32 v11, s{S_T0}, v4")
SP(f"v_lshl_add_u32 v4, v6, 2, v5")
SP(f"s_lshl_b32 s{S_T0}, s{S_V}, 9")
SP(f"v_lshl_add_u32 v12, v4, 3, s{S_T0}")
SP(f"v_lshlrev_b32 v13, 3, {v(V_LANE)}")
SP(f"v_mov_b32 v14, 0x3f803f80")
if not NOPF and EPF < 25:
    NREM = 12544 - 512 * EPF
    LR = -(-NREM // (64 * 4))
    SP(f"s_sub_u32 s{S_T1}, s{S_W}, 224")
    SP(f"s_lshr_b32 s{S_T0}, s{S_V}, 1")
    SP(f"s_lshl1_add_u32 s{S_T1}, s{S_T1}, s{S_T0}")
    SP(f"s_mul_i32 s{S_T1}, s{S_T1}, {LR*128}")
    SP(f"s_add_u32 s{S_T1}, s{S_T1}, {(12544-256*LR)*128}")
    SP(f"v_min_u32 v4, {LR-1}, {v(V_LANE)}")
    SP(f"v_lshl_add_u32 v4, v4, 7, s{S_T1}")
    NB3 = int(OPT.get("nb3", 0))
    SP(f"s_mul_i32 s{S_T0}, s{S_FH}, {64*LR*128}")
    SP(f"s_mul_i32 s{S_T1}, s{S_FH}, {2*LR*128}")
    for k in range(4):
        SP(f"global_load_dword {v(56+k)}, v4, s[{S_PFB}:{S_PFB+1}]")
        if k >= 4 - NB3:
            SP(f"v_subrev_u32 v5, s{S_T1}, v4")
            SP(f"global_load_dword {v(60+k)}, v5, s[{S_PFB}:{S_PFB+1}]")
        if k < 3 - NB3:
            SP(f"v_add_u32 v4, {64*LR*128}, v4")
        elif k < 3:
            SP(f"v_add_u32 v4, s{S_T0}, v4")
SP(f"s_sub_u32 s{S_T1}, s{S_W}, 224")
SP(f"s_cmp_ge_u32 s{S_T1}, 28")
SP("s_cbranch_scc1 L_sp_nowf")
SP(f"s_lshr_b32 s{S_DB}, s{S_T1}, 2")
SP(f"s_and_b32 s{S_T2}, s{S_T1}, 3")
SP(f"s_lshl_b32 s{S_F3}, s{S_T1}, 10")
SP(f"s_add_u32 s{S_F3}, s{S_F3}, {WS_C + 896*256}")
SP(f"s_mul_i32 s{S_T1}, s{S_T1}, {14*4096}")
SP(f"s_add_u32 s{S_T1}, s{S_T1}, {WS_WF}")
SP(f"v_add_u32 v20, s{S_T1}, {v(V_L16)}")
SP(f"v_lshrrev_b32 v6, 3, {v(V_LANE)}")
SP(f"v_and_b32 v7, 6, v6")
SP(f"v_and_b32 v5, 7, {v(V_LANE)}")
SP(f"v_xor_b32 v7, v7, v5")
SP(f"v_mul_u32_u24 v6, 896, v6")
SP(f"v_lshl_add_u32 v6, v7, 4, v6")
SP(f"s_mul_i32 s{S_T0}, s{S_T2}, {448*896}")
SP(f"s_lshl_b32 s{S_T1}, s{S_DB}, 7")
SP(f"s_add_u32 s{S_T0}, s{S_T0}, s{S_T1}")
SP(f"v_add_u32 v48, s{S_T0}, v6")
for k in range(1, 4):
    SP(f"v_add_u32 {v(48+k)}, {k*(7168-1024)}, v48")
SP(f"s_lshl_b32 s{S_R2}, s{S_V}, 14")
SP(f"s_add_u32 s{S_R2}, s{S_R2}, 4096")
for i in range(4):
    SP(f"s_lshl2_add_u32 s{S_HR+i}, s{S_V}, {i}")
    SP(f"s_min_u32 s{S_HR+i}, s{S_HR+i}, 13")
    SP(f"s_mul_i32 s{S_WOFF}, s{S_HR+i}, {32*896}")
    SP(f"s_add_u32 m0, s{S_R2}, {4096*i}")
    SP(f"s_lshl_b32 s{S_HR+i}, s{S_HR+i}, 12")
    for k in range(4):
        of = f" offset:{1024*k}" if k else ""
        SP(f"buffer_load_dwordx4 {v(48+k)}, {srd(SRD_WD)}, s{S_WOFF} offen{of} lds", tok=f"sw{i}")
SP(f"v_lshrrev_b32 v4, 4, {v(V_LANE)}")
SP(f"v_lshrrev_b32 v6, 1, v4")
SP(f"v_lshlrev_b32 v6, 4, v6")
SP(f"v_and_b32 v7, 1, v4")
SP(f"v_lshl_add_u32 v6, v7, 2, v6")
SP(f"v_bfe_u32 v7, {v(V_LANE)}, 2, 2")
SP(f"v_add_u32 v6, v6, v7")
SP(f"v_bfe_u32 v7, v6, 1, 2")
SP(f"v_lshlrev_b32 v6, 7, v6")
SP(f"v_and_b32 v5, 3, {v(V_LANE)}")
SP(f"v_lshl_add_u32 v6, v5, 3, v6")
for rt in range(4):
    SP(f"v_xor_b32 v5, {rt}, v7")
    SP(f"v_lshl_add_u32 v5, v5, 5, v6")
    SP(f"v_add_u32 {v(52+rt)}, s{S_R2}, v5")
for i in range(4):
    SP.wait(f"sw{i}")
    if i in (0, 3): sps()
    for rt in range(4):
        for h in range(2):
            SP(f"ds_read_b64_tr_b16 {v(64+16*i+4*rt+2*h,2)}, {v(52+rt)} offset:{4096*i+1024*h}")
    for rt in range(4):
        SP(f"buffer_store_dwordx4 {v(64+16*i+4*rt,4)}, v20, {srd(SRD_WS)}, s{S_HR+i} offen offset:{1024*rt} sc1")
SP("s_waitcnt vmcnt(0)")
addcnt(SP, S_F3, V_FLG)
sps()
SP("L_sp_nowf:")
sps()
SP("s_mov_b64 vcc, 3")
spin(SP, "L_sp_c", "L_sp_d", poll_issue(S_PA, 7), 7, sleep=int(OPT.get('spsleep', 2)), exp=f"s{S_E28}")
SP("L_sp_d:")
sps()
for k in range(14):
    SP(f"s_mov_b32 s{S_T0}, {k*4*PROW}")
    SP(f"buffer_load_dwordx4 {v(64+4*k,4)}, v11, {srd(SRD_WS)}, s{S_T0} offen sc1")
SS = 16
for j in range(8):
    SP(f"v_mov_b32 {v(SS+j)}, 0")
for k in range(14):
    for j in range(4):
        SP(f"v_dot2c_f32_bf16 {v(SS+j)}, {v(64+4*k+j)}, v14")
    for j in range(4):
        SP(f"v_dot2c_f32_bf16 {v(SS+4+j)}, {v(64+4*k+j)}, {v(64+4*k+j)}")
for o in (0, 4):
    SP(f"v_permlane32_swap_b32 {v(SS+o)}, {v(SS+o+2)}")
    SP(f"v_permlane32_swap_b32 {v(SS+o+1)}, {v(SS+o+3)}")
for o in (0, 4):
    SP(f"v_add_f32 {v(SS+o)}, {v(SS+o)}, {v(SS+o+2)}")
    SP(f"v_add_f32 {v(SS+o+1)}, {v(SS+o+1)}, {v(SS+o+3)}")
for o in (0, 4):
    SP(f"v_permlane16_swap_b32 {v(SS+o)}, {v(SS+o+1)}")
SP(f"v_add_f32 {v(SS)}, {v(SS)}, {v(SS+1)}")
SP(f"v_add_f32 {v(SS+1)}, {v(SS+4)}, {v(SS+5)}")
sps()
SP(f"ds_write_b64 v12, {v(SS,2)}")
SP("s_waitcnt lgkmcnt(0)")
SP("s_barrier")
SP(f"s_cmp_lg_u32 s{S_V}, 0")
SP("s_cbranch_scc1 L_fin")
t = 24
for w in range(4):
    SP(f"ds_read_b64 {v(t+2*w,2)}, v13 offset:{512*w}")
SP(f"s_lshl_b32 s{S_T0}, s{S_TB}, 1")
SP(f"s_add_u32 s{S_T0}, s{S_T0}, s{S_FH}")
SP(f"s_lshl_b32 s{S_T0}, s{S_T0}, 9")
SP(f"s_add_u32 s{S_T0}, s{S_T0}, {WS_S2}")
SP(f"v_pk_add_f32 {v(t,2)}, {v(t,2)}, {v(t+2,2)}")
SP(f"v_pk_add_f32 {v(t+4,2)}, {v(t+4,2)}, {v(t+6,2)}")
SP(f"v_pk_add_f32 {v(t,2)}, {v(t,2)}, {v(t+4,2)}")
SP(f"v_mul_f32 {v(t)}, s{S_K0}, {v(t)}")
SP(f"v_mul_f32 {v(t+1)}, s{S_K0}, {v(t+1)}")
SP(f"v_fma_f32 {v(t+1)}, -{v(t)}, {v(t)}, {v(t+1)}")
SP(f"v_max_f32 {v(t+1)}, 0, {v(t+1)}")
SP(f"v_add_f32 {v(t+1)}, {f32(1e-5)}, {v(t+1)}")
SP(f"v_rsq_f32 {v(t+1)}, {v(t+1)}")
SP(f"v_cvt_pk_bf16_f32 {v(t)}, 0, -{v(t)}")
SP(f"v_cvt_f16_f32 {v(t+1)}, {v(t+1)}")
SP(f"v_and_b32 {v(t+1)}, 0xffff, {v(t+1)}")
SP(f"v_or_b32 {v(t)}, {v(t)}, {v(t+1)}")
SP(f"v_mov_b32 {v(t+1)}, s{S_NONCE}")
for r_ in range(7):
    SP(f"buffer_store_dwordx2 {v(t,2)}, v13, {srd(SRD_WS)}, s{S_T0} offen sc1")
    SP(f"s_add_u32 s{S_T0}, s{S_T0}, {S2REP}")
sps()
SP(f"s_cmp_lg_u32 s{S_W}, 255")
SP("s_cbranch_scc1 L_fin")
SP(f"v_lshlrev_b32 v4, 25, {v(V_LANE)}")
SP(f"buffer_store_dword {v(t+1)}, v4, {srd(SRD_WS)}, 0 offen sc1")
SP("s_branch L_fin")


def b_read(J, ks):
    q = sub()
    b = BF + 4 * (ks % NBF)
    o = 112 * (J & 1) + 4 * ks
    q(f"ds_read2st64_b32 {v(b,2)}, {v(V_BR)} offset0:{o} offset1:{o+1}")
    q(f"ds_read2st64_b32 {v(b+2,2)}, {v(V_BR2)} offset0:{o} offset1:{o+1}", tok=f"b{J}_{ks}")
    return q.ins


def g1_gaps(J, extra_after=None):
    m = sub()
    g0 = GACC[J & 1]
    for ks in range(28):
        for mm in range(2):
            d = g0 + 16 * mm
            c = "0" if ks == 0 else v(d, 16)
            m(f"v_mfma_f32_32x32x16_bf16 {v(d,16)}, {acc(wfrag(mm,ks),4)}, {v(BF+4*(ks%NBF),4)}, {c}")
    for mm in range(2):
        d = g0 + 16 * mm
        m(f"v_mfma_f32_32x32x16_bf16 {v(d,16)}, {acc(A_CS[mm],4)}, {v(MB,4)}, {v(d,16)}")
    g = Gaps(m.ins, 6)
    for ks in range(28):
        k2 = ks + NBF - 1
        if k2 < 28:
            r = b_read(J, k2)
            g.at(2 * ks, [r[0]])
            g.at(2 * ks + 1, [r[1]])
        if ks % 3 == 2 and ks + 1 < 28:
            w = sub()
            w.wait(f"b{J}_{min(ks+3,27)}")
            g.at(2 * ks + 1, w.ins)
    return g


def next_tile_reads(g, J, delta, first=42):
    q = sub()
    if delta:
        q(f"v_add_u32 {v(V_BR)}, {delta}, {v(V_BR)}")
        q(f"v_add_u32 {v(V_BR2)}, {delta}, {v(V_BR2)}")
    g.at(first, q.ins)
    for ks in range(NBF - 1):
        old = max(k for k in range(28) if k % NBF == ks)
        r = b_read(J, ks)
        at = max(2 * old + 1, first + 1)
        g.at(at, r[:1])
        g.at(min(at + 1, 57), r[1:])


def g1_epi(J):
    q = sub()
    g = GACC[J & 1]
    kc = KC_[J & 1]
    T = EPT
    for j0 in range(0, 16, 4):
        js = range(j0, j0 + 4)
        for j in js:
            q(f"v_mul_f32 {v(T+j-j0)}, {v(g+j)}, {v(g+j)}")
        for j in js:
            q(f"v_fma_f32 {v(T+j-j0)}, {v(T+j-j0)}, {v(kc+1)}, {v(kc)}")
        for j in js:
            q(f"v_mul_f32 {v(T+j-j0)}, {v(T+j-j0)}, {v(g+j)}")
        for j in js:
            q(f"v_exp_f32 {v(T+j-j0)}, {v(T+j-j0)}")
            q(f"v_mul_f32 {v(T+4+j-j0)}, {v(g+j)}, {v(g+16+j)}")
        for j in js:
            q(f"v_fma_f32 {v(T+j-j0)}, {v(T+j-j0)}, {v(kc+2)}, {v(kc+2)}")
        for j in js:
            q(f"v_rcp_f32 {v(T+j-j0)}, {v(T+j-j0)}")
        for j in js:
            q(f"v_mul_f32 {v(T+4+j-j0)}, {v(T+4+j-j0)}, {v(T+j-j0)}")
        q(f"v_cvt_pk_bf16_f32 {v(HP+(j0//2)%4)}, {v(T+4)}, {v(T+5)}")
        q(f"v_cvt_pk_bf16_f32 {v(HP+(j0//2)%4+1)}, {v(T+6)}, {v(T+7)}")
        if j0 in (4, 12):
            q2 = j0 // 8
            q(f"buffer_store_dwordx4 {v(HP,4)}, {v(V_HST)}, {srd(SRD_WS)}, 0 offen offset:{512*q2} sc1", tok=f"H{J}")
    q(f"v_add_u32 {v(V_HST)}, {2*57344}, {v(V_HST)}")
    return q.ins


def g1_epi_pk(J):
    q = sub()
    g = GACC[J & 1]
    assert KC_[J & 1] == 9
    T = EPT
    for j0 in range(0, 16, 8):
        pr_ = range(j0, j0 + 8, 2)
        for j in pr_:
            q(f"v_pk_mul_f32 {v(T+j-j0,2)}, {v(g+j,2)}, {v(g+j,2)}")
        for j in pr_:
            q(f"v_pk_fma_f32 {v(T+j-j0,2)}, {v(T+j-j0,2)}, v[10:11], v[8:9] op_sel:[0,0,1] op_sel_hi:[1,0,1]")
        for j in pr_:
            q(f"v_pk_mul_f32 {v(T+j-j0,2)}, {v(T+j-j0,2)}, {v(g+j,2)}")
        for j in range(j0, j0 + 8):
            q(f"v_exp_f32 {v(T+j-j0)}, {v(T+j-j0)}")
        for j in pr_:
            q(f"v_pk_mul_f32 {v(g+j,2)}, {v(g+j,2)}, {v(g+16+j,2)}")
        for j in pr_:
            q(f"v_pk_fma_f32 {v(T+j-j0,2)}, {v(T+j-j0,2)}, v[10:11], v[10:11] op_sel:[0,1,1] op_sel_hi:[1,1,1]")
        for j in range(j0, j0 + 8):
            q(f"v_rcp_f32 {v(T+j-j0)}, {v(T+j-j0)}")
        for j in pr_:
            q(f"v_pk_mul_f32 {v(g+j,2)}, {v(g+j,2)}, {v(T+j-j0,2)}")
        for j in pr_:
            q(f"v_cvt_pk_bf16_f32 {v(HP+(j-j0)//2)}, {v(g+j)}, {v(g+j+1)}")
        q(f"buffer_store_dwordx4 {v(HP,4)}, {v(V_HST)}, {srd(SRD_WS)}, 0 offen offset:{512*(j0//8)} sc1", tok=f"H{J}")
    return q.ins


def flag3(J):
    q = sub()
    q.wait(f"H{J}")
    addcnt(q, S_F3, V_FLG)
    q(f"s_add_u32 s{S_F3}, s{S_F3}, 2048")
    if str(J) in OPT.get("tch", ""):
        q(f"s_add_u32 s{S_T3}, s{S_TCH}, {J*2*57344}")
        q(f"buffer_load_dword {v(253 + (J & 1))}, v40, {srd(SRD_WS)}, s{S_T3} offen sc1")
    return q.ins


WDREG = {}
for i in range(4):
    for rt in range(4):
        WDREG[i, rt] = v(WDV + 16 * i + 4 * rt, 4)
        WDREG[10, rt] = acc(240 + 4 * rt, 4)
        WDREG[11, rt] = v([176, 180, 184, 56][rt], 4)
        WDREG[12, rt] = acc(4 * rt, 4)
        WDREG[13, rt] = acc(16 + 4 * rt, 4)
for i in range(6):
    for rt in range(4):
        WDREG[4 + i, rt] = acc(128 + 16 * i + 4 * rt, 4)
KORD = [0, 1, 2, 3, 10, 11, 12, 13, 4, 5, 6, 7, 8, 9]


def wdr(ft, rt):
    return WDREG[ft, rt]


def wd_load(ft):
    q = sub()
    q(f"s_add_u32 s{S_WOFF}, s{S_WFB}, {ft*4096}")
    for k in range(4):
        of = f" offset:{1024*k}" if k else ""
        q(f"buffer_load_dwordx4 {wdr(ft,k)}, {v(V_L16)}, {srd(SRD_WS)}, s{S_WOFF} offen{of} sc1")
    return q.ins


def wd_dma(ft):
    q = sub()
    sbase, slot = (S_FW, ft - 4) if ft < 6 else (S_R2, ft - 6)
    q(f"s_add_u32 m0, s{sbase}, {slot*4096}")
    q(f"s_add_u32 s{S_WOFF}, s{S_WFB}, {ft*4096}")
    for k in range(4):
        of = f" offset:{1024*k}" if k else ""
        q(f"buffer_load_dwordx4 {v(V_L16)}, {srd(SRD_WS)}, s{S_WOFF} offen{of} sc1 lds", tok=f"wd{ft}")
    return q.ins


def wd_read(ft):
    q = sub()
    va, slot = (V_LF, ft - 4) if ft < 6 else (V_LR, ft - 6)
    for rt in range(4):
        q(f"ds_read_b128 {wdr(ft,rt)}, {v(va)} offset:{4096*slot+1024*rt}")
    return q.ins


def res_read(J):
    q = sub()
    o = 112 * (J & 1)
    q(f"ds_read2st64_b32 {v(RESR[J],2)}, {v(V_RES)} offset0:{o} offset1:{o+1}", tok=f"res{J}")
    if J == 1:
        q(f"v_add_u32 {v(V_RES)}, {L_ACT[1]}, {v(V_RES)}")
    return q.ins


ad = sub()
ad(f"v_lshrrev_b32 v4, 4, v0")
ad(f"v_and_b32 v5, 15, v0")
ad(f"v_lshrrev_b32 v6, 1, v5")
ad(f"v_and_b32 v7, 1, v5")
ad(f"v_lshl_add_u32 v6, v6, 2, v7")
ad(f"s_lshl_b32 s{S_T0}, s{S_DB}, 12")
ad(f"v_lshl_add_u32 v6, v6, 7, s{S_T0}")
ad(f"s_lshl_b32 s{S_T1}, s{S_FH}, 6")
ad(f"v_lshl_add_u32 v7, v4, 2, s{S_T1}")
ad(f"v_add_u32 v6, v6, v7")
ad(f"v_and_b32 v7, 3, v5")
ad(f"v_lshlrev_b32 v7, 5, v7")
ad(f"v_xor_b32 {v(V_RES)}, v6, v7")
ad(f"v_lshrrev_b32 v6, 2, v4")
ad(f"v_and_b32 v7, 3, v4")
ad(f"v_lshl_add_u32 v6, v6, 4, v7")
ad(f"v_mul_u32_u24 v6, 896, v6")
ad(f"v_lshl_add_u32 v6, v5, 3, v6")
ad(f"s_lshr_b32 s{S_T0}, s{S_TB}, 2")
ad(f"s_lshl_b32 s{S_T0}, s{S_T0}, 8")
ad(f"s_add_u32 s{S_T0}, s{S_T0}, s{S_T1}")
ad(f"s_and_b32 s{S_T1}, s{S_TB}, 3")
ad(f"s_lshl_b32 s{S_T1}, s{S_T1}, 2")
ad(f"s_add_u32 s{S_T0}, s{S_T0}, s{S_T1}")
ad(f"s_mul_i32 s{S_T0}, s{S_T0}, 896")
ad(f"s_lshl_b32 s{S_T1}, s{S_DB}, 7")
ad(f"s_add_u32 s{S_T0}, s{S_T0}, s{S_T1}")
ad(f"v_add_u32 {v(V_OST)}, s{S_T0}, v6")
ad(f"v_mul_u32_u24 v6, 288, v5")
ad(f"v_lshl_add_u32 v6, v4, 4, v6")
ad(f"v_add_u32 {v(V_RR)}, {L_R}, v6")
ad(f"v_lshrrev_b32 v4, 4, {v(V_LANE)}")
ad(f"v_mul_u32_u24 v6, 288, v4")
ad(f"v_lshl_add_u32 v6, v5, 4, v6")
ad(f"s_mul_i32 s{S_T0}, s{S_V}, 4608")
ad(f"s_add_u32 s{S_T0}, s{S_T0}, {L_R}")
ad(f"v_add_u32 {v(V_RW)}, s{S_T0}, v6")
lanes_reg(ad, V_FLG, 2, 8)
if "tch2" in OPT:
    lanes_reg(ad, 40, 16, 7)
    ad(f"v_and_b32 v4, 8, {v(V_LANE)}")
    ad(f"v_mul_u32_u24 v4, {(28672-1024)//8}, v4")
    ad(f"v_add_u32 v40, v40, v4")
elif "tch" in OPT:
    lanes_reg(ad, 40, 8, 7)

for i in range(1, 4):
    P(f"v_mov_b32 {v(MB+i)}, 0")
    P(f"v_accvgpr_write_b32 {acc(A_CS[0]+i)}, 0")
    P(f"v_accvgpr_write_b32 {acc(A_CS[1]+i)}, 0")
walk("walk")
P.wait("act0")
P("s_waitcnt lgkmcnt(0)")
P("s_barrier")
stamp("gemm1 start")
for ks in range(3):
    P.add(b_read(0, ks))
g = Gaps(cs_mfma(24 - NCH_, 24), 2)
pin_spread(g, 0, sum([b_read(0, ks) for ks in range(3, NBF - 1)], []), per=1)
pin_vm(g, 1, w4[:3], 3)
P.add(g.out())

def hreg(J, ft):
    n = KORD.index(ft)
    if J in (0, 3):
        return acc(32 + 4 * n, 4)
    if J == 1:
        return v(64 + 4 * n if n < 8 else 128 + 4 * (n - 8), 4)
    return v(96 + 4 * n if n < 8 else 152 + 4 * (n - 8), 4)


def h_loads(J):
    o = []
    for s_ in KORD:
        q = sub()
        of = f" offset:{1024*(s_%4)}" if s_ % 4 else ""
        so = f"s{S_HR+s_//4}" if s_ >= 4 else "0"
        q(f"buffer_load_dwordx4 {hreg(J,s_)}, {v(V_HL)}, {srd(SRD_WS)}, {so} offen{of} sc1")
        o.append(q.ins)
    if J < 3:
        q = sub()
        q(f"v_add_u32 {v(V_HL)}, {2*57344}, {v(V_HL)}")
        o[-1] += q.ins
    return o


def p3_next():
    q = sub()
    q(f"s_add_u32 s{S_P3}, s{S_P3}, 2048")
    return q.ins


g = g1_gaps(0)
e = pin_vm(g, 0, w4[3:], 1.5)
g.at(int(OPT.get("fb", 2)), fl.ins)
g.at(e, poll_check(S_P4, 25))
WL = [wd_load(0), wd_load(1), wd_load(2), wd_load(3), wd_load(10), wd_dma(4), wd_dma(5), wd_load(11)]
N0_, N1_ = int(OPT.get("n0", 5)), int(OPT.get("n1", 2))
WS0 = int(OPT.get("ws0", e))
e4 = pin_vm(g, WS0, WL[:N0_], (57 - WS0) / (4 * N0_))
t4 = w_tr(6, 0, 8, "t4") + w_tr(6, 1, 12, "t4")
g.at(30, waitq("w4"))
pin_spread(g, 30, t4, per=2)
g.at(41, waitq("t4") + cs_mfma(24, 28))
cf = sub()
for m in range(2):
    round_bf16(cf, 54, CSA[m])
    cf(f"v_sub_f32 v55, {v(CSA[m])}, v54")
    cf(f"v_cvt_pk_bf16_f32 v54, v54, v55")
    cf(f"v_accvgpr_write_b32 {acc(A_CS[m])}, v54")
g.fill(cf.ins, start=44, end=52)
g.at(int(OPT.get("pb1", 26)), poll_issue(S_PA, 23))
g.at(int(OPT.get("pb2", 40)), poll_issue(S_PA, 25))
g.at(int(OPT.get("st0", 32)), st_issue(0))
g.at(53, stq("t0 pre st") + st_check(0) + stq("t0 post st"))
g.fill(st_final(0), start=53, end=55)
g.at(57, stq("t0 pre pB") + poll_check2(S_PA, 23, 25, "3", f"s{S_E28}") + stq("t0 post pB"))
bq = sub()
bq.wait("act1")
bq("s_barrier")
g.at(27, bq.ins)
next_tile_reads(g, 1, 0, first=41)
e = g.fill(ad2.ins[NAD2:], start=0, cap=float(OPT.get("cap0", 6)))
assert e < min(e4, 40), e
e = g.fill(ad.ins, start=e, cap=float(OPT.get("cap0", 6)))
print("tile 0 address stream ends at", e, len(g.tail))
gap_stamps(g, "t0")
P.add(g.out())
stamp("tile0")
g = g1_gaps(1)
e = pin_vm(g, 0, act_dma(2)[:1] + [st_issue(1)] + act_dma(2)[1:] + act_dma(3), 2)
pin_vm(g, e + 1, WL[N0_:N0_ + N1_], min(2.5, (57 - e) / (4 * N1_)))
g.at(38, res_read(0))
g.at(39, res_read(1))
g.at(40, st_check(1))
g.fill(st_final(1), start=41, end=54)
bq = sub()
bq.wait("act2")
bq.wait("b1_27")
bq("s_barrier")
BB = int(OPT.get("bb", 48))
g.at(BB, stq("t1 pre bar") + bq.ins + stq("t1 post bar"))
next_tile_reads(g, 2, L_ACT[1], first=BB)
e = g.fill(g1_epi(0), start=3)
print("tile 1: epilogue ends at gap", e, "tail", len(g.tail))
gap_stamps(g, "t1")
P.add(g.out())
stamp("tile1")
g = g1_gaps(2)
pin_vm(g, 0, [wd_dma(6), wd_dma(7), st_issue(2), wd_dma(8), wd_dma(9)] + WL[N0_ + N1_:] + [st_issue(3)], 55 / (18 + 4 * (8 - N0_ - N1_)))
g.at(24, flag3(0))
bq = sub()
bq.wait("act3")
bq("s_barrier")
g.at(30, bq.ins)
g.at(49, st_check(2))
g.fill(st_final(2), start=50, end=54)
g.at(56, poll_issue(S_P3, 7))
next_tile_reads(g, 3, 0, first=41)
e = g.fill(g1_epi(1), start=3)
print("tile 2: epilogue ends at gap", e, "tail", len(g.tail))
gap_stamps(g, "t2")
P.add(g.out())
stamp("tile2")
g = g1_gaps(3)
T3S = float(OPT.get("t3s", 2.4))
e = pin_vm(g, 4, [wd_load(12), wd_load(13)], T3S)
g.at(int(OPT.get("f1", 21)), flag3(1))
g.at(48, st_check(3))
g.fill(st_final(3), start=49, end=54)
g.at(e - 1, stq("t3 pre p0") + poll_check(S_P3, 7) + stq("t3 post p0") + p3_next())
pin_vm(g, e, h_loads(0), T3S)
g.at(int(OPT.get("p1", 47)), poll_issue(S_P3, 7))
g.at(52, res_read(2))
g.at(54, res_read(3))
e = g.fill(g1_epi(2), start=2, cap=float(OPT.get("cap3", 7)))
print("tile 3: epilogue ends at gap", e, "tail", len(g.tail))
gap_stamps(g, "t3")
P.add(g.out())
stamp("tile3")
P.add(waitq("wd9") + wd_read(4) + wd_read(5))
ep = g1_epi_pk(3)
h1 = h_loads(1)
NE = int(OPT.get("ne", 0))
PC1 = poll_check(S_P3, 7) + p3_next()
F2E = int(OPT.get("f2e", 45))
ins_ = [(F2E, flag3(2))] if F2E >= 0 else []
if NE:
    P.add(sprinkle(ep, ins_ + [(45, PC1)] + [(46 + 14 * i, h1[i]) for i in range(NE)]))
else:
    P.add(sprinkle(ep, ins_) + PC1)
stamp("epi3")

OA = [8, 48]
OA = [224, 96]
RT = 176


NRM = int(OPT.get("nrm", 6))


def g2_mfma(J):
    m = sub()
    seq = [(ft, rt) for ft in KORD for rt in range(4)]
    if J == 3:
        seq = seq[:4 * (14 - NRM)] + [(ft, rt) for rt in range(4) for ft in KORD[14 - NRM:]]
    for ft, rt in seq:
        if True:
            d = acc(OA[J & 1] + 4 * rt, 4)
            c = "0" if ft == 0 else d
            m(f"v_mfma_f32_16x16x32_bf16 {d}, {wdr(ft,rt)}, {hreg(J,ft)}, {c}")
    return m.ins


RTMP = [28, 32, 36, 12]


def red_write(J):
    q = sub()
    for rt in range(4):
        q(f"ds_write_b128 {v(V_RW)}, {acc(OA[J&1]+4*rt,4)} offset:{(J&1)*R_SZ + rt*1152}")
    return q.ins


def red_bar():
    q = sub()
    q("s_waitcnt lgkmcnt(0)")
    q("s_barrier")
    return q.ins


def red_read(J):
    q = sub()
    for w in range(4):
        q(f"ds_read_b128 {v(RTMP[w],4)}, {v(V_RR)} offset:{(J&1)*R_SZ + w*4608}")
    return q.ins


def red_fin(J):
    q = sub()
    a, b, c, d = RTMP
    for i in range(2):
        q(f"v_lshlrev_b32 {v(16+2*i)}, 16, {v(RESR[J]+i)}")
        q(f"v_and_b32 {v(17+2*i)}, 0xffff0000, {v(RESR[J]+i)}")
    if J == 3 and "eps" not in OPT:
        for x, y in ((a, 16), (b, c), (a, d), (a, b)):
            for i in (0, 2):
                q(f"v_pk_add_f32 {v(x+i,2)}, {v(x+i,2)}, {v(y+i,2)}")
        for i in range(2):
            q(f"v_cvt_pk_bf16_f32 {v(20+i)}, {v(a+2*i)}, {v(a+2*i+1)}")
        q(f"s_mov_b32 s{S_T0}, {(1024*(J>>1) + 128*(J&1))*896}")
        q(f"buffer_store_dwordx2 v[20:21], {v(V_OST)}, {srd(SRD_OUT)}, s{S_T0} offen {OPT.get('ost', '').replace('_', ' ')}")
        return q.ins
    for i in range(4):
        q(f"v_add_f32 {v(a+i)}, {v(a+i)}, {v(b+i)}")
    for i in range(4):
        q(f"v_add_f32 {v(c+i)}, {v(c+i)}, {v(d+i)}")
    for i in range(4):
        q(f"v_add_f32 {v(a+i)}, {v(a+i)}, {v(16+i)}")
    for i in range(4):
        q(f"v_add_f32 {v(a+i)}, {v(a+i)}, {v(c+i)}")
    if "eps" in OPT:
        for i in range(4):
            q(f"v_mul_f32 {v(a+i)}, {f32(1.0+float(OPT['eps']))}, {v(a+i)}")
    for i in range(2):
        q(f"v_cvt_pk_bf16_f32 {v(20+i)}, {v(a+2*i)}, {v(a+2*i+1)}")
    q(f"s_mov_b32 s{S_T0}, {(1024*(J>>1) + 128*(J&1))*896}")
    q(f"buffer_store_dwordx2 v[20:21], {v(V_OST)}, {srd(SRD_OUT)}, s{S_T0} offen {OPT.get('ost', '').replace('_', ' ')}")
    return q.ins


for J in range(4):
    g = Gaps(g2_mfma(J), 2)
    if J > 0:
        pin_spread(g, 4, red_write(J - 1), per=1)
        g.at(16, red_bar())
        pin_spread(g, 17, red_read(J - 1), per=1)
        rf = red_fin(J - 1)
        e = g.fill(rf[:-1], start=26)
        g.at(e + 1, rf[-1:])
    if J == 0:
        pin_vm(g, 0, h1[NE:], float(OPT.get("hs1", 3)))
        if F2E < 0:
            g.at(int(OPT.get("f2", 2)), flag3(2))
        C2 = int(OPT.get("c2", 54))
        h2 = h_loads(2)
        n2 = 0
        if C2 < 56:
            g.at(C2, poll_check2(S_P3, 7, 23, "1", f"s{S_E14}") + p3_next())
            n2 = int((55 - C2) / 3.5) + 1
            pin_vm(g, C2, h2[:n2], 3.5)
        for i, x in enumerate(wd_read(6) + wd_read(7) + wd_read(8) + wd_read(9)):
            g.at(1 + 2 * i, [x])
        g.at(int(OPT.get("p2a", 12)), poll_issue(S_P3, 7))
        g.at(int(OPT.get("p2b", 30)), poll_issue(S_P3, 23))
        g.at(int(OPT.get("f3", 36)), flag3(3))
        bq = sub()
        bq.wait("res3")
        bq("s_barrier")
        g.at(52, bq.ins)
    if J == 1:
        if C2 >= 56:
            g.at(C2 - 56, poll_check2(S_P3, 7, 23, "1", f"s{S_E14}") + p3_next())
        pin_vm(g, max(C2 - 56, 1), h2[n2:], float(OPT.get("hs", 3.5)))
        g.at(int(OPT.get("p3a", 8)), poll_issue(S_P3, 7))
        g.at(int(OPT.get("p3b", 26)), poll_issue(S_P3, 23))
        C3 = int(OPT.get("c3", 50))
        g.at(C3, poll_check2(S_P3, 7, 23, "1", f"s{S_E14}"))
        h3 = h_loads(3)
        n3 = (55 - C3) // 3
        pin_vm(g, C3 + 1, h3[:n3], 3)
    if J == 2:
        pin_vm(g, 0, h3[n3:], float(OPT.get("hs3", 2)))
    if J == 3:
        rw3 = red_write(3)
        for i in range(3):
            g.at(min(55 - NRM * (3 - i) + 8, 55), [rw3[i]])
    P.add(g.out())
    stamp(f"g2 tile{J}")
P.add(rw3[3:])
P.add(red_bar())
P.add(red_read(3))
P.add(red_fin(3))
stamp("end")

if "hold" in OPT:
    if "cls" in OPT:
        P(f"s_and_b32 s98, s{S_W}, 7")
        P(f"s_cmp_lg_u32 s98, {OPT['cls']}")
        P("s_cbranch_scc1 L_fin")
    P("L_hold:")
    P("s_memrealtime s[98:99]")
    P("s_waitcnt lgkmcnt(0)")
    P("s_sub_u32 s98, s98, s100")
    P("s_cmp_lt_u32 s98, 4000")
    P("s_cbranch_scc1 L_hold")
P("L_fin:")
if STAMPS:
    P(f"s_lshl_b32 s{S_T0}, s{S_W}, 2")
    P(f"s_add_u32 s{S_T0}, s{S_T0}, s{S_V}")
    P(f"s_lshl_b32 s{S_T0}, s{S_T0}, 8")
    P(f"s_add_u32 s{S_T0}, s{S_T0}, {WS_DBG + 0x800000}")
    P(f"v_lshlrev_b32 v4, 2, v1")
    P(f"buffer_store_dword v255, v4, {srd(SRD_WS)}, s{S_T0} offen")
if "dbgout" in OPT:
    P(f"s_cmp_ge_u32 s{S_W}, 224")
    P("s_cbranch_scc1 L_end")
    P(f"v_readlane_b32 s{S_T0}, v255, 0")
    P(f"s_not_b32 s{S_T0}, s{S_T0}")
    P(f"v_writelane_b32 v255, s{S_T0}, 15")
    P("s_mov_b64 exec, 0xffff")
    P(f"v_lshlrev_b32 v4, 2, v1")
    P("global_atomic_umax v4, v255, s[60:61]")
P("L_end:")
P("s_endpgm")

if "jit" in OPT:
    import random
    rnd = random.Random(int(OPT["jit"]))

    def jitter():
        q = sub()
        lb = label("jit")
        q.raw(f"s_lshl2_add_u32 s98, s{S_W}, s{S_V}")
        q.raw(f"s_mul_i32 s98, s98, {rnd.randrange(1, 1 << 30) | 1}")
        q.raw(f"s_bfe_u32 s98, s98, {hex((3 << 16) | rnd.randrange(12, 28))}")
        q.raw("s_cmp_lt_u32 s98, 6")
        q.raw(f"s_cbranch_scc1 {lb}")
        q.raw(f"s_sleep {rnd.choice([3, 10, 25, 60])}")
        q(f"{lb}:")
        return q.ins

    for prog in (P, SP):
        out_ = []
        started = prog is SP
        for k, i in enumerate(prog.ins):
            if i.text == "; @ x arrived":
                started = True
            nxt = prog.ins[k + 1] if k + 1 < len(prog.ins) else None
            safe = started and not i.cond and nxt is not None and not nxt.cond and i.cls in ("mfma", "ds", "vmem", "valu") and not i.mn.startswith("v_cmp")
            if started and i.mn == "s_barrier":
                out_ += jitter() + [i] + jitter()
            elif safe and rnd.random() < 0.012:
                out_ += [i] + jitter()
            else:
                out_.append(i)
        prog.ins = out_
XG = OPT.get("xg", "")
if XG:
    a_ = [k for k, i in enumerate(P.ins) if i.text == "; @ gemm1 start"][0]
    b_ = [k for k, i in enumerate(P.ins) if i.text == "; @ tile3"][0]
    seg = P.ins[a_:b_]
    if "w" in XG:
        seg = [i for i in seg if not (i.mn == "buffer_load_dwordx4" and (i.ops[0] == "v3" or i.ops[1] in ("v3", "v44")))]
    if "e" in XG:
        seg = [i for i in seg if not (i.cls in ("valu", "trans") and (i.wr & {f"v{r}" for r in range(EPT, EPT + 8)}))]
    if "b" in XG:
        seg = [i for i in seg if not (i.mn == "ds_read2st64_b32" and i.ops[1] == f"v{V_BR2}")]
    P.ins = P.ins[:a_] + seg + P.ins[b_:]
res = finalize(P.ins, verbose=True) + finalize(TAIL.ins) + finalize(SP.ins)
if "report" in OPT:
    report_waits(finalize(P.ins))
launch = f"; @launch kernel={KN} grid" if ("list" in OPT or STAMPS) else "; @launch grid"
hdr = f"""; Fused pre-LN S4D conv + GEGLU FFN in one persistent launch (emitted by my own generator script).
{launch}=(256,1,1) block=(256,1,1) lds={LDS_SIZE}
.amdgcn_target "amdgcn-amd-amdhsa--gfx950"
.text
.globl {KN}
.p2align 12
.p2align 8
.type {KN},@function
{KN}:
"""
ftr = f"""
.p2align 8
.fill 64, 4, 0xbf800000
L_codeend:
.section .rodata,"a"
.p2align 6
.amdhsa_kernel {KN}
  .amdhsa_next_free_vgpr 512
  .amdhsa_next_free_sgpr 102
  .amdhsa_accum_offset 256
  .amdhsa_group_segment_fixed_size 0
  .amdhsa_kernarg_size 112
  .amdhsa_user_sgpr_count 2
  .amdhsa_user_sgpr_kernarg_segment_ptr 1
  .amdhsa_system_sgpr_workgroup_id_x 1
.end_amdhsa_kernel
"""
body = text_of(res)
WALKS = ([("early", "L_main", "L_walk_back")] if "w2" in OPT else []) + [("walk", "L_walk_back", "L_fin")]
body = place_pads2(hdr, body, ftr, 0x300, WALKS)
open(OUTF, "w").write(hdr + body + ftr)
src = open(__file__).read()
a = src.index("# ---------------- workspace layout")
b = src.index("# ---------------- LDS layout")
open("layout.py", "w").write(src[a:b] + "\nSTAMP_NAMES = " + repr(stamp_names) + "\nSPIN_NAMES = " + repr(spin_names) + "\n")
```

```python
import re

REG_RE = re.compile(r"^(-|abs\()?([vas])(\d+|\[(\d+):(\d+)\])\)?$")
TRANS = ("v_exp_f32", "v_log_f32", "v_rcp_f32", "v_rsq_f32", "v_sqrt_f32", "v_sin_f32", "v_cos_f32")


def regs_of(tok):
    tok = tok.strip()
    if tok in ("vcc",):
        return {"vcc"}
    if tok in ("exec",):
        return {"exec"}
    if tok == "m0":
        return {"m0"}
    m = REG_RE.match(tok)
    if not m:
        return set()
    k = m.group(2)
    if m.group(4) is not None:
        return {f"{k}{i}" for i in range(int(m.group(4)), int(m.group(5)) + 1)}
    return {f"{k}{m.group(3)}"}


def split_ops(s):
    out, depth, cur = [], 0, ""
    for ch in s:
        if ch in "[(":
            depth += 1
        if ch in "])":
            depth -= 1
        if ch == "," and depth == 0:
            out.append(cur.strip())
            cur = ""
        else:
            cur += ch
    if cur.strip():
        out.append(cur.strip())
    return out


class Ins:
    __slots__ = ("text", "mn", "ops", "mods", "rd", "wr", "cls", "passes", "tok", "cond", "srcC", "srcAB", "extra")

    def __init__(self, text, tok=None, cond=False):
        self.text = text
        self.tok = tok
        self.cond = cond
        self.extra = None
        t = text.split(";")[0].strip()
        self.rd, self.wr = set(), set()
        self.passes = 0
        self.srcC = set()
        self.srcAB = set()
        if t.endswith(":") or t.startswith(".") or not t:
            self.mn, self.ops, self.mods, self.cls = t, [], "", "label" if t.endswith(":") else "dir"
            return
        parts = t.split(None, 1)
        mn = parts[0]
        rest = parts[1] if len(parts) > 1 else ""
        ops = split_ops(rest)
        mods = ""
        if ops:
            last = ops[-1].split(None, 1)
            if len(last) > 1 and not mn.startswith("s_waitcnt"):
                ops[-1] = last[0]
                mods = last[1]
        self.mn, self.ops, self.mods = mn, ops, mods
        base = re.sub(r"_(e32|e64|dpp|sdwa)$", "", mn)
        R = [regs_of(o) for o in ops]
        allr = lambda idx: set().union(*[R[i] for i in idx]) if idx else set()
        n = len(ops)
        if mn.startswith("v_mfma"):
            self.cls = "mfma"
            self.passes = 8 if "32x32x16" in mn else (4 if "16x16x32" in mn else 2)
            self.wr = R[0]
            self.srcAB = R[1] | R[2]
            self.srcC = R[3]
            self.rd = self.srcAB | self.srcC
        elif mn.startswith("v_"):
            self.cls = "valu"
            if base in TRANS:
                self.cls = "trans"
            if base.startswith("v_dot2"):
                self.cls = "dot"
            if base in ("v_swap_b32",) or base.startswith("v_permlane"):
                self.wr = R[0] | R[1]
                self.rd = R[0] | R[1]
                if base.startswith("v_permlane"):
                    self.extra = "permlane"
            elif base in ("v_add_co_u32", "v_sub_co_u32", "v_addc_co_u32", "v_subb_co_u32"):
                self.wr = R[0] | R[1]
                self.rd = allr(range(2, n))
            else:
                self.wr = R[0]
                self.rd = allr(range(1, n))
                if base in ("v_fmac_f32", "v_dot2c_f32_bf16", "v_writelane_b32") or "_dpp" in mn or "row_" in mods or "quad_perm" in mods:
                    self.rd |= R[0]
                if "_dpp" in mn or "row_" in mods or "quad_perm" in mods:
                    self.extra = "dpp"
                if base in ("v_readfirstlane_b32", "v_readlane_b32"):
                    self.extra = "readlane"
                if base.startswith("v_dot2"):
                    self.srcC = R[0] if base.startswith("v_dot2c") else R[3]
                    self.srcAB = R[1] | R[2]
        elif mn.startswith("ds_"):
            self.cls = "ds"
            if mn.startswith("ds_read") or mn.startswith("ds_bpermute") or mn.startswith("ds_swizzle"):
                self.wr = R[0]
                self.rd = allr(range(1, n))
                if "d16" in mn:
                    self.rd |= R[0]
            else:
                self.rd = allr(range(n))
            if "addtid" in mn:
                self.rd |= {"m0"}
                self.extra = "dma"
        elif mn.startswith("buffer_") or mn.startswith("global_"):
            self.cls = "vmem"
            islds = " lds" in (" " + mods)
            if "_load" in mn and not islds:
                self.wr = R[0]
                self.rd = allr(range(1, n))
            elif "_atomic" in mn and "sc0" in mods:
                self.wr = R[0]
                self.rd = allr(range(n))
            else:
                self.rd = allr(range(n))
                if islds:
                    self.rd |= {"m0"}
                    self.extra = "dma"
                elif "x4" in mn or "x3" in mn:
                    self.extra = "widestore"
        elif mn.startswith("s_load") or mn.startswith("s_mem"):
            self.cls = "smem"
            self.wr = R[0]
            self.rd = allr(range(1, n))
        elif mn.startswith("s_"):
            self.cls = "salu"
            if mn in ("s_waitcnt", "s_barrier", "s_nop", "s_endpgm", "s_sleep", "s_setprio") or mn.startswith("s_cbranch") or mn == "s_branch":
                self.cls = "ctl"
            elif mn.startswith("s_cmp") or mn.startswith("s_bitcmp"):
                self.rd = allr(range(n))
            else:
                self.wr = R[0]
                self.rd = allr(range(1, n))
                if "saveexec" in mn:
                    self.wr |= {"exec"}
        else:
            raise ValueError("unknown instruction: " + text)

    def states(self):
        if self.cls in ("label", "dir"):
            return 0
        if self.mn == "s_nop":
            return int(self.ops[0]) + 1
        return 1


def need_states(p, c):
    n = 0
    pv = p.cls in ("valu", "trans", "dot")
    cv = c.cls in ("valu", "trans", "dot")
    if pv:
        vw = {r for r in p.wr if r[0] in "va" and r != "vcc"}
        sw = {r for r in p.wr if r[0] == "s" or r == "vcc"}
        if c.cls == "mfma" and vw & c.rd:
            n = max(n, 2)
        if c.extra == "dpp" and vw & c.rd:
            n = max(n, 2)
        if c.extra == "permlane" and vw & c.rd:
            n = max(n, 2)
        if c.extra == "readlane" and vw & c.rd:
            n = max(n, 1)
        if sw & c.rd:
            if cv:
                n = max(n, 4 if c.extra == "readlane" else 2)
            if c.cls == "vmem":
                n = max(n, 5)
        if p.cls == "trans" and vw & c.rd and c.cls != "trans":
            n = max(n, 1)
        if p.cls == "dot":
            if c.cls == "dot" and c.mn == p.mn:
                if vw & c.srcAB:
                    n = max(n, 3)
            elif vw & (c.rd | c.wr):
                n = max(n, 3)
    if p.cls == "mfma":
        P = p.passes
        long = {2: 5, 4: 8, 8: 12}[P]
        if c.cls == "mfma":
            if p.wr & c.srcAB:
                n = max(n, long)
            if p.wr & c.srcC:
                if p.wr == c.srcC and c.passes == P:
                    n = max(n, 2 if P == 2 else 0)
                else:
                    n = max(n, P + 2)
            elif p.wr & c.wr:
                n = max(n, P + 2)
        elif p.wr & (c.rd | c.wr):
            n = max(n, long)
        if cv and p.srcC & c.wr:
            n = max(n, {2: 1, 4: 3, 8: 7}[P])
    if p.extra == "widestore":
        data = regs_of(p.ops[0]) if p.mn.startswith("buffer_") else regs_of(p.ops[1])
        if data & c.wr:
            n = max(n, 2)
    if p.cls == "salu" and "m0" in p.wr and c.extra == "dma":
        n = max(n, 1)
    return n


class Prog:
    def __init__(self):
        self.ins = []
        self._cond = False

    def __call__(self, text, tok=None):
        for line in text.split("\n"):
            line = line.strip()
            if not line or (line.startswith(";") and not line.startswith("; @")):
                continue
            self.ins.append(Ins(line, tok=tok, cond=self._cond))

    def raw(self, text):
        i = Ins(".raw")
        i.text = "    " + text
        self.ins.append(i)

    def add(self, lst):
        for i in lst:
            self.ins.append(i)

    def cond(self, on):
        self._cond = on

    def wait(self, tok):
        i = Ins("s_waitcnt auto", cond=self._cond)
        i.extra = ("wait", tok)
        self.ins.append(i)

    def lds_fence(self):
        self("s_waitcnt lgkmcnt(0)")


def sub():
    return Prog()


def interleave(main, fill, start=0, every=None, weights=None):
    idx = [k for k, i in enumerate(main) if i.cls == "mfma"]
    idx = idx[start:]
    if not idx:
        return main + fill
    n = len(idx)
    cost = lambda i: 2 if i.cls == "trans" else (0 if (i.extra and isinstance(i.extra, tuple)) else 1)
    total = sum(cost(i) for i in fill)
    out = []
    fi = 0
    done = 0
    seen = 0
    for k, i in enumerate(main):
        out.append(i)
        if k in idx:
            seen += 1
            target = total * seen / n if every is None else min(total, every * seen)
            while fi < len(fill) and done + cost(fill[fi]) <= target + 1e-9:
                out.append(fill[fi])
                done += cost(fill[fi])
                fi += 1
    out += fill[fi:]
    return out


def finalize(ins, verbose=False, lg_age=None, vm_age=None):
    tm = {}
    t = nm = 0
    for i in ins:
        if i.cls == "mfma":
            t = max(t, nm)
            nm = t + 4 * i.passes
            tm[id(i)] = t
            t += 8
        else:
            tm[id(i)] = t
            t += 0 if i.cls in ("label", "dir") else (12 if i.cls == "vmem" else 8 if i.cls in ("ds", "trans") else 4)
    out = []
    vm = []
    lg = []
    smem_out = []

    def emit_wait(vmn=None, lgn=None, cond=False):
        parts = []
        if vmn is not None:
            parts.append(f"vmcnt({min(vmn, 62)})")
        if lgn is not None:
            parts.append(f"lgkmcnt({min(lgn, 14)})")
        w = Ins("s_waitcnt " + " ".join(parts), cond=cond)
        out.append(w)

    def younger(lst, k, cond):
        return sum(1 for j in lst[k + 1:] if (not j.cond) or cond)

    for i in ins:
        if isinstance(i.extra, tuple) and i.extra[0] == "wait":
            tok = i.extra[1]
            kv = max([k for k, j in enumerate(vm) if j.tok == tok], default=None)
            kl = max([k for k, j in enumerate(lg) if j.tok == tok], default=None)
            if kv is not None or kl is not None:
                emit_wait(None if kv is None else younger(vm, kv, i.cond), None if kl is None else younger(lg, kl, i.cond), i.cond)
                if not i.cond:
                    if kv is not None:
                        vm = vm[kv + 1:]
                    if kl is not None:
                        lg = lg[kl + 1:]
                else:
                    if kv is not None:
                        vm = [j for k, j in enumerate(vm) if not (k <= kv and j.cond)]
                    if kl is not None:
                        lg = [j for k, j in enumerate(lg) if not (k <= kl and j.cond)]
            continue
        if i.mn == "s_waitcnt":
            t = i.text
            m = re.search(r"vmcnt\((\d+)\)", t)
            if m:
                n = int(m.group(1))
                assert n == 0, "manual counted vmcnt not supported"
                vm = [] if not i.cond else [j for j in vm if not j.cond]
            m = re.search(r"lgkmcnt\((\d+)\)", t)
            if m:
                assert int(m.group(1)) == 0
                if not i.cond:
                    lg = []
                    smem_out = []
                else:
                    lg = [j for j in lg if not j.cond]
            out.append(i)
            continue
        touched = i.rd | i.wr
        for j in smem_out:
            assert not (j.wr & touched), f"use of SMEM result without lgkmcnt(0): {i.text}"
        kv = max([k for k, j in enumerate(vm) if j.wr & touched], default=None)
        kl = max([k for k, j in enumerate(lg) if j.wr & touched], default=None)
        if kl is not None and i.cls == "ds" and "d16" in i.mn and not (lg[kl].wr & (i.rd - i.wr)):
            kl = None
        if kl is not None and not any(j.cond for j in lg):
            kl = max(kl, len(lg) - 1 - 14)
            if lg_age is not None:
                while kl + 1 < len(lg) and tm[id(i)] - tm[id(lg[kl + 1])] >= lg_age:
                    kl += 1
        if kv is not None and vm_age is not None and not i.cond and not any(j.cond for j in vm):
            while kv + 1 < len(vm) and tm[id(i)] - tm[id(vm[kv + 1])] >= vm_age:
                kv += 1
        if kv is not None or kl is not None:
            if kl is not None and smem_out:
                emit_wait(None if kv is None else younger(vm, kv, i.cond), 0, i.cond)
                if not i.cond:
                    lg = []
                    smem_out = []
            else:
                emit_wait(None if kv is None else younger(vm, kv, i.cond), None if kl is None else younger(lg, kl, i.cond), i.cond)
            if not i.cond:
                if kv is not None:
                    vm = vm[kv + 1:]
                if kl is not None and lg:
                    lg = lg[kl + 1:]
            else:
                if kv is not None:
                    vm = [j for k, j in enumerate(vm) if not (k <= kv and j.cond)]
                if kl is not None:
                    lg = [j for k, j in enumerate(lg) if not (k <= kl and j.cond)]
        out.append(i)
        if i.cls == "vmem":
            vm.append(i)
            assert len(vm) <= 63, "too many outstanding vmem ops at " + i.text
        elif i.cls == "ds":
            lg.append(i)
        elif i.cls == "smem":
            smem_out.append(i)

    res = []
    nn = 0
    for i in out:
        if i.cls not in ("label", "dir", "ctl"):
            dist = 0
            need = 0
            for p in reversed(res):
                if dist >= 20:
                    break
                r = need_states(p, i)
                if r > dist:
                    need = max(need, r - dist)
                if not (p.cond and not i.cond):
                    dist += p.states()
            while need > 0:
                k = min(need, 16)
                res.append(Ins(f"s_nop {k-1}", cond=i.cond))
                nn += 1
                need -= k
        res.append(i)
    if verbose:
        print(f"instructions: {len(res)}, nops inserted: {nn}")
    return res


def text_of(res):
    return "\n".join((i.text if i.cls in ("label", "dir") else "    " + i.text) for i in res)


def cost(i):
    if isinstance(i.extra, tuple):
        return 1
    if i.cls == "trans" or i.mn.startswith("v_swap"):
        return 2
    if i.cls in ("label", "dir"):
        return 0
    if i.cls == "vmem":
        return 5 if "store_dwordx4" in i.mn else 3
    return 1


class Gaps:
    def __init__(self, mfmas, cap):
        self.m = mfmas
        self.n = len(mfmas)
        self.cap = cap
        self.pin = [[] for _ in mfmas]
        self.fil = [[] for _ in mfmas]
        self.tail = []

    def used(self, k):
        return sum(cost(i) for i in self.pin[k]) + sum(cost(i) for i in self.fil[k])

    def at(self, k, ins):
        self.pin[min(k, self.n - 1)] += list(ins)

    def fill(self, ins, start=0, end=None, cap=None):
        cap = self.cap if cap is None else cap
        end = self.n if end is None else end
        k = start
        for i in ins:
            while k < end and self.used(k) + cost(i) > cap:
                k += 1
            if k >= end:
                if end >= self.n:
                    self.tail.append(i)
                else:
                    self.fil[end - 1].append(i)
            else:
                self.fil[k].append(i)
        return k

    def out(self):
        o = []
        for k in range(self.n):
            o.append(self.m[k])
            o += self.pin[k]
            o += self.fil[k]
        return o + self.tail


def sprinkle(main, inserts):
    d = {}
    for k, l in inserts:
        d.setdefault(min(k, len(main)), []).extend(l)
    o = []
    for k, i in enumerate(main):
        o += d.get(k, [])
        o.append(i)
    o += d.get(len(main), [])
    return o


def report_waits(res, vm_min=1100, lg_min=120):
    t = 0
    nm = 0
    vm, lg = [], []
    mark = "start"
    for i in res:
        if i.cls == "dir" and i.text.startswith("; @"):
            print(f"--- t={t} {i.text}")
            continue
        if i.cls in ("label", "dir"):
            continue
        if i.cls == "mfma":
            t = max(t, nm)
            nm = t + 4 * i.passes
            t += 8
            continue
        if i.mn == "s_waitcnt":
            m = re.search(r"vmcnt\((\d+)\)", i.text)
            if m:
                n = int(m.group(1))
                if len(vm) > n:
                    tt, j = vm[len(vm) - n - 1]
                    if t - tt < vm_min:
                        print(f"   t={t} vm wait age {t-tt}: {j.text[:70]}")
                    vm = vm[len(vm) - n:] if n else []
            m = re.search(r"lgkmcnt\((\d+)\)", i.text)
            if m:
                n = int(m.group(1))
                if len(lg) > n:
                    tt, j = lg[len(lg) - n - 1]
                    if t - tt < lg_min:
                        print(f"   t={t} lgkm wait age {t-tt}: {j.text[:70]}")
                    lg = lg[len(lg) - n:] if n else []
            t += 4
            continue
        if i.cls == "vmem":
            vm.append((t, i))
            t += 12
        elif i.cls == "ds":
            lg.append((t, i))
            t += 8
        elif i.mn == "s_nop":
            t += 4 * i.states()
        else:
            t += 4 * cost(i)
    print(f"--- t={t} end")


NO_E64 = ("v_readfirstlane_b32", "v_swap_b32", "v_permlane32_swap_b32", "v_permlane16_swap_b32", "v_dot2c_f32_bf16",
          "v_accvgpr_mov_b32", "v_nop")


def align_pass(hdr, body, ftr, tmp="_al"):
    import subprocess
    open(tmp + ".s", "w").write(hdr + body + ftr)
    subprocess.run(["clang", "-x", "assembler", "-target", "amdgcn-amd-amdhsa", "-mcpu=gfx950", "-c", tmp + ".s", "-o", tmp + ".o"], check=True)
    dis = subprocess.run(["llvm-objdump", "-d", "--mcpu=gfx950", tmp + ".o"], capture_output=True, text=True, check=True).stdout
    sizes = []
    for l in dis.split("\n"):
        m = re.search(r"// [0-9A-F]{12}: ((?:[0-9A-F]{8} ?)+)", l)
        if m:
            sizes.append(4 * len(m.group(1).split()))
    lines = body.split("\n")
    idx = [k for k, l in enumerate(lines) if l.startswith("    ") and not l.strip().startswith((";", "."))]
    sizes = sizes[:len(idx)]
    n = len(idx)
    alt = []
    for k, sz in zip(idx, sizes):
        t = lines[k].split(None, 1)
        mn = t[0]
        ops = [o.strip() for o in t[1].split(",")] if len(t) > 1 else []
        a_ = None
        if sz == 4 and mn.startswith("v_") and mn not in NO_E64 and not mn.endswith(("_e64", "_dpp", "_sdwa")):
            a_ = f"    {mn}_e64 {t[1]}"
        elif sz == 4 and mn == "s_mov_b32" and ops[0] == "m0" and ops[1].startswith("s"):
            a_ = f"    s_and_b32 m0, {ops[1]}, 0x7fffffff"
        elif sz == 4 and mn == "s_add_u32" and ops[0] == "m0" and ops[2] == "0":
            a_ = f"    s_and_b32 m0, {ops[1]}, 0x7fffffff"
        elif sz == 8 and mn == "s_mov_b32" and re.fullmatch(r"\d+", ops[1]) and int(ops[1]) < 32768 and ops[0].startswith("s"):
            a_ = f"    s_movk_i32 {ops[0]}, {ops[1]}"
        elif sz == 8 and mn == "s_add_u32" and ops[0] == ops[1] and re.fullmatch(r"\d+", ops[2]) and int(ops[2]) < 32768:
            a_ = f"    s_addk_i32 {ops[0]}, {ops[2]}"
        alt.append(a_)
    INF = 1e18
    cost = [0.0, INF]
    back = []
    for i in range(n):
        nc = [INF, INF]
        bk = [None, None]
        for par in (0, 1):
            if cost[par] >= INF:
                continue
            opts = [(sizes[i], 0.0)] + ([(12 - sizes[i], 0.05)] if alt[i] else [])
            for sz, pen in opts:
                c = cost[par] + pen + (1.0 if (sz == 8 and par == 1) else 0.0)
                np_ = (par + sz // 4) % 2
                if c < nc[np_]:
                    nc[np_] = c
                    bk[np_] = (par, sz)
        cost = nc
        back.append(bk)
    par = 0 if cost[0] <= cost[1] else 1
    total = cost[par]
    wid = 0
    for i in range(n - 1, -1, -1):
        pp, sz = back[i][par]
        if sz != sizes[i]:
            lines[idx[i]] = alt[i]
            wid += 1
        par = pp
    par, base = 0, 0
    for sz in sizes:
        base += (sz == 8 and par == 1)
        par = (par + sz // 4) % 2
    print(f"align: misaligned {base} -> {int(total - 0.05 * wid + 0.5)}, widened {wid}")
    return "\n".join(lines)


def _sizes(hdr, body, ftr, tmp="_al"):
    import subprocess
    open(tmp + ".s", "w").write(hdr + body + ftr)
    subprocess.run(["clang", "-x", "assembler", "-target", "amdgcn-amd-amdhsa", "-mcpu=gfx950", "-c", tmp + ".s", "-o", tmp + ".o"], check=True)
    dis = subprocess.run(["llvm-objdump", "-d", "--mcpu=gfx950", tmp + ".o"], capture_output=True, text=True, check=True).stdout
    sizes = []
    for l in dis.split("\n"):
        m = re.search(r"// [0-9A-F]{12}: ((?:[0-9A-F]{8} ?)+)", l)
        if m:
            sizes.append(4 * len(m.group(1).split()))
    lines = body.split("\n")
    idx = [k for k, l in enumerate(lines) if l.startswith("    ") and not l.strip().startswith((";", "."))]
    return lines, idx, sizes[:len(idx)]


def place_pads(hdr, body, ftr, base, first_label, end_label, nchain=4, align=True):
    src = body.split("\n")
    pos = None
    for it in range(12):
        cur = list(src)
        if pos is not None:
            n = len(pos)
            for k in range(n - 1, -1, -1):
                tgt = f"L_pad{k+nchain}" if k + nchain < n else "L_walk_back"
                cur[pos[k]:pos[k]] = [f"L_pad{k}:", f"    s_cbranch_execz {tgt}"]
            heads = [f".set L_walk{c}, " + (f"L_pad{c}" if c < n else "L_walk_back") for c in range(nchain)]
        else:
            heads = [f".set L_walk{c}, L_walk_back" for c in range(nchain)]
        text = "\n".join(cur + heads)
        if align:
            text = align_pass(hdr, text, ftr)
        lines, idx, sizes = _sizes(hdr, text, ftr)
        off = {}
        a = base
        for k, sz in zip(idx, sizes):
            off[k] = a
            a += sz
        lo = lines.index(first_label + ":")
        hi = lines.index(end_label + ":")
        pads = [k + 1 for k, l in enumerate(lines) if l.startswith("L_pad")]
        pages = [p for p in range(0, a // 4096 + 1) if off[min(k for k in idx if k > lo)] < p * 4096 < off[max(k for k in idx if k < hi)] - 128]
        if pos is not None and len(pads) == len(pages) and all(0 <= off[k] - p * 4096 < 56 for k, p in zip(pads, pages)):
            print("pads at", [off[k] - p * 4096 for k, p in zip(pads, pages)])
            return text
        back = {}
        j = 0
        for k, l in enumerate(lines[:len(cur)]):
            if l.startswith("L_pad") or (k > 0 and lines[k - 1].startswith("L_pad")):
                continue
            back[k] = j
            j += 1
        pos = []
        for p in pages:
            k = min(k for k in idx if k in back and off[k] >= p * 4096 + 16 and not lines[k].strip().startswith(("s_cbranch", "s_cselect")))
            pos.append(back[k])
    raise RuntimeError("pad placement did not converge")


def place_pads2(hdr, body, ftr, base, walks, nchain=4):
    src = body.split("\n")
    pos = None
    for it in range(16):
        cur = list(src)
        heads = []
        if pos is not None:
            per = {}
            for k, (ln, w) in enumerate(pos):
                per.setdefault(w, []).append(k)
            for k in range(len(pos) - 1, -1, -1):
                ln, w = pos[k]
                j = per[w].index(k)
                tgt = f"L_pad{per[w][j+nchain]}" if j + nchain < len(per[w]) else f"L_{walks[w][0]}_back"
                cur[ln:ln] = [f"L_pad{k}:", f"    s_cbranch_execz {tgt}"]
            for w, (name, _, _) in enumerate(walks):
                l = per.get(w, [])
                heads += [f".set L_{name}{c}, " + (f"L_pad{l[c]}" if c < len(l) else f"L_{name}_back") for c in range(nchain)]
        else:
            for name, _, _ in walks:
                heads += [f".set L_{name}{c}, L_{name}_back" for c in range(nchain)]
        text = align_pass(hdr, "\n".join(cur + heads), ftr)
        lines, idx, sizes = _sizes(hdr, text, ftr)
        off = {}
        a = base
        for k, sz in zip(idx, sizes):
            off[k] = a
            a += sz
        pages = []
        for w, (name, fl, el) in enumerate(walks):
            lo, hi = lines.index(fl + ":"), lines.index(el + ":")
            pages += [(p, w) for p in range(0, a // 4096 + 1) if off[min(k for k in idx if k > lo)] < p * 4096 < off[max(k for k in idx if k < hi)] - 160]
        pads = [k + 1 for k, l in enumerate(lines) if l.startswith("L_pad")]
        if pos is not None and len(pads) == len(pages) and all(0 <= off[k] - p * 4096 < 56 for k, (p, w) in zip(pads, pages)):
            print("pads at", [(w, off[k] - p * 4096) for k, (p, w) in zip(pads, pages)])
            return text
        back = {}
        j = 0
        for k, l in enumerate(lines[:len(cur)]):
            if l.startswith("L_pad") or (k > 0 and lines[k - 1].startswith("L_pad")):
                continue
            back[k] = j
            j += 1
        pos = []
        for p, w in pages:
            k = min(k for k in idx if k in back and off[k] >= p * 4096 + 16 and not lines[k].strip().startswith(("s_cbranch", "s_cselect")))
            pos.append((back[k], w))
    raise RuntimeError("pad placement did not converge")
```

```python
import sys, math, struct
from asmgen import *

NAME = "sequential_preLN__ssm_conv_s4d__geglu_ffn__prompt"
KN = NAME + "_kernel"
OPT = {}
for a in sys.argv[1:]:
    k, _, val = a.partition("=")
    OPT[k] = val if val else True
STAMPS = "stamps" in OPT
OUTF = OPT.get("out", "k19.s")
OPT.setdefault("pfpos", "300,300")
OPT.setdefault("pa3", "84")
OPT.setdefault("w2", "b")


def f32(x):
    return "0x%08x" % struct.unpack("<I", struct.pack("<f", x))[0]


FS = 4
FREP = 0x9000
WS_EPOCH = 0
WS_F1 = 0x8000
WS_S2 = 0x58000
S2REP = 0x5000
WS_C = 0x80000
WS_UX = 0xD0000
WS_P = WS_UX + 256 * 14336
PROW = 4352
PGEN = 224 * PROW
WS_H = WS_P + 2 * PGEN
WS_WF = WS_H + 16 * 4 * 56 * 2048
WS_END = WS_WF + 392 * 4096
WS_DBG = 0x1000000
WS_SIZE = 0x2000000
LAYOUT = 5

CS = 4160
TAB_W = 14592
TAB_ROW = 272
L_KC = 58368
L_UX = 75008
L_EX = 0
L_RING = 98304
L_ACT = [0, 65536]
L_F = 131072
L_R = 65536
R_SZ = 18432
LDS_SIZE = 163840

S_W = 2
S_V = 4
S_T0, S_T1, S_T2, S_T3 = 5, 6, 7, 3
SRD_X, SRD_WS, SRD_WG, SRD_WU, SRD_WD, SRD_OUT = 8, 12, 16, 20, 24, 28
S_NONCE = 32
S_CNT = 33
S_EX = 34
S_PR, S_DSK = 64, 65
S_TB, S_FB, S_FH, S_DB = 66, 67, 68, 69
S_A, S_B, S_C, S_D = 70, 72, 74, 76
S_RING = 78
S_WOFF = 79
S_K0 = 80
S_TAB = 81
S_F3 = 82
S_F1, S_F2 = 83, 84
S_M255 = 86
S_FW, S_R2 = 88, 89
S_ACTW = 90
S_UXO = 91
S_PFB = 88
S_HR = 36
S_PA, S_P4, S_P3, S_PST, S_AB, S_WFB = 40, 41, 42, 43, 44, 45
S_E28, S_E14, S_CI = 46, 47, 85
S_F1L = 95
S_TCH = 50
S_UXM = 92
S_REP = 94
S_PERM = 93
S_STAMP = 96


def srd(n):
    return f"s[{n}:{n+3}]"


def v(n, w=1):
    return f"v{n}" if w == 1 else f"v[{n}:{n+w-1}]"


def acc(n, w=1):
    return f"a{n}" if w == 1 else f"a[{n}:{n+w-1}]"


P = Prog()
TAIL = Prog()
nstamp = [0]
stamp_names = []
spin_names = []
LITE = ("start", "conv start", "genA stored", "gemm1 start", "tile3", "end")
if "dbgout" in OPT:
    LITE = ("start", "x arrived", "ln1 done", "kgen r1", "conv start", "genA stored", "gemm1 start", "tile1", "tile3", "end")


def stamp(name, p=None):
    p = P if p is None else p
    p(f"; @ {name}")
    if OPT.get("hold", "").replace("_", " ") == name:
        p(f"s_memrealtime s[100:101]")
        p("s_waitcnt lgkmcnt(0)")
    if STAMPS and ("lite" not in OPT or name in LITE):
        k = nstamp[0]
        assert k < 32
        p(f"s_memrealtime s[{S_STAMP}:{S_STAMP+1}]")
        p(f"s_memtime s[{S_STAMP+2}:{S_STAMP+3}]")
        p("s_waitcnt lgkmcnt(0)")
        p(f"v_writelane_b32 v255, s{S_STAMP}, {k}")
        p(f"v_writelane_b32 v255, s{S_STAMP+2}, {32+k}")
        nstamp[0] += 1
        stamp_names.append(name)


def stq(name):
    q = sub()
    if "dbg" in OPT:
        stamp(name, q)
    return q.ins


lblc = [0]


def label(prefix):
    lblc[0] += 1
    return f"L_{prefix}_{lblc[0]}"


def poll_issue(what, vtmp):
    q = sub()
    q(f"v_mov_b32 {v(vtmp)}, 0")
    if what == "F1":
        q(f"buffer_atomic_add {v(vtmp)}, {v(V_F1)}, {srd(SRD_WS)}, 0 offen sc0")
    else:
        q(f"buffer_atomic_add {v(vtmp)}, {v(V_PM if what == S_PA else V_P1)}, {srd(SRD_WS)}, s{what} offen sc0")
    return q.ins


def poll_first(tag, what, vtmp):
    if tag in OPT.get("pld", ""):
        q = sub()
        q(f"buffer_load_dword {v(vtmp)}, {v(V_PM if what == S_PA else V_P1)}, {srd(SRD_WS)}, s{what} offen sc1")
        return q.ins
    return poll_issue(what, vtmp)


def spin(t, name, done, reissue, vtag, sleep=2, exp=None):
    t(f"{name}:")
    t(f"s_mov_b32 s{S_CNT}, 0")
    t(f"{name}_l:")
    t("s_mov_b64 exec, vcc")
    t(f"s_sleep {sleep}")
    t.add(reissue)
    t("s_waitcnt vmcnt(0)")
    t(f"v_cmp_ne_u32 vcc, {exp or f's{S_NONCE}'}, {v(vtag)}")
    t("s_mov_b64 exec, -1")
    if STAMPS and "lite" in OPT:
        spin_names.append(name)
        t(f"s_add_u32 s{S_STAMP}, s{S_CNT}, 1")
        t(f"v_writelane_b32 v255, s{S_STAMP}, {10+len(spin_names)-1}")
    t(f"s_cbranch_vccz {done}")
    t(f"s_add_u32 s{S_CNT}, s{S_CNT}, 1")
    t(f"s_cmp_lt_u32 s{S_CNT}, 0x40000")
    t(f"s_cbranch_scc1 {name}_l")
    t(f"s_branch {done}")


def poll_check(what, vtmp):
    q = sub()
    slow, done = label("slow"), label("pdone")
    exp = f"s{S_NONCE}" if what == "F1" else (f"s{S_E14}" if what == S_P3 else f"s{S_E28}")
    q(f"v_cmp_ne_u32 vcc, {exp}, {v(vtmp)}")
    if what == "F1":
        q(f"s_cbranch_vccnz {slow}")
    else:
        q(f"s_and_b64 vcc, vcc, {3 if what == S_PA else 1}")
        q(f"s_cbranch_scc1 {slow}")
    q(f"{done}:")
    spin(TAIL, slow, done, poll_issue(what, vtmp), vtmp, exp=exp, sleep=1)
    return q.ins


def poll_check2(vaddr, v1, v2, mask, exp):
    q = sub()
    slow, done = label("slow"), label("pdone")
    q(f"v_cmp_ne_u32 vcc, {exp}, {v(v1)}")
    q(f"s_and_b64 vcc, vcc, {mask}")
    q(f"s_cbranch_scc0 {done}")
    q.cond(True)
    q(f"v_cmp_ne_u32 vcc, {exp}, {v(v2)}")
    q(f"s_and_b64 vcc, vcc, {mask}")
    q(f"s_cbranch_scc1 {slow}")
    q.cond(False)
    q(f"{done}:")
    spin(TAIL, slow, done, poll_issue(vaddr, v1), v1, exp=exp, sleep=1)
    return q.ins


def poll_checkn(what, regs, mask, exp):
    q = sub()
    slow, done = label("slow"), label("pdone")
    for k, r in enumerate(regs):
        q(f"v_cmp_ne_u32 vcc, {exp}, {v(r)}")
        q(f"s_and_b64 vcc, vcc, {mask}")
        q(f"s_cbranch_scc0 {done}" if k < len(regs) - 1 else f"s_cbranch_scc1 {slow}")
        q.cond(True)
    q.cond(False)
    q(f"{done}:")
    spin(TAIL, slow, done, poll_issue(what, regs[0]), regs[0], exp=exp, sleep=1)
    return q.ins


def setflag(p, soff):
    if "fst" in OPT:
        p(f"buffer_store_dword {v(V_NONCE)}, {v(V_FLG)}, {srd(SRD_WS)}, s{soff} offen sc1")
    else:
        p(f"buffer_atomic_swap {v(V_NONCE)}, {v(V_FLG)}, {srd(SRD_WS)}, s{soff} offen")


def addcnt(p, soff, vl):
    p(f"buffer_atomic_add {v(V_NONCE)}, {v(vl)}, {srd(SRD_WS)}, s{soff} offen")


def lanes_reg(p, dst, n, sh, t1=4):
    p(f"v_and_b32 {v(t1)}, {64-n}, {v(V_LANE)}")
    p(f"v_lshlrev_b32 {v(t1)}, 25, {v(t1)}")
    p(f"v_lshl_add_u32 {v(dst)}, {v(V_LANE)}, {sh}, {v(t1)}")


def walk(name):
    P.raw("s_mov_b64 exec, 0")
    for c in range(3):
        P.raw(f"s_cmp_eq_u32 s{S_V}, {c}")
        P.raw(f"s_cbranch_scc1 L_{name}{c}")
    P.raw(f"s_branch L_{name}3")
    P(f"L_{name}_back:")
    P.raw("s_mov_b64 exec, -1")


def waitq(tok):
    q = sub()
    q.wait(tok)
    return q.ins


def cmul(p, z, x, y):
    p(f"v_pk_mul_f32 {v(z,2)}, {v(x,2)}, {v(y,2)} op_sel:[0,0] op_sel_hi:[0,1]")
    p(f"v_pk_fma_f32 {v(z,2)}, {v(x,2)}, {v(y,2)}, {v(z,2)} op_sel:[1,1,0] op_sel_hi:[1,0,1] neg_lo:[1,0,0]")


def round_bf16(p, dst, src):
    p(f"v_cvt_pk_bf16_f32 {v(dst)}, {v(src)}, {v(src)}")
    p(f"v_and_b32 {v(dst)}, 0xffff0000, {v(dst)}")


V_LANE, V_NONCE, V_L16 = 1, 2, 3
V_FLG = 8
V_W = 9
V_TRA = 13
V_TA, V_TB, V_TW = 14, 15, 16
GA = 17
V_F1, V_UXL = 26, 27
V_KA = 28
V_UA = 32
V_EU, V_EXP, V_EXW, V_EXR, V_FL2 = 36, 37, 38, 39, 40
V_GW, V_GX, V_GR, V_S3, V_DSK = 240, 241, 242, 243, 244
V_EU1 = 41
V_DT = 42
V_PM = 43
V_P1 = 252
PR = 44
V_PF = 254

LOG2E = 1.4426950408889634

if OPT.get("hold") == "entry" or "entry" in OPT:
    P("s_memrealtime s[100:101]")
P(f"s_cmp_ge_u32 s{S_W}, 256")
P("s_cbranch_scc1 L_end")
P(f"s_load_dwordx16 s[36:51], s[0:1], 0")
if "ksplit" not in OPT:
    P(f"s_load_dwordx8 s[52:59], s[0:1], 64")
    P(f"s_load_dwordx4 s[60:63], s[0:1], 96")
if "nocpf" not in OPT:
    P(f"s_getpc_b64 s[{S_B}:{S_B+1}]")
    P("L_pc:")
    P(f"s_bfe_u32 s{S_T2}, s{S_W}, 0x30003")
    P(f"s_mul_i32 s{S_T2}, s{S_T2}, ((L_codeend-L_pc)/1024)*128")
    P(f"v_cmp_gt_u32 vcc, (L_codeend-L_pc)/1024, v0")
    P(f"s_add_u32 s{S_B}, s{S_B}, s{S_T2}")
    P(f"s_addc_u32 s{S_B+1}, s{S_B+1}, 0")
    P(f"v_lshlrev_b32 v6, 7, v0")
    P(f"s_and_saveexec_b64 s[{S_A}:{S_A+1}], vcc")
    P("s_cbranch_execz L_nocpf")
    P.cond(True)
    P(f"v_mov_b32 v7, s{S_B+1}")
    P(f"v_add_co_u32 v6, vcc, s{S_B}, v6")
    P(f"v_addc_co_u32 v7, vcc, 0, v7, vcc")
    P(f"global_load_dword v251, v[6:7], off")
    P.cond(False)
    P("L_nocpf:")
    P("s_mov_b64 exec, -1")
if STAMPS:
    P("v_mov_b32 v255, 0")
P(f"v_and_b32 {v(V_LANE)}, 63, v0")
P(f"v_lshrrev_b32 v4, 6, v0")
P(f"v_lshlrev_b32 {v(V_L16)}, 4, {v(V_LANE)}")
P(f"v_readfirstlane_b32 s{S_V}, v4")
P(f"v_mov_b32 v5, 0x7ff00000")
P(f"v_cmp_gt_u32 vcc, 56, {v(V_LANE)}")
P(f"s_lshl_b32 s{S_T0}, s{S_W}, 2")
P(f"s_add_u32 s{S_T0}, s{S_T0}, s{S_V}")
P(f"v_cndmask_b32 v4, v5, {v(V_L16)}, vcc")
P(f"s_mul_i32 s{S_T0}, s{S_T0}, 1792")
PB = sub()
PB(f"s_and_b32 s{S_T1}, s{S_W}, 7")
PB(f"s_mul_i32 s{S_T1}, s{S_T1}, 28")
PB(f"s_lshr_b32 s{S_T2}, s{S_W}, 3")
PB(f"s_add_u32 s{S_T1}, s{S_T1}, s{S_T2}")
PB(f"s_min_u32 s{S_PR}, s{S_T1}, 223")
PB(f"s_lshl_b32 s{S_T2}, s{S_PR}, 10")
PB(f"v_lshl_add_u32 v6, v0, 2, s{S_T2}")
PB(f"v_mov_b32 v7, 0")
PB(f"s_lshl_b32 s{S_T1}, s{S_PR}, 2")
PB(f"v_mov_b32 v56, s{S_T1}")
PB(f"s_mov_b32 s{SRD_WS+2}, {WS_SIZE}")
PB(f"s_mov_b32 s{SRD_WS+3}, 0x00020000")
if "short" not in OPT:
    P.add(PB.ins)
P(f"s_mov_b32 s{SRD_X+2}, 1835008")
P(f"s_mov_b32 s{SRD_X+3}, 0x00020000")
P("s_waitcnt lgkmcnt(0)")
stamp("start")
if "entry" in OPT:
    P("v_writelane_b32 v255, s100, 0")
P(f"s_mov_b64 s[{SRD_X}:{SRD_X+1}], s[36:37]")
XR = 48
P(f"buffer_load_dwordx4 {v(XR,4)}, v4, {srd(SRD_X)}, s{S_T0} offen")
P(f"buffer_load_dwordx4 {v(XR+4,4)}, v4, {srd(SRD_X)}, s{S_T0} offen offset:896")
if "short" in OPT:
    P.add(PB.ins)
if "ksplit" in OPT:
    P(f"s_load_dwordx8 s[52:59], s[0:1], 64")
    P(f"s_load_dwordx4 s[60:63], s[0:1], 96")
for r, src, sz in ((SRD_WG, 52, 1605632), (SRD_WU, 54, 1605632), (SRD_WD, 56, 1605632), (SRD_OUT, 58, 1835008)):
    P(f"s_mov_b32 s{r+2}, {sz}")
    P(f"s_mov_b32 s{r+3}, 0x00020000")
P(f"v_cmp_lt_u32 vcc, {int(OPT.get('nrep', 4))+1}, {v(V_LANE)}")
P(f"v_mul_u32_u24 v4, {FREP}, {v(V_LANE)}")
P(f"s_lshr_b32 s{S_T0}, s{S_W}, 3")
P(f"s_mul_i32 s{S_T1}, s{S_T0}, 37")
P(f"v_cndmask_b32 {v(V_FLG)}, v4, v5, vcc")
P(f"s_lshr_b32 s{S_T1}, s{S_T1}, 8")
P(f"s_mul_i32 s{S_T2}, s{S_T1}, 7")
P(f"s_sub_u32 s{S_DB}, s{S_T0}, s{S_T2}")
P(f"s_and_b32 s{S_FH}, s{S_W}, 1")
P(f"s_and_b32 s{S_T2}, s{S_W}, 6")
P(f"s_lshl_b32 s{S_T2}, s{S_T2}, 1")
P(f"s_add_u32 s{S_TB}, s{S_T2}, s{S_T1}")
P(f"s_mul_i32 s{S_FB}, s{S_FH}, 7")
P(f"s_add_u32 s{S_FB}, s{S_FB}, s{S_DB}")
P(f"s_lshl_b32 s{S_RING}, s{S_V}, 13")
P(f"s_add_u32 s{S_RING}, s{S_RING}, {L_RING}")
P(f"s_mul_i32 s{S_TAB}, s{S_V}, {TAB_W}")
for _ in range(int(OPT.get("xd", 0))):
    P("s_nop 7")
for i in range(4):
    P(f"global_load_dword {v(PR+i)}, v6, s[{38+2*i}:{39+2*i}]")
P(f"global_load_dword {v(V_DT)}, v56, s[46:47]")
P(f"global_load_dword {v(V_DSK)}, v56, s[48:49]")
if "ksplit" in OPT:
    P("s_waitcnt lgkmcnt(0)")
P(f"s_mov_b64 s[{SRD_WS}:{SRD_WS+1}], s[62:63]")
for r, src in ((SRD_WG, 52), (SRD_WU, 54), (SRD_WD, 56), (SRD_OUT, 58)):
    P(f"s_mov_b64 s[{r}:{r+1}], s[{src}:{src+1}]")
P(f"buffer_load_dword {v(V_NONCE)}, v7, {srd(SRD_WS)}, 0 offen sc1")
NOPF = "nopf" in OPT
if not NOPF:
    P(f"s_bitcmp1_b32 s{S_V}, 0")
    P(f"s_cselect_b64 s[{S_PFB}:{S_PFB+1}], s[54:55], s[52:53]")
    P(f"s_lshr_b32 s{S_T0}, s{S_V}, 1")
    P(f"s_lshl1_add_u32 s{S_T2}, s{S_W}, s{S_T0}")
    EPF = int(OPT.get("epf", 7))
    P(f"s_mul_i32 s{S_T0}, s{S_T2}, {EPF*128}")
    if EPF == 25:
        P(f"s_min_u32 s{S_T0}, s{S_T0}, {(12544-25)*128}")
    P(f"v_min_u32 v4, {EPF-1}, {v(V_LANE)}")
    P(f"v_lshl_add_u32 v248, v4, 7, s{S_T0}")
    PFW = sub()
    PFW(f"global_load_dword {v(V_PF)}, v248, s[{S_PFB}:{S_PFB+1}]")
    PFD = sub()
    PFD(f"global_load_dword v253, v245, s[56:57]")
    if "pfpos" not in OPT:
        P.add(PFW.ins)
    P(f"s_mul_i32 s{S_T0}, s{S_W}, 49")
    P(f"s_mul_i32 s{S_T2}, s{S_V}, 12")
    P(f"s_add_u32 s{S_T0}, s{S_T0}, s{S_T2}")
    P(f"v_min_u32 v4, 12, {v(V_LANE)}")
    P(f"v_add_lshl_u32 v245, v4, s{S_T0}, 7")
    if "nowd" in OPT:
        P(f"v_mov_b32 v245, 0")
    if "wdlate" not in OPT and "pfpos" not in OPT:
        P.add(PFD.ins)
    PF_AT = len(P.ins)
if "xprobe" in OPT:
    stamp("issued")
    P(f"v_mov_b32 v4, {v(XR+4)}")
    stamp("x here")
    P(f"v_mov_b32 v4, {v(V_DSK)}")
    stamp("par here")
P(f"v_cmp_gt_u32 vcc, 32, {v(V_LANE)}")
P(f"v_mul_u32_u24 v4, 37, {v(V_LANE)}")
P(f"v_lshrrev_b32 v4, 9, v4")
P(f"v_cndmask_b32 {v(V_S3)}, v5, {v(V_L16)}, vcc")
P(f"v_mul_u32_u24 v4, {TAB_W-14*272}, v4")
P(f"v_mul_u32_u24 v6, 272, {v(V_LANE)}")
P(f"s_lshl_b32 s{S_T0}, s{S_V}, 2")
P(f"v_add3_u32 {v(V_GW)}, v4, v6, s{S_T0}")
P(f"v_add_u32 {v(V_GX)}, s{S_T0}, {v(V_GW)}")
P(f"s_lshl_b32 s{S_UXM}, s{S_V}, 12")
P(f"s_add_u32 s{S_UXM}, s{S_UXM}, {L_UX+2048}")
P(f"v_and_b32 v4, 48, {v(V_LANE)}")
P(f"v_add3_u32 {v(V_GR)}, v4, {v(V_L16)}, s{S_TAB}")
P(f"v_and_b32 v4, 31, {v(V_LANE)}")
P(f"v_lshrrev_b32 v6, 5, {v(V_LANE)}")
P(f"v_lshl_add_u32 v6, v6, 4, s{S_TAB}")
P(f"v_and_b32 v7, 28, {v(V_LANE)}")
P(f"v_lshl_add_u32 v7, v4, 5, v7")
P(f"v_add_u32 {v(V_TW)}, v6, v7")
P(f"v_mul_u32_u24 v7, {TAB_ROW}, v4")
P(f"v_add_u32 {v(V_TB)}, v6, v7")
P(f"v_subrev_u32 v7, 16, v4")
P(f"v_cmp_lt_u32 vcc, 20, v4")
P(f"s_lshl2_add_u32 s{S_CI}, s{S_W}, s{S_V}")
P(f"s_lshl_b32 s{S_CI}, s{S_CI}, 8")
P(f"v_cndmask_b32 v4, v4, v7, vcc")
P(f"v_mul_u32_u24 v7, {TAB_ROW}, v4")
P(f"v_add_u32 {v(V_TA)}, v6, v7")
P(f"s_add_u32 s{S_CI}, s{S_CI}, {WS_C}")
P(f"v_lshlrev_b32 {v(V_P1)}, 25, {v(V_LANE)}")
P(f"s_mul_i32 s{S_UXO}, s{S_W}, 14336")
P(f"s_mul_i32 s{S_T0}, s{S_V}, 3584")
P(f"s_add_u32 s{S_UXO}, s{S_UXO}, s{S_T0}")
P(f"s_add_u32 s{S_UXO}, s{S_UXO}, {WS_UX}")
P(f"s_lshl_b32 s{S_T0}, s{S_V}, 8")
P(f"s_add_u32 s{S_T0}, s{S_T0}, s{S_W}")
P(f"s_mul_i32 s{S_T0}, s{S_T0}, {FS}")
P(f"s_add_u32 s{S_F1}, s{S_T0}, {WS_F1}")
P(f"v_lshrrev_b32 v4, 2, {v(V_LANE)}")
P(f"v_mul_u32_u24 v4, 3584, v4")
P(f"v_and_b32 v6, 3, {v(V_LANE)}")
P(f"v_lshl_add_u32 v4, v6, 4, v4")
P(f"s_lshl_b32 s{S_T0}, s{S_FB}, 8")
P(f"s_lshl_b32 s{S_T1}, s{S_V}, 6")
P(f"s_add_u32 s{S_T0}, s{S_T0}, s{S_T1}")
P(f"v_add_u32 {v(V_W)}, s{S_T0}, v4")
if "fakerot" in OPT:
    P(f"s_and_b32 s{S_T2}, s{S_TB}, {OPT['fakerot']}")
    P(f"s_mul_i32 s{S_T2}, s{S_T2}, {int(OPT.get('rs', 4))*57344//4}")
    P(f"v_add_u32 {v(V_W)}, s{S_T2}, {v(V_W)}")
if "fake128" in OPT:
    P(f"v_lshrrev_b32 v4, 3, {v(V_LANE)}")
    P(f"v_mul_u32_u24 v4, 3584, v4")
    P(f"v_and_b32 v7, 0x70, {v(V_L16)}")
    P(f"s_and_b32 s{S_T0}, s{S_T0}, 0xffffff80")
    P(f"s_and_b32 s{S_T2}, s{S_V}, 1")
    P(f"s_mul_i32 s{S_T2}, s{S_T2}, {8*3584}")
    P(f"s_add_u32 s{S_T0}, s{S_T0}, s{S_T2}")
    P(f"v_add3_u32 {v(V_W)}, v4, v7, s{S_T0}")
for k in range(1, 4):
    P(f"v_add_u32 {v(V_W+k)}, {k*(57344-1024)}, {v(V_W)}")
SETUP_A = len(P.ins)
P(f"v_and_b32 v4, 32, {v(V_LANE)}")
P(f"v_lshlrev_b32 v4, 4, v4")
P(f"v_and_b32 v7, 12, {v(V_LANE)}")
P(f"v_lshl_add_u32 v4, v7, 4, v4")
P(f"v_and_b32 v7, 16, {v(V_LANE)}")
P(f"v_lshl_add_u32 v4, v7, 1, v4")
P(f"v_lshl_add_u32 v4, v6, 3, v4")
P(f"v_add_u32 {v(V_TRA)}, s{S_RING}, v4")
P(f"s_mov_b32 s{S_K0}, {L_KC+4096-L_UX}")
P(f"s_movk_i32 s{S_T2}, 128")
P(f"s_bfe_u32 s{S_T0}, s{S_W}, 0x20001")
P(f"s_lshl_b32 s{S_T0}, s{S_T0}, 10")
P(f"s_lshr_b32 s{S_F2}, s{S_T0}, 2")
NREP = int(OPT.get("nrep", 4))
P(f"s_bfe_u32 s{S_REP}, s{S_W}, {hex((NREP.bit_length()-1)*65536+3)}")
P(f"s_sub_u32 s{S_F1L}, s{S_FH}, s{S_REP}")
P(f"s_add_u32 s{S_F1L}, s{S_F1L}, {NREP}")
P(f"s_mul_i32 s{S_F1L}, s{S_F1L}, {FREP}")
P(f"s_mul_i32 s{S_REP}, s{S_REP}, {FREP}")
P(f"s_add_u32 s{S_REP}, s{S_REP}, {WS_F1}")
P(f"s_add_u32 s{S_T0}, s{S_T0}, s{S_REP}")
P(f"v_lshl_add_u32 {v(V_F1)}, v0, 2, s{S_T0}")
P(f"v_lshrrev_b32 v4, 2, {v(V_LANE)}")
P(f"v_add_u32 v4, s{S_T1}, v4")
P(f"v_mul_u32_u24 v7, 14336, v4")
P(f"v_lshrrev_b32 v4, 4, {v(V_LANE)}")
P(f"v_xor_b32 v6, v6, v4")
P(f"v_lshl_add_u32 v7, v6, 4, v7")
P(f"s_lshl_b32 s{S_T0}, s{S_PR}, 6")
P(f"s_add_u32 s{S_T0}, s{S_T0}, {WS_UX}")
P(f"v_add_u32 {v(V_UXL)}, s{S_T0}, v7")
P(f"v_bfe_u32 v6, {v(V_LANE)}, 1, 2")
P(f"v_mul_u32_u24 v6, {CS}, v6")
P(f"v_and_b32 v7, 16, {v(V_L16)}")
P(f"v_add3_u32 v6, v6, v7, s{S_K0}")
P(f"v_lshlrev_b32 v7, 4, v0")
P(f"v_cmp_gt_u32 vcc, s{S_T2}, v0")
P(f"v_mov_b32 v56, 0")
P(f"v_mov_b32 v57, 0")
P(f"v_cndmask_b32 v6, v6, v7, vcc")
P(f"v_mov_b32 v58, 0")
P(f"v_mov_b32 v59, 0")
P(f"v_add_u32 v6, {L_UX}, v6")
P(f"ds_write_b128 v6, v[56:59]")
P(f"v_lshlrev_b32 v4, 3, v0")
P(f"v_sub_u32 v4, 2047, v4")
P(f"v_cvt_f32_i32 v4, v4")
P(f"v_mov_b32 v60, 1028")
P(f"v_cmp_eq_u32 vcc, 0, v0")
for e in range(0, 10, 2):
    P(f"v_add_f32 v6, {f32(-float(e))}, v4")
    if e < 8:
        P(f"v_add_f32 v7, {f32(-float(e+1))}, v4")
    P(f"v_cvt_pk_bf16_f32 v6, v6, v7")
    for h in range(2):
        if e + h > 8:
            continue
        d = GA + e + h
        if h == 0:
            P(f"v_lshlrev_b32 v7, 16, v6")
        else:
            P(f"v_and_b32 v7, 0xffff0000, v6")
        P(f"v_cvt_u32_f32 v7, v7")
        if e + h < 4:
            P(f"v_cndmask_b32 v7, v7, v60, vcc")
        P(f"v_lshrrev_b32 {v(d)}, 5, v7")
        P(f"v_add_lshl_u32 {v(d)}, {v(d)}, v7, 2")
P(f"v_mov_b32 v4, 255")
P(f"v_cmp_eq_u32 s[{S_M255}:{S_M255+1}], v4, v0")
P(f"v_and_b32 v4, 15, {v(V_LANE)}")
P(f"v_lshrrev_b32 v5, 4, {v(V_LANE)}")
P(f"v_lshl_add_u32 v6, v5, 3, v4")
P(f"v_sub_u32 v6, 39, v6")
P(f"v_and_b32 v7, 1, v6")
P(f"v_mul_u32_u24 v7, {CS-2}, v7")
P(f"v_lshl_add_u32 v6, v6, 1, v7")
P(f"s_lshr_b32 s{S_T0}, s{S_V}, 1")
P(f"s_andn2_b32 s{S_T3}, 1, s{S_V}")
P(f"s_mul_i32 s{S_T2}, s{S_T0}, {2*CS}")
P(f"s_lshl_b32 s{S_T1}, s{S_T3}, 8")
P(f"s_add_u32 s{S_T2}, s{S_T2}, s{S_T1}")
P(f"s_add_u32 s{S_T2}, s{S_T2}, {L_KC}")
P(f"v_add_u32 {v(V_KA+3)}, s{S_T2}, v6")
for k in range(3):
    P(f"v_add_u32 {v(V_KA+k)}, {64*(48-16*k)}, {v(V_KA+3)}")
P(f"v_lshlrev_b32 v6, 1, v4")
P(f"v_sub_u32 v6, v6, v5")
P(f"s_lshl4_add_u32 s{S_T1}, s{S_T3}, 17")
P(f"v_add_u32 v6, s{S_T1}, v6")
P(f"s_mov_b32 s{S_T2}, {L_UX}")
for rr in range(4):
    P(f"v_bfe_u32 v7, v6, 2, 2")
    P(f"v_xor_b32 v7, s{S_T0}, v7")
    P(f"v_lshl_add_u32 v7, v6, 2, v7")
    P(f"v_lshl_add_u32 {v(V_UA+rr)}, v7, 4, s{S_T2}")
    if rr < 3:
        P(f"v_subrev_u32 v6, 4, v6")
EB = sub()
if "nomv" not in OPT:
    EB(f"v_and_b32 v4, 15, {v(V_LANE)}")
    EB(f"v_lshrrev_b32 v5, 4, {v(V_LANE)}")
EB(f"v_lshrrev_b32 v6, 1, v5")
EB(f"v_lshl_add_u32 v6, v4, 1, v6")
EB(f"s_lshl_b32 s{S_T2}, s{S_V}, 11")
EB(f"s_add_u32 s{S_T2}, s{S_T2}, {L_UX+2048}")
EB(f"v_lshl_add_u32 v6, v6, 6, s{S_T2}")
EB(f"v_bfe_u32 v4, v4, 1, 2")
EB(f"v_and_b32 v5, 1, v5")
EB(f"v_lshl_add_u32 v247, v4, 4, v6")
EB(f"v_lshl_add_u32 {v(V_EU)}, v5, 3, v247")
EB(f"v_xor_b32 {v(V_EU1)}, 16, {v(V_EU)}")
EB(f"v_or_b32 v5, 2, v5")
EB(f"v_xor_b32 v4, v4, v5")
EB(f"v_lshl_add_u32 {v(V_EXP)}, v4, 4, v6")
if "nomv" in OPT:
    P.add(EB.ins)
P(f"s_mul_i32 s{S_ACTW}, s{S_V}, 7168")
P(f"v_add_u32 {v(V_EXR)}, s{S_ACTW}, {v(V_L16)}")
P(f"v_lshlrev_b32 {v(V_EXW)}, 4, v0")
P(f"s_mul_i32 s{S_PST}, s{S_PR}, {PROW}")
P(f"s_add_u32 s{S_PST}, s{S_PST}, {WS_P}")
CB = sub()
lanes_reg(CB, V_FL2, 4, 10)
lanes_reg(CB, V_PM, 2, 12)
CB(f"s_lshl1_add_u32 s{S_T0}, s{S_V}, s{S_FH}")
CB(f"s_lshl_b32 s{S_T0}, s{S_T0}, 12")
CB(f"s_add_u32 s{S_F2}, s{S_F2}, s{S_T0}")
CB(f"s_add_u32 s{S_F2}, s{S_F2}, {WS_C}")
CB(f"s_lshr_b32 s{S_T0}, s{S_TB}, 2")
CB(f"s_bfe_u32 s{S_REP}, s{S_W}, 0x20003")
CB(f"s_lshl3_add_u32 s{S_T0}, s{S_T0}, s{S_REP}")
CB(f"s_lshl2_add_u32 s{S_T0}, s{S_T0}, s{S_V}")
CB(f"s_lshl_b32 s{S_T0}, s{S_T0}, 8")
CB(f"s_add_u32 s{S_PA}, s{S_T0}, {WS_C}")
CB(f"s_lshl2_add_u32 s{S_T2}, s{S_DB}, s{S_V}")
CB(f"s_lshl2_add_u32 s{S_T3}, s{S_T2}, s{S_REP}")
CB(f"s_lshl_b32 s{S_T3}, s{S_T3}, 8")
CB(f"s_add_u32 s{S_P4}, s{S_T3}, {WS_C + 896*256}")
CB(f"s_mul_i32 s{S_T2}, s{S_T2}, {14*4096}")
CB(f"s_add_u32 s{S_WFB}, s{S_T2}, {WS_WF}")
CB(f"s_mul_i32 s{S_T1}, s{S_V}, {56*PROW}")
CB(f"s_lshl_b32 s{S_T0}, s{S_TB}, 8")
CB(f"s_add_u32 s{S_T0}, s{S_T0}, s{S_T1}")
CB(f"s_add_u32 s{S_AB}, s{S_T0}, {WS_P}")

if "nomv" in OPT:
    P.add(CB.ins)

if "pfpos" in OPT:
    a_, b_ = [int(x) for x in OPT["pfpos"].split(",")]
    P.ins = P.ins[:PF_AT] + sprinkle(P.ins[PF_AT:], [(a_, PFW.ins), (b_, PFD.ins)])
NS = int(OPT.get("ns", 0))
if NS:
    us = []
    for n in range(NS):
        i_, k_ = n // 4, n % 4
        q = sub()
        if k_ == 0:
            q(f"s_add_u32 m0, s{S_RING}, {(4*i_ % 8) * 1024 + (4*i_ // 8) * 32768}")
            if n % 8 == 0:
                q(f"s_mov_b32 s{S_WOFF}, {(i_//2)*4*57344}")
        o = f" offset:{1024*k_}" if k_ else ""
        q(f"buffer_load_dwordx4 {v(V_W+k_)}, {srd(SRD_WU if i_ % 2 else SRD_WG)}, s{S_WOFF} offen{o} lds", tok=f"w1_{i_}")
        us.append(q.ins)
    tail_ = P.ins[SETUP_A:]
    st_ = int(OPT.get("ns0", 0))
    step = (len(tail_) - st_) / NS
    P.ins = P.ins[:SETUP_A] + sprinkle(tail_, [(int(st_ + step * n), u) for n, u in enumerate(us)])
XF = 56
DF = 72
SA = 88
if "fine" in OPT: stamp("setup done")
P(f"s_mov_b32 s{S_K0}, {f32(1.0/448)}")
P(f"v_mov_b32 v4, {f32(1e-5)}")
P("s_mov_b32 exec_hi, 0x00ffffff")
for r in range(2):
    for i in range(4):
        P(f"v_lshlrev_b32 {v(XF+8*r+2*i)}, 16, {v(XR+4*r+i)}")
        P(f"v_and_b32 {v(XF+8*r+2*i+1)}, 0xffff0000, {v(XR+4*r+i)}")
    P(f"v_readfirstlane_b32 s{(S_A, S_B)[r]}, {v(XF+8*r)}")
stamp("x arrived")
if "wdlate" in OPT and not NOPF:
    P(f"global_load_dword v253, v245, s[56:57]")
for i in range(4):
    P(f"ds_write2_b32 {v(V_GX)}, {v(XR+i)}, {v(XR+4+i)} offset0:{16*i+8} offset1:{16*i+9}")
for r, sm in ((0, S_A), (1, S_B)):
    for i in range(4):
        P(f"v_pk_add_f32 {v(XF+8*r+2*i,2)}, {v(XF+8*r+2*i,2)}, s[{sm}:{sm+1}] op_sel_hi:[1,0] neg_lo:[0,1] neg_hi:[0,1]")
for r in range(2):
    b = XF + 8 * r
    t = DF + 8 * r
    P(f"v_pk_add_f32 {v(t,2)}, {v(b,2)}, {v(b+2,2)}")
    P(f"v_pk_mul_f32 {v(t+2,2)}, {v(b,2)}, {v(b,2)}")
    P(f"v_pk_add_f32 {v(t,2)}, {v(t,2)}, {v(b+4,2)}")
    for i in range(1, 4):
        P(f"v_pk_fma_f32 {v(t+2,2)}, {v(b+2*i,2)}, {v(b+2*i,2)}, {v(t+2,2)}")
    P(f"v_pk_add_f32 {v(t,2)}, {v(t,2)}, {v(b+6,2)}")
for r in range(2):
    t = DF + 8 * r
    P(f"v_add_f32 {v(SA+r)}, {v(t)}, {v(t+1)}")
    P(f"v_add_f32 {v(SA+2+r)}, {v(t+2)}, {v(t+3)}")


def wave_sum(p, regs):
    for mod in ("row_shr:1", "row_shr:2", "row_shr:4", "row_shr:8"):
        for r in regs:
            p(f"v_add_f32_dpp {v(r)}, {v(r)}, {v(r)} {mod} row_mask:0xf bank_mask:0xf bound_ctrl:0")
    for r in regs:
        p(f"v_add_f32_dpp {v(r)}, {v(r)}, {v(r)} row_bcast:15 row_mask:0xa bank_mask:0xf")
    for r in regs:
        p(f"v_add_f32_dpp {v(r)}, {v(r)}, {v(r)} row_bcast:31 row_mask:0xc bank_mask:0xf")


wave_sum(P, [SA, SA + 2, SA + 1, SA + 3])
P(f"v_pk_mul_f32 {v(SA,2)}, {v(SA,2)}, s[{S_K0}:{S_K0+1}] op_sel_hi:[1,0]")
P(f"v_pk_fma_f32 {v(SA+2,2)}, {v(SA+2,2)}, s[{S_K0}:{S_K0+1}], v[4:5] op_sel_hi:[1,0,0]")
P(f"v_pk_fma_f32 {v(SA+2,2)}, {v(SA,2)}, {v(SA,2)}, {v(SA+2,2)} neg_lo:[1,0,0] neg_hi:[1,0,0]")
for r in range(2):
    P(f"v_max_f32 {v(SA+2+r)}, {v(SA+2+r)}, v4")
for r in range(2):
    P(f"v_rsq_f32 {v(SA+2+r)}, {v(SA+2+r)}")
P(f"v_pk_mul_f32 {v(SA,2)}, {v(SA,2)}, {v(SA+2,2)} neg_lo:[1,0] neg_hi:[1,0]")
for r, sm in ((0, S_A), (1, S_B)):
    P(f"v_readlane_b32 s{sm}, {v(SA+2+r)}, 55")
for r, sm in ((0, S_A), (1, S_B)):
    P(f"v_readlane_b32 s{sm+1}, {v(SA+r)}, 55")
for r, sm in ((0, S_A), (1, S_B)):
    for i in range(4):
        P(f"v_pk_fma_f32 {v(XF+8*r+2*i,2)}, {v(XF+8*r+2*i,2)}, s[{sm}:{sm+1}], s[{sm}:{sm+1}] op_sel:[0,0,1] op_sel_hi:[1,0,1]")
for j in range(8):
    P(f"v_cvt_pk_bf16_f32 {v(DF+j)}, {v(XF+j)}, {v(XF+8+j)}")
for i in range(4):
    P(f"ds_write2_b32 {v(V_GW)}, {v(DF+2*i)}, {v(DF+2*i+1)} offset0:{16*i} offset1:{16*i+4}")
P("s_mov_b64 exec, -1")
def kgen_head(rd):
    q = sub()
    A0 = 48 + 0
    CC = 50
    unp = (lambda d, s: q(f"v_lshlrev_b32 {v(d)}, 16, {v(s)}")) if rd == 0 else (lambda d, s: q(f"v_and_b32 {v(d)}, 0xffff0000, {v(s)}"))
    for i in range(4):
        unp(48 + i, PR + i)
    q(f"v_mul_f32 v48, {f32(LOG2E)}, v48")
    q(f"v_exp_f32 v48, v48")
    q(f"v_mul_f32 v49, v49, v249")
    q(f"v_cvt_pk_bf16_f32 v48, v48, v48")
    q(f"v_mul_f32 v50, v50, v250")
    q(f"v_and_b32 v48, 0xffff0000, v48")
    q(f"v_mul_f32 v51, v51, v250")
    q(f"v_mul_f32 v48, v48, {v(V_DT)}")
    for (z, pos) in ((52, 1), (56, 256)) if "b3" not in OPT else ((52, 1), (54, 16), (56, 256)):
        if pos == 1:
            q(f"v_fract_f32 v5, v49")
            q(f"v_exp_f32 v4, v48")
        else:
            q(f"v_mul_f32 v5, {f32(float(pos))}, v49")
            q(f"v_mul_f32 v4, {f32(float(pos))}, v48")
            q(f"v_fract_f32 v5, v5")
            q(f"v_exp_f32 v4, v4")
        q(f"v_cos_f32 {v(z)}, v5")
        q(f"v_sin_f32 {v(z+1)}, v5")
        q(f"v_mul_f32 {v(z)}, {v(z)}, v4")
        q(f"v_mul_f32 {v(z+1)}, {v(z+1)}, v4")
    return q.ins


HD = sub()
HD(f"s_lshl_b32 s{S_T0}, s{S_V}, 3")
HD(f"s_and_b32 s{S_T0}, s{S_T0}, 16")
HD(f"s_mov_b32 m0, s{S_TAB}")
HD(f"v_lshrrev_b32 v4, s{S_T0}, {v(V_DT)}")
HD(f"v_lshlrev_b32 v4, 16, v4")
HD(f"v_mul_f32 v4, {f32(LOG2E)}, v4")
HD(f"v_exp_f32 v4, v4")
HD(f"v_readfirstlane_b32 s{S_DSK}, {v(V_DSK)}")
round_bf16(HD, V_DT, 4)
HD(f"v_mul_f32 v249, 0.15915494, {v(V_DT)}")
HD(f"v_add_f32 v250, {v(V_DT)}, {v(V_DT)}")
HD(f"v_mul_f32 {v(V_DT)}, {f32(-LOG2E)}, {v(V_DT)}")
HD.add(kgen_head(0))
FILL = (CB.ins if "nomv" not in OPT else []) + HD.ins
HB, HP_ = int(OPT.get("hb", 29)), int(OPT.get("hp", 0))
if "fine" in OPT: stamp("ln1 math")
P.add(FILL[:HB])
if OPT.get("w2") == "a":
    walk("early")
P("s_waitcnt lgkmcnt(0)")
P("s_barrier")
if "fine" in OPT: stamp("ln1 barrier")
UB = 112
for j in range(4):
    P(f"ds_read_b128 {v(UB+4*j,4)}, {v(V_GR)} offset:{1088*j}")
P.add(FILL[HB:HB + HP_])
if OPT.get("w2") == "b":
    walk("early")
assert HB + HP_ >= len(FILL) - len(HD.ins)
P("s_waitcnt lgkmcnt(0)")
for j in range(4):
    P(f"buffer_store_dwordx4 {v(UB+4*j,4)}, {v(V_L16 if j < 3 else V_S3)}, {srd(SRD_WS)}, s{S_UXO} offen offset:{1024*j} sc1", tok="ux")
P(f"s_cmp_lt_u32 s{S_W}, 224")
P("s_cbranch_scc1 L_main")


def nonce_init():
    q = sub()
    q(f"v_readfirstlane_b32 s{S_NONCE}, {v(V_NONCE)}")
    q(f"s_mul_i32 s{S_NONCE}, s{S_NONCE}, 1664525")
    q(f"s_add_u32 s{S_NONCE}, s{S_NONCE}, 1013904223")
    q(f"v_mov_b32 {v(V_NONCE)}, s{S_NONCE}")
    q(f"buffer_store_dword {v(V_NONCE)}, {v(V_P1)}, {srd(SRD_WS)}, s{S_CI} offen sc1", tok="ux")
    q(f"s_add_u32 s{S_E28}, s{S_NONCE}, 28")
    q(f"s_add_u32 s{S_E14}, s{S_NONCE}, 14")
    return q.ins


P.raw(f"s_waitcnt vmcnt({(4 if NOPF else 6) + NS})")
for x in nonce_init():
    P.raw(x.text)
P.raw("s_waitcnt vmcnt(0)")
P.raw(f"buffer_atomic_swap {v(V_NONCE)}, {v(V_FLG)}, {srd(SRD_WS)}, s{S_F1} offen")
P.raw("s_branch L_spare")
P("L_main:")
if OPT.get("w2") == "c":
    walk("early")
stamp("ln1 done")


def wfrag(m, ks):
    return 8 * ks + 4 * m


def slotoff(slot):
    return (slot % 8) * 1024 + (slot // 8) * 32768


def w_dma(kq, m, slot, tok):
    q = sub()
    q(f"s_add_u32 m0, s{S_RING}, {slotoff(slot)}")
    if m == 0:
        q(f"s_mov_b32 s{S_WOFF}, {kq*4*57344}")
    for k in range(4):
        o = f" offset:{1024*k}" if k else ""
        q(f"buffer_load_dwordx4 {v(V_W+k)}, {srd(SRD_WU if m else SRD_WG)}, s{S_WOFF} offen{o} lds", tok=tok)
    return q.ins


def w_tr(kq, m, slot, tok=None):
    q = sub()
    for k in range(4):
        for h in range(2):
            q(f"ds_read_b64_tr_b16 {acc(wfrag(m,4*kq+k)+2*h,2)}, {v(V_TRA)} offset:{slotoff(slot+k)+256*h}", tok=tok)
    return q.ins


def batch_dma(b, tok):
    return [w_dma(2 * b + i // 2, i % 2, 4 * i, f"{tok}_{i}") for i in range(4)]


def batch_tr(b):
    o = []
    for i in range(4):
        o += w_tr(2 * b + i // 2, i % 2, 4 * i, tok=f"t{b}_{i}")
    return o


def singles(groups):
    out, cur = [], []
    for grp in groups:
        for i in grp:
            cur.append(i)
            if i.cls == "vmem":
                out.append(cur)
                cur = []
    if cur:
        out[-1] += cur
    return out


def pin_vm(g, start, groups, stride):
    k = start
    for u in singles(groups):
        g.at(int(k), u)
        k += stride
    return int(k)


def w_dma1(b, n, tok):
    i, k = n // 4, n % 4
    q = sub()
    q(f"s_add_u32 m0, s{S_RING}, {slotoff(4*i)}")
    if n % 8 == 0:
        q(f"s_mov_b32 s{S_WOFF}, {(2*b+i//2)*4*57344}")
    o = f" offset:{1024*k}" if k else ""
    if OPT.get("fk") == "same":
        q(f"buffer_load_dwordx4 {v(V_L16)}, {srd(SRD_WG)}, 0 offen{o} lds", tok=f"{tok}_{i}")
    elif OPT.get("fk") == "reg":
        q(f"buffer_load_dwordx4 a[{128+4*n}:{131+4*n}], {v(V_W+k)}, {srd(SRD_WU if i % 2 else SRD_WG)}, s{S_WOFF} offen{o}", tok=f"{tok}_{i}")
    elif OPT.get("fk") != "none":
        q(f"buffer_load_dwordx4 {v(V_W+k)}, {srd(SRD_WU if i % 2 else SRD_WG)}, s{S_WOFF} offen{o} lds", tok=f"{tok}_{i}")
    q(f"s_mov_b32 m0, s{S_TAB}")
    return q.ins


KD = 176
FR = 192
FR = 112


WRI = "ds_write_b32 v246," if "plainw" in OPT else "ds_write_addtid_b32"


def kgen_body(rd):
    names = {"G0": 50, "E1": 52, "E16": 54, "E256": 56}
    nxt = [58]
    chunks = []
    cur = sub()
    wr = sub()
    pk = [0]
    PK = 192

    def new(n):
        names[n] = nxt[0]
        nxt[0] += 2
        assert nxt[0] <= 104
        return names[n]

    def out(kind, row, z):
        t = PK + pk[0] % 16
        pk[0] += 1
        if kind == "B":
            cur(f"v_cvt_pk_bf16_f32 {v(t)}, {v(z)}, {v(z+1)}")
            wr(f"{WRI} {v(t)} offset:{row*TAB_ROW}")
        else:
            cur(f"v_cvt_pk_bf16_f32 {v(t)}, {v(z)}, -{v(z+1)}")
            wr(f"{WRI} {v(t)} offset:{(32+row)*TAB_ROW}")
        if len(wr.ins) >= GROUP:
            flush()

    def flush():
        nonlocal cur, wr
        chunks.append(cur.ins + wr.ins)
        cur = sub()
        wr = sub()

    sc = [0]

    def mul(n, a, b, kind=None, row=None):
        if n is None:
            z = 104 + 2 * (sc[0] % 4)
            sc[0] += 1
        else:
            z = new(n)
        cmul(cur, z, names[a], names[b])
        if kind:
            out(kind, row, z)

    GROUP = int(OPT.get("kgroup", 6))
    if rd == 0:
        t = PK + pk[0]
        pk[0] += 1
        cur(f"v_mov_b32 {v(t)}, 0x3f80")
        wr(f"{WRI} {v(t)}")
    out("A", 0, names["G0"])
    mul("E2", "E1", "E1")
    mul("G1", "G0", "E256", "A", 8)
    mul("E512", "E256", "E256")
    mul("a1", "G0", "E1", "A", 1)
    mul("E4", "E2", "E2")
    mul("G2", "G0", "E512", "A", 10)
    mul("G3", "G1", "E512", "A", 11)
    mul("E1024", "E512", "E512")
    mul("E8", "E4", "E4", "B", 1)
    mul("a2", "G0", "E2", "A", 2)
    if "b3" in OPT:
        out("B", 2, names["E16"])
    else:
        cmul(cur, names["E16"], names["E8"], names["E8"])
        out("B", 2, names["E16"])
    mul("a3", "a1", "E2", "A", 3)
    mul("E32", "E16", "E16", "B", 4)
    mul("b2", "G1", "E2", "A", 9)
    mul("E64", "E32", "E32", "B", 8)
    mul("E48", "E32", "E16", "B", 6)
    mul("G4", "G0", "E1024", "A", 16)
    mul("E128", "E64", "E64", "B", 16)
    mul("E24", "E16", "E8", "B", 3)
    mul("E40", "E32", "E8", "B", 5)
    mul("E56", "E48", "E8", "B", 7)
    mul("E192", "E128", "E64", "B", 24)
    for row, a in ((4, "G0"), (5, "a1"), (6, "a2"), (7, "a3"), (12, "G1"), (13, "b2"), (14, "G2"), (15, "G3")):
        mul(None, a, "E4", "A", row)
    for row, a in ((17, "G1"), (18, "G2"), (19, "G3"), (20, "G4")):
        mul(None, a, "E1024", "A", row)
    for b2, nb in ((1, "E64"), (2, "E128"), (3, "E192")):
        for b1 in range(1, 8):
            mul(None, f"E{8*b1}", nb, "B", 8 * b2 + b1)
    if wr.ins or cur.ins:
        flush()
    return chunks


def kgen_reads():
    q = sub()
    for s in range(8):
        q(f"ds_read_b128 {v(FR+8*s,4)}, {v(V_TA)} offset:{32*TAB_ROW+32*s}")
        q(f"ds_read_b128 {v(FR+8*s+4,4)}, {v(V_TB)} offset:{32*s}")
    return q.ins


def kgen_mfma(rd):
    q = sub()
    for s in range(8):
        c = "0" if (rd == 0 and s == 0) else v(KD, 16)
        q(f"v_mfma_f32_32x32x16_bf16 {v(KD,16)}, {v(FR+8*s,4)}, {v(FR+8*s+4,4)}, {c}")
    return q.ins


P.add(FILL[HB + HP_:])
P.add(nonce_init())
ch = kgen_body(0)
fl = sub()
fl.wait("ux")
setflag(fl, S_F1)
nd = NS
FLAGAT = int(OPT.get("flagat", 5))
D0, DM, D1 = OPT.get("dsch", "011111000,2,111111111").split(",")


def dmas(n):
    global nd
    o = []
    for k in range(n):
        u = w_dma1(0, nd, "w1")
        if k and nd % 4:
            o = o[:-1] + u[1:]
        elif k:
            o = o[:-1] + u
        else:
            o = u
        nd += 1
    return o


for i, c in enumerate(ch):
    P.add(c)
    P.add(dmas(int(D0[i])))
    if i == FLAGAT:
        if "fine" in OPT: stamp("pre flag1")
        P.add(fl.ins)
        if "fine" in OPT: stamp("post flag1")
P.add(kgen_reads())
g = Gaps(kgen_mfma(0), 7)
for k in range(int(DM)):
    g.at(2 * k, dmas(1))
h1_ = kgen_head(1)
NH = int(OPT.get("nh", 12))
P.add(h1_[:NH])
g.fill(h1_[NH:], cap=5)
P.add(g.out())
stamp("kgen r0")
ch = kgen_body(1)
POLLAT = int(OPT.get("pollat", 5))
CHKAT = int(OPT["chkat"]) if "chkat" in OPT else None


def ux_unit(j):
    q = sub()
    q(f"s_mov_b32 s{S_T0}, {j*(16*14336-1024)}")
    o = f" offset:{1024*j}" if j else ""
    q(f"buffer_load_dwordx4 {v(V_UXL)}, {srd(SRD_WS)}, s{S_T0} offen{o} sc1 lds", tok="uxl")
    return q.ins


for i, c in enumerate(ch):
    P.add(c)
    P.add(dmas(int(D1[i])))
    if i == POLLAT:
        if "f1at" not in OPT:
            P(f"buffer_load_dword v6, {v(V_F1)}, {srd(SRD_WS)}, s{S_F1L} offen sc1")
        else:
            P.add(poll_issue("F1", 6))
    if i == CHKAT:
        P.add(poll_check("F1", 6))
        P(f"s_mov_b32 m0, s{S_UXM}")
        for j in range(4):
            P.add(ux_unit(j))
        P(f"s_mov_b32 m0, s{S_TAB}")
assert nd == 16
P.add(kgen_reads())
if "fine" in OPT: stamp("pre poll1")
if CHKAT is None:
    P.add(poll_check("F1", 6))
if "fine" in OPT: stamp("post poll1")
g = Gaps(kgen_mfma(1), 6)
if CHKAT is None:
    P(f"s_mov_b32 m0, s{S_UXM}")
for j in range(4 if CHKAT is None else 0):
    q = sub()
    q(f"s_mov_b32 s{S_T0}, {j*(16*14336-1024)}")
    o = f" offset:{1024*j}" if j else ""
    q(f"buffer_load_dwordx4 {v(V_UXL)}, {srd(SRD_WS)}, s{S_T0} offen{o} sc1 lds", tok="uxl")
    if j == 0:
        P.add(q.ins)
    else:
        g.at(2 * j - 2, q.ins)
tr1 = batch_tr(0)
P.wait("w1_2")
for k in range(8):
    g.at(k, tr1[3 * k:3 * k + 3])
P.add(g.out())
stamp("kgen r1")
b2 = batch_dma(1, "w2")
b2[0] = waitq("t0_0") + b2[0]
b2[3] = waitq("t0_3") + b2[3]
b2 = singles(b2)
P.add(b2.pop(0))
P(f"s_lshl_b32 s{S_C}, s{S_DSK}, 16")
P(f"s_and_b32 s{S_D}, s{S_DSK}, 0xffff0000")
P(f"v_add_u32 v7, {2*CS}, {v(V_EXW)}")
P(f"v_mov_b32 {v(V_NONCE)}, 1")
toff = {0: (0, 0), 1: (0, 1), 2: (0, 2), 3: (0, 3), 4: (1, 0), 5: (1, 2), 6: (2, 0), 7: (3, 0), 8: (4, 0), 9: (5, 0), 10: (6, 0), 11: (7, 0)}
P(f"ds_write2_b32 {v(V_TW)}, {v(KD)}, {v(KD+1)} offset0:0 offset1:1")
P(f"ds_write2_b32 {v(V_TW)}, {v(KD+2)}, {v(KD+3)} offset0:2 offset1:3")
for j in range(4, 12):
    qq, r = toff[j]
    P(f"ds_write_b32 {v(V_TW)}, {v(KD+j)} offset:{4*(r + 264*qq)}")
P.add(b2.pop(0))
if "eb" in OPT and "ebrace" not in OPT:
    P.wait("uxl")
P("s_waitcnt lgkmcnt(0)")
P("s_barrier")
if "fine" in OPT: stamp("T barrier")
EG = 208
for c2 in range(2):
    for e in range(9):
        P(f"ds_read2st64_b32 {v(EG+18*c2+2*e,2)}, {v(GA+e)} offset0:{114*c2} offset1:{114*c2+57}", tok=f"g{c2}")
P.add(b2.pop(0))
if "nomv" not in OPT:
    P.add(EB.ins)
P.add(b2.pop(0))
KO = 192
VB = 48


def bfrag(rr, e):
    return VB + 32 * rr + 4 * e


def b_loads(lo, hi):
    z = sub()
    for rr in range(4):
        for a in range(lo, hi):
            z(f"ds_read_b128 {v(bfrag(rr,a),4)}, {v(V_UA+rr)} offset:{2048*a}")
    return z.ins


EARLYB = "eb" in OPT
if EARLYB:
    P.add(b_loads(0, 4)[:int(OPT["eb"])])
for c2 in range(2):
    b = EG + 18 * c2
    P.wait(f"g{c2}")
    for e in range(9):
        P(f"v_add_f32 {v(b+2*e)}, {v(b+2*e)}, {v(b+2*e+1)}")
    P(f"v_cndmask_b32 {v(b+16)}, {v(b+16)}, 0, s[{S_M255}:{S_M255+1}]")
    for s_ in range(2):
        o = KO + 8 * c2 + 4 * s_
        for i in range(4):
            P(f"v_cvt_pk_bf16_f32 {v(o+i)}, {v(b+2*(s_+2*i))}, {v(b+2*(s_+2*i+1))}")
    for s_ in range(2):
        P(f"ds_write_b128 {v(7 if c2 else V_EXW)}, {v(KO+8*c2+4*s_,4)} offset:{L_KC+s_*CS}", tok="kc")
    P.add(b2.pop(0))
if "dumpk" in OPT:
    P(f"s_lshl_b32 s{S_T0}, s{S_W}, 13")
    P(f"s_add_u32 s{S_T0}, s{S_T0}, {WS_DBG}")
    P(f"buffer_store_dwordx4 {v(KO,4)}, {v(V_EXW)}, {srd(SRD_WS)}, s{S_T0} offen")
    P(f"s_add_u32 s{S_T0}, s{S_T0}, 4096")
    P(f"buffer_store_dwordx4 {v(KO+8,4)}, {v(V_EXW)}, {srd(SRD_WS)}, s{S_T0} offen")
stamp("expanded")
P.wait("uxl")
P.wait("kc")
P("s_barrier")
stamp("conv start")

CA = [176, 192]
ET = 208


def afrag(rr, a):
    return 128 + 32 * rr + 4 * a


def a_loads(rr, lo, hi):
    z = sub()
    for a in range(lo, hi):
        k = a // 2
        off = 16 * (11 - rr - 8 * (a - 2 * k))
        z(f"ds_read2_b32 {acc(afrag(rr,a),2)}, {v(V_KA+k)} offset0:{off} offset1:{off+1}")
        z(f"ds_read2_b32 {acc(afrag(rr,a)+2,2)}, {v(V_KA+k)} offset0:{off+2} offset1:{off+3}")
    return z.ins


def conv_mfmas(gen):
    m = sub()
    first = set()
    na = 4 if gen == 0 else 8
    order = []
    for rr in range(4):
        pairs = [(a, e) for a in range(na) for e in range(na) if 4 * gen <= a + e < 4 * gen + 4]
        pairs.sort(key=(lambda ae: (max(ae), ae)) if rr < 3 else (lambda ae: (ae[0] + ae[1], ae)))
        order += [(rr, a, e) for a, e in pairs]
    if gen == 1:
        order.sort(key=lambda t: (0 if max(t[1], t[2]) < 4 else 1))
    for rr, a, e in order:
        c = a + e - 4 * gen
        d = CA[gen] + 4 * c
        cc = v(d, 4) if c in first else "0"
        first.add(c)
        m(f"v_mfma_f32_16x16x32_bf16 {v(d,4)}, {acc(afrag(rr,a),4)}, {v(bfrag(rr,e),4)}, {cc}")
    return m.ins


UU, XX, YY, TT, WW, HO = ET, ET + 4, ET + 8, ET + 24, ET + 32, ET + 36


def conv_pre(gen):
    q = sub()
    q(f"ds_read_b64 {v(UU,2)}, {v(V_EU)} offset:{8192*gen}")
    q(f"ds_read_b64 {v(UU+2,2)}, {v(V_EU1)} offset:{8192*gen}")
    q(f"ds_read_b128 {v(XX,4)}, {v(V_EXP)} offset:{8192*gen}")
    r = sub()
    if "exact" not in OPT:
        for j in range(4):
            r(f"v_lshlrev_b32 {v(TT+j)}, 16, {v(XX+j)}")
            r(f"v_and_b32 {v(TT+4+j)}, 0xffff0000, {v(XX+j)}")
        for c2, sm in ((0, S_C), (1, S_D)):
            for i in range(2):
                r(f"v_lshlrev_b32 {v(WW)}, 16, {v(UU+2*c2+i)}")
                r(f"v_and_b32 {v(WW+1)}, 0xffff0000, {v(UU+2*c2+i)}")
                r(f"v_fmac_f32 {v(TT+4*c2+2*i)}, s{sm}, {v(WW)}")
                r(f"v_fmac_f32 {v(TT+4*c2+2*i+1)}, s{sm}, {v(WW+1)}")
        return q.ins, r.ins
    for c2 in range(2):
        for i in range(2):
            r(f"v_lshlrev_b32 {v(TT+4*c2+2*i)}, 16, {v(UU+2*c2+i)}")
            r(f"v_and_b32 {v(TT+4*c2+2*i+1)}, 0xffff0000, {v(UU+2*c2+i)}")
    for c2, sm in ((0, S_C), (1, S_D)):
        for i in range(4):
            r(f"v_mul_f32 {v(TT+4*c2+i)}, s{sm}, {v(TT+4*c2+i)}")
    for j in range(4):
        r(f"v_cvt_pk_bf16_f32 {v(WW+j)}, {v(TT+j)}, {v(TT+4+j)}")
    for j in range(4):
        r(f"v_lshlrev_b32 {v(TT+2*j)}, 16, {v(WW+j)}")
        r(f"v_and_b32 {v(TT+2*j+1)}, 0xffff0000, {v(WW+j)}")
    return q.ins, r.ins


def conv_xchg(gen):
    w_, b_, r_ = sub(), sub(), sub()
    for c in range(4):
        w_(f"ds_write_b128 {v(V_EXW)}, {v(CA[gen]+4*c,4)} offset:{(4096 if gen else 7168)*c}", tok=f"xw{gen}")
    b_.wait(f"xw{gen}")
    b_("s_barrier")
    for w in range(4):
        r_(f"ds_read_b128 {v(YY+4*w,4)}, {v(V_EXR)} offset:{1024*w}", tok=f"xr{gen}")
    return w_.ins, b_.ins, r_.ins


def conv_post(gen):
    q = sub()
    h = HO + 4 * gen
    if "exact" not in OPT:
        for c2 in range(2):
            for i in range(2):
                q(f"v_pk_add_f32 {v(TT+4*c2+2*i,2)}, {v(TT+4*c2+2*i,2)}, {v(YY+8*c2+2*i,2)}")
            for i in range(2):
                q(f"v_pk_add_f32 {v(TT+4*c2+2*i,2)}, {v(TT+4*c2+2*i,2)}, {v(YY+8*c2+4+2*i,2)}")
        for j in range(4):
            q(f"v_cvt_pk_bf16_f32 {v(h+j)}, {v(TT+j)}, {v(TT+4+j)}")
        q(f"buffer_store_dwordx4 {v(h,4)}, {v(V_EXW)}, {srd(SRD_WS)}, s{S_PST} offen sc1", tok=f"h{gen}")
        return q.ins
    for c2 in range(2):
        for i in range(2):
            q(f"v_pk_add_f32 {v(YY+8*c2+2*i,2)}, {v(YY+8*c2+2*i,2)}, {v(YY+8*c2+4+2*i,2)}")
    for j in range(4):
        q(f"v_cvt_pk_bf16_f32 {v(WW+j)}, {v(YY+j)}, {v(YY+8+j)}")
    for j in range(4):
        q(f"v_lshlrev_b32 {v(YY+2*j)}, 16, {v(WW+j)}")
        q(f"v_and_b32 {v(YY+2*j+1)}, 0xffff0000, {v(WW+j)}")
    for j in range(4):
        q(f"v_pk_add_f32 {v(YY+2*j,2)}, {v(YY+2*j,2)}, {v(TT+2*j,2)}")
    for j in range(4):
        q(f"v_cvt_pk_bf16_f32 {v(WW+j)}, {v(YY+2*j)}, {v(YY+2*j+1)}")
    for j in range(4):
        q(f"v_lshlrev_b32 {v(YY+8+2*j)}, 16, {v(XX+j)}")
        q(f"v_and_b32 {v(YY+8+2*j+1)}, 0xffff0000, {v(XX+j)}")
    for j in range(4):
        q(f"v_lshlrev_b32 {v(YY+2*j)}, 16, {v(WW+j)}")
        q(f"v_and_b32 {v(YY+2*j+1)}, 0xffff0000, {v(WW+j)}")
    for j in range(4):
        q(f"v_pk_add_f32 {v(YY+2*j,2)}, {v(YY+2*j,2)}, {v(YY+8+2*j,2)}")
    h = HO + 4 * gen
    for j in range(4):
        q(f"v_cvt_pk_bf16_f32 {v(h+j)}, {v(YY+2*j)}, {v(YY+2*j+1)}")
    q(f"buffer_store_dwordx4 {v(h,4)}, {v(V_EXW)}, {srd(SRD_WS)}, s{S_PST} offen sc1", tok=f"h{gen}")
    return q.ins


V_A = 17
ad1 = sub()
ad1(f"v_bfe_u32 v4, {v(V_LANE)}, 3, 1")
ad1(f"v_lshrrev_b32 v5, 5, {v(V_LANE)}")
ad1(f"v_lshl_add_u32 v4, v5, 1, v4")
ad1(f"v_and_b32 v5, 0x70, {v(V_L16)}")
ad1(f"v_lshlrev_b32 v6, 5, v4")
ad1(f"v_xor_b32 v5, v5, v6")
ad1(f"v_bfe_u32 v6, {v(V_LANE)}, 4, 1")
ad1(f"v_lshl_add_u32 v4, v4, 1, v6")
ad1(f"v_mul_u32_u24 v4, {PROW}, v4")
ad1(f"v_add3_u32 {v(V_A)}, v4, v5, s{S_AB}")
for k in range(1, 4):
    ad1(f"v_add_u32 {v(V_A+k)}, {k*(8*PROW-1024)}, {v(V_A)}")


def act_dma(J):
    o = []
    gen, T = J >> 1, J & 1
    for kk in range(2):
        q = sub()
        q(f"s_add_u32 m0, s{S_ACTW}, {L_ACT[gen] + T*28672 + kk*4096}")
        q(f"s_mov_b32 s{S_WOFF}, {kk*32*PROW + PGEN*gen + 128*T}")
        for k in range(4 - kk):
            of = f" offset:{1024*k}" if k else ""
            q(f"buffer_load_dwordx4 {v(V_A+k)}, {srd(SRD_WS)}, s{S_WOFF} offen{of} sc1 lds", tok=f"act{J}")
        o.append(q.ins)
    return o


V_BR, V_S2, V_HST, V_BR2 = 21, 22, 24, 26
V_LF, V_LR = 28, 29
V_RES = 27
V_OST, V_RR, V_RW, V_HL = 45, 41, 42, 44
SEL = 176
CSA = [180, 184]
ad = sub()
ad(f"s_add_u32 s{S_PA}, s{S_PA}, 0x8000")
ad(f"v_and_b32 v4, 31, {v(V_LANE)}")
ad(f"v_lshrrev_b32 v5, 5, {v(V_LANE)}")
ad(f"v_mul_u32_u24 v5, {512+64}, v5")
ad(f"v_lshlrev_b32 v6, 2, v4")
ad(f"v_xor_b32 {v(V_BR)}, v5, v6")
ad(f"v_xor_b32 {v(V_BR2)}, 0xa0, {v(V_BR)}")
NAD2 = len(ad.ins)
ad(f"s_lshl_b32 s{S_T0}, s{S_TB}, 10")
ad(f"s_mul_i32 s{S_T1}, s{S_DB}, {S2REP}")
ad(f"s_add_u32 s{S_T0}, s{S_T0}, s{S_T1}")
ad(f"s_add_u32 s{S_T0}, s{S_T0}, {WS_S2}")
ad(f"v_lshl_add_u32 {v(V_S2)}, v4, 3, s{S_T0}")
ad(f"s_mov_b32 s{S_PERM}, 0x03020302")
ad(f"v_lshrrev_b32 v5, 4, {v(V_LANE)}")
ad(f"v_and_b32 v6, 15, {v(V_LANE)}")
ad(f"v_and_b32 v4, 1, v5")
ad(f"v_mul_u32_u24 v4, 57344, v4")
ad(f"v_lshl_add_u32 v4, v6, 4, v4")
ad(f"v_lshrrev_b32 v7, 1, v5")
ad(f"v_lshl_add_u32 v4, v7, 8, v4")
ad(f"s_mul_i32 s{S_T0}, s{S_TB}, {8*57344}")
ad(f"s_lshl_b32 s{S_T1}, s{S_FB}, 2")
ad(f"s_add_u32 s{S_T1}, s{S_T1}, s{S_V}")
ad(f"s_lshl_b32 s{S_T2}, s{S_T1}, 10")
ad(f"s_add_u32 s{S_T0}, s{S_T0}, {WS_H}")
ad(f"s_add_u32 s{S_T2}, s{S_T2}, s{S_T0}")
ad(f"v_add_u32 {v(V_HST)}, s{S_T2}, v4")
if "tch" in OPT:
    ad(f"s_mul_i32 s{S_TCH}, s{S_FH}, 57344")
    ad(f"s_add_u32 s{S_TCH}, s{S_TCH}, s{S_T2}")
    if "tch2" in OPT:
        ad(f"s_mul_i32 s{S_T3}, s{S_FH}, 28672")
        ad(f"s_sub_u32 s{S_TCH}, s{S_TCH}, s{S_T3}")
ad(f"s_mul_i32 s{S_T2}, s{S_FH}, 57344")
ad(f"s_add_u32 s{S_T0}, s{S_T0}, s{S_T2}")
ad(f"s_lshl1_add_u32 s{S_T0}, s{S_ACTW}, s{S_T0}")
ad(f"v_add_u32 {v(V_HL)}, s{S_T0}, {v(V_L16)}")
ad(f"s_lshl_b32 s{S_T0}, s{S_TB}, 13")
ad(f"s_add_u32 s{S_T0}, s{S_T0}, {WS_C + 65536}")
ad(f"s_mul_i32 s{S_T1}, s{S_T1}, 37")
ad(f"s_and_b32 s{S_T1}, s{S_T1}, 0x600")
ad(f"s_add_u32 s{S_F3}, s{S_T0}, s{S_T1}")
ad(f"s_lshl1_add_u32 s{S_T1}, s{S_V}, s{S_FH}")
ad(f"s_lshl_b32 s{S_T1}, s{S_T1}, 8")
ad(f"s_add_u32 s{S_P3}, s{S_T0}, s{S_T1}")
for k in range(1, 4):
    ad(f"s_movk_i32 s{S_HR+k}, {4096*k}")
ad(f"s_add_u32 s{S_FW}, s{S_RING}, 32768")
ad(f"s_lshl_b32 s{S_R2}, s{S_V}, 14")
ad(f"v_add_u32 {v(V_LF)}, s{S_FW}, {v(V_L16)}")
ad(f"v_add_u32 {v(V_LR)}, s{S_R2}, {v(V_L16)}")
ad2 = ad
se = sub()
se(f"v_bfe_u32 v4, {v(V_LANE)}, 2, 2")
se(f"v_bfe_u32 v5, {v(V_LANE)}, 4, 1")
se(f"v_mov_b32 v6, 0x3f803f80")
se(f"v_cmp_eq_u32 vcc, v4, v5")
for i in range(4):
    se(f"v_cndmask_b32 {v(SEL+i)}, 0, v6, vcc")


def cs_mfma(ks0, ks1):
    q = sub()
    for ks in range(ks0, ks1):
        for m in range(2):
            c = "0" if ks == 0 else v(CSA[m], 4)
            q(f"v_mfma_f32_16x16x32_bf16 {v(CSA[m],4)}, {v(SEL,4)}, {acc(wfrag(m,ks),4)}, {c}")
    return q.ins


def pin_spread(g, start, ins, per=2):
    for i, x in enumerate(ins):
        g.at(int(start + i // per), [x])
    return int(start + (len(ins) + per - 1) // per)


def gap_stamps(g, name):
    if OPT.get("gs", "").startswith(name + ":"):
        for k in OPT["gs"].split(":")[1].split(","):
            q = sub()
            stamp(f"{name} g{k}", q)
            g.pin[int(k)] = q.ins + g.pin[int(k)]


mA, mB = conv_mfmas(0), conv_mfmas(1)
NCS0 = int(OPT.get("ncs0", 8))
NOV = int(OPT.get("nov", 15))
bl = b_loads(0, 4)


def ab(rr):
    al = a_loads(rr, 0, 4)
    o = []
    for a in range(4):
        o += ([bl[4 * rr + a]] if not (EARLYB and 4 * rr + a < int(OPT["eb"])) else []) + al[2 * a:2 * a + 2]
    return o


pr, pv = conv_pre(0)
P.add(ab(0) + ab(1)[:3])
P.add(b2.pop(0))
P.add(b2.pop(0))
g = Gaps(mA + mB[:NOV], 2)
l1 = ab(1)[3:] + ab(2) + ab(3) + pr
NL1 = int(OPT.get("nl1", 24))
for i, x in enumerate(l1):
    g.at(i * NL1 // len(l1), [x])
xw, xb, xr = conv_xchg(0)
for i, k in enumerate([int(x) for x in OPT.get("xa", "33,35,38,42").split(",")]):
    g.at(k, [xw[i]])
XB = int(OPT.get("xb", 45))
g.fill(pv, start=NL1 + 5, end=XB + 8, cap=2.5)
g.at(XB, xb)
g.at(XB + 1, xr)
pin_vm(g, XB + 2, b2[:2], 3)
b2 = b2[2:]
P.add(g.out())
P.add(conv_post(0))
stamp("genA stored")
nb = b_loads(4, 8)
newl = []
for rr in range(4):
    newl += nb[4 * rr:4 * rr + 4] + a_loads(rr, 4, 8)
P.add(newl[:8])
g = Gaps(mB[NOV:] + cs_mfma(0, NCS0), 2)
NB_ = len(mB) - NOV
pin_spread(g, 0, newl[8:], per=1)
g.at(0, waitq("w1_3"))
pin_spread(g, 0, tr1[24:], per=1)
pin_vm(g, 1, b2, 3.5)
fl = sub()
fl.wait("h0")
addcnt(fl, S_F2, V_FL2)
fl(f"s_add_u32 s{S_F2}, s{S_F2}, 0x8000")
g.at(int(OPT.get("fa", 24)), fl.ins)
tr2 = batch_tr(1)
T2 = [int(x) for x in OPT.get("t2", "12,24,44,60").split(",")]
b3 = batch_dma(2, "w3")
for i in range(4):
    pin_spread(g, T2[i], waitq(f"w2_{i}") + tr2[8 * i:8 * i + 8], per=1)
    b3[i] = waitq(f"t1_{i}") + b3[i]
pin_vm(g, 30, b3[:2], 3)
pin_vm(g, 56, b3[2:3], 3)
pin_vm(g, 71, b3[3:4], 2.5)
pr, pv = conv_pre(1)
pin_spread(g, 41, pr, per=1)
newl[-1].tok = "lastfrag"
bq = sub()
bq.wait("lastfrag")
bq("s_barrier")
g.at(54, bq.ins)
x2 = sub()
x2(f"v_add_u32 {v(V_EXW)}, {L_KC}, {v(V_EXW)}")
x2(f"s_lshl_b32 s{S_T0}, s{S_V}, 12")
x2(f"s_add_u32 s{S_T0}, s{S_T0}, {L_KC}")
x2(f"v_add_u32 {v(V_EXR)}, s{S_T0}, {v(V_L16)}")
x2(f"s_add_u32 s{S_PST}, s{S_PST}, {PGEN - L_KC}")
PA1, PA2, PAC = int(OPT.get("pa1", 58)), int(OPT.get("pa2", 72)), int(OPT.get("pac", 86))
e = g.fill(x2.ins + ad1.ins + se.ins, start=34, end=NB_ - 16)
g.fill(pv, start=max(e, 50), end=NB_ + 10)
g.at(PA1, poll_issue(S_PA, 7))
g.at(PA2, poll_issue(S_PA, 23))
if "pa3" in OPT:
    g.at(int(OPT["pa3"]), poll_first("a", S_PA, 24))
    g.at(PAC, poll_checkn(S_PA, [7, 23, 24], "3", f"s{S_E28}"))
else:
    g.at(PAC, stq("pre pollA") + poll_check2(S_PA, 7, 23, "3", f"s{S_E28}") + stq("post pollA"))
a0 = singles(act_dma(0) + act_dma(1))
AS = float(OPT.get("as", 3))
na = int((g.n - 1 - PAC) / AS) + 1
pin_vm(g, PAC, a0[:na], AS)
xw, xb, xr = conv_xchg(1)
for i, k in enumerate((-15, -11, -5, 3)):
    g.at(NB_ + k, [xw[i]])
g.at(NB_ + 6, xb)
g.at(NB_ + 7, xr)
gap_stamps(g, "s2")
o_ = g.out()
X = OPT.get("x2", "")
if "d" in X:
    o_ = [i for i in o_ if not (i.cls == "vmem" and i.tok and i.tok[0] == "w")]
if "t" in X:
    o_ = [i for i in o_ if "tr_b16" not in i.mn]
if "a" in X:
    o_ = [i for i in o_ if "ds_read2_b32" not in i.mn]
P.add(o_)
P.add(conv_post(1))
stamp("genB stored")
NCH_ = int(OPT.get("nch", 7))
g = Gaps(cs_mfma(NCS0, 24 - NCH_), 3)
g.at(1, poll_first("w", S_P4, 25))
tr3 = batch_tr(2)
t3 = []
for i in (0, 1, 2, 3):
    t3 += waitq(f"w3_{i}") + tr3[8 * i:8 * i + 8]
pin_spread(g, 0, t3, per=2)
e = pin_vm(g, 0, a0[na:], 2)
fl = sub()
fl.wait("h1")
addcnt(fl, S_F2, V_FL2)
g.fill(ad2.ins[:NAD2], start=18)
w4 = singles([waitq("t2_3") + w_dma(6, 0, 8, "w4"), w_dma(6, 1, 12, "w4")])
P.add(g.out())
stamp("gap work done")

GACC = [64, 96]
BF = 128
NBF = 8
MB = 160
KC_ = [14, 9]
STT = 60
EPT = 164
HP = 172
WDV = 188
RESR = [46, 48, 50, 52]
A_CS = [224, 228]
GC0 = -2.0 * math.sqrt(2.0 / math.pi) * LOG2E


def st_issue(J, atomic=None):
    q = sub()
    t = STT + 2 * (J & 1)
    atomic = False if atomic is None else atomic
    if atomic:
        q(f"v_mov_b64 {v(t,2)}, 0")
        q(f"buffer_atomic_add_x2 {v(t,2)}, {v(V_S2)}, {srd(SRD_WS)}, 0 offen offset:{256*J} sc0")
    else:
        q(f"buffer_load_dwordx2 {v(t,2)}, {v(V_S2)}, {srd(SRD_WS)}, 0 offen offset:{256*J} sc1")
    return q.ins


def st_check(J):
    q = sub()
    t = STT + 2 * (J & 1)
    slow, done = label("sslow"), label("sdone")
    q(f"v_cmp_ne_u32 vcc, s{S_NONCE}, {v(t+1)}")
    q(f"s_cbranch_vccnz {slow}")
    q(f"{done}:")
    spin(TAIL, slow, done, st_issue(J, True), t + 1, sleep=1)
    return q.ins


def st_final(J):
    q = sub()
    kc = KC_[J & 1]
    t = STT + 2 * (J & 1)
    q(f"v_perm_b32 {v(MB)}, {v(t)}, {v(t)}, s{S_PERM}")
    q(f"v_cvt_f32_f16 {v(t)}, {v(t)}")
    q(f"v_mul_f32 {v(t+1)}, {v(t)}, {v(t)}")
    q(f"v_mul_f32 {v(kc)}, {f32(GC0)}, {v(t)}")
    q(f"v_rcp_f32 {v(kc+2)}, {v(t+1)}")
    q(f"v_mul_f32 {v(kc+1)}, {v(t+1)}, {v(kc)}")
    q(f"v_mul_f32 {v(kc+1)}, {f32(0.044715)}, {v(kc+1)}")
    return q.ins


SP = Prog()
spn = [1]


def sps():
    if STAMPS and "lite" in OPT:
        SP(f"s_memrealtime s[{S_STAMP}:{S_STAMP+1}]")
        SP("s_waitcnt lgkmcnt(0)")
        SP(f"v_writelane_b32 v255, s{S_STAMP}, {spn[0]}")
        spn[0] += 1


SP("L_spare:")
SP("s_barrier")
sps()
SP(f"s_and_b32 s{S_T0}, s{S_W}, 6")
SP(f"s_lshl_b32 s{S_T0}, s{S_T0}, 1")
SP(f"s_bfe_u32 s{S_T1}, s{S_W}, 0x20003")
if "genj" in OPT:
    SP(f"s_and_b32 s{S_T2}, s{S_T1}, 2")
    SP(f"s_add_u32 s{S_T0}, s{S_T0}, s{S_T2}")
    SP(f"s_add_u32 s{S_TB}, s{S_T0}, s{S_FH}")
    SP(f"s_and_b32 s{S_FH}, s{S_T1}, 1")
else:
    SP(f"s_add_u32 s{S_TB}, s{S_T0}, s{S_T1}")
SP(f"s_lshr_b32 s{S_T0}, s{S_TB}, 2")
SP(f"s_lshl2_add_u32 s{S_T0}, s{S_FH}, s{S_T0}")
SP(f"s_lshl3_add_u32 s{S_T0}, s{S_T0}, s{S_T1}")
SP(f"s_lshl2_add_u32 s{S_T0}, s{S_T0}, s{S_V}")
SP(f"s_lshl_b32 s{S_T0}, s{S_T0}, 8")
SP(f"s_add_u32 s{S_PA}, s{S_T0}, {WS_C}")
SP(f"s_mul_i32 s{S_T1}, s{S_V}, 56")
SP(f"v_mov_b32 {v(V_NONCE)}, 7")
lanes_reg(SP, V_FLG, 4, 8)
SP(f"v_lshrrev_b32 v5, 4, {v(V_LANE)}")
SP(f"v_and_b32 v6, 15, {v(V_LANE)}")
SP(f"v_mul_u32_u24 v4, {PROW}, v5")
SP(f"v_lshl_add_u32 v4, v6, 4, v4")
SP(f"s_mul_i32 s{S_T1}, s{S_T1}, {PROW}")
SP(f"s_lshl_b32 s{S_T0}, s{S_TB}, 8")
SP(f"s_add_u32 s{S_T0}, s{S_T0}, s{S_T1}")
SP(f"s_mul_i32 s{S_T1}, s{S_FH}, {PGEN}")
SP(f"s_add_u32 s{S_T0}, s{S_T0}, s{S_T1}")
SP(f"s_add_u32 s{S_T0}, s{S_T0}, {WS_P}")
SP(f"v_add_u32 v11, s{S_T0}, v4")
SP(f"v_lshl_add_u32 v4, v6, 2, v5")
SP(f"s_lshl_b32 s{S_T0}, s{S_V}, 9")
SP(f"v_lshl_add_u32 v12, v4, 3, s{S_T0}")
SP(f"v_lshlrev_b32 v13, 3, {v(V_LANE)}")
SP(f"v_mov_b32 v14, 0x3f803f80")
if not NOPF and EPF < 25:
    NREM = 12544 - 512 * EPF
    LR = -(-NREM // (64 * 4))
    SP(f"s_sub_u32 s{S_T1}, s{S_W}, 224")
    SP(f"s_lshr_b32 s{S_T0}, s{S_V}, 1")
    SP(f"s_lshl1_add_u32 s{S_T1}, s{S_T1}, s{S_T0}")
    SP(f"s_mul_i32 s{S_T1}, s{S_T1}, {LR*128}")
    SP(f"s_add_u32 s{S_T1}, s{S_T1}, {(12544-256*LR)*128}")
    SP(f"v_min_u32 v4, {LR-1}, {v(V_LANE)}")
    SP(f"v_lshl_add_u32 v4, v4, 7, s{S_T1}")
    NB3 = int(OPT.get("nb3", 0))
    SP(f"s_mul_i32 s{S_T0}, s{S_FH}, {64*LR*128}")
    SP(f"s_mul_i32 s{S_T1}, s{S_FH}, {2*LR*128}")
    for k in range(4):
        SP(f"global_load_dword {v(56+k)}, v4, s[{S_PFB}:{S_PFB+1}]")
        if k >= 4 - NB3:
            SP(f"v_subrev_u32 v5, s{S_T1}, v4")
            SP(f"global_load_dword {v(60+k)}, v5, s[{S_PFB}:{S_PFB+1}]")
        if k < 3 - NB3:
            SP(f"v_add_u32 v4, {64*LR*128}, v4")
        elif k < 3:
            SP(f"v_add_u32 v4, s{S_T0}, v4")
SP(f"s_sub_u32 s{S_T1}, s{S_W}, 224")
SP(f"s_cmp_ge_u32 s{S_T1}, 28")
SP("s_cbranch_scc1 L_sp_nowf")
SP(f"s_lshr_b32 s{S_DB}, s{S_T1}, 2")
SP(f"s_and_b32 s{S_T2}, s{S_T1}, 3")
SP(f"s_lshl_b32 s{S_F3}, s{S_T1}, 10")
SP(f"s_add_u32 s{S_F3}, s{S_F3}, {WS_C + 896*256}")
SP(f"s_mul_i32 s{S_T1}, s{S_T1}, {14*4096}")
SP(f"s_add_u32 s{S_T1}, s{S_T1}, {WS_WF}")
SP(f"v_add_u32 v20, s{S_T1}, {v(V_L16)}")
SP(f"v_lshrrev_b32 v6, 3, {v(V_LANE)}")
SP(f"v_and_b32 v7, 6, v6")
SP(f"v_and_b32 v5, 7, {v(V_LANE)}")
SP(f"v_xor_b32 v7, v7, v5")
SP(f"v_mul_u32_u24 v6, 896, v6")
SP(f"v_lshl_add_u32 v6, v7, 4, v6")
SP(f"s_mul_i32 s{S_T0}, s{S_T2}, {448*896}")
SP(f"s_lshl_b32 s{S_T1}, s{S_DB}, 7")
SP(f"s_add_u32 s{S_T0}, s{S_T0}, s{S_T1}")
SP(f"v_add_u32 v48, s{S_T0}, v6")
for k in range(1, 4):
    SP(f"v_add_u32 {v(48+k)}, {k*(7168-1024)}, v48")
SP(f"s_lshl_b32 s{S_R2}, s{S_V}, 14")
SP(f"s_add_u32 s{S_R2}, s{S_R2}, 4096")
for i in range(4):
    SP(f"s_lshl2_add_u32 s{S_HR+i}, s{S_V}, {i}")
    SP(f"s_min_u32 s{S_HR+i}, s{S_HR+i}, 13")
    SP(f"s_mul_i32 s{S_WOFF}, s{S_HR+i}, {32*896}")
    SP(f"s_add_u32 m0, s{S_R2}, {4096*i}")
    SP(f"s_lshl_b32 s{S_HR+i}, s{S_HR+i}, 12")
    for k in range(4):
        of = f" offset:{1024*k}" if k else ""
        SP(f"buffer_load_dwordx4 {v(48+k)}, {srd(SRD_WD)}, s{S_WOFF} offen{of} lds", tok=f"sw{i}")
SP(f"v_lshrrev_b32 v4, 4, {v(V_LANE)}")
SP(f"v_lshrrev_b32 v6, 1, v4")
SP(f"v_lshlrev_b32 v6, 4, v6")
SP(f"v_and_b32 v7, 1, v4")
SP(f"v_lshl_add_u32 v6, v7, 2, v6")
SP(f"v_bfe_u32 v7, {v(V_LANE)}, 2, 2")
SP(f"v_add_u32 v6, v6, v7")
SP(f"v_bfe_u32 v7, v6, 1, 2")
SP(f"v_lshlrev_b32 v6, 7, v6")
SP(f"v_and_b32 v5, 3, {v(V_LANE)}")
SP(f"v_lshl_add_u32 v6, v5, 3, v6")
for rt in range(4):
    SP(f"v_xor_b32 v5, {rt}, v7")
    SP(f"v_lshl_add_u32 v5, v5, 5, v6")
    SP(f"v_add_u32 {v(52+rt)}, s{S_R2}, v5")
for i in range(4):
    SP.wait(f"sw{i}")
    if i in (0, 3): sps()
    for rt in range(4):
        for h in range(2):
            SP(f"ds_read_b64_tr_b16 {v(64+16*i+4*rt+2*h,2)}, {v(52+rt)} offset:{4096*i+1024*h}")
    for rt in range(4):
        SP(f"buffer_store_dwordx4 {v(64+16*i+4*rt,4)}, v20, {srd(SRD_WS)}, s{S_HR+i} offen offset:{1024*rt} sc1")
SP("s_waitcnt vmcnt(0)")
addcnt(SP, S_F3, V_FLG)
sps()
SP("L_sp_nowf:")
sps()
SP("s_mov_b64 vcc, 3")
spin(SP, "L_sp_c", "L_sp_d", poll_issue(S_PA, 7), 7, sleep=int(OPT.get('spsleep', 2)), exp=f"s{S_E28}")
SP("L_sp_d:")
sps()
for k in range(14):
    SP(f"s_mov_b32 s{S_T0}, {k*4*PROW}")
    SP(f"buffer_load_dwordx4 {v(64+4*k,4)}, v11, {srd(SRD_WS)}, s{S_T0} offen sc1")
SS = 16
for j in range(8):
    SP(f"v_mov_b32 {v(SS+j)}, 0")
for k in range(14):
    for j in range(4):
        SP(f"v_dot2c_f32_bf16 {v(SS+j)}, {v(64+4*k+j)}, v14")
    for j in range(4):
        SP(f"v_dot2c_f32_bf16 {v(SS+4+j)}, {v(64+4*k+j)}, {v(64+4*k+j)}")
for o in (0, 4):
    SP(f"v_permlane32_swap_b32 {v(SS+o)}, {v(SS+o+2)}")
    SP(f"v_permlane32_swap_b32 {v(SS+o+1)}, {v(SS+o+3)}")
for o in (0, 4):
    SP(f"v_add_f32 {v(SS+o)}, {v(SS+o)}, {v(SS+o+2)}")
    SP(f"v_add_f32 {v(SS+o+1)}, {v(SS+o+1)}, {v(SS+o+3)}")
for o in (0, 4):
    SP(f"v_permlane16_swap_b32 {v(SS+o)}, {v(SS+o+1)}")
SP(f"v_add_f32 {v(SS)}, {v(SS)}, {v(SS+1)}")
SP(f"v_add_f32 {v(SS+1)}, {v(SS+4)}, {v(SS+5)}")
sps()
SP(f"ds_write_b64 v12, {v(SS,2)}")
SP("s_waitcnt lgkmcnt(0)")
SP("s_barrier")
SP(f"s_cmp_lg_u32 s{S_V}, 0")
SP("s_cbranch_scc1 L_fin")
t = 24
for w in range(4):
    SP(f"ds_read_b64 {v(t+2*w,2)}, v13 offset:{512*w}")
SP(f"s_lshl_b32 s{S_T0}, s{S_TB}, 1")
SP(f"s_add_u32 s{S_T0}, s{S_T0}, s{S_FH}")
SP(f"s_lshl_b32 s{S_T0}, s{S_T0}, 9")
SP(f"s_add_u32 s{S_T0}, s{S_T0}, {WS_S2}")
SP(f"v_pk_add_f32 {v(t,2)}, {v(t,2)}, {v(t+2,2)}")
SP(f"v_pk_add_f32 {v(t+4,2)}, {v(t+4,2)}, {v(t+6,2)}")
SP(f"v_pk_add_f32 {v(t,2)}, {v(t,2)}, {v(t+4,2)}")
SP(f"v_mul_f32 {v(t)}, s{S_K0}, {v(t)}")
SP(f"v_mul_f32 {v(t+1)}, s{S_K0}, {v(t+1)}")
SP(f"v_fma_f32 {v(t+1)}, -{v(t)}, {v(t)}, {v(t+1)}")
SP(f"v_max_f32 {v(t+1)}, 0, {v(t+1)}")
SP(f"v_add_f32 {v(t+1)}, {f32(1e-5)}, {v(t+1)}")
SP(f"v_rsq_f32 {v(t+1)}, {v(t+1)}")
SP(f"v_cvt_pk_bf16_f32 {v(t)}, 0, -{v(t)}")
SP(f"v_cvt_f16_f32 {v(t+1)}, {v(t+1)}")
SP(f"v_and_b32 {v(t+1)}, 0xffff, {v(t+1)}")
SP(f"v_or_b32 {v(t)}, {v(t)}, {v(t+1)}")
SP(f"v_mov_b32 {v(t+1)}, s{S_NONCE}")
for r_ in range(7):
    SP(f"buffer_store_dwordx2 {v(t,2)}, v13, {srd(SRD_WS)}, s{S_T0} offen sc1")
    SP(f"s_add_u32 s{S_T0}, s{S_T0}, {S2REP}")
sps()
SP(f"s_cmp_lg_u32 s{S_W}, 255")
SP("s_cbranch_scc1 L_fin")
SP(f"v_lshlrev_b32 v4, 25, {v(V_LANE)}")
SP(f"buffer_store_dword {v(t+1)}, v4, {srd(SRD_WS)}, 0 offen sc1")
SP("s_branch L_fin")


def b_read(J, ks):
    q = sub()
    b = BF + 4 * (ks % NBF)
    o = 112 * (J & 1) + 4 * ks
    q(f"ds_read2st64_b32 {v(b,2)}, {v(V_BR)} offset0:{o} offset1:{o+1}")
    q(f"ds_read2st64_b32 {v(b+2,2)}, {v(V_BR2)} offset0:{o} offset1:{o+1}", tok=f"b{J}_{ks}")
    return q.ins


def g1_gaps(J, extra_after=None):
    m = sub()
    g0 = GACC[J & 1]
    for ks in range(28):
        for mm in range(2):
            d = g0 + 16 * mm
            c = "0" if ks == 0 else v(d, 16)
            m(f"v_mfma_f32_32x32x16_bf16 {v(d,16)}, {acc(wfrag(mm,ks),4)}, {v(BF+4*(ks%NBF),4)}, {c}")
    for mm in range(2):
        d = g0 + 16 * mm
        m(f"v_mfma_f32_32x32x16_bf16 {v(d,16)}, {acc(A_CS[mm],4)}, {v(MB,4)}, {v(d,16)}")
    g = Gaps(m.ins, 6)
    for ks in range(28):
        k2 = ks + NBF - 1
        if k2 < 28:
            r = b_read(J, k2)
            g.at(2 * ks, [r[0]])
            g.at(2 * ks + 1, [r[1]])
        if ks % 3 == 2 and ks + 1 < 28:
            w = sub()
            w.wait(f"b{J}_{min(ks+3,27)}")
            g.at(2 * ks + 1, w.ins)
    return g


def next_tile_reads(g, J, delta, first=42):
    q = sub()
    if delta:
        q(f"v_add_u32 {v(V_BR)}, {delta}, {v(V_BR)}")
        q(f"v_add_u32 {v(V_BR2)}, {delta}, {v(V_BR2)}")
    g.at(first, q.ins)
    for ks in range(NBF - 1):
        old = max(k for k in range(28) if k % NBF == ks)
        r = b_read(J, ks)
        at = max(2 * old + 1, first + 1)
        g.at(at, r[:1])
        g.at(min(at + 1, 57), r[1:])


def g1_epi(J):
    q = sub()
    g = GACC[J & 1]
    kc = KC_[J & 1]
    T = EPT
    for j0 in range(0, 16, 4):
        js = range(j0, j0 + 4)
        for j in js:
            q(f"v_mul_f32 {v(T+j-j0)}, {v(g+j)}, {v(g+j)}")
        for j in js:
            q(f"v_fma_f32 {v(T+j-j0)}, {v(T+j-j0)}, {v(kc+1)}, {v(kc)}")
        for j in js:
            q(f"v_mul_f32 {v(T+j-j0)}, {v(T+j-j0)}, {v(g+j)}")
        for j in js:
            q(f"v_exp_f32 {v(T+j-j0)}, {v(T+j-j0)}")
            q(f"v_mul_f32 {v(T+4+j-j0)}, {v(g+j)}, {v(g+16+j)}")
        for j in js:
            q(f"v_fma_f32 {v(T+j-j0)}, {v(T+j-j0)}, {v(kc+2)}, {v(kc+2)}")
        for j in js:
            q(f"v_rcp_f32 {v(T+j-j0)}, {v(T+j-j0)}")
        for j in js:
            q(f"v_mul_f32 {v(T+4+j-j0)}, {v(T+4+j-j0)}, {v(T+j-j0)}")
        q(f"v_cvt_pk_bf16_f32 {v(HP+(j0//2)%4)}, {v(T+4)}, {v(T+5)}")
        q(f"v_cvt_pk_bf16_f32 {v(HP+(j0//2)%4+1)}, {v(T+6)}, {v(T+7)}")
        if j0 in (4, 12):
            q2 = j0 // 8
            q(f"buffer_store_dwordx4 {v(HP,4)}, {v(V_HST)}, {srd(SRD_WS)}, 0 offen offset:{512*q2} sc1", tok=f"H{J}")
    q(f"v_add_u32 {v(V_HST)}, {2*57344}, {v(V_HST)}")
    return q.ins


def g1_epi_pk(J):
    q = sub()
    g = GACC[J & 1]
    assert KC_[J & 1] == 9
    T = EPT
    for j0 in range(0, 16, 8):
        pr_ = range(j0, j0 + 8, 2)
        for j in pr_:
            q(f"v_pk_mul_f32 {v(T+j-j0,2)}, {v(g+j,2)}, {v(g+j,2)}")
        for j in pr_:
            q(f"v_pk_fma_f32 {v(T+j-j0,2)}, {v(T+j-j0,2)}, v[10:11], v[8:9] op_sel:[0,0,1] op_sel_hi:[1,0,1]")
        for j in pr_:
            q(f"v_pk_mul_f32 {v(T+j-j0,2)}, {v(T+j-j0,2)}, {v(g+j,2)}")
        for j in range(j0, j0 + 8):
            q(f"v_exp_f32 {v(T+j-j0)}, {v(T+j-j0)}")
        for j in pr_:
            q(f"v_pk_mul_f32 {v(g+j,2)}, {v(g+j,2)}, {v(g+16+j,2)}")
        for j in pr_:
            q(f"v_pk_fma_f32 {v(T+j-j0,2)}, {v(T+j-j0,2)}, v[10:11], v[10:11] op_sel:[0,1,1] op_sel_hi:[1,1,1]")
        for j in range(j0, j0 + 8):
            q(f"v_rcp_f32 {v(T+j-j0)}, {v(T+j-j0)}")
        for j in pr_:
            q(f"v_pk_mul_f32 {v(g+j,2)}, {v(g+j,2)}, {v(T+j-j0,2)}")
        for j in pr_:
            q(f"v_cvt_pk_bf16_f32 {v(HP+(j-j0)//2)}, {v(g+j)}, {v(g+j+1)}")
        q(f"buffer_store_dwordx4 {v(HP,4)}, {v(V_HST)}, {srd(SRD_WS)}, 0 offen offset:{512*(j0//8)} sc1", tok=f"H{J}")
    return q.ins


def flag3(J):
    q = sub()
    q.wait(f"H{J}")
    addcnt(q, S_F3, V_FLG)
    q(f"s_add_u32 s{S_F3}, s{S_F3}, 2048")
    if str(J) in OPT.get("tch", ""):
        q(f"s_add_u32 s{S_T3}, s{S_TCH}, {J*2*57344}")
        q(f"buffer_load_dword {v(253 + (J & 1))}, v40, {srd(SRD_WS)}, s{S_T3} offen sc1")
    return q.ins


WDREG = {}
for i in range(4):
    for rt in range(4):
        WDREG[i, rt] = v(WDV + 16 * i + 4 * rt, 4)
        WDREG[10, rt] = acc(240 + 4 * rt, 4)
        WDREG[11, rt] = v([176, 180, 184, 56][rt], 4)
        WDREG[12, rt] = acc(4 * rt, 4)
        WDREG[13, rt] = acc(16 + 4 * rt, 4)
for i in range(6):
    for rt in range(4):
        WDREG[4 + i, rt] = acc(128 + 16 * i + 4 * rt, 4)
KORD = [0, 1, 2, 3, 10, 11, 12, 13, 4, 5, 6, 7, 8, 9]


def wdr(ft, rt):
    return WDREG[ft, rt]


def wd_load(ft):
    q = sub()
    q(f"s_add_u32 s{S_WOFF}, s{S_WFB}, {(ft*4096) if 'hot' not in OPT else 4096*(ft%2)}")
    for k in range(4):
        of = f" offset:{1024*k}" if k else ""
        q(f"buffer_load_dwordx4 {wdr(ft,k)}, {v(V_L16)}, {srd(SRD_WS)}, s{S_WOFF} offen{of} sc1")
    return q.ins


def wd_dma(ft):
    q = sub()
    sbase, slot = (S_FW, ft - 4) if ft < 6 else (S_R2, ft - 6)
    q(f"s_add_u32 m0, s{sbase}, {slot*4096}")
    q(f"s_add_u32 s{S_WOFF}, s{S_WFB}, {(ft*4096) if 'hot' not in OPT else 4096*(ft%2)}")
    for k in range(4):
        of = f" offset:{1024*k}" if k else ""
        q(f"buffer_load_dwordx4 {v(V_L16)}, {srd(SRD_WS)}, s{S_WOFF} offen{of} sc1 lds", tok=f"wd{ft}")
    return q.ins


def wd_read(ft):
    q = sub()
    va, slot = (V_LF, ft - 4) if ft < 6 else (V_LR, ft - 6)
    for rt in range(4):
        q(f"ds_read_b128 {wdr(ft,rt)}, {v(va)} offset:{4096*slot+1024*rt}")
    return q.ins


def res_read(J):
    q = sub()
    o = 112 * (J & 1)
    q(f"ds_read2st64_b32 {v(RESR[J],2)}, {v(V_RES)} offset0:{o} offset1:{o+1}", tok=f"res{J}")
    if J == 1:
        q(f"v_add_u32 {v(V_RES)}, {L_ACT[1]}, {v(V_RES)}")
    return q.ins


ad = sub()
ad(f"v_lshrrev_b32 v4, 4, v0")
ad(f"v_and_b32 v5, 15, v0")
ad(f"v_lshrrev_b32 v6, 1, v5")
ad(f"v_and_b32 v7, 1, v5")
ad(f"v_lshl_add_u32 v6, v6, 2, v7")
ad(f"s_lshl_b32 s{S_T0}, s{S_DB}, 12")
ad(f"v_lshl_add_u32 v6, v6, 7, s{S_T0}")
ad(f"s_lshl_b32 s{S_T1}, s{S_FH}, 6")
ad(f"v_lshl_add_u32 v7, v4, 2, s{S_T1}")
ad(f"v_add_u32 v6, v6, v7")
ad(f"v_and_b32 v7, 3, v5")
ad(f"v_lshlrev_b32 v7, 5, v7")
ad(f"v_xor_b32 {v(V_RES)}, v6, v7")
ad(f"v_lshrrev_b32 v6, 2, v4")
ad(f"v_and_b32 v7, 3, v4")
ad(f"v_lshl_add_u32 v6, v6, 4, v7")
ad(f"v_mul_u32_u24 v6, 896, v6")
ad(f"v_lshl_add_u32 v6, v5, 3, v6")
ad(f"s_lshr_b32 s{S_T0}, s{S_TB}, 2")
ad(f"s_lshl_b32 s{S_T0}, s{S_T0}, 8")
ad(f"s_add_u32 s{S_T0}, s{S_T0}, s{S_T1}")
ad(f"s_and_b32 s{S_T1}, s{S_TB}, 3")
ad(f"s_lshl_b32 s{S_T1}, s{S_T1}, 2")
ad(f"s_add_u32 s{S_T0}, s{S_T0}, s{S_T1}")
ad(f"s_mul_i32 s{S_T0}, s{S_T0}, 896")
ad(f"s_lshl_b32 s{S_T1}, s{S_DB}, 7")
ad(f"s_add_u32 s{S_T0}, s{S_T0}, s{S_T1}")
ad(f"v_add_u32 {v(V_OST)}, s{S_T0}, v6")
ad(f"v_mul_u32_u24 v6, 288, v5")
ad(f"v_lshl_add_u32 v6, v4, 4, v6")
ad(f"v_add_u32 {v(V_RR)}, {L_R}, v6")
ad(f"v_lshrrev_b32 v4, 4, {v(V_LANE)}")
ad(f"v_mul_u32_u24 v6, 288, v4")
ad(f"v_lshl_add_u32 v6, v5, 4, v6")
ad(f"s_mul_i32 s{S_T0}, s{S_V}, 4608")
ad(f"s_add_u32 s{S_T0}, s{S_T0}, {L_R}")
ad(f"v_add_u32 {v(V_RW)}, s{S_T0}, v6")
lanes_reg(ad, V_FLG, 2, 8)
if "tch2" in OPT:
    lanes_reg(ad, 40, 16, 7)
    ad(f"v_and_b32 v4, 8, {v(V_LANE)}")
    ad(f"v_mul_u32_u24 v4, {(28672-1024)//8}, v4")
    ad(f"v_add_u32 v40, v40, v4")
elif "tch" in OPT:
    lanes_reg(ad, 40, 8, 7)

for i in range(1, 4):
    P(f"v_mov_b32 {v(MB+i)}, 0")
    P(f"v_accvgpr_write_b32 {acc(A_CS[0]+i)}, 0")
    P(f"v_accvgpr_write_b32 {acc(A_CS[1]+i)}, 0")
walk("walk")
P.wait("act0")
P("s_waitcnt lgkmcnt(0)")
P("s_barrier")
stamp("gemm1 start")
for ks in range(3):
    P.add(b_read(0, ks))
g = Gaps(cs_mfma(24 - NCH_, 24), 2)
pin_spread(g, 0, sum([b_read(0, ks) for ks in range(3, NBF - 1)], []), per=1)
pin_vm(g, 1, w4[:3], 3)
P.add(g.out())

def hreg(J, ft):
    n = KORD.index(ft)
    if J in (0, 3):
        return acc(32 + 4 * n, 4)
    if J == 1:
        return v(64 + 4 * n if n < 8 else 128 + 4 * (n - 8), 4)
    return v(96 + 4 * n if n < 8 else 152 + 4 * (n - 8), 4)


def h_loads(J):
    o = []
    for s_ in KORD:
        q = sub()
        of = f" offset:{1024*(s_%4)}" if s_ % 4 else ""
        so = f"s{S_HR+s_//4}" if s_ >= 4 else "0"
        q(f"buffer_load_dwordx4 {hreg(J,s_)}, {v(V_HL)}, {srd(SRD_WS)}, {so} offen{of} sc1")
        o.append(q.ins)
    if J < 3:
        q = sub()
        q(f"v_add_u32 {v(V_HL)}, {2*57344}, {v(V_HL)}")
        o[-1] += q.ins
    return o


def p3_next():
    q = sub()
    q(f"s_add_u32 s{S_P3}, s{S_P3}, 2048")
    return q.ins


g = g1_gaps(0)
e = pin_vm(g, 0, w4[3:], 1.5)
g.at(int(OPT.get("fb", 2)), fl.ins)
g.at(e, poll_check(S_P4, 25))
WL = [wd_load(0), wd_load(1), wd_load(2), wd_load(3), wd_load(10), wd_dma(4), wd_dma(5), wd_load(11)]
N0_, N1_ = int(OPT.get("n0", 5)), int(OPT.get("n1", 2))
WS0 = int(OPT.get("ws0", 14))
e4 = pin_vm(g, WS0, WL[:N0_], (57 - WS0) / (4 * N0_))
t4 = w_tr(6, 0, 8, "t4") + w_tr(6, 1, 12, "t4")
g.at(30, waitq("w4"))
pin_spread(g, 30, t4, per=2)
g.at(41, waitq("t4") + cs_mfma(24, 28))
cf = sub()
for m in range(2):
    round_bf16(cf, 54, CSA[m])
    cf(f"v_sub_f32 v55, {v(CSA[m])}, v54")
    cf(f"v_cvt_pk_bf16_f32 v54, v54, v55")
    cf(f"v_accvgpr_write_b32 {acc(A_CS[m])}, v54")
g.fill(cf.ins, start=44, end=52)
g.at(int(OPT.get("pb1", 26)), poll_issue(S_PA, 23))
g.at(int(OPT.get("pb2", 40)), poll_first("b", S_PA, 25))
g.at(int(OPT.get("st0", 32)), st_issue(0))
g.at(53, stq("t0 pre st") + st_check(0) + stq("t0 post st"))
g.fill(st_final(0), start=53, end=55)
g.at(57, stq("t0 pre pB") + poll_check2(S_PA, 23, 25, "3", f"s{S_E28}") + stq("t0 post pB"))
bq = sub()
bq.wait("act1")
bq("s_barrier")
g.at(27, bq.ins)
next_tile_reads(g, 1, 0, first=41)
e = g.fill(ad2.ins[NAD2:], start=0, cap=float(OPT.get("cap0", 6)))
assert e < min(e4, 40), e
e = g.fill(ad.ins, start=e, cap=float(OPT.get("cap0", 6)))
print("tile 0 address stream ends at", e, len(g.tail))
gap_stamps(g, "t0")
P.add(g.out())
stamp("tile0")
g = g1_gaps(1)
e = pin_vm(g, 0, act_dma(2)[:1] + [st_issue(1)] + act_dma(2)[1:] + act_dma(3), 2)
pin_vm(g, e + 1, WL[N0_:N0_ + N1_], min(2.5, (57 - e) / (4 * N1_)))
g.at(38, res_read(0))
g.at(39, res_read(1))
g.at(40, st_check(1))
g.fill(st_final(1), start=41, end=54)
bq = sub()
bq.wait("act2")
bq.wait("b1_27")
bq("s_barrier")
BB = int(OPT.get("bb", 45))
g.at(BB, stq("t1 pre bar") + bq.ins + stq("t1 post bar"))
next_tile_reads(g, 2, L_ACT[1], first=BB)
e = g.fill(g1_epi(0), start=3)
print("tile 1: epilogue ends at gap", e, "tail", len(g.tail))
gap_stamps(g, "t1")
P.add(g.out())
stamp("tile1")
g = g1_gaps(2)
pin_vm(g, 0, [wd_dma(6), wd_dma(7), st_issue(2), wd_dma(8), wd_dma(9)] + WL[N0_ + N1_:] + [st_issue(3)], 55 / (18 + 4 * (8 - N0_ - N1_)))
g.at(24, flag3(0))
bq = sub()
bq.wait("act3")
bq("s_barrier")
g.at(30, bq.ins)
g.at(49, st_check(2))
g.fill(st_final(2), start=50, end=54)
g.at(56, poll_first("0", S_P3, 7))
next_tile_reads(g, 3, 0, first=41)
e = g.fill(g1_epi(1), start=3)
print("tile 2: epilogue ends at gap", e, "tail", len(g.tail))
gap_stamps(g, "t2")
P.add(g.out())
stamp("tile2")
g = g1_gaps(3)
T3S = float(OPT.get("t3s", 2.4))
e = pin_vm(g, 4, [wd_load(12), wd_load(13)], T3S)
g.at(int(OPT.get("f1", 21)), flag3(1))
g.at(48, st_check(3))
g.fill(st_final(3), start=49, end=54)
g.at(e - 1, stq("t3 pre p0") + poll_check(S_P3, 7) + stq("t3 post p0") + p3_next())
pin_vm(g, e, h_loads(0), T3S)
g.at(int(OPT.get("p1", 47)), poll_first("1", S_P3, 7))
g.at(52, res_read(2))
g.at(54, res_read(3))
e = g.fill(g1_epi(2), start=2, cap=float(OPT.get("cap3", 7.5)))
print("tile 3: epilogue ends at gap", e, "tail", len(g.tail))
gap_stamps(g, "t3")
P.add(g.out())
stamp("tile3")
P.add(waitq("wd9") + wd_read(4) + wd_read(5))
ep = g1_epi_pk(3)
h1 = h_loads(1)
NE = int(OPT.get("ne", 0))
PC1 = poll_check(S_P3, 7) + p3_next()
F2E = int(OPT.get("f2e", 30))
ins_ = [(F2E, flag3(2))] if F2E >= 0 else []
if NE:
    P.add(sprinkle(ep, ins_ + [(45, PC1)] + [(46 + 14 * i, h1[i]) for i in range(NE)]))
else:
    P.add(sprinkle(ep, ins_) + PC1)
stamp("epi3")

OA = [8, 48]
OA = [224, 96]
RT = 176


NRM = int(OPT.get("nrm", 6))


def g2_mfma(J):
    m = sub()
    seq = [(ft, rt) for ft in KORD for rt in range(4)]
    if J == 3:
        seq = seq[:4 * (14 - NRM)] + [(ft, rt) for rt in range(4) for ft in KORD[14 - NRM:]]
    for ft, rt in seq:
        if True:
            d = acc(OA[J & 1] + 4 * rt, 4)
            c = "0" if ft == 0 else d
            m(f"v_mfma_f32_16x16x32_bf16 {d}, {wdr(ft,rt)}, {hreg(J,ft)}, {c}")
    return m.ins


RTMP = [28, 32, 36, 12]


def red_write(J):
    q = sub()
    for rt in range(4):
        q(f"ds_write_b128 {v(V_RW)}, {acc(OA[J&1]+4*rt,4)} offset:{(J&1)*R_SZ + rt*1152}")
    return q.ins


def red_bar():
    q = sub()
    q("s_waitcnt lgkmcnt(0)")
    q("s_barrier")
    return q.ins


def red_read(J):
    q = sub()
    for w in range(4):
        q(f"ds_read_b128 {v(RTMP[w],4)}, {v(V_RR)} offset:{(J&1)*R_SZ + w*4608}")
    return q.ins


def red_fin(J):
    q = sub()
    a, b, c, d = RTMP
    for i in range(2):
        q(f"v_lshlrev_b32 {v(16+2*i)}, 16, {v(RESR[J]+i)}")
        q(f"v_and_b32 {v(17+2*i)}, 0xffff0000, {v(RESR[J]+i)}")
    if J == 3 and "eps" not in OPT:
        for x, y in ((a, 16), (b, c), (a, d), (a, b)):
            for i in (0, 2):
                q(f"v_pk_add_f32 {v(x+i,2)}, {v(x+i,2)}, {v(y+i,2)}")
        for i in range(2):
            q(f"v_cvt_pk_bf16_f32 {v(20+i)}, {v(a+2*i)}, {v(a+2*i+1)}")
        q(f"s_mov_b32 s{S_T0}, {(1024*(J>>1) + 128*(J&1))*896}")
        q(f"buffer_store_dwordx2 v[20:21], {v(V_OST)}, {srd(SRD_OUT)}, s{S_T0} offen {OPT.get('ost', '').replace('_', ' ')}")
        return q.ins
    for i in range(4):
        q(f"v_add_f32 {v(a+i)}, {v(a+i)}, {v(b+i)}")
    for i in range(4):
        q(f"v_add_f32 {v(c+i)}, {v(c+i)}, {v(d+i)}")
    for i in range(4):
        q(f"v_add_f32 {v(a+i)}, {v(a+i)}, {v(16+i)}")
    for i in range(4):
        q(f"v_add_f32 {v(a+i)}, {v(a+i)}, {v(c+i)}")
    if "eps" in OPT:
        for i in range(4):
            q(f"v_mul_f32 {v(a+i)}, {f32(1.0+float(OPT['eps']))}, {v(a+i)}")
    for i in range(2):
        q(f"v_cvt_pk_bf16_f32 {v(20+i)}, {v(a+2*i)}, {v(a+2*i+1)}")
    q(f"s_mov_b32 s{S_T0}, {(1024*(J>>1) + 128*(J&1))*896}")
    q(f"buffer_store_dwordx2 v[20:21], {v(V_OST)}, {srd(SRD_OUT)}, s{S_T0} offen {OPT.get('ost', '').replace('_', ' ')}")
    return q.ins


for J in range(4):
    g = Gaps(g2_mfma(J), 2)
    if J > 0:
        RS_, RB_ = int(OPT.get("rs_", 4)), int(OPT.get("rb", 26))
        for i, x in enumerate(red_write(J - 1)):
            g.at(int(OPT.get("r0", 6)) + RS_ * i, [x])
        g.at(RB_, red_bar())
        for i, x in enumerate(red_read(J - 1)):
            g.at(RB_ + 1 + int(OPT.get("rr", 1)) * i, [x])
        rf = red_fin(J - 1)
        e = g.fill(rf[:-1], start=RB_ + 10, cap=float(OPT.get("rc", 2)))
        g.at(e + 1, rf[-1:])
    if J == 0:
        pin_vm(g, 0, h1[NE:], float(OPT.get("hs1", 4)))
        if F2E < 0:
            g.at(int(OPT.get("f2", 2)), flag3(2))
        C2 = int(OPT.get("c2", 56))
        h2 = h_loads(2)
        n2 = 0
        if C2 < 56:
            g.at(C2, poll_check2(S_P3, 7, 23, "1", f"s{S_E14}") + p3_next())
            n2 = int((55 - C2) / 3.5) + 1
            pin_vm(g, C2, h2[:n2], 3.5)
        for i, x in enumerate(wd_read(6) + wd_read(7) + wd_read(8) + wd_read(9)):
            g.at(1 + 2 * i, [x])
        g.at(int(OPT.get("p2a", 14)), poll_issue(S_P3, 7))
        g.at(int(OPT.get("p2b", 34)), poll_first("2", S_P3, 23))
        g.at(int(OPT.get("f3", 36)), flag3(3))
        bq = sub()
        bq.wait("res3")
        bq("s_barrier")
        g.at(52, bq.ins)
    if J == 1:
        if C2 >= 56:
            g.at(C2 - 56, poll_check2(S_P3, 7, 23, "1", f"s{S_E14}") + p3_next())
        pin_vm(g, max(C2 - 56, 1), h2[n2:], float(OPT.get("hs", 4)))
        g.at(int(OPT.get("p3a", 12)), poll_issue(S_P3, 7))
        g.at(int(OPT.get("p3b", 30)), poll_first("3", S_P3, 23))
        C3 = int(OPT.get("c3", 55))
        g.at(C3, poll_check2(S_P3, 7, 23, "1", f"s{S_E14}"))
        h3 = h_loads(3)
        n3 = (55 - C3) // 3
        pin_vm(g, C3 + 1, h3[:n3], 3)
    if J == 2:
        pin_vm(g, 0, h3[n3:], float(OPT.get("hs3", 4)))
    if J == 3:
        rw3 = red_write(3)
        for i in range(3):
            g.at(min(55 - NRM * (3 - i) + 8, 55), [rw3[i]])
    P.add(g.out())
    stamp(f"g2 tile{J}")
P.add(rw3[3:])
P.add(red_bar())
P.add(red_read(3))
P.add(red_fin(3))
stamp("end")

if "hold" in OPT:
    if "cls" in OPT:
        P(f"s_and_b32 s98, s{S_W}, 7")
        P(f"s_cmp_lg_u32 s98, {OPT['cls']}")
        P("s_cbranch_scc1 L_fin")
    P("L_hold:")
    P("s_memrealtime s[98:99]")
    P("s_waitcnt lgkmcnt(0)")
    P("s_sub_u32 s98, s98, s100")
    P("s_cmp_lt_u32 s98, 4000")
    P("s_cbranch_scc1 L_hold")
P("L_fin:")
if STAMPS:
    P(f"s_lshl_b32 s{S_T0}, s{S_W}, 2")
    P(f"s_add_u32 s{S_T0}, s{S_T0}, s{S_V}")
    P(f"s_lshl_b32 s{S_T0}, s{S_T0}, 8")
    P(f"s_add_u32 s{S_T0}, s{S_T0}, {WS_DBG + 0x800000}")
    P(f"v_lshlrev_b32 v4, 2, v1")
    P(f"buffer_store_dword v255, v4, {srd(SRD_WS)}, s{S_T0} offen")
if "dbgout" in OPT:
    P(f"s_cmp_ge_u32 s{S_W}, 224")
    P("s_cbranch_scc1 L_end")
    P(f"v_readlane_b32 s{S_T0}, v255, 0")
    P(f"s_not_b32 s{S_T0}, s{S_T0}")
    P(f"v_writelane_b32 v255, s{S_T0}, 15")
    P("s_mov_b64 exec, 0xffff")
    P(f"v_lshlrev_b32 v4, 2, v1")
    P("global_atomic_umax v4, v255, s[60:61]")
P("L_end:")
P("s_endpgm")

if "jit" in OPT:
    import random
    rnd = random.Random(int(OPT["jit"]))

    def jitter():
        q = sub()
        lb = label("jit")
        q.raw(f"s_lshl2_add_u32 s98, s{S_W}, s{S_V}")
        q.raw(f"s_mul_i32 s98, s98, {rnd.randrange(1, 1 << 30) | 1}")
        q.raw(f"s_bfe_u32 s98, s98, {hex((3 << 16) | rnd.randrange(12, 28))}")
        q.raw("s_cmp_lt_u32 s98, 6")
        q.raw(f"s_cbranch_scc1 {lb}")
        q.raw(f"s_sleep {rnd.choice([3, 10, 25, 60])}")
        q(f"{lb}:")
        return q.ins

    for prog in (P, SP):
        out_ = []
        started = prog is SP
        for k, i in enumerate(prog.ins):
            if i.text == "; @ x arrived":
                started = True
            nxt = prog.ins[k + 1] if k + 1 < len(prog.ins) else None
            safe = started and not i.cond and nxt is not None and not nxt.cond and i.cls in ("mfma", "ds", "vmem", "valu") and not i.mn.startswith("v_cmp")
            if started and i.mn == "s_barrier":
                out_ += jitter() + [i] + jitter()
            elif safe and rnd.random() < 0.012:
                out_ += [i] + jitter()
            else:
                out_.append(i)
        prog.ins = out_
if "nn" in OPT:
    NN = int(OPT["nn"])
    L_ = P.ins
    k = 0
    while k + 3 + NN < len(L_):
        if L_[k].mn == "s_add_u32" and L_[k].ops[0] == "m0" and L_[k + 1].extra == "dma" and L_[k + 2].text.startswith("s_mov_b32 m0") and all(L_[k + 3 + j].mn.startswith("v_pk") for j in range(NN)):
            L_[k + 1:k + 3 + NN] = L_[k + 3:k + 3 + NN] + L_[k + 1:k + 3]
            k += 3 + NN
        else:
            k += 1
XX_ = OPT.get("xx", "")
if "c" in XX_:
    P.ins = [i for i in P.ins if not (i.cls == "mfma" and i.ops[1] == v(SEL, 4) and i.ops[0] in (v(CSA[0], 4), v(CSA[1], 4)))]
if "0" in XX_:
    a_ = [k for k, i in enumerate(P.ins) if i.text == "; @ epi3"][0]
    b_ = [k for k, i in enumerate(P.ins) if i.text == "; @ g2 tile0"][0]
    c_ = [k for k, i in enumerate(P.ins) if i.text == "; @ tile2"][0]
    P.ins = [i for k, i in enumerate(P.ins) if not (a_ < k < b_ and i.cls == "mfma") and not (c_ < k < a_ and i.mn == "buffer_load_dwordx4" and i.ops[1] == v(V_HL))]
if "k" in XX_:
    a_ = [k for k, i in enumerate(P.ins) if i.text == "; @ ln1 done"][0]
    b_ = [k for k, i in enumerate(P.ins) if i.text == "; @ kgen r1"][0]
    P.ins = [i for k, i in enumerate(P.ins) if not (a_ < k < b_ and i.mn == "v_pk_mul_f32")]
if "r" in XX_:
    a_ = [k for k, i in enumerate(P.ins) if i.text == "; @ g2 tile0"][0]
    b_ = [k for k, i in enumerate(P.ins) if i.text == "; @ g2 tile3"][0]
    P.ins = [i for k, i in enumerate(P.ins) if not (a_ < k < b_ and i.cls in ("ds", "valu") and not i.mn.startswith(("v_cmp", "v_mov", "v_add_u32")))]
XG = OPT.get("xg", "")
if XG:
    a_ = [k for k, i in enumerate(P.ins) if i.text == "; @ gemm1 start"][0]
    b_ = [k for k, i in enumerate(P.ins) if i.text == "; @ tile3"][0]
    seg = P.ins[a_:b_]
    if "w" in XG:
        seg = [i for i in seg if not (i.mn == "buffer_load_dwordx4" and (i.ops[0] == "v3" or i.ops[1] in ("v3", "v44")))]
    if "e" in XG:
        seg = [i for i in seg if not (i.cls in ("valu", "trans") and (i.wr & {f"v{r}" for r in range(EPT, EPT + 8)}))]
    if "b" in XG:
        seg = [i for i in seg if not (i.mn == "ds_read2st64_b32" and i.ops[1] == f"v{V_BR2}")]
    P.ins = P.ins[:a_] + seg + P.ins[b_:]
res = finalize(P.ins, verbose=True, lg_age=int(OPT["lga"]) if "lga" in OPT else None, vm_age=int(OPT["vma"]) if "vma" in OPT else None) + finalize(TAIL.ins) + finalize(SP.ins)
if "report" in OPT:
    report_waits(finalize(P.ins))
launch = f"; @launch kernel={KN} grid" if ("list" in OPT or STAMPS) else "; @launch grid"
hdr = f"""; Fused pre-LN S4D conv + GEGLU FFN in one persistent launch (emitted by my own generator script).
; B_x (unused), w_gate, w_up, w_down, out, debug, ws.
;  wg<224  : S4D kernel K for 2 channels at the 641 distinct bf16 positions (power tables + MFMA),
;            GEMM1 128 tokens x (128+128) cols with LN2 folded in algebraically, GELU*up -> ws,
{launch}=(256,1,1) block=(256,1,1) lds={LDS_SIZE}
.amdgcn_target "amdgcn-amd-amdhsa--gfx950"
.text
.globl {KN}
.p2align 12
.p2align 8
.type {KN},@function
{KN}:
"""
ftr = f"""
.p2align 8
.fill 64, 4, 0xbf800000
L_codeend:
.section .rodata,"a"
.p2align 6
.amdhsa_kernel {KN}
  .amdhsa_next_free_vgpr 512
  .amdhsa_next_free_sgpr 102
  .amdhsa_accum_offset 256
  .amdhsa_group_segment_fixed_size 0
  .amdhsa_kernarg_size 112
  .amdhsa_user_sgpr_count 2
  .amdhsa_user_sgpr_kernarg_segment_ptr 1
  .amdhsa_system_sgpr_workgroup_id_x 1
.end_amdhsa_kernel
"""
body = text_of(res)
WALKS = ([("early", "L_early_back" if OPT.get("w2") == "c" else "L_main", "L_walk_back")] if OPT.get("w2") in ("a", "b", "c") else []) + [("walk", "L_walk_back", "L_fin")]
body = place_pads2(hdr, body, ftr, 0x300, WALKS)
open(OUTF, "w").write(hdr + body + ftr)
src = open(__file__).read()
a = src.index("# ---------------- workspace layout")
b = src.index("# ---------------- LDS layout")
open("layout.py", "w").write(src[a:b] + "\nSTAMP_NAMES = " + repr(stamp_names) + "\nSPIN_NAMES = " + repr(spin_names) + "\n")
```

```python
import sys, math, struct
from asmgen import *

NAME = "sequential_preLN__ssm_conv_s4d__geglu_ffn__prompt"
KN = NAME + "_kernel"
OPT = {}
for a in sys.argv[1:]:
    k, _, val = a.partition("=")
    OPT[k] = val if val else True
STAMPS = "stamps" in OPT
OUTF = OPT.get("out", "k22.s")
OPT.setdefault("pfpos", "300,300")
OPT.setdefault("pa3", "84")
OPT.setdefault("w2", "b")


def f32(x):
    return "0x%08x" % struct.unpack("<I", struct.pack("<f", x))[0]


FS = 4
FREP = 0x9000
WS_EPOCH = 0
WS_F1 = 0x8000
WS_S2 = 0x58000
S2REP = 0x5000
WS_C = 0x80000
WS_UX = 0xD0000
WS_P = WS_UX + 256 * 14336
PROW = 4352
PGEN = 224 * PROW
WS_H = WS_P + 2 * PGEN
WS_WF = WS_H + 16 * 4 * 56 * 2048
WS_END = WS_WF + 392 * 4096
WS_DBG = 0x1000000
WS_SIZE = 0x2000000
LAYOUT = 5

CS = 4160
TAB_W = 14592
TAB_ROW = 272
L_KC = 58368
L_UX = 75008
L_EX = 0
L_RING = 98304
L_ACT = [0, 65536]
L_F = 131072
L_R = 65536
R_SZ = 18432
LDS_SIZE = 163840

S_W = 2
S_V = 4
S_T0, S_T1, S_T2, S_T3 = 5, 6, 7, 3
SRD_X, SRD_WS, SRD_WG, SRD_WU, SRD_WD, SRD_OUT = 8, 12, 16, 20, 24, 28
S_NONCE = 32
S_CNT = 33
S_EX = 34
S_PR, S_DSK = 64, 65
S_TB, S_FB, S_FH, S_DB = 66, 67, 68, 69
S_A, S_B, S_C, S_D = 70, 72, 74, 76
S_RING = 78
S_WOFF = 79
S_K0 = 80
S_TAB = 81
S_F3 = 82
S_F1, S_F2 = 83, 84
S_M255 = 86
S_FW, S_R2 = 88, 89
S_ACTW = 90
S_UXO = 91
S_PFB = 88
S_HR = 36
S_PA, S_P4, S_P3, S_PST, S_AB, S_WFB = 40, 41, 42, 43, 44, 45
S_E28, S_E14, S_CI = 46, 47, 85
S_F1L = 95
S_TCH = 50
S_UXM = 92
S_REP = 94
S_PERM = 93
S_STAMP = 96


def srd(n):
    return f"s[{n}:{n+3}]"


def v(n, w=1):
    return f"v{n}" if w == 1 else f"v[{n}:{n+w-1}]"


def acc(n, w=1):
    return f"a{n}" if w == 1 else f"a[{n}:{n+w-1}]"


P = Prog()
TAIL = Prog()
nstamp = [0]
stamp_names = []
spin_names = []
LITE = ("start", "conv start", "genA stored", "gemm1 start", "tile3", "end")
if "dbgout" in OPT:
    LITE = ("start", "x arrived", "ln1 done", "kgen r1", "conv start", "genA stored", "gemm1 start", "tile1", "tile3", "end")


def stamp(name, p=None):
    p = P if p is None else p
    p(f"; @ {name}")
    if OPT.get("hold", "").replace("_", " ") == name:
        p(f"s_memrealtime s[100:101]")
        p("s_waitcnt lgkmcnt(0)")
    if STAMPS and ("lite" not in OPT or name in LITE):
        k = nstamp[0]
        assert k < 32
        p(f"s_memrealtime s[{S_STAMP}:{S_STAMP+1}]")
        p(f"s_memtime s[{S_STAMP+2}:{S_STAMP+3}]")
        p("s_waitcnt lgkmcnt(0)")
        p(f"v_writelane_b32 v255, s{S_STAMP}, {k}")
        p(f"v_writelane_b32 v255, s{S_STAMP+2}, {32+k}")
        nstamp[0] += 1
        stamp_names.append(name)


def stq(name):
    q = sub()
    if "dbg" in OPT:
        stamp(name, q)
    return q.ins


lblc = [0]


def label(prefix):
    lblc[0] += 1
    return f"L_{prefix}_{lblc[0]}"


def poll_issue(what, vtmp):
    q = sub()
    q(f"v_mov_b32 {v(vtmp)}, 0")
    if what == "F1":
        q(f"buffer_atomic_add {v(vtmp)}, {v(V_F1)}, {srd(SRD_WS)}, 0 offen sc0")
    else:
        q(f"buffer_atomic_add {v(vtmp)}, {v(V_PM if what == S_PA else V_P1)}, {srd(SRD_WS)}, s{what} offen sc0")
    return q.ins


def poll_first(tag, what, vtmp):
    if tag in OPT.get("pld", ""):
        q = sub()
        q(f"buffer_load_dword {v(vtmp)}, {v(V_PM if what == S_PA else V_P1)}, {srd(SRD_WS)}, s{what} offen sc1")
        return q.ins
    return poll_issue(what, vtmp)


def spin(t, name, done, reissue, vtag, sleep=2, exp=None):
    t(f"{name}:")
    t(f"s_mov_b32 s{S_CNT}, 0")
    t(f"{name}_l:")
    t("s_mov_b64 exec, vcc")
    t(f"s_sleep {sleep}")
    t.add(reissue)
    t("s_waitcnt vmcnt(0)")
    t(f"v_cmp_ne_u32 vcc, {exp or f's{S_NONCE}'}, {v(vtag)}")
    t("s_mov_b64 exec, -1")
    if STAMPS and "lite" in OPT:
        spin_names.append(name)
        t(f"s_add_u32 s{S_STAMP}, s{S_CNT}, 1")
        t(f"v_writelane_b32 v255, s{S_STAMP}, {10+len(spin_names)-1}")
    t(f"s_cbranch_vccz {done}")
    t(f"s_add_u32 s{S_CNT}, s{S_CNT}, 1")
    t(f"s_cmp_lt_u32 s{S_CNT}, 0x40000")
    t(f"s_cbranch_scc1 {name}_l")
    t(f"s_branch {done}")


LAZY = []


def poll_checkn(what, regs, mask=None, exp=None):
    q = sub()
    slow, done = label("slow"), label("pdone")
    exp = f"s{S_NONCE}" if what == "F1" else (f"s{S_E14}" if what == S_P3 else f"s{S_E28}")
    mask = {"F1": -1, S_PA: 3}.get(what, 1)
    if mask == 1:
        q(f"v_cmp_eq_u32 vcc, {exp}, {v(regs[0])}")
        q(f"s_cbranch_vccz {slow}x")
    elif mask == -1:
        q(f"v_cmp_ne_u32 vcc, {exp}, {v(regs[0])}")
        q(f"s_cbranch_vccnz {slow}x")
    else:
        q(f"v_cmp_ne_u32 vcc, {exp}, {v(regs[0])}")
        q(f"s_and_b64 vcc, vcc, {mask}")
        q(f"s_cbranch_scc1 {slow}x")
    q(f"{done}:")
    TAIL(f"{slow}x:")
    for r in regs[1:]:
        TAIL.raw("s_waitcnt vmcnt(0)")
        LAZY.append((TAIL.ins[-1], r, q.ins[0]))
        TAIL.raw(f"v_cmp_ne_u32 vcc, {exp}, {v(r)}")
        TAIL.raw(f"s_and_b64 vcc, vcc, {mask}")
        TAIL.raw(f"s_cbranch_scc0 {done}")
    if mask == 1:
        TAIL(f"s_mov_b64 vcc, 1")
    spin(TAIL, slow, done, poll_issue(what, regs[0]), regs[0], exp=exp, sleep=1)
    return q.ins


def poll_inline(what, regs, mask, exp):
    q = sub()
    slow, done = label("slow"), label("pdone")
    for k, r in enumerate(regs):
        q(f"v_cmp_ne_u32 vcc, {exp}, {v(r)}")
        q(f"s_and_b64 vcc, vcc, {mask}")
        q(f"s_cbranch_scc0 {done}" if k < len(regs) - 1 else f"s_cbranch_scc1 {slow}")
        q.cond(True)
    q.cond(False)
    q(f"{done}:")
    spin(TAIL, slow, done, poll_issue(what, regs[0]), regs[0], exp=exp, sleep=1)
    return q.ins


def poll_check(what, vtmp):
    return poll_checkn(what, [vtmp])


def poll_check2(what, v1, v2, mask=None, exp=None):
    return poll_checkn(what, [v1, v2])


def resolve_lazy():
    for ph, r, chk in LAZY:
        k = [n for n, i in enumerate(P.ins) if i is chk][0]
        cnt = 0
        while not (P.ins[k].cls == "vmem" and f"v{r}" in P.ins[k].wr):
            assert not P.ins[k].cond
            cnt += P.ins[k].cls == "vmem"
            k -= 1
        ph.text = f"    s_waitcnt vmcnt({cnt})"


def setflag(p, soff):
    if "fst" in OPT:
        p(f"buffer_store_dword {v(V_NONCE)}, {v(V_FLG)}, {srd(SRD_WS)}, s{soff} offen sc1")
    else:
        p(f"buffer_atomic_swap {v(V_NONCE)}, {v(V_FLG)}, {srd(SRD_WS)}, s{soff} offen")


def addcnt(p, soff, vl):
    p(f"buffer_atomic_add {v(V_NONCE)}, {v(vl)}, {srd(SRD_WS)}, s{soff} offen")


def lanes_reg(p, dst, n, sh, t1=4):
    p(f"v_and_b32 {v(t1)}, {64-n}, {v(V_LANE)}")
    p(f"v_lshlrev_b32 {v(t1)}, 25, {v(t1)}")
    p(f"v_lshl_add_u32 {v(dst)}, {v(V_LANE)}, {sh}, {v(t1)}")


def walk(name):
    P.raw("s_mov_b64 exec, 0")
    for c in range(3):
        P.raw(f"s_cmp_eq_u32 s{S_V}, {c}")
        P.raw(f"s_cbranch_scc1 L_{name}{c}")
    P.raw(f"s_branch L_{name}3")
    P(f"L_{name}_back:")
    P.raw("s_mov_b64 exec, -1")


def waitq(tok):
    q = sub()
    q.wait(tok)
    return q.ins


def cmul(p, z, x, y):
    p(f"v_pk_mul_f32 {v(z,2)}, {v(x,2)}, {v(y,2)} op_sel:[0,0] op_sel_hi:[0,1]")
    p(f"v_pk_fma_f32 {v(z,2)}, {v(x,2)}, {v(y,2)}, {v(z,2)} op_sel:[1,1,0] op_sel_hi:[1,0,1] neg_lo:[1,0,0]")


def round_bf16(p, dst, src):
    p(f"v_cvt_pk_bf16_f32 {v(dst)}, {v(src)}, {v(src)}")
    p(f"v_and_b32 {v(dst)}, 0xffff0000, {v(dst)}")


V_LANE, V_NONCE, V_L16 = 1, 2, 3
V_FLG = 8
V_W = 9
V_TRA = 13
V_TA, V_TB, V_TW = 14, 15, 16
GA = 17
V_F1, V_UXL = 26, 27
V_KA = 28
V_UA = 32
V_EU, V_EXP, V_EXW, V_EXR, V_FL2 = 36, 37, 38, 39, 40
V_GW, V_GX, V_GR, V_S3, V_DSK = 240, 241, 242, 243, 244
V_EU1 = 41
V_DT = 42
V_PM = 43
V_P1 = 252
PR = 44
V_PF = 254

LOG2E = 1.4426950408889634

if OPT.get("hold") == "entry" or "entry" in OPT:
    P("s_memrealtime s[100:101]")
P(f"s_cmp_ge_u32 s{S_W}, 256")
P("s_cbranch_scc1 L_end")
P(f"s_load_dwordx16 s[36:51], s[0:1], 0")
if "ksplit" not in OPT:
    P(f"s_load_dwordx8 s[52:59], s[0:1], 64")
    P(f"s_load_dwordx4 s[60:63], s[0:1], 96")
if "nocpf" not in OPT:
    P(f"s_getpc_b64 s[{S_B}:{S_B+1}]")
    P("L_pc:")
    P(f"s_bfe_u32 s{S_T2}, s{S_W}, 0x30003")
    P(f"s_mul_i32 s{S_T2}, s{S_T2}, ((L_codeend-L_pc)/1024)*128")
    P(f"v_cmp_gt_u32 vcc, (L_codeend-L_pc)/1024, v0")
    P(f"s_add_u32 s{S_B}, s{S_B}, s{S_T2}")
    P(f"s_addc_u32 s{S_B+1}, s{S_B+1}, 0")
    P(f"v_lshlrev_b32 v6, 7, v0")
    P(f"s_and_saveexec_b64 s[{S_A}:{S_A+1}], vcc")
    P("s_cbranch_execz L_nocpf")
    P.cond(True)
    P(f"v_mov_b32 v7, s{S_B+1}")
    P(f"v_add_co_u32 v6, vcc, s{S_B}, v6")
    P(f"v_addc_co_u32 v7, vcc, 0, v7, vcc")
    P(f"global_load_dword v251, v[6:7], off")
    P.cond(False)
    P("L_nocpf:")
    P("s_mov_b64 exec, -1")
if STAMPS:
    P("v_mov_b32 v255, 0")
P(f"v_and_b32 {v(V_LANE)}, 63, v0")
P(f"v_lshrrev_b32 v4, 6, v0")
P(f"v_lshlrev_b32 {v(V_L16)}, 4, {v(V_LANE)}")
P(f"v_readfirstlane_b32 s{S_V}, v4")
P(f"v_mov_b32 v5, 0x7ff00000")
P(f"v_cmp_gt_u32 vcc, 56, {v(V_LANE)}")
P(f"s_lshl_b32 s{S_T0}, s{S_W}, 2")
P(f"s_add_u32 s{S_T0}, s{S_T0}, s{S_V}")
P(f"v_cndmask_b32 v4, v5, {v(V_L16)}, vcc")
P(f"s_mul_i32 s{S_T0}, s{S_T0}, 1792")
PB = sub()
PB(f"s_and_b32 s{S_T1}, s{S_W}, 7")
PB(f"s_mul_i32 s{S_T1}, s{S_T1}, 28")
PB(f"s_lshr_b32 s{S_T2}, s{S_W}, 3")
PB(f"s_add_u32 s{S_T1}, s{S_T1}, s{S_T2}")
PB(f"s_min_u32 s{S_PR}, s{S_T1}, 223")
PB(f"s_lshl_b32 s{S_T2}, s{S_PR}, 10")
PB(f"v_lshl_add_u32 v6, v0, 2, s{S_T2}")
PB(f"v_mov_b32 v7, 0")
PB(f"s_lshl_b32 s{S_T1}, s{S_PR}, 2")
PB(f"v_mov_b32 v56, s{S_T1}")
PB(f"s_mov_b32 s{SRD_WS+2}, {WS_SIZE}")
PB(f"s_mov_b32 s{SRD_WS+3}, 0x00020000")
if "short" not in OPT:
    P.add(PB.ins)
P(f"s_mov_b32 s{SRD_X+2}, 1835008")
P(f"s_mov_b32 s{SRD_X+3}, 0x00020000")
P("s_waitcnt lgkmcnt(0)")
stamp("start")
if "entry" in OPT:
    P("v_writelane_b32 v255, s100, 0")
P(f"s_mov_b64 s[{SRD_X}:{SRD_X+1}], s[36:37]")
XR = 48
P(f"buffer_load_dwordx4 {v(XR,4)}, v4, {srd(SRD_X)}, s{S_T0} offen")
P(f"buffer_load_dwordx4 {v(XR+4,4)}, v4, {srd(SRD_X)}, s{S_T0} offen offset:896")
if "short" in OPT:
    P.add(PB.ins)
if "ksplit" in OPT:
    P(f"s_load_dwordx8 s[52:59], s[0:1], 64")
    P(f"s_load_dwordx4 s[60:63], s[0:1], 96")
for r, src, sz in ((SRD_WG, 52, 1605632), (SRD_WU, 54, 1605632), (SRD_WD, 56, 1605632), (SRD_OUT, 58, 1835008)):
    P(f"s_mov_b32 s{r+2}, {sz}")
    P(f"s_mov_b32 s{r+3}, 0x00020000")
P(f"v_cmp_lt_u32 vcc, {int(OPT.get('nrep', 4))+1}, {v(V_LANE)}")
P(f"v_mul_u32_u24 v4, {FREP}, {v(V_LANE)}")
P(f"s_lshr_b32 s{S_T0}, s{S_W}, 3")
P(f"s_mul_i32 s{S_T1}, s{S_T0}, 37")
P(f"v_cndmask_b32 {v(V_FLG)}, v4, v5, vcc")
P(f"s_lshr_b32 s{S_T1}, s{S_T1}, 8")
P(f"s_mul_i32 s{S_T2}, s{S_T1}, 7")
P(f"s_sub_u32 s{S_DB}, s{S_T0}, s{S_T2}")
P(f"s_and_b32 s{S_FH}, s{S_W}, 1")
P(f"s_and_b32 s{S_T2}, s{S_W}, 6")
P(f"s_lshl_b32 s{S_T2}, s{S_T2}, 1")
P(f"s_add_u32 s{S_TB}, s{S_T2}, s{S_T1}")
P(f"s_mul_i32 s{S_FB}, s{S_FH}, 7")
P(f"s_add_u32 s{S_FB}, s{S_FB}, s{S_DB}")
P(f"s_lshl_b32 s{S_RING}, s{S_V}, 13")
P(f"s_add_u32 s{S_RING}, s{S_RING}, {L_RING}")
P(f"s_mul_i32 s{S_TAB}, s{S_V}, {TAB_W}")
for _ in range(int(OPT.get("xd", 0))):
    P("s_nop 7")
for i in range(4):
    P(f"global_load_dword {v(PR+i)}, v6, s[{38+2*i}:{39+2*i}]")
P(f"global_load_dword {v(V_DT)}, v56, s[46:47]")
P(f"global_load_dword {v(V_DSK)}, v56, s[48:49]")
if "ksplit" in OPT:
    P("s_waitcnt lgkmcnt(0)")
P(f"s_mov_b64 s[{SRD_WS}:{SRD_WS+1}], s[62:63]")
for r, src in ((SRD_WG, 52), (SRD_WU, 54), (SRD_WD, 56), (SRD_OUT, 58)):
    P(f"s_mov_b64 s[{r}:{r+1}], s[{src}:{src+1}]")
P(f"buffer_load_dword {v(V_NONCE)}, v7, {srd(SRD_WS)}, 0 offen sc1")
NOPF = "nopf" in OPT
if not NOPF:
    P(f"s_bitcmp1_b32 s{S_V}, 0")
    P(f"s_cselect_b64 s[{S_PFB}:{S_PFB+1}], s[54:55], s[52:53]")
    P(f"s_lshr_b32 s{S_T0}, s{S_V}, 1")
    P(f"s_lshl1_add_u32 s{S_T2}, s{S_W}, s{S_T0}")
    EPF = int(OPT.get("epf", 7))
    P(f"s_mul_i32 s{S_T0}, s{S_T2}, {EPF*128}")
    if EPF == 25:
        P(f"s_min_u32 s{S_T0}, s{S_T0}, {(12544-25)*128}")
    P(f"v_min_u32 v4, {EPF-1}, {v(V_LANE)}")
    P(f"v_lshl_add_u32 v248, v4, 7, s{S_T0}")
    PFW = sub()
    PFW(f"global_load_dword {v(V_PF)}, v248, s[{S_PFB}:{S_PFB+1}]")
    PFD = sub()
    PFD(f"global_load_dword v253, v245, s[56:57]")
    if "pfpos" not in OPT:
        P.add(PFW.ins)
    P(f"s_mul_i32 s{S_T0}, s{S_W}, 49")
    P(f"s_mul_i32 s{S_T2}, s{S_V}, 12")
    P(f"s_add_u32 s{S_T0}, s{S_T0}, s{S_T2}")
    P(f"v_min_u32 v4, 12, {v(V_LANE)}")
    P(f"v_add_lshl_u32 v245, v4, s{S_T0}, 7")
    if "nowd" in OPT:
        P(f"v_mov_b32 v245, 0")
    if "wdlate" not in OPT and "pfpos" not in OPT:
        P.add(PFD.ins)
    PF_AT = len(P.ins)
if "xprobe" in OPT:
    stamp("issued")
    P(f"v_mov_b32 v4, {v(XR+4)}")
    stamp("x here")
    P(f"v_mov_b32 v4, {v(V_DSK)}")
    stamp("par here")
P(f"v_cmp_gt_u32 vcc, 32, {v(V_LANE)}")
P(f"v_mul_u32_u24 v4, 37, {v(V_LANE)}")
P(f"v_lshrrev_b32 v4, 9, v4")
P(f"v_cndmask_b32 {v(V_S3)}, v5, {v(V_L16)}, vcc")
P(f"v_mul_u32_u24 v4, {TAB_W-14*272}, v4")
P(f"v_mul_u32_u24 v6, 272, {v(V_LANE)}")
P(f"s_lshl_b32 s{S_T0}, s{S_V}, 2")
P(f"v_add3_u32 {v(V_GW)}, v4, v6, s{S_T0}")
P(f"v_add_u32 {v(V_GX)}, s{S_T0}, {v(V_GW)}")
P(f"s_lshl_b32 s{S_UXM}, s{S_V}, 12")
P(f"s_add_u32 s{S_UXM}, s{S_UXM}, {L_UX+2048}")
P(f"v_and_b32 v4, 48, {v(V_LANE)}")
P(f"v_add3_u32 {v(V_GR)}, v4, {v(V_L16)}, s{S_TAB}")
P(f"v_and_b32 v4, 31, {v(V_LANE)}")
P(f"v_lshrrev_b32 v6, 5, {v(V_LANE)}")
P(f"v_lshl_add_u32 v6, v6, 4, s{S_TAB}")
P(f"v_and_b32 v7, 28, {v(V_LANE)}")
P(f"v_lshl_add_u32 v7, v4, 5, v7")
P(f"v_add_u32 {v(V_TW)}, v6, v7")
P(f"v_mul_u32_u24 v7, {TAB_ROW}, v4")
P(f"v_add_u32 {v(V_TB)}, v6, v7")
P(f"v_subrev_u32 v7, 16, v4")
P(f"v_cmp_lt_u32 vcc, 20, v4")
P(f"s_lshl2_add_u32 s{S_CI}, s{S_W}, s{S_V}")
P(f"s_lshl_b32 s{S_CI}, s{S_CI}, 8")
P(f"v_cndmask_b32 v4, v4, v7, vcc")
P(f"v_mul_u32_u24 v7, {TAB_ROW}, v4")
P(f"v_add_u32 {v(V_TA)}, v6, v7")
P(f"s_add_u32 s{S_CI}, s{S_CI}, {WS_C}")
P(f"v_lshlrev_b32 {v(V_P1)}, 25, {v(V_LANE)}")
P(f"s_mul_i32 s{S_UXO}, s{S_W}, 14336")
P(f"s_mul_i32 s{S_T0}, s{S_V}, 3584")
P(f"s_add_u32 s{S_UXO}, s{S_UXO}, s{S_T0}")
P(f"s_add_u32 s{S_UXO}, s{S_UXO}, {WS_UX}")
P(f"s_lshl_b32 s{S_T0}, s{S_V}, 8")
P(f"s_add_u32 s{S_T0}, s{S_T0}, s{S_W}")
P(f"s_mul_i32 s{S_T0}, s{S_T0}, {FS}")
P(f"s_add_u32 s{S_F1}, s{S_T0}, {WS_F1}")
P(f"v_lshrrev_b32 v4, 2, {v(V_LANE)}")
P(f"v_mul_u32_u24 v4, 3584, v4")
P(f"v_and_b32 v6, 3, {v(V_LANE)}")
P(f"v_lshl_add_u32 v4, v6, 4, v4")
P(f"s_lshl_b32 s{S_T0}, s{S_FB}, 8")
P(f"s_lshl_b32 s{S_T1}, s{S_V}, 6")
P(f"s_add_u32 s{S_T0}, s{S_T0}, s{S_T1}")
P(f"v_add_u32 {v(V_W)}, s{S_T0}, v4")
if "fakerot" in OPT:
    P(f"s_and_b32 s{S_T2}, s{S_TB}, {OPT['fakerot']}")
    P(f"s_mul_i32 s{S_T2}, s{S_T2}, {int(OPT.get('rs', 4))*57344//4}")
    P(f"v_add_u32 {v(V_W)}, s{S_T2}, {v(V_W)}")
if "fake128" in OPT:
    P(f"v_lshrrev_b32 v4, 3, {v(V_LANE)}")
    P(f"v_mul_u32_u24 v4, 3584, v4")
    P(f"v_and_b32 v7, 0x70, {v(V_L16)}")
    P(f"s_and_b32 s{S_T0}, s{S_T0}, 0xffffff80")
    P(f"s_and_b32 s{S_T2}, s{S_V}, 1")
    P(f"s_mul_i32 s{S_T2}, s{S_T2}, {8*3584}")
    P(f"s_add_u32 s{S_T0}, s{S_T0}, s{S_T2}")
    P(f"v_add3_u32 {v(V_W)}, v4, v7, s{S_T0}")
for k in range(1, 4):
    P(f"v_add_u32 {v(V_W+k)}, {k*(57344-1024)}, {v(V_W)}")
SETUP_A = len(P.ins)
P(f"v_and_b32 v4, 32, {v(V_LANE)}")
P(f"v_lshlrev_b32 v4, 4, v4")
P(f"v_and_b32 v7, 12, {v(V_LANE)}")
P(f"v_lshl_add_u32 v4, v7, 4, v4")
P(f"v_and_b32 v7, 16, {v(V_LANE)}")
P(f"v_lshl_add_u32 v4, v7, 1, v4")
P(f"v_lshl_add_u32 v4, v6, 3, v4")
P(f"v_add_u32 {v(V_TRA)}, s{S_RING}, v4")
P(f"s_mov_b32 s{S_K0}, {L_KC+4096-L_UX}")
P(f"s_movk_i32 s{S_T2}, 128")
P(f"s_bfe_u32 s{S_T0}, s{S_W}, 0x20001")
P(f"s_lshl_b32 s{S_T0}, s{S_T0}, 10")
P(f"s_lshr_b32 s{S_F2}, s{S_T0}, 2")
NREP = int(OPT.get("nrep", 4))
P(f"s_bfe_u32 s{S_REP}, s{S_W}, {hex((NREP.bit_length()-1)*65536+3)}")
P(f"s_sub_u32 s{S_F1L}, s{S_FH}, s{S_REP}")
P(f"s_add_u32 s{S_F1L}, s{S_F1L}, {NREP}")
P(f"s_mul_i32 s{S_F1L}, s{S_F1L}, {FREP}")
P(f"s_mul_i32 s{S_REP}, s{S_REP}, {FREP}")
P(f"s_add_u32 s{S_REP}, s{S_REP}, {WS_F1}")
P(f"s_add_u32 s{S_T0}, s{S_T0}, s{S_REP}")
P(f"v_lshl_add_u32 {v(V_F1)}, v0, 2, s{S_T0}")
P(f"v_lshrrev_b32 v4, 2, {v(V_LANE)}")
P(f"v_add_u32 v4, s{S_T1}, v4")
P(f"v_mul_u32_u24 v7, 14336, v4")
P(f"v_lshrrev_b32 v4, 4, {v(V_LANE)}")
P(f"v_xor_b32 v6, v6, v4")
P(f"v_lshl_add_u32 v7, v6, 4, v7")
P(f"s_lshl_b32 s{S_T0}, s{S_PR}, 6")
P(f"s_add_u32 s{S_T0}, s{S_T0}, {WS_UX}")
P(f"v_add_u32 {v(V_UXL)}, s{S_T0}, v7")
P(f"v_bfe_u32 v6, {v(V_LANE)}, 1, 2")
P(f"v_mul_u32_u24 v6, {CS}, v6")
P(f"v_and_b32 v7, 16, {v(V_L16)}")
P(f"v_add3_u32 v6, v6, v7, s{S_K0}")
P(f"v_lshlrev_b32 v7, 4, v0")
P(f"v_cmp_gt_u32 vcc, s{S_T2}, v0")
P(f"v_mov_b32 v56, 0")
P(f"v_mov_b32 v57, 0")
P(f"v_cndmask_b32 v6, v6, v7, vcc")
P(f"v_mov_b32 v58, 0")
P(f"v_mov_b32 v59, 0")
P(f"v_add_u32 v6, {L_UX}, v6")
P(f"ds_write_b128 v6, v[56:59]")
P(f"v_lshlrev_b32 v4, 3, v0")
P(f"v_sub_u32 v4, 2047, v4")
P(f"v_cvt_f32_i32 v4, v4")
P(f"v_mov_b32 v60, 1028")
P(f"v_cmp_eq_u32 vcc, 0, v0")
for e in range(0, 10, 2):
    P(f"v_add_f32 v6, {f32(-float(e))}, v4")
    if e < 8:
        P(f"v_add_f32 v7, {f32(-float(e+1))}, v4")
    P(f"v_cvt_pk_bf16_f32 v6, v6, v7")
    for h in range(2):
        if e + h > 8:
            continue
        d = GA + e + h
        if h == 0:
            P(f"v_lshlrev_b32 v7, 16, v6")
        else:
            P(f"v_and_b32 v7, 0xffff0000, v6")
        P(f"v_cvt_u32_f32 v7, v7")
        if e + h < 4:
            P(f"v_cndmask_b32 v7, v7, v60, vcc")
        P(f"v_lshrrev_b32 {v(d)}, 5, v7")
        P(f"v_add_lshl_u32 {v(d)}, {v(d)}, v7, 2")
P(f"v_mov_b32 v4, 255")
P(f"v_cmp_eq_u32 s[{S_M255}:{S_M255+1}], v4, v0")
P(f"v_and_b32 v4, 15, {v(V_LANE)}")
P(f"v_lshrrev_b32 v5, 4, {v(V_LANE)}")
P(f"v_lshl_add_u32 v6, v5, 3, v4")
P(f"v_sub_u32 v6, 39, v6")
P(f"v_and_b32 v7, 1, v6")
P(f"v_mul_u32_u24 v7, {CS-2}, v7")
P(f"v_lshl_add_u32 v6, v6, 1, v7")
P(f"s_lshr_b32 s{S_T0}, s{S_V}, 1")
P(f"s_andn2_b32 s{S_T3}, 1, s{S_V}")
P(f"s_mul_i32 s{S_T2}, s{S_T0}, {2*CS}")
P(f"s_lshl_b32 s{S_T1}, s{S_T3}, 8")
P(f"s_add_u32 s{S_T2}, s{S_T2}, s{S_T1}")
P(f"s_add_u32 s{S_T2}, s{S_T2}, {L_KC}")
P(f"v_add_u32 {v(V_KA+3)}, s{S_T2}, v6")
for k in range(3):
    P(f"v_add_u32 {v(V_KA+k)}, {64*(48-16*k)}, {v(V_KA+3)}")
P(f"v_lshlrev_b32 v6, 1, v4")
P(f"v_sub_u32 v6, v6, v5")
P(f"s_lshl4_add_u32 s{S_T1}, s{S_T3}, 17")
P(f"v_add_u32 v6, s{S_T1}, v6")
P(f"s_mov_b32 s{S_T2}, {L_UX}")
for rr in range(4):
    P(f"v_bfe_u32 v7, v6, 2, 2")
    P(f"v_xor_b32 v7, s{S_T0}, v7")
    P(f"v_lshl_add_u32 v7, v6, 2, v7")
    P(f"v_lshl_add_u32 {v(V_UA+rr)}, v7, 4, s{S_T2}")
    if rr < 3:
        P(f"v_subrev_u32 v6, 4, v6")
EB = sub()
if "nomv" not in OPT:
    EB(f"v_and_b32 v4, 15, {v(V_LANE)}")
    EB(f"v_lshrrev_b32 v5, 4, {v(V_LANE)}")
EB(f"v_lshrrev_b32 v6, 1, v5")
EB(f"v_lshl_add_u32 v6, v4, 1, v6")
EB(f"s_lshl_b32 s{S_T2}, s{S_V}, 11")
EB(f"s_add_u32 s{S_T2}, s{S_T2}, {L_UX+2048}")
EB(f"v_lshl_add_u32 v6, v6, 6, s{S_T2}")
EB(f"v_bfe_u32 v4, v4, 1, 2")
EB(f"v_and_b32 v5, 1, v5")
EB(f"v_lshl_add_u32 v247, v4, 4, v6")
EB(f"v_lshl_add_u32 {v(V_EU)}, v5, 3, v247")
EB(f"v_xor_b32 {v(V_EU1)}, 16, {v(V_EU)}")
EB(f"v_or_b32 v5, 2, v5")
EB(f"v_xor_b32 v4, v4, v5")
EB(f"v_lshl_add_u32 {v(V_EXP)}, v4, 4, v6")
if "nomv" in OPT:
    P.add(EB.ins)
P(f"s_mul_i32 s{S_ACTW}, s{S_V}, 7168")
P(f"v_add_u32 {v(V_EXR)}, s{S_ACTW}, {v(V_L16)}")
P(f"v_lshlrev_b32 {v(V_EXW)}, 4, v0")
P(f"s_mul_i32 s{S_PST}, s{S_PR}, {PROW}")
P(f"s_add_u32 s{S_PST}, s{S_PST}, {WS_P}")
CB = sub()
lanes_reg(CB, V_FL2, 4, 10)
lanes_reg(CB, V_PM, 2, 12)
CB(f"s_lshl1_add_u32 s{S_T0}, s{S_V}, s{S_FH}")
CB(f"s_lshl_b32 s{S_T0}, s{S_T0}, 12")
CB(f"s_add_u32 s{S_F2}, s{S_F2}, s{S_T0}")
CB(f"s_add_u32 s{S_F2}, s{S_F2}, {WS_C}")
CB(f"s_lshr_b32 s{S_T0}, s{S_TB}, 2")
CB(f"s_bfe_u32 s{S_REP}, s{S_W}, 0x20003")
CB(f"s_lshl3_add_u32 s{S_T0}, s{S_T0}, s{S_REP}")
CB(f"s_lshl2_add_u32 s{S_T0}, s{S_T0}, s{S_V}")
CB(f"s_lshl_b32 s{S_T0}, s{S_T0}, 8")
CB(f"s_add_u32 s{S_PA}, s{S_T0}, {WS_C}")
CB(f"s_lshl2_add_u32 s{S_T2}, s{S_DB}, s{S_V}")
CB(f"s_lshl2_add_u32 s{S_T3}, s{S_T2}, s{S_REP}")
CB(f"s_lshl_b32 s{S_T3}, s{S_T3}, 8")
CB(f"s_add_u32 s{S_P4}, s{S_T3}, {WS_C + 896*256}")
CB(f"s_mul_i32 s{S_T2}, s{S_T2}, {14*4096}")
CB(f"s_add_u32 s{S_WFB}, s{S_T2}, {WS_WF}")
CB(f"s_mul_i32 s{S_T1}, s{S_V}, {56*PROW}")
CB(f"s_lshl_b32 s{S_T0}, s{S_TB}, 8")
CB(f"s_add_u32 s{S_T0}, s{S_T0}, s{S_T1}")
CB(f"s_add_u32 s{S_AB}, s{S_T0}, {WS_P}")

if "nomv" in OPT:
    P.add(CB.ins)

if "pfpos" in OPT:
    a_, b_ = [int(x) for x in OPT["pfpos"].split(",")]
    P.ins = P.ins[:PF_AT] + sprinkle(P.ins[PF_AT:], [(a_, PFW.ins), (b_, PFD.ins)])
NS = int(OPT.get("ns", 0))
if NS:
    us = []
    for n in range(NS):
        i_, k_ = n // 4, n % 4
        q = sub()
        if k_ == 0:
            q(f"s_add_u32 m0, s{S_RING}, {(4*i_ % 8) * 1024 + (4*i_ // 8) * 32768}")
            if n % 8 == 0:
                q(f"s_mov_b32 s{S_WOFF}, {(i_//2)*4*57344}")
        o = f" offset:{1024*k_}" if k_ else ""
        q(f"buffer_load_dwordx4 {v(V_W+k_)}, {srd(SRD_WU if i_ % 2 else SRD_WG)}, s{S_WOFF} offen{o} lds", tok=f"w1_{i_}")
        us.append(q.ins)
    tail_ = P.ins[SETUP_A:]
    st_ = int(OPT.get("ns0", 0))
    step = (len(tail_) - st_) / NS
    P.ins = P.ins[:SETUP_A] + sprinkle(tail_, [(int(st_ + step * n), u) for n, u in enumerate(us)])
XF = 56
DF = 72
SA = 88
if "fine" in OPT: stamp("setup done")
P(f"s_mov_b32 s{S_K0}, {f32(1.0/448)}")
P(f"v_mov_b32 v4, {f32(1e-5)}")
P("s_mov_b32 exec_hi, 0x00ffffff")
for r in range(2):
    for i in range(4):
        P(f"v_lshlrev_b32 {v(XF+8*r+2*i)}, 16, {v(XR+4*r+i)}")
        P(f"v_and_b32 {v(XF+8*r+2*i+1)}, 0xffff0000, {v(XR+4*r+i)}")
    P(f"v_readfirstlane_b32 s{(S_A, S_B)[r]}, {v(XF+8*r)}")
stamp("x arrived")
if "wdlate" in OPT and not NOPF:
    P(f"global_load_dword v253, v245, s[56:57]")
for i in range(4):
    P(f"ds_write2_b32 {v(V_GX)}, {v(XR+i)}, {v(XR+4+i)} offset0:{16*i+8} offset1:{16*i+9}")
for r, sm in ((0, S_A), (1, S_B)):
    for i in range(4):
        P(f"v_pk_add_f32 {v(XF+8*r+2*i,2)}, {v(XF+8*r+2*i,2)}, s[{sm}:{sm+1}] op_sel_hi:[1,0] neg_lo:[0,1] neg_hi:[0,1]")
for r in range(2):
    b = XF + 8 * r
    t = DF + 8 * r
    P(f"v_pk_add_f32 {v(t,2)}, {v(b,2)}, {v(b+2,2)}")
    P(f"v_pk_mul_f32 {v(t+2,2)}, {v(b,2)}, {v(b,2)}")
    P(f"v_pk_add_f32 {v(t,2)}, {v(t,2)}, {v(b+4,2)}")
    for i in range(1, 4):
        P(f"v_pk_fma_f32 {v(t+2,2)}, {v(b+2*i,2)}, {v(b+2*i,2)}, {v(t+2,2)}")
    P(f"v_pk_add_f32 {v(t,2)}, {v(t,2)}, {v(b+6,2)}")
for r in range(2):
    t = DF + 8 * r
    P(f"v_add_f32 {v(SA+r)}, {v(t)}, {v(t+1)}")
    P(f"v_add_f32 {v(SA+2+r)}, {v(t+2)}, {v(t+3)}")


def wave_sum(p, regs):
    for mod in ("row_shr:1", "row_shr:2", "row_shr:4", "row_shr:8"):
        for r in regs:
            p(f"v_add_f32_dpp {v(r)}, {v(r)}, {v(r)} {mod} row_mask:0xf bank_mask:0xf bound_ctrl:0")
    for r in regs:
        p(f"v_add_f32_dpp {v(r)}, {v(r)}, {v(r)} row_bcast:15 row_mask:0xa bank_mask:0xf")
    for r in regs:
        p(f"v_add_f32_dpp {v(r)}, {v(r)}, {v(r)} row_bcast:31 row_mask:0xc bank_mask:0xf")


wave_sum(P, [SA, SA + 2, SA + 1, SA + 3])
P(f"v_pk_mul_f32 {v(SA,2)}, {v(SA,2)}, s[{S_K0}:{S_K0+1}] op_sel_hi:[1,0]")
P(f"v_pk_fma_f32 {v(SA+2,2)}, {v(SA+2,2)}, s[{S_K0}:{S_K0+1}], v[4:5] op_sel_hi:[1,0,0]")
P(f"v_pk_fma_f32 {v(SA+2,2)}, {v(SA,2)}, {v(SA,2)}, {v(SA+2,2)} neg_lo:[1,0,0] neg_hi:[1,0,0]")
for r in range(2):
    P(f"v_max_f32 {v(SA+2+r)}, {v(SA+2+r)}, v4")
for r in range(2):
    P(f"v_rsq_f32 {v(SA+2+r)}, {v(SA+2+r)}")
P(f"v_pk_mul_f32 {v(SA,2)}, {v(SA,2)}, {v(SA+2,2)} neg_lo:[1,0] neg_hi:[1,0]")
for r, sm in ((0, S_A), (1, S_B)):
    P(f"v_readlane_b32 s{sm}, {v(SA+2+r)}, 55")
for r, sm in ((0, S_A), (1, S_B)):
    P(f"v_readlane_b32 s{sm+1}, {v(SA+r)}, 55")
for r, sm in ((0, S_A), (1, S_B)):
    for i in range(4):
        P(f"v_pk_fma_f32 {v(XF+8*r+2*i,2)}, {v(XF+8*r+2*i,2)}, s[{sm}:{sm+1}], s[{sm}:{sm+1}] op_sel:[0,0,1] op_sel_hi:[1,0,1]")
for j in range(8):
    P(f"v_cvt_pk_bf16_f32 {v(DF+j)}, {v(XF+j)}, {v(XF+8+j)}")
for i in range(4):
    P(f"ds_write2_b32 {v(V_GW)}, {v(DF+2*i)}, {v(DF+2*i+1)} offset0:{16*i} offset1:{16*i+4}")
P("s_mov_b64 exec, -1")
def kgen_head(rd):
    q = sub()
    A0 = 48 + 0
    CC = 50
    unp = (lambda d, s: q(f"v_lshlrev_b32 {v(d)}, 16, {v(s)}")) if rd == 0 else (lambda d, s: q(f"v_and_b32 {v(d)}, 0xffff0000, {v(s)}"))
    for i in range(4):
        unp(48 + i, PR + i)
    q(f"v_mul_f32 v48, {f32(LOG2E)}, v48")
    q(f"v_exp_f32 v48, v48")
    q(f"v_mul_f32 v49, v49, v249")
    q(f"v_cvt_pk_bf16_f32 v48, v48, v48")
    q(f"v_mul_f32 v50, v50, v250")
    q(f"v_and_b32 v48, 0xffff0000, v48")
    q(f"v_mul_f32 v51, v51, v250")
    q(f"v_mul_f32 v48, v48, {v(V_DT)}")
    for (z, pos) in ((52, 1), (56, 256)) if "b3" not in OPT else ((52, 1), (54, 16), (56, 256)):
        if pos == 1:
            q(f"v_fract_f32 v5, v49")
            q(f"v_exp_f32 v4, v48")
        else:
            q(f"v_mul_f32 v5, {f32(float(pos))}, v49")
            q(f"v_mul_f32 v4, {f32(float(pos))}, v48")
            q(f"v_fract_f32 v5, v5")
            q(f"v_exp_f32 v4, v4")
        q(f"v_cos_f32 {v(z)}, v5")
        q(f"v_sin_f32 {v(z+1)}, v5")
        q(f"v_mul_f32 {v(z)}, {v(z)}, v4")
        q(f"v_mul_f32 {v(z+1)}, {v(z+1)}, v4")
    return q.ins


HD = sub()
HD(f"s_lshl_b32 s{S_T0}, s{S_V}, 3")
HD(f"s_and_b32 s{S_T0}, s{S_T0}, 16")
HD(f"s_mov_b32 m0, s{S_TAB}")
HD(f"v_lshrrev_b32 v4, s{S_T0}, {v(V_DT)}")
HD(f"v_lshlrev_b32 v4, 16, v4")
HD(f"v_mul_f32 v4, {f32(LOG2E)}, v4")
HD(f"v_exp_f32 v4, v4")
HD(f"v_readfirstlane_b32 s{S_DSK}, {v(V_DSK)}")
round_bf16(HD, V_DT, 4)
HD(f"v_mul_f32 v249, 0.15915494, {v(V_DT)}")
HD(f"v_add_f32 v250, {v(V_DT)}, {v(V_DT)}")
HD(f"v_mul_f32 {v(V_DT)}, {f32(-LOG2E)}, {v(V_DT)}")
HD.add(kgen_head(0))
FILL = (CB.ins if "nomv" not in OPT else []) + HD.ins
HB, HP_ = int(OPT.get("hb", 29)), int(OPT.get("hp", 0))
if "fine" in OPT: stamp("ln1 math")
P.add(FILL[:HB])
if OPT.get("w2") == "a":
    walk("early")
P("s_waitcnt lgkmcnt(0)")
P("s_barrier")
if "fine" in OPT: stamp("ln1 barrier")
UB = 112
for j in range(4):
    P(f"ds_read_b128 {v(UB+4*j,4)}, {v(V_GR)} offset:{1088*j}")
P.add(FILL[HB:HB + HP_])
if OPT.get("w2") == "b":
    walk("early")
assert HB + HP_ >= len(FILL) - len(HD.ins)
P("s_waitcnt lgkmcnt(0)")
for j in range(4):
    P(f"buffer_store_dwordx4 {v(UB+4*j,4)}, {v(V_L16 if j < 3 else V_S3)}, {srd(SRD_WS)}, s{S_UXO} offen offset:{1024*j} sc1", tok="ux")
P(f"s_cmp_lt_u32 s{S_W}, 224")
P("s_cbranch_scc1 L_main")


def nonce_init():
    q = sub()
    q(f"v_readfirstlane_b32 s{S_NONCE}, {v(V_NONCE)}")
    q(f"s_mul_i32 s{S_NONCE}, s{S_NONCE}, 1664525")
    q(f"s_add_u32 s{S_NONCE}, s{S_NONCE}, 1013904223")
    q(f"v_mov_b32 {v(V_NONCE)}, s{S_NONCE}")
    q(f"buffer_store_dword {v(V_NONCE)}, {v(V_P1)}, {srd(SRD_WS)}, s{S_CI} offen sc1", tok="ux")
    q(f"s_add_u32 s{S_E28}, s{S_NONCE}, 28")
    q(f"s_add_u32 s{S_E14}, s{S_NONCE}, 14")
    return q.ins


P.raw(f"s_waitcnt vmcnt({(4 if NOPF else 6) + NS})")
for x in nonce_init():
    P.raw(x.text)
P.raw("s_waitcnt vmcnt(0)")
P.raw(f"buffer_atomic_swap {v(V_NONCE)}, {v(V_FLG)}, {srd(SRD_WS)}, s{S_F1} offen")
P.raw("s_branch L_spare")
P("L_main:")
if OPT.get("w2") == "c":
    walk("early")
stamp("ln1 done")


def wfrag(m, ks):
    return 8 * ks + 4 * m


def slotoff(slot):
    return (slot % 8) * 1024 + (slot // 8) * 32768


def w_dma(kq, m, slot, tok):
    q = sub()
    q(f"s_add_u32 m0, s{S_RING}, {slotoff(slot)}")
    if m == 0:
        q(f"s_mov_b32 s{S_WOFF}, {kq*4*57344}")
    for k in range(4):
        o = f" offset:{1024*k}" if k else ""
        q(f"buffer_load_dwordx4 {v(V_W+k)}, {srd(SRD_WU if m else SRD_WG)}, s{S_WOFF} offen{o} lds", tok=tok)
    return q.ins


def w_tr(kq, m, slot, tok=None):
    q = sub()
    for k in range(4):
        for h in range(2):
            q(f"ds_read_b64_tr_b16 {acc(wfrag(m,4*kq+k)+2*h,2)}, {v(V_TRA)} offset:{slotoff(slot+k)+256*h}", tok=tok)
    return q.ins


def batch_dma(b, tok):
    return [w_dma(2 * b + i // 2, i % 2, 4 * i, f"{tok}_{i}") for i in range(4)]


def batch_tr(b):
    o = []
    for i in range(4):
        o += w_tr(2 * b + i // 2, i % 2, 4 * i, tok=f"t{b}_{i}")
    return o


def singles(groups):
    out, cur = [], []
    for grp in groups:
        for i in grp:
            cur.append(i)
            if i.cls == "vmem":
                out.append(cur)
                cur = []
    if cur:
        out[-1] += cur
    return out


def pin_vm(g, start, groups, stride):
    k = start
    for u in singles(groups):
        g.at(int(k), u)
        k += stride
    return int(k)


def w_dma1(b, n, tok):
    i, k = n // 4, n % 4
    q = sub()
    q(f"s_add_u32 m0, s{S_RING}, {slotoff(4*i)}")
    if n % 8 == 0:
        q(f"s_mov_b32 s{S_WOFF}, {(2*b+i//2)*4*57344}")
    o = f" offset:{1024*k}" if k else ""
    if OPT.get("fk") == "same":
        q(f"buffer_load_dwordx4 {v(V_L16)}, {srd(SRD_WG)}, 0 offen{o} lds", tok=f"{tok}_{i}")
    elif OPT.get("fk") == "reg":
        q(f"buffer_load_dwordx4 a[{128+4*n}:{131+4*n}], {v(V_W+k)}, {srd(SRD_WU if i % 2 else SRD_WG)}, s{S_WOFF} offen{o}", tok=f"{tok}_{i}")
    elif OPT.get("fk") != "none":
        q(f"buffer_load_dwordx4 {v(V_W+k)}, {srd(SRD_WU if i % 2 else SRD_WG)}, s{S_WOFF} offen{o} lds", tok=f"{tok}_{i}")
    q(f"s_mov_b32 m0, s{S_TAB}")
    return q.ins


KD = 176
FR = 192
FR = 112


WRI = "ds_write_b32 v246," if "plainw" in OPT else "ds_write_addtid_b32"


def kgen_body(rd):
    names = {"G0": 50, "E1": 52, "E16": 54, "E256": 56}
    nxt = [58]
    chunks = []
    cur = sub()
    wr = sub()
    pk = [0]
    PK = 192

    def new(n):
        names[n] = nxt[0]
        nxt[0] += 2
        assert nxt[0] <= 104
        return names[n]

    def out(kind, row, z):
        t = PK + pk[0] % 16
        pk[0] += 1
        if kind == "B":
            cur(f"v_cvt_pk_bf16_f32 {v(t)}, {v(z)}, {v(z+1)}")
            wr(f"{WRI} {v(t)} offset:{row*TAB_ROW}")
        else:
            cur(f"v_cvt_pk_bf16_f32 {v(t)}, {v(z)}, -{v(z+1)}")
            wr(f"{WRI} {v(t)} offset:{(32+row)*TAB_ROW}")
        if len(wr.ins) >= GROUP:
            flush()

    def flush():
        nonlocal cur, wr
        chunks.append(cur.ins + wr.ins)
        cur = sub()
        wr = sub()

    sc = [0]

    def mul(n, a, b, kind=None, row=None):
        if n is None:
            z = 104 + 2 * (sc[0] % 4)
            sc[0] += 1
        else:
            z = new(n)
        cmul(cur, z, names[a], names[b])
        if kind:
            out(kind, row, z)

    GROUP = int(OPT.get("kgroup", 6))
    if rd == 0:
        t = PK + pk[0]
        pk[0] += 1
        cur(f"v_mov_b32 {v(t)}, 0x3f80")
        wr(f"{WRI} {v(t)}")
    out("A", 0, names["G0"])
    mul("E2", "E1", "E1")
    mul("G1", "G0", "E256", "A", 8)
    mul("E512", "E256", "E256")
    mul("a1", "G0", "E1", "A", 1)
    mul("E4", "E2", "E2")
    mul("G2", "G0", "E512", "A", 10)
    mul("G3", "G1", "E512", "A", 11)
    mul("E1024", "E512", "E512")
    mul("E8", "E4", "E4", "B", 1)
    mul("a2", "G0", "E2", "A", 2)
    if "b3" in OPT:
        out("B", 2, names["E16"])
    else:
        cmul(cur, names["E16"], names["E8"], names["E8"])
        out("B", 2, names["E16"])
    mul("a3", "a1", "E2", "A", 3)
    mul("E32", "E16", "E16", "B", 4)
    mul("b2", "G1", "E2", "A", 9)
    mul("E64", "E32", "E32", "B", 8)
    mul("E48", "E32", "E16", "B", 6)
    mul("G4", "G0", "E1024", "A", 16)
    mul("E128", "E64", "E64", "B", 16)
    mul("E24", "E16", "E8", "B", 3)
    mul("E40", "E32", "E8", "B", 5)
    mul("E56", "E48", "E8", "B", 7)
    mul("E192", "E128", "E64", "B", 24)
    for row, a in ((4, "G0"), (5, "a1"), (6, "a2"), (7, "a3"), (12, "G1"), (13, "b2"), (14, "G2"), (15, "G3")):
        mul(None, a, "E4", "A", row)
    for row, a in ((17, "G1"), (18, "G2"), (19, "G3"), (20, "G4")):
        mul(None, a, "E1024", "A", row)
    for b2, nb in ((1, "E64"), (2, "E128"), (3, "E192")):
        for b1 in range(1, 8):
            mul(None, f"E{8*b1}", nb, "B", 8 * b2 + b1)
    if wr.ins or cur.ins:
        flush()
    return chunks


def kgen_reads():
    q = sub()
    for s in range(8):
        q(f"ds_read_b128 {v(FR+8*s,4)}, {v(V_TA)} offset:{32*TAB_ROW+32*s}")
        q(f"ds_read_b128 {v(FR+8*s+4,4)}, {v(V_TB)} offset:{32*s}")
    return q.ins


def kgen_mfma(rd):
    q = sub()
    for s in range(8):
        c = "0" if (rd == 0 and s == 0) else v(KD, 16)
        q(f"v_mfma_f32_32x32x16_bf16 {v(KD,16)}, {v(FR+8*s,4)}, {v(FR+8*s+4,4)}, {c}")
    return q.ins


P.add(FILL[HB + HP_:])
P.add(nonce_init())
ch = kgen_body(0)
fl = sub()
fl.wait("ux")
setflag(fl, S_F1)
nd = NS
FLAGAT = int(OPT.get("flagat", 5))
D0, DM, D1 = OPT.get("dsch", "011111000,2,111111111").split(",")


def dmas(n):
    global nd
    o = []
    for k in range(n):
        u = w_dma1(0, nd, "w1")
        if k and nd % 4:
            o = o[:-1] + u[1:]
        elif k:
            o = o[:-1] + u
        else:
            o = u
        nd += 1
    return o


for i, c in enumerate(ch):
    P.add(c)
    P.add(dmas(int(D0[i])))
    if i == FLAGAT:
        if "fine" in OPT: stamp("pre flag1")
        P.add(fl.ins)
        if "fine" in OPT: stamp("post flag1")
P.add(kgen_reads())
g = Gaps(kgen_mfma(0), 7)
for k in range(int(DM)):
    g.at(2 * k, dmas(1))
h1_ = kgen_head(1)
NH = int(OPT.get("nh", 12))
P.add(h1_[:NH])
g.fill(h1_[NH:], cap=5)
P.add(g.out())
stamp("kgen r0")
ch = kgen_body(1)
POLLAT = int(OPT.get("pollat", 5))
CHKAT = int(OPT["chkat"]) if "chkat" in OPT else None


def ux_unit(j):
    q = sub()
    q(f"s_mov_b32 s{S_T0}, {j*(16*14336-1024)}")
    o = f" offset:{1024*j}" if j else ""
    q(f"buffer_load_dwordx4 {v(V_UXL)}, {srd(SRD_WS)}, s{S_T0} offen{o} sc1 lds", tok="uxl")
    return q.ins


for i, c in enumerate(ch):
    P.add(c)
    P.add(dmas(int(D1[i])))
    if i == POLLAT:
        if "f1at" not in OPT:
            P(f"buffer_load_dword v6, {v(V_F1)}, {srd(SRD_WS)}, s{S_F1L} offen sc1")
        else:
            P.add(poll_issue("F1", 6))
    if i == CHKAT:
        P.add(poll_check("F1", 6))
        P(f"s_mov_b32 m0, s{S_UXM}")
        for j in range(4):
            P.add(ux_unit(j))
        P(f"s_mov_b32 m0, s{S_TAB}")
assert nd == 16
P.add(kgen_reads())
if "fine" in OPT: stamp("pre poll1")
if CHKAT is None:
    P.add(poll_check("F1", 6))
if "fine" in OPT: stamp("post poll1")
g = Gaps(kgen_mfma(1), 6)
if CHKAT is None:
    P(f"s_mov_b32 m0, s{S_UXM}")
for j in range(4 if CHKAT is None else 0):
    q = sub()
    q(f"s_mov_b32 s{S_T0}, {j*(16*14336-1024)}")
    o = f" offset:{1024*j}" if j else ""
    q(f"buffer_load_dwordx4 {v(V_UXL)}, {srd(SRD_WS)}, s{S_T0} offen{o} sc1 lds", tok="uxl")
    if j == 0:
        P.add(q.ins)
    else:
        g.at(2 * j - 2, q.ins)
tr1 = batch_tr(0)
P.wait("w1_2")
for k in range(8):
    g.at(k, tr1[3 * k:3 * k + 3])
P.add(g.out())
stamp("kgen r1")
b2 = batch_dma(1, "w2")
b2[0] = waitq("t0_0") + b2[0]
b2[3] = waitq("t0_3") + b2[3]
b2 = singles(b2)
P.add(b2.pop(0))
P(f"s_lshl_b32 s{S_C}, s{S_DSK}, 16")
P(f"s_and_b32 s{S_D}, s{S_DSK}, 0xffff0000")
P(f"v_add_u32 v7, {2*CS}, {v(V_EXW)}")
P(f"v_mov_b32 {v(V_NONCE)}, 1")
toff = {0: (0, 0), 1: (0, 1), 2: (0, 2), 3: (0, 3), 4: (1, 0), 5: (1, 2), 6: (2, 0), 7: (3, 0), 8: (4, 0), 9: (5, 0), 10: (6, 0), 11: (7, 0)}
P(f"ds_write2_b32 {v(V_TW)}, {v(KD)}, {v(KD+1)} offset0:0 offset1:1")
P(f"ds_write2_b32 {v(V_TW)}, {v(KD+2)}, {v(KD+3)} offset0:2 offset1:3")
for j in range(4, 12):
    qq, r = toff[j]
    P(f"ds_write_b32 {v(V_TW)}, {v(KD+j)} offset:{4*(r + 264*qq)}")
P.add(b2.pop(0))
if "eb" in OPT and "ebrace" not in OPT:
    P.wait("uxl")
P("s_waitcnt lgkmcnt(0)")
P("s_barrier")
if "fine" in OPT: stamp("T barrier")
EG = 208
for c2 in range(2):
    for e in range(9):
        P(f"ds_read2st64_b32 {v(EG+18*c2+2*e,2)}, {v(GA+e)} offset0:{114*c2} offset1:{114*c2+57}", tok=f"g{c2}")
P.add(b2.pop(0))
if "nomv" not in OPT:
    P.add(EB.ins)
P.add(b2.pop(0))
KO = 192
VB = 48


def bfrag(rr, e):
    return VB + 32 * rr + 4 * e


def b_loads(lo, hi):
    z = sub()
    for rr in range(4):
        for a in range(lo, hi):
            z(f"ds_read_b128 {v(bfrag(rr,a),4)}, {v(V_UA+rr)} offset:{2048*a}")
    return z.ins


EARLYB = "eb" in OPT
if EARLYB:
    P.add(b_loads(0, 4)[:int(OPT["eb"])])
for c2 in range(2):
    b = EG + 18 * c2
    P.wait(f"g{c2}")
    for e in range(9):
        P(f"v_add_f32 {v(b+2*e)}, {v(b+2*e)}, {v(b+2*e+1)}")
    P(f"v_cndmask_b32 {v(b+16)}, {v(b+16)}, 0, s[{S_M255}:{S_M255+1}]")
    for s_ in range(2):
        o = KO + 8 * c2 + 4 * s_
        for i in range(4):
            P(f"v_cvt_pk_bf16_f32 {v(o+i)}, {v(b+2*(s_+2*i))}, {v(b+2*(s_+2*i+1))}")
    for s_ in range(2):
        P(f"ds_write_b128 {v(7 if c2 else V_EXW)}, {v(KO+8*c2+4*s_,4)} offset:{L_KC+s_*CS}", tok="kc")
    P.add(b2.pop(0))
if "dumpk" in OPT:
    P(f"s_lshl_b32 s{S_T0}, s{S_W}, 13")
    P(f"s_add_u32 s{S_T0}, s{S_T0}, {WS_DBG}")
    P(f"buffer_store_dwordx4 {v(KO,4)}, {v(V_EXW)}, {srd(SRD_WS)}, s{S_T0} offen")
    P(f"s_add_u32 s{S_T0}, s{S_T0}, 4096")
    P(f"buffer_store_dwordx4 {v(KO+8,4)}, {v(V_EXW)}, {srd(SRD_WS)}, s{S_T0} offen")
stamp("expanded")
P.wait("uxl")
P.wait("kc")
P("s_barrier")
stamp("conv start")

CA = [176, 192]
ET = 208


def afrag(rr, a):
    return 128 + 32 * rr + 4 * a


def a_loads(rr, lo, hi):
    z = sub()
    for a in range(lo, hi):
        k = a // 2
        off = 16 * (11 - rr - 8 * (a - 2 * k))
        z(f"ds_read2_b32 {acc(afrag(rr,a),2)}, {v(V_KA+k)} offset0:{off} offset1:{off+1}")
        z(f"ds_read2_b32 {acc(afrag(rr,a)+2,2)}, {v(V_KA+k)} offset0:{off+2} offset1:{off+3}")
    return z.ins


def conv_mfmas(gen):
    m = sub()
    first = set()
    na = 4 if gen == 0 else 8
    order = []
    for rr in range(4):
        pairs = [(a, e) for a in range(na) for e in range(na) if 4 * gen <= a + e < 4 * gen + 4]
        pairs.sort(key=(lambda ae: (max(ae), ae)) if rr < 3 else (lambda ae: (ae[0] + ae[1], ae)))
        order += [(rr, a, e) for a, e in pairs]
    if gen == 1:
        order.sort(key=lambda t: (0 if max(t[1], t[2]) < 4 else 1))
    for rr, a, e in order:
        c = a + e - 4 * gen
        d = CA[gen] + 4 * c
        cc = v(d, 4) if c in first else "0"
        first.add(c)
        m(f"v_mfma_f32_16x16x32_bf16 {v(d,4)}, {acc(afrag(rr,a),4)}, {v(bfrag(rr,e),4)}, {cc}")
    return m.ins


UU, XX, YY, TT, WW, HO = ET, ET + 4, ET + 8, ET + 24, ET + 32, ET + 36


def conv_pre(gen):
    q = sub()
    q(f"ds_read_b64 {v(UU,2)}, {v(V_EU)} offset:{8192*gen}")
    q(f"ds_read_b64 {v(UU+2,2)}, {v(V_EU1)} offset:{8192*gen}")
    q(f"ds_read_b128 {v(XX,4)}, {v(V_EXP)} offset:{8192*gen}")
    r = sub()
    if "exact" not in OPT:
        for j in range(4):
            r(f"v_lshlrev_b32 {v(TT+j)}, 16, {v(XX+j)}")
            r(f"v_and_b32 {v(TT+4+j)}, 0xffff0000, {v(XX+j)}")
        for c2, sm in ((0, S_C), (1, S_D)):
            for i in range(2):
                r(f"v_lshlrev_b32 {v(WW)}, 16, {v(UU+2*c2+i)}")
                r(f"v_and_b32 {v(WW+1)}, 0xffff0000, {v(UU+2*c2+i)}")
                r(f"v_fmac_f32 {v(TT+4*c2+2*i)}, s{sm}, {v(WW)}")
                r(f"v_fmac_f32 {v(TT+4*c2+2*i+1)}, s{sm}, {v(WW+1)}")
        return q.ins, r.ins
    for c2 in range(2):
        for i in range(2):
            r(f"v_lshlrev_b32 {v(TT+4*c2+2*i)}, 16, {v(UU+2*c2+i)}")
            r(f"v_and_b32 {v(TT+4*c2+2*i+1)}, 0xffff0000, {v(UU+2*c2+i)}")
    for c2, sm in ((0, S_C), (1, S_D)):
        for i in range(4):
            r(f"v_mul_f32 {v(TT+4*c2+i)}, s{sm}, {v(TT+4*c2+i)}")
    for j in range(4):
        r(f"v_cvt_pk_bf16_f32 {v(WW+j)}, {v(TT+j)}, {v(TT+4+j)}")
    for j in range(4):
        r(f"v_lshlrev_b32 {v(TT+2*j)}, 16, {v(WW+j)}")
        r(f"v_and_b32 {v(TT+2*j+1)}, 0xffff0000, {v(WW+j)}")
    return q.ins, r.ins


def conv_xchg(gen):
    w_, b_, r_ = sub(), sub(), sub()
    for c in range(4):
        w_(f"ds_write_b128 {v(V_EXW)}, {v(CA[gen]+4*c,4)} offset:{(4096 if gen else 7168)*c}", tok=f"xw{gen}")
    b_.wait(f"xw{gen}")
    b_("s_barrier")
    for w in range(4):
        r_(f"ds_read_b128 {v(YY+4*w,4)}, {v(V_EXR)} offset:{1024*w}", tok=f"xr{gen}")
    return w_.ins, b_.ins, r_.ins


def conv_post(gen):
    q = sub()
    h = HO + 4 * gen
    if "exact" not in OPT:
        for c2 in range(2):
            for i in range(2):
                q(f"v_pk_add_f32 {v(TT+4*c2+2*i,2)}, {v(TT+4*c2+2*i,2)}, {v(YY+8*c2+2*i,2)}")
            for i in range(2):
                q(f"v_pk_add_f32 {v(TT+4*c2+2*i,2)}, {v(TT+4*c2+2*i,2)}, {v(YY+8*c2+4+2*i,2)}")
        for j in range(4):
            q(f"v_cvt_pk_bf16_f32 {v(h+j)}, {v(TT+j)}, {v(TT+4+j)}")
        q(f"buffer_store_dwordx4 {v(h,4)}, {v(V_EXW)}, {srd(SRD_WS)}, s{S_PST} offen sc1", tok=f"h{gen}")
        return q.ins
    for c2 in range(2):
        for i in range(2):
            q(f"v_pk_add_f32 {v(YY+8*c2+2*i,2)}, {v(YY+8*c2+2*i,2)}, {v(YY+8*c2+4+2*i,2)}")
    for j in range(4):
        q(f"v_cvt_pk_bf16_f32 {v(WW+j)}, {v(YY+j)}, {v(YY+8+j)}")
    for j in range(4):
        q(f"v_lshlrev_b32 {v(YY+2*j)}, 16, {v(WW+j)}")
        q(f"v_and_b32 {v(YY+2*j+1)}, 0xffff0000, {v(WW+j)}")
    for j in range(4):
        q(f"v_pk_add_f32 {v(YY+2*j,2)}, {v(YY+2*j,2)}, {v(TT+2*j,2)}")
    for j in range(4):
        q(f"v_cvt_pk_bf16_f32 {v(WW+j)}, {v(YY+2*j)}, {v(YY+2*j+1)}")
    for j in range(4):
        q(f"v_lshlrev_b32 {v(YY+8+2*j)}, 16, {v(XX+j)}")
        q(f"v_and_b32 {v(YY+8+2*j+1)}, 0xffff0000, {v(XX+j)}")
    for j in range(4):
        q(f"v_lshlrev_b32 {v(YY+2*j)}, 16, {v(WW+j)}")
        q(f"v_and_b32 {v(YY+2*j+1)}, 0xffff0000, {v(WW+j)}")
    for j in range(4):
        q(f"v_pk_add_f32 {v(YY+2*j,2)}, {v(YY+2*j,2)}, {v(YY+8+2*j,2)}")
    h = HO + 4 * gen
    for j in range(4):
        q(f"v_cvt_pk_bf16_f32 {v(h+j)}, {v(YY+2*j)}, {v(YY+2*j+1)}")
    q(f"buffer_store_dwordx4 {v(h,4)}, {v(V_EXW)}, {srd(SRD_WS)}, s{S_PST} offen sc1", tok=f"h{gen}")
    return q.ins


V_A = 17
ad1 = sub()
ad1(f"v_bfe_u32 v4, {v(V_LANE)}, 3, 1")
ad1(f"v_lshrrev_b32 v5, 5, {v(V_LANE)}")
ad1(f"v_lshl_add_u32 v4, v5, 1, v4")
ad1(f"v_and_b32 v5, 0x70, {v(V_L16)}")
ad1(f"v_lshlrev_b32 v6, 5, v4")
ad1(f"v_xor_b32 v5, v5, v6")
ad1(f"v_bfe_u32 v6, {v(V_LANE)}, 4, 1")
ad1(f"v_lshl_add_u32 v4, v4, 1, v6")
ad1(f"v_mul_u32_u24 v4, {PROW}, v4")
ad1(f"v_add3_u32 {v(V_A)}, v4, v5, s{S_AB}")
for k in range(1, 4):
    ad1(f"v_add_u32 {v(V_A+k)}, {k*(8*PROW-1024)}, {v(V_A)}")


def act_dma(J):
    o = []
    gen, T = J >> 1, J & 1
    for kk in range(2):
        q = sub()
        q(f"s_add_u32 m0, s{S_ACTW}, {L_ACT[gen] + T*28672 + kk*4096}")
        q(f"s_mov_b32 s{S_WOFF}, {kk*32*PROW + PGEN*gen + 128*T}")
        for k in range(4 - kk):
            of = f" offset:{1024*k}" if k else ""
            q(f"buffer_load_dwordx4 {v(V_A+k)}, {srd(SRD_WS)}, s{S_WOFF} offen{of} sc1 lds", tok=f"act{J}")
        o.append(q.ins)
    return o


V_BR, V_S2, V_HST, V_BR2 = 21, 22, 24, 26
V_LF, V_LR = 28, 29
V_RES = 27
V_OST, V_RR, V_RW, V_HL = 45, 41, 42, 44
SEL = 176
CSA = [180, 184]
ad = sub()
ad(f"s_add_u32 s{S_PA}, s{S_PA}, 0x8000")
ad(f"v_and_b32 v4, 31, {v(V_LANE)}")
ad(f"v_lshrrev_b32 v5, 5, {v(V_LANE)}")
ad(f"v_mul_u32_u24 v5, {512+64}, v5")
ad(f"v_lshlrev_b32 v6, 2, v4")
ad(f"v_xor_b32 {v(V_BR)}, v5, v6")
ad(f"v_xor_b32 {v(V_BR2)}, 0xa0, {v(V_BR)}")
NAD2 = len(ad.ins)
ad(f"s_lshl_b32 s{S_T0}, s{S_TB}, 10")
ad(f"s_mul_i32 s{S_T1}, s{S_DB}, {S2REP}")
ad(f"s_add_u32 s{S_T0}, s{S_T0}, s{S_T1}")
ad(f"s_add_u32 s{S_T0}, s{S_T0}, {WS_S2}")
ad(f"v_lshl_add_u32 {v(V_S2)}, v4, 3, s{S_T0}")
ad(f"s_mov_b32 s{S_PERM}, 0x03020302")
ad(f"v_lshrrev_b32 v5, 4, {v(V_LANE)}")
ad(f"v_and_b32 v6, 15, {v(V_LANE)}")
ad(f"v_and_b32 v4, 1, v5")
ad(f"v_mul_u32_u24 v4, 57344, v4")
ad(f"v_lshl_add_u32 v4, v6, 4, v4")
ad(f"v_lshrrev_b32 v7, 1, v5")
ad(f"v_lshl_add_u32 v4, v7, 8, v4")
ad(f"s_mul_i32 s{S_T0}, s{S_TB}, {8*57344}")
ad(f"s_lshl_b32 s{S_T1}, s{S_FB}, 2")
ad(f"s_add_u32 s{S_T1}, s{S_T1}, s{S_V}")
ad(f"s_lshl_b32 s{S_T2}, s{S_T1}, 10")
ad(f"s_add_u32 s{S_T0}, s{S_T0}, {WS_H}")
ad(f"s_add_u32 s{S_T2}, s{S_T2}, s{S_T0}")
ad(f"v_add_u32 {v(V_HST)}, s{S_T2}, v4")
if "tch" in OPT:
    ad(f"s_mul_i32 s{S_TCH}, s{S_FH}, 57344")
    ad(f"s_add_u32 s{S_TCH}, s{S_TCH}, s{S_T2}")
    if "tch2" in OPT:
        ad(f"s_mul_i32 s{S_T3}, s{S_FH}, 28672")
        ad(f"s_sub_u32 s{S_TCH}, s{S_TCH}, s{S_T3}")
ad(f"s_mul_i32 s{S_T2}, s{S_FH}, 57344")
ad(f"s_add_u32 s{S_T0}, s{S_T0}, s{S_T2}")
ad(f"s_lshl1_add_u32 s{S_T0}, s{S_ACTW}, s{S_T0}")
ad(f"v_add_u32 {v(V_HL)}, s{S_T0}, {v(V_L16)}")
ad(f"s_lshl_b32 s{S_T0}, s{S_TB}, 13")
ad(f"s_add_u32 s{S_T0}, s{S_T0}, {WS_C + 65536}")
ad(f"s_mul_i32 s{S_T1}, s{S_T1}, 37")
ad(f"s_and_b32 s{S_T1}, s{S_T1}, 0x600")
ad(f"s_add_u32 s{S_F3}, s{S_T0}, s{S_T1}")
ad(f"s_lshl1_add_u32 s{S_T1}, s{S_V}, s{S_FH}")
ad(f"s_lshl_b32 s{S_T1}, s{S_T1}, 8")
ad(f"s_add_u32 s{S_P3}, s{S_T0}, s{S_T1}")
for k in range(1, 4):
    ad(f"s_movk_i32 s{S_HR+k}, {4096*k}")
ad(f"s_add_u32 s{S_FW}, s{S_RING}, 32768")
ad(f"s_lshl_b32 s{S_R2}, s{S_V}, 14")
ad(f"v_add_u32 {v(V_LF)}, s{S_FW}, {v(V_L16)}")
ad(f"v_add_u32 {v(V_LR)}, s{S_R2}, {v(V_L16)}")
ad2 = ad
se = sub()
se(f"v_bfe_u32 v4, {v(V_LANE)}, 2, 2")
se(f"v_bfe_u32 v5, {v(V_LANE)}, 4, 1")
se(f"v_mov_b32 v6, 0x3f803f80")
se(f"v_cmp_eq_u32 vcc, v4, v5")
for i in range(4):
    se(f"v_cndmask_b32 {v(SEL+i)}, 0, v6, vcc")


def cs_mfma(ks0, ks1):
    q = sub()
    for ks in range(ks0, ks1):
        for m in range(2):
            c = "0" if ks == 0 else v(CSA[m], 4)
            q(f"v_mfma_f32_16x16x32_bf16 {v(CSA[m],4)}, {v(SEL,4)}, {acc(wfrag(m,ks),4)}, {c}")
    return q.ins


def pin_spread(g, start, ins, per=2):
    for i, x in enumerate(ins):
        g.at(int(start + i // per), [x])
    return int(start + (len(ins) + per - 1) // per)


def gap_stamps(g, name):
    if OPT.get("gs", "").startswith(name + ":"):
        for k in OPT["gs"].split(":")[1].split(","):
            q = sub()
            stamp(f"{name} g{k}", q)
            g.pin[int(k)] = q.ins + g.pin[int(k)]


mA, mB = conv_mfmas(0), conv_mfmas(1)
NCS0 = int(OPT.get("ncs0", 8))
NOV = int(OPT.get("nov", 15))
bl = b_loads(0, 4)


def ab(rr):
    al = a_loads(rr, 0, 4)
    o = []
    for a in range(4):
        o += ([bl[4 * rr + a]] if not (EARLYB and 4 * rr + a < int(OPT["eb"])) else []) + al[2 * a:2 * a + 2]
    return o


pr, pv = conv_pre(0)
P.add(ab(0) + ab(1)[:3])
P.add(b2.pop(0))
P.add(b2.pop(0))
g = Gaps(mA + mB[:NOV], 2)
l1 = ab(1)[3:] + ab(2) + ab(3) + pr
NL1 = int(OPT.get("nl1", 24))
for i, x in enumerate(l1):
    g.at(i * NL1 // len(l1), [x])
xw, xb, xr = conv_xchg(0)
for i, k in enumerate([int(x) for x in OPT.get("xa", "33,35,38,42").split(",")]):
    g.at(k, [xw[i]])
XB = int(OPT.get("xb", 45))
g.fill(pv, start=NL1 + 5, end=XB + 8, cap=2.5)
g.at(XB, xb)
g.at(XB + 1, xr)
pin_vm(g, XB + 2, b2[:2], 3)
b2 = b2[2:]
P.add(g.out())
P.add(conv_post(0))
stamp("genA stored")
nb = b_loads(4, 8)
newl = []
for rr in range(4):
    newl += nb[4 * rr:4 * rr + 4] + a_loads(rr, 4, 8)
P.add(newl[:8])
g = Gaps(mB[NOV:] + cs_mfma(0, NCS0), 2)
NB_ = len(mB) - NOV
pin_spread(g, 0, newl[8:], per=1)
g.at(0, waitq("w1_3"))
pin_spread(g, 0, tr1[24:], per=1)
pin_vm(g, 1, b2, 3.5)
fl = sub()
fl.wait("h0")
addcnt(fl, S_F2, V_FL2)
fl(f"s_add_u32 s{S_F2}, s{S_F2}, 0x8000")
g.at(int(OPT.get("fa", 24)), fl.ins)
tr2 = batch_tr(1)
T2 = [int(x) for x in OPT.get("t2", "12,24,44,60").split(",")]
b3 = batch_dma(2, "w3")
for i in range(4):
    pin_spread(g, T2[i], waitq(f"w2_{i}") + tr2[8 * i:8 * i + 8], per=1)
    b3[i] = waitq(f"t1_{i}") + b3[i]
pin_vm(g, 30, b3[:2], 3)
pin_vm(g, 56, b3[2:3], 3)
pin_vm(g, 71, b3[3:4], 2.5)
pr, pv = conv_pre(1)
pin_spread(g, 41, pr, per=1)
newl[-1].tok = "lastfrag"
bq = sub()
bq.wait("lastfrag")
bq("s_barrier")
g.at(54, bq.ins)
x2 = sub()
x2(f"v_add_u32 {v(V_EXW)}, {L_KC}, {v(V_EXW)}")
x2(f"s_lshl_b32 s{S_T0}, s{S_V}, 12")
x2(f"s_add_u32 s{S_T0}, s{S_T0}, {L_KC}")
x2(f"v_add_u32 {v(V_EXR)}, s{S_T0}, {v(V_L16)}")
x2(f"s_add_u32 s{S_PST}, s{S_PST}, {PGEN - L_KC}")
PA1, PA2, PAC = int(OPT.get("pa1", 58)), int(OPT.get("pa2", 72)), int(OPT.get("pac", 86))
e = g.fill(x2.ins + ad1.ins + se.ins, start=34, end=NB_ - 16)
g.fill(pv, start=max(e, 50), end=NB_ + 10)
g.at(PA1, poll_issue(S_PA, 7))
g.at(PA2, poll_issue(S_PA, 23))
if "pa3" in OPT:
    g.at(int(OPT["pa3"]), poll_first("a", S_PA, 24))
    g.at(PAC, (poll_checkn if "paout" in OPT else poll_inline)(S_PA, [7, 23, 24], "3", f"s{S_E28}"))
else:
    g.at(PAC, stq("pre pollA") + poll_check2(S_PA, 7, 23, "3", f"s{S_E28}") + stq("post pollA"))
a0 = singles(act_dma(0) + act_dma(1))
AS = float(OPT.get("as", 3))
na = int((g.n - 1 - PAC) / AS) + 1
pin_vm(g, PAC, a0[:na], AS)
xw, xb, xr = conv_xchg(1)
for i, k in enumerate((-15, -11, -5, 3)):
    g.at(NB_ + k, [xw[i]])
g.at(NB_ + 6, xb)
g.at(NB_ + 7, xr)
gap_stamps(g, "s2")
o_ = g.out()
X = OPT.get("x2", "")
if "d" in X:
    o_ = [i for i in o_ if not (i.cls == "vmem" and i.tok and i.tok[0] == "w")]
if "t" in X:
    o_ = [i for i in o_ if "tr_b16" not in i.mn]
if "a" in X:
    o_ = [i for i in o_ if "ds_read2_b32" not in i.mn]
P.add(o_)
P.add(conv_post(1))
stamp("genB stored")
NCH_ = int(OPT.get("nch", 7))
g = Gaps(cs_mfma(NCS0, 24 - NCH_), 3)
g.at(1, poll_first("w", S_P4, 25))
tr3 = batch_tr(2)
t3 = []
for i in (0, 1, 2, 3):
    t3 += waitq(f"w3_{i}") + tr3[8 * i:8 * i + 8]
pin_spread(g, 0, t3, per=2)
e = pin_vm(g, 0, a0[na:], 2)
fl = sub()
fl.wait("h1")
addcnt(fl, S_F2, V_FL2)
g.fill(ad2.ins[:NAD2], start=18)
w4 = singles([waitq("t2_3") + w_dma(6, 0, 8, "w4"), w_dma(6, 1, 12, "w4")])
P.add(g.out())
stamp("gap work done")

GACC = [64, 96]
BF = 128
NBF = 8
MB = 160
KC_ = [14, 9]
STT = 60
EPT = 164
HP = 172
WDV = 188
RESR = [46, 48, 50, 52]
A_CS = [224, 228]
GC0 = -2.0 * math.sqrt(2.0 / math.pi) * LOG2E


def st_issue(J, atomic=None):
    q = sub()
    t = STT + 2 * (J & 1)
    atomic = False if atomic is None else atomic
    if atomic:
        q(f"v_mov_b64 {v(t,2)}, 0")
        q(f"buffer_atomic_add_x2 {v(t,2)}, {v(V_S2)}, {srd(SRD_WS)}, 0 offen offset:{256*J} sc0")
    else:
        q(f"buffer_load_dwordx2 {v(t,2)}, {v(V_S2)}, {srd(SRD_WS)}, 0 offen offset:{256*J} sc1")
    return q.ins


def st_check(J):
    q = sub()
    t = STT + 2 * (J & 1)
    slow, done = label("sslow"), label("sdone")
    q(f"v_cmp_ne_u32 vcc, s{S_NONCE}, {v(t+1)}")
    q(f"s_cbranch_vccnz {slow}")
    q(f"{done}:")
    spin(TAIL, slow, done, st_issue(J, True), t + 1, sleep=1)
    return q.ins


def st_final(J):
    q = sub()
    kc = KC_[J & 1]
    t = STT + 2 * (J & 1)
    q(f"v_perm_b32 {v(MB)}, {v(t)}, {v(t)}, s{S_PERM}")
    q(f"v_cvt_f32_f16 {v(t)}, {v(t)}")
    q(f"v_mul_f32 {v(t+1)}, {v(t)}, {v(t)}")
    q(f"v_mul_f32 {v(kc)}, {f32(GC0)}, {v(t)}")
    q(f"v_rcp_f32 {v(kc+2)}, {v(t+1)}")
    q(f"v_mul_f32 {v(kc+1)}, {v(t+1)}, {v(kc)}")
    q(f"v_mul_f32 {v(kc+1)}, {f32(0.044715)}, {v(kc+1)}")
    return q.ins


SP = Prog()
spn = [1]


def sps():
    if STAMPS and "lite" in OPT:
        SP(f"s_memrealtime s[{S_STAMP}:{S_STAMP+1}]")
        SP("s_waitcnt lgkmcnt(0)")
        SP(f"v_writelane_b32 v255, s{S_STAMP}, {spn[0]}")
        spn[0] += 1


SP("L_spare:")
SP("s_barrier")
sps()
SP(f"s_and_b32 s{S_T0}, s{S_W}, 6")
SP(f"s_lshl_b32 s{S_T0}, s{S_T0}, 1")
SP(f"s_bfe_u32 s{S_T1}, s{S_W}, 0x20003")
if "genj" in OPT:
    SP(f"s_and_b32 s{S_T2}, s{S_T1}, 2")
    SP(f"s_add_u32 s{S_T0}, s{S_T0}, s{S_T2}")
    SP(f"s_add_u32 s{S_TB}, s{S_T0}, s{S_FH}")
    SP(f"s_and_b32 s{S_FH}, s{S_T1}, 1")
else:
    SP(f"s_add_u32 s{S_TB}, s{S_T0}, s{S_T1}")
SP(f"s_lshr_b32 s{S_T0}, s{S_TB}, 2")
SP(f"s_lshl2_add_u32 s{S_T0}, s{S_FH}, s{S_T0}")
SP(f"s_lshl3_add_u32 s{S_T0}, s{S_T0}, s{S_T1}")
SP(f"s_lshl2_add_u32 s{S_T0}, s{S_T0}, s{S_V}")
SP(f"s_lshl_b32 s{S_T0}, s{S_T0}, 8")
SP(f"s_add_u32 s{S_PA}, s{S_T0}, {WS_C}")
SP(f"s_mul_i32 s{S_T1}, s{S_V}, 56")
SP(f"v_mov_b32 {v(V_NONCE)}, 7")
lanes_reg(SP, V_FLG, 4, 8)
SP(f"v_lshrrev_b32 v5, 4, {v(V_LANE)}")
SP(f"v_and_b32 v6, 15, {v(V_LANE)}")
SP(f"v_mul_u32_u24 v4, {PROW}, v5")
SP(f"v_lshl_add_u32 v4, v6, 4, v4")
SP(f"s_mul_i32 s{S_T1}, s{S_T1}, {PROW}")
SP(f"s_lshl_b32 s{S_T0}, s{S_TB}, 8")
SP(f"s_add_u32 s{S_T0}, s{S_T0}, s{S_T1}")
SP(f"s_mul_i32 s{S_T1}, s{S_FH}, {PGEN}")
SP(f"s_add_u32 s{S_T0}, s{S_T0}, s{S_T1}")
SP(f"s_add_u32 s{S_T0}, s{S_T0}, {WS_P}")
SP(f"v_add_u32 v11, s{S_T0}, v4")
SP(f"v_lshl_add_u32 v4, v6, 2, v5")
SP(f"s_lshl_b32 s{S_T0}, s{S_V}, 9")
SP(f"v_lshl_add_u32 v12, v4, 3, s{S_T0}")
SP(f"v_lshlrev_b32 v13, 3, {v(V_LANE)}")
SP(f"v_mov_b32 v14, 0x3f803f80")
if not NOPF and EPF < 25:
    NREM = 12544 - 512 * EPF
    LR = -(-NREM // (64 * 4))
    SP(f"s_sub_u32 s{S_T1}, s{S_W}, 224")
    SP(f"s_lshr_b32 s{S_T0}, s{S_V}, 1")
    SP(f"s_lshl1_add_u32 s{S_T1}, s{S_T1}, s{S_T0}")
    SP(f"s_mul_i32 s{S_T1}, s{S_T1}, {LR*128}")
    SP(f"s_add_u32 s{S_T1}, s{S_T1}, {(12544-256*LR)*128}")
    SP(f"v_min_u32 v4, {LR-1}, {v(V_LANE)}")
    SP(f"v_lshl_add_u32 v4, v4, 7, s{S_T1}")
    NB3 = int(OPT.get("nb3", 0))
    SP(f"s_mul_i32 s{S_T0}, s{S_FH}, {64*LR*128}")
    SP(f"s_mul_i32 s{S_T1}, s{S_FH}, {2*LR*128}")
    for k in range(4):
        SP(f"global_load_dword {v(56+k)}, v4, s[{S_PFB}:{S_PFB+1}]")
        if k >= 4 - NB3:
            SP(f"v_subrev_u32 v5, s{S_T1}, v4")
            SP(f"global_load_dword {v(60+k)}, v5, s[{S_PFB}:{S_PFB+1}]")
        if k < 3 - NB3:
            SP(f"v_add_u32 v4, {64*LR*128}, v4")
        elif k < 3:
            SP(f"v_add_u32 v4, s{S_T0}, v4")
SP(f"s_sub_u32 s{S_T1}, s{S_W}, 224")
SP(f"s_cmp_ge_u32 s{S_T1}, 28")
SP("s_cbranch_scc1 L_sp_nowf")
SP(f"s_lshr_b32 s{S_DB}, s{S_T1}, 2")
SP(f"s_and_b32 s{S_T2}, s{S_T1}, 3")
SP(f"s_lshl_b32 s{S_F3}, s{S_T1}, 10")
SP(f"s_add_u32 s{S_F3}, s{S_F3}, {WS_C + 896*256}")
SP(f"s_mul_i32 s{S_T1}, s{S_T1}, {14*4096}")
SP(f"s_add_u32 s{S_T1}, s{S_T1}, {WS_WF}")
SP(f"v_add_u32 v20, s{S_T1}, {v(V_L16)}")
SP(f"v_lshrrev_b32 v6, 3, {v(V_LANE)}")
SP(f"v_and_b32 v7, 6, v6")
SP(f"v_and_b32 v5, 7, {v(V_LANE)}")
SP(f"v_xor_b32 v7, v7, v5")
SP(f"v_mul_u32_u24 v6, 896, v6")
SP(f"v_lshl_add_u32 v6, v7, 4, v6")
SP(f"s_mul_i32 s{S_T0}, s{S_T2}, {448*896}")
SP(f"s_lshl_b32 s{S_T1}, s{S_DB}, 7")
SP(f"s_add_u32 s{S_T0}, s{S_T0}, s{S_T1}")
SP(f"v_add_u32 v48, s{S_T0}, v6")
for k in range(1, 4):
    SP(f"v_add_u32 {v(48+k)}, {k*(7168-1024)}, v48")
SP(f"s_lshl_b32 s{S_R2}, s{S_V}, 14")
SP(f"s_add_u32 s{S_R2}, s{S_R2}, 4096")
for i in range(4):
    SP(f"s_lshl2_add_u32 s{S_HR+i}, s{S_V}, {i}")
    SP(f"s_min_u32 s{S_HR+i}, s{S_HR+i}, 13")
    SP(f"s_mul_i32 s{S_WOFF}, s{S_HR+i}, {32*896}")
    SP(f"s_add_u32 m0, s{S_R2}, {4096*i}")
    SP(f"s_lshl_b32 s{S_HR+i}, s{S_HR+i}, 12")
    for k in range(4):
        of = f" offset:{1024*k}" if k else ""
        SP(f"buffer_load_dwordx4 {v(48+k)}, {srd(SRD_WD)}, s{S_WOFF} offen{of} lds", tok=f"sw{i}")
SP(f"v_lshrrev_b32 v4, 4, {v(V_LANE)}")
SP(f"v_lshrrev_b32 v6, 1, v4")
SP(f"v_lshlrev_b32 v6, 4, v6")
SP(f"v_and_b32 v7, 1, v4")
SP(f"v_lshl_add_u32 v6, v7, 2, v6")
SP(f"v_bfe_u32 v7, {v(V_LANE)}, 2, 2")
SP(f"v_add_u32 v6, v6, v7")
SP(f"v_bfe_u32 v7, v6, 1, 2")
SP(f"v_lshlrev_b32 v6, 7, v6")
SP(f"v_and_b32 v5, 3, {v(V_LANE)}")
SP(f"v_lshl_add_u32 v6, v5, 3, v6")
for rt in range(4):
    SP(f"v_xor_b32 v5, {rt}, v7")
    SP(f"v_lshl_add_u32 v5, v5, 5, v6")
    SP(f"v_add_u32 {v(52+rt)}, s{S_R2}, v5")
for i in range(4):
    SP.wait(f"sw{i}")
    if i in (0, 3): sps()
    for rt in range(4):
        for h in range(2):
            SP(f"ds_read_b64_tr_b16 {v(64+16*i+4*rt+2*h,2)}, {v(52+rt)} offset:{4096*i+1024*h}")
    for rt in range(4):
        SP(f"buffer_store_dwordx4 {v(64+16*i+4*rt,4)}, v20, {srd(SRD_WS)}, s{S_HR+i} offen offset:{1024*rt} sc1")
SP("s_waitcnt vmcnt(0)")
addcnt(SP, S_F3, V_FLG)
sps()
SP("L_sp_nowf:")
sps()
SP("s_mov_b64 vcc, 3")
spin(SP, "L_sp_c", "L_sp_d", poll_issue(S_PA, 7), 7, sleep=int(OPT.get('spsleep', 2)), exp=f"s{S_E28}")
SP("L_sp_d:")
sps()
for k in range(14):
    SP(f"s_mov_b32 s{S_T0}, {k*4*PROW}")
    SP(f"buffer_load_dwordx4 {v(64+4*k,4)}, v11, {srd(SRD_WS)}, s{S_T0} offen sc1")
SS = 16
for j in range(8):
    SP(f"v_mov_b32 {v(SS+j)}, 0")
for k in range(14):
    for j in range(4):
        SP(f"v_dot2c_f32_bf16 {v(SS+j)}, {v(64+4*k+j)}, v14")
    for j in range(4):
        SP(f"v_dot2c_f32_bf16 {v(SS+4+j)}, {v(64+4*k+j)}, {v(64+4*k+j)}")
for o in (0, 4):
    SP(f"v_permlane32_swap_b32 {v(SS+o)}, {v(SS+o+2)}")
    SP(f"v_permlane32_swap_b32 {v(SS+o+1)}, {v(SS+o+3)}")
for o in (0, 4):
    SP(f"v_add_f32 {v(SS+o)}, {v(SS+o)}, {v(SS+o+2)}")
    SP(f"v_add_f32 {v(SS+o+1)}, {v(SS+o+1)}, {v(SS+o+3)}")
for o in (0, 4):
    SP(f"v_permlane16_swap_b32 {v(SS+o)}, {v(SS+o+1)}")
SP(f"v_add_f32 {v(SS)}, {v(SS)}, {v(SS+1)}")
SP(f"v_add_f32 {v(SS+1)}, {v(SS+4)}, {v(SS+5)}")
sps()
SP(f"ds_write_b64 v12, {v(SS,2)}")
SP("s_waitcnt lgkmcnt(0)")
SP("s_barrier")
SP(f"s_cmp_lg_u32 s{S_V}, 0")
SP("s_cbranch_scc1 L_fin")
t = 24
for w in range(4):
    SP(f"ds_read_b64 {v(t+2*w,2)}, v13 offset:{512*w}")
SP(f"s_lshl_b32 s{S_T0}, s{S_TB}, 1")
SP(f"s_add_u32 s{S_T0}, s{S_T0}, s{S_FH}")
SP(f"s_lshl_b32 s{S_T0}, s{S_T0}, 9")
SP(f"s_add_u32 s{S_T0}, s{S_T0}, {WS_S2}")
SP(f"v_pk_add_f32 {v(t,2)}, {v(t,2)}, {v(t+2,2)}")
SP(f"v_pk_add_f32 {v(t+4,2)}, {v(t+4,2)}, {v(t+6,2)}")
SP(f"v_pk_add_f32 {v(t,2)}, {v(t,2)}, {v(t+4,2)}")
SP(f"v_mul_f32 {v(t)}, s{S_K0}, {v(t)}")
SP(f"v_mul_f32 {v(t+1)}, s{S_K0}, {v(t+1)}")
SP(f"v_fma_f32 {v(t+1)}, -{v(t)}, {v(t)}, {v(t+1)}")
SP(f"v_max_f32 {v(t+1)}, 0, {v(t+1)}")
SP(f"v_add_f32 {v(t+1)}, {f32(1e-5)}, {v(t+1)}")
SP(f"v_rsq_f32 {v(t+1)}, {v(t+1)}")
SP(f"v_cvt_pk_bf16_f32 {v(t)}, 0, -{v(t)}")
SP(f"v_cvt_f16_f32 {v(t+1)}, {v(t+1)}")
SP(f"v_and_b32 {v(t+1)}, 0xffff, {v(t+1)}")
SP(f"v_or_b32 {v(t)}, {v(t)}, {v(t+1)}")
SP(f"v_mov_b32 {v(t+1)}, s{S_NONCE}")
for r_ in range(7):
    SP(f"buffer_store_dwordx2 {v(t,2)}, v13, {srd(SRD_WS)}, s{S_T0} offen sc1")
    SP(f"s_add_u32 s{S_T0}, s{S_T0}, {S2REP}")
sps()
SP(f"s_cmp_lg_u32 s{S_W}, 255")
SP("s_cbranch_scc1 L_fin")
SP(f"v_lshlrev_b32 v4, 25, {v(V_LANE)}")
SP(f"buffer_store_dword {v(t+1)}, v4, {srd(SRD_WS)}, 0 offen sc1")
SP("s_branch L_fin")


def b_read(J, ks):
    q = sub()
    b = BF + 4 * (ks % NBF)
    o = 112 * (J & 1) + 4 * ks
    q(f"ds_read2st64_b32 {v(b,2)}, {v(V_BR)} offset0:{o} offset1:{o+1}")
    q(f"ds_read2st64_b32 {v(b+2,2)}, {v(V_BR2)} offset0:{o} offset1:{o+1}", tok=f"b{J}_{ks}")
    return q.ins


def g1_gaps(J, extra_after=None):
    m = sub()
    g0 = GACC[J & 1]
    for ks in range(28):
        for mm in range(2):
            d = g0 + 16 * mm
            c = "0" if ks == 0 else v(d, 16)
            m(f"v_mfma_f32_32x32x16_bf16 {v(d,16)}, {acc(wfrag(mm,ks),4)}, {v(BF+4*(ks%NBF),4)}, {c}")
    for mm in range(2):
        d = g0 + 16 * mm
        m(f"v_mfma_f32_32x32x16_bf16 {v(d,16)}, {acc(A_CS[mm],4)}, {v(MB,4)}, {v(d,16)}")
    g = Gaps(m.ins, 6)
    for ks in range(28):
        k2 = ks + NBF - 1
        if k2 < 28:
            r = b_read(J, k2)
            g.at(2 * ks, [r[0]])
            g.at(2 * ks + 1, [r[1]])
        if ks % 3 == 2 and ks + 1 < 28:
            w = sub()
            w.wait(f"b{J}_{min(ks+3,27)}")
            g.at(2 * ks + 1, w.ins)
    return g


def next_tile_reads(g, J, delta, first=42):
    q = sub()
    if delta:
        q(f"v_add_u32 {v(V_BR)}, {delta}, {v(V_BR)}")
        q(f"v_add_u32 {v(V_BR2)}, {delta}, {v(V_BR2)}")
    g.at(first, q.ins)
    for ks in range(NBF - 1):
        old = max(k for k in range(28) if k % NBF == ks)
        r = b_read(J, ks)
        at = max(2 * old + 1, first + 1)
        g.at(at, r[:1])
        g.at(min(at + 1, 57), r[1:])


def g1_epi(J):
    q = sub()
    g = GACC[J & 1]
    kc = KC_[J & 1]
    T = EPT
    for j0 in range(0, 16, 4):
        js = range(j0, j0 + 4)
        for j in js:
            q(f"v_mul_f32 {v(T+j-j0)}, {v(g+j)}, {v(g+j)}")
        for j in js:
            q(f"v_fma_f32 {v(T+j-j0)}, {v(T+j-j0)}, {v(kc+1)}, {v(kc)}")
        for j in js:
            q(f"v_mul_f32 {v(T+j-j0)}, {v(T+j-j0)}, {v(g+j)}")
        for j in js:
            q(f"v_exp_f32 {v(T+j-j0)}, {v(T+j-j0)}")
            q(f"v_mul_f32 {v(T+4+j-j0)}, {v(g+j)}, {v(g+16+j)}")
        for j in js:
            q(f"v_fma_f32 {v(T+j-j0)}, {v(T+j-j0)}, {v(kc+2)}, {v(kc+2)}")
        for j in js:
            q(f"v_rcp_f32 {v(T+j-j0)}, {v(T+j-j0)}")
        for j in js:
            q(f"v_mul_f32 {v(T+4+j-j0)}, {v(T+4+j-j0)}, {v(T+j-j0)}")
        q(f"v_cvt_pk_bf16_f32 {v(HP+(j0//2)%4)}, {v(T+4)}, {v(T+5)}")
        q(f"v_cvt_pk_bf16_f32 {v(HP+(j0//2)%4+1)}, {v(T+6)}, {v(T+7)}")
        if j0 in (4, 12):
            q2 = j0 // 8
            q(f"buffer_store_dwordx4 {v(HP,4)}, {v(V_HST)}, {srd(SRD_WS)}, 0 offen offset:{512*q2} sc1", tok=f"H{J}")
    q(f"v_add_u32 {v(V_HST)}, {2*57344}, {v(V_HST)}")
    return q.ins


def g1_epi_pk(J):
    q = sub()
    g = GACC[J & 1]
    assert KC_[J & 1] == 9
    T = EPT
    for j0 in range(0, 16, 8):
        pr_ = range(j0, j0 + 8, 2)
        for j in pr_:
            q(f"v_pk_mul_f32 {v(T+j-j0,2)}, {v(g+j,2)}, {v(g+j,2)}")
        for j in pr_:
            q(f"v_pk_fma_f32 {v(T+j-j0,2)}, {v(T+j-j0,2)}, v[10:11], v[8:9] op_sel:[0,0,1] op_sel_hi:[1,0,1]")
        for j in pr_:
            q(f"v_pk_mul_f32 {v(T+j-j0,2)}, {v(T+j-j0,2)}, {v(g+j,2)}")
        for j in range(j0, j0 + 8):
            q(f"v_exp_f32 {v(T+j-j0)}, {v(T+j-j0)}")
        for j in pr_:
            q(f"v_pk_mul_f32 {v(g+j,2)}, {v(g+j,2)}, {v(g+16+j,2)}")
        for j in pr_:
            q(f"v_pk_fma_f32 {v(T+j-j0,2)}, {v(T+j-j0,2)}, v[10:11], v[10:11] op_sel:[0,1,1] op_sel_hi:[1,1,1]")
        for j in range(j0, j0 + 8):
            q(f"v_rcp_f32 {v(T+j-j0)}, {v(T+j-j0)}")
        for j in pr_:
            q(f"v_pk_mul_f32 {v(g+j,2)}, {v(g+j,2)}, {v(T+j-j0,2)}")
        for j in pr_:
            q(f"v_cvt_pk_bf16_f32 {v(HP+(j-j0)//2)}, {v(g+j)}, {v(g+j+1)}")
        q(f"buffer_store_dwordx4 {v(HP,4)}, {v(V_HST)}, {srd(SRD_WS)}, 0 offen offset:{512*(j0//8)} sc1", tok=f"H{J}")
    return q.ins


def flag3(J):
    q = sub()
    q.wait(f"H{J}")
    addcnt(q, S_F3, V_FLG)
    q(f"s_add_u32 s{S_F3}, s{S_F3}, 2048")
    if str(J) in OPT.get("tch", ""):
        q(f"s_add_u32 s{S_T3}, s{S_TCH}, {J*2*57344}")
        q(f"buffer_load_dword {v(253 + (J & 1))}, v40, {srd(SRD_WS)}, s{S_T3} offen sc1")
    return q.ins


WDREG = {}
for i in range(4):
    for rt in range(4):
        WDREG[i, rt] = v(WDV + 16 * i + 4 * rt, 4)
        WDREG[10, rt] = acc(240 + 4 * rt, 4)
        WDREG[11, rt] = v([176, 180, 184, 56][rt], 4)
        WDREG[12, rt] = acc(4 * rt, 4)
        WDREG[13, rt] = acc(16 + 4 * rt, 4)
for i in range(6):
    for rt in range(4):
        WDREG[4 + i, rt] = acc(128 + 16 * i + 4 * rt, 4)
KORD = [0, 1, 2, 3, 10, 11, 12, 13, 4, 5, 6, 7, 8, 9]


def wdr(ft, rt):
    return WDREG[ft, rt]


def wd_load(ft):
    q = sub()
    q(f"s_add_u32 s{S_WOFF}, s{S_WFB}, {(ft*4096) if 'hot' not in OPT else 4096*(ft%2)}")
    for k in range(4):
        of = f" offset:{1024*k}" if k else ""
        q(f"buffer_load_dwordx4 {wdr(ft,k)}, {v(V_L16)}, {srd(SRD_WS)}, s{S_WOFF} offen{of} sc1")
    return q.ins


def wd_dma(ft):
    q = sub()
    sbase, slot = (S_FW, ft - 4) if ft < 6 else (S_R2, ft - 6)
    q(f"s_add_u32 m0, s{sbase}, {slot*4096}")
    q(f"s_add_u32 s{S_WOFF}, s{S_WFB}, {(ft*4096) if 'hot' not in OPT else 4096*(ft%2)}")
    for k in range(4):
        of = f" offset:{1024*k}" if k else ""
        q(f"buffer_load_dwordx4 {v(V_L16)}, {srd(SRD_WS)}, s{S_WOFF} offen{of} sc1 lds", tok=f"wd{ft}")
    return q.ins


def wd_read(ft):
    q = sub()
    va, slot = (V_LF, ft - 4) if ft < 6 else (V_LR, ft - 6)
    for rt in range(4):
        q(f"ds_read_b128 {wdr(ft,rt)}, {v(va)} offset:{4096*slot+1024*rt}")
    return q.ins


def res_read(J):
    q = sub()
    o = 112 * (J & 1)
    q(f"ds_read2st64_b32 {v(RESR[J],2)}, {v(V_RES)} offset0:{o} offset1:{o+1}", tok=f"res{J}")
    if J == 1:
        q(f"v_add_u32 {v(V_RES)}, {L_ACT[1]}, {v(V_RES)}")
    return q.ins


ad = sub()
ad(f"v_lshrrev_b32 v4, 4, v0")
ad(f"v_and_b32 v5, 15, v0")
ad(f"v_lshrrev_b32 v6, 1, v5")
ad(f"v_and_b32 v7, 1, v5")
ad(f"v_lshl_add_u32 v6, v6, 2, v7")
ad(f"s_lshl_b32 s{S_T0}, s{S_DB}, 12")
ad(f"v_lshl_add_u32 v6, v6, 7, s{S_T0}")
ad(f"s_lshl_b32 s{S_T1}, s{S_FH}, 6")
ad(f"v_lshl_add_u32 v7, v4, 2, s{S_T1}")
ad(f"v_add_u32 v6, v6, v7")
ad(f"v_and_b32 v7, 3, v5")
ad(f"v_lshlrev_b32 v7, 5, v7")
ad(f"v_xor_b32 {v(V_RES)}, v6, v7")
ad(f"v_lshrrev_b32 v6, 2, v4")
ad(f"v_and_b32 v7, 3, v4")
ad(f"v_lshl_add_u32 v6, v6, 4, v7")
ad(f"v_mul_u32_u24 v6, 896, v6")
ad(f"v_lshl_add_u32 v6, v5, 3, v6")
ad(f"s_lshr_b32 s{S_T0}, s{S_TB}, 2")
ad(f"s_lshl_b32 s{S_T0}, s{S_T0}, 8")
ad(f"s_add_u32 s{S_T0}, s{S_T0}, s{S_T1}")
ad(f"s_and_b32 s{S_T1}, s{S_TB}, 3")
ad(f"s_lshl_b32 s{S_T1}, s{S_T1}, 2")
ad(f"s_add_u32 s{S_T0}, s{S_T0}, s{S_T1}")
ad(f"s_mul_i32 s{S_T0}, s{S_T0}, 896")
ad(f"s_lshl_b32 s{S_T1}, s{S_DB}, 7")
ad(f"s_add_u32 s{S_T0}, s{S_T0}, s{S_T1}")
ad(f"v_add_u32 {v(V_OST)}, s{S_T0}, v6")
ad(f"v_mul_u32_u24 v6, 288, v5")
ad(f"v_lshl_add_u32 v6, v4, 4, v6")
ad(f"v_add_u32 {v(V_RR)}, {L_R}, v6")
ad(f"v_lshrrev_b32 v4, 4, {v(V_LANE)}")
ad(f"v_mul_u32_u24 v6, 288, v4")
ad(f"v_lshl_add_u32 v6, v5, 4, v6")
ad(f"s_mul_i32 s{S_T0}, s{S_V}, 4608")
ad(f"s_add_u32 s{S_T0}, s{S_T0}, {L_R}")
ad(f"v_add_u32 {v(V_RW)}, s{S_T0}, v6")
lanes_reg(ad, V_FLG, 2, 8)
if "tch2" in OPT:
    lanes_reg(ad, 40, 16, 7)
    ad(f"v_and_b32 v4, 8, {v(V_LANE)}")
    ad(f"v_mul_u32_u24 v4, {(28672-1024)//8}, v4")
    ad(f"v_add_u32 v40, v40, v4")
elif "tch" in OPT:
    lanes_reg(ad, 40, 8, 7)

for i in range(1, 4):
    P(f"v_mov_b32 {v(MB+i)}, 0")
    P(f"v_accvgpr_write_b32 {acc(A_CS[0]+i)}, 0")
    P(f"v_accvgpr_write_b32 {acc(A_CS[1]+i)}, 0")
walk("walk")
P.wait("act0")
P("s_waitcnt lgkmcnt(0)")
P("s_barrier")
stamp("gemm1 start")
for ks in range(3):
    P.add(b_read(0, ks))
g = Gaps(cs_mfma(24 - NCH_, 24), 2)
pin_spread(g, 0, sum([b_read(0, ks) for ks in range(3, NBF - 1)], []), per=1)
pin_vm(g, 1, w4[:3], 3)
P.add(g.out())

def hreg(J, ft):
    n = KORD.index(ft)
    if J in (0, 3):
        return acc(32 + 4 * n, 4)
    if J == 1:
        return v(64 + 4 * n if n < 8 else 128 + 4 * (n - 8), 4)
    return v(96 + 4 * n if n < 8 else 152 + 4 * (n - 8), 4)


def h_loads(J):
    o = []
    for s_ in KORD:
        q = sub()
        of = f" offset:{1024*(s_%4)}" if s_ % 4 else ""
        so = f"s{S_HR+s_//4}" if s_ >= 4 else "0"
        q(f"buffer_load_dwordx4 {hreg(J,s_)}, {v(V_HL)}, {srd(SRD_WS)}, {so} offen{of} sc1")
        o.append(q.ins)
    if J < 3:
        q = sub()
        q(f"v_add_u32 {v(V_HL)}, {0 if 'hoth' in OPT else 2*57344}, {v(V_HL)}")
        o[-1] += q.ins
    return o


def p3_next():
    q = sub()
    q(f"s_add_u32 s{S_P3}, s{S_P3}, 2048")
    return q.ins


g = g1_gaps(0)
e = pin_vm(g, 0, w4[3:], 1.5)
g.at(int(OPT.get("fb", 2)), fl.ins)
g.at(e, poll_check(S_P4, 25))
WL = [wd_load(0), wd_load(1), wd_load(2), wd_load(3), wd_load(10), wd_dma(4), wd_dma(5), wd_load(11)]
N0_, N1_ = int(OPT.get("n0", 5)), int(OPT.get("n1", 2))
WS0 = int(OPT.get("ws0", 14))
e4 = pin_vm(g, WS0, WL[:N0_], (57 - WS0) / (4 * N0_))
t4 = w_tr(6, 0, 8, "t4") + w_tr(6, 1, 12, "t4")
g.at(30, waitq("w4"))
pin_spread(g, 30, t4, per=2)
g.at(41, waitq("t4") + cs_mfma(24, 28))
cf = sub()
for m in range(2):
    round_bf16(cf, 54, CSA[m])
    cf(f"v_sub_f32 v55, {v(CSA[m])}, v54")
    cf(f"v_cvt_pk_bf16_f32 v54, v54, v55")
    cf(f"v_accvgpr_write_b32 {acc(A_CS[m])}, v54")
g.fill(cf.ins, start=44, end=52)
g.at(int(OPT.get("pb1", 26)), poll_issue(S_PA, 23))
g.at(int(OPT.get("pb2", 40)), poll_first("b", S_PA, 25))
g.at(int(OPT.get("st0", 32)), st_issue(0))
g.at(53, stq("t0 pre st") + st_check(0) + stq("t0 post st"))
g.fill(st_final(0), start=53, end=55)
g.at(57, stq("t0 pre pB") + poll_check2(S_PA, 23, 25, "3", f"s{S_E28}") + stq("t0 post pB"))
bq = sub()
bq.wait("act1")
bq("s_barrier")
g.at(27, bq.ins)
next_tile_reads(g, 1, 0, first=41)
e = g.fill(ad2.ins[NAD2:], start=0, cap=float(OPT.get("cap0", 6)))
assert e < min(e4, 40), e
e = g.fill(ad.ins, start=e, cap=float(OPT.get("cap0", 6)))
print("tile 0 address stream ends at", e, len(g.tail))
gap_stamps(g, "t0")
P.add(g.out())
stamp("tile0")
g = g1_gaps(1)
e = pin_vm(g, 0, act_dma(2)[:1] + [st_issue(1)] + act_dma(2)[1:] + act_dma(3), 2)
pin_vm(g, e + 1, WL[N0_:N0_ + N1_], min(2.5, (57 - e) / (4 * N1_)))
g.at(38, res_read(0))
g.at(39, res_read(1))
g.at(40, st_check(1))
g.fill(st_final(1), start=41, end=54)
bq = sub()
bq.wait("act2")
bq.wait("b1_27")
bq("s_barrier")
BB = int(OPT.get("bb", 45))
g.at(BB, stq("t1 pre bar") + bq.ins + stq("t1 post bar"))
next_tile_reads(g, 2, L_ACT[1], first=BB)
e = g.fill(g1_epi(0), start=3)
print("tile 1: epilogue ends at gap", e, "tail", len(g.tail))
gap_stamps(g, "t1")
P.add(g.out())
stamp("tile1")
g = g1_gaps(2)
pin_vm(g, 0, [wd_dma(6), wd_dma(7), st_issue(2), wd_dma(8), wd_dma(9)] + WL[N0_ + N1_:] + [st_issue(3)], 55 / (18 + 4 * (8 - N0_ - N1_)))
g.at(24, flag3(0))
bq = sub()
bq.wait("act3")
bq("s_barrier")
g.at(30, bq.ins)
g.at(49, st_check(2))
g.fill(st_final(2), start=50, end=54)
g.at(56, poll_first("0", S_P3, 7))
next_tile_reads(g, 3, 0, first=41)
e = g.fill(g1_epi(1), start=3)
print("tile 2: epilogue ends at gap", e, "tail", len(g.tail))
gap_stamps(g, "t2")
P.add(g.out())
stamp("tile2")
g = g1_gaps(3)
T3S = float(OPT.get("t3s", 2.4))
e = pin_vm(g, 4, [wd_load(12), wd_load(13)], T3S)
g.at(int(OPT.get("f1", 21)), flag3(1))
g.at(48, st_check(3))
g.fill(st_final(3), start=49, end=54)
g.at(e - 1, stq("t3 pre p0") + poll_check(S_P3, 7) + stq("t3 post p0") + p3_next())
pin_vm(g, e, h_loads(0), T3S)
g.at(int(OPT.get("p1", 47)), poll_first("1", S_P3, 7))
g.at(52, res_read(2))
g.at(54, res_read(3))
e = g.fill(g1_epi(2), start=2, cap=float(OPT.get("cap3", 7.5)))
print("tile 3: epilogue ends at gap", e, "tail", len(g.tail))
gap_stamps(g, "t3")
P.add(g.out())
stamp("tile3")
P.add(waitq("wd9") + wd_read(4) + wd_read(5))
ep = g1_epi_pk(3)
h1 = h_loads(1)
NE = int(OPT.get("ne", 0))
PC1 = poll_check(S_P3, 7) + p3_next()
F2E = int(OPT.get("f2e", 45))
ins_ = [(F2E, flag3(2))] if F2E >= 0 else []
if NE:
    P.add(sprinkle(ep, ins_ + [(45, PC1)] + [(46 + 14 * i, h1[i]) for i in range(NE)]))
else:
    P.add(sprinkle(ep, ins_) + PC1)
stamp("epi3")

OA = [8, 48]
OA = [224, 96]
RT = 176


NRM = int(OPT.get("nrm", 6))


def g2_mfma(J):
    m = sub()
    seq = [(ft, rt) for ft in KORD for rt in range(4)]
    if J == 3:
        seq = seq[:4 * (14 - NRM)] + [(ft, rt) for rt in range(4) for ft in KORD[14 - NRM:]]
    for ft, rt in seq:
        if True:
            d = acc(OA[J & 1] + 4 * rt, 4)
            c = "0" if ft == 0 else d
            m(f"v_mfma_f32_16x16x32_bf16 {d}, {wdr(ft,rt)}, {hreg(J,ft)}, {c}")
    return m.ins


RTMP = [28, 32, 36, 12]


def red_write(J):
    q = sub()
    for rt in range(4):
        q(f"ds_write_b128 {v(V_RW)}, {acc(OA[J&1]+4*rt,4)} offset:{(J&1)*R_SZ + rt*1152}")
    return q.ins


def red_bar():
    q = sub()
    q("s_waitcnt lgkmcnt(0)")
    q("s_barrier")
    return q.ins


def red_read(J):
    q = sub()
    for w in range(4):
        q(f"ds_read_b128 {v(RTMP[w],4)}, {v(V_RR)} offset:{(J&1)*R_SZ + w*4608}")
    return q.ins


def red_fin(J):
    q = sub()
    a, b, c, d = RTMP
    for i in range(2):
        q(f"v_lshlrev_b32 {v(16+2*i)}, 16, {v(RESR[J]+i)}")
        q(f"v_and_b32 {v(17+2*i)}, 0xffff0000, {v(RESR[J]+i)}")
    if J == 3 and "eps" not in OPT:
        for x, y in ((a, 16), (b, c), (a, d), (a, b)):
            for i in (0, 2):
                q(f"v_pk_add_f32 {v(x+i,2)}, {v(x+i,2)}, {v(y+i,2)}")
        for i in range(2):
            q(f"v_cvt_pk_bf16_f32 {v(20+i)}, {v(a+2*i)}, {v(a+2*i+1)}")
        q(f"s_mov_b32 s{S_T0}, {(1024*(J>>1) + 128*(J&1))*896}")
        q(f"buffer_store_dwordx2 v[20:21], {v(V_OST)}, {srd(SRD_OUT)}, s{S_T0} offen {OPT.get('ost', '').replace('_', ' ')}")
        return q.ins
    for i in range(4):
        q(f"v_add_f32 {v(a+i)}, {v(a+i)}, {v(b+i)}")
    for i in range(4):
        q(f"v_add_f32 {v(c+i)}, {v(c+i)}, {v(d+i)}")
    for i in range(4):
        q(f"v_add_f32 {v(a+i)}, {v(a+i)}, {v(16+i)}")
    for i in range(4):
        q(f"v_add_f32 {v(a+i)}, {v(a+i)}, {v(c+i)}")
    if "eps" in OPT:
        for i in range(4):
            q(f"v_mul_f32 {v(a+i)}, {f32(1.0+float(OPT['eps']))}, {v(a+i)}")
    for i in range(2):
        q(f"v_cvt_pk_bf16_f32 {v(20+i)}, {v(a+2*i)}, {v(a+2*i+1)}")
    q(f"s_mov_b32 s{S_T0}, {(1024*(J>>1) + 128*(J&1))*896}")
    q(f"buffer_store_dwordx2 v[20:21], {v(V_OST)}, {srd(SRD_OUT)}, s{S_T0} offen {OPT.get('ost', '').replace('_', ' ')}")
    return q.ins


for J in range(4):
    g = Gaps(g2_mfma(J), 2)
    if J > 0:
        RS_, RB_ = int(OPT.get("rs_", 4)), int(OPT.get("rb", 26))
        for i, x in enumerate(red_write(J - 1)):
            g.at(int(OPT.get("r0", 6)) + RS_ * i, [x])
        g.at(RB_, red_bar())
        for i, x in enumerate(red_read(J - 1)):
            g.at(RB_ + 1 + int(OPT.get("rr", 1)) * i, [x])
        rf = red_fin(J - 1)
        e = g.fill(rf[:-1], start=RB_ + 10, cap=float(OPT.get("rc", 2)))
        g.at(e + 1, rf[-1:])
    if J == 0:
        pin_vm(g, 0, h1[NE:], float(OPT.get("hs1", 4)))
        if F2E < 0:
            g.at(int(OPT.get("f2", 2)), flag3(2))
        C2 = int(OPT.get("c2", 56))
        h2 = h_loads(2)
        n2 = 0
        if C2 < 56:
            g.at(C2, poll_check2(S_P3, 7, 23, "1", f"s{S_E14}") + p3_next())
            n2 = int((55 - C2) / 3.5) + 1
            pin_vm(g, C2, h2[:n2], 3.5)
        for i, x in enumerate(wd_read(6) + wd_read(7) + wd_read(8) + wd_read(9)):
            g.at(1 + 2 * i, [x])
        g.at(int(OPT.get("p2a", 14)), poll_issue(S_P3, 7))
        g.at(int(OPT.get("p2b", 34)), poll_first("2", S_P3, 23))
        g.at(int(OPT.get("f3", 36)), flag3(3))
        bq = sub()
        bq.wait("res3")
        bq("s_barrier")
        g.at(52, bq.ins)
    if J == 1:
        if C2 >= 56:
            g.at(C2 - 56, poll_check2(S_P3, 7, 23, "1", f"s{S_E14}") + p3_next())
        pin_vm(g, max(C2 - 56, 1), h2[n2:], float(OPT.get("hs", 4)))
        g.at(int(OPT.get("p3a", 18)), poll_issue(S_P3, 7))
        g.at(int(OPT.get("p3b", 36)), poll_first("3", S_P3, 23))
        C3 = int(OPT.get("c3", 55))
        g.at(C3, poll_check2(S_P3, 7, 23, "1", f"s{S_E14}"))
        h3 = h_loads(3)
        n3 = (55 - C3) // 3
        pin_vm(g, C3 + 1, h3[:n3], 3)
    if J == 2:
        pin_vm(g, 0, h3[n3:], float(OPT.get("hs3", 4)))
    if J == 3:
        rw3 = red_write(3)
        for i in range(3):
            g.at(min(55 - NRM * (3 - i) + 8, 55), [rw3[i]])
    P.add(g.out())
    stamp(f"g2 tile{J}")
P.add(rw3[3:])
P.add(red_bar())
P.add(red_read(3))
P.add(red_fin(3))
stamp("end")

if "hold" in OPT:
    if "cls" in OPT:
        P(f"s_and_b32 s98, s{S_W}, 7")
        P(f"s_cmp_lg_u32 s98, {OPT['cls']}")
        P("s_cbranch_scc1 L_fin")
    P("L_hold:")
    P("s_memrealtime s[98:99]")
    P("s_waitcnt lgkmcnt(0)")
    P("s_sub_u32 s98, s98, s100")
    P("s_cmp_lt_u32 s98, 4000")
    P("s_cbranch_scc1 L_hold")
P("L_fin:")
if STAMPS:
    P(f"s_lshl_b32 s{S_T0}, s{S_W}, 2")
    P(f"s_add_u32 s{S_T0}, s{S_T0}, s{S_V}")
    P(f"s_lshl_b32 s{S_T0}, s{S_T0}, 8")
    P(f"s_add_u32 s{S_T0}, s{S_T0}, {WS_DBG + 0x800000}")
    P(f"v_lshlrev_b32 v4, 2, v1")
    P(f"buffer_store_dword v255, v4, {srd(SRD_WS)}, s{S_T0} offen")
if "dbgout" in OPT:
    P(f"s_cmp_ge_u32 s{S_W}, 224")
    P("s_cbranch_scc1 L_end")
    P(f"v_readlane_b32 s{S_T0}, v255, 0")
    P(f"s_not_b32 s{S_T0}, s{S_T0}")
    P(f"v_writelane_b32 v255, s{S_T0}, 15")
    P("s_mov_b64 exec, 0xffff")
    P(f"v_lshlrev_b32 v4, 2, v1")
    P("global_atomic_umax v4, v255, s[60:61]")
P("L_end:")
P("s_endpgm")

if "jit" in OPT:
    import random
    rnd = random.Random(int(OPT["jit"]))

    def jitter():
        q = sub()
        lb = label("jit")
        q.raw(f"s_lshl2_add_u32 s98, s{S_W}, s{S_V}")
        q.raw(f"s_mul_i32 s98, s98, {rnd.randrange(1, 1 << 30) | 1}")
        q.raw(f"s_bfe_u32 s98, s98, {hex((3 << 16) | rnd.randrange(12, 28))}")
        q.raw("s_cmp_lt_u32 s98, 6")
        q.raw(f"s_cbranch_scc1 {lb}")
        q.raw(f"s_sleep {rnd.choice([3, 10, 25, 60])}")
        q(f"{lb}:")
        return q.ins

    for prog in (P, SP):
        out_ = []
        started = prog is SP
        for k, i in enumerate(prog.ins):
            if i.text == "; @ x arrived":
                started = True
            nxt = prog.ins[k + 1] if k + 1 < len(prog.ins) else None
            safe = started and not i.cond and nxt is not None and not nxt.cond and i.cls in ("mfma", "ds", "vmem", "valu") and not i.mn.startswith("v_cmp")
            if started and i.mn == "s_barrier":
                out_ += jitter() + [i] + jitter()
            elif safe and rnd.random() < 0.012:
                out_ += [i] + jitter()
            else:
                out_.append(i)
        prog.ins = out_
if "nn" in OPT:
    NN = int(OPT["nn"])
    L_ = P.ins
    k = 0
    while k + 3 + NN < len(L_):
        if L_[k].mn == "s_add_u32" and L_[k].ops[0] == "m0" and L_[k + 1].extra == "dma" and L_[k + 2].text.startswith("s_mov_b32 m0") and all(L_[k + 3 + j].mn.startswith("v_pk") for j in range(NN)):
            L_[k + 1:k + 3 + NN] = L_[k + 3:k + 3 + NN] + L_[k + 1:k + 3]
            k += 3 + NN
        else:
            k += 1
XX_ = OPT.get("xx", "")
if "c" in XX_:
    P.ins = [i for i in P.ins if not (i.cls == "mfma" and i.ops[1] == v(SEL, 4) and i.ops[0] in (v(CSA[0], 4), v(CSA[1], 4)))]
if "0" in XX_:
    a_ = [k for k, i in enumerate(P.ins) if i.text == "; @ epi3"][0]
    b_ = [k for k, i in enumerate(P.ins) if i.text == "; @ g2 tile0"][0]
    c_ = [k for k, i in enumerate(P.ins) if i.text == "; @ tile2"][0]
    P.ins = [i for k, i in enumerate(P.ins) if not (a_ < k < b_ and i.cls == "mfma") and not (c_ < k < a_ and i.mn == "buffer_load_dwordx4" and i.ops[1] == v(V_HL))]
if "k" in XX_:
    a_ = [k for k, i in enumerate(P.ins) if i.text == "; @ ln1 done"][0]
    b_ = [k for k, i in enumerate(P.ins) if i.text == "; @ kgen r1"][0]
    P.ins = [i for k, i in enumerate(P.ins) if not (a_ < k < b_ and i.mn == "v_pk_mul_f32")]
if "r" in XX_:
    a_ = [k for k, i in enumerate(P.ins) if i.text == "; @ g2 tile0"][0]
    b_ = [k for k, i in enumerate(P.ins) if i.text == "; @ g2 tile3"][0]
    P.ins = [i for k, i in enumerate(P.ins) if not (a_ < k < b_ and i.cls in ("ds", "valu") and not i.mn.startswith(("v_cmp", "v_mov", "v_add_u32")))]
XG = OPT.get("xg", "")
if XG:
    a_ = [k for k, i in enumerate(P.ins) if i.text == "; @ gemm1 start"][0]
    b_ = [k for k, i in enumerate(P.ins) if i.text == "; @ tile3"][0]
    seg = P.ins[a_:b_]
    if "w" in XG:
        seg = [i for i in seg if not (i.mn == "buffer_load_dwordx4" and (i.ops[0] == "v3" or i.ops[1] in ("v3", "v44")))]
    if "e" in XG:
        seg = [i for i in seg if not (i.cls in ("valu", "trans") and (i.wr & {f"v{r}" for r in range(EPT, EPT + 8)}))]
    if "b" in XG:
        seg = [i for i in seg if not (i.mn == "ds_read2st64_b32" and i.ops[1] == f"v{V_BR2}")]
    P.ins = P.ins[:a_] + seg + P.ins[b_:]
resolve_lazy()
res = finalize(P.ins, verbose=True, lg_age=int(OPT["lga"]) if "lga" in OPT else None, vm_age=int(OPT["vma"]) if "vma" in OPT else None) + finalize(TAIL.ins) + finalize(SP.ins)
if "report" in OPT:
    report_waits(finalize(P.ins))
launch = f"; @launch kernel={KN} grid" if ("list" in OPT or STAMPS) else "; @launch grid"
hdr = f"""; Fused pre-LN S4D conv + GEGLU FFN in one persistent launch (emitted by my own generator script).
; B_x (unused), w_gate, w_up, w_down, out, debug, ws.
;  wg<224  : S4D kernel K for 2 channels at the 641 distinct bf16 positions (power tables + MFMA),
;            GEMM1 128 tokens x (128+128) cols with LN2 folded in algebraically, GELU*up -> ws,
{launch}=(256,1,1) block=(256,1,1) lds={LDS_SIZE}
.amdgcn_target "amdgcn-amd-amdhsa--gfx950"
.text
.globl {KN}
.p2align 12
.p2align 8
.type {KN},@function
{KN}:
"""
ftr = f"""
.p2align 8
.fill 64, 4, 0xbf800000
L_codeend:
.section .rodata,"a"
.p2align 6
.amdhsa_kernel {KN}
  .amdhsa_next_free_vgpr 512
  .amdhsa_next_free_sgpr 102
  .amdhsa_accum_offset 256
  .amdhsa_group_segment_fixed_size 0
  .amdhsa_kernarg_size 112
  .amdhsa_user_sgpr_count 2
  .amdhsa_user_sgpr_kernarg_segment_ptr 1
  .amdhsa_system_sgpr_workgroup_id_x 1
.end_amdhsa_kernel
"""
body = text_of(res)
WALKS = ([("early", "L_early_back" if OPT.get("w2") == "c" else "L_main", "L_walk_back")] if OPT.get("w2") in ("a", "b", "c") else []) + [("walk", "L_walk_back", "L_fin")]
body = place_pads2(hdr, body, ftr, 0x300, WALKS)
open(OUTF, "w").write(hdr + body + ftr)
src = open(__file__).read()
a = src.index("# ---------------- workspace layout")
b = src.index("# ---------------- LDS layout")
open("layout.py", "w").write(src[a:b] + "\nSTAMP_NAMES = " + repr(stamp_names) + "\nSPIN_NAMES = " + repr(spin_names) + "\n")
```

```python
import sys, math, struct
from asmgen import *

NAME = "sequential_preLN__ssm_conv_s4d__geglu_ffn__prompt"
KN = NAME + "_kernel"
OPT = {}
for a in sys.argv[1:]:
    k, _, val = a.partition("=")
    OPT[k] = val if val else True
STAMPS = "stamps" in OPT
OUTF = OPT.get("out", "k22.s")
OPT.setdefault("pfpos", "300,300")
OPT.setdefault("pa3", "84")
OPT.setdefault("w2", "b")


def f32(x):
    return "0x%08x" % struct.unpack("<I", struct.pack("<f", x))[0]


FS = 4
FREP = 0x9000
WS_EPOCH = 0
WS_F1 = 0x8000
WS_S2 = 0x58000
S2REP = 0x5000
WS_C = 0x80000
WS_UX = 0xD0000
WS_P = WS_UX + 256 * 14336
PROW = 4352
PGEN = 224 * PROW
WS_H = WS_P + 2 * PGEN
WS_WF = WS_H + 16 * 4 * 56 * 2048
WS_END = WS_WF + 392 * 4096
WS_DBG = 0x1000000
WS_SIZE = 0x2000000
LAYOUT = 5

CS = 4160
TAB_W = 14592
TAB_ROW = 272
L_KC = 58368
L_UX = 75008
L_EX = 0
L_RING = 98304
L_ACT = [0, 65536]
L_F = 131072
L_R = 65536
R_SZ = 18432
LDS_SIZE = 163840

S_W = 2
S_V = 4
S_T0, S_T1, S_T2, S_T3 = 5, 6, 7, 3
SRD_X, SRD_WS, SRD_WG, SRD_WU, SRD_WD, SRD_OUT = 8, 12, 16, 20, 24, 28
S_NONCE = 32
S_CNT = 33
S_EX = 34
S_PR, S_DSK = 64, 65
S_TB, S_FB, S_FH, S_DB = 66, 67, 68, 69
S_A, S_B, S_C, S_D = 70, 72, 74, 76
S_RING = 78
S_WOFF = 79
S_K0 = 80
S_TAB = 81
S_F3 = 82
S_F1, S_F2 = 83, 84
S_M255 = 86
S_FW, S_R2 = 88, 89
S_ACTW = 90
S_UXO = 91
S_PFB = 88
S_HR = 36
S_PA, S_P4, S_P3, S_PST, S_AB, S_WFB = 40, 41, 42, 43, 44, 45
S_E28, S_E14, S_CI = 46, 47, 85
S_F1L = 95
S_TCH = 50
S_UXM = 92
S_REP = 94
S_PERM = 93
S_STAMP = 96


def srd(n):
    return f"s[{n}:{n+3}]"


def v(n, w=1):
    return f"v{n}" if w == 1 else f"v[{n}:{n+w-1}]"


def acc(n, w=1):
    return f"a{n}" if w == 1 else f"a[{n}:{n+w-1}]"


P = Prog()
TAIL = Prog()
nstamp = [0]
stamp_names = []
spin_names = []
LITE = ("start", "conv start", "genA stored", "gemm1 start", "tile3", "end")
if "dbgout" in OPT:
    LITE = ("start", "x arrived", "ln1 done", "kgen r1", "conv start", "genA stored", "gemm1 start", "tile1", "tile3", "end")


def stamp(name, p=None):
    p = P if p is None else p
    p(f"; @ {name}")
    if OPT.get("hold", "").replace("_", " ") == name:
        p(f"s_memrealtime s[100:101]")
        p("s_waitcnt lgkmcnt(0)")
    if STAMPS and ("lite" not in OPT or name in LITE):
        k = nstamp[0]
        assert k < 32
        p(f"s_memrealtime s[{S_STAMP}:{S_STAMP+1}]")
        p(f"s_memtime s[{S_STAMP+2}:{S_STAMP+3}]")
        p("s_waitcnt lgkmcnt(0)")
        p(f"v_writelane_b32 v255, s{S_STAMP}, {k}")
        p(f"v_writelane_b32 v255, s{S_STAMP+2}, {32+k}")
        nstamp[0] += 1
        stamp_names.append(name)


def stq(name):
    q = sub()
    if "dbg" in OPT:
        stamp(name, q)
    return q.ins


lblc = [0]


def label(prefix):
    lblc[0] += 1
    return f"L_{prefix}_{lblc[0]}"


def poll_issue(what, vtmp):
    q = sub()
    q(f"v_mov_b32 {v(vtmp)}, 0")
    if what == "F1":
        q(f"buffer_atomic_add {v(vtmp)}, {v(V_F1)}, {srd(SRD_WS)}, 0 offen sc0")
    else:
        q(f"buffer_atomic_add {v(vtmp)}, {v(V_PM if what == S_PA else V_P1)}, {srd(SRD_WS)}, s{what} offen sc0")
    return q.ins


def poll_first(tag, what, vtmp):
    if tag in OPT.get("pld", ""):
        q = sub()
        q(f"buffer_load_dword {v(vtmp)}, {v(V_PM if what == S_PA else V_P1)}, {srd(SRD_WS)}, s{what} offen sc1")
        return q.ins
    return poll_issue(what, vtmp)


def spin(t, name, done, reissue, vtag, sleep=2, exp=None):
    t(f"{name}:")
    t(f"s_mov_b32 s{S_CNT}, 0")
    t(f"{name}_l:")
    t("s_mov_b64 exec, vcc")
    t(f"s_sleep {sleep}")
    t.add(reissue)
    t("s_waitcnt vmcnt(0)")
    t(f"v_cmp_ne_u32 vcc, {exp or f's{S_NONCE}'}, {v(vtag)}")
    t("s_mov_b64 exec, -1")
    if STAMPS and "lite" in OPT:
        spin_names.append(name)
        t(f"s_add_u32 s{S_STAMP}, s{S_CNT}, 1")
        t(f"v_writelane_b32 v255, s{S_STAMP}, {10+len(spin_names)-1}")
    t(f"s_cbranch_vccz {done}")
    t(f"s_add_u32 s{S_CNT}, s{S_CNT}, 1")
    t(f"s_cmp_lt_u32 s{S_CNT}, 0x40000")
    t(f"s_cbranch_scc1 {name}_l")
    t(f"s_branch {done}")


LAZY = []


def poll_checkn(what, regs, mask=None, exp=None):
    q = sub()
    slow, done = label("slow"), label("pdone")
    exp = f"s{S_NONCE}" if what == "F1" else (f"s{S_E14}" if what == S_P3 else f"s{S_E28}")
    mask = {"F1": -1, S_PA: 3}.get(what, 1)
    if mask == 1:
        q(f"v_cmp_eq_u32 vcc, {exp}, {v(regs[0])}")
        q(f"s_cbranch_vccz {slow}x")
    elif mask == -1:
        q(f"v_cmp_ne_u32 vcc, {exp}, {v(regs[0])}")
        q(f"s_cbranch_vccnz {slow}x")
    else:
        q(f"v_cmp_ne_u32 vcc, {exp}, {v(regs[0])}")
        q(f"s_and_b64 vcc, vcc, {mask}")
        q(f"s_cbranch_scc1 {slow}x")
    q(f"{done}:")
    TAIL(f"{slow}x:")
    for r in regs[1:]:
        TAIL.raw("s_waitcnt vmcnt(0)")
        LAZY.append((TAIL.ins[-1], r, q.ins[0]))
        TAIL.raw(f"v_cmp_ne_u32 vcc, {exp}, {v(r)}")
        TAIL.raw(f"s_and_b64 vcc, vcc, {mask}")
        TAIL.raw(f"s_cbranch_scc0 {done}")
    if mask == 1:
        TAIL(f"s_mov_b64 vcc, 1")
    spin(TAIL, slow, done, poll_issue(what, regs[0]), regs[0], exp=exp, sleep=1)
    return q.ins


def poll_inline(what, regs, mask, exp):
    q = sub()
    slow, done = label("slow"), label("pdone")
    for k, r in enumerate(regs):
        q(f"v_cmp_ne_u32 vcc, {exp}, {v(r)}")
        q(f"s_and_b64 vcc, vcc, {mask}")
        q(f"s_cbranch_scc0 {done}" if k < len(regs) - 1 else f"s_cbranch_scc1 {slow}")
        q.cond(True)
    q.cond(False)
    q(f"{done}:")
    spin(TAIL, slow, done, poll_issue(what, regs[0]), regs[0], exp=exp, sleep=1)
    return q.ins


def poll_check(what, vtmp):
    return poll_checkn(what, [vtmp])


def poll_check2(what, v1, v2, mask=None, exp=None):
    return poll_checkn(what, [v1, v2])


def resolve_lazy():
    for ph, r, chk in LAZY:
        k = [n for n, i in enumerate(P.ins) if i is chk][0]
        cnt = 0
        while not (P.ins[k].cls == "vmem" and f"v{r}" in P.ins[k].wr):
            assert not P.ins[k].cond
            cnt += P.ins[k].cls == "vmem"
            k -= 1
        ph.text = f"    s_waitcnt vmcnt({cnt})"


def setflag(p, soff):
    if "fst" in OPT:
        p(f"buffer_store_dword {v(V_NONCE)}, {v(V_FLG)}, {srd(SRD_WS)}, s{soff} offen sc1")
    else:
        p(f"buffer_atomic_swap {v(V_NONCE)}, {v(V_FLG)}, {srd(SRD_WS)}, s{soff} offen")


def addcnt(p, soff, vl):
    p(f"buffer_atomic_add {v(V_NONCE)}, {v(vl)}, {srd(SRD_WS)}, s{soff} offen")


def lanes_reg(p, dst, n, sh, t1=4):
    p(f"v_and_b32 {v(t1)}, {64-n}, {v(V_LANE)}")
    p(f"v_lshlrev_b32 {v(t1)}, 25, {v(t1)}")
    p(f"v_lshl_add_u32 {v(dst)}, {v(V_LANE)}, {sh}, {v(t1)}")


def walk(name, p=None):
    p = P if p is None else p
    p.raw("s_mov_b64 exec, 0")
    for c in range(3):
        p.raw(f"s_cmp_eq_u32 s{S_V}, {c}")
        p.raw(f"s_cbranch_scc1 L_{name}{c}")
    p.raw(f"s_branch L_{name}3")
    p(f"L_{name}_back:")
    p.raw("s_mov_b64 exec, -1")


def waitq(tok):
    q = sub()
    q.wait(tok)
    return q.ins


def cmul(p, z, x, y):
    p(f"v_pk_mul_f32 {v(z,2)}, {v(x,2)}, {v(y,2)} op_sel:[0,0] op_sel_hi:[0,1]")
    p(f"v_pk_fma_f32 {v(z,2)}, {v(x,2)}, {v(y,2)}, {v(z,2)} op_sel:[1,1,0] op_sel_hi:[1,0,1] neg_lo:[1,0,0]")


def round_bf16(p, dst, src):
    p(f"v_cvt_pk_bf16_f32 {v(dst)}, {v(src)}, {v(src)}")
    p(f"v_and_b32 {v(dst)}, 0xffff0000, {v(dst)}")


V_LANE, V_NONCE, V_L16 = 1, 2, 3
V_FLG = 8
V_W = 9
V_TRA = 13
V_TA, V_TB, V_TW = 14, 15, 16
GA = 17
V_F1, V_UXL = 26, 27
V_KA = 28
V_UA = 32
V_EU, V_EXP, V_EXW, V_EXR, V_FL2 = 36, 37, 38, 39, 40
V_GW, V_GX, V_GR, V_S3, V_DSK = 240, 241, 242, 243, 244
V_EU1 = 41
V_DT = 42
V_PM = 43
V_P1 = 252
PR = 44
V_PF = 254

LOG2E = 1.4426950408889634

if OPT.get("hold") == "entry" or "entry" in OPT:
    P("s_memrealtime s[100:101]")
P(f"s_cmp_ge_u32 s{S_W}, 256")
P("s_cbranch_scc1 L_end")
P(f"s_load_dwordx16 s[36:51], s[0:1], 0")
if "ksplit" not in OPT:
    P(f"s_load_dwordx8 s[52:59], s[0:1], 64")
    P(f"s_load_dwordx4 s[60:63], s[0:1], 96")
if "nocpf" not in OPT:
    P(f"s_getpc_b64 s[{S_B}:{S_B+1}]")
    P("L_pc:")
    P(f"s_bfe_u32 s{S_T2}, s{S_W}, 0x30003")
    P(f"s_mul_i32 s{S_T2}, s{S_T2}, ((L_codeend-L_pc)/1024)*128")
    P(f"v_cmp_gt_u32 vcc, (L_codeend-L_pc)/1024, v0")
    P(f"s_add_u32 s{S_B}, s{S_B}, s{S_T2}")
    P(f"s_addc_u32 s{S_B+1}, s{S_B+1}, 0")
    P(f"v_lshlrev_b32 v6, 7, v0")
    P(f"s_and_saveexec_b64 s[{S_A}:{S_A+1}], vcc")
    P("s_cbranch_execz L_nocpf")
    P.cond(True)
    P(f"v_mov_b32 v7, s{S_B+1}")
    P(f"v_add_co_u32 v6, vcc, s{S_B}, v6")
    P(f"v_addc_co_u32 v7, vcc, 0, v7, vcc")
    P(f"global_load_dword v251, v[6:7], off")
    P.cond(False)
    P("L_nocpf:")
    P("s_mov_b64 exec, -1")
if STAMPS:
    P("v_mov_b32 v255, 0")
P(f"v_and_b32 {v(V_LANE)}, 63, v0")
P(f"v_lshrrev_b32 v4, 6, v0")
P(f"v_lshlrev_b32 {v(V_L16)}, 4, {v(V_LANE)}")
P(f"v_readfirstlane_b32 s{S_V}, v4")
P(f"v_mov_b32 v5, 0x7ff00000")
P(f"v_cmp_gt_u32 vcc, 56, {v(V_LANE)}")
P(f"s_lshl_b32 s{S_T0}, s{S_W}, 2")
P(f"s_add_u32 s{S_T0}, s{S_T0}, s{S_V}")
P(f"v_cndmask_b32 v4, v5, {v(V_L16)}, vcc")
P(f"s_mul_i32 s{S_T0}, s{S_T0}, 1792")
PB = sub()
PB(f"s_and_b32 s{S_T1}, s{S_W}, 7")
PB(f"s_mul_i32 s{S_T1}, s{S_T1}, 28")
PB(f"s_lshr_b32 s{S_T2}, s{S_W}, 3")
PB(f"s_add_u32 s{S_T1}, s{S_T1}, s{S_T2}")
PB(f"s_min_u32 s{S_PR}, s{S_T1}, 223")
PB(f"s_lshl_b32 s{S_T2}, s{S_PR}, 10")
PB(f"v_lshl_add_u32 v6, v0, 2, s{S_T2}")
PB(f"v_mov_b32 v7, 0")
PB(f"s_lshl_b32 s{S_T1}, s{S_PR}, 2")
PB(f"v_mov_b32 v56, s{S_T1}")
PB(f"s_mov_b32 s{SRD_WS+2}, {WS_SIZE}")
PB(f"s_mov_b32 s{SRD_WS+3}, 0x00020000")
if "short" not in OPT:
    P.add(PB.ins)
P(f"s_mov_b32 s{SRD_X+2}, 1835008")
P(f"s_mov_b32 s{SRD_X+3}, 0x00020000")
P("s_waitcnt lgkmcnt(0)")
stamp("start")
if "entry" in OPT:
    P("v_writelane_b32 v255, s100, 0")
P(f"s_mov_b64 s[{SRD_X}:{SRD_X+1}], s[36:37]")
XR = 48
P(f"buffer_load_dwordx4 {v(XR,4)}, v4, {srd(SRD_X)}, s{S_T0} offen")
P(f"buffer_load_dwordx4 {v(XR+4,4)}, v4, {srd(SRD_X)}, s{S_T0} offen offset:896")
if "short" in OPT:
    P.add(PB.ins)
if "ksplit" in OPT:
    P(f"s_load_dwordx8 s[52:59], s[0:1], 64")
    P(f"s_load_dwordx4 s[60:63], s[0:1], 96")
for r, src, sz in ((SRD_WG, 52, 1605632), (SRD_WU, 54, 1605632), (SRD_WD, 56, 1605632), (SRD_OUT, 58, 1835008)):
    P(f"s_mov_b32 s{r+2}, {sz}")
    P(f"s_mov_b32 s{r+3}, 0x00020000")
P(f"v_cmp_lt_u32 vcc, {int(OPT.get('nrep', 4))+1}, {v(V_LANE)}")
P(f"v_mul_u32_u24 v4, {FREP}, {v(V_LANE)}")
P(f"s_lshr_b32 s{S_T0}, s{S_W}, 3")
P(f"s_mul_i32 s{S_T1}, s{S_T0}, 37")
P(f"v_cndmask_b32 {v(V_FLG)}, v4, v5, vcc")
P(f"s_lshr_b32 s{S_T1}, s{S_T1}, 8")
P(f"s_mul_i32 s{S_T2}, s{S_T1}, 7")
P(f"s_sub_u32 s{S_DB}, s{S_T0}, s{S_T2}")
P(f"s_and_b32 s{S_FH}, s{S_W}, 1")
P(f"s_and_b32 s{S_T2}, s{S_W}, 6")
P(f"s_lshl_b32 s{S_T2}, s{S_T2}, 1")
P(f"s_add_u32 s{S_TB}, s{S_T2}, s{S_T1}")
P(f"s_mul_i32 s{S_FB}, s{S_FH}, 7")
P(f"s_add_u32 s{S_FB}, s{S_FB}, s{S_DB}")
P(f"s_lshl_b32 s{S_RING}, s{S_V}, 13")
P(f"s_add_u32 s{S_RING}, s{S_RING}, {L_RING}")
P(f"s_mul_i32 s{S_TAB}, s{S_V}, {TAB_W}")
for _ in range(int(OPT.get("xd", 0))):
    P("s_nop 7")
for i in range(4):
    P(f"global_load_dword {v(PR+i)}, v6, s[{38+2*i}:{39+2*i}]")
P(f"global_load_dword {v(V_DT)}, v56, s[46:47]")
P(f"global_load_dword {v(V_DSK)}, v56, s[48:49]")
if "ksplit" in OPT:
    P("s_waitcnt lgkmcnt(0)")
P(f"s_mov_b64 s[{SRD_WS}:{SRD_WS+1}], s[62:63]")
for r, src in ((SRD_WG, 52), (SRD_WU, 54), (SRD_WD, 56), (SRD_OUT, 58)):
    P(f"s_mov_b64 s[{r}:{r+1}], s[{src}:{src+1}]")
P(f"buffer_load_dword {v(V_NONCE)}, v7, {srd(SRD_WS)}, 0 offen sc1")
NOPF = "nopf" in OPT
if not NOPF:
    P(f"s_bitcmp1_b32 s{S_V}, 0")
    P(f"s_cselect_b64 s[{S_PFB}:{S_PFB+1}], s[54:55], s[52:53]")
    P(f"s_lshr_b32 s{S_T0}, s{S_V}, 1")
    P(f"s_lshl1_add_u32 s{S_T2}, s{S_W}, s{S_T0}")
    EPF = int(OPT.get("epf", 7))
    P(f"s_mul_i32 s{S_T0}, s{S_T2}, {EPF*128}")
    if EPF == 25:
        P(f"s_min_u32 s{S_T0}, s{S_T0}, {(12544-25)*128}")
    P(f"v_min_u32 v4, {EPF-1}, {v(V_LANE)}")
    P(f"v_lshl_add_u32 v248, v4, 7, s{S_T0}")
    PFW = sub()
    PFW(f"global_load_dword {v(V_PF)}, v248, s[{S_PFB}:{S_PFB+1}]")
    PFD = sub()
    PFD(f"global_load_dword v253, v245, s[56:57]")
    if "pfpos" not in OPT:
        P.add(PFW.ins)
    P(f"s_mul_i32 s{S_T0}, s{S_W}, 49")
    P(f"s_mul_i32 s{S_T2}, s{S_V}, 12")
    P(f"s_add_u32 s{S_T0}, s{S_T0}, s{S_T2}")
    P(f"v_min_u32 v4, 12, {v(V_LANE)}")
    P(f"v_add_lshl_u32 v245, v4, s{S_T0}, 7")
    if "nowd" in OPT:
        P(f"v_mov_b32 v245, 0")
    if "wdlate" not in OPT and "pfpos" not in OPT:
        P.add(PFD.ins)
    PF_AT = len(P.ins)
if "xprobe" in OPT:
    stamp("issued")
    P(f"v_mov_b32 v4, {v(XR+4)}")
    stamp("x here")
    P(f"v_mov_b32 v4, {v(V_DSK)}")
    stamp("par here")
P(f"v_cmp_gt_u32 vcc, 32, {v(V_LANE)}")
P(f"v_mul_u32_u24 v4, 37, {v(V_LANE)}")
P(f"v_lshrrev_b32 v4, 9, v4")
P(f"v_cndmask_b32 {v(V_S3)}, v5, {v(V_L16)}, vcc")
P(f"v_mul_u32_u24 v4, {TAB_W-14*272}, v4")
P(f"v_mul_u32_u24 v6, 272, {v(V_LANE)}")
P(f"s_lshl_b32 s{S_T0}, s{S_V}, 2")
P(f"v_add3_u32 {v(V_GW)}, v4, v6, s{S_T0}")
P(f"v_add_u32 {v(V_GX)}, s{S_T0}, {v(V_GW)}")
P(f"s_lshl_b32 s{S_UXM}, s{S_V}, 12")
P(f"s_add_u32 s{S_UXM}, s{S_UXM}, {L_UX+2048}")
P(f"v_and_b32 v4, 48, {v(V_LANE)}")
P(f"v_add3_u32 {v(V_GR)}, v4, {v(V_L16)}, s{S_TAB}")
P(f"v_and_b32 v4, 31, {v(V_LANE)}")
P(f"v_lshrrev_b32 v6, 5, {v(V_LANE)}")
P(f"v_lshl_add_u32 v6, v6, 4, s{S_TAB}")
P(f"v_and_b32 v7, 28, {v(V_LANE)}")
P(f"v_lshl_add_u32 v7, v4, 5, v7")
P(f"v_add_u32 {v(V_TW)}, v6, v7")
P(f"v_mul_u32_u24 v7, {TAB_ROW}, v4")
P(f"v_add_u32 {v(V_TB)}, v6, v7")
P(f"v_subrev_u32 v7, 16, v4")
P(f"v_cmp_lt_u32 vcc, 20, v4")
P(f"s_lshl2_add_u32 s{S_CI}, s{S_W}, s{S_V}")
P(f"s_lshl_b32 s{S_CI}, s{S_CI}, 8")
P(f"v_cndmask_b32 v4, v4, v7, vcc")
P(f"v_mul_u32_u24 v7, {TAB_ROW}, v4")
P(f"v_add_u32 {v(V_TA)}, v6, v7")
P(f"s_add_u32 s{S_CI}, s{S_CI}, {WS_C}")
P(f"v_lshlrev_b32 {v(V_P1)}, 25, {v(V_LANE)}")
P(f"s_mul_i32 s{S_UXO}, s{S_W}, 14336")
P(f"s_mul_i32 s{S_T0}, s{S_V}, 3584")
P(f"s_add_u32 s{S_UXO}, s{S_UXO}, s{S_T0}")
P(f"s_add_u32 s{S_UXO}, s{S_UXO}, {WS_UX}")
P(f"s_lshl_b32 s{S_T0}, s{S_V}, 8")
P(f"s_add_u32 s{S_T0}, s{S_T0}, s{S_W}")
P(f"s_mul_i32 s{S_T0}, s{S_T0}, {FS}")
P(f"s_add_u32 s{S_F1}, s{S_T0}, {WS_F1}")
P(f"v_lshrrev_b32 v4, 2, {v(V_LANE)}")
P(f"v_mul_u32_u24 v4, 3584, v4")
P(f"v_and_b32 v6, 3, {v(V_LANE)}")
P(f"v_lshl_add_u32 v4, v6, 4, v4")
P(f"s_lshl_b32 s{S_T0}, s{S_FB}, 8")
P(f"s_lshl_b32 s{S_T1}, s{S_V}, 6")
P(f"s_add_u32 s{S_T0}, s{S_T0}, s{S_T1}")
P(f"v_add_u32 {v(V_W)}, s{S_T0}, v4")
if "fakerot" in OPT:
    P(f"s_and_b32 s{S_T2}, s{S_TB}, {OPT['fakerot']}")
    P(f"s_mul_i32 s{S_T2}, s{S_T2}, {int(OPT.get('rs', 4))*57344//4}")
    P(f"v_add_u32 {v(V_W)}, s{S_T2}, {v(V_W)}")
if "fake128" in OPT:
    P(f"v_lshrrev_b32 v4, 3, {v(V_LANE)}")
    P(f"v_mul_u32_u24 v4, 3584, v4")
    P(f"v_and_b32 v7, 0x70, {v(V_L16)}")
    P(f"s_and_b32 s{S_T0}, s{S_T0}, 0xffffff80")
    P(f"s_and_b32 s{S_T2}, s{S_V}, 1")
    P(f"s_mul_i32 s{S_T2}, s{S_T2}, {8*3584}")
    P(f"s_add_u32 s{S_T0}, s{S_T0}, s{S_T2}")
    P(f"v_add3_u32 {v(V_W)}, v4, v7, s{S_T0}")
for k in range(1, 4):
    P(f"v_add_u32 {v(V_W+k)}, {k*(57344-1024)}, {v(V_W)}")
SETUP_A = len(P.ins)
P(f"v_and_b32 v4, 32, {v(V_LANE)}")
P(f"v_lshlrev_b32 v4, 4, v4")
P(f"v_and_b32 v7, 12, {v(V_LANE)}")
P(f"v_lshl_add_u32 v4, v7, 4, v4")
P(f"v_and_b32 v7, 16, {v(V_LANE)}")
P(f"v_lshl_add_u32 v4, v7, 1, v4")
P(f"v_lshl_add_u32 v4, v6, 3, v4")
P(f"v_add_u32 {v(V_TRA)}, s{S_RING}, v4")
P(f"s_mov_b32 s{S_K0}, {L_KC+4096-L_UX}")
P(f"s_movk_i32 s{S_T2}, 128")
P(f"s_bfe_u32 s{S_T0}, s{S_W}, 0x20001")
P(f"s_lshl_b32 s{S_T0}, s{S_T0}, 10")
P(f"s_lshr_b32 s{S_F2}, s{S_T0}, 2")
NREP = int(OPT.get("nrep", 4))
P(f"s_bfe_u32 s{S_REP}, s{S_W}, {hex((NREP.bit_length()-1)*65536+3)}")
P(f"s_sub_u32 s{S_F1L}, s{S_FH}, s{S_REP}")
P(f"s_add_u32 s{S_F1L}, s{S_F1L}, {NREP}")
P(f"s_mul_i32 s{S_F1L}, s{S_F1L}, {FREP}")
P(f"s_mul_i32 s{S_REP}, s{S_REP}, {FREP}")
P(f"s_add_u32 s{S_REP}, s{S_REP}, {WS_F1}")
P(f"s_add_u32 s{S_T0}, s{S_T0}, s{S_REP}")
P(f"v_lshl_add_u32 {v(V_F1)}, v0, 2, s{S_T0}")
P(f"v_lshrrev_b32 v4, 2, {v(V_LANE)}")
P(f"v_add_u32 v4, s{S_T1}, v4")
P(f"v_mul_u32_u24 v7, 14336, v4")
P(f"v_lshrrev_b32 v4, 4, {v(V_LANE)}")
P(f"v_xor_b32 v6, v6, v4")
P(f"v_lshl_add_u32 v7, v6, 4, v7")
P(f"s_lshl_b32 s{S_T0}, s{S_PR}, 6")
P(f"s_add_u32 s{S_T0}, s{S_T0}, {WS_UX}")
P(f"v_add_u32 {v(V_UXL)}, s{S_T0}, v7")
P(f"v_bfe_u32 v6, {v(V_LANE)}, 1, 2")
P(f"v_mul_u32_u24 v6, {CS}, v6")
P(f"v_and_b32 v7, 16, {v(V_L16)}")
P(f"v_add3_u32 v6, v6, v7, s{S_K0}")
P(f"v_lshlrev_b32 v7, 4, v0")
P(f"v_cmp_gt_u32 vcc, s{S_T2}, v0")
P(f"v_mov_b32 v56, 0")
P(f"v_mov_b32 v57, 0")
P(f"v_cndmask_b32 v6, v6, v7, vcc")
P(f"v_mov_b32 v58, 0")
P(f"v_mov_b32 v59, 0")
P(f"v_add_u32 v6, {L_UX}, v6")
P(f"ds_write_b128 v6, v[56:59]")
P(f"v_lshlrev_b32 v4, 3, v0")
P(f"v_sub_u32 v4, 2047, v4")
P(f"v_cvt_f32_i32 v4, v4")
P(f"v_mov_b32 v60, 1028")
P(f"v_cmp_eq_u32 vcc, 0, v0")
for e in range(0, 10, 2):
    P(f"v_add_f32 v6, {f32(-float(e))}, v4")
    if e < 8:
        P(f"v_add_f32 v7, {f32(-float(e+1))}, v4")
    P(f"v_cvt_pk_bf16_f32 v6, v6, v7")
    for h in range(2):
        if e + h > 8:
            continue
        d = GA + e + h
        if h == 0:
            P(f"v_lshlrev_b32 v7, 16, v6")
        else:
            P(f"v_and_b32 v7, 0xffff0000, v6")
        P(f"v_cvt_u32_f32 v7, v7")
        if e + h < 4:
            P(f"v_cndmask_b32 v7, v7, v60, vcc")
        P(f"v_lshrrev_b32 {v(d)}, 5, v7")
        P(f"v_add_lshl_u32 {v(d)}, {v(d)}, v7, 2")
P(f"v_mov_b32 v4, 255")
P(f"v_cmp_eq_u32 s[{S_M255}:{S_M255+1}], v4, v0")
P(f"v_and_b32 v4, 15, {v(V_LANE)}")
P(f"v_lshrrev_b32 v5, 4, {v(V_LANE)}")
P(f"v_lshl_add_u32 v6, v5, 3, v4")
P(f"v_sub_u32 v6, 39, v6")
P(f"v_and_b32 v7, 1, v6")
P(f"v_mul_u32_u24 v7, {CS-2}, v7")
P(f"v_lshl_add_u32 v6, v6, 1, v7")
P(f"s_lshr_b32 s{S_T0}, s{S_V}, 1")
P(f"s_andn2_b32 s{S_T3}, 1, s{S_V}")
P(f"s_mul_i32 s{S_T2}, s{S_T0}, {2*CS}")
P(f"s_lshl_b32 s{S_T1}, s{S_T3}, 8")
P(f"s_add_u32 s{S_T2}, s{S_T2}, s{S_T1}")
P(f"s_add_u32 s{S_T2}, s{S_T2}, {L_KC}")
P(f"v_add_u32 {v(V_KA+3)}, s{S_T2}, v6")
for k in range(3):
    P(f"v_add_u32 {v(V_KA+k)}, {64*(48-16*k)}, {v(V_KA+3)}")
P(f"v_lshlrev_b32 v6, 1, v4")
P(f"v_sub_u32 v6, v6, v5")
P(f"s_lshl4_add_u32 s{S_T1}, s{S_T3}, 17")
P(f"v_add_u32 v6, s{S_T1}, v6")
P(f"s_mov_b32 s{S_T2}, {L_UX}")
for rr in range(4):
    P(f"v_bfe_u32 v7, v6, 2, 2")
    P(f"v_xor_b32 v7, s{S_T0}, v7")
    P(f"v_lshl_add_u32 v7, v6, 2, v7")
    P(f"v_lshl_add_u32 {v(V_UA+rr)}, v7, 4, s{S_T2}")
    if rr < 3:
        P(f"v_subrev_u32 v6, 4, v6")
EB = sub()
if "nomv" not in OPT:
    EB(f"v_and_b32 v4, 15, {v(V_LANE)}")
    EB(f"v_lshrrev_b32 v5, 4, {v(V_LANE)}")
EB(f"v_lshrrev_b32 v6, 1, v5")
EB(f"v_lshl_add_u32 v6, v4, 1, v6")
EB(f"s_lshl_b32 s{S_T2}, s{S_V}, 11")
EB(f"s_add_u32 s{S_T2}, s{S_T2}, {L_UX+2048}")
EB(f"v_lshl_add_u32 v6, v6, 6, s{S_T2}")
EB(f"v_bfe_u32 v4, v4, 1, 2")
EB(f"v_and_b32 v5, 1, v5")
EB(f"v_lshl_add_u32 v247, v4, 4, v6")
EB(f"v_lshl_add_u32 {v(V_EU)}, v5, 3, v247")
EB(f"v_xor_b32 {v(V_EU1)}, 16, {v(V_EU)}")
EB(f"v_or_b32 v5, 2, v5")
EB(f"v_xor_b32 v4, v4, v5")
EB(f"v_lshl_add_u32 {v(V_EXP)}, v4, 4, v6")
if "nomv" in OPT:
    P.add(EB.ins)
P(f"s_mul_i32 s{S_ACTW}, s{S_V}, 7168")
P(f"v_add_u32 {v(V_EXR)}, s{S_ACTW}, {v(V_L16)}")
P(f"v_lshlrev_b32 {v(V_EXW)}, 4, v0")
P(f"s_mul_i32 s{S_PST}, s{S_PR}, {PROW}")
P(f"s_add_u32 s{S_PST}, s{S_PST}, {WS_P}")
CB = sub()
lanes_reg(CB, V_FL2, 4, 10)
lanes_reg(CB, V_PM, 2, 12)
CB(f"s_lshl1_add_u32 s{S_T0}, s{S_V}, s{S_FH}")
CB(f"s_lshl_b32 s{S_T0}, s{S_T0}, 12")
CB(f"s_add_u32 s{S_F2}, s{S_F2}, s{S_T0}")
CB(f"s_add_u32 s{S_F2}, s{S_F2}, {WS_C}")
CB(f"s_lshr_b32 s{S_T0}, s{S_TB}, 2")
CB(f"s_bfe_u32 s{S_REP}, s{S_W}, 0x20003")
CB(f"s_lshl3_add_u32 s{S_T0}, s{S_T0}, s{S_REP}")
CB(f"s_lshl2_add_u32 s{S_T0}, s{S_T0}, s{S_V}")
CB(f"s_lshl_b32 s{S_T0}, s{S_T0}, 8")
CB(f"s_add_u32 s{S_PA}, s{S_T0}, {WS_C}")
CB(f"s_lshl2_add_u32 s{S_T2}, s{S_DB}, s{S_V}")
CB(f"s_lshl2_add_u32 s{S_T3}, s{S_T2}, s{S_REP}")
CB(f"s_lshl_b32 s{S_T3}, s{S_T3}, 8")
CB(f"s_add_u32 s{S_P4}, s{S_T3}, {WS_C + 896*256}")
CB(f"s_mul_i32 s{S_T2}, s{S_T2}, {14*4096}")
CB(f"s_add_u32 s{S_WFB}, s{S_T2}, {WS_WF}")
CB(f"s_mul_i32 s{S_T1}, s{S_V}, {56*PROW}")
CB(f"s_lshl_b32 s{S_T0}, s{S_TB}, 8")
CB(f"s_add_u32 s{S_T0}, s{S_T0}, s{S_T1}")
CB(f"s_add_u32 s{S_AB}, s{S_T0}, {WS_P}")

if "nomv" in OPT:
    P.add(CB.ins)

if "pfpos" in OPT:
    a_, b_ = [int(x) for x in OPT["pfpos"].split(",")]
    P.ins = P.ins[:PF_AT] + sprinkle(P.ins[PF_AT:], [(a_, PFW.ins), (b_, PFD.ins)])
NS = int(OPT.get("ns", 0))
if NS:
    us = []
    for n in range(NS):
        i_, k_ = n // 4, n % 4
        q = sub()
        if k_ == 0:
            q(f"s_add_u32 m0, s{S_RING}, {(4*i_ % 8) * 1024 + (4*i_ // 8) * 32768}")
            if n % 8 == 0:
                q(f"s_mov_b32 s{S_WOFF}, {(i_//2)*4*57344}")
        o = f" offset:{1024*k_}" if k_ else ""
        q(f"buffer_load_dwordx4 {v(V_W+k_)}, {srd(SRD_WU if i_ % 2 else SRD_WG)}, s{S_WOFF} offen{o} lds", tok=f"w1_{i_}")
        us.append(q.ins)
    tail_ = P.ins[SETUP_A:]
    st_ = int(OPT.get("ns0", 0))
    step = (len(tail_) - st_) / NS
    P.ins = P.ins[:SETUP_A] + sprinkle(tail_, [(int(st_ + step * n), u) for n, u in enumerate(us)])
XF = 56
DF = 72
SA = 88
if "fine" in OPT: stamp("setup done")
P(f"s_mov_b32 s{S_K0}, {f32(1.0/448)}")
P(f"v_mov_b32 v4, {f32(1e-5)}")
P("s_mov_b32 exec_hi, 0x00ffffff")
for r in range(2):
    for i in range(4):
        P(f"v_lshlrev_b32 {v(XF+8*r+2*i)}, 16, {v(XR+4*r+i)}")
        P(f"v_and_b32 {v(XF+8*r+2*i+1)}, 0xffff0000, {v(XR+4*r+i)}")
    P(f"v_readfirstlane_b32 s{(S_A, S_B)[r]}, {v(XF+8*r)}")
stamp("x arrived")
if "wdlate" in OPT and not NOPF:
    P(f"global_load_dword v253, v245, s[56:57]")
for i in range(4):
    P(f"ds_write2_b32 {v(V_GX)}, {v(XR+i)}, {v(XR+4+i)} offset0:{16*i+8} offset1:{16*i+9}")
for r, sm in ((0, S_A), (1, S_B)):
    for i in range(4):
        P(f"v_pk_add_f32 {v(XF+8*r+2*i,2)}, {v(XF+8*r+2*i,2)}, s[{sm}:{sm+1}] op_sel_hi:[1,0] neg_lo:[0,1] neg_hi:[0,1]")
for r in range(2):
    b = XF + 8 * r
    t = DF + 8 * r
    P(f"v_pk_add_f32 {v(t,2)}, {v(b,2)}, {v(b+2,2)}")
    P(f"v_pk_mul_f32 {v(t+2,2)}, {v(b,2)}, {v(b,2)}")
    P(f"v_pk_add_f32 {v(t,2)}, {v(t,2)}, {v(b+4,2)}")
    for i in range(1, 4):
        P(f"v_pk_fma_f32 {v(t+2,2)}, {v(b+2*i,2)}, {v(b+2*i,2)}, {v(t+2,2)}")
    P(f"v_pk_add_f32 {v(t,2)}, {v(t,2)}, {v(b+6,2)}")
for r in range(2):
    t = DF + 8 * r
    P(f"v_add_f32 {v(SA+r)}, {v(t)}, {v(t+1)}")
    P(f"v_add_f32 {v(SA+2+r)}, {v(t+2)}, {v(t+3)}")


def wave_sum(p, regs):
    for mod in ("row_shr:1", "row_shr:2", "row_shr:4", "row_shr:8"):
        for r in regs:
            p(f"v_add_f32_dpp {v(r)}, {v(r)}, {v(r)} {mod} row_mask:0xf bank_mask:0xf bound_ctrl:0")
    for r in regs:
        p(f"v_add_f32_dpp {v(r)}, {v(r)}, {v(r)} row_bcast:15 row_mask:0xa bank_mask:0xf")
    for r in regs:
        p(f"v_add_f32_dpp {v(r)}, {v(r)}, {v(r)} row_bcast:31 row_mask:0xc bank_mask:0xf")


wave_sum(P, [SA, SA + 2, SA + 1, SA + 3])
P(f"v_pk_mul_f32 {v(SA,2)}, {v(SA,2)}, s[{S_K0}:{S_K0+1}] op_sel_hi:[1,0]")
P(f"v_pk_fma_f32 {v(SA+2,2)}, {v(SA+2,2)}, s[{S_K0}:{S_K0+1}], v[4:5] op_sel_hi:[1,0,0]")
P(f"v_pk_fma_f32 {v(SA+2,2)}, {v(SA,2)}, {v(SA,2)}, {v(SA+2,2)} neg_lo:[1,0,0] neg_hi:[1,0,0]")
for r in range(2):
    P(f"v_max_f32 {v(SA+2+r)}, {v(SA+2+r)}, v4")
for r in range(2):
    P(f"v_rsq_f32 {v(SA+2+r)}, {v(SA+2+r)}")
P(f"v_pk_mul_f32 {v(SA,2)}, {v(SA,2)}, {v(SA+2,2)} neg_lo:[1,0] neg_hi:[1,0]")
for r, sm in ((0, S_A), (1, S_B)):
    P(f"v_readlane_b32 s{sm}, {v(SA+2+r)}, 55")
for r, sm in ((0, S_A), (1, S_B)):
    P(f"v_readlane_b32 s{sm+1}, {v(SA+r)}, 55")
for r, sm in ((0, S_A), (1, S_B)):
    for i in range(4):
        P(f"v_pk_fma_f32 {v(XF+8*r+2*i,2)}, {v(XF+8*r+2*i,2)}, s[{sm}:{sm+1}], s[{sm}:{sm+1}] op_sel:[0,0,1] op_sel_hi:[1,0,1]")
for j in range(8):
    P(f"v_cvt_pk_bf16_f32 {v(DF+j)}, {v(XF+j)}, {v(XF+8+j)}")
for i in range(4):
    P(f"ds_write2_b32 {v(V_GW)}, {v(DF+2*i)}, {v(DF+2*i+1)} offset0:{16*i} offset1:{16*i+4}")
P("s_mov_b64 exec, -1")
def kgen_head(rd):
    q = sub()
    A0 = 48 + 0
    CC = 50
    unp = (lambda d, s: q(f"v_lshlrev_b32 {v(d)}, 16, {v(s)}")) if rd == 0 else (lambda d, s: q(f"v_and_b32 {v(d)}, 0xffff0000, {v(s)}"))
    for i in range(4):
        unp(48 + i, PR + i)
    q(f"v_mul_f32 v48, {f32(LOG2E)}, v48")
    q(f"v_exp_f32 v48, v48")
    q(f"v_mul_f32 v49, v49, v249")
    q(f"v_cvt_pk_bf16_f32 v48, v48, v48")
    q(f"v_mul_f32 v50, v50, v250")
    q(f"v_and_b32 v48, 0xffff0000, v48")
    q(f"v_mul_f32 v51, v51, v250")
    q(f"v_mul_f32 v48, v48, {v(V_DT)}")
    for (z, pos) in ((52, 1), (56, 256)) if "b3" not in OPT else ((52, 1), (54, 16), (56, 256)):
        if pos == 1:
            q(f"v_fract_f32 v5, v49")
            q(f"v_exp_f32 v4, v48")
        else:
            q(f"v_mul_f32 v5, {f32(float(pos))}, v49")
            q(f"v_mul_f32 v4, {f32(float(pos))}, v48")
            q(f"v_fract_f32 v5, v5")
            q(f"v_exp_f32 v4, v4")
        q(f"v_cos_f32 {v(z)}, v5")
        q(f"v_sin_f32 {v(z+1)}, v5")
        q(f"v_mul_f32 {v(z)}, {v(z)}, v4")
        q(f"v_mul_f32 {v(z+1)}, {v(z+1)}, v4")
    return q.ins


HD = sub()
HD(f"s_lshl_b32 s{S_T0}, s{S_V}, 3")
HD(f"s_and_b32 s{S_T0}, s{S_T0}, 16")
HD(f"s_mov_b32 m0, s{S_TAB}")
HD(f"v_lshrrev_b32 v4, s{S_T0}, {v(V_DT)}")
HD(f"v_lshlrev_b32 v4, 16, v4")
HD(f"v_mul_f32 v4, {f32(LOG2E)}, v4")
HD(f"v_exp_f32 v4, v4")
HD(f"v_readfirstlane_b32 s{S_DSK}, {v(V_DSK)}")
round_bf16(HD, V_DT, 4)
HD(f"v_mul_f32 v249, 0.15915494, {v(V_DT)}")
HD(f"v_add_f32 v250, {v(V_DT)}, {v(V_DT)}")
HD(f"v_mul_f32 {v(V_DT)}, {f32(-LOG2E)}, {v(V_DT)}")
HD.add(kgen_head(0))
FILL = (CB.ins if "nomv" not in OPT else []) + HD.ins
HB, HP_ = int(OPT.get("hb", 29)), int(OPT.get("hp", 0))
if "fine" in OPT: stamp("ln1 math")
P.add(FILL[:HB])
if OPT.get("w2") == "a":
    walk("early")
P("s_waitcnt lgkmcnt(0)")
P("s_barrier")
if "fine" in OPT: stamp("ln1 barrier")
UB = 112
for j in range(4):
    P(f"ds_read_b128 {v(UB+4*j,4)}, {v(V_GR)} offset:{1088*j}")
P.add(FILL[HB:HB + HP_])
if OPT.get("w2") == "b":
    walk("early")
assert HB + HP_ >= len(FILL) - len(HD.ins)
P("s_waitcnt lgkmcnt(0)")
for j in range(4):
    P(f"buffer_store_dwordx4 {v(UB+4*j,4)}, {v(V_L16 if j < 3 else V_S3)}, {srd(SRD_WS)}, s{S_UXO} offen offset:{1024*j} sc1", tok="ux")
P(f"s_cmp_lt_u32 s{S_W}, 224")
P("s_cbranch_scc1 L_main")


def nonce_init():
    q = sub()
    q(f"v_readfirstlane_b32 s{S_NONCE}, {v(V_NONCE)}")
    q(f"s_mul_i32 s{S_NONCE}, s{S_NONCE}, 1664525")
    q(f"s_add_u32 s{S_NONCE}, s{S_NONCE}, 1013904223")
    q(f"v_mov_b32 {v(V_NONCE)}, s{S_NONCE}")
    q(f"buffer_store_dword {v(V_NONCE)}, {v(V_P1)}, {srd(SRD_WS)}, s{S_CI} offen sc1", tok="ux")
    q(f"s_add_u32 s{S_E28}, s{S_NONCE}, 28")
    q(f"s_add_u32 s{S_E14}, s{S_NONCE}, 14")
    return q.ins


P.raw(f"s_waitcnt vmcnt({(4 if NOPF else 6) + NS})")
for x in nonce_init():
    P.raw(x.text)
P.raw("s_waitcnt vmcnt(0)")
P.raw(f"buffer_atomic_swap {v(V_NONCE)}, {v(V_FLG)}, {srd(SRD_WS)}, s{S_F1} offen")
P.raw("s_branch L_spare")
P("L_main:")
if OPT.get("w2") == "c":
    walk("early")
stamp("ln1 done")


def wfrag(m, ks):
    return 8 * ks + 4 * m


def slotoff(slot):
    return (slot % 8) * 1024 + (slot // 8) * 32768


def w_dma(kq, m, slot, tok):
    q = sub()
    q(f"s_add_u32 m0, s{S_RING}, {slotoff(slot)}")
    if m == 0:
        q(f"s_mov_b32 s{S_WOFF}, {kq*4*57344}")
    for k in range(4):
        o = f" offset:{1024*k}" if k else ""
        q(f"buffer_load_dwordx4 {v(V_W+k)}, {srd(SRD_WU if m else SRD_WG)}, s{S_WOFF} offen{o} lds", tok=tok)
    return q.ins


def w_tr(kq, m, slot, tok=None):
    q = sub()
    for k in range(4):
        for h in range(2):
            q(f"ds_read_b64_tr_b16 {acc(wfrag(m,4*kq+k)+2*h,2)}, {v(V_TRA)} offset:{slotoff(slot+k)+256*h}", tok=tok)
    return q.ins


def batch_dma(b, tok):
    return [w_dma(2 * b + i // 2, i % 2, 4 * i, f"{tok}_{i}") for i in range(4)]


def batch_tr(b):
    o = []
    for i in range(4):
        o += w_tr(2 * b + i // 2, i % 2, 4 * i, tok=f"t{b}_{i}")
    return o


def singles(groups):
    out, cur = [], []
    for grp in groups:
        for i in grp:
            cur.append(i)
            if i.cls == "vmem":
                out.append(cur)
                cur = []
    if cur:
        out[-1] += cur
    return out


def pin_vm(g, start, groups, stride):
    k = start
    for u in singles(groups):
        g.at(int(k), u)
        k += stride
    return int(k)


def w_dma1(b, n, tok):
    i, k = n // 4, n % 4
    q = sub()
    q(f"s_add_u32 m0, s{S_RING}, {slotoff(4*i)}")
    if n % 8 == 0:
        q(f"s_mov_b32 s{S_WOFF}, {(2*b+i//2)*4*57344}")
    o = f" offset:{1024*k}" if k else ""
    if OPT.get("fk") == "same":
        q(f"buffer_load_dwordx4 {v(V_L16)}, {srd(SRD_WG)}, 0 offen{o} lds", tok=f"{tok}_{i}")
    elif OPT.get("fk") == "reg":
        q(f"buffer_load_dwordx4 a[{128+4*n}:{131+4*n}], {v(V_W+k)}, {srd(SRD_WU if i % 2 else SRD_WG)}, s{S_WOFF} offen{o}", tok=f"{tok}_{i}")
    elif OPT.get("fk") != "none":
        q(f"buffer_load_dwordx4 {v(V_W+k)}, {srd(SRD_WU if i % 2 else SRD_WG)}, s{S_WOFF} offen{o} lds", tok=f"{tok}_{i}")
    q(f"s_mov_b32 m0, s{S_TAB}")
    return q.ins


KD = 176
FR = 192
FR = 112


WRI = "ds_write_b32 v246," if "plainw" in OPT else "ds_write_addtid_b32"


def kgen_body(rd):
    names = {"G0": 50, "E1": 52, "E16": 54, "E256": 56}
    nxt = [58]
    chunks = []
    cur = sub()
    wr = sub()
    pk = [0]
    PK = 192

    def new(n):
        names[n] = nxt[0]
        nxt[0] += 2
        assert nxt[0] <= 104
        return names[n]

    def out(kind, row, z):
        t = PK + pk[0] % 16
        pk[0] += 1
        if kind == "B":
            cur(f"v_cvt_pk_bf16_f32 {v(t)}, {v(z)}, {v(z+1)}")
            wr(f"{WRI} {v(t)} offset:{row*TAB_ROW}")
        else:
            cur(f"v_cvt_pk_bf16_f32 {v(t)}, {v(z)}, -{v(z+1)}")
            wr(f"{WRI} {v(t)} offset:{(32+row)*TAB_ROW}")
        if len(wr.ins) >= GROUP:
            flush()

    def flush():
        nonlocal cur, wr
        chunks.append(cur.ins + wr.ins)
        cur = sub()
        wr = sub()

    sc = [0]

    def mul(n, a, b, kind=None, row=None):
        if n is None:
            z = 104 + 2 * (sc[0] % 4)
            sc[0] += 1
        else:
            z = new(n)
        cmul(cur, z, names[a], names[b])
        if kind:
            out(kind, row, z)

    GROUP = int(OPT.get("kgroup", 6))
    if rd == 0:
        t = PK + pk[0]
        pk[0] += 1
        cur(f"v_mov_b32 {v(t)}, 0x3f80")
        wr(f"{WRI} {v(t)}")
    out("A", 0, names["G0"])
    mul("E2", "E1", "E1")
    mul("G1", "G0", "E256", "A", 8)
    mul("E512", "E256", "E256")
    mul("a1", "G0", "E1", "A", 1)
    mul("E4", "E2", "E2")
    mul("G2", "G0", "E512", "A", 10)
    mul("G3", "G1", "E512", "A", 11)
    mul("E1024", "E512", "E512")
    mul("E8", "E4", "E4", "B", 1)
    mul("a2", "G0", "E2", "A", 2)
    if "b3" in OPT:
        out("B", 2, names["E16"])
    else:
        cmul(cur, names["E16"], names["E8"], names["E8"])
        out("B", 2, names["E16"])
    mul("a3", "a1", "E2", "A", 3)
    mul("E32", "E16", "E16", "B", 4)
    mul("b2", "G1", "E2", "A", 9)
    mul("E64", "E32", "E32", "B", 8)
    mul("E48", "E32", "E16", "B", 6)
    mul("G4", "G0", "E1024", "A", 16)
    mul("E128", "E64", "E64", "B", 16)
    mul("E24", "E16", "E8", "B", 3)
    mul("E40", "E32", "E8", "B", 5)
    mul("E56", "E48", "E8", "B", 7)
    mul("E192", "E128", "E64", "B", 24)
    for row, a in ((4, "G0"), (5, "a1"), (6, "a2"), (7, "a3"), (12, "G1"), (13, "b2"), (14, "G2"), (15, "G3")):
        mul(None, a, "E4", "A", row)
    for row, a in ((17, "G1"), (18, "G2"), (19, "G3"), (20, "G4")):
        mul(None, a, "E1024", "A", row)
    for b2, nb in ((1, "E64"), (2, "E128"), (3, "E192")):
        for b1 in range(1, 8):
            mul(None, f"E{8*b1}", nb, "B", 8 * b2 + b1)
    if wr.ins or cur.ins:
        flush()
    return chunks


def kgen_reads():
    q = sub()
    for s in range(8):
        q(f"ds_read_b128 {v(FR+8*s,4)}, {v(V_TA)} offset:{32*TAB_ROW+32*s}")
        q(f"ds_read_b128 {v(FR+8*s+4,4)}, {v(V_TB)} offset:{32*s}")
    return q.ins


def kgen_mfma(rd):
    q = sub()
    for s in range(8):
        c = "0" if (rd == 0 and s == 0) else v(KD, 16)
        q(f"v_mfma_f32_32x32x16_bf16 {v(KD,16)}, {v(FR+8*s,4)}, {v(FR+8*s+4,4)}, {c}")
    return q.ins


P.add(FILL[HB + HP_:])
P.add(nonce_init())
ch = kgen_body(0)
fl = sub()
fl.wait("ux")
setflag(fl, S_F1)
nd = NS
FLAGAT = int(OPT.get("flagat", 5))
D0, DM, D1 = OPT.get("dsch", "011111000,2,111111111").split(",")


def dmas(n):
    global nd
    o = []
    for k in range(n):
        u = w_dma1(0, nd, "w1")
        if k and nd % 4:
            o = o[:-1] + u[1:]
        elif k:
            o = o[:-1] + u
        else:
            o = u
        nd += 1
    return o


for i, c in enumerate(ch):
    P.add(c)
    P.add(dmas(int(D0[i])))
    if i == FLAGAT:
        if "fine" in OPT: stamp("pre flag1")
        P.add(fl.ins)
        if "fine" in OPT: stamp("post flag1")
P.add(kgen_reads())
g = Gaps(kgen_mfma(0), 7)
for k in range(int(DM)):
    g.at(2 * k, dmas(1))
h1_ = kgen_head(1)
NH = int(OPT.get("nh", 12))
P.add(h1_[:NH])
g.fill(h1_[NH:], cap=5)
P.add(g.out())
stamp("kgen r0")
ch = kgen_body(1)
POLLAT = int(OPT.get("pollat", 5))
CHKAT = int(OPT["chkat"]) if "chkat" in OPT else None


def ux_unit(j):
    q = sub()
    q(f"s_mov_b32 s{S_T0}, {j*(16*14336-1024)}")
    o = f" offset:{1024*j}" if j else ""
    q(f"buffer_load_dwordx4 {v(V_UXL)}, {srd(SRD_WS)}, s{S_T0} offen{o} sc1 lds", tok="uxl")
    return q.ins


for i, c in enumerate(ch):
    P.add(c)
    P.add(dmas(int(D1[i])))
    if i == POLLAT:
        if "f1at" not in OPT:
            P(f"buffer_load_dword v6, {v(V_F1)}, {srd(SRD_WS)}, s{S_F1L} offen sc1")
        else:
            P.add(poll_issue("F1", 6))
    if i == CHKAT:
        P.add(poll_check("F1", 6))
        P(f"s_mov_b32 m0, s{S_UXM}")
        for j in range(4):
            P.add(ux_unit(j))
        P(f"s_mov_b32 m0, s{S_TAB}")
assert nd == 16
P.add(kgen_reads())
if "fine" in OPT: stamp("pre poll1")
if CHKAT is None:
    P.add(poll_check("F1", 6))
if "fine" in OPT: stamp("post poll1")
g = Gaps(kgen_mfma(1), 6)
if CHKAT is None:
    P(f"s_mov_b32 m0, s{S_UXM}")
for j in range(4 if CHKAT is None else 0):
    q = sub()
    q(f"s_mov_b32 s{S_T0}, {j*(16*14336-1024)}")
    o = f" offset:{1024*j}" if j else ""
    q(f"buffer_load_dwordx4 {v(V_UXL)}, {srd(SRD_WS)}, s{S_T0} offen{o} sc1 lds", tok="uxl")
    if j == 0:
        P.add(q.ins)
    else:
        g.at(2 * j - 2, q.ins)
tr1 = batch_tr(0)
P.wait("w1_2")
for k in range(8):
    g.at(k, tr1[3 * k:3 * k + 3])
P.add(g.out())
stamp("kgen r1")
b2 = batch_dma(1, "w2")
b2[0] = waitq("t0_0") + b2[0]
b2[3] = waitq("t0_3") + b2[3]
b2 = singles(b2)
P.add(b2.pop(0))
P(f"s_lshl_b32 s{S_C}, s{S_DSK}, 16")
P(f"s_and_b32 s{S_D}, s{S_DSK}, 0xffff0000")
P(f"v_add_u32 v7, {2*CS}, {v(V_EXW)}")
P(f"v_mov_b32 {v(V_NONCE)}, 1")
toff = {0: (0, 0), 1: (0, 1), 2: (0, 2), 3: (0, 3), 4: (1, 0), 5: (1, 2), 6: (2, 0), 7: (3, 0), 8: (4, 0), 9: (5, 0), 10: (6, 0), 11: (7, 0)}
P(f"ds_write2_b32 {v(V_TW)}, {v(KD)}, {v(KD+1)} offset0:0 offset1:1")
P(f"ds_write2_b32 {v(V_TW)}, {v(KD+2)}, {v(KD+3)} offset0:2 offset1:3")
for j in range(4, 12):
    qq, r = toff[j]
    P(f"ds_write_b32 {v(V_TW)}, {v(KD+j)} offset:{4*(r + 264*qq)}")
P.add(b2.pop(0))
if "eb" in OPT and "ebrace" not in OPT:
    P.wait("uxl")
P("s_waitcnt lgkmcnt(0)")
P("s_barrier")
if "fine" in OPT: stamp("T barrier")
EG = 208
for c2 in range(2):
    for e in range(9):
        P(f"ds_read2st64_b32 {v(EG+18*c2+2*e,2)}, {v(GA+e)} offset0:{114*c2} offset1:{114*c2+57}", tok=f"g{c2}")
P.add(b2.pop(0))
if "nomv" not in OPT:
    P.add(EB.ins)
P.add(b2.pop(0))
KO = 192
VB = 48


def bfrag(rr, e):
    return VB + 32 * rr + 4 * e


def b_loads(lo, hi):
    z = sub()
    for rr in range(4):
        for a in range(lo, hi):
            z(f"ds_read_b128 {v(bfrag(rr,a),4)}, {v(V_UA+rr)} offset:{2048*a}")
    return z.ins


EARLYB = "eb" in OPT
if EARLYB:
    P.add(b_loads(0, 4)[:int(OPT["eb"])])
for c2 in range(2):
    b = EG + 18 * c2
    P.wait(f"g{c2}")
    for e in range(9):
        P(f"v_add_f32 {v(b+2*e)}, {v(b+2*e)}, {v(b+2*e+1)}")
    P(f"v_cndmask_b32 {v(b+16)}, {v(b+16)}, 0, s[{S_M255}:{S_M255+1}]")
    for s_ in range(2):
        o = KO + 8 * c2 + 4 * s_
        for i in range(4):
            P(f"v_cvt_pk_bf16_f32 {v(o+i)}, {v(b+2*(s_+2*i))}, {v(b+2*(s_+2*i+1))}")
    for s_ in range(2):
        P(f"ds_write_b128 {v(7 if c2 else V_EXW)}, {v(KO+8*c2+4*s_,4)} offset:{L_KC+s_*CS}", tok="kc")
    P.add(b2.pop(0))
if "dumpk" in OPT:
    P(f"s_lshl_b32 s{S_T0}, s{S_W}, 13")
    P(f"s_add_u32 s{S_T0}, s{S_T0}, {WS_DBG}")
    P(f"buffer_store_dwordx4 {v(KO,4)}, {v(V_EXW)}, {srd(SRD_WS)}, s{S_T0} offen")
    P(f"s_add_u32 s{S_T0}, s{S_T0}, 4096")
    P(f"buffer_store_dwordx4 {v(KO+8,4)}, {v(V_EXW)}, {srd(SRD_WS)}, s{S_T0} offen")
stamp("expanded")
P.wait("uxl")
P.wait("kc")
P("s_barrier")
stamp("conv start")

CA = [176, 192]
ET = 208


def afrag(rr, a):
    return 128 + 32 * rr + 4 * a


def a_loads(rr, lo, hi):
    z = sub()
    for a in range(lo, hi):
        k = a // 2
        off = 16 * (11 - rr - 8 * (a - 2 * k))
        z(f"ds_read2_b32 {acc(afrag(rr,a),2)}, {v(V_KA+k)} offset0:{off} offset1:{off+1}")
        z(f"ds_read2_b32 {acc(afrag(rr,a)+2,2)}, {v(V_KA+k)} offset0:{off+2} offset1:{off+3}")
    return z.ins


def conv_mfmas(gen):
    m = sub()
    first = set()
    na = 4 if gen == 0 else 8
    order = []
    for rr in range(4):
        pairs = [(a, e) for a in range(na) for e in range(na) if 4 * gen <= a + e < 4 * gen + 4]
        pairs.sort(key=(lambda ae: (max(ae), ae)) if rr < 3 else (lambda ae: (ae[0] + ae[1], ae)))
        order += [(rr, a, e) for a, e in pairs]
    if gen == 1:
        order.sort(key=lambda t: (0 if max(t[1], t[2]) < 4 else 1))
    for rr, a, e in order:
        c = a + e - 4 * gen
        d = CA[gen] + 4 * c
        cc = v(d, 4) if c in first else "0"
        first.add(c)
        m(f"v_mfma_f32_16x16x32_bf16 {v(d,4)}, {acc(afrag(rr,a),4)}, {v(bfrag(rr,e),4)}, {cc}")
    return m.ins


UU, XX, YY, TT, WW, HO = ET, ET + 4, ET + 8, ET + 24, ET + 32, ET + 36


def conv_pre(gen):
    q = sub()
    q(f"ds_read_b64 {v(UU,2)}, {v(V_EU)} offset:{8192*gen}")
    q(f"ds_read_b64 {v(UU+2,2)}, {v(V_EU1)} offset:{8192*gen}")
    q(f"ds_read_b128 {v(XX,4)}, {v(V_EXP)} offset:{8192*gen}")
    r = sub()
    if "exact" not in OPT:
        for j in range(4):
            r(f"v_lshlrev_b32 {v(TT+j)}, 16, {v(XX+j)}")
            r(f"v_and_b32 {v(TT+4+j)}, 0xffff0000, {v(XX+j)}")
        for c2, sm in ((0, S_C), (1, S_D)):
            for i in range(2):
                r(f"v_lshlrev_b32 {v(WW)}, 16, {v(UU+2*c2+i)}")
                r(f"v_and_b32 {v(WW+1)}, 0xffff0000, {v(UU+2*c2+i)}")
                r(f"v_fmac_f32 {v(TT+4*c2+2*i)}, s{sm}, {v(WW)}")
                r(f"v_fmac_f32 {v(TT+4*c2+2*i+1)}, s{sm}, {v(WW+1)}")
        return q.ins, r.ins
    for c2 in range(2):
        for i in range(2):
            r(f"v_lshlrev_b32 {v(TT+4*c2+2*i)}, 16, {v(UU+2*c2+i)}")
            r(f"v_and_b32 {v(TT+4*c2+2*i+1)}, 0xffff0000, {v(UU+2*c2+i)}")
    for c2, sm in ((0, S_C), (1, S_D)):
        for i in range(4):
            r(f"v_mul_f32 {v(TT+4*c2+i)}, s{sm}, {v(TT+4*c2+i)}")
    for j in range(4):
        r(f"v_cvt_pk_bf16_f32 {v(WW+j)}, {v(TT+j)}, {v(TT+4+j)}")
    for j in range(4):
        r(f"v_lshlrev_b32 {v(TT+2*j)}, 16, {v(WW+j)}")
        r(f"v_and_b32 {v(TT+2*j+1)}, 0xffff0000, {v(WW+j)}")
    return q.ins, r.ins


def conv_xchg(gen):
    w_, b_, r_ = sub(), sub(), sub()
    for c in range(4):
        w_(f"ds_write_b128 {v(V_EXW)}, {v(CA[gen]+4*c,4)} offset:{(4096 if gen else 7168)*c}", tok=f"xw{gen}")
    b_.wait(f"xw{gen}")
    b_("s_barrier")
    for w in range(4):
        r_(f"ds_read_b128 {v(YY+4*w,4)}, {v(V_EXR)} offset:{1024*w}", tok=f"xr{gen}")
    return w_.ins, b_.ins, r_.ins


def conv_post(gen):
    q = sub()
    h = HO + 4 * gen
    if "exact" not in OPT:
        for c2 in range(2):
            for i in range(2):
                q(f"v_pk_add_f32 {v(TT+4*c2+2*i,2)}, {v(TT+4*c2+2*i,2)}, {v(YY+8*c2+2*i,2)}")
            for i in range(2):
                q(f"v_pk_add_f32 {v(TT+4*c2+2*i,2)}, {v(TT+4*c2+2*i,2)}, {v(YY+8*c2+4+2*i,2)}")
        for j in range(4):
            q(f"v_cvt_pk_bf16_f32 {v(h+j)}, {v(TT+j)}, {v(TT+4+j)}")
        q(f"buffer_store_dwordx4 {v(h,4)}, {v(V_EXW)}, {srd(SRD_WS)}, s{S_PST} offen sc1", tok=f"h{gen}")
        return q.ins
    for c2 in range(2):
        for i in range(2):
            q(f"v_pk_add_f32 {v(YY+8*c2+2*i,2)}, {v(YY+8*c2+2*i,2)}, {v(YY+8*c2+4+2*i,2)}")
    for j in range(4):
        q(f"v_cvt_pk_bf16_f32 {v(WW+j)}, {v(YY+j)}, {v(YY+8+j)}")
    for j in range(4):
        q(f"v_lshlrev_b32 {v(YY+2*j)}, 16, {v(WW+j)}")
        q(f"v_and_b32 {v(YY+2*j+1)}, 0xffff0000, {v(WW+j)}")
    for j in range(4):
        q(f"v_pk_add_f32 {v(YY+2*j,2)}, {v(YY+2*j,2)}, {v(TT+2*j,2)}")
    for j in range(4):
        q(f"v_cvt_pk_bf16_f32 {v(WW+j)}, {v(YY+2*j)}, {v(YY+2*j+1)}")
    for j in range(4):
        q(f"v_lshlrev_b32 {v(YY+8+2*j)}, 16, {v(XX+j)}")
        q(f"v_and_b32 {v(YY+8+2*j+1)}, 0xffff0000, {v(XX+j)}")
    for j in range(4):
        q(f"v_lshlrev_b32 {v(YY+2*j)}, 16, {v(WW+j)}")
        q(f"v_and_b32 {v(YY+2*j+1)}, 0xffff0000, {v(WW+j)}")
    for j in range(4):
        q(f"v_pk_add_f32 {v(YY+2*j,2)}, {v(YY+2*j,2)}, {v(YY+8+2*j,2)}")
    h = HO + 4 * gen
    for j in range(4):
        q(f"v_cvt_pk_bf16_f32 {v(h+j)}, {v(YY+2*j)}, {v(YY+2*j+1)}")
    q(f"buffer_store_dwordx4 {v(h,4)}, {v(V_EXW)}, {srd(SRD_WS)}, s{S_PST} offen sc1", tok=f"h{gen}")
    return q.ins


V_A = 17
ad1 = sub()
ad1(f"v_bfe_u32 v4, {v(V_LANE)}, 3, 1")
ad1(f"v_lshrrev_b32 v5, 5, {v(V_LANE)}")
ad1(f"v_lshl_add_u32 v4, v5, 1, v4")
ad1(f"v_and_b32 v5, 0x70, {v(V_L16)}")
ad1(f"v_lshlrev_b32 v6, 5, v4")
ad1(f"v_xor_b32 v5, v5, v6")
ad1(f"v_bfe_u32 v6, {v(V_LANE)}, 4, 1")
ad1(f"v_lshl_add_u32 v4, v4, 1, v6")
ad1(f"v_mul_u32_u24 v4, {PROW}, v4")
ad1(f"v_add3_u32 {v(V_A)}, v4, v5, s{S_AB}")
for k in range(1, 4):
    ad1(f"v_add_u32 {v(V_A+k)}, {k*(8*PROW-1024)}, {v(V_A)}")


def act_dma(J):
    o = []
    gen, T = J >> 1, J & 1
    for kk in range(2):
        q = sub()
        q(f"s_add_u32 m0, s{S_ACTW}, {L_ACT[gen] + T*28672 + kk*4096}")
        q(f"s_mov_b32 s{S_WOFF}, {kk*32*PROW + PGEN*gen + 128*T}")
        for k in range(4 - kk):
            of = f" offset:{1024*k}" if k else ""
            q(f"buffer_load_dwordx4 {v(V_A+k)}, {srd(SRD_WS)}, s{S_WOFF} offen{of} sc1 lds", tok=f"act{J}")
        o.append(q.ins)
    return o


V_BR, V_S2, V_HST, V_BR2 = 21, 22, 24, 26
V_LF, V_LR = 28, 29
V_RES = 27
V_OST, V_RR, V_RW, V_HL = 45, 41, 42, 44
SEL = 176
CSA = [180, 184]
ad = sub()
ad(f"s_add_u32 s{S_PA}, s{S_PA}, 0x8000")
ad(f"v_and_b32 v4, 31, {v(V_LANE)}")
ad(f"v_lshrrev_b32 v5, 5, {v(V_LANE)}")
ad(f"v_mul_u32_u24 v5, {512+64}, v5")
ad(f"v_lshlrev_b32 v6, 2, v4")
ad(f"v_xor_b32 {v(V_BR)}, v5, v6")
ad(f"v_xor_b32 {v(V_BR2)}, 0xa0, {v(V_BR)}")
NAD2 = len(ad.ins)
ad(f"s_lshl_b32 s{S_T0}, s{S_TB}, 10")
ad(f"s_mul_i32 s{S_T1}, s{S_DB}, {S2REP}")
ad(f"s_add_u32 s{S_T0}, s{S_T0}, s{S_T1}")
ad(f"s_add_u32 s{S_T0}, s{S_T0}, {WS_S2}")
ad(f"v_lshl_add_u32 {v(V_S2)}, v4, 3, s{S_T0}")
ad(f"s_mov_b32 s{S_PERM}, 0x03020302")
ad(f"v_lshrrev_b32 v5, 4, {v(V_LANE)}")
ad(f"v_and_b32 v6, 15, {v(V_LANE)}")
ad(f"v_and_b32 v4, 1, v5")
ad(f"v_mul_u32_u24 v4, 57344, v4")
ad(f"v_lshl_add_u32 v4, v6, 4, v4")
ad(f"v_lshrrev_b32 v7, 1, v5")
ad(f"v_lshl_add_u32 v4, v7, 8, v4")
ad(f"s_mul_i32 s{S_T0}, s{S_TB}, {8*57344}")
ad(f"s_lshl_b32 s{S_T1}, s{S_FB}, 2")
ad(f"s_add_u32 s{S_T1}, s{S_T1}, s{S_V}")
ad(f"s_lshl_b32 s{S_T2}, s{S_T1}, 10")
ad(f"s_add_u32 s{S_T0}, s{S_T0}, {WS_H}")
ad(f"s_add_u32 s{S_T2}, s{S_T2}, s{S_T0}")
ad(f"v_add_u32 {v(V_HST)}, s{S_T2}, v4")
if "tch" in OPT:
    ad(f"s_mul_i32 s{S_TCH}, s{S_FH}, 57344")
    ad(f"s_add_u32 s{S_TCH}, s{S_TCH}, s{S_T2}")
    if "tch2" in OPT:
        ad(f"s_mul_i32 s{S_T3}, s{S_FH}, 28672")
        ad(f"s_sub_u32 s{S_TCH}, s{S_TCH}, s{S_T3}")
ad(f"s_mul_i32 s{S_T2}, s{S_FH}, 57344")
ad(f"s_add_u32 s{S_T0}, s{S_T0}, s{S_T2}")
ad(f"s_lshl1_add_u32 s{S_T0}, s{S_ACTW}, s{S_T0}")
ad(f"v_add_u32 {v(V_HL)}, s{S_T0}, {v(V_L16)}")
ad(f"s_lshl_b32 s{S_T0}, s{S_TB}, 13")
ad(f"s_add_u32 s{S_T0}, s{S_T0}, {WS_C + 65536}")
ad(f"s_mul_i32 s{S_T1}, s{S_T1}, 37")
ad(f"s_and_b32 s{S_T1}, s{S_T1}, 0x600")
ad(f"s_add_u32 s{S_F3}, s{S_T0}, s{S_T1}")
ad(f"s_lshl1_add_u32 s{S_T1}, s{S_V}, s{S_FH}")
ad(f"s_lshl_b32 s{S_T1}, s{S_T1}, 8")
ad(f"s_add_u32 s{S_P3}, s{S_T0}, s{S_T1}")
for k in range(1, 4):
    ad(f"s_movk_i32 s{S_HR+k}, {4096*k}")
ad(f"s_add_u32 s{S_FW}, s{S_RING}, 32768")
ad(f"s_lshl_b32 s{S_R2}, s{S_V}, 14")
ad(f"v_add_u32 {v(V_LF)}, s{S_FW}, {v(V_L16)}")
ad(f"v_add_u32 {v(V_LR)}, s{S_R2}, {v(V_L16)}")
ad2 = ad
se = sub()
se(f"v_bfe_u32 v4, {v(V_LANE)}, 2, 2")
se(f"v_bfe_u32 v5, {v(V_LANE)}, 4, 1")
se(f"v_mov_b32 v6, 0x3f803f80")
se(f"v_cmp_eq_u32 vcc, v4, v5")
for i in range(4):
    se(f"v_cndmask_b32 {v(SEL+i)}, 0, v6, vcc")


def cs_mfma(ks0, ks1):
    q = sub()
    for ks in range(ks0, ks1):
        for m in range(2):
            c = "0" if ks == 0 else v(CSA[m], 4)
            q(f"v_mfma_f32_16x16x32_bf16 {v(CSA[m],4)}, {v(SEL,4)}, {acc(wfrag(m,ks),4)}, {c}")
    return q.ins


def cs_some(lst):
    q = sub()
    for ks, m in lst:
        q(f"v_mfma_f32_16x16x32_bf16 {v(CSA[m],4)}, {v(SEL,4)}, {acc(wfrag(m,ks),4)}, {v(CSA[m],4)}")
    return q.ins


def pin_spread(g, start, ins, per=2):
    for i, x in enumerate(ins):
        g.at(int(start + i // per), [x])
    return int(start + (len(ins) + per - 1) // per)


def gap_stamps(g, name):
    if OPT.get("gs", "").startswith(name + ":"):
        for k in OPT["gs"].split(":")[1].split(","):
            q = sub()
            stamp(f"{name} g{k}", q)
            g.pin[int(k)] = q.ins + g.pin[int(k)]


mA, mB = conv_mfmas(0), conv_mfmas(1)
NCS0 = int(OPT.get("ncs0", 8))
NOV = int(OPT.get("nov", 15))
bl = b_loads(0, 4)


def ab(rr):
    al = a_loads(rr, 0, 4)
    o = []
    for a in range(4):
        o += ([bl[4 * rr + a]] if not (EARLYB and 4 * rr + a < int(OPT["eb"])) else []) + al[2 * a:2 * a + 2]
    return o


pr, pv = conv_pre(0)
P.add(ab(0) + ab(1)[:3])
P.add(b2.pop(0))
P.add(b2.pop(0))
g = Gaps(mA + mB[:NOV], 2)
l1 = ab(1)[3:] + ab(2) + ab(3) + pr
NL1 = int(OPT.get("nl1", 24))
for i, x in enumerate(l1):
    g.at(i * NL1 // len(l1), [x])
xw, xb, xr = conv_xchg(0)
for i, k in enumerate([int(x) for x in OPT.get("xa", "33,35,38,42").split(",")]):
    g.at(k, [xw[i]])
XB = int(OPT.get("xb", 45))
g.fill(pv, start=NL1 + 5, end=XB + 8, cap=2.5)
g.at(XB, xb)
g.at(XB + 1, xr)
pin_vm(g, XB + 2, b2[:2], 3)
b2 = b2[2:]
P.add(g.out())
P.add(conv_post(0))
stamp("genA stored")
nb = b_loads(4, 8)
newl = []
for rr in range(4):
    newl += nb[4 * rr:4 * rr + 4] + a_loads(rr, 4, 8)
P.add(newl[:8])
g = Gaps(mB[NOV:] + cs_mfma(0, NCS0), 2)
NB_ = len(mB) - NOV
pin_spread(g, 0, newl[8:], per=1)
g.at(0, waitq("w1_3"))
pin_spread(g, 0, tr1[24:], per=1)
pin_vm(g, 1, b2, 3.5)
fl = sub()
fl.wait("h0")
addcnt(fl, S_F2, V_FL2)
fl(f"s_add_u32 s{S_F2}, s{S_F2}, 0x8000")
g.at(int(OPT.get("fa", 24)), fl.ins)
tr2 = batch_tr(1)
T2 = [int(x) for x in OPT.get("t2", "12,24,44,60").split(",")]
b3 = batch_dma(2, "w3")
for i in range(4):
    pin_spread(g, T2[i], waitq(f"w2_{i}") + tr2[8 * i:8 * i + 8], per=1)
    b3[i] = waitq(f"t1_{i}") + b3[i]
pin_vm(g, 30, b3[:2], 3)
pin_vm(g, 56, b3[2:3], 3)
pin_vm(g, 71, b3[3:4], 2.5)
pr, pv = conv_pre(1)
pin_spread(g, 41, pr, per=1)
newl[-1].tok = "lastfrag"
bq = sub()
bq.wait("lastfrag")
bq("s_barrier")
g.at(54, bq.ins)
x2 = sub()
x2(f"v_add_u32 {v(V_EXW)}, {L_KC}, {v(V_EXW)}")
x2(f"s_lshl_b32 s{S_T0}, s{S_V}, 12")
x2(f"s_add_u32 s{S_T0}, s{S_T0}, {L_KC}")
x2(f"v_add_u32 {v(V_EXR)}, s{S_T0}, {v(V_L16)}")
x2(f"s_add_u32 s{S_PST}, s{S_PST}, {PGEN - L_KC}")
PA1, PA2, PAC = int(OPT.get("pa1", 58)), int(OPT.get("pa2", 72)), int(OPT.get("pac", 86))
e = g.fill(x2.ins + ad1.ins + se.ins, start=34, end=NB_ - 16)
g.fill(pv, start=max(e, 50), end=NB_ + 10)
g.at(PA1, poll_issue(S_PA, 7))
g.at(PA2, poll_issue(S_PA, 23))
if "pa3" in OPT:
    g.at(int(OPT["pa3"]), poll_first("a", S_PA, 24))
    if "wpa" in OPT:
        wq_ = sub()
        walk("walk", wq_)
        g.at(PAC, wq_.ins)
    g.at(PAC, (poll_checkn if "paout" in OPT else poll_inline)(S_PA, [7, 23, 24], "3", f"s{S_E28}"))
else:
    g.at(PAC, stq("pre pollA") + poll_check2(S_PA, 7, 23, "3", f"s{S_E28}") + stq("post pollA"))
a0 = singles(act_dma(0) + act_dma(1))
AS = float(OPT.get("as", 3))
na = int((g.n - 1 - PAC) / AS) + 1
pin_vm(g, PAC, a0[:na], AS)
xw, xb, xr = conv_xchg(1)
for i, k in enumerate((-15, -11, -5, 3)):
    g.at(NB_ + k, [xw[i]])
g.at(NB_ + 6, xb)
g.at(NB_ + 7, xr)
gap_stamps(g, "s2")
o_ = g.out()
X = OPT.get("x2", "")
if "d" in X:
    o_ = [i for i in o_ if not (i.cls == "vmem" and i.tok and i.tok[0] == "w")]
if "t" in X:
    o_ = [i for i in o_ if "tr_b16" not in i.mn]
if "a" in X:
    o_ = [i for i in o_ if "ds_read2_b32" not in i.mn]
P.add(o_)
P.add(conv_post(1))
stamp("genB stored")
NCH_ = int(OPT.get("nch", 7))
LATE3 = "late3" in OPT
if LATE3:
    CSL = [(ks, m) for ks in list(range(NCS0, 16)) + list(range(20, 24)) for m in range(2)]
else:
    CSL = [(ks, m) for ks in range(NCS0, 24) for m in range(2)]
g = Gaps(cs_some(CSL[:len(CSL) - 2 * NCH_]), 3)
g.at(1, poll_first("w", S_P4, 25))
tr3 = batch_tr(2)
t3 = []
for i in ((2, 3) if LATE3 else (0, 1, 2, 3)):
    t3 += waitq(f"w3_{i}") + tr3[8 * i:8 * i + 8]
pin_spread(g, 0, t3, per=2)
e = pin_vm(g, 0, a0[na:], 2)
fl = sub()
fl.wait("h1")
addcnt(fl, S_F2, V_FL2)
g.fill(ad2.ins[:NAD2], start=18)
w4 = singles([waitq("t2_3") + w_dma(6, 0, 8, "w4"), w_dma(6, 1, 12, "w4")])
P.add(g.out())
stamp("gap work done")

GACC = [64, 96]
BF = 128
NBF = 8
MB = 160
KC_ = [14, 9]
STT = 60
EPT = 164
HP = 172
WDV = 188
RESR = [46, 48, 50, 52]
A_CS = [224, 228]
GC0 = -2.0 * math.sqrt(2.0 / math.pi) * LOG2E


def st_issue(J, atomic=None):
    q = sub()
    t = STT + 2 * (J & 1)
    atomic = False if atomic is None else atomic
    if atomic:
        q(f"v_mov_b64 {v(t,2)}, 0")
        q(f"buffer_atomic_add_x2 {v(t,2)}, {v(V_S2)}, {srd(SRD_WS)}, 0 offen offset:{256*J} sc0")
    else:
        q(f"buffer_load_dwordx2 {v(t,2)}, {v(V_S2)}, {srd(SRD_WS)}, 0 offen offset:{256*J} sc1")
    return q.ins


def st_check(J):
    q = sub()
    t = STT + 2 * (J & 1)
    slow, done = label("sslow"), label("sdone")
    q(f"v_cmp_ne_u32 vcc, s{S_NONCE}, {v(t+1)}")
    q(f"s_cbranch_vccnz {slow}")
    q(f"{done}:")
    spin(TAIL, slow, done, st_issue(J, True), t + 1, sleep=1)
    return q.ins


def st_final(J):
    q = sub()
    kc = KC_[J & 1]
    t = STT + 2 * (J & 1)
    q(f"v_perm_b32 {v(MB)}, {v(t)}, {v(t)}, s{S_PERM}")
    q(f"v_cvt_f32_f16 {v(t)}, {v(t)}")
    q(f"v_mul_f32 {v(t+1)}, {v(t)}, {v(t)}")
    q(f"v_mul_f32 {v(kc)}, {f32(GC0)}, {v(t)}")
    q(f"v_rcp_f32 {v(kc+2)}, {v(t+1)}")
    q(f"v_mul_f32 {v(kc+1)}, {v(t+1)}, {v(kc)}")
    q(f"v_mul_f32 {v(kc+1)}, {f32(0.044715)}, {v(kc+1)}")
    return q.ins


SP = Prog()
spn = [1]


def sps():
    if STAMPS and "lite" in OPT:
        SP(f"s_memrealtime s[{S_STAMP}:{S_STAMP+1}]")
        SP("s_waitcnt lgkmcnt(0)")
        SP(f"v_writelane_b32 v255, s{S_STAMP}, {spn[0]}")
        spn[0] += 1


SP("L_spare:")
SP("s_barrier")
sps()
SP(f"s_and_b32 s{S_T0}, s{S_W}, 6")
SP(f"s_lshl_b32 s{S_T0}, s{S_T0}, 1")
SP(f"s_bfe_u32 s{S_T1}, s{S_W}, 0x20003")
if "genj" in OPT:
    SP(f"s_and_b32 s{S_T2}, s{S_T1}, 2")
    SP(f"s_add_u32 s{S_T0}, s{S_T0}, s{S_T2}")
    SP(f"s_add_u32 s{S_TB}, s{S_T0}, s{S_FH}")
    SP(f"s_and_b32 s{S_FH}, s{S_T1}, 1")
else:
    SP(f"s_add_u32 s{S_TB}, s{S_T0}, s{S_T1}")
SP(f"s_lshr_b32 s{S_T0}, s{S_TB}, 2")
SP(f"s_lshl2_add_u32 s{S_T0}, s{S_FH}, s{S_T0}")
SP(f"s_lshl3_add_u32 s{S_T0}, s{S_T0}, s{S_T1}")
SP(f"s_lshl2_add_u32 s{S_T0}, s{S_T0}, s{S_V}")
SP(f"s_lshl_b32 s{S_T0}, s{S_T0}, 8")
SP(f"s_add_u32 s{S_PA}, s{S_T0}, {WS_C}")
SP(f"s_mul_i32 s{S_T1}, s{S_V}, 56")
SP(f"v_mov_b32 {v(V_NONCE)}, 7")
lanes_reg(SP, V_FLG, 4, 8)
SP(f"v_lshrrev_b32 v5, 4, {v(V_LANE)}")
SP(f"v_and_b32 v6, 15, {v(V_LANE)}")
SP(f"v_mul_u32_u24 v4, {PROW}, v5")
SP(f"v_lshl_add_u32 v4, v6, 4, v4")
SP(f"s_mul_i32 s{S_T1}, s{S_T1}, {PROW}")
SP(f"s_lshl_b32 s{S_T0}, s{S_TB}, 8")
SP(f"s_add_u32 s{S_T0}, s{S_T0}, s{S_T1}")
SP(f"s_mul_i32 s{S_T1}, s{S_FH}, {PGEN}")
SP(f"s_add_u32 s{S_T0}, s{S_T0}, s{S_T1}")
SP(f"s_add_u32 s{S_T0}, s{S_T0}, {WS_P}")
SP(f"v_add_u32 v11, s{S_T0}, v4")
SP(f"v_lshl_add_u32 v4, v6, 2, v5")
SP(f"s_lshl_b32 s{S_T0}, s{S_V}, 9")
SP(f"v_lshl_add_u32 v12, v4, 3, s{S_T0}")
SP(f"v_lshlrev_b32 v13, 3, {v(V_LANE)}")
SP(f"v_mov_b32 v14, 0x3f803f80")
if not NOPF and EPF < 25:
    NREM = 12544 - 512 * EPF
    LR = -(-NREM // (64 * 4))
    SP(f"s_sub_u32 s{S_T1}, s{S_W}, 224")
    SP(f"s_lshr_b32 s{S_T0}, s{S_V}, 1")
    SP(f"s_lshl1_add_u32 s{S_T1}, s{S_T1}, s{S_T0}")
    SP(f"s_mul_i32 s{S_T1}, s{S_T1}, {LR*128}")
    SP(f"s_add_u32 s{S_T1}, s{S_T1}, {(12544-256*LR)*128}")
    SP(f"v_min_u32 v4, {LR-1}, {v(V_LANE)}")
    SP(f"v_lshl_add_u32 v4, v4, 7, s{S_T1}")
    NB3 = int(OPT.get("nb3", 0))
    SP(f"s_mul_i32 s{S_T0}, s{S_FH}, {64*LR*128}")
    SP(f"s_mul_i32 s{S_T1}, s{S_FH}, {2*LR*128}")
    for k in range(4):
        SP(f"global_load_dword {v(56+k)}, v4, s[{S_PFB}:{S_PFB+1}]")
        if k >= 4 - NB3:
            SP(f"v_subrev_u32 v5, s{S_T1}, v4")
            SP(f"global_load_dword {v(60+k)}, v5, s[{S_PFB}:{S_PFB+1}]")
        if k < 3 - NB3:
            SP(f"v_add_u32 v4, {64*LR*128}, v4")
        elif k < 3:
            SP(f"v_add_u32 v4, s{S_T0}, v4")
SP(f"s_sub_u32 s{S_T1}, s{S_W}, 224")
SP(f"s_cmp_ge_u32 s{S_T1}, 28")
SP("s_cbranch_scc1 L_sp_nowf")
SP(f"s_lshr_b32 s{S_DB}, s{S_T1}, 2")
SP(f"s_and_b32 s{S_T2}, s{S_T1}, 3")
SP(f"s_lshl_b32 s{S_F3}, s{S_T1}, 10")
SP(f"s_add_u32 s{S_F3}, s{S_F3}, {WS_C + 896*256}")
SP(f"s_mul_i32 s{S_T1}, s{S_T1}, {14*4096}")
SP(f"s_add_u32 s{S_T1}, s{S_T1}, {WS_WF}")
SP(f"v_add_u32 v20, s{S_T1}, {v(V_L16)}")
SP(f"v_lshrrev_b32 v6, 3, {v(V_LANE)}")
SP(f"v_and_b32 v7, 6, v6")
SP(f"v_and_b32 v5, 7, {v(V_LANE)}")
SP(f"v_xor_b32 v7, v7, v5")
SP(f"v_mul_u32_u24 v6, 896, v6")
SP(f"v_lshl_add_u32 v6, v7, 4, v6")
SP(f"s_mul_i32 s{S_T0}, s{S_T2}, {448*896}")
SP(f"s_lshl_b32 s{S_T1}, s{S_DB}, 7")
SP(f"s_add_u32 s{S_T0}, s{S_T0}, s{S_T1}")
SP(f"v_add_u32 v48, s{S_T0}, v6")
for k in range(1, 4):
    SP(f"v_add_u32 {v(48+k)}, {k*(7168-1024)}, v48")
SP(f"s_lshl_b32 s{S_R2}, s{S_V}, 14")
SP(f"s_add_u32 s{S_R2}, s{S_R2}, 4096")
for i in range(4):
    SP(f"s_lshl2_add_u32 s{S_HR+i}, s{S_V}, {i}")
    SP(f"s_min_u32 s{S_HR+i}, s{S_HR+i}, 13")
    SP(f"s_mul_i32 s{S_WOFF}, s{S_HR+i}, {32*896}")
    SP(f"s_add_u32 m0, s{S_R2}, {4096*i}")
    SP(f"s_lshl_b32 s{S_HR+i}, s{S_HR+i}, 12")
    for k in range(4):
        of = f" offset:{1024*k}" if k else ""
        SP(f"buffer_load_dwordx4 {v(48+k)}, {srd(SRD_WD)}, s{S_WOFF} offen{of} lds", tok=f"sw{i}")
SP(f"v_lshrrev_b32 v4, 4, {v(V_LANE)}")
SP(f"v_lshrrev_b32 v6, 1, v4")
SP(f"v_lshlrev_b32 v6, 4, v6")
SP(f"v_and_b32 v7, 1, v4")
SP(f"v_lshl_add_u32 v6, v7, 2, v6")
SP(f"v_bfe_u32 v7, {v(V_LANE)}, 2, 2")
SP(f"v_add_u32 v6, v6, v7")
SP(f"v_bfe_u32 v7, v6, 1, 2")
SP(f"v_lshlrev_b32 v6, 7, v6")
SP(f"v_and_b32 v5, 3, {v(V_LANE)}")
SP(f"v_lshl_add_u32 v6, v5, 3, v6")
for rt in range(4):
    SP(f"v_xor_b32 v5, {rt}, v7")
    SP(f"v_lshl_add_u32 v5, v5, 5, v6")
    SP(f"v_add_u32 {v(52+rt)}, s{S_R2}, v5")
for i in range(4):
    SP.wait(f"sw{i}")
    if i in (0, 3): sps()
    for rt in range(4):
        for h in range(2):
            SP(f"ds_read_b64_tr_b16 {v(64+16*i+4*rt+2*h,2)}, {v(52+rt)} offset:{4096*i+1024*h}")
    for rt in range(4):
        SP(f"buffer_store_dwordx4 {v(64+16*i+4*rt,4)}, v20, {srd(SRD_WS)}, s{S_HR+i} offen offset:{1024*rt} sc1")
SP("s_waitcnt vmcnt(0)")
addcnt(SP, S_F3, V_FLG)
sps()
SP("L_sp_nowf:")
sps()
SP("s_mov_b64 vcc, 3")
spin(SP, "L_sp_c", "L_sp_d", poll_issue(S_PA, 7), 7, sleep=int(OPT.get('spsleep', 2)), exp=f"s{S_E28}")
SP("L_sp_d:")
sps()
for k in range(14):
    SP(f"s_mov_b32 s{S_T0}, {k*4*PROW}")
    SP(f"buffer_load_dwordx4 {v(64+4*k,4)}, v11, {srd(SRD_WS)}, s{S_T0} offen sc1")
SS = 16
for j in range(8):
    SP(f"v_mov_b32 {v(SS+j)}, 0")
for k in range(14):
    for j in range(4):
        SP(f"v_dot2c_f32_bf16 {v(SS+j)}, {v(64+4*k+j)}, v14")
    for j in range(4):
        SP(f"v_dot2c_f32_bf16 {v(SS+4+j)}, {v(64+4*k+j)}, {v(64+4*k+j)}")
for o in (0, 4):
    SP(f"v_permlane32_swap_b32 {v(SS+o)}, {v(SS+o+2)}")
    SP(f"v_permlane32_swap_b32 {v(SS+o+1)}, {v(SS+o+3)}")
for o in (0, 4):
    SP(f"v_add_f32 {v(SS+o)}, {v(SS+o)}, {v(SS+o+2)}")
    SP(f"v_add_f32 {v(SS+o+1)}, {v(SS+o+1)}, {v(SS+o+3)}")
for o in (0, 4):
    SP(f"v_permlane16_swap_b32 {v(SS+o)}, {v(SS+o+1)}")
SP(f"v_add_f32 {v(SS)}, {v(SS)}, {v(SS+1)}")
SP(f"v_add_f32 {v(SS+1)}, {v(SS+4)}, {v(SS+5)}")
sps()
SP(f"ds_write_b64 v12, {v(SS,2)}")
SP("s_waitcnt lgkmcnt(0)")
SP("s_barrier")
SP(f"s_cmp_lg_u32 s{S_V}, 0")
SP("s_cbranch_scc1 L_fin")
t = 24
for w in range(4):
    SP(f"ds_read_b64 {v(t+2*w,2)}, v13 offset:{512*w}")
SP(f"s_lshl_b32 s{S_T0}, s{S_TB}, 1")
SP(f"s_add_u32 s{S_T0}, s{S_T0}, s{S_FH}")
SP(f"s_lshl_b32 s{S_T0}, s{S_T0}, 9")
SP(f"s_add_u32 s{S_T0}, s{S_T0}, {WS_S2}")
SP(f"v_pk_add_f32 {v(t,2)}, {v(t,2)}, {v(t+2,2)}")
SP(f"v_pk_add_f32 {v(t+4,2)}, {v(t+4,2)}, {v(t+6,2)}")
SP(f"v_pk_add_f32 {v(t,2)}, {v(t,2)}, {v(t+4,2)}")
SP(f"v_mul_f32 {v(t)}, s{S_K0}, {v(t)}")
SP(f"v_mul_f32 {v(t+1)}, s{S_K0}, {v(t+1)}")
SP(f"v_fma_f32 {v(t+1)}, -{v(t)}, {v(t)}, {v(t+1)}")
SP(f"v_max_f32 {v(t+1)}, 0, {v(t+1)}")
SP(f"v_add_f32 {v(t+1)}, {f32(1e-5)}, {v(t+1)}")
SP(f"v_rsq_f32 {v(t+1)}, {v(t+1)}")
SP(f"v_cvt_pk_bf16_f32 {v(t)}, 0, -{v(t)}")
SP(f"v_cvt_f16_f32 {v(t+1)}, {v(t+1)}")
SP(f"v_and_b32 {v(t+1)}, 0xffff, {v(t+1)}")
SP(f"v_or_b32 {v(t)}, {v(t)}, {v(t+1)}")
SP(f"v_mov_b32 {v(t+1)}, s{S_NONCE}")
for r_ in range(7):
    SP(f"buffer_store_dwordx2 {v(t,2)}, v13, {srd(SRD_WS)}, s{S_T0} offen sc1")
    SP(f"s_add_u32 s{S_T0}, s{S_T0}, {S2REP}")
sps()
SP(f"s_cmp_lg_u32 s{S_W}, 255")
SP("s_cbranch_scc1 L_fin")
SP(f"v_lshlrev_b32 v4, 25, {v(V_LANE)}")
SP(f"buffer_store_dword {v(t+1)}, v4, {srd(SRD_WS)}, 0 offen sc1")
SP("s_branch L_fin")


def b_read(J, ks):
    q = sub()
    b = BF + 4 * (ks % NBF)
    o = 112 * (J & 1) + 4 * ks
    q(f"ds_read2st64_b32 {v(b,2)}, {v(V_BR)} offset0:{o} offset1:{o+1}")
    q(f"ds_read2st64_b32 {v(b+2,2)}, {v(V_BR2)} offset0:{o} offset1:{o+1}", tok=f"b{J}_{ks}")
    return q.ins


def g1_gaps(J, extra_after=None):
    m = sub()
    g0 = GACC[J & 1]
    for ks in range(28):
        for mm in range(2):
            d = g0 + 16 * mm
            c = "0" if ks == 0 else v(d, 16)
            m(f"v_mfma_f32_32x32x16_bf16 {v(d,16)}, {acc(wfrag(mm,ks),4)}, {v(BF+4*(ks%NBF),4)}, {c}")
    for mm in range(2):
        d = g0 + 16 * mm
        m(f"v_mfma_f32_32x32x16_bf16 {v(d,16)}, {acc(A_CS[mm],4)}, {v(MB,4)}, {v(d,16)}")
    g = Gaps(m.ins, 6)
    for ks in range(28):
        k2 = ks + NBF - 1
        if k2 < 28:
            r = b_read(J, k2)
            g.at(2 * ks, [r[0]])
            g.at(2 * ks + 1, [r[1]])
        if ks % 3 == 2 and ks + 1 < 28:
            w = sub()
            w.wait(f"b{J}_{min(ks+3,27)}")
            g.at(2 * ks + 1, w.ins)
    return g


def next_tile_reads(g, J, delta, first=42):
    q = sub()
    if delta:
        q(f"v_add_u32 {v(V_BR)}, {delta}, {v(V_BR)}")
        q(f"v_add_u32 {v(V_BR2)}, {delta}, {v(V_BR2)}")
    g.at(first, q.ins)
    for ks in range(NBF - 1):
        old = max(k for k in range(28) if k % NBF == ks)
        r = b_read(J, ks)
        at = max(2 * old + 1, first + 1)
        g.at(at, r[:1])
        g.at(min(at + 1, 57), r[1:])


def g1_epi(J):
    q = sub()
    g = GACC[J & 1]
    kc = KC_[J & 1]
    T = EPT
    for j0 in range(0, 16, 4):
        js = range(j0, j0 + 4)
        for j in js:
            q(f"v_mul_f32 {v(T+j-j0)}, {v(g+j)}, {v(g+j)}")
        for j in js:
            q(f"v_fma_f32 {v(T+j-j0)}, {v(T+j-j0)}, {v(kc+1)}, {v(kc)}")
        for j in js:
            q(f"v_mul_f32 {v(T+j-j0)}, {v(T+j-j0)}, {v(g+j)}")
        for j in js:
            q(f"v_exp_f32 {v(T+j-j0)}, {v(T+j-j0)}")
            q(f"v_mul_f32 {v(T+4+j-j0)}, {v(g+j)}, {v(g+16+j)}")
        for j in js:
            q(f"v_fma_f32 {v(T+j-j0)}, {v(T+j-j0)}, {v(kc+2)}, {v(kc+2)}")
        for j in js:
            q(f"v_rcp_f32 {v(T+j-j0)}, {v(T+j-j0)}")
        for j in js:
            q(f"v_mul_f32 {v(T+4+j-j0)}, {v(T+4+j-j0)}, {v(T+j-j0)}")
        q(f"v_cvt_pk_bf16_f32 {v(HP+(j0//2)%4)}, {v(T+4)}, {v(T+5)}")
        q(f"v_cvt_pk_bf16_f32 {v(HP+(j0//2)%4+1)}, {v(T+6)}, {v(T+7)}")
        if j0 in (4, 12):
            q2 = j0 // 8
            q(f"buffer_store_dwordx4 {v(HP,4)}, {v(V_HST)}, {srd(SRD_WS)}, 0 offen offset:{512*q2} sc1", tok=f"H{J}")
    q(f"v_add_u32 {v(V_HST)}, {2*57344}, {v(V_HST)}")
    return q.ins


def g1_epi_pk(J):
    q = sub()
    g = GACC[J & 1]
    assert KC_[J & 1] == 9
    T = EPT
    for j0 in range(0, 16, 8):
        pr_ = range(j0, j0 + 8, 2)
        for j in pr_:
            q(f"v_pk_mul_f32 {v(T+j-j0,2)}, {v(g+j,2)}, {v(g+j,2)}")
        for j in pr_:
            q(f"v_pk_fma_f32 {v(T+j-j0,2)}, {v(T+j-j0,2)}, v[10:11], v[8:9] op_sel:[0,0,1] op_sel_hi:[1,0,1]")
        for j in pr_:
            q(f"v_pk_mul_f32 {v(T+j-j0,2)}, {v(T+j-j0,2)}, {v(g+j,2)}")
        for j in range(j0, j0 + 8):
            q(f"v_exp_f32 {v(T+j-j0)}, {v(T+j-j0)}")
        for j in pr_:
            q(f"v_pk_mul_f32 {v(g+j,2)}, {v(g+j,2)}, {v(g+16+j,2)}")
        for j in pr_:
            q(f"v_pk_fma_f32 {v(T+j-j0,2)}, {v(T+j-j0,2)}, v[10:11], v[10:11] op_sel:[0,1,1] op_sel_hi:[1,1,1]")
        for j in range(j0, j0 + 8):
            q(f"v_rcp_f32 {v(T+j-j0)}, {v(T+j-j0)}")
        for j in pr_:
            q(f"v_pk_mul_f32 {v(g+j,2)}, {v(g+j,2)}, {v(T+j-j0,2)}")
        for j in pr_:
            q(f"v_cvt_pk_bf16_f32 {v(HP+(j-j0)//2)}, {v(g+j)}, {v(g+j+1)}")
        q(f"buffer_store_dwordx4 {v(HP,4)}, {v(V_HST)}, {srd(SRD_WS)}, 0 offen offset:{512*(j0//8)} sc1", tok=f"H{J}")
    return q.ins


def flag3(J):
    q = sub()
    q.wait(f"H{J}")
    addcnt(q, S_F3, V_FLG)
    q(f"s_add_u32 s{S_F3}, s{S_F3}, 2048")
    if str(J) in OPT.get("tch", ""):
        q(f"s_add_u32 s{S_T3}, s{S_TCH}, {J*2*57344}")
        q(f"buffer_load_dword {v(253 + (J & 1))}, v40, {srd(SRD_WS)}, s{S_T3} offen sc1")
    return q.ins


WDREG = {}
for i in range(4):
    for rt in range(4):
        WDREG[i, rt] = v(WDV + 16 * i + 4 * rt, 4)
        WDREG[10, rt] = acc(240 + 4 * rt, 4)
        WDREG[11, rt] = v([176, 180, 184, 56][rt], 4)
        WDREG[12, rt] = acc(4 * rt, 4)
        WDREG[13, rt] = acc(16 + 4 * rt, 4)
for i in range(6):
    for rt in range(4):
        WDREG[4 + i, rt] = acc(128 + 16 * i + 4 * rt, 4)
KORD = [0, 1, 2, 3, 10, 11, 12, 13, 4, 5, 6, 7, 8, 9]


def wdr(ft, rt):
    return WDREG[ft, rt]


def wd_load(ft):
    q = sub()
    q(f"s_add_u32 s{S_WOFF}, s{S_WFB}, {(ft*4096) if 'hot' not in OPT else 4096*(ft%2)}")
    for k in range(4):
        of = f" offset:{1024*k}" if k else ""
        q(f"buffer_load_dwordx4 {wdr(ft,k)}, {v(V_L16)}, {srd(SRD_WS)}, s{S_WOFF} offen{of} sc1")
    return q.ins


def wd_dma(ft):
    q = sub()
    sbase, slot = (S_FW, ft - 4) if ft < 6 else (S_R2, ft - 6)
    q(f"s_add_u32 m0, s{sbase}, {slot*4096}")
    q(f"s_add_u32 s{S_WOFF}, s{S_WFB}, {(ft*4096) if 'hot' not in OPT else 4096*(ft%2)}")
    for k in range(4):
        of = f" offset:{1024*k}" if k else ""
        q(f"buffer_load_dwordx4 {v(V_L16)}, {srd(SRD_WS)}, s{S_WOFF} offen{of} sc1 lds", tok=f"wd{ft}")
    return q.ins


def wd_read(ft):
    q = sub()
    va, slot = (V_LF, ft - 4) if ft < 6 else (V_LR, ft - 6)
    for rt in range(4):
        q(f"ds_read_b128 {wdr(ft,rt)}, {v(va)} offset:{4096*slot+1024*rt}")
    return q.ins


def res_read(J):
    q = sub()
    o = 112 * (J & 1)
    q(f"ds_read2st64_b32 {v(RESR[J],2)}, {v(V_RES)} offset0:{o} offset1:{o+1}", tok=f"res{J}")
    if J == 1:
        q(f"v_add_u32 {v(V_RES)}, {L_ACT[1]}, {v(V_RES)}")
    return q.ins


ad = sub()
ad(f"v_lshrrev_b32 v4, 4, v0")
ad(f"v_and_b32 v5, 15, v0")
ad(f"v_lshrrev_b32 v6, 1, v5")
ad(f"v_and_b32 v7, 1, v5")
ad(f"v_lshl_add_u32 v6, v6, 2, v7")
ad(f"s_lshl_b32 s{S_T0}, s{S_DB}, 12")
ad(f"v_lshl_add_u32 v6, v6, 7, s{S_T0}")
ad(f"s_lshl_b32 s{S_T1}, s{S_FH}, 6")
ad(f"v_lshl_add_u32 v7, v4, 2, s{S_T1}")
ad(f"v_add_u32 v6, v6, v7")
ad(f"v_and_b32 v7, 3, v5")
ad(f"v_lshlrev_b32 v7, 5, v7")
ad(f"v_xor_b32 {v(V_RES)}, v6, v7")
ad(f"v_lshrrev_b32 v6, 2, v4")
ad(f"v_and_b32 v7, 3, v4")
ad(f"v_lshl_add_u32 v6, v6, 4, v7")
ad(f"v_mul_u32_u24 v6, 896, v6")
ad(f"v_lshl_add_u32 v6, v5, 3, v6")
ad(f"s_lshr_b32 s{S_T0}, s{S_TB}, 2")
ad(f"s_lshl_b32 s{S_T0}, s{S_T0}, 8")
ad(f"s_add_u32 s{S_T0}, s{S_T0}, s{S_T1}")
ad(f"s_and_b32 s{S_T1}, s{S_TB}, 3")
ad(f"s_lshl_b32 s{S_T1}, s{S_T1}, 2")
ad(f"s_add_u32 s{S_T0}, s{S_T0}, s{S_T1}")
ad(f"s_mul_i32 s{S_T0}, s{S_T0}, 896")
ad(f"s_lshl_b32 s{S_T1}, s{S_DB}, 7")
ad(f"s_add_u32 s{S_T0}, s{S_T0}, s{S_T1}")
ad(f"v_add_u32 {v(V_OST)}, s{S_T0}, v6")
ad(f"v_mul_u32_u24 v6, 288, v5")
ad(f"v_lshl_add_u32 v6, v4, 4, v6")
ad(f"v_add_u32 {v(V_RR)}, {L_R}, v6")
ad(f"v_lshrrev_b32 v4, 4, {v(V_LANE)}")
ad(f"v_mul_u32_u24 v6, 288, v4")
ad(f"v_lshl_add_u32 v6, v5, 4, v6")
ad(f"s_mul_i32 s{S_T0}, s{S_V}, 4608")
ad(f"s_add_u32 s{S_T0}, s{S_T0}, {L_R}")
ad(f"v_add_u32 {v(V_RW)}, s{S_T0}, v6")
lanes_reg(ad, V_FLG, 2, 8)
if "tch2" in OPT:
    lanes_reg(ad, 40, 16, 7)
    ad(f"v_and_b32 v4, 8, {v(V_LANE)}")
    ad(f"v_mul_u32_u24 v4, {(28672-1024)//8}, v4")
    ad(f"v_add_u32 v40, v40, v4")
elif "tch" in OPT:
    lanes_reg(ad, 40, 8, 7)

for i in range(1, 4):
    z_ = ad if "zl" in OPT else P
    z_(f"v_mov_b32 {v(MB+i)}, 0")
    z_(f"v_accvgpr_write_b32 {acc(A_CS[0]+i)}, 0")
    z_(f"v_accvgpr_write_b32 {acc(A_CS[1]+i)}, 0")
NPRE = int(OPT.get("npre", 0))
ADS = ad2.ins[NAD2:] + ad.ins
P.add(ADS[:NPRE])
if "wpa" not in OPT:
    walk("walk")
P.wait("act0")
P("s_waitcnt lgkmcnt(0)")
P("s_barrier")
stamp("gemm1 start")
for ks in range(3):
    P.add(b_read(0, ks))
g = Gaps(cs_some(CSL[len(CSL) - 2 * NCH_:]), 2)
pin_spread(g, 0, sum([b_read(0, ks) for ks in range(3, NBF - 1)], []), per=1)
pin_vm(g, 1, w4[:3], 3)
P.add(g.out())

def hreg(J, ft):
    n = KORD.index(ft)
    if J in (0, 3):
        return acc(32 + 4 * n, 4)
    if J == 1:
        return v(64 + 4 * n if n < 8 else 128 + 4 * (n - 8), 4)
    return v(96 + 4 * n if n < 8 else 152 + 4 * (n - 8), 4)


def h_loads(J):
    o = []
    for s_ in KORD:
        q = sub()
        of = f" offset:{1024*(s_%4)}" if s_ % 4 else ""
        so = f"s{S_HR+s_//4}" if s_ >= 4 else "0"
        q(f"buffer_load_dwordx4 {hreg(J,s_)}, {v(V_HL)}, {srd(SRD_WS)}, {so} offen{of} sc1")
        o.append(q.ins)
    if J < 3:
        q = sub()
        q(f"v_add_u32 {v(V_HL)}, {0 if 'hoth' in OPT else 2*57344}, {v(V_HL)}")
        o[-1] += q.ins
    return o


def p3_next():
    q = sub()
    q(f"s_add_u32 s{S_P3}, s{S_P3}, 2048")
    return q.ins


g = g1_gaps(0)
e = pin_vm(g, 0, w4[3:], float(OPT.get("w4s", 1.5)))
g.at(int(OPT.get("fb", 2)), fl.ins)
g.at(e, poll_check(S_P4, 25))
WL = [wd_load(0), wd_load(1), wd_load(2), wd_load(3), wd_load(10), wd_dma(4), wd_dma(5), wd_load(11)]
N0_, N1_ = int(OPT.get("n0", 5)), int(OPT.get("n1", 2))
WS0 = int(OPT.get("ws0", 14))
e4 = pin_vm(g, WS0, WL[:N0_], (57 - WS0) / (4 * N0_))
t4 = w_tr(6, 0, 8, "t4") + w_tr(6, 1, 12, "t4")
W4W = int(OPT.get("w4w", 30))
g.at(W4W, waitq("w4"))
pin_spread(g, W4W, t4, per=float(OPT.get("t4p", 2)))
if LATE3:
    pin_spread(g, 8, tr3[:16], per=1)
g.at(int(OPT.get("csg", 41)), waitq("t4") + (cs_mfma(16, 20) if LATE3 else []) + cs_mfma(24, 28))
cf = sub()
for m in range(2):
    round_bf16(cf, 54, CSA[m])
    cf(f"v_sub_f32 v55, {v(CSA[m])}, v54")
    cf(f"v_cvt_pk_bf16_f32 v54, v54, v55")
    cf(f"v_accvgpr_write_b32 {acc(A_CS[m])}, v54")
g.fill(cf.ins, start=int(OPT.get("csg", 41)) + 3, end=53)
g.at(int(OPT.get("pb1", 26)), poll_issue(S_PA, 23))
g.at(int(OPT.get("pb2", 40)), poll_first("b", S_PA, 25))
g.at(int(OPT.get("st0", 32)), st_issue(0))
g.at(53, stq("t0 pre st") + st_check(0) + stq("t0 post st"))
g.fill(st_final(0), start=53, end=55)
g.at(57, stq("t0 pre pB") + poll_check2(S_PA, 23, 25, "3", f"s{S_E28}") + stq("t0 post pB"))
bq = sub()
bq.wait("act1")
bq.wait("t2_1")
bq("s_barrier")
g.at(int(OPT.get("b0", 27)), bq.ins)
next_tile_reads(g, 1, 0, first=41)
e = g.fill(ADS[NPRE:], start=0, cap=float(OPT.get("cap0", 6)))
print("tile 0 address stream ends at", e, len(g.tail))
gap_stamps(g, "t0")
P.add(g.out())
stamp("tile0")
g = g1_gaps(1)
e = pin_vm(g, 0, act_dma(2)[:1] + [st_issue(1)] + act_dma(2)[1:] + act_dma(3), 2)
pin_vm(g, e + 1, WL[N0_:N0_ + N1_], min(2.5, (57 - e) / (4 * N1_)))
g.at(38, res_read(0))
g.at(39, res_read(1))
g.at(40, st_check(1))
g.fill(st_final(1), start=41, end=54)
bq = sub()
bq.wait("act2")
bq.wait("b1_27")
bq("s_barrier")
BB = int(OPT.get("bb", 45))
g.at(BB, stq("t1 pre bar") + bq.ins + stq("t1 post bar"))
next_tile_reads(g, 2, L_ACT[1], first=BB)
e = g.fill(g1_epi(0), start=3)
print("tile 1: epilogue ends at gap", e, "tail", len(g.tail))
gap_stamps(g, "t1")
P.add(g.out())
stamp("tile1")
g = g1_gaps(2)
pin_vm(g, 0, [wd_dma(6), wd_dma(7), st_issue(2), wd_dma(8), wd_dma(9)] + WL[N0_ + N1_:] + [st_issue(3)], 55 / (18 + 4 * (8 - N0_ - N1_)))
g.at(24, flag3(0))
bq = sub()
bq.wait("act3")
bq("s_barrier")
g.at(30, bq.ins)
g.at(49, st_check(2))
g.fill(st_final(2), start=50, end=54)
g.at(56, poll_first("0", S_P3, 7))
next_tile_reads(g, 3, 0, first=41)
e = g.fill(g1_epi(1), start=3)
print("tile 2: epilogue ends at gap", e, "tail", len(g.tail))
gap_stamps(g, "t2")
P.add(g.out())
stamp("tile2")
g = g1_gaps(3)
T3S = float(OPT.get("t3s", 2.4))
e = pin_vm(g, 4, [wd_load(12), wd_load(13)], T3S)
g.at(int(OPT.get("f1", 21)), flag3(1))
g.at(48, st_check(3))
g.fill(st_final(3), start=49, end=54)
g.at(e - 1, stq("t3 pre p0") + poll_check(S_P3, 7) + stq("t3 post p0") + p3_next())
pin_vm(g, e, h_loads(0), T3S)
g.at(int(OPT.get("p1", 47)), poll_first("1", S_P3, 7))
g.at(52, res_read(2))
g.at(54, res_read(3))
e = g.fill(g1_epi(2), start=2, cap=float(OPT.get("cap3", 7.5)))
print("tile 3: epilogue ends at gap", e, "tail", len(g.tail))
gap_stamps(g, "t3")
P.add(g.out())
stamp("tile3")
P.add(waitq("wd9") + wd_read(4) + wd_read(5))
ep = g1_epi_pk(3)
h1 = h_loads(1)
NE = int(OPT.get("ne", 0))
PC1 = poll_check(S_P3, 7) + p3_next()
F2E = int(OPT.get("f2e", 45))
ins_ = [(F2E, flag3(2))] if F2E >= 0 else []
if NE:
    P.add(sprinkle(ep, ins_ + [(45, PC1)] + [(46 + 14 * i, h1[i]) for i in range(NE)]))
else:
    P.add(sprinkle(ep, ins_) + PC1)
stamp("epi3")

OA = [8, 48]
OA = [224, 96]
RT = 176


NRM = int(OPT.get("nrm", 6))


def g2_mfma(J):
    m = sub()
    seq = [(ft, rt) for ft in KORD for rt in range(4)]
    if J == 3:
        seq = seq[:4 * (14 - NRM)] + [(ft, rt) for rt in range(4) for ft in KORD[14 - NRM:]]
    for ft, rt in seq:
        if True:
            d = acc(OA[J & 1] + 4 * rt, 4)
            c = "0" if ft == 0 else d
            m(f"v_mfma_f32_16x16x32_bf16 {d}, {wdr(ft,rt)}, {hreg(J,ft)}, {c}")
    return m.ins


RTMP = [28, 32, 36, 12]


def red_write(J):
    q = sub()
    for rt in range(4):
        q(f"ds_write_b128 {v(V_RW)}, {acc(OA[J&1]+4*rt,4)} offset:{(J&1)*R_SZ + rt*1152}")
    return q.ins


def red_bar():
    q = sub()
    q("s_waitcnt lgkmcnt(0)")
    q("s_barrier")
    return q.ins


def red_read(J):
    q = sub()
    for w in range(4):
        q(f"ds_read_b128 {v(RTMP[w],4)}, {v(V_RR)} offset:{(J&1)*R_SZ + w*4608}")
    return q.ins


def red_fin(J):
    q = sub()
    a, b, c, d = RTMP
    for i in range(2):
        q(f"v_lshlrev_b32 {v(16+2*i)}, 16, {v(RESR[J]+i)}")
        q(f"v_and_b32 {v(17+2*i)}, 0xffff0000, {v(RESR[J]+i)}")
    if J == 3 and "eps" not in OPT:
        for x, y in ((a, 16), (b, c), (a, d), (a, b)):
            for i in (0, 2):
                q(f"v_pk_add_f32 {v(x+i,2)}, {v(x+i,2)}, {v(y+i,2)}")
        for i in range(2):
            q(f"v_cvt_pk_bf16_f32 {v(20+i)}, {v(a+2*i)}, {v(a+2*i+1)}")
        q(f"s_mov_b32 s{S_T0}, {(1024*(J>>1) + 128*(J&1))*896}")
        q(f"buffer_store_dwordx2 v[20:21], {v(V_OST)}, {srd(SRD_OUT)}, s{S_T0} offen {OPT.get('ost', '').replace('_', ' ')}")
        return q.ins
    for i in range(4):
        q(f"v_add_f32 {v(a+i)}, {v(a+i)}, {v(b+i)}")
    for i in range(4):
        q(f"v_add_f32 {v(c+i)}, {v(c+i)}, {v(d+i)}")
    for i in range(4):
        q(f"v_add_f32 {v(a+i)}, {v(a+i)}, {v(16+i)}")
    for i in range(4):
        q(f"v_add_f32 {v(a+i)}, {v(a+i)}, {v(c+i)}")
    if "eps" in OPT:
        for i in range(4):
            q(f"v_mul_f32 {v(a+i)}, {f32(1.0+float(OPT['eps']))}, {v(a+i)}")
    for i in range(2):
        q(f"v_cvt_pk_bf16_f32 {v(20+i)}, {v(a+2*i)}, {v(a+2*i+1)}")
    q(f"s_mov_b32 s{S_T0}, {(1024*(J>>1) + 128*(J&1))*896}")
    q(f"buffer_store_dwordx2 v[20:21], {v(V_OST)}, {srd(SRD_OUT)}, s{S_T0} offen {OPT.get('ost', '').replace('_', ' ')}")
    return q.ins


for J in range(4):
    g = Gaps(g2_mfma(J), 2)
    if J > 0:
        RS_, RB_ = int(OPT.get("rs_", 4)), int(OPT.get("rb", 26))
        for i, x in enumerate(red_write(J - 1)):
            g.at(int(OPT.get("r0", 6)) + RS_ * i, [x])
        g.at(RB_, red_bar())
        for i, x in enumerate(red_read(J - 1)):
            g.at(RB_ + 1 + int(OPT.get("rr", 1)) * i, [x])
        rf = red_fin(J - 1)
        e = g.fill(rf[:-1], start=RB_ + 10, cap=float(OPT.get("rc", 2)))
        g.at(e + 1, rf[-1:])
    if J == 0:
        pin_vm(g, 0, h1[NE:], float(OPT.get("hs1", 4)))
        if F2E < 0:
            g.at(int(OPT.get("f2", 2)), flag3(2))
        C2 = int(OPT.get("c2", 56))
        h2 = h_loads(2)
        n2 = 0
        if C2 < 56:
            g.at(C2, poll_check2(S_P3, 7, 23, "1", f"s{S_E14}") + p3_next())
            n2 = int((55 - C2) / 3.5) + 1
            pin_vm(g, C2, h2[:n2], 3.5)
        for i, x in enumerate(wd_read(6) + wd_read(7) + wd_read(8) + wd_read(9)):
            g.at(1 + 2 * i, [x])
        g.at(int(OPT.get("p2a", 14)), poll_issue(S_P3, 7))
        g.at(int(OPT.get("p2b", 34)), poll_first("2", S_P3, 23))
        g.at(int(OPT.get("f3", 36)), flag3(3))
        bq = sub()
        bq.wait("res3")
        bq("s_barrier")
        g.at(52, bq.ins)
    if J == 1:
        if C2 >= 56:
            g.at(C2 - 56, poll_check2(S_P3, 7, 23, "1", f"s{S_E14}") + p3_next())
        pin_vm(g, max(C2 - 56, 1), h2[n2:], float(OPT.get("hs", 4)))
        g.at(int(OPT.get("p3a", 18)), poll_issue(S_P3, 7))
        g.at(int(OPT.get("p3b", 36)), poll_first("3", S_P3, 23))
        C3 = int(OPT.get("c3", 55))
        g.at(C3, poll_check2(S_P3, 7, 23, "1", f"s{S_E14}"))
        h3 = h_loads(3)
        n3 = (55 - C3) // 3
        pin_vm(g, C3 + 1, h3[:n3], 3)
    if J == 2:
        pin_vm(g, 0, h3[n3:], float(OPT.get("hs3", 4)))
    if J == 3:
        rw3 = red_write(3)
        for i in range(3):
            g.at(min(55 - NRM * (3 - i) + 8, 55), [rw3[i]])
    P.add(g.out())
    stamp(f"g2 tile{J}")
P.add(rw3[3:])
P.add(red_bar())
P.add(red_read(3))
P.add(red_fin(3))
stamp("end")

if "hold" in OPT:
    if "cls" in OPT:
        P(f"s_and_b32 s98, s{S_W}, 7")
        P(f"s_cmp_lg_u32 s98, {OPT['cls']}")
        P("s_cbranch_scc1 L_fin")
    P("L_hold:")
    P("s_memrealtime s[98:99]")
    P("s_waitcnt lgkmcnt(0)")
    P("s_sub_u32 s98, s98, s100")
    P("s_cmp_lt_u32 s98, 4000")
    P("s_cbranch_scc1 L_hold")
P("L_fin:")
if STAMPS:
    P(f"s_lshl_b32 s{S_T0}, s{S_W}, 2")
    P(f"s_add_u32 s{S_T0}, s{S_T0}, s{S_V}")
    P(f"s_lshl_b32 s{S_T0}, s{S_T0}, 8")
    P(f"s_add_u32 s{S_T0}, s{S_T0}, {WS_DBG + 0x800000}")
    P(f"v_lshlrev_b32 v4, 2, v1")
    P(f"buffer_store_dword v255, v4, {srd(SRD_WS)}, s{S_T0} offen")
if "dbgout" in OPT:
    P(f"s_cmp_ge_u32 s{S_W}, 224")
    P("s_cbranch_scc1 L_end")
    P(f"v_readlane_b32 s{S_T0}, v255, 0")
    P(f"s_not_b32 s{S_T0}, s{S_T0}")
    P(f"v_writelane_b32 v255, s{S_T0}, 15")
    P("s_mov_b64 exec, 0xffff")
    P(f"v_lshlrev_b32 v4, 2, v1")
    P("global_atomic_umax v4, v255, s[60:61]")
P("L_end:")
P("s_endpgm")

if "jit" in OPT:
    import random
    rnd = random.Random(int(OPT["jit"]))

    def jitter():
        q = sub()
        lb = label("jit")
        q.raw(f"s_lshl2_add_u32 s98, s{S_W}, s{S_V}")
        q.raw(f"s_mul_i32 s98, s98, {rnd.randrange(1, 1 << 30) | 1}")
        q.raw(f"s_bfe_u32 s98, s98, {hex((3 << 16) | rnd.randrange(12, 28))}")
        q.raw("s_cmp_lt_u32 s98, 6")
        q.raw(f"s_cbranch_scc1 {lb}")
        q.raw(f"s_sleep {rnd.choice([3, 10, 25, 60])}")
        q(f"{lb}:")
        return q.ins

    for prog in (P, SP):
        out_ = []
        started = prog is SP
        for k, i in enumerate(prog.ins):
            if i.text == "; @ x arrived":
                started = True
            nxt = prog.ins[k + 1] if k + 1 < len(prog.ins) else None
            safe = started and not i.cond and nxt is not None and not nxt.cond and i.cls in ("mfma", "ds", "vmem", "valu") and not i.mn.startswith("v_cmp")
            if started and i.mn == "s_barrier":
                out_ += jitter() + [i] + jitter()
            elif safe and rnd.random() < 0.012:
                out_ += [i] + jitter()
            else:
                out_.append(i)
        prog.ins = out_
if "nn" in OPT:
    NN = int(OPT["nn"])
    L_ = P.ins
    k = 0
    while k + 3 + NN < len(L_):
        if L_[k].mn == "s_add_u32" and L_[k].ops[0] == "m0" and L_[k + 1].extra == "dma" and L_[k + 2].text.startswith("s_mov_b32 m0") and all(L_[k + 3 + j].mn.startswith("v_pk") for j in range(NN)):
            L_[k + 1:k + 3 + NN] = L_[k + 3:k + 3 + NN] + L_[k + 1:k + 3]
            k += 3 + NN
        else:
            k += 1
XX_ = OPT.get("xx", "")
if "c" in XX_:
    P.ins = [i for i in P.ins if not (i.cls == "mfma" and i.ops[1] == v(SEL, 4) and i.ops[0] in (v(CSA[0], 4), v(CSA[1], 4)))]
if "0" in XX_:
    a_ = [k for k, i in enumerate(P.ins) if i.text == "; @ epi3"][0]
    b_ = [k for k, i in enumerate(P.ins) if i.text == "; @ g2 tile0"][0]
    c_ = [k for k, i in enumerate(P.ins) if i.text == "; @ tile2"][0]
    P.ins = [i for k, i in enumerate(P.ins) if not (a_ < k < b_ and i.cls == "mfma") and not (c_ < k < a_ and i.mn == "buffer_load_dwordx4" and i.ops[1] == v(V_HL))]
if "k" in XX_:
    a_ = [k for k, i in enumerate(P.ins) if i.text == "; @ ln1 done"][0]
    b_ = [k for k, i in enumerate(P.ins) if i.text == "; @ kgen r1"][0]
    P.ins = [i for k, i in enumerate(P.ins) if not (a_ < k < b_ and i.mn == "v_pk_mul_f32")]
if "r" in XX_:
    a_ = [k for k, i in enumerate(P.ins) if i.text == "; @ g2 tile0"][0]
    b_ = [k for k, i in enumerate(P.ins) if i.text == "; @ g2 tile3"][0]
    P.ins = [i for k, i in enumerate(P.ins) if not (a_ < k < b_ and i.cls in ("ds", "valu") and not i.mn.startswith(("v_cmp", "v_mov", "v_add_u32")))]
XG = OPT.get("xg", "")
if XG:
    a_ = [k for k, i in enumerate(P.ins) if i.text == "; @ gemm1 start"][0]
    b_ = [k for k, i in enumerate(P.ins) if i.text == "; @ tile3"][0]
    seg = P.ins[a_:b_]
    if "w" in XG:
        seg = [i for i in seg if not (i.mn == "buffer_load_dwordx4" and (i.ops[0] == "v3" or i.ops[1] in ("v3", "v44")))]
    if "e" in XG:
        seg = [i for i in seg if not (i.cls in ("valu", "trans") and (i.wr & {f"v{r}" for r in range(EPT, EPT + 8)}))]
    if "b" in XG:
        seg = [i for i in seg if not (i.mn == "ds_read2st64_b32" and i.ops[1] == f"v{V_BR2}")]
    P.ins = P.ins[:a_] + seg + P.ins[b_:]
resolve_lazy()
res = finalize(P.ins, verbose=True, lg_age=int(OPT["lga"]) if "lga" in OPT else None, vm_age=int(OPT["vma"]) if "vma" in OPT else None) + finalize(TAIL.ins) + finalize(SP.ins)
if "report" in OPT:
    report_waits(finalize(P.ins))
launch = f"; @launch kernel={KN} grid" if ("list" in OPT or STAMPS) else "; @launch grid"
hdr = f"""; Fused pre-LN S4D conv + GEGLU FFN in one persistent launch (emitted by my own generator script).
; B_x (unused), w_gate, w_up, w_down, out, debug, ws.
;  wg<224  : S4D kernel K for 2 channels at the 641 distinct bf16 positions (power tables + MFMA),
;            GEMM1 128 tokens x (128+128) cols with LN2 folded in algebraically, GELU*up -> ws,
{launch}=(256,1,1) block=(256,1,1) lds={LDS_SIZE}
.amdgcn_target "amdgcn-amd-amdhsa--gfx950"
.text
.globl {KN}
.p2align 12
.p2align 8
.type {KN},@function
{KN}:
"""
ftr = f"""
.p2align 8
.fill 64, 4, 0xbf800000
L_codeend:
.section .rodata,"a"
.p2align 6
.amdhsa_kernel {KN}
  .amdhsa_next_free_vgpr 512
  .amdhsa_next_free_sgpr 102
  .amdhsa_accum_offset 256
  .amdhsa_group_segment_fixed_size 0
  .amdhsa_kernarg_size 112
  .amdhsa_user_sgpr_count 2
  .amdhsa_user_sgpr_kernarg_segment_ptr 1
  .amdhsa_system_sgpr_workgroup_id_x 1
.end_amdhsa_kernel
"""
body = text_of(res)
WALKS = ([("early", "L_early_back" if OPT.get("w2") == "c" else "L_main", "L_walk_back")] if OPT.get("w2") in ("a", "b", "c") else []) + [("walk", "L_walk_back", "L_fin")]
body = place_pads2(hdr, body, ftr, 0x300, WALKS)
open(OUTF, "w").write(hdr + body + ftr)
src = open(__file__).read()
a = src.index("# ---------------- workspace layout")
b = src.index("# ---------------- LDS layout")
open("layout.py", "w").write(src[a:b] + "\nSTAMP_NAMES = " + repr(stamp_names) + "\nSPIN_NAMES = " + repr(spin_names) + "\n")
```
